```python
import torch

def _softmax(x, axis=-1):
    return torch.softmax(x, dim=axis)
def _gelu(x):
    return torch.nn.functional.gelu(x, approximate="tanh")
def _silu(x):
    return torch.nn.functional.silu(x)
def _sigmoid(x):
    return torch.sigmoid(x)
def _layernorm(x, axis=-1, eps=1e-5):
    m = x.mean(dim=axis, keepdim=True)
    v = x.var(dim=axis, keepdim=True, unbiased=False)
    return (x - m) / torch.sqrt(v + eps)
def _scatter_add(tgt, idx, src, axis=0):
    return tgt.clone().index_add_(axis, idx, src)
def _segment_sum(src, seg, n):
    out = torch.zeros((n,) + src.shape[1:], dtype=src.dtype)
    return out.index_add_(0, seg, src)
def _pad(x, pw):
    flat = tuple(v for pair in reversed(pw) for v in pair)
    return torch.nn.functional.pad(x, flat)

kernel_name = 'gated_mix__ssm_conv_s4__swiglu_ffn__prompt'

def setup_inputs():

    _w = (lambda a: (lambda t: t.to(torch.bfloat16) if t.is_floating_point() else t)(torch.as_tensor(a)))
    def _A_setup():
        B, L, D, N = 1, 2048, 640, 192
        A_re = -(lambda _x: torch.exp(torch.as_tensor(_x)))((lambda *s: torch.randn(*s, dtype=torch.bfloat16) * 3.2)(D, N))
        A_im = torch.pi * (lambda *s: torch.randn(*s, dtype=torch.bfloat16) * 0.05)(D, N)
        B_re = (lambda *s: torch.randn(*s, dtype=torch.bfloat16) * 0.1)(D, N)
        B_im = (lambda *s: torch.randn(*s, dtype=torch.bfloat16) * 0.1)(D, N)
        C_re = (lambda *s: torch.randn(*s, dtype=torch.bfloat16) * 0.1)(D, N)
        C_im = (lambda *s: torch.randn(*s, dtype=torch.bfloat16) * 0.1)(D, N)
        log_dt = (lambda *s: torch.randn(*s, dtype=torch.bfloat16) * 0.05)(D) * 0.5 - 4.0
        Dskip = (lambda *s: torch.randn(*s, dtype=torch.bfloat16) * 0.05)(D)
        return {
            "u": _w((lambda *s: torch.randn(*s, dtype=torch.bfloat16) * 0.05)(B, L, D)),
            "A_re": _w(A_re),
            "A_im": _w(A_im),
            "B_re": _w(B_re),
            "B_im": _w(B_im),
            "C_re": _w(C_re),
            "C_im": _w(C_im),
            "log_dt": _w(log_dt),
            "Dskip": _w(Dskip),
        }
    _A_in = _A_setup()

    def _B_setup():
        B, S, D, F = 1, 2048, 640, 1536
        return {
            "x": _w((lambda *s: torch.randn(*s, dtype=torch.bfloat16) * 0.05)(B, S, D)),
            "w_gate": _w((lambda *s: torch.randn(*s, dtype=torch.bfloat16) * 0.05)(D, F)),
            "w_up": _w((lambda *s: torch.randn(*s, dtype=torch.bfloat16) * 0.05)(D, F)),
            "w_down": _w((lambda *s: torch.randn(*s, dtype=torch.bfloat16) * 0.05)(F, D)),
        }
    _B_in = _B_setup()

    return {
        "A_u": _A_in["u"],
        "A_A_re": _A_in["A_re"],
        "A_A_im": _A_in["A_im"],
        "A_B_re": _A_in["B_re"],
        "A_B_im": _A_in["B_im"],
        "A_C_re": _A_in["C_re"],
        "A_C_im": _A_in["C_im"],
        "A_log_dt": _A_in["log_dt"],
        "A_Dskip": _A_in["Dskip"],
        "B_x": _B_in["x"],
        "B_w_gate": _B_in["w_gate"],
        "B_w_up": _B_in["w_up"],
        "B_w_down": _B_in["w_down"],
        "gate_w": _w((lambda *s: torch.randn(*s, dtype=torch.bfloat16) * 0.05)(640) * 16.0),
    }

def reference(A_u, A_A_re, A_A_im, A_B_re, A_B_im, A_C_re, A_C_im, A_log_dt, A_Dskip, B_x, B_w_gate, B_w_up, B_w_down, gate_w):
    def _A_ref(u, A_re, A_im, B_re, B_im, C_re, C_im, log_dt, Dskip):
        Bsz, L, D = u.shape
        dt = torch.exp(log_dt)[:, None]
        A = A_re + 1j * A_im
        Bc = B_re + 1j * B_im
        Cc = C_re + 1j * C_im
        logdA = dt * A
        dB = dt * Bc
        l = (lambda x, dt: x.to(dt))(torch.arange(L), A_re.dtype)
        P = torch.exp(logdA[:, :, None] * l[None, None, :])
        K = torch.einsum("dn,dnl,dn->dl", Cc, P, dB).real
        L2 = 2 * L
        Kp = _pad(K, ((0, 0), (0, L)))
        up = (lambda x, *d: x.permute(*d))(u, 0, 2, 1)
        up = _pad(up, ((0, 0), (0, 0), (0, L)))
        Kf = (lambda x, axes=(-2,-1): torch.fft.rfft2(x.float(), dim=axes))(Kp[:, None, :], axes=(-2, -1))
        Uf = (lambda x, axes=(-2,-1): torch.fft.rfft2(x.float(), dim=axes))(up[:, :, None, :], axes=(-2, -1))
        Yf = Uf * Kf[None, :, :, :]
        y = (lambda x, s, axes=(-2,-1): torch.fft.irfft2(x, s=s, dim=axes).to(torch.bfloat16))(Yf, (1, L2), axes=(-2, -1))[:, :, 0, :L]
        y = (lambda x, *d: x.permute(*d))(y, 0, 2, 1) + u * Dskip[None, None, :]
        return y

    def _B_ref(x, w_gate, w_up, w_down):
        g = _silu(x @ w_gate)
        u = x @ w_up
        return (g * u) @ w_down

    x = A_u
    g = _sigmoid((x * gate_w).sum(-1, keepdims=True))
    a = _A_ref(x, A_A_re, A_A_im, A_B_re, A_B_im, A_C_re, A_C_im, A_log_dt, A_Dskip)
    b = _B_ref(x, B_w_gate, B_w_up, B_w_down)
    return g * a + (1 - g) * b
```

```python
import sys, math

KNAME = "gated_mix__ssm_conv_s4__swiglu_ffn__prompt_kernel"

WS_H    = 0x000000
WS_WD   = 0x600000
WS_UT   = 0x800000
WS_Y    = 0xB00000
WS_G    = 0xE00000
WS_FS   = 0xE10000
WS_FH   = 0xE11000
WS_FY   = 0xE12000
WS_NON  = 0xE13000
WS_TS   = 0xF00000
WS_DBG  = 0x1000000

STAGE   = 40960
ST_WG   = 16384
ST_WU   = 28672
LDS_S   = 3 * STAGE
TABROW  = 272
TABTILE = 16 * TABROW
TAB_SZ  = 2 * TABTILE
LDS_TAB = LDS_S
KR_SZ   = 4224
LDS_KR  = LDS_TAB + 3 * TAB_SZ
LDS_MISC = LDS_KR + 3 * KR_SZ
LDS_TOTAL = 163840
LDS_NONCE = LDS_MISC
LDS_CNT   = LDS_MISC + 4
UC_STRIDE = 4640
UC_SZ   = 4 * UC_STRIDE
LDS_UC  = 0
LDS_RED = 57344
LDS_YT  = LDS_TAB
LDS_GT  = LDS_MISC + 64

class Asm:
    def __init__(self):
        self.l = []
    def __call__(self, s):
        for x in s.split("\n"):
            x = x.strip()
            if x: self.l.append("    " + x)
    def lab(self, s):
        self.l.append(s + ":")
    def ext(self, lst):
        for x in lst: self(x)
    def text(self):
        return "\n".join(self.l) + "\n"

def interleave(main, fill, start=0, span=None):
    out = []
    m = len(fill)
    n = len(main) if span is None else min(len(main), start + span)
    j = 0
    for i, x in enumerate(main):
        out.append(x)
        if i >= start:
            tgt = (m * (i - start + 1) + (n - start) - 1) // (n - start) if n > start else m
            while j < min(tgt, m):
                f = fill[j]
                if isinstance(f, tuple): out.extend(f)
                else: out.append(f)
                j += 1
    while j < m:
        f = fill[j]
        if isinstance(f, tuple): out.extend(f)
        else: out.append(f)
        j += 1
    return out

def flat(L):
    o = []
    for x in L:
        if isinstance(x, tuple): o.extend(x)
        else: o.append(x)
    return o

def vr(a, n=1):
    return "v%d" % a if n == 1 else "v[%d:%d]" % (a, a + n - 1)
def sr(a, n=1):
    return "s%d" % a if n == 1 else "s[%d:%d]" % (a, a + n - 1)

S_W, S_WAVE, S_M, S_N, S_M2, S_N2 = 2, 3, 4, 5, 6, 7
SRD_X, SRD_WG, SRD_WU, SRD_WS, SRD_OUT, SRD_WD = 8, 12, 16, 20, 24, 28
P_U, P_ARE, P_AIM, P_BRE, P_BIM, P_CRE, P_CIM, P_LDT = 32, 34, 36, 38, 40, 42, 44, 46
P_DSK, P_BX, P_WG, P_WU, P_WD, P_GW, P_OUT, P_DBG, P_WS = 48, 50, 52, 54, 56, 58, 60, 62, 64
S_TS = 80

class Gen:
    def __init__(self, name, phases, stamps=False):
        self.name = name
        self.ph = phases
        self.a = Asm()
        self.stamps = stamps
        self.nlab = 0
    def newlab(self, p):
        self.nlab += 1
        return "L_%s_%s_%d" % (self.name[:6], p, self.nlab)

    def stamp(self, i):
        if self.stamps:
            self.a("s_memtime s[%d:%d]" % (S_TS + 2 * i, S_TS + 2 * i + 1))
            self.a("s_waitcnt lgkmcnt(0)")
    def stamp_flush(self):
        if not self.stamps: return
        a = self.a
        a("s_lshl_b32 s66, s2, 3")
        a("s_add_u32 s66, s66, s3")
        a("s_lshl_b32 s66, s66, 7")
        a("s_add_u32 s66, s66, 0x%x" % WS_TS)
        a("v_mov_b32 v250, 0")
        for i in range(10):
            a("v_mov_b32 v252, s%d" % (S_TS + 2 * i))
            a("v_mov_b32 v253, s%d" % (S_TS + 2 * i + 1))
            a("buffer_store_dwordx2 v[252:253], v250, s[20:23], s66 offen offset:%d" % (8 * i))
            a("s_nop 1")
        a("s_waitcnt vmcnt(0)")

    def prologue(self):
        a = self.a
        a("s_cmp_ge_u32 s2, 256")
        a("s_cbranch_scc1 %s_end" % self.name)
        a("s_load_dwordx16 s[32:47], s[0:1], 0")
        a("s_load_dwordx16 s[48:63], s[0:1], 64")
        a("s_load_dwordx2 s[64:65], s[0:1], 128")
        a("v_lshrrev_b32 v1, 6, v0")
        a("v_and_b32 v0, 63, v0")
        a("v_readfirstlane_b32 s3, v1")
        a("s_and_b32 s66, s2, 7")
        a("s_lshr_b32 s67, s2, 3")
        a("s_and_b32 s68, s67, 7")
        a("s_lshr_b32 s69, s67, 3")
        a("s_and_b32 s70, s66, 1")
        a("s_lshl_b32 s70, s70, 3")
        a("s_or_b32 s4, s70, s68")
        a("s_lshr_b32 s70, s66, 1")
        a("s_lshl_b32 s70, s70, 2")
        a("s_or_b32 s5, s70, s69")
        a("s_and_b32 s70, s66, 3")
        a("s_lshl_b32 s70, s70, 3")
        a("s_or_b32 s6, s70, s68")
        a("s_lshr_b32 s70, s66, 2")
        a("s_lshl_b32 s70, s70, 2")
        a("s_or_b32 s7, s70, s69")
        if self.stamps:
            for i in range(10):
                a("s_mov_b64 s[%d:%d], 0" % (S_TS + 2 * i, S_TS + 2 * i + 1))
        a("s_waitcnt lgkmcnt(0)")
        def srd(base, ptr, size):
            a("s_mov_b32 s%d, s%d" % (base, ptr))
            a("s_and_b32 s%d, s%d, 0xffff" % (base + 1, ptr + 1))
            a("s_mov_b32 s%d, 0x%x" % (base + 2, size))
            a("s_mov_b32 s%d, 0x20000" % (base + 3))
        srd(SRD_X, P_U, 2048 * 640 * 2)
        srd(SRD_WG, P_WG, 640 * 1536 * 2)
        srd(SRD_WU, P_WU, 640 * 1536 * 2)
        srd(SRD_WS, P_WS, 0x10000000)
        srd(SRD_OUT, P_OUT, 2048 * 640 * 2)
        srd(SRD_WD, P_WD, 640 * 1536 * 2)
        self.stamp(0)

    def g_gemm1(self):
        a = self.a
        ACC = 0; FP = 96; FQ = 136
        VXB = 176
        VWA = 182
        VL16 = 196
        T = 200
        accg = lambda ft, tt: ACC + (ft * 4 + tt) * 4
        accu = lambda ft, tt: ACC + 48 + (ft * 4 + tt) * 4
        LANE = 197
        a("v_mov_b32 v%d, v0" % LANE)
        a("s_and_b32 s67, s3, 1")
        a("s_lshr_b32 s68, s3, 1")
        VOX = 191
        a("v_lshrrev_b32 v%d, 3, v%d" % (T, LANE))
        a("s_lshl_b32 s69, s4, 7")
        a("s_lshl_b32 s70, s3, 5")
        a("s_add_u32 s69, s69, s70")
        a("v_add_u32 v%d, s69, v%d" % (T, T))
        a("s_movk_i32 s70, 1280")
        a("v_mul_lo_u32 v%d, v%d, s70" % (T, T))
        a("v_and_b32 v%d, 7, v%d" % (T + 1, LANE))
        a("v_lshrrev_b32 v%d, 4, v%d" % (T + 2, LANE))
        a("v_xor_b32 v%d, v%d, v%d" % (T + 3, T + 1, T + 2))
        a("v_xor_b32 v%d, 4, v%d" % (T + 4, T + 3))
        a("v_lshl_add_u32 v%d, v%d, 4, v%d" % (VOX, T + 3, T))
        a("v_lshl_add_u32 v%d, v%d, 4, v%d" % (VOX + 1, T + 4, T))
        a("s_lshl_b32 s75, s3, 12")
        def xdma(st):
            base = (st % 3) * STAGE
            L = []
            for i in range(4):
                if i == 0:
                    L.append(("s_add_u32 m0, s75, %d" % base, "s_mov_b32 s70, %d" % (128 * st),
                              "buffer_load_dwordx4 v%d, s[8:11], s70 offen lds" % VOX))
                else:
                    L.append(("s_mov_b32 s70, %d" % (128 * st + 9216 * i),
                              "buffer_load_dwordx4 v%d, s[8:11], s70 offen offset:%d lds" % (VOX + (i & 1), 1024 * i)))
            return L
        a.ext(flat(xdma(0)))
        a.ext(flat(xdma(1)))
        a("v_and_b32 v%d, 15, v%d" % (T, LANE))
        a("v_lshrrev_b32 v%d, 4, v%d" % (T + 1, LANE))
        a("s_lshl_b32 s69, s67, 6")
        a("v_add_u32 v%d, s69, v%d" % (T + 2, T))
        a("v_lshlrev_b32 v%d, 7, v%d" % (T + 2, T + 2))
        a("v_lshrrev_b32 v%d, 1, v%d" % (T + 3, T))
        a("v_and_b32 v%d, 7, v%d" % (T + 3, T + 3))
        a("v_xor_b32 v%d, v%d, v%d" % (T + 3, T + 3, T + 1))
        a("v_xor_b32 v%d, 4, v%d" % (T + 4, T + 3))
        a("v_lshl_add_u32 v%d, v%d, 4, v%d" % (VXB, T + 3, T + 2))
        a("v_lshl_add_u32 v%d, v%d, 4, v%d" % (VXB + 1, T + 4, T + 2))
        for st in (1, 2):
            for s in range(2):
                a("v_add_u32 v%d, %d, v%d" % (VXB + 2 * st + s, st * STAGE, VXB + s))
        a("v_lshrrev_b32 v%d, 2, v%d" % (T + 2, T))
        a("v_lshl_add_u32 v%d, v%d, 3, v%d" % (T + 2, T + 1, T + 2))
        a("v_mul_u32_u24 v%d, 192, v%d" % (T + 2, T + 2))
        a("v_and_b32 v%d, 3, v%d" % (T + 3, LANE))
        a("v_lshl_add_u32 v%d, v%d, 3, v%d" % (T + 2, T + 3, T + 2))
        a("v_add_u32 v%d, %d, v%d" % (T + 2, ST_WG, T + 2))
        a("v_and_b32 v%d, 1, v%d" % (T + 3, T + 1))
        a("s_lshl_b32 s69, s68, 2")
        a("s_add_u32 s78, s69, 1")
        a("s_add_u32 s79, s68, 2")
        for ft, sreg in ((0, 69), (1, 78), (2, 79)):
            a("v_xor_b32 v%d, s%d, v%d" % (T + 4, sreg, T + 3))
            a("v_lshl_add_u32 v%d, v%d, 5, v%d" % (VWA + ft, T + 4, T + 2))
        for st in (1, 2):
            for ft in range(3):
                a("v_add_u32 v%d, %d, v%d" % (VWA + 3 * st + ft, st * STAGE, VWA + ft))
        a("v_lshlrev_b32 v%d, 4, v%d" % (VL16, LANE))
        a("s_lshl_b32 s69, s4, 1")
        a("s_add_u32 s69, s69, s67")
        a("s_mul_i32 s69, s69, 48")
        a("s_mul_i32 s78, s5, 3")
        a("s_add_u32 s69, s69, s78")
        a("s_lshl_b32 s78, s68, 1")
        a("s_add_u32 s78, s78, s69")
        a("s_lshl_b32 s78, s78, 12")
        a("s_add_u32 s79, s69, 1")
        a("s_lshl_b32 s79, s79, 12")
        a("s_lshl_b32 s69, s68, 3")
        a("s_add_u32 s79, s79, s69")
        if WS_H:
            a("s_add_u32 s78, s78, %d" % WS_H); a("s_add_u32 s79, s79, %d" % WS_H)

        def reads(kk, s, F):
            st = kk % 3
            xs = ["ds_read_b128 v[%d:%d], v%d offset:%d" % (F + 4 * tt, F + 4 * tt + 3, VXB + 2 * st + s, 2048 * tt) for tt in range(4)]
            ws = []
            for mat in range(2):
                for ft in range(3):
                    r = F + 16 + (mat * 3 + ft) * 4
                    for h in range(2):
                        ws.append("ds_read_b64_tr_b16 v[%d:%d], v%d offset:%d" % (r + 2 * h, r + 2 * h + 1, VWA + 3 * st + ft, 12288 * mat + 6144 * s + 768 * h))
            order = [xs[0], ws[0], ws[1], xs[1], ws[6], ws[7], xs[2], xs[3]] + ws[2:6] + ws[8:]
            return order
        def mfmas(F, first):
            L = []
            for ft in range(3):
                for mat in range(2):
                    for tt in range(4):
                        acc = accg(ft, tt) if mat == 0 else accu(ft, tt)
                        A = F + 16 + (mat * 3 + ft) * 4
                        B = F + 4 * tt
                        c = "0" if first else "v[%d:%d]" % (acc, acc + 3)
                        L.append("v_mfma_f32_16x16x32_bf16 v[%d:%d], v[%d:%d], v[%d:%d], %s" % (acc, acc + 3, A, A + 3, B, B + 3, c))
            return L
        def spread(mm, d, first, step):
            out = []; cnt = 0; di = 0
            for x in mm:
                out.append(x)
                if x.startswith("v_mfma"):
                    cnt += 1
                    if cnt >= first and (cnt - first) % step == 0 and di < len(d):
                        f = d[di]; di += 1
                        out.extend(f if isinstance(f, tuple) else (f,))
            assert di == len(d), (di, len(d))
            return out
        self.stamp(5)
        a("s_waitcnt vmcnt(4)")
        a("s_barrier")
        self.stamp(1)
        a.ext(reads(0, 0, FP))
        a("s_waitcnt lgkmcnt(0)")
        pend = xdma(2)
        for kk in range(10):
            mm = interleave(mfmas(FP, kk == 0), reads(kk, 1, FQ), span=16)
            if pend: mm = spread(mm, pend, 3, 5 if len(pend) > 2 else 10)
            a.ext(mm)
            if kk <= 7: a("s_waitcnt vmcnt(4) lgkmcnt(0)")
            elif kk == 8: a("s_waitcnt vmcnt(0) lgkmcnt(0)")
            else: a("s_waitcnt lgkmcnt(0)")
            a("s_barrier")
            fill = reads(kk + 1, 0, FP) if kk + 1 < 10 else []
            mm = interleave(mfmas(FQ, False), fill, span=16)
            d = xdma(kk + 3) if kk + 3 < 10 else []
            pend = d[2:]
            if d: mm = spread(mm, d[:2], 6, 10)
            a.ext(mm)
            if kk + 1 < 10:
                a("s_waitcnt lgkmcnt(0)")
        self.stamp(2)
        CN = FP; ONE = FP + 2
        a("v_mov_b32 v%d, 0xbfb8aa3b" % CN)
        a("v_mov_b32 v%d, 0xbfb8aa3b" % (CN + 1))
        a("v_mov_b32 v%d, 1.0" % ONE)
        a("v_mov_b32 v%d, 1.0" % (ONE + 1))
        grp = 0
        def silu(gregs, uregs, tmp, out):
            n = len(gregs)
            L = []
            for i in range(n): L.append("v_pk_mul_f32 v[%d:%d], v[%d:%d], v[%d:%d]" % (tmp + 2 * i, tmp + 2 * i + 1, gregs[i], gregs[i] + 1, CN, CN + 1))
            for i in range(2 * n): L.append("v_exp_f32 v%d, v%d" % (tmp + i, tmp + i))
            for i in range(n): L.append("v_pk_mul_f32 v[%d:%d], v[%d:%d], v[%d:%d]" % (gregs[i], gregs[i] + 1, gregs[i], gregs[i] + 1, uregs[i], uregs[i] + 1))
            for i in range(n): L.append("v_pk_add_f32 v[%d:%d], v[%d:%d], v[%d:%d]" % (tmp + 2 * i, tmp + 2 * i + 1, tmp + 2 * i, tmp + 2 * i + 1, ONE, ONE + 1))
            for i in range(2 * n): L.append("v_rcp_f32 v%d, v%d" % (tmp + i, tmp + i))
            if n < 2: L.append("s_nop 0")
            for i in range(n): L.append("v_pk_mul_f32 v[%d:%d], v[%d:%d], v[%d:%d]" % (gregs[i], gregs[i] + 1, gregs[i], gregs[i] + 1, tmp + 2 * i, tmp + 2 * i + 1))
            for i in range(n): L.append("v_cvt_pk_bf16_f32 v%d, v%d, v%d" % (out + i, gregs[i], gregs[i] + 1))
            return L
        for tt in range(4):
            tmp = FQ + (grp % 2) * 16; out = FP + 8 + (grp % 4) * 4; grp += 1
            g = [accg(0, tt), accg(0, tt) + 2, accg(1, tt), accg(1, tt) + 2]
            u = [accu(0, tt), accu(0, tt) + 2, accu(1, tt), accu(1, tt) + 2]
            a.ext(silu(g, u, tmp, out))
            a("buffer_store_dwordx4 v[%d:%d], v%d, s[20:23], s78 offen offset:%d sc1" % (out, out + 3, VL16, 1024 * tt))
            tmp = FQ + (grp % 2) * 16; out = FP + 8 + (grp % 4) * 4; grp += 1
            g = [accg(2, tt), accg(2, tt) + 2]
            u = [accu(2, tt), accu(2, tt) + 2]
            a.ext(silu(g, u, tmp, out))
            a("buffer_store_dwordx2 v[%d:%d], v%d, s[20:23], s79 offen offset:%d sc1" % (out, out + 1, VL16, 1024 * tt))
        self.stamp(3)
        a("s_waitcnt vmcnt(0)")
        self.stamp(4)

    def s_wloader(self, sigma):
        a = self.a
        T = 1; VO = 10
        a("s_mul_i32 s69, s5, 192")
        a("s_mov_b32 s78, 43691")
        a("s_movk_i32 s79, 3072")
        for i in range(3):
            a("v_add_u32 v%d, %d, v0" % (T, 64 * i))
            a("v_mul_lo_u32 v%d, v%d, s78" % (T + 1, T))
            a("v_lshrrev_b32 v%d, 19, v%d" % (T + 1, T + 1))
            a("v_mul_u32_u24 v%d, 12, v%d" % (T + 2, T + 1))
            a("v_sub_u32 v%d, v%d, v%d" % (T + 2, T, T + 2))
            a("v_lshrrev_b32 v%d, 2, v%d" % (T + 3, T + 1))
            a("v_and_b32 v%d, 2, v%d" % (T + 3, T + 3))
            a("v_xor_b32 v%d, v%d, v%d" % (T + 2, T + 2, T + 3))
            a("v_mul_lo_u32 v%d, v%d, s79" % (T + 1, T + 1))
            a("v_lshl_add_u32 v%d, v%d, 4, v%d" % (T + 1, T + 2, T + 1))
            a("v_add_u32 v%d, s69, v%d" % (VO + i, T + 1))
        def dma(st):
            base = (st % 3) * STAGE
            for P in range(8 * sigma, 8 * sigma + 8):
                mat, I = divmod(P, 12)
                srd = "s[12:15]" if mat == 0 else "s[16:19]"
                a("s_mov_b32 m0, %d" % (base + (ST_WG if mat == 0 else ST_WU) + 1024 * I))
                a("s_mov_b32 s70, %d" % (196608 * st + 49152 * (I // 3)))
                a("buffer_load_dwordx4 v%d, %s, s70 offen lds" % (VO + I % 3, srd))
        self.loader_loop(dma, 8)

    def loader_loop(self, dma, n):
        a = self.a
        dma(0)
        dma(1)
        self.stamp(5)
        a("s_waitcnt vmcnt(%d)" % n)
        a("s_barrier")
        self.stamp(1)
        dma(2)
        for kk in range(10):
            if kk <= 7: a("s_waitcnt vmcnt(%d)" % n)
            elif kk == 8: a("s_waitcnt vmcnt(0)")
            a("s_barrier")
            if kk + 3 < 10: dma(kk + 3)
        self.stamp(2)

    def side_setup(self):
        a = self.a
        a("s_mov_b32 s67, 52429")
        a("s_movk_i32 s68, 1280")
        for i in range(5):
            a("v_add_u32 v1, %d, v0" % (64 * i))
            a("v_mul_lo_u32 v2, v1, s67")
            a("v_lshrrev_b32 v2, 19, v2")
            a("v_mul_u32_u24 v3, 10, v2")
            a("v_sub_u32 v3, v1, v3")
            a("v_mul_lo_u32 v2, v2, s68")
            a("v_lshl_add_u32 v%d, v3, 4, v2" % (50 + i))
        a("v_lshrrev_b32 v1, 4, v0")
        a("v_and_b32 v2, 15, v0")
        a("v_lshrrev_b32 v3, 2, v2")
        a("v_lshl_add_u32 v4, v1, 2, v3")
        a("v_mul_u32_u24 v4, 160, v4")
        a("v_add_u32 v4, %d, v4" % LDS_TAB)
        a("v_and_b32 v5, 3, v0")
        a("v_lshl_add_u32 v55, v5, 4, v4")
        a("v_lshl_add_u32 v56, v5, 3, v4")
        a("v_lshlrev_b32 v57, 4, v0")
        a("v_lshlrev_b32 v58, 2, v0")
        a("v_lshl_add_u32 v4, v1, 3, v3")
        a("v_lshlrev_b32 v4, 7, v4")
        a("v_bfe_u32 v5, v0, 1, 1")
        a("v_lshrrev_b32 v6, 1, v3")
        a("v_xor_b32 v5, v5, v6")
        a("v_lshl_add_u32 v4, v5, 4, v4")
        a("v_and_b32 v5, 1, v0")
        a("v_lshl_add_u32 v4, v5, 3, v4")
        a("v_and_b32 v5, 1, v1")
        a("v_lshl_add_u32 v59, v5, 6, v4")
        a("v_xor_b32 v5, 1, v5")
        a("v_lshl_add_u32 v60, v5, 6, v4")
        a("v_lshlrev_b32 v61, 12, v2")
        a("v_lshl_add_u32 v61, v1, 4, v61")
        a("s_add_u32 s51, s2, 128")
        a("s_cmp_ge_u32 s2, 128")
        a("s_cselect_b32 s51, s51, 999")
        a("s_lshr_b32 s52, s5, 1")
        a("s_add_u32 s53, s52, 8")
        a("s_cmp_lt_u32 s5, 4")
        a("s_cselect_b32 s53, s53, 99")
    def wd_load(self, ureg, scr):
        a = self.a
        a("s_lshr_b32 s67, %s, 3" % ureg)
        a("s_and_b32 s68, %s, 7" % ureg)
        a("s_mul_i32 s69, s67, %d" % (32 * 1280))
        a("s_mul_i32 s67, s68, 160")
        a("s_add_u32 s69, s69, s67")
        for i in range(5):
            a("s_mov_b32 m0, %d" % (LDS_TAB + scr + 1024 * i))
            a("s_nop 0")
            a("buffer_load_dwordx4 v%d, s[28:31], s69 offen lds" % (50 + i))
    def wd_store(self, ureg, scr):
        a = self.a
        for dt in range(5):
            for h in range(2):
                if dt < 4: ad, off = 55, 64 * (dt >> 1) + 8 * (dt & 1) + 2560 * h
                else: ad, off = 56, 128 + 2560 * h
                a("ds_read_b64_tr_b16 v[%d:%d], v%d offset:%d" % (8 + 4 * dt + 2 * h, 9 + 4 * dt + 2 * h, ad, off + scr))
        a("s_lshr_b32 s67, %s, 3" % ureg)
        a("s_and_b32 s68, %s, 7" % ureg)
        a("s_mul_i32 s68, s68, 48")
        a("s_add_u32 s67, s67, s68")
        a("s_mul_i32 s67, s67, 5120")
        a("s_add_u32 s67, s67, %d" % WS_WD)
        a("s_add_u32 s68, s67, 4096")
        a("s_waitcnt lgkmcnt(0)")
        for dt in range(5):
            if dt < 4: a("buffer_store_dwordx4 v[%d:%d], v57, s[20:23], s67 offen offset:%d sc1" % (8 + 4 * dt, 11 + 4 * dt, 1024 * dt))
            else: a("buffer_store_dwordx4 v[%d:%d], v57, s[20:23], s68 offen sc1" % (8 + 4 * dt, 11 + 4 * dt))
    def gate_load(self):
        a = self.a
        a("v_and_b32 v1, 15, v0")
        a("v_lshlrev_b32 v1, 4, v1")
        for j in range(5):
            a("global_load_dwordx4 v[%d:%d], v1, s[%d:%d] offset:%d" % (8 + 4 * j, 11 + 4 * j, P_GW, P_GW + 1, 256 * j))
        a("v_lshrrev_b32 v2, 4, v0")
        a("s_movk_i32 s67, 1280")
        a("v_mul_lo_u32 v2, v2, s67")
        a("v_add_u32 v2, v2, v1")
        a("s_lshl_b32 s67, s2, 3")
        a("s_mul_i32 s67, s67, 1280")
        for half in range(2):
            for j in range(5):
                r = 28 + 20 * half + 4 * j
                a("buffer_load_dwordx4 v[%d:%d], v2, s[8:11], s67 offen offset:%d" % (r, r + 3, 256 * j))
            if half == 0: a("s_add_u32 s67, s67, %d" % (4 * 1280))
    def gate_compute(self):
        a = self.a
        R = 68
        for i in range(4): a("v_mov_b32 v%d, 0" % (R + i))
        for j in range(5):
            for e in range(4):
                for half in range(2):
                    acc = R + half + 2 * (e & 1)
                    a("v_dot2_f32_bf16 v%d, v%d, v%d, v%d" % (acc, 28 + 20 * half + 4 * j + e, 8 + 4 * j + e, acc))
        a("s_nop 2")
        a("v_add_f32 v%d, v%d, v%d" % (R, R, R + 2))
        a("v_add_f32 v%d, v%d, v%d" % (R + 1, R + 1, R + 3))
        a("s_nop 0")
        for ctl in ("row_shr:1", "row_shr:2", "row_shr:4", "row_shr:8"):
            for i in range(2):
                a("v_add_f32_dpp v%d, v%d, v%d %s row_mask:0xf bank_mask:0xf bound_ctrl:1" % (R + i, R + i, R + i, ctl))
            a("s_nop 0")
        for i in range(2): a("v_mul_f32 v%d, 0xbfb8aa3b, v%d" % (R + i, R + i))
        for i in range(2): a("v_exp_f32 v%d, v%d" % (R + i, R + i))
        a("s_nop 0")
        for i in range(2): a("v_add_f32 v%d, 1.0, v%d" % (R + i, R + i))
        for i in range(2): a("v_rcp_f32 v%d, v%d" % (R + i, R + i))
        a("s_lshl_b32 s67, s2, 5")
        a("s_add_u32 s67, s67, %d" % WS_G)
        a("v_lshrrev_b32 v1, 4, v0")
        a("v_lshlrev_b32 v1, 2, v1")
        a("s_mov_b32 exec_lo, 0x80008000")
        a("s_mov_b32 exec_hi, 0x80008000")
        a("buffer_store_dword v%d, v1, s[20:23], s67 offen sc1" % R)
        a("buffer_store_dword v%d, v1, s[20:23], s67 offen offset:16 sc1" % (R + 1))
        a("s_mov_b64 exec, -1")
    def ut_read(self, chunk_reg, stage_base, H):
        a = self.a
        a("s_and_b32 s67, %s, 1" % chunk_reg)
        a("s_cmp_eq_u32 s67, 0")
        a("s_cselect_b64 vcc, -1, 0")
        a("s_nop 0")
        a("v_cndmask_b32 v4, v60, v59, vcc")
        a("v_add_u32 v4, %d, v4" % stage_base)
        for aa in range(2):
            for it in range(4):
                for hh in range(2):
                    r = H + (aa * 4 + it) * 4 + 2 * hh
                    a("ds_read_b64_tr_b16 v[%d:%d], v4 offset:%d" % (r, r + 1, 4096 * it + 512 * hh + 32 * (aa ^ hh)))
        a("s_waitcnt lgkmcnt(0)")
    def ut_store(self, chunk_reg, H):
        a = self.a
        a("s_lshl_b32 s67, %s, 17" % chunk_reg)
        a("s_lshl_b32 s68, s4, 8")
        a("s_add_u32 s67, s67, s68")
        a("s_add_u32 s67, s67, %d" % WS_UT)
        a("s_add_u32 s68, s67, 65536")
        for aa in range(2):
            for it in range(4):
                r = H + (aa * 4 + it) * 4
                a("buffer_store_dwordx4 v[%d:%d], v61, s[20:23], s%d offen offset:%d sc1" % (r, r + 3, 67 + aa, 64 * it))

    def s_side(self):
        a = self.a
        if "noside" in self.ph:
            for b in range(11): a("s_barrier")
            return
        HA, HB = 100, 132
        def cond_b(fn):
            l = self.newlab("wb")
            a("s_cmp_ge_u32 s51, 384")
            a("s_cbranch_scc1 %s" % l)
            fn()
            a.lab(l)
        self.side_setup()
        self.wd_load("s2", 0)
        cond_b(lambda: self.wd_load("s51", 5120))
        a("s_add_u32 s50, s5, 16")
        self.stamp(5)
        a("s_barrier")
        self.stamp(1)
        def ut_maybe(kk):
            l = self.newlab("ut")
            if kk <= 7:
                a("s_cmp_lg_u32 s52, %d" % kk)
                a("s_cbranch_scc1 %s" % l)
                self.ut_read("s5", (kk % 3) * STAGE, HA)
            else:
                a("s_cmp_lg_u32 s53, %d" % kk)
                a("s_cbranch_scc1 %s" % l)
                self.ut_read("s50", (kk % 3) * STAGE, HB)
            a.lab(l)
        ut_maybe(0)
        for kk in range(10):
            a("s_barrier")
            if kk + 1 < 10: ut_maybe(kk + 1)
            if kk == 1:
                a("s_waitcnt vmcnt(0)")
                self.wd_store("s2", 0)
            if kk == 3:
                cond_b(lambda: self.wd_store("s51", 5120))
        self.stamp(2)
        self.ut_store("s5", HA)
        l = self.newlab("utb")
        a("s_cmp_ge_u32 s5, 4")
        a("s_cbranch_scc1 %s" % l)
        self.ut_store("s50", HB)
        a.lab(l)
        self.gate_load()
        a("s_waitcnt vmcnt(15)")
        self.stamp(3)
        a("s_waitcnt vmcnt(0)")
        self.gate_compute()
        a("s_waitcnt vmcnt(0)")
        self.stamp(4)

    def s_phase1(self):
        a = self.a
        n = self.name
        a("s_sub_u32 s66, s3, 4")
        a("s_cmp_eq_u32 s66, 0")
        a("s_cbranch_scc1 %s_l0" % n)
        a("s_cmp_eq_u32 s66, 1")
        a("s_cbranch_scc1 %s_l1" % n)
        a("s_cmp_eq_u32 s66, 3")
        a("s_cbranch_scc1 %s_sj" % n)
        self.s_wloader(2)
        a("s_branch %s_p1done" % n)
        a.lab("%s_l0" % n)
        self.s_wloader(0)
        a("s_branch %s_p1done" % n)
        a.lab("%s_l1" % n)
        self.s_wloader(1)
        a("s_branch %s_p1done" % n)
        a.lab("%s_sj" % n)
        self.s_side()
        a.lab("%s_p1done" % n)

    def ssm_param_loads(self):
        a = self.a
        a("s_mul_i32 s67, s50, 384")
        a("v_lshl_add_u32 v1, v0, 1, s67")
        for k, p in enumerate((P_ARE, P_AIM, P_BRE, P_BIM, P_CRE, P_CIM)):
            for sl in range(3):
                a("global_load_ushort v%d, v1, s[%d:%d] offset:%d" % (200 + 6 * sl + k, p, p + 1, 128 * sl))
        a("s_lshl_b32 s67, s50, 1")
        a("v_mov_b32 v2, s67")
        a("global_load_ushort v218, v2, s[%d:%d]" % (P_LDT, P_LDT + 1))
        a("global_load_ushort v219, v2, s[%d:%d]" % (P_DSK, P_DSK + 1))

    def kgen(self):
        a = self.a
        a("s_mul_i32 s51, s66, %d" % TAB_SZ)
        a("s_add_u32 s51, s51, %d" % LDS_TAB)
        a("s_mul_i32 s52, s66, %d" % KR_SZ)
        a("s_add_u32 s52, s52, %d" % LDS_KR)
        a("v_and_b32 v4, 15, v0")
        a("v_lshrrev_b32 v5, 4, v0")
        a("v_mul_u32_u24 v2, %d, v4" % TABROW)
        a("v_lshl_add_u32 v2, v5, 6, v2")
        a("v_add_u32 v2, s51, v2")
        a("v_and_b32 v6, 1, v5")
        a("v_lshl_add_u32 v3, v6, 3, v2")
        a("v_xor_b32 v6, 1, v6")
        a("v_lshl_add_u32 v2, v6, 3, v2")
        a("s_mov_b32 m0, s51")
        a("s_waitcnt vmcnt(0)")
        self.stamp(1)
        a("v_lshlrev_b32 v218, 16, v218")
        a("v_lshlrev_b32 v219, 16, v219")
        a("v_mul_f32 v6, 0x3fb8aa3b, v218")
        a("s_mov_b32 s67, 0x3fb8aa3b")
        a("v_fma_f32 v7, v218, s67, -v6")
        a("v_fmac_f32 v7, 0x32a57060, v218")
        a("v_exp_f32 v6, v6")
        a("v_mul_f32 v7, 0x3f317218, v7")
        a("v_fma_f32 v6, v6, v7, v6")
        a("v_cvt_pk_bf16_f32 v6, v6, v6")
        a("v_lshlrev_b32 v218, 16, v6")
        W1, W16, W256, W512, W768, W1024 = 10, 12, 14, 16, 18, 20
        WX = 22
        CB = 24
        Y = 26; P = 28; TMP1 = 30; TMP2 = 32; TMP3 = 34
        PK = 36
        V = 50
        CV = 66
        YF = 76
        AF = 92
        ACC = 108
        def cmul(out, x, w, t):
            return ["v_pk_mul_f32 v[%d:%d], v[%d:%d], v[%d:%d] op_sel:[0,0] op_sel_hi:[0,1]" % (t, t + 1, x, x + 1, w, w + 1),
                    "v_pk_fma_f32 v[%d:%d], v[%d:%d], v[%d:%d], v[%d:%d] op_sel:[1,1,0] op_sel_hi:[1,0,1] neg_lo:[1,0,0]" % (out, out + 1, x, x + 1, w, w + 1, t, t + 1)]
        def zipl(*ls):
            o = []
            for i in range(max(len(l) for l in ls)):
                for l in ls:
                    if i < len(l): o.append(l[i])
            return o
        cvn = [0, 0]
        def wr(val, tile, row, neg, bank=0):
            c = CV + 4 * bank + (cvn[bank] % 4); cvn[bank] += 1
            return ["v_cvt_pk_bf16_f32 v%d, v%d, %sv%d" % (c, val, "-" if neg else "", val + 1),
                    "ds_write_addtid_b32 v%d offset:%d" % (c, tile * TABTILE + row * TABROW)]
        def frag_reads(dst, tile):
            L = []
            for kk in range(4):
                L.append("ds_read_b64 v[%d:%d], v3 offset:%d" % (dst + 4 * kk, dst + 4 * kk + 1, tile * TABTILE + 16 * kk))
                L.append("ds_read_b64 v[%d:%d], v2 offset:%d" % (dst + 4 * kk + 2, dst + 4 * kk + 3, tile * TABTILE + 16 * kk))
            return L
        def mm(t, first):
            L = []
            for kk in range(4):
                c = "0" if (first and kk == 0) else "v[%d:%d]" % (ACC + 4 * t, ACC + 4 * t + 3)
                L.append("v_mfma_f32_16x16x32_bf16 v[%d:%d], v[%d:%d], v[%d:%d], %s" % (ACC + 4 * t, ACC + 4 * t + 3, AF + 4 * kk, AF + 4 * kk + 3, YF + 4 * kk, YF + 4 * kk + 3, c))
            return L
        for sl in range(3):
            pr = 200 + 6 * sl
            for k in range(6): a("v_lshlrev_b32 v%d, 16, v%d" % (pr + k, pr + k))
            a("v_mul_f32 v6, v218, v%d" % pr)
            a("v_mul_f32 v7, v218, v%d" % (pr + 1))
            a("v_mul_f32 v6, 0x3fb8aa3b, v6")
            a("v_mul_f32 v7, 0.15915494, v7")
            a("v_mul_f32 v8, v218, v%d" % (pr + 2))
            a("v_mul_f32 v9, v218, v%d" % (pr + 3))
            a.ext(cmul(CB, pr + 4, 8, TMP1))
            for w, k in ((W1, 1.0), (W16, 16.0), (W256, 256.0)):
                if k == 1.0:
                    a("v_exp_f32 v%d, v6" % TMP2)
                    a("v_fract_f32 v%d, v7" % TMP3)
                else:
                    lit = "0x41800000" if k == 16.0 else "0x43800000"
                    a("v_mul_f32 v%d, %s, v6" % (TMP2, lit))
                    a("v_mul_f32 v%d, %s, v7" % (TMP3, lit))
                    a("v_exp_f32 v%d, v%d" % (TMP2, TMP2))
                    a("v_fract_f32 v%d, v%d" % (TMP3, TMP3))
                a("v_cos_f32 v%d, v%d" % (w, TMP3))
                a("v_sin_f32 v%d, v%d" % (w + 1, TMP3))
                a("s_nop 0")
                a("v_mul_f32 v%d, v%d, v%d" % (w, w, TMP2))
                a("v_mul_f32 v%d, v%d, v%d" % (w + 1, w + 1, TMP2))
            if sl > 0:
                a("s_waitcnt lgkmcnt(0)")
            LY = ["v_mov_b32 v%d, v%d" % (Y, CB), "v_mov_b32 v%d, v%d" % (Y + 1, CB + 1)] + wr(Y, 0, 0, False)
            for j in range(1, 16):
                LY += cmul(Y, Y, W16, TMP1) + wr(Y, 0, j, False)
            LA = ["v_mov_b32 v%d, 1.0" % P, "v_mov_b32 v%d, 0" % (P + 1)] + wr(P, 1, 0, True, 1)
            cur = P
            for r in range(1, 16):
                if r == 1:
                    LA += ["v_mov_b32 v%d, v%d" % (P, W1), "v_mov_b32 v%d, v%d" % (P + 1, W1 + 1)]
                    cur = P
                else:
                    dst = PK + 2 * (r // 2 - 1) if r % 2 == 0 else P
                    LA += cmul(dst, cur, W1, TMP2)
                    cur = dst
                LA += wr(cur, 1, r, True, 1)
            a.ext(zipl(LY, LA))
            a.ext(cmul(W512, W256, W256, TMP1))
            a("s_waitcnt lgkmcnt(0)")
            a.ext(frag_reads(YF, 0)); a.ext(frag_reads(AF, 1))
            a.ext(zipl(cmul(W768, W512, W256, TMP1), cmul(W1024, W512, W512, TMP2)))
            def pk(i): return PK + 2 * (i // 2 - 1)
            vals = []
            A2 = []
            regs = []
            for r in range(8):
                if r == 0: regs.append(W256)
                else:
                    dst = V + 2 * (r - 1) if r < 8 else None
                    A2.append(cmul(dst, pk(2 * r), W256, TMP1 if r % 2 else TMP2)); regs.append(dst)
            a.ext(zipl(sum(A2[0::2], []), sum(A2[1::2], [])))
            a("s_waitcnt lgkmcnt(0)")
            m = mm(0, sl == 0)
            L = []
            for r in range(8): L += wr(regs[r], 1, r, True)
            a.ext(interleave(m, L))
            LA = []; LB = []
            for b in range(4):
                if b == 0:
                    LA += wr(W512, 1, 8, True); LB += wr(W768, 1, 12, True, 1)
                else:
                    LA += cmul(V, pk(4 * b), W512, TMP1) + wr(V, 1, 8 + b, True)
                    LB += cmul(V + 2, pk(4 * b), W768, TMP2) + wr(V + 2, 1, 12 + b, True, 1)
            a.ext(zipl(LA, LB))
            a("s_waitcnt lgkmcnt(0)")
            a.ext(frag_reads(AF, 1))
            a.ext(zipl(cmul(V, W1024, W256, TMP1), cmul(V + 2, W1024, W512, TMP2)))
            a.ext(zipl(cmul(V + 4, W1024, W768, TMP1), cmul(V + 6, W1024, W1024, TMP2)))
            ws = [W1024, V, V + 2, V + 4]
            a.ext(zipl(cmul(V + 8, ws[0], pk(8), TMP1), cmul(V + 10, ws[1], pk(8), TMP2)))
            a.ext(zipl(cmul(V + 12, ws[2], pk(8), TMP1), cmul(V + 14, ws[3], pk(8), TMP2)))
            a("s_waitcnt lgkmcnt(0)")
            m = mm(1, sl == 0)
            L = []
            for i in range(4):
                L += wr(ws[i], 1, 2 * i, True) + wr(V + 8 + 2 * i, 1, 2 * i + 1, True)
            L += wr(V + 6, 1, 8, True)
            a.ext(interleave(m, L))
            a("s_waitcnt lgkmcnt(0)")
            a.ext(frag_reads(AF, 1))
            a("s_waitcnt lgkmcnt(0)")
            a.ext(mm(2, sl == 0))
        self.stamp(2)
        A0, A1, A2r = ACC, ACC + 4, ACC + 8
        a("v_cmp_eq_u32 vcc, 0, v0")
        a("v_and_b32 v4, 15, v0")
        a("v_lshrrev_b32 v5, 4, v0")
        a("v_cndmask_b32 v6, 0, v219, vcc")
        a("v_lshlrev_b32 v7, 5, v4")
        a("v_lshl_add_u32 v7, v5, 4, v7")
        a("v_lshlrev_b32 v8, 4, v4")
        a("v_lshl_add_u32 v8, v5, 8, v8")
        a("v_cmp_gt_u32 vcc, 2, v5")
        a("v_add_f32 v%d, v%d, v6" % (A0, A0))
        a("s_nop 0")
        a("v_cndmask_b32 v7, v8, v7, vcc")
        a("v_add_u32 v7, s51, v7")
        a("v_lshlrev_b32 v8, 3, v4")
        a("v_lshl_add_u32 v8, v5, 8, v8")
        a("v_add_u32 v8, s51, v8")
        a("s_nop 4")
        a("ds_write_b128 v7, v[%d:%d]" % (A1, A1 + 3))
        a("ds_write_b64 v8, v[%d:%d] offset:1024" % (A2r, A2r + 1))
        a("ds_write_b64 v8, v[%d:%d] offset:1152" % (A2r + 2, A2r + 3))
        a("v_cvt_pk_bf16_f32 v10, v%d, v%d" % (A0 + 3, A0 + 2))
        a("v_cvt_pk_bf16_f32 v11, v%d, v%d" % (A0 + 1, A0))
        a("v_lshlrev_b32 v9, 5, v4")
        a("v_lshl_add_u32 v9, v5, 3, v9")
        a("v_sub_u32 v9, 4088, v9")
        a("v_add_u32 v9, s52, v9")
        a("ds_write_b64 v9, v[10:11]")
        a("v_and_b32 v9, 31, v0")
        a("v_lshlrev_b32 v9, 2, v9")
        a("v_add_u32 v9, s52, v9")
        a("v_mov_b32 v12, 0")
        a("ds_write_b32 v9, v12 offset:4096")
        a("v_lshlrev_b32 v13, 4, v0")
        a("v_add_u32 v14, s51, v13")
        a("v_lshlrev_b32 v15, 3, v0")
        a("v_add_u32 v15, s51, v15")
        a("v_lshlrev_b32 v16, 2, v0")
        a("v_add_u32 v16, s51, v16")
        a("v_sub_u32 v13, s52, v13")
        a("s_waitcnt lgkmcnt(0)")
        a("ds_read_b128 v[20:23], v14")
        a("ds_read_b32 v24, v14 offset:16")
        a("ds_read_b64 v[26:27], v15 offset:512")
        a("ds_read_b32 v28, v15 offset:520")
        a("ds_read2_b32 v[30:31], v16 offset0:0 offset1:1")
        a.l.pop()
        a("v_add_u32 v17, 1024, v16")
        a("ds_read2_b32 v[30:31], v17 offset0:0 offset1:1")
        a("ds_read2_b32 v[32:33], v17 offset0:64 offset1:65")
        a("v_and_b32 v18, 1, v0")
        a("v_cmp_eq_u32 vcc, 1, v18")
        a("s_waitcnt lgkmcnt(0)")
        a("v_cvt_pk_bf16_f32 v36, v28, v28")
        a("v_cvt_pk_bf16_f32 v37, v27, v27")
        a("v_cvt_pk_bf16_f32 v38, v27, v26")
        a("v_cvt_pk_bf16_f32 v39, v26, v26")
        a("ds_write_b128 v13, v[36:39] offset:3056")
        for ps in range(2):
            v0_, v1_ = 30 + 2 * ps, 31 + 2 * ps
            o = 40 + 4 * ps
            a("v_cndmask_b32 v19, v%d, v%d, vcc" % (v0_, v1_))
            a("v_cvt_pk_bf16_f32 v%d, v%d, v%d" % (o, v1_, v1_))
            a("v_cvt_pk_bf16_f32 v%d, v%d, v19" % (o + 1, v1_))
            a("v_cvt_pk_bf16_f32 v%d, v%d, v%d" % (o + 2, v0_, v0_))
            a("v_mov_b32 v%d, v%d" % (o + 3, o + 2))
        a("ds_write_b128 v13, v[40:43] offset:2032")
        a("ds_write_b128 v13, v[44:47] offset:1008")
        a("v_cvt_pk_bf16_f32 v48, v24, v23")
        a("v_cvt_pk_bf16_f32 v49, v22, v22")
        a("v_cvt_pk_bf16_f32 v50, v22, v21")
        a("v_cvt_pk_bf16_f32 v51, v20, v20")
        a("s_mov_b32 exec_hi, 0")
        a("ds_write_b128 v13, v[48:51] offset:3568")
        a("s_mov_b32 exec_hi, -1")
        self.stamp(3)
        if "dumpk" in self.ph:
            a("s_waitcnt lgkmcnt(0)")
            a("v_lshlrev_b32 v13, 4, v0")
            a("v_add_u32 v14, s52, v13")
            a("s_mul_i32 s67, s50, 4224")
            a("s_add_u32 s67, s67, %d" % WS_DBG)
            for i in range(5):
                a("ds_read_b128 v[20:23], v14 offset:%d" % (1024 * i))
                a("s_waitcnt lgkmcnt(0)")
                if i == 4: a("s_mov_b32 exec_hi, 0"); a("s_mov_b32 exec_lo, 0xff")
                a("s_add_u32 s68, s67, %d" % (1024 * i))
                a("buffer_store_dwordx4 v[20:23], v13, s[20:23], s68 offen")
                a("s_waitcnt vmcnt(0)")
            a("s_mov_b64 exec, -1")

    def conv_loads(self):
        a = self.a
        a("s_lshl_b32 s67, s50, 12")
        a("s_add_u32 s67, s67, %d" % (WS_UT - 4))
        a("v_lshlrev_b32 v1, 2, v0")
        for i in range(16):
            a("buffer_load_dwordx2 v[%d:%d], v1, s[20:23], s67 offen offset:%d sc1" % (120 + 2 * i, 121 + 2 * i, 256 * i))

    def conv(self):
        a = self.a
        D = 120
        a("s_mul_i32 s53, s66, %d" % UC_SZ)
        if LDS_UC: a("s_add_u32 s53, s53, %d" % LDS_UC)
        a("s_mov_b32 m0, s53")
        a("v_mov_b32 v2, 0")
        for b in range(4):
            a("ds_write_addtid_b32 v2 offset:%d" % (b * UC_STRIDE))
            a("ds_write_addtid_b32 v2 offset:%d" % (b * UC_STRIDE + 33 * 4))
        a("v_cmp_eq_u32 vcc, 0, v0")
        a("s_waitcnt vmcnt(0)")
        a("v_cndmask_b32 v%d, v%d, v2, vcc" % (D, D))
        for i in range(16):
            lo, hi = D + 2 * i, D + 2 * i + 1
            o = 4 + (i % 4)
            a("v_alignbit_b32 v%d, v%d, v%d, 16" % (o, hi, lo))
            a("ds_write_addtid_b32 v%d offset:%d" % (hi, 3 * UC_STRIDE + 4 * (64 * i + 96)))
            a("ds_write_addtid_b32 v%d offset:%d" % (hi, 1 * UC_STRIDE + 4 * (64 * i + 97)))
            a("ds_write_addtid_b32 v%d offset:%d" % (o, 2 * UC_STRIDE + 4 * (64 * i + 96)))
            a("ds_write_addtid_b32 v%d offset:%d" % (o, 0 * UC_STRIDE + 4 * (64 * i + 97)))
        VU, VK = 8, 9
        a("v_and_b32 v4, 3, v0")
        a("v_mul_u32_u24 v4, %d, v4" % UC_STRIDE)
        a("v_bfe_u32 v5, v0, 2, 2")
        a("v_lshl_add_u32 v4, v5, 7, v4")
        a("v_lshrrev_b32 v5, 4, v0")
        a("v_lshl_add_u32 v4, v5, 4, v4")
        a("v_add_u32 v%d, s53, v4" % VU)
        a("v_and_b32 v6, 15, v0")
        a("v_lshlrev_b32 v7, 3, v6")
        a("v_sub_u32 v7, 120, v7")
        a("v_lshl_add_u32 v7, v5, 4, v7")
        a("v_add_u32 v%d, s52, v7" % VK)
        a("v_lshlrev_b32 v10, 3, v6")
        a("v_lshl_add_u32 v10, v5, 7, v10")
        ACC = 16; SETS = [48, 112]
        def reads(rho, S):
            L = []
            for z in range(8):
                L.append("ds_read_b128 v[%d:%d], v%d offset:%d" % (S + 4 * z, S + 4 * z + 3, VU, 512 * z + 64 * (7 - rho)))
                zz = 8 * z + rho
                L.append("ds_read_b64 v[%d:%d], v%d offset:%d" % (S + 32 + 4 * z, S + 33 + 4 * z, VK, 64 * (63 - zz)))
                L.append("ds_read_b64 v[%d:%d], v%d offset:%d" % (S + 34 + 4 * z, S + 35 + 4 * z, VK, 64 * (63 - zz) + 8))
            return L
        def mm(rho, S):
            L = []
            for ze in range(8):
                for nu in range(8 - ze):
                    n = ze + nu
                    c = "0" if (rho == 0 and ze == 0) else "v[%d:%d]" % (ACC + 4 * n, ACC + 4 * n + 3)
                    L.append("v_mfma_f32_16x16x32_bf16 v[%d:%d], v[%d:%d], v[%d:%d], %s" % (ACC + 4 * n, ACC + 4 * n + 3, S + 4 * nu, S + 4 * nu + 3, S + 32 + 4 * ze, S + 35 + 4 * ze, c))
            return L
        a("s_waitcnt lgkmcnt(0)")
        self.stamp(4)
        a.ext(reads(0, SETS[0]))
        a("s_waitcnt lgkmcnt(0)")
        for rho in range(8):
            fill = reads(rho + 1, SETS[(rho + 1) & 1]) if rho < 7 else []
            a.ext(interleave(mm(rho, SETS[rho & 1]), fill, span=28))
            if rho < 7: a("s_waitcnt lgkmcnt(0)")
        self.stamp(7)
        a("s_lshl_b32 s67, s50, 12")
        a("s_add_u32 s67, s67, %d" % WS_Y)
        a("s_nop 7")
        for n in range(8):
            o = 48 + 2 * n
            a("v_cvt_pk_bf16_f32 v%d, v%d, v%d" % (o, ACC + 4 * n, ACC + 4 * n + 1))
            a("v_cvt_pk_bf16_f32 v%d, v%d, v%d" % (o + 1, ACC + 4 * n + 2, ACC + 4 * n + 3))
            a("buffer_store_dwordx2 v[%d:%d], v10, s[20:23], s67 offen offset:%d sc1" % (o, o + 1, 512 * n))

    def s_ssm(self):
        a = self.a
        n = self.name
        a("s_sub_u32 s66, s3, 4")
        a("s_lshl_b32 s50, s66, 8")
        a("s_add_u32 s50, s50, s2")
        a("s_cmp_ge_u32 s66, 3")
        a("s_cbranch_scc1 %s_ssm_done" % n)
        a("s_cmp_ge_u32 s50, 640")
        a("s_cbranch_scc1 %s_ssm_done" % n)
        self.stamp(5)
        self.ssm_param_loads()
        self.kgen()
        self.stamp(6)
        self.conv_loads()
        self.conv()
        a("s_waitcnt vmcnt(0)")
        self.stamp(8)
        a.lab("%s_ssm_done" % n)

    def g_gemm2(self):
        a = self.a
        ACC = 0
        SETS = [80, 116, 152, 188]
        VB = 224
        VL = 228
        T = 230
        acc = lambda dt, tau: ACC + (dt * 4 + tau) * 4
        a("v_mbcnt_lo_u32_b32 v%d, -1, 0" % T)
        a("v_mbcnt_hi_u32_b32 v%d, -1, v%d" % (T, T))
        a("v_lshlrev_b32 v%d, 4, v%d" % (VL, T))
        for tau in range(4):
            a("s_add_u32 s67, s3, %d" % tau)
            a("s_and_b32 s67, s67, 3")
            a("s_lshl_b32 s67, s67, 10")
            a("v_add_u32 v%d, s67, v%d" % (VB + tau, VL))
        a("s_mul_i32 s70, s6, 48")
        a("s_mul_i32 s67, s3, 12")
        a("s_add_u32 s70, s70, s67")
        a("s_lshl_b32 s70, s70, 12")
        if WS_H: a("s_add_u32 s70, s70, %d" % WS_H)
        a("s_mul_i32 s71, s7, 48")
        a("s_add_u32 s71, s71, s67")
        a("s_mul_i32 s71, s71, 5120")
        a("s_add_u32 s71, s71, %d" % WS_WD)
        a("s_add_u32 s72, s71, 4096")
        def loadsA(S):
            L = []
            for dt in range(5):
                if dt < 4: L.append("buffer_load_dwordx4 v[%d:%d], v%d, s[20:23], s71 offen offset:%d sc1" % (S + 16 + 4 * dt, S + 19 + 4 * dt, VL, 1024 * dt))
                else: L.append(("buffer_load_dwordx4 v[%d:%d], v%d, s[20:23], s72 offen sc1" % (S + 16 + 4 * dt, S + 19 + 4 * dt, VL),
                                "s_add_u32 s71, s71, 5120", "s_add_u32 s72, s72, 5120"))
            return L
        def loadsB(S):
            L = []
            for tau in range(4):
                x = "buffer_load_dwordx4 v[%d:%d], v%d, s[20:23], s70 offen sc1" % (S + 4 * tau, S + 4 * tau + 3, VB + tau)
                L.append(x if tau < 3 else (x, "s_add_u32 s70, s70, 4096"))
            return L
        def mm(S, first):
            L = []
            for dt in range(5):
                for tau in range(4):
                    c = "0" if first else "v[%d:%d]" % (acc(dt, tau), acc(dt, tau) + 3)
                    L.append("v_mfma_f32_16x16x32_bf16 v[%d:%d], v[%d:%d], v[%d:%d], %s" % (acc(dt, tau), acc(dt, tau) + 3, S + 16 + 4 * dt, S + 19 + 4 * dt, S + 4 * tau, S + 4 * tau + 3, c))
            return L
        self.g2_wait_inputs()
        self.stamp(5)
        NS = 12
        for k in range(3):
            a.ext(flat(loadsB(SETS[k]) + loadsA(SETS[k])))
        for k in range(NS):
            rem = min(NS - 1, k + 2) - k
            a("s_waitcnt vmcnt(%d)" % (9 * rem))
            fill = (loadsB(SETS[(k + 3) % 4]) + loadsA(SETS[(k + 3) % 4])) if k + 3 < NS else []
            a.ext(interleave(mm(SETS[k % 4], k == 0), fill))
        self.stamp(6)
        a("s_nop 7")
        for tau in range(1, 4):
            a("s_add_u32 s67, s3, %d" % tau)
            a("s_and_b32 s67, s67, 3")
            a("s_mul_i32 s67, s67, 3")
            a("s_add_u32 s67, s67, %d" % (tau - 1))
            a("s_mul_i32 s67, s67, 5120")
            a("s_add_u32 s67, s67, %d" % LDS_RED)
            a("v_add_u32 v%d, s67, v%d" % (T + 1, VL))
            for dt in range(5):
                a("ds_write_b128 v%d, v[%d:%d] offset:%d" % (T + 1, acc(dt, tau), acc(dt, tau) + 3, 1024 * dt))
        a("s_waitcnt lgkmcnt(0)")
        a("s_barrier")
        self.stamp(7)
        a("s_mul_i32 s67, s3, %d" % (3 * 5120))
        a("s_add_u32 s67, s67, %d" % LDS_RED)
        a("v_add_u32 v%d, s67, v%d" % (T + 1, VL))
        R = 80
        for j in range(3):
            for dt in range(5):
                r = R + (j * 5 + dt) * 4
                a("ds_read_b128 v[%d:%d], v%d offset:%d" % (r, r + 3, T + 1, 5120 * j + 1024 * dt))
        Y = 140
        a("v_lshrrev_b32 v%d, 4, v%d" % (T + 2, T))
        a("v_and_b32 v%d, 15, v%d" % (T + 3, T))
        a("v_lshrrev_b32 v%d, 2, v%d" % (T + 4, T + 3))
        a("v_lshl_add_u32 v%d, v%d, 3, v%d" % (T + 5, T + 2, T + 4))
        a("v_lshl_add_u32 v%d, v%d, 2, v%d" % (T + 6, T + 2, T + 4))
        a("v_and_b32 v%d, 3, v%d" % (T + 7, T))
        a("v_lshlrev_b32 v%d, 3, v%d" % (T + 7, T + 7))
        a("s_lshl_b32 s67, s3, 5")
        a("s_add_u32 s67, s67, %d" % LDS_YT)
        a("v_add_u32 v%d, s67, v%d" % (T + 7, T + 7))
        a("v_lshl_add_u32 v%d, v%d, 7, v%d" % (T + 5, T + 5, T + 7))
        a("v_lshl_add_u32 v%d, v%d, 7, v%d" % (T + 6, T + 6, T + 7))
        for dt in range(5):
            if dt < 4: a("ds_read_b64_tr_b16 v[%d:%d], v%d offset:%d" % (Y + 2 * dt, Y + 2 * dt + 1, T + 5, 128 * (32 * (dt >> 1) + 4 * (dt & 1))))
            else: a("ds_read_b64_tr_b16 v[%d:%d], v%d offset:%d" % (Y + 2 * dt, Y + 2 * dt + 1, T + 6, 128 * 64))
        a("s_lshl_b32 s67, s3, 6")
        a("s_add_u32 s67, s67, %d" % LDS_GT)
        a("v_lshl_add_u32 v%d, v%d, 2, s67" % (T + 8, T + 3))
        a("ds_read_b32 v%d, v%d" % (T + 8, T + 8))
        a("s_lshl_b32 s67, s6, 6")
        a("s_lshl_b32 s68, s3, 4")
        a("s_add_u32 s67, s67, s68")
        a("v_add_u32 v%d, s67, v%d" % (T + 9, T + 3))
        a("s_movk_i32 s68, 1280")
        a("v_mul_lo_u32 v%d, v%d, s68" % (T + 9, T + 9))
        a("s_mul_i32 s68, s7, 160")
        a("v_add_u32 v%d, s68, v%d" % (T + 9, T + 9))
        a("v_lshl_add_u32 v%d, v%d, 3, v%d" % (T + 10, T + 2, T + 9))
        a("v_lshl_add_u32 v%d, v%d, 4, v%d" % (T + 9, T + 2, T + 9))
        a("s_waitcnt lgkmcnt(0)")
        for dt in range(5):
            for h in range(2):
                x = acc(dt, 0) + 2 * h
                p = [R + (j * 5 + dt) * 4 + 2 * h for j in range(3)]
                a("v_pk_add_f32 v[%d:%d], v[%d:%d], v[%d:%d]" % (p[0], p[0] + 1, p[0], p[0] + 1, p[1], p[1] + 1))
                a("v_pk_add_f32 v[%d:%d], v[%d:%d], v[%d:%d]" % (x, x + 1, x, x + 1, p[2], p[2] + 1))
        for dt in range(5):
            for h in range(2):
                x = acc(dt, 0) + 2 * h
                p = R + dt * 4 + 2 * h
                a("v_pk_add_f32 v[%d:%d], v[%d:%d], v[%d:%d]" % (x, x + 1, x, x + 1, p, p + 1))
        U = 150
        for dt in range(5):
            for h in range(2):
                a("v_lshlrev_b32 v%d, 16, v%d" % (U + 4 * dt + 2 * h, Y + 2 * dt + h))
                a("v_and_b32 v%d, 0xffff0000, v%d" % (U + 4 * dt + 2 * h + 1, Y + 2 * dt + h))
        G2 = T + 12
        assert G2 % 2 == 0
        a("v_mov_b32 v%d, v%d" % (G2, T + 8))
        a("v_mov_b32 v%d, v%d" % (G2 + 1, T + 8))
        for dt in range(5):
            for h in range(2):
                x = acc(dt, 0) + 2 * h; u = U + 4 * dt + 2 * h
                a("v_pk_add_f32 v[%d:%d], v[%d:%d], v[%d:%d] neg_lo:[0,1] neg_hi:[0,1]" % (u, u + 1, u, u + 1, x, x + 1))
        for dt in range(5):
            for h in range(2):
                x = acc(dt, 0) + 2 * h; u = U + 4 * dt + 2 * h
                a("v_pk_fma_f32 v[%d:%d], v[%d:%d], v[%d:%d], v[%d:%d]" % (x, x + 1, u, u + 1, G2, G2 + 1, x, x + 1))
        O = 176
        for dt in range(5):
            for h in range(2):
                x = acc(dt, 0) + 2 * h
                a("v_cvt_pk_bf16_f32 v%d, v%d, v%d" % (O + 2 * dt + h, x, x + 1))
        a("buffer_store_dwordx4 v[%d:%d], v%d, s[24:27], 0 offen" % (O, O + 3, T + 9))
        a("buffer_store_dwordx4 v[%d:%d], v%d, s[24:27], 0 offen offset:64" % (O + 4, O + 7, T + 9))
        a("buffer_store_dwordx2 v[%d:%d], v%d, s[24:27], 0 offen offset:128" % (O + 8, O + 9, T + 10))
        self.stamp(8)

    def g2_wait_inputs(self):
        pass

    def s_final(self):
        a = self.a
        n = self.name
        l = self.newlab("fin")
        a("s_cmp_lg_u32 s3, 7")
        a("s_cbranch_scc1 %s" % l)
        self.y_wait_inputs()
        a("v_mbcnt_lo_u32_b32 v0, -1, 0")
        a("v_mbcnt_hi_u32_b32 v0, -1, v0")
        a("v_lshrrev_b32 v1, 3, v0")
        a("v_lshlrev_b32 v1, 12, v1")
        a("v_and_b32 v2, 7, v0")
        a("v_lshl_add_u32 v1, v2, 4, v1")
        a("s_mul_i32 s67, s7, %d" % (80 * 4096))
        a("s_lshl_b32 s68, s6, 7")
        a("s_add_u32 s67, s67, s68")
        a("s_add_u32 s67, s67, %d" % WS_Y)
        for i in range(10):
            a("buffer_load_dwordx4 v[%d:%d], v1, s[20:23], s67 offen sc1" % (8 + 4 * i, 11 + 4 * i))
            if i < 9: a("s_add_u32 s67, s67, %d" % (8 * 4096))
        a("s_lshl_b32 s67, s6, 8")
        a("s_add_u32 s67, s67, %d" % WS_G)
        a("v_lshlrev_b32 v3, 2, v0")
        a("buffer_load_dword v4, v3, s[20:23], s67 offen sc1")
        a("v_lshlrev_b32 v2, 4, v0")
        a("v_add_u32 v2, %d, v2" % LDS_YT)
        a("v_add_u32 v3, %d, v3" % LDS_GT)
        a("s_waitcnt vmcnt(0)")
        for i in range(10):
            a("ds_write_b128 v2, v[%d:%d] offset:%d" % (8 + 4 * i, 11 + 4 * i, 1024 * i))
        a("ds_write_b32 v3, v4")
        a("s_waitcnt lgkmcnt(0)")
        a.lab(l)
        a("s_barrier")

    def y_wait_inputs(self):
        pass

    def build(self):
        a = self.a
        n = self.name
        a.l.append(".globl %s" % n)
        a.l.append(".p2align 8")
        a.l.append(".type %s,@function" % n)
        a.l.append("%s:" % n)
        self.prologue()
        a("s_cmp_ge_u32 s3, 4")
        a("s_cbranch_scc1 %s_S" % n)
        if "g1" in self.ph:
            self.g_gemm1()
        if "g2" in self.ph:
            self.g_gemm2()
        self.stamp_flush()
        a("s_endpgm")
        a.lab("%s_S" % n)
        if "g1" in self.ph:
            self.s_phase1()
        if "ssm" in self.ph:
            self.s_ssm()
        if "g2" in self.ph:
            self.s_final()
        self.stamp_flush()
        a.lab("%s_end" % n)
        a("s_endpgm")
        return a.text()

def kd(name):
    return """.amdhsa_kernel %s
  .amdhsa_next_free_vgpr 256
  .amdhsa_next_free_sgpr 102
  .amdhsa_accum_offset 256
  .amdhsa_group_segment_fixed_size 0
  .amdhsa_kernarg_size 136
  .amdhsa_user_sgpr_count 2
  .amdhsa_user_sgpr_kernarg_segment_ptr 1
  .amdhsa_system_sgpr_workgroup_id_x 1
.end_amdhsa_kernel
""" % name

HEADER = open("gated_mix__ssm_conv_s4__swiglu_ffn__prompt.s.ref").read().split("; Override launch")[0]

def emit(kernels, path):
    txt = HEADER
    if len(kernels) == 1:
        txt += "; @launch grid=(256,1,1) block=(512,1,1) lds=%d\n" % LDS_TOTAL
    else:
        for (n, p, s) in kernels:
            txt += "; @launch kernel=%s grid=(256,1,1) block=(512,1,1) lds=%d\n" % (n, LDS_TOTAL)
    txt += '.amdgcn_target "amdgcn-amd-amdhsa--gfx950"\n.text\n'
    for (n, p, s) in kernels:
        txt += Gen(n, p, s).build()
    txt += '.section .rodata,"a"\n'
    for (n, p, s) in kernels:
        txt += ".p2align 6\n" + kd(n)
    open(path, "w").write(txt)

if __name__ == "__main__":
    mode = sys.argv[1]; path = sys.argv[2]
    stamps = len(sys.argv) > 3 and sys.argv[3] == "stamps"
    if mode.startswith("g1+") or mode == "g1":
        emit([(KNAME, set(mode.split("+")), stamps)], path)
    elif mode == "g1,ssm":
        emit([("ka_kernel", {"g1"}, False), ("kb_kernel", {"ssm", "dumpk"}, stamps)], path)
    elif mode == "3k":
        emit([("ka_kernel", {"g1"}, False), ("kb_kernel", {"ssm"}, False), ("kc_kernel", {"g2"}, stamps)], path)
    elif mode == "g1,ssm,nodump":
        emit([("ka_kernel", {"g1"}, False), ("kb_kernel", {"ssm"}, stamps)], path)
```

```python
import sys, math

KNAME = "gated_mix__ssm_conv_s4__swiglu_ffn__prompt_kernel"

WS_H    = 0x000000
WS_WD   = 0x600000
WS_UT   = 0x800000
WS_Y    = 0xB00000
WS_G    = 0xE00000
WS_FS   = 0xE10000
WS_FH   = 0xE11000
WS_FY   = 0xE12000
WS_NON  = 0xE13000
WS_TS   = 0xF00000
WS_DBG  = 0x1000000

STAGE   = 40960
ST_WG   = 16384
ST_WU   = 28672
LDS_S   = 3 * STAGE
TABROW  = 272
TABTILE = 16 * TABROW
TAB_SZ  = 2 * TABTILE
LDS_TAB = LDS_S
KR_SZ   = 4224
LDS_KR  = LDS_TAB + 3 * TAB_SZ
LDS_MISC = LDS_KR + 3 * KR_SZ
LDS_TOTAL = 163840
LDS_NONCE = LDS_MISC
LDS_CNT   = LDS_MISC + 4
UC_STRIDE = 4640
UC_SZ   = 4 * UC_STRIDE
LDS_UC  = 0
LDS_RED = 57344
LDS_YT  = LDS_TAB
LDS_GT  = LDS_MISC + 64

class Asm:
    def __init__(self):
        self.l = []
    def __call__(self, s):
        for x in s.split("\n"):
            x = x.strip()
            if x: self.l.append("    " + x)
    def lab(self, s):
        self.l.append(s + ":")
    def ext(self, lst):
        for x in lst: self(x)
    def text(self):
        return "\n".join(self.l) + "\n"

def interleave(main, fill, start=0, span=None):
    out = []
    m = len(fill)
    n = len(main) if span is None else min(len(main), start + span)
    j = 0
    for i, x in enumerate(main):
        out.append(x)
        if i >= start:
            tgt = (m * (i - start + 1) + (n - start) - 1) // (n - start) if n > start else m
            while j < min(tgt, m):
                f = fill[j]
                if isinstance(f, tuple): out.extend(f)
                else: out.append(f)
                j += 1
    while j < m:
        f = fill[j]
        if isinstance(f, tuple): out.extend(f)
        else: out.append(f)
        j += 1
    return out

def flat(L):
    o = []
    for x in L:
        if isinstance(x, tuple): o.extend(x)
        else: o.append(x)
    return o

def vr(a, n=1):
    return "v%d" % a if n == 1 else "v[%d:%d]" % (a, a + n - 1)
def sr(a, n=1):
    return "s%d" % a if n == 1 else "s[%d:%d]" % (a, a + n - 1)

S_W, S_WAVE, S_M, S_N, S_M2, S_N2 = 2, 3, 4, 5, 6, 7
SRD_X, SRD_WG, SRD_WU, SRD_WS, SRD_OUT, SRD_WD = 8, 12, 16, 20, 24, 28
P_U, P_ARE, P_AIM, P_BRE, P_BIM, P_CRE, P_CIM, P_LDT = 32, 34, 36, 38, 40, 42, 44, 46
P_DSK, P_BX, P_WG, P_WU, P_WD, P_GW, P_OUT, P_DBG, P_WS = 48, 50, 52, 54, 56, 58, 60, 62, 64
S_TS = 80

class Gen:
    def __init__(self, name, phases, stamps=False):
        self.name = name
        self.ph = phases
        self.a = Asm()
        self.stamps = stamps
        self.nlab = 0
    def newlab(self, p):
        self.nlab += 1
        return "L_%s_%s_%d" % (self.name[:6], p, self.nlab)

    def stamp(self, i):
        if self.stamps:
            self.a("s_memtime s[%d:%d]" % (S_TS + 2 * i, S_TS + 2 * i + 1))
            self.a("s_waitcnt lgkmcnt(0)")
    def stamp_flush(self):
        if not self.stamps: return
        a = self.a
        a("s_lshl_b32 s66, s2, 3")
        a("s_add_u32 s66, s66, s3")
        a("s_lshl_b32 s66, s66, 7")
        a("s_add_u32 s66, s66, 0x%x" % WS_TS)
        a("v_mov_b32 v250, 0")
        for i in range(10):
            a("v_mov_b32 v252, s%d" % (S_TS + 2 * i))
            a("v_mov_b32 v253, s%d" % (S_TS + 2 * i + 1))
            a("buffer_store_dwordx2 v[252:253], v250, s[20:23], s66 offen offset:%d" % (8 * i))
            a("s_nop 1")
        a("s_waitcnt vmcnt(0)")

    def prologue(self):
        a = self.a
        a("s_cmp_ge_u32 s2, 256")
        a("s_cbranch_scc1 %s_end" % self.name)
        a("s_load_dwordx16 s[32:47], s[0:1], 0")
        a("s_load_dwordx16 s[48:63], s[0:1], 64")
        a("s_load_dwordx2 s[64:65], s[0:1], 128")
        a("v_lshrrev_b32 v1, 6, v0")
        a("v_and_b32 v0, 63, v0")
        a("v_readfirstlane_b32 s3, v1")
        a("s_and_b32 s66, s2, 7")
        a("s_lshr_b32 s67, s2, 3")
        a("s_and_b32 s68, s67, 7")
        a("s_lshr_b32 s69, s67, 3")
        a("s_and_b32 s70, s66, 1")
        a("s_lshl_b32 s70, s70, 3")
        a("s_or_b32 s4, s70, s68")
        a("s_lshr_b32 s70, s66, 1")
        a("s_lshl_b32 s70, s70, 2")
        a("s_or_b32 s5, s70, s69")
        a("s_and_b32 s70, s66, 3")
        a("s_lshl_b32 s70, s70, 3")
        a("s_or_b32 s6, s70, s68")
        a("s_lshr_b32 s70, s66, 2")
        a("s_lshl_b32 s70, s70, 2")
        a("s_or_b32 s7, s70, s69")
        if self.stamps:
            for i in range(10):
                a("s_mov_b64 s[%d:%d], 0" % (S_TS + 2 * i, S_TS + 2 * i + 1))
        a("s_waitcnt lgkmcnt(0)")
        def srd(base, ptr, size):
            a("s_mov_b32 s%d, s%d" % (base, ptr))
            a("s_and_b32 s%d, s%d, 0xffff" % (base + 1, ptr + 1))
            a("s_mov_b32 s%d, 0x%x" % (base + 2, size))
            a("s_mov_b32 s%d, 0x20000" % (base + 3))
        srd(SRD_X, P_U, 2048 * 640 * 2)
        srd(SRD_WG, P_WG, 640 * 1536 * 2)
        srd(SRD_WU, P_WU, 640 * 1536 * 2)
        srd(SRD_WS, P_WS, 0x10000000)
        srd(SRD_OUT, P_OUT, 2048 * 640 * 2)
        srd(SRD_WD, P_WD, 640 * 1536 * 2)
        self.stamp(0)

    def g_gemm1(self):
        a = self.a
        ACC = 0; FP = 96; FQ = 136
        VXB = 176
        VWA = 182
        VL16 = 196
        T = 200
        accg = lambda ft, tt: ACC + (ft * 4 + tt) * 4
        accu = lambda ft, tt: ACC + 48 + (ft * 4 + tt) * 4
        LANE = 197
        a("v_mov_b32 v%d, v0" % LANE)
        a("s_and_b32 s67, s3, 1")
        a("s_lshr_b32 s68, s3, 1")
        VOX = 191
        a("v_lshrrev_b32 v%d, 3, v%d" % (T, LANE))
        a("s_lshl_b32 s69, s4, 7")
        a("s_lshl_b32 s70, s3, 5")
        a("s_add_u32 s69, s69, s70")
        a("v_add_u32 v%d, s69, v%d" % (T, T))
        a("s_movk_i32 s70, 1280")
        a("v_mul_lo_u32 v%d, v%d, s70" % (T, T))
        a("v_and_b32 v%d, 7, v%d" % (T + 1, LANE))
        a("v_lshrrev_b32 v%d, 4, v%d" % (T + 2, LANE))
        a("v_xor_b32 v%d, v%d, v%d" % (T + 3, T + 1, T + 2))
        a("v_xor_b32 v%d, 4, v%d" % (T + 4, T + 3))
        a("v_lshl_add_u32 v%d, v%d, 4, v%d" % (VOX, T + 3, T))
        a("v_lshl_add_u32 v%d, v%d, 4, v%d" % (VOX + 1, T + 4, T))
        a("s_lshl_b32 s75, s3, 12")
        def xdma(st):
            base = (st % 3) * STAGE
            L = []
            for i in range(4):
                if i == 0:
                    L.append(("s_add_u32 m0, s75, %d" % base, "s_mov_b32 s70, %d" % (128 * st),
                              "buffer_load_dwordx4 v%d, s[8:11], s70 offen lds" % VOX))
                else:
                    L.append(("s_mov_b32 s70, %d" % (128 * st + 9216 * i),
                              "buffer_load_dwordx4 v%d, s[8:11], s70 offen offset:%d lds" % (VOX + (i & 1), 1024 * i)))
            return L
        a.ext(flat(xdma(0)))
        a.ext(flat(xdma(1)))
        a("v_and_b32 v%d, 15, v%d" % (T, LANE))
        a("v_lshrrev_b32 v%d, 4, v%d" % (T + 1, LANE))
        a("s_lshl_b32 s69, s67, 6")
        a("v_add_u32 v%d, s69, v%d" % (T + 2, T))
        a("v_lshlrev_b32 v%d, 7, v%d" % (T + 2, T + 2))
        a("v_lshrrev_b32 v%d, 1, v%d" % (T + 3, T))
        a("v_and_b32 v%d, 7, v%d" % (T + 3, T + 3))
        a("v_xor_b32 v%d, v%d, v%d" % (T + 3, T + 3, T + 1))
        a("v_xor_b32 v%d, 4, v%d" % (T + 4, T + 3))
        a("v_lshl_add_u32 v%d, v%d, 4, v%d" % (VXB, T + 3, T + 2))
        a("v_lshl_add_u32 v%d, v%d, 4, v%d" % (VXB + 1, T + 4, T + 2))
        for st in (1, 2):
            for s in range(2):
                a("v_add_u32 v%d, %d, v%d" % (VXB + 2 * st + s, st * STAGE, VXB + s))
        a("v_lshrrev_b32 v%d, 2, v%d" % (T + 2, T))
        a("v_lshl_add_u32 v%d, v%d, 3, v%d" % (T + 2, T + 1, T + 2))
        a("v_mul_u32_u24 v%d, 192, v%d" % (T + 2, T + 2))
        a("v_and_b32 v%d, 3, v%d" % (T + 3, LANE))
        a("v_lshl_add_u32 v%d, v%d, 3, v%d" % (T + 2, T + 3, T + 2))
        a("v_add_u32 v%d, %d, v%d" % (T + 2, ST_WG, T + 2))
        a("v_and_b32 v%d, 1, v%d" % (T + 3, T + 1))
        a("s_lshl_b32 s69, s68, 2")
        a("s_add_u32 s78, s69, 1")
        a("s_add_u32 s79, s68, 2")
        for ft, sreg in ((0, 69), (1, 78), (2, 79)):
            a("v_xor_b32 v%d, s%d, v%d" % (T + 4, sreg, T + 3))
            a("v_lshl_add_u32 v%d, v%d, 5, v%d" % (VWA + ft, T + 4, T + 2))
        for st in (1, 2):
            for ft in range(3):
                a("v_add_u32 v%d, %d, v%d" % (VWA + 3 * st + ft, st * STAGE, VWA + ft))
        a("v_lshlrev_b32 v%d, 4, v%d" % (VL16, LANE))
        a("s_lshl_b32 s69, s4, 1")
        a("s_add_u32 s69, s69, s67")
        a("s_mul_i32 s69, s69, 48")
        a("s_mul_i32 s78, s5, 3")
        a("s_add_u32 s69, s69, s78")
        a("s_lshl_b32 s78, s68, 1")
        a("s_add_u32 s78, s78, s69")
        a("s_lshl_b32 s78, s78, 12")
        a("s_add_u32 s79, s69, 1")
        a("s_lshl_b32 s79, s79, 12")
        a("s_lshl_b32 s69, s68, 3")
        a("s_add_u32 s79, s79, s69")
        if WS_H:
            a("s_add_u32 s78, s78, %d" % WS_H); a("s_add_u32 s79, s79, %d" % WS_H)

        def reads(kk, s, F):
            st = kk % 3
            xs = ["ds_read_b128 v[%d:%d], v%d offset:%d" % (F + 4 * tt, F + 4 * tt + 3, VXB + 2 * st + s, 2048 * tt) for tt in range(4)]
            ws = []
            for mat in range(2):
                for ft in range(3):
                    r = F + 16 + (mat * 3 + ft) * 4
                    for h in range(2):
                        ws.append("ds_read_b64_tr_b16 v[%d:%d], v%d offset:%d" % (r + 2 * h, r + 2 * h + 1, VWA + 3 * st + ft, 12288 * mat + 6144 * s + 768 * h))
            order = [xs[0], ws[0], ws[1], xs[1], ws[6], ws[7], xs[2], xs[3]] + ws[2:6] + ws[8:]
            return order
        def mfmas(F, first):
            L = []
            for ft in range(3):
                for mat in range(2):
                    for tt in range(4):
                        acc = accg(ft, tt) if mat == 0 else accu(ft, tt)
                        A = F + 16 + (mat * 3 + ft) * 4
                        B = F + 4 * tt
                        c = "0" if first else "v[%d:%d]" % (acc, acc + 3)
                        L.append("v_mfma_f32_16x16x32_bf16 v[%d:%d], v[%d:%d], v[%d:%d], %s" % (acc, acc + 3, A, A + 3, B, B + 3, c))
            return L
        def spread(mm, d, first, step):
            out = []; cnt = 0; di = 0
            for x in mm:
                out.append(x)
                if x.startswith("v_mfma"):
                    cnt += 1
                    if cnt >= first and (cnt - first) % step == 0 and di < len(d):
                        f = d[di]; di += 1
                        out.extend(f if isinstance(f, tuple) else (f,))
            assert di == len(d), (di, len(d))
            return out
        self.stamp(5)
        a("s_waitcnt vmcnt(4)")
        a("s_barrier")
        self.stamp(1)
        a.ext(reads(0, 0, FP))
        a("s_waitcnt lgkmcnt(0)")
        pend = xdma(2)
        for kk in range(10):
            mm = interleave(mfmas(FP, kk == 0), reads(kk, 1, FQ), span=16)
            if pend: mm = spread(mm, pend, 3, 5 if len(pend) > 2 else 10)
            a.ext(mm)
            if kk <= 7: a("s_waitcnt vmcnt(4) lgkmcnt(0)")
            elif kk == 8: a("s_waitcnt vmcnt(0) lgkmcnt(0)")
            else: a("s_waitcnt lgkmcnt(0)")
            a("s_barrier")
            fill = reads(kk + 1, 0, FP) if kk + 1 < 10 else []
            mm = interleave(mfmas(FQ, False), fill, span=16)
            d = xdma(kk + 3) if kk + 3 < 10 else []
            pend = d[2:]
            if d: mm = spread(mm, d[:2], 6, 10)
            a.ext(mm)
            if kk + 1 < 10:
                a("s_waitcnt lgkmcnt(0)")
        self.stamp(2)
        CN = FP; ONE = FP + 2
        a("v_mov_b32 v%d, 0xbfb8aa3b" % CN)
        a("v_mov_b32 v%d, 0xbfb8aa3b" % (CN + 1))
        a("v_mov_b32 v%d, 1.0" % ONE)
        a("v_mov_b32 v%d, 1.0" % (ONE + 1))
        grp = 0
        def silu(gregs, uregs, tmp, out):
            n = len(gregs)
            L = []
            for i in range(n): L.append("v_pk_mul_f32 v[%d:%d], v[%d:%d], v[%d:%d]" % (tmp + 2 * i, tmp + 2 * i + 1, gregs[i], gregs[i] + 1, CN, CN + 1))
            for i in range(2 * n): L.append("v_exp_f32 v%d, v%d" % (tmp + i, tmp + i))
            for i in range(n): L.append("v_pk_mul_f32 v[%d:%d], v[%d:%d], v[%d:%d]" % (gregs[i], gregs[i] + 1, gregs[i], gregs[i] + 1, uregs[i], uregs[i] + 1))
            for i in range(n): L.append("v_pk_add_f32 v[%d:%d], v[%d:%d], v[%d:%d]" % (tmp + 2 * i, tmp + 2 * i + 1, tmp + 2 * i, tmp + 2 * i + 1, ONE, ONE + 1))
            for i in range(2 * n): L.append("v_rcp_f32 v%d, v%d" % (tmp + i, tmp + i))
            if n < 2: L.append("s_nop 0")
            for i in range(n): L.append("v_pk_mul_f32 v[%d:%d], v[%d:%d], v[%d:%d]" % (gregs[i], gregs[i] + 1, gregs[i], gregs[i] + 1, tmp + 2 * i, tmp + 2 * i + 1))
            for i in range(n): L.append("v_cvt_pk_bf16_f32 v%d, v%d, v%d" % (out + i, gregs[i], gregs[i] + 1))
            return L
        for tt in range(4):
            tmp = FQ + (grp % 2) * 16; out = FP + 8 + (grp % 4) * 4; grp += 1
            g = [accg(0, tt), accg(0, tt) + 2, accg(1, tt), accg(1, tt) + 2]
            u = [accu(0, tt), accu(0, tt) + 2, accu(1, tt), accu(1, tt) + 2]
            a.ext(silu(g, u, tmp, out))
            a("buffer_store_dwordx4 v[%d:%d], v%d, s[20:23], s78 offen offset:%d sc1" % (out, out + 3, VL16, 1024 * tt))
            tmp = FQ + (grp % 2) * 16; out = FP + 8 + (grp % 4) * 4; grp += 1
            g = [accg(2, tt), accg(2, tt) + 2]
            u = [accu(2, tt), accu(2, tt) + 2]
            a.ext(silu(g, u, tmp, out))
            a("buffer_store_dwordx2 v[%d:%d], v%d, s[20:23], s79 offen offset:%d sc1" % (out, out + 1, VL16, 1024 * tt))
        self.stamp(3)
        a("s_waitcnt vmcnt(0)")
        self.stamp(4)

    def s_wloader(self, sigma):
        a = self.a
        T = 1; VO = 10
        a("s_mul_i32 s69, s5, 192")
        a("s_mov_b32 s78, 43691")
        a("s_movk_i32 s79, 3072")
        for i in range(3):
            a("v_add_u32 v%d, %d, v0" % (T, 64 * i))
            a("v_mul_lo_u32 v%d, v%d, s78" % (T + 1, T))
            a("v_lshrrev_b32 v%d, 19, v%d" % (T + 1, T + 1))
            a("v_mul_u32_u24 v%d, 12, v%d" % (T + 2, T + 1))
            a("v_sub_u32 v%d, v%d, v%d" % (T + 2, T, T + 2))
            a("v_lshrrev_b32 v%d, 2, v%d" % (T + 3, T + 1))
            a("v_and_b32 v%d, 2, v%d" % (T + 3, T + 3))
            a("v_xor_b32 v%d, v%d, v%d" % (T + 2, T + 2, T + 3))
            a("v_mul_lo_u32 v%d, v%d, s79" % (T + 1, T + 1))
            a("v_lshl_add_u32 v%d, v%d, 4, v%d" % (T + 1, T + 2, T + 1))
            a("v_add_u32 v%d, s69, v%d" % (VO + i, T + 1))
        def dma(st):
            base = (st % 3) * STAGE
            for P in range(8 * sigma, 8 * sigma + 8):
                mat, I = divmod(P, 12)
                srd = "s[12:15]" if mat == 0 else "s[16:19]"
                a("s_mov_b32 m0, %d" % (base + (ST_WG if mat == 0 else ST_WU) + 1024 * I))
                a("s_mov_b32 s70, %d" % (196608 * st + 49152 * (I // 3)))
                a("buffer_load_dwordx4 v%d, %s, s70 offen lds" % (VO + I % 3, srd))
        self.loader_loop(dma, 8)

    def loader_loop(self, dma, n):
        a = self.a
        dma(0)
        dma(1)
        self.stamp(5)
        a("s_waitcnt vmcnt(%d)" % n)
        a("s_barrier")
        self.stamp(1)
        dma(2)
        for kk in range(10):
            if kk <= 7: a("s_waitcnt vmcnt(%d)" % n)
            elif kk == 8: a("s_waitcnt vmcnt(0)")
            a("s_barrier")
            if kk + 3 < 10: dma(kk + 3)
        self.stamp(2)

    def side_setup(self):
        a = self.a
        a("s_mov_b32 s67, 52429")
        a("s_movk_i32 s68, 1280")
        for i in range(5):
            a("v_add_u32 v1, %d, v0" % (64 * i))
            a("v_mul_lo_u32 v2, v1, s67")
            a("v_lshrrev_b32 v2, 19, v2")
            a("v_mul_u32_u24 v3, 10, v2")
            a("v_sub_u32 v3, v1, v3")
            a("v_mul_lo_u32 v2, v2, s68")
            a("v_lshl_add_u32 v%d, v3, 4, v2" % (50 + i))
        a("v_lshrrev_b32 v1, 4, v0")
        a("v_and_b32 v2, 15, v0")
        a("v_lshrrev_b32 v3, 2, v2")
        a("v_lshl_add_u32 v4, v1, 2, v3")
        a("v_mul_u32_u24 v4, 160, v4")
        a("v_add_u32 v4, %d, v4" % LDS_TAB)
        a("v_and_b32 v5, 3, v0")
        a("v_lshl_add_u32 v55, v5, 4, v4")
        a("v_lshl_add_u32 v56, v5, 3, v4")
        a("v_lshlrev_b32 v57, 4, v0")
        a("v_lshlrev_b32 v58, 2, v0")
        a("v_lshl_add_u32 v4, v1, 3, v3")
        a("v_lshlrev_b32 v4, 7, v4")
        a("v_bfe_u32 v5, v0, 1, 1")
        a("v_lshrrev_b32 v6, 1, v3")
        a("v_xor_b32 v5, v5, v6")
        a("v_lshl_add_u32 v4, v5, 4, v4")
        a("v_and_b32 v5, 1, v0")
        a("v_lshl_add_u32 v4, v5, 3, v4")
        a("v_and_b32 v5, 1, v1")
        a("v_lshl_add_u32 v59, v5, 6, v4")
        a("v_xor_b32 v5, 1, v5")
        a("v_lshl_add_u32 v60, v5, 6, v4")
        a("v_lshlrev_b32 v61, 12, v2")
        a("v_lshl_add_u32 v61, v1, 4, v61")
        a("s_add_u32 s51, s2, 128")
        a("s_cmp_ge_u32 s2, 128")
        a("s_cselect_b32 s51, s51, 999")
        a("s_lshr_b32 s52, s5, 1")
        a("s_add_u32 s53, s52, 8")
        a("s_cmp_lt_u32 s5, 4")
        a("s_cselect_b32 s53, s53, 99")
    def wd_load(self, ureg, scr):
        a = self.a
        a("s_lshr_b32 s67, %s, 3" % ureg)
        a("s_and_b32 s68, %s, 7" % ureg)
        a("s_mul_i32 s69, s67, %d" % (32 * 1280))
        a("s_mul_i32 s67, s68, 160")
        a("s_add_u32 s69, s69, s67")
        for i in range(5):
            a("s_mov_b32 m0, %d" % (LDS_TAB + scr + 1024 * i))
            a("s_nop 0")
            a("buffer_load_dwordx4 v%d, s[28:31], s69 offen lds" % (50 + i))
    def wd_store(self, ureg, scr):
        a = self.a
        for dt in range(5):
            for h in range(2):
                if dt < 4: ad, off = 55, 64 * (dt >> 1) + 8 * (dt & 1) + 2560 * h
                else: ad, off = 56, 128 + 2560 * h
                a("ds_read_b64_tr_b16 v[%d:%d], v%d offset:%d" % (8 + 4 * dt + 2 * h, 9 + 4 * dt + 2 * h, ad, off + scr))
        a("s_lshr_b32 s67, %s, 3" % ureg)
        a("s_and_b32 s68, %s, 7" % ureg)
        a("s_mul_i32 s68, s68, 48")
        a("s_add_u32 s67, s67, s68")
        a("s_mul_i32 s67, s67, 5120")
        a("s_add_u32 s67, s67, %d" % WS_WD)
        a("s_add_u32 s68, s67, 4096")
        a("s_waitcnt lgkmcnt(0)")
        for dt in range(5):
            if dt < 4: a("buffer_store_dwordx4 v[%d:%d], v57, s[20:23], s67 offen offset:%d sc1" % (8 + 4 * dt, 11 + 4 * dt, 1024 * dt))
            else: a("buffer_store_dwordx4 v[%d:%d], v57, s[20:23], s68 offen sc1" % (8 + 4 * dt, 11 + 4 * dt))
    def gate_load(self):
        a = self.a
        a("v_and_b32 v1, 15, v0")
        a("v_lshlrev_b32 v1, 4, v1")
        for j in range(5):
            a("global_load_dwordx4 v[%d:%d], v1, s[%d:%d] offset:%d" % (8 + 4 * j, 11 + 4 * j, P_GW, P_GW + 1, 256 * j))
        a("v_lshrrev_b32 v2, 4, v0")
        a("s_movk_i32 s67, 1280")
        a("v_mul_lo_u32 v2, v2, s67")
        a("v_add_u32 v2, v2, v1")
        a("s_lshl_b32 s67, s2, 3")
        a("s_mul_i32 s67, s67, 1280")
        for half in range(2):
            for j in range(5):
                r = 28 + 20 * half + 4 * j
                a("buffer_load_dwordx4 v[%d:%d], v2, s[8:11], s67 offen offset:%d" % (r, r + 3, 256 * j))
            if half == 0: a("s_add_u32 s67, s67, %d" % (4 * 1280))
    def gate_compute(self):
        a = self.a
        R = 68
        for i in range(4): a("v_mov_b32 v%d, 0" % (R + i))
        for j in range(5):
            for e in range(4):
                for half in range(2):
                    acc = R + half + 2 * (e & 1)
                    a("v_dot2_f32_bf16 v%d, v%d, v%d, v%d" % (acc, 28 + 20 * half + 4 * j + e, 8 + 4 * j + e, acc))
        a("s_nop 2")
        a("v_add_f32 v%d, v%d, v%d" % (R, R, R + 2))
        a("v_add_f32 v%d, v%d, v%d" % (R + 1, R + 1, R + 3))
        a("s_nop 0")
        for ctl in ("row_shr:1", "row_shr:2", "row_shr:4", "row_shr:8"):
            for i in range(2):
                a("v_add_f32_dpp v%d, v%d, v%d %s row_mask:0xf bank_mask:0xf bound_ctrl:1" % (R + i, R + i, R + i, ctl))
            a("s_nop 0")
        for i in range(2): a("v_mul_f32 v%d, 0xbfb8aa3b, v%d" % (R + i, R + i))
        for i in range(2): a("v_exp_f32 v%d, v%d" % (R + i, R + i))
        a("s_nop 0")
        for i in range(2): a("v_add_f32 v%d, 1.0, v%d" % (R + i, R + i))
        for i in range(2): a("v_rcp_f32 v%d, v%d" % (R + i, R + i))
        a("s_lshl_b32 s67, s2, 5")
        a("s_add_u32 s67, s67, %d" % WS_G)
        a("v_lshrrev_b32 v1, 4, v0")
        a("v_lshlrev_b32 v1, 2, v1")
        a("s_mov_b32 exec_lo, 0x80008000")
        a("s_mov_b32 exec_hi, 0x80008000")
        a("buffer_store_dword v%d, v1, s[20:23], s67 offen sc1" % R)
        a("buffer_store_dword v%d, v1, s[20:23], s67 offen offset:16 sc1" % (R + 1))
        a("s_mov_b64 exec, -1")
    def ut_read(self, chunk_reg, stage_base, H):
        a = self.a
        a("s_and_b32 s67, %s, 1" % chunk_reg)
        a("s_cmp_eq_u32 s67, 0")
        a("s_cselect_b64 vcc, -1, 0")
        a("s_nop 0")
        a("v_cndmask_b32 v4, v60, v59, vcc")
        a("v_add_u32 v4, %d, v4" % stage_base)
        for aa in range(2):
            for it in range(4):
                for hh in range(2):
                    r = H + (aa * 4 + it) * 4 + 2 * hh
                    a("ds_read_b64_tr_b16 v[%d:%d], v4 offset:%d" % (r, r + 1, 4096 * it + 512 * hh + 32 * (aa ^ hh)))
        a("s_waitcnt lgkmcnt(0)")
    def ut_store(self, chunk_reg, H):
        a = self.a
        a("s_lshl_b32 s67, %s, 17" % chunk_reg)
        a("s_lshl_b32 s68, s4, 8")
        a("s_add_u32 s67, s67, s68")
        a("s_add_u32 s67, s67, %d" % WS_UT)
        a("s_add_u32 s68, s67, 65536")
        for aa in range(2):
            for it in range(4):
                r = H + (aa * 4 + it) * 4
                a("buffer_store_dwordx4 v[%d:%d], v61, s[20:23], s%d offen offset:%d sc1" % (r, r + 3, 67 + aa, 64 * it))

    def s_side(self):
        a = self.a
        if "noside" in self.ph:
            for b in range(11): a("s_barrier")
            return
        HA, HB = 100, 132
        def cond_b(fn):
            l = self.newlab("wb")
            a("s_cmp_ge_u32 s51, 384")
            a("s_cbranch_scc1 %s" % l)
            fn()
            a.lab(l)
        self.side_setup()
        self.wd_load("s2", 0)
        cond_b(lambda: self.wd_load("s51", 5120))
        a("s_add_u32 s50, s5, 16")
        self.stamp(5)
        a("s_barrier")
        self.stamp(1)
        def ut_maybe(kk):
            l = self.newlab("ut")
            if kk <= 7:
                a("s_cmp_lg_u32 s52, %d" % kk)
                a("s_cbranch_scc1 %s" % l)
                self.ut_read("s5", (kk % 3) * STAGE, HA)
            else:
                a("s_cmp_lg_u32 s53, %d" % kk)
                a("s_cbranch_scc1 %s" % l)
                self.ut_read("s50", (kk % 3) * STAGE, HB)
            a.lab(l)
        ut_maybe(0)
        for kk in range(10):
            a("s_barrier")
            if kk + 1 < 10: ut_maybe(kk + 1)
            if kk == 1:
                a("s_waitcnt vmcnt(0)")
                self.wd_store("s2", 0)
            if kk == 3:
                cond_b(lambda: self.wd_store("s51", 5120))
        self.stamp(2)
        self.ut_store("s5", HA)
        l = self.newlab("utb")
        a("s_cmp_ge_u32 s5, 4")
        a("s_cbranch_scc1 %s" % l)
        self.ut_store("s50", HB)
        a.lab(l)
        self.gate_load()
        a("s_waitcnt vmcnt(15)")
        self.stamp(3)
        a("s_waitcnt vmcnt(0)")
        self.gate_compute()
        a("s_waitcnt vmcnt(0)")
        self.stamp(4)

    def s_phase1(self):
        a = self.a
        n = self.name
        a("s_sub_u32 s66, s3, 4")
        a("s_cmp_eq_u32 s66, 0")
        a("s_cbranch_scc1 %s_l0" % n)
        a("s_cmp_eq_u32 s66, 1")
        a("s_cbranch_scc1 %s_l1" % n)
        a("s_cmp_eq_u32 s66, 3")
        a("s_cbranch_scc1 %s_sj" % n)
        self.s_wloader(2)
        a("s_branch %s_p1done" % n)
        a.lab("%s_l0" % n)
        self.s_wloader(0)
        a("s_branch %s_p1done" % n)
        a.lab("%s_l1" % n)
        self.s_wloader(1)
        a("s_branch %s_p1done" % n)
        a.lab("%s_sj" % n)
        self.s_side()
        a.lab("%s_p1done" % n)

    def ssm_param_loads(self):
        a = self.a
        a("s_mul_i32 s67, s50, 384")
        a("v_lshl_add_u32 v1, v0, 1, s67")
        for k, p in enumerate((P_ARE, P_AIM, P_BRE, P_BIM, P_CRE, P_CIM)):
            for sl in range(3):
                a("global_load_ushort v%d, v1, s[%d:%d] offset:%d" % (200 + 6 * sl + k, p, p + 1, 128 * sl))
        a("s_lshl_b32 s67, s50, 1")
        a("v_mov_b32 v2, s67")
        a("global_load_ushort v218, v2, s[%d:%d]" % (P_LDT, P_LDT + 1))
        a("global_load_ushort v219, v2, s[%d:%d]" % (P_DSK, P_DSK + 1))

    def kgen(self):
        a = self.a
        a("s_mul_i32 s51, s66, %d" % TAB_SZ)
        a("s_add_u32 s51, s51, %d" % LDS_TAB)
        a("s_mul_i32 s52, s66, %d" % KR_SZ)
        a("s_add_u32 s52, s52, %d" % LDS_KR)
        a("v_and_b32 v4, 15, v0")
        a("v_lshrrev_b32 v5, 4, v0")
        a("v_mul_u32_u24 v2, %d, v4" % TABROW)
        a("v_lshl_add_u32 v2, v5, 6, v2")
        a("v_add_u32 v2, s51, v2")
        a("v_and_b32 v6, 1, v5")
        a("v_lshl_add_u32 v3, v6, 3, v2")
        a("v_xor_b32 v6, 1, v6")
        a("v_lshl_add_u32 v2, v6, 3, v2")
        a("s_mov_b32 m0, s51")
        a("s_waitcnt vmcnt(0)")
        self.stamp(1)
        a("v_lshlrev_b32 v218, 16, v218")
        a("v_lshlrev_b32 v219, 16, v219")
        a("v_mul_f32 v6, 0x3fb8aa3b, v218")
        a("s_mov_b32 s67, 0x3fb8aa3b")
        a("v_fma_f32 v7, v218, s67, -v6")
        a("v_fmac_f32 v7, 0x32a57060, v218")
        a("v_exp_f32 v6, v6")
        a("v_mul_f32 v7, 0x3f317218, v7")
        a("v_fma_f32 v6, v6, v7, v6")
        a("v_cvt_pk_bf16_f32 v6, v6, v6")
        a("v_lshlrev_b32 v218, 16, v6")
        W1, W16, W256, W512, W768, W1024 = 10, 12, 14, 16, 18, 20
        WX = 22
        CB = 24
        Y = 26; P = 28; TMP1 = 30; TMP2 = 32; TMP3 = 34
        PK = 36
        V = 50
        CV = 66
        YF = 76
        AF = 92
        ACC = 108
        def cmul(out, x, w, t):
            return ["v_pk_mul_f32 v[%d:%d], v[%d:%d], v[%d:%d] op_sel:[0,0] op_sel_hi:[0,1]" % (t, t + 1, x, x + 1, w, w + 1),
                    "v_pk_fma_f32 v[%d:%d], v[%d:%d], v[%d:%d], v[%d:%d] op_sel:[1,1,0] op_sel_hi:[1,0,1] neg_lo:[1,0,0]" % (out, out + 1, x, x + 1, w, w + 1, t, t + 1)]
        def zipl(*ls):
            o = []
            for i in range(max(len(l) for l in ls)):
                for l in ls:
                    if i < len(l): o.append(l[i])
            return o
        cvn = [0, 0]
        def wr(val, tile, row, neg, bank=0):
            c = CV + 4 * bank + (cvn[bank] % 4); cvn[bank] += 1
            return ["v_cvt_pk_bf16_f32 v%d, v%d, %sv%d" % (c, val, "-" if neg else "", val + 1),
                    "ds_write_addtid_b32 v%d offset:%d" % (c, tile * TABTILE + row * TABROW)]
        def frag_reads(dst, tile):
            L = []
            for kk in range(4):
                L.append("ds_read_b64 v[%d:%d], v3 offset:%d" % (dst + 4 * kk, dst + 4 * kk + 1, tile * TABTILE + 16 * kk))
                L.append("ds_read_b64 v[%d:%d], v2 offset:%d" % (dst + 4 * kk + 2, dst + 4 * kk + 3, tile * TABTILE + 16 * kk))
            return L
        def mm(t, first):
            L = []
            for kk in range(4):
                c = "0" if (first and kk == 0) else "v[%d:%d]" % (ACC + 4 * t, ACC + 4 * t + 3)
                L.append("v_mfma_f32_16x16x32_bf16 v[%d:%d], v[%d:%d], v[%d:%d], %s" % (ACC + 4 * t, ACC + 4 * t + 3, AF + 4 * kk, AF + 4 * kk + 3, YF + 4 * kk, YF + 4 * kk + 3, c))
            return L
        for sl in range(3):
            pr = 200 + 6 * sl
            for k in range(6): a("v_lshlrev_b32 v%d, 16, v%d" % (pr + k, pr + k))
            a("v_mul_f32 v6, v218, v%d" % pr)
            a("v_mul_f32 v7, v218, v%d" % (pr + 1))
            a("v_mul_f32 v6, 0x3fb8aa3b, v6")
            a("v_mul_f32 v7, 0.15915494, v7")
            a("v_mul_f32 v8, v218, v%d" % (pr + 2))
            a("v_mul_f32 v9, v218, v%d" % (pr + 3))
            a.ext(cmul(CB, pr + 4, 8, TMP1))
            for w, k in ((W1, 1.0), (W16, 16.0), (W256, 256.0)):
                if k == 1.0:
                    a("v_exp_f32 v%d, v6" % TMP2)
                    a("v_fract_f32 v%d, v7" % TMP3)
                else:
                    lit = "0x41800000" if k == 16.0 else "0x43800000"
                    a("v_mul_f32 v%d, %s, v6" % (TMP2, lit))
                    a("v_mul_f32 v%d, %s, v7" % (TMP3, lit))
                    a("v_exp_f32 v%d, v%d" % (TMP2, TMP2))
                    a("v_fract_f32 v%d, v%d" % (TMP3, TMP3))
                a("v_cos_f32 v%d, v%d" % (w, TMP3))
                a("v_sin_f32 v%d, v%d" % (w + 1, TMP3))
                a("s_nop 0")
                a("v_mul_f32 v%d, v%d, v%d" % (w, w, TMP2))
                a("v_mul_f32 v%d, v%d, v%d" % (w + 1, w + 1, TMP2))
            if sl > 0:
                a("s_waitcnt lgkmcnt(0)")
            LY = ["v_mov_b32 v%d, v%d" % (Y, CB), "v_mov_b32 v%d, v%d" % (Y + 1, CB + 1)] + wr(Y, 0, 0, False)
            for j in range(1, 16):
                LY += cmul(Y, Y, W16, TMP1) + wr(Y, 0, j, False)
            LA = ["v_mov_b32 v%d, 1.0" % P, "v_mov_b32 v%d, 0" % (P + 1)] + wr(P, 1, 0, True, 1)
            cur = P
            for r in range(1, 16):
                if r == 1:
                    LA += ["v_mov_b32 v%d, v%d" % (P, W1), "v_mov_b32 v%d, v%d" % (P + 1, W1 + 1)]
                    cur = P
                else:
                    dst = PK + 2 * (r // 2 - 1) if r % 2 == 0 else P
                    LA += cmul(dst, cur, W1, TMP2)
                    cur = dst
                LA += wr(cur, 1, r, True, 1)
            a.ext(zipl(LY, LA))
            a.ext(cmul(W512, W256, W256, TMP1))
            a("s_waitcnt lgkmcnt(0)")
            a.ext(frag_reads(YF, 0)); a.ext(frag_reads(AF, 1))
            a.ext(zipl(cmul(W768, W512, W256, TMP1), cmul(W1024, W512, W512, TMP2)))
            def pk(i): return PK + 2 * (i // 2 - 1)
            vals = []
            A2 = []
            regs = []
            for r in range(8):
                if r == 0: regs.append(W256)
                else:
                    dst = V + 2 * (r - 1) if r < 8 else None
                    A2.append(cmul(dst, pk(2 * r), W256, TMP1 if r % 2 else TMP2)); regs.append(dst)
            a.ext(zipl(sum(A2[0::2], []), sum(A2[1::2], [])))
            a("s_waitcnt lgkmcnt(0)")
            m = mm(0, sl == 0)
            L = []
            for r in range(8): L += wr(regs[r], 1, r, True)
            a.ext(interleave(m, L))
            LA = []; LB = []
            for b in range(4):
                if b == 0:
                    LA += wr(W512, 1, 8, True); LB += wr(W768, 1, 12, True, 1)
                else:
                    LA += cmul(V, pk(4 * b), W512, TMP1) + wr(V, 1, 8 + b, True)
                    LB += cmul(V + 2, pk(4 * b), W768, TMP2) + wr(V + 2, 1, 12 + b, True, 1)
            a.ext(zipl(LA, LB))
            a("s_waitcnt lgkmcnt(0)")
            a.ext(frag_reads(AF, 1))
            a.ext(zipl(cmul(V, W1024, W256, TMP1), cmul(V + 2, W1024, W512, TMP2)))
            a.ext(zipl(cmul(V + 4, W1024, W768, TMP1), cmul(V + 6, W1024, W1024, TMP2)))
            ws = [W1024, V, V + 2, V + 4]
            a.ext(zipl(cmul(V + 8, ws[0], pk(8), TMP1), cmul(V + 10, ws[1], pk(8), TMP2)))
            a.ext(zipl(cmul(V + 12, ws[2], pk(8), TMP1), cmul(V + 14, ws[3], pk(8), TMP2)))
            a("s_waitcnt lgkmcnt(0)")
            m = mm(1, sl == 0)
            L = []
            for i in range(4):
                L += wr(ws[i], 1, 2 * i, True) + wr(V + 8 + 2 * i, 1, 2 * i + 1, True)
            L += wr(V + 6, 1, 8, True)
            a.ext(interleave(m, L))
            a("s_waitcnt lgkmcnt(0)")
            a.ext(frag_reads(AF, 1))
            a("s_waitcnt lgkmcnt(0)")
            a.ext(mm(2, sl == 0))
        self.stamp(2)
        A0, A1, A2r = ACC, ACC + 4, ACC + 8
        a("v_cmp_eq_u32 vcc, 0, v0")
        a("v_and_b32 v4, 15, v0")
        a("v_lshrrev_b32 v5, 4, v0")
        a("v_cndmask_b32 v6, 0, v219, vcc")
        a("v_lshlrev_b32 v7, 5, v4")
        a("v_lshl_add_u32 v7, v5, 4, v7")
        a("v_lshlrev_b32 v8, 4, v4")
        a("v_lshl_add_u32 v8, v5, 8, v8")
        a("v_cmp_gt_u32 vcc, 2, v5")
        a("v_add_f32 v%d, v%d, v6" % (A0, A0))
        a("s_nop 0")
        a("v_cndmask_b32 v7, v8, v7, vcc")
        a("v_add_u32 v7, s51, v7")
        a("v_lshlrev_b32 v8, 3, v4")
        a("v_lshl_add_u32 v8, v5, 8, v8")
        a("v_add_u32 v8, s51, v8")
        a("s_nop 4")
        a("ds_write_b128 v7, v[%d:%d]" % (A1, A1 + 3))
        a("ds_write_b64 v8, v[%d:%d] offset:1024" % (A2r, A2r + 1))
        a("ds_write_b64 v8, v[%d:%d] offset:1152" % (A2r + 2, A2r + 3))
        a("v_cvt_pk_bf16_f32 v10, v%d, v%d" % (A0 + 3, A0 + 2))
        a("v_cvt_pk_bf16_f32 v11, v%d, v%d" % (A0 + 1, A0))
        a("v_lshlrev_b32 v9, 5, v4")
        a("v_lshl_add_u32 v9, v5, 3, v9")
        a("v_sub_u32 v9, 4088, v9")
        a("v_add_u32 v9, s52, v9")
        a("ds_write_b64 v9, v[10:11]")
        a("v_and_b32 v9, 31, v0")
        a("v_lshlrev_b32 v9, 2, v9")
        a("v_add_u32 v9, s52, v9")
        a("v_mov_b32 v12, 0")
        a("ds_write_b32 v9, v12 offset:4096")
        a("v_lshlrev_b32 v13, 4, v0")
        a("v_add_u32 v14, s51, v13")
        a("v_lshlrev_b32 v15, 3, v0")
        a("v_add_u32 v15, s51, v15")
        a("v_lshlrev_b32 v16, 2, v0")
        a("v_add_u32 v16, s51, v16")
        a("v_sub_u32 v13, s52, v13")
        a("s_waitcnt lgkmcnt(0)")
        a("ds_read_b128 v[20:23], v14")
        a("ds_read_b32 v24, v14 offset:16")
        a("ds_read_b64 v[26:27], v15 offset:512")
        a("ds_read_b32 v28, v15 offset:520")
        a("ds_read2_b32 v[30:31], v16 offset0:0 offset1:1")
        a.l.pop()
        a("v_add_u32 v17, 1024, v16")
        a("ds_read2_b32 v[30:31], v17 offset0:0 offset1:1")
        a("ds_read2_b32 v[32:33], v17 offset0:64 offset1:65")
        a("v_and_b32 v18, 1, v0")
        a("v_cmp_eq_u32 vcc, 1, v18")
        a("s_waitcnt lgkmcnt(0)")
        a("v_cvt_pk_bf16_f32 v36, v28, v28")
        a("v_cvt_pk_bf16_f32 v37, v27, v27")
        a("v_cvt_pk_bf16_f32 v38, v27, v26")
        a("v_cvt_pk_bf16_f32 v39, v26, v26")
        a("ds_write_b128 v13, v[36:39] offset:3056")
        for ps in range(2):
            v0_, v1_ = 30 + 2 * ps, 31 + 2 * ps
            o = 40 + 4 * ps
            a("v_cndmask_b32 v19, v%d, v%d, vcc" % (v0_, v1_))
            a("v_cvt_pk_bf16_f32 v%d, v%d, v%d" % (o, v1_, v1_))
            a("v_cvt_pk_bf16_f32 v%d, v%d, v19" % (o + 1, v1_))
            a("v_cvt_pk_bf16_f32 v%d, v%d, v%d" % (o + 2, v0_, v0_))
            a("v_mov_b32 v%d, v%d" % (o + 3, o + 2))
        a("ds_write_b128 v13, v[40:43] offset:2032")
        a("ds_write_b128 v13, v[44:47] offset:1008")
        a("v_cvt_pk_bf16_f32 v48, v24, v23")
        a("v_cvt_pk_bf16_f32 v49, v22, v22")
        a("v_cvt_pk_bf16_f32 v50, v22, v21")
        a("v_cvt_pk_bf16_f32 v51, v20, v20")
        a("s_mov_b32 exec_hi, 0")
        a("ds_write_b128 v13, v[48:51] offset:3568")
        a("s_mov_b32 exec_hi, -1")
        self.stamp(3)
        if "dumpk" in self.ph:
            a("s_waitcnt lgkmcnt(0)")
            a("v_lshlrev_b32 v13, 4, v0")
            a("v_add_u32 v14, s52, v13")
            a("s_mul_i32 s67, s50, 4224")
            a("s_add_u32 s67, s67, %d" % WS_DBG)
            for i in range(5):
                a("ds_read_b128 v[20:23], v14 offset:%d" % (1024 * i))
                a("s_waitcnt lgkmcnt(0)")
                if i == 4: a("s_mov_b32 exec_hi, 0"); a("s_mov_b32 exec_lo, 0xff")
                a("s_add_u32 s68, s67, %d" % (1024 * i))
                a("buffer_store_dwordx4 v[20:23], v13, s[20:23], s68 offen")
                a("s_waitcnt vmcnt(0)")
            a("s_mov_b64 exec, -1")

    def conv_loads(self):
        a = self.a
        a("s_lshl_b32 s67, s50, 12")
        a("s_add_u32 s67, s67, %d" % (WS_UT - 4))
        a("v_lshlrev_b32 v1, 2, v0")
        for i in range(16):
            a("buffer_load_dwordx2 v[%d:%d], v1, s[20:23], s67 offen offset:%d sc1" % (120 + 2 * i, 121 + 2 * i, 256 * i))

    def conv(self):
        a = self.a
        D = 120
        a("s_mul_i32 s53, s66, %d" % UC_SZ)
        if LDS_UC: a("s_add_u32 s53, s53, %d" % LDS_UC)
        a("s_mov_b32 m0, s53")
        a("v_mov_b32 v2, 0")
        for b in range(4):
            a("ds_write_addtid_b32 v2 offset:%d" % (b * UC_STRIDE))
            a("ds_write_addtid_b32 v2 offset:%d" % (b * UC_STRIDE + 33 * 4))
        a("v_cmp_eq_u32 vcc, 0, v0")
        a("s_waitcnt vmcnt(0)")
        a("v_cndmask_b32 v%d, v%d, v2, vcc" % (D, D))
        for i in range(16):
            lo, hi = D + 2 * i, D + 2 * i + 1
            o = 4 + (i % 4)
            a("v_alignbit_b32 v%d, v%d, v%d, 16" % (o, hi, lo))
            a("ds_write_addtid_b32 v%d offset:%d" % (hi, 3 * UC_STRIDE + 4 * (64 * i + 96)))
            a("ds_write_addtid_b32 v%d offset:%d" % (hi, 1 * UC_STRIDE + 4 * (64 * i + 97)))
            a("ds_write_addtid_b32 v%d offset:%d" % (o, 2 * UC_STRIDE + 4 * (64 * i + 96)))
            a("ds_write_addtid_b32 v%d offset:%d" % (o, 0 * UC_STRIDE + 4 * (64 * i + 97)))
        VU, VK = 8, 9
        a("v_and_b32 v4, 3, v0")
        a("v_mul_u32_u24 v4, %d, v4" % UC_STRIDE)
        a("v_bfe_u32 v5, v0, 2, 2")
        a("v_lshl_add_u32 v4, v5, 7, v4")
        a("v_lshrrev_b32 v5, 4, v0")
        a("v_lshl_add_u32 v4, v5, 4, v4")
        a("v_add_u32 v%d, s53, v4" % VU)
        a("v_and_b32 v6, 15, v0")
        a("v_lshlrev_b32 v7, 3, v6")
        a("v_sub_u32 v7, 120, v7")
        a("v_lshl_add_u32 v7, v5, 4, v7")
        a("v_add_u32 v%d, s52, v7" % VK)
        a("v_lshlrev_b32 v10, 3, v6")
        a("v_lshl_add_u32 v10, v5, 7, v10")
        ACC = 16; SETS = [48, 112]
        def reads(rho, S):
            L = []
            for z in range(8):
                L.append("ds_read_b128 v[%d:%d], v%d offset:%d" % (S + 4 * z, S + 4 * z + 3, VU, 512 * z + 64 * (7 - rho)))
                zz = 8 * z + rho
                L.append("ds_read_b64 v[%d:%d], v%d offset:%d" % (S + 32 + 4 * z, S + 33 + 4 * z, VK, 64 * (63 - zz)))
                L.append("ds_read_b64 v[%d:%d], v%d offset:%d" % (S + 34 + 4 * z, S + 35 + 4 * z, VK, 64 * (63 - zz) + 8))
            return L
        def mm(rho, S):
            L = []
            for ze in range(8):
                for nu in range(8 - ze):
                    n = ze + nu
                    c = "0" if (rho == 0 and ze == 0) else "v[%d:%d]" % (ACC + 4 * n, ACC + 4 * n + 3)
                    L.append("v_mfma_f32_16x16x32_bf16 v[%d:%d], v[%d:%d], v[%d:%d], %s" % (ACC + 4 * n, ACC + 4 * n + 3, S + 4 * nu, S + 4 * nu + 3, S + 32 + 4 * ze, S + 35 + 4 * ze, c))
            return L
        a("s_waitcnt lgkmcnt(0)")
        self.stamp(4)
        a.ext(reads(0, SETS[0]))
        a("s_waitcnt lgkmcnt(0)")
        for rho in range(8):
            fill = reads(rho + 1, SETS[(rho + 1) & 1]) if rho < 7 else []
            a.ext(interleave(mm(rho, SETS[rho & 1]), fill, span=28))
            if rho < 7: a("s_waitcnt lgkmcnt(0)")
        self.stamp(7)
        a("s_lshl_b32 s67, s50, 12")
        a("s_add_u32 s67, s67, %d" % WS_Y)
        a("s_nop 7")
        for n in range(8):
            o = 48 + 2 * n
            a("v_cvt_pk_bf16_f32 v%d, v%d, v%d" % (o, ACC + 4 * n, ACC + 4 * n + 1))
            a("v_cvt_pk_bf16_f32 v%d, v%d, v%d" % (o + 1, ACC + 4 * n + 2, ACC + 4 * n + 3))
            a("buffer_store_dwordx2 v[%d:%d], v10, s[20:23], s67 offen offset:%d sc1" % (o, o + 1, 512 * n))

    def s_ssm(self):
        a = self.a
        n = self.name
        a("s_sub_u32 s66, s3, 4")
        a("s_lshl_b32 s50, s66, 8")
        a("s_add_u32 s50, s50, s2")
        a("s_cmp_ge_u32 s66, 3")
        a("s_cbranch_scc1 %s_ssm_done" % n)
        a("s_cmp_ge_u32 s50, 640")
        a("s_cbranch_scc1 %s_ssm_done" % n)
        self.stamp(5)
        self.ssm_param_loads()
        self.kgen()
        self.stamp(6)
        self.conv_loads()
        self.conv()
        a("s_waitcnt vmcnt(0)")
        self.stamp(8)
        a.lab("%s_ssm_done" % n)

    def g_gemm2(self):
        a = self.a
        ACC = 0
        SETS = [80, 116, 152, 188]
        VB = 224
        VL = 228
        T = 230
        acc = lambda dt, tau: ACC + (dt * 4 + tau) * 4
        a("v_mbcnt_lo_u32_b32 v%d, -1, 0" % T)
        a("v_mbcnt_hi_u32_b32 v%d, -1, v%d" % (T, T))
        a("v_lshlrev_b32 v%d, 4, v%d" % (VL, T))
        for tau in range(4):
            a("s_add_u32 s67, s3, %d" % tau)
            a("s_and_b32 s67, s67, 3")
            a("s_lshl_b32 s67, s67, 10")
            a("v_add_u32 v%d, s67, v%d" % (VB + tau, VL))
        a("s_mul_i32 s70, s6, 48")
        a("s_mul_i32 s67, s3, 12")
        a("s_add_u32 s70, s70, s67")
        a("s_lshl_b32 s70, s70, 12")
        if WS_H: a("s_add_u32 s70, s70, %d" % WS_H)
        a("s_mul_i32 s71, s7, 48")
        a("s_add_u32 s71, s71, s67")
        a("s_mul_i32 s71, s71, 5120")
        a("s_add_u32 s71, s71, %d" % WS_WD)
        a("s_add_u32 s72, s71, 4096")
        def loadsA(S):
            L = []
            for dt in range(5):
                if dt < 4: L.append("buffer_load_dwordx4 v[%d:%d], v%d, s[20:23], s71 offen offset:%d sc1" % (S + 16 + 4 * dt, S + 19 + 4 * dt, VL, 1024 * dt))
                else: L.append(("buffer_load_dwordx4 v[%d:%d], v%d, s[20:23], s72 offen sc1" % (S + 16 + 4 * dt, S + 19 + 4 * dt, VL),
                                "s_add_u32 s71, s71, 5120", "s_add_u32 s72, s72, 5120"))
            return L
        def loadsB(S):
            L = []
            for tau in range(4):
                x = "buffer_load_dwordx4 v[%d:%d], v%d, s[20:23], s70 offen sc1" % (S + 4 * tau, S + 4 * tau + 3, VB + tau)
                L.append(x if tau < 3 else (x, "s_add_u32 s70, s70, 4096"))
            return L
        def mm(S, first):
            L = []
            for dt in range(5):
                for tau in range(4):
                    c = "0" if first else "v[%d:%d]" % (acc(dt, tau), acc(dt, tau) + 3)
                    L.append("v_mfma_f32_16x16x32_bf16 v[%d:%d], v[%d:%d], v[%d:%d], %s" % (acc(dt, tau), acc(dt, tau) + 3, S + 16 + 4 * dt, S + 19 + 4 * dt, S + 4 * tau, S + 4 * tau + 3, c))
            return L
        self.g2_wait_inputs()
        self.stamp(5)
        NS = 12
        for k in range(3):
            a.ext(flat(loadsB(SETS[k]) + loadsA(SETS[k])))
        for k in range(NS):
            rem = min(NS - 1, k + 2) - k
            a("s_waitcnt vmcnt(%d)" % (9 * rem))
            fill = (loadsB(SETS[(k + 3) % 4]) + loadsA(SETS[(k + 3) % 4])) if k + 3 < NS else []
            a.ext(interleave(mm(SETS[k % 4], k == 0), fill))
        self.stamp(6)
        a("s_nop 7")
        for tau in range(1, 4):
            a("s_add_u32 s67, s3, %d" % tau)
            a("s_and_b32 s67, s67, 3")
            a("s_mul_i32 s67, s67, 3")
            a("s_add_u32 s67, s67, %d" % (tau - 1))
            a("s_mul_i32 s67, s67, 5120")
            a("s_add_u32 s67, s67, %d" % LDS_RED)
            a("v_add_u32 v%d, s67, v%d" % (T + 1, VL))
            for dt in range(5):
                a("ds_write_b128 v%d, v[%d:%d] offset:%d" % (T + 1, acc(dt, tau), acc(dt, tau) + 3, 1024 * dt))
        a("s_waitcnt lgkmcnt(0)")
        a("s_barrier")
        self.stamp(7)
        a("s_mul_i32 s67, s3, %d" % (3 * 5120))
        a("s_add_u32 s67, s67, %d" % LDS_RED)
        a("v_add_u32 v%d, s67, v%d" % (T + 1, VL))
        R = 80
        for j in range(3):
            for dt in range(5):
                r = R + (j * 5 + dt) * 4
                a("ds_read_b128 v[%d:%d], v%d offset:%d" % (r, r + 3, T + 1, 5120 * j + 1024 * dt))
        Y = 140
        a("v_lshrrev_b32 v%d, 4, v%d" % (T + 2, T))
        a("v_and_b32 v%d, 15, v%d" % (T + 3, T))
        a("v_lshrrev_b32 v%d, 2, v%d" % (T + 4, T + 3))
        a("v_lshl_add_u32 v%d, v%d, 3, v%d" % (T + 5, T + 2, T + 4))
        a("v_lshl_add_u32 v%d, v%d, 2, v%d" % (T + 6, T + 2, T + 4))
        a("v_and_b32 v%d, 3, v%d" % (T + 7, T))
        a("v_lshlrev_b32 v%d, 3, v%d" % (T + 7, T + 7))
        a("s_lshl_b32 s67, s3, 5")
        a("s_add_u32 s67, s67, %d" % LDS_YT)
        a("v_add_u32 v%d, s67, v%d" % (T + 7, T + 7))
        a("v_lshl_add_u32 v%d, v%d, 7, v%d" % (T + 5, T + 5, T + 7))
        a("v_lshl_add_u32 v%d, v%d, 7, v%d" % (T + 6, T + 6, T + 7))
        for dt in range(5):
            if dt < 4: a("ds_read_b64_tr_b16 v[%d:%d], v%d offset:%d" % (Y + 2 * dt, Y + 2 * dt + 1, T + 5, 128 * (32 * (dt >> 1) + 4 * (dt & 1))))
            else: a("ds_read_b64_tr_b16 v[%d:%d], v%d offset:%d" % (Y + 2 * dt, Y + 2 * dt + 1, T + 6, 128 * 64))
        a("s_lshl_b32 s67, s3, 6")
        a("s_add_u32 s67, s67, %d" % LDS_GT)
        a("v_lshl_add_u32 v%d, v%d, 2, s67" % (T + 8, T + 3))
        a("ds_read_b32 v%d, v%d" % (T + 8, T + 8))
        a("s_lshl_b32 s67, s6, 6")
        a("s_lshl_b32 s68, s3, 4")
        a("s_add_u32 s67, s67, s68")
        a("v_add_u32 v%d, s67, v%d" % (T + 9, T + 3))
        a("s_movk_i32 s68, 1280")
        a("v_mul_lo_u32 v%d, v%d, s68" % (T + 9, T + 9))
        a("s_mul_i32 s68, s7, 160")
        a("v_add_u32 v%d, s68, v%d" % (T + 9, T + 9))
        a("v_lshl_add_u32 v%d, v%d, 3, v%d" % (T + 10, T + 2, T + 9))
        a("v_lshl_add_u32 v%d, v%d, 4, v%d" % (T + 9, T + 2, T + 9))
        a("s_waitcnt lgkmcnt(0)")
        for dt in range(5):
            for h in range(2):
                x = acc(dt, 0) + 2 * h
                p = [R + (j * 5 + dt) * 4 + 2 * h for j in range(3)]
                a("v_pk_add_f32 v[%d:%d], v[%d:%d], v[%d:%d]" % (p[0], p[0] + 1, p[0], p[0] + 1, p[1], p[1] + 1))
                a("v_pk_add_f32 v[%d:%d], v[%d:%d], v[%d:%d]" % (x, x + 1, x, x + 1, p[2], p[2] + 1))
        for dt in range(5):
            for h in range(2):
                x = acc(dt, 0) + 2 * h
                p = R + dt * 4 + 2 * h
                a("v_pk_add_f32 v[%d:%d], v[%d:%d], v[%d:%d]" % (x, x + 1, x, x + 1, p, p + 1))
        U = 150
        for dt in range(5):
            for h in range(2):
                a("v_lshlrev_b32 v%d, 16, v%d" % (U + 4 * dt + 2 * h, Y + 2 * dt + h))
                a("v_and_b32 v%d, 0xffff0000, v%d" % (U + 4 * dt + 2 * h + 1, Y + 2 * dt + h))
        G2 = T + 12
        assert G2 % 2 == 0
        a("v_mov_b32 v%d, v%d" % (G2, T + 8))
        a("v_mov_b32 v%d, v%d" % (G2 + 1, T + 8))
        for dt in range(5):
            for h in range(2):
                x = acc(dt, 0) + 2 * h; u = U + 4 * dt + 2 * h
                a("v_pk_add_f32 v[%d:%d], v[%d:%d], v[%d:%d] neg_lo:[0,1] neg_hi:[0,1]" % (u, u + 1, u, u + 1, x, x + 1))
        for dt in range(5):
            for h in range(2):
                x = acc(dt, 0) + 2 * h; u = U + 4 * dt + 2 * h
                a("v_pk_fma_f32 v[%d:%d], v[%d:%d], v[%d:%d], v[%d:%d]" % (x, x + 1, u, u + 1, G2, G2 + 1, x, x + 1))
        O = 176
        for dt in range(5):
            for h in range(2):
                x = acc(dt, 0) + 2 * h
                a("v_cvt_pk_bf16_f32 v%d, v%d, v%d" % (O + 2 * dt + h, x, x + 1))
        a("buffer_store_dwordx4 v[%d:%d], v%d, s[24:27], 0 offen" % (O, O + 3, T + 9))
        a("buffer_store_dwordx4 v[%d:%d], v%d, s[24:27], 0 offen offset:64" % (O + 4, O + 7, T + 9))
        a("buffer_store_dwordx2 v[%d:%d], v%d, s[24:27], 0 offen offset:128" % (O + 8, O + 9, T + 10))
        self.stamp(8)

    def g2_wait_inputs(self):
        pass

    def s_final(self):
        a = self.a
        n = self.name
        l = self.newlab("fin")
        a("s_cmp_lg_u32 s3, 7")
        a("s_cbranch_scc1 %s" % l)
        self.y_wait_inputs()
        a("v_mbcnt_lo_u32_b32 v0, -1, 0")
        a("v_mbcnt_hi_u32_b32 v0, -1, v0")
        a("v_lshrrev_b32 v1, 3, v0")
        a("v_lshlrev_b32 v1, 12, v1")
        a("v_and_b32 v2, 7, v0")
        a("v_lshl_add_u32 v1, v2, 4, v1")
        a("s_mul_i32 s67, s7, %d" % (80 * 4096))
        a("s_lshl_b32 s68, s6, 7")
        a("s_add_u32 s67, s67, s68")
        a("s_add_u32 s67, s67, %d" % WS_Y)
        for i in range(10):
            a("buffer_load_dwordx4 v[%d:%d], v1, s[20:23], s67 offen sc1" % (8 + 4 * i, 11 + 4 * i))
            if i < 9: a("s_add_u32 s67, s67, %d" % (8 * 4096))
        a("s_lshl_b32 s67, s6, 8")
        a("s_add_u32 s67, s67, %d" % WS_G)
        a("v_lshlrev_b32 v3, 2, v0")
        a("buffer_load_dword v4, v3, s[20:23], s67 offen sc1")
        a("v_lshlrev_b32 v2, 4, v0")
        a("v_add_u32 v2, %d, v2" % LDS_YT)
        a("v_add_u32 v3, %d, v3" % LDS_GT)
        a("s_waitcnt vmcnt(0)")
        for i in range(10):
            a("ds_write_b128 v2, v[%d:%d] offset:%d" % (8 + 4 * i, 11 + 4 * i, 1024 * i))
        a("ds_write_b32 v3, v4")
        a("s_waitcnt lgkmcnt(0)")
        a.lab(l)
        a("s_barrier")

    def y_wait_inputs(self):
        pass

    def build(self):
        a = self.a
        n = self.name
        a.l.append(".globl %s" % n)
        a.l.append(".p2align 8")
        a.l.append(".type %s,@function" % n)
        a.l.append("%s:" % n)
        self.prologue()
        a("s_cmp_ge_u32 s3, 4")
        a("s_cbranch_scc1 %s_S" % n)
        if "g1" in self.ph:
            self.g_gemm1()
        if "g2" in self.ph:
            self.g_gemm2()
        self.stamp_flush()
        a("s_endpgm")
        a.lab("%s_S" % n)
        if "g1" in self.ph:
            self.s_phase1()
        if "ssm" in self.ph:
            self.s_ssm()
        if "g2" in self.ph:
            self.s_final()
        self.stamp_flush()
        a.lab("%s_end" % n)
        a("s_endpgm")
        return a.text()

def kd(name):
    return """.amdhsa_kernel %s
  .amdhsa_next_free_vgpr 256
  .amdhsa_next_free_sgpr 102
  .amdhsa_accum_offset 256
  .amdhsa_group_segment_fixed_size 0
  .amdhsa_kernarg_size 136
  .amdhsa_user_sgpr_count 2
  .amdhsa_user_sgpr_kernarg_segment_ptr 1
  .amdhsa_system_sgpr_workgroup_id_x 1
.end_amdhsa_kernel
""" % name

HEADER = open("gated_mix__ssm_conv_s4__swiglu_ffn__prompt.s.ref").read().split("; Override launch")[0]

def emit(kernels, path):
    txt = HEADER
    if len(kernels) == 1:
        txt += "; @launch grid=(256,1,1) block=(512,1,1) lds=%d\n" % LDS_TOTAL
    else:
        for (n, p, s) in kernels:
            txt += "; @launch kernel=%s grid=(256,1,1) block=(512,1,1) lds=%d\n" % (n, LDS_TOTAL)
    txt += '.amdgcn_target "amdgcn-amd-amdhsa--gfx950"\n.text\n'
    for (n, p, s) in kernels:
        txt += Gen(n, p, s).build()
    txt += '.section .rodata,"a"\n'
    for (n, p, s) in kernels:
        txt += ".p2align 6\n" + kd(n)
    open(path, "w").write(txt)

if __name__ == "__main__":
    mode = sys.argv[1]; path = sys.argv[2]
    stamps = len(sys.argv) > 3 and sys.argv[3] == "stamps"
    if mode.startswith("g1+") or mode == "g1":
        emit([(KNAME, set(mode.split("+")), stamps)], path)
    elif mode == "g1,ssm":
        emit([("ka_kernel", {"g1"}, False), ("kb_kernel", {"ssm", "dumpk"}, stamps)], path)
    elif mode == "3k":
        emit([("ka_kernel", {"g1"}, False), ("kb_kernel", {"ssm"}, False), ("kc_kernel", {"g2"}, stamps)], path)
    elif mode == "3k+1":
        emit([("ka_kernel", {"g1"}, False), ("kb_kernel", {"ssm"}, False), ("kc_kernel", {"g2"}, stamps), ("kd_kernel", set(), False)], path)
    elif mode == "3k+3":
        emit([("ka_kernel", {"g1"}, False), ("kb_kernel", {"ssm"}, False), ("kc_kernel", {"g2"}, stamps), ("kd_kernel", set(), False), ("ke_kernel", set(), False), ("kf_kernel", set(), False)], path)
    elif mode == "g1,ssm,nodump":
        emit([("ka_kernel", {"g1"}, False), ("kb_kernel", {"ssm"}, stamps)], path)
```

```python
import sys, math

KNAME = "gated_mix__ssm_conv_s4__swiglu_ffn__prompt_kernel"

WS_H    = 0x000000
WS_WD   = 0x600000
WS_UT   = 0x800000
WS_Y    = 0xB00000
WS_G    = 0xE00000
WS_FU   = 0xE10000
WS_FW   = 0xE15000
WS_FH   = 0xE11000
WS_FY   = 0xE12000
WS_NON  = 0xE13000
WS_FG   = 0xE14000
WS_TS   = 0xF00000
WS_DBG  = 0x1000000

STAGE   = 40960
ST_WG   = 16384
ST_WU   = 28672
LDS_S   = 3 * STAGE
TABROW  = 272
TABTILE = 16 * TABROW
TAB_SZ  = 2 * TABTILE
LDS_TAB = LDS_S
KR_SZ   = 4224
LDS_KR  = LDS_TAB + 3 * TAB_SZ
LDS_MISC = LDS_KR + 3 * KR_SZ
LDS_TOTAL = 163840
LDS_NONCE = LDS_MISC
LDS_CNT   = LDS_MISC + 8
UC_STRIDE = 4640
UC_SZ   = 4 * UC_STRIDE
LDS_UC  = 0
LDS_RED = 57344
LDS_YT  = LDS_TAB
LDS_GT  = LDS_MISC + 64
LDS_HOK = LDS_MISC + 12

class Asm:
    def __init__(self):
        self.l = []
    def __call__(self, s):
        for x in s.split("\n"):
            x = x.strip()
            if x: self.l.append("    " + x)
    def lab(self, s):
        self.l.append(s + ":")
    def ext(self, lst):
        for x in lst: self(x)
    def text(self):
        return "\n".join(self.l) + "\n"

def interleave(main, fill, start=0, span=None):
    out = []
    m = len(fill)
    n = len(main) if span is None else min(len(main), start + span)
    j = 0
    for i, x in enumerate(main):
        out.append(x)
        if i >= start:
            tgt = (m * (i - start + 1) + (n - start) - 1) // (n - start) if n > start else m
            while j < min(tgt, m):
                f = fill[j]
                if isinstance(f, tuple): out.extend(f)
                else: out.append(f)
                j += 1
    while j < m:
        f = fill[j]
        if isinstance(f, tuple): out.extend(f)
        else: out.append(f)
        j += 1
    return out

def flat(L):
    o = []
    for x in L:
        if isinstance(x, tuple): o.extend(x)
        else: o.append(x)
    return o

def vr(a, n=1):
    return "v%d" % a if n == 1 else "v[%d:%d]" % (a, a + n - 1)
def sr(a, n=1):
    return "s%d" % a if n == 1 else "s[%d:%d]" % (a, a + n - 1)

S_W, S_WAVE, S_M, S_N, S_M2, S_N2 = 2, 3, 4, 5, 6, 7
SRD_X, SRD_WG, SRD_WU, SRD_WS, SRD_OUT, SRD_WD = 8, 12, 16, 20, 24, 28
P_U, P_ARE, P_AIM, P_BRE, P_BIM, P_CRE, P_CIM, P_LDT = 32, 34, 36, 38, 40, 42, 44, 46
P_DSK, P_BX, P_WG, P_WU, P_WD, P_GW, P_OUT, P_DBG, P_WS = 48, 50, 52, 54, 56, 58, 60, 62, 64
S_TS = 80

class Gen:
    def __init__(self, name, phases, stamps=False):
        self.name = name
        self.ph = phases
        self.a = Asm()
        self.stamps = stamps
        self.nlab = 0
    def newlab(self, p):
        self.nlab += 1
        return "L_%s_%s_%d" % (self.name[:6], p, self.nlab)

    def stamp(self, i):
        if self.stamps:
            self.a("s_memtime s[%d:%d]" % (S_TS + 2 * i, S_TS + 2 * i + 1))
            self.a("s_waitcnt lgkmcnt(0)")
    def stamp_flush(self):
        if not self.stamps: return
        a = self.a
        a("s_lshl_b32 s66, s2, 3")
        a("s_add_u32 s66, s66, s3")
        a("s_lshl_b32 s66, s66, 7")
        a("s_add_u32 s66, s66, 0x%x" % WS_TS)
        a("v_mov_b32 v250, 0")
        for i in range(10):
            a("v_mov_b32 v252, s%d" % (S_TS + 2 * i))
            a("v_mov_b32 v253, s%d" % (S_TS + 2 * i + 1))
            a("buffer_store_dwordx2 v[252:253], v250, s[20:23], s66 offen offset:%d" % (8 * i))
            a("s_nop 1")
        a("s_waitcnt vmcnt(0)")

    def prologue(self):
        a = self.a
        a("s_cmp_ge_u32 s2, 256")
        a("s_cbranch_scc1 %s_end" % self.name)
        a("s_load_dwordx16 s[32:47], s[0:1], 0")
        a("s_load_dwordx16 s[48:63], s[0:1], 64")
        a("s_load_dwordx2 s[64:65], s[0:1], 128")
        a("v_lshrrev_b32 v1, 6, v0")
        a("v_and_b32 v0, 63, v0")
        a("v_readfirstlane_b32 s3, v1")
        a("s_and_b32 s66, s2, 7")
        a("s_lshr_b32 s67, s2, 3")
        a("s_and_b32 s68, s67, 7")
        a("s_lshr_b32 s69, s67, 3")
        a("s_and_b32 s70, s66, 1")
        a("s_lshl_b32 s70, s70, 3")
        a("s_or_b32 s4, s70, s68")
        a("s_lshr_b32 s70, s66, 1")
        a("s_lshl_b32 s70, s70, 2")
        a("s_or_b32 s5, s70, s69")
        a("s_and_b32 s70, s66, 3")
        a("s_lshl_b32 s70, s70, 3")
        a("s_or_b32 s6, s70, s68")
        a("s_lshr_b32 s70, s66, 2")
        a("s_lshl_b32 s70, s70, 2")
        a("s_or_b32 s7, s70, s69")
        if self.stamps:
            for i in range(10):
                a("s_mov_b64 s[%d:%d], 0" % (S_TS + 2 * i, S_TS + 2 * i + 1))
        a("s_waitcnt lgkmcnt(0)")
        def srd(base, ptr, size):
            a("s_mov_b32 s%d, s%d" % (base, ptr))
            a("s_and_b32 s%d, s%d, 0xffff" % (base + 1, ptr + 1))
            a("s_mov_b32 s%d, 0x%x" % (base + 2, size))
            a("s_mov_b32 s%d, 0x20000" % (base + 3))
        srd(SRD_X, P_U, 2048 * 640 * 2)
        srd(SRD_WG, P_WG, 640 * 1536 * 2)
        srd(SRD_WU, P_WU, 640 * 1536 * 2)
        srd(SRD_WS, P_WS, 0x10000000)
        srd(SRD_OUT, P_OUT, 2048 * 640 * 2)
        srd(SRD_WD, P_WD, 640 * 1536 * 2)
        self.stamp(0)
        if "dbgtime" in self.ph:
            a("s_memrealtime s[96:97]")
            a("s_memtime s[98:99]")
            a("s_mov_b64 s[100:101], s[62:63]")
            a("s_waitcnt lgkmcnt(0)")

    def dbgtime_end(self):
        a = self.a
        if "dbgtime" not in self.ph: return
        l = self.newlab("dbt")
        a("s_cmp_lg_u32 s2, 0"); a("s_cbranch_scc1 %s" % l)
        a("s_cmp_lg_u32 s3, 0"); a("s_cbranch_scc1 %s" % l)
        a("s_waitcnt vmcnt(0)")
        a("s_memrealtime s[92:93]")
        a("s_memtime s[94:95]")
        a("s_waitcnt lgkmcnt(0)")
        a("s_sub_u32 s92, s92, s96")
        a("s_sub_u32 s94, s94, s98")
        a("v_mov_b32 v250, 0")
        a("v_mov_b32 v252, s92")
        a("v_mov_b32 v253, s94")
        a("v_mov_b32 v254, s96")
        a("v_mov_b32 v255, 0x1234")
        a("global_store_dwordx4 v250, v[252:255], s[100:101]")
        a("s_waitcnt vmcnt(0)")
        a.lab(l)

    def g_gemm1(self):
        a = self.a
        ACC = 0; FP = 96; FQ = 136
        VXB = 176
        VWA = 182
        VL16 = 196
        T = 200
        accg = lambda ft, tt: ACC + (ft * 4 + tt) * 4
        accu = lambda ft, tt: ACC + 48 + (ft * 4 + tt) * 4
        LANE = 197
        a("v_mov_b32 v%d, v0" % LANE)
        a("s_and_b32 s67, s3, 1")
        a("s_lshr_b32 s68, s3, 1")
        VOX = 191
        a("v_lshrrev_b32 v%d, 3, v%d" % (T, LANE))
        a("s_lshl_b32 s69, s4, 7")
        a("s_lshl_b32 s70, s3, 5")
        a("s_add_u32 s69, s69, s70")
        a("v_add_u32 v%d, s69, v%d" % (T, T))
        a("s_movk_i32 s70, 1280")
        a("v_mul_lo_u32 v%d, v%d, s70" % (T, T))
        a("v_and_b32 v%d, 7, v%d" % (T + 1, LANE))
        a("v_lshrrev_b32 v%d, 4, v%d" % (T + 2, LANE))
        a("v_xor_b32 v%d, v%d, v%d" % (T + 3, T + 1, T + 2))
        a("v_xor_b32 v%d, 4, v%d" % (T + 4, T + 3))
        a("v_lshl_add_u32 v%d, v%d, 4, v%d" % (VOX, T + 3, T))
        a("v_lshl_add_u32 v%d, v%d, 4, v%d" % (VOX + 1, T + 4, T))
        a("s_lshl_b32 s75, s3, 12")
        def xdma(st):
            base = (st % 3) * STAGE
            L = []
            for i in range(4):
                if i == 0:
                    L.append(("s_add_u32 m0, s75, %d" % base, "s_mov_b32 s70, %d" % (128 * st),
                              "buffer_load_dwordx4 v%d, s[8:11], s70 offen lds" % VOX))
                else:
                    L.append(("s_mov_b32 s70, %d" % (128 * st + 9216 * i),
                              "buffer_load_dwordx4 v%d, s[8:11], s70 offen offset:%d lds" % (VOX + (i & 1), 1024 * i)))
            return L
        a.ext(flat(xdma(0)))
        a.ext(flat(xdma(1)))
        a("v_and_b32 v%d, 15, v%d" % (T, LANE))
        a("v_lshrrev_b32 v%d, 4, v%d" % (T + 1, LANE))
        a("s_lshl_b32 s69, s67, 6")
        a("v_add_u32 v%d, s69, v%d" % (T + 2, T))
        a("v_lshlrev_b32 v%d, 7, v%d" % (T + 2, T + 2))
        a("v_lshrrev_b32 v%d, 1, v%d" % (T + 3, T))
        a("v_and_b32 v%d, 7, v%d" % (T + 3, T + 3))
        a("v_xor_b32 v%d, v%d, v%d" % (T + 3, T + 3, T + 1))
        a("v_xor_b32 v%d, 4, v%d" % (T + 4, T + 3))
        a("v_lshl_add_u32 v%d, v%d, 4, v%d" % (VXB, T + 3, T + 2))
        a("v_lshl_add_u32 v%d, v%d, 4, v%d" % (VXB + 1, T + 4, T + 2))
        for st in (1, 2):
            for s in range(2):
                a("v_add_u32 v%d, %d, v%d" % (VXB + 2 * st + s, st * STAGE, VXB + s))
        a("v_lshrrev_b32 v%d, 2, v%d" % (T + 2, T))
        a("v_lshl_add_u32 v%d, v%d, 3, v%d" % (T + 2, T + 1, T + 2))
        a("v_mul_u32_u24 v%d, 192, v%d" % (T + 2, T + 2))
        a("v_and_b32 v%d, 3, v%d" % (T + 3, LANE))
        a("v_lshl_add_u32 v%d, v%d, 3, v%d" % (T + 2, T + 3, T + 2))
        a("v_add_u32 v%d, %d, v%d" % (T + 2, ST_WG, T + 2))
        a("v_and_b32 v%d, 1, v%d" % (T + 3, T + 1))
        a("s_lshl_b32 s69, s68, 2")
        a("s_add_u32 s78, s69, 1")
        a("s_add_u32 s79, s68, 2")
        for ft, sreg in ((0, 69), (1, 78), (2, 79)):
            a("v_xor_b32 v%d, s%d, v%d" % (T + 4, sreg, T + 3))
            a("v_lshl_add_u32 v%d, v%d, 5, v%d" % (VWA + ft, T + 4, T + 2))
        for st in (1, 2):
            for ft in range(3):
                a("v_add_u32 v%d, %d, v%d" % (VWA + 3 * st + ft, st * STAGE, VWA + ft))
        a("v_lshlrev_b32 v%d, 4, v%d" % (VL16, LANE))
        a("s_lshl_b32 s69, s4, 1")
        a("s_add_u32 s69, s69, s67")
        a("s_mul_i32 s69, s69, 48")
        a("s_mul_i32 s78, s5, 3")
        a("s_add_u32 s69, s69, s78")
        a("s_lshl_b32 s78, s68, 1")
        a("s_add_u32 s78, s78, s69")
        a("s_lshl_b32 s78, s78, 12")
        a("s_add_u32 s79, s69, 1")
        a("s_lshl_b32 s79, s79, 12")
        a("s_lshl_b32 s69, s68, 3")
        a("s_add_u32 s79, s79, s69")
        if WS_H:
            a("s_add_u32 s78, s78, %d" % WS_H); a("s_add_u32 s79, s79, %d" % WS_H)

        def reads(kk, s, F):
            st = kk % 3
            xs = ["ds_read_b128 v[%d:%d], v%d offset:%d" % (F + 4 * tt, F + 4 * tt + 3, VXB + 2 * st + s, 2048 * tt) for tt in range(4)]
            ws = []
            for mat in range(2):
                for ft in range(3):
                    r = F + 16 + (mat * 3 + ft) * 4
                    for h in range(2):
                        ws.append("ds_read_b64_tr_b16 v[%d:%d], v%d offset:%d" % (r + 2 * h, r + 2 * h + 1, VWA + 3 * st + ft, 12288 * mat + 6144 * s + 768 * h))
            order = [xs[0], ws[0], ws[1], xs[1], ws[6], ws[7], xs[2], xs[3]] + ws[2:6] + ws[8:]
            return order
        def mfmas(F, first):
            L = []
            for ft in range(3):
                for mat in range(2):
                    for tt in range(4):
                        acc = accg(ft, tt) if mat == 0 else accu(ft, tt)
                        A = F + 16 + (mat * 3 + ft) * 4
                        B = F + 4 * tt
                        c = "0" if first else "v[%d:%d]" % (acc, acc + 3)
                        L.append("v_mfma_f32_16x16x32_bf16 v[%d:%d], v[%d:%d], v[%d:%d], %s" % (acc, acc + 3, A, A + 3, B, B + 3, c))
            return L
        def spread(mm, d, first, step):
            out = []; cnt = 0; di = 0
            for x in mm:
                out.append(x)
                if x.startswith("v_mfma"):
                    cnt += 1
                    if cnt >= first and (cnt - first) % step == 0 and di < len(d):
                        f = d[di]; di += 1
                        out.extend(f if isinstance(f, tuple) else (f,))
            assert di == len(d), (di, len(d))
            return out
        self.stamp(5)
        a("s_waitcnt vmcnt(4)")
        a("s_barrier")
        self.stamp(1)
        a.ext(reads(0, 0, FP))
        a("s_waitcnt lgkmcnt(0)")
        pend = xdma(2)
        for kk in range(10):
            mm = interleave(mfmas(FP, kk == 0), reads(kk, 1, FQ), span=16)
            if pend: mm = spread(mm, pend, 3, 5 if len(pend) > 2 else 10)
            a.ext(mm)
            if kk <= 7: a("s_waitcnt vmcnt(4) lgkmcnt(0)")
            elif kk == 8: a("s_waitcnt vmcnt(0) lgkmcnt(0)")
            else: a("s_waitcnt lgkmcnt(0)")
            a("s_barrier")
            fill = reads(kk + 1, 0, FP) if kk + 1 < 10 else []
            mm = interleave(mfmas(FQ, False), fill, span=16)
            d = xdma(kk + 3) if kk + 3 < 10 else []
            pend = d[2:]
            if d: mm = spread(mm, d[:2], 6, 10)
            a.ext(mm)
            if kk + 1 < 10:
                a("s_waitcnt lgkmcnt(0)")
        self.stamp(2)
        CN = FP; ONE = FP + 2
        a("v_mov_b32 v%d, 0xbfb8aa3b" % CN)
        a("v_mov_b32 v%d, 0xbfb8aa3b" % (CN + 1))
        a("v_mov_b32 v%d, 1.0" % ONE)
        a("v_mov_b32 v%d, 1.0" % (ONE + 1))
        grp = 0
        def silu(gregs, uregs, tmp, out):
            n = len(gregs)
            L = []
            for i in range(n): L.append("v_pk_mul_f32 v[%d:%d], v[%d:%d], v[%d:%d]" % (tmp + 2 * i, tmp + 2 * i + 1, gregs[i], gregs[i] + 1, CN, CN + 1))
            for i in range(2 * n): L.append("v_exp_f32 v%d, v%d" % (tmp + i, tmp + i))
            for i in range(n): L.append("v_pk_mul_f32 v[%d:%d], v[%d:%d], v[%d:%d]" % (gregs[i], gregs[i] + 1, gregs[i], gregs[i] + 1, uregs[i], uregs[i] + 1))
            for i in range(n): L.append("v_pk_add_f32 v[%d:%d], v[%d:%d], v[%d:%d]" % (tmp + 2 * i, tmp + 2 * i + 1, tmp + 2 * i, tmp + 2 * i + 1, ONE, ONE + 1))
            for i in range(2 * n): L.append("v_rcp_f32 v%d, v%d" % (tmp + i, tmp + i))
            if n < 2: L.append("s_nop 0")
            for i in range(n): L.append("v_pk_mul_f32 v[%d:%d], v[%d:%d], v[%d:%d]" % (gregs[i], gregs[i] + 1, gregs[i], gregs[i] + 1, tmp + 2 * i, tmp + 2 * i + 1))
            for i in range(n): L.append("v_cvt_pk_bf16_f32 v%d, v%d, v%d" % (out + i, gregs[i], gregs[i] + 1))
            return L
        for tt in range(4):
            tmp = FQ + (grp % 2) * 16; out = FP + 8 + (grp % 4) * 4; grp += 1
            g = [accg(0, tt), accg(0, tt) + 2, accg(1, tt), accg(1, tt) + 2]
            u = [accu(0, tt), accu(0, tt) + 2, accu(1, tt), accu(1, tt) + 2]
            a.ext(silu(g, u, tmp, out))
            a("buffer_store_dwordx4 v[%d:%d], v%d, s[20:23], s78 offen offset:%d sc1" % (out, out + 3, VL16, 1024 * tt))
            tmp = FQ + (grp % 2) * 16; out = FP + 8 + (grp % 4) * 4; grp += 1
            g = [accg(2, tt), accg(2, tt) + 2]
            u = [accu(2, tt), accu(2, tt) + 2]
            a.ext(silu(g, u, tmp, out))
            a("buffer_store_dwordx2 v[%d:%d], v%d, s[20:23], s79 offen offset:%d sc1" % (out, out + 1, VL16, 1024 * tt))
        self.stamp(3)
        a("s_waitcnt vmcnt(0)")
        if self.fused():
            l = self.newlab("fh")
            self.nonce_read(T)
            a("v_mov_b32 v%d, %d" % (T, LDS_CNT))
            a("v_mov_b32 v%d, 1" % (T + 1))
            a("s_mov_b64 exec, 1")
            a("ds_add_rtn_u32 v%d, v%d, v%d" % (T + 2, T, T + 1))
            a("s_waitcnt lgkmcnt(0)")
            a("s_mov_b64 exec, -1")
            a("v_readfirstlane_b32 s69, v%d" % (T + 2))
            a("s_cmp_lg_u32 s69, 3")
            a("s_cbranch_scc1 %s" % l)
            a("s_lshl_b32 s69, s4, 5")
            a("s_add_u32 s69, s69, s5")
            a("s_lshl_b32 s69, s69, 2")
            a("s_add_u32 s69, s69, %d" % WS_FH)
            self.flag_set("s69", T)
            a.lab(l)
        self.stamp(4)

    def s_wloader(self, sigma):
        a = self.a
        T = 1; VO = 10
        a("s_mul_i32 s69, s5, 192")
        a("s_mov_b32 s78, 43691")
        a("s_movk_i32 s79, 3072")
        for i in range(3):
            a("v_add_u32 v%d, %d, v0" % (T, 64 * i))
            a("v_mul_lo_u32 v%d, v%d, s78" % (T + 1, T))
            a("v_lshrrev_b32 v%d, 19, v%d" % (T + 1, T + 1))
            a("v_mul_u32_u24 v%d, 12, v%d" % (T + 2, T + 1))
            a("v_sub_u32 v%d, v%d, v%d" % (T + 2, T, T + 2))
            a("v_lshrrev_b32 v%d, 2, v%d" % (T + 3, T + 1))
            a("v_and_b32 v%d, 2, v%d" % (T + 3, T + 3))
            a("v_xor_b32 v%d, v%d, v%d" % (T + 2, T + 2, T + 3))
            a("v_mul_lo_u32 v%d, v%d, s79" % (T + 1, T + 1))
            a("v_lshl_add_u32 v%d, v%d, 4, v%d" % (T + 1, T + 2, T + 1))
            a("v_add_u32 v%d, s69, v%d" % (VO + i, T + 1))
        def dma(st):
            base = (st % 3) * STAGE
            for P in range(8 * sigma, 8 * sigma + 8):
                mat, I = divmod(P, 12)
                srd = "s[12:15]" if mat == 0 else "s[16:19]"
                a("s_mov_b32 m0, %d" % (base + (ST_WG if mat == 0 else ST_WU) + 1024 * I))
                a("s_mov_b32 s70, %d" % (196608 * st + 49152 * (I // 3)))
                a("buffer_load_dwordx4 v%d, %s, s70 offen lds" % (VO + I % 3, srd))
        self.loader_loop(dma, 8)

    def loader_loop(self, dma, n):
        a = self.a
        dma(0)
        dma(1)
        np_ = 0
        if "ssm" in self.ph:
            a("s_lshl_b32 s50, s66, 8")
            a("s_add_u32 s50, s50, s2")
            a("s_min_u32 s50, s50, 639")
            self.ssm_param_loads()
            np_ = 20
        self.stamp(5)
        a("s_waitcnt vmcnt(%d)" % (n + np_))
        a("s_barrier")
        self.stamp(1)
        dma(2)
        for kk in range(10):
            if kk == 0: a("s_waitcnt vmcnt(%d)" % (n + np_))
            elif kk <= 7: a("s_waitcnt vmcnt(%d)" % n)
            elif kk == 8: a("s_waitcnt vmcnt(0)")
            a("s_barrier")
            if kk + 3 < 10: dma(kk + 3)
        self.stamp(2)

    def side_setup(self):
        a = self.a
        a("s_mov_b32 s67, 52429")
        a("s_movk_i32 s68, 1280")
        for i in range(5):
            a("v_add_u32 v1, %d, v0" % (64 * i))
            a("v_mul_lo_u32 v2, v1, s67")
            a("v_lshrrev_b32 v2, 19, v2")
            a("v_mul_u32_u24 v3, 10, v2")
            a("v_sub_u32 v3, v1, v3")
            a("v_mul_lo_u32 v2, v2, s68")
            a("v_lshl_add_u32 v%d, v3, 4, v2" % (50 + i))
        a("v_lshrrev_b32 v1, 4, v0")
        a("v_and_b32 v2, 15, v0")
        a("v_lshrrev_b32 v3, 2, v2")
        a("v_lshl_add_u32 v4, v1, 2, v3")
        a("v_mul_u32_u24 v4, 160, v4")
        a("v_add_u32 v4, %d, v4" % LDS_TAB)
        a("v_and_b32 v5, 3, v0")
        a("v_lshl_add_u32 v55, v5, 4, v4")
        a("v_lshl_add_u32 v56, v5, 3, v4")
        a("v_lshlrev_b32 v57, 4, v0")
        a("v_lshlrev_b32 v58, 2, v0")
        a("v_lshl_add_u32 v4, v1, 3, v3")
        a("v_lshlrev_b32 v4, 7, v4")
        a("v_bfe_u32 v5, v0, 1, 1")
        a("v_lshrrev_b32 v6, 1, v3")
        a("v_xor_b32 v5, v5, v6")
        a("v_lshl_add_u32 v4, v5, 4, v4")
        a("v_and_b32 v5, 1, v0")
        a("v_lshl_add_u32 v4, v5, 3, v4")
        a("v_and_b32 v5, 1, v1")
        a("v_lshl_add_u32 v59, v5, 6, v4")
        a("v_xor_b32 v5, 1, v5")
        a("v_lshl_add_u32 v60, v5, 6, v4")
        a("v_lshlrev_b32 v61, 12, v2")
        a("v_lshl_add_u32 v61, v1, 4, v61")
        a("s_add_u32 s51, s2, 128")
        a("s_cmp_ge_u32 s2, 128")
        a("s_cselect_b32 s51, s51, 999")
        a("s_lshr_b32 s52, s5, 1")
        a("s_add_u32 s53, s52, 8")
        a("s_cmp_lt_u32 s5, 4")
        a("s_cselect_b32 s53, s53, 99")
    def wd_load(self, ureg, scr):
        a = self.a
        a("s_lshr_b32 s67, %s, 3" % ureg)
        a("s_and_b32 s68, %s, 7" % ureg)
        a("s_mul_i32 s69, s67, %d" % (32 * 1280))
        a("s_mul_i32 s67, s68, 160")
        a("s_add_u32 s69, s69, s67")
        for i in range(5):
            a("s_mov_b32 m0, %d" % (LDS_TAB + scr + 1024 * i))
            a("s_nop 0")
            a("buffer_load_dwordx4 v%d, s[28:31], s69 offen lds" % (50 + i))
    def wd_store(self, ureg, scr):
        a = self.a
        for dt in range(5):
            for h in range(2):
                if dt < 4: ad, off = 55, 64 * (dt >> 1) + 8 * (dt & 1) + 2560 * h
                else: ad, off = 56, 128 + 2560 * h
                a("ds_read_b64_tr_b16 v[%d:%d], v%d offset:%d" % (8 + 4 * dt + 2 * h, 9 + 4 * dt + 2 * h, ad, off + scr))
        a("s_lshr_b32 s67, %s, 3" % ureg)
        a("s_and_b32 s68, %s, 7" % ureg)
        a("s_mul_i32 s68, s68, 48")
        a("s_add_u32 s67, s67, s68")
        a("s_mul_i32 s67, s67, 5120")
        a("s_add_u32 s67, s67, %d" % WS_WD)
        a("s_add_u32 s68, s67, 4096")
        a("s_waitcnt lgkmcnt(0)")
        for dt in range(5):
            if dt < 4: a("buffer_store_dwordx4 v[%d:%d], v57, s[20:23], s67 offen offset:%d sc1" % (8 + 4 * dt, 11 + 4 * dt, 1024 * dt))
            else: a("buffer_store_dwordx4 v[%d:%d], v57, s[20:23], s68 offen sc1" % (8 + 4 * dt, 11 + 4 * dt))
    def gate_load(self):
        a = self.a
        a("v_and_b32 v1, 15, v0")
        a("v_lshlrev_b32 v1, 4, v1")
        for j in range(5):
            a("global_load_dwordx4 v[%d:%d], v1, s[%d:%d] offset:%d" % (8 + 4 * j, 11 + 4 * j, P_GW, P_GW + 1, 256 * j))
        a("v_lshrrev_b32 v2, 4, v0")
        a("s_movk_i32 s67, 1280")
        a("v_mul_lo_u32 v2, v2, s67")
        a("v_add_u32 v2, v2, v1")
        a("s_lshl_b32 s67, s2, 3")
        a("s_mul_i32 s67, s67, 1280")
        for half in range(2):
            for j in range(5):
                r = 28 + 20 * half + 4 * j
                a("buffer_load_dwordx4 v[%d:%d], v2, s[8:11], s67 offen offset:%d" % (r, r + 3, 256 * j))
            if half == 0: a("s_add_u32 s67, s67, %d" % (4 * 1280))
    def gate_compute(self):
        a = self.a
        R = 68
        for i in range(4): a("v_mov_b32 v%d, 0" % (R + i))
        for j in range(5):
            for e in range(4):
                for half in range(2):
                    acc = R + half + 2 * (e & 1)
                    a("v_dot2_f32_bf16 v%d, v%d, v%d, v%d" % (acc, 28 + 20 * half + 4 * j + e, 8 + 4 * j + e, acc))
        a("s_nop 2")
        a("v_add_f32 v%d, v%d, v%d" % (R, R, R + 2))
        a("v_add_f32 v%d, v%d, v%d" % (R + 1, R + 1, R + 3))
        a("s_nop 0")
        for ctl in ("row_shr:1", "row_shr:2", "row_shr:4", "row_shr:8"):
            for i in range(2):
                a("v_add_f32_dpp v%d, v%d, v%d %s row_mask:0xf bank_mask:0xf bound_ctrl:1" % (R + i, R + i, R + i, ctl))
            a("s_nop 0")
        for i in range(2): a("v_mul_f32 v%d, 0xbfb8aa3b, v%d" % (R + i, R + i))
        for i in range(2): a("v_exp_f32 v%d, v%d" % (R + i, R + i))
        a("s_nop 0")
        for i in range(2): a("v_add_f32 v%d, 1.0, v%d" % (R + i, R + i))
        for i in range(2): a("v_rcp_f32 v%d, v%d" % (R + i, R + i))
        a("s_lshl_b32 s67, s2, 5")
        a("s_add_u32 s67, s67, %d" % WS_G)
        a("v_lshrrev_b32 v1, 4, v0")
        a("v_lshlrev_b32 v1, 2, v1")
        a("s_mov_b32 exec_lo, 0x80008000")
        a("s_mov_b32 exec_hi, 0x80008000")
        a("buffer_store_dword v%d, v1, s[20:23], s67 offen sc1" % R)
        a("buffer_store_dword v%d, v1, s[20:23], s67 offen offset:16 sc1" % (R + 1))
        a("s_mov_b64 exec, -1")
    def ut_read(self, chunk_reg, stage_base, H):
        a = self.a
        a("s_and_b32 s67, %s, 1" % chunk_reg)
        a("s_cmp_eq_u32 s67, 0")
        a("s_cselect_b64 vcc, -1, 0")
        a("s_nop 0")
        a("v_cndmask_b32 v4, v60, v59, vcc")
        a("v_add_u32 v4, %d, v4" % stage_base)
        for aa in range(2):
            for it in range(4):
                for hh in range(2):
                    r = H + (aa * 4 + it) * 4 + 2 * hh
                    a("ds_read_b64_tr_b16 v[%d:%d], v4 offset:%d" % (r, r + 1, 4096 * it + 512 * hh + 32 * (aa ^ hh)))
        a("s_waitcnt lgkmcnt(0)")
    def ut_store(self, chunk_reg, H):
        a = self.a
        a("s_lshl_b32 s67, %s, 17" % chunk_reg)
        a("s_lshl_b32 s68, s4, 8")
        a("s_add_u32 s67, s67, s68")
        a("s_add_u32 s67, s67, %d" % WS_UT)
        a("s_add_u32 s68, s67, 65536")
        for aa in range(2):
            for it in range(4):
                r = H + (aa * 4 + it) * 4
                a("buffer_store_dwordx4 v[%d:%d], v61, s[20:23], s%d offen offset:%d sc1" % (r, r + 3, 67 + aa, 64 * it))

    def pretouch(self):
        a = self.a
        a("v_and_b32 v1, 7, v0")
        a("v_lshlrev_b32 v1, 21, v1")
        a("buffer_load_dword v63, v1, s[20:23], 0 offen")
        a("v_and_b32 v1, 1, v0")
        a("v_lshlrev_b32 v1, 21, v1")
        a("buffer_load_dword v63, v1, s[24:27], 0 offen")
    def s_side(self):
        a = self.a
        if "noside" in self.ph:
            for b in range(11): a("s_barrier")
            return
        HA, HB = 100, 132
        def cond_b(fn):
            l = self.newlab("wb")
            a("s_cmp_ge_u32 s51, 384")
            a("s_cbranch_scc1 %s" % l)
            fn()
            a.lab(l)
        if self.fused() and "notouch" not in self.ph: self.pretouch()
        self.side_setup()
        self.wd_load("s2", 0)
        cond_b(lambda: self.wd_load("s51", 5120))
        a("s_add_u32 s50, s5, 16")
        if self.fused():
            a("v_mov_b32 v1, %d" % LDS_CNT)
            a("v_mov_b32 v2, 0")
            a("v_mov_b32 v3, 0")
            a("ds_write_b64 v1, v[2:3]")
            self.nonce_create_load()
        self.stamp(5)
        a("s_barrier")
        self.stamp(1)
        def ut_maybe(kk):
            l = self.newlab("ut")
            if kk <= 7:
                a("s_cmp_lg_u32 s52, %d" % kk)
                a("s_cbranch_scc1 %s" % l)
                self.ut_read("s5", (kk % 3) * STAGE, HA)
            else:
                a("s_cmp_lg_u32 s53, %d" % kk)
                a("s_cbranch_scc1 %s" % l)
                self.ut_read("s50", (kk % 3) * STAGE, HB)
            a.lab(l)
        ut_maybe(0)
        for kk in range(10):
            a("s_barrier")
            if kk + 1 < 10: ut_maybe(kk + 1)
            if kk == 0 and self.fused():
                l = self.newlab("n0")
                a("s_cmp_lg_u32 s2, 0")
                a("s_cbranch_scc1 %s" % l)
                a("s_waitcnt vmcnt(0)")
                self.nonce_create_store()
                a.lab(l)
            if kk == 1:
                a("s_waitcnt vmcnt(0)")
                self.wd_store("s2", 0)
            if kk == 3:
                cond_b(lambda: self.wd_store("s51", 5120))
            if kk == 5 and self.fused():
                self.nonce_poll()
                def wflag(ureg):
                    a("s_and_b32 s68, %s, 7" % ureg)
                    a("s_lshl_b32 s68, s68, 8")
                    a("s_lshr_b32 s69, %s, 3" % ureg)
                    a("s_lshl_b32 s69, s69, 2")
                    a("s_add_u32 s69, s69, s68")
                    a("s_add_u32 s69, s69, %d" % WS_FW)
                    self.flag_set("s69", 2)
                wflag("s2")
                cond_b(lambda: wflag("s51"))
            if kk == 8 and self.fused():
                a("s_lshl_b32 s78, s7, 8")
                a("s_add_u32 s78, s78, %d" % WS_FW)
                self.poll_line("s78", 48, 2)
        self.stamp(2)
        self.ut_store("s5", HA)
        l = self.newlab("utb")
        a("s_cmp_ge_u32 s5, 4")
        a("s_cbranch_scc1 %s" % l)
        self.ut_store("s50", HB)
        a.lab(l)
        self.gate_load()
        a("s_waitcnt vmcnt(15)")
        self.stamp(3)
        if self.fused():
            a("s_lshl_b32 s69, s5, 5")
            a("s_add_u32 s69, s69, s4")
            a("s_lshl_b32 s69, s69, 2")
            a("s_add_u32 s69, s69, %d" % WS_FU)
            self.flag_set("s69", 2)
            a("s_waitcnt vmcnt(1)")
        else:
            a("s_waitcnt vmcnt(0)")
        self.gate_compute()
        a("s_waitcnt vmcnt(0)")
        if self.fused():
            a("s_lshl_b32 s69, s2, 2")
            a("s_add_u32 s69, s69, %d" % WS_FG)
            self.flag_set("s69", 2)
        self.stamp(4)

    def s_phase1(self):
        a = self.a
        n = self.name
        a("s_sub_u32 s66, s3, 4")
        a("s_cmp_eq_u32 s66, 0")
        a("s_cbranch_scc1 %s_l0" % n)
        a("s_cmp_eq_u32 s66, 1")
        a("s_cbranch_scc1 %s_l1" % n)
        a("s_cmp_eq_u32 s66, 3")
        a("s_cbranch_scc1 %s_sj" % n)
        self.s_wloader(2)
        a("s_branch %s_p1done" % n)
        a.lab("%s_l0" % n)
        self.s_wloader(0)
        a("s_branch %s_p1done" % n)
        a.lab("%s_l1" % n)
        self.s_wloader(1)
        a("s_branch %s_p1done" % n)
        a.lab("%s_sj" % n)
        self.s_side()
        a.lab("%s_p1done" % n)

    def ssm_param_loads(self):
        a = self.a
        a("s_mul_i32 s67, s50, 384")
        a("v_lshl_add_u32 v1, v0, 1, s67")
        for k, p in enumerate((P_ARE, P_AIM, P_BRE, P_BIM, P_CRE, P_CIM)):
            for sl in range(3):
                a("global_load_ushort v%d, v1, s[%d:%d] offset:%d" % (200 + 6 * sl + k, p, p + 1, 128 * sl))
        a("s_lshl_b32 s67, s50, 1")
        a("v_mov_b32 v2, s67")
        a("global_load_ushort v218, v2, s[%d:%d]" % (P_LDT, P_LDT + 1))
        a("global_load_ushort v219, v2, s[%d:%d]" % (P_DSK, P_DSK + 1))

    def kgen(self):
        a = self.a
        a("s_mul_i32 s51, s66, %d" % TAB_SZ)
        a("s_add_u32 s51, s51, %d" % LDS_TAB)
        a("s_mul_i32 s52, s66, %d" % KR_SZ)
        a("s_add_u32 s52, s52, %d" % LDS_KR)
        a("v_and_b32 v4, 15, v0")
        a("v_lshrrev_b32 v5, 4, v0")
        a("v_mul_u32_u24 v2, %d, v4" % TABROW)
        a("v_lshl_add_u32 v2, v5, 6, v2")
        a("v_add_u32 v2, s51, v2")
        a("v_and_b32 v6, 1, v5")
        a("v_lshl_add_u32 v3, v6, 3, v2")
        a("v_xor_b32 v6, 1, v6")
        a("v_lshl_add_u32 v2, v6, 3, v2")
        a("s_mov_b32 m0, s51")
        a("s_waitcnt vmcnt(0)")
        self.stamp(1)
        a("v_lshlrev_b32 v218, 16, v218")
        a("v_lshlrev_b32 v219, 16, v219")
        a("v_mul_f32 v6, 0x3fb8aa3b, v218")
        a("s_mov_b32 s67, 0x3fb8aa3b")
        a("v_fma_f32 v7, v218, s67, -v6")
        a("v_fmac_f32 v7, 0x32a57060, v218")
        a("v_exp_f32 v6, v6")
        a("v_mul_f32 v7, 0x3f317218, v7")
        a("v_fma_f32 v6, v6, v7, v6")
        a("v_cvt_pk_bf16_f32 v6, v6, v6")
        a("v_lshlrev_b32 v218, 16, v6")
        W1, W16, W256, W512, W768, W1024 = 10, 12, 14, 16, 18, 20
        WX = 22
        CB = 24
        Y = 26; P = 28; TMP1 = 30; TMP2 = 32; TMP3 = 34
        PK = 36
        V = 50
        CV = 66
        YF = 76
        AF = 92
        ACC = 108
        def cmul(out, x, w, t):
            return ["v_pk_mul_f32 v[%d:%d], v[%d:%d], v[%d:%d] op_sel:[0,0] op_sel_hi:[0,1]" % (t, t + 1, x, x + 1, w, w + 1),
                    "v_pk_fma_f32 v[%d:%d], v[%d:%d], v[%d:%d], v[%d:%d] op_sel:[1,1,0] op_sel_hi:[1,0,1] neg_lo:[1,0,0]" % (out, out + 1, x, x + 1, w, w + 1, t, t + 1)]
        def zipl(*ls):
            o = []
            for i in range(max(len(l) for l in ls)):
                for l in ls:
                    if i < len(l): o.append(l[i])
            return o
        cvn = [0, 0]
        def wr(val, tile, row, neg, bank=0):
            c = CV + 4 * bank + (cvn[bank] % 4); cvn[bank] += 1
            return ["v_cvt_pk_bf16_f32 v%d, v%d, %sv%d" % (c, val, "-" if neg else "", val + 1),
                    "ds_write_addtid_b32 v%d offset:%d" % (c, tile * TABTILE + row * TABROW)]
        def frag_reads(dst, tile):
            L = []
            for kk in range(4):
                L.append("ds_read_b64 v[%d:%d], v3 offset:%d" % (dst + 4 * kk, dst + 4 * kk + 1, tile * TABTILE + 16 * kk))
                L.append("ds_read_b64 v[%d:%d], v2 offset:%d" % (dst + 4 * kk + 2, dst + 4 * kk + 3, tile * TABTILE + 16 * kk))
            return L
        def mm(t, first):
            L = []
            for kk in range(4):
                c = "0" if (first and kk == 0) else "v[%d:%d]" % (ACC + 4 * t, ACC + 4 * t + 3)
                L.append("v_mfma_f32_16x16x32_bf16 v[%d:%d], v[%d:%d], v[%d:%d], %s" % (ACC + 4 * t, ACC + 4 * t + 3, AF + 4 * kk, AF + 4 * kk + 3, YF + 4 * kk, YF + 4 * kk + 3, c))
            return L
        for sl in range(3):
            pr = 200 + 6 * sl
            for k in range(6): a("v_lshlrev_b32 v%d, 16, v%d" % (pr + k, pr + k))
            a("v_mul_f32 v6, v218, v%d" % pr)
            a("v_mul_f32 v7, v218, v%d" % (pr + 1))
            a("v_mul_f32 v6, 0x3fb8aa3b, v6")
            a("v_mul_f32 v7, 0.15915494, v7")
            a("v_mul_f32 v8, v218, v%d" % (pr + 2))
            a("v_mul_f32 v9, v218, v%d" % (pr + 3))
            a.ext(cmul(CB, pr + 4, 8, TMP1))
            for w, k in ((W1, 1.0), (W16, 16.0), (W256, 256.0)):
                if k == 1.0:
                    a("v_exp_f32 v%d, v6" % TMP2)
                    a("v_fract_f32 v%d, v7" % TMP3)
                else:
                    lit = "0x41800000" if k == 16.0 else "0x43800000"
                    a("v_mul_f32 v%d, %s, v6" % (TMP2, lit))
                    a("v_mul_f32 v%d, %s, v7" % (TMP3, lit))
                    a("v_exp_f32 v%d, v%d" % (TMP2, TMP2))
                    a("v_fract_f32 v%d, v%d" % (TMP3, TMP3))
                a("v_cos_f32 v%d, v%d" % (w, TMP3))
                a("v_sin_f32 v%d, v%d" % (w + 1, TMP3))
                a("s_nop 0")
                a("v_mul_f32 v%d, v%d, v%d" % (w, w, TMP2))
                a("v_mul_f32 v%d, v%d, v%d" % (w + 1, w + 1, TMP2))
            if sl > 0:
                a("s_waitcnt lgkmcnt(0)")
            LY = ["v_mov_b32 v%d, v%d" % (Y, CB), "v_mov_b32 v%d, v%d" % (Y + 1, CB + 1)] + wr(Y, 0, 0, False)
            for j in range(1, 16):
                LY += cmul(Y, Y, W16, TMP1) + wr(Y, 0, j, False)
            LA = ["v_mov_b32 v%d, 1.0" % P, "v_mov_b32 v%d, 0" % (P + 1)] + wr(P, 1, 0, True, 1)
            cur = P
            for r in range(1, 16):
                if r == 1:
                    LA += ["v_mov_b32 v%d, v%d" % (P, W1), "v_mov_b32 v%d, v%d" % (P + 1, W1 + 1)]
                    cur = P
                else:
                    dst = PK + 2 * (r // 2 - 1) if r % 2 == 0 else P
                    LA += cmul(dst, cur, W1, TMP2)
                    cur = dst
                LA += wr(cur, 1, r, True, 1)
            a.ext(zipl(LY, LA))
            a.ext(cmul(W512, W256, W256, TMP1))
            a("s_waitcnt lgkmcnt(0)")
            a.ext(frag_reads(YF, 0)); a.ext(frag_reads(AF, 1))
            a.ext(zipl(cmul(W768, W512, W256, TMP1), cmul(W1024, W512, W512, TMP2)))
            def pk(i): return PK + 2 * (i // 2 - 1)
            vals = []
            A2 = []
            regs = []
            for r in range(8):
                if r == 0: regs.append(W256)
                else:
                    dst = V + 2 * (r - 1) if r < 8 else None
                    A2.append(cmul(dst, pk(2 * r), W256, TMP1 if r % 2 else TMP2)); regs.append(dst)
            a.ext(zipl(sum(A2[0::2], []), sum(A2[1::2], [])))
            a("s_waitcnt lgkmcnt(0)")
            m = mm(0, sl == 0)
            L = []
            for r in range(8): L += wr(regs[r], 1, r, True)
            a.ext(interleave(m, L))
            LA = []; LB = []
            for b in range(4):
                if b == 0:
                    LA += wr(W512, 1, 8, True); LB += wr(W768, 1, 12, True, 1)
                else:
                    LA += cmul(V, pk(4 * b), W512, TMP1) + wr(V, 1, 8 + b, True)
                    LB += cmul(V + 2, pk(4 * b), W768, TMP2) + wr(V + 2, 1, 12 + b, True, 1)
            a.ext(zipl(LA, LB))
            a("s_waitcnt lgkmcnt(0)")
            a.ext(frag_reads(AF, 1))
            a.ext(zipl(cmul(V, W1024, W256, TMP1), cmul(V + 2, W1024, W512, TMP2)))
            a.ext(zipl(cmul(V + 4, W1024, W768, TMP1), cmul(V + 6, W1024, W1024, TMP2)))
            ws = [W1024, V, V + 2, V + 4]
            a.ext(zipl(cmul(V + 8, ws[0], pk(8), TMP1), cmul(V + 10, ws[1], pk(8), TMP2)))
            a.ext(zipl(cmul(V + 12, ws[2], pk(8), TMP1), cmul(V + 14, ws[3], pk(8), TMP2)))
            a("s_waitcnt lgkmcnt(0)")
            m = mm(1, sl == 0)
            L = []
            for i in range(4):
                L += wr(ws[i], 1, 2 * i, True) + wr(V + 8 + 2 * i, 1, 2 * i + 1, True)
            L += wr(V + 6, 1, 8, True)
            a.ext(interleave(m, L))
            a("s_waitcnt lgkmcnt(0)")
            a.ext(frag_reads(AF, 1))
            a("s_waitcnt lgkmcnt(0)")
            a.ext(mm(2, sl == 0))
        self.stamp(2)
        A0, A1, A2r = ACC, ACC + 4, ACC + 8
        a("v_cmp_eq_u32 vcc, 0, v0")
        a("v_and_b32 v4, 15, v0")
        a("v_lshrrev_b32 v5, 4, v0")
        a("v_cndmask_b32 v6, 0, v219, vcc")
        a("v_lshlrev_b32 v7, 5, v4")
        a("v_lshl_add_u32 v7, v5, 4, v7")
        a("v_lshlrev_b32 v8, 4, v4")
        a("v_lshl_add_u32 v8, v5, 8, v8")
        a("v_cmp_gt_u32 vcc, 2, v5")
        a("v_add_f32 v%d, v%d, v6" % (A0, A0))
        a("s_nop 0")
        a("v_cndmask_b32 v7, v8, v7, vcc")
        a("v_add_u32 v7, s51, v7")
        a("v_lshlrev_b32 v8, 3, v4")
        a("v_lshl_add_u32 v8, v5, 8, v8")
        a("v_add_u32 v8, s51, v8")
        a("s_nop 4")
        a("ds_write_b128 v7, v[%d:%d]" % (A1, A1 + 3))
        a("ds_write_b64 v8, v[%d:%d] offset:1024" % (A2r, A2r + 1))
        a("ds_write_b64 v8, v[%d:%d] offset:1152" % (A2r + 2, A2r + 3))
        a("v_cvt_pk_bf16_f32 v10, v%d, v%d" % (A0 + 3, A0 + 2))
        a("v_cvt_pk_bf16_f32 v11, v%d, v%d" % (A0 + 1, A0))
        a("v_lshlrev_b32 v9, 5, v4")
        a("v_lshl_add_u32 v9, v5, 3, v9")
        a("v_sub_u32 v9, 4088, v9")
        a("v_add_u32 v9, s52, v9")
        a("ds_write_b64 v9, v[10:11]")
        a("v_and_b32 v9, 31, v0")
        a("v_lshlrev_b32 v9, 2, v9")
        a("v_add_u32 v9, s52, v9")
        a("v_mov_b32 v12, 0")
        a("ds_write_b32 v9, v12 offset:4096")
        a("v_lshlrev_b32 v13, 4, v0")
        a("v_add_u32 v14, s51, v13")
        a("v_lshlrev_b32 v15, 3, v0")
        a("v_add_u32 v15, s51, v15")
        a("v_lshlrev_b32 v16, 2, v0")
        a("v_add_u32 v16, s51, v16")
        a("v_sub_u32 v13, s52, v13")
        a("s_waitcnt lgkmcnt(0)")
        a("ds_read_b128 v[20:23], v14")
        a("ds_read_b32 v24, v14 offset:16")
        a("ds_read_b64 v[26:27], v15 offset:512")
        a("ds_read_b32 v28, v15 offset:520")
        a("ds_read2_b32 v[30:31], v16 offset0:0 offset1:1")
        a.l.pop()
        a("v_add_u32 v17, 1024, v16")
        a("ds_read2_b32 v[30:31], v17 offset0:0 offset1:1")
        a("ds_read2_b32 v[32:33], v17 offset0:64 offset1:65")
        a("v_and_b32 v18, 1, v0")
        a("v_cmp_eq_u32 vcc, 1, v18")
        a("s_waitcnt lgkmcnt(0)")
        a("v_cvt_pk_bf16_f32 v36, v28, v28")
        a("v_cvt_pk_bf16_f32 v37, v27, v27")
        a("v_cvt_pk_bf16_f32 v38, v27, v26")
        a("v_cvt_pk_bf16_f32 v39, v26, v26")
        a("ds_write_b128 v13, v[36:39] offset:3056")
        for ps in range(2):
            v0_, v1_ = 30 + 2 * ps, 31 + 2 * ps
            o = 40 + 4 * ps
            a("v_cndmask_b32 v19, v%d, v%d, vcc" % (v0_, v1_))
            a("v_cvt_pk_bf16_f32 v%d, v%d, v%d" % (o, v1_, v1_))
            a("v_cvt_pk_bf16_f32 v%d, v%d, v19" % (o + 1, v1_))
            a("v_cvt_pk_bf16_f32 v%d, v%d, v%d" % (o + 2, v0_, v0_))
            a("v_mov_b32 v%d, v%d" % (o + 3, o + 2))
        a("ds_write_b128 v13, v[40:43] offset:2032")
        a("ds_write_b128 v13, v[44:47] offset:1008")
        a("v_cvt_pk_bf16_f32 v48, v24, v23")
        a("v_cvt_pk_bf16_f32 v49, v22, v22")
        a("v_cvt_pk_bf16_f32 v50, v22, v21")
        a("v_cvt_pk_bf16_f32 v51, v20, v20")
        a("s_mov_b32 exec_hi, 0")
        a("ds_write_b128 v13, v[48:51] offset:3568")
        a("s_mov_b32 exec_hi, -1")
        self.stamp(3)
        if "dumpk" in self.ph:
            a("s_waitcnt lgkmcnt(0)")
            a("v_lshlrev_b32 v13, 4, v0")
            a("v_add_u32 v14, s52, v13")
            a("s_mul_i32 s67, s50, 4224")
            a("s_add_u32 s67, s67, %d" % WS_DBG)
            for i in range(5):
                a("ds_read_b128 v[20:23], v14 offset:%d" % (1024 * i))
                a("s_waitcnt lgkmcnt(0)")
                if i == 4: a("s_mov_b32 exec_hi, 0"); a("s_mov_b32 exec_lo, 0xff")
                a("s_add_u32 s68, s67, %d" % (1024 * i))
                a("buffer_store_dwordx4 v[20:23], v13, s[20:23], s68 offen")
                a("s_waitcnt vmcnt(0)")
            a("s_mov_b64 exec, -1")

    def conv_loads(self):
        a = self.a
        a("s_lshl_b32 s67, s50, 12")
        a("s_add_u32 s67, s67, %d" % (WS_UT - 4))
        a("v_lshlrev_b32 v1, 2, v0")
        for i in range(16):
            a("buffer_load_dwordx2 v[%d:%d], v1, s[20:23], s67 offen offset:%d sc1" % (120 + 2 * i, 121 + 2 * i, 256 * i))

    def conv(self):
        a = self.a
        D = 120
        a("s_mul_i32 s53, s66, %d" % UC_SZ)
        if LDS_UC: a("s_add_u32 s53, s53, %d" % LDS_UC)
        a("s_mov_b32 m0, s53")
        a("v_mov_b32 v2, 0")
        for b in range(4):
            a("ds_write_addtid_b32 v2 offset:%d" % (b * UC_STRIDE))
            a("ds_write_addtid_b32 v2 offset:%d" % (b * UC_STRIDE + 33 * 4))
        a("v_cmp_eq_u32 vcc, 0, v0")
        a("s_waitcnt vmcnt(0)")
        a("v_cndmask_b32 v%d, v%d, v2, vcc" % (D, D))
        for i in range(16):
            lo, hi = D + 2 * i, D + 2 * i + 1
            o = 4 + (i % 4)
            a("v_alignbit_b32 v%d, v%d, v%d, 16" % (o, hi, lo))
            a("ds_write_addtid_b32 v%d offset:%d" % (hi, 3 * UC_STRIDE + 4 * (64 * i + 96)))
            a("ds_write_addtid_b32 v%d offset:%d" % (hi, 1 * UC_STRIDE + 4 * (64 * i + 97)))
            a("ds_write_addtid_b32 v%d offset:%d" % (o, 2 * UC_STRIDE + 4 * (64 * i + 96)))
            a("ds_write_addtid_b32 v%d offset:%d" % (o, 0 * UC_STRIDE + 4 * (64 * i + 97)))
        VU, VK = 8, 9
        a("v_and_b32 v4, 3, v0")
        a("v_mul_u32_u24 v4, %d, v4" % UC_STRIDE)
        a("v_bfe_u32 v5, v0, 2, 2")
        a("v_lshl_add_u32 v4, v5, 7, v4")
        a("v_lshrrev_b32 v5, 4, v0")
        a("v_lshl_add_u32 v4, v5, 4, v4")
        a("v_add_u32 v%d, s53, v4" % VU)
        a("v_and_b32 v6, 15, v0")
        a("v_lshlrev_b32 v7, 3, v6")
        a("v_sub_u32 v7, 120, v7")
        a("v_lshl_add_u32 v7, v5, 4, v7")
        a("v_add_u32 v%d, s52, v7" % VK)
        a("v_lshlrev_b32 v10, 3, v6")
        a("v_lshl_add_u32 v10, v5, 7, v10")
        ACC = 16; SETS = [48, 112]
        def reads(rho, S):
            L = []
            for z in range(8):
                L.append("ds_read_b128 v[%d:%d], v%d offset:%d" % (S + 4 * z, S + 4 * z + 3, VU, 512 * z + 64 * (7 - rho)))
                zz = 8 * z + rho
                L.append("ds_read_b64 v[%d:%d], v%d offset:%d" % (S + 32 + 4 * z, S + 33 + 4 * z, VK, 64 * (63 - zz)))
                L.append("ds_read_b64 v[%d:%d], v%d offset:%d" % (S + 34 + 4 * z, S + 35 + 4 * z, VK, 64 * (63 - zz) + 8))
            return L
        def mm(rho, S):
            L = []
            for ze in range(8):
                for nu in range(8 - ze):
                    n = ze + nu
                    c = "0" if (rho == 0 and ze == 0) else "v[%d:%d]" % (ACC + 4 * n, ACC + 4 * n + 3)
                    L.append("v_mfma_f32_16x16x32_bf16 v[%d:%d], v[%d:%d], v[%d:%d], %s" % (ACC + 4 * n, ACC + 4 * n + 3, S + 4 * nu, S + 4 * nu + 3, S + 32 + 4 * ze, S + 35 + 4 * ze, c))
            return L
        a("s_waitcnt lgkmcnt(0)")
        self.stamp(4)
        a.ext(reads(0, SETS[0]))
        a("s_waitcnt lgkmcnt(0)")
        for rho in range(8):
            fill = reads(rho + 1, SETS[(rho + 1) & 1]) if rho < 7 else []
            a.ext(interleave(mm(rho, SETS[rho & 1]), fill, span=28))
            if rho < 7: a("s_waitcnt lgkmcnt(0)")
        self.stamp(7)
        a("s_lshl_b32 s67, s50, 12")
        a("s_add_u32 s67, s67, %d" % WS_Y)
        a("s_nop 7")
        for n in range(8):
            o = 48 + 2 * n
            a("v_cvt_pk_bf16_f32 v%d, v%d, v%d" % (o, ACC + 4 * n, ACC + 4 * n + 1))
            a("v_cvt_pk_bf16_f32 v%d, v%d, v%d" % (o + 1, ACC + 4 * n + 2, ACC + 4 * n + 3))
            a("buffer_store_dwordx2 v[%d:%d], v10, s[20:23], s67 offen offset:%d sc1" % (o, o + 1, 512 * n))

    def s_ssm(self):
        a = self.a
        n = self.name
        a("s_sub_u32 s66, s3, 4")
        a("s_lshl_b32 s50, s66, 8")
        a("s_add_u32 s50, s50, s2")
        a("s_cmp_ge_u32 s66, 3")
        a("s_cbranch_scc1 %s_ssm_done" % n)
        a("s_cmp_ge_u32 s50, 640")
        a("s_cbranch_scc1 %s_ssm_done" % n)
        self.stamp(5)
        if "g1" not in self.ph: self.ssm_param_loads()
        self.kgen()
        self.stamp(6)
        if self.fused():
            self.nonce_read(10)
            a("s_lshr_b32 s78, s50, 5")
            a("s_and_b32 s78, s78, 15")
            a("s_lshl_b32 s78, s78, 7")
            a("s_add_u32 s78, s78, %d" % WS_FU)
            self.poll_line("s78", 16, 10)
        self.conv_loads()
        self.conv()
        a("s_waitcnt vmcnt(0)")
        if self.fused():
            a("s_lshl_b32 s69, s50, 2")
            a("s_add_u32 s69, s69, %d" % WS_FY)
            self.flag_set("s69", 2)
        self.stamp(8)
        a.lab("%s_ssm_done" % n)

    def g_gemm2(self):
        a = self.a
        ACC = 0
        SETS = [80, 116, 152, 188]
        VB = 224
        VL = 228
        T = 230
        acc = lambda dt, tau: ACC + (dt * 4 + tau) * 4
        a("v_mbcnt_lo_u32_b32 v%d, -1, 0" % T)
        a("v_mbcnt_hi_u32_b32 v%d, -1, v%d" % (T, T))
        a("v_lshlrev_b32 v%d, 4, v%d" % (VL, T))
        for tau in range(4):
            a("s_add_u32 s67, s3, %d" % tau)
            a("s_and_b32 s67, s67, 3")
            a("s_lshl_b32 s67, s67, 10")
            a("v_add_u32 v%d, s67, v%d" % (VB + tau, VL))
        a("s_mul_i32 s70, s6, 48")
        a("s_mul_i32 s67, s3, 12")
        a("s_add_u32 s70, s70, s67")
        a("s_lshl_b32 s70, s70, 12")
        if WS_H: a("s_add_u32 s70, s70, %d" % WS_H)
        a("s_mul_i32 s71, s7, 48")
        a("s_add_u32 s71, s71, s67")
        a("s_mul_i32 s71, s71, 5120")
        a("s_add_u32 s71, s71, %d" % WS_WD)
        a("s_add_u32 s72, s71, 4096")
        def loadsA(S):
            L = []
            for dt in range(5):
                if dt < 4: L.append("buffer_load_dwordx4 v[%d:%d], v%d, s[20:23], s71 offen offset:%d sc1" % (S + 16 + 4 * dt, S + 19 + 4 * dt, VL, 1024 * dt))
                else: L.append(("buffer_load_dwordx4 v[%d:%d], v%d, s[20:23], s72 offen sc1" % (S + 16 + 4 * dt, S + 19 + 4 * dt, VL),
                                "s_add_u32 s71, s71, 5120", "s_add_u32 s72, s72, 5120"))
            return L
        def loadsB(S):
            L = []
            for tau in range(4):
                x = "buffer_load_dwordx4 v[%d:%d], v%d, s[20:23], s70 offen sc1" % (S + 4 * tau, S + 4 * tau + 3, VB + tau)
                L.append(x if tau < 3 else (x, "s_add_u32 s70, s70, 4096"))
            return L
        def mm(S, first):
            L = []
            for dt in range(5):
                for tau in range(4):
                    c = "0" if first else "v[%d:%d]" % (acc(dt, tau), acc(dt, tau) + 3)
                    L.append("v_mfma_f32_16x16x32_bf16 v[%d:%d], v[%d:%d], v[%d:%d], %s" % (acc(dt, tau), acc(dt, tau) + 3, S + 16 + 4 * dt, S + 19 + 4 * dt, S + 4 * tau, S + 4 * tau + 3, c))
            return L
        self.g2_wait_inputs()
        self.stamp(5)
        NS = 12
        for k in range(3):
            a.ext(flat(loadsB(SETS[k]) + loadsA(SETS[k])))
        for k in range(NS):
            rem = min(NS - 1, k + 2) - k
            a("s_waitcnt vmcnt(%d)" % (9 * rem))
            fill = (loadsB(SETS[(k + 3) % 4]) + loadsA(SETS[(k + 3) % 4])) if k + 3 < NS else []
            a.ext(interleave(mm(SETS[k % 4], k == 0), fill))
        self.stamp(6)
        a("s_nop 7")
        for tau in range(1, 4):
            a("s_add_u32 s67, s3, %d" % tau)
            a("s_and_b32 s67, s67, 3")
            a("s_mul_i32 s67, s67, 3")
            a("s_add_u32 s67, s67, %d" % (tau - 1))
            a("s_mul_i32 s67, s67, 5120")
            a("s_add_u32 s67, s67, %d" % LDS_RED)
            a("v_add_u32 v%d, s67, v%d" % (T + 1, VL))
            for dt in range(5):
                a("ds_write_b128 v%d, v[%d:%d] offset:%d" % (T + 1, acc(dt, tau), acc(dt, tau) + 3, 1024 * dt))
        a("s_waitcnt lgkmcnt(0)")
        a("s_barrier")
        self.stamp(7)
        a("s_mul_i32 s67, s3, %d" % (3 * 5120))
        a("s_add_u32 s67, s67, %d" % LDS_RED)
        a("v_add_u32 v%d, s67, v%d" % (T + 1, VL))
        R = 80
        for j in range(3):
            for dt in range(5):
                r = R + (j * 5 + dt) * 4
                a("ds_read_b128 v[%d:%d], v%d offset:%d" % (r, r + 3, T + 1, 5120 * j + 1024 * dt))
        Y = 140
        a("v_lshrrev_b32 v%d, 4, v%d" % (T + 2, T))
        a("v_and_b32 v%d, 15, v%d" % (T + 3, T))
        a("v_lshrrev_b32 v%d, 2, v%d" % (T + 4, T + 3))
        a("v_lshl_add_u32 v%d, v%d, 3, v%d" % (T + 5, T + 2, T + 4))
        a("v_lshl_add_u32 v%d, v%d, 2, v%d" % (T + 6, T + 2, T + 4))
        a("v_and_b32 v%d, 3, v%d" % (T + 7, T))
        a("v_lshlrev_b32 v%d, 3, v%d" % (T + 7, T + 7))
        a("s_lshl_b32 s67, s3, 5")
        a("s_add_u32 s67, s67, %d" % LDS_YT)
        a("v_add_u32 v%d, s67, v%d" % (T + 7, T + 7))
        a("v_lshl_add_u32 v%d, v%d, 7, v%d" % (T + 5, T + 5, T + 7))
        a("v_lshl_add_u32 v%d, v%d, 7, v%d" % (T + 6, T + 6, T + 7))
        for dt in range(5):
            if dt < 4: a("ds_read_b64_tr_b16 v[%d:%d], v%d offset:%d" % (Y + 2 * dt, Y + 2 * dt + 1, T + 5, 128 * (32 * (dt >> 1) + 4 * (dt & 1))))
            else: a("ds_read_b64_tr_b16 v[%d:%d], v%d offset:%d" % (Y + 2 * dt, Y + 2 * dt + 1, T + 6, 128 * 64))
        a("s_lshl_b32 s67, s3, 6")
        a("s_add_u32 s67, s67, %d" % LDS_GT)
        a("v_lshl_add_u32 v%d, v%d, 2, s67" % (T + 8, T + 3))
        a("ds_read_b32 v%d, v%d" % (T + 8, T + 8))
        a("s_lshl_b32 s67, s6, 6")
        a("s_lshl_b32 s68, s3, 4")
        a("s_add_u32 s67, s67, s68")
        a("v_add_u32 v%d, s67, v%d" % (T + 9, T + 3))
        a("s_movk_i32 s68, 1280")
        a("v_mul_lo_u32 v%d, v%d, s68" % (T + 9, T + 9))
        a("s_mul_i32 s68, s7, 160")
        a("v_add_u32 v%d, s68, v%d" % (T + 9, T + 9))
        a("v_lshl_add_u32 v%d, v%d, 3, v%d" % (T + 10, T + 2, T + 9))
        a("v_lshl_add_u32 v%d, v%d, 4, v%d" % (T + 9, T + 2, T + 9))
        a("s_waitcnt lgkmcnt(0)")
        for dt in range(5):
            for h in range(2):
                x = acc(dt, 0) + 2 * h
                p = [R + (j * 5 + dt) * 4 + 2 * h for j in range(3)]
                a("v_pk_add_f32 v[%d:%d], v[%d:%d], v[%d:%d]" % (p[0], p[0] + 1, p[0], p[0] + 1, p[1], p[1] + 1))
                a("v_pk_add_f32 v[%d:%d], v[%d:%d], v[%d:%d]" % (x, x + 1, x, x + 1, p[2], p[2] + 1))
        for dt in range(5):
            for h in range(2):
                x = acc(dt, 0) + 2 * h
                p = R + dt * 4 + 2 * h
                a("v_pk_add_f32 v[%d:%d], v[%d:%d], v[%d:%d]" % (x, x + 1, x, x + 1, p, p + 1))
        U = 150
        for dt in range(5):
            for h in range(2):
                a("v_lshlrev_b32 v%d, 16, v%d" % (U + 4 * dt + 2 * h, Y + 2 * dt + h))
                a("v_and_b32 v%d, 0xffff0000, v%d" % (U + 4 * dt + 2 * h + 1, Y + 2 * dt + h))
        G2 = T + 12
        assert G2 % 2 == 0
        a("v_mov_b32 v%d, v%d" % (G2, T + 8))
        a("v_mov_b32 v%d, v%d" % (G2 + 1, T + 8))
        for dt in range(5):
            for h in range(2):
                x = acc(dt, 0) + 2 * h; u = U + 4 * dt + 2 * h
                a("v_pk_add_f32 v[%d:%d], v[%d:%d], v[%d:%d] neg_lo:[0,1] neg_hi:[0,1]" % (u, u + 1, u, u + 1, x, x + 1))
        for dt in range(5):
            for h in range(2):
                x = acc(dt, 0) + 2 * h; u = U + 4 * dt + 2 * h
                a("v_pk_fma_f32 v[%d:%d], v[%d:%d], v[%d:%d], v[%d:%d]" % (x, x + 1, u, u + 1, G2, G2 + 1, x, x + 1))
        O = 176
        for dt in range(5):
            for h in range(2):
                x = acc(dt, 0) + 2 * h
                a("v_cvt_pk_bf16_f32 v%d, v%d, v%d" % (O + 2 * dt + h, x, x + 1))
        a("buffer_store_dwordx4 v[%d:%d], v%d, s[24:27], 0 offen" % (O, O + 3, T + 9))
        a("buffer_store_dwordx4 v[%d:%d], v%d, s[24:27], 0 offen offset:64" % (O + 4, O + 7, T + 9))
        a("buffer_store_dwordx2 v[%d:%d], v%d, s[24:27], 0 offen offset:128" % (O + 8, O + 9, T + 10))
        self.stamp(8)

    def g2_wait_inputs(self):
        if not self.fused(): return
        a = self.a
        T = 232
        lo = self.newlab("hw"); ld = self.newlab("hd"); lp = self.newlab("hs")
        a("s_cmp_lg_u32 s3, 0")
        a("s_cbranch_scc1 %s" % lo)
        a("s_lshr_b32 s78, s6, 1")
        a("s_lshl_b32 s78, s78, 7")
        a("s_add_u32 s78, s78, %d" % WS_FH)
        self.poll_line("s78", 16, T, sleep=4)
        a("v_mov_b32 v%d, %d" % (T, LDS_HOK))
        a("v_mov_b32 v%d, 1" % (T + 1))
        a("ds_write_b32 v%d, v%d" % (T, T + 1))
        a("s_branch %s" % ld)
        a.lab(lo)
        a("v_mov_b32 v%d, %d" % (T, LDS_HOK))
        a("s_mov_b32 s69, 0")
        a.lab(lp)
        a("ds_read_b32 v%d, v%d" % (T + 1, T))
        a("s_waitcnt lgkmcnt(0)")
        a("v_readfirstlane_b32 s78, v%d" % (T + 1))
        a("s_cmp_eq_u32 s78, 1")
        a("s_cbranch_scc1 %s" % ld)
        a("s_add_u32 s69, s69, 1")
        a("s_cmp_lt_u32 s69, 0x400000")
        a("s_cbranch_scc0 %s" % ld)
        a("s_sleep 1")
        a("s_branch %s" % lp)
        a.lab(ld)

    def s_final(self):
        a = self.a
        n = self.name
        l = self.newlab("fin")
        a("s_cmp_lg_u32 s3, 7")
        a("s_cbranch_scc1 %s" % l)
        self.y_wait_inputs()
        a("v_mbcnt_lo_u32_b32 v0, -1, 0")
        a("v_mbcnt_hi_u32_b32 v0, -1, v0")
        a("v_lshrrev_b32 v1, 3, v0")
        a("v_lshlrev_b32 v1, 12, v1")
        a("v_and_b32 v2, 7, v0")
        a("v_lshl_add_u32 v1, v2, 4, v1")
        a("s_mul_i32 s67, s7, %d" % (80 * 4096))
        a("s_lshl_b32 s68, s6, 7")
        a("s_add_u32 s67, s67, s68")
        a("s_add_u32 s67, s67, %d" % WS_Y)
        for i in range(10):
            a("buffer_load_dwordx4 v[%d:%d], v1, s[20:23], s67 offen sc1" % (8 + 4 * i, 11 + 4 * i))
            if i < 9: a("s_add_u32 s67, s67, %d" % (8 * 4096))
        a("s_lshl_b32 s67, s6, 8")
        a("s_add_u32 s67, s67, %d" % WS_G)
        a("v_lshlrev_b32 v3, 2, v0")
        a("buffer_load_dword v4, v3, s[20:23], s67 offen sc1")
        a("v_lshlrev_b32 v2, 4, v0")
        a("v_add_u32 v2, %d, v2" % LDS_YT)
        a("v_add_u32 v3, %d, v3" % LDS_GT)
        a("s_waitcnt vmcnt(0)")
        for i in range(10):
            a("ds_write_b128 v2, v[%d:%d] offset:%d" % (8 + 4 * i, 11 + 4 * i, 1024 * i))
        a("ds_write_b32 v3, v4")
        a("s_waitcnt lgkmcnt(0)")
        a.lab(l)
        a("s_barrier")

    def y_wait_inputs(self):
        if not self.fused(): return
        a = self.a
        a("v_mbcnt_lo_u32_b32 v0, -1, 0")
        a("v_mbcnt_hi_u32_b32 v0, -1, v0")
        a("s_mul_i32 s67, s7, 320")
        a("s_add_u32 s67, s67, %d" % WS_FY)
        a("v_lshl_add_u32 v1, v0, 2, s67")
        a("v_add_u32 v2, 256, v1")
        a("s_lshl_b32 s68, s6, 5")
        a("s_add_u32 s68, s68, %d" % (WS_FG - 64))
        a("v_lshl_add_u32 v3, v0, 2, s68")
        a("v_cmp_le_u32 vcc, 16, v0")
        a("s_nop 1")
        a("v_cndmask_b32 v2, v2, v3, vcc")
        a("v_subrev_u32 v3, 24, v0")
        a("v_lshlrev_b32 v3, 10, v3")
        a("s_lshl_b32 s68, s2, 2")
        a("s_add_u32 s68, s68, %d" % WS_FY)
        a("v_add_u32 v3, s68, v3")
        a("v_cmp_le_u32 vcc, 24, v0")
        a("s_nop 1")
        a("v_cndmask_b32 v2, v2, v3, vcc")
        a("s_cmp_lt_u32 s2, 128")
        a("s_cselect_b32 s68, 27, 26")
        a("v_mov_b32 v3, s67")
        a("v_cmp_le_u32 vcc, s68, v0")
        a("s_nop 1")
        a("v_cndmask_b32 v2, v2, v3, vcc")
        def loads():
            a("buffer_load_dword v4, v1, s[20:23], 0 offen sc1")
            a("buffer_load_dword v5, v2, s[20:23], 0 offen sc1")
        self.poll(loads, [4, 5], 6, sleep=8)

    def fused(self): return "fused" in self.ph

    def nonce_create_load(self):
        a = self.a
        l0 = self.newlab("nz")
        a("s_cmp_lg_u32 s2, 0")
        a("s_cbranch_scc1 %s" % l0)
        a("v_mov_b32 v1, 0")
        a("s_mov_b32 s67, %d" % WS_NON)
        a("buffer_load_dword v62, v1, s[20:23], s67 offen sc1")
        a.lab(l0)
    def nonce_create_store(self):
        a = self.a
        l0 = self.newlab("nz")
        a("s_cmp_lg_u32 s2, 0")
        a("s_cbranch_scc1 %s" % l0)
        a("v_mov_b32 v1, 0")
        a("s_mov_b32 s67, %d" % WS_NON)
        a("v_add_u32 v62, 1, v62")
        a("v_mov_b32 v63, 1")
        a("s_mov_b64 exec, 1")
        a("buffer_store_dword v62, v1, s[20:23], s67 offen sc1")
        a("global_store_dwordx2 v1, v[62:63], s[62:63] sc1")
        a("s_mov_b64 exec, -1")
        a.lab(l0)
    def nonce_poll(self):
        a = self.a
        lp = self.newlab("np"); ld = self.newlab("nd")
        a("v_mov_b32 v1, 0")
        a("s_mov_b32 s68, 0")
        a.lab(lp)
        a("global_load_dwordx2 v[2:3], v1, s[62:63] sc1")
        a("s_waitcnt vmcnt(0)")
        a("v_readfirstlane_b32 s67, v3")
        a("v_readfirstlane_b32 s64, v2")
        a("s_cmp_eq_u32 s67, 1")
        a("s_cbranch_scc1 %s" % ld)
        a("s_add_u32 s68, s68, 1")
        a("s_cmp_lt_u32 s68, 0x40000")
        a("s_cbranch_scc0 %s" % ld)
        a("s_sleep 2")
        a("s_branch %s" % lp)
        a.lab(ld)
        a("v_mov_b32 v2, s64")
        a("v_mov_b32 v1, %d" % LDS_NONCE)
        a("ds_write_b32 v1, v2")
        a("s_waitcnt lgkmcnt(0)")

    def nonce_read(self, vt):
        a = self.a
        a("v_mov_b32 v%d, %d" % (vt, LDS_NONCE))
        a("ds_read_b32 v%d, v%d" % (vt, vt))
        a("s_waitcnt lgkmcnt(0)")
        a("v_readfirstlane_b32 s64, v%d" % vt)

    def flag_set(self, soff_reg, vt):
        a = self.a
        a("v_mov_b32 v%d, s64" % vt)
        a("v_mov_b32 v%d, 0" % (vt + 1))
        a("s_mov_b64 exec, 1")
        a("buffer_store_dword v%d, v%d, s[20:23], %s offen sc1" % (vt, vt + 1, soff_reg))
        a("s_mov_b64 exec, -1")

    def poll(self, loads, vregs, vt, sleep=8):
        a = self.a
        lp = self.newlab("pl"); ld = self.newlab("pd")
        a("s_mov_b32 s69, 0")
        a.lab(lp)
        loads()
        a("s_waitcnt vmcnt(0)")
        for i, r in enumerate(vregs):
            if i == 0: a("v_cmp_eq_u32 vcc, s64, v%d" % r)
            else:
                a("v_cmp_eq_u32 s[76:77], s64, v%d" % r)
                a("s_nop 1")
                a("s_and_b64 vcc, vcc, s[76:77]")
        a("s_nop 1")
        a("s_cmp_eq_u64 vcc, -1")
        a("s_cbranch_scc1 %s" % ld)
        a("s_add_u32 s69, s69, 1")
        a("s_cmp_lt_u32 s69, 0x40000")
        a("s_cbranch_scc0 %s" % ld)
        a("s_sleep %d" % sleep)
        a("s_branch %s" % lp)
        a.lab(ld)

    def poll_line(self, soff, nflags, vt, sleep=8):
        a = self.a
        a("v_mbcnt_lo_u32_b32 v%d, -1, 0" % vt)
        a("v_mbcnt_hi_u32_b32 v%d, -1, v%d" % (vt, vt))
        a("v_cmp_gt_u32 vcc, %d, v%d" % (nflags, vt))
        a("v_lshlrev_b32 v%d, 2, v%d" % (vt, vt))
        a("s_nop 0")
        a("v_cndmask_b32 v%d, 0, v%d, vcc" % (vt, vt))
        self.poll(lambda: a("buffer_load_dword v%d, v%d, s[20:23], %s offen sc1" % (vt + 1, vt, soff)), [vt + 1], vt, sleep)

    def build(self):
        a = self.a
        n = self.name
        a.l.append(".globl %s" % n)
        a.l.append(".p2align 8")
        a.l.append(".type %s,@function" % n)
        a.l.append("%s:" % n)
        self.prologue()
        a("s_cmp_ge_u32 s3, 4")
        a("s_cbranch_scc1 %s_S" % n)
        if "g1" in self.ph:
            self.g_gemm1()
        if "g2" in self.ph:
            self.g_gemm2()
        self.dbgtime_end()
        self.stamp_flush()
        a("s_endpgm")
        a.lab("%s_S" % n)
        if "g1" in self.ph:
            self.s_phase1()
        if "ssm" in self.ph:
            self.s_ssm()
        if "g2" in self.ph:
            self.s_final()
        self.stamp_flush()
        a.lab("%s_end" % n)
        a("s_endpgm")
        return a.text()

def kd(name):
    return """.amdhsa_kernel %s
  .amdhsa_next_free_vgpr 256
  .amdhsa_next_free_sgpr 102
  .amdhsa_accum_offset 256
  .amdhsa_group_segment_fixed_size 0
  .amdhsa_kernarg_size 136
  .amdhsa_user_sgpr_count 2
  .amdhsa_user_sgpr_kernarg_segment_ptr 1
  .amdhsa_system_sgpr_workgroup_id_x 1
.end_amdhsa_kernel
""" % name

HEADER = open("gated_mix__ssm_conv_s4__swiglu_ffn__prompt.s.ref").read().split("; Override launch")[0]

def emit(kernels, path):
    txt = HEADER
    if len(kernels) == 1:
        txt += "; @launch grid=(256,1,1) block=(512,1,1) lds=%d\n" % LDS_TOTAL
    else:
        for (n, p, s) in kernels:
            txt += "; @launch kernel=%s grid=(256,1,1) block=(512,1,1) lds=%d\n" % (n, LDS_TOTAL)
    txt += '.amdgcn_target "amdgcn-amd-amdhsa--gfx950"\n.text\n'
    for (n, p, s) in kernels:
        txt += Gen(n, p, s).build()
    txt += '.section .rodata,"a"\n'
    for (n, p, s) in kernels:
        txt += ".p2align 6\n" + kd(n)
    open(path, "w").write(txt)

if __name__ == "__main__":
    mode = sys.argv[1]; path = sys.argv[2]
    stamps = len(sys.argv) > 3 and sys.argv[3] == "stamps"
    if mode.startswith("g1+") or mode == "g1":
        emit([(KNAME, set(mode.split("+")), stamps)], path)
    elif mode == "g1,ssm":
        emit([("ka_kernel", {"g1"}, False), ("kb_kernel", {"ssm", "dumpk"}, stamps)], path)
    elif mode == "3k":
        emit([("ka_kernel", {"g1"}, False), ("kb_kernel", {"ssm"}, False), ("kc_kernel", {"g2"}, stamps)], path)
    elif mode == "3k+1":
        emit([("ka_kernel", {"g1"}, False), ("kb_kernel", {"ssm"}, False), ("kc_kernel", {"g2"}, stamps), ("kd_kernel", set(), False)], path)
    elif mode == "3k+3":
        emit([("ka_kernel", {"g1"}, False), ("kb_kernel", {"ssm"}, False), ("kc_kernel", {"g2"}, stamps), ("kd_kernel", set(), False), ("ke_kernel", set(), False), ("kf_kernel", set(), False)], path)
    elif mode == "3k_dbg":
        emit([("ka_kernel", {"g1", "dbgtime"}, False), ("kb_kernel", {"ssm"}, False), ("kc_kernel", {"g2", "dbgtime"}, False)], path)
    elif mode == "fused":
        emit([(KNAME, {"g1", "ssm", "g2", "fused"}, stamps)], path)
    elif mode == "fused_notouch":
        emit([(KNAME, {"g1", "ssm", "g2", "fused", "notouch"}, stamps)], path)
    elif mode == "fused_dbg":
        emit([(KNAME, {"g1", "ssm", "g2", "fused", "dbgtime"}, stamps)], path)
    elif mode == "g1,ssm,nodump":
        emit([("ka_kernel", {"g1"}, False), ("kb_kernel", {"ssm"}, stamps)], path)
```

```python
import sys, math

KNAME = "gated_mix__ssm_conv_s4__swiglu_ffn__prompt_kernel"

WS_H    = 0x000000
WS_WD   = 0x600000
ROWS    = 4224
WS_UT   = 0x800000
WS_Y    = 0xB00000
WS_G    = 0xE00000
WS_FU   = 0xE10000
WS_FW   = 0xE15000
WS_FH   = 0xE11000
WS_FY   = 0xE12000
WS_NON  = 0xE13000
WS_FG   = 0xE14000
WS_TS   = 0xF00000
WS_DBG  = 0x1000000

STAGE   = 40960
ST_WG   = 16384
ST_WU   = 28672
LDS_S   = 3 * STAGE
TABROW  = 272
TABTILE = 16 * TABROW
TAB_SZ  = 2 * TABTILE
LDS_TAB = LDS_S
KR_SZ   = 4224
LDS_KR  = LDS_TAB + 3 * TAB_SZ
LDS_MISC = LDS_KR + 3 * KR_SZ
LDS_TOTAL = 163840
LDS_NONCE = LDS_MISC
LDS_CNT   = LDS_MISC + 8
UC_STRIDE = 4640
UC_SZ   = 4 * UC_STRIDE
LDS_UC  = 0
LDS_RED = 57344
LDS_YT  = LDS_TAB
LDS_GT  = LDS_MISC + 64
LDS_HOK = LDS_MISC + 12
LDS_WOK = LDS_MISC + 16
LDS_UOK = LDS_MISC + 20
LDS_GOK = LDS_MISC + 24

class Asm:
    def __init__(self):
        self.l = []
    def __call__(self, s):
        for x in s.split("\n"):
            x = x.strip()
            if x: self.l.append("    " + x)
    def lab(self, s):
        self.l.append(s + ":")
    def ext(self, lst):
        for x in lst: self(x)
    def text(self):
        return "\n".join(self.l) + "\n"

def interleave(main, fill, start=0, span=None):
    out = []
    m = len(fill)
    n = len(main) if span is None else min(len(main), start + span)
    j = 0
    for i, x in enumerate(main):
        out.append(x)
        if i >= start:
            tgt = (m * (i - start + 1) + (n - start) - 1) // (n - start) if n > start else m
            while j < min(tgt, m):
                f = fill[j]
                if isinstance(f, tuple): out.extend(f)
                else: out.append(f)
                j += 1
    while j < m:
        f = fill[j]
        if isinstance(f, tuple): out.extend(f)
        else: out.append(f)
        j += 1
    return out

def flat(L):
    o = []
    for x in L:
        if isinstance(x, tuple): o.extend(x)
        else: o.append(x)
    return o

def vr(a, n=1):
    return "v%d" % a if n == 1 else "v[%d:%d]" % (a, a + n - 1)
def sr(a, n=1):
    return "s%d" % a if n == 1 else "s[%d:%d]" % (a, a + n - 1)

S_W, S_WAVE, S_M, S_N, S_M2, S_N2 = 2, 3, 4, 5, 6, 7
SRD_X, SRD_WG, SRD_WU, SRD_WS, SRD_OUT, SRD_WD = 8, 12, 16, 20, 24, 28
P_U, P_ARE, P_AIM, P_BRE, P_BIM, P_CRE, P_CIM, P_LDT = 32, 34, 36, 38, 40, 42, 44, 46
P_DSK, P_BX, P_WG, P_WU, P_WD, P_GW, P_OUT, P_DBG, P_WS = 48, 50, 52, 54, 56, 58, 60, 62, 64
S_TS = 80

class Gen:
    def __init__(self, name, phases, stamps=False):
        self.name = name
        self.ph = phases
        self.a = Asm()
        self.stamps = stamps
        self.nlab = 0
    def newlab(self, p):
        self.nlab += 1
        return "L_%s_%s_%d" % (self.name[:6], p, self.nlab)

    def capture(self, fn):
        old = self.a
        self.a = Asm()
        fn()
        lst = [x.strip() for x in self.a.l]
        self.a = old
        return lst

    def clk(self, i):
        if "clk" in self.ph and self.stamps:
            self.a("s_memrealtime s[%d:%d]" % (S_TS + 2 * i, S_TS + 2 * i + 1))
            self.a("s_memtime s[%d:%d]" % (S_TS + 2 * i + 2, S_TS + 2 * i + 3))
            self.a("s_waitcnt lgkmcnt(0)")

    def stamp(self, i, force=False):
        if "clk" in self.ph and i != 0: return
        if ("kstamps" in self.ph or "k2stamps" in self.ph) and not force and i != 0: return
        if self.stamps:
            self.a("%s s[%d:%d]" % ("s_memrealtime" if "rt" in self.ph else "s_memtime", S_TS + 2 * i, S_TS + 2 * i + 1))
            self.a("s_waitcnt lgkmcnt(0)")
    def stamp_flush(self):
        if not self.stamps: return
        a = self.a
        a("s_lshl_b32 s66, s2, 3")
        a("s_add_u32 s66, s66, s3")
        a("s_lshl_b32 s66, s66, 7")
        a("s_add_u32 s66, s66, 0x%x" % WS_TS)
        a("v_mov_b32 v250, 0")
        for i in range(10):
            a("v_mov_b32 v252, s%d" % (S_TS + 2 * i))
            a("v_mov_b32 v253, s%d" % (S_TS + 2 * i + 1))
            a("buffer_store_dwordx2 v[252:253], v250, s[20:23], s66 offen offset:%d" % (8 * i))
            a("s_nop 1")
        a("s_waitcnt vmcnt(0)")

    def prologue(self):
        a = self.a
        a("s_cmp_ge_u32 s2, 256")
        a("s_cbranch_scc1 %s_end" % self.name)
        a("s_load_dwordx16 s[32:47], s[0:1], 0")
        a("s_load_dwordx16 s[48:63], s[0:1], 64")
        a("s_load_dwordx2 s[64:65], s[0:1], 128")
        a("v_lshrrev_b32 v1, 6, v0")
        a("v_and_b32 v0, 63, v0")
        a("v_readfirstlane_b32 s3, v1")
        a("s_and_b32 s66, s2, 7")
        a("s_lshr_b32 s67, s2, 3")
        a("s_and_b32 s68, s67, 7")
        a("s_lshr_b32 s69, s67, 3")
        a("s_and_b32 s70, s66, 1")
        a("s_lshl_b32 s70, s70, 3")
        a("s_or_b32 s4, s70, s68")
        a("s_lshr_b32 s70, s66, 1")
        a("s_lshl_b32 s70, s70, 2")
        a("s_or_b32 s5, s70, s69")
        a("s_and_b32 s70, s66, 3")
        a("s_lshl_b32 s70, s70, 3")
        a("s_or_b32 s6, s70, s68")
        a("s_lshr_b32 s70, s66, 2")
        a("s_lshl_b32 s70, s70, 2")
        a("s_or_b32 s7, s70, s69")
        if "sametile" in self.ph:
            a("s_mov_b32 s4, 0"); a("s_mov_b32 s5, 0")
        if "samem" in self.ph:
            a("s_mov_b32 s4, 0")
        if "samen" in self.ph:
            a("s_mov_b32 s5, 0")
        if self.stamps:
            for i in range(10):
                a("s_mov_b64 s[%d:%d], 0" % (S_TS + 2 * i, S_TS + 2 * i + 1))
        a("s_waitcnt lgkmcnt(0)")
        def srd(base, ptr, size):
            a("s_mov_b32 s%d, s%d" % (base, ptr))
            a("s_and_b32 s%d, s%d, 0xffff" % (base + 1, ptr + 1))
            a("s_mov_b32 s%d, 0x%x" % (base + 2, size))
            a("s_mov_b32 s%d, 0x20000" % (base + 3))
        srd(SRD_X, P_U, 2048 * 640 * 2)
        srd(SRD_WG, P_WG, 640 * 1536 * 2)
        srd(SRD_WU, P_WU, 640 * 1536 * 2)
        srd(SRD_WS, P_WS, 0x10000000)
        srd(SRD_OUT, P_OUT, 2048 * 640 * 2)
        srd(SRD_WD, P_WD, 640 * 1536 * 2)
        self.stamp(0)
        if "dbgtime" in self.ph:
            a("s_memrealtime s[96:97]")
            a("s_memtime s[98:99]")
            a("s_mov_b64 s[100:101], s[62:63]")
            a("s_waitcnt lgkmcnt(0)")

    def dbgtime_end(self):
        a = self.a
        if "dbgtime" not in self.ph: return
        l = self.newlab("dbt")
        a("s_cmp_lg_u32 s2, 0"); a("s_cbranch_scc1 %s" % l)
        a("s_cmp_lg_u32 s3, 0"); a("s_cbranch_scc1 %s" % l)
        a("s_waitcnt vmcnt(0)")
        a("s_memrealtime s[92:93]")
        a("s_memtime s[94:95]")
        a("s_waitcnt lgkmcnt(0)")
        a("s_sub_u32 s92, s92, s96")
        a("s_sub_u32 s94, s94, s98")
        a("v_mov_b32 v250, 0")
        a("v_mov_b32 v252, s92")
        a("v_mov_b32 v253, s94")
        a("v_mov_b32 v254, s96")
        a("v_mov_b32 v255, 0x1234")
        a("global_store_dwordx4 v250, v[252:255], s[100:101]")
        a("s_waitcnt vmcnt(0)")
        a.lab(l)

    def g_gemm1(self):
        a = self.a
        ACC = 0; FP = 96; FQ = 136
        VXB = 176
        VWA = 182
        VL16 = 196
        T = 200
        accg = lambda ft, tt: ACC + (ft * 4 + tt) * 4
        accu = lambda ft, tt: ACC + 48 + (ft * 4 + tt) * 4
        LANE = 197
        a("v_mov_b32 v%d, v0" % LANE)
        a("s_and_b32 s67, s3, 1")
        a("s_lshr_b32 s68, s3, 1")
        VOX = 191
        a("v_lshrrev_b32 v%d, 3, v%d" % (T, LANE))
        a("s_lshl_b32 s69, s4, 7")
        a("s_lshl_b32 s70, s3, 5")
        a("s_add_u32 s69, s69, s70")
        a("v_add_u32 v%d, s69, v%d" % (T, T))
        a("s_movk_i32 s70, 1280")
        a("v_mul_lo_u32 v%d, v%d, s70" % (T, T))
        a("v_and_b32 v%d, 7, v%d" % (T + 1, LANE))
        a("v_lshrrev_b32 v%d, 4, v%d" % (T + 2, LANE))
        a("v_xor_b32 v%d, v%d, v%d" % (T + 3, T + 1, T + 2))
        a("v_xor_b32 v%d, 4, v%d" % (T + 4, T + 3))
        a("v_lshl_add_u32 v%d, v%d, 4, v%d" % (VOX, T + 3, T))
        a("v_lshl_add_u32 v%d, v%d, 4, v%d" % (VOX + 1, T + 4, T))
        a("s_lshl_b32 s75, s3, 12")
        VOW = 193
        a("s_lshl_b32 s69, s3, 4")
        a("s_mul_i32 s69, s69, 3072")
        a("s_mul_i32 s70, s5, 192")
        a("s_add_u32 s69, s69, s70")
        a("s_mov_b32 s70, 43691")
        a("s_movk_i32 s71, 3072")
        for i in range(3):
            a("v_add_u32 v%d, %d, v%d" % (T, 64 * i, LANE))
            a("v_mul_lo_u32 v%d, v%d, s70" % (T + 1, T))
            a("v_lshrrev_b32 v%d, 19, v%d" % (T + 1, T + 1))
            a("v_mul_u32_u24 v%d, 12, v%d" % (T + 2, T + 1))
            a("v_sub_u32 v%d, v%d, v%d" % (T + 2, T, T + 2))
            a("v_lshrrev_b32 v%d, 2, v%d" % (T + 3, T + 1))
            a("v_and_b32 v%d, 2, v%d" % (T + 3, T + 3))
            a("v_xor_b32 v%d, v%d, v%d" % (T + 2, T + 2, T + 3))
            a("v_mul_lo_u32 v%d, v%d, s71" % (T + 1, T + 1))
            a("v_lshl_add_u32 v%d, v%d, 4, v%d" % (T + 1, T + 2, T + 1))
            a("v_add_u32 v%d, s69, v%d" % (T + 1, T + 1))
            a("v_subrev_u32 v%d, %d, v%d" % (VOW + i, 1024 * i, T + 1))
        a("s_mul_i32 s76, s3, 3072")
        a("s_add_u32 s77, s76, %d" % ST_WU)
        a("s_add_u32 s76, s76, %d" % ST_WG)
        a("s_lshr_b32 s74, s5, 1")
        a("s_add_u32 s72, s74, 8")
        a("s_cmp_lt_u32 s5, 4")
        a("s_cselect_b32 s74, s72, s74")
        def xdma(st):
            base = (st % 3) * STAGE
            L = []
            for i in range(4):
                if i == 0:
                    L.append(("s_lshl_b32 s72, s74, 7", "s_mul_i32 s73, s74, 196608", "s_add_u32 s74, s74, 1",
                              "s_add_u32 m0, s75, %d" % base, "s_cmp_eq_u32 s74, 10", "s_cselect_b32 s74, 0, s74",
                              "buffer_load_dwordx4 v%d, s[8:11], s72 offen lds" % VOX))
                else:
                    L.append(("s_add_u32 s70, s72, %d" % (9216 * i),
                              "buffer_load_dwordx4 v%d, s[8:11], s70 offen offset:%d lds" % (VOX + (i & 1), 1024 * i)))
            for mat, sm, srd in ((0, 76, "s[12:15]"), (1, 77, "s[16:19]")):
                for i in range(3):
                    ld = "buffer_load_dwordx4 v%d, %s, s73 offen offset:%d lds" % (VOW + i, srd, 1024 * i)
                    if i == 0: L.append(("s_add_u32 m0, s%d, %d" % (sm, base), "s_nop 0", ld))
                    else: L.append(ld)
            return L
        a.ext(flat(xdma(0)))
        a.ext(flat(xdma(1)))
        a("s_barrier")
        a("v_and_b32 v%d, 15, v%d" % (T, LANE))
        a("v_lshrrev_b32 v%d, 4, v%d" % (T + 1, LANE))
        a("s_lshl_b32 s69, s67, 6")
        a("v_add_u32 v%d, s69, v%d" % (T + 2, T))
        a("v_lshlrev_b32 v%d, 7, v%d" % (T + 2, T + 2))
        a("v_lshrrev_b32 v%d, 1, v%d" % (T + 3, T))
        a("v_and_b32 v%d, 7, v%d" % (T + 3, T + 3))
        a("v_xor_b32 v%d, v%d, v%d" % (T + 3, T + 3, T + 1))
        a("v_xor_b32 v%d, 4, v%d" % (T + 4, T + 3))
        a("v_lshl_add_u32 v%d, v%d, 4, v%d" % (VXB, T + 3, T + 2))
        a("v_lshl_add_u32 v%d, v%d, 4, v%d" % (VXB + 1, T + 4, T + 2))
        for st in (1, 2):
            for s in range(2):
                a("v_add_u32 v%d, %d, v%d" % (VXB + 2 * st + s, st * STAGE, VXB + s))
        a("v_lshrrev_b32 v%d, 2, v%d" % (T + 2, T))
        a("v_lshl_add_u32 v%d, v%d, 3, v%d" % (T + 2, T + 1, T + 2))
        a("v_mul_u32_u24 v%d, 192, v%d" % (T + 2, T + 2))
        a("v_and_b32 v%d, 3, v%d" % (T + 3, LANE))
        a("v_lshl_add_u32 v%d, v%d, 3, v%d" % (T + 2, T + 3, T + 2))
        a("v_add_u32 v%d, %d, v%d" % (T + 2, ST_WG, T + 2))
        a("v_and_b32 v%d, 1, v%d" % (T + 3, T + 1))
        a("s_lshl_b32 s69, s68, 2")
        a("s_add_u32 s78, s69, 1")
        a("s_add_u32 s79, s68, 2")
        for ft, sreg in ((0, 69), (1, 78), (2, 79)):
            a("v_xor_b32 v%d, s%d, v%d" % (T + 4, sreg, T + 3))
            a("v_lshl_add_u32 v%d, v%d, 5, v%d" % (VWA + ft, T + 4, T + 2))
        for st in (1, 2):
            for ft in range(3):
                a("v_add_u32 v%d, %d, v%d" % (VWA + 3 * st + ft, st * STAGE, VWA + ft))
        a("v_lshlrev_b32 v%d, 4, v%d" % (VL16, LANE))
        a("s_lshl_b32 s69, s4, 1")
        a("s_add_u32 s69, s69, s67")
        a("s_mul_i32 s69, s69, 48")
        a("s_mul_i32 s78, s5, 3")
        a("s_add_u32 s69, s69, s78")
        a("s_lshl_b32 s78, s68, 1")
        a("s_add_u32 s78, s78, s69")
        a("s_lshl_b32 s78, s78, 12")
        a("s_add_u32 s79, s69, 1")
        a("s_lshl_b32 s79, s79, 12")
        a("s_lshl_b32 s69, s68, 9")
        a("s_add_u32 s79, s79, s69")
        a("v_lshlrev_b32 v%d, 3, v%d" % (VL16 + 2, LANE))
        if WS_H:
            a("s_add_u32 s78, s78, %d" % WS_H); a("s_add_u32 s79, s79, %d" % WS_H)

        def reads(kk, s, F):
            st = kk % 3
            xs = ["ds_read_b128 v[%d:%d], v%d offset:%d" % (F + 4 * tt, F + 4 * tt + 3, VXB + 2 * st + s, 2048 * tt) for tt in range(4)]
            ws = []
            for mat in range(2):
                for ft in range(3):
                    r = F + 16 + (mat * 3 + ft) * 4
                    for h in range(2):
                        ws.append("ds_read_b64_tr_b16 v[%d:%d], v%d offset:%d" % (r + 2 * h, r + 2 * h + 1, VWA + 3 * st + ft, 12288 * mat + 6144 * s + 768 * h))
            order = [xs[0], ws[0], ws[1], xs[1], ws[6], ws[7], xs[2], xs[3]] + ws[2:6] + ws[8:]
            return order
        def mfmas(F, first):
            L = []
            for ft in range(3):
                for mat in range(2):
                    for tt in range(4):
                        acc = accg(ft, tt) if mat == 0 else accu(ft, tt)
                        A = F + 16 + (mat * 3 + ft) * 4
                        B = F + 4 * tt
                        c = "0" if first else "v[%d:%d]" % (acc, acc + 3)
                        L.append("v_mfma_f32_16x16x32_bf16 v[%d:%d], v[%d:%d], v[%d:%d], %s" % (acc, acc + 3, A, A + 3, B, B + 3, c))
            return L
        def spread(mm, d, first, step):
            out = []; cnt = 0; di = 0
            for x in mm:
                out.append(x)
                if x.startswith("v_mfma"):
                    cnt += 1
                    if cnt >= first and (cnt - first) % step == 0 and di < len(d):
                        f = d[di]; di += 1
                        out.extend(f if isinstance(f, tuple) else (f,))
            assert di == len(d), (di, len(d))
            return out
        self.stamp(5)
        a("s_waitcnt vmcnt(10)")
        a("s_barrier")
        self.stamp(1)
        self.clk(1)
        a.ext(reads(0, 0, FP))
        a("s_waitcnt lgkmcnt(0)")
        pend = xdma(2)
        for kk in range(10):
            mm = interleave(mfmas(FP, kk == 0), reads(kk, 1, FQ), span=16)
            if pend: mm = spread(mm, pend, 2, 5 if len(pend) <= 5 else 2)
            a.ext(mm)
            if kk <= 7: a("s_waitcnt vmcnt(10) lgkmcnt(0)")
            elif kk == 8: a("s_waitcnt vmcnt(0) lgkmcnt(0)")
            else: a("s_waitcnt lgkmcnt(0)")
            a("s_barrier")
            if "kstamps" in self.ph and kk < 9: self.stamp(kk + 1, force=True)
            fill = reads(kk + 1, 0, FP) if kk + 1 < 10 else []
            mm = interleave(mfmas(FQ, False), fill, span=16)
            d = xdma(kk + 3) if kk + 3 < 10 else []
            pend = d[5:]
            if d: mm = spread(mm, d[:5], 2, 5)
            a.ext(mm)
            if kk + 1 < 10:
                a("s_waitcnt lgkmcnt(0)")
        self.stamp(2)
        self.clk(3)
        CN = FP; ONE = FP + 2
        a("v_mov_b32 v%d, 0xbfb8aa3b" % CN)
        a("v_mov_b32 v%d, 0xbfb8aa3b" % (CN + 1))
        a("v_mov_b32 v%d, 1.0" % ONE)
        a("v_mov_b32 v%d, 1.0" % (ONE + 1))
        grp = 0
        def silu(gregs, uregs, tmp, out):
            n = len(gregs)
            L = []
            for i in range(n): L.append("v_pk_mul_f32 v[%d:%d], v[%d:%d], v[%d:%d]" % (tmp + 2 * i, tmp + 2 * i + 1, gregs[i], gregs[i] + 1, CN, CN + 1))
            for i in range(2 * n): L.append("v_exp_f32 v%d, v%d" % (tmp + i, tmp + i))
            for i in range(n): L.append("v_pk_mul_f32 v[%d:%d], v[%d:%d], v[%d:%d]" % (gregs[i], gregs[i] + 1, gregs[i], gregs[i] + 1, uregs[i], uregs[i] + 1))
            for i in range(n): L.append("v_pk_add_f32 v[%d:%d], v[%d:%d], v[%d:%d]" % (tmp + 2 * i, tmp + 2 * i + 1, tmp + 2 * i, tmp + 2 * i + 1, ONE, ONE + 1))
            for i in range(2 * n): L.append("v_rcp_f32 v%d, v%d" % (tmp + i, tmp + i))
            if n < 2: L.append("s_nop 0")
            for i in range(n): L.append("v_pk_mul_f32 v[%d:%d], v[%d:%d], v[%d:%d]" % (gregs[i], gregs[i] + 1, gregs[i], gregs[i] + 1, tmp + 2 * i, tmp + 2 * i + 1))
            for i in range(n): L.append("v_cvt_pk_bf16_f32 v%d, v%d, v%d" % (out + i, gregs[i], gregs[i] + 1))
            return L
        for tt in range(4):
            tmp = FQ + (grp % 2) * 16; out = FP + 8 + (grp % 4) * 4; grp += 1
            g = [accg(0, tt), accg(0, tt) + 2, accg(1, tt), accg(1, tt) + 2]
            u = [accu(0, tt), accu(0, tt) + 2, accu(1, tt), accu(1, tt) + 2]
            a.ext(silu(g, u, tmp, out))
            a("buffer_store_dwordx4 v[%d:%d], v%d, s[20:23], s78 offen offset:%d sc1" % (out, out + 3, VL16, 1024 * tt))
            tmp = FQ + (grp % 2) * 16; out = FP + 8 + (grp % 4) * 4; grp += 1
            g = [accg(2, tt), accg(2, tt) + 2]
            u = [accu(2, tt), accu(2, tt) + 2]
            a.ext(silu(g, u, tmp, out))
            a("buffer_store_dwordx2 v[%d:%d], v%d, s[20:23], s79 offen offset:%d sc1" % (out, out + 1, VL16 + 2, 1024 * tt))
        self.stamp(3)
        if "g2" not in self.ph:
            a("s_waitcnt vmcnt(0)")
            self.stamp(4)

    def g_signal_h(self, nyounger):
        a = self.a
        T = 232
        a("s_waitcnt vmcnt(%d)" % nyounger)
        if self.fused():
            l = self.newlab("fh")
            a("v_mov_b32 v%d, %d" % (T, LDS_CNT))
            a("v_mov_b32 v%d, 1" % (T + 1))
            a("s_mov_b64 exec, 1")
            a("ds_add_rtn_u32 v%d, v%d, v%d" % (T + 2, T, T + 1))
            a("s_waitcnt lgkmcnt(0)")
            a("s_mov_b64 exec, -1")
            a("v_readfirstlane_b32 s69, v%d" % (T + 2))
            a("s_cmp_lg_u32 s69, 3")
            a("s_cbranch_scc1 %s" % l)
            a("s_lshl_b32 s69, s4, 5")
            a("s_add_u32 s69, s69, s5")
            a("s_lshl_b32 s69, s69, 2")
            a("s_add_u32 s69, s69, %d" % WS_FH)
            self.flag_set("s69", T)
            a.lab(l)
        self.stamp(4)

    def lds_inc(self, addr, vt):
        a = self.a
        a("v_mov_b32 v%d, %d" % (vt, addr))
        a("v_mov_b32 v%d, 1" % (vt + 1))
        a("s_mov_b64 exec, 1")
        a("ds_add_u32 v%d, v%d" % (vt, vt + 1))
        a("s_mov_b64 exec, -1")

    def lds_spin(self, addr, vt, val=1):
        a = self.a
        lp = self.newlab("ls"); ld = self.newlab("ld")
        a("v_mov_b32 v%d, %d" % (vt, addr))
        a("s_mov_b32 s69, 0")
        a.lab(lp)
        a("ds_read_b32 v%d, v%d" % (vt + 1, vt))
        a("s_waitcnt lgkmcnt(0)")
        a("v_readfirstlane_b32 s78, v%d" % (vt + 1))
        a("s_cmp_eq_u32 s78, %d" % val)
        a("s_cbranch_scc1 %s" % ld)
        a("s_add_u32 s69, s69, 1")
        a("s_cmp_lt_u32 s69, 0x400000")
        a("s_cbranch_scc0 %s" % ld)
        a("s_sleep 1")
        a("s_branch %s" % lp)
        a.lab(ld)

    def s_kgen_phase1(self):
        a = self.a
        NCH = 8
        chunks = [[] for _ in range(NCH)]
        if "ssm" in self.ph:
            a("s_lshl_b32 s50, s66, 8")
            a("s_add_u32 s50, s50, s2")
            a("s_min_u32 s50, s50, 639")
            self.kgen_bases()
            if "kghead" in self.ph:
                kg = self.capture(lambda: self.kgen("head"))
                per = (len(kg) + NCH - 1) // NCH
                chunks = [kg[i * per:(i + 1) * per] for i in range(NCH)]
        self.stamp(5)
        if "prioS" in self.ph: a("s_setprio 2")
        a("s_barrier")
        if "ssm" in self.ph and "kghead" in self.ph: self.ssm_param_loads(slots=(0,))
        a("s_barrier")
        self.stamp(1)
        for kk in range(10):
            a("s_barrier")
            if kk == 1 and "kghead" in self.ph: a("s_waitcnt vmcnt(0)")
            if kk == 7 and "ssm" in self.ph:
                if "kghead" in self.ph: self.ssm_param_loads(slots=(1, 2), scalars=False)
                else: self.ssm_param_loads()
                if self.fused(): self.u_look()
            if 1 <= kk <= NCH: a.ext(chunks[kk - 1])
        self.stamp(2)

    def side_setup(self):
        a = self.a
        a("s_mov_b32 s67, 52429")
        a("s_movk_i32 s68, 1280")
        for i in range(5):
            a("v_add_u32 v1, %d, v0" % (64 * i))
            a("v_mul_lo_u32 v2, v1, s67")
            a("v_lshrrev_b32 v2, 19, v2")
            a("v_mul_u32_u24 v3, 10, v2")
            a("v_sub_u32 v3, v1, v3")
            a("v_mul_lo_u32 v2, v2, s68")
            a("v_lshl_add_u32 v%d, v3, 4, v2" % (50 + i))
        a("v_lshrrev_b32 v1, 4, v0")
        a("v_and_b32 v2, 15, v0")
        a("v_lshrrev_b32 v3, 2, v2")
        a("v_lshl_add_u32 v4, v1, 2, v3")
        a("v_mul_u32_u24 v4, 160, v4")
        a("v_add_u32 v4, %d, v4" % LDS_KR)
        a("v_and_b32 v5, 3, v0")
        a("v_lshl_add_u32 v55, v5, 4, v4")
        a("v_lshl_add_u32 v56, v5, 3, v4")
        a("v_lshlrev_b32 v57, 4, v0")
        a("v_lshlrev_b32 v58, 2, v0")
        a("v_lshl_add_u32 v4, v1, 3, v3")
        a("v_lshlrev_b32 v4, 7, v4")
        a("v_bfe_u32 v5, v0, 1, 1")
        a("v_lshrrev_b32 v6, 1, v3")
        a("v_xor_b32 v5, v5, v6")
        a("v_lshl_add_u32 v4, v5, 4, v4")
        a("v_and_b32 v5, 1, v0")
        a("v_lshl_add_u32 v4, v5, 3, v4")
        a("v_and_b32 v5, 1, v1")
        a("v_lshl_add_u32 v59, v5, 6, v4")
        a("v_xor_b32 v5, 1, v5")
        a("v_lshl_add_u32 v60, v5, 6, v4")
        a("v_mul_u32_u24 v61, %d, v2" % ROWS)
        a("v_lshl_add_u32 v61, v1, 4, v61")
        a("s_add_u32 s51, s2, 128")
        a("s_cmp_ge_u32 s2, 128")
        a("s_cselect_b32 s51, s51, 999")
        a("s_lshr_b32 s52, s5, 1")
        a("s_add_u32 s53, s52, 8")
        a("s_cmp_lt_u32 s5, 4")
        a("s_cselect_b32 s53, s53, 99")
    def wd_load(self, ureg, scr):
        a = self.a
        a("s_lshr_b32 s67, %s, 3" % ureg)
        a("s_and_b32 s68, %s, 7" % ureg)
        a("s_mul_i32 s69, s67, %d" % (32 * 1280))
        a("s_mul_i32 s67, s68, 160")
        a("s_add_u32 s69, s69, s67")
        for i in range(5):
            a("s_mov_b32 m0, %d" % (LDS_KR + scr + 1024 * i))
            a("s_nop 0")
            a("buffer_load_dwordx4 v%d, s[28:31], s69 offen lds" % (50 + i))
    def wd_store(self, ureg, scr):
        a = self.a
        for dt in range(5):
            for h in range(2):
                if dt < 4: ad, off = 55, 64 * (dt >> 1) + 8 * (dt & 1) + 2560 * h
                else: ad, off = 56, 128 + 2560 * h
                a("ds_read_b64_tr_b16 v[%d:%d], v%d offset:%d" % (8 + 4 * dt + 2 * h, 9 + 4 * dt + 2 * h, ad, off + scr))
        a("s_lshr_b32 s67, %s, 3" % ureg)
        a("s_and_b32 s68, %s, 7" % ureg)
        a("s_mul_i32 s68, s68, 48")
        a("s_add_u32 s67, s67, s68")
        a("s_mul_i32 s67, s67, 5120")
        a("s_add_u32 s67, s67, %d" % WS_WD)
        a("s_add_u32 s68, s67, 4096")
        a("s_waitcnt lgkmcnt(0)")
        for dt in range(5):
            if dt < 4: a("buffer_store_dwordx4 v[%d:%d], v57, s[20:23], s67 offen offset:%d sc1" % (8 + 4 * dt, 11 + 4 * dt, 1024 * dt))
            else: a("buffer_store_dwordx4 v[%d:%d], v57, s[20:23], s68 offen sc1" % (8 + 4 * dt, 11 + 4 * dt))
    def gate_load(self):
        a = self.a
        a("v_and_b32 v1, 15, v0")
        a("v_lshlrev_b32 v1, 4, v1")
        for j in range(5):
            a("global_load_dwordx4 v[%d:%d], v1, s[%d:%d] offset:%d" % (8 + 4 * j, 11 + 4 * j, P_GW, P_GW + 1, 256 * j))
        a("v_lshrrev_b32 v2, 4, v0")
        a("s_movk_i32 s67, 1280")
        a("v_mul_lo_u32 v2, v2, s67")
        a("v_add_u32 v2, v2, v1")
        a("s_lshl_b32 s67, s2, 3")
        a("s_mul_i32 s67, s67, 1280")
        for half in range(2):
            for j in range(5):
                r = 28 + 20 * half + 4 * j
                a("buffer_load_dwordx4 v[%d:%d], v2, s[8:11], s67 offen offset:%d" % (r, r + 3, 256 * j))
            if half == 0: a("s_add_u32 s67, s67, %d" % (4 * 1280))
    def gate_compute(self):
        a = self.a
        R = 68
        for i in range(4): a("v_mov_b32 v%d, 0" % (R + i))
        for j in range(5):
            for e in range(4):
                for half in range(2):
                    acc = R + half + 2 * (e & 1)
                    a("v_dot2_f32_bf16 v%d, v%d, v%d, v%d" % (acc, 28 + 20 * half + 4 * j + e, 8 + 4 * j + e, acc))
        a("s_nop 2")
        a("v_add_f32 v%d, v%d, v%d" % (R, R, R + 2))
        a("v_add_f32 v%d, v%d, v%d" % (R + 1, R + 1, R + 3))
        a("s_nop 0")
        for ctl in ("row_shr:1", "row_shr:2", "row_shr:4", "row_shr:8"):
            for i in range(2):
                a("v_add_f32_dpp v%d, v%d, v%d %s row_mask:0xf bank_mask:0xf bound_ctrl:1" % (R + i, R + i, R + i, ctl))
            a("s_nop 0")
        for i in range(2): a("v_mul_f32 v%d, 0xbfb8aa3b, v%d" % (R + i, R + i))
        for i in range(2): a("v_exp_f32 v%d, v%d" % (R + i, R + i))
        a("s_nop 0")
        for i in range(2): a("v_add_f32 v%d, 1.0, v%d" % (R + i, R + i))
        for i in range(2): a("v_rcp_f32 v%d, v%d" % (R + i, R + i))
        a("s_lshl_b32 s67, s2, 5")
        a("s_add_u32 s67, s67, %d" % WS_G)
        a("v_lshrrev_b32 v1, 4, v0")
        a("v_lshlrev_b32 v1, 2, v1")
        a("s_mov_b32 exec_lo, 0x80008000")
        a("s_mov_b32 exec_hi, 0x80008000")
        a("buffer_store_dword v%d, v1, s[20:23], s67 offen sc1" % R)
        a("buffer_store_dword v%d, v1, s[20:23], s67 offen offset:16 sc1" % (R + 1))
        a("s_mov_b64 exec, -1")
    def ut_read(self, chunk_reg, stage_base, H):
        a = self.a
        a("s_and_b32 s67, %s, 1" % chunk_reg)
        a("s_cmp_eq_u32 s67, 0")
        a("s_cselect_b64 vcc, -1, 0")
        a("s_nop 0")
        a("v_cndmask_b32 v4, v60, v59, vcc")
        a("v_add_u32 v4, %d, v4" % stage_base)
        for aa in range(2):
            for it in range(4):
                for hh in range(2):
                    r = H + (aa * 4 + it) * 4 + 2 * hh
                    a("ds_read_b64_tr_b16 v[%d:%d], v4 offset:%d" % (r, r + 1, 4096 * it + 512 * hh + 32 * (aa ^ hh)))
        a("s_waitcnt lgkmcnt(0)")
    def ut_store(self, chunk_reg, H):
        a = self.a
        a("s_mul_i32 s67, %s, %d" % (chunk_reg, 32 * ROWS))
        a("s_lshl_b32 s68, s4, 8")
        a("s_add_u32 s67, s67, s68")
        a("s_add_u32 s67, s67, %d" % WS_UT)
        a("s_add_u32 s68, s67, %d" % (16 * ROWS))
        for aa in range(2):
            for it in range(4):
                r = H + (aa * 4 + it) * 4
                a("buffer_store_dwordx4 v[%d:%d], v61, s[20:23], s%d offen offset:%d sc1" % (r, r + 3, 67 + aa, 64 * it))

    def pretouch(self):
        a = self.a
        a("v_and_b32 v1, 7, v0")
        a("v_lshlrev_b32 v1, 21, v1")
        a("buffer_load_dword v63, v1, s[20:23], 0 offen")
        a("v_and_b32 v1, 1, v0")
        a("v_lshlrev_b32 v1, 21, v1")
        a("buffer_load_dword v63, v1, s[24:27], 0 offen")
    def s_side(self):
        a = self.a
        if "noside" in self.ph:
            for b in range(12): a("s_barrier")
            return
        HA, HB = 100, 132
        def cond_b(fn):
            l = self.newlab("wb")
            a("s_cmp_ge_u32 s51, 384")
            a("s_cbranch_scc1 %s" % l)
            fn()
            a.lab(l)
        self.side_setup()
        a("s_add_u32 s50, s5, 16")
        a("s_cmp_lt_u32 s5, 4")
        a("s_cselect_b32 s50, s50, s5")
        if self.fused():
            a("v_mov_b32 v1, %d" % LDS_CNT)
            a("v_mov_b32 v2, 0")
            a("v_mov_b32 v3, 0")
            a("ds_write_b64 v1, v[2:3]")
            a("ds_write_b64 v1, v[2:3] offset:8")
            a("ds_write_b32 v1, v2 offset:16")
        self.stamp(5)
        a("s_barrier")
        if self.fused(): self.nonce_load()
        self.wd_load("s2", 0)
        cond_b(lambda: self.wd_load("s51", 5120))
        a("s_barrier")
        self.stamp(1)
        self.ut_read("s50", 0, HA)
        def uflag(creg):
            a("s_lshl_b32 s69, %s, 5" % creg)
            a("s_add_u32 s69, s69, s4")
            a("s_lshl_b32 s69, s69, 2")
            a("s_add_u32 s69, s69, %d" % WS_FU)
            self.flag_set("s69", 2)
        for kk in range(10):
            a("s_barrier")
            if kk == 1:
                l = self.newlab("ut")
                a("s_cmp_ge_u32 s5, 4")
                a("s_cbranch_scc1 %s" % l)
                self.ut_read("s5", 2 * STAGE, HB)
                a.lab(l)
            if kk == 2:
                self.ut_store("s50", HA)
            if kk == 4:
                l = self.newlab("ut")
                a("s_cmp_ge_u32 s5, 4")
                a("s_cbranch_scc1 %s" % l)
                self.ut_store("s5", HB)
                a.lab(l)
            if kk == 1:
                a("s_waitcnt vmcnt(0)")
                if self.fused(): self.nonce_publish_local()
                self.wd_store("s2", 0)
            if kk == 3:
                cond_b(lambda: self.wd_store("s51", 5120))
            if kk == 6 and self.fused():
                a("s_waitcnt vmcnt(0)")
                uflag("s50")
                l = self.newlab("ut")
                a("s_cmp_ge_u32 s5, 4")
                a("s_cbranch_scc1 %s" % l)
                uflag("s5")
                a.lab(l)
                def wflag(ureg):
                    a("s_and_b32 s68, %s, 7" % ureg)
                    a("s_lshl_b32 s68, s68, 8")
                    a("s_lshr_b32 s69, %s, 3" % ureg)
                    a("s_lshl_b32 s69, s69, 2")
                    a("s_add_u32 s69, s69, s68")
                    a("s_add_u32 s69, s69, %d" % WS_FW)
                    self.flag_set("s69", 2)
                wflag("s2")
                cond_b(lambda: wflag("s51"))
        self.stamp(2)
        if self.fused():
            a("s_lshl_b32 s78, s7, 8")
            a("s_add_u32 s78, s78, %d" % WS_FW)
            self.poll_line("s78", 48, 2, sleep=4)
            a("v_mov_b32 v1, %d" % LDS_WOK)
            a("v_mov_b32 v2, 1")
            a("ds_write_b32 v1, v2")
        self.stamp(3)
        self.gate_load()
        a("s_waitcnt vmcnt(0)")
        self.gate_compute()
        a("s_waitcnt vmcnt(0)")
        if self.fused():
            a("s_lshl_b32 s69, s2, 2")
            a("s_add_u32 s69, s69, %d" % WS_FG)
            self.flag_set("s69", 2)
        self.stamp(4)

    def s_phase1(self):
        a = self.a
        n = self.name
        a("s_sub_u32 s66, s3, 4")
        a("s_cmp_eq_u32 s66, 3")
        a("s_cbranch_scc1 %s_sj" % n)
        self.s_kgen_phase1()
        a("s_branch %s_p1done" % n)
        a.lab("%s_sj" % n)
        self.s_side()
        a.lab("%s_p1done" % n)

    def ssm_param_loads(self, slots=(0, 1, 2), scalars=True):
        a = self.a
        a("s_mul_i32 s67, s50, 384")
        a("v_lshl_add_u32 v1, v0, 1, s67")
        for sl in slots:
            for k, p in enumerate((P_ARE, P_AIM, P_BRE, P_BIM, P_CRE, P_CIM)):
                a("global_load_ushort v%d, v1, s[%d:%d] offset:%d" % (200 + 6 * sl + k, p, p + 1, 128 * sl))
        if scalars:
            a("s_lshl_b32 s67, s50, 1")
            a("v_mov_b32 v223, s67")
            a("global_load_ushort v218, v223, s[%d:%d]" % (P_LDT, P_LDT + 1))
            a("global_load_ushort v219, v223, s[%d:%d]" % (P_DSK, P_DSK + 1))

    def kgen_bases(self):
        a = self.a
        a("s_mul_i32 s51, s66, %d" % TAB_SZ)
        a("s_add_u32 s51, s51, %d" % LDS_TAB)
        a("s_mul_i32 s52, s66, %d" % KR_SZ)
        a("s_add_u32 s52, s52, %d" % LDS_KR)

    def kgen(self, part="all"):
        a = self.a
        if part == "all": self.kgen_bases()
        self._kgen_body(part)

    def _kgen_body(self, part):
        a = self.a
        head = part in ("all", "head", "rest"); tail = part in ("all", "tail", "rest")
        real_a = a
        if not head: a = Asm()
        a("v_and_b32 v4, 15, v0")
        a("v_lshrrev_b32 v5, 4, v0")
        a("v_mul_u32_u24 v2, %d, v4" % TABROW)
        a("v_lshl_add_u32 v2, v5, 6, v2")
        a("v_add_u32 v2, s51, v2")
        a("v_and_b32 v6, 1, v5")
        a("v_lshl_add_u32 v3, v6, 3, v2")
        a("v_xor_b32 v6, 1, v6")
        a("v_lshl_add_u32 v2, v6, 3, v2")
        a("s_mov_b32 m0, s51")
        a("s_nop 0")
        if part == "all" or (part == "rest" and not self.fused()): a("s_waitcnt vmcnt(0)")
        a("v_lshlrev_b32 v218, 16, v218")
        a("v_lshlrev_b32 v219, 16, v219")
        a("v_mul_f32 v6, 0x3fb8aa3b, v218")
        a("s_mov_b32 s67, 0x3fb8aa3b")
        a("v_fma_f32 v7, v218, s67, -v6")
        a("v_fmac_f32 v7, 0x32a57060, v218")
        a("v_exp_f32 v6, v6")
        a("v_mul_f32 v7, 0x3f317218, v7")
        a("v_fma_f32 v6, v6, v7, v6")
        a("v_cvt_pk_bf16_f32 v6, v6, v6")
        a("v_lshlrev_b32 v218, 16, v6")
        W1, W16, W256, W512, W768, W1024 = 10, 12, 14, 16, 18, 20
        WX = 22
        CB = 24
        Y = 26; P = 28; TMP1 = 30; TMP2 = 32; TMP3 = 34
        PK = 36
        V = 50
        CV = 66
        YF = 76
        AF = 92
        ACC = 108
        nopk = (part == "head") and ("pkhead" not in self.ph)
        def cmul(out, x, w, t):
            if nopk:
                return ["v_mul_f32 v%d, v%d, v%d" % (t, x + 1, w + 1),
                        "v_mul_f32 v%d, v%d, v%d" % (t + 1, x, w + 1),
                        "v_fma_f32 v%d, v%d, v%d, -v%d" % (out, x, w, t),
                        "v_fma_f32 v%d, v%d, v%d, v%d" % (out + 1, x + 1, w, t + 1)]
            return ["v_pk_mul_f32 v[%d:%d], v[%d:%d], v[%d:%d] op_sel:[0,0] op_sel_hi:[0,1]" % (t, t + 1, x, x + 1, w, w + 1),
                    "v_pk_fma_f32 v[%d:%d], v[%d:%d], v[%d:%d], v[%d:%d] op_sel:[1,1,0] op_sel_hi:[1,0,1] neg_lo:[1,0,0]" % (out, out + 1, x, x + 1, w, w + 1, t, t + 1)]
        def zipl(*ls):
            o = []
            for i in range(max(len(l) for l in ls)):
                for l in ls:
                    if i < len(l): o.append(l[i])
            return o
        cvn = [0, 0]
        def wr(val, tile, row, neg, bank=0):
            c = CV + 4 * bank + (cvn[bank] % 4); cvn[bank] += 1
            return ["v_cvt_pk_bf16_f32 v%d, v%d, %sv%d" % (c, val, "-" if neg else "", val + 1),
                    "ds_write_addtid_b32 v%d offset:%d" % (c, tile * TABTILE + row * TABROW)]
        def frag_reads(dst, tile):
            L = []
            for kk in range(4):
                L.append("ds_read_b64 v[%d:%d], v3 offset:%d" % (dst + 4 * kk, dst + 4 * kk + 1, tile * TABTILE + 16 * kk))
                L.append("ds_read_b64 v[%d:%d], v2 offset:%d" % (dst + 4 * kk + 2, dst + 4 * kk + 3, tile * TABTILE + 16 * kk))
            return L
        def mm(t, first):
            L = []
            for kk in range(4):
                c = "0" if (first and kk == 0) else "v[%d:%d]" % (ACC + 4 * t, ACC + 4 * t + 3)
                L.append("v_mfma_f32_16x16x32_bf16 v[%d:%d], v[%d:%d], v[%d:%d], %s" % (ACC + 4 * t, ACC + 4 * t + 3, AF + 4 * kk, AF + 4 * kk + 3, YF + 4 * kk, YF + 4 * kk + 3, c))
            return L
        a = real_a
        slots = [0, 1, 2] if part in ("all", "rest") else ([0] if part == "head" else [1, 2])
        for sl in slots:
            if sl == 1 and part == "tail" and not self.fused(): a("s_waitcnt vmcnt(0)")
            if sl == 2 and "prioT" in self.ph: a("s_setprio 2")
            if sl == 2: self.stamp(3)
            pr = 200 + 6 * sl
            for k in range(6): a("v_lshlrev_b32 v%d, 16, v%d" % (pr + k, pr + k))
            a("v_mul_f32 v6, v218, v%d" % pr)
            a("v_mul_f32 v7, v218, v%d" % (pr + 1))
            a("v_mul_f32 v6, 0x3fb8aa3b, v6")
            a("v_mul_f32 v7, 0.15915494, v7")
            a("v_mul_f32 v8, v218, v%d" % (pr + 2))
            a("v_mul_f32 v9, v218, v%d" % (pr + 3))
            a.ext(cmul(CB, pr + 4, 8, TMP1))
            for w, k in ((W1, 1.0), (W16, 16.0), (W256, 256.0)):
                if k == 1.0:
                    a("v_exp_f32 v%d, v6" % TMP2)
                    a("v_fract_f32 v%d, v7" % TMP3)
                else:
                    lit = "0x41800000" if k == 16.0 else "0x43800000"
                    a("v_mul_f32 v%d, %s, v6" % (TMP2, lit))
                    a("v_mul_f32 v%d, %s, v7" % (TMP3, lit))
                    a("v_exp_f32 v%d, v%d" % (TMP2, TMP2))
                    a("v_fract_f32 v%d, v%d" % (TMP3, TMP3))
                a("v_cos_f32 v%d, v%d" % (w, TMP3))
                a("v_sin_f32 v%d, v%d" % (w + 1, TMP3))
                a("s_nop 0")
                a("v_mul_f32 v%d, v%d, v%d" % (w, w, TMP2))
                a("v_mul_f32 v%d, v%d, v%d" % (w + 1, w + 1, TMP2))
            if sl != slots[0]:
                a("s_waitcnt lgkmcnt(0)")
                a.ext(pend_mm2)
            LY = ["v_mov_b32 v%d, v%d" % (Y, CB), "v_mov_b32 v%d, v%d" % (Y + 1, CB + 1)] + wr(Y, 0, 0, False)
            for j in range(1, 16):
                LY += cmul(Y, Y, W16, TMP1) + wr(Y, 0, j, False)
            LA = ["v_mov_b32 v%d, 1.0" % P, "v_mov_b32 v%d, 0" % (P + 1)] + wr(P, 1, 0, True, 1)
            cur = P
            for r in range(1, 16):
                if r == 1:
                    LA += ["v_mov_b32 v%d, v%d" % (P, W1), "v_mov_b32 v%d, v%d" % (P + 1, W1 + 1)]
                    cur = P
                else:
                    dst = PK + 2 * (r // 2 - 1) if r % 2 == 0 else P
                    LA += cmul(dst, cur, W1, TMP2)
                    cur = dst
                LA += wr(cur, 1, r, True, 1)
            a.ext(zipl(LY, LA))
            a.ext(cmul(W512, W256, W256, TMP1))
            a.ext(frag_reads(YF, 0)); a.ext(frag_reads(AF, 1))
            a.ext(zipl(cmul(W768, W512, W256, TMP1), cmul(W1024, W512, W512, TMP2)))
            def pk(i): return PK + 2 * (i // 2 - 1)
            vals = []
            A2 = []
            regs = []
            for r in range(8):
                if r == 0: regs.append(W256)
                else:
                    dst = V + 2 * (r - 1) if r < 8 else None
                    A2.append(cmul(dst, pk(2 * r), W256, TMP1 if r % 2 else TMP2)); regs.append(dst)
            a.ext(zipl(sum(A2[0::2], []), sum(A2[1::2], [])))
            a("s_waitcnt lgkmcnt(0)")
            m = mm(0, sl == 0)
            L = []
            for r in range(8): L += wr(regs[r], 1, r, True)
            a.ext(interleave(m, L))
            LA = []; LB = []
            for b in range(4):
                if b == 0:
                    LA += wr(W512, 1, 8, True); LB += wr(W768, 1, 12, True, 1)
                else:
                    LA += cmul(V, pk(4 * b), W512, TMP1) + wr(V, 1, 8 + b, True)
                    LB += cmul(V + 2, pk(4 * b), W768, TMP2) + wr(V + 2, 1, 12 + b, True, 1)
            a.ext(zipl(LA, LB))
            a.ext(frag_reads(AF, 1))
            a.ext(zipl(cmul(V, W1024, W256, TMP1), cmul(V + 2, W1024, W512, TMP2)))
            a.ext(zipl(cmul(V + 4, W1024, W768, TMP1), cmul(V + 6, W1024, W1024, TMP2)))
            ws = [W1024, V, V + 2, V + 4]
            a.ext(zipl(cmul(V + 8, ws[0], pk(8), TMP1), cmul(V + 10, ws[1], pk(8), TMP2)))
            a.ext(zipl(cmul(V + 12, ws[2], pk(8), TMP1), cmul(V + 14, ws[3], pk(8), TMP2)))
            a("s_waitcnt lgkmcnt(0)")
            m = mm(1, sl == 0)
            L = []
            for i in range(4):
                L += wr(ws[i], 1, 2 * i, True) + wr(V + 8 + 2 * i, 1, 2 * i + 1, True)
            L += wr(V + 6, 1, 8, True)
            a.ext(interleave(m, L))
            a.ext(frag_reads(AF, 1))
            pend_mm2 = mm(2, sl == 0)
            if sl == slots[-1]:
                a("s_waitcnt lgkmcnt(0)")
                a.ext(pend_mm2); pend_mm2 = None
        if not tail: return
        self.stamp(1)
        A0, A1, A2r = ACC, ACC + 4, ACC + 8
        a("v_cmp_eq_u32 vcc, 0, v0")
        a("v_and_b32 v4, 15, v0")
        a("v_lshrrev_b32 v5, 4, v0")
        a("v_cndmask_b32 v6, 0, v219, vcc")
        a("v_lshlrev_b32 v7, 5, v4")
        a("v_lshl_add_u32 v7, v5, 4, v7")
        a("v_lshlrev_b32 v8, 4, v4")
        a("v_lshl_add_u32 v8, v5, 8, v8")
        a("v_cmp_gt_u32 vcc, 2, v5")
        a("v_add_f32 v%d, v%d, v6" % (A0, A0))
        a("s_nop 0")
        a("v_cndmask_b32 v7, v8, v7, vcc")
        a("v_add_u32 v7, s51, v7")
        a("v_lshlrev_b32 v8, 3, v4")
        a("v_lshl_add_u32 v8, v5, 8, v8")
        a("v_add_u32 v8, s51, v8")
        a("s_nop 4")
        a("ds_write_b128 v7, v[%d:%d]" % (A1, A1 + 3))
        a("ds_write_b64 v8, v[%d:%d] offset:1024" % (A2r, A2r + 1))
        a("ds_write_b64 v8, v[%d:%d] offset:1152" % (A2r + 2, A2r + 3))
        a("v_cvt_pk_bf16_f32 v10, v%d, v%d" % (A0 + 3, A0 + 2))
        a("v_cvt_pk_bf16_f32 v11, v%d, v%d" % (A0 + 1, A0))
        a("v_lshlrev_b32 v9, 5, v4")
        a("v_lshl_add_u32 v9, v5, 3, v9")
        a("v_sub_u32 v9, 4088, v9")
        a("v_add_u32 v9, s52, v9")
        a("ds_write_b64 v9, v[10:11]")
        a("v_and_b32 v9, 31, v0")
        a("v_lshlrev_b32 v9, 2, v9")
        a("v_add_u32 v9, s52, v9")
        a("v_mov_b32 v12, 0")
        a("ds_write_b32 v9, v12 offset:4096")
        a("v_lshlrev_b32 v13, 4, v0")
        a("v_add_u32 v14, s51, v13")
        a("v_lshlrev_b32 v15, 3, v0")
        a("v_add_u32 v15, s51, v15")
        a("v_lshlrev_b32 v16, 2, v0")
        a("v_add_u32 v16, s51, v16")
        a("v_sub_u32 v13, s52, v13")
        a("s_waitcnt lgkmcnt(0)")
        a("ds_read_b128 v[20:23], v14")
        a("ds_read_b32 v24, v14 offset:16")
        a("ds_read_b64 v[26:27], v15 offset:512")
        a("ds_read_b32 v28, v15 offset:520")
        a("ds_read2_b32 v[30:31], v16 offset0:0 offset1:1")
        a.l.pop()
        a("v_add_u32 v17, 1024, v16")
        a("ds_read2_b32 v[30:31], v17 offset0:0 offset1:1")
        a("ds_read2_b32 v[32:33], v17 offset0:64 offset1:65")
        a("v_and_b32 v18, 1, v0")
        a("v_cmp_eq_u32 vcc, 1, v18")
        a("s_waitcnt lgkmcnt(0)")
        a("v_cvt_pk_bf16_f32 v36, v28, v28")
        a("v_cvt_pk_bf16_f32 v37, v27, v27")
        a("v_cvt_pk_bf16_f32 v38, v27, v26")
        a("v_cvt_pk_bf16_f32 v39, v26, v26")
        a("ds_write_b128 v13, v[36:39] offset:3056")
        for ps in range(2):
            v0_, v1_ = 30 + 2 * ps, 31 + 2 * ps
            o = 40 + 4 * ps
            a("v_cndmask_b32 v19, v%d, v%d, vcc" % (v0_, v1_))
            a("v_cvt_pk_bf16_f32 v%d, v%d, v%d" % (o, v1_, v1_))
            a("v_cvt_pk_bf16_f32 v%d, v%d, v19" % (o + 1, v1_))
            a("v_cvt_pk_bf16_f32 v%d, v%d, v%d" % (o + 2, v0_, v0_))
            a("v_mov_b32 v%d, v%d" % (o + 3, o + 2))
        a("ds_write_b128 v13, v[40:43] offset:2032")
        a("ds_write_b128 v13, v[44:47] offset:1008")
        a("v_cvt_pk_bf16_f32 v48, v24, v23")
        a("v_cvt_pk_bf16_f32 v49, v22, v22")
        a("v_cvt_pk_bf16_f32 v50, v22, v21")
        a("v_cvt_pk_bf16_f32 v51, v20, v20")
        a("s_mov_b32 exec_hi, 0")
        a("ds_write_b128 v13, v[48:51] offset:3568")
        a("s_mov_b32 exec_hi, -1")
        if "dumpk" in self.ph:
            a("s_waitcnt lgkmcnt(0)")
            a("v_lshlrev_b32 v13, 4, v0")
            a("v_add_u32 v14, s52, v13")
            a("s_mul_i32 s67, s50, 4224")
            a("s_add_u32 s67, s67, %d" % WS_DBG)
            for i in range(5):
                a("ds_read_b128 v[20:23], v14 offset:%d" % (1024 * i))
                a("s_waitcnt lgkmcnt(0)")
                if i == 4: a("s_mov_b32 exec_hi, 0"); a("s_mov_b32 exec_lo, 0xff")
                a("s_add_u32 s68, s67, %d" % (1024 * i))
                a("buffer_store_dwordx4 v[20:23], v13, s[20:23], s68 offen")
                a("s_waitcnt vmcnt(0)")
            a("s_mov_b64 exec, -1")

    def u_look(self):
        a = self.a
        self.nonce_read(120)
        a("s_lshr_b32 s78, s50, 5")
        a("s_lshl_b32 s78, s78, 7")
        a("s_add_u32 s78, s78, %d" % WS_FU)
        a("v_and_b32 v120, 15, v0")
        a("v_lshlrev_b32 v120, 2, v120")
        a("buffer_load_dword v121, v120, s[20:23], s78 offen sc1")
    def u_prefetch(self):
        a = self.a
        l = self.newlab("uok")
        a("s_waitcnt vmcnt(0)")
        a("v_cmp_eq_u32 vcc, s64, v121")
        a("s_nop 1")
        a("s_cmp_eq_u64 vcc, -1")
        a("s_cbranch_scc1 %s" % l)
        self.poll_line("s78", 16, 120, sleep=4)
        a.lab(l)
        self.conv_loads()
        self.lds_inc(LDS_UOK, 152)

    def conv_loads(self):
        a = self.a
        a("s_mul_i32 s67, s50, %d" % ROWS)
        a("s_add_u32 s67, s67, %d" % (WS_UT - 4))
        a("v_lshlrev_b32 v1, 2, v0")
        for i in range(16):
            a("buffer_load_dwordx2 v[%d:%d], v1, s[20:23], s67 offen offset:%d sc1" % (120 + 2 * i, 121 + 2 * i, 256 * i))

    def conv(self):
        a = self.a
        D = 120
        a("s_mul_i32 s53, s66, %d" % UC_SZ)
        if LDS_UC: a("s_add_u32 s53, s53, %d" % LDS_UC)
        a("s_mov_b32 m0, s53")
        a("v_mov_b32 v2, 0")
        for b in range(4):
            a("ds_write_addtid_b32 v2 offset:%d" % (b * UC_STRIDE))
            a("ds_write_addtid_b32 v2 offset:%d" % (b * UC_STRIDE + 33 * 4))
        a("v_cmp_eq_u32 vcc, 0, v0")
        a("s_waitcnt vmcnt(0)")
        a("v_cndmask_b32 v%d, v%d, v2, vcc" % (D, D))
        for i in range(16):
            lo, hi = D + 2 * i, D + 2 * i + 1
            o = 4 + (i % 4)
            a("v_alignbit_b32 v%d, v%d, v%d, 16" % (o, hi, lo))
            a("ds_write_addtid_b32 v%d offset:%d" % (hi, 3 * UC_STRIDE + 4 * (64 * i + 96)))
            a("ds_write_addtid_b32 v%d offset:%d" % (hi, 1 * UC_STRIDE + 4 * (64 * i + 97)))
            a("ds_write_addtid_b32 v%d offset:%d" % (o, 2 * UC_STRIDE + 4 * (64 * i + 96)))
            a("ds_write_addtid_b32 v%d offset:%d" % (o, 0 * UC_STRIDE + 4 * (64 * i + 97)))
        VU, VK = 8, 9
        a("v_and_b32 v4, 3, v0")
        a("v_mul_u32_u24 v4, %d, v4" % UC_STRIDE)
        a("v_bfe_u32 v5, v0, 2, 2")
        a("v_lshl_add_u32 v4, v5, 7, v4")
        a("v_lshrrev_b32 v5, 4, v0")
        a("v_lshl_add_u32 v4, v5, 4, v4")
        a("v_add_u32 v%d, s53, v4" % VU)
        a("v_and_b32 v6, 15, v0")
        a("v_lshlrev_b32 v7, 3, v6")
        a("v_sub_u32 v7, 120, v7")
        a("v_lshl_add_u32 v7, v5, 4, v7")
        a("v_add_u32 v%d, s52, v7" % VK)
        a("v_lshlrev_b32 v10, 3, v6")
        a("v_lshl_add_u32 v10, v5, 7, v10")
        ACC = 16; SETS = [48, 112]
        def reads(rho, S):
            L = []
            for z in range(8):
                L.append("ds_read_b128 v[%d:%d], v%d offset:%d" % (S + 4 * z, S + 4 * z + 3, VU, 512 * z + 64 * (7 - rho)))
                zz = 8 * z + rho
                L.append("ds_read_b64 v[%d:%d], v%d offset:%d" % (S + 32 + 4 * z, S + 33 + 4 * z, VK, 64 * (63 - zz)))
                L.append("ds_read_b64 v[%d:%d], v%d offset:%d" % (S + 34 + 4 * z, S + 35 + 4 * z, VK, 64 * (63 - zz) + 8))
            return L
        def mm(rho, S):
            L = []
            for ze in range(8):
                for nu in range(8 - ze):
                    n = ze + nu
                    c = "0" if (rho == 0 and ze == 0) else "v[%d:%d]" % (ACC + 4 * n, ACC + 4 * n + 3)
                    L.append("v_mfma_f32_16x16x32_bf16 v[%d:%d], v[%d:%d], v[%d:%d], %s" % (ACC + 4 * n, ACC + 4 * n + 3, S + 4 * nu, S + 4 * nu + 3, S + 32 + 4 * ze, S + 35 + 4 * ze, c))
            return L
        a("s_waitcnt lgkmcnt(0)")
        self.stamp(4)
        a.ext(reads(0, SETS[0]))
        a("s_waitcnt lgkmcnt(0)")
        for rho in range(8):
            fill = reads(rho + 1, SETS[(rho + 1) & 1]) if rho < 7 else []
            a.ext(interleave(mm(rho, SETS[rho & 1]), fill, span=28))
            if rho < 7: a("s_waitcnt lgkmcnt(0)")
        self.stamp(7)
        a("s_mul_i32 s67, s50, %d" % ROWS)
        a("s_add_u32 s67, s67, %d" % WS_Y)
        a("s_nop 7")
        for n in range(8):
            o = 48 + 2 * n
            a("v_cvt_pk_bf16_f32 v%d, v%d, v%d" % (o, ACC + 4 * n, ACC + 4 * n + 1))
            a("v_cvt_pk_bf16_f32 v%d, v%d, v%d" % (o + 1, ACC + 4 * n + 2, ACC + 4 * n + 3))
            a("buffer_store_dwordx2 v[%d:%d], v10, s[20:23], s67 offen offset:%d sc1" % (o, o + 1, 512 * n))

    def s_ssm(self):
        a = self.a
        n = self.name
        a("s_sub_u32 s66, s3, 4")
        a("s_lshl_b32 s50, s66, 8")
        a("s_add_u32 s50, s50, s2")
        a("s_cmp_ge_u32 s66, 3")
        a("s_cbranch_scc1 %s_ssm_done" % n)
        if self.fused():
            l = self.newlab("nch")
            a("s_cmp_lt_u32 s50, 640")
            a("s_cbranch_scc1 %s" % l)
            self.lds_inc(LDS_UOK, 152)
            a("s_branch %s_ssm_done" % n)
            a.lab(l)
        else:
            a("s_cmp_ge_u32 s50, 640")
            a("s_cbranch_scc1 %s_ssm_done" % n)
        if self.fused() and "g1" in self.ph:
            self.u_prefetch()
            self.stamp(5)
        if "g1" not in self.ph:
            self.stamp(5)
            self.ssm_param_loads()
            self.kgen("all")
        elif "kghead" in self.ph:
            self.kgen("tail")
        else:
            self.kgen("rest")
        self.stamp(6)
        if not self.fused():
            self.conv_loads()
        self.conv()
        if "prioT" in self.ph: a("s_setprio 0")
        a("s_waitcnt vmcnt(0)")
        if self.fused():
            a("s_lshl_b32 s69, s50, 2")
            a("s_add_u32 s69, s69, %d" % WS_FY)
            self.flag_set("s69", 2)
        self.stamp(8)
        a.lab("%s_ssm_done" % n)

    def g_gemm2(self):
        a = self.a
        ACC = 0
        SETS = [80, 116, 152, 188]
        VB = 224
        VL = 228
        VB8 = 246
        T = 230
        acc = lambda dt, tau: ACC + (dt * 4 + tau) * 4
        a("v_mbcnt_lo_u32_b32 v%d, -1, 0" % T)
        a("v_mbcnt_hi_u32_b32 v%d, -1, v%d" % (T, T))
        a("v_lshlrev_b32 v%d, 4, v%d" % (VL, T))
        for tau in range(4):
            a("s_add_u32 s67, s3, %d" % tau)
            a("s_and_b32 s67, s67, 3")
            a("s_lshl_b32 s67, s67, 10")
            a("v_add_u32 v%d, s67, v%d" % (VB + tau, VL))
            a("v_lshlrev_b32 v%d, 3, v%d" % (VB8 + tau, T))
            a("v_add_u32 v%d, s67, v%d" % (VB8 + tau, VB8 + tau))
        a("s_mul_i32 s70, s6, 48")
        a("s_mul_i32 s67, s3, 12")
        a("s_add_u32 s70, s70, s67")
        a("s_lshl_b32 s70, s70, 12")
        if WS_H: a("s_add_u32 s70, s70, %d" % WS_H)
        a("s_mul_i32 s71, s7, 48")
        a("s_add_u32 s71, s71, s67")
        a("s_mul_i32 s71, s71, 5120")
        a("s_add_u32 s71, s71, %d" % WS_WD)
        a("s_add_u32 s72, s71, 4096")
        def loadsA(S):
            L = []
            for dt in range(5):
                if dt < 4: L.append("buffer_load_dwordx4 v[%d:%d], v%d, s[20:23], s71 offen offset:%d sc1" % (S + 16 + 4 * dt, S + 19 + 4 * dt, VL, 1024 * dt))
                else: L.append(("buffer_load_dwordx4 v[%d:%d], v%d, s[20:23], s72 offen sc1" % (S + 16 + 4 * dt, S + 19 + 4 * dt, VL),
                                "s_add_u32 s71, s71, 5120", "s_add_u32 s72, s72, 5120"))
            return L
        def loadsB(S, k):
            L = []
            for tau in range(4):
                if k % 3 == 1:
                    x = ("buffer_load_dwordx2 v[%d:%d], v%d, s[20:23], s70 offen sc1" % (S + 4 * tau, S + 4 * tau + 1, VB8 + tau),
                         "buffer_load_dwordx2 v[%d:%d], v%d, s[20:23], s70 offen offset:512 sc1" % (S + 4 * tau + 2, S + 4 * tau + 3, VB8 + tau))
                else:
                    x = ("buffer_load_dwordx4 v[%d:%d], v%d, s[20:23], s70 offen sc1" % (S + 4 * tau, S + 4 * tau + 3, VB + tau),)
                L.append(x if tau < 3 else x + ("s_add_u32 s70, s70, 4096",))
            return L
        nB = lambda k: 8 if k % 3 == 1 else 4
        def mm(S, first):
            L = []
            for dt in range(5):
                for tau in range(4):
                    c = "0" if first else "v[%d:%d]" % (acc(dt, tau), acc(dt, tau) + 3)
                    L.append("v_mfma_f32_16x16x32_bf16 v[%d:%d], v[%d:%d], v[%d:%d], %s" % (acc(dt, tau), acc(dt, tau) + 3, S + 16 + 4 * dt, S + 19 + 4 * dt, S + 4 * tau, S + 4 * tau + 3, c))
            return L
        NS = 12
        pre = "g1" in self.ph and "nopre" not in self.ph
        def red_slot(tau):
            a("s_add_u32 s67, s3, %d" % tau)
            a("s_and_b32 s67, s67, 3")
            a("s_mul_i32 s67, s67, 3")
            a("s_add_u32 s67, s67, %d" % (tau - 1))
            a("s_mul_i32 s67, s67, 5120")
            a("s_add_u32 s67, s67, %d" % LDS_RED)
        VRS = 250
        for tau in range(1, 4):
            red_slot(tau)
            a("v_add_u32 v%d, s67, v%d" % (VRS + tau - 1, VL))
            a("s_mov_b32 s%d, s67" % (72 + tau))
        if "g1" in self.ph:
            if self.fused(): self.nonce_read(232)
            self.g_signal_h(0)
        if pre:
            if self.fused():
                self.lds_spin(LDS_WOK, 232)
                self.lds_spin(LDS_UOK, 232, 3)
            for k in range(4):
                a.ext(flat(loadsA(SETS[k])))
            for tau in range(1, 4):
                a("s_mov_b32 m0, s%d" % (72 + tau))
                a("s_nop 0")
                for dt in range(4):
                    a("buffer_load_dwordx4 v%d, s[20:23], s71 offen offset:%d sc1 lds" % (VL, 1024 * dt))
                a("s_add_u32 m0, s%d, 4096" % (72 + tau))
                a("s_add_u32 s71, s71, 5120")
                a("buffer_load_dwordx4 v%d, s[20:23], s72 offen sc1 lds" % VL)
                a("s_add_u32 s72, s72, 5120")
        self.g2_wait_inputs()
        self.stamp(5)
        self.clk(5)
        def srcA(k):
            if not pre: return "g"
            return "pre" if k < 4 else ("lds" if k < 7 else "g")
        def loadA_any(k):
            S = SETS[k % 4]
            if srcA(k) == "g": return loadsA(S)
            if srcA(k) == "lds":
                return ["ds_read_b128 v[%d:%d], v%d offset:%d" % (S + 16 + 4 * dt, S + 19 + 4 * dt, VRS + k - 4, 1024 * dt) for dt in range(5)]
            return []
        nL = lambda k: nB(k) + (5 if srcA(k) == "g" else 0)
        for k in range(3):
            a.ext(flat(loadsB(SETS[k], k) + loadA_any(k)))
        for k in range(NS):
            rem = sum(nL(j) for j in range(k + 1, min(NS - 1, k + 2) + 1))
            if srcA(k) == "lds": a("s_waitcnt vmcnt(%d) lgkmcnt(0)" % rem)
            else: a("s_waitcnt vmcnt(%d)" % rem)
            fill = (loadsB(SETS[(k + 3) % 4], k + 3) + loadA_any(k + 3)) if k + 3 < NS else []
            if "k2stamps" in self.ph and k < 9: self.stamp(k + 1, force=True)
            a.ext(interleave(mm(SETS[k % 4], k == 0), fill))
            if k + 3 == NS - 1 and self.fused(): self.lds_inc(LDS_GOK, 232)
        self.stamp(6)
        self.clk(7)
        a("s_nop 7")
        for tau in range(1, 4):
            for dt in range(5):
                a("ds_write_b128 v%d, v[%d:%d] offset:%d" % (VRS + tau - 1, acc(dt, tau), acc(dt, tau) + 3, 1024 * dt))
        a("s_waitcnt lgkmcnt(0)")
        a("s_barrier")
        self.stamp(7)
        a("s_mul_i32 s67, s3, %d" % (3 * 5120))
        a("s_add_u32 s67, s67, %d" % LDS_RED)
        a("v_add_u32 v%d, s67, v%d" % (T + 1, VL))
        R = 80
        for j in range(3):
            for dt in range(5):
                r = R + (j * 5 + dt) * 4
                a("ds_read_b128 v[%d:%d], v%d offset:%d" % (r, r + 3, T + 1, 5120 * j + 1024 * dt))
        Y = 140
        a("v_lshrrev_b32 v%d, 4, v%d" % (T + 2, T))
        a("v_and_b32 v%d, 15, v%d" % (T + 3, T))
        a("v_lshrrev_b32 v%d, 2, v%d" % (T + 4, T + 3))
        a("v_lshl_add_u32 v%d, v%d, 3, v%d" % (T + 5, T + 2, T + 4))
        a("v_lshl_add_u32 v%d, v%d, 2, v%d" % (T + 6, T + 2, T + 4))
        a("v_and_b32 v%d, 3, v%d" % (T + 7, T))
        a("v_lshlrev_b32 v%d, 3, v%d" % (T + 7, T + 7))
        a("s_lshl_b32 s67, s3, 5")
        a("s_add_u32 s67, s67, %d" % LDS_YT)
        a("v_add_u32 v%d, s67, v%d" % (T + 7, T + 7))
        a("v_lshl_add_u32 v%d, v%d, 7, v%d" % (T + 5, T + 5, T + 7))
        a("v_lshl_add_u32 v%d, v%d, 7, v%d" % (T + 6, T + 6, T + 7))
        for dt in range(5):
            if dt < 4: a("ds_read_b64_tr_b16 v[%d:%d], v%d offset:%d" % (Y + 2 * dt, Y + 2 * dt + 1, T + 5, 128 * (32 * (dt >> 1) + 4 * (dt & 1))))
            else: a("ds_read_b64_tr_b16 v[%d:%d], v%d offset:%d" % (Y + 2 * dt, Y + 2 * dt + 1, T + 6, 128 * 64))
        a("s_lshl_b32 s67, s3, 6")
        a("s_add_u32 s67, s67, %d" % LDS_GT)
        a("v_lshl_add_u32 v%d, v%d, 2, s67" % (T + 8, T + 3))
        a("ds_read_b32 v%d, v%d" % (T + 8, T + 8))
        a("s_lshl_b32 s67, s6, 6")
        a("s_lshl_b32 s68, s3, 4")
        a("s_add_u32 s67, s67, s68")
        a("v_add_u32 v%d, s67, v%d" % (T + 9, T + 3))
        a("s_movk_i32 s68, 1280")
        a("v_mul_lo_u32 v%d, v%d, s68" % (T + 9, T + 9))
        a("s_mul_i32 s68, s7, 160")
        a("v_add_u32 v%d, s68, v%d" % (T + 9, T + 9))
        a("v_lshl_add_u32 v%d, v%d, 3, v%d" % (T + 10, T + 2, T + 9))
        a("v_lshl_add_u32 v%d, v%d, 4, v%d" % (T + 9, T + 2, T + 9))
        a("s_waitcnt lgkmcnt(0)")
        for dt in range(5):
            for h in range(2):
                x = acc(dt, 0) + 2 * h
                p = [R + (j * 5 + dt) * 4 + 2 * h for j in range(3)]
                a("v_pk_add_f32 v[%d:%d], v[%d:%d], v[%d:%d]" % (p[0], p[0] + 1, p[0], p[0] + 1, p[1], p[1] + 1))
                a("v_pk_add_f32 v[%d:%d], v[%d:%d], v[%d:%d]" % (x, x + 1, x, x + 1, p[2], p[2] + 1))
        for dt in range(5):
            for h in range(2):
                x = acc(dt, 0) + 2 * h
                p = R + dt * 4 + 2 * h
                a("v_pk_add_f32 v[%d:%d], v[%d:%d], v[%d:%d]" % (x, x + 1, x, x + 1, p, p + 1))
        U = 150
        for dt in range(5):
            for h in range(2):
                a("v_lshlrev_b32 v%d, 16, v%d" % (U + 4 * dt + 2 * h, Y + 2 * dt + h))
                a("v_and_b32 v%d, 0xffff0000, v%d" % (U + 4 * dt + 2 * h + 1, Y + 2 * dt + h))
        G2 = T + 12
        assert G2 % 2 == 0
        a("v_mov_b32 v%d, v%d" % (G2, T + 8))
        a("v_mov_b32 v%d, v%d" % (G2 + 1, T + 8))
        for dt in range(5):
            for h in range(2):
                x = acc(dt, 0) + 2 * h; u = U + 4 * dt + 2 * h
                a("v_pk_add_f32 v[%d:%d], v[%d:%d], v[%d:%d] neg_lo:[0,1] neg_hi:[0,1]" % (u, u + 1, u, u + 1, x, x + 1))
        for dt in range(5):
            for h in range(2):
                x = acc(dt, 0) + 2 * h; u = U + 4 * dt + 2 * h
                a("v_pk_fma_f32 v[%d:%d], v[%d:%d], v[%d:%d], v[%d:%d]" % (x, x + 1, u, u + 1, G2, G2 + 1, x, x + 1))
        O = 176
        for dt in range(5):
            for h in range(2):
                x = acc(dt, 0) + 2 * h
                a("v_cvt_pk_bf16_f32 v%d, v%d, v%d" % (O + 2 * dt + h, x, x + 1))
        a("buffer_store_dwordx4 v[%d:%d], v%d, s[24:27], 0 offen" % (O, O + 3, T + 9))
        a("buffer_store_dwordx4 v[%d:%d], v%d, s[24:27], 0 offen offset:64" % (O + 4, O + 7, T + 9))
        a("buffer_store_dwordx2 v[%d:%d], v%d, s[24:27], 0 offen offset:128" % (O + 8, O + 9, T + 10))
        self.stamp(8)

    def g2_wait_inputs(self):
        if not self.fused(): return
        a = self.a
        T = 232
        lo = self.newlab("hw"); ld = self.newlab("hd"); lp = self.newlab("hs")
        a("s_cmp_lg_u32 s3, 0")
        a("s_cbranch_scc1 %s" % lo)
        a("s_lshr_b32 s78, s6, 1")
        a("s_lshl_b32 s78, s78, 7")
        a("s_add_u32 s78, s78, %d" % WS_FH)
        self.poll_line("s78", 16, T, sleep=4)
        a("v_mov_b32 v%d, %d" % (T, LDS_HOK))
        a("v_mov_b32 v%d, 1" % (T + 1))
        a("ds_write_b32 v%d, v%d" % (T, T + 1))
        a("s_branch %s" % ld)
        a.lab(lo)
        self.lds_spin(LDS_HOK, T)
        a.lab(ld)

    def s_final(self):
        a = self.a
        n = self.name
        l = self.newlab("fin")
        a("s_cmp_lg_u32 s3, 7")
        a("s_cbranch_scc1 %s" % l)
        if self.fused(): self.lds_spin(LDS_GOK, 2, 4)
        self.y_wait_inputs()
        a("v_mbcnt_lo_u32_b32 v0, -1, 0")
        a("v_mbcnt_hi_u32_b32 v0, -1, v0")
        a("v_lshrrev_b32 v1, 3, v0")
        a("v_mul_u32_u24 v1, %d, v1" % ROWS)
        a("v_and_b32 v2, 7, v0")
        a("v_lshl_add_u32 v1, v2, 4, v1")
        a("s_mul_i32 s67, s7, %d" % (80 * ROWS))
        a("s_lshl_b32 s68, s6, 7")
        a("s_add_u32 s67, s67, s68")
        a("s_add_u32 s67, s67, %d" % WS_Y)
        for i in range(10):
            a("buffer_load_dwordx4 v[%d:%d], v1, s[20:23], s67 offen sc1" % (8 + 4 * i, 11 + 4 * i))
            if i < 9: a("s_add_u32 s67, s67, %d" % (8 * ROWS))
        a("s_lshl_b32 s67, s6, 8")
        a("s_add_u32 s67, s67, %d" % WS_G)
        a("v_lshlrev_b32 v3, 2, v0")
        a("buffer_load_dword v4, v3, s[20:23], s67 offen sc1")
        a("v_lshlrev_b32 v2, 4, v0")
        a("v_add_u32 v2, %d, v2" % LDS_YT)
        a("v_add_u32 v3, %d, v3" % LDS_GT)
        a("s_waitcnt vmcnt(0)")
        for i in range(10):
            a("ds_write_b128 v2, v[%d:%d] offset:%d" % (8 + 4 * i, 11 + 4 * i, 1024 * i))
        a("ds_write_b32 v3, v4")
        a("s_waitcnt lgkmcnt(0)")
        a("s_barrier")
        if self.fused(): self.nonce_update()
        a("s_branch %s_fd" % l)
        a.lab(l)
        a("s_barrier")
        a.lab("%s_fd" % l)

    def y_wait_inputs(self):
        if not self.fused(): return
        a = self.a
        a("v_mbcnt_lo_u32_b32 v0, -1, 0")
        a("v_mbcnt_hi_u32_b32 v0, -1, v0")
        a("s_mul_i32 s67, s7, 320")
        a("s_add_u32 s67, s67, %d" % WS_FY)
        a("v_lshl_add_u32 v1, v0, 2, s67")
        a("v_add_u32 v2, 256, v1")
        a("s_lshl_b32 s68, s6, 5")
        a("s_add_u32 s68, s68, %d" % (WS_FG - 64))
        a("v_lshl_add_u32 v3, v0, 2, s68")
        a("v_cmp_le_u32 vcc, 16, v0")
        a("s_nop 1")
        a("v_cndmask_b32 v2, v2, v3, vcc")
        a("v_subrev_u32 v3, 24, v0")
        a("v_lshlrev_b32 v3, 10, v3")
        a("s_lshl_b32 s68, s2, 2")
        a("s_add_u32 s68, s68, %d" % WS_FY)
        a("v_add_u32 v3, s68, v3")
        a("v_cmp_le_u32 vcc, 24, v0")
        a("s_nop 1")
        a("v_cndmask_b32 v2, v2, v3, vcc")
        a("s_cmp_lt_u32 s2, 128")
        a("s_cselect_b32 s68, 27, 26")
        a("v_mov_b32 v3, s67")
        a("v_cmp_le_u32 vcc, s68, v0")
        a("s_nop 1")
        a("v_cndmask_b32 v2, v2, v3, vcc")
        def loads():
            a("buffer_load_dword v4, v1, s[20:23], 0 offen sc1")
            a("buffer_load_dword v5, v2, s[20:23], 0 offen sc1")
        self.poll(loads, [4, 5], 6, sleep=8)

    def fused(self): return "fused" in self.ph

    def nonce_load(self):
        a = self.a
        a("v_mov_b32 v1, 0")
        a("s_mov_b32 s67, %d" % WS_NON)
        a("buffer_load_dword v62, v1, s[20:23], s67 offen sc1")
    def nonce_publish_local(self):
        a = self.a
        a("v_add_u32 v62, 1, v62")
        a("v_mov_b32 v1, %d" % LDS_NONCE)
        a("ds_write_b32 v1, v62")
        a("v_readfirstlane_b32 s64, v62")
    def nonce_update(self):
        a = self.a
        l = self.newlab("nu")
        a("s_cmp_lg_u32 s2, 0")
        a("s_cbranch_scc1 %s" % l)
        a("v_mbcnt_lo_u32_b32 v2, -1, 0")
        a("v_mbcnt_hi_u32_b32 v2, -1, v2")
        a("v_lshlrev_b32 v2, 4, v2")
        a("s_mov_b32 s78, %d" % WS_FG)
        self.poll(lambda: a("buffer_load_dwordx4 v[4:7], v2, s[20:23], s78 offen sc1"), [4, 5, 6, 7], 2, sleep=8)
        a("s_mov_b32 s69, %d" % WS_NON)
        self.flag_set("s69", 2)
        a.lab(l)

    def nonce_read(self, vt):
        a = self.a
        a("v_mov_b32 v%d, %d" % (vt, LDS_NONCE))
        a("ds_read_b32 v%d, v%d" % (vt, vt))
        a("s_waitcnt lgkmcnt(0)")
        a("v_readfirstlane_b32 s64, v%d" % vt)

    def flag_set(self, soff_reg, vt):
        a = self.a
        a("v_mov_b32 v%d, s64" % vt)
        a("v_mov_b32 v%d, 0" % (vt + 1))
        a("s_mov_b64 exec, 1")
        a("buffer_store_dword v%d, v%d, s[20:23], %s offen sc1" % (vt, vt + 1, soff_reg))
        a("s_mov_b64 exec, -1")

    def poll(self, loads, vregs, vt, sleep=8):
        a = self.a
        lp = self.newlab("pl"); ld = self.newlab("pd")
        a("s_mov_b32 s69, 0")
        a.lab(lp)
        loads()
        a("s_waitcnt vmcnt(0)")
        for i, r in enumerate(vregs):
            if i == 0: a("v_cmp_eq_u32 vcc, s64, v%d" % r)
            else:
                a("v_cmp_eq_u32 s[76:77], s64, v%d" % r)
                a("s_nop 1")
                a("s_and_b64 vcc, vcc, s[76:77]")
        a("s_nop 1")
        a("s_cmp_eq_u64 vcc, -1")
        a("s_cbranch_scc1 %s" % ld)
        a("s_add_u32 s69, s69, 1")
        a("s_cmp_lt_u32 s69, 0x40000")
        a("s_cbranch_scc0 %s" % ld)
        a("s_sleep %d" % sleep)
        a("s_branch %s" % lp)
        a.lab(ld)

    def poll_line(self, soff, nflags, vt, sleep=8):
        a = self.a
        a("v_mbcnt_lo_u32_b32 v%d, -1, 0" % vt)
        a("v_mbcnt_hi_u32_b32 v%d, -1, v%d" % (vt, vt))
        a("v_cmp_gt_u32 vcc, %d, v%d" % (nflags, vt))
        a("v_lshlrev_b32 v%d, 2, v%d" % (vt, vt))
        a("s_nop 0")
        a("v_cndmask_b32 v%d, 0, v%d, vcc" % (vt, vt))
        self.poll(lambda: a("buffer_load_dword v%d, v%d, s[20:23], %s offen sc1" % (vt + 1, vt, soff)), [vt + 1], vt, sleep)

    def build(self):
        a = self.a
        n = self.name
        a.l.append(".globl %s" % n)
        a.l.append(".p2align 8")
        a.l.append(".type %s,@function" % n)
        a.l.append("%s:" % n)
        self.prologue()
        a("s_cmp_ge_u32 s3, 4")
        a("s_cbranch_scc1 %s_S" % n)
        if "g1" in self.ph:
            self.g_gemm1()
        if "g2" in self.ph:
            self.g_gemm2()
        self.dbgtime_end()
        self.stamp_flush()
        a("s_endpgm")
        a.lab("%s_S" % n)
        if "g1" in self.ph:
            self.s_phase1()
        if "ssm" in self.ph:
            self.s_ssm()
        if "g2" in self.ph:
            self.s_final()
        self.stamp_flush()
        a.lab("%s_end" % n)
        a("s_endpgm")
        return a.text()

def kd(name):
    return """.amdhsa_kernel %s
  .amdhsa_next_free_vgpr 256
  .amdhsa_next_free_sgpr 102
  .amdhsa_accum_offset 256
  .amdhsa_group_segment_fixed_size 0
  .amdhsa_kernarg_size 136
  .amdhsa_user_sgpr_count 2
  .amdhsa_user_sgpr_kernarg_segment_ptr 1
  .amdhsa_system_sgpr_workgroup_id_x 1
.end_amdhsa_kernel
""" % name

HEADER = open("gated_mix__ssm_conv_s4__swiglu_ffn__prompt.s.ref").read().split("; Override launch")[0]

def emit(kernels, path):
    txt = HEADER
    if len(kernels) == 1:
        txt += "; @launch grid=(256,1,1) block=(512,1,1) lds=%d\n" % LDS_TOTAL
    else:
        for (n, p, s) in kernels:
            txt += "; @launch kernel=%s grid=(256,1,1) block=(512,1,1) lds=%d\n" % (n, LDS_TOTAL)
    txt += '.amdgcn_target "amdgcn-amd-amdhsa--gfx950"\n.text\n'
    for (n, p, s) in kernels:
        txt += Gen(n, p, s).build()
    txt += '.section .rodata,"a"\n'
    for (n, p, s) in kernels:
        txt += ".p2align 6\n" + kd(n)
    open(path, "w").write(txt)

if __name__ == "__main__":
    mode = sys.argv[1]; path = sys.argv[2]
    stamps = len(sys.argv) > 3 and sys.argv[3] == "stamps"
    if mode.startswith("g1+") or mode == "g1":
        emit([(KNAME, set(mode.split("+")), stamps)], path)
    elif mode == "g1,ssm":
        emit([("ka_kernel", {"g1"}, False), ("kb_kernel", {"ssm", "dumpk"}, stamps)], path)
    elif mode == "3k":
        emit([("ka_kernel", {"g1"}, False), ("kb_kernel", {"ssm"}, False), ("kc_kernel", {"g2"}, stamps)], path)
    elif mode == "3k+1":
        emit([("ka_kernel", {"g1"}, False), ("kb_kernel", {"ssm"}, False), ("kc_kernel", {"g2"}, stamps), ("kd_kernel", set(), False)], path)
    elif mode == "3k+3":
        emit([("ka_kernel", {"g1"}, False), ("kb_kernel", {"ssm"}, False), ("kc_kernel", {"g2"}, stamps), ("kd_kernel", set(), False), ("ke_kernel", set(), False), ("kf_kernel", set(), False)], path)
    elif mode == "3k_dbg":
        emit([("ka_kernel", {"g1", "dbgtime"}, False), ("kb_kernel", {"ssm"}, False), ("kc_kernel", {"g2", "dbgtime"}, False)], path)
    elif mode == "fused":
        emit([(KNAME, {"g1", "ssm", "g2", "fused"}, stamps)], path)
    elif mode == "fused_notouch":
        emit([(KNAME, {"g1", "ssm", "g2", "fused", "notouch"}, stamps)], path)
    elif mode == "fused_pk":
        emit([(KNAME, {"g1", "ssm", "g2", "fused", "pkhead"}, stamps)], path)
    elif mode.startswith("F:"):
        emit([(KNAME, {"g1", "ssm", "g2", "fused"} | set(mode[2:].split("+")), stamps)], path)
    elif mode == "fused_dbg":
        emit([(KNAME, {"g1", "ssm", "g2", "fused", "dbgtime"}, stamps)], path)
    elif mode == "g1,ssm,nodump":
        emit([("ka_kernel", {"g1"}, False), ("kb_kernel", {"ssm"}, stamps)], path)
```

```python
import sys, math

KNAME = "gated_mix__ssm_conv_s4__swiglu_ffn__prompt_kernel"

WS_H    = 0x000000
WS_WD   = 0x600000
ROWS    = 4224
WS_UT   = 0x800000
WS_Y    = 0xB00000
WS_G    = 0xE00000
WS_FU   = 0xE10000
WS_FW   = 0xE15000
WS_FH   = 0xE11000
WS_FY   = 0xE12000
WS_NON  = 0xE13000
WS_FG   = 0xE14000
WS_TS   = 0xF00000
WS_DBG  = 0x1000000

STAGE   = 40960
ST_WG   = 16384
ST_WU   = 28672
LDS_S   = 3 * STAGE
TABROW  = 272
TABTILE = 16 * TABROW
TAB_SZ  = 2 * TABTILE
LDS_TAB = LDS_S
KR_SZ   = 4224
LDS_KR  = LDS_TAB + 3 * TAB_SZ
LDS_MISC = LDS_KR + 3 * KR_SZ
LDS_TOTAL = 163840
LDS_NONCE = LDS_MISC
LDS_CNT   = LDS_MISC + 8
UC_STRIDE = 4640
UC_SZ   = 4 * UC_STRIDE
LDS_UC  = 0
LDS_WDS = STAGE
LDS_RED = 57344
LDS_YT  = LDS_TAB
LDS_GT  = LDS_MISC + 64
LDS_HOK = LDS_MISC + 12
LDS_WOK = LDS_MISC + 16
LDS_UOK = LDS_MISC + 20
LDS_GOK = LDS_MISC + 24
LDS_UCOK = LDS_MISC + 28
LDS_SFREE = LDS_MISC + 32

class Asm:
    def __init__(self):
        self.l = []
    def __call__(self, s):
        for x in s.split("\n"):
            x = x.strip()
            if x: self.l.append("    " + x)
    def lab(self, s):
        self.l.append(s + ":")
    def ext(self, lst):
        for x in lst: self(x)
    def text(self):
        return "\n".join(self.l) + "\n"

def interleave(main, fill, start=0, span=None):
    out = []
    m = len(fill)
    n = len(main) if span is None else min(len(main), start + span)
    j = 0
    for i, x in enumerate(main):
        out.append(x)
        if i >= start:
            tgt = (m * (i - start + 1) + (n - start) - 1) // (n - start) if n > start else m
            while j < min(tgt, m):
                f = fill[j]
                if isinstance(f, tuple): out.extend(f)
                else: out.append(f)
                j += 1
    while j < m:
        f = fill[j]
        if isinstance(f, tuple): out.extend(f)
        else: out.append(f)
        j += 1
    return out

def flat(L):
    o = []
    for x in L:
        if isinstance(x, tuple): o.extend(x)
        else: o.append(x)
    return o

def vr(a, n=1):
    return "v%d" % a if n == 1 else "v[%d:%d]" % (a, a + n - 1)
def sr(a, n=1):
    return "s%d" % a if n == 1 else "s[%d:%d]" % (a, a + n - 1)

S_W, S_WAVE, S_M, S_N, S_M2, S_N2 = 2, 3, 4, 5, 6, 7
SRD_X, SRD_WG, SRD_WU, SRD_WS, SRD_OUT, SRD_WD = 8, 12, 16, 20, 24, 28
P_U, P_ARE, P_AIM, P_BRE, P_BIM, P_CRE, P_CIM, P_LDT = 32, 34, 36, 38, 40, 42, 44, 46
P_DSK, P_BX, P_WG, P_WU, P_WD, P_GW, P_OUT, P_DBG, P_WS = 48, 50, 52, 54, 56, 58, 60, 62, 64
S_TS = 80

class Gen:
    def __init__(self, name, phases, stamps=False):
        self.name = name
        self.ph = phases
        self.a = Asm()
        self.stamps = stamps
        self.nlab = 0
    def newlab(self, p):
        self.nlab += 1
        return "L_%s_%s_%d" % (self.name[:6], p, self.nlab)

    def capture(self, fn):
        old = self.a
        self.a = Asm()
        fn()
        lst = [x.strip() for x in self.a.l]
        self.a = old
        return lst

    def clk(self, i):
        if "clk" in self.ph and self.stamps:
            self.a("s_memrealtime s[%d:%d]" % (S_TS + 2 * i, S_TS + 2 * i + 1))
            self.a("s_memtime s[%d:%d]" % (S_TS + 2 * i + 2, S_TS + 2 * i + 3))
            self.a("s_waitcnt lgkmcnt(0)")

    def stamp(self, i, force=False):
        if "clk" in self.ph and i != 0: return
        if ("kstamps" in self.ph or "k2stamps" in self.ph) and not force and i != 0: return
        if self.stamps:
            self.a("%s s[%d:%d]" % ("s_memrealtime" if "rt" in self.ph else "s_memtime", S_TS + 2 * i, S_TS + 2 * i + 1))
            self.a("s_waitcnt lgkmcnt(0)")
    def stamp_flush(self):
        if not self.stamps: return
        a = self.a
        a("s_lshl_b32 s66, s2, 3")
        a("s_add_u32 s66, s66, s3")
        a("s_lshl_b32 s66, s66, 7")
        a("s_add_u32 s66, s66, 0x%x" % WS_TS)
        a("v_mov_b32 v250, 0")
        for i in range(10):
            a("v_mov_b32 v252, s%d" % (S_TS + 2 * i))
            a("v_mov_b32 v253, s%d" % (S_TS + 2 * i + 1))
            a("buffer_store_dwordx2 v[252:253], v250, s[20:23], s66 offen offset:%d" % (8 * i))
            a("s_nop 1")
        a("s_waitcnt vmcnt(0)")

    def prologue(self):
        a = self.a
        a("s_cmp_ge_u32 s2, 256")
        a("s_cbranch_scc1 %s_end" % self.name)
        a("s_load_dwordx16 s[32:47], s[0:1], 0")
        a("s_load_dwordx16 s[48:63], s[0:1], 64")
        a("s_load_dwordx2 s[64:65], s[0:1], 128")
        a("v_lshrrev_b32 v1, 6, v0")
        a("v_and_b32 v0, 63, v0")
        a("v_readfirstlane_b32 s3, v1")
        a("s_and_b32 s66, s2, 7")
        a("s_lshr_b32 s67, s2, 3")
        a("s_and_b32 s68, s67, 7")
        a("s_lshr_b32 s69, s67, 3")
        a("s_and_b32 s70, s66, 1")
        a("s_lshl_b32 s70, s70, 3")
        a("s_or_b32 s4, s70, s68")
        a("s_lshr_b32 s70, s66, 1")
        a("s_lshl_b32 s70, s70, 2")
        a("s_or_b32 s5, s70, s69")
        a("s_and_b32 s70, s66, 3")
        a("s_lshl_b32 s70, s70, 3")
        a("s_or_b32 s6, s70, s68")
        a("s_lshr_b32 s70, s66, 2")
        a("s_lshl_b32 s70, s70, 2")
        a("s_or_b32 s7, s70, s69")
        if "sametile" in self.ph:
            a("s_mov_b32 s4, 0"); a("s_mov_b32 s5, 0")
        if "samem" in self.ph:
            a("s_mov_b32 s4, 0")
        if "samen" in self.ph:
            a("s_mov_b32 s5, 0")
        if self.stamps:
            for i in range(10):
                a("s_mov_b64 s[%d:%d], 0" % (S_TS + 2 * i, S_TS + 2 * i + 1))
        a("s_waitcnt lgkmcnt(0)")
        def srd(base, ptr, size):
            a("s_mov_b32 s%d, s%d" % (base, ptr))
            a("s_and_b32 s%d, s%d, 0xffff" % (base + 1, ptr + 1))
            a("s_mov_b32 s%d, 0x%x" % (base + 2, size))
            a("s_mov_b32 s%d, 0x20000" % (base + 3))
        srd(SRD_X, P_U, 2048 * 640 * 2)
        srd(SRD_WG, P_WG, 640 * 1536 * 2)
        srd(SRD_WU, P_WU, 640 * 1536 * 2)
        srd(SRD_WS, P_WS, 0x10000000)
        srd(SRD_OUT, P_OUT, 2048 * 640 * 2)
        srd(SRD_WD, P_WD, 640 * 1536 * 2)
        self.stamp(0)
        if "dbgtime" in self.ph:
            a("s_memrealtime s[96:97]")
            a("s_memtime s[98:99]")
            a("s_mov_b64 s[100:101], s[62:63]")
            a("s_waitcnt lgkmcnt(0)")

    def dbgtime_end(self):
        a = self.a
        if "dbgtime" not in self.ph: return
        l = self.newlab("dbt")
        a("s_cmp_lg_u32 s2, 0"); a("s_cbranch_scc1 %s" % l)
        a("s_cmp_lg_u32 s3, 0"); a("s_cbranch_scc1 %s" % l)
        a("s_waitcnt vmcnt(0)")
        a("s_memrealtime s[92:93]")
        a("s_memtime s[94:95]")
        a("s_waitcnt lgkmcnt(0)")
        a("s_sub_u32 s92, s92, s96")
        a("s_sub_u32 s94, s94, s98")
        a("v_mov_b32 v250, 0")
        a("v_mov_b32 v252, s92")
        a("v_mov_b32 v253, s94")
        a("v_mov_b32 v254, s96")
        a("v_mov_b32 v255, 0x1234")
        a("global_store_dwordx4 v250, v[252:255], s[100:101]")
        a("s_waitcnt vmcnt(0)")
        a.lab(l)

    def rot_r(self, dst, tmp):
        a = self.a
        a("s_lshr_b32 %s, s5, 1" % dst)
        a("s_cmp_ge_u32 %s, 5" % dst)
        a("s_cselect_b32 %s, 1, 0" % tmp)
        a("s_cmp_ge_u32 %s, 1" % dst)
        a("s_addc_u32 %s, %s, %s" % (dst, dst, tmp))

    def g_gemm1(self):
        a = self.a
        ACC = 0; FP = 96; FQ = 136
        VXB = 176
        VWA = 182
        VL16 = 196
        T = 200
        accg = lambda ft, tt: ACC + (ft * 4 + tt) * 4
        accu = lambda ft, tt: ACC + 48 + (ft * 4 + tt) * 4
        LANE = 197
        a("v_mov_b32 v%d, v0" % LANE)
        a("s_and_b32 s67, s3, 1")
        a("s_lshr_b32 s68, s3, 1")
        VOX = 191
        a("v_lshrrev_b32 v%d, 3, v%d" % (T, LANE))
        a("s_lshl_b32 s69, s4, 7")
        a("s_lshl_b32 s70, s3, 5")
        a("s_add_u32 s69, s69, s70")
        a("v_add_u32 v%d, s69, v%d" % (T, T))
        a("s_movk_i32 s70, 1280")
        a("v_mul_lo_u32 v%d, v%d, s70" % (T, T))
        a("v_and_b32 v%d, 7, v%d" % (T + 1, LANE))
        a("v_lshrrev_b32 v%d, 4, v%d" % (T + 2, LANE))
        a("v_xor_b32 v%d, v%d, v%d" % (T + 3, T + 1, T + 2))
        a("v_xor_b32 v%d, 4, v%d" % (T + 4, T + 3))
        a("v_lshl_add_u32 v%d, v%d, 4, v%d" % (VOX, T + 3, T))
        a("v_lshl_add_u32 v%d, v%d, 4, v%d" % (VOX + 1, T + 4, T))
        a("s_lshl_b32 s75, s3, 12")
        VOW = 193
        a("s_lshl_b32 s69, s3, 4")
        a("s_mul_i32 s69, s69, 3072")
        a("s_mul_i32 s70, s5, 192")
        a("s_add_u32 s69, s69, s70")
        a("s_mov_b32 s70, 43691")
        a("s_movk_i32 s71, 3072")
        for i in range(3):
            a("v_add_u32 v%d, %d, v%d" % (T, 64 * i, LANE))
            a("v_mul_lo_u32 v%d, v%d, s70" % (T + 1, T))
            a("v_lshrrev_b32 v%d, 19, v%d" % (T + 1, T + 1))
            a("v_mul_u32_u24 v%d, 12, v%d" % (T + 2, T + 1))
            a("v_sub_u32 v%d, v%d, v%d" % (T + 2, T, T + 2))
            a("v_lshrrev_b32 v%d, 2, v%d" % (T + 3, T + 1))
            a("v_and_b32 v%d, 2, v%d" % (T + 3, T + 3))
            a("v_xor_b32 v%d, v%d, v%d" % (T + 2, T + 2, T + 3))
            a("v_mul_lo_u32 v%d, v%d, s71" % (T + 1, T + 1))
            a("v_lshl_add_u32 v%d, v%d, 4, v%d" % (T + 1, T + 2, T + 1))
            a("v_add_u32 v%d, s69, v%d" % (T + 1, T + 1))
            a("v_subrev_u32 v%d, %d, v%d" % (VOW + i, 1024 * i, T + 1))
        a("s_mul_i32 s76, s3, 3072")
        a("s_add_u32 s77, s76, %d" % ST_WU)
        a("s_add_u32 s76, s76, %d" % ST_WG)
        self.rot_r("s74", "s72")
        def xdma(st):
            base = (st % 3) * STAGE
            L = []
            for i in range(4):
                if i == 0:
                    L.append(("s_lshl_b32 s72, s74, 7", "s_mul_i32 s73, s74, 196608", "s_add_u32 s74, s74, 1",
                              "s_add_u32 m0, s75, %d" % base, "s_cmp_eq_u32 s74, 10", "s_cselect_b32 s74, 0, s74",
                              "buffer_load_dwordx4 v%d, s[8:11], s72 offen lds" % VOX))
                else:
                    L.append(("s_add_u32 s70, s72, %d" % (9216 * i),
                              "buffer_load_dwordx4 v%d, s[8:11], s70 offen offset:%d lds" % (VOX + (i & 1), 1024 * i)))
            for mat, sm, srd in ((0, 76, "s[12:15]"), (1, 77, "s[16:19]")):
                for i in range(3):
                    ld = "buffer_load_dwordx4 v%d, %s, s73 offen offset:%d lds" % (VOW + i, srd, 1024 * i)
                    if i == 0: L.append(("s_add_u32 m0, s%d, %d" % (sm, base), "s_nop 0", ld))
                    else: L.append(ld)
            return L
        a.ext(flat(xdma(0)))
        a.ext(flat(xdma(1)))
        a("s_barrier")
        a("v_and_b32 v%d, 15, v%d" % (T, LANE))
        a("v_lshrrev_b32 v%d, 4, v%d" % (T + 1, LANE))
        a("s_lshl_b32 s69, s67, 6")
        a("v_add_u32 v%d, s69, v%d" % (T + 2, T))
        a("v_lshlrev_b32 v%d, 7, v%d" % (T + 2, T + 2))
        a("v_lshrrev_b32 v%d, 1, v%d" % (T + 3, T))
        a("v_and_b32 v%d, 7, v%d" % (T + 3, T + 3))
        a("v_xor_b32 v%d, v%d, v%d" % (T + 3, T + 3, T + 1))
        a("v_xor_b32 v%d, 4, v%d" % (T + 4, T + 3))
        a("v_lshl_add_u32 v%d, v%d, 4, v%d" % (VXB, T + 3, T + 2))
        a("v_lshl_add_u32 v%d, v%d, 4, v%d" % (VXB + 1, T + 4, T + 2))
        for st in (1, 2):
            for s in range(2):
                a("v_add_u32 v%d, %d, v%d" % (VXB + 2 * st + s, st * STAGE, VXB + s))
        a("v_lshrrev_b32 v%d, 2, v%d" % (T + 2, T))
        a("v_lshl_add_u32 v%d, v%d, 3, v%d" % (T + 2, T + 1, T + 2))
        a("v_mul_u32_u24 v%d, 192, v%d" % (T + 2, T + 2))
        a("v_and_b32 v%d, 3, v%d" % (T + 3, LANE))
        a("v_lshl_add_u32 v%d, v%d, 3, v%d" % (T + 2, T + 3, T + 2))
        a("v_add_u32 v%d, %d, v%d" % (T + 2, ST_WG, T + 2))
        a("v_and_b32 v%d, 1, v%d" % (T + 3, T + 1))
        a("s_lshl_b32 s69, s68, 2")
        a("s_add_u32 s78, s69, 1")
        a("s_add_u32 s79, s68, 2")
        for ft, sreg in ((0, 69), (1, 78), (2, 79)):
            a("v_xor_b32 v%d, s%d, v%d" % (T + 4, sreg, T + 3))
            a("v_lshl_add_u32 v%d, v%d, 5, v%d" % (VWA + ft, T + 4, T + 2))
        for st in (1, 2):
            for ft in range(3):
                a("v_add_u32 v%d, %d, v%d" % (VWA + 3 * st + ft, st * STAGE, VWA + ft))
        a("v_lshlrev_b32 v%d, 4, v%d" % (VL16, LANE))
        a("s_lshl_b32 s69, s4, 1")
        a("s_add_u32 s69, s69, s67")
        a("s_mul_i32 s69, s69, 48")
        a("s_mul_i32 s78, s5, 3")
        a("s_add_u32 s69, s69, s78")
        a("s_lshl_b32 s78, s68, 1")
        a("s_add_u32 s78, s78, s69")
        a("s_lshl_b32 s78, s78, 12")
        a("s_add_u32 s79, s69, 1")
        a("s_lshl_b32 s79, s79, 12")
        a("s_lshl_b32 s69, s68, 9")
        a("s_add_u32 s79, s79, s69")
        a("v_lshlrev_b32 v%d, 3, v%d" % (VL16 + 2, LANE))
        if WS_H:
            a("s_add_u32 s78, s78, %d" % WS_H); a("s_add_u32 s79, s79, %d" % WS_H)

        def reads(kk, s, F):
            st = kk % 3
            xs = ["ds_read_b128 v[%d:%d], v%d offset:%d" % (F + 4 * tt, F + 4 * tt + 3, VXB + 2 * st + s, 2048 * tt) for tt in range(4)]
            ws = []
            for mat in range(2):
                for ft in range(3):
                    r = F + 16 + (mat * 3 + ft) * 4
                    for h in range(2):
                        ws.append("ds_read_b64_tr_b16 v[%d:%d], v%d offset:%d" % (r + 2 * h, r + 2 * h + 1, VWA + 3 * st + ft, 12288 * mat + 6144 * s + 768 * h))
            order = [xs[0], ws[0], ws[1], xs[1], ws[6], ws[7], xs[2], xs[3]] + ws[2:6] + ws[8:]
            return order
        def mfmas(F, first):
            L = []
            for ft in range(3):
                for mat in range(2):
                    for tt in range(4):
                        acc = accg(ft, tt) if mat == 0 else accu(ft, tt)
                        A = F + 16 + (mat * 3 + ft) * 4
                        B = F + 4 * tt
                        c = "0" if first else "v[%d:%d]" % (acc, acc + 3)
                        L.append("v_mfma_f32_16x16x32_bf16 v[%d:%d], v[%d:%d], v[%d:%d], %s" % (acc, acc + 3, A, A + 3, B, B + 3, c))
            return L
        def spread(mm, d, first, step):
            out = []; cnt = 0; di = 0
            for x in mm:
                out.append(x)
                if x.startswith("v_mfma"):
                    cnt += 1
                    if cnt >= first and (cnt - first) % step == 0 and di < len(d):
                        f = d[di]; di += 1
                        out.extend(f if isinstance(f, tuple) else (f,))
            assert di == len(d), (di, len(d))
            return out
        self.stamp(5)
        a("s_waitcnt vmcnt(10)")
        a("s_barrier")
        self.stamp(1)
        self.clk(1)
        a.ext(reads(0, 0, FP))
        a("s_waitcnt lgkmcnt(0)")
        pend = xdma(2)
        for kk in range(10):
            mm = interleave(mfmas(FP, kk == 0), reads(kk, 1, FQ), span=16)
            if pend: mm = spread(mm, pend, 2, 5 if len(pend) <= 5 else 2)
            a.ext(mm)
            if kk <= 7: a("s_waitcnt vmcnt(10) lgkmcnt(0)")
            elif kk == 8: a("s_waitcnt vmcnt(0) lgkmcnt(0)")
            else: a("s_waitcnt lgkmcnt(0)")
            if kk == 9 and self.fused(): self.lds_inc(LDS_SFREE, T)
            else: a("s_barrier")
            if "kstamps" in self.ph and kk < 9: self.stamp(kk + 1, force=True)
            fill = reads(kk + 1, 0, FP) if kk + 1 < 10 else []
            mm = interleave(mfmas(FQ, False), fill, span=16)
            d = xdma(kk + 3) if kk + 3 < 10 else []
            pend = d[5:]
            if d: mm = spread(mm, d[:5], 2, 5)
            a.ext(mm)
            if kk + 1 < 10:
                a("s_waitcnt lgkmcnt(0)")
        self.stamp(2)
        self.clk(3)
        CN = FP; ONE = FP + 2
        a("v_mov_b32 v%d, 0xbfb8aa3b" % CN)
        a("v_mov_b32 v%d, 0xbfb8aa3b" % (CN + 1))
        a("v_mov_b32 v%d, 1.0" % ONE)
        a("v_mov_b32 v%d, 1.0" % (ONE + 1))
        grp = 0
        def silu(gregs, uregs, tmp, out):
            n = len(gregs)
            L = []
            for i in range(n): L.append("v_pk_mul_f32 v[%d:%d], v[%d:%d], v[%d:%d]" % (tmp + 2 * i, tmp + 2 * i + 1, gregs[i], gregs[i] + 1, CN, CN + 1))
            for i in range(2 * n): L.append("v_exp_f32 v%d, v%d" % (tmp + i, tmp + i))
            for i in range(n): L.append("v_pk_mul_f32 v[%d:%d], v[%d:%d], v[%d:%d]" % (gregs[i], gregs[i] + 1, gregs[i], gregs[i] + 1, uregs[i], uregs[i] + 1))
            for i in range(n): L.append("v_pk_add_f32 v[%d:%d], v[%d:%d], v[%d:%d]" % (tmp + 2 * i, tmp + 2 * i + 1, tmp + 2 * i, tmp + 2 * i + 1, ONE, ONE + 1))
            for i in range(2 * n): L.append("v_rcp_f32 v%d, v%d" % (tmp + i, tmp + i))
            if n < 2: L.append("s_nop 0")
            for i in range(n): L.append("v_pk_mul_f32 v[%d:%d], v[%d:%d], v[%d:%d]" % (gregs[i], gregs[i] + 1, gregs[i], gregs[i] + 1, tmp + 2 * i, tmp + 2 * i + 1))
            for i in range(n): L.append("v_cvt_pk_bf16_f32 v%d, v%d, v%d" % (out + i, gregs[i], gregs[i] + 1))
            return L
        for tt in range(4):
            tmp = FQ + (grp % 2) * 16; out = FP + 8 + (grp % 4) * 4; grp += 1
            g = [accg(0, tt), accg(0, tt) + 2, accg(1, tt), accg(1, tt) + 2]
            u = [accu(0, tt), accu(0, tt) + 2, accu(1, tt), accu(1, tt) + 2]
            a.ext(silu(g, u, tmp, out))
            a("buffer_store_dwordx4 v[%d:%d], v%d, s[20:23], s78 offen offset:%d sc1" % (out, out + 3, VL16, 1024 * tt))
            tmp = FQ + (grp % 2) * 16; out = FP + 8 + (grp % 4) * 4; grp += 1
            g = [accg(2, tt), accg(2, tt) + 2]
            u = [accu(2, tt), accu(2, tt) + 2]
            a.ext(silu(g, u, tmp, out))
            a("buffer_store_dwordx2 v[%d:%d], v%d, s[20:23], s79 offen offset:%d sc1" % (out, out + 1, VL16 + 2, 1024 * tt))
        self.stamp(3)
        if "g2" not in self.ph:
            a("s_waitcnt vmcnt(0)")
            self.stamp(4)

    def g_signal_h(self, nyounger):
        a = self.a
        T = 232
        a("s_waitcnt vmcnt(%d)" % nyounger)
        if self.fused():
            l = self.newlab("fh")
            a("v_mov_b32 v%d, %d" % (T, LDS_CNT))
            a("v_mov_b32 v%d, 1" % (T + 1))
            a("s_mov_b64 exec, 1")
            a("ds_add_rtn_u32 v%d, v%d, v%d" % (T + 2, T, T + 1))
            a("s_waitcnt lgkmcnt(0)")
            a("s_mov_b64 exec, -1")
            a("v_readfirstlane_b32 s69, v%d" % (T + 2))
            a("s_cmp_lg_u32 s69, 3")
            a("s_cbranch_scc1 %s" % l)
            a("s_lshl_b32 s69, s4, 5")
            a("s_add_u32 s69, s69, s5")
            a("s_lshl_b32 s69, s69, 2")
            a("s_add_u32 s69, s69, %d" % WS_FH)
            self.flag_set("s69", T)
            a.lab(l)
        self.stamp(4)

    def lds_inc(self, addr, vt):
        a = self.a
        a("v_mov_b32 v%d, %d" % (vt, addr))
        a("v_mov_b32 v%d, 1" % (vt + 1))
        a("s_mov_b64 exec, 1")
        a("ds_add_u32 v%d, v%d" % (vt, vt + 1))
        a("s_mov_b64 exec, -1")

    def lds_spin(self, addr, vt, val=1):
        a = self.a
        lp = self.newlab("ls"); ld = self.newlab("ld")
        a("v_mov_b32 v%d, %d" % (vt, addr))
        a("s_mov_b32 s69, 0")
        a.lab(lp)
        a("ds_read_b32 v%d, v%d" % (vt + 1, vt))
        a("s_waitcnt lgkmcnt(0)")
        a("v_readfirstlane_b32 s78, v%d" % (vt + 1))
        a("s_cmp_eq_u32 s78, %d" % val)
        a("s_cbranch_scc1 %s" % ld)
        a("s_add_u32 s69, s69, 1")
        a("s_cmp_lt_u32 s69, 0x400000")
        a("s_cbranch_scc0 %s" % ld)
        a("s_sleep 1")
        a("s_branch %s" % lp)
        a.lab(ld)

    def s_kgen_phase1(self):
        a = self.a
        NCH = 8
        chunks = [[] for _ in range(NCH)]
        if "ssm" in self.ph:
            a("s_lshl_b32 s50, s66, 8")
            a("s_add_u32 s50, s50, s2")
            a("s_min_u32 s50, s50, 639")
            self.kgen_bases()
            if "kghead" in self.ph:
                kg = self.capture(lambda: self.kgen("head"))
                per = (len(kg) + NCH - 1) // NCH
                chunks = [kg[i * per:(i + 1) * per] for i in range(NCH)]
        self.stamp(5)
        if "prioS" in self.ph: a("s_setprio 2")
        a("s_barrier")
        if "ssm" in self.ph and "kghead" in self.ph: self.ssm_param_loads(slots=((0, 1) if "kg2" in self.ph else (0,)))
        a("s_barrier")
        self.stamp(1)
        for kk in range(10):
            if not (kk == 9 and self.fused()): a("s_barrier")
            if kk == 1 and "kghead" in self.ph: a("s_waitcnt vmcnt(0)")
            if kk == 7 and "ssm" in self.ph:
                if "kghead" in self.ph: self.ssm_param_loads(slots=((2,) if "kg2" in self.ph else (1, 2)), scalars=False)
                else: self.ssm_param_loads()
            if 1 <= kk <= NCH: a.ext(chunks[kk - 1])
        self.stamp(2)

    def side_setup(self):
        a = self.a
        a("s_mov_b32 s67, 52429")
        a("s_movk_i32 s68, 1280")
        for i in range(5):
            a("v_add_u32 v1, %d, v0" % (64 * i))
            a("v_mul_lo_u32 v2, v1, s67")
            a("v_lshrrev_b32 v2, 19, v2")
            a("v_mul_u32_u24 v3, 10, v2")
            a("v_sub_u32 v3, v1, v3")
            a("v_mul_lo_u32 v2, v2, s68")
            a("v_lshl_add_u32 v%d, v3, 4, v2" % (230 + i))
        a("v_lshrrev_b32 v1, 4, v0")
        a("v_and_b32 v2, 15, v0")
        a("v_lshrrev_b32 v3, 2, v2")
        a("v_lshl_add_u32 v4, v1, 2, v3")
        a("v_mul_u32_u24 v4, 160, v4")
        a("v_add_u32 v4, %d, v4" % LDS_WDS)
        a("v_and_b32 v5, 3, v0")
        a("v_lshl_add_u32 v235, v5, 4, v4")
        a("v_lshl_add_u32 v236, v5, 3, v4")
        a("v_lshlrev_b32 v237, 4, v0")
        a("v_lshlrev_b32 v241, 2, v0")
        a("v_lshl_add_u32 v4, v1, 3, v3")
        a("v_lshlrev_b32 v4, 7, v4")
        a("v_bfe_u32 v5, v0, 1, 1")
        a("v_lshrrev_b32 v6, 1, v3")
        a("v_xor_b32 v5, v5, v6")
        a("v_lshl_add_u32 v4, v5, 4, v4")
        a("v_and_b32 v5, 1, v0")
        a("v_lshl_add_u32 v4, v5, 3, v4")
        a("v_and_b32 v5, 1, v1")
        a("v_lshl_add_u32 v238, v5, 6, v4")
        a("v_xor_b32 v5, 1, v5")
        a("v_lshl_add_u32 v239, v5, 6, v4")
        a("v_mul_u32_u24 v240, %d, v2" % ROWS)
        a("v_lshl_add_u32 v240, v1, 4, v240")
        a("s_add_u32 s51, s2, 128")
        a("s_cmp_ge_u32 s2, 128")
        a("s_cselect_b32 s51, s51, 999")
        a("s_lshr_b32 s52, s5, 1")
        a("s_add_u32 s53, s52, 8")
        a("s_cmp_lt_u32 s5, 4")
        a("s_cselect_b32 s53, s53, 99")
    def wd_load(self, ureg, scr):
        a = self.a
        if "nowd" in self.ph: return
        a("s_lshr_b32 s67, %s, 3" % ureg)
        a("s_and_b32 s68, %s, 7" % ureg)
        a("s_mul_i32 s69, s67, %d" % (32 * 1280))
        a("s_mul_i32 s67, s68, 160")
        a("s_add_u32 s69, s69, s67")
        for i in range(5):
            a("s_mov_b32 m0, %d" % (LDS_WDS + scr + 1024 * i))
            a("s_nop 0")
            a("buffer_load_dwordx4 v%d, s[28:31], s69 offen lds" % (230 + i))
    def wd_store(self, ureg, scr, R=160):
        a = self.a
        if "nowd" in self.ph: return
        for dt in range(5):
            for h in range(2):
                if dt < 4: ad, off = 235, 64 * (dt >> 1) + 8 * (dt & 1) + 2560 * h
                else: ad, off = 236, 128 + 2560 * h
                a("ds_read_b64_tr_b16 v[%d:%d], v%d offset:%d" % (R + 4 * dt + 2 * h, R + 1 + 4 * dt + 2 * h, ad, off + scr))
        a("s_lshr_b32 s67, %s, 3" % ureg)
        a("s_and_b32 s68, %s, 7" % ureg)
        a("s_mul_i32 s68, s68, 48")
        a("s_add_u32 s67, s67, s68")
        a("s_mul_i32 s67, s67, 5120")
        a("s_add_u32 s67, s67, %d" % WS_WD)
        a("s_add_u32 s68, s67, 4096")
        a("s_waitcnt lgkmcnt(0)")
        for dt in range(5):
            if dt < 4: a("buffer_store_dwordx4 v[%d:%d], v237, s[20:23], s67 offen offset:%d sc1" % (R + 4 * dt, R + 3 + 4 * dt, 1024 * dt))
            else: a("buffer_store_dwordx4 v[%d:%d], v237, s[20:23], s68 offen sc1" % (R + 4 * dt, R + 3 + 4 * dt))
    def gate_load(self):
        a = self.a
        a("v_and_b32 v1, 15, v0")
        a("v_lshlrev_b32 v1, 4, v1")
        for j in range(5):
            a("global_load_dwordx4 v[%d:%d], v1, s[%d:%d] offset:%d" % (8 + 4 * j, 11 + 4 * j, P_GW, P_GW + 1, 256 * j))
        a("v_lshrrev_b32 v2, 4, v0")
        a("s_movk_i32 s67, 1280")
        a("v_mul_lo_u32 v2, v2, s67")
        a("v_add_u32 v2, v2, v1")
        a("s_lshl_b32 s67, s2, 3")
        a("s_mul_i32 s67, s67, 1280")
        for half in range(2):
            for j in range(5):
                r = 28 + 20 * half + 4 * j
                a("buffer_load_dwordx4 v[%d:%d], v2, s[8:11], s67 offen offset:%d" % (r, r + 3, 256 * j))
            if half == 0: a("s_add_u32 s67, s67, %d" % (4 * 1280))
    def gate_compute(self):
        a = self.a
        R = 68
        for i in range(4): a("v_mov_b32 v%d, 0" % (R + i))
        for j in range(5):
            for e in range(4):
                for half in range(2):
                    acc = R + half + 2 * (e & 1)
                    a("v_dot2_f32_bf16 v%d, v%d, v%d, v%d" % (acc, 28 + 20 * half + 4 * j + e, 8 + 4 * j + e, acc))
        a("s_nop 2")
        a("v_add_f32 v%d, v%d, v%d" % (R, R, R + 2))
        a("v_add_f32 v%d, v%d, v%d" % (R + 1, R + 1, R + 3))
        a("s_nop 0")
        for ctl in ("row_shr:1", "row_shr:2", "row_shr:4", "row_shr:8"):
            for i in range(2):
                a("v_add_f32_dpp v%d, v%d, v%d %s row_mask:0xf bank_mask:0xf bound_ctrl:1" % (R + i, R + i, R + i, ctl))
            a("s_nop 0")
        for i in range(2): a("v_mul_f32 v%d, 0xbfb8aa3b, v%d" % (R + i, R + i))
        for i in range(2): a("v_exp_f32 v%d, v%d" % (R + i, R + i))
        a("s_nop 0")
        for i in range(2): a("v_add_f32 v%d, 1.0, v%d" % (R + i, R + i))
        for i in range(2): a("v_rcp_f32 v%d, v%d" % (R + i, R + i))
        a("s_lshl_b32 s67, s2, 5")
        a("s_add_u32 s67, s67, %d" % WS_G)
        a("v_lshrrev_b32 v1, 4, v0")
        a("v_lshlrev_b32 v1, 2, v1")
        a("s_mov_b32 exec_lo, 0x80008000")
        a("s_mov_b32 exec_hi, 0x80008000")
        a("buffer_store_dword v%d, v1, s[20:23], s67 offen sc1" % R)
        a("buffer_store_dword v%d, v1, s[20:23], s67 offen offset:16 sc1" % (R + 1))
        a("s_mov_b64 exec, -1")
    def ut_read(self, chunk_reg, stage_base, H):
        a = self.a
        if "noutr" in self.ph: return
        a("s_and_b32 s67, %s, 1" % chunk_reg)
        a("s_cmp_eq_u32 s67, 0")
        a("s_cselect_b64 vcc, -1, 0")
        a("s_nop 0")
        a("v_cndmask_b32 v4, v239, v238, vcc")
        a("v_add_u32 v4, %d, v4" % stage_base)
        for aa in range(2):
            for it in range(4):
                for hh in range(2):
                    r = H + (aa * 4 + it) * 4 + 2 * hh
                    a("ds_read_b64_tr_b16 v[%d:%d], v4 offset:%d" % (r, r + 1, 4096 * it + 512 * hh + 32 * (aa ^ hh)))
        a("s_waitcnt lgkmcnt(0)")
    def ut_store(self, chunk_reg, H):
        a = self.a
        if "nout" in self.ph: return
        a("s_mul_i32 s67, %s, %d" % (chunk_reg, 32 * ROWS))
        a("s_lshl_b32 s68, s4, 8")
        a("s_add_u32 s67, s67, s68")
        a("s_add_u32 s67, s67, %d" % WS_UT)
        a("s_add_u32 s68, s67, %d" % (16 * ROWS))
        for aa in range(2):
            for it in range(4):
                r = H + (aa * 4 + it) * 4
                a("buffer_store_dwordx4 v[%d:%d], v240, s[20:23], s%d offen offset:%d sc1" % (r, r + 3, 67 + aa, 64 * it))

    def pretouch(self):
        a = self.a
        a("v_and_b32 v1, 7, v0")
        a("v_lshlrev_b32 v1, 21, v1")
        a("buffer_load_dword v63, v1, s[20:23], 0 offen")
        a("v_and_b32 v1, 1, v0")
        a("v_lshlrev_b32 v1, 21, v1")
        a("buffer_load_dword v63, v1, s[24:27], 0 offen")
    def s_side(self):
        a = self.a
        if "noside" in self.ph:
            for b in range(11 if self.fused() else 12): a("s_barrier")
            return
        HA, HB = 100, 132
        def cond_b(fn):
            l = self.newlab("wb")
            a("s_cmp_ge_u32 s51, 384")
            a("s_cbranch_scc1 %s" % l)
            fn()
            a.lab(l)
        self.side_setup()
        self.rot_r("s50", "s67")
        a("s_and_b32 s68, s5, 1")
        a("s_lshl_b32 s50, s50, 1")
        a("s_add_u32 s50, s50, s68")
        a("s_add_u32 s53, s50, 2")
        a("s_lshr_b32 s67, s5, 1")
        a("s_and_b32 s67, s67, 3")
        a("s_cmp_eq_u32 s67, 0")
        a("s_cselect_b32 s53, s53, 99")
        if self.fused():
            a("v_mov_b32 v1, %d" % LDS_CNT)
            a("v_mov_b32 v2, 0")
            a("v_mov_b32 v3, 0")
            a("ds_write_b64 v1, v[2:3]")
            a("ds_write_b64 v1, v[2:3] offset:8")
            a("ds_write_b64 v1, v[2:3] offset:16")
            a("ds_write_b32 v1, v2 offset:24")
        self.stamp(5)
        a("s_barrier")
        if self.fused(): self.nonce_load()
        a("s_barrier")
        self.stamp(1)
        self.ut_read("s50", 0, HA)
        def uflag(creg):
            a("s_lshl_b32 s69, %s, 5" % creg)
            a("s_add_u32 s69, s69, s4")
            a("s_lshl_b32 s69, s69, 2")
            a("s_add_u32 s69, s69, %d" % WS_FU)
            self.flag_set("s69", 2)
        def n_lt4(fn):
            l = self.newlab("ut")
            a("s_cmp_ge_u32 s53, 20")
            a("s_cbranch_scc1 %s" % l)
            fn()
            a.lab(l)
        def wflag(ureg):
            a("s_and_b32 s68, %s, 7" % ureg)
            a("s_lshl_b32 s68, s68, 8")
            a("s_lshr_b32 s69, %s, 3" % ureg)
            a("s_lshl_b32 s69, s69, 2")
            a("s_add_u32 s69, s69, s68")
            a("s_add_u32 s69, s69, %d" % WS_FW)
            self.flag_set("s69", 2)
        early = "utearly" in self.ph
        if early: self.ut_store("s50", HA)
        for kk in range(10):
            if not (kk == 9 and self.fused()): a("s_barrier")
            if kk == 0:
                n_lt4(lambda: self.ut_read("s53", 1 * STAGE, HB))
                if early: n_lt4(lambda: self.ut_store("s53", HB))
            if kk == 1:
                if not early:
                    self.ut_store("s50", HA)
                    n_lt4(lambda: self.ut_store("s53", HB))
            if kk == 3:
                a("s_waitcnt vmcnt(0)")
                if self.fused():
                    self.nonce_publish_local()
                    uflag("s50")
                    n_lt4(lambda: uflag("s53"))
            if kk == 7:
                if self.fused(): self.s3_uw_look()
                self.wd_load("s2", 0)
                cond_b(lambda: self.wd_load("s51", 5120))
            if kk == 8:
                if self.fused():
                    l = self.newlab("uw")
                    a("s_waitcnt vmcnt(5)")
                    a("v_cmp_eq_u32 vcc, s64, v92")
                    a("s_nop 1")
                    a("s_cmp_eq_u64 vcc, -1")
                    a("s_cbranch_scc1 %s" % l)
                    self.poll(self.s3_uw_loads, [92], 6, sleep=2)
                    a.lab(l)
                    self.s3_u_loads()
                    a("v_mov_b32 v1, %d" % LDS_UOK)
                    a("v_mov_b32 v2, 3")
                    a("ds_write_b32 v1, v2")
                    a("s_waitcnt vmcnt(12)")
                else:
                    a("s_waitcnt vmcnt(0)")
                self.wd_store("s2", 0)
                cond_b(lambda: self.wd_store("s51", 5120, 180))
                self.gate_load()
        self.stamp(2)
        if self.fused():
            a("s_setprio 2")
            a("s_waitcnt vmcnt(15)")
            wflag("s2")
            cond_b(lambda: wflag("s51"))
            self.lds_spin(LDS_SFREE, 2, 4)
        self.stamp(3)
        if self.fused():
            self.s3_u_copies(extra=None)
            a("s_waitcnt lgkmcnt(0)")
            a("v_mov_b32 v1, %d" % LDS_UCOK)
            a("v_mov_b32 v2, 1")
            a("ds_write_b32 v1, v2")
            a("s_setprio 0")
            self.stamp(4)
            a("s_waitcnt vmcnt(0)")
            self.gate_compute()
            a("s_waitcnt vmcnt(0)")
            a("s_lshl_b32 s69, s2, 2")
            a("s_add_u32 s69, s69, %d" % WS_FG)
            self.flag_set("s69", 2)
        else:
            a("s_waitcnt vmcnt(0)")
            self.gate_compute()
            a("s_waitcnt vmcnt(0)")
            self.stamp(4)

    def s3_uw_addr(self):
        a = self.a
        a("v_lshrrev_b32 v1, 4, v0")
        a("v_lshlrev_b32 v1, 8, v1")
        a("v_add_u32 v1, s2, v1")
        a("v_mov_b32 v2, s2")
        a("v_cmp_gt_u32 vcc, 640, v1")
        a("s_nop 1")
        a("v_cndmask_b32 v1, v2, v1, vcc")
        a("v_lshrrev_b32 v1, 5, v1")
        a("v_lshlrev_b32 v1, 7, v1")
        a("v_and_b32 v2, 15, v0")
        a("v_lshl_add_u32 v1, v2, 2, v1")
        a("v_add_u32 v90, %d, v1" % WS_FU)
    def s3_uw_loads(self):
        a = self.a
        a("buffer_load_dword v92, v90, s[20:23], 0 offen sc1")
    def s3_uw_look(self):
        self.s3_uw_addr()
        self.s3_uw_loads()
    def s3_uw_check(self):
        a = self.a
        l = self.newlab("uw")
        a("s_waitcnt vmcnt(0)")
        a("v_cmp_eq_u32 vcc, s64, v92")
        a("v_cmp_eq_u32 s[76:77], s64, v93")
        a("s_nop 1")
        a("s_and_b64 vcc, vcc, s[76:77]")
        a("s_cmp_eq_u64 vcc, -1")
        a("s_cbranch_scc1 %s" % l)
        self.poll(self.s3_uw_loads, [92, 93], 6, sleep=2)
        a.lab(l)

    def s3_channels(self):
        a = self.a
        a("s_mov_b32 s70, s2")
        a("s_add_u32 s71, s2, 256")
        a("s_add_u32 s72, s2, 512")
        a("s_cmp_lt_u32 s72, 640")
        a("s_cselect_b32 s72, s72, s2")

    def s3_u_loads(self):
        a = self.a
        self.s3_channels()
        a("v_lshlrev_b32 v1, 4, v0")
        for sg in range(3):
            a("s_mul_i32 s67, s%d, %d" % (70 + sg, ROWS))
            a("s_add_u32 s67, s67, %d" % WS_UT)
            for i in range(4):
                r = 100 + 16 * sg + 4 * i
                a("buffer_load_dwordx4 v[%d:%d], v1, s[20:23], s67 offen offset:%d sc1" % (r, r + 3, 1024 * i))

    def s3_u_copies(self, extra=0):
        a = self.a
        Z = 150
        for i in range(4): a("v_mov_b32 v%d, 0" % (Z + i))
        a("v_lshlrev_b32 v2, 4, v0")
        a("v_cmp_eq_u32 vcc, 0, v0")
        for sg in range(3):
            base = LDS_UC + sg * UC_SZ
            for b in range(4):
                a("ds_write_b128 v2, v[%d:%d] offset:%d" % (Z, Z + 3, base + b * UC_STRIDE))
        for sg in range(3):
            base = LDS_UC + sg * UC_SZ
            if extra is not None: a("s_waitcnt vmcnt(%d)" % (4 * (2 - sg) + extra))
            for i in range(4):
                D = 100 + 16 * sg + 4 * i
                R3, R2 = 154 + 2 * (i & 1), 155 + 2 * (i & 1)
                Q3, Q2 = 154 + 2 * ((i + 1) & 1), 155 + 2 * ((i + 1) & 1)
                T1 = 160 + 12 * (i & 1); T0 = T1 + 4; T2 = T1 + 8
                P2 = 158
                a("v_mov_b32_dpp v%d, v%d wave_ror:1 row_mask:0xf bank_mask:0xf" % (R3, D + 3))
                a("v_mov_b32_dpp v%d, v%d wave_ror:1 row_mask:0xf bank_mask:0xf" % (R2, D + 2))
                a("v_mov_b32 v%d, v%d" % (T1 + 1, D))
                a("v_mov_b32 v%d, v%d" % (T1 + 2, D + 1))
                a("v_mov_b32 v%d, v%d" % (T1 + 3, D + 2))
                if i == 0:
                    a("v_cndmask_b32 v%d, v%d, v%d, vcc" % (T1, R3, Z))
                    a("v_cndmask_b32 v%d, v%d, v%d, vcc" % (P2, R2, Z))
                else:
                    a("v_cndmask_b32 v%d, v%d, v%d, vcc" % (T1, R3, Q3))
                    a("v_cndmask_b32 v%d, v%d, v%d, vcc" % (P2, R2, Q2))
                off = base + 4 * (96 + 256 * i)
                a("ds_write_b128 v2, v[%d:%d] offset:%d" % (D, D + 3, off + 3 * UC_STRIDE))
                a("v_alignbit_b32 v%d, v%d, v%d, 16" % (T0, T1, P2))
                a("v_alignbit_b32 v%d, v%d, v%d, 16" % (T0 + 1, D, T1))
                a("v_alignbit_b32 v%d, v%d, v%d, 16" % (T0 + 2, D + 1, D))
                a("v_alignbit_b32 v%d, v%d, v%d, 16" % (T0 + 3, D + 2, D + 1))
                a("ds_write_b128 v2, v[%d:%d] offset:%d" % (T1, T1 + 3, off + 1 * UC_STRIDE))
                a("v_mov_b32 v%d, v%d" % (T2, T0 + 1))
                a("v_mov_b32 v%d, v%d" % (T2 + 1, T0 + 2))
                a("v_mov_b32 v%d, v%d" % (T2 + 2, T0 + 3))
                a("v_alignbit_b32 v%d, v%d, v%d, 16" % (T2 + 3, D + 3, D + 2))
                a("ds_write_b128 v2, v[%d:%d] offset:%d" % (T0, T0 + 3, off + 0 * UC_STRIDE))
                a("ds_write_b128 v2, v[%d:%d] offset:%d" % (T2, T2 + 3, off + 2 * UC_STRIDE))

    def s_phase1(self):
        a = self.a
        n = self.name
        a("s_sub_u32 s66, s3, 4")
        a("s_cmp_eq_u32 s66, 3")
        a("s_cbranch_scc1 %s_sj" % n)
        self.s_kgen_phase1()
        a("s_branch %s_p1done" % n)
        a.lab("%s_sj" % n)
        self.s_side()
        a.lab("%s_p1done" % n)

    def ssm_param_loads(self, slots=(0, 1, 2), scalars=True):
        a = self.a
        a("s_mul_i32 s67, s50, 384")
        a("v_lshl_add_u32 v1, v0, 1, s67")
        for sl in slots:
            for k, p in enumerate((P_ARE, P_AIM, P_BRE, P_BIM, P_CRE, P_CIM)):
                a("global_load_ushort v%d, v1, s[%d:%d] offset:%d" % (200 + 6 * sl + k, p, p + 1, 128 * sl))
        if scalars:
            a("s_lshl_b32 s67, s50, 1")
            a("v_mov_b32 v223, s67")
            a("global_load_ushort v218, v223, s[%d:%d]" % (P_LDT, P_LDT + 1))
            a("global_load_ushort v219, v223, s[%d:%d]" % (P_DSK, P_DSK + 1))

    def kgen_bases(self):
        a = self.a
        a("s_mul_i32 s51, s66, %d" % TAB_SZ)
        a("s_add_u32 s51, s51, %d" % LDS_TAB)
        a("s_mul_i32 s52, s66, %d" % KR_SZ)
        a("s_add_u32 s52, s52, %d" % LDS_KR)

    def kgen(self, part="all"):
        a = self.a
        if part == "all": self.kgen_bases()
        self._kgen_body(part)

    def _kgen_body(self, part):
        a = self.a
        head = part in ("all", "head", "rest"); tail = part in ("all", "tail", "rest")
        real_a = a
        if not head: a = Asm()
        a("v_and_b32 v4, 15, v0")
        a("v_lshrrev_b32 v5, 4, v0")
        a("v_mul_u32_u24 v2, %d, v4" % TABROW)
        a("v_lshl_add_u32 v2, v5, 6, v2")
        a("v_add_u32 v2, s51, v2")
        a("v_and_b32 v6, 1, v5")
        a("v_lshl_add_u32 v3, v6, 3, v2")
        a("v_xor_b32 v6, 1, v6")
        a("v_lshl_add_u32 v2, v6, 3, v2")
        a("s_mov_b32 m0, s51")
        a("s_nop 0")
        if part == "all" or (part == "rest" and not self.fused()): a("s_waitcnt vmcnt(0)")
        a("v_lshlrev_b32 v218, 16, v218")
        a("v_lshlrev_b32 v219, 16, v219")
        a("v_mul_f32 v6, 0x3fb8aa3b, v218")
        a("s_mov_b32 s67, 0x3fb8aa3b")
        a("v_fma_f32 v7, v218, s67, -v6")
        a("v_fmac_f32 v7, 0x32a57060, v218")
        a("v_exp_f32 v6, v6")
        a("v_mul_f32 v7, 0x3f317218, v7")
        a("v_fma_f32 v6, v6, v7, v6")
        a("v_cvt_pk_bf16_f32 v6, v6, v6")
        a("v_lshlrev_b32 v218, 16, v6")
        W1, W16, W256, W512, W768, W1024 = 10, 12, 14, 16, 18, 20
        WX = 22
        CB = 24
        Y = 26; P = 28; TMP1 = 30; TMP2 = 32; TMP3 = 34
        PK = 36
        V = 50
        CV = 66
        YF = 76
        AF = 92
        ACC = 108
        nopk = (part == "head") and ("pkhead" not in self.ph)
        def cmul(out, x, w, t):
            if nopk:
                return ["v_mul_f32 v%d, v%d, v%d" % (t, x + 1, w + 1),
                        "v_mul_f32 v%d, v%d, v%d" % (t + 1, x, w + 1),
                        "v_fma_f32 v%d, v%d, v%d, -v%d" % (out, x, w, t),
                        "v_fma_f32 v%d, v%d, v%d, v%d" % (out + 1, x + 1, w, t + 1)]
            return ["v_pk_mul_f32 v[%d:%d], v[%d:%d], v[%d:%d] op_sel:[0,0] op_sel_hi:[0,1]" % (t, t + 1, x, x + 1, w, w + 1),
                    "v_pk_fma_f32 v[%d:%d], v[%d:%d], v[%d:%d], v[%d:%d] op_sel:[1,1,0] op_sel_hi:[1,0,1] neg_lo:[1,0,0]" % (out, out + 1, x, x + 1, w, w + 1, t, t + 1)]
        def zipl(*ls):
            o = []
            for i in range(max(len(l) for l in ls)):
                for l in ls:
                    if i < len(l): o.append(l[i])
            return o
        cvn = [0, 0]
        def wr(val, tile, row, neg, bank=0):
            c = CV + 4 * bank + (cvn[bank] % 4); cvn[bank] += 1
            return ["v_cvt_pk_bf16_f32 v%d, v%d, %sv%d" % (c, val, "-" if neg else "", val + 1),
                    "ds_write_addtid_b32 v%d offset:%d" % (c, tile * TABTILE + row * TABROW)]
        def frag_reads(dst, tile):
            L = []
            for kk in range(4):
                L.append("ds_read_b64 v[%d:%d], v3 offset:%d" % (dst + 4 * kk, dst + 4 * kk + 1, tile * TABTILE + 16 * kk))
                L.append("ds_read_b64 v[%d:%d], v2 offset:%d" % (dst + 4 * kk + 2, dst + 4 * kk + 3, tile * TABTILE + 16 * kk))
            return L
        def mm(t, first):
            L = []
            for kk in range(4):
                c = "0" if (first and kk == 0) else "v[%d:%d]" % (ACC + 4 * t, ACC + 4 * t + 3)
                L.append("v_mfma_f32_16x16x32_bf16 v[%d:%d], v[%d:%d], v[%d:%d], %s" % (ACC + 4 * t, ACC + 4 * t + 3, AF + 4 * kk, AF + 4 * kk + 3, YF + 4 * kk, YF + 4 * kk + 3, c))
            return L
        a = real_a
        nh = 2 if "kg2" in self.ph else 1
        slots = [0, 1, 2] if part in ("all", "rest") else (list(range(nh)) if part == "head" else list(range(nh, 3)))
        for sl in slots:
            if sl == 1 and part == "tail" and not self.fused(): a("s_waitcnt vmcnt(0)")
            if sl == 2 and part in ("rest", "tail"): self.stamp(3)
            if sl == 2 and "prioT" in self.ph: a("s_setprio 2")
            if sl == slots[0] and part in ("tail", "rest") and "prioT0" in self.ph: a("s_setprio 2")
            pr = 200 + 6 * sl
            for k in range(6): a("v_lshlrev_b32 v%d, 16, v%d" % (pr + k, pr + k))
            a("v_mul_f32 v6, v218, v%d" % pr)
            a("v_mul_f32 v7, v218, v%d" % (pr + 1))
            a("v_mul_f32 v6, 0x3fb8aa3b, v6")
            a("v_mul_f32 v7, 0.15915494, v7")
            a("v_mul_f32 v8, v218, v%d" % (pr + 2))
            a("v_mul_f32 v9, v218, v%d" % (pr + 3))
            a.ext(cmul(CB, pr + 4, 8, TMP1))
            for w, k in ((W1, 1.0), (W16, 16.0), (W256, 256.0)):
                if k == 1.0:
                    a("v_exp_f32 v%d, v6" % TMP2)
                    a("v_fract_f32 v%d, v7" % TMP3)
                else:
                    lit = "0x41800000" if k == 16.0 else "0x43800000"
                    a("v_mul_f32 v%d, %s, v6" % (TMP2, lit))
                    a("v_mul_f32 v%d, %s, v7" % (TMP3, lit))
                    a("v_exp_f32 v%d, v%d" % (TMP2, TMP2))
                    a("v_fract_f32 v%d, v%d" % (TMP3, TMP3))
                a("v_cos_f32 v%d, v%d" % (w, TMP3))
                a("v_sin_f32 v%d, v%d" % (w + 1, TMP3))
                a("s_nop 0")
                a("v_mul_f32 v%d, v%d, v%d" % (w, w, TMP2))
                a("v_mul_f32 v%d, v%d, v%d" % (w + 1, w + 1, TMP2))
            if sl != slots[0]:
                a("s_waitcnt lgkmcnt(0)")
                a.ext(pend_mm2)
            LY = ["v_mov_b32 v%d, v%d" % (Y, CB), "v_mov_b32 v%d, v%d" % (Y + 1, CB + 1)] + wr(Y, 0, 0, False)
            for j in range(1, 16):
                LY += cmul(Y, Y, W16, TMP1) + wr(Y, 0, j, False)
            LA = ["v_mov_b32 v%d, 1.0" % P, "v_mov_b32 v%d, 0" % (P + 1)] + wr(P, 1, 0, True, 1)
            cur = P
            for r in range(1, 16):
                if r == 1:
                    LA += ["v_mov_b32 v%d, v%d" % (P, W1), "v_mov_b32 v%d, v%d" % (P + 1, W1 + 1)]
                    cur = P
                else:
                    dst = PK + 2 * (r // 2 - 1) if r % 2 == 0 else P
                    LA += cmul(dst, cur, W1, TMP2)
                    cur = dst
                LA += wr(cur, 1, r, True, 1)
            a.ext(zipl(LY, LA))
            a.ext(cmul(W512, W256, W256, TMP1))
            a.ext(frag_reads(YF, 0)); a.ext(frag_reads(AF, 1))
            a.ext(zipl(cmul(W768, W512, W256, TMP1), cmul(W1024, W512, W512, TMP2)))
            def pk(i): return PK + 2 * (i // 2 - 1)
            vals = []
            A2 = []
            regs = []
            for r in range(8):
                if r == 0: regs.append(W256)
                else:
                    dst = V + 2 * (r - 1) if r < 8 else None
                    A2.append(cmul(dst, pk(2 * r), W256, TMP1 if r % 2 else TMP2)); regs.append(dst)
            a.ext(zipl(sum(A2[0::2], []), sum(A2[1::2], [])))
            a("s_waitcnt lgkmcnt(0)")
            m = mm(0, sl == 0)
            L = []
            for r in range(8): L += wr(regs[r], 1, r, True)
            a.ext(interleave(m, L))
            LA = []; LB = []
            for b in range(4):
                if b == 0:
                    LA += wr(W512, 1, 8, True); LB += wr(W768, 1, 12, True, 1)
                else:
                    LA += cmul(V, pk(4 * b), W512, TMP1) + wr(V, 1, 8 + b, True)
                    LB += cmul(V + 2, pk(4 * b), W768, TMP2) + wr(V + 2, 1, 12 + b, True, 1)
            a.ext(zipl(LA, LB))
            a.ext(frag_reads(AF, 1))
            a.ext(zipl(cmul(V, W1024, W256, TMP1), cmul(V + 2, W1024, W512, TMP2)))
            a.ext(zipl(cmul(V + 4, W1024, W768, TMP1), cmul(V + 6, W1024, W1024, TMP2)))
            ws = [W1024, V, V + 2, V + 4]
            a.ext(zipl(cmul(V + 8, ws[0], pk(8), TMP1), cmul(V + 10, ws[1], pk(8), TMP2)))
            a.ext(zipl(cmul(V + 12, ws[2], pk(8), TMP1), cmul(V + 14, ws[3], pk(8), TMP2)))
            a("s_waitcnt lgkmcnt(0)")
            m = mm(1, sl == 0)
            L = []
            for i in range(4):
                L += wr(ws[i], 1, 2 * i, True) + wr(V + 8 + 2 * i, 1, 2 * i + 1, True)
            L += wr(V + 6, 1, 8, True)
            a.ext(interleave(m, L))
            a.ext(frag_reads(AF, 1))
            pend_mm2 = mm(2, sl == 0)
            if sl == slots[-1]:
                a("s_waitcnt lgkmcnt(0)")
                a.ext(pend_mm2); pend_mm2 = None
        if not tail: return
        self.stamp(1)
        A0, A1, A2r = ACC, ACC + 4, ACC + 8
        a("v_cmp_eq_u32 vcc, 0, v0")
        a("v_and_b32 v4, 15, v0")
        a("v_lshrrev_b32 v5, 4, v0")
        a("v_cndmask_b32 v6, 0, v219, vcc")
        a("v_lshlrev_b32 v7, 5, v4")
        a("v_lshl_add_u32 v7, v5, 4, v7")
        a("v_lshlrev_b32 v8, 4, v4")
        a("v_lshl_add_u32 v8, v5, 8, v8")
        a("v_cmp_gt_u32 vcc, 2, v5")
        a("v_add_f32 v%d, v%d, v6" % (A0, A0))
        a("s_nop 0")
        a("v_cndmask_b32 v7, v8, v7, vcc")
        a("v_add_u32 v7, s51, v7")
        a("v_lshlrev_b32 v8, 3, v4")
        a("v_lshl_add_u32 v8, v5, 8, v8")
        a("v_add_u32 v8, s51, v8")
        a("s_nop 4")
        a("ds_write_b128 v7, v[%d:%d]" % (A1, A1 + 3))
        a("ds_write_b64 v8, v[%d:%d] offset:1024" % (A2r, A2r + 1))
        a("ds_write_b64 v8, v[%d:%d] offset:1152" % (A2r + 2, A2r + 3))
        a("v_cvt_pk_bf16_f32 v10, v%d, v%d" % (A0 + 3, A0 + 2))
        a("v_cvt_pk_bf16_f32 v11, v%d, v%d" % (A0 + 1, A0))
        a("v_lshlrev_b32 v9, 5, v4")
        a("v_lshl_add_u32 v9, v5, 3, v9")
        a("v_sub_u32 v9, 4088, v9")
        a("v_add_u32 v9, s52, v9")
        a("ds_write_b64 v9, v[10:11]")
        a("v_and_b32 v9, 31, v0")
        a("v_lshlrev_b32 v9, 2, v9")
        a("v_add_u32 v9, s52, v9")
        a("v_mov_b32 v12, 0")
        a("ds_write_b32 v9, v12 offset:4096")
        a("v_lshlrev_b32 v13, 4, v0")
        a("v_add_u32 v14, s51, v13")
        a("v_lshlrev_b32 v15, 3, v0")
        a("v_add_u32 v15, s51, v15")
        a("v_lshlrev_b32 v16, 2, v0")
        a("v_add_u32 v16, s51, v16")
        a("v_sub_u32 v13, s52, v13")
        a("s_waitcnt lgkmcnt(0)")
        a("ds_read_b128 v[20:23], v14")
        a("ds_read_b32 v24, v14 offset:16")
        a("ds_read_b64 v[26:27], v15 offset:512")
        a("ds_read_b32 v28, v15 offset:520")
        a("ds_read2_b32 v[30:31], v16 offset0:0 offset1:1")
        a.l.pop()
        a("v_add_u32 v17, 1024, v16")
        a("ds_read2_b32 v[30:31], v17 offset0:0 offset1:1")
        a("ds_read2_b32 v[32:33], v17 offset0:64 offset1:65")
        a("v_and_b32 v18, 1, v0")
        a("v_cmp_eq_u32 vcc, 1, v18")
        a("s_waitcnt lgkmcnt(0)")
        a("v_cvt_pk_bf16_f32 v36, v28, v28")
        a("v_cvt_pk_bf16_f32 v37, v27, v27")
        a("v_cvt_pk_bf16_f32 v38, v27, v26")
        a("v_cvt_pk_bf16_f32 v39, v26, v26")
        a("ds_write_b128 v13, v[36:39] offset:3056")
        for ps in range(2):
            v0_, v1_ = 30 + 2 * ps, 31 + 2 * ps
            o = 40 + 4 * ps
            a("v_cndmask_b32 v19, v%d, v%d, vcc" % (v0_, v1_))
            a("v_cvt_pk_bf16_f32 v%d, v%d, v%d" % (o, v1_, v1_))
            a("v_cvt_pk_bf16_f32 v%d, v%d, v19" % (o + 1, v1_))
            a("v_cvt_pk_bf16_f32 v%d, v%d, v%d" % (o + 2, v0_, v0_))
            a("v_mov_b32 v%d, v%d" % (o + 3, o + 2))
        a("ds_write_b128 v13, v[40:43] offset:2032")
        a("ds_write_b128 v13, v[44:47] offset:1008")
        a("v_cvt_pk_bf16_f32 v48, v24, v23")
        a("v_cvt_pk_bf16_f32 v49, v22, v22")
        a("v_cvt_pk_bf16_f32 v50, v22, v21")
        a("v_cvt_pk_bf16_f32 v51, v20, v20")
        a("s_mov_b32 exec_hi, 0")
        a("ds_write_b128 v13, v[48:51] offset:3568")
        a("s_mov_b32 exec_hi, -1")
        if "dumpk" in self.ph:
            a("s_waitcnt lgkmcnt(0)")
            a("v_lshlrev_b32 v13, 4, v0")
            a("v_add_u32 v14, s52, v13")
            a("s_mul_i32 s67, s50, 4224")
            a("s_add_u32 s67, s67, %d" % WS_DBG)
            for i in range(5):
                a("ds_read_b128 v[20:23], v14 offset:%d" % (1024 * i))
                a("s_waitcnt lgkmcnt(0)")
                if i == 4: a("s_mov_b32 exec_hi, 0"); a("s_mov_b32 exec_lo, 0xff")
                a("s_add_u32 s68, s67, %d" % (1024 * i))
                a("buffer_store_dwordx4 v[20:23], v13, s[20:23], s68 offen")
                a("s_waitcnt vmcnt(0)")
            a("s_mov_b64 exec, -1")

    def u_look(self):
        a = self.a
        self.nonce_read(120)
        a("s_lshr_b32 s78, s50, 5")
        a("s_lshl_b32 s78, s78, 7")
        a("s_add_u32 s78, s78, %d" % WS_FU)
        a("v_and_b32 v120, 15, v0")
        a("v_lshlrev_b32 v120, 2, v120")
        a("buffer_load_dword v121, v120, s[20:23], s78 offen sc1")
    def u_prefetch(self):
        a = self.a
        l = self.newlab("uok")
        a("s_waitcnt vmcnt(0)")
        a("v_cmp_eq_u32 vcc, s64, v121")
        a("s_nop 1")
        a("s_cmp_eq_u64 vcc, -1")
        a("s_cbranch_scc1 %s" % l)
        self.poll_line("s78", 16, 120, sleep=4)
        a.lab(l)
        self.conv_loads()
        self.lds_inc(LDS_UOK, 152)

    def conv_loads(self):
        a = self.a
        a("s_mul_i32 s67, s50, %d" % ROWS)
        a("s_add_u32 s67, s67, %d" % (WS_UT - 4))
        a("v_lshlrev_b32 v1, 2, v0")
        for i in range(16):
            a("buffer_load_dwordx2 v[%d:%d], v1, s[20:23], s67 offen offset:%d sc1" % (120 + 2 * i, 121 + 2 * i, 256 * i))

    def conv(self):
        a = self.a
        D = 120
        a("s_mul_i32 s53, s66, %d" % UC_SZ)
        if LDS_UC: a("s_add_u32 s53, s53, %d" % LDS_UC)
        if not self.fused():
            a("s_mov_b32 m0, s53")
            a("v_mov_b32 v2, 0")
            for b in range(4):
                a("ds_write_addtid_b32 v2 offset:%d" % (b * UC_STRIDE))
                a("ds_write_addtid_b32 v2 offset:%d" % (b * UC_STRIDE + 33 * 4))
            a("v_cmp_eq_u32 vcc, 0, v0")
            a("s_waitcnt vmcnt(0)")
            a("v_cndmask_b32 v%d, v%d, v2, vcc" % (D, D))
            for i in range(16):
                lo, hi = D + 2 * i, D + 2 * i + 1
                o = 4 + (i % 4)
                a("v_alignbit_b32 v%d, v%d, v%d, 16" % (o, hi, lo))
                a("ds_write_addtid_b32 v%d offset:%d" % (hi, 3 * UC_STRIDE + 4 * (64 * i + 96)))
                a("ds_write_addtid_b32 v%d offset:%d" % (hi, 1 * UC_STRIDE + 4 * (64 * i + 97)))
                a("ds_write_addtid_b32 v%d offset:%d" % (o, 2 * UC_STRIDE + 4 * (64 * i + 96)))
                a("ds_write_addtid_b32 v%d offset:%d" % (o, 0 * UC_STRIDE + 4 * (64 * i + 97)))
        VU, VK = 8, 9
        a("v_and_b32 v4, 3, v0")
        a("v_mul_u32_u24 v4, %d, v4" % UC_STRIDE)
        a("v_bfe_u32 v5, v0, 2, 2")
        a("v_lshl_add_u32 v4, v5, 7, v4")
        a("v_lshrrev_b32 v5, 4, v0")
        a("v_lshl_add_u32 v4, v5, 4, v4")
        a("v_add_u32 v%d, s53, v4" % VU)
        a("v_and_b32 v6, 15, v0")
        a("v_lshlrev_b32 v7, 3, v6")
        a("v_sub_u32 v7, 120, v7")
        a("v_lshl_add_u32 v7, v5, 4, v7")
        a("v_add_u32 v%d, s52, v7" % VK)
        a("v_lshlrev_b32 v10, 3, v6")
        a("v_lshl_add_u32 v10, v5, 7, v10")
        ACC = 16; SETS = [48, 112]
        def reads(rho, S):
            L = []
            for z in range(8):
                L.append("ds_read_b128 v[%d:%d], v%d offset:%d" % (S + 4 * z, S + 4 * z + 3, VU, 512 * z + 64 * (7 - rho)))
                zz = 8 * z + rho
                L.append("ds_read_b64 v[%d:%d], v%d offset:%d" % (S + 32 + 4 * z, S + 33 + 4 * z, VK, 64 * (63 - zz)))
                L.append("ds_read_b64 v[%d:%d], v%d offset:%d" % (S + 34 + 4 * z, S + 35 + 4 * z, VK, 64 * (63 - zz) + 8))
            return L
        def mm(rho, S):
            L = []
            for ze in range(8):
                for nu in range(8 - ze):
                    n = ze + nu
                    c = "0" if (rho == 0 and ze == 0) else "v[%d:%d]" % (ACC + 4 * n, ACC + 4 * n + 3)
                    L.append("v_mfma_f32_16x16x32_bf16 v[%d:%d], v[%d:%d], v[%d:%d], %s" % (ACC + 4 * n, ACC + 4 * n + 3, S + 4 * nu, S + 4 * nu + 3, S + 32 + 4 * ze, S + 35 + 4 * ze, c))
            return L
        a("s_waitcnt lgkmcnt(0)")
        if self.fused(): self.lds_spin(LDS_UCOK, 12)
        self.stamp(4)
        a.ext(reads(0, SETS[0]))
        a("s_waitcnt lgkmcnt(0)")
        for rho in range(8):
            fill = reads(rho + 1, SETS[(rho + 1) & 1]) if rho < 7 else []
            a.ext(interleave(mm(rho, SETS[rho & 1]), fill, span=28))
            if rho < 7: a("s_waitcnt lgkmcnt(0)")
        self.stamp(7)
        a("s_mul_i32 s67, s50, %d" % ROWS)
        a("s_add_u32 s67, s67, %d" % WS_Y)
        a("s_nop 7")
        for n in range(8):
            o = 48 + 2 * n
            a("v_cvt_pk_bf16_f32 v%d, v%d, v%d" % (o, ACC + 4 * n, ACC + 4 * n + 1))
            a("v_cvt_pk_bf16_f32 v%d, v%d, v%d" % (o + 1, ACC + 4 * n + 2, ACC + 4 * n + 3))
            a("buffer_store_dwordx2 v[%d:%d], v10, s[20:23], s67 offen offset:%d sc1" % (o, o + 1, 512 * n))

    def s_ssm(self):
        a = self.a
        n = self.name
        a("s_sub_u32 s66, s3, 4")
        a("s_lshl_b32 s50, s66, 8")
        a("s_add_u32 s50, s50, s2")
        a("s_cmp_ge_u32 s66, 3")
        a("s_cbranch_scc1 %s_ssm_done" % n)
        if self.fused():
            l = self.newlab("nch")
            a("s_cmp_lt_u32 s50, 640")
            a("s_cbranch_scc1 %s" % l)
            a("s_branch %s_ssm_done" % n)
            a.lab(l)
        else:
            a("s_cmp_ge_u32 s50, 640")
            a("s_cbranch_scc1 %s_ssm_done" % n)
        if self.fused() and "g1" in self.ph:
            a("s_waitcnt vmcnt(0)")
        if "g1" not in self.ph:
            self.stamp(5)
            self.ssm_param_loads()
            self.kgen("all")
        elif "kghead" in self.ph:
            self.kgen("tail")
        else:
            self.kgen("rest")
        self.stamp(6)
        if not self.fused():
            self.conv_loads()
        self.conv()
        if "prioT" in self.ph or "prioT0" in self.ph: a("s_setprio 0")
        a("s_waitcnt vmcnt(0)")
        if self.fused():
            self.nonce_read(4)
            a("s_lshl_b32 s69, s50, 2")
            a("s_add_u32 s69, s69, %d" % WS_FY)
            self.flag_set("s69", 2)
        self.stamp(8)
        a.lab("%s_ssm_done" % n)

    def g_gemm2(self):
        a = self.a
        ACC = 0
        SETS = [80, 116, 152, 188]
        VB = 224
        VL = 228
        VB8 = 246
        T = 230
        acc = lambda dt, tau: ACC + (dt * 4 + tau) * 4
        a("v_mbcnt_lo_u32_b32 v%d, -1, 0" % T)
        a("v_mbcnt_hi_u32_b32 v%d, -1, v%d" % (T, T))
        a("v_lshlrev_b32 v%d, 4, v%d" % (VL, T))
        for tau in range(4):
            a("s_add_u32 s67, s3, %d" % tau)
            a("s_and_b32 s67, s67, 3")
            a("s_lshl_b32 s67, s67, 10")
            a("v_add_u32 v%d, s67, v%d" % (VB + tau, VL))
            a("v_lshlrev_b32 v%d, 3, v%d" % (VB8 + tau, T))
            a("v_add_u32 v%d, s67, v%d" % (VB8 + tau, VB8 + tau))
        a("s_mul_i32 s70, s6, 48")
        a("s_mul_i32 s67, s3, 12")
        a("s_add_u32 s70, s70, s67")
        a("s_lshl_b32 s70, s70, 12")
        if WS_H: a("s_add_u32 s70, s70, %d" % WS_H)
        a("s_mul_i32 s71, s7, 48")
        a("s_add_u32 s71, s71, s67")
        a("s_mul_i32 s71, s71, 5120")
        a("s_add_u32 s71, s71, %d" % WS_WD)
        a("s_add_u32 s72, s71, 4096")
        def loadsA(S):
            L = []
            for dt in range(5):
                if dt < 4: L.append("buffer_load_dwordx4 v[%d:%d], v%d, s[20:23], s71 offen offset:%d sc1" % (S + 16 + 4 * dt, S + 19 + 4 * dt, VL, 1024 * dt))
                else: L.append(("buffer_load_dwordx4 v[%d:%d], v%d, s[20:23], s72 offen sc1" % (S + 16 + 4 * dt, S + 19 + 4 * dt, VL),
                                "s_add_u32 s71, s71, 5120", "s_add_u32 s72, s72, 5120"))
            return L
        def loadsB(S, k):
            L = []
            for tau in range(4):
                if k % 3 == 1:
                    x = ("buffer_load_dwordx2 v[%d:%d], v%d, s[20:23], s70 offen sc1" % (S + 4 * tau, S + 4 * tau + 1, VB8 + tau),
                         "buffer_load_dwordx2 v[%d:%d], v%d, s[20:23], s70 offen offset:512 sc1" % (S + 4 * tau + 2, S + 4 * tau + 3, VB8 + tau))
                else:
                    x = ("buffer_load_dwordx4 v[%d:%d], v%d, s[20:23], s70 offen sc1" % (S + 4 * tau, S + 4 * tau + 3, VB + tau),)
                L.append(x if tau < 3 else x + ("s_add_u32 s70, s70, 4096",))
            return L
        nB = lambda k: 8 if k % 3 == 1 else 4
        def mm(S, first):
            L = []
            for dt in range(5):
                for tau in range(4):
                    c = "0" if first else "v[%d:%d]" % (acc(dt, tau), acc(dt, tau) + 3)
                    L.append("v_mfma_f32_16x16x32_bf16 v[%d:%d], v[%d:%d], v[%d:%d], %s" % (acc(dt, tau), acc(dt, tau) + 3, S + 16 + 4 * dt, S + 19 + 4 * dt, S + 4 * tau, S + 4 * tau + 3, c))
            return L
        NS = 12
        pre = "g1" in self.ph and "nopre" not in self.ph
        def red_slot(tau):
            a("s_add_u32 s67, s3, %d" % tau)
            a("s_and_b32 s67, s67, 3")
            a("s_mul_i32 s67, s67, 3")
            a("s_add_u32 s67, s67, %d" % (tau - 1))
            a("s_mul_i32 s67, s67, 5120")
            a("s_add_u32 s67, s67, %d" % LDS_RED)
        VRS = 250
        for tau in range(1, 4):
            red_slot(tau)
            a("v_add_u32 v%d, s67, v%d" % (VRS + tau - 1, VL))
            a("s_mov_b32 s%d, s67" % (72 + tau))
        if "g1" in self.ph:
            if self.fused(): self.nonce_read(232)
            self.g_signal_h(0)
        if pre:
            if self.fused():
                lo = self.newlab("ww"); ld = self.newlab("wd")
                a("s_cmp_lg_u32 s3, 0")
                a("s_cbranch_scc1 %s" % lo)
                self.lds_spin(LDS_SFREE, 232, 4)
                self.lds_spin(LDS_UOK, 232, 3)
                a("s_lshl_b32 s78, s7, 8")
                a("s_add_u32 s78, s78, %d" % WS_FW)
                self.poll_line("s78", 48, 232, sleep=2)
                a("v_mov_b32 v232, %d" % LDS_WOK)
                a("v_mov_b32 v233, 1")
                a("ds_write_b32 v232, v233")
                a("s_branch %s" % ld)
                a.lab(lo)
                self.lds_spin(LDS_WOK, 232)
                a.lab(ld)
            for k in range(4):
                a.ext(flat(loadsA(SETS[k])))
            for tau in range(1, 4):
                a("s_mov_b32 m0, s%d" % (72 + tau))
                a("s_nop 0")
                for dt in range(4):
                    a("buffer_load_dwordx4 v%d, s[20:23], s71 offen offset:%d sc1 lds" % (VL, 1024 * dt))
                a("s_add_u32 m0, s%d, 4096" % (72 + tau))
                a("s_add_u32 s71, s71, 5120")
                a("buffer_load_dwordx4 v%d, s[20:23], s72 offen sc1 lds" % VL)
                a("s_add_u32 s72, s72, 5120")
        self.g2_wait_inputs()
        self.stamp(5)
        self.clk(5)
        def srcA(k):
            if not pre: return "g"
            return "pre" if k < 4 else ("lds" if k < 7 else "g")
        def loadA_any(k):
            S = SETS[k % 4]
            if srcA(k) == "g": return loadsA(S)
            if srcA(k) == "lds":
                return ["ds_read_b128 v[%d:%d], v%d offset:%d" % (S + 16 + 4 * dt, S + 19 + 4 * dt, VRS + k - 4, 1024 * dt) for dt in range(5)]
            return []
        nL = lambda k: nB(k) + (5 if srcA(k) == "g" else 0)
        for k in range(3):
            a.ext(flat(loadsB(SETS[k], k) + loadA_any(k)))
        for k in range(NS):
            rem = sum(nL(j) for j in range(k + 1, min(NS - 1, k + 2) + 1))
            if srcA(k) == "lds": a("s_waitcnt vmcnt(%d) lgkmcnt(0)" % rem)
            else: a("s_waitcnt vmcnt(%d)" % rem)
            fill = (loadsB(SETS[(k + 3) % 4], k + 3) + loadA_any(k + 3)) if k + 3 < NS else []
            if "k2stamps" in self.ph and k < 9: self.stamp(k + 1, force=True)
            a.ext(interleave(mm(SETS[k % 4], k == 0), fill))
            if k + 3 == NS - 1 and self.fused(): self.lds_inc(LDS_GOK, 232)
        self.stamp(6)
        self.clk(7)
        a("s_nop 7")
        for tau in range(1, 4):
            for dt in range(5):
                a("ds_write_b128 v%d, v[%d:%d] offset:%d" % (VRS + tau - 1, acc(dt, tau), acc(dt, tau) + 3, 1024 * dt))
        a("s_waitcnt lgkmcnt(0)")
        a("s_barrier")
        self.stamp(7)
        a("s_mul_i32 s67, s3, %d" % (3 * 5120))
        a("s_add_u32 s67, s67, %d" % LDS_RED)
        a("v_add_u32 v%d, s67, v%d" % (T + 1, VL))
        R = 80
        for j in range(3):
            for dt in range(5):
                r = R + (j * 5 + dt) * 4
                a("ds_read_b128 v[%d:%d], v%d offset:%d" % (r, r + 3, T + 1, 5120 * j + 1024 * dt))
        Y = 140
        a("v_lshrrev_b32 v%d, 4, v%d" % (T + 2, T))
        a("v_and_b32 v%d, 15, v%d" % (T + 3, T))
        a("v_lshrrev_b32 v%d, 2, v%d" % (T + 4, T + 3))
        a("v_lshl_add_u32 v%d, v%d, 3, v%d" % (T + 5, T + 2, T + 4))
        a("v_lshl_add_u32 v%d, v%d, 2, v%d" % (T + 6, T + 2, T + 4))
        a("v_and_b32 v%d, 3, v%d" % (T + 7, T))
        a("v_lshlrev_b32 v%d, 3, v%d" % (T + 7, T + 7))
        a("s_lshl_b32 s67, s3, 5")
        a("s_add_u32 s67, s67, %d" % LDS_YT)
        a("v_add_u32 v%d, s67, v%d" % (T + 7, T + 7))
        a("v_lshl_add_u32 v%d, v%d, 7, v%d" % (T + 5, T + 5, T + 7))
        a("v_lshl_add_u32 v%d, v%d, 7, v%d" % (T + 6, T + 6, T + 7))
        for dt in range(5):
            if dt < 4: a("ds_read_b64_tr_b16 v[%d:%d], v%d offset:%d" % (Y + 2 * dt, Y + 2 * dt + 1, T + 5, 128 * (32 * (dt >> 1) + 4 * (dt & 1))))
            else: a("ds_read_b64_tr_b16 v[%d:%d], v%d offset:%d" % (Y + 2 * dt, Y + 2 * dt + 1, T + 6, 128 * 64))
        a("s_lshl_b32 s67, s3, 6")
        a("s_add_u32 s67, s67, %d" % LDS_GT)
        a("v_lshl_add_u32 v%d, v%d, 2, s67" % (T + 8, T + 3))
        a("ds_read_b32 v%d, v%d" % (T + 8, T + 8))
        a("s_lshl_b32 s67, s6, 6")
        a("s_lshl_b32 s68, s3, 4")
        a("s_add_u32 s67, s67, s68")
        a("v_add_u32 v%d, s67, v%d" % (T + 9, T + 3))
        a("s_movk_i32 s68, 1280")
        a("v_mul_lo_u32 v%d, v%d, s68" % (T + 9, T + 9))
        a("s_mul_i32 s68, s7, 160")
        a("v_add_u32 v%d, s68, v%d" % (T + 9, T + 9))
        a("v_lshl_add_u32 v%d, v%d, 3, v%d" % (T + 10, T + 2, T + 9))
        a("v_lshl_add_u32 v%d, v%d, 4, v%d" % (T + 9, T + 2, T + 9))
        a("s_waitcnt lgkmcnt(0)")
        for dt in range(5):
            for h in range(2):
                x = acc(dt, 0) + 2 * h
                p = [R + (j * 5 + dt) * 4 + 2 * h for j in range(3)]
                a("v_pk_add_f32 v[%d:%d], v[%d:%d], v[%d:%d]" % (p[0], p[0] + 1, p[0], p[0] + 1, p[1], p[1] + 1))
                a("v_pk_add_f32 v[%d:%d], v[%d:%d], v[%d:%d]" % (x, x + 1, x, x + 1, p[2], p[2] + 1))
        for dt in range(5):
            for h in range(2):
                x = acc(dt, 0) + 2 * h
                p = R + dt * 4 + 2 * h
                a("v_pk_add_f32 v[%d:%d], v[%d:%d], v[%d:%d]" % (x, x + 1, x, x + 1, p, p + 1))
        U = 150
        for dt in range(5):
            for h in range(2):
                a("v_lshlrev_b32 v%d, 16, v%d" % (U + 4 * dt + 2 * h, Y + 2 * dt + h))
                a("v_and_b32 v%d, 0xffff0000, v%d" % (U + 4 * dt + 2 * h + 1, Y + 2 * dt + h))
        G2 = T + 12
        assert G2 % 2 == 0
        a("v_mov_b32 v%d, v%d" % (G2, T + 8))
        a("v_mov_b32 v%d, v%d" % (G2 + 1, T + 8))
        for dt in range(5):
            for h in range(2):
                x = acc(dt, 0) + 2 * h; u = U + 4 * dt + 2 * h
                a("v_pk_add_f32 v[%d:%d], v[%d:%d], v[%d:%d] neg_lo:[0,1] neg_hi:[0,1]" % (u, u + 1, u, u + 1, x, x + 1))
        for dt in range(5):
            for h in range(2):
                x = acc(dt, 0) + 2 * h; u = U + 4 * dt + 2 * h
                a("v_pk_fma_f32 v[%d:%d], v[%d:%d], v[%d:%d], v[%d:%d]" % (x, x + 1, u, u + 1, G2, G2 + 1, x, x + 1))
        O = 176
        for dt in range(5):
            for h in range(2):
                x = acc(dt, 0) + 2 * h
                a("v_cvt_pk_bf16_f32 v%d, v%d, v%d" % (O + 2 * dt + h, x, x + 1))
        a("buffer_store_dwordx4 v[%d:%d], v%d, s[24:27], 0 offen" % (O, O + 3, T + 9))
        a("buffer_store_dwordx4 v[%d:%d], v%d, s[24:27], 0 offen offset:64" % (O + 4, O + 7, T + 9))
        a("buffer_store_dwordx2 v[%d:%d], v%d, s[24:27], 0 offen offset:128" % (O + 8, O + 9, T + 10))
        self.stamp(8)

    def g2_wait_inputs(self):
        if not self.fused(): return
        a = self.a
        T = 232
        lo = self.newlab("hw"); ld = self.newlab("hd"); lp = self.newlab("hs")
        a("s_cmp_lg_u32 s3, 0")
        a("s_cbranch_scc1 %s" % lo)
        a("s_lshr_b32 s78, s6, 1")
        a("s_lshl_b32 s78, s78, 7")
        a("s_add_u32 s78, s78, %d" % WS_FH)
        self.poll_line("s78", 16, T, sleep=4)
        a("v_mov_b32 v%d, %d" % (T, LDS_HOK))
        a("v_mov_b32 v%d, 1" % (T + 1))
        a("ds_write_b32 v%d, v%d" % (T, T + 1))
        a("s_branch %s" % ld)
        a.lab(lo)
        self.lds_spin(LDS_HOK, T)
        a.lab(ld)

    def s_final(self):
        a = self.a
        n = self.name
        l = self.newlab("fin")
        a("s_cmp_lg_u32 s3, 7")
        a("s_cbranch_scc1 %s" % l)
        if self.fused(): self.lds_spin(LDS_GOK, 2, 4)
        self.y_wait_inputs()
        a("v_mbcnt_lo_u32_b32 v0, -1, 0")
        a("v_mbcnt_hi_u32_b32 v0, -1, v0")
        a("v_lshrrev_b32 v1, 3, v0")
        a("v_mul_u32_u24 v1, %d, v1" % ROWS)
        a("v_and_b32 v2, 7, v0")
        a("v_lshl_add_u32 v1, v2, 4, v1")
        a("s_mul_i32 s67, s7, %d" % (80 * ROWS))
        a("s_lshl_b32 s68, s6, 7")
        a("s_add_u32 s67, s67, s68")
        a("s_add_u32 s67, s67, %d" % WS_Y)
        for i in range(10):
            a("buffer_load_dwordx4 v[%d:%d], v1, s[20:23], s67 offen sc1" % (8 + 4 * i, 11 + 4 * i))
            if i < 9: a("s_add_u32 s67, s67, %d" % (8 * ROWS))
        a("s_lshl_b32 s67, s6, 8")
        a("s_add_u32 s67, s67, %d" % WS_G)
        a("v_lshlrev_b32 v3, 2, v0")
        a("buffer_load_dword v4, v3, s[20:23], s67 offen sc1")
        a("v_lshlrev_b32 v2, 4, v0")
        a("v_add_u32 v2, %d, v2" % LDS_YT)
        a("v_add_u32 v3, %d, v3" % LDS_GT)
        a("s_waitcnt vmcnt(0)")
        for i in range(10):
            a("ds_write_b128 v2, v[%d:%d] offset:%d" % (8 + 4 * i, 11 + 4 * i, 1024 * i))
        a("ds_write_b32 v3, v4")
        a("s_waitcnt lgkmcnt(0)")
        a("s_barrier")
        if self.fused(): self.nonce_update()
        a("s_branch %s_fd" % l)
        a.lab(l)
        a("s_barrier")
        a.lab("%s_fd" % l)

    def y_wait_inputs(self):
        if not self.fused(): return
        a = self.a
        a("v_mbcnt_lo_u32_b32 v0, -1, 0")
        a("v_mbcnt_hi_u32_b32 v0, -1, v0")
        a("s_mul_i32 s67, s7, 320")
        a("s_add_u32 s67, s67, %d" % WS_FY)
        a("v_lshl_add_u32 v1, v0, 2, s67")
        a("v_add_u32 v2, 256, v1")
        a("s_lshl_b32 s68, s6, 5")
        a("s_add_u32 s68, s68, %d" % (WS_FG - 64))
        a("v_lshl_add_u32 v3, v0, 2, s68")
        a("v_cmp_le_u32 vcc, 16, v0")
        a("s_nop 1")
        a("v_cndmask_b32 v2, v2, v3, vcc")
        a("v_subrev_u32 v3, 24, v0")
        a("v_lshlrev_b32 v3, 10, v3")
        a("s_lshl_b32 s68, s2, 2")
        a("s_add_u32 s68, s68, %d" % WS_FY)
        a("v_add_u32 v3, s68, v3")
        a("v_cmp_le_u32 vcc, 24, v0")
        a("s_nop 1")
        a("v_cndmask_b32 v2, v2, v3, vcc")
        a("s_cmp_lt_u32 s2, 128")
        a("s_cselect_b32 s68, 27, 26")
        a("v_mov_b32 v3, s67")
        a("v_cmp_le_u32 vcc, s68, v0")
        a("s_nop 1")
        a("v_cndmask_b32 v2, v2, v3, vcc")
        def loads():
            a("buffer_load_dword v4, v1, s[20:23], 0 offen sc1")
            a("buffer_load_dword v5, v2, s[20:23], 0 offen sc1")
        self.poll(loads, [4, 5], 6, sleep=8)

    def fused(self): return "fused" in self.ph

    def nonce_load(self):
        a = self.a
        a("v_mov_b32 v1, 0")
        a("s_mov_b32 s67, %d" % WS_NON)
        a("buffer_load_dword v242, v1, s[20:23], s67 offen sc1")
    def nonce_publish_local(self):
        a = self.a
        a("v_add_u32 v242, 1, v242")
        a("v_mov_b32 v1, %d" % LDS_NONCE)
        a("ds_write_b32 v1, v242")
        a("v_readfirstlane_b32 s64, v242")
    def nonce_update(self):
        a = self.a
        l = self.newlab("nu")
        a("s_cmp_lg_u32 s2, 0")
        a("s_cbranch_scc1 %s" % l)
        a("v_mbcnt_lo_u32_b32 v2, -1, 0")
        a("v_mbcnt_hi_u32_b32 v2, -1, v2")
        a("v_lshlrev_b32 v2, 4, v2")
        a("s_mov_b32 s78, %d" % WS_FG)
        self.poll(lambda: a("buffer_load_dwordx4 v[4:7], v2, s[20:23], s78 offen sc1"), [4, 5, 6, 7], 2, sleep=8)
        a("s_mov_b32 s69, %d" % WS_NON)
        self.flag_set("s69", 2)
        a.lab(l)

    def nonce_read(self, vt):
        a = self.a
        a("v_mov_b32 v%d, %d" % (vt, LDS_NONCE))
        a("ds_read_b32 v%d, v%d" % (vt, vt))
        a("s_waitcnt lgkmcnt(0)")
        a("v_readfirstlane_b32 s64, v%d" % vt)

    def flag_set(self, soff_reg, vt):
        a = self.a
        a("v_mov_b32 v%d, s64" % vt)
        a("v_mov_b32 v%d, 0" % (vt + 1))
        a("s_mov_b64 exec, 1")
        a("buffer_store_dword v%d, v%d, s[20:23], %s offen sc1" % (vt, vt + 1, soff_reg))
        a("s_mov_b64 exec, -1")

    def poll(self, loads, vregs, vt, sleep=8):
        a = self.a
        lp = self.newlab("pl"); ld = self.newlab("pd")
        a("s_mov_b32 s69, 0")
        a.lab(lp)
        loads()
        a("s_waitcnt vmcnt(0)")
        for i, r in enumerate(vregs):
            if i == 0: a("v_cmp_eq_u32 vcc, s64, v%d" % r)
            else:
                a("v_cmp_eq_u32 s[76:77], s64, v%d" % r)
                a("s_nop 1")
                a("s_and_b64 vcc, vcc, s[76:77]")
        a("s_nop 1")
        a("s_cmp_eq_u64 vcc, -1")
        a("s_cbranch_scc1 %s" % ld)
        a("s_add_u32 s69, s69, 1")
        a("s_cmp_lt_u32 s69, 0x40000")
        a("s_cbranch_scc0 %s" % ld)
        a("s_sleep %d" % sleep)
        a("s_branch %s" % lp)
        a.lab(ld)

    def poll_line(self, soff, nflags, vt, sleep=8):
        a = self.a
        a("v_mbcnt_lo_u32_b32 v%d, -1, 0" % vt)
        a("v_mbcnt_hi_u32_b32 v%d, -1, v%d" % (vt, vt))
        a("v_cmp_gt_u32 vcc, %d, v%d" % (nflags, vt))
        a("v_lshlrev_b32 v%d, 2, v%d" % (vt, vt))
        a("s_nop 0")
        a("v_cndmask_b32 v%d, 0, v%d, vcc" % (vt, vt))
        self.poll(lambda: a("buffer_load_dword v%d, v%d, s[20:23], %s offen sc1" % (vt + 1, vt, soff)), [vt + 1], vt, sleep)

    def build(self):
        a = self.a
        n = self.name
        a.l.append(".globl %s" % n)
        a.l.append(".p2align 8")
        a.l.append(".type %s,@function" % n)
        a.l.append("%s:" % n)
        self.prologue()
        a("s_cmp_ge_u32 s3, 4")
        a("s_cbranch_scc1 %s_S" % n)
        if "g1" in self.ph:
            self.g_gemm1()
        if "g2" in self.ph:
            self.g_gemm2()
        self.dbgtime_end()
        self.stamp_flush()
        a("s_endpgm")
        a.lab("%s_S" % n)
        if "g1" in self.ph:
            self.s_phase1()
        if "ssm" in self.ph:
            self.s_ssm()
        if "g2" in self.ph:
            self.s_final()
        self.stamp_flush()
        a.lab("%s_end" % n)
        a("s_endpgm")
        return a.text()

def kd(name):
    return """.amdhsa_kernel %s
  .amdhsa_next_free_vgpr 256
  .amdhsa_next_free_sgpr 102
  .amdhsa_accum_offset 256
  .amdhsa_group_segment_fixed_size 0
  .amdhsa_kernarg_size 136
  .amdhsa_user_sgpr_count 2
  .amdhsa_user_sgpr_kernarg_segment_ptr 1
  .amdhsa_system_sgpr_workgroup_id_x 1
.end_amdhsa_kernel
""" % name

HEADER = open("gated_mix__ssm_conv_s4__swiglu_ffn__prompt.s.ref").read().split("; Override launch")[0]

def emit(kernels, path):
    txt = HEADER
    if len(kernels) == 1:
        txt += "; @launch grid=(256,1,1) block=(512,1,1) lds=%d\n" % LDS_TOTAL
    else:
        for (n, p, s) in kernels:
            txt += "; @launch kernel=%s grid=(256,1,1) block=(512,1,1) lds=%d\n" % (n, LDS_TOTAL)
    txt += '.amdgcn_target "amdgcn-amd-amdhsa--gfx950"\n.text\n'
    for (n, p, s) in kernels:
        txt += Gen(n, p, s).build()
    txt += '.section .rodata,"a"\n'
    for (n, p, s) in kernels:
        txt += ".p2align 6\n" + kd(n)
    open(path, "w").write(txt)

if __name__ == "__main__":
    mode = sys.argv[1]; path = sys.argv[2]
    stamps = len(sys.argv) > 3 and sys.argv[3] == "stamps"
    if mode.startswith("g1+") or mode == "g1":
        emit([(KNAME, set(mode.split("+")), stamps)], path)
    elif mode == "g1,ssm":
        emit([("ka_kernel", {"g1"}, False), ("kb_kernel", {"ssm", "dumpk"}, stamps)], path)
    elif mode == "3k":
        emit([("ka_kernel", {"g1"}, False), ("kb_kernel", {"ssm"}, False), ("kc_kernel", {"g2"}, stamps)], path)
    elif mode == "3k+1":
        emit([("ka_kernel", {"g1"}, False), ("kb_kernel", {"ssm"}, False), ("kc_kernel", {"g2"}, stamps), ("kd_kernel", set(), False)], path)
    elif mode == "3k+3":
        emit([("ka_kernel", {"g1"}, False), ("kb_kernel", {"ssm"}, False), ("kc_kernel", {"g2"}, stamps), ("kd_kernel", set(), False), ("ke_kernel", set(), False), ("kf_kernel", set(), False)], path)
    elif mode == "3k_dbg":
        emit([("ka_kernel", {"g1", "dbgtime"}, False), ("kb_kernel", {"ssm"}, False), ("kc_kernel", {"g2", "dbgtime"}, False)], path)
    elif mode == "fused":
        emit([(KNAME, {"g1", "ssm", "g2", "fused"}, stamps)], path)
    elif mode == "fused_notouch":
        emit([(KNAME, {"g1", "ssm", "g2", "fused", "notouch"}, stamps)], path)
    elif mode == "fused_pk":
        emit([(KNAME, {"g1", "ssm", "g2", "fused", "pkhead"}, stamps)], path)
    elif mode.startswith("F:"):
        emit([(KNAME, {"g1", "ssm", "g2", "fused"} | set(mode[2:].split("+")), stamps)], path)
    elif mode == "fused_dbg":
        emit([(KNAME, {"g1", "ssm", "g2", "fused", "dbgtime"}, stamps)], path)
    elif mode == "g1,ssm,nodump":
        emit([("ka_kernel", {"g1"}, False), ("kb_kernel", {"ssm"}, stamps)], path)
```

```python
import sys, math

KNAME = "gated_mix__ssm_conv_s4__swiglu_ffn__prompt_kernel"

WS_H    = 0x000000
WS_WD   = 0x600000
ROWS    = 4224
WS_UT   = 0x800000
WS_Y    = 0xB00000
WS_G    = 0xE00000
WS_FU   = 0xE10000
WS_FW   = 0xE15000
WS_FH   = 0xE11000
WS_FY   = 0xE12000
WS_NON  = 0xE13000
WS_FG   = 0xE14000
WS_TS   = 0xF00000
WS_DBG  = 0x1000000

STAGE   = 40960
ST_WG   = 16384
ST_WU   = 28672
LDS_S   = 3 * STAGE
TABROW  = 272
TABTILE = 16 * TABROW
TAB_SZ  = 2 * TABTILE
LDS_TAB = LDS_S
KR_SZ   = 4224
LDS_KR  = LDS_TAB + 3 * TAB_SZ
LDS_MISC = LDS_KR + 3 * KR_SZ
LDS_TOTAL = 163840
LDS_NONCE = LDS_MISC
LDS_CNT   = LDS_MISC + 8
UC_STRIDE = 4640
UC_SZ   = 4 * UC_STRIDE
LDS_UC  = 0
LDS_WDS = STAGE
LDS_RED = 57344
LDS_YT  = LDS_TAB
LDS_GT  = LDS_MISC + 64
LDS_HOK = LDS_MISC + 12
LDS_WOK = LDS_MISC + 16
LDS_UOK = LDS_MISC + 20
LDS_GOK = LDS_MISC + 24
LDS_UCOK = LDS_MISC + 28
LDS_SFREE = LDS_MISC + 32

class Asm:
    def __init__(self):
        self.l = []
    def __call__(self, s):
        for x in s.split("\n"):
            x = x.strip()
            if x: self.l.append("    " + x)
    def lab(self, s):
        self.l.append(s + ":")
    def ext(self, lst):
        for x in lst: self(x)
    def text(self):
        return "\n".join(self.l) + "\n"

def interleave(main, fill, start=0, span=None):
    out = []
    m = len(fill)
    n = len(main) if span is None else min(len(main), start + span)
    j = 0
    for i, x in enumerate(main):
        out.append(x)
        if i >= start:
            tgt = (m * (i - start + 1) + (n - start) - 1) // (n - start) if n > start else m
            while j < min(tgt, m):
                f = fill[j]
                if isinstance(f, tuple): out.extend(f)
                else: out.append(f)
                j += 1
    while j < m:
        f = fill[j]
        if isinstance(f, tuple): out.extend(f)
        else: out.append(f)
        j += 1
    return out

def flat(L):
    o = []
    for x in L:
        if isinstance(x, tuple): o.extend(x)
        else: o.append(x)
    return o

def vr(a, n=1):
    return "v%d" % a if n == 1 else "v[%d:%d]" % (a, a + n - 1)
def sr(a, n=1):
    return "s%d" % a if n == 1 else "s[%d:%d]" % (a, a + n - 1)

S_W, S_WAVE, S_M, S_N, S_M2, S_N2 = 2, 3, 4, 5, 6, 7
SRD_X, SRD_WG, SRD_WU, SRD_WS, SRD_OUT, SRD_WD = 8, 12, 16, 20, 24, 28
P_U, P_ARE, P_AIM, P_BRE, P_BIM, P_CRE, P_CIM, P_LDT = 32, 34, 36, 38, 40, 42, 44, 46
P_DSK, P_BX, P_WG, P_WU, P_WD, P_GW, P_OUT, P_DBG, P_WS = 48, 50, 52, 54, 56, 58, 60, 62, 64
S_TS = 80

class Gen:
    def __init__(self, name, phases, stamps=False):
        self.name = name
        self.ph = phases
        self.a = Asm()
        self.stamps = stamps
        self.nlab = 0
    def newlab(self, p):
        self.nlab += 1
        return "L_%s_%s_%d" % (self.name[:6], p, self.nlab)

    def capture(self, fn):
        old = self.a
        self.a = Asm()
        fn()
        lst = [x.strip() for x in self.a.l]
        self.a = old
        return lst

    def clk(self, i):
        if "clk" in self.ph and self.stamps:
            self.a("s_memrealtime s[%d:%d]" % (S_TS + 2 * i, S_TS + 2 * i + 1))
            self.a("s_memtime s[%d:%d]" % (S_TS + 2 * i + 2, S_TS + 2 * i + 3))
            self.a("s_waitcnt lgkmcnt(0)")

    def stamp(self, i, force=False):
        if "clk" in self.ph and i != 0: return
        if ("kstamps" in self.ph or "k2stamps" in self.ph) and not force and i != 0: return
        if self.stamps:
            self.a("%s s[%d:%d]" % ("s_memrealtime" if "rt" in self.ph else "s_memtime", S_TS + 2 * i, S_TS + 2 * i + 1))
            self.a("s_waitcnt lgkmcnt(0)")
    def stamp_flush(self):
        if not self.stamps: return
        a = self.a
        a("s_lshl_b32 s66, s2, 3")
        a("s_add_u32 s66, s66, s3")
        a("s_lshl_b32 s66, s66, 7")
        a("s_add_u32 s66, s66, 0x%x" % WS_TS)
        a("v_mov_b32 v250, 0")
        for i in range(10):
            a("v_mov_b32 v252, s%d" % (S_TS + 2 * i))
            a("v_mov_b32 v253, s%d" % (S_TS + 2 * i + 1))
            a("buffer_store_dwordx2 v[252:253], v250, s[20:23], s66 offen offset:%d" % (8 * i))
            a("s_nop 1")
        a("s_waitcnt vmcnt(0)")

    def prologue(self):
        a = self.a
        a("s_cmp_ge_u32 s2, 256")
        a("s_cbranch_scc1 %s_end" % self.name)
        a("s_load_dwordx16 s[32:47], s[0:1], 0")
        a("s_load_dwordx16 s[48:63], s[0:1], 64")
        a("s_load_dwordx2 s[64:65], s[0:1], 128")
        a("v_lshrrev_b32 v1, 6, v0")
        a("v_and_b32 v0, 63, v0")
        a("v_readfirstlane_b32 s3, v1")
        a("s_and_b32 s66, s2, 7")
        a("s_lshr_b32 s67, s2, 3")
        a("s_and_b32 s68, s67, 7")
        a("s_lshr_b32 s69, s67, 3")
        a("s_and_b32 s70, s66, 1")
        a("s_lshl_b32 s70, s70, 3")
        a("s_or_b32 s4, s70, s68")
        a("s_lshr_b32 s70, s66, 1")
        a("s_lshl_b32 s70, s70, 2")
        a("s_or_b32 s5, s70, s69")
        a("s_and_b32 s70, s66, 3")
        a("s_lshl_b32 s70, s70, 3")
        a("s_or_b32 s6, s70, s68")
        a("s_lshr_b32 s70, s66, 2")
        a("s_lshl_b32 s70, s70, 2")
        a("s_or_b32 s7, s70, s69")
        if "sametile" in self.ph:
            a("s_mov_b32 s4, 0"); a("s_mov_b32 s5, 0")
        if "samem" in self.ph:
            a("s_mov_b32 s4, 0")
        if "samen" in self.ph:
            a("s_mov_b32 s5, 0")
        if self.stamps:
            for i in range(10):
                a("s_mov_b64 s[%d:%d], 0" % (S_TS + 2 * i, S_TS + 2 * i + 1))
        a("s_waitcnt lgkmcnt(0)")
        def srd(base, ptr, size):
            a("s_mov_b32 s%d, s%d" % (base, ptr))
            a("s_and_b32 s%d, s%d, 0xffff" % (base + 1, ptr + 1))
            a("s_mov_b32 s%d, 0x%x" % (base + 2, size))
            a("s_mov_b32 s%d, 0x20000" % (base + 3))
        srd(SRD_X, P_U, 2048 * 640 * 2)
        srd(SRD_WG, P_WG, 640 * 1536 * 2)
        srd(SRD_WU, P_WU, 640 * 1536 * 2)
        srd(SRD_WS, P_WS, 0x10000000)
        srd(SRD_OUT, P_OUT, 2048 * 640 * 2)
        srd(SRD_WD, P_WD, 640 * 1536 * 2)
        self.stamp(0)
        if "dbgtime" in self.ph:
            a("s_memrealtime s[96:97]")
            a("s_memtime s[98:99]")
            a("s_mov_b64 s[100:101], s[62:63]")
            a("s_waitcnt lgkmcnt(0)")

    def dbgtime_end(self):
        a = self.a
        if "dbgtime" not in self.ph: return
        l = self.newlab("dbt")
        a("s_cmp_lg_u32 s2, 0"); a("s_cbranch_scc1 %s" % l)
        a("s_cmp_lg_u32 s3, 0"); a("s_cbranch_scc1 %s" % l)
        a("s_waitcnt vmcnt(0)")
        a("s_memrealtime s[92:93]")
        a("s_memtime s[94:95]")
        a("s_waitcnt lgkmcnt(0)")
        a("s_sub_u32 s92, s92, s96")
        a("s_sub_u32 s94, s94, s98")
        a("v_mov_b32 v250, 0")
        a("v_mov_b32 v252, s92")
        a("v_mov_b32 v253, s94")
        a("v_mov_b32 v254, s96")
        a("v_mov_b32 v255, 0x1234")
        a("global_store_dwordx4 v250, v[252:255], s[100:101]")
        a("s_waitcnt vmcnt(0)")
        a.lab(l)

    def rot_r(self, dst, tmp):
        a = self.a
        a("s_lshr_b32 %s, s5, 1" % dst)
        a("s_cmp_ge_u32 %s, 5" % dst)
        a("s_cselect_b32 %s, 1, 0" % tmp)
        a("s_cmp_ge_u32 %s, 1" % dst)
        a("s_addc_u32 %s, %s, %s" % (dst, dst, tmp))

    def g_gemm1(self):
        a = self.a
        ACC = 0; FP = 96; FQ = 136
        VXB = 176
        VWA = 182
        VL16 = 196
        T = 200
        accg = lambda ft, tt: ACC + (ft * 4 + tt) * 4
        accu = lambda ft, tt: ACC + 48 + (ft * 4 + tt) * 4
        LANE = 197
        a("v_mov_b32 v%d, v0" % LANE)
        a("s_and_b32 s67, s3, 1")
        a("s_lshr_b32 s68, s3, 1")
        VOX = 191
        a("v_lshrrev_b32 v%d, 3, v%d" % (T, LANE))
        a("s_lshl_b32 s69, s4, 7")
        a("s_lshl_b32 s70, s3, 5")
        a("s_add_u32 s69, s69, s70")
        a("v_add_u32 v%d, s69, v%d" % (T, T))
        a("s_movk_i32 s70, 1280")
        a("v_mul_lo_u32 v%d, v%d, s70" % (T, T))
        a("v_and_b32 v%d, 7, v%d" % (T + 1, LANE))
        a("v_lshrrev_b32 v%d, 4, v%d" % (T + 2, LANE))
        a("v_xor_b32 v%d, v%d, v%d" % (T + 3, T + 1, T + 2))
        a("v_xor_b32 v%d, 4, v%d" % (T + 4, T + 3))
        a("v_lshl_add_u32 v%d, v%d, 4, v%d" % (VOX, T + 3, T))
        a("v_lshl_add_u32 v%d, v%d, 4, v%d" % (VOX + 1, T + 4, T))
        a("s_lshl_b32 s75, s3, 12")
        VOW = 193
        a("s_lshl_b32 s69, s3, 4")
        a("s_mul_i32 s69, s69, 3072")
        a("s_mul_i32 s70, s5, 192")
        a("s_add_u32 s69, s69, s70")
        a("s_mov_b32 s70, 43691")
        a("s_movk_i32 s71, 3072")
        for i in range(3):
            a("v_add_u32 v%d, %d, v%d" % (T, 64 * i, LANE))
            a("v_mul_lo_u32 v%d, v%d, s70" % (T + 1, T))
            a("v_lshrrev_b32 v%d, 19, v%d" % (T + 1, T + 1))
            a("v_mul_u32_u24 v%d, 12, v%d" % (T + 2, T + 1))
            a("v_sub_u32 v%d, v%d, v%d" % (T + 2, T, T + 2))
            a("v_lshrrev_b32 v%d, 2, v%d" % (T + 3, T + 1))
            a("v_and_b32 v%d, 2, v%d" % (T + 3, T + 3))
            a("v_xor_b32 v%d, v%d, v%d" % (T + 2, T + 2, T + 3))
            a("v_mul_lo_u32 v%d, v%d, s71" % (T + 1, T + 1))
            a("v_lshl_add_u32 v%d, v%d, 4, v%d" % (T + 1, T + 2, T + 1))
            a("v_add_u32 v%d, s69, v%d" % (T + 1, T + 1))
            a("v_subrev_u32 v%d, %d, v%d" % (VOW + i, 1024 * i, T + 1))
        a("s_mul_i32 s76, s3, 3072")
        a("s_add_u32 s77, s76, %d" % ST_WU)
        a("s_add_u32 s76, s76, %d" % ST_WG)
        self.rot_r("s74", "s72")
        def xdma(st):
            base = (st % 3) * STAGE
            L = []
            for i in range(4):
                if i == 0:
                    L.append(("s_lshl_b32 s72, s74, 7", "s_mul_i32 s73, s74, 196608", "s_add_u32 s74, s74, 1",
                              "s_add_u32 m0, s75, %d" % base, "s_cmp_eq_u32 s74, 10", "s_cselect_b32 s74, 0, s74",
                              "buffer_load_dwordx4 v%d, s[8:11], s72 offen lds" % VOX))
                else:
                    L.append(("s_add_u32 s70, s72, %d" % (9216 * i),
                              "buffer_load_dwordx4 v%d, s[8:11], s70 offen offset:%d lds" % (VOX + (i & 1), 1024 * i)))
            for mat, sm, srd in ((0, 76, "s[12:15]"), (1, 77, "s[16:19]")):
                for i in range(3):
                    ld = "buffer_load_dwordx4 v%d, %s, s73 offen offset:%d lds" % (VOW + i, srd, 1024 * i)
                    if i == 0: L.append(("s_add_u32 m0, s%d, %d" % (sm, base), "s_nop 0", ld))
                    else: L.append(ld)
            return L
        a.ext(flat(xdma(0)))
        a.ext(flat(xdma(1)))
        a("s_barrier")
        a("v_and_b32 v%d, 15, v%d" % (T, LANE))
        a("v_lshrrev_b32 v%d, 4, v%d" % (T + 1, LANE))
        a("s_lshl_b32 s69, s67, 6")
        a("v_add_u32 v%d, s69, v%d" % (T + 2, T))
        a("v_lshlrev_b32 v%d, 7, v%d" % (T + 2, T + 2))
        a("v_lshrrev_b32 v%d, 1, v%d" % (T + 3, T))
        a("v_and_b32 v%d, 7, v%d" % (T + 3, T + 3))
        a("v_xor_b32 v%d, v%d, v%d" % (T + 3, T + 3, T + 1))
        a("v_xor_b32 v%d, 4, v%d" % (T + 4, T + 3))
        a("v_lshl_add_u32 v%d, v%d, 4, v%d" % (VXB, T + 3, T + 2))
        a("v_lshl_add_u32 v%d, v%d, 4, v%d" % (VXB + 1, T + 4, T + 2))
        for st in (1, 2):
            for s in range(2):
                a("v_add_u32 v%d, %d, v%d" % (VXB + 2 * st + s, st * STAGE, VXB + s))
        a("v_lshrrev_b32 v%d, 2, v%d" % (T + 2, T))
        a("v_lshl_add_u32 v%d, v%d, 3, v%d" % (T + 2, T + 1, T + 2))
        a("v_mul_u32_u24 v%d, 192, v%d" % (T + 2, T + 2))
        a("v_and_b32 v%d, 3, v%d" % (T + 3, LANE))
        a("v_lshl_add_u32 v%d, v%d, 3, v%d" % (T + 2, T + 3, T + 2))
        a("v_add_u32 v%d, %d, v%d" % (T + 2, ST_WG, T + 2))
        a("v_and_b32 v%d, 1, v%d" % (T + 3, T + 1))
        a("s_lshl_b32 s69, s68, 2")
        a("s_add_u32 s78, s69, 1")
        a("s_add_u32 s79, s68, 2")
        for ft, sreg in ((0, 69), (1, 78), (2, 79)):
            a("v_xor_b32 v%d, s%d, v%d" % (T + 4, sreg, T + 3))
            a("v_lshl_add_u32 v%d, v%d, 5, v%d" % (VWA + ft, T + 4, T + 2))
        for st in (1, 2):
            for ft in range(3):
                a("v_add_u32 v%d, %d, v%d" % (VWA + 3 * st + ft, st * STAGE, VWA + ft))
        a("v_lshlrev_b32 v%d, 4, v%d" % (VL16, LANE))
        a("s_lshl_b32 s69, s4, 1")
        a("s_add_u32 s69, s69, s67")
        a("s_mul_i32 s69, s69, 48")
        a("s_mul_i32 s78, s5, 3")
        a("s_add_u32 s69, s69, s78")
        a("s_lshl_b32 s78, s68, 1")
        a("s_add_u32 s78, s78, s69")
        a("s_lshl_b32 s78, s78, 12")
        a("s_add_u32 s79, s69, 1")
        a("s_lshl_b32 s79, s79, 12")
        a("s_lshl_b32 s69, s68, 9")
        a("s_add_u32 s79, s79, s69")
        a("v_lshlrev_b32 v%d, 3, v%d" % (VL16 + 2, LANE))
        if WS_H:
            a("s_add_u32 s78, s78, %d" % WS_H); a("s_add_u32 s79, s79, %d" % WS_H)

        def reads(kk, s, F):
            st = kk % 3
            xs = ["ds_read_b128 v[%d:%d], v%d offset:%d" % (F + 4 * tt, F + 4 * tt + 3, VXB + 2 * st + s, 2048 * tt) for tt in range(4)]
            ws = []
            for mat in range(2):
                for ft in range(3):
                    r = F + 16 + (mat * 3 + ft) * 4
                    for h in range(2):
                        ws.append("ds_read_b64_tr_b16 v[%d:%d], v%d offset:%d" % (r + 2 * h, r + 2 * h + 1, VWA + 3 * st + ft, 12288 * mat + 6144 * s + 768 * h))
            order = [xs[0], ws[0], ws[1], xs[1], ws[6], ws[7], xs[2], xs[3]] + ws[2:6] + ws[8:]
            return order
        def mfmas(F, first):
            L = []
            for ft in range(3):
                for mat in range(2):
                    for tt in range(4):
                        acc = accg(ft, tt) if mat == 0 else accu(ft, tt)
                        A = F + 16 + (mat * 3 + ft) * 4
                        B = F + 4 * tt
                        c = "0" if first else "v[%d:%d]" % (acc, acc + 3)
                        L.append("v_mfma_f32_16x16x32_bf16 v[%d:%d], v[%d:%d], v[%d:%d], %s" % (acc, acc + 3, A, A + 3, B, B + 3, c))
            return L
        def spread(mm, d, first, step):
            out = []; cnt = 0; di = 0
            for x in mm:
                out.append(x)
                if x.startswith("v_mfma"):
                    cnt += 1
                    if cnt >= first and (cnt - first) % step == 0 and di < len(d):
                        f = d[di]; di += 1
                        out.extend(f if isinstance(f, tuple) else (f,))
            assert di == len(d), (di, len(d))
            return out
        self.stamp(5)
        a("s_waitcnt vmcnt(10)")
        a("s_barrier")
        self.stamp(1)
        self.clk(1)
        a.ext(reads(0, 0, FP))
        a("s_waitcnt lgkmcnt(0)")
        pend = xdma(2)
        for kk in range(10):
            mm = interleave(mfmas(FP, kk == 0), reads(kk, 1, FQ), span=16)
            if pend: mm = spread(mm, pend, 2, 5 if len(pend) <= 5 else 2)
            a.ext(mm)
            if kk <= 7: a("s_waitcnt vmcnt(10) lgkmcnt(0)")
            elif kk == 8: a("s_waitcnt vmcnt(0) lgkmcnt(0)")
            else: a("s_waitcnt lgkmcnt(0)")
            if kk == 9 and self.fused(): self.lds_inc(LDS_SFREE, T)
            else: a("s_barrier")
            if "kstamps" in self.ph and kk < 9: self.stamp(kk + 1, force=True)
            fill = reads(kk + 1, 0, FP) if kk + 1 < 10 else []
            mm = interleave(mfmas(FQ, False), fill, span=16)
            d = xdma(kk + 3) if kk + 3 < 10 else []
            pend = d[5:]
            if d: mm = spread(mm, d[:5], 2, 5)
            a.ext(mm)
            if kk + 1 < 10:
                a("s_waitcnt lgkmcnt(0)")
        self.stamp(2)
        self.clk(3)
        CN = FP; ONE = FP + 2
        a("v_mov_b32 v%d, 0xbfb8aa3b" % CN)
        a("v_mov_b32 v%d, 0xbfb8aa3b" % (CN + 1))
        a("v_mov_b32 v%d, 1.0" % ONE)
        a("v_mov_b32 v%d, 1.0" % (ONE + 1))
        grp = 0
        def silu(gregs, uregs, tmp, out):
            n = len(gregs)
            L = []
            for i in range(n): L.append("v_pk_mul_f32 v[%d:%d], v[%d:%d], v[%d:%d]" % (tmp + 2 * i, tmp + 2 * i + 1, gregs[i], gregs[i] + 1, CN, CN + 1))
            for i in range(2 * n): L.append("v_exp_f32 v%d, v%d" % (tmp + i, tmp + i))
            for i in range(n): L.append("v_pk_mul_f32 v[%d:%d], v[%d:%d], v[%d:%d]" % (gregs[i], gregs[i] + 1, gregs[i], gregs[i] + 1, uregs[i], uregs[i] + 1))
            for i in range(n): L.append("v_pk_add_f32 v[%d:%d], v[%d:%d], v[%d:%d]" % (tmp + 2 * i, tmp + 2 * i + 1, tmp + 2 * i, tmp + 2 * i + 1, ONE, ONE + 1))
            for i in range(2 * n): L.append("v_rcp_f32 v%d, v%d" % (tmp + i, tmp + i))
            if n < 2: L.append("s_nop 0")
            for i in range(n): L.append("v_pk_mul_f32 v[%d:%d], v[%d:%d], v[%d:%d]" % (gregs[i], gregs[i] + 1, gregs[i], gregs[i] + 1, tmp + 2 * i, tmp + 2 * i + 1))
            for i in range(n): L.append("v_cvt_pk_bf16_f32 v%d, v%d, v%d" % (out + i, gregs[i], gregs[i] + 1))
            return L
        for tt in range(4):
            tmp = FQ + (grp % 2) * 16; out = FP + 8 + (grp % 4) * 4; grp += 1
            g = [accg(0, tt), accg(0, tt) + 2, accg(1, tt), accg(1, tt) + 2]
            u = [accu(0, tt), accu(0, tt) + 2, accu(1, tt), accu(1, tt) + 2]
            a.ext(silu(g, u, tmp, out))
            a("buffer_store_dwordx4 v[%d:%d], v%d, s[20:23], s78 offen offset:%d sc1" % (out, out + 3, VL16, 1024 * tt))
            tmp = FQ + (grp % 2) * 16; out = FP + 8 + (grp % 4) * 4; grp += 1
            g = [accg(2, tt), accg(2, tt) + 2]
            u = [accu(2, tt), accu(2, tt) + 2]
            a.ext(silu(g, u, tmp, out))
            a("buffer_store_dwordx2 v[%d:%d], v%d, s[20:23], s79 offen offset:%d sc1" % (out, out + 1, VL16 + 2, 1024 * tt))
        self.stamp(3)
        if "g2" not in self.ph:
            a("s_waitcnt vmcnt(0)")
            self.stamp(4)

    def g_signal_h(self, nyounger):
        a = self.a
        T = 232
        a("s_waitcnt vmcnt(%d)" % nyounger)
        if self.fused():
            l = self.newlab("fh")
            a("v_mov_b32 v%d, %d" % (T, LDS_CNT))
            a("v_mov_b32 v%d, 1" % (T + 1))
            a("s_mov_b64 exec, 1")
            a("ds_add_rtn_u32 v%d, v%d, v%d" % (T + 2, T, T + 1))
            a("s_waitcnt lgkmcnt(0)")
            a("s_mov_b64 exec, -1")
            a("v_readfirstlane_b32 s69, v%d" % (T + 2))
            a("s_cmp_lg_u32 s69, 3")
            a("s_cbranch_scc1 %s" % l)
            a("s_lshl_b32 s69, s4, 5")
            a("s_add_u32 s69, s69, s5")
            a("s_lshl_b32 s69, s69, 2")
            a("s_add_u32 s69, s69, %d" % WS_FH)
            self.flag_set("s69", T)
            a.lab(l)
        self.stamp(4)

    def lds_inc(self, addr, vt):
        a = self.a
        a("v_mov_b32 v%d, %d" % (vt, addr))
        a("v_mov_b32 v%d, 1" % (vt + 1))
        a("s_mov_b64 exec, 1")
        a("ds_add_u32 v%d, v%d" % (vt, vt + 1))
        a("s_mov_b64 exec, -1")

    def lds_spin(self, addr, vt, val=1):
        a = self.a
        lp = self.newlab("ls"); ld = self.newlab("ld")
        a("v_mov_b32 v%d, %d" % (vt, addr))
        a("s_mov_b32 s69, 0")
        a.lab(lp)
        a("ds_read_b32 v%d, v%d" % (vt + 1, vt))
        a("s_waitcnt lgkmcnt(0)")
        a("v_readfirstlane_b32 s78, v%d" % (vt + 1))
        a("s_cmp_eq_u32 s78, %d" % val)
        a("s_cbranch_scc1 %s" % ld)
        a("s_add_u32 s69, s69, 1")
        a("s_cmp_lt_u32 s69, 0x400000")
        a("s_cbranch_scc0 %s" % ld)
        a("s_sleep 1")
        a("s_branch %s" % lp)
        a.lab(ld)

    def s_kgen_phase1(self):
        a = self.a
        NCH = 8
        chunks = [[] for _ in range(NCH)]
        if "ssm" in self.ph:
            a("s_lshl_b32 s50, s66, 8")
            a("s_add_u32 s50, s50, s2")
            a("s_min_u32 s50, s50, 639")
            self.kgen_bases()
            if "kghead" in self.ph:
                kg = self.capture(lambda: self.kgen("head"))
                per = (len(kg) + NCH - 1) // NCH
                chunks = [kg[i * per:(i + 1) * per] for i in range(NCH)]
        self.stamp(5)
        if "prioS" in self.ph: a("s_setprio 2")
        a("s_barrier")
        if "ssm" in self.ph and "kghead" in self.ph: self.ssm_param_loads(slots=((0, 1) if "kg2" in self.ph else (0,)))
        a("s_barrier")
        self.stamp(1)
        for kk in range(10):
            if not (kk == 9 and self.fused()): a("s_barrier")
            if kk == 1 and "kghead" in self.ph: a("s_waitcnt vmcnt(0)")
            if kk == 7 and "ssm" in self.ph:
                if "kghead" in self.ph: self.ssm_param_loads(slots=((2,) if "kg2" in self.ph else (1, 2)), scalars=False)
                else: self.ssm_param_loads()
            if 1 <= kk <= NCH: a.ext(chunks[kk - 1])
        self.stamp(2)

    def side_setup(self):
        a = self.a
        a("s_mov_b32 s67, 52429")
        a("s_movk_i32 s68, 1280")
        for i in range(5):
            a("v_add_u32 v1, %d, v0" % (64 * i))
            a("v_mul_lo_u32 v2, v1, s67")
            a("v_lshrrev_b32 v2, 19, v2")
            a("v_mul_u32_u24 v3, 10, v2")
            a("v_sub_u32 v3, v1, v3")
            a("v_mul_lo_u32 v2, v2, s68")
            a("v_lshl_add_u32 v%d, v3, 4, v2" % (230 + i))
        a("v_lshrrev_b32 v1, 4, v0")
        a("v_and_b32 v2, 15, v0")
        a("v_lshrrev_b32 v3, 2, v2")
        a("v_lshl_add_u32 v4, v1, 2, v3")
        a("v_mul_u32_u24 v4, 160, v4")
        a("v_add_u32 v4, %d, v4" % LDS_WDS)
        a("v_and_b32 v5, 3, v0")
        a("v_lshl_add_u32 v235, v5, 4, v4")
        a("v_lshl_add_u32 v236, v5, 3, v4")
        a("v_lshlrev_b32 v237, 4, v0")
        a("v_lshlrev_b32 v241, 2, v0")
        a("v_lshl_add_u32 v4, v1, 3, v3")
        a("v_lshlrev_b32 v4, 7, v4")
        a("v_bfe_u32 v5, v0, 1, 1")
        a("v_lshrrev_b32 v6, 1, v3")
        a("v_xor_b32 v5, v5, v6")
        a("v_lshl_add_u32 v4, v5, 4, v4")
        a("v_and_b32 v5, 1, v0")
        a("v_lshl_add_u32 v4, v5, 3, v4")
        a("v_and_b32 v5, 1, v1")
        a("v_lshl_add_u32 v238, v5, 6, v4")
        a("v_xor_b32 v5, 1, v5")
        a("v_lshl_add_u32 v239, v5, 6, v4")
        a("v_mul_u32_u24 v240, %d, v2" % ROWS)
        a("v_lshl_add_u32 v240, v1, 4, v240")
        a("s_add_u32 s51, s2, 128")
        a("s_cmp_ge_u32 s2, 128")
        a("s_cselect_b32 s51, s51, 999")
        a("s_lshr_b32 s52, s5, 1")
        a("s_add_u32 s53, s52, 8")
        a("s_cmp_lt_u32 s5, 4")
        a("s_cselect_b32 s53, s53, 99")
    def wd_load(self, ureg, scr):
        a = self.a
        if "nowd" in self.ph: return
        a("s_lshr_b32 s67, %s, 3" % ureg)
        a("s_and_b32 s68, %s, 7" % ureg)
        a("s_mul_i32 s69, s67, %d" % (32 * 1280))
        a("s_mul_i32 s67, s68, 160")
        a("s_add_u32 s69, s69, s67")
        for i in range(5):
            a("s_mov_b32 m0, %d" % (LDS_WDS + scr + 1024 * i))
            a("s_nop 0")
            a("buffer_load_dwordx4 v%d, s[28:31], s69 offen lds" % (230 + i))
    def wd_store(self, ureg, scr, R=160):
        a = self.a
        if "nowd" in self.ph: return
        for dt in range(5):
            for h in range(2):
                if dt < 4: ad, off = 235, 64 * (dt >> 1) + 8 * (dt & 1) + 2560 * h
                else: ad, off = 236, 128 + 2560 * h
                a("ds_read_b64_tr_b16 v[%d:%d], v%d offset:%d" % (R + 4 * dt + 2 * h, R + 1 + 4 * dt + 2 * h, ad, off + scr))
        a("s_lshr_b32 s67, %s, 3" % ureg)
        a("s_and_b32 s68, %s, 7" % ureg)
        a("s_mul_i32 s68, s68, 48")
        a("s_add_u32 s67, s67, s68")
        a("s_mul_i32 s67, s67, 5120")
        a("s_add_u32 s67, s67, %d" % WS_WD)
        a("s_add_u32 s68, s67, 4096")
        a("s_waitcnt lgkmcnt(0)")
        for dt in range(5):
            if dt < 4: a("buffer_store_dwordx4 v[%d:%d], v237, s[20:23], s67 offen offset:%d sc1" % (R + 4 * dt, R + 3 + 4 * dt, 1024 * dt))
            else: a("buffer_store_dwordx4 v[%d:%d], v237, s[20:23], s68 offen sc1" % (R + 4 * dt, R + 3 + 4 * dt))
    def gate_load(self):
        a = self.a
        a("v_and_b32 v1, 15, v0")
        a("v_lshlrev_b32 v1, 4, v1")
        for j in range(5):
            a("global_load_dwordx4 v[%d:%d], v1, s[%d:%d] offset:%d" % (8 + 4 * j, 11 + 4 * j, P_GW, P_GW + 1, 256 * j))
        a("v_lshrrev_b32 v2, 4, v0")
        a("s_movk_i32 s67, 1280")
        a("v_mul_lo_u32 v2, v2, s67")
        a("v_add_u32 v2, v2, v1")
        a("s_lshl_b32 s67, s2, 3")
        a("s_mul_i32 s67, s67, 1280")
        for half in range(2):
            for j in range(5):
                r = 28 + 20 * half + 4 * j
                a("buffer_load_dwordx4 v[%d:%d], v2, s[8:11], s67 offen offset:%d" % (r, r + 3, 256 * j))
            if half == 0: a("s_add_u32 s67, s67, %d" % (4 * 1280))
    def gate_compute(self):
        a = self.a
        R = 68
        for i in range(4): a("v_mov_b32 v%d, 0" % (R + i))
        for j in range(5):
            for e in range(4):
                for half in range(2):
                    acc = R + half + 2 * (e & 1)
                    a("v_dot2_f32_bf16 v%d, v%d, v%d, v%d" % (acc, 28 + 20 * half + 4 * j + e, 8 + 4 * j + e, acc))
        a("s_nop 2")
        a("v_add_f32 v%d, v%d, v%d" % (R, R, R + 2))
        a("v_add_f32 v%d, v%d, v%d" % (R + 1, R + 1, R + 3))
        a("s_nop 0")
        for ctl in ("row_shr:1", "row_shr:2", "row_shr:4", "row_shr:8"):
            for i in range(2):
                a("v_add_f32_dpp v%d, v%d, v%d %s row_mask:0xf bank_mask:0xf bound_ctrl:1" % (R + i, R + i, R + i, ctl))
            a("s_nop 0")
        for i in range(2): a("v_mul_f32 v%d, 0xbfb8aa3b, v%d" % (R + i, R + i))
        for i in range(2): a("v_exp_f32 v%d, v%d" % (R + i, R + i))
        a("s_nop 0")
        for i in range(2): a("v_add_f32 v%d, 1.0, v%d" % (R + i, R + i))
        for i in range(2): a("v_rcp_f32 v%d, v%d" % (R + i, R + i))
        a("s_lshl_b32 s67, s2, 5")
        a("s_add_u32 s67, s67, %d" % WS_G)
        a("v_lshrrev_b32 v1, 4, v0")
        a("v_lshlrev_b32 v1, 2, v1")
        a("s_mov_b32 exec_lo, 0x80008000")
        a("s_mov_b32 exec_hi, 0x80008000")
        a("buffer_store_dword v%d, v1, s[20:23], s67 offen sc1" % R)
        a("buffer_store_dword v%d, v1, s[20:23], s67 offen offset:16 sc1" % (R + 1))
        a("s_mov_b64 exec, -1")
    def ut_read(self, chunk_reg, stage_base, H):
        a = self.a
        if "noutr" in self.ph: return
        a("s_and_b32 s67, %s, 1" % chunk_reg)
        a("s_cmp_eq_u32 s67, 0")
        a("s_cselect_b64 vcc, -1, 0")
        a("s_nop 0")
        a("v_cndmask_b32 v4, v239, v238, vcc")
        a("v_add_u32 v4, %d, v4" % stage_base)
        for aa in range(2):
            for it in range(4):
                for hh in range(2):
                    r = H + (aa * 4 + it) * 4 + 2 * hh
                    a("ds_read_b64_tr_b16 v[%d:%d], v4 offset:%d" % (r, r + 1, 4096 * it + 512 * hh + 32 * (aa ^ hh)))
        a("s_waitcnt lgkmcnt(0)")
    def ut_store(self, chunk_reg, H):
        a = self.a
        if "nout" in self.ph: return
        a("s_mul_i32 s67, %s, %d" % (chunk_reg, 32 * ROWS))
        a("s_lshl_b32 s68, s4, 8")
        a("s_add_u32 s67, s67, s68")
        a("s_add_u32 s67, s67, %d" % WS_UT)
        a("s_add_u32 s68, s67, %d" % (16 * ROWS))
        for aa in range(2):
            for it in range(4):
                r = H + (aa * 4 + it) * 4
                a("buffer_store_dwordx4 v[%d:%d], v240, s[20:23], s%d offen offset:%d sc1" % (r, r + 3, 67 + aa, 64 * it))

    def pretouch(self):
        a = self.a
        a("v_and_b32 v1, 7, v0")
        a("v_lshlrev_b32 v1, 21, v1")
        a("buffer_load_dword v63, v1, s[20:23], 0 offen")
        a("v_and_b32 v1, 1, v0")
        a("v_lshlrev_b32 v1, 21, v1")
        a("buffer_load_dword v63, v1, s[24:27], 0 offen")
    def warm_inputs(self):
        a = self.a
        a("v_lshlrev_b32 v1, 7, v0")
        if "warmx" in self.ph:
            a("s_mul_i32 s67, s2, 10240")
            a("buffer_load_dword v244, v1, s[8:11], s67 offen")
            a("s_add_u32 s68, s67, 8192")
            a("s_mov_b32 exec_hi, 0")
            a("s_mov_b32 exec_lo, 0xffff")
            a("buffer_load_dword v244, v1, s[8:11], s68 offen")
            a("s_mov_b32 exec_lo, -1")
        a("s_mov_b32 exec_hi, 0x0fffffff")
        a("s_mul_i32 s67, s2, 7680")
        a("buffer_load_dword v244, v1, s[12:15], s67 offen")
        a("buffer_load_dword v244, v1, s[16:19], s67 offen")
        if "warm2" in self.ph:
            a("buffer_load_dword v244, v1, s[28:31], s67 offen")
        a("s_mov_b64 exec, -1")
        if "warm2" in self.ph:
            a("v_and_b32 v1, 7, v0")
            a("v_lshlrev_b32 v1, 7, v1")
            a("s_mul_i32 s67, s2, 960")
            a("v_add_u32 v1, s67, v1")
            a("v_min_u32 v1, %d, v1" % (245760 - 4))
            a("v_lshrrev_b32 v2, 3, v0")
            a("v_mov_b32 v4, s%d" % P_ARE); a("v_mov_b32 v5, s%d" % (P_ARE + 1))
            for k, p in enumerate((P_AIM, P_BRE, P_BIM, P_CRE, P_CIM)):
                a("v_cmp_eq_u32 vcc, %d, v2" % (k + 1))
                a("v_mov_b32 v6, s%d" % p); a("v_mov_b32 v7, s%d" % (p + 1))
                a("v_cndmask_b32 v4, v4, v6, vcc")
                a("v_cndmask_b32 v5, v5, v7, vcc")
            a("v_add_co_u32 v4, vcc, v4, v1")
            a("s_nop 1")
            a("v_addc_co_u32 v5, vcc, 0, v5, vcc")
            a("global_load_dword v244, v[4:5], off")

    def warm_code(self):
        a = self.a
        n = self.name
        l = self.newlab("pc")
        a("s_getpc_b64 s[68:69]")
        a.lab(l)
        a("s_sub_u32 s68, s68, %s-%s" % (l, n))
        a("s_subb_u32 s69, s69, 0")
        a("s_mov_b32 s67, (%s_end-%s+4095)/4096" % (n, n))
        a("s_lshr_b32 s70, s2, 3")
        a("s_mul_i32 s70, s70, s67")
        a("v_add_u32 v1, s70, v0")
        a("v_lshlrev_b32 v1, 7, v1")
        a("v_min_u32 v1, %s_end-%s, v1" % (n, n))
        a("v_cmp_gt_u32 vcc, s67, v0")
        a("s_and_saveexec_b64 s[70:71], vcc")
        a("global_load_dword v244, v1, s[68:69]")
        a("s_mov_b64 exec, s[70:71]")

    def smem_warm(self, part):
        a = self.a
        if part == 0:
            a("s_lshr_b32 s67, s2, 3")
            a("s_and_b32 s68, s2, 7")
            a("s_mul_i32 s67, s67, %d" % (32 * 1280))
            a("s_mul_i32 s68, s68, 160")
            a("s_add_u32 s67, s67, s68")
            a("s_add_u32 s70, s%d, s67" % P_WD)
            a("s_addc_u32 s71, s%d, 0" % (P_WD + 1))
            a("s_min_u32 s67, s51, 383")
            a("s_lshr_b32 s68, s67, 3")
            a("s_and_b32 s67, s67, 7")
            a("s_mul_i32 s68, s68, %d" % (32 * 1280))
            a("s_mul_i32 s67, s67, 160")
            a("s_add_u32 s67, s67, s68")
            a("s_add_u32 s72, s%d, s67" % P_WD)
            a("s_addc_u32 s73, s%d, 0" % (P_WD + 1))
        for r in range(8 * part, 8 * part + 8):
            pass
        for base in (70, 72):
            for r in range(8 * part, 8 * part + 8):
                if base == 70 or True:
                    a("s_load_dword s74, s[%d:%d], %d" % (base, base + 1, r * 1280))
    def smem_warm2(self, part):
        a = self.a
        for base in (70, 72):
            for r in range(8 * part, 8 * part + 8):
                a("s_load_dword s74, s[%d:%d], %d" % (base, base + 1, r * 1280 + 156))

    def s_side(self):
        a = self.a
        if "noside" in self.ph:
            for b in range(11 if self.fused() else 12): a("s_barrier")
            return
        HA, HB = 100, 132
        def cond_b(fn):
            l = self.newlab("wb")
            a("s_cmp_ge_u32 s51, 384")
            a("s_cbranch_scc1 %s" % l)
            fn()
            a.lab(l)
        if "warm0" in self.ph:
            self.warm_inputs()
            if "warmc" in self.ph: self.warm_code()
        self.side_setup()
        self.rot_r("s50", "s67")
        a("s_and_b32 s68, s5, 1")
        a("s_lshl_b32 s50, s50, 1")
        a("s_add_u32 s50, s50, s68")
        a("s_add_u32 s53, s50, 2")
        a("s_lshr_b32 s67, s5, 1")
        a("s_and_b32 s67, s67, 3")
        a("s_cmp_eq_u32 s67, 0")
        a("s_cselect_b32 s53, s53, 99")
        if self.fused():
            a("v_mov_b32 v1, %d" % LDS_CNT)
            a("v_mov_b32 v2, 0")
            a("v_mov_b32 v3, 0")
            a("ds_write_b64 v1, v[2:3]")
            a("ds_write_b64 v1, v[2:3] offset:8")
            a("ds_write_b64 v1, v[2:3] offset:16")
            a("ds_write_b32 v1, v2 offset:24")
        self.stamp(5)
        a("s_barrier")
        if self.fused(): self.nonce_load()
        if "warm0" not in self.ph:
            if "warmc" in self.ph: self.warm_code()
            if "warm" in self.ph or "warm2" in self.ph: self.warm_inputs()
        a("s_barrier")
        self.stamp(1)
        self.ut_read("s50", 0, HA)
        def uflag(creg):
            a("s_lshl_b32 s69, %s, 5" % creg)
            a("s_add_u32 s69, s69, s4")
            a("s_lshl_b32 s69, s69, 2")
            a("s_add_u32 s69, s69, %d" % WS_FU)
            self.flag_set("s69", 2)
        def n_lt4(fn):
            l = self.newlab("ut")
            a("s_cmp_ge_u32 s53, 20")
            a("s_cbranch_scc1 %s" % l)
            fn()
            a.lab(l)
        def wflag(ureg):
            a("s_and_b32 s68, %s, 7" % ureg)
            a("s_lshl_b32 s68, s68, 8")
            a("s_lshr_b32 s69, %s, 3" % ureg)
            a("s_lshl_b32 s69, s69, 2")
            a("s_add_u32 s69, s69, s68")
            a("s_add_u32 s69, s69, %d" % WS_FW)
            self.flag_set("s69", 2)
        early = "utearly" in self.ph
        if early: self.ut_store("s50", HA)
        for kk in range(10):
            if not (kk == 9 and self.fused()): a("s_barrier")
            if kk == 0:
                n_lt4(lambda: self.ut_read("s53", 1 * STAGE, HB))
                if early: n_lt4(lambda: self.ut_store("s53", HB))
            if kk == 1:
                if not early:
                    self.ut_store("s50", HA)
                    n_lt4(lambda: self.ut_store("s53", HB))
            if kk == 3:
                a("s_waitcnt vmcnt(0)")
                if self.fused():
                    self.nonce_publish_local()
                    uflag("s50")
                    n_lt4(lambda: uflag("s53"))
            if "swarm" in self.ph and 2 <= kk <= 5:
                self.smem_warm(kk - 2)
                self.smem_warm2(kk - 2)
            if kk == 7:
                if "swarm" in self.ph: a("s_waitcnt lgkmcnt(0)")
                if self.fused(): self.s3_uw_look()
                self.wd_load("s2", 0)
                cond_b(lambda: self.wd_load("s51", 5120))
            if kk == 8:
                if self.fused():
                    l = self.newlab("uw")
                    a("s_waitcnt vmcnt(5)")
                    a("v_cmp_eq_u32 vcc, s64, v92")
                    a("s_nop 1")
                    a("s_cmp_eq_u64 vcc, -1")
                    a("s_cbranch_scc1 %s" % l)
                    self.poll(self.s3_uw_loads, [92], 6, sleep=2)
                    a.lab(l)
                    self.s3_u_loads()
                    a("v_mov_b32 v1, %d" % LDS_UOK)
                    a("v_mov_b32 v2, 3")
                    a("ds_write_b32 v1, v2")
                    a("s_waitcnt vmcnt(12)")
                else:
                    a("s_waitcnt vmcnt(0)")
                self.wd_store("s2", 0)
                cond_b(lambda: self.wd_store("s51", 5120, 180))
                self.gate_load()
        self.stamp(2)
        if self.fused():
            a("s_setprio 2")
            a("s_waitcnt vmcnt(15)")
            wflag("s2")
            cond_b(lambda: wflag("s51"))
            self.lds_spin(LDS_SFREE, 2, 4)
        self.stamp(3)
        if self.fused():
            self.s3_u_copies(extra=None)
            a("s_waitcnt lgkmcnt(0)")
            a("v_mov_b32 v1, %d" % LDS_UCOK)
            a("v_mov_b32 v2, 1")
            a("ds_write_b32 v1, v2")
            a("s_setprio 0")
            self.stamp(4)
            a("s_waitcnt vmcnt(0)")
            self.gate_compute()
            a("s_waitcnt vmcnt(0)")
            a("s_lshl_b32 s69, s2, 2")
            a("s_add_u32 s69, s69, %d" % WS_FG)
            self.flag_set("s69", 2)
        else:
            a("s_waitcnt vmcnt(0)")
            self.gate_compute()
            a("s_waitcnt vmcnt(0)")
            self.stamp(4)

    def s3_uw_addr(self):
        a = self.a
        a("v_lshrrev_b32 v1, 4, v0")
        a("v_lshlrev_b32 v1, 8, v1")
        a("v_add_u32 v1, s2, v1")
        a("v_mov_b32 v2, s2")
        a("v_cmp_gt_u32 vcc, 640, v1")
        a("s_nop 1")
        a("v_cndmask_b32 v1, v2, v1, vcc")
        a("v_lshrrev_b32 v1, 5, v1")
        a("v_lshlrev_b32 v1, 7, v1")
        a("v_and_b32 v2, 15, v0")
        a("v_lshl_add_u32 v1, v2, 2, v1")
        a("v_add_u32 v90, %d, v1" % WS_FU)
    def s3_uw_loads(self):
        a = self.a
        a("buffer_load_dword v92, v90, s[20:23], 0 offen sc1")
    def s3_uw_look(self):
        self.s3_uw_addr()
        self.s3_uw_loads()
    def s3_uw_check(self):
        a = self.a
        l = self.newlab("uw")
        a("s_waitcnt vmcnt(0)")
        a("v_cmp_eq_u32 vcc, s64, v92")
        a("v_cmp_eq_u32 s[76:77], s64, v93")
        a("s_nop 1")
        a("s_and_b64 vcc, vcc, s[76:77]")
        a("s_cmp_eq_u64 vcc, -1")
        a("s_cbranch_scc1 %s" % l)
        self.poll(self.s3_uw_loads, [92, 93], 6, sleep=2)
        a.lab(l)

    def s3_channels(self):
        a = self.a
        a("s_mov_b32 s70, s2")
        a("s_add_u32 s71, s2, 256")
        a("s_add_u32 s72, s2, 512")
        a("s_cmp_lt_u32 s72, 640")
        a("s_cselect_b32 s72, s72, s2")

    def s3_u_loads(self):
        a = self.a
        self.s3_channels()
        a("v_lshlrev_b32 v1, 4, v0")
        for sg in range(3):
            a("s_mul_i32 s67, s%d, %d" % (70 + sg, ROWS))
            a("s_add_u32 s67, s67, %d" % WS_UT)
            for i in range(4):
                r = 100 + 16 * sg + 4 * i
                a("buffer_load_dwordx4 v[%d:%d], v1, s[20:23], s67 offen offset:%d sc1" % (r, r + 3, 1024 * i))

    def s3_u_copies(self, extra=0):
        a = self.a
        Z = 150
        for i in range(4): a("v_mov_b32 v%d, 0" % (Z + i))
        a("v_lshlrev_b32 v2, 4, v0")
        a("v_cmp_eq_u32 vcc, 0, v0")
        for sg in range(3):
            base = LDS_UC + sg * UC_SZ
            for b in range(4):
                a("ds_write_b128 v2, v[%d:%d] offset:%d" % (Z, Z + 3, base + b * UC_STRIDE))
        for sg in range(3):
            base = LDS_UC + sg * UC_SZ
            if extra is not None: a("s_waitcnt vmcnt(%d)" % (4 * (2 - sg) + extra))
            for i in range(4):
                D = 100 + 16 * sg + 4 * i
                R3, R2 = 154 + 2 * (i & 1), 155 + 2 * (i & 1)
                Q3, Q2 = 154 + 2 * ((i + 1) & 1), 155 + 2 * ((i + 1) & 1)
                T1 = 160 + 12 * (i & 1); T0 = T1 + 4; T2 = T1 + 8
                P2 = 158
                a("v_mov_b32_dpp v%d, v%d wave_ror:1 row_mask:0xf bank_mask:0xf" % (R3, D + 3))
                a("v_mov_b32_dpp v%d, v%d wave_ror:1 row_mask:0xf bank_mask:0xf" % (R2, D + 2))
                a("v_mov_b32 v%d, v%d" % (T1 + 1, D))
                a("v_mov_b32 v%d, v%d" % (T1 + 2, D + 1))
                a("v_mov_b32 v%d, v%d" % (T1 + 3, D + 2))
                if i == 0:
                    a("v_cndmask_b32 v%d, v%d, v%d, vcc" % (T1, R3, Z))
                    a("v_cndmask_b32 v%d, v%d, v%d, vcc" % (P2, R2, Z))
                else:
                    a("v_cndmask_b32 v%d, v%d, v%d, vcc" % (T1, R3, Q3))
                    a("v_cndmask_b32 v%d, v%d, v%d, vcc" % (P2, R2, Q2))
                off = base + 4 * (96 + 256 * i)
                a("ds_write_b128 v2, v[%d:%d] offset:%d" % (D, D + 3, off + 3 * UC_STRIDE))
                a("v_alignbit_b32 v%d, v%d, v%d, 16" % (T0, T1, P2))
                a("v_alignbit_b32 v%d, v%d, v%d, 16" % (T0 + 1, D, T1))
                a("v_alignbit_b32 v%d, v%d, v%d, 16" % (T0 + 2, D + 1, D))
                a("v_alignbit_b32 v%d, v%d, v%d, 16" % (T0 + 3, D + 2, D + 1))
                a("ds_write_b128 v2, v[%d:%d] offset:%d" % (T1, T1 + 3, off + 1 * UC_STRIDE))
                a("v_mov_b32 v%d, v%d" % (T2, T0 + 1))
                a("v_mov_b32 v%d, v%d" % (T2 + 1, T0 + 2))
                a("v_mov_b32 v%d, v%d" % (T2 + 2, T0 + 3))
                a("v_alignbit_b32 v%d, v%d, v%d, 16" % (T2 + 3, D + 3, D + 2))
                a("ds_write_b128 v2, v[%d:%d] offset:%d" % (T0, T0 + 3, off + 0 * UC_STRIDE))
                a("ds_write_b128 v2, v[%d:%d] offset:%d" % (T2, T2 + 3, off + 2 * UC_STRIDE))

    def s_phase1(self):
        a = self.a
        n = self.name
        a("s_sub_u32 s66, s3, 4")
        a("s_cmp_eq_u32 s66, 3")
        a("s_cbranch_scc1 %s_sj" % n)
        self.s_kgen_phase1()
        a("s_branch %s_p1done" % n)
        a.lab("%s_sj" % n)
        self.s_side()
        a.lab("%s_p1done" % n)

    def ssm_param_loads(self, slots=(0, 1, 2), scalars=True):
        a = self.a
        a("s_mul_i32 s67, s50, 384")
        a("v_lshl_add_u32 v1, v0, 1, s67")
        for sl in slots:
            for k, p in enumerate((P_ARE, P_AIM, P_BRE, P_BIM, P_CRE, P_CIM)):
                a("global_load_ushort v%d, v1, s[%d:%d] offset:%d" % (200 + 6 * sl + k, p, p + 1, 128 * sl))
        if scalars:
            a("s_lshl_b32 s67, s50, 1")
            a("v_mov_b32 v223, s67")
            a("global_load_ushort v218, v223, s[%d:%d]" % (P_LDT, P_LDT + 1))
            a("global_load_ushort v219, v223, s[%d:%d]" % (P_DSK, P_DSK + 1))

    def kgen_bases(self):
        a = self.a
        a("s_mul_i32 s51, s66, %d" % TAB_SZ)
        a("s_add_u32 s51, s51, %d" % LDS_TAB)
        a("s_mul_i32 s52, s66, %d" % KR_SZ)
        a("s_add_u32 s52, s52, %d" % LDS_KR)

    def kgen(self, part="all"):
        a = self.a
        if part == "all": self.kgen_bases()
        self._kgen_body(part)

    def _kgen_body(self, part):
        a = self.a
        head = part in ("all", "head", "rest"); tail = part in ("all", "tail", "rest")
        real_a = a
        if not head: a = Asm()
        a("v_and_b32 v4, 15, v0")
        a("v_lshrrev_b32 v5, 4, v0")
        a("v_mul_u32_u24 v2, %d, v4" % TABROW)
        a("v_lshl_add_u32 v2, v5, 6, v2")
        a("v_add_u32 v2, s51, v2")
        a("v_and_b32 v6, 1, v5")
        a("v_lshl_add_u32 v3, v6, 3, v2")
        a("v_xor_b32 v6, 1, v6")
        a("v_lshl_add_u32 v2, v6, 3, v2")
        a("s_mov_b32 m0, s51")
        a("s_nop 0")
        if part == "all" or (part == "rest" and not self.fused()): a("s_waitcnt vmcnt(0)")
        a("v_lshlrev_b32 v218, 16, v218")
        a("v_lshlrev_b32 v219, 16, v219")
        a("v_mul_f32 v6, 0x3fb8aa3b, v218")
        a("s_mov_b32 s67, 0x3fb8aa3b")
        a("v_fma_f32 v7, v218, s67, -v6")
        a("v_fmac_f32 v7, 0x32a57060, v218")
        a("v_exp_f32 v6, v6")
        a("v_mul_f32 v7, 0x3f317218, v7")
        a("v_fma_f32 v6, v6, v7, v6")
        a("v_cvt_pk_bf16_f32 v6, v6, v6")
        a("v_lshlrev_b32 v218, 16, v6")
        W1, W16, W256, W512, W768, W1024 = 10, 12, 14, 16, 18, 20
        WX = 22
        CB = 24
        Y = 26; P = 28; TMP1 = 30; TMP2 = 32; TMP3 = 34
        PK = 36
        V = 50
        CV = 66
        YF = 76
        AF = 92
        ACC = 108
        nopk = (part == "head") and ("pkhead" not in self.ph)
        def cmul(out, x, w, t):
            if nopk:
                return ["v_mul_f32 v%d, v%d, v%d" % (t, x + 1, w + 1),
                        "v_mul_f32 v%d, v%d, v%d" % (t + 1, x, w + 1),
                        "v_fma_f32 v%d, v%d, v%d, -v%d" % (out, x, w, t),
                        "v_fma_f32 v%d, v%d, v%d, v%d" % (out + 1, x + 1, w, t + 1)]
            return ["v_pk_mul_f32 v[%d:%d], v[%d:%d], v[%d:%d] op_sel:[0,0] op_sel_hi:[0,1]" % (t, t + 1, x, x + 1, w, w + 1),
                    "v_pk_fma_f32 v[%d:%d], v[%d:%d], v[%d:%d], v[%d:%d] op_sel:[1,1,0] op_sel_hi:[1,0,1] neg_lo:[1,0,0]" % (out, out + 1, x, x + 1, w, w + 1, t, t + 1)]
        def zipl(*ls):
            o = []
            for i in range(max(len(l) for l in ls)):
                for l in ls:
                    if i < len(l): o.append(l[i])
            return o
        cvn = [0, 0]
        def wr(val, tile, row, neg, bank=0):
            c = CV + 4 * bank + (cvn[bank] % 4); cvn[bank] += 1
            return ["v_cvt_pk_bf16_f32 v%d, v%d, %sv%d" % (c, val, "-" if neg else "", val + 1),
                    "ds_write_addtid_b32 v%d offset:%d" % (c, tile * TABTILE + row * TABROW)]
        def frag_reads(dst, tile):
            L = []
            for kk in range(4):
                L.append("ds_read_b64 v[%d:%d], v3 offset:%d" % (dst + 4 * kk, dst + 4 * kk + 1, tile * TABTILE + 16 * kk))
                L.append("ds_read_b64 v[%d:%d], v2 offset:%d" % (dst + 4 * kk + 2, dst + 4 * kk + 3, tile * TABTILE + 16 * kk))
            return L
        def mm(t, first):
            L = []
            for kk in range(4):
                c = "0" if (first and kk == 0) else "v[%d:%d]" % (ACC + 4 * t, ACC + 4 * t + 3)
                L.append("v_mfma_f32_16x16x32_bf16 v[%d:%d], v[%d:%d], v[%d:%d], %s" % (ACC + 4 * t, ACC + 4 * t + 3, AF + 4 * kk, AF + 4 * kk + 3, YF + 4 * kk, YF + 4 * kk + 3, c))
            return L
        a = real_a
        nh = 2 if "kg2" in self.ph else 1
        slots = [0, 1, 2] if part in ("all", "rest") else (list(range(nh)) if part == "head" else list(range(nh, 3)))
        for sl in slots:
            if sl == 1 and part == "tail" and not self.fused(): a("s_waitcnt vmcnt(0)")
            if sl == 2 and part in ("rest", "tail"): self.stamp(3)
            if sl == 2 and "prioT" in self.ph: a("s_setprio 2")
            if sl == slots[0] and part in ("tail", "rest") and "prioT0" in self.ph: a("s_setprio 2")
            pr = 200 + 6 * sl
            for k in range(6): a("v_lshlrev_b32 v%d, 16, v%d" % (pr + k, pr + k))
            a("v_mul_f32 v6, v218, v%d" % pr)
            a("v_mul_f32 v7, v218, v%d" % (pr + 1))
            a("v_mul_f32 v6, 0x3fb8aa3b, v6")
            a("v_mul_f32 v7, 0.15915494, v7")
            a("v_mul_f32 v8, v218, v%d" % (pr + 2))
            a("v_mul_f32 v9, v218, v%d" % (pr + 3))
            a.ext(cmul(CB, pr + 4, 8, TMP1))
            for w, k in ((W1, 1.0), (W16, 16.0), (W256, 256.0)):
                if k == 1.0:
                    a("v_exp_f32 v%d, v6" % TMP2)
                    a("v_fract_f32 v%d, v7" % TMP3)
                else:
                    lit = "0x41800000" if k == 16.0 else "0x43800000"
                    a("v_mul_f32 v%d, %s, v6" % (TMP2, lit))
                    a("v_mul_f32 v%d, %s, v7" % (TMP3, lit))
                    a("v_exp_f32 v%d, v%d" % (TMP2, TMP2))
                    a("v_fract_f32 v%d, v%d" % (TMP3, TMP3))
                a("v_cos_f32 v%d, v%d" % (w, TMP3))
                a("v_sin_f32 v%d, v%d" % (w + 1, TMP3))
                a("s_nop 0")
                a("v_mul_f32 v%d, v%d, v%d" % (w, w, TMP2))
                a("v_mul_f32 v%d, v%d, v%d" % (w + 1, w + 1, TMP2))
            if sl != slots[0]:
                a("s_waitcnt lgkmcnt(0)")
                a.ext(pend_mm2)
            LY = ["v_mov_b32 v%d, v%d" % (Y, CB), "v_mov_b32 v%d, v%d" % (Y + 1, CB + 1)] + wr(Y, 0, 0, False)
            for j in range(1, 16):
                LY += cmul(Y, Y, W16, TMP1) + wr(Y, 0, j, False)
            LA = ["v_mov_b32 v%d, 1.0" % P, "v_mov_b32 v%d, 0" % (P + 1)] + wr(P, 1, 0, True, 1)
            cur = P
            for r in range(1, 16):
                if r == 1:
                    LA += ["v_mov_b32 v%d, v%d" % (P, W1), "v_mov_b32 v%d, v%d" % (P + 1, W1 + 1)]
                    cur = P
                else:
                    dst = PK + 2 * (r // 2 - 1) if r % 2 == 0 else P
                    LA += cmul(dst, cur, W1, TMP2)
                    cur = dst
                LA += wr(cur, 1, r, True, 1)
            a.ext(zipl(LY, LA))
            a.ext(cmul(W512, W256, W256, TMP1))
            a.ext(frag_reads(YF, 0)); a.ext(frag_reads(AF, 1))
            a.ext(zipl(cmul(W768, W512, W256, TMP1), cmul(W1024, W512, W512, TMP2)))
            def pk(i): return PK + 2 * (i // 2 - 1)
            vals = []
            A2 = []
            regs = []
            for r in range(8):
                if r == 0: regs.append(W256)
                else:
                    dst = V + 2 * (r - 1) if r < 8 else None
                    A2.append(cmul(dst, pk(2 * r), W256, TMP1 if r % 2 else TMP2)); regs.append(dst)
            a.ext(zipl(sum(A2[0::2], []), sum(A2[1::2], [])))
            a("s_waitcnt lgkmcnt(0)")
            m = mm(0, sl == 0)
            L = []
            for r in range(8): L += wr(regs[r], 1, r, True)
            a.ext(interleave(m, L))
            LA = []; LB = []
            for b in range(4):
                if b == 0:
                    LA += wr(W512, 1, 8, True); LB += wr(W768, 1, 12, True, 1)
                else:
                    LA += cmul(V, pk(4 * b), W512, TMP1) + wr(V, 1, 8 + b, True)
                    LB += cmul(V + 2, pk(4 * b), W768, TMP2) + wr(V + 2, 1, 12 + b, True, 1)
            a.ext(zipl(LA, LB))
            a.ext(frag_reads(AF, 1))
            a.ext(zipl(cmul(V, W1024, W256, TMP1), cmul(V + 2, W1024, W512, TMP2)))
            a.ext(zipl(cmul(V + 4, W1024, W768, TMP1), cmul(V + 6, W1024, W1024, TMP2)))
            ws = [W1024, V, V + 2, V + 4]
            a.ext(zipl(cmul(V + 8, ws[0], pk(8), TMP1), cmul(V + 10, ws[1], pk(8), TMP2)))
            a.ext(zipl(cmul(V + 12, ws[2], pk(8), TMP1), cmul(V + 14, ws[3], pk(8), TMP2)))
            a("s_waitcnt lgkmcnt(0)")
            m = mm(1, sl == 0)
            L = []
            for i in range(4):
                L += wr(ws[i], 1, 2 * i, True) + wr(V + 8 + 2 * i, 1, 2 * i + 1, True)
            L += wr(V + 6, 1, 8, True)
            a.ext(interleave(m, L))
            a.ext(frag_reads(AF, 1))
            pend_mm2 = mm(2, sl == 0)
            if sl == slots[-1]:
                a("s_waitcnt lgkmcnt(0)")
                a.ext(pend_mm2); pend_mm2 = None
        if not tail: return
        self.stamp(1)
        A0, A1, A2r = ACC, ACC + 4, ACC + 8
        a("v_cmp_eq_u32 vcc, 0, v0")
        a("v_and_b32 v4, 15, v0")
        a("v_lshrrev_b32 v5, 4, v0")
        a("v_cndmask_b32 v6, 0, v219, vcc")
        a("v_lshlrev_b32 v7, 5, v4")
        a("v_lshl_add_u32 v7, v5, 4, v7")
        a("v_lshlrev_b32 v8, 4, v4")
        a("v_lshl_add_u32 v8, v5, 8, v8")
        a("v_cmp_gt_u32 vcc, 2, v5")
        a("v_add_f32 v%d, v%d, v6" % (A0, A0))
        a("s_nop 0")
        a("v_cndmask_b32 v7, v8, v7, vcc")
        a("v_add_u32 v7, s51, v7")
        a("v_lshlrev_b32 v8, 3, v4")
        a("v_lshl_add_u32 v8, v5, 8, v8")
        a("v_add_u32 v8, s51, v8")
        a("s_nop 4")
        a("ds_write_b128 v7, v[%d:%d]" % (A1, A1 + 3))
        a("ds_write_b64 v8, v[%d:%d] offset:1024" % (A2r, A2r + 1))
        a("ds_write_b64 v8, v[%d:%d] offset:1152" % (A2r + 2, A2r + 3))
        a("v_cvt_pk_bf16_f32 v10, v%d, v%d" % (A0 + 3, A0 + 2))
        a("v_cvt_pk_bf16_f32 v11, v%d, v%d" % (A0 + 1, A0))
        a("v_lshlrev_b32 v9, 5, v4")
        a("v_lshl_add_u32 v9, v5, 3, v9")
        a("v_sub_u32 v9, 4088, v9")
        a("v_add_u32 v9, s52, v9")
        a("ds_write_b64 v9, v[10:11]")
        a("v_and_b32 v9, 31, v0")
        a("v_lshlrev_b32 v9, 2, v9")
        a("v_add_u32 v9, s52, v9")
        a("v_mov_b32 v12, 0")
        a("ds_write_b32 v9, v12 offset:4096")
        a("v_lshlrev_b32 v13, 4, v0")
        a("v_add_u32 v14, s51, v13")
        a("v_lshlrev_b32 v15, 3, v0")
        a("v_add_u32 v15, s51, v15")
        a("v_lshlrev_b32 v16, 2, v0")
        a("v_add_u32 v16, s51, v16")
        a("v_sub_u32 v13, s52, v13")
        a("s_waitcnt lgkmcnt(0)")
        a("ds_read_b128 v[20:23], v14")
        a("ds_read_b32 v24, v14 offset:16")
        a("ds_read_b64 v[26:27], v15 offset:512")
        a("ds_read_b32 v28, v15 offset:520")
        a("ds_read2_b32 v[30:31], v16 offset0:0 offset1:1")
        a.l.pop()
        a("v_add_u32 v17, 1024, v16")
        a("ds_read2_b32 v[30:31], v17 offset0:0 offset1:1")
        a("ds_read2_b32 v[32:33], v17 offset0:64 offset1:65")
        a("v_and_b32 v18, 1, v0")
        a("v_cmp_eq_u32 vcc, 1, v18")
        a("s_waitcnt lgkmcnt(0)")
        a("v_cvt_pk_bf16_f32 v36, v28, v28")
        a("v_cvt_pk_bf16_f32 v37, v27, v27")
        a("v_cvt_pk_bf16_f32 v38, v27, v26")
        a("v_cvt_pk_bf16_f32 v39, v26, v26")
        a("ds_write_b128 v13, v[36:39] offset:3056")
        for ps in range(2):
            v0_, v1_ = 30 + 2 * ps, 31 + 2 * ps
            o = 40 + 4 * ps
            a("v_cndmask_b32 v19, v%d, v%d, vcc" % (v0_, v1_))
            a("v_cvt_pk_bf16_f32 v%d, v%d, v%d" % (o, v1_, v1_))
            a("v_cvt_pk_bf16_f32 v%d, v%d, v19" % (o + 1, v1_))
            a("v_cvt_pk_bf16_f32 v%d, v%d, v%d" % (o + 2, v0_, v0_))
            a("v_mov_b32 v%d, v%d" % (o + 3, o + 2))
        a("ds_write_b128 v13, v[40:43] offset:2032")
        a("ds_write_b128 v13, v[44:47] offset:1008")
        a("v_cvt_pk_bf16_f32 v48, v24, v23")
        a("v_cvt_pk_bf16_f32 v49, v22, v22")
        a("v_cvt_pk_bf16_f32 v50, v22, v21")
        a("v_cvt_pk_bf16_f32 v51, v20, v20")
        a("s_mov_b32 exec_hi, 0")
        a("ds_write_b128 v13, v[48:51] offset:3568")
        a("s_mov_b32 exec_hi, -1")
        if "dumpk" in self.ph:
            a("s_waitcnt lgkmcnt(0)")
            a("v_lshlrev_b32 v13, 4, v0")
            a("v_add_u32 v14, s52, v13")
            a("s_mul_i32 s67, s50, 4224")
            a("s_add_u32 s67, s67, %d" % WS_DBG)
            for i in range(5):
                a("ds_read_b128 v[20:23], v14 offset:%d" % (1024 * i))
                a("s_waitcnt lgkmcnt(0)")
                if i == 4: a("s_mov_b32 exec_hi, 0"); a("s_mov_b32 exec_lo, 0xff")
                a("s_add_u32 s68, s67, %d" % (1024 * i))
                a("buffer_store_dwordx4 v[20:23], v13, s[20:23], s68 offen")
                a("s_waitcnt vmcnt(0)")
            a("s_mov_b64 exec, -1")

    def u_look(self):
        a = self.a
        self.nonce_read(120)
        a("s_lshr_b32 s78, s50, 5")
        a("s_lshl_b32 s78, s78, 7")
        a("s_add_u32 s78, s78, %d" % WS_FU)
        a("v_and_b32 v120, 15, v0")
        a("v_lshlrev_b32 v120, 2, v120")
        a("buffer_load_dword v121, v120, s[20:23], s78 offen sc1")
    def u_prefetch(self):
        a = self.a
        l = self.newlab("uok")
        a("s_waitcnt vmcnt(0)")
        a("v_cmp_eq_u32 vcc, s64, v121")
        a("s_nop 1")
        a("s_cmp_eq_u64 vcc, -1")
        a("s_cbranch_scc1 %s" % l)
        self.poll_line("s78", 16, 120, sleep=4)
        a.lab(l)
        self.conv_loads()
        self.lds_inc(LDS_UOK, 152)

    def conv_loads(self):
        a = self.a
        a("s_mul_i32 s67, s50, %d" % ROWS)
        a("s_add_u32 s67, s67, %d" % (WS_UT - 4))
        a("v_lshlrev_b32 v1, 2, v0")
        for i in range(16):
            a("buffer_load_dwordx2 v[%d:%d], v1, s[20:23], s67 offen offset:%d sc1" % (120 + 2 * i, 121 + 2 * i, 256 * i))

    def conv(self):
        a = self.a
        D = 120
        a("s_mul_i32 s53, s66, %d" % UC_SZ)
        if LDS_UC: a("s_add_u32 s53, s53, %d" % LDS_UC)
        if not self.fused():
            a("s_mov_b32 m0, s53")
            a("v_mov_b32 v2, 0")
            for b in range(4):
                a("ds_write_addtid_b32 v2 offset:%d" % (b * UC_STRIDE))
                a("ds_write_addtid_b32 v2 offset:%d" % (b * UC_STRIDE + 33 * 4))
            a("v_cmp_eq_u32 vcc, 0, v0")
            a("s_waitcnt vmcnt(0)")
            a("v_cndmask_b32 v%d, v%d, v2, vcc" % (D, D))
            for i in range(16):
                lo, hi = D + 2 * i, D + 2 * i + 1
                o = 4 + (i % 4)
                a("v_alignbit_b32 v%d, v%d, v%d, 16" % (o, hi, lo))
                a("ds_write_addtid_b32 v%d offset:%d" % (hi, 3 * UC_STRIDE + 4 * (64 * i + 96)))
                a("ds_write_addtid_b32 v%d offset:%d" % (hi, 1 * UC_STRIDE + 4 * (64 * i + 97)))
                a("ds_write_addtid_b32 v%d offset:%d" % (o, 2 * UC_STRIDE + 4 * (64 * i + 96)))
                a("ds_write_addtid_b32 v%d offset:%d" % (o, 0 * UC_STRIDE + 4 * (64 * i + 97)))
        VU, VK = 8, 9
        a("v_and_b32 v4, 3, v0")
        a("v_mul_u32_u24 v4, %d, v4" % UC_STRIDE)
        a("v_bfe_u32 v5, v0, 2, 2")
        a("v_lshl_add_u32 v4, v5, 7, v4")
        a("v_lshrrev_b32 v5, 4, v0")
        a("v_lshl_add_u32 v4, v5, 4, v4")
        a("v_add_u32 v%d, s53, v4" % VU)
        a("v_and_b32 v6, 15, v0")
        a("v_lshlrev_b32 v7, 3, v6")
        a("v_sub_u32 v7, 120, v7")
        a("v_lshl_add_u32 v7, v5, 4, v7")
        a("v_add_u32 v%d, s52, v7" % VK)
        a("v_lshlrev_b32 v10, 3, v6")
        a("v_lshl_add_u32 v10, v5, 7, v10")
        ACC = 16; SETS = [48, 112]
        def reads(rho, S):
            L = []
            for z in range(8):
                L.append("ds_read_b128 v[%d:%d], v%d offset:%d" % (S + 4 * z, S + 4 * z + 3, VU, 512 * z + 64 * (7 - rho)))
                zz = 8 * z + rho
                L.append("ds_read_b64 v[%d:%d], v%d offset:%d" % (S + 32 + 4 * z, S + 33 + 4 * z, VK, 64 * (63 - zz)))
                L.append("ds_read_b64 v[%d:%d], v%d offset:%d" % (S + 34 + 4 * z, S + 35 + 4 * z, VK, 64 * (63 - zz) + 8))
            return L
        def mm(rho, S):
            L = []
            for ze in range(8):
                for nu in range(8 - ze):
                    n = ze + nu
                    c = "0" if (rho == 0 and ze == 0) else "v[%d:%d]" % (ACC + 4 * n, ACC + 4 * n + 3)
                    L.append("v_mfma_f32_16x16x32_bf16 v[%d:%d], v[%d:%d], v[%d:%d], %s" % (ACC + 4 * n, ACC + 4 * n + 3, S + 4 * nu, S + 4 * nu + 3, S + 32 + 4 * ze, S + 35 + 4 * ze, c))
            return L
        a("s_waitcnt lgkmcnt(0)")
        if self.fused(): self.lds_spin(LDS_UCOK, 12)
        self.stamp(4)
        a.ext(reads(0, SETS[0]))
        a("s_waitcnt lgkmcnt(0)")
        for rho in range(8):
            fill = reads(rho + 1, SETS[(rho + 1) & 1]) if rho < 7 else []
            a.ext(interleave(mm(rho, SETS[rho & 1]), fill, span=28))
            if rho < 7: a("s_waitcnt lgkmcnt(0)")
        self.stamp(7)
        a("s_mul_i32 s67, s50, %d" % ROWS)
        a("s_add_u32 s67, s67, %d" % WS_Y)
        a("s_nop 7")
        for n in range(8):
            o = 48 + 2 * n
            a("v_cvt_pk_bf16_f32 v%d, v%d, v%d" % (o, ACC + 4 * n, ACC + 4 * n + 1))
            a("v_cvt_pk_bf16_f32 v%d, v%d, v%d" % (o + 1, ACC + 4 * n + 2, ACC + 4 * n + 3))
            a("buffer_store_dwordx2 v[%d:%d], v10, s[20:23], s67 offen offset:%d sc1" % (o, o + 1, 512 * n))

    def s_ssm(self):
        a = self.a
        n = self.name
        a("s_sub_u32 s66, s3, 4")
        a("s_lshl_b32 s50, s66, 8")
        a("s_add_u32 s50, s50, s2")
        a("s_cmp_ge_u32 s66, 3")
        a("s_cbranch_scc1 %s_ssm_done" % n)
        if self.fused():
            l = self.newlab("nch")
            a("s_cmp_lt_u32 s50, 640")
            a("s_cbranch_scc1 %s" % l)
            a("s_branch %s_ssm_done" % n)
            a.lab(l)
        else:
            a("s_cmp_ge_u32 s50, 640")
            a("s_cbranch_scc1 %s_ssm_done" % n)
        if self.fused() and "g1" in self.ph:
            a("s_waitcnt vmcnt(0)")
        if "g1" not in self.ph:
            self.stamp(5)
            self.ssm_param_loads()
            self.kgen("all")
        elif "kghead" in self.ph:
            self.kgen("tail")
        else:
            self.kgen("rest")
        self.stamp(6)
        if not self.fused():
            self.conv_loads()
        self.conv()
        if "prioT" in self.ph or "prioT0" in self.ph: a("s_setprio 0")
        a("s_waitcnt vmcnt(0)")
        if self.fused():
            self.nonce_read(4)
            a("s_lshl_b32 s69, s50, 2")
            a("s_add_u32 s69, s69, %d" % WS_FY)
            self.flag_set("s69", 2)
        self.stamp(8)
        a.lab("%s_ssm_done" % n)

    def g_gemm2(self):
        a = self.a
        ACC = 0
        SETS = [80, 116, 152, 188]
        VB = 224
        VL = 228
        VB8 = 246
        T = 230
        acc = lambda dt, tau: ACC + (dt * 4 + tau) * 4
        a("v_mbcnt_lo_u32_b32 v%d, -1, 0" % T)
        a("v_mbcnt_hi_u32_b32 v%d, -1, v%d" % (T, T))
        a("v_lshlrev_b32 v%d, 4, v%d" % (VL, T))
        for tau in range(4):
            a("s_add_u32 s67, s3, %d" % tau)
            a("s_and_b32 s67, s67, 3")
            a("s_lshl_b32 s67, s67, 10")
            a("v_add_u32 v%d, s67, v%d" % (VB + tau, VL))
            a("v_lshlrev_b32 v%d, 3, v%d" % (VB8 + tau, T))
            a("v_add_u32 v%d, s67, v%d" % (VB8 + tau, VB8 + tau))
        a("s_mul_i32 s70, s6, 48")
        a("s_mul_i32 s67, s3, 12")
        a("s_add_u32 s70, s70, s67")
        a("s_lshl_b32 s70, s70, 12")
        if WS_H: a("s_add_u32 s70, s70, %d" % WS_H)
        a("s_mul_i32 s71, s7, 48")
        a("s_add_u32 s71, s71, s67")
        a("s_mul_i32 s71, s71, 5120")
        a("s_add_u32 s71, s71, %d" % WS_WD)
        a("s_add_u32 s72, s71, 4096")
        def loadsA(S):
            L = []
            for dt in range(5):
                if dt < 4: L.append("buffer_load_dwordx4 v[%d:%d], v%d, s[20:23], s71 offen offset:%d sc1" % (S + 16 + 4 * dt, S + 19 + 4 * dt, VL, 1024 * dt))
                else: L.append(("buffer_load_dwordx4 v[%d:%d], v%d, s[20:23], s72 offen sc1" % (S + 16 + 4 * dt, S + 19 + 4 * dt, VL),
                                "s_add_u32 s71, s71, 5120", "s_add_u32 s72, s72, 5120"))
            return L
        def loadsB(S, k):
            L = []
            for tau in range(4):
                if k % 3 == 1:
                    x = ("buffer_load_dwordx2 v[%d:%d], v%d, s[20:23], s70 offen sc1" % (S + 4 * tau, S + 4 * tau + 1, VB8 + tau),
                         "buffer_load_dwordx2 v[%d:%d], v%d, s[20:23], s70 offen offset:512 sc1" % (S + 4 * tau + 2, S + 4 * tau + 3, VB8 + tau))
                else:
                    x = ("buffer_load_dwordx4 v[%d:%d], v%d, s[20:23], s70 offen sc1" % (S + 4 * tau, S + 4 * tau + 3, VB + tau),)
                L.append(x if tau < 3 else x + ("s_add_u32 s70, s70, 4096",))
            return L
        nB = lambda k: 8 if k % 3 == 1 else 4
        def mm(S, first):
            L = []
            for dt in range(5):
                for tau in range(4):
                    c = "0" if first else "v[%d:%d]" % (acc(dt, tau), acc(dt, tau) + 3)
                    L.append("v_mfma_f32_16x16x32_bf16 v[%d:%d], v[%d:%d], v[%d:%d], %s" % (acc(dt, tau), acc(dt, tau) + 3, S + 16 + 4 * dt, S + 19 + 4 * dt, S + 4 * tau, S + 4 * tau + 3, c))
            return L
        NS = 12
        pre = "g1" in self.ph and "nopre" not in self.ph
        def red_slot(tau):
            a("s_add_u32 s67, s3, %d" % tau)
            a("s_and_b32 s67, s67, 3")
            a("s_mul_i32 s67, s67, 3")
            a("s_add_u32 s67, s67, %d" % (tau - 1))
            a("s_mul_i32 s67, s67, 5120")
            a("s_add_u32 s67, s67, %d" % LDS_RED)
        VRS = 250
        for tau in range(1, 4):
            red_slot(tau)
            a("v_add_u32 v%d, s67, v%d" % (VRS + tau - 1, VL))
            a("s_mov_b32 s%d, s67" % (72 + tau))
        if "g1" in self.ph:
            if self.fused(): self.nonce_read(232)
            self.g_signal_h(0)
        if pre:
            if self.fused():
                lo = self.newlab("ww"); ld = self.newlab("wd")
                a("s_cmp_lg_u32 s3, 0")
                a("s_cbranch_scc1 %s" % lo)
                self.lds_spin(LDS_SFREE, 232, 4)
                self.lds_spin(LDS_UOK, 232, 3)
                a("s_lshl_b32 s78, s7, 8")
                a("s_add_u32 s78, s78, %d" % WS_FW)
                self.poll_line("s78", 48, 232, sleep=2)
                a("v_mov_b32 v232, %d" % LDS_WOK)
                a("v_mov_b32 v233, 1")
                a("ds_write_b32 v232, v233")
                a("s_branch %s" % ld)
                a.lab(lo)
                self.lds_spin(LDS_WOK, 232)
                a.lab(ld)
            for k in range(4):
                a.ext(flat(loadsA(SETS[k])))
            for tau in range(1, 4):
                a("s_mov_b32 m0, s%d" % (72 + tau))
                a("s_nop 0")
                for dt in range(4):
                    a("buffer_load_dwordx4 v%d, s[20:23], s71 offen offset:%d sc1 lds" % (VL, 1024 * dt))
                a("s_add_u32 m0, s%d, 4096" % (72 + tau))
                a("s_add_u32 s71, s71, 5120")
                a("buffer_load_dwordx4 v%d, s[20:23], s72 offen sc1 lds" % VL)
                a("s_add_u32 s72, s72, 5120")
        self.g2_wait_inputs()
        self.stamp(5)
        self.clk(5)
        def srcA(k):
            if not pre: return "g"
            return "pre" if k < 4 else ("lds" if k < 7 else "g")
        def loadA_any(k):
            S = SETS[k % 4]
            if srcA(k) == "g": return loadsA(S)
            if srcA(k) == "lds":
                return ["ds_read_b128 v[%d:%d], v%d offset:%d" % (S + 16 + 4 * dt, S + 19 + 4 * dt, VRS + k - 4, 1024 * dt) for dt in range(5)]
            return []
        nL = lambda k: nB(k) + (5 if srcA(k) == "g" else 0)
        for k in range(3):
            a.ext(flat(loadsB(SETS[k], k) + loadA_any(k)))
        for k in range(NS):
            rem = sum(nL(j) for j in range(k + 1, min(NS - 1, k + 2) + 1))
            if srcA(k) == "lds": a("s_waitcnt vmcnt(%d) lgkmcnt(0)" % rem)
            else: a("s_waitcnt vmcnt(%d)" % rem)
            fill = (loadsB(SETS[(k + 3) % 4], k + 3) + loadA_any(k + 3)) if k + 3 < NS else []
            if "k2stamps" in self.ph and k < 9: self.stamp(k + 1, force=True)
            a.ext(interleave(mm(SETS[k % 4], k == 0), fill))
            if k + 3 == NS - 1 and self.fused(): self.lds_inc(LDS_GOK, 232)
        self.stamp(6)
        self.clk(7)
        a("s_nop 7")
        for tau in range(1, 4):
            for dt in range(5):
                a("ds_write_b128 v%d, v[%d:%d] offset:%d" % (VRS + tau - 1, acc(dt, tau), acc(dt, tau) + 3, 1024 * dt))
        a("s_waitcnt lgkmcnt(0)")
        a("s_barrier")
        self.stamp(7)
        a("s_mul_i32 s67, s3, %d" % (3 * 5120))
        a("s_add_u32 s67, s67, %d" % LDS_RED)
        a("v_add_u32 v%d, s67, v%d" % (T + 1, VL))
        R = 80
        for j in range(3):
            for dt in range(5):
                r = R + (j * 5 + dt) * 4
                a("ds_read_b128 v[%d:%d], v%d offset:%d" % (r, r + 3, T + 1, 5120 * j + 1024 * dt))
        Y = 140
        a("v_lshrrev_b32 v%d, 4, v%d" % (T + 2, T))
        a("v_and_b32 v%d, 15, v%d" % (T + 3, T))
        a("v_lshrrev_b32 v%d, 2, v%d" % (T + 4, T + 3))
        a("v_lshl_add_u32 v%d, v%d, 3, v%d" % (T + 5, T + 2, T + 4))
        a("v_lshl_add_u32 v%d, v%d, 2, v%d" % (T + 6, T + 2, T + 4))
        a("v_and_b32 v%d, 3, v%d" % (T + 7, T))
        a("v_lshlrev_b32 v%d, 3, v%d" % (T + 7, T + 7))
        a("s_lshl_b32 s67, s3, 5")
        a("s_add_u32 s67, s67, %d" % LDS_YT)
        a("v_add_u32 v%d, s67, v%d" % (T + 7, T + 7))
        a("v_lshl_add_u32 v%d, v%d, 7, v%d" % (T + 5, T + 5, T + 7))
        a("v_lshl_add_u32 v%d, v%d, 7, v%d" % (T + 6, T + 6, T + 7))
        for dt in range(5):
            if dt < 4: a("ds_read_b64_tr_b16 v[%d:%d], v%d offset:%d" % (Y + 2 * dt, Y + 2 * dt + 1, T + 5, 128 * (32 * (dt >> 1) + 4 * (dt & 1))))
            else: a("ds_read_b64_tr_b16 v[%d:%d], v%d offset:%d" % (Y + 2 * dt, Y + 2 * dt + 1, T + 6, 128 * 64))
        a("s_lshl_b32 s67, s3, 6")
        a("s_add_u32 s67, s67, %d" % LDS_GT)
        a("v_lshl_add_u32 v%d, v%d, 2, s67" % (T + 8, T + 3))
        a("ds_read_b32 v%d, v%d" % (T + 8, T + 8))
        a("s_lshl_b32 s67, s6, 6")
        a("s_lshl_b32 s68, s3, 4")
        a("s_add_u32 s67, s67, s68")
        a("v_add_u32 v%d, s67, v%d" % (T + 9, T + 3))
        a("s_movk_i32 s68, 1280")
        a("v_mul_lo_u32 v%d, v%d, s68" % (T + 9, T + 9))
        a("s_mul_i32 s68, s7, 160")
        a("v_add_u32 v%d, s68, v%d" % (T + 9, T + 9))
        a("v_lshl_add_u32 v%d, v%d, 3, v%d" % (T + 10, T + 2, T + 9))
        a("v_lshl_add_u32 v%d, v%d, 4, v%d" % (T + 9, T + 2, T + 9))
        a("s_waitcnt lgkmcnt(0)")
        for dt in range(5):
            for h in range(2):
                x = acc(dt, 0) + 2 * h
                p = [R + (j * 5 + dt) * 4 + 2 * h for j in range(3)]
                a("v_pk_add_f32 v[%d:%d], v[%d:%d], v[%d:%d]" % (p[0], p[0] + 1, p[0], p[0] + 1, p[1], p[1] + 1))
                a("v_pk_add_f32 v[%d:%d], v[%d:%d], v[%d:%d]" % (x, x + 1, x, x + 1, p[2], p[2] + 1))
        for dt in range(5):
            for h in range(2):
                x = acc(dt, 0) + 2 * h
                p = R + dt * 4 + 2 * h
                a("v_pk_add_f32 v[%d:%d], v[%d:%d], v[%d:%d]" % (x, x + 1, x, x + 1, p, p + 1))
        U = 150
        for dt in range(5):
            for h in range(2):
                a("v_lshlrev_b32 v%d, 16, v%d" % (U + 4 * dt + 2 * h, Y + 2 * dt + h))
                a("v_and_b32 v%d, 0xffff0000, v%d" % (U + 4 * dt + 2 * h + 1, Y + 2 * dt + h))
        G2 = T + 12
        assert G2 % 2 == 0
        a("v_mov_b32 v%d, v%d" % (G2, T + 8))
        a("v_mov_b32 v%d, v%d" % (G2 + 1, T + 8))
        for dt in range(5):
            for h in range(2):
                x = acc(dt, 0) + 2 * h; u = U + 4 * dt + 2 * h
                a("v_pk_add_f32 v[%d:%d], v[%d:%d], v[%d:%d] neg_lo:[0,1] neg_hi:[0,1]" % (u, u + 1, u, u + 1, x, x + 1))
        for dt in range(5):
            for h in range(2):
                x = acc(dt, 0) + 2 * h; u = U + 4 * dt + 2 * h
                a("v_pk_fma_f32 v[%d:%d], v[%d:%d], v[%d:%d], v[%d:%d]" % (x, x + 1, u, u + 1, G2, G2 + 1, x, x + 1))
        O = 176
        for dt in range(5):
            for h in range(2):
                x = acc(dt, 0) + 2 * h
                a("v_cvt_pk_bf16_f32 v%d, v%d, v%d" % (O + 2 * dt + h, x, x + 1))
        a("buffer_store_dwordx4 v[%d:%d], v%d, s[24:27], 0 offen" % (O, O + 3, T + 9))
        a("buffer_store_dwordx4 v[%d:%d], v%d, s[24:27], 0 offen offset:64" % (O + 4, O + 7, T + 9))
        a("buffer_store_dwordx2 v[%d:%d], v%d, s[24:27], 0 offen offset:128" % (O + 8, O + 9, T + 10))
        self.stamp(8)

    def g2_wait_inputs(self):
        if not self.fused(): return
        a = self.a
        T = 232
        lo = self.newlab("hw"); ld = self.newlab("hd"); lp = self.newlab("hs")
        a("s_cmp_lg_u32 s3, 0")
        a("s_cbranch_scc1 %s" % lo)
        a("s_lshr_b32 s78, s6, 1")
        a("s_lshl_b32 s78, s78, 7")
        a("s_add_u32 s78, s78, %d" % WS_FH)
        self.poll_line("s78", 16, T, sleep=4)
        a("v_mov_b32 v%d, %d" % (T, LDS_HOK))
        a("v_mov_b32 v%d, 1" % (T + 1))
        a("ds_write_b32 v%d, v%d" % (T, T + 1))
        a("s_branch %s" % ld)
        a.lab(lo)
        self.lds_spin(LDS_HOK, T)
        a.lab(ld)

    def s_final(self):
        a = self.a
        n = self.name
        l = self.newlab("fin")
        a("s_cmp_lg_u32 s3, 7")
        a("s_cbranch_scc1 %s" % l)
        if self.fused(): self.lds_spin(LDS_GOK, 2, 4)
        self.y_wait_inputs()
        a("v_mbcnt_lo_u32_b32 v0, -1, 0")
        a("v_mbcnt_hi_u32_b32 v0, -1, v0")
        a("v_lshrrev_b32 v1, 3, v0")
        a("v_mul_u32_u24 v1, %d, v1" % ROWS)
        a("v_and_b32 v2, 7, v0")
        a("v_lshl_add_u32 v1, v2, 4, v1")
        a("s_mul_i32 s67, s7, %d" % (80 * ROWS))
        a("s_lshl_b32 s68, s6, 7")
        a("s_add_u32 s67, s67, s68")
        a("s_add_u32 s67, s67, %d" % WS_Y)
        for i in range(10):
            a("buffer_load_dwordx4 v[%d:%d], v1, s[20:23], s67 offen sc1" % (8 + 4 * i, 11 + 4 * i))
            if i < 9: a("s_add_u32 s67, s67, %d" % (8 * ROWS))
        a("s_lshl_b32 s67, s6, 8")
        a("s_add_u32 s67, s67, %d" % WS_G)
        a("v_lshlrev_b32 v3, 2, v0")
        a("buffer_load_dword v4, v3, s[20:23], s67 offen sc1")
        a("v_lshlrev_b32 v2, 4, v0")
        a("v_add_u32 v2, %d, v2" % LDS_YT)
        a("v_add_u32 v3, %d, v3" % LDS_GT)
        a("s_waitcnt vmcnt(0)")
        for i in range(10):
            a("ds_write_b128 v2, v[%d:%d] offset:%d" % (8 + 4 * i, 11 + 4 * i, 1024 * i))
        a("ds_write_b32 v3, v4")
        a("s_waitcnt lgkmcnt(0)")
        a("s_barrier")
        if self.fused(): self.nonce_update()
        a("s_branch %s_fd" % l)
        a.lab(l)
        a("s_barrier")
        a.lab("%s_fd" % l)

    def y_wait_inputs(self):
        if not self.fused(): return
        a = self.a
        a("v_mbcnt_lo_u32_b32 v0, -1, 0")
        a("v_mbcnt_hi_u32_b32 v0, -1, v0")
        a("s_mul_i32 s67, s7, 320")
        a("s_add_u32 s67, s67, %d" % WS_FY)
        a("v_lshl_add_u32 v1, v0, 2, s67")
        a("v_add_u32 v2, 256, v1")
        a("s_lshl_b32 s68, s6, 5")
        a("s_add_u32 s68, s68, %d" % (WS_FG - 64))
        a("v_lshl_add_u32 v3, v0, 2, s68")
        a("v_cmp_le_u32 vcc, 16, v0")
        a("s_nop 1")
        a("v_cndmask_b32 v2, v2, v3, vcc")
        a("v_subrev_u32 v3, 24, v0")
        a("v_lshlrev_b32 v3, 10, v3")
        a("s_lshl_b32 s68, s2, 2")
        a("s_add_u32 s68, s68, %d" % WS_FY)
        a("v_add_u32 v3, s68, v3")
        a("v_cmp_le_u32 vcc, 24, v0")
        a("s_nop 1")
        a("v_cndmask_b32 v2, v2, v3, vcc")
        a("s_cmp_lt_u32 s2, 128")
        a("s_cselect_b32 s68, 27, 26")
        a("v_mov_b32 v3, s67")
        a("v_cmp_le_u32 vcc, s68, v0")
        a("s_nop 1")
        a("v_cndmask_b32 v2, v2, v3, vcc")
        def loads():
            a("buffer_load_dword v4, v1, s[20:23], 0 offen sc1")
            a("buffer_load_dword v5, v2, s[20:23], 0 offen sc1")
        self.poll(loads, [4, 5], 6, sleep=8)

    def fused(self): return "fused" in self.ph

    def nonce_load(self):
        a = self.a
        a("v_mov_b32 v1, 0")
        a("s_mov_b32 s67, %d" % WS_NON)
        a("buffer_load_dword v242, v1, s[20:23], s67 offen sc1")
    def nonce_publish_local(self):
        a = self.a
        a("v_add_u32 v242, 1, v242")
        a("v_mov_b32 v1, %d" % LDS_NONCE)
        a("ds_write_b32 v1, v242")
        a("v_readfirstlane_b32 s64, v242")
    def nonce_update(self):
        a = self.a
        l = self.newlab("nu")
        a("s_cmp_lg_u32 s2, 0")
        a("s_cbranch_scc1 %s" % l)
        a("v_mbcnt_lo_u32_b32 v2, -1, 0")
        a("v_mbcnt_hi_u32_b32 v2, -1, v2")
        a("v_lshlrev_b32 v2, 4, v2")
        a("s_mov_b32 s78, %d" % WS_FG)
        self.poll(lambda: a("buffer_load_dwordx4 v[4:7], v2, s[20:23], s78 offen sc1"), [4, 5, 6, 7], 2, sleep=8)
        a("s_mov_b32 s69, %d" % WS_NON)
        self.flag_set("s69", 2)
        a.lab(l)

    def nonce_read(self, vt):
        a = self.a
        a("v_mov_b32 v%d, %d" % (vt, LDS_NONCE))
        a("ds_read_b32 v%d, v%d" % (vt, vt))
        a("s_waitcnt lgkmcnt(0)")
        a("v_readfirstlane_b32 s64, v%d" % vt)

    def flag_set(self, soff_reg, vt):
        a = self.a
        a("v_mov_b32 v%d, s64" % vt)
        a("v_mov_b32 v%d, 0" % (vt + 1))
        a("s_mov_b64 exec, 1")
        a("buffer_store_dword v%d, v%d, s[20:23], %s offen sc1" % (vt, vt + 1, soff_reg))
        a("s_mov_b64 exec, -1")

    def poll(self, loads, vregs, vt, sleep=8):
        a = self.a
        lp = self.newlab("pl"); ld = self.newlab("pd")
        a("s_mov_b32 s69, 0")
        a.lab(lp)
        loads()
        a("s_waitcnt vmcnt(0)")
        for i, r in enumerate(vregs):
            if i == 0: a("v_cmp_eq_u32 vcc, s64, v%d" % r)
            else:
                a("v_cmp_eq_u32 s[76:77], s64, v%d" % r)
                a("s_nop 1")
                a("s_and_b64 vcc, vcc, s[76:77]")
        a("s_nop 1")
        a("s_cmp_eq_u64 vcc, -1")
        a("s_cbranch_scc1 %s" % ld)
        a("s_add_u32 s69, s69, 1")
        a("s_cmp_lt_u32 s69, 0x40000")
        a("s_cbranch_scc0 %s" % ld)
        a("s_sleep %d" % sleep)
        a("s_branch %s" % lp)
        a.lab(ld)

    def poll_line(self, soff, nflags, vt, sleep=8):
        a = self.a
        a("v_mbcnt_lo_u32_b32 v%d, -1, 0" % vt)
        a("v_mbcnt_hi_u32_b32 v%d, -1, v%d" % (vt, vt))
        a("v_cmp_gt_u32 vcc, %d, v%d" % (nflags, vt))
        a("v_lshlrev_b32 v%d, 2, v%d" % (vt, vt))
        a("s_nop 0")
        a("v_cndmask_b32 v%d, 0, v%d, vcc" % (vt, vt))
        self.poll(lambda: a("buffer_load_dword v%d, v%d, s[20:23], %s offen sc1" % (vt + 1, vt, soff)), [vt + 1], vt, sleep)

    def build(self):
        a = self.a
        n = self.name
        a.l.append(".globl %s" % n)
        a.l.append(".p2align 8")
        a.l.append(".type %s,@function" % n)
        a.l.append("%s:" % n)
        self.prologue()
        a("s_cmp_ge_u32 s3, 4")
        a("s_cbranch_scc1 %s_S" % n)
        if "g1" in self.ph:
            self.g_gemm1()
        if "g2" in self.ph:
            self.g_gemm2()
        self.dbgtime_end()
        self.stamp_flush()
        a("s_endpgm")
        a.lab("%s_S" % n)
        if "g1" in self.ph:
            self.s_phase1()
        if "ssm" in self.ph:
            self.s_ssm()
        if "g2" in self.ph:
            self.s_final()
        self.stamp_flush()
        a.lab("%s_end" % n)
        a("s_endpgm")
        return a.text()

def kd(name):
    return """.amdhsa_kernel %s
  .amdhsa_next_free_vgpr 256
  .amdhsa_next_free_sgpr 102
  .amdhsa_accum_offset 256
  .amdhsa_group_segment_fixed_size 0
  .amdhsa_kernarg_size 136
  .amdhsa_user_sgpr_count 2
  .amdhsa_user_sgpr_kernarg_segment_ptr 1
  .amdhsa_system_sgpr_workgroup_id_x 1
.end_amdhsa_kernel
""" % name

HEADER = open("gated_mix__ssm_conv_s4__swiglu_ffn__prompt.s.ref").read().split("; Override launch")[0]

def emit(kernels, path):
    txt = HEADER
    if len(kernels) == 1:
        txt += "; @launch grid=(256,1,1) block=(512,1,1) lds=%d\n" % LDS_TOTAL
    else:
        for (n, p, s) in kernels:
            txt += "; @launch kernel=%s grid=(256,1,1) block=(512,1,1) lds=%d\n" % (n, LDS_TOTAL)
    txt += '.amdgcn_target "amdgcn-amd-amdhsa--gfx950"\n.text\n'
    for (n, p, s) in kernels:
        txt += Gen(n, p, s).build()
    txt += '.section .rodata,"a"\n'
    for (n, p, s) in kernels:
        txt += ".p2align 6\n" + kd(n)
    open(path, "w").write(txt)

if __name__ == "__main__":
    mode = sys.argv[1]; path = sys.argv[2]
    stamps = len(sys.argv) > 3 and sys.argv[3] == "stamps"
    if mode.startswith("g1+") or mode == "g1":
        emit([(KNAME, set(mode.split("+")), stamps)], path)
    elif mode == "g1,ssm":
        emit([("ka_kernel", {"g1"}, False), ("kb_kernel", {"ssm", "dumpk"}, stamps)], path)
    elif mode == "3k":
        emit([("ka_kernel", {"g1"}, False), ("kb_kernel", {"ssm"}, False), ("kc_kernel", {"g2"}, stamps)], path)
    elif mode == "3k+1":
        emit([("ka_kernel", {"g1"}, False), ("kb_kernel", {"ssm"}, False), ("kc_kernel", {"g2"}, stamps), ("kd_kernel", set(), False)], path)
    elif mode == "3k+3":
        emit([("ka_kernel", {"g1"}, False), ("kb_kernel", {"ssm"}, False), ("kc_kernel", {"g2"}, stamps), ("kd_kernel", set(), False), ("ke_kernel", set(), False), ("kf_kernel", set(), False)], path)
    elif mode == "3k_dbg":
        emit([("ka_kernel", {"g1", "dbgtime"}, False), ("kb_kernel", {"ssm"}, False), ("kc_kernel", {"g2", "dbgtime"}, False)], path)
    elif mode == "fused":
        emit([(KNAME, {"g1", "ssm", "g2", "fused"}, stamps)], path)
    elif mode == "fused_notouch":
        emit([(KNAME, {"g1", "ssm", "g2", "fused", "notouch"}, stamps)], path)
    elif mode == "fused_pk":
        emit([(KNAME, {"g1", "ssm", "g2", "fused", "pkhead"}, stamps)], path)
    elif mode.startswith("F:"):
        emit([(KNAME, {"g1", "ssm", "g2", "fused"} | set(mode[2:].split("+")), stamps)], path)
    elif mode == "fused_dbg":
        emit([(KNAME, {"g1", "ssm", "g2", "fused", "dbgtime"}, stamps)], path)
    elif mode == "g1,ssm,nodump":
        emit([("ka_kernel", {"g1"}, False), ("kb_kernel", {"ssm"}, stamps)], path)
```

```python
import sys, math

KNAME = "gated_mix__ssm_conv_s4__swiglu_ffn__prompt_kernel"

WS_H    = 0x000000
WS_WD   = 0x600000
ROWS    = 4224
WS_UT   = 0x800000
WS_Y    = 0xB00000
WS_G    = 0xE00000
WS_FU   = 0xE10000
WS_FW   = 0xE15000
WS_FH   = 0xE11000
WS_FY   = 0xE12000
WS_NON  = 0xE13000
WS_FG   = 0xE14000
WS_TS   = 0xF00000
WS_DBG  = 0x1000000

STAGE   = 40960
ST_WG   = 16384
ST_WU   = 28672
LDS_S   = 3 * STAGE
TABROW  = 272
TABTILE = 16 * TABROW
TAB_SZ  = 2 * TABTILE
LDS_TAB = LDS_S
KR_SZ   = 4224
LDS_KR  = LDS_TAB + 3 * TAB_SZ
LDS_MISC = LDS_KR + 3 * KR_SZ
LDS_TOTAL = 163840
LDS_NONCE = LDS_MISC
LDS_CNT   = LDS_MISC + 8
UC_STRIDE = 4640
UC_SZ   = 4 * UC_STRIDE
LDS_UC  = 0
LDS_WDS = STAGE
LDS_RED = 57344
LDS_YT  = LDS_TAB
LDS_GT  = LDS_MISC + 64
LDS_HOK = LDS_MISC + 12
LDS_WOK = LDS_MISC + 16
LDS_UOK = LDS_MISC + 20
LDS_GOK = LDS_MISC + 24
LDS_UCOK = LDS_MISC + 28
LDS_SFREE = LDS_MISC + 32

class Asm:
    def __init__(self):
        self.l = []
    def __call__(self, s):
        for x in s.split("\n"):
            x = x.strip()
            if x: self.l.append("    " + x)
    def lab(self, s):
        self.l.append(s + ":")
    def ext(self, lst):
        for x in lst: self(x)
    def text(self):
        return "\n".join(self.l) + "\n"

def interleave(main, fill, start=0, span=None):
    out = []
    m = len(fill)
    n = len(main) if span is None else min(len(main), start + span)
    j = 0
    for i, x in enumerate(main):
        out.append(x)
        if i >= start:
            tgt = (m * (i - start + 1) + (n - start) - 1) // (n - start) if n > start else m
            while j < min(tgt, m):
                f = fill[j]
                if isinstance(f, tuple): out.extend(f)
                else: out.append(f)
                j += 1
    while j < m:
        f = fill[j]
        if isinstance(f, tuple): out.extend(f)
        else: out.append(f)
        j += 1
    return out

def flat(L):
    o = []
    for x in L:
        if isinstance(x, tuple): o.extend(x)
        else: o.append(x)
    return o

def vr(a, n=1):
    return "v%d" % a if n == 1 else "v[%d:%d]" % (a, a + n - 1)
def sr(a, n=1):
    return "s%d" % a if n == 1 else "s[%d:%d]" % (a, a + n - 1)

S_W, S_WAVE, S_M, S_N, S_M2, S_N2 = 2, 3, 4, 5, 6, 7
SRD_X, SRD_WG, SRD_WU, SRD_WS, SRD_OUT, SRD_WD = 8, 12, 16, 20, 24, 28
P_U, P_ARE, P_AIM, P_BRE, P_BIM, P_CRE, P_CIM, P_LDT = 32, 34, 36, 38, 40, 42, 44, 46
P_DSK, P_BX, P_WG, P_WU, P_WD, P_GW, P_OUT, P_DBG, P_WS = 48, 50, 52, 54, 56, 58, 60, 62, 64
S_TS = 80

class Gen:
    def __init__(self, name, phases, stamps=False):
        self.name = name
        self.ph = phases
        self.a = Asm()
        self.stamps = stamps
        self.nlab = 0
    def newlab(self, p):
        self.nlab += 1
        return "L_%s_%s_%d" % (self.name[:6], p, self.nlab)

    def capture(self, fn):
        old = self.a
        self.a = Asm()
        fn()
        lst = [x.strip() for x in self.a.l]
        self.a = old
        return lst

    def clk(self, i):
        if "clk" in self.ph and self.stamps:
            self.a("s_memrealtime s[%d:%d]" % (S_TS + 2 * i, S_TS + 2 * i + 1))
            self.a("s_memtime s[%d:%d]" % (S_TS + 2 * i + 2, S_TS + 2 * i + 3))
            self.a("s_waitcnt lgkmcnt(0)")

    def stamp(self, i, force=False):
        if "clk" in self.ph and i != 0: return
        if ("kstamps" in self.ph or "k2stamps" in self.ph) and not force and i != 0: return
        if self.stamps:
            self.a("%s s[%d:%d]" % ("s_memrealtime" if "rt" in self.ph else "s_memtime", S_TS + 2 * i, S_TS + 2 * i + 1))
            self.a("s_waitcnt lgkmcnt(0)")
    def stamp_flush(self):
        if not self.stamps: return
        a = self.a
        a("s_lshl_b32 s66, s2, 3")
        a("s_add_u32 s66, s66, s3")
        a("s_lshl_b32 s66, s66, 7")
        a("s_add_u32 s66, s66, 0x%x" % WS_TS)
        a("v_mov_b32 v250, 0")
        for i in range(10):
            a("v_mov_b32 v252, s%d" % (S_TS + 2 * i))
            a("v_mov_b32 v253, s%d" % (S_TS + 2 * i + 1))
            a("buffer_store_dwordx2 v[252:253], v250, s[20:23], s66 offen offset:%d" % (8 * i))
            a("s_nop 1")
        a("s_waitcnt vmcnt(0)")

    def prologue(self):
        a = self.a
        a("s_cmp_ge_u32 s2, 256")
        a("s_cbranch_scc1 %s_end" % self.name)
        a("s_load_dwordx16 s[32:47], s[0:1], 0")
        a("s_load_dwordx16 s[48:63], s[0:1], 64")
        a("s_load_dwordx2 s[64:65], s[0:1], 128")
        if "warmc0" in self.ph: self.warm_code(early=True)
        a("v_lshrrev_b32 v1, 6, v0")
        a("v_and_b32 v0, 63, v0")
        a("v_readfirstlane_b32 s3, v1")
        a("s_and_b32 s66, s2, 7")
        a("s_lshr_b32 s67, s2, 3")
        a("s_and_b32 s68, s67, 7")
        a("s_lshr_b32 s69, s67, 3")
        a("s_and_b32 s70, s66, 1")
        a("s_lshl_b32 s70, s70, 3")
        a("s_or_b32 s4, s70, s68")
        a("s_lshr_b32 s70, s66, 1")
        a("s_lshl_b32 s70, s70, 2")
        a("s_or_b32 s5, s70, s69")
        a("s_and_b32 s70, s66, 3")
        a("s_lshl_b32 s70, s70, 3")
        a("s_or_b32 s6, s70, s68")
        a("s_lshr_b32 s70, s66, 2")
        a("s_lshl_b32 s70, s70, 2")
        a("s_or_b32 s7, s70, s69")
        if "sametile" in self.ph:
            a("s_mov_b32 s4, 0"); a("s_mov_b32 s5, 0")
        if "samem" in self.ph:
            a("s_mov_b32 s4, 0")
        if "samen" in self.ph:
            a("s_mov_b32 s5, 0")
        if self.stamps:
            for i in range(10):
                a("s_mov_b64 s[%d:%d], 0" % (S_TS + 2 * i, S_TS + 2 * i + 1))
        a("s_waitcnt lgkmcnt(0)")
        def srd(base, ptr, size):
            a("s_mov_b32 s%d, s%d" % (base, ptr))
            a("s_and_b32 s%d, s%d, 0xffff" % (base + 1, ptr + 1))
            a("s_mov_b32 s%d, 0x%x" % (base + 2, size))
            a("s_mov_b32 s%d, 0x20000" % (base + 3))
        srd(SRD_X, P_U, 2048 * 640 * 2)
        srd(SRD_WG, P_WG, 640 * 1536 * 2)
        srd(SRD_WU, P_WU, 640 * 1536 * 2)
        srd(SRD_WS, P_WS, 0x10000000)
        srd(SRD_OUT, P_OUT, 2048 * 640 * 2)
        srd(SRD_WD, P_WD, 640 * 1536 * 2)
        self.stamp(0)
        if "dbgtime" in self.ph:
            a("s_memrealtime s[96:97]")
            a("s_memtime s[98:99]")
            a("s_mov_b64 s[100:101], s[62:63]")
            a("s_waitcnt lgkmcnt(0)")

    def dbgtime_end(self):
        a = self.a
        if "dbgtime" not in self.ph: return
        l = self.newlab("dbt")
        a("s_cmp_lg_u32 s2, 0"); a("s_cbranch_scc1 %s" % l)
        a("s_cmp_lg_u32 s3, 0"); a("s_cbranch_scc1 %s" % l)
        a("s_waitcnt vmcnt(0)")
        a("s_memrealtime s[92:93]")
        a("s_memtime s[94:95]")
        a("s_waitcnt lgkmcnt(0)")
        a("s_sub_u32 s92, s92, s96")
        a("s_sub_u32 s94, s94, s98")
        a("v_mov_b32 v250, 0")
        a("v_mov_b32 v252, s92")
        a("v_mov_b32 v253, s94")
        a("v_mov_b32 v254, s96")
        a("v_mov_b32 v255, 0x1234")
        a("global_store_dwordx4 v250, v[252:255], s[100:101]")
        a("s_waitcnt vmcnt(0)")
        a.lab(l)

    def rot_r(self, dst, tmp):
        a = self.a
        a("s_lshr_b32 %s, s5, 1" % dst)
        a("s_cmp_ge_u32 %s, 5" % dst)
        a("s_cselect_b32 %s, 1, 0" % tmp)
        a("s_cmp_ge_u32 %s, 1" % dst)
        a("s_addc_u32 %s, %s, %s" % (dst, dst, tmp))

    def g_gemm1(self):
        a = self.a
        ACC = 0; FP = 96; FQ = 136
        VXB = 176
        VWA = 182
        VL16 = 196
        T = 200
        accg = lambda ft, tt: ACC + (ft * 4 + tt) * 4
        accu = lambda ft, tt: ACC + 48 + (ft * 4 + tt) * 4
        LANE = 197
        a("v_mov_b32 v%d, v0" % LANE)
        a("s_and_b32 s67, s3, 1")
        a("s_lshr_b32 s68, s3, 1")
        VOX = 191
        a("v_lshrrev_b32 v%d, 3, v%d" % (T, LANE))
        a("s_lshl_b32 s69, s4, 7")
        a("s_lshl_b32 s70, s3, 5")
        a("s_add_u32 s69, s69, s70")
        a("v_add_u32 v%d, s69, v%d" % (T, T))
        a("s_movk_i32 s70, 1280")
        a("v_mul_lo_u32 v%d, v%d, s70" % (T, T))
        a("v_and_b32 v%d, 7, v%d" % (T + 1, LANE))
        a("v_lshrrev_b32 v%d, 4, v%d" % (T + 2, LANE))
        a("v_xor_b32 v%d, v%d, v%d" % (T + 3, T + 1, T + 2))
        a("v_xor_b32 v%d, 4, v%d" % (T + 4, T + 3))
        a("v_lshl_add_u32 v%d, v%d, 4, v%d" % (VOX, T + 3, T))
        a("v_lshl_add_u32 v%d, v%d, 4, v%d" % (VOX + 1, T + 4, T))
        a("s_lshl_b32 s75, s3, 12")
        VOW = 193
        a("s_lshl_b32 s69, s3, 4")
        a("s_mul_i32 s69, s69, 3072")
        a("s_mul_i32 s70, s5, 192")
        a("s_add_u32 s69, s69, s70")
        a("s_mov_b32 s70, 43691")
        a("s_movk_i32 s71, 3072")
        for i in range(3):
            a("v_add_u32 v%d, %d, v%d" % (T, 64 * i, LANE))
            a("v_mul_lo_u32 v%d, v%d, s70" % (T + 1, T))
            a("v_lshrrev_b32 v%d, 19, v%d" % (T + 1, T + 1))
            a("v_mul_u32_u24 v%d, 12, v%d" % (T + 2, T + 1))
            a("v_sub_u32 v%d, v%d, v%d" % (T + 2, T, T + 2))
            a("v_lshrrev_b32 v%d, 2, v%d" % (T + 3, T + 1))
            a("v_and_b32 v%d, 2, v%d" % (T + 3, T + 3))
            a("v_xor_b32 v%d, v%d, v%d" % (T + 2, T + 2, T + 3))
            a("v_mul_lo_u32 v%d, v%d, s71" % (T + 1, T + 1))
            a("v_lshl_add_u32 v%d, v%d, 4, v%d" % (T + 1, T + 2, T + 1))
            a("v_add_u32 v%d, s69, v%d" % (T + 1, T + 1))
            a("v_subrev_u32 v%d, %d, v%d" % (VOW + i, 1024 * i, T + 1))
        a("s_mul_i32 s76, s3, 3072")
        a("s_add_u32 s77, s76, %d" % ST_WU)
        a("s_add_u32 s76, s76, %d" % ST_WG)
        self.rot_r("s74", "s72")
        def xdma(st):
            base = (st % 3) * STAGE
            L = []
            for i in range(4):
                if i == 0:
                    L.append(("s_lshl_b32 s72, s74, 7", "s_mul_i32 s73, s74, 196608", "s_add_u32 s74, s74, 1",
                              "s_add_u32 m0, s75, %d" % base, "s_cmp_eq_u32 s74, 10", "s_cselect_b32 s74, 0, s74",
                              "buffer_load_dwordx4 v%d, s[8:11], s72 offen lds" % VOX))
                else:
                    L.append(("s_add_u32 s70, s72, %d" % (9216 * i),
                              "buffer_load_dwordx4 v%d, s[8:11], s70 offen offset:%d lds" % (VOX + (i & 1), 1024 * i)))
            for mat, sm, srd in ((0, 76, "s[12:15]"), (1, 77, "s[16:19]")):
                for i in range(3):
                    ld = "buffer_load_dwordx4 v%d, %s, s73 offen offset:%d lds" % (VOW + i, srd, 1024 * i)
                    if i == 0: L.append(("s_add_u32 m0, s%d, %d" % (sm, base), "s_nop 0", ld))
                    else: L.append(ld)
            return L
        a.ext(flat(xdma(0)))
        a.ext(flat(xdma(1)))
        if "nobpre" not in self.ph: a("s_barrier")
        a("v_and_b32 v%d, 15, v%d" % (T, LANE))
        a("v_lshrrev_b32 v%d, 4, v%d" % (T + 1, LANE))
        a("s_lshl_b32 s69, s67, 6")
        a("v_add_u32 v%d, s69, v%d" % (T + 2, T))
        a("v_lshlrev_b32 v%d, 7, v%d" % (T + 2, T + 2))
        a("v_lshrrev_b32 v%d, 1, v%d" % (T + 3, T))
        a("v_and_b32 v%d, 7, v%d" % (T + 3, T + 3))
        a("v_xor_b32 v%d, v%d, v%d" % (T + 3, T + 3, T + 1))
        a("v_xor_b32 v%d, 4, v%d" % (T + 4, T + 3))
        a("v_lshl_add_u32 v%d, v%d, 4, v%d" % (VXB, T + 3, T + 2))
        a("v_lshl_add_u32 v%d, v%d, 4, v%d" % (VXB + 1, T + 4, T + 2))
        for st in (1, 2):
            for s in range(2):
                a("v_add_u32 v%d, %d, v%d" % (VXB + 2 * st + s, st * STAGE, VXB + s))
        a("v_lshrrev_b32 v%d, 2, v%d" % (T + 2, T))
        a("v_lshl_add_u32 v%d, v%d, 3, v%d" % (T + 2, T + 1, T + 2))
        a("v_mul_u32_u24 v%d, 192, v%d" % (T + 2, T + 2))
        a("v_and_b32 v%d, 3, v%d" % (T + 3, LANE))
        a("v_lshl_add_u32 v%d, v%d, 3, v%d" % (T + 2, T + 3, T + 2))
        a("v_add_u32 v%d, %d, v%d" % (T + 2, ST_WG, T + 2))
        a("v_and_b32 v%d, 1, v%d" % (T + 3, T + 1))
        a("s_lshl_b32 s69, s68, 2")
        a("s_add_u32 s78, s69, 1")
        a("s_add_u32 s79, s68, 2")
        for ft, sreg in ((0, 69), (1, 78), (2, 79)):
            a("v_xor_b32 v%d, s%d, v%d" % (T + 4, sreg, T + 3))
            a("v_lshl_add_u32 v%d, v%d, 5, v%d" % (VWA + ft, T + 4, T + 2))
        for st in (1, 2):
            for ft in range(3):
                a("v_add_u32 v%d, %d, v%d" % (VWA + 3 * st + ft, st * STAGE, VWA + ft))
        a("v_lshlrev_b32 v%d, 4, v%d" % (VL16, LANE))
        a("s_lshl_b32 s69, s4, 1")
        a("s_add_u32 s69, s69, s67")
        a("s_mul_i32 s69, s69, 48")
        a("s_mul_i32 s78, s5, 3")
        a("s_add_u32 s69, s69, s78")
        a("s_lshl_b32 s78, s68, 1")
        a("s_add_u32 s78, s78, s69")
        a("s_lshl_b32 s78, s78, 12")
        a("s_add_u32 s79, s69, 1")
        a("s_lshl_b32 s79, s79, 12")
        a("s_lshl_b32 s69, s68, 9")
        a("s_add_u32 s79, s79, s69")
        a("v_lshlrev_b32 v%d, 3, v%d" % (VL16 + 2, LANE))
        if WS_H:
            a("s_add_u32 s78, s78, %d" % WS_H); a("s_add_u32 s79, s79, %d" % WS_H)

        def reads(kk, s, F):
            st = kk % 3
            xs = ["ds_read_b128 v[%d:%d], v%d offset:%d" % (F + 4 * tt, F + 4 * tt + 3, VXB + 2 * st + s, 2048 * tt) for tt in range(4)]
            ws = []
            for mat in range(2):
                for ft in range(3):
                    r = F + 16 + (mat * 3 + ft) * 4
                    for h in range(2):
                        ws.append("ds_read_b64_tr_b16 v[%d:%d], v%d offset:%d" % (r + 2 * h, r + 2 * h + 1, VWA + 3 * st + ft, 12288 * mat + 6144 * s + 768 * h))
            order = [xs[0], ws[0], ws[1], xs[1], ws[6], ws[7], xs[2], xs[3]] + ws[2:6] + ws[8:]
            return order
        def mfmas(F, first):
            L = []
            for ft in range(3):
                for mat in range(2):
                    for tt in range(4):
                        acc = accg(ft, tt) if mat == 0 else accu(ft, tt)
                        A = F + 16 + (mat * 3 + ft) * 4
                        B = F + 4 * tt
                        c = "0" if first else "v[%d:%d]" % (acc, acc + 3)
                        L.append("v_mfma_f32_16x16x32_bf16 v[%d:%d], v[%d:%d], v[%d:%d], %s" % (acc, acc + 3, A, A + 3, B, B + 3, c))
            return L
        def spread(mm, d, first, step):
            out = []; cnt = 0; di = 0
            for x in mm:
                out.append(x)
                if x.startswith("v_mfma"):
                    cnt += 1
                    if cnt >= first and (cnt - first) % step == 0 and di < len(d):
                        f = d[di]; di += 1
                        out.extend(f if isinstance(f, tuple) else (f,))
            assert di == len(d), (di, len(d))
            return out
        self.stamp(5)
        a("s_waitcnt vmcnt(10)")
        a("s_barrier")
        self.stamp(1)
        self.clk(1)
        a.ext(reads(0, 0, FP))
        a("s_waitcnt lgkmcnt(0)")
        pend = xdma(2)
        for kk in range(10):
            mm = interleave(mfmas(FP, kk == 0), reads(kk, 1, FQ), span=16)
            if pend: mm = spread(mm, pend, 2, 5 if len(pend) <= 5 else 2)
            a.ext(mm)
            if kk <= 7: a("s_waitcnt vmcnt(10) lgkmcnt(0)")
            elif kk == 8: a("s_waitcnt vmcnt(0) lgkmcnt(0)")
            else: a("s_waitcnt lgkmcnt(0)")
            if kk == 9 and self.fused(): self.lds_inc(LDS_SFREE, T)
            else: a("s_barrier")
            if "kstamps" in self.ph and kk < 9: self.stamp(kk + 1, force=True)
            fill = reads(kk + 1, 0, FP) if kk + 1 < 10 else []
            mm = interleave(mfmas(FQ, False), fill, span=16)
            d = xdma(kk + 3) if kk + 3 < 10 else []
            pend = d[5:]
            if d: mm = spread(mm, d[:5], 2, 5)
            a.ext(mm)
            if kk + 1 < 10:
                a("s_waitcnt lgkmcnt(0)")
        self.stamp(2)
        self.clk(3)
        CN = FP; ONE = FP + 2
        a("v_mov_b32 v%d, 0xbfb8aa3b" % CN)
        a("v_mov_b32 v%d, 0xbfb8aa3b" % (CN + 1))
        a("v_mov_b32 v%d, 1.0" % ONE)
        a("v_mov_b32 v%d, 1.0" % (ONE + 1))
        grp = 0
        def silu(gregs, uregs, tmp, out):
            n = len(gregs)
            L = []
            for i in range(n): L.append("v_pk_mul_f32 v[%d:%d], v[%d:%d], v[%d:%d]" % (tmp + 2 * i, tmp + 2 * i + 1, gregs[i], gregs[i] + 1, CN, CN + 1))
            for i in range(2 * n): L.append("v_exp_f32 v%d, v%d" % (tmp + i, tmp + i))
            for i in range(n): L.append("v_pk_mul_f32 v[%d:%d], v[%d:%d], v[%d:%d]" % (gregs[i], gregs[i] + 1, gregs[i], gregs[i] + 1, uregs[i], uregs[i] + 1))
            for i in range(n): L.append("v_pk_add_f32 v[%d:%d], v[%d:%d], v[%d:%d]" % (tmp + 2 * i, tmp + 2 * i + 1, tmp + 2 * i, tmp + 2 * i + 1, ONE, ONE + 1))
            for i in range(2 * n): L.append("v_rcp_f32 v%d, v%d" % (tmp + i, tmp + i))
            if n < 2: L.append("s_nop 0")
            for i in range(n): L.append("v_pk_mul_f32 v[%d:%d], v[%d:%d], v[%d:%d]" % (gregs[i], gregs[i] + 1, gregs[i], gregs[i] + 1, tmp + 2 * i, tmp + 2 * i + 1))
            for i in range(n): L.append("v_cvt_pk_bf16_f32 v%d, v%d, v%d" % (out + i, gregs[i], gregs[i] + 1))
            return L
        for tt in range(4):
            tmp = FQ + (grp % 2) * 16; out = FP + 8 + (grp % 4) * 4; grp += 1
            g = [accg(0, tt), accg(0, tt) + 2, accg(1, tt), accg(1, tt) + 2]
            u = [accu(0, tt), accu(0, tt) + 2, accu(1, tt), accu(1, tt) + 2]
            a.ext(silu(g, u, tmp, out))
            a("buffer_store_dwordx4 v[%d:%d], v%d, s[20:23], s78 offen offset:%d sc1" % (out, out + 3, VL16, 1024 * tt))
            tmp = FQ + (grp % 2) * 16; out = FP + 8 + (grp % 4) * 4; grp += 1
            g = [accg(2, tt), accg(2, tt) + 2]
            u = [accu(2, tt), accu(2, tt) + 2]
            a.ext(silu(g, u, tmp, out))
            a("buffer_store_dwordx2 v[%d:%d], v%d, s[20:23], s79 offen offset:%d sc1" % (out, out + 1, VL16 + 2, 1024 * tt))
        self.stamp(3)
        if "g2" not in self.ph:
            a("s_waitcnt vmcnt(0)")
            self.stamp(4)

    def g_signal_h(self, nyounger):
        a = self.a
        T = 232
        a("s_waitcnt vmcnt(%d)" % nyounger)
        if self.fused():
            l = self.newlab("fh")
            a("v_mov_b32 v%d, %d" % (T, LDS_CNT))
            a("v_mov_b32 v%d, 1" % (T + 1))
            a("s_mov_b64 exec, 1")
            a("ds_add_rtn_u32 v%d, v%d, v%d" % (T + 2, T, T + 1))
            a("s_waitcnt lgkmcnt(0)")
            a("s_mov_b64 exec, -1")
            a("v_readfirstlane_b32 s69, v%d" % (T + 2))
            a("s_cmp_lg_u32 s69, 3")
            a("s_cbranch_scc1 %s" % l)
            a("s_lshl_b32 s69, s4, 5")
            a("s_add_u32 s69, s69, s5")
            a("s_lshl_b32 s69, s69, 2")
            a("s_add_u32 s69, s69, %d" % WS_FH)
            self.flag_set("s69", T)
            a.lab(l)
        self.stamp(4)

    def lds_inc(self, addr, vt):
        a = self.a
        a("v_mov_b32 v%d, %d" % (vt, addr))
        a("v_mov_b32 v%d, 1" % (vt + 1))
        a("s_mov_b64 exec, 1")
        a("ds_add_u32 v%d, v%d" % (vt, vt + 1))
        a("s_mov_b64 exec, -1")

    def lds_spin(self, addr, vt, val=1):
        a = self.a
        lp = self.newlab("ls"); ld = self.newlab("ld")
        a("v_mov_b32 v%d, %d" % (vt, addr))
        a("s_mov_b32 s69, 0")
        a.lab(lp)
        a("ds_read_b32 v%d, v%d" % (vt + 1, vt))
        a("s_waitcnt lgkmcnt(0)")
        a("v_readfirstlane_b32 s78, v%d" % (vt + 1))
        a("s_cmp_eq_u32 s78, %d" % val)
        a("s_cbranch_scc1 %s" % ld)
        a("s_add_u32 s69, s69, 1")
        a("s_cmp_lt_u32 s69, 0x400000")
        a("s_cbranch_scc0 %s" % ld)
        a("s_sleep 1")
        a("s_branch %s" % lp)
        a.lab(ld)

    def s_kgen_phase1(self):
        a = self.a
        NCH = 8
        chunks = [[] for _ in range(NCH)]
        if "ssm" in self.ph:
            a("s_lshl_b32 s50, s66, 8")
            a("s_add_u32 s50, s50, s2")
            a("s_min_u32 s50, s50, 639")
            self.kgen_bases()
            if "kghead" in self.ph:
                kg = self.capture(lambda: self.kgen("head"))
                per = (len(kg) + NCH - 1) // NCH
                chunks = [kg[i * per:(i + 1) * per] for i in range(NCH)]
        self.stamp(5)
        if "prioS" in self.ph: a("s_setprio 2")
        if "nobpre" not in self.ph: a("s_barrier")
        if "ssm" in self.ph and "kghead" in self.ph: self.ssm_param_loads(slots=((0, 1) if "kg2" in self.ph else (0,)))
        a("s_barrier")
        self.stamp(1)
        for kk in range(10):
            if not (kk == 9 and self.fused()): a("s_barrier")
            if kk == 1 and "kghead" in self.ph: a("s_waitcnt vmcnt(0)")
            if kk == 7 and "ssm" in self.ph:
                if "kghead" in self.ph: self.ssm_param_loads(slots=((2,) if "kg2" in self.ph else (1, 2)), scalars=False)
                else: self.ssm_param_loads()
            if 1 <= kk <= NCH: a.ext(chunks[kk - 1])
        self.stamp(2)

    def side_setup(self):
        a = self.a
        a("s_mov_b32 s67, 52429")
        a("s_movk_i32 s68, 1280")
        for i in range(5):
            a("v_add_u32 v1, %d, v0" % (64 * i))
            a("v_mul_lo_u32 v2, v1, s67")
            a("v_lshrrev_b32 v2, 19, v2")
            a("v_mul_u32_u24 v3, 10, v2")
            a("v_sub_u32 v3, v1, v3")
            a("v_mul_lo_u32 v2, v2, s68")
            a("v_lshl_add_u32 v%d, v3, 4, v2" % (230 + i))
        a("v_lshrrev_b32 v1, 4, v0")
        a("v_and_b32 v2, 15, v0")
        a("v_lshrrev_b32 v3, 2, v2")
        a("v_lshl_add_u32 v4, v1, 2, v3")
        a("v_mul_u32_u24 v4, 160, v4")
        a("v_add_u32 v4, %d, v4" % LDS_WDS)
        a("v_and_b32 v5, 3, v0")
        a("v_lshl_add_u32 v235, v5, 4, v4")
        a("v_lshl_add_u32 v236, v5, 3, v4")
        a("v_lshlrev_b32 v237, 4, v0")
        a("v_lshlrev_b32 v241, 2, v0")
        a("v_lshl_add_u32 v4, v1, 3, v3")
        a("v_lshlrev_b32 v4, 7, v4")
        a("v_bfe_u32 v5, v0, 1, 1")
        a("v_lshrrev_b32 v6, 1, v3")
        a("v_xor_b32 v5, v5, v6")
        a("v_lshl_add_u32 v4, v5, 4, v4")
        a("v_and_b32 v5, 1, v0")
        a("v_lshl_add_u32 v4, v5, 3, v4")
        a("v_and_b32 v5, 1, v1")
        a("v_lshl_add_u32 v238, v5, 6, v4")
        a("v_xor_b32 v5, 1, v5")
        a("v_lshl_add_u32 v239, v5, 6, v4")
        a("v_mul_u32_u24 v240, %d, v2" % ROWS)
        a("v_lshl_add_u32 v240, v1, 4, v240")
        a("s_add_u32 s51, s2, 128")
        a("s_cmp_ge_u32 s2, 128")
        a("s_cselect_b32 s51, s51, 999")
        a("s_lshr_b32 s52, s5, 1")
        a("s_add_u32 s53, s52, 8")
        a("s_cmp_lt_u32 s5, 4")
        a("s_cselect_b32 s53, s53, 99")
    def wd_load(self, ureg, scr):
        a = self.a
        if "nowd" in self.ph: return
        a("s_lshr_b32 s67, %s, 3" % ureg)
        a("s_and_b32 s68, %s, 7" % ureg)
        a("s_mul_i32 s69, s67, %d" % (32 * 1280))
        a("s_mul_i32 s67, s68, 160")
        a("s_add_u32 s69, s69, s67")
        for i in range(5):
            a("s_mov_b32 m0, %d" % (LDS_WDS + scr + 1024 * i))
            a("s_nop 0")
            a("buffer_load_dwordx4 v%d, s[28:31], s69 offen lds" % (230 + i))
    def wd_store(self, ureg, scr, R=160):
        a = self.a
        if "nowd" in self.ph: return
        for dt in range(5):
            for h in range(2):
                if dt < 4: ad, off = 235, 64 * (dt >> 1) + 8 * (dt & 1) + 2560 * h
                else: ad, off = 236, 128 + 2560 * h
                a("ds_read_b64_tr_b16 v[%d:%d], v%d offset:%d" % (R + 4 * dt + 2 * h, R + 1 + 4 * dt + 2 * h, ad, off + scr))
        a("s_lshr_b32 s67, %s, 3" % ureg)
        a("s_and_b32 s68, %s, 7" % ureg)
        a("s_mul_i32 s68, s68, 48")
        a("s_add_u32 s67, s67, s68")
        a("s_mul_i32 s67, s67, 5120")
        a("s_add_u32 s67, s67, %d" % WS_WD)
        a("s_add_u32 s68, s67, 4096")
        a("s_waitcnt lgkmcnt(0)")
        for dt in range(5):
            if dt < 4: a("buffer_store_dwordx4 v[%d:%d], v237, s[20:23], s67 offen offset:%d sc1" % (R + 4 * dt, R + 3 + 4 * dt, 1024 * dt))
            else: a("buffer_store_dwordx4 v[%d:%d], v237, s[20:23], s68 offen sc1" % (R + 4 * dt, R + 3 + 4 * dt))
    def gate_load(self):
        a = self.a
        a("v_and_b32 v1, 15, v0")
        a("v_lshlrev_b32 v1, 4, v1")
        for j in range(5):
            a("global_load_dwordx4 v[%d:%d], v1, s[%d:%d] offset:%d" % (8 + 4 * j, 11 + 4 * j, P_GW, P_GW + 1, 256 * j))
        a("v_lshrrev_b32 v2, 4, v0")
        a("s_movk_i32 s67, 1280")
        a("v_mul_lo_u32 v2, v2, s67")
        a("v_add_u32 v2, v2, v1")
        a("s_lshl_b32 s67, s2, 3")
        a("s_mul_i32 s67, s67, 1280")
        for half in range(2):
            for j in range(5):
                r = 28 + 20 * half + 4 * j
                a("buffer_load_dwordx4 v[%d:%d], v2, s[8:11], s67 offen offset:%d" % (r, r + 3, 256 * j))
            if half == 0: a("s_add_u32 s67, s67, %d" % (4 * 1280))
    def gate_compute(self):
        a = self.a
        R = 68
        for i in range(4): a("v_mov_b32 v%d, 0" % (R + i))
        for j in range(5):
            for e in range(4):
                for half in range(2):
                    acc = R + half + 2 * (e & 1)
                    a("v_dot2_f32_bf16 v%d, v%d, v%d, v%d" % (acc, 28 + 20 * half + 4 * j + e, 8 + 4 * j + e, acc))
        a("s_nop 2")
        a("v_add_f32 v%d, v%d, v%d" % (R, R, R + 2))
        a("v_add_f32 v%d, v%d, v%d" % (R + 1, R + 1, R + 3))
        a("s_nop 0")
        for ctl in ("row_shr:1", "row_shr:2", "row_shr:4", "row_shr:8"):
            for i in range(2):
                a("v_add_f32_dpp v%d, v%d, v%d %s row_mask:0xf bank_mask:0xf bound_ctrl:1" % (R + i, R + i, R + i, ctl))
            a("s_nop 0")
        for i in range(2): a("v_mul_f32 v%d, 0xbfb8aa3b, v%d" % (R + i, R + i))
        for i in range(2): a("v_exp_f32 v%d, v%d" % (R + i, R + i))
        a("s_nop 0")
        for i in range(2): a("v_add_f32 v%d, 1.0, v%d" % (R + i, R + i))
        for i in range(2): a("v_rcp_f32 v%d, v%d" % (R + i, R + i))
        a("s_lshl_b32 s67, s2, 5")
        a("s_add_u32 s67, s67, %d" % WS_G)
        a("v_lshrrev_b32 v1, 4, v0")
        a("v_lshlrev_b32 v1, 2, v1")
        a("s_mov_b32 exec_lo, 0x80008000")
        a("s_mov_b32 exec_hi, 0x80008000")
        a("buffer_store_dword v%d, v1, s[20:23], s67 offen sc1" % R)
        a("buffer_store_dword v%d, v1, s[20:23], s67 offen offset:16 sc1" % (R + 1))
        a("s_mov_b64 exec, -1")
    def ut_read(self, chunk_reg, stage_base, H):
        a = self.a
        if "noutr" in self.ph: return
        a("s_and_b32 s67, %s, 1" % chunk_reg)
        a("s_cmp_eq_u32 s67, 0")
        a("s_cselect_b64 vcc, -1, 0")
        a("s_nop 0")
        a("v_cndmask_b32 v4, v239, v238, vcc")
        a("v_add_u32 v4, %d, v4" % stage_base)
        for aa in range(2):
            for it in range(4):
                for hh in range(2):
                    r = H + (aa * 4 + it) * 4 + 2 * hh
                    a("ds_read_b64_tr_b16 v[%d:%d], v4 offset:%d" % (r, r + 1, 4096 * it + 512 * hh + 32 * (aa ^ hh)))
        a("s_waitcnt lgkmcnt(0)")
    def ut_store(self, chunk_reg, H):
        a = self.a
        if "nout" in self.ph: return
        a("s_mul_i32 s67, %s, %d" % (chunk_reg, 32 * ROWS))
        a("s_lshl_b32 s68, s4, 8")
        a("s_add_u32 s67, s67, s68")
        a("s_add_u32 s67, s67, %d" % WS_UT)
        a("s_add_u32 s68, s67, %d" % (16 * ROWS))
        for aa in range(2):
            for it in range(4):
                r = H + (aa * 4 + it) * 4
                a("buffer_store_dwordx4 v[%d:%d], v240, s[20:23], s%d offen offset:%d sc1" % (r, r + 3, 67 + aa, 64 * it))

    def pretouch(self):
        a = self.a
        a("v_and_b32 v1, 7, v0")
        a("v_lshlrev_b32 v1, 21, v1")
        a("buffer_load_dword v63, v1, s[20:23], 0 offen")
        a("v_and_b32 v1, 1, v0")
        a("v_lshlrev_b32 v1, 21, v1")
        a("buffer_load_dword v63, v1, s[24:27], 0 offen")
    def warm_inputs(self):
        a = self.a
        a("v_lshlrev_b32 v1, 7, v0")
        if "warmx" in self.ph:
            a("s_mul_i32 s67, s2, 10240")
            a("buffer_load_dword v244, v1, s[8:11], s67 offen")
            a("s_add_u32 s68, s67, 8192")
            a("s_mov_b32 exec_hi, 0")
            a("s_mov_b32 exec_lo, 0xffff")
            a("buffer_load_dword v244, v1, s[8:11], s68 offen")
            a("s_mov_b32 exec_lo, -1")
        a("s_mov_b32 exec_hi, 0x0fffffff")
        a("s_mul_i32 s67, s2, 7680")
        a("buffer_load_dword v244, v1, s[12:15], s67 offen")
        a("buffer_load_dword v244, v1, s[16:19], s67 offen")
        if "warm2" in self.ph:
            a("buffer_load_dword v244, v1, s[28:31], s67 offen")
        a("s_mov_b64 exec, -1")
        if "warm2" in self.ph:
            a("v_and_b32 v1, 7, v0")
            a("v_lshlrev_b32 v1, 7, v1")
            a("s_mul_i32 s67, s2, 960")
            a("v_add_u32 v1, s67, v1")
            a("v_min_u32 v1, %d, v1" % (245760 - 4))
            a("v_lshrrev_b32 v2, 3, v0")
            a("v_mov_b32 v4, s%d" % P_ARE); a("v_mov_b32 v5, s%d" % (P_ARE + 1))
            for k, p in enumerate((P_AIM, P_BRE, P_BIM, P_CRE, P_CIM)):
                a("v_cmp_eq_u32 vcc, %d, v2" % (k + 1))
                a("v_mov_b32 v6, s%d" % p); a("v_mov_b32 v7, s%d" % (p + 1))
                a("v_cndmask_b32 v4, v4, v6, vcc")
                a("v_cndmask_b32 v5, v5, v7, vcc")
            a("v_add_co_u32 v4, vcc, v4, v1")
            a("s_nop 1")
            a("v_addc_co_u32 v5, vcc, 0, v5, vcc")
            a("global_load_dword v244, v[4:5], off")

    def warm_code(self, early=False):
        a = self.a
        n = self.name
        l = self.newlab("pc"); l2 = self.newlab("pc")
        a("s_getpc_b64 s[68:69]")
        a.lab(l)
        a("s_sub_u32 s68, s68, %s-%s" % (l, n))
        a("s_subb_u32 s69, s69, 0")
        a("s_mov_b32 s67, (%s_end-%s+4095)/4096" % (n, n))
        a("s_lshr_b32 s70, s2, 3")
        a("s_mul_i32 s70, s70, s67")
        a("v_add_u32 v1, s70, v0")
        a("v_lshlrev_b32 v1, 7, v1")
        a("v_min_u32 v1, %s_end-%s, v1" % (n, n))
        a("v_cmp_gt_u32 vcc, s67, v0")
        a("s_and_saveexec_b64 s[70:71], vcc")
        a("s_cbranch_execz %s" % l2)
        a("global_load_dword v244, v1, s[68:69]")
        a.lab(l2)
        a("s_mov_b64 exec, s[70:71]")

    def smem_warm(self, part):
        a = self.a
        if part == 0:
            a("s_lshr_b32 s67, s2, 3")
            a("s_and_b32 s68, s2, 7")
            a("s_mul_i32 s67, s67, %d" % (32 * 1280))
            a("s_mul_i32 s68, s68, 160")
            a("s_add_u32 s67, s67, s68")
            a("s_add_u32 s70, s%d, s67" % P_WD)
            a("s_addc_u32 s71, s%d, 0" % (P_WD + 1))
            a("s_min_u32 s67, s51, 383")
            a("s_lshr_b32 s68, s67, 3")
            a("s_and_b32 s67, s67, 7")
            a("s_mul_i32 s68, s68, %d" % (32 * 1280))
            a("s_mul_i32 s67, s67, 160")
            a("s_add_u32 s67, s67, s68")
            a("s_add_u32 s72, s%d, s67" % P_WD)
            a("s_addc_u32 s73, s%d, 0" % (P_WD + 1))
        for r in range(8 * part, 8 * part + 8):
            pass
        for base in (70, 72):
            for r in range(8 * part, 8 * part + 8):
                if base == 70 or True:
                    a("s_load_dword s74, s[%d:%d], %d" % (base, base + 1, r * 1280))
    def smem_warm2(self, part):
        a = self.a
        for base in (70, 72):
            for r in range(8 * part, 8 * part + 8):
                a("s_load_dword s74, s[%d:%d], %d" % (base, base + 1, r * 1280 + 156))

    def s_side(self):
        a = self.a
        if "noside" in self.ph:
            for b in range(11 if self.fused() else 12): a("s_barrier")
            return
        HA, HB = 100, 132
        def cond_b(fn):
            l = self.newlab("wb")
            a("s_cmp_ge_u32 s51, 384")
            a("s_cbranch_scc1 %s" % l)
            fn()
            a.lab(l)
        if "warm0" in self.ph:
            self.warm_inputs()
            if "warmc" in self.ph: self.warm_code()
        self.side_setup()
        self.rot_r("s50", "s67")
        a("s_and_b32 s68, s5, 1")
        a("s_lshl_b32 s50, s50, 1")
        a("s_add_u32 s50, s50, s68")
        a("s_add_u32 s53, s50, 2")
        a("s_lshr_b32 s67, s5, 1")
        a("s_and_b32 s67, s67, 3")
        a("s_cmp_eq_u32 s67, 0")
        a("s_cselect_b32 s53, s53, 99")
        if self.fused():
            a("v_mov_b32 v1, %d" % LDS_CNT)
            a("v_mov_b32 v2, 0")
            a("v_mov_b32 v3, 0")
            a("ds_write_b64 v1, v[2:3]")
            a("ds_write_b64 v1, v[2:3] offset:8")
            a("ds_write_b64 v1, v[2:3] offset:16")
            a("ds_write_b32 v1, v2 offset:24")
        self.stamp(5)
        if "nobpre" not in self.ph: a("s_barrier")
        if self.fused(): self.nonce_load()
        if "warm0" not in self.ph:
            if "warmc" in self.ph: self.warm_code()
            if "warm" in self.ph or "warm2" in self.ph: self.warm_inputs()
        a("s_barrier")
        self.stamp(1)
        self.ut_read("s50", 0, HA)
        def uflag(creg):
            a("s_lshl_b32 s69, %s, 5" % creg)
            a("s_add_u32 s69, s69, s4")
            a("s_lshl_b32 s69, s69, 2")
            a("s_add_u32 s69, s69, %d" % WS_FU)
            self.flag_set("s69", 2)
        def n_lt4(fn):
            l = self.newlab("ut")
            a("s_cmp_ge_u32 s53, 20")
            a("s_cbranch_scc1 %s" % l)
            fn()
            a.lab(l)
        def wflag(ureg):
            a("s_and_b32 s68, %s, 7" % ureg)
            a("s_lshl_b32 s68, s68, 8")
            a("s_lshr_b32 s69, %s, 3" % ureg)
            a("s_lshl_b32 s69, s69, 2")
            a("s_add_u32 s69, s69, s68")
            a("s_add_u32 s69, s69, %d" % WS_FW)
            self.flag_set("s69", 2)
        early = "utearly" in self.ph
        if early: self.ut_store("s50", HA)
        for kk in range(10):
            if not (kk == 9 and self.fused()): a("s_barrier")
            if kk == 0:
                n_lt4(lambda: self.ut_read("s53", 1 * STAGE, HB))
                if early: n_lt4(lambda: self.ut_store("s53", HB))
            if kk == 1:
                if not early:
                    self.ut_store("s50", HA)
                    n_lt4(lambda: self.ut_store("s53", HB))
            if kk == 3:
                a("s_waitcnt vmcnt(0)")
                if self.fused():
                    self.nonce_publish_local()
                    uflag("s50")
                    n_lt4(lambda: uflag("s53"))
            if "swarm" in self.ph and 2 <= kk <= 5:
                self.smem_warm(kk - 2)
                self.smem_warm2(kk - 2)
            if kk == 7:
                if "swarm" in self.ph: a("s_waitcnt lgkmcnt(0)")
                if self.fused(): self.s3_uw_look()
                self.wd_load("s2", 0)
                cond_b(lambda: self.wd_load("s51", 5120))
            if kk == 8:
                if self.fused():
                    l = self.newlab("uw")
                    a("s_waitcnt vmcnt(5)")
                    a("v_cmp_eq_u32 vcc, s64, v92")
                    a("s_nop 1")
                    a("s_cmp_eq_u64 vcc, -1")
                    a("s_cbranch_scc1 %s" % l)
                    self.poll(self.s3_uw_loads, [92], 6, sleep=2)
                    a.lab(l)
                    self.s3_u_loads()
                    a("v_mov_b32 v1, %d" % LDS_UOK)
                    a("v_mov_b32 v2, 3")
                    a("ds_write_b32 v1, v2")
                    a("s_waitcnt vmcnt(12)")
                else:
                    a("s_waitcnt vmcnt(0)")
                self.wd_store("s2", 0)
                cond_b(lambda: self.wd_store("s51", 5120, 180))
                self.gate_load()
        self.stamp(2)
        if self.fused():
            a("s_setprio 2")
            a("s_waitcnt vmcnt(15)")
            wflag("s2")
            cond_b(lambda: wflag("s51"))
            self.lds_spin(LDS_SFREE, 2, 4)
        self.stamp(3)
        if self.fused():
            self.s3_u_copies(extra=None)
            a("s_waitcnt lgkmcnt(0)")
            a("v_mov_b32 v1, %d" % LDS_UCOK)
            a("v_mov_b32 v2, 1")
            a("ds_write_b32 v1, v2")
            a("s_setprio 0")
            self.stamp(4)
            a("s_waitcnt vmcnt(0)")
            self.gate_compute()
            a("s_waitcnt vmcnt(0)")
            a("s_lshl_b32 s69, s2, 2")
            a("s_add_u32 s69, s69, %d" % WS_FG)
            self.flag_set("s69", 2)
        else:
            a("s_waitcnt vmcnt(0)")
            self.gate_compute()
            a("s_waitcnt vmcnt(0)")
            self.stamp(4)

    def s3_uw_addr(self):
        a = self.a
        a("v_lshrrev_b32 v1, 4, v0")
        a("v_lshlrev_b32 v1, 8, v1")
        a("v_add_u32 v1, s2, v1")
        a("v_mov_b32 v2, s2")
        a("v_cmp_gt_u32 vcc, 640, v1")
        a("s_nop 1")
        a("v_cndmask_b32 v1, v2, v1, vcc")
        a("v_lshrrev_b32 v1, 5, v1")
        a("v_lshlrev_b32 v1, 7, v1")
        a("v_and_b32 v2, 15, v0")
        a("v_lshl_add_u32 v1, v2, 2, v1")
        a("v_add_u32 v90, %d, v1" % WS_FU)
    def s3_uw_loads(self):
        a = self.a
        a("buffer_load_dword v92, v90, s[20:23], 0 offen sc1")
    def s3_uw_look(self):
        self.s3_uw_addr()
        self.s3_uw_loads()
    def s3_uw_check(self):
        a = self.a
        l = self.newlab("uw")
        a("s_waitcnt vmcnt(0)")
        a("v_cmp_eq_u32 vcc, s64, v92")
        a("v_cmp_eq_u32 s[76:77], s64, v93")
        a("s_nop 1")
        a("s_and_b64 vcc, vcc, s[76:77]")
        a("s_cmp_eq_u64 vcc, -1")
        a("s_cbranch_scc1 %s" % l)
        self.poll(self.s3_uw_loads, [92, 93], 6, sleep=2)
        a.lab(l)

    def s3_channels(self):
        a = self.a
        a("s_mov_b32 s70, s2")
        a("s_add_u32 s71, s2, 256")
        a("s_add_u32 s72, s2, 512")
        a("s_cmp_lt_u32 s72, 640")
        a("s_cselect_b32 s72, s72, s2")

    def s3_u_loads(self):
        a = self.a
        self.s3_channels()
        a("v_lshlrev_b32 v1, 4, v0")
        for sg in range(3):
            a("s_mul_i32 s67, s%d, %d" % (70 + sg, ROWS))
            a("s_add_u32 s67, s67, %d" % WS_UT)
            for i in range(4):
                r = 100 + 16 * sg + 4 * i
                a("buffer_load_dwordx4 v[%d:%d], v1, s[20:23], s67 offen offset:%d sc1" % (r, r + 3, 1024 * i))

    def s3_u_copies(self, extra=0):
        a = self.a
        Z = 150
        for i in range(4): a("v_mov_b32 v%d, 0" % (Z + i))
        a("v_lshlrev_b32 v2, 4, v0")
        a("v_cmp_eq_u32 vcc, 0, v0")
        for sg in range(3):
            base = LDS_UC + sg * UC_SZ
            for b in range(4):
                a("ds_write_b128 v2, v[%d:%d] offset:%d" % (Z, Z + 3, base + b * UC_STRIDE))
        for sg in range(3):
            base = LDS_UC + sg * UC_SZ
            if extra is not None: a("s_waitcnt vmcnt(%d)" % (4 * (2 - sg) + extra))
            for i in range(4):
                D = 100 + 16 * sg + 4 * i
                R3, R2 = 154 + 2 * (i & 1), 155 + 2 * (i & 1)
                Q3, Q2 = 154 + 2 * ((i + 1) & 1), 155 + 2 * ((i + 1) & 1)
                T1 = 160 + 12 * (i & 1); T0 = T1 + 4; T2 = T1 + 8
                P2 = 158
                a("v_mov_b32_dpp v%d, v%d wave_ror:1 row_mask:0xf bank_mask:0xf" % (R3, D + 3))
                a("v_mov_b32_dpp v%d, v%d wave_ror:1 row_mask:0xf bank_mask:0xf" % (R2, D + 2))
                a("v_mov_b32 v%d, v%d" % (T1 + 1, D))
                a("v_mov_b32 v%d, v%d" % (T1 + 2, D + 1))
                a("v_mov_b32 v%d, v%d" % (T1 + 3, D + 2))
                if i == 0:
                    a("v_cndmask_b32 v%d, v%d, v%d, vcc" % (T1, R3, Z))
                    a("v_cndmask_b32 v%d, v%d, v%d, vcc" % (P2, R2, Z))
                else:
                    a("v_cndmask_b32 v%d, v%d, v%d, vcc" % (T1, R3, Q3))
                    a("v_cndmask_b32 v%d, v%d, v%d, vcc" % (P2, R2, Q2))
                off = base + 4 * (96 + 256 * i)
                a("ds_write_b128 v2, v[%d:%d] offset:%d" % (D, D + 3, off + 3 * UC_STRIDE))
                a("v_alignbit_b32 v%d, v%d, v%d, 16" % (T0, T1, P2))
                a("v_alignbit_b32 v%d, v%d, v%d, 16" % (T0 + 1, D, T1))
                a("v_alignbit_b32 v%d, v%d, v%d, 16" % (T0 + 2, D + 1, D))
                a("v_alignbit_b32 v%d, v%d, v%d, 16" % (T0 + 3, D + 2, D + 1))
                a("ds_write_b128 v2, v[%d:%d] offset:%d" % (T1, T1 + 3, off + 1 * UC_STRIDE))
                a("v_mov_b32 v%d, v%d" % (T2, T0 + 1))
                a("v_mov_b32 v%d, v%d" % (T2 + 1, T0 + 2))
                a("v_mov_b32 v%d, v%d" % (T2 + 2, T0 + 3))
                a("v_alignbit_b32 v%d, v%d, v%d, 16" % (T2 + 3, D + 3, D + 2))
                a("ds_write_b128 v2, v[%d:%d] offset:%d" % (T0, T0 + 3, off + 0 * UC_STRIDE))
                a("ds_write_b128 v2, v[%d:%d] offset:%d" % (T2, T2 + 3, off + 2 * UC_STRIDE))

    def s_phase1(self):
        a = self.a
        n = self.name
        a("s_sub_u32 s66, s3, 4")
        a("s_cmp_eq_u32 s66, 3")
        a("s_cbranch_scc1 %s_sj" % n)
        self.s_kgen_phase1()
        a("s_branch %s_p1done" % n)
        a.lab("%s_sj" % n)
        self.s_side()
        a.lab("%s_p1done" % n)

    def ssm_param_loads(self, slots=(0, 1, 2), scalars=True):
        a = self.a
        a("s_mul_i32 s67, s50, 384")
        a("v_lshl_add_u32 v1, v0, 1, s67")
        for sl in slots:
            for k, p in enumerate((P_ARE, P_AIM, P_BRE, P_BIM, P_CRE, P_CIM)):
                a("global_load_ushort v%d, v1, s[%d:%d] offset:%d" % (200 + 6 * sl + k, p, p + 1, 128 * sl))
        if scalars:
            a("s_lshl_b32 s67, s50, 1")
            a("v_mov_b32 v223, s67")
            a("global_load_ushort v218, v223, s[%d:%d]" % (P_LDT, P_LDT + 1))
            a("global_load_ushort v219, v223, s[%d:%d]" % (P_DSK, P_DSK + 1))

    def kgen_bases(self):
        a = self.a
        a("s_mul_i32 s51, s66, %d" % TAB_SZ)
        a("s_add_u32 s51, s51, %d" % LDS_TAB)
        a("s_mul_i32 s52, s66, %d" % KR_SZ)
        a("s_add_u32 s52, s52, %d" % LDS_KR)

    def kgen(self, part="all"):
        a = self.a
        if part == "all": self.kgen_bases()
        self._kgen_body(part)

    def _kgen_body(self, part):
        a = self.a
        head = part in ("all", "head", "rest"); tail = part in ("all", "tail", "rest")
        real_a = a
        if not head: a = Asm()
        a("v_and_b32 v4, 15, v0")
        a("v_lshrrev_b32 v5, 4, v0")
        a("v_mul_u32_u24 v2, %d, v4" % TABROW)
        a("v_lshl_add_u32 v2, v5, 6, v2")
        a("v_add_u32 v2, s51, v2")
        a("v_and_b32 v6, 1, v5")
        a("v_lshl_add_u32 v3, v6, 3, v2")
        a("v_xor_b32 v6, 1, v6")
        a("v_lshl_add_u32 v2, v6, 3, v2")
        a("s_mov_b32 m0, s51")
        a("s_nop 0")
        if part == "all" or (part == "rest" and not self.fused()): a("s_waitcnt vmcnt(0)")
        a("v_lshlrev_b32 v218, 16, v218")
        a("v_lshlrev_b32 v219, 16, v219")
        a("v_mul_f32 v6, 0x3fb8aa3b, v218")
        a("s_mov_b32 s67, 0x3fb8aa3b")
        a("v_fma_f32 v7, v218, s67, -v6")
        a("v_fmac_f32 v7, 0x32a57060, v218")
        a("v_exp_f32 v6, v6")
        a("v_mul_f32 v7, 0x3f317218, v7")
        a("v_fma_f32 v6, v6, v7, v6")
        a("v_cvt_pk_bf16_f32 v6, v6, v6")
        a("v_lshlrev_b32 v218, 16, v6")
        W1, W16, W256, W512, W768, W1024 = 10, 12, 14, 16, 18, 20
        WX = 22
        CB = 24
        Y = 26; P = 28; TMP1 = 30; TMP2 = 32; TMP3 = 34
        PK = 36
        V = 50
        CV = 66
        YF = 76
        AF = 92
        ACC = 108
        nopk = (part == "head") and ("pkhead" not in self.ph)
        def cmul(out, x, w, t):
            if nopk:
                return ["v_mul_f32 v%d, v%d, v%d" % (t, x + 1, w + 1),
                        "v_mul_f32 v%d, v%d, v%d" % (t + 1, x, w + 1),
                        "v_fma_f32 v%d, v%d, v%d, -v%d" % (out, x, w, t),
                        "v_fma_f32 v%d, v%d, v%d, v%d" % (out + 1, x + 1, w, t + 1)]
            return ["v_pk_mul_f32 v[%d:%d], v[%d:%d], v[%d:%d] op_sel:[0,0] op_sel_hi:[0,1]" % (t, t + 1, x, x + 1, w, w + 1),
                    "v_pk_fma_f32 v[%d:%d], v[%d:%d], v[%d:%d], v[%d:%d] op_sel:[1,1,0] op_sel_hi:[1,0,1] neg_lo:[1,0,0]" % (out, out + 1, x, x + 1, w, w + 1, t, t + 1)]
        def zipl(*ls):
            o = []
            for i in range(max(len(l) for l in ls)):
                for l in ls:
                    if i < len(l): o.append(l[i])
            return o
        cvn = [0, 0]
        def wr(val, tile, row, neg, bank=0):
            c = CV + 4 * bank + (cvn[bank] % 4); cvn[bank] += 1
            return ["v_cvt_pk_bf16_f32 v%d, v%d, %sv%d" % (c, val, "-" if neg else "", val + 1),
                    "ds_write_addtid_b32 v%d offset:%d" % (c, tile * TABTILE + row * TABROW)]
        def frag_reads(dst, tile):
            L = []
            for kk in range(4):
                L.append("ds_read_b64 v[%d:%d], v3 offset:%d" % (dst + 4 * kk, dst + 4 * kk + 1, tile * TABTILE + 16 * kk))
                L.append("ds_read_b64 v[%d:%d], v2 offset:%d" % (dst + 4 * kk + 2, dst + 4 * kk + 3, tile * TABTILE + 16 * kk))
            return L
        def mm(t, first):
            L = []
            for kk in range(4):
                c = "0" if (first and kk == 0) else "v[%d:%d]" % (ACC + 4 * t, ACC + 4 * t + 3)
                L.append("v_mfma_f32_16x16x32_bf16 v[%d:%d], v[%d:%d], v[%d:%d], %s" % (ACC + 4 * t, ACC + 4 * t + 3, AF + 4 * kk, AF + 4 * kk + 3, YF + 4 * kk, YF + 4 * kk + 3, c))
            return L
        a = real_a
        nh = 2 if "kg2" in self.ph else 1
        slots = [0, 1, 2] if part in ("all", "rest") else (list(range(nh)) if part == "head" else list(range(nh, 3)))
        for sl in slots:
            if sl == 1 and part == "tail" and not self.fused(): a("s_waitcnt vmcnt(0)")
            if sl == 2 and part in ("rest", "tail"): self.stamp(3)
            if sl == 2 and "prioT" in self.ph: a("s_setprio 2")
            if sl == slots[0] and part in ("tail", "rest") and "prioT0" in self.ph: a("s_setprio 2")
            pr = 200 + 6 * sl
            for k in range(6): a("v_lshlrev_b32 v%d, 16, v%d" % (pr + k, pr + k))
            a("v_mul_f32 v6, v218, v%d" % pr)
            a("v_mul_f32 v7, v218, v%d" % (pr + 1))
            a("v_mul_f32 v6, 0x3fb8aa3b, v6")
            a("v_mul_f32 v7, 0.15915494, v7")
            a("v_mul_f32 v8, v218, v%d" % (pr + 2))
            a("v_mul_f32 v9, v218, v%d" % (pr + 3))
            a.ext(cmul(CB, pr + 4, 8, TMP1))
            for w, k in ((W1, 1.0), (W16, 16.0), (W256, 256.0)):
                if k == 1.0:
                    a("v_exp_f32 v%d, v6" % TMP2)
                    a("v_fract_f32 v%d, v7" % TMP3)
                else:
                    lit = "0x41800000" if k == 16.0 else "0x43800000"
                    a("v_mul_f32 v%d, %s, v6" % (TMP2, lit))
                    a("v_mul_f32 v%d, %s, v7" % (TMP3, lit))
                    a("v_exp_f32 v%d, v%d" % (TMP2, TMP2))
                    a("v_fract_f32 v%d, v%d" % (TMP3, TMP3))
                a("v_cos_f32 v%d, v%d" % (w, TMP3))
                a("v_sin_f32 v%d, v%d" % (w + 1, TMP3))
                a("s_nop 0")
                a("v_mul_f32 v%d, v%d, v%d" % (w, w, TMP2))
                a("v_mul_f32 v%d, v%d, v%d" % (w + 1, w + 1, TMP2))
            if sl != slots[0]:
                a("s_waitcnt lgkmcnt(0)")
                a.ext(pend_mm2)
            LY = ["v_mov_b32 v%d, v%d" % (Y, CB), "v_mov_b32 v%d, v%d" % (Y + 1, CB + 1)] + wr(Y, 0, 0, False)
            for j in range(1, 16):
                LY += cmul(Y, Y, W16, TMP1) + wr(Y, 0, j, False)
            LA = ["v_mov_b32 v%d, 1.0" % P, "v_mov_b32 v%d, 0" % (P + 1)] + wr(P, 1, 0, True, 1)
            cur = P
            for r in range(1, 16):
                if r == 1:
                    LA += ["v_mov_b32 v%d, v%d" % (P, W1), "v_mov_b32 v%d, v%d" % (P + 1, W1 + 1)]
                    cur = P
                else:
                    dst = PK + 2 * (r // 2 - 1) if r % 2 == 0 else P
                    LA += cmul(dst, cur, W1, TMP2)
                    cur = dst
                LA += wr(cur, 1, r, True, 1)
            a.ext(zipl(LY, LA))
            a.ext(cmul(W512, W256, W256, TMP1))
            a.ext(frag_reads(YF, 0)); a.ext(frag_reads(AF, 1))
            a.ext(zipl(cmul(W768, W512, W256, TMP1), cmul(W1024, W512, W512, TMP2)))
            def pk(i): return PK + 2 * (i // 2 - 1)
            vals = []
            A2 = []
            regs = []
            for r in range(8):
                if r == 0: regs.append(W256)
                else:
                    dst = V + 2 * (r - 1) if r < 8 else None
                    A2.append(cmul(dst, pk(2 * r), W256, TMP1 if r % 2 else TMP2)); regs.append(dst)
            a.ext(zipl(sum(A2[0::2], []), sum(A2[1::2], [])))
            a("s_waitcnt lgkmcnt(0)")
            m = mm(0, sl == 0)
            L = []
            for r in range(8): L += wr(regs[r], 1, r, True)
            a.ext(interleave(m, L))
            LA = []; LB = []
            for b in range(4):
                if b == 0:
                    LA += wr(W512, 1, 8, True); LB += wr(W768, 1, 12, True, 1)
                else:
                    LA += cmul(V, pk(4 * b), W512, TMP1) + wr(V, 1, 8 + b, True)
                    LB += cmul(V + 2, pk(4 * b), W768, TMP2) + wr(V + 2, 1, 12 + b, True, 1)
            a.ext(zipl(LA, LB))
            a.ext(frag_reads(AF, 1))
            a.ext(zipl(cmul(V, W1024, W256, TMP1), cmul(V + 2, W1024, W512, TMP2)))
            a.ext(zipl(cmul(V + 4, W1024, W768, TMP1), cmul(V + 6, W1024, W1024, TMP2)))
            ws = [W1024, V, V + 2, V + 4]
            a.ext(zipl(cmul(V + 8, ws[0], pk(8), TMP1), cmul(V + 10, ws[1], pk(8), TMP2)))
            a.ext(zipl(cmul(V + 12, ws[2], pk(8), TMP1), cmul(V + 14, ws[3], pk(8), TMP2)))
            a("s_waitcnt lgkmcnt(0)")
            m = mm(1, sl == 0)
            L = []
            for i in range(4):
                L += wr(ws[i], 1, 2 * i, True) + wr(V + 8 + 2 * i, 1, 2 * i + 1, True)
            L += wr(V + 6, 1, 8, True)
            a.ext(interleave(m, L))
            a.ext(frag_reads(AF, 1))
            pend_mm2 = mm(2, sl == 0)
            if sl == slots[-1]:
                a("s_waitcnt lgkmcnt(0)")
                a.ext(pend_mm2); pend_mm2 = None
        if not tail: return
        self.stamp(1)
        A0, A1, A2r = ACC, ACC + 4, ACC + 8
        a("v_cmp_eq_u32 vcc, 0, v0")
        a("v_and_b32 v4, 15, v0")
        a("v_lshrrev_b32 v5, 4, v0")
        a("v_cndmask_b32 v6, 0, v219, vcc")
        a("v_lshlrev_b32 v7, 5, v4")
        a("v_lshl_add_u32 v7, v5, 4, v7")
        a("v_lshlrev_b32 v8, 4, v4")
        a("v_lshl_add_u32 v8, v5, 8, v8")
        a("v_cmp_gt_u32 vcc, 2, v5")
        a("v_add_f32 v%d, v%d, v6" % (A0, A0))
        a("s_nop 0")
        a("v_cndmask_b32 v7, v8, v7, vcc")
        a("v_add_u32 v7, s51, v7")
        a("v_lshlrev_b32 v8, 3, v4")
        a("v_lshl_add_u32 v8, v5, 8, v8")
        a("v_add_u32 v8, s51, v8")
        a("s_nop 4")
        a("ds_write_b128 v7, v[%d:%d]" % (A1, A1 + 3))
        a("ds_write_b64 v8, v[%d:%d] offset:1024" % (A2r, A2r + 1))
        a("ds_write_b64 v8, v[%d:%d] offset:1152" % (A2r + 2, A2r + 3))
        a("v_cvt_pk_bf16_f32 v10, v%d, v%d" % (A0 + 3, A0 + 2))
        a("v_cvt_pk_bf16_f32 v11, v%d, v%d" % (A0 + 1, A0))
        a("v_lshlrev_b32 v9, 5, v4")
        a("v_lshl_add_u32 v9, v5, 3, v9")
        a("v_sub_u32 v9, 4088, v9")
        a("v_add_u32 v9, s52, v9")
        a("ds_write_b64 v9, v[10:11]")
        a("v_and_b32 v9, 31, v0")
        a("v_lshlrev_b32 v9, 2, v9")
        a("v_add_u32 v9, s52, v9")
        a("v_mov_b32 v12, 0")
        a("ds_write_b32 v9, v12 offset:4096")
        a("v_lshlrev_b32 v13, 4, v0")
        a("v_add_u32 v14, s51, v13")
        a("v_lshlrev_b32 v15, 3, v0")
        a("v_add_u32 v15, s51, v15")
        a("v_lshlrev_b32 v16, 2, v0")
        a("v_add_u32 v16, s51, v16")
        a("v_sub_u32 v13, s52, v13")
        a("s_waitcnt lgkmcnt(0)")
        a("ds_read_b128 v[20:23], v14")
        a("ds_read_b32 v24, v14 offset:16")
        a("ds_read_b64 v[26:27], v15 offset:512")
        a("ds_read_b32 v28, v15 offset:520")
        a("ds_read2_b32 v[30:31], v16 offset0:0 offset1:1")
        a.l.pop()
        a("v_add_u32 v17, 1024, v16")
        a("ds_read2_b32 v[30:31], v17 offset0:0 offset1:1")
        a("ds_read2_b32 v[32:33], v17 offset0:64 offset1:65")
        a("v_and_b32 v18, 1, v0")
        a("v_cmp_eq_u32 vcc, 1, v18")
        a("s_waitcnt lgkmcnt(0)")
        a("v_cvt_pk_bf16_f32 v36, v28, v28")
        a("v_cvt_pk_bf16_f32 v37, v27, v27")
        a("v_cvt_pk_bf16_f32 v38, v27, v26")
        a("v_cvt_pk_bf16_f32 v39, v26, v26")
        a("ds_write_b128 v13, v[36:39] offset:3056")
        for ps in range(2):
            v0_, v1_ = 30 + 2 * ps, 31 + 2 * ps
            o = 40 + 4 * ps
            a("v_cndmask_b32 v19, v%d, v%d, vcc" % (v0_, v1_))
            a("v_cvt_pk_bf16_f32 v%d, v%d, v%d" % (o, v1_, v1_))
            a("v_cvt_pk_bf16_f32 v%d, v%d, v19" % (o + 1, v1_))
            a("v_cvt_pk_bf16_f32 v%d, v%d, v%d" % (o + 2, v0_, v0_))
            a("v_mov_b32 v%d, v%d" % (o + 3, o + 2))
        a("ds_write_b128 v13, v[40:43] offset:2032")
        a("ds_write_b128 v13, v[44:47] offset:1008")
        a("v_cvt_pk_bf16_f32 v48, v24, v23")
        a("v_cvt_pk_bf16_f32 v49, v22, v22")
        a("v_cvt_pk_bf16_f32 v50, v22, v21")
        a("v_cvt_pk_bf16_f32 v51, v20, v20")
        a("s_mov_b32 exec_hi, 0")
        a("ds_write_b128 v13, v[48:51] offset:3568")
        a("s_mov_b32 exec_hi, -1")
        if "dumpk" in self.ph:
            a("s_waitcnt lgkmcnt(0)")
            a("v_lshlrev_b32 v13, 4, v0")
            a("v_add_u32 v14, s52, v13")
            a("s_mul_i32 s67, s50, 4224")
            a("s_add_u32 s67, s67, %d" % WS_DBG)
            for i in range(5):
                a("ds_read_b128 v[20:23], v14 offset:%d" % (1024 * i))
                a("s_waitcnt lgkmcnt(0)")
                if i == 4: a("s_mov_b32 exec_hi, 0"); a("s_mov_b32 exec_lo, 0xff")
                a("s_add_u32 s68, s67, %d" % (1024 * i))
                a("buffer_store_dwordx4 v[20:23], v13, s[20:23], s68 offen")
                a("s_waitcnt vmcnt(0)")
            a("s_mov_b64 exec, -1")

    def u_look(self):
        a = self.a
        self.nonce_read(120)
        a("s_lshr_b32 s78, s50, 5")
        a("s_lshl_b32 s78, s78, 7")
        a("s_add_u32 s78, s78, %d" % WS_FU)
        a("v_and_b32 v120, 15, v0")
        a("v_lshlrev_b32 v120, 2, v120")
        a("buffer_load_dword v121, v120, s[20:23], s78 offen sc1")
    def u_prefetch(self):
        a = self.a
        l = self.newlab("uok")
        a("s_waitcnt vmcnt(0)")
        a("v_cmp_eq_u32 vcc, s64, v121")
        a("s_nop 1")
        a("s_cmp_eq_u64 vcc, -1")
        a("s_cbranch_scc1 %s" % l)
        self.poll_line("s78", 16, 120, sleep=4)
        a.lab(l)
        self.conv_loads()
        self.lds_inc(LDS_UOK, 152)

    def conv_loads(self):
        a = self.a
        a("s_mul_i32 s67, s50, %d" % ROWS)
        a("s_add_u32 s67, s67, %d" % (WS_UT - 4))
        a("v_lshlrev_b32 v1, 2, v0")
        for i in range(16):
            a("buffer_load_dwordx2 v[%d:%d], v1, s[20:23], s67 offen offset:%d sc1" % (120 + 2 * i, 121 + 2 * i, 256 * i))

    def conv(self):
        a = self.a
        D = 120
        a("s_mul_i32 s53, s66, %d" % UC_SZ)
        if LDS_UC: a("s_add_u32 s53, s53, %d" % LDS_UC)
        if not self.fused():
            a("s_mov_b32 m0, s53")
            a("v_mov_b32 v2, 0")
            for b in range(4):
                a("ds_write_addtid_b32 v2 offset:%d" % (b * UC_STRIDE))
                a("ds_write_addtid_b32 v2 offset:%d" % (b * UC_STRIDE + 33 * 4))
            a("v_cmp_eq_u32 vcc, 0, v0")
            a("s_waitcnt vmcnt(0)")
            a("v_cndmask_b32 v%d, v%d, v2, vcc" % (D, D))
            for i in range(16):
                lo, hi = D + 2 * i, D + 2 * i + 1
                o = 4 + (i % 4)
                a("v_alignbit_b32 v%d, v%d, v%d, 16" % (o, hi, lo))
                a("ds_write_addtid_b32 v%d offset:%d" % (hi, 3 * UC_STRIDE + 4 * (64 * i + 96)))
                a("ds_write_addtid_b32 v%d offset:%d" % (hi, 1 * UC_STRIDE + 4 * (64 * i + 97)))
                a("ds_write_addtid_b32 v%d offset:%d" % (o, 2 * UC_STRIDE + 4 * (64 * i + 96)))
                a("ds_write_addtid_b32 v%d offset:%d" % (o, 0 * UC_STRIDE + 4 * (64 * i + 97)))
        VU, VK = 8, 9
        a("v_and_b32 v4, 3, v0")
        a("v_mul_u32_u24 v4, %d, v4" % UC_STRIDE)
        a("v_bfe_u32 v5, v0, 2, 2")
        a("v_lshl_add_u32 v4, v5, 7, v4")
        a("v_lshrrev_b32 v5, 4, v0")
        a("v_lshl_add_u32 v4, v5, 4, v4")
        a("v_add_u32 v%d, s53, v4" % VU)
        a("v_and_b32 v6, 15, v0")
        a("v_lshlrev_b32 v7, 3, v6")
        a("v_sub_u32 v7, 120, v7")
        a("v_lshl_add_u32 v7, v5, 4, v7")
        a("v_add_u32 v%d, s52, v7" % VK)
        a("v_lshlrev_b32 v10, 3, v6")
        a("v_lshl_add_u32 v10, v5, 7, v10")
        ACC = 16; SETS = [48, 112]
        def reads(rho, S):
            L = []
            for z in range(8):
                L.append("ds_read_b128 v[%d:%d], v%d offset:%d" % (S + 4 * z, S + 4 * z + 3, VU, 512 * z + 64 * (7 - rho)))
                zz = 8 * z + rho
                L.append("ds_read_b64 v[%d:%d], v%d offset:%d" % (S + 32 + 4 * z, S + 33 + 4 * z, VK, 64 * (63 - zz)))
                L.append("ds_read_b64 v[%d:%d], v%d offset:%d" % (S + 34 + 4 * z, S + 35 + 4 * z, VK, 64 * (63 - zz) + 8))
            return L
        def mm(rho, S):
            L = []
            for ze in range(8):
                for nu in range(8 - ze):
                    n = ze + nu
                    c = "0" if (rho == 0 and ze == 0) else "v[%d:%d]" % (ACC + 4 * n, ACC + 4 * n + 3)
                    L.append("v_mfma_f32_16x16x32_bf16 v[%d:%d], v[%d:%d], v[%d:%d], %s" % (ACC + 4 * n, ACC + 4 * n + 3, S + 4 * nu, S + 4 * nu + 3, S + 32 + 4 * ze, S + 35 + 4 * ze, c))
            return L
        a("s_waitcnt lgkmcnt(0)")
        if self.fused(): self.lds_spin(LDS_UCOK, 12)
        self.stamp(4)
        a.ext(reads(0, SETS[0]))
        a("s_waitcnt lgkmcnt(0)")
        for rho in range(8):
            fill = reads(rho + 1, SETS[(rho + 1) & 1]) if rho < 7 else []
            a.ext(interleave(mm(rho, SETS[rho & 1]), fill, span=28))
            if rho < 7: a("s_waitcnt lgkmcnt(0)")
        self.stamp(7)
        a("s_mul_i32 s67, s50, %d" % ROWS)
        a("s_add_u32 s67, s67, %d" % WS_Y)
        a("s_nop 7")
        for n in range(8):
            o = 48 + 2 * n
            a("v_cvt_pk_bf16_f32 v%d, v%d, v%d" % (o, ACC + 4 * n, ACC + 4 * n + 1))
            a("v_cvt_pk_bf16_f32 v%d, v%d, v%d" % (o + 1, ACC + 4 * n + 2, ACC + 4 * n + 3))
            a("buffer_store_dwordx2 v[%d:%d], v10, s[20:23], s67 offen offset:%d sc1" % (o, o + 1, 512 * n))

    def s_ssm(self):
        a = self.a
        n = self.name
        a("s_sub_u32 s66, s3, 4")
        a("s_lshl_b32 s50, s66, 8")
        a("s_add_u32 s50, s50, s2")
        a("s_cmp_ge_u32 s66, 3")
        a("s_cbranch_scc1 %s_ssm_done" % n)
        if self.fused():
            l = self.newlab("nch")
            a("s_cmp_lt_u32 s50, 640")
            a("s_cbranch_scc1 %s" % l)
            a("s_branch %s_ssm_done" % n)
            a.lab(l)
        else:
            a("s_cmp_ge_u32 s50, 640")
            a("s_cbranch_scc1 %s_ssm_done" % n)
        if self.fused() and "g1" in self.ph:
            a("s_waitcnt vmcnt(0)")
        if "g1" not in self.ph:
            self.stamp(5)
            self.ssm_param_loads()
            self.kgen("all")
        elif "kghead" in self.ph:
            self.kgen("tail")
        else:
            self.kgen("rest")
        self.stamp(6)
        if not self.fused():
            self.conv_loads()
        self.conv()
        if "prioT" in self.ph or "prioT0" in self.ph: a("s_setprio 0")
        a("s_waitcnt vmcnt(0)")
        if self.fused():
            self.nonce_read(4)
            a("s_lshl_b32 s69, s50, 2")
            a("s_add_u32 s69, s69, %d" % WS_FY)
            self.flag_set("s69", 2)
        self.stamp(8)
        a.lab("%s_ssm_done" % n)

    def g_gemm2(self):
        a = self.a
        ACC = 0
        SETS = [80, 116, 152, 188]
        VB = 224
        VL = 228
        VB8 = 246
        T = 230
        acc = lambda dt, tau: ACC + (dt * 4 + tau) * 4
        a("v_mbcnt_lo_u32_b32 v%d, -1, 0" % T)
        a("v_mbcnt_hi_u32_b32 v%d, -1, v%d" % (T, T))
        a("v_lshlrev_b32 v%d, 4, v%d" % (VL, T))
        for tau in range(4):
            a("s_add_u32 s67, s3, %d" % tau)
            a("s_and_b32 s67, s67, 3")
            a("s_lshl_b32 s67, s67, 10")
            a("v_add_u32 v%d, s67, v%d" % (VB + tau, VL))
            a("v_lshlrev_b32 v%d, 3, v%d" % (VB8 + tau, T))
            a("v_add_u32 v%d, s67, v%d" % (VB8 + tau, VB8 + tau))
        a("s_mul_i32 s70, s6, 48")
        a("s_mul_i32 s67, s3, 12")
        a("s_add_u32 s70, s70, s67")
        a("s_lshl_b32 s70, s70, 12")
        if WS_H: a("s_add_u32 s70, s70, %d" % WS_H)
        a("s_mul_i32 s71, s7, 48")
        a("s_add_u32 s71, s71, s67")
        a("s_mul_i32 s71, s71, 5120")
        a("s_add_u32 s71, s71, %d" % WS_WD)
        a("s_add_u32 s72, s71, 4096")
        def loadsA(S):
            L = []
            for dt in range(5):
                if dt < 4: L.append("buffer_load_dwordx4 v[%d:%d], v%d, s[20:23], s71 offen offset:%d sc1" % (S + 16 + 4 * dt, S + 19 + 4 * dt, VL, 1024 * dt))
                else: L.append(("buffer_load_dwordx4 v[%d:%d], v%d, s[20:23], s72 offen sc1" % (S + 16 + 4 * dt, S + 19 + 4 * dt, VL),
                                "s_add_u32 s71, s71, 5120", "s_add_u32 s72, s72, 5120"))
            return L
        def loadsB(S, k):
            L = []
            for tau in range(4):
                if k % 3 == 1:
                    x = ("buffer_load_dwordx2 v[%d:%d], v%d, s[20:23], s70 offen sc1" % (S + 4 * tau, S + 4 * tau + 1, VB8 + tau),
                         "buffer_load_dwordx2 v[%d:%d], v%d, s[20:23], s70 offen offset:512 sc1" % (S + 4 * tau + 2, S + 4 * tau + 3, VB8 + tau))
                else:
                    x = ("buffer_load_dwordx4 v[%d:%d], v%d, s[20:23], s70 offen sc1" % (S + 4 * tau, S + 4 * tau + 3, VB + tau),)
                L.append(x if tau < 3 else x + ("s_add_u32 s70, s70, 4096",))
            return L
        nB = lambda k: 8 if k % 3 == 1 else 4
        def mm(S, first):
            L = []
            for dt in range(5):
                for tau in range(4):
                    c = "0" if first else "v[%d:%d]" % (acc(dt, tau), acc(dt, tau) + 3)
                    L.append("v_mfma_f32_16x16x32_bf16 v[%d:%d], v[%d:%d], v[%d:%d], %s" % (acc(dt, tau), acc(dt, tau) + 3, S + 16 + 4 * dt, S + 19 + 4 * dt, S + 4 * tau, S + 4 * tau + 3, c))
            return L
        NS = 12
        pre = "g1" in self.ph and "nopre" not in self.ph
        def red_slot(tau):
            a("s_add_u32 s67, s3, %d" % tau)
            a("s_and_b32 s67, s67, 3")
            a("s_mul_i32 s67, s67, 3")
            a("s_add_u32 s67, s67, %d" % (tau - 1))
            a("s_mul_i32 s67, s67, 5120")
            a("s_add_u32 s67, s67, %d" % LDS_RED)
        VRS = 250
        for tau in range(1, 4):
            red_slot(tau)
            a("v_add_u32 v%d, s67, v%d" % (VRS + tau - 1, VL))
            a("s_mov_b32 s%d, s67" % (72 + tau))
        if "g1" in self.ph:
            if self.fused(): self.nonce_read(232)
            self.g_signal_h(0)
        if pre:
            if self.fused():
                lo = self.newlab("ww"); ld = self.newlab("wd")
                a("s_cmp_lg_u32 s3, 0")
                a("s_cbranch_scc1 %s" % lo)
                self.lds_spin(LDS_SFREE, 232, 4)
                self.lds_spin(LDS_UOK, 232, 3)
                a("s_lshl_b32 s78, s7, 8")
                a("s_add_u32 s78, s78, %d" % WS_FW)
                self.poll_line("s78", 48, 232, sleep=2)
                a("v_mov_b32 v232, %d" % LDS_WOK)
                a("v_mov_b32 v233, 1")
                a("ds_write_b32 v232, v233")
                a("s_branch %s" % ld)
                a.lab(lo)
                self.lds_spin(LDS_WOK, 232)
                a.lab(ld)
            for k in range(4):
                a.ext(flat(loadsA(SETS[k])))
            for tau in range(1, 4):
                a("s_mov_b32 m0, s%d" % (72 + tau))
                a("s_nop 0")
                for dt in range(4):
                    a("buffer_load_dwordx4 v%d, s[20:23], s71 offen offset:%d sc1 lds" % (VL, 1024 * dt))
                a("s_add_u32 m0, s%d, 4096" % (72 + tau))
                a("s_add_u32 s71, s71, 5120")
                a("buffer_load_dwordx4 v%d, s[20:23], s72 offen sc1 lds" % VL)
                a("s_add_u32 s72, s72, 5120")
        self.g2_wait_inputs()
        self.stamp(5)
        self.clk(5)
        def srcA(k):
            if not pre: return "g"
            return "pre" if k < 4 else ("lds" if k < 7 else "g")
        def loadA_any(k):
            S = SETS[k % 4]
            if srcA(k) == "g": return loadsA(S)
            if srcA(k) == "lds":
                return ["ds_read_b128 v[%d:%d], v%d offset:%d" % (S + 16 + 4 * dt, S + 19 + 4 * dt, VRS + k - 4, 1024 * dt) for dt in range(5)]
            return []
        nL = lambda k: nB(k) + (5 if srcA(k) == "g" else 0)
        for k in range(3):
            a.ext(flat(loadsB(SETS[k], k) + loadA_any(k)))
        for k in range(NS):
            rem = sum(nL(j) for j in range(k + 1, min(NS - 1, k + 2) + 1))
            if srcA(k) == "lds": a("s_waitcnt vmcnt(%d) lgkmcnt(0)" % rem)
            else: a("s_waitcnt vmcnt(%d)" % rem)
            fill = (loadsB(SETS[(k + 3) % 4], k + 3) + loadA_any(k + 3)) if k + 3 < NS else []
            if "k2stamps" in self.ph and k < 9: self.stamp(k + 1, force=True)
            a.ext(interleave(mm(SETS[k % 4], k == 0), fill))
            if k + 3 == NS - 1 and self.fused(): self.lds_inc(LDS_GOK, 232)
        self.stamp(6)
        self.clk(7)
        a("s_nop 7")
        for tau in range(1, 4):
            for dt in range(5):
                a("ds_write_b128 v%d, v[%d:%d] offset:%d" % (VRS + tau - 1, acc(dt, tau), acc(dt, tau) + 3, 1024 * dt))
        a("s_waitcnt lgkmcnt(0)")
        a("s_barrier")
        self.stamp(7)
        a("s_mul_i32 s67, s3, %d" % (3 * 5120))
        a("s_add_u32 s67, s67, %d" % LDS_RED)
        a("v_add_u32 v%d, s67, v%d" % (T + 1, VL))
        R = 80
        for j in range(3):
            for dt in range(5):
                r = R + (j * 5 + dt) * 4
                a("ds_read_b128 v[%d:%d], v%d offset:%d" % (r, r + 3, T + 1, 5120 * j + 1024 * dt))
        Y = 140
        a("v_lshrrev_b32 v%d, 4, v%d" % (T + 2, T))
        a("v_and_b32 v%d, 15, v%d" % (T + 3, T))
        a("v_lshrrev_b32 v%d, 2, v%d" % (T + 4, T + 3))
        a("v_lshl_add_u32 v%d, v%d, 3, v%d" % (T + 5, T + 2, T + 4))
        a("v_lshl_add_u32 v%d, v%d, 2, v%d" % (T + 6, T + 2, T + 4))
        a("v_and_b32 v%d, 3, v%d" % (T + 7, T))
        a("v_lshlrev_b32 v%d, 3, v%d" % (T + 7, T + 7))
        a("s_lshl_b32 s67, s3, 5")
        a("s_add_u32 s67, s67, %d" % LDS_YT)
        a("v_add_u32 v%d, s67, v%d" % (T + 7, T + 7))
        a("v_lshl_add_u32 v%d, v%d, 7, v%d" % (T + 5, T + 5, T + 7))
        a("v_lshl_add_u32 v%d, v%d, 7, v%d" % (T + 6, T + 6, T + 7))
        for dt in range(5):
            if dt < 4: a("ds_read_b64_tr_b16 v[%d:%d], v%d offset:%d" % (Y + 2 * dt, Y + 2 * dt + 1, T + 5, 128 * (32 * (dt >> 1) + 4 * (dt & 1))))
            else: a("ds_read_b64_tr_b16 v[%d:%d], v%d offset:%d" % (Y + 2 * dt, Y + 2 * dt + 1, T + 6, 128 * 64))
        a("s_lshl_b32 s67, s3, 6")
        a("s_add_u32 s67, s67, %d" % LDS_GT)
        a("v_lshl_add_u32 v%d, v%d, 2, s67" % (T + 8, T + 3))
        a("ds_read_b32 v%d, v%d" % (T + 8, T + 8))
        a("s_lshl_b32 s67, s6, 6")
        a("s_lshl_b32 s68, s3, 4")
        a("s_add_u32 s67, s67, s68")
        a("v_add_u32 v%d, s67, v%d" % (T + 9, T + 3))
        a("s_movk_i32 s68, 1280")
        a("v_mul_lo_u32 v%d, v%d, s68" % (T + 9, T + 9))
        a("s_mul_i32 s68, s7, 160")
        a("v_add_u32 v%d, s68, v%d" % (T + 9, T + 9))
        a("v_lshl_add_u32 v%d, v%d, 3, v%d" % (T + 10, T + 2, T + 9))
        a("v_lshl_add_u32 v%d, v%d, 4, v%d" % (T + 9, T + 2, T + 9))
        a("s_waitcnt lgkmcnt(0)")
        for dt in range(5):
            for h in range(2):
                x = acc(dt, 0) + 2 * h
                p = [R + (j * 5 + dt) * 4 + 2 * h for j in range(3)]
                a("v_pk_add_f32 v[%d:%d], v[%d:%d], v[%d:%d]" % (p[0], p[0] + 1, p[0], p[0] + 1, p[1], p[1] + 1))
                a("v_pk_add_f32 v[%d:%d], v[%d:%d], v[%d:%d]" % (x, x + 1, x, x + 1, p[2], p[2] + 1))
        for dt in range(5):
            for h in range(2):
                x = acc(dt, 0) + 2 * h
                p = R + dt * 4 + 2 * h
                a("v_pk_add_f32 v[%d:%d], v[%d:%d], v[%d:%d]" % (x, x + 1, x, x + 1, p, p + 1))
        U = 150
        for dt in range(5):
            for h in range(2):
                a("v_lshlrev_b32 v%d, 16, v%d" % (U + 4 * dt + 2 * h, Y + 2 * dt + h))
                a("v_and_b32 v%d, 0xffff0000, v%d" % (U + 4 * dt + 2 * h + 1, Y + 2 * dt + h))
        G2 = T + 12
        assert G2 % 2 == 0
        a("v_mov_b32 v%d, v%d" % (G2, T + 8))
        a("v_mov_b32 v%d, v%d" % (G2 + 1, T + 8))
        for dt in range(5):
            for h in range(2):
                x = acc(dt, 0) + 2 * h; u = U + 4 * dt + 2 * h
                a("v_pk_add_f32 v[%d:%d], v[%d:%d], v[%d:%d] neg_lo:[0,1] neg_hi:[0,1]" % (u, u + 1, u, u + 1, x, x + 1))
        for dt in range(5):
            for h in range(2):
                x = acc(dt, 0) + 2 * h; u = U + 4 * dt + 2 * h
                a("v_pk_fma_f32 v[%d:%d], v[%d:%d], v[%d:%d], v[%d:%d]" % (x, x + 1, u, u + 1, G2, G2 + 1, x, x + 1))
        O = 176
        for dt in range(5):
            for h in range(2):
                x = acc(dt, 0) + 2 * h
                a("v_cvt_pk_bf16_f32 v%d, v%d, v%d" % (O + 2 * dt + h, x, x + 1))
        a("buffer_store_dwordx4 v[%d:%d], v%d, s[24:27], 0 offen" % (O, O + 3, T + 9))
        a("buffer_store_dwordx4 v[%d:%d], v%d, s[24:27], 0 offen offset:64" % (O + 4, O + 7, T + 9))
        a("buffer_store_dwordx2 v[%d:%d], v%d, s[24:27], 0 offen offset:128" % (O + 8, O + 9, T + 10))
        self.stamp(8)

    def g2_wait_inputs(self):
        if not self.fused(): return
        a = self.a
        T = 232
        lo = self.newlab("hw"); ld = self.newlab("hd"); lp = self.newlab("hs")
        a("s_cmp_lg_u32 s3, 0")
        a("s_cbranch_scc1 %s" % lo)
        a("s_lshr_b32 s78, s6, 1")
        a("s_lshl_b32 s78, s78, 7")
        a("s_add_u32 s78, s78, %d" % WS_FH)
        self.poll_line("s78", 16, T, sleep=4)
        a("v_mov_b32 v%d, %d" % (T, LDS_HOK))
        a("v_mov_b32 v%d, 1" % (T + 1))
        a("ds_write_b32 v%d, v%d" % (T, T + 1))
        a("s_branch %s" % ld)
        a.lab(lo)
        self.lds_spin(LDS_HOK, T)
        a.lab(ld)

    def s_final(self):
        a = self.a
        n = self.name
        l = self.newlab("fin")
        a("s_cmp_lg_u32 s3, 7")
        a("s_cbranch_scc1 %s" % l)
        if self.fused(): self.lds_spin(LDS_GOK, 2, 4)
        self.y_wait_inputs()
        a("v_mbcnt_lo_u32_b32 v0, -1, 0")
        a("v_mbcnt_hi_u32_b32 v0, -1, v0")
        a("v_lshrrev_b32 v1, 3, v0")
        a("v_mul_u32_u24 v1, %d, v1" % ROWS)
        a("v_and_b32 v2, 7, v0")
        a("v_lshl_add_u32 v1, v2, 4, v1")
        a("s_mul_i32 s67, s7, %d" % (80 * ROWS))
        a("s_lshl_b32 s68, s6, 7")
        a("s_add_u32 s67, s67, s68")
        a("s_add_u32 s67, s67, %d" % WS_Y)
        for i in range(10):
            a("buffer_load_dwordx4 v[%d:%d], v1, s[20:23], s67 offen sc1" % (8 + 4 * i, 11 + 4 * i))
            if i < 9: a("s_add_u32 s67, s67, %d" % (8 * ROWS))
        a("s_lshl_b32 s67, s6, 8")
        a("s_add_u32 s67, s67, %d" % WS_G)
        a("v_lshlrev_b32 v3, 2, v0")
        a("buffer_load_dword v4, v3, s[20:23], s67 offen sc1")
        a("v_lshlrev_b32 v2, 4, v0")
        a("v_add_u32 v2, %d, v2" % LDS_YT)
        a("v_add_u32 v3, %d, v3" % LDS_GT)
        a("s_waitcnt vmcnt(0)")
        for i in range(10):
            a("ds_write_b128 v2, v[%d:%d] offset:%d" % (8 + 4 * i, 11 + 4 * i, 1024 * i))
        a("ds_write_b32 v3, v4")
        a("s_waitcnt lgkmcnt(0)")
        a("s_barrier")
        if self.fused(): self.nonce_update()
        a("s_branch %s_fd" % l)
        a.lab(l)
        a("s_barrier")
        a.lab("%s_fd" % l)

    def y_wait_inputs(self):
        if not self.fused(): return
        a = self.a
        a("v_mbcnt_lo_u32_b32 v0, -1, 0")
        a("v_mbcnt_hi_u32_b32 v0, -1, v0")
        a("s_mul_i32 s67, s7, 320")
        a("s_add_u32 s67, s67, %d" % WS_FY)
        a("v_lshl_add_u32 v1, v0, 2, s67")
        a("v_add_u32 v2, 256, v1")
        a("s_lshl_b32 s68, s6, 5")
        a("s_add_u32 s68, s68, %d" % (WS_FG - 64))
        a("v_lshl_add_u32 v3, v0, 2, s68")
        a("v_cmp_le_u32 vcc, 16, v0")
        a("s_nop 1")
        a("v_cndmask_b32 v2, v2, v3, vcc")
        a("v_subrev_u32 v3, 24, v0")
        a("v_lshlrev_b32 v3, 10, v3")
        a("s_lshl_b32 s68, s2, 2")
        a("s_add_u32 s68, s68, %d" % WS_FY)
        a("v_add_u32 v3, s68, v3")
        a("v_cmp_le_u32 vcc, 24, v0")
        a("s_nop 1")
        a("v_cndmask_b32 v2, v2, v3, vcc")
        a("s_cmp_lt_u32 s2, 128")
        a("s_cselect_b32 s68, 27, 26")
        a("v_mov_b32 v3, s67")
        a("v_cmp_le_u32 vcc, s68, v0")
        a("s_nop 1")
        a("v_cndmask_b32 v2, v2, v3, vcc")
        def loads():
            a("buffer_load_dword v4, v1, s[20:23], 0 offen sc1")
            a("buffer_load_dword v5, v2, s[20:23], 0 offen sc1")
        self.poll(loads, [4, 5], 6, sleep=8)

    def fused(self): return "fused" in self.ph

    def nonce_load(self):
        a = self.a
        a("v_mov_b32 v1, 0")
        a("s_mov_b32 s67, %d" % WS_NON)
        a("buffer_load_dword v242, v1, s[20:23], s67 offen sc1")
    def nonce_publish_local(self):
        a = self.a
        a("v_add_u32 v242, 1, v242")
        a("v_mov_b32 v1, %d" % LDS_NONCE)
        a("ds_write_b32 v1, v242")
        a("v_readfirstlane_b32 s64, v242")
    def nonce_update(self):
        a = self.a
        l = self.newlab("nu")
        a("s_cmp_lg_u32 s2, 0")
        a("s_cbranch_scc1 %s" % l)
        a("v_mbcnt_lo_u32_b32 v2, -1, 0")
        a("v_mbcnt_hi_u32_b32 v2, -1, v2")
        a("v_lshlrev_b32 v2, 4, v2")
        a("s_mov_b32 s78, %d" % WS_FG)
        self.poll(lambda: a("buffer_load_dwordx4 v[4:7], v2, s[20:23], s78 offen sc1"), [4, 5, 6, 7], 2, sleep=8)
        a("s_mov_b32 s69, %d" % WS_NON)
        self.flag_set("s69", 2)
        a.lab(l)

    def nonce_read(self, vt):
        a = self.a
        a("v_mov_b32 v%d, %d" % (vt, LDS_NONCE))
        a("ds_read_b32 v%d, v%d" % (vt, vt))
        a("s_waitcnt lgkmcnt(0)")
        a("v_readfirstlane_b32 s64, v%d" % vt)

    def flag_set(self, soff_reg, vt):
        a = self.a
        a("v_mov_b32 v%d, s64" % vt)
        a("v_mov_b32 v%d, 0" % (vt + 1))
        a("s_mov_b64 exec, 1")
        a("buffer_store_dword v%d, v%d, s[20:23], %s offen sc1" % (vt, vt + 1, soff_reg))
        a("s_mov_b64 exec, -1")

    def poll(self, loads, vregs, vt, sleep=8):
        a = self.a
        lp = self.newlab("pl"); ld = self.newlab("pd")
        a("s_mov_b32 s69, 0")
        a.lab(lp)
        loads()
        a("s_waitcnt vmcnt(0)")
        for i, r in enumerate(vregs):
            if i == 0: a("v_cmp_eq_u32 vcc, s64, v%d" % r)
            else:
                a("v_cmp_eq_u32 s[76:77], s64, v%d" % r)
                a("s_nop 1")
                a("s_and_b64 vcc, vcc, s[76:77]")
        a("s_nop 1")
        a("s_cmp_eq_u64 vcc, -1")
        a("s_cbranch_scc1 %s" % ld)
        a("s_add_u32 s69, s69, 1")
        a("s_cmp_lt_u32 s69, 0x40000")
        a("s_cbranch_scc0 %s" % ld)
        a("s_sleep %d" % sleep)
        a("s_branch %s" % lp)
        a.lab(ld)

    def poll_line(self, soff, nflags, vt, sleep=8):
        a = self.a
        a("v_mbcnt_lo_u32_b32 v%d, -1, 0" % vt)
        a("v_mbcnt_hi_u32_b32 v%d, -1, v%d" % (vt, vt))
        a("v_cmp_gt_u32 vcc, %d, v%d" % (nflags, vt))
        a("v_lshlrev_b32 v%d, 2, v%d" % (vt, vt))
        a("s_nop 0")
        a("v_cndmask_b32 v%d, 0, v%d, vcc" % (vt, vt))
        self.poll(lambda: a("buffer_load_dword v%d, v%d, s[20:23], %s offen sc1" % (vt + 1, vt, soff)), [vt + 1], vt, sleep)

    def build(self):
        a = self.a
        n = self.name
        a.l.append(".globl %s" % n)
        a.l.append(".p2align 8")
        a.l.append(".type %s,@function" % n)
        a.l.append("%s:" % n)
        self.prologue()
        a("s_cmp_ge_u32 s3, 4")
        a("s_cbranch_scc1 %s_S" % n)
        if "g1" in self.ph:
            self.g_gemm1()
        if "g2" in self.ph:
            self.g_gemm2()
        self.dbgtime_end()
        self.stamp_flush()
        a("s_endpgm")
        a.lab("%s_S" % n)
        if "g1" in self.ph:
            self.s_phase1()
        if "ssm" in self.ph:
            self.s_ssm()
        if "g2" in self.ph:
            self.s_final()
        self.stamp_flush()
        a.lab("%s_end" % n)
        a("s_endpgm")
        return a.text()

def kd(name):
    return """.amdhsa_kernel %s
  .amdhsa_next_free_vgpr 256
  .amdhsa_next_free_sgpr 102
  .amdhsa_accum_offset 256
  .amdhsa_group_segment_fixed_size 0
  .amdhsa_kernarg_size 136
  .amdhsa_user_sgpr_count 2
  .amdhsa_user_sgpr_kernarg_segment_ptr 1
  .amdhsa_system_sgpr_workgroup_id_x 1
.end_amdhsa_kernel
""" % name

HEADER = open("gated_mix__ssm_conv_s4__swiglu_ffn__prompt.s.ref").read().split("; Override launch")[0]

def emit(kernels, path):
    txt = HEADER
    if len(kernels) == 1:
        txt += "; @launch grid=(256,1,1) block=(512,1,1) lds=%d\n" % LDS_TOTAL
    else:
        for (n, p, s) in kernels:
            txt += "; @launch kernel=%s grid=(256,1,1) block=(512,1,1) lds=%d\n" % (n, LDS_TOTAL)
    txt += '.amdgcn_target "amdgcn-amd-amdhsa--gfx950"\n.text\n'
    for (n, p, s) in kernels:
        txt += Gen(n, p, s).build()
    txt += '.section .rodata,"a"\n'
    for (n, p, s) in kernels:
        txt += ".p2align 6\n" + kd(n)
    open(path, "w").write(txt)

if __name__ == "__main__":
    mode = sys.argv[1]; path = sys.argv[2]
    stamps = len(sys.argv) > 3 and sys.argv[3] == "stamps"
    if mode.startswith("g1+") or mode == "g1":
        emit([(KNAME, set(mode.split("+")), stamps)], path)
    elif mode == "g1,ssm":
        emit([("ka_kernel", {"g1"}, False), ("kb_kernel", {"ssm", "dumpk"}, stamps)], path)
    elif mode == "3k":
        emit([("ka_kernel", {"g1"}, False), ("kb_kernel", {"ssm"}, False), ("kc_kernel", {"g2"}, stamps)], path)
    elif mode == "3k+1":
        emit([("ka_kernel", {"g1"}, False), ("kb_kernel", {"ssm"}, False), ("kc_kernel", {"g2"}, stamps), ("kd_kernel", set(), False)], path)
    elif mode == "3k+3":
        emit([("ka_kernel", {"g1"}, False), ("kb_kernel", {"ssm"}, False), ("kc_kernel", {"g2"}, stamps), ("kd_kernel", set(), False), ("ke_kernel", set(), False), ("kf_kernel", set(), False)], path)
    elif mode == "3k_dbg":
        emit([("ka_kernel", {"g1", "dbgtime"}, False), ("kb_kernel", {"ssm"}, False), ("kc_kernel", {"g2", "dbgtime"}, False)], path)
    elif mode == "fused":
        emit([(KNAME, {"g1", "ssm", "g2", "fused"}, stamps)], path)
    elif mode == "fused_notouch":
        emit([(KNAME, {"g1", "ssm", "g2", "fused", "notouch"}, stamps)], path)
    elif mode == "fused_pk":
        emit([(KNAME, {"g1", "ssm", "g2", "fused", "pkhead"}, stamps)], path)
    elif mode.startswith("F:"):
        emit([(KNAME, {"g1", "ssm", "g2", "fused"} | set(mode[2:].split("+")), stamps)], path)
    elif mode == "fused_dbg":
        emit([(KNAME, {"g1", "ssm", "g2", "fused", "dbgtime"}, stamps)], path)
    elif mode == "g1,ssm,nodump":
        emit([("ka_kernel", {"g1"}, False), ("kb_kernel", {"ssm"}, stamps)], path)
```

```python
import sys, math

KNAME = "gated_mix__ssm_conv_s4__swiglu_ffn__prompt_kernel"

WS_H    = 0x000000
WS_WD   = 0x600000
ROWS    = 4224
WS_UT   = 0x800000
WS_Y    = 0xB00000
WS_G    = 0xE00000
WS_FU   = 0xE10000
WS_FW   = 0xE15000
WS_FH   = 0xE11000
WS_FY   = 0xE12000
WS_NON  = 0xE13000
WS_FG   = 0xE14000
WS_TS   = 0xF00000
WS_DBG  = 0x1000000

STAGE   = 40960
ST_WG   = 16384
ST_WU   = 28672
LDS_S   = 3 * STAGE
TABROW  = 272
TABTILE = 16 * TABROW
TAB_SZ  = 2 * TABTILE
LDS_TAB = LDS_S
KR_SZ   = 4224
LDS_KR  = LDS_TAB + 3 * TAB_SZ
LDS_MISC = LDS_KR + 3 * KR_SZ
LDS_TOTAL = 163840
LDS_NONCE = LDS_MISC
LDS_CNT   = LDS_MISC + 8
UC_STRIDE = 4640
UC_SZ   = 4 * UC_STRIDE
LDS_UC  = 0
LDS_WDS_EARLY = 148992
LDS_RED = 57344
LDS_YT  = LDS_TAB
LDS_GT  = LDS_MISC + 64
LDS_HOK = LDS_MISC + 12
LDS_WOK = LDS_MISC + 16
LDS_UOK = LDS_MISC + 20
LDS_GOK = LDS_MISC + 24
LDS_UCOK = LDS_MISC + 28
LDS_SFREE = LDS_MISC + 32

class Asm:
    def __init__(self):
        self.l = []
    def __call__(self, s):
        for x in s.split("\n"):
            x = x.strip()
            if x: self.l.append("    " + x)
    def lab(self, s):
        self.l.append(s + ":")
    def ext(self, lst):
        for x in lst: self(x)
    def text(self):
        return "\n".join(self.l) + "\n"

def interleave(main, fill, start=0, span=None):
    out = []
    m = len(fill)
    n = len(main) if span is None else min(len(main), start + span)
    j = 0
    for i, x in enumerate(main):
        out.append(x)
        if i >= start:
            tgt = (m * (i - start + 1) + (n - start) - 1) // (n - start) if n > start else m
            while j < min(tgt, m):
                f = fill[j]
                if isinstance(f, tuple): out.extend(f)
                else: out.append(f)
                j += 1
    while j < m:
        f = fill[j]
        if isinstance(f, tuple): out.extend(f)
        else: out.append(f)
        j += 1
    return out

def flat(L):
    o = []
    for x in L:
        if isinstance(x, tuple): o.extend(x)
        else: o.append(x)
    return o

def vr(a, n=1):
    return "v%d" % a if n == 1 else "v[%d:%d]" % (a, a + n - 1)
def sr(a, n=1):
    return "s%d" % a if n == 1 else "s[%d:%d]" % (a, a + n - 1)

S_W, S_WAVE, S_M, S_N, S_M2, S_N2 = 2, 3, 4, 5, 6, 7
SRD_X, SRD_WG, SRD_WU, SRD_WS, SRD_OUT, SRD_WD = 8, 12, 16, 20, 24, 28
P_U, P_ARE, P_AIM, P_BRE, P_BIM, P_CRE, P_CIM, P_LDT = 32, 34, 36, 38, 40, 42, 44, 46
P_DSK, P_BX, P_WG, P_WU, P_WD, P_GW, P_OUT, P_DBG, P_WS = 48, 50, 52, 54, 56, 58, 60, 62, 64
S_TS = 80

class Gen:
    def __init__(self, name, phases, stamps=False):
        self.name = name
        self.ph = phases
        self.a = Asm()
        self.stamps = stamps
        self.nlab = 0
    def newlab(self, p):
        self.nlab += 1
        return "L_%s_%s_%d" % (self.name[:6], p, self.nlab)

    def capture(self, fn):
        old = self.a
        self.a = Asm()
        fn()
        lst = [x.strip() for x in self.a.l]
        self.a = old
        return lst

    def clk(self, i):
        if "clk" in self.ph and self.stamps:
            self.a("s_memrealtime s[%d:%d]" % (S_TS + 2 * i, S_TS + 2 * i + 1))
            self.a("s_memtime s[%d:%d]" % (S_TS + 2 * i + 2, S_TS + 2 * i + 3))
            self.a("s_waitcnt lgkmcnt(0)")

    def stamp(self, i, force=False):
        if "clk" in self.ph and i != 0: return
        if ("kstamps" in self.ph or "k2stamps" in self.ph or "ststamps" in self.ph) and not force and i != 0: return
        if self.stamps:
            self.a("%s s[%d:%d]" % ("s_memrealtime" if "rt" in self.ph else "s_memtime", S_TS + 2 * i, S_TS + 2 * i + 1))
            self.a("s_waitcnt lgkmcnt(0)")
    def stamp_flush(self):
        if not self.stamps: return
        a = self.a
        a("s_lshl_b32 s66, s2, 3")
        a("s_add_u32 s66, s66, s3")
        a("s_lshl_b32 s66, s66, 7")
        a("s_add_u32 s66, s66, 0x%x" % WS_TS)
        a("v_mov_b32 v250, 0")
        for i in range(10):
            a("v_mov_b32 v252, s%d" % (S_TS + 2 * i))
            a("v_mov_b32 v253, s%d" % (S_TS + 2 * i + 1))
            a("buffer_store_dwordx2 v[252:253], v250, s[20:23], s66 offen offset:%d" % (8 * i))
            a("s_nop 1")
        a("s_waitcnt vmcnt(0)")

    def prologue(self):
        a = self.a
        a("s_cmp_ge_u32 s2, 256")
        a("s_cbranch_scc1 %s_end" % self.name)
        a("s_load_dwordx16 s[32:47], s[0:1], 0")
        a("s_load_dwordx16 s[48:63], s[0:1], 64")
        a("s_load_dwordx2 s[64:65], s[0:1], 128")
        if "warmc0" in self.ph: self.warm_code(early=True)
        a("v_lshrrev_b32 v1, 6, v0")
        a("v_and_b32 v0, 63, v0")
        a("v_readfirstlane_b32 s3, v1")
        a("s_and_b32 s66, s2, 7")
        a("s_lshr_b32 s67, s2, 3")
        a("s_and_b32 s68, s67, 7")
        a("s_lshr_b32 s69, s67, 3")
        a("s_and_b32 s70, s66, 1")
        a("s_lshl_b32 s70, s70, 3")
        a("s_or_b32 s4, s70, s68")
        a("s_lshr_b32 s70, s66, 1")
        a("s_lshl_b32 s70, s70, 2")
        a("s_or_b32 s5, s70, s69")
        a("s_and_b32 s70, s66, 3")
        a("s_lshl_b32 s70, s70, 3")
        a("s_or_b32 s6, s70, s68")
        a("s_lshr_b32 s70, s66, 2")
        a("s_lshl_b32 s70, s70, 2")
        a("s_or_b32 s7, s70, s69")
        if "sametile" in self.ph:
            a("s_mov_b32 s4, 0"); a("s_mov_b32 s5, 0")
        if "samem" in self.ph:
            a("s_mov_b32 s4, 0")
        if "samen" in self.ph:
            a("s_mov_b32 s5, 0")
        if self.stamps:
            for i in range(10):
                a("s_mov_b64 s[%d:%d], 0" % (S_TS + 2 * i, S_TS + 2 * i + 1))
        a("s_waitcnt lgkmcnt(0)")
        def srd(base, ptr, size):
            a("s_mov_b32 s%d, s%d" % (base, ptr))
            a("s_and_b32 s%d, s%d, 0xffff" % (base + 1, ptr + 1))
            a("s_mov_b32 s%d, 0x%x" % (base + 2, size))
            a("s_mov_b32 s%d, 0x20000" % (base + 3))
        srd(SRD_X, P_U, 2048 * 640 * 2)
        srd(SRD_WG, P_WG, 640 * 1536 * 2)
        srd(SRD_WU, P_WU, 640 * 1536 * 2)
        srd(SRD_WS, P_WS, 0x10000000)
        srd(SRD_OUT, P_OUT, 2048 * 640 * 2)
        srd(SRD_WD, P_WD, 640 * 1536 * 2)
        self.stamp(0)
        if "dbgtime" in self.ph:
            a("s_memrealtime s[96:97]")
            a("s_memtime s[98:99]")
            a("s_mov_b64 s[100:101], s[62:63]")
            a("s_waitcnt lgkmcnt(0)")

    def dbgtime_end(self):
        a = self.a
        if "dbgtime" not in self.ph: return
        l = self.newlab("dbt")
        a("s_cmp_lg_u32 s2, 0"); a("s_cbranch_scc1 %s" % l)
        a("s_cmp_lg_u32 s3, 0"); a("s_cbranch_scc1 %s" % l)
        a("s_waitcnt vmcnt(0)")
        a("s_memrealtime s[92:93]")
        a("s_memtime s[94:95]")
        a("s_waitcnt lgkmcnt(0)")
        a("s_sub_u32 s92, s92, s96")
        a("s_sub_u32 s94, s94, s98")
        a("v_mov_b32 v250, 0")
        a("v_mov_b32 v252, s92")
        a("v_mov_b32 v253, s94")
        a("v_mov_b32 v254, s96")
        a("v_mov_b32 v255, 0x1234")
        a("global_store_dwordx4 v250, v[252:255], s[100:101]")
        a("s_waitcnt vmcnt(0)")
        a.lab(l)

    def rot_r(self, dst, tmp):
        a = self.a
        a("s_lshr_b32 %s, s5, 1" % dst)
        a("s_cmp_ge_u32 %s, 5" % dst)
        a("s_cselect_b32 %s, 1, 0" % tmp)
        a("s_cmp_ge_u32 %s, 1" % dst)
        a("s_addc_u32 %s, %s, %s" % (dst, dst, tmp))

    def g_gemm1(self):
        a = self.a
        ACC = 0; FP = 96; FQ = 136
        VXB = 176
        VWA = 182
        VL16 = 196
        T = 200
        accg = lambda ft, tt: ACC + (ft * 4 + tt) * 4
        accu = lambda ft, tt: ACC + 48 + (ft * 4 + tt) * 4
        LANE = 197
        a("v_mov_b32 v%d, v0" % LANE)
        a("s_and_b32 s67, s3, 1")
        a("s_lshr_b32 s68, s3, 1")
        VOX = 191
        a("v_lshrrev_b32 v%d, 3, v%d" % (T, LANE))
        a("s_lshl_b32 s69, s4, 7")
        a("s_lshl_b32 s70, s3, 5")
        a("s_add_u32 s69, s69, s70")
        a("v_add_u32 v%d, s69, v%d" % (T, T))
        a("s_movk_i32 s70, 1280")
        a("v_mul_lo_u32 v%d, v%d, s70" % (T, T))
        a("v_and_b32 v%d, 7, v%d" % (T + 1, LANE))
        a("v_lshrrev_b32 v%d, 4, v%d" % (T + 2, LANE))
        a("v_xor_b32 v%d, v%d, v%d" % (T + 3, T + 1, T + 2))
        a("v_xor_b32 v%d, 4, v%d" % (T + 4, T + 3))
        a("v_lshl_add_u32 v%d, v%d, 4, v%d" % (VOX, T + 3, T))
        a("v_lshl_add_u32 v%d, v%d, 4, v%d" % (VOX + 1, T + 4, T))
        a("s_lshl_b32 s75, s3, 12")
        VOW = 193
        a("s_lshl_b32 s69, s3, 4")
        a("s_mul_i32 s69, s69, 3072")
        a("s_mul_i32 s70, s5, 192")
        a("s_add_u32 s69, s69, s70")
        a("s_mov_b32 s70, 43691")
        a("s_movk_i32 s71, 3072")
        for i in range(3):
            a("v_add_u32 v%d, %d, v%d" % (T, 64 * i, LANE))
            a("v_mul_lo_u32 v%d, v%d, s70" % (T + 1, T))
            a("v_lshrrev_b32 v%d, 19, v%d" % (T + 1, T + 1))
            a("v_mul_u32_u24 v%d, 12, v%d" % (T + 2, T + 1))
            a("v_sub_u32 v%d, v%d, v%d" % (T + 2, T, T + 2))
            a("v_lshrrev_b32 v%d, 2, v%d" % (T + 3, T + 1))
            a("v_and_b32 v%d, 2, v%d" % (T + 3, T + 3))
            a("v_xor_b32 v%d, v%d, v%d" % (T + 2, T + 2, T + 3))
            a("v_mul_lo_u32 v%d, v%d, s71" % (T + 1, T + 1))
            a("v_lshl_add_u32 v%d, v%d, 4, v%d" % (T + 1, T + 2, T + 1))
            a("v_add_u32 v%d, s69, v%d" % (T + 1, T + 1))
            a("v_subrev_u32 v%d, %d, v%d" % (VOW + i, 1024 * i, T + 1))
        a("s_mul_i32 s76, s3, 3072")
        a("s_add_u32 s77, s76, %d" % ST_WU)
        a("s_add_u32 s76, s76, %d" % ST_WG)
        self.rot_r("s74", "s72")
        def xdma(st):
            base = (st % 3) * STAGE
            L = []
            for i in range(4):
                if i == 0:
                    L.append(("s_lshl_b32 s72, s74, 7", "s_mul_i32 s73, s74, 196608", "s_add_u32 s74, s74, 1",
                              "s_add_u32 m0, s75, %d" % base, "s_cmp_eq_u32 s74, 10", "s_cselect_b32 s74, 0, s74",
                              "buffer_load_dwordx4 v%d, s[8:11], s72 offen lds" % VOX))
                else:
                    L.append(("s_add_u32 s70, s72, %d" % (9216 * i),
                              "buffer_load_dwordx4 v%d, s[8:11], s70 offen offset:%d lds" % (VOX + (i & 1), 1024 * i)))
            for mat, sm, srd in ((0, 76, "s[12:15]"), (1, 77, "s[16:19]")):
                for i in range(3):
                    ld = "buffer_load_dwordx4 v%d, %s, s73 offen offset:%d lds" % (VOW + i, srd, 1024 * i)
                    if i == 0: L.append(("s_add_u32 m0, s%d, %d" % (sm, base), "s_nop 0", ld))
                    else: L.append(ld)
            return L
        if "ststamps" in self.ph: self.stamp(1, force=True)
        a.ext(flat(xdma(0)))
        if "late1" not in self.ph: a.ext(flat(xdma(1)))
        if "ststamps" in self.ph: self.stamp(2, force=True)
        if "nobpre" not in self.ph: a("s_barrier")
        a("v_and_b32 v%d, 15, v%d" % (T, LANE))
        a("v_lshrrev_b32 v%d, 4, v%d" % (T + 1, LANE))
        a("s_lshl_b32 s69, s67, 6")
        a("v_add_u32 v%d, s69, v%d" % (T + 2, T))
        a("v_lshlrev_b32 v%d, 7, v%d" % (T + 2, T + 2))
        a("v_lshrrev_b32 v%d, 1, v%d" % (T + 3, T))
        a("v_and_b32 v%d, 7, v%d" % (T + 3, T + 3))
        a("v_xor_b32 v%d, v%d, v%d" % (T + 3, T + 3, T + 1))
        a("v_xor_b32 v%d, 4, v%d" % (T + 4, T + 3))
        a("v_lshl_add_u32 v%d, v%d, 4, v%d" % (VXB, T + 3, T + 2))
        a("v_lshl_add_u32 v%d, v%d, 4, v%d" % (VXB + 1, T + 4, T + 2))
        for st in (1, 2):
            for s in range(2):
                a("v_add_u32 v%d, %d, v%d" % (VXB + 2 * st + s, st * STAGE, VXB + s))
        a("v_lshrrev_b32 v%d, 2, v%d" % (T + 2, T))
        a("v_lshl_add_u32 v%d, v%d, 3, v%d" % (T + 2, T + 1, T + 2))
        a("v_mul_u32_u24 v%d, 192, v%d" % (T + 2, T + 2))
        a("v_and_b32 v%d, 3, v%d" % (T + 3, LANE))
        a("v_lshl_add_u32 v%d, v%d, 3, v%d" % (T + 2, T + 3, T + 2))
        a("v_add_u32 v%d, %d, v%d" % (T + 2, ST_WG, T + 2))
        a("v_and_b32 v%d, 1, v%d" % (T + 3, T + 1))
        a("s_lshl_b32 s69, s68, 2")
        a("s_add_u32 s78, s69, 1")
        a("s_add_u32 s79, s68, 2")
        for ft, sreg in ((0, 69), (1, 78), (2, 79)):
            a("v_xor_b32 v%d, s%d, v%d" % (T + 4, sreg, T + 3))
            a("v_lshl_add_u32 v%d, v%d, 5, v%d" % (VWA + ft, T + 4, T + 2))
        for st in (1, 2):
            for ft in range(3):
                a("v_add_u32 v%d, %d, v%d" % (VWA + 3 * st + ft, st * STAGE, VWA + ft))
        a("v_lshlrev_b32 v%d, 4, v%d" % (VL16, LANE))
        a("s_lshl_b32 s69, s4, 1")
        a("s_add_u32 s69, s69, s67")
        a("s_mul_i32 s69, s69, 48")
        a("s_mul_i32 s78, s5, 3")
        a("s_add_u32 s69, s69, s78")
        a("s_lshl_b32 s78, s68, 1")
        a("s_add_u32 s78, s78, s69")
        a("s_lshl_b32 s78, s78, 12")
        a("s_add_u32 s79, s69, 1")
        a("s_lshl_b32 s79, s79, 12")
        a("s_lshl_b32 s69, s68, 9")
        a("s_add_u32 s79, s79, s69")
        a("v_lshlrev_b32 v%d, 3, v%d" % (VL16 + 2, LANE))
        if WS_H:
            a("s_add_u32 s78, s78, %d" % WS_H); a("s_add_u32 s79, s79, %d" % WS_H)

        def reads(kk, s, F):
            st = kk % 3
            xs = ["ds_read_b128 v[%d:%d], v%d offset:%d" % (F + 4 * tt, F + 4 * tt + 3, VXB + 2 * st + s, 2048 * tt) for tt in range(4)]
            ws = []
            for mat in range(2):
                for ft in range(3):
                    r = F + 16 + (mat * 3 + ft) * 4
                    for h in range(2):
                        ws.append("ds_read_b64_tr_b16 v[%d:%d], v%d offset:%d" % (r + 2 * h, r + 2 * h + 1, VWA + 3 * st + ft, 12288 * mat + 6144 * s + 768 * h))
            order = [xs[0], ws[0], ws[1], xs[1], ws[6], ws[7], xs[2], xs[3]] + ws[2:6] + ws[8:]
            return order
        def mfmas(F, first):
            L = []
            for ft in range(3):
                for mat in range(2):
                    for tt in range(4):
                        acc = accg(ft, tt) if mat == 0 else accu(ft, tt)
                        A = F + 16 + (mat * 3 + ft) * 4
                        B = F + 4 * tt
                        c = "0" if first else "v[%d:%d]" % (acc, acc + 3)
                        L.append("v_mfma_f32_16x16x32_bf16 v[%d:%d], v[%d:%d], v[%d:%d], %s" % (acc, acc + 3, A, A + 3, B, B + 3, c))
            return L
        def spread(mm, d, first, step):
            out = []; cnt = 0; di = 0
            for x in mm:
                out.append(x)
                if x.startswith("v_mfma"):
                    cnt += 1
                    if cnt >= first and (cnt - first) % step == 0 and di < len(d):
                        f = d[di]; di += 1
                        out.extend(f if isinstance(f, tuple) else (f,))
            assert di == len(d), (di, len(d))
            return out
        self.stamp(5)
        a("s_waitcnt vmcnt(%d)" % (0 if "late1" in self.ph else 10))
        if "ststamps" in self.ph: self.stamp(3, force=True)
        a("s_barrier")
        if "ststamps" in self.ph: self.stamp(4, force=True)
        if "late1" in self.ph: a.ext(flat(xdma(1)))
        self.stamp(1)
        self.clk(1)
        a.ext(reads(0, 0, FP))
        a("s_waitcnt lgkmcnt(0)")
        pend = xdma(2)
        for kk in range(10):
            mm = interleave(mfmas(FP, kk == 0), reads(kk, 1, FQ), span=16)
            if pend: mm = spread(mm, pend, 2, 5 if len(pend) <= 5 else 2)
            a.ext(mm)
            if kk <= 7: a("s_waitcnt vmcnt(10) lgkmcnt(0)")
            elif kk == 8: a("s_waitcnt vmcnt(0) lgkmcnt(0)")
            else: a("s_waitcnt lgkmcnt(0)")
            if kk == 9 and self.fused(): self.lds_inc(LDS_SFREE, T)
            else: a("s_barrier")
            if "kstamps" in self.ph and kk < 9: self.stamp(kk + 1, force=True)
            if "ststamps" in self.ph and kk < 5: self.stamp(kk + 5, force=True)
            fill = reads(kk + 1, 0, FP) if kk + 1 < 10 else []
            mm = interleave(mfmas(FQ, False), fill, span=16)
            d = xdma(kk + 3) if kk + 3 < 10 else []
            pend = d[5:]
            if d: mm = spread(mm, d[:5], 2, 5)
            a.ext(mm)
            if kk + 1 < 10:
                a("s_waitcnt lgkmcnt(0)")
        self.stamp(2)
        self.clk(3)
        CN = FP; ONE = FP + 2
        a("v_mov_b32 v%d, 0xbfb8aa3b" % CN)
        a("v_mov_b32 v%d, 0xbfb8aa3b" % (CN + 1))
        a("v_mov_b32 v%d, 1.0" % ONE)
        a("v_mov_b32 v%d, 1.0" % (ONE + 1))
        grp = 0
        def silu(gregs, uregs, tmp, out):
            n = len(gregs)
            L = []
            for i in range(n): L.append("v_pk_mul_f32 v[%d:%d], v[%d:%d], v[%d:%d]" % (tmp + 2 * i, tmp + 2 * i + 1, gregs[i], gregs[i] + 1, CN, CN + 1))
            for i in range(2 * n): L.append("v_exp_f32 v%d, v%d" % (tmp + i, tmp + i))
            for i in range(n): L.append("v_pk_mul_f32 v[%d:%d], v[%d:%d], v[%d:%d]" % (gregs[i], gregs[i] + 1, gregs[i], gregs[i] + 1, uregs[i], uregs[i] + 1))
            for i in range(n): L.append("v_pk_add_f32 v[%d:%d], v[%d:%d], v[%d:%d]" % (tmp + 2 * i, tmp + 2 * i + 1, tmp + 2 * i, tmp + 2 * i + 1, ONE, ONE + 1))
            for i in range(2 * n): L.append("v_rcp_f32 v%d, v%d" % (tmp + i, tmp + i))
            if n < 2: L.append("s_nop 0")
            for i in range(n): L.append("v_pk_mul_f32 v[%d:%d], v[%d:%d], v[%d:%d]" % (gregs[i], gregs[i] + 1, gregs[i], gregs[i] + 1, tmp + 2 * i, tmp + 2 * i + 1))
            for i in range(n): L.append("v_cvt_pk_bf16_f32 v%d, v%d, v%d" % (out + i, gregs[i], gregs[i] + 1))
            return L
        for tt in range(4):
            tmp = FQ + (grp % 2) * 16; out = FP + 8 + (grp % 4) * 4; grp += 1
            g = [accg(0, tt), accg(0, tt) + 2, accg(1, tt), accg(1, tt) + 2]
            u = [accu(0, tt), accu(0, tt) + 2, accu(1, tt), accu(1, tt) + 2]
            a.ext(silu(g, u, tmp, out))
            a("buffer_store_dwordx4 v[%d:%d], v%d, s[20:23], s78 offen offset:%d sc1" % (out, out + 3, VL16, 1024 * tt))
            tmp = FQ + (grp % 2) * 16; out = FP + 8 + (grp % 4) * 4; grp += 1
            g = [accg(2, tt), accg(2, tt) + 2]
            u = [accu(2, tt), accu(2, tt) + 2]
            a.ext(silu(g, u, tmp, out))
            a("buffer_store_dwordx2 v[%d:%d], v%d, s[20:23], s79 offen offset:%d sc1" % (out, out + 1, VL16 + 2, 1024 * tt))
        self.stamp(3)
        if "g2" not in self.ph:
            a("s_waitcnt vmcnt(0)")
            self.stamp(4)

    def g_signal_h(self, nyounger):
        a = self.a
        T = 232
        if nyounger is not None: a("s_waitcnt vmcnt(%d)" % nyounger)
        if self.fused():
            l = self.newlab("fh")
            a("v_mov_b32 v%d, %d" % (T, LDS_CNT))
            a("v_mov_b32 v%d, 1" % (T + 1))
            a("s_mov_b64 exec, 1")
            a("ds_add_rtn_u32 v%d, v%d, v%d" % (T + 2, T, T + 1))
            a("s_waitcnt lgkmcnt(0)")
            a("s_mov_b64 exec, -1")
            a("v_readfirstlane_b32 s69, v%d" % (T + 2))
            a("s_cmp_lg_u32 s69, 3")
            a("s_cbranch_scc1 %s" % l)
            a("s_lshl_b32 s69, s4, 5")
            a("s_add_u32 s69, s69, s5")
            a("s_lshl_b32 s69, s69, 2")
            a("s_add_u32 s69, s69, %d" % WS_FH)
            self.flag_set("s69", T)
            a.lab(l)
        self.stamp(4)

    def lds_inc(self, addr, vt):
        a = self.a
        a("v_mov_b32 v%d, %d" % (vt, addr))
        a("v_mov_b32 v%d, 1" % (vt + 1))
        a("s_mov_b64 exec, 1")
        a("ds_add_u32 v%d, v%d" % (vt, vt + 1))
        a("s_mov_b64 exec, -1")

    def lds_spin(self, addr, vt, val=1):
        a = self.a
        lp = self.newlab("ls"); ld = self.newlab("ld")
        a("v_mov_b32 v%d, %d" % (vt, addr))
        a("s_mov_b32 s69, 0")
        a.lab(lp)
        a("ds_read_b32 v%d, v%d" % (vt + 1, vt))
        a("s_waitcnt lgkmcnt(0)")
        a("v_readfirstlane_b32 s78, v%d" % (vt + 1))
        a("s_cmp_eq_u32 s78, %d" % val)
        a("s_cbranch_scc1 %s" % ld)
        a("s_add_u32 s69, s69, 1")
        a("s_cmp_lt_u32 s69, 0x400000")
        a("s_cbranch_scc0 %s" % ld)
        a("s_sleep 1")
        a("s_branch %s" % lp)
        a.lab(ld)

    def s_kgen_phase1(self):
        a = self.a
        NCH = 8
        chunks = [[] for _ in range(NCH)]
        if "ssm" in self.ph:
            a("s_lshl_b32 s50, s66, 8")
            a("s_add_u32 s50, s50, s2")
            a("s_min_u32 s50, s50, 639")
            self.kgen_bases()
            if "kghead" in self.ph:
                kg = self.capture(lambda: self.kgen("head"))
                if "bigI0" in self.ph:
                    first = min(len(kg), 230)
                    rest = kg[first:]
                    per = (len(rest) + NCH - 1) // NCH
                    chunk0 = kg[:first]
                    chunks = [rest[i * per:(i + 1) * per] for i in range(NCH)]
                else:
                    per = (len(kg) + NCH - 1) // NCH
                    chunks = [kg[i * per:(i + 1) * per] for i in range(NCH)]
        self.stamp(5)
        if "prioS" in self.ph: a("s_setprio 2")
        if "nobpre" not in self.ph: a("s_barrier")
        if "ssm" in self.ph and "kghead" in self.ph: self.ssm_param_loads(slots=((0, 1) if "kg2" in self.ph else (0,)))
        a("s_barrier")
        self.stamp(1)
        if "bigI0" in self.ph and "kghead" in self.ph:
            a("s_waitcnt vmcnt(0)")
            a.ext(chunk0)
        for kk in range(10):
            if not (kk == 9 and self.fused()): a("s_barrier")
            if kk == 1 and "kghead" in self.ph and "bigI0" not in self.ph: a("s_waitcnt vmcnt(0)")
            if kk == 7 and "ssm" in self.ph:
                if "kghead" in self.ph: self.ssm_param_loads(slots=((2,) if "kg2" in self.ph else (1, 2)), scalars=False)
                else: self.ssm_param_loads()
            if "bigI0" in self.ph:
                if kk < NCH: a.ext(chunks[kk])
            elif 1 <= kk <= NCH: a.ext(chunks[kk - 1])
        self.stamp(2)

    def side_setup(self):
        a = self.a
        a("s_mov_b32 s67, 52429")
        a("s_movk_i32 s68, 1280")
        for i in range(5):
            a("v_add_u32 v1, %d, v0" % (64 * i))
            a("v_mul_lo_u32 v2, v1, s67")
            a("v_lshrrev_b32 v2, 19, v2")
            a("v_mul_u32_u24 v3, 10, v2")
            a("v_sub_u32 v3, v1, v3")
            a("v_mul_lo_u32 v2, v2, s68")
            a("v_lshl_add_u32 v%d, v3, 4, v2" % (230 + i))
        a("v_lshrrev_b32 v1, 4, v0")
        a("v_and_b32 v2, 15, v0")
        a("v_lshrrev_b32 v3, 2, v2")
        a("v_lshl_add_u32 v4, v1, 2, v3")
        a("v_mul_u32_u24 v4, 160, v4")
        a("v_add_u32 v4, %d, v4" % (STAGE if "wdlate" in self.ph else LDS_WDS_EARLY))
        a("v_and_b32 v5, 3, v0")
        a("v_lshl_add_u32 v235, v5, 4, v4")
        a("v_lshl_add_u32 v236, v5, 3, v4")
        a("v_lshlrev_b32 v237, 4, v0")
        a("v_lshlrev_b32 v241, 2, v0")
        a("v_lshl_add_u32 v4, v1, 3, v3")
        a("v_lshlrev_b32 v4, 7, v4")
        a("v_bfe_u32 v5, v0, 1, 1")
        a("v_lshrrev_b32 v6, 1, v3")
        a("v_xor_b32 v5, v5, v6")
        a("v_lshl_add_u32 v4, v5, 4, v4")
        a("v_and_b32 v5, 1, v0")
        a("v_lshl_add_u32 v4, v5, 3, v4")
        a("v_and_b32 v5, 1, v1")
        a("v_lshl_add_u32 v238, v5, 6, v4")
        a("v_xor_b32 v5, 1, v5")
        a("v_lshl_add_u32 v239, v5, 6, v4")
        a("v_mul_u32_u24 v240, %d, v2" % ROWS)
        a("v_lshl_add_u32 v240, v1, 4, v240")
        a("s_add_u32 s51, s2, 128")
        a("s_cmp_ge_u32 s2, 128")
        a("s_cselect_b32 s51, s51, 999")
        a("s_lshr_b32 s52, s5, 1")
        a("s_add_u32 s53, s52, 8")
        a("s_cmp_lt_u32 s5, 4")
        a("s_cselect_b32 s53, s53, 99")
    def wd_load(self, ureg, scr):
        a = self.a
        if "nowd" in self.ph: return
        a("s_lshr_b32 s67, %s, 3" % ureg)
        a("s_and_b32 s68, %s, 7" % ureg)
        a("s_mul_i32 s69, s67, %d" % (32 * 1280))
        a("s_mul_i32 s67, s68, 160")
        a("s_add_u32 s69, s69, s67")
        for i in range(5):
            a("s_mov_b32 m0, %d" % ((STAGE if "wdlate" in self.ph else LDS_WDS_EARLY) + scr + 1024 * i))
            a("s_nop 0")
            a("buffer_load_dwordx4 v%d, s[28:31], s69 offen lds" % (230 + i))
    def wd_store(self, ureg, scr, R=160):
        a = self.a
        if "nowd" in self.ph: return
        for dt in range(5):
            for h in range(2):
                if dt < 4: ad, off = 235, 64 * (dt >> 1) + 8 * (dt & 1) + 2560 * h
                else: ad, off = 236, 128 + 2560 * h
                a("ds_read_b64_tr_b16 v[%d:%d], v%d offset:%d" % (R + 4 * dt + 2 * h, R + 1 + 4 * dt + 2 * h, ad, off + scr))
        a("s_lshr_b32 s67, %s, 3" % ureg)
        a("s_and_b32 s68, %s, 7" % ureg)
        a("s_mul_i32 s68, s68, 48")
        a("s_add_u32 s67, s67, s68")
        a("s_mul_i32 s67, s67, 5120")
        a("s_add_u32 s67, s67, %d" % WS_WD)
        a("s_add_u32 s68, s67, 4096")
        a("s_waitcnt lgkmcnt(0)")
        for dt in range(5):
            if dt < 4: a("buffer_store_dwordx4 v[%d:%d], v237, s[20:23], s67 offen offset:%d sc1" % (R + 4 * dt, R + 3 + 4 * dt, 1024 * dt))
            else: a("buffer_store_dwordx4 v[%d:%d], v237, s[20:23], s68 offen sc1" % (R + 4 * dt, R + 3 + 4 * dt))
    def gate_load(self):
        a = self.a
        a("v_and_b32 v1, 15, v0")
        a("v_lshlrev_b32 v1, 4, v1")
        for j in range(5):
            a("global_load_dwordx4 v[%d:%d], v1, s[%d:%d] offset:%d" % (8 + 4 * j, 11 + 4 * j, P_GW, P_GW + 1, 256 * j))
        a("v_lshrrev_b32 v2, 4, v0")
        a("s_movk_i32 s67, 1280")
        a("v_mul_lo_u32 v2, v2, s67")
        a("v_add_u32 v2, v2, v1")
        a("s_lshl_b32 s67, s2, 3")
        a("s_mul_i32 s67, s67, 1280")
        for half in range(2):
            for j in range(5):
                r = 28 + 20 * half + 4 * j
                a("buffer_load_dwordx4 v[%d:%d], v2, s[8:11], s67 offen offset:%d" % (r, r + 3, 256 * j))
            if half == 0: a("s_add_u32 s67, s67, %d" % (4 * 1280))
    def gate_compute(self):
        a = self.a
        R = 68
        for i in range(4): a("v_mov_b32 v%d, 0" % (R + i))
        for j in range(5):
            for e in range(4):
                for half in range(2):
                    acc = R + half + 2 * (e & 1)
                    a("v_dot2_f32_bf16 v%d, v%d, v%d, v%d" % (acc, 28 + 20 * half + 4 * j + e, 8 + 4 * j + e, acc))
        a("s_nop 2")
        a("v_add_f32 v%d, v%d, v%d" % (R, R, R + 2))
        a("v_add_f32 v%d, v%d, v%d" % (R + 1, R + 1, R + 3))
        a("s_nop 0")
        for ctl in ("row_shr:1", "row_shr:2", "row_shr:4", "row_shr:8"):
            for i in range(2):
                a("v_add_f32_dpp v%d, v%d, v%d %s row_mask:0xf bank_mask:0xf bound_ctrl:1" % (R + i, R + i, R + i, ctl))
            a("s_nop 0")
        for i in range(2): a("v_mul_f32 v%d, 0xbfb8aa3b, v%d" % (R + i, R + i))
        for i in range(2): a("v_exp_f32 v%d, v%d" % (R + i, R + i))
        a("s_nop 0")
        for i in range(2): a("v_add_f32 v%d, 1.0, v%d" % (R + i, R + i))
        for i in range(2): a("v_rcp_f32 v%d, v%d" % (R + i, R + i))
        a("s_lshl_b32 s67, s2, 5")
        a("s_add_u32 s67, s67, %d" % WS_G)
        a("v_lshrrev_b32 v1, 4, v0")
        a("v_lshlrev_b32 v1, 2, v1")
        a("s_mov_b32 exec_lo, 0x80008000")
        a("s_mov_b32 exec_hi, 0x80008000")
        a("buffer_store_dword v%d, v1, s[20:23], s67 offen sc1" % R)
        a("buffer_store_dword v%d, v1, s[20:23], s67 offen offset:16 sc1" % (R + 1))
        a("s_mov_b64 exec, -1")
    def ut_read(self, chunk_reg, stage_base, H):
        a = self.a
        if "noutr" in self.ph: return
        a("s_and_b32 s67, %s, 1" % chunk_reg)
        a("s_cmp_eq_u32 s67, 0")
        a("s_cselect_b64 vcc, -1, 0")
        a("s_nop 0")
        a("v_cndmask_b32 v4, v239, v238, vcc")
        a("v_add_u32 v4, %d, v4" % stage_base)
        for aa in range(2):
            for it in range(4):
                for hh in range(2):
                    r = H + (aa * 4 + it) * 4 + 2 * hh
                    a("ds_read_b64_tr_b16 v[%d:%d], v4 offset:%d" % (r, r + 1, 4096 * it + 512 * hh + 32 * (aa ^ hh)))
        a("s_waitcnt lgkmcnt(0)")
    def ut_store(self, chunk_reg, H):
        a = self.a
        if "nout" in self.ph: return
        a("s_mul_i32 s67, %s, %d" % (chunk_reg, 32 * ROWS))
        a("s_lshl_b32 s68, s4, 8")
        a("s_add_u32 s67, s67, s68")
        a("s_add_u32 s67, s67, %d" % WS_UT)
        a("s_add_u32 s68, s67, %d" % (16 * ROWS))
        for aa in range(2):
            for it in range(4):
                r = H + (aa * 4 + it) * 4
                a("buffer_store_dwordx4 v[%d:%d], v240, s[20:23], s%d offen offset:%d sc1" % (r, r + 3, 67 + aa, 64 * it))

    def pretouch(self):
        a = self.a
        a("v_and_b32 v1, 7, v0")
        a("v_lshlrev_b32 v1, 21, v1")
        a("buffer_load_dword v63, v1, s[20:23], 0 offen")
        a("v_and_b32 v1, 1, v0")
        a("v_lshlrev_b32 v1, 21, v1")
        a("buffer_load_dword v63, v1, s[24:27], 0 offen")
    def warm_inputs(self):
        a = self.a
        a("v_lshlrev_b32 v1, 7, v0")
        if "warmx" in self.ph:
            a("s_mul_i32 s67, s2, 10240")
            a("buffer_load_dword v244, v1, s[8:11], s67 offen")
            a("s_add_u32 s68, s67, 8192")
            a("s_mov_b32 exec_hi, 0")
            a("s_mov_b32 exec_lo, 0xffff")
            a("buffer_load_dword v244, v1, s[8:11], s68 offen")
            a("s_mov_b32 exec_lo, -1")
        a("s_mov_b32 exec_hi, 0x0fffffff")
        a("s_mul_i32 s67, s2, 7680")
        a("buffer_load_dword v244, v1, s[12:15], s67 offen")
        a("buffer_load_dword v244, v1, s[16:19], s67 offen")
        if "warm2" in self.ph:
            a("buffer_load_dword v244, v1, s[28:31], s67 offen")
        a("s_mov_b64 exec, -1")
        if "warm2" in self.ph:
            a("v_and_b32 v1, 7, v0")
            a("v_lshlrev_b32 v1, 7, v1")
            a("s_mul_i32 s67, s2, 960")
            a("v_add_u32 v1, s67, v1")
            a("v_min_u32 v1, %d, v1" % (245760 - 4))
            a("v_lshrrev_b32 v2, 3, v0")
            a("v_mov_b32 v4, s%d" % P_ARE); a("v_mov_b32 v5, s%d" % (P_ARE + 1))
            for k, p in enumerate((P_AIM, P_BRE, P_BIM, P_CRE, P_CIM)):
                a("v_cmp_eq_u32 vcc, %d, v2" % (k + 1))
                a("v_mov_b32 v6, s%d" % p); a("v_mov_b32 v7, s%d" % (p + 1))
                a("v_cndmask_b32 v4, v4, v6, vcc")
                a("v_cndmask_b32 v5, v5, v7, vcc")
            a("v_add_co_u32 v4, vcc, v4, v1")
            a("s_nop 1")
            a("v_addc_co_u32 v5, vcc, 0, v5, vcc")
            a("global_load_dword v244, v[4:5], off")

    def warm_code(self, early=False):
        a = self.a
        n = self.name
        l = self.newlab("pc"); l2 = self.newlab("pc")
        a("s_getpc_b64 s[68:69]")
        a.lab(l)
        a("s_sub_u32 s68, s68, %s-%s" % (l, n))
        a("s_subb_u32 s69, s69, 0")
        a("s_mov_b32 s67, (%s_end-%s+4095)/4096" % (n, n))
        a("s_lshr_b32 s70, s2, 3")
        a("s_mul_i32 s70, s70, s67")
        a("v_add_u32 v1, s70, v0")
        a("v_lshlrev_b32 v1, 7, v1")
        a("v_min_u32 v1, %s_end-%s, v1" % (n, n))
        a("v_cmp_gt_u32 vcc, s67, v0")
        a("s_and_saveexec_b64 s[70:71], vcc")
        a("s_cbranch_execz %s" % l2)
        a("global_load_dword v244, v1, s[68:69]")
        a.lab(l2)
        a("s_mov_b64 exec, s[70:71]")

    def smem_warm(self, part):
        a = self.a
        if part == 0:
            a("s_mul_i32 s67, s2, 7680")
            a("s_add_u32 s70, s%d, s67" % P_WD)
            a("s_addc_u32 s71, s%d, 0" % (P_WD + 1))
        for r in range(15 * part, 15 * part + 15):
            a("s_load_dword s74, s[70:71], %d" % (r * 128))

    def s_side(self):
        a = self.a
        if "noside" in self.ph:
            for b in range(11 if self.fused() else 12): a("s_barrier")
            return
        HA, HB = 100, 132
        def cond_b(fn):
            l = self.newlab("wb")
            a("s_cmp_ge_u32 s51, 384")
            a("s_cbranch_scc1 %s" % l)
            fn()
            a.lab(l)
        if "warm0" in self.ph:
            self.warm_inputs()
            if "warmc" in self.ph: self.warm_code()
        self.side_setup()
        self.rot_r("s50", "s67")
        a("s_and_b32 s68, s5, 1")
        a("s_lshl_b32 s50, s50, 1")
        a("s_add_u32 s50, s50, s68")
        a("s_add_u32 s53, s50, 2")
        a("s_lshr_b32 s67, s5, 1")
        a("s_and_b32 s67, s67, 3")
        a("s_cmp_eq_u32 s67, 0")
        a("s_cselect_b32 s53, s53, 99")
        if self.fused():
            a("v_mov_b32 v1, %d" % LDS_CNT)
            a("v_mov_b32 v2, 0")
            a("v_mov_b32 v3, 0")
            a("ds_write_b64 v1, v[2:3]")
            a("ds_write_b64 v1, v[2:3] offset:8")
            a("ds_write_b64 v1, v[2:3] offset:16")
            a("ds_write_b32 v1, v2 offset:24")
        self.stamp(5)
        if "nobpre" not in self.ph: a("s_barrier")
        if self.fused(): self.nonce_load()
        wdlate = "wdlate" in self.ph
        if not wdlate:
            self.wd_load("s2", 0)
            cond_b(lambda: self.wd_load("s51", 5120))
        if "warm0" not in self.ph:
            if "warmc" in self.ph: self.warm_code()
            if ("warm" in self.ph or "warm2" in self.ph) and "warmB0" not in self.ph: self.warm_inputs()
        a("s_barrier")
        if "warmB0" in self.ph: self.warm_inputs()
        self.stamp(1)
        self.ut_read("s50", 0, HA)
        def uflag(creg):
            a("s_lshl_b32 s69, %s, 5" % creg)
            a("s_add_u32 s69, s69, s4")
            a("s_lshl_b32 s69, s69, 2")
            a("s_add_u32 s69, s69, %d" % WS_FU)
            self.flag_set("s69", 2)
        def n_lt4(fn):
            l = self.newlab("ut")
            a("s_cmp_ge_u32 s53, 20")
            a("s_cbranch_scc1 %s" % l)
            fn()
            a.lab(l)
        def wflag(ureg):
            a("s_and_b32 s68, %s, 7" % ureg)
            a("s_lshl_b32 s68, s68, 8")
            a("s_lshr_b32 s69, %s, 3" % ureg)
            a("s_lshl_b32 s69, s69, 2")
            a("s_add_u32 s69, s69, s68")
            a("s_add_u32 s69, s69, %d" % WS_FW)
            self.flag_set("s69", 2)
        early = "utearly" in self.ph
        if early: self.ut_store("s50", HA)
        for kk in range(10):
            if not (kk == 9 and self.fused()): a("s_barrier")
            if kk == 0:
                n_lt4(lambda: self.ut_read("s53", 1 * STAGE, HB))
                if early: n_lt4(lambda: self.ut_store("s53", HB))
            if kk == 1:
                if not early:
                    self.ut_store("s50", HA)
                    n_lt4(lambda: self.ut_store("s53", HB))
            if kk == 3:
                a("s_waitcnt vmcnt(0)")
                if self.fused():
                    self.nonce_publish_local()
                    uflag("s50")
                    n_lt4(lambda: uflag("s53"))
            if "swarm" in self.ph and 2 <= kk <= 5:
                self.smem_warm(kk - 2)
            if kk == 7 and not wdlate:
                if self.fused(): self.s3_uw_look()
                self.wd_store("s2", 0)
                cond_b(lambda: self.wd_store("s51", 5120, 180))
                self.gate_load()
            if kk == 7 and wdlate:
                if "swarm" in self.ph: a("s_waitcnt lgkmcnt(0)")
                if self.fused(): self.s3_uw_look()
                self.wd_load("s2", 0)
                cond_b(lambda: self.wd_load("s51", 5120))
            if kk == 8:
                if self.fused():
                    l = self.newlab("uw")
                    a("s_waitcnt vmcnt(%d)" % (5 if wdlate else 20))
                    a("v_cmp_eq_u32 vcc, s64, v92")
                    a("s_nop 1")
                    a("s_cmp_eq_u64 vcc, -1")
                    a("s_cbranch_scc1 %s" % l)
                    self.poll(self.s3_uw_loads, [92], 6, sleep=2)
                    a.lab(l)
                    self.s3_u_loads()
                    a("v_mov_b32 v1, %d" % LDS_UOK)
                    a("v_mov_b32 v2, 3")
                    a("ds_write_b32 v1, v2")
                    if wdlate: a("s_waitcnt vmcnt(12)")
                elif wdlate:
                    a("s_waitcnt vmcnt(0)")
                if wdlate:
                    self.wd_store("s2", 0)
                    cond_b(lambda: self.wd_store("s51", 5120, 180))
                    self.gate_load()
        self.stamp(2)
        if self.fused():
            a("s_setprio 2")
            if wdlate: a("s_waitcnt vmcnt(15)")
            else: a("s_waitcnt vmcnt(27)")
            wflag("s2")
            cond_b(lambda: wflag("s51"))
            self.lds_spin(LDS_SFREE, 2, 4)
            if not wdlate: a("s_waitcnt vmcnt(1)")
        self.stamp(3)
        if self.fused():
            self.s3_u_copies(extra=None)
            a("s_waitcnt lgkmcnt(0)")
            a("v_mov_b32 v1, %d" % LDS_UCOK)
            a("v_mov_b32 v2, 1")
            a("ds_write_b32 v1, v2")
            a("s_setprio 0")
            self.stamp(4)
            a("s_waitcnt vmcnt(0)")
            self.gate_compute()
            a("s_waitcnt vmcnt(0)")
            a("s_lshl_b32 s69, s2, 2")
            a("s_add_u32 s69, s69, %d" % WS_FG)
            self.flag_set("s69", 2)
        else:
            a("s_waitcnt vmcnt(0)")
            self.gate_compute()
            a("s_waitcnt vmcnt(0)")
            self.stamp(4)

    def s3_uw_addr(self):
        a = self.a
        a("v_lshrrev_b32 v1, 4, v0")
        a("v_lshlrev_b32 v1, 8, v1")
        a("v_add_u32 v1, s2, v1")
        a("v_mov_b32 v2, s2")
        a("v_cmp_gt_u32 vcc, 640, v1")
        a("s_nop 1")
        a("v_cndmask_b32 v1, v2, v1, vcc")
        a("v_lshrrev_b32 v1, 5, v1")
        a("v_lshlrev_b32 v1, 7, v1")
        a("v_and_b32 v2, 15, v0")
        a("v_lshl_add_u32 v1, v2, 2, v1")
        a("v_add_u32 v90, %d, v1" % WS_FU)
    def s3_uw_loads(self):
        a = self.a
        a("buffer_load_dword v92, v90, s[20:23], 0 offen sc1")
    def s3_uw_look(self):
        self.s3_uw_addr()
        self.s3_uw_loads()
    def s3_uw_check(self):
        a = self.a
        l = self.newlab("uw")
        a("s_waitcnt vmcnt(0)")
        a("v_cmp_eq_u32 vcc, s64, v92")
        a("v_cmp_eq_u32 s[76:77], s64, v93")
        a("s_nop 1")
        a("s_and_b64 vcc, vcc, s[76:77]")
        a("s_cmp_eq_u64 vcc, -1")
        a("s_cbranch_scc1 %s" % l)
        self.poll(self.s3_uw_loads, [92, 93], 6, sleep=2)
        a.lab(l)

    def s3_channels(self):
        a = self.a
        a("s_mov_b32 s70, s2")
        a("s_add_u32 s71, s2, 256")
        a("s_add_u32 s72, s2, 512")
        a("s_cmp_lt_u32 s72, 640")
        a("s_cselect_b32 s72, s72, s2")

    def s3_u_loads(self):
        a = self.a
        self.s3_channels()
        a("v_lshlrev_b32 v1, 4, v0")
        for sg in range(3):
            a("s_mul_i32 s67, s%d, %d" % (70 + sg, ROWS))
            a("s_add_u32 s67, s67, %d" % WS_UT)
            for i in range(4):
                r = 100 + 16 * sg + 4 * i
                a("buffer_load_dwordx4 v[%d:%d], v1, s[20:23], s67 offen offset:%d sc1" % (r, r + 3, 1024 * i))

    def s3_u_copies(self, extra=0):
        a = self.a
        Z = 150
        for i in range(4): a("v_mov_b32 v%d, 0" % (Z + i))
        a("v_lshlrev_b32 v2, 4, v0")
        a("v_cmp_eq_u32 vcc, 0, v0")
        for sg in range(3):
            base = LDS_UC + sg * UC_SZ
            for b in range(4):
                a("ds_write_b128 v2, v[%d:%d] offset:%d" % (Z, Z + 3, base + b * UC_STRIDE))
        for sg in range(3):
            base = LDS_UC + sg * UC_SZ
            if extra is not None: a("s_waitcnt vmcnt(%d)" % (4 * (2 - sg) + extra))
            for i in range(4):
                D = 100 + 16 * sg + 4 * i
                R3, R2 = 154 + 2 * (i & 1), 155 + 2 * (i & 1)
                Q3, Q2 = 154 + 2 * ((i + 1) & 1), 155 + 2 * ((i + 1) & 1)
                T1 = 160 + 12 * (i & 1); T0 = T1 + 4; T2 = T1 + 8
                P2 = 158
                a("v_mov_b32_dpp v%d, v%d wave_ror:1 row_mask:0xf bank_mask:0xf" % (R3, D + 3))
                a("v_mov_b32_dpp v%d, v%d wave_ror:1 row_mask:0xf bank_mask:0xf" % (R2, D + 2))
                a("v_mov_b32 v%d, v%d" % (T1 + 1, D))
                a("v_mov_b32 v%d, v%d" % (T1 + 2, D + 1))
                a("v_mov_b32 v%d, v%d" % (T1 + 3, D + 2))
                if i == 0:
                    a("v_cndmask_b32 v%d, v%d, v%d, vcc" % (T1, R3, Z))
                    a("v_cndmask_b32 v%d, v%d, v%d, vcc" % (P2, R2, Z))
                else:
                    a("v_cndmask_b32 v%d, v%d, v%d, vcc" % (T1, R3, Q3))
                    a("v_cndmask_b32 v%d, v%d, v%d, vcc" % (P2, R2, Q2))
                off = base + 4 * (96 + 256 * i)
                a("ds_write_b128 v2, v[%d:%d] offset:%d" % (D, D + 3, off + 3 * UC_STRIDE))
                a("v_alignbit_b32 v%d, v%d, v%d, 16" % (T0, T1, P2))
                a("v_alignbit_b32 v%d, v%d, v%d, 16" % (T0 + 1, D, T1))
                a("v_alignbit_b32 v%d, v%d, v%d, 16" % (T0 + 2, D + 1, D))
                a("v_alignbit_b32 v%d, v%d, v%d, 16" % (T0 + 3, D + 2, D + 1))
                a("ds_write_b128 v2, v[%d:%d] offset:%d" % (T1, T1 + 3, off + 1 * UC_STRIDE))
                a("v_mov_b32 v%d, v%d" % (T2, T0 + 1))
                a("v_mov_b32 v%d, v%d" % (T2 + 1, T0 + 2))
                a("v_mov_b32 v%d, v%d" % (T2 + 2, T0 + 3))
                a("v_alignbit_b32 v%d, v%d, v%d, 16" % (T2 + 3, D + 3, D + 2))
                a("ds_write_b128 v2, v[%d:%d] offset:%d" % (T0, T0 + 3, off + 0 * UC_STRIDE))
                a("ds_write_b128 v2, v[%d:%d] offset:%d" % (T2, T2 + 3, off + 2 * UC_STRIDE))

    def s_phase1(self):
        a = self.a
        n = self.name
        a("s_sub_u32 s66, s3, 4")
        a("s_cmp_eq_u32 s66, 3")
        a("s_cbranch_scc1 %s_sj" % n)
        self.s_kgen_phase1()
        a("s_branch %s_p1done" % n)
        a.lab("%s_sj" % n)
        self.s_side()
        a.lab("%s_p1done" % n)

    def ssm_param_loads(self, slots=(0, 1, 2), scalars=True):
        a = self.a
        a("s_mul_i32 s67, s50, 384")
        a("v_lshl_add_u32 v1, v0, 1, s67")
        for sl in slots:
            for k, p in enumerate((P_ARE, P_AIM, P_BRE, P_BIM, P_CRE, P_CIM)):
                a("global_load_ushort v%d, v1, s[%d:%d] offset:%d" % (200 + 6 * sl + k, p, p + 1, 128 * sl))
        if scalars:
            a("s_lshl_b32 s67, s50, 1")
            a("v_mov_b32 v223, s67")
            a("global_load_ushort v218, v223, s[%d:%d]" % (P_LDT, P_LDT + 1))
            a("global_load_ushort v219, v223, s[%d:%d]" % (P_DSK, P_DSK + 1))

    def kgen_bases(self):
        a = self.a
        a("s_mul_i32 s51, s66, %d" % TAB_SZ)
        a("s_add_u32 s51, s51, %d" % LDS_TAB)
        a("s_mul_i32 s52, s66, %d" % KR_SZ)
        a("s_add_u32 s52, s52, %d" % LDS_KR)

    def kgen(self, part="all"):
        a = self.a
        if part == "all": self.kgen_bases()
        self._kgen_body(part)

    def _kgen_body(self, part):
        a = self.a
        head = part in ("all", "head", "rest"); tail = part in ("all", "tail", "rest")
        real_a = a
        if not head: a = Asm()
        a("v_and_b32 v4, 15, v0")
        a("v_lshrrev_b32 v5, 4, v0")
        a("v_mul_u32_u24 v2, %d, v4" % TABROW)
        a("v_lshl_add_u32 v2, v5, 6, v2")
        a("v_add_u32 v2, s51, v2")
        a("v_and_b32 v6, 1, v5")
        a("v_lshl_add_u32 v3, v6, 3, v2")
        a("v_xor_b32 v6, 1, v6")
        a("v_lshl_add_u32 v2, v6, 3, v2")
        a("s_mov_b32 m0, s51")
        a("s_nop 0")
        if part == "all" or (part == "rest" and not self.fused()): a("s_waitcnt vmcnt(0)")
        a("v_lshlrev_b32 v218, 16, v218")
        a("v_lshlrev_b32 v219, 16, v219")
        a("v_mul_f32 v6, 0x3fb8aa3b, v218")
        a("s_mov_b32 s67, 0x3fb8aa3b")
        a("v_fma_f32 v7, v218, s67, -v6")
        a("v_fmac_f32 v7, 0x32a57060, v218")
        a("v_exp_f32 v6, v6")
        a("v_mul_f32 v7, 0x3f317218, v7")
        a("v_fma_f32 v6, v6, v7, v6")
        a("v_cvt_pk_bf16_f32 v6, v6, v6")
        a("v_lshlrev_b32 v218, 16, v6")
        W1, W16, W256, W512, W768, W1024 = 10, 12, 14, 16, 18, 20
        WX = 22
        CB = 24
        Y = 26; P = 28; TMP1 = 30; TMP2 = 32; TMP3 = 34
        PK = 36
        V = 50
        CV = 66
        YF = 76
        AF = 92
        ACC = 108
        nopk = (part == "head") and ("pkhead" not in self.ph)
        def cmul(out, x, w, t):
            if nopk:
                return ["v_mul_f32 v%d, v%d, v%d" % (t, x + 1, w + 1),
                        "v_mul_f32 v%d, v%d, v%d" % (t + 1, x, w + 1),
                        "v_fma_f32 v%d, v%d, v%d, -v%d" % (out, x, w, t),
                        "v_fma_f32 v%d, v%d, v%d, v%d" % (out + 1, x + 1, w, t + 1)]
            return ["v_pk_mul_f32 v[%d:%d], v[%d:%d], v[%d:%d] op_sel:[0,0] op_sel_hi:[0,1]" % (t, t + 1, x, x + 1, w, w + 1),
                    "v_pk_fma_f32 v[%d:%d], v[%d:%d], v[%d:%d], v[%d:%d] op_sel:[1,1,0] op_sel_hi:[1,0,1] neg_lo:[1,0,0]" % (out, out + 1, x, x + 1, w, w + 1, t, t + 1)]
        def zipl(*ls):
            o = []
            for i in range(max(len(l) for l in ls)):
                for l in ls:
                    if i < len(l): o.append(l[i])
            return o
        cvn = [0, 0]
        def wr(val, tile, row, neg, bank=0):
            c = CV + 4 * bank + (cvn[bank] % 4); cvn[bank] += 1
            return ["v_cvt_pk_bf16_f32 v%d, v%d, %sv%d" % (c, val, "-" if neg else "", val + 1),
                    "ds_write_addtid_b32 v%d offset:%d" % (c, tile * TABTILE + row * TABROW)]
        def frag_reads(dst, tile):
            L = []
            for kk in range(4):
                L.append("ds_read_b64 v[%d:%d], v3 offset:%d" % (dst + 4 * kk, dst + 4 * kk + 1, tile * TABTILE + 16 * kk))
                L.append("ds_read_b64 v[%d:%d], v2 offset:%d" % (dst + 4 * kk + 2, dst + 4 * kk + 3, tile * TABTILE + 16 * kk))
            return L
        def mm(t, first):
            L = []
            for kk in range(4):
                c = "0" if (first and kk == 0) else "v[%d:%d]" % (ACC + 4 * t, ACC + 4 * t + 3)
                L.append("v_mfma_f32_16x16x32_bf16 v[%d:%d], v[%d:%d], v[%d:%d], %s" % (ACC + 4 * t, ACC + 4 * t + 3, AF + 4 * kk, AF + 4 * kk + 3, YF + 4 * kk, YF + 4 * kk + 3, c))
            return L
        a = real_a
        nh = 2 if "kg2" in self.ph else 1
        slots = [0, 1, 2] if part in ("all", "rest") else (list(range(nh)) if part == "head" else list(range(nh, 3)))
        for sl in slots:
            if sl == 1 and part == "tail" and not self.fused(): a("s_waitcnt vmcnt(0)")
            if sl == 2 and part in ("rest", "tail"): self.stamp(3)
            if sl == 2 and "prioT" in self.ph: a("s_setprio 2")
            if sl == slots[0] and part in ("tail", "rest") and "prioT0" in self.ph: a("s_setprio 2")
            pr = 200 + 6 * sl
            for k in range(6): a("v_lshlrev_b32 v%d, 16, v%d" % (pr + k, pr + k))
            a("v_mul_f32 v6, v218, v%d" % pr)
            a("v_mul_f32 v7, v218, v%d" % (pr + 1))
            a("v_mul_f32 v6, 0x3fb8aa3b, v6")
            a("v_mul_f32 v7, 0.15915494, v7")
            a("v_mul_f32 v8, v218, v%d" % (pr + 2))
            a("v_mul_f32 v9, v218, v%d" % (pr + 3))
            a.ext(cmul(CB, pr + 4, 8, TMP1))
            for w, k in ((W1, 1.0), (W16, 16.0), (W256, 256.0)):
                if k == 1.0:
                    a("v_exp_f32 v%d, v6" % TMP2)
                    a("v_fract_f32 v%d, v7" % TMP3)
                else:
                    lit = "0x41800000" if k == 16.0 else "0x43800000"
                    a("v_mul_f32 v%d, %s, v6" % (TMP2, lit))
                    a("v_mul_f32 v%d, %s, v7" % (TMP3, lit))
                    a("v_exp_f32 v%d, v%d" % (TMP2, TMP2))
                    a("v_fract_f32 v%d, v%d" % (TMP3, TMP3))
                a("v_cos_f32 v%d, v%d" % (w, TMP3))
                a("v_sin_f32 v%d, v%d" % (w + 1, TMP3))
                a("s_nop 0")
                a("v_mul_f32 v%d, v%d, v%d" % (w, w, TMP2))
                a("v_mul_f32 v%d, v%d, v%d" % (w + 1, w + 1, TMP2))
            if sl != slots[0]:
                a("s_waitcnt lgkmcnt(0)")
                a.ext(pend_mm2)
            LY = ["v_mov_b32 v%d, v%d" % (Y, CB), "v_mov_b32 v%d, v%d" % (Y + 1, CB + 1)] + wr(Y, 0, 0, False)
            for j in range(1, 16):
                LY += cmul(Y, Y, W16, TMP1) + wr(Y, 0, j, False)
            LA = ["v_mov_b32 v%d, 1.0" % P, "v_mov_b32 v%d, 0" % (P + 1)] + wr(P, 1, 0, True, 1)
            cur = P
            for r in range(1, 16):
                if r == 1:
                    LA += ["v_mov_b32 v%d, v%d" % (P, W1), "v_mov_b32 v%d, v%d" % (P + 1, W1 + 1)]
                    cur = P
                else:
                    dst = PK + 2 * (r // 2 - 1) if r % 2 == 0 else P
                    LA += cmul(dst, cur, W1, TMP2)
                    cur = dst
                LA += wr(cur, 1, r, True, 1)
            a.ext(zipl(LY, LA))
            a.ext(cmul(W512, W256, W256, TMP1))
            a.ext(frag_reads(YF, 0)); a.ext(frag_reads(AF, 1))
            a.ext(zipl(cmul(W768, W512, W256, TMP1), cmul(W1024, W512, W512, TMP2)))
            def pk(i): return PK + 2 * (i // 2 - 1)
            vals = []
            A2 = []
            regs = []
            for r in range(8):
                if r == 0: regs.append(W256)
                else:
                    dst = V + 2 * (r - 1) if r < 8 else None
                    A2.append(cmul(dst, pk(2 * r), W256, TMP1 if r % 2 else TMP2)); regs.append(dst)
            a.ext(zipl(sum(A2[0::2], []), sum(A2[1::2], [])))
            a("s_waitcnt lgkmcnt(0)")
            m = mm(0, sl == 0)
            L = []
            for r in range(8): L += wr(regs[r], 1, r, True)
            a.ext(interleave(m, L))
            LA = []; LB = []
            for b in range(4):
                if b == 0:
                    LA += wr(W512, 1, 8, True); LB += wr(W768, 1, 12, True, 1)
                else:
                    LA += cmul(V, pk(4 * b), W512, TMP1) + wr(V, 1, 8 + b, True)
                    LB += cmul(V + 2, pk(4 * b), W768, TMP2) + wr(V + 2, 1, 12 + b, True, 1)
            a.ext(zipl(LA, LB))
            a.ext(frag_reads(AF, 1))
            a.ext(zipl(cmul(V, W1024, W256, TMP1), cmul(V + 2, W1024, W512, TMP2)))
            a.ext(zipl(cmul(V + 4, W1024, W768, TMP1), cmul(V + 6, W1024, W1024, TMP2)))
            ws = [W1024, V, V + 2, V + 4]
            a.ext(zipl(cmul(V + 8, ws[0], pk(8), TMP1), cmul(V + 10, ws[1], pk(8), TMP2)))
            a.ext(zipl(cmul(V + 12, ws[2], pk(8), TMP1), cmul(V + 14, ws[3], pk(8), TMP2)))
            a("s_waitcnt lgkmcnt(0)")
            m = mm(1, sl == 0)
            L = []
            for i in range(4):
                L += wr(ws[i], 1, 2 * i, True) + wr(V + 8 + 2 * i, 1, 2 * i + 1, True)
            L += wr(V + 6, 1, 8, True)
            a.ext(interleave(m, L))
            a.ext(frag_reads(AF, 1))
            pend_mm2 = mm(2, sl == 0)
            if sl == slots[-1]:
                a("s_waitcnt lgkmcnt(0)")
                a.ext(pend_mm2); pend_mm2 = None
        if not tail: return
        self.stamp(1)
        A0, A1, A2r = ACC, ACC + 4, ACC + 8
        a("v_cmp_eq_u32 vcc, 0, v0")
        a("v_and_b32 v4, 15, v0")
        a("v_lshrrev_b32 v5, 4, v0")
        a("v_cndmask_b32 v6, 0, v219, vcc")
        a("v_lshlrev_b32 v7, 5, v4")
        a("v_lshl_add_u32 v7, v5, 4, v7")
        a("v_lshlrev_b32 v8, 4, v4")
        a("v_lshl_add_u32 v8, v5, 8, v8")
        a("v_cmp_gt_u32 vcc, 2, v5")
        a("v_add_f32 v%d, v%d, v6" % (A0, A0))
        a("s_nop 0")
        a("v_cndmask_b32 v7, v8, v7, vcc")
        a("v_add_u32 v7, s51, v7")
        a("v_lshlrev_b32 v8, 3, v4")
        a("v_lshl_add_u32 v8, v5, 8, v8")
        a("v_add_u32 v8, s51, v8")
        a("s_nop 4")
        a("ds_write_b128 v7, v[%d:%d]" % (A1, A1 + 3))
        a("ds_write_b64 v8, v[%d:%d] offset:1024" % (A2r, A2r + 1))
        a("ds_write_b64 v8, v[%d:%d] offset:1152" % (A2r + 2, A2r + 3))
        a("v_cvt_pk_bf16_f32 v10, v%d, v%d" % (A0 + 3, A0 + 2))
        a("v_cvt_pk_bf16_f32 v11, v%d, v%d" % (A0 + 1, A0))
        a("v_lshlrev_b32 v9, 5, v4")
        a("v_lshl_add_u32 v9, v5, 3, v9")
        a("v_sub_u32 v9, 4088, v9")
        a("v_add_u32 v9, s52, v9")
        a("ds_write_b64 v9, v[10:11]")
        a("v_and_b32 v9, 31, v0")
        a("v_lshlrev_b32 v9, 2, v9")
        a("v_add_u32 v9, s52, v9")
        a("v_mov_b32 v12, 0")
        a("ds_write_b32 v9, v12 offset:4096")
        a("v_lshlrev_b32 v13, 4, v0")
        a("v_add_u32 v14, s51, v13")
        a("v_lshlrev_b32 v15, 3, v0")
        a("v_add_u32 v15, s51, v15")
        a("v_lshlrev_b32 v16, 2, v0")
        a("v_add_u32 v16, s51, v16")
        a("v_sub_u32 v13, s52, v13")
        a("s_waitcnt lgkmcnt(0)")
        a("ds_read_b128 v[20:23], v14")
        a("ds_read_b32 v24, v14 offset:16")
        a("ds_read_b64 v[26:27], v15 offset:512")
        a("ds_read_b32 v28, v15 offset:520")
        a("ds_read2_b32 v[30:31], v16 offset0:0 offset1:1")
        a.l.pop()
        a("v_add_u32 v17, 1024, v16")
        a("ds_read2_b32 v[30:31], v17 offset0:0 offset1:1")
        a("ds_read2_b32 v[32:33], v17 offset0:64 offset1:65")
        a("v_and_b32 v18, 1, v0")
        a("v_cmp_eq_u32 vcc, 1, v18")
        a("s_waitcnt lgkmcnt(0)")
        a("v_cvt_pk_bf16_f32 v36, v28, v28")
        a("v_cvt_pk_bf16_f32 v37, v27, v27")
        a("v_cvt_pk_bf16_f32 v38, v27, v26")
        a("v_cvt_pk_bf16_f32 v39, v26, v26")
        a("ds_write_b128 v13, v[36:39] offset:3056")
        for ps in range(2):
            v0_, v1_ = 30 + 2 * ps, 31 + 2 * ps
            o = 40 + 4 * ps
            a("v_cndmask_b32 v19, v%d, v%d, vcc" % (v0_, v1_))
            a("v_cvt_pk_bf16_f32 v%d, v%d, v%d" % (o, v1_, v1_))
            a("v_cvt_pk_bf16_f32 v%d, v%d, v19" % (o + 1, v1_))
            a("v_cvt_pk_bf16_f32 v%d, v%d, v%d" % (o + 2, v0_, v0_))
            a("v_mov_b32 v%d, v%d" % (o + 3, o + 2))
        a("ds_write_b128 v13, v[40:43] offset:2032")
        a("ds_write_b128 v13, v[44:47] offset:1008")
        a("v_cvt_pk_bf16_f32 v48, v24, v23")
        a("v_cvt_pk_bf16_f32 v49, v22, v22")
        a("v_cvt_pk_bf16_f32 v50, v22, v21")
        a("v_cvt_pk_bf16_f32 v51, v20, v20")
        a("s_mov_b32 exec_hi, 0")
        a("ds_write_b128 v13, v[48:51] offset:3568")
        a("s_mov_b32 exec_hi, -1")
        if "dumpk" in self.ph:
            a("s_waitcnt lgkmcnt(0)")
            a("v_lshlrev_b32 v13, 4, v0")
            a("v_add_u32 v14, s52, v13")
            a("s_mul_i32 s67, s50, 4224")
            a("s_add_u32 s67, s67, %d" % WS_DBG)
            for i in range(5):
                a("ds_read_b128 v[20:23], v14 offset:%d" % (1024 * i))
                a("s_waitcnt lgkmcnt(0)")
                if i == 4: a("s_mov_b32 exec_hi, 0"); a("s_mov_b32 exec_lo, 0xff")
                a("s_add_u32 s68, s67, %d" % (1024 * i))
                a("buffer_store_dwordx4 v[20:23], v13, s[20:23], s68 offen")
                a("s_waitcnt vmcnt(0)")
            a("s_mov_b64 exec, -1")

    def u_look(self):
        a = self.a
        self.nonce_read(120)
        a("s_lshr_b32 s78, s50, 5")
        a("s_lshl_b32 s78, s78, 7")
        a("s_add_u32 s78, s78, %d" % WS_FU)
        a("v_and_b32 v120, 15, v0")
        a("v_lshlrev_b32 v120, 2, v120")
        a("buffer_load_dword v121, v120, s[20:23], s78 offen sc1")
    def u_prefetch(self):
        a = self.a
        l = self.newlab("uok")
        a("s_waitcnt vmcnt(0)")
        a("v_cmp_eq_u32 vcc, s64, v121")
        a("s_nop 1")
        a("s_cmp_eq_u64 vcc, -1")
        a("s_cbranch_scc1 %s" % l)
        self.poll_line("s78", 16, 120, sleep=4)
        a.lab(l)
        self.conv_loads()
        self.lds_inc(LDS_UOK, 152)

    def conv_loads(self):
        a = self.a
        a("s_mul_i32 s67, s50, %d" % ROWS)
        a("s_add_u32 s67, s67, %d" % (WS_UT - 4))
        a("v_lshlrev_b32 v1, 2, v0")
        for i in range(16):
            a("buffer_load_dwordx2 v[%d:%d], v1, s[20:23], s67 offen offset:%d sc1" % (120 + 2 * i, 121 + 2 * i, 256 * i))

    def conv(self):
        a = self.a
        D = 120
        a("s_mul_i32 s53, s66, %d" % UC_SZ)
        if LDS_UC: a("s_add_u32 s53, s53, %d" % LDS_UC)
        if not self.fused():
            a("s_mov_b32 m0, s53")
            a("v_mov_b32 v2, 0")
            for b in range(4):
                a("ds_write_addtid_b32 v2 offset:%d" % (b * UC_STRIDE))
                a("ds_write_addtid_b32 v2 offset:%d" % (b * UC_STRIDE + 33 * 4))
            a("v_cmp_eq_u32 vcc, 0, v0")
            a("s_waitcnt vmcnt(0)")
            a("v_cndmask_b32 v%d, v%d, v2, vcc" % (D, D))
            for i in range(16):
                lo, hi = D + 2 * i, D + 2 * i + 1
                o = 4 + (i % 4)
                a("v_alignbit_b32 v%d, v%d, v%d, 16" % (o, hi, lo))
                a("ds_write_addtid_b32 v%d offset:%d" % (hi, 3 * UC_STRIDE + 4 * (64 * i + 96)))
                a("ds_write_addtid_b32 v%d offset:%d" % (hi, 1 * UC_STRIDE + 4 * (64 * i + 97)))
                a("ds_write_addtid_b32 v%d offset:%d" % (o, 2 * UC_STRIDE + 4 * (64 * i + 96)))
                a("ds_write_addtid_b32 v%d offset:%d" % (o, 0 * UC_STRIDE + 4 * (64 * i + 97)))
        VU, VK = 8, 9
        a("v_and_b32 v4, 3, v0")
        a("v_mul_u32_u24 v4, %d, v4" % UC_STRIDE)
        a("v_bfe_u32 v5, v0, 2, 2")
        a("v_lshl_add_u32 v4, v5, 7, v4")
        a("v_lshrrev_b32 v5, 4, v0")
        a("v_lshl_add_u32 v4, v5, 4, v4")
        a("v_add_u32 v%d, s53, v4" % VU)
        a("v_and_b32 v6, 15, v0")
        a("v_lshlrev_b32 v7, 3, v6")
        a("v_sub_u32 v7, 120, v7")
        a("v_lshl_add_u32 v7, v5, 4, v7")
        a("v_add_u32 v%d, s52, v7" % VK)
        a("v_lshlrev_b32 v10, 3, v6")
        a("v_lshl_add_u32 v10, v5, 7, v10")
        ACC = 16; SETS = [48, 112]
        def reads(rho, S):
            L = []
            for z in range(8):
                L.append("ds_read_b128 v[%d:%d], v%d offset:%d" % (S + 4 * z, S + 4 * z + 3, VU, 512 * z + 64 * (7 - rho)))
                zz = 8 * z + rho
                L.append("ds_read_b64 v[%d:%d], v%d offset:%d" % (S + 32 + 4 * z, S + 33 + 4 * z, VK, 64 * (63 - zz)))
                L.append("ds_read_b64 v[%d:%d], v%d offset:%d" % (S + 34 + 4 * z, S + 35 + 4 * z, VK, 64 * (63 - zz) + 8))
            return L
        def mm(rho, S):
            L = []
            for ze in range(8):
                for nu in range(8 - ze):
                    n = ze + nu
                    c = "0" if (rho == 0 and ze == 0) else "v[%d:%d]" % (ACC + 4 * n, ACC + 4 * n + 3)
                    L.append("v_mfma_f32_16x16x32_bf16 v[%d:%d], v[%d:%d], v[%d:%d], %s" % (ACC + 4 * n, ACC + 4 * n + 3, S + 4 * nu, S + 4 * nu + 3, S + 32 + 4 * ze, S + 35 + 4 * ze, c))
            return L
        a("s_waitcnt lgkmcnt(0)")
        if self.fused(): self.lds_spin(LDS_UCOK, 12)
        self.stamp(4)
        a.ext(reads(0, SETS[0]))
        a("s_waitcnt lgkmcnt(0)")
        for rho in range(8):
            fill = reads(rho + 1, SETS[(rho + 1) & 1]) if rho < 7 else []
            a.ext(interleave(mm(rho, SETS[rho & 1]), fill, span=28))
            if rho < 7: a("s_waitcnt lgkmcnt(0)")
        self.stamp(7)
        a("s_mul_i32 s67, s50, %d" % ROWS)
        a("s_add_u32 s67, s67, %d" % WS_Y)
        a("s_nop 7")
        for n in range(8):
            o = 48 + 2 * n
            a("v_cvt_pk_bf16_f32 v%d, v%d, v%d" % (o, ACC + 4 * n, ACC + 4 * n + 1))
            a("v_cvt_pk_bf16_f32 v%d, v%d, v%d" % (o + 1, ACC + 4 * n + 2, ACC + 4 * n + 3))
            a("buffer_store_dwordx2 v[%d:%d], v10, s[20:23], s67 offen offset:%d sc1" % (o, o + 1, 512 * n))

    def s_ssm(self):
        a = self.a
        n = self.name
        a("s_sub_u32 s66, s3, 4")
        a("s_lshl_b32 s50, s66, 8")
        a("s_add_u32 s50, s50, s2")
        a("s_cmp_ge_u32 s66, 3")
        a("s_cbranch_scc1 %s_ssm_done" % n)
        if self.fused():
            l = self.newlab("nch")
            a("s_cmp_lt_u32 s50, 640")
            a("s_cbranch_scc1 %s" % l)
            a("s_branch %s_ssm_done" % n)
            a.lab(l)
        else:
            a("s_cmp_ge_u32 s50, 640")
            a("s_cbranch_scc1 %s_ssm_done" % n)
        if self.fused() and "g1" in self.ph:
            a("s_waitcnt vmcnt(0)")
        if "g1" not in self.ph:
            self.stamp(5)
            self.ssm_param_loads()
            self.kgen("all")
        elif "kghead" in self.ph:
            self.kgen("tail")
        else:
            self.kgen("rest")
        self.stamp(6)
        if not self.fused():
            self.conv_loads()
        self.conv()
        if "prioT" in self.ph or "prioT0" in self.ph: a("s_setprio 0")
        a("s_waitcnt vmcnt(0)")
        if self.fused():
            self.nonce_read(4)
            a("s_lshl_b32 s69, s50, 2")
            a("s_add_u32 s69, s69, %d" % WS_FY)
            self.flag_set("s69", 2)
        self.stamp(8)
        a.lab("%s_ssm_done" % n)

    def g_gemm2(self):
        a = self.a
        ACC = 0
        SETS = [80, 116, 152, 188]
        VB = 224
        VL = 228
        VB8 = 246
        T = 230
        acc = lambda dt, tau: ACC + (dt * 4 + tau) * 4
        a("v_mbcnt_lo_u32_b32 v%d, -1, 0" % T)
        a("v_mbcnt_hi_u32_b32 v%d, -1, v%d" % (T, T))
        a("v_lshlrev_b32 v%d, 4, v%d" % (VL, T))
        for tau in range(4):
            a("s_add_u32 s67, s3, %d" % tau)
            a("s_and_b32 s67, s67, 3")
            a("s_lshl_b32 s67, s67, 10")
            a("v_add_u32 v%d, s67, v%d" % (VB + tau, VL))
            a("v_lshlrev_b32 v%d, 3, v%d" % (VB8 + tau, T))
            a("v_add_u32 v%d, s67, v%d" % (VB8 + tau, VB8 + tau))
        a("s_mul_i32 s70, s6, 48")
        a("s_mul_i32 s67, s3, 12")
        a("s_add_u32 s70, s70, s67")
        a("s_lshl_b32 s70, s70, 12")
        if WS_H: a("s_add_u32 s70, s70, %d" % WS_H)
        a("s_mul_i32 s71, s7, 48")
        a("s_add_u32 s71, s71, s67")
        a("s_mul_i32 s71, s71, 5120")
        a("s_add_u32 s71, s71, %d" % WS_WD)
        a("s_add_u32 s72, s71, 4096")
        def loadsA(S):
            L = []
            for dt in range(5):
                if dt < 4: L.append("buffer_load_dwordx4 v[%d:%d], v%d, s[20:23], s71 offen offset:%d sc1" % (S + 16 + 4 * dt, S + 19 + 4 * dt, VL, 1024 * dt))
                else: L.append(("buffer_load_dwordx4 v[%d:%d], v%d, s[20:23], s72 offen sc1" % (S + 16 + 4 * dt, S + 19 + 4 * dt, VL),
                                "s_add_u32 s71, s71, 5120", "s_add_u32 s72, s72, 5120"))
            return L
        def loadsB(S, k):
            L = []
            for tau in range(4):
                if k % 3 == 1:
                    x = ("buffer_load_dwordx2 v[%d:%d], v%d, s[20:23], s70 offen sc1" % (S + 4 * tau, S + 4 * tau + 1, VB8 + tau),
                         "buffer_load_dwordx2 v[%d:%d], v%d, s[20:23], s70 offen offset:512 sc1" % (S + 4 * tau + 2, S + 4 * tau + 3, VB8 + tau))
                else:
                    x = ("buffer_load_dwordx4 v[%d:%d], v%d, s[20:23], s70 offen sc1" % (S + 4 * tau, S + 4 * tau + 3, VB + tau),)
                L.append(x if tau < 3 else x + ("s_add_u32 s70, s70, 4096",))
            return L
        nB = lambda k: 8 if k % 3 == 1 else 4
        def mm(S, first):
            L = []
            for dt in range(5):
                for tau in range(4):
                    c = "0" if first else "v[%d:%d]" % (acc(dt, tau), acc(dt, tau) + 3)
                    L.append("v_mfma_f32_16x16x32_bf16 v[%d:%d], v[%d:%d], v[%d:%d], %s" % (acc(dt, tau), acc(dt, tau) + 3, S + 16 + 4 * dt, S + 19 + 4 * dt, S + 4 * tau, S + 4 * tau + 3, c))
            return L
        NS = 12
        pre = "g1" in self.ph and "nopre" not in self.ph
        def red_slot(tau):
            a("s_add_u32 s67, s3, %d" % tau)
            a("s_and_b32 s67, s67, 3")
            a("s_mul_i32 s67, s67, 3")
            a("s_add_u32 s67, s67, %d" % (tau - 1))
            a("s_mul_i32 s67, s67, 5120")
            a("s_add_u32 s67, s67, %d" % LDS_RED)
        VRS = 250
        for tau in range(1, 4):
            red_slot(tau)
            a("v_add_u32 v%d, s67, v%d" % (VRS + tau - 1, VL))
            a("s_mov_b32 s%d, s67" % (72 + tau))
        VLOOK = 254
        if "g1" in self.ph:
            if self.fused():
                self.nonce_read(232)
                a("v_mov_b32 v%d, 0" % VLOOK)
                l = self.newlab("lk"); l2 = self.newlab("lk")
                a("s_cmp_lg_u32 s3, 0")
                a("s_cbranch_scc1 %s" % l)
                a("s_lshl_b32 s79, s7, 8")
                a("s_add_u32 s79, s79, %d" % WS_FW)
                self.look_line("s79", 48, VLOOK)
                a("s_waitcnt vmcnt(1)")
                a("s_branch %s" % l2)
                a.lab(l)
                a("s_waitcnt vmcnt(0)")
                a.lab(l2)
                self.g_signal_h(None)
            else:
                self.g_signal_h(0)
        if pre:
            if self.fused():
                lo = self.newlab("ww"); ld = self.newlab("wd")
                a("s_cmp_lg_u32 s3, 0")
                a("s_cbranch_scc1 %s" % lo)
                self.lds_spin(LDS_SFREE, 232, 4)
                self.lds_spin(LDS_UOK, 232, 3)
                self.check_line("s79", VLOOK, 0)
                a("v_mov_b32 v232, %d" % LDS_WOK)
                a("v_mov_b32 v233, 1")
                a("ds_write_b32 v232, v233")
                a("s_lshr_b32 s79, s6, 1")
                a("s_lshl_b32 s79, s79, 7")
                a("s_add_u32 s79, s79, %d" % WS_FH)
                self.look_line("s79", 16, VLOOK)
                a("s_branch %s" % ld)
                a.lab(lo)
                self.lds_spin(LDS_WOK, 232)
                a.lab(ld)
            for k in range(4):
                a.ext(flat(loadsA(SETS[k])))
            for tau in range(1, 4):
                a("s_mov_b32 m0, s%d" % (72 + tau))
                a("s_nop 0")
                for dt in range(4):
                    a("buffer_load_dwordx4 v%d, s[20:23], s71 offen offset:%d sc1 lds" % (VL, 1024 * dt))
                a("s_add_u32 m0, s%d, 4096" % (72 + tau))
                a("s_add_u32 s71, s71, 5120")
                a("buffer_load_dwordx4 v%d, s[20:23], s72 offen sc1 lds" % VL)
                a("s_add_u32 s72, s72, 5120")
        self.g2_wait_inputs(looked=pre)
        self.stamp(5)
        self.clk(5)
        def srcA(k):
            if not pre: return "g"
            return "pre" if k < 4 else ("lds" if k < 7 else "g")
        def loadA_any(k):
            S = SETS[k % 4]
            if srcA(k) == "g": return loadsA(S)
            if srcA(k) == "lds":
                return ["ds_read_b128 v[%d:%d], v%d offset:%d" % (S + 16 + 4 * dt, S + 19 + 4 * dt, VRS + k - 4, 1024 * dt) for dt in range(5)]
            return []
        nL = lambda k: nB(k) + (5 if srcA(k) == "g" else 0)
        for k in range(3):
            a.ext(flat(loadsB(SETS[k], k) + loadA_any(k)))
        for k in range(NS):
            rem = sum(nL(j) for j in range(k + 1, min(NS - 1, k + 2) + 1))
            if srcA(k) == "lds": a("s_waitcnt vmcnt(%d) lgkmcnt(0)" % rem)
            else: a("s_waitcnt vmcnt(%d)" % rem)
            fill = (loadsB(SETS[(k + 3) % 4], k + 3) + loadA_any(k + 3)) if k + 3 < NS else []
            if "k2stamps" in self.ph and k < 9: self.stamp(k + 1, force=True)
            a.ext(interleave(mm(SETS[k % 4], k == 0), fill))
            if k + 3 == NS - 1 and self.fused(): self.lds_inc(LDS_GOK, 232)
        self.stamp(6)
        self.clk(7)
        a("s_nop 7")
        for tau in range(1, 4):
            for dt in range(5):
                a("ds_write_b128 v%d, v[%d:%d] offset:%d" % (VRS + tau - 1, acc(dt, tau), acc(dt, tau) + 3, 1024 * dt))
        a("s_waitcnt lgkmcnt(0)")
        a("s_barrier")
        self.stamp(7)
        a("s_mul_i32 s67, s3, %d" % (3 * 5120))
        a("s_add_u32 s67, s67, %d" % LDS_RED)
        a("v_add_u32 v%d, s67, v%d" % (T + 1, VL))
        R = 80
        for j in range(3):
            for dt in range(5):
                r = R + (j * 5 + dt) * 4
                a("ds_read_b128 v[%d:%d], v%d offset:%d" % (r, r + 3, T + 1, 5120 * j + 1024 * dt))
        Y = 140
        a("v_lshrrev_b32 v%d, 4, v%d" % (T + 2, T))
        a("v_and_b32 v%d, 15, v%d" % (T + 3, T))
        a("v_lshrrev_b32 v%d, 2, v%d" % (T + 4, T + 3))
        a("v_lshl_add_u32 v%d, v%d, 3, v%d" % (T + 5, T + 2, T + 4))
        a("v_lshl_add_u32 v%d, v%d, 2, v%d" % (T + 6, T + 2, T + 4))
        a("v_and_b32 v%d, 3, v%d" % (T + 7, T))
        a("v_lshlrev_b32 v%d, 3, v%d" % (T + 7, T + 7))
        a("s_lshl_b32 s67, s3, 5")
        a("s_add_u32 s67, s67, %d" % LDS_YT)
        a("v_add_u32 v%d, s67, v%d" % (T + 7, T + 7))
        a("v_lshl_add_u32 v%d, v%d, 7, v%d" % (T + 5, T + 5, T + 7))
        a("v_lshl_add_u32 v%d, v%d, 7, v%d" % (T + 6, T + 6, T + 7))
        for dt in range(5):
            if dt < 4: a("ds_read_b64_tr_b16 v[%d:%d], v%d offset:%d" % (Y + 2 * dt, Y + 2 * dt + 1, T + 5, 128 * (32 * (dt >> 1) + 4 * (dt & 1))))
            else: a("ds_read_b64_tr_b16 v[%d:%d], v%d offset:%d" % (Y + 2 * dt, Y + 2 * dt + 1, T + 6, 128 * 64))
        a("s_lshl_b32 s67, s3, 6")
        a("s_add_u32 s67, s67, %d" % LDS_GT)
        a("v_lshl_add_u32 v%d, v%d, 2, s67" % (T + 8, T + 3))
        a("ds_read_b32 v%d, v%d" % (T + 8, T + 8))
        a("s_lshl_b32 s67, s6, 6")
        a("s_lshl_b32 s68, s3, 4")
        a("s_add_u32 s67, s67, s68")
        a("v_add_u32 v%d, s67, v%d" % (T + 9, T + 3))
        a("s_movk_i32 s68, 1280")
        a("v_mul_lo_u32 v%d, v%d, s68" % (T + 9, T + 9))
        a("s_mul_i32 s68, s7, 160")
        a("v_add_u32 v%d, s68, v%d" % (T + 9, T + 9))
        a("v_lshl_add_u32 v%d, v%d, 3, v%d" % (T + 10, T + 2, T + 9))
        a("v_lshl_add_u32 v%d, v%d, 4, v%d" % (T + 9, T + 2, T + 9))
        a("s_waitcnt lgkmcnt(0)")
        for dt in range(5):
            for h in range(2):
                x = acc(dt, 0) + 2 * h
                p = [R + (j * 5 + dt) * 4 + 2 * h for j in range(3)]
                a("v_pk_add_f32 v[%d:%d], v[%d:%d], v[%d:%d]" % (p[0], p[0] + 1, p[0], p[0] + 1, p[1], p[1] + 1))
                a("v_pk_add_f32 v[%d:%d], v[%d:%d], v[%d:%d]" % (x, x + 1, x, x + 1, p[2], p[2] + 1))
        for dt in range(5):
            for h in range(2):
                x = acc(dt, 0) + 2 * h
                p = R + dt * 4 + 2 * h
                a("v_pk_add_f32 v[%d:%d], v[%d:%d], v[%d:%d]" % (x, x + 1, x, x + 1, p, p + 1))
        U = 150
        for dt in range(5):
            for h in range(2):
                a("v_lshlrev_b32 v%d, 16, v%d" % (U + 4 * dt + 2 * h, Y + 2 * dt + h))
                a("v_and_b32 v%d, 0xffff0000, v%d" % (U + 4 * dt + 2 * h + 1, Y + 2 * dt + h))
        G2 = T + 12
        assert G2 % 2 == 0
        a("v_mov_b32 v%d, v%d" % (G2, T + 8))
        a("v_mov_b32 v%d, v%d" % (G2 + 1, T + 8))
        for dt in range(5):
            for h in range(2):
                x = acc(dt, 0) + 2 * h; u = U + 4 * dt + 2 * h
                a("v_pk_add_f32 v[%d:%d], v[%d:%d], v[%d:%d] neg_lo:[0,1] neg_hi:[0,1]" % (u, u + 1, u, u + 1, x, x + 1))
        for dt in range(5):
            for h in range(2):
                x = acc(dt, 0) + 2 * h; u = U + 4 * dt + 2 * h
                a("v_pk_fma_f32 v[%d:%d], v[%d:%d], v[%d:%d], v[%d:%d]" % (x, x + 1, u, u + 1, G2, G2 + 1, x, x + 1))
        O = 176
        for dt in range(5):
            for h in range(2):
                x = acc(dt, 0) + 2 * h
                a("v_cvt_pk_bf16_f32 v%d, v%d, v%d" % (O + 2 * dt + h, x, x + 1))
        fl = " sc1" if "outsc1" in self.ph else (" nt" if "outnt" in self.ph else "")
        a("buffer_store_dwordx4 v[%d:%d], v%d, s[24:27], 0 offen%s" % (O, O + 3, T + 9, fl))
        a("buffer_store_dwordx4 v[%d:%d], v%d, s[24:27], 0 offen offset:64%s" % (O + 4, O + 7, T + 9, fl))
        a("buffer_store_dwordx2 v[%d:%d], v%d, s[24:27], 0 offen offset:128%s" % (O + 8, O + 9, T + 10, fl))
        self.stamp(8)

    def g2_wait_inputs(self, looked=False):
        if not self.fused(): return
        a = self.a
        T = 232
        lo = self.newlab("hw"); ld = self.newlab("hd")
        a("s_cmp_lg_u32 s3, 0")
        a("s_cbranch_scc1 %s" % lo)
        if looked:
            self.check_line("s79", 254, 35)
        else:
            a("s_lshr_b32 s78, s6, 1")
            a("s_lshl_b32 s78, s78, 7")
            a("s_add_u32 s78, s78, %d" % WS_FH)
            self.poll_line("s78", 16, T, sleep=4)
        a("v_mov_b32 v%d, %d" % (T, LDS_HOK))
        a("v_mov_b32 v%d, 1" % (T + 1))
        a("ds_write_b32 v%d, v%d" % (T, T + 1))
        a("s_branch %s" % ld)
        a.lab(lo)
        self.lds_spin(LDS_HOK, T)
        a.lab(ld)

    def s_final(self):
        a = self.a
        n = self.name
        l = self.newlab("fin")
        a("s_cmp_lg_u32 s3, 7")
        a("s_cbranch_scc1 %s" % l)
        if self.fused(): self.lds_spin(LDS_GOK, 2, 4)
        self.y_wait_inputs()
        a("v_mbcnt_lo_u32_b32 v0, -1, 0")
        a("v_mbcnt_hi_u32_b32 v0, -1, v0")
        a("v_lshrrev_b32 v1, 3, v0")
        a("v_mul_u32_u24 v1, %d, v1" % ROWS)
        a("v_and_b32 v2, 7, v0")
        a("v_lshl_add_u32 v1, v2, 4, v1")
        a("s_mul_i32 s67, s7, %d" % (80 * ROWS))
        a("s_lshl_b32 s68, s6, 7")
        a("s_add_u32 s67, s67, s68")
        a("s_add_u32 s67, s67, %d" % WS_Y)
        for i in range(10):
            a("buffer_load_dwordx4 v[%d:%d], v1, s[20:23], s67 offen sc1" % (8 + 4 * i, 11 + 4 * i))
            if i < 9: a("s_add_u32 s67, s67, %d" % (8 * ROWS))
        a("s_lshl_b32 s67, s6, 8")
        a("s_add_u32 s67, s67, %d" % WS_G)
        a("v_lshlrev_b32 v3, 2, v0")
        a("buffer_load_dword v4, v3, s[20:23], s67 offen sc1")
        a("v_lshlrev_b32 v2, 4, v0")
        a("v_add_u32 v2, %d, v2" % LDS_YT)
        a("v_add_u32 v3, %d, v3" % LDS_GT)
        a("s_waitcnt vmcnt(0)")
        for i in range(10):
            a("ds_write_b128 v2, v[%d:%d] offset:%d" % (8 + 4 * i, 11 + 4 * i, 1024 * i))
        a("ds_write_b32 v3, v4")
        a("s_waitcnt lgkmcnt(0)")
        a("s_barrier")
        if self.fused(): self.nonce_update()
        a("s_branch %s_fd" % l)
        a.lab(l)
        a("s_barrier")
        a.lab("%s_fd" % l)

    def y_wait_inputs(self):
        if not self.fused(): return
        a = self.a
        a("v_mbcnt_lo_u32_b32 v0, -1, 0")
        a("v_mbcnt_hi_u32_b32 v0, -1, v0")
        a("s_mul_i32 s67, s7, 320")
        a("s_add_u32 s67, s67, %d" % WS_FY)
        a("v_lshl_add_u32 v1, v0, 2, s67")
        a("v_add_u32 v2, 256, v1")
        a("s_lshl_b32 s68, s6, 5")
        a("s_add_u32 s68, s68, %d" % (WS_FG - 64))
        a("v_lshl_add_u32 v3, v0, 2, s68")
        a("v_cmp_le_u32 vcc, 16, v0")
        a("s_nop 1")
        a("v_cndmask_b32 v2, v2, v3, vcc")
        a("v_subrev_u32 v3, 24, v0")
        a("v_lshlrev_b32 v3, 10, v3")
        a("s_lshl_b32 s68, s2, 2")
        a("s_add_u32 s68, s68, %d" % WS_FY)
        a("v_add_u32 v3, s68, v3")
        a("v_cmp_le_u32 vcc, 24, v0")
        a("s_nop 1")
        a("v_cndmask_b32 v2, v2, v3, vcc")
        a("s_cmp_lt_u32 s2, 128")
        a("s_cselect_b32 s68, 27, 26")
        a("v_mov_b32 v3, s67")
        a("v_cmp_le_u32 vcc, s68, v0")
        a("s_nop 1")
        a("v_cndmask_b32 v2, v2, v3, vcc")
        def loads():
            a("buffer_load_dword v4, v1, s[20:23], 0 offen sc1")
            a("buffer_load_dword v5, v2, s[20:23], 0 offen sc1")
        self.poll(loads, [4, 5], 6, sleep=8)

    def fused(self): return "fused" in self.ph

    def nonce_load(self):
        a = self.a
        a("v_mov_b32 v1, 0")
        a("s_mov_b32 s67, %d" % WS_NON)
        a("buffer_load_dword v242, v1, s[20:23], s67 offen sc1")
    def nonce_publish_local(self):
        a = self.a
        a("v_add_u32 v242, 1, v242")
        a("v_mov_b32 v1, %d" % LDS_NONCE)
        a("ds_write_b32 v1, v242")
        a("v_readfirstlane_b32 s64, v242")
    def nonce_update(self):
        a = self.a
        l = self.newlab("nu")
        a("s_cmp_lg_u32 s2, 0")
        a("s_cbranch_scc1 %s" % l)
        a("v_mbcnt_lo_u32_b32 v2, -1, 0")
        a("v_mbcnt_hi_u32_b32 v2, -1, v2")
        a("v_lshlrev_b32 v2, 4, v2")
        a("s_mov_b32 s78, %d" % WS_FG)
        self.poll(lambda: a("buffer_load_dwordx4 v[4:7], v2, s[20:23], s78 offen sc1"), [4, 5, 6, 7], 2, sleep=8)
        a("s_mov_b32 s69, %d" % WS_NON)
        self.flag_set("s69", 2)
        a.lab(l)

    def nonce_read(self, vt):
        a = self.a
        a("v_mov_b32 v%d, %d" % (vt, LDS_NONCE))
        a("ds_read_b32 v%d, v%d" % (vt, vt))
        a("s_waitcnt lgkmcnt(0)")
        a("v_readfirstlane_b32 s64, v%d" % vt)

    def flag_set(self, soff_reg, vt):
        a = self.a
        a("v_mov_b32 v%d, s64" % vt)
        a("v_mov_b32 v%d, 0" % (vt + 1))
        a("s_mov_b64 exec, 1")
        a("buffer_store_dword v%d, v%d, s[20:23], %s offen sc1" % (vt, vt + 1, soff_reg))
        a("s_mov_b64 exec, -1")

    def poll(self, loads, vregs, vt, sleep=8):
        a = self.a
        lp = self.newlab("pl"); ld = self.newlab("pd")
        a("s_mov_b32 s69, 0")
        a.lab(lp)
        loads()
        a("s_waitcnt vmcnt(0)")
        for i, r in enumerate(vregs):
            if i == 0: a("v_cmp_eq_u32 vcc, s64, v%d" % r)
            else:
                a("v_cmp_eq_u32 s[76:77], s64, v%d" % r)
                a("s_nop 1")
                a("s_and_b64 vcc, vcc, s[76:77]")
        a("s_nop 1")
        a("s_cmp_eq_u64 vcc, -1")
        a("s_cbranch_scc1 %s" % ld)
        a("s_add_u32 s69, s69, 1")
        a("s_cmp_lt_u32 s69, 0x40000")
        a("s_cbranch_scc0 %s" % ld)
        a("s_sleep %d" % sleep)
        a("s_branch %s" % lp)
        a.lab(ld)

    def look_line(self, soff, nflags, vt):
        a = self.a
        a("v_mbcnt_lo_u32_b32 v%d, -1, 0" % vt)
        a("v_mbcnt_hi_u32_b32 v%d, -1, v%d" % (vt, vt))
        a("v_cmp_gt_u32 vcc, %d, v%d" % (nflags, vt))
        a("v_lshlrev_b32 v%d, 2, v%d" % (vt, vt))
        a("s_nop 0")
        a("v_cndmask_b32 v%d, 0, v%d, vcc" % (vt, vt))
        a("buffer_load_dword v%d, v%d, s[20:23], %s offen sc1" % (vt + 1, vt, soff))

    def check_line(self, soff, vt, nyounger, sleep=2):
        a = self.a
        l = self.newlab("ck")
        a("s_waitcnt vmcnt(%d)" % nyounger)
        a("v_cmp_eq_u32 vcc, s64, v%d" % (vt + 1))
        a("s_nop 1")
        a("s_cmp_eq_u64 vcc, -1")
        a("s_cbranch_scc1 %s" % l)
        self.poll(lambda: a("buffer_load_dword v%d, v%d, s[20:23], %s offen sc1" % (vt + 1, vt, soff)), [vt + 1], vt, sleep)
        a.lab(l)

    def poll_line(self, soff, nflags, vt, sleep=8):
        a = self.a
        a("v_mbcnt_lo_u32_b32 v%d, -1, 0" % vt)
        a("v_mbcnt_hi_u32_b32 v%d, -1, v%d" % (vt, vt))
        a("v_cmp_gt_u32 vcc, %d, v%d" % (nflags, vt))
        a("v_lshlrev_b32 v%d, 2, v%d" % (vt, vt))
        a("s_nop 0")
        a("v_cndmask_b32 v%d, 0, v%d, vcc" % (vt, vt))
        self.poll(lambda: a("buffer_load_dword v%d, v%d, s[20:23], %s offen sc1" % (vt + 1, vt, soff)), [vt + 1], vt, sleep)

    def build(self):
        a = self.a
        n = self.name
        a.l.append(".globl %s" % n)
        a.l.append(".p2align 8")
        a.l.append(".type %s,@function" % n)
        a.l.append("%s:" % n)
        self.prologue()
        a("s_cmp_ge_u32 s3, 4")
        a("s_cbranch_scc1 %s_S" % n)
        if "g1" in self.ph:
            self.g_gemm1()
        if "g2" in self.ph:
            self.g_gemm2()
        self.dbgtime_end()
        self.stamp_flush()
        a("s_endpgm")
        a.lab("%s_S" % n)
        if "g1" in self.ph:
            self.s_phase1()
        if "ssm" in self.ph:
            self.s_ssm()
        if "g2" in self.ph:
            self.s_final()
        self.stamp_flush()
        a.lab("%s_end" % n)
        a("s_endpgm")
        return a.text()

def kd(name):
    return """.amdhsa_kernel %s
  .amdhsa_next_free_vgpr 256
  .amdhsa_next_free_sgpr 102
  .amdhsa_accum_offset 256
  .amdhsa_group_segment_fixed_size 0
  .amdhsa_kernarg_size 136
  .amdhsa_user_sgpr_count 2
  .amdhsa_user_sgpr_kernarg_segment_ptr 1
  .amdhsa_system_sgpr_workgroup_id_x 1
.end_amdhsa_kernel
""" % name

HEADER = open("gated_mix__ssm_conv_s4__swiglu_ffn__prompt.s.ref").read().split("; Override launch")[0]

def emit(kernels, path):
    txt = HEADER
    if len(kernels) == 1:
        txt += "; @launch grid=(256,1,1) block=(512,1,1) lds=%d\n" % LDS_TOTAL
    else:
        for (n, p, s) in kernels:
            txt += "; @launch kernel=%s grid=(256,1,1) block=(512,1,1) lds=%d\n" % (n, LDS_TOTAL)
    txt += '.amdgcn_target "amdgcn-amd-amdhsa--gfx950"\n.text\n'
    for (n, p, s) in kernels:
        txt += Gen(n, p, s).build()
    txt += '.section .rodata,"a"\n'
    for (n, p, s) in kernels:
        txt += ".p2align 6\n" + kd(n)
    open(path, "w").write(txt)

if __name__ == "__main__":
    mode = sys.argv[1]; path = sys.argv[2]
    stamps = len(sys.argv) > 3 and sys.argv[3] == "stamps"
    if mode.startswith("g1+") or mode == "g1":
        emit([(KNAME, set(mode.split("+")), stamps)], path)
    elif mode == "g1,ssm":
        emit([("ka_kernel", {"g1"}, False), ("kb_kernel", {"ssm", "dumpk"}, stamps)], path)
    elif mode == "3k":
        emit([("ka_kernel", {"g1"}, False), ("kb_kernel", {"ssm"}, False), ("kc_kernel", {"g2"}, stamps)], path)
    elif mode == "3k+1":
        emit([("ka_kernel", {"g1"}, False), ("kb_kernel", {"ssm"}, False), ("kc_kernel", {"g2"}, stamps), ("kd_kernel", set(), False)], path)
    elif mode == "3k+3":
        emit([("ka_kernel", {"g1"}, False), ("kb_kernel", {"ssm"}, False), ("kc_kernel", {"g2"}, stamps), ("kd_kernel", set(), False), ("ke_kernel", set(), False), ("kf_kernel", set(), False)], path)
    elif mode == "3k_dbg":
        emit([("ka_kernel", {"g1", "dbgtime"}, False), ("kb_kernel", {"ssm"}, False), ("kc_kernel", {"g2", "dbgtime"}, False)], path)
    elif mode == "fused":
        emit([(KNAME, {"g1", "ssm", "g2", "fused"}, stamps)], path)
    elif mode == "fused_notouch":
        emit([(KNAME, {"g1", "ssm", "g2", "fused", "notouch"}, stamps)], path)
    elif mode == "fused_pk":
        emit([(KNAME, {"g1", "ssm", "g2", "fused", "pkhead"}, stamps)], path)
    elif mode.startswith("F:"):
        emit([(KNAME, {"g1", "ssm", "g2", "fused"} | set(mode[2:].split("+")), stamps)], path)
    elif mode == "fused_dbg":
        emit([(KNAME, {"g1", "ssm", "g2", "fused", "dbgtime"}, stamps)], path)
    elif mode == "g1,ssm,nodump":
        emit([("ka_kernel", {"g1"}, False), ("kb_kernel", {"ssm"}, stamps)], path)
```

```python
import sys, math

KNAME = "gated_mix__ssm_conv_s4__swiglu_ffn__prompt_kernel"

WS_H    = 0x000000
WS_WD   = 0x600000
ROWS    = 4224
WS_UT   = 0x800000
WS_Y    = 0xB00000
WS_G    = 0xE00000
WS_FU   = 0xE10000
WS_FW   = 0xE15000
WS_FH   = 0xE11000
WS_FY   = 0xE12000
WS_NON  = 0xE13000
WS_FG   = 0xE14000
WS_TS   = 0xF00000
WS_DBG  = 0x1000000

STAGE   = 40960
ST_WG   = 16384
ST_WU   = 28672
LDS_S   = 3 * STAGE
TABROW  = 272
TABTILE = 16 * TABROW
TAB_SZ  = 2 * TABTILE
LDS_TAB = LDS_S
KR_SZ   = 4224
LDS_KR  = LDS_TAB + 3 * TAB_SZ
LDS_MISC = LDS_KR + 3 * KR_SZ
LDS_TOTAL = 163840
LDS_NONCE = LDS_MISC
LDS_CNT   = LDS_MISC + 8
UC_STRIDE = 4640
UC_SZ   = 4 * UC_STRIDE
LDS_UC  = 0
LDS_WDS_EARLY = 148992
LDS_RED = 57344
LDS_YT  = LDS_TAB
LDS_GT  = LDS_MISC + 64
LDS_HOK = LDS_MISC + 12
LDS_WOK = LDS_MISC + 16
LDS_UOK = LDS_MISC + 20
LDS_GOK = LDS_MISC + 24
LDS_UCOK = LDS_MISC + 28
LDS_SFREE = LDS_MISC + 32

class Asm:
    def __init__(self):
        self.l = []
    def __call__(self, s):
        for x in s.split("\n"):
            x = x.strip()
            if x: self.l.append("    " + x)
    def lab(self, s):
        self.l.append(s + ":")
    def ext(self, lst):
        for x in lst: self(x)
    def text(self):
        return "\n".join(self.l) + "\n"

def interleave(main, fill, start=0, span=None):
    out = []
    m = len(fill)
    n = len(main) if span is None else min(len(main), start + span)
    j = 0
    for i, x in enumerate(main):
        out.append(x)
        if i >= start:
            tgt = (m * (i - start + 1) + (n - start) - 1) // (n - start) if n > start else m
            while j < min(tgt, m):
                f = fill[j]
                if isinstance(f, tuple): out.extend(f)
                else: out.append(f)
                j += 1
    while j < m:
        f = fill[j]
        if isinstance(f, tuple): out.extend(f)
        else: out.append(f)
        j += 1
    return out

def flat(L):
    o = []
    for x in L:
        if isinstance(x, tuple): o.extend(x)
        else: o.append(x)
    return o

def vr(a, n=1):
    return "v%d" % a if n == 1 else "v[%d:%d]" % (a, a + n - 1)
def sr(a, n=1):
    return "s%d" % a if n == 1 else "s[%d:%d]" % (a, a + n - 1)

S_W, S_WAVE, S_M, S_N, S_M2, S_N2 = 2, 3, 4, 5, 6, 7
SRD_X, SRD_WG, SRD_WU, SRD_WS, SRD_OUT, SRD_WD = 8, 12, 16, 20, 24, 28
P_U, P_ARE, P_AIM, P_BRE, P_BIM, P_CRE, P_CIM, P_LDT = 32, 34, 36, 38, 40, 42, 44, 46
P_DSK, P_BX, P_WG, P_WU, P_WD, P_GW, P_OUT, P_DBG, P_WS = 48, 50, 52, 54, 56, 58, 60, 62, 64
S_TS = 80

class Gen:
    def __init__(self, name, phases, stamps=False):
        self.name = name
        self.ph = phases
        self.a = Asm()
        self.stamps = stamps
        self.nlab = 0
    def newlab(self, p):
        self.nlab += 1
        return "L_%s_%s_%d" % (self.name[:6], p, self.nlab)

    def capture(self, fn):
        old = self.a
        self.a = Asm()
        fn()
        lst = [x.strip() for x in self.a.l]
        self.a = old
        return lst

    def clk(self, i):
        if "clk" in self.ph and self.stamps:
            self.a("s_memrealtime s[%d:%d]" % (S_TS + 2 * i, S_TS + 2 * i + 1))
            self.a("s_memtime s[%d:%d]" % (S_TS + 2 * i + 2, S_TS + 2 * i + 3))
            self.a("s_waitcnt lgkmcnt(0)")

    def stamp(self, i, force=False):
        if "clk" in self.ph and i != 0: return
        if ("kstamps" in self.ph or "k2stamps" in self.ph or "ststamps" in self.ph) and not force and i != 0: return
        if self.stamps:
            self.a("%s s[%d:%d]" % ("s_memrealtime" if "rt" in self.ph else "s_memtime", S_TS + 2 * i, S_TS + 2 * i + 1))
            self.a("s_waitcnt lgkmcnt(0)")
    def stamp_flush(self):
        if not self.stamps: return
        a = self.a
        a("s_lshl_b32 s66, s2, 3")
        a("s_add_u32 s66, s66, s3")
        a("s_lshl_b32 s66, s66, 7")
        a("s_add_u32 s66, s66, 0x%x" % WS_TS)
        a("v_mov_b32 v250, 0")
        for i in range(10):
            a("v_mov_b32 v252, s%d" % (S_TS + 2 * i))
            a("v_mov_b32 v253, s%d" % (S_TS + 2 * i + 1))
            a("buffer_store_dwordx2 v[252:253], v250, s[20:23], s66 offen offset:%d" % (8 * i))
            a("s_nop 1")
        a("s_waitcnt vmcnt(0)")

    def prologue(self):
        a = self.a
        a("s_cmp_ge_u32 s2, 256")
        a("s_cbranch_scc1 %s_end" % self.name)
        a("s_load_dwordx16 s[32:47], s[0:1], 0")
        a("s_load_dwordx16 s[48:63], s[0:1], 64")
        a("s_load_dwordx2 s[64:65], s[0:1], 128")
        if "warmc0" in self.ph: self.warm_code(early=True)
        a("v_lshrrev_b32 v1, 6, v0")
        a("v_and_b32 v0, 63, v0")
        a("v_readfirstlane_b32 s3, v1")
        a("s_and_b32 s66, s2, 7")
        a("s_lshr_b32 s67, s2, 3")
        a("s_and_b32 s68, s67, 7")
        a("s_lshr_b32 s69, s67, 3")
        a("s_and_b32 s70, s66, 1")
        a("s_lshl_b32 s70, s70, 3")
        a("s_or_b32 s4, s70, s68")
        a("s_lshr_b32 s70, s66, 1")
        a("s_lshl_b32 s70, s70, 2")
        a("s_or_b32 s5, s70, s69")
        a("s_and_b32 s70, s66, 3")
        a("s_lshl_b32 s70, s70, 3")
        a("s_or_b32 s6, s70, s68")
        a("s_lshr_b32 s70, s66, 2")
        a("s_lshl_b32 s70, s70, 2")
        a("s_or_b32 s7, s70, s69")
        if "sametile" in self.ph:
            a("s_mov_b32 s4, 0"); a("s_mov_b32 s5, 0")
        if "samem" in self.ph:
            a("s_mov_b32 s4, 0")
        if "samen" in self.ph:
            a("s_mov_b32 s5, 0")
        if self.stamps:
            for i in range(10):
                a("s_mov_b64 s[%d:%d], 0" % (S_TS + 2 * i, S_TS + 2 * i + 1))
        a("s_waitcnt lgkmcnt(0)")
        def srd(base, ptr, size):
            a("s_mov_b32 s%d, s%d" % (base, ptr))
            a("s_and_b32 s%d, s%d, 0xffff" % (base + 1, ptr + 1))
            a("s_mov_b32 s%d, 0x%x" % (base + 2, size))
            a("s_mov_b32 s%d, 0x20000" % (base + 3))
        srd(SRD_X, P_U, 2048 * 640 * 2)
        srd(SRD_WG, P_WG, 640 * 1536 * 2)
        srd(SRD_WU, P_WU, 640 * 1536 * 2)
        srd(SRD_WS, P_WS, 0x10000000)
        srd(SRD_OUT, P_OUT, 2048 * 640 * 2)
        srd(SRD_WD, P_WD, 640 * 1536 * 2)
        self.stamp(0)
        if "dbgtime" in self.ph:
            a("s_memrealtime s[96:97]")
            a("s_memtime s[98:99]")
            a("s_mov_b64 s[100:101], s[62:63]")
            a("s_waitcnt lgkmcnt(0)")

    def dbgtime_end(self):
        a = self.a
        if "dbgtime" not in self.ph: return
        l = self.newlab("dbt")
        a("s_cmp_lg_u32 s2, 0"); a("s_cbranch_scc1 %s" % l)
        a("s_cmp_lg_u32 s3, 0"); a("s_cbranch_scc1 %s" % l)
        a("s_waitcnt vmcnt(0)")
        a("s_memrealtime s[92:93]")
        a("s_memtime s[94:95]")
        a("s_waitcnt lgkmcnt(0)")
        a("s_sub_u32 s92, s92, s96")
        a("s_sub_u32 s94, s94, s98")
        a("v_mov_b32 v250, 0")
        a("v_mov_b32 v252, s92")
        a("v_mov_b32 v253, s94")
        a("v_mov_b32 v254, s96")
        a("v_mov_b32 v255, 0x1234")
        a("global_store_dwordx4 v250, v[252:255], s[100:101]")
        a("s_waitcnt vmcnt(0)")
        a.lab(l)

    def rot_r(self, dst, tmp):
        a = self.a
        a("s_lshr_b32 %s, s5, 1" % dst)
        a("s_cmp_ge_u32 %s, 5" % dst)
        a("s_cselect_b32 %s, 1, 0" % tmp)
        a("s_cmp_ge_u32 %s, 1" % dst)
        a("s_addc_u32 %s, %s, %s" % (dst, dst, tmp))

    def g_gemm1(self):
        a = self.a
        ACC = 0; FP = 96; FQ = 136
        VXB = 176
        VWA = 182
        VL16 = 196
        T = 200
        accg = lambda ft, tt: ACC + (ft * 4 + tt) * 4
        accu = lambda ft, tt: ACC + 48 + (ft * 4 + tt) * 4
        LANE = 197
        a("v_mov_b32 v%d, v0" % LANE)
        a("s_and_b32 s67, s3, 1")
        a("s_lshr_b32 s68, s3, 1")
        VOX = 191
        a("v_lshrrev_b32 v%d, 3, v%d" % (T, LANE))
        a("s_lshl_b32 s69, s4, 7")
        a("s_lshl_b32 s70, s3, 5")
        a("s_add_u32 s69, s69, s70")
        a("v_add_u32 v%d, s69, v%d" % (T, T))
        a("s_movk_i32 s70, 1280")
        a("v_mul_lo_u32 v%d, v%d, s70" % (T, T))
        a("v_and_b32 v%d, 7, v%d" % (T + 1, LANE))
        a("v_lshrrev_b32 v%d, 4, v%d" % (T + 2, LANE))
        a("v_xor_b32 v%d, v%d, v%d" % (T + 3, T + 1, T + 2))
        a("v_xor_b32 v%d, 4, v%d" % (T + 4, T + 3))
        a("v_lshl_add_u32 v%d, v%d, 4, v%d" % (VOX, T + 3, T))
        a("v_lshl_add_u32 v%d, v%d, 4, v%d" % (VOX + 1, T + 4, T))
        a("s_lshl_b32 s75, s3, 12")
        VOW = 193
        a("s_lshl_b32 s69, s3, 4")
        a("s_mul_i32 s69, s69, 3072")
        a("s_mul_i32 s70, s5, 192")
        a("s_add_u32 s69, s69, s70")
        a("s_mov_b32 s70, 43691")
        a("s_movk_i32 s71, 3072")
        for i in range(3):
            a("v_add_u32 v%d, %d, v%d" % (T, 64 * i, LANE))
            a("v_mul_lo_u32 v%d, v%d, s70" % (T + 1, T))
            a("v_lshrrev_b32 v%d, 19, v%d" % (T + 1, T + 1))
            a("v_mul_u32_u24 v%d, 12, v%d" % (T + 2, T + 1))
            a("v_sub_u32 v%d, v%d, v%d" % (T + 2, T, T + 2))
            a("v_lshrrev_b32 v%d, 2, v%d" % (T + 3, T + 1))
            a("v_and_b32 v%d, 2, v%d" % (T + 3, T + 3))
            a("v_xor_b32 v%d, v%d, v%d" % (T + 2, T + 2, T + 3))
            a("v_mul_lo_u32 v%d, v%d, s71" % (T + 1, T + 1))
            a("v_lshl_add_u32 v%d, v%d, 4, v%d" % (T + 1, T + 2, T + 1))
            a("v_add_u32 v%d, s69, v%d" % (T + 1, T + 1))
            a("v_subrev_u32 v%d, %d, v%d" % (VOW + i, 1024 * i, T + 1))
        a("s_mul_i32 s76, s3, 3072")
        a("s_add_u32 s77, s76, %d" % ST_WU)
        a("s_add_u32 s76, s76, %d" % ST_WG)
        self.rot_r("s74", "s72")
        def xdma(st):
            base = (st % 3) * STAGE
            L = []
            for i in range(4):
                if i == 0:
                    L.append(("s_lshl_b32 s72, s74, 7", "s_mul_i32 s73, s74, 196608", "s_add_u32 s74, s74, 1",
                              "s_add_u32 m0, s75, %d" % base, "s_cmp_eq_u32 s74, 10", "s_cselect_b32 s74, 0, s74",
                              "buffer_load_dwordx4 v%d, s[8:11], s72 offen lds" % VOX))
                else:
                    L.append(("s_add_u32 s70, s72, %d" % (9216 * i),
                              "buffer_load_dwordx4 v%d, s[8:11], s70 offen offset:%d lds" % (VOX + (i & 1), 1024 * i)))
            for mat, sm, srd in (() if "s3w" in self.ph else ((0, 76, "s[12:15]"), (1, 77, "s[16:19]"))):
                for i in range(3):
                    ld = "buffer_load_dwordx4 v%d, %s, s73 offen offset:%d lds" % (VOW + i, srd, 1024 * i)
                    if mat == 1 and "nowu" in self.ph: ld = "s_nop 0"
                    if i == 2 and "now2" in self.ph: ld = "s_nop 0"
                    if i == 0: L.append(("s_add_u32 m0, s%d, %d" % (sm, base), "s_nop 0", ld))
                    else: L.append(ld)
            return L
        if "ststamps" in self.ph: self.stamp(1, force=True)
        a.ext(flat(xdma(0)))
        if "late1" not in self.ph: a.ext(flat(xdma(1)))
        if "ststamps" in self.ph: self.stamp(2, force=True)
        if "nobpre" not in self.ph: a("s_barrier")
        a("v_and_b32 v%d, 15, v%d" % (T, LANE))
        a("v_lshrrev_b32 v%d, 4, v%d" % (T + 1, LANE))
        a("s_lshl_b32 s69, s67, 6")
        a("v_add_u32 v%d, s69, v%d" % (T + 2, T))
        a("v_lshlrev_b32 v%d, 7, v%d" % (T + 2, T + 2))
        a("v_lshrrev_b32 v%d, 1, v%d" % (T + 3, T))
        a("v_and_b32 v%d, 7, v%d" % (T + 3, T + 3))
        a("v_xor_b32 v%d, v%d, v%d" % (T + 3, T + 3, T + 1))
        a("v_xor_b32 v%d, 4, v%d" % (T + 4, T + 3))
        a("v_lshl_add_u32 v%d, v%d, 4, v%d" % (VXB, T + 3, T + 2))
        a("v_lshl_add_u32 v%d, v%d, 4, v%d" % (VXB + 1, T + 4, T + 2))
        for st in (1, 2):
            for s in range(2):
                a("v_add_u32 v%d, %d, v%d" % (VXB + 2 * st + s, st * STAGE, VXB + s))
        a("v_lshrrev_b32 v%d, 2, v%d" % (T + 2, T))
        a("v_lshl_add_u32 v%d, v%d, 3, v%d" % (T + 2, T + 1, T + 2))
        a("v_mul_u32_u24 v%d, 192, v%d" % (T + 2, T + 2))
        a("v_and_b32 v%d, 3, v%d" % (T + 3, LANE))
        a("v_lshl_add_u32 v%d, v%d, 3, v%d" % (T + 2, T + 3, T + 2))
        a("v_add_u32 v%d, %d, v%d" % (T + 2, ST_WG, T + 2))
        a("v_and_b32 v%d, 1, v%d" % (T + 3, T + 1))
        a("s_lshl_b32 s69, s68, 2")
        a("s_add_u32 s78, s69, 1")
        a("s_add_u32 s79, s68, 2")
        for ft, sreg in ((0, 69), (1, 78), (2, 79)):
            a("v_xor_b32 v%d, s%d, v%d" % (T + 4, sreg, T + 3))
            a("v_lshl_add_u32 v%d, v%d, 5, v%d" % (VWA + ft, T + 4, T + 2))
        for st in (1, 2):
            for ft in range(3):
                a("v_add_u32 v%d, %d, v%d" % (VWA + 3 * st + ft, st * STAGE, VWA + ft))
        a("v_lshlrev_b32 v%d, 4, v%d" % (VL16, LANE))
        a("s_lshl_b32 s69, s4, 1")
        a("s_add_u32 s69, s69, s67")
        a("s_mul_i32 s69, s69, 48")
        a("s_mul_i32 s78, s5, 3")
        a("s_add_u32 s69, s69, s78")
        a("s_lshl_b32 s78, s68, 1")
        a("s_add_u32 s78, s78, s69")
        a("s_lshl_b32 s78, s78, 12")
        a("s_add_u32 s79, s69, 1")
        a("s_lshl_b32 s79, s79, 12")
        a("s_lshl_b32 s69, s68, 9")
        a("s_add_u32 s79, s79, s69")
        a("v_lshlrev_b32 v%d, 3, v%d" % (VL16 + 2, LANE))
        if WS_H:
            a("s_add_u32 s78, s78, %d" % WS_H); a("s_add_u32 s79, s79, %d" % WS_H)

        def reads(kk, s, F):
            st = kk % 3
            xs = ["ds_read_b128 v[%d:%d], v%d offset:%d" % (F + 4 * tt, F + 4 * tt + 3, VXB + 2 * st + s, 2048 * tt) for tt in range(4)]
            ws = []
            for mat in range(2):
                for ft in range(3):
                    r = F + 16 + (mat * 3 + ft) * 4
                    for h in range(2):
                        ws.append("ds_read_b64_tr_b16 v[%d:%d], v%d offset:%d" % (r + 2 * h, r + 2 * h + 1, VWA + 3 * st + ft, 12288 * mat + 6144 * s + 768 * h))
            order = [xs[0], ws[0], ws[1], xs[1], ws[6], ws[7], xs[2], xs[3]] + ws[2:6] + ws[8:]
            return order
        def mfmas(F, first):
            L = []
            for ft in range(3):
                for mat in range(2):
                    for tt in range(4):
                        acc = accg(ft, tt) if mat == 0 else accu(ft, tt)
                        A = F + 16 + (mat * 3 + ft) * 4
                        B = F + 4 * tt
                        c = "0" if first else "v[%d:%d]" % (acc, acc + 3)
                        L.append("v_mfma_f32_16x16x32_bf16 v[%d:%d], v[%d:%d], v[%d:%d], %s" % (acc, acc + 3, A, A + 3, B, B + 3, c))
            return L
        def spread(mm, d, first, step):
            out = []; cnt = 0; di = 0
            for x in mm:
                out.append(x)
                if x.startswith("v_mfma"):
                    cnt += 1
                    if cnt >= first and (cnt - first) % step == 0 and di < len(d):
                        f = d[di]; di += 1
                        out.extend(f if isinstance(f, tuple) else (f,))
            assert di == len(d), (di, len(d))
            return out
        self.stamp(5)
        ND = 4 if "s3w" in self.ph else (7 if "nowu" in self.ph else (8 if "now2" in self.ph else 10))
        a("s_waitcnt vmcnt(%d)" % (0 if "late1" in self.ph else ND))
        if "ststamps" in self.ph: self.stamp(3, force=True)
        a("s_barrier")
        if "ststamps" in self.ph: self.stamp(4, force=True)
        if "late1" in self.ph: a.ext(flat(xdma(1)))
        self.stamp(1)
        self.clk(1)
        a.ext(reads(0, 0, FP))
        a("s_waitcnt lgkmcnt(0)")
        pend = xdma(2)
        for kk in range(10):
            mm = interleave(mfmas(FP, kk == 0), reads(kk, 1, FQ), span=16)
            if pend: mm = spread(mm, pend, 2, (10 if len(pend) <= 2 else 5) if len(pend) <= 5 else 2)
            a.ext(mm)
            if kk <= 7: a("s_waitcnt vmcnt(%d) lgkmcnt(0)" % ND)
            elif kk == 8: a("s_waitcnt vmcnt(0) lgkmcnt(0)")
            else: a("s_waitcnt lgkmcnt(0)")
            if kk == 9 and self.fused(): self.lds_inc(LDS_SFREE, T)
            else: a("s_barrier")
            if "kstamps" in self.ph and kk < 9: self.stamp(kk + 1, force=True)
            if "ststamps" in self.ph and kk < 5: self.stamp(kk + 5, force=True)
            fill = reads(kk + 1, 0, FP) if kk + 1 < 10 else []
            mm = interleave(mfmas(FQ, False), fill, span=16)
            d = xdma(kk + 3) if kk + 3 < 10 else []
            if "dmaB" in self.ph:
                pend = []
                if d: mm = spread(mm, d, 2, 2)
            elif "dma73" in self.ph:
                pend = d[7:]
                if d: mm = spread(mm, d[:7], 2, 3)
            elif "s3w" in self.ph:
                pend = d[2:]
                if d: mm = spread(mm, d[:2], 4, 10)
            else:
                pend = d[5:]
                if d: mm = spread(mm, d[:5], 2, 5)
            a.ext(mm)
            if kk + 1 < 10:
                a("s_waitcnt lgkmcnt(0)")
        self.stamp(2)
        self.clk(3)
        epb = "epb" in self.ph and "g2" in self.ph
        if epb: CN, ONE, OUTB, TMPB, TMPS = 200, 202, 116, 152, 8
        else: CN, ONE, OUTB, TMPB, TMPS = FP, FP + 2, FP + 8, FQ, 16
        E = []
        E.append("v_mov_b32 v%d, 0xbfb8aa3b" % CN)
        E.append("v_mov_b32 v%d, 0xbfb8aa3b" % (CN + 1))
        E.append("v_mov_b32 v%d, 1.0" % ONE)
        E.append("v_mov_b32 v%d, 1.0" % (ONE + 1))
        grp = 0
        def silu(gregs, uregs, tmp, out):
            n = len(gregs)
            L = []
            for i in range(n): L.append("v_pk_mul_f32 v[%d:%d], v[%d:%d], v[%d:%d]" % (tmp + 2 * i, tmp + 2 * i + 1, gregs[i], gregs[i] + 1, CN, CN + 1))
            for i in range(2 * n): L.append("v_exp_f32 v%d, v%d" % (tmp + i, tmp + i))
            for i in range(n): L.append("v_pk_mul_f32 v[%d:%d], v[%d:%d], v[%d:%d]" % (gregs[i], gregs[i] + 1, gregs[i], gregs[i] + 1, uregs[i], uregs[i] + 1))
            for i in range(n): L.append("v_pk_add_f32 v[%d:%d], v[%d:%d], v[%d:%d]" % (tmp + 2 * i, tmp + 2 * i + 1, tmp + 2 * i, tmp + 2 * i + 1, ONE, ONE + 1))
            for i in range(2 * n): L.append("v_rcp_f32 v%d, v%d" % (tmp + i, tmp + i))
            if n < 2: L.append("s_nop 0")
            for i in range(n): L.append("v_pk_mul_f32 v[%d:%d], v[%d:%d], v[%d:%d]" % (gregs[i], gregs[i] + 1, gregs[i], gregs[i] + 1, tmp + 2 * i, tmp + 2 * i + 1))
            for i in range(n): L.append("v_cvt_pk_bf16_f32 v%d, v%d, v%d" % (out + i, gregs[i], gregs[i] + 1))
            return L
        for tt in range(4):
            tmp = TMPB + (grp % 2) * TMPS; out = OUTB + (grp % 4) * 4; grp += 1
            g = [accg(0, tt), accg(0, tt) + 2, accg(1, tt), accg(1, tt) + 2]
            u = [accu(0, tt), accu(0, tt) + 2, accu(1, tt), accu(1, tt) + 2]
            E += silu(g, u, tmp, out)
            E.append("buffer_store_dwordx4 v[%d:%d], v%d, s[20:23], s78 offen offset:%d sc1" % (out, out + 3, VL16, 1024 * tt))
            tmp = TMPB + (grp % 2) * TMPS; out = OUTB + (grp % 4) * 4; grp += 1
            g = [accg(2, tt), accg(2, tt) + 2]
            u = [accu(2, tt), accu(2, tt) + 2]
            E += silu(g, u, tmp, out)
            E.append("buffer_store_dwordx2 v[%d:%d], v%d, s[20:23], s79 offen offset:%d sc1" % (out, out + 1, VL16 + 2, 1024 * tt))
        if epb:
            self.g2_setup()
            if self.fused(): self.lds_spin(LDS_WOK, 232, treg="s80x")
            regl, dmal = self.g2_burst_atoms()
            half = len(E) // 2
            a.ext(interleave(E[:half], regl, start=4))
            if self.fused(): self.lds_spin(LDS_SFREE, 232, 4, treg="s80x")
            a.ext(interleave(E[half:], dmal))
        else:
            a.ext(E)
        self.stamp(3)
        if "g2" not in self.ph:
            a("s_waitcnt vmcnt(0)")
            self.stamp(4)

    def g_signal_h(self, nyounger):
        a = self.a
        T = 232
        if nyounger is not None: a("s_waitcnt vmcnt(%d)" % nyounger)
        if self.fused():
            l = self.newlab("fh")
            a("v_mov_b32 v%d, %d" % (T, LDS_CNT))
            a("v_mov_b32 v%d, 1" % (T + 1))
            a("s_mov_b64 exec, 1")
            a("ds_add_rtn_u32 v%d, v%d, v%d" % (T + 2, T, T + 1))
            a("s_waitcnt lgkmcnt(0)")
            a("s_mov_b64 exec, -1")
            a("v_readfirstlane_b32 s69, v%d" % (T + 2))
            a("s_cmp_lg_u32 s69, 3")
            a("s_cbranch_scc1 %s" % l)
            a("s_lshl_b32 s69, s4, 5")
            a("s_add_u32 s69, s69, s5")
            a("s_lshl_b32 s69, s69, 2")
            a("s_add_u32 s69, s69, %d" % WS_FH)
            self.flag_set("s69", T)
            a.lab(l)
        self.stamp(4)

    def lds_inc(self, addr, vt):
        a = self.a
        a("v_mov_b32 v%d, %d" % (vt, addr))
        a("v_mov_b32 v%d, 1" % (vt + 1))
        a("s_mov_b64 exec, 1")
        a("ds_add_u32 v%d, v%d" % (vt, vt + 1))
        a("s_mov_b64 exec, -1")

    def lds_spin(self, addr, vt, val=1, treg=None):
        a = self.a
        st = "s78" if treg is None else "s68"
        lp = self.newlab("ls"); ld = self.newlab("ld")
        a("v_mov_b32 v%d, %d" % (vt, addr))
        a("s_mov_b32 s69, 0")
        a.lab(lp)
        a("ds_read_b32 v%d, v%d" % (vt + 1, vt))
        a("s_waitcnt lgkmcnt(0)")
        a("v_readfirstlane_b32 %s, v%d" % (st, vt + 1))
        a("s_cmp_eq_u32 %s, %d" % (st, val))
        a("s_cbranch_scc1 %s" % ld)
        a("s_add_u32 s69, s69, 1")
        a("s_cmp_lt_u32 s69, 0x400000")
        a("s_cbranch_scc0 %s" % ld)
        a("s_sleep 1")
        a("s_branch %s" % lp)
        a.lab(ld)

    def s_kgen_phase1(self):
        a = self.a
        NCH = 8
        chunks = [[] for _ in range(NCH)]
        if "ssm" in self.ph:
            a("s_lshl_b32 s50, s66, 8")
            a("s_add_u32 s50, s50, s2")
            a("s_min_u32 s50, s50, 639")
            self.kgen_bases()
            if "kghead" in self.ph:
                kg = self.capture(lambda: self.kgen("head"))
                if "bigI0" in self.ph:
                    first = min(len(kg), 230)
                    rest = kg[first:]
                    per = (len(rest) + NCH - 1) // NCH
                    chunk0 = kg[:first]
                    chunks = [rest[i * per:(i + 1) * per] for i in range(NCH)]
                else:
                    per = (len(kg) + NCH - 1) // NCH
                    chunks = [kg[i * per:(i + 1) * per] for i in range(NCH)]
        self.stamp(5)
        if "prioS" in self.ph: a("s_setprio 2")
        if "nobpre" not in self.ph: a("s_barrier")
        if "ssm" in self.ph and "kghead" in self.ph: self.ssm_param_loads(slots=((0, 1) if "kg2" in self.ph else (0,)))
        a("s_barrier")
        self.stamp(1)
        if "bigI0" in self.ph and "kghead" in self.ph:
            a("s_waitcnt vmcnt(0)")
            a.ext(chunk0)
        for kk in range(10):
            if not (kk == 9 and self.fused()): a("s_barrier")
            if kk == 1 and "kghead" in self.ph and "bigI0" not in self.ph: a("s_waitcnt vmcnt(0)")
            if kk == 7 and "ssm" in self.ph:
                if "kghead" in self.ph: self.ssm_param_loads(slots=((2,) if "kg2" in self.ph else (1, 2)), scalars=False)
                else: self.ssm_param_loads()
            if "bigI0" in self.ph:
                if kk < NCH: a.ext(chunks[kk])
            elif 1 <= kk <= NCH: a.ext(chunks[kk - 1])
        self.stamp(2)

    def side_setup(self):
        a = self.a
        a("s_mov_b32 s67, 52429")
        a("s_movk_i32 s68, 1280")
        for i in range(5):
            a("v_add_u32 v1, %d, v0" % (64 * i))
            a("v_mul_lo_u32 v2, v1, s67")
            a("v_lshrrev_b32 v2, 19, v2")
            a("v_mul_u32_u24 v3, 10, v2")
            a("v_sub_u32 v3, v1, v3")
            a("v_mul_lo_u32 v2, v2, s68")
            a("v_lshl_add_u32 v%d, v3, 4, v2" % (230 + i))
        a("v_lshrrev_b32 v1, 4, v0")
        a("v_and_b32 v2, 15, v0")
        a("v_lshrrev_b32 v3, 2, v2")
        a("v_lshl_add_u32 v4, v1, 2, v3")
        a("v_mul_u32_u24 v4, 160, v4")
        a("v_add_u32 v4, %d, v4" % (STAGE if "wdlate" in self.ph else LDS_WDS_EARLY))
        a("v_and_b32 v5, 3, v0")
        a("v_lshl_add_u32 v235, v5, 4, v4")
        a("v_lshl_add_u32 v236, v5, 3, v4")
        a("v_lshlrev_b32 v237, 4, v0")
        a("v_lshlrev_b32 v241, 2, v0")
        a("v_lshl_add_u32 v4, v1, 3, v3")
        a("v_lshlrev_b32 v4, 7, v4")
        a("v_bfe_u32 v5, v0, 1, 1")
        a("v_lshrrev_b32 v6, 1, v3")
        a("v_xor_b32 v5, v5, v6")
        a("v_lshl_add_u32 v4, v5, 4, v4")
        a("v_and_b32 v5, 1, v0")
        a("v_lshl_add_u32 v4, v5, 3, v4")
        a("v_and_b32 v5, 1, v1")
        a("v_lshl_add_u32 v238, v5, 6, v4")
        a("v_xor_b32 v5, 1, v5")
        a("v_lshl_add_u32 v239, v5, 6, v4")
        a("v_mul_u32_u24 v240, %d, v2" % ROWS)
        a("v_lshl_add_u32 v240, v1, 4, v240")
        a("s_add_u32 s51, s2, 128")
        a("s_cmp_ge_u32 s2, 128")
        a("s_cselect_b32 s51, s51, 999")
        a("s_lshr_b32 s52, s5, 1")
        a("s_add_u32 s53, s52, 8")
        a("s_cmp_lt_u32 s5, 4")
        a("s_cselect_b32 s53, s53, 99")
    def wd_load(self, ureg, scr):
        a = self.a
        if "nowd" in self.ph: return
        a("s_lshr_b32 s67, %s, 3" % ureg)
        a("s_and_b32 s68, %s, 7" % ureg)
        a("s_mul_i32 s69, s67, %d" % (32 * 1280))
        a("s_mul_i32 s67, s68, 160")
        a("s_add_u32 s69, s69, s67")
        for i in range(5):
            a("s_mov_b32 m0, %d" % ((STAGE if "wdlate" in self.ph else LDS_WDS_EARLY) + scr + 1024 * i))
            a("s_nop 0")
            a("buffer_load_dwordx4 v%d, s[28:31], s69 offen lds" % (230 + i))
    def wd_store(self, ureg, scr, R=160):
        a = self.a
        if "nowd" in self.ph: return
        for dt in range(5):
            for h in range(2):
                if dt < 4: ad, off = 235, 64 * (dt >> 1) + 8 * (dt & 1) + 2560 * h
                else: ad, off = 236, 128 + 2560 * h
                a("ds_read_b64_tr_b16 v[%d:%d], v%d offset:%d" % (R + 4 * dt + 2 * h, R + 1 + 4 * dt + 2 * h, ad, off + scr))
        a("s_lshr_b32 s67, %s, 3" % ureg)
        a("s_and_b32 s68, %s, 7" % ureg)
        a("s_mul_i32 s68, s68, 48")
        a("s_add_u32 s67, s67, s68")
        a("s_mul_i32 s67, s67, 5120")
        a("s_add_u32 s67, s67, %d" % WS_WD)
        a("s_add_u32 s68, s67, 4096")
        a("s_waitcnt lgkmcnt(0)")
        for dt in range(5):
            if dt < 4: a("buffer_store_dwordx4 v[%d:%d], v237, s[20:23], s67 offen offset:%d sc1" % (R + 4 * dt, R + 3 + 4 * dt, 1024 * dt))
            else: a("buffer_store_dwordx4 v[%d:%d], v237, s[20:23], s68 offen sc1" % (R + 4 * dt, R + 3 + 4 * dt))
    def gate_load(self):
        a = self.a
        a("v_and_b32 v1, 15, v0")
        a("v_lshlrev_b32 v1, 4, v1")
        for j in range(5):
            a("global_load_dwordx4 v[%d:%d], v1, s[%d:%d] offset:%d" % (8 + 4 * j, 11 + 4 * j, P_GW, P_GW + 1, 256 * j))
        a("v_lshrrev_b32 v2, 4, v0")
        a("s_movk_i32 s67, 1280")
        a("v_mul_lo_u32 v2, v2, s67")
        a("v_add_u32 v2, v2, v1")
        a("s_lshl_b32 s67, s2, 3")
        a("s_mul_i32 s67, s67, 1280")
        for half in range(2):
            for j in range(5):
                r = 28 + 20 * half + 4 * j
                a("buffer_load_dwordx4 v[%d:%d], v2, s[8:11], s67 offen offset:%d" % (r, r + 3, 256 * j))
            if half == 0: a("s_add_u32 s67, s67, %d" % (4 * 1280))
    def gate_compute(self):
        a = self.a
        R = 68
        for i in range(4): a("v_mov_b32 v%d, 0" % (R + i))
        for j in range(5):
            for e in range(4):
                for half in range(2):
                    acc = R + half + 2 * (e & 1)
                    a("v_dot2_f32_bf16 v%d, v%d, v%d, v%d" % (acc, 28 + 20 * half + 4 * j + e, 8 + 4 * j + e, acc))
        a("s_nop 2")
        a("v_add_f32 v%d, v%d, v%d" % (R, R, R + 2))
        a("v_add_f32 v%d, v%d, v%d" % (R + 1, R + 1, R + 3))
        a("s_nop 0")
        for ctl in ("row_shr:1", "row_shr:2", "row_shr:4", "row_shr:8"):
            for i in range(2):
                a("v_add_f32_dpp v%d, v%d, v%d %s row_mask:0xf bank_mask:0xf bound_ctrl:1" % (R + i, R + i, R + i, ctl))
            a("s_nop 0")
        for i in range(2): a("v_mul_f32 v%d, 0xbfb8aa3b, v%d" % (R + i, R + i))
        for i in range(2): a("v_exp_f32 v%d, v%d" % (R + i, R + i))
        a("s_nop 0")
        for i in range(2): a("v_add_f32 v%d, 1.0, v%d" % (R + i, R + i))
        for i in range(2): a("v_rcp_f32 v%d, v%d" % (R + i, R + i))
        a("s_lshl_b32 s67, s2, 5")
        a("s_add_u32 s67, s67, %d" % WS_G)
        a("v_lshrrev_b32 v1, 4, v0")
        a("v_lshlrev_b32 v1, 2, v1")
        a("s_mov_b32 exec_lo, 0x80008000")
        a("s_mov_b32 exec_hi, 0x80008000")
        a("buffer_store_dword v%d, v1, s[20:23], s67 offen sc1" % R)
        a("buffer_store_dword v%d, v1, s[20:23], s67 offen offset:16 sc1" % (R + 1))
        a("s_mov_b64 exec, -1")
    def ut_read(self, chunk_reg, stage_base, H):
        a = self.a
        if "noutr" in self.ph: return
        a("s_and_b32 s67, %s, 1" % chunk_reg)
        a("s_cmp_eq_u32 s67, 0")
        a("s_cselect_b64 vcc, -1, 0")
        a("s_nop 0")
        a("v_cndmask_b32 v4, v239, v238, vcc")
        a("v_add_u32 v4, %d, v4" % stage_base)
        for aa in range(2):
            for it in range(4):
                for hh in range(2):
                    r = H + (aa * 4 + it) * 4 + 2 * hh
                    a("ds_read_b64_tr_b16 v[%d:%d], v4 offset:%d" % (r, r + 1, 4096 * it + 512 * hh + 32 * (aa ^ hh)))
        a("s_waitcnt lgkmcnt(0)")
    def ut_store(self, chunk_reg, H):
        a = self.a
        if "nout" in self.ph: return
        a("s_mul_i32 s67, %s, %d" % (chunk_reg, 32 * ROWS))
        a("s_lshl_b32 s68, s4, 8")
        a("s_add_u32 s67, s67, s68")
        a("s_add_u32 s67, s67, %d" % WS_UT)
        a("s_add_u32 s68, s67, %d" % (16 * ROWS))
        for aa in range(2):
            for it in range(4):
                r = H + (aa * 4 + it) * 4
                a("buffer_store_dwordx4 v[%d:%d], v240, s[20:23], s%d offen offset:%d sc1" % (r, r + 3, 67 + aa, 64 * it))

    def pretouch(self):
        a = self.a
        a("v_and_b32 v1, 7, v0")
        a("v_lshlrev_b32 v1, 21, v1")
        a("buffer_load_dword v63, v1, s[20:23], 0 offen")
        a("v_and_b32 v1, 1, v0")
        a("v_lshlrev_b32 v1, 21, v1")
        a("buffer_load_dword v63, v1, s[24:27], 0 offen")
    def warm_inputs(self):
        a = self.a
        a("v_lshlrev_b32 v1, 7, v0")
        if "warmx" in self.ph:
            a("s_mul_i32 s67, s2, 10240")
            a("buffer_load_dword v244, v1, s[8:11], s67 offen")
            a("s_add_u32 s68, s67, 8192")
            a("s_mov_b32 exec_hi, 0")
            a("s_mov_b32 exec_lo, 0xffff")
            a("buffer_load_dword v244, v1, s[8:11], s68 offen")
            a("s_mov_b32 exec_lo, -1")
        a("s_mov_b32 exec_hi, 0x0fffffff")
        a("s_mul_i32 s67, s2, 7680")
        a("buffer_load_dword v244, v1, s[12:15], s67 offen")
        a("buffer_load_dword v244, v1, s[16:19], s67 offen")
        if "warm2" in self.ph:
            a("buffer_load_dword v244, v1, s[28:31], s67 offen")
        a("s_mov_b64 exec, -1")
        if "warm2" in self.ph:
            a("v_and_b32 v1, 7, v0")
            a("v_lshlrev_b32 v1, 7, v1")
            a("s_mul_i32 s67, s2, 960")
            a("v_add_u32 v1, s67, v1")
            a("v_min_u32 v1, %d, v1" % (245760 - 4))
            a("v_lshrrev_b32 v2, 3, v0")
            a("v_mov_b32 v4, s%d" % P_ARE); a("v_mov_b32 v5, s%d" % (P_ARE + 1))
            for k, p in enumerate((P_AIM, P_BRE, P_BIM, P_CRE, P_CIM)):
                a("v_cmp_eq_u32 vcc, %d, v2" % (k + 1))
                a("v_mov_b32 v6, s%d" % p); a("v_mov_b32 v7, s%d" % (p + 1))
                a("v_cndmask_b32 v4, v4, v6, vcc")
                a("v_cndmask_b32 v5, v5, v7, vcc")
            a("v_add_co_u32 v4, vcc, v4, v1")
            a("s_nop 1")
            a("v_addc_co_u32 v5, vcc, 0, v5, vcc")
            a("global_load_dword v244, v[4:5], off")

    def warm_code(self, early=False):
        a = self.a
        n = self.name
        l = self.newlab("pc"); l2 = self.newlab("pc")
        a("s_getpc_b64 s[68:69]")
        a.lab(l)
        a("s_sub_u32 s68, s68, %s-%s" % (l, n))
        a("s_subb_u32 s69, s69, 0")
        a("s_mov_b32 s67, (%s_end-%s+4095)/4096" % (n, n))
        a("s_lshr_b32 s70, s2, 3")
        a("s_mul_i32 s70, s70, s67")
        a("v_add_u32 v1, s70, v0")
        a("v_lshlrev_b32 v1, 7, v1")
        a("v_min_u32 v1, %s_end-%s, v1" % (n, n))
        a("v_cmp_gt_u32 vcc, s67, v0")
        a("s_and_saveexec_b64 s[70:71], vcc")
        a("s_cbranch_execz %s" % l2)
        a("global_load_dword v244, v1, s[68:69]")
        a.lab(l2)
        a("s_mov_b64 exec, s[70:71]")

    def smem_warm(self, part):
        a = self.a
        if part == 0:
            a("s_mul_i32 s67, s2, 7680")
            a("s_add_u32 s70, s%d, s67" % P_WD)
            a("s_addc_u32 s71, s%d, 0" % (P_WD + 1))
        for r in range(15 * part, 15 * part + 15):
            a("s_load_dword s74, s[70:71], %d" % (r * 128))

    def s3w_setup(self):
        a = self.a
        T = 1; VO = 245
        a("s_mul_i32 s69, s5, 192")
        a("s_mov_b32 s78, 43691")
        a("s_movk_i32 s79, 3072")
        for i in range(3):
            a("v_add_u32 v%d, %d, v0" % (T, 64 * i))
            a("v_mul_lo_u32 v%d, v%d, s78" % (T + 1, T))
            a("v_lshrrev_b32 v%d, 19, v%d" % (T + 1, T + 1))
            a("v_mul_u32_u24 v%d, 12, v%d" % (T + 2, T + 1))
            a("v_sub_u32 v%d, v%d, v%d" % (T + 2, T, T + 2))
            a("v_lshrrev_b32 v%d, 2, v%d" % (T + 3, T + 1))
            a("v_and_b32 v%d, 2, v%d" % (T + 3, T + 3))
            a("v_xor_b32 v%d, v%d, v%d" % (T + 2, T + 2, T + 3))
            a("v_mul_lo_u32 v%d, v%d, s79" % (T + 1, T + 1))
            a("v_lshl_add_u32 v%d, v%d, 4, v%d" % (T + 1, T + 2, T + 1))
            a("v_add_u32 v%d, s69, v%d" % (VO + i, T + 1))
        self.rot_r("s54", "s67")
    def s3w_younger0(self):
        n = 24 + (1 if self.fused() else 0)
        if "wdlate" not in self.ph: n += 5
        return n
    def s3w_dma(self, st):
        a = self.a
        VO = 245
        base = (st % 3) * STAGE
        a("s_mul_i32 s55, s54, 196608")
        a("s_add_u32 s54, s54, 1")
        a("s_cmp_eq_u32 s54, 10")
        a("s_cselect_b32 s54, 0, s54")
        for g4 in range(4):
            if g4: a("s_add_u32 s55, s55, 49152")
            for mat, srd in ((0, "s[12:15]"), (1, "s[16:19]")):
                for i in range(3):
                    a("s_mov_b32 m0, %d" % (base + (ST_WG if mat == 0 else ST_WU) + 3072 * g4 + 1024 * i))
                    a("s_nop 0")
                    a("buffer_load_dwordx4 v%d, %s, s55 offen lds" % (VO + i, srd))

    def s_side(self):
        a = self.a
        if "noside" in self.ph:
            for b in range(11 if self.fused() else 12): a("s_barrier")
            return
        HA, HB = 100, 132
        def cond_b(fn):
            l = self.newlab("wb")
            a("s_cmp_ge_u32 s51, 384")
            a("s_cbranch_scc1 %s" % l)
            fn()
            a.lab(l)
        if "warm0" in self.ph:
            self.warm_inputs()
            if "warmc" in self.ph: self.warm_code()
        s3w = "s3w" in self.ph
        if s3w:
            self.s3w_setup()
            self.s3w_dma(0)
            self.s3w_dma(1)
        self.side_setup()
        self.rot_r("s50", "s67")
        a("s_and_b32 s68, s5, 1")
        a("s_lshl_b32 s50, s50, 1")
        a("s_add_u32 s50, s50, s68")
        a("s_add_u32 s53, s50, 2")
        a("s_lshr_b32 s67, s5, 1")
        a("s_and_b32 s67, s67, 3")
        a("s_cmp_eq_u32 s67, 0")
        a("s_cselect_b32 s53, s53, 99")
        if self.fused():
            a("v_mov_b32 v1, %d" % LDS_CNT)
            a("v_mov_b32 v2, 0")
            a("v_mov_b32 v3, 0")
            a("ds_write_b64 v1, v[2:3]")
            a("ds_write_b64 v1, v[2:3] offset:8")
            a("ds_write_b64 v1, v[2:3] offset:16")
            a("ds_write_b32 v1, v2 offset:24")
        self.stamp(5)
        if "nobpre" not in self.ph: a("s_barrier")
        if self.fused(): self.nonce_load()
        wdlate = "wdlate" in self.ph
        if not wdlate:
            self.wd_load("s2", 0)
            cond_b(lambda: self.wd_load("s51", 5120))
        if "warm0" not in self.ph:
            if "warmc" in self.ph: self.warm_code()
            if ("warm" in self.ph or "warm2" in self.ph) and "warmB0" not in self.ph and not s3w: self.warm_inputs()
        if s3w: a("s_waitcnt vmcnt(%d)" % self.s3w_younger0())
        a("s_barrier")
        if s3w:
            self.s3w_dma(2)
            self.warm_inputs()
        if "warmB0" in self.ph: self.warm_inputs()
        self.stamp(1)
        self.ut_read("s50", 0, HA)
        def uflag(creg):
            a("s_lshl_b32 s69, %s, 5" % creg)
            a("s_add_u32 s69, s69, s4")
            a("s_lshl_b32 s69, s69, 2")
            a("s_add_u32 s69, s69, %d" % WS_FU)
            self.flag_set("s69", 2)
        def n_lt4(fn):
            l = self.newlab("ut")
            a("s_cmp_ge_u32 s53, 20")
            a("s_cbranch_scc1 %s" % l)
            fn()
            a.lab(l)
        def wflag(ureg):
            a("s_and_b32 s68, %s, 7" % ureg)
            a("s_lshl_b32 s68, s68, 8")
            a("s_lshr_b32 s69, %s, 3" % ureg)
            a("s_lshl_b32 s69, s69, 2")
            a("s_add_u32 s69, s69, s68")
            a("s_add_u32 s69, s69, %d" % WS_FW)
            self.flag_set("s69", 2)
        early = "utearly" in self.ph
        epb = "epb" in self.ph
        if early: self.ut_store("s50", HA)
        for kk in range(10):
            if s3w:
                if kk == 0: a("s_waitcnt vmcnt(26)")
                elif kk <= 7: a("s_waitcnt vmcnt(24)")
                elif kk == 8: a("s_waitcnt vmcnt(%d)" % (6 if (wdlate and self.fused()) else 0))
            if not (kk == 9 and self.fused()): a("s_barrier")
            if s3w and kk + 3 < 10 and kk not in (0, 1): self.s3w_dma(kk + 3)
            if kk == 0:
                n_lt4(lambda: self.ut_read("s53", 1 * STAGE, HB))
                if early: n_lt4(lambda: self.ut_store("s53", HB))
                if epb:
                    a("s_waitcnt vmcnt(%d)" % (8 if early else 0))
                    self.wd_store("s2", 0)
                    cond_b(lambda: self.wd_store("s51", 5120, 180))
            if kk == 1:
                if not early:
                    self.ut_store("s50", HA)
                    n_lt4(lambda: self.ut_store("s53", HB))
            if s3w and kk in (0, 1): self.s3w_dma(kk + 3)
            if kk == 3:
                a("s_waitcnt vmcnt(%d)" % (48 if s3w else 0))
                if self.fused():
                    self.nonce_publish_local()
                    uflag("s50")
                    n_lt4(lambda: uflag("s53"))
                    if epb:
                        wflag("s2")
                        cond_b(lambda: wflag("s51"))
            if "swarm" in self.ph and 2 <= kk <= 5:
                self.smem_warm(kk - 2)
            if kk == 7 and "s3prio" in self.ph: a("s_setprio 3")
            if kk == 7 and epb:
                if self.fused():
                    self.s3_uw_look()
                    a("s_lshl_b32 s78, s7, 8")
                    a("s_add_u32 s78, s78, %d" % WS_FW)
                    self.look_line("s78", 48, 94)
                self.gate_load()
            if kk == 7 and not wdlate and not epb:
                if self.fused(): self.s3_uw_look()
                self.wd_store("s2", 0)
                cond_b(lambda: self.wd_store("s51", 5120, 180))
                self.gate_load()
            if kk == 7 and wdlate:
                if "swarm" in self.ph: a("s_waitcnt lgkmcnt(0)")
                if self.fused(): self.s3_uw_look()
                self.wd_load("s2", 0)
                cond_b(lambda: self.wd_load("s51", 5120))
            if kk == 8:
                if self.fused():
                    l = self.newlab("uw")
                    if epb:
                        self.check_line("s78", 94, 15)
                        a("v_mov_b32 v1, %d" % LDS_WOK)
                        a("v_mov_b32 v2, 1")
                        a("ds_write_b32 v1, v2")
                    else:
                        a("s_waitcnt vmcnt(%d)" % (5 if wdlate else 20))
                    a("v_cmp_eq_u32 vcc, s64, v92")
                    a("s_nop 1")
                    a("s_cmp_eq_u64 vcc, -1")
                    a("s_cbranch_scc1 %s" % l)
                    self.poll(self.s3_uw_loads, [92], 6, sleep=2)
                    a.lab(l)
                    self.s3_u_loads()
                    a("v_mov_b32 v1, %d" % LDS_UOK)
                    a("v_mov_b32 v2, 3")
                    a("ds_write_b32 v1, v2")
                    if wdlate: a("s_waitcnt vmcnt(12)")
                elif wdlate:
                    a("s_waitcnt vmcnt(0)")
                if wdlate:
                    self.wd_store("s2", 0)
                    cond_b(lambda: self.wd_store("s51", 5120, 180))
                    self.gate_load()
        self.stamp(2)
        if self.fused():
            if "s3prio" not in self.ph: a("s_setprio 2")
            if epb:
                self.lds_spin(LDS_SFREE, 2, 4)
                a("s_waitcnt vmcnt(0)")
            else:
                if wdlate: a("s_waitcnt vmcnt(15)")
                else: a("s_waitcnt vmcnt(27)")
                wflag("s2")
                cond_b(lambda: wflag("s51"))
                self.lds_spin(LDS_SFREE, 2, 4)
                if not wdlate: a("s_waitcnt vmcnt(1)")
        self.stamp(3)
        if self.fused():
            self.s3_u_copies(extra=None)
            a("s_waitcnt lgkmcnt(0)")
            a("v_mov_b32 v1, %d" % LDS_UCOK)
            a("v_mov_b32 v2, 1")
            a("ds_write_b32 v1, v2")
            a("s_setprio 0")
            self.stamp(4)
            a("s_waitcnt vmcnt(0)")
            self.gate_compute()
            a("s_waitcnt vmcnt(0)")
            a("s_lshl_b32 s69, s2, 2")
            a("s_add_u32 s69, s69, %d" % WS_FG)
            self.flag_set("s69", 2)
        else:
            a("s_waitcnt vmcnt(0)")
            self.gate_compute()
            a("s_waitcnt vmcnt(0)")
            self.stamp(4)

    def s3_uw_addr(self):
        a = self.a
        a("v_lshrrev_b32 v1, 4, v0")
        a("v_lshlrev_b32 v1, 8, v1")
        a("v_add_u32 v1, s2, v1")
        a("v_mov_b32 v2, s2")
        a("v_cmp_gt_u32 vcc, 640, v1")
        a("s_nop 1")
        a("v_cndmask_b32 v1, v2, v1, vcc")
        a("v_lshrrev_b32 v1, 5, v1")
        a("v_lshlrev_b32 v1, 7, v1")
        a("v_and_b32 v2, 15, v0")
        a("v_lshl_add_u32 v1, v2, 2, v1")
        a("v_add_u32 v90, %d, v1" % WS_FU)
    def s3_uw_loads(self):
        a = self.a
        a("buffer_load_dword v92, v90, s[20:23], 0 offen sc1")
    def s3_uw_look(self):
        self.s3_uw_addr()
        self.s3_uw_loads()
    def s3_uw_check(self):
        a = self.a
        l = self.newlab("uw")
        a("s_waitcnt vmcnt(0)")
        a("v_cmp_eq_u32 vcc, s64, v92")
        a("v_cmp_eq_u32 s[76:77], s64, v93")
        a("s_nop 1")
        a("s_and_b64 vcc, vcc, s[76:77]")
        a("s_cmp_eq_u64 vcc, -1")
        a("s_cbranch_scc1 %s" % l)
        self.poll(self.s3_uw_loads, [92, 93], 6, sleep=2)
        a.lab(l)

    def s3_channels(self):
        a = self.a
        a("s_mov_b32 s70, s2")
        a("s_add_u32 s71, s2, 256")
        a("s_add_u32 s72, s2, 512")
        a("s_cmp_lt_u32 s72, 640")
        a("s_cselect_b32 s72, s72, s2")

    def s3_u_loads(self):
        a = self.a
        self.s3_channels()
        a("v_lshlrev_b32 v1, 4, v0")
        for sg in range(3):
            a("s_mul_i32 s67, s%d, %d" % (70 + sg, ROWS))
            a("s_add_u32 s67, s67, %d" % WS_UT)
            for i in range(4):
                r = 100 + 16 * sg + 4 * i
                a("buffer_load_dwordx4 v[%d:%d], v1, s[20:23], s67 offen offset:%d sc1" % (r, r + 3, 1024 * i))

    def s3_u_copies(self, extra=0):
        a = self.a
        Z = 150
        for i in range(4): a("v_mov_b32 v%d, 0" % (Z + i))
        a("v_lshlrev_b32 v2, 4, v0")
        a("v_cmp_eq_u32 vcc, 0, v0")
        for sg in range(3):
            base = LDS_UC + sg * UC_SZ
            for b in range(4):
                a("ds_write_b128 v2, v[%d:%d] offset:%d" % (Z, Z + 3, base + b * UC_STRIDE))
        for sg in range(3):
            base = LDS_UC + sg * UC_SZ
            if extra is not None: a("s_waitcnt vmcnt(%d)" % (4 * (2 - sg) + extra))
            for i in range(4):
                D = 100 + 16 * sg + 4 * i
                R3, R2 = 154 + 2 * (i & 1), 155 + 2 * (i & 1)
                Q3, Q2 = 154 + 2 * ((i + 1) & 1), 155 + 2 * ((i + 1) & 1)
                T1 = 160 + 12 * (i & 1); T0 = T1 + 4; T2 = T1 + 8
                P2 = 158
                a("v_mov_b32_dpp v%d, v%d wave_ror:1 row_mask:0xf bank_mask:0xf" % (R3, D + 3))
                a("v_mov_b32_dpp v%d, v%d wave_ror:1 row_mask:0xf bank_mask:0xf" % (R2, D + 2))
                a("v_mov_b32 v%d, v%d" % (T1 + 1, D))
                a("v_mov_b32 v%d, v%d" % (T1 + 2, D + 1))
                a("v_mov_b32 v%d, v%d" % (T1 + 3, D + 2))
                if i == 0:
                    a("v_cndmask_b32 v%d, v%d, v%d, vcc" % (T1, R3, Z))
                    a("v_cndmask_b32 v%d, v%d, v%d, vcc" % (P2, R2, Z))
                else:
                    a("v_cndmask_b32 v%d, v%d, v%d, vcc" % (T1, R3, Q3))
                    a("v_cndmask_b32 v%d, v%d, v%d, vcc" % (P2, R2, Q2))
                off = base + 4 * (96 + 256 * i)
                a("ds_write_b128 v2, v[%d:%d] offset:%d" % (D, D + 3, off + 3 * UC_STRIDE))
                a("v_alignbit_b32 v%d, v%d, v%d, 16" % (T0, T1, P2))
                a("v_alignbit_b32 v%d, v%d, v%d, 16" % (T0 + 1, D, T1))
                a("v_alignbit_b32 v%d, v%d, v%d, 16" % (T0 + 2, D + 1, D))
                a("v_alignbit_b32 v%d, v%d, v%d, 16" % (T0 + 3, D + 2, D + 1))
                a("ds_write_b128 v2, v[%d:%d] offset:%d" % (T1, T1 + 3, off + 1 * UC_STRIDE))
                a("v_mov_b32 v%d, v%d" % (T2, T0 + 1))
                a("v_mov_b32 v%d, v%d" % (T2 + 1, T0 + 2))
                a("v_mov_b32 v%d, v%d" % (T2 + 2, T0 + 3))
                a("v_alignbit_b32 v%d, v%d, v%d, 16" % (T2 + 3, D + 3, D + 2))
                a("ds_write_b128 v2, v[%d:%d] offset:%d" % (T0, T0 + 3, off + 0 * UC_STRIDE))
                a("ds_write_b128 v2, v[%d:%d] offset:%d" % (T2, T2 + 3, off + 2 * UC_STRIDE))

    def s_phase1(self):
        a = self.a
        n = self.name
        a("s_sub_u32 s66, s3, 4")
        a("s_cmp_eq_u32 s66, 3")
        a("s_cbranch_scc1 %s_sj" % n)
        self.s_kgen_phase1()
        a("s_branch %s_p1done" % n)
        a.lab("%s_sj" % n)
        self.s_side()
        a.lab("%s_p1done" % n)

    def ssm_param_loads(self, slots=(0, 1, 2), scalars=True):
        a = self.a
        a("s_mul_i32 s67, s50, 384")
        a("v_lshl_add_u32 v1, v0, 1, s67")
        for sl in slots:
            for k, p in enumerate((P_ARE, P_AIM, P_BRE, P_BIM, P_CRE, P_CIM)):
                a("global_load_ushort v%d, v1, s[%d:%d] offset:%d" % (200 + 6 * sl + k, p, p + 1, 128 * sl))
        if scalars:
            a("s_lshl_b32 s67, s50, 1")
            a("v_mov_b32 v223, s67")
            a("global_load_ushort v218, v223, s[%d:%d]" % (P_LDT, P_LDT + 1))
            a("global_load_ushort v219, v223, s[%d:%d]" % (P_DSK, P_DSK + 1))

    def kgen_bases(self):
        a = self.a
        a("s_mul_i32 s51, s66, %d" % TAB_SZ)
        a("s_add_u32 s51, s51, %d" % LDS_TAB)
        a("s_mul_i32 s52, s66, %d" % KR_SZ)
        a("s_add_u32 s52, s52, %d" % LDS_KR)

    def kgen(self, part="all"):
        a = self.a
        if part == "all": self.kgen_bases()
        self._kgen_body(part)

    def _kgen_body(self, part):
        a = self.a
        head = part in ("all", "head", "rest"); tail = part in ("all", "tail", "rest")
        real_a = a
        if not head: a = Asm()
        a("v_and_b32 v4, 15, v0")
        a("v_lshrrev_b32 v5, 4, v0")
        a("v_mul_u32_u24 v2, %d, v4" % TABROW)
        a("v_lshl_add_u32 v2, v5, 6, v2")
        a("v_add_u32 v2, s51, v2")
        a("v_and_b32 v6, 1, v5")
        a("v_lshl_add_u32 v3, v6, 3, v2")
        a("v_xor_b32 v6, 1, v6")
        a("v_lshl_add_u32 v2, v6, 3, v2")
        a("s_mov_b32 m0, s51")
        a("s_nop 0")
        if part == "all" or (part == "rest" and not self.fused()): a("s_waitcnt vmcnt(0)")
        a("v_lshlrev_b32 v218, 16, v218")
        a("v_lshlrev_b32 v219, 16, v219")
        a("v_mul_f32 v6, 0x3fb8aa3b, v218")
        a("s_mov_b32 s67, 0x3fb8aa3b")
        a("v_fma_f32 v7, v218, s67, -v6")
        a("v_fmac_f32 v7, 0x32a57060, v218")
        a("v_exp_f32 v6, v6")
        a("v_mul_f32 v7, 0x3f317218, v7")
        a("v_fma_f32 v6, v6, v7, v6")
        a("v_cvt_pk_bf16_f32 v6, v6, v6")
        a("v_lshlrev_b32 v218, 16, v6")
        W1, W16, W256, W512, W768, W1024 = 10, 12, 14, 16, 18, 20
        WX = 22
        CB = 24
        Y = 26; P = 28; TMP1 = 30; TMP2 = 32; TMP3 = 34
        PK = 36
        V = 50
        CV = 66
        YF = 76
        AF = 92
        ACC = 108
        nopk = (part == "head") and ("pkhead" not in self.ph)
        def cmul(out, x, w, t):
            if nopk:
                return ["v_mul_f32 v%d, v%d, v%d" % (t, x + 1, w + 1),
                        "v_mul_f32 v%d, v%d, v%d" % (t + 1, x, w + 1),
                        "v_fma_f32 v%d, v%d, v%d, -v%d" % (out, x, w, t),
                        "v_fma_f32 v%d, v%d, v%d, v%d" % (out + 1, x + 1, w, t + 1)]
            return ["v_pk_mul_f32 v[%d:%d], v[%d:%d], v[%d:%d] op_sel:[0,0] op_sel_hi:[0,1]" % (t, t + 1, x, x + 1, w, w + 1),
                    "v_pk_fma_f32 v[%d:%d], v[%d:%d], v[%d:%d], v[%d:%d] op_sel:[1,1,0] op_sel_hi:[1,0,1] neg_lo:[1,0,0]" % (out, out + 1, x, x + 1, w, w + 1, t, t + 1)]
        def zipl(*ls):
            o = []
            for i in range(max(len(l) for l in ls)):
                for l in ls:
                    if i < len(l): o.append(l[i])
            return o
        cvn = [0, 0]
        def wr(val, tile, row, neg, bank=0):
            c = CV + 4 * bank + (cvn[bank] % 4); cvn[bank] += 1
            return ["v_cvt_pk_bf16_f32 v%d, v%d, %sv%d" % (c, val, "-" if neg else "", val + 1),
                    "ds_write_addtid_b32 v%d offset:%d" % (c, tile * TABTILE + row * TABROW)]
        def frag_reads(dst, tile):
            L = []
            for kk in range(4):
                L.append("ds_read_b64 v[%d:%d], v3 offset:%d" % (dst + 4 * kk, dst + 4 * kk + 1, tile * TABTILE + 16 * kk))
                L.append("ds_read_b64 v[%d:%d], v2 offset:%d" % (dst + 4 * kk + 2, dst + 4 * kk + 3, tile * TABTILE + 16 * kk))
            return L
        def mm(t, first):
            L = []
            for kk in range(4):
                c = "0" if (first and kk == 0) else "v[%d:%d]" % (ACC + 4 * t, ACC + 4 * t + 3)
                L.append("v_mfma_f32_16x16x32_bf16 v[%d:%d], v[%d:%d], v[%d:%d], %s" % (ACC + 4 * t, ACC + 4 * t + 3, AF + 4 * kk, AF + 4 * kk + 3, YF + 4 * kk, YF + 4 * kk + 3, c))
            return L
        a = real_a
        nh = 2 if "kg2" in self.ph else 1
        slots = [0, 1, 2] if part in ("all", "rest") else (list(range(nh)) if part == "head" else list(range(nh, 3)))
        for sl in slots:
            if sl == 1 and part == "tail" and not self.fused(): a("s_waitcnt vmcnt(0)")
            if sl == 2 and part in ("rest", "tail"): self.stamp(3)
            if sl == 2 and "prioT" in self.ph: a("s_setprio 2")
            if sl == slots[0] and part in ("tail", "rest") and "prioT0" in self.ph: a("s_setprio 2")
            pr = 200 + 6 * sl
            for k in range(6): a("v_lshlrev_b32 v%d, 16, v%d" % (pr + k, pr + k))
            a("v_mul_f32 v6, v218, v%d" % pr)
            a("v_mul_f32 v7, v218, v%d" % (pr + 1))
            a("v_mul_f32 v6, 0x3fb8aa3b, v6")
            a("v_mul_f32 v7, 0.15915494, v7")
            a("v_mul_f32 v8, v218, v%d" % (pr + 2))
            a("v_mul_f32 v9, v218, v%d" % (pr + 3))
            a.ext(cmul(CB, pr + 4, 8, TMP1))
            for w, k in ((W1, 1.0), (W16, 16.0), (W256, 256.0)):
                if k == 1.0:
                    a("v_exp_f32 v%d, v6" % TMP2)
                    a("v_fract_f32 v%d, v7" % TMP3)
                else:
                    lit = "0x41800000" if k == 16.0 else "0x43800000"
                    a("v_mul_f32 v%d, %s, v6" % (TMP2, lit))
                    a("v_mul_f32 v%d, %s, v7" % (TMP3, lit))
                    a("v_exp_f32 v%d, v%d" % (TMP2, TMP2))
                    a("v_fract_f32 v%d, v%d" % (TMP3, TMP3))
                a("v_cos_f32 v%d, v%d" % (w, TMP3))
                a("v_sin_f32 v%d, v%d" % (w + 1, TMP3))
                a("s_nop 0")
                a("v_mul_f32 v%d, v%d, v%d" % (w, w, TMP2))
                a("v_mul_f32 v%d, v%d, v%d" % (w + 1, w + 1, TMP2))
            if sl != slots[0]:
                a("s_waitcnt lgkmcnt(0)")
                a.ext(pend_mm2)
            LY = ["v_mov_b32 v%d, v%d" % (Y, CB), "v_mov_b32 v%d, v%d" % (Y + 1, CB + 1)] + wr(Y, 0, 0, False)
            for j in range(1, 16):
                LY += cmul(Y, Y, W16, TMP1) + wr(Y, 0, j, False)
            LA = ["v_mov_b32 v%d, 1.0" % P, "v_mov_b32 v%d, 0" % (P + 1)] + wr(P, 1, 0, True, 1)
            cur = P
            for r in range(1, 16):
                if r == 1:
                    LA += ["v_mov_b32 v%d, v%d" % (P, W1), "v_mov_b32 v%d, v%d" % (P + 1, W1 + 1)]
                    cur = P
                else:
                    dst = PK + 2 * (r // 2 - 1) if r % 2 == 0 else P
                    LA += cmul(dst, cur, W1, TMP2)
                    cur = dst
                LA += wr(cur, 1, r, True, 1)
            a.ext(zipl(LY, LA))
            a.ext(cmul(W512, W256, W256, TMP1))
            a.ext(frag_reads(YF, 0)); a.ext(frag_reads(AF, 1))
            a.ext(zipl(cmul(W768, W512, W256, TMP1), cmul(W1024, W512, W512, TMP2)))
            def pk(i): return PK + 2 * (i // 2 - 1)
            vals = []
            A2 = []
            regs = []
            for r in range(8):
                if r == 0: regs.append(W256)
                else:
                    dst = V + 2 * (r - 1) if r < 8 else None
                    A2.append(cmul(dst, pk(2 * r), W256, TMP1 if r % 2 else TMP2)); regs.append(dst)
            a.ext(zipl(sum(A2[0::2], []), sum(A2[1::2], [])))
            a("s_waitcnt lgkmcnt(0)")
            m = mm(0, sl == 0)
            L = []
            for r in range(8): L += wr(regs[r], 1, r, True)
            a.ext(interleave(m, L))
            LA = []; LB = []
            for b in range(4):
                if b == 0:
                    LA += wr(W512, 1, 8, True); LB += wr(W768, 1, 12, True, 1)
                else:
                    LA += cmul(V, pk(4 * b), W512, TMP1) + wr(V, 1, 8 + b, True)
                    LB += cmul(V + 2, pk(4 * b), W768, TMP2) + wr(V + 2, 1, 12 + b, True, 1)
            a.ext(zipl(LA, LB))
            a.ext(frag_reads(AF, 1))
            a.ext(zipl(cmul(V, W1024, W256, TMP1), cmul(V + 2, W1024, W512, TMP2)))
            a.ext(zipl(cmul(V + 4, W1024, W768, TMP1), cmul(V + 6, W1024, W1024, TMP2)))
            ws = [W1024, V, V + 2, V + 4]
            a.ext(zipl(cmul(V + 8, ws[0], pk(8), TMP1), cmul(V + 10, ws[1], pk(8), TMP2)))
            a.ext(zipl(cmul(V + 12, ws[2], pk(8), TMP1), cmul(V + 14, ws[3], pk(8), TMP2)))
            a("s_waitcnt lgkmcnt(0)")
            m = mm(1, sl == 0)
            L = []
            for i in range(4):
                L += wr(ws[i], 1, 2 * i, True) + wr(V + 8 + 2 * i, 1, 2 * i + 1, True)
            L += wr(V + 6, 1, 8, True)
            a.ext(interleave(m, L))
            a.ext(frag_reads(AF, 1))
            pend_mm2 = mm(2, sl == 0)
            if sl == slots[-1]:
                a("s_waitcnt lgkmcnt(0)")
                a.ext(pend_mm2); pend_mm2 = None
        if not tail: return
        self.stamp(1)
        A0, A1, A2r = ACC, ACC + 4, ACC + 8
        a("v_cmp_eq_u32 vcc, 0, v0")
        a("v_and_b32 v4, 15, v0")
        a("v_lshrrev_b32 v5, 4, v0")
        a("v_cndmask_b32 v6, 0, v219, vcc")
        a("v_lshlrev_b32 v7, 5, v4")
        a("v_lshl_add_u32 v7, v5, 4, v7")
        a("v_lshlrev_b32 v8, 4, v4")
        a("v_lshl_add_u32 v8, v5, 8, v8")
        a("v_cmp_gt_u32 vcc, 2, v5")
        a("v_add_f32 v%d, v%d, v6" % (A0, A0))
        a("s_nop 0")
        a("v_cndmask_b32 v7, v8, v7, vcc")
        a("v_add_u32 v7, s51, v7")
        a("v_lshlrev_b32 v8, 3, v4")
        a("v_lshl_add_u32 v8, v5, 8, v8")
        a("v_add_u32 v8, s51, v8")
        a("s_nop 4")
        a("ds_write_b128 v7, v[%d:%d]" % (A1, A1 + 3))
        a("ds_write_b64 v8, v[%d:%d] offset:1024" % (A2r, A2r + 1))
        a("ds_write_b64 v8, v[%d:%d] offset:1152" % (A2r + 2, A2r + 3))
        a("v_cvt_pk_bf16_f32 v10, v%d, v%d" % (A0 + 3, A0 + 2))
        a("v_cvt_pk_bf16_f32 v11, v%d, v%d" % (A0 + 1, A0))
        a("v_lshlrev_b32 v9, 5, v4")
        a("v_lshl_add_u32 v9, v5, 3, v9")
        a("v_sub_u32 v9, 4088, v9")
        a("v_add_u32 v9, s52, v9")
        a("ds_write_b64 v9, v[10:11]")
        a("v_and_b32 v9, 31, v0")
        a("v_lshlrev_b32 v9, 2, v9")
        a("v_add_u32 v9, s52, v9")
        a("v_mov_b32 v12, 0")
        a("ds_write_b32 v9, v12 offset:4096")
        a("v_lshlrev_b32 v13, 4, v0")
        a("v_add_u32 v14, s51, v13")
        a("v_lshlrev_b32 v15, 3, v0")
        a("v_add_u32 v15, s51, v15")
        a("v_lshlrev_b32 v16, 2, v0")
        a("v_add_u32 v16, s51, v16")
        a("v_sub_u32 v13, s52, v13")
        a("s_waitcnt lgkmcnt(0)")
        a("ds_read_b128 v[20:23], v14")
        a("ds_read_b32 v24, v14 offset:16")
        a("ds_read_b64 v[26:27], v15 offset:512")
        a("ds_read_b32 v28, v15 offset:520")
        a("ds_read2_b32 v[30:31], v16 offset0:0 offset1:1")
        a.l.pop()
        a("v_add_u32 v17, 1024, v16")
        a("ds_read2_b32 v[30:31], v17 offset0:0 offset1:1")
        a("ds_read2_b32 v[32:33], v17 offset0:64 offset1:65")
        a("v_and_b32 v18, 1, v0")
        a("v_cmp_eq_u32 vcc, 1, v18")
        a("s_waitcnt lgkmcnt(0)")
        a("v_cvt_pk_bf16_f32 v36, v28, v28")
        a("v_cvt_pk_bf16_f32 v37, v27, v27")
        a("v_cvt_pk_bf16_f32 v38, v27, v26")
        a("v_cvt_pk_bf16_f32 v39, v26, v26")
        a("ds_write_b128 v13, v[36:39] offset:3056")
        for ps in range(2):
            v0_, v1_ = 30 + 2 * ps, 31 + 2 * ps
            o = 40 + 4 * ps
            a("v_cndmask_b32 v19, v%d, v%d, vcc" % (v0_, v1_))
            a("v_cvt_pk_bf16_f32 v%d, v%d, v%d" % (o, v1_, v1_))
            a("v_cvt_pk_bf16_f32 v%d, v%d, v19" % (o + 1, v1_))
            a("v_cvt_pk_bf16_f32 v%d, v%d, v%d" % (o + 2, v0_, v0_))
            a("v_mov_b32 v%d, v%d" % (o + 3, o + 2))
        a("ds_write_b128 v13, v[40:43] offset:2032")
        a("ds_write_b128 v13, v[44:47] offset:1008")
        a("v_cvt_pk_bf16_f32 v48, v24, v23")
        a("v_cvt_pk_bf16_f32 v49, v22, v22")
        a("v_cvt_pk_bf16_f32 v50, v22, v21")
        a("v_cvt_pk_bf16_f32 v51, v20, v20")
        a("s_mov_b32 exec_hi, 0")
        a("ds_write_b128 v13, v[48:51] offset:3568")
        a("s_mov_b32 exec_hi, -1")
        if "dumpk" in self.ph:
            a("s_waitcnt lgkmcnt(0)")
            a("v_lshlrev_b32 v13, 4, v0")
            a("v_add_u32 v14, s52, v13")
            a("s_mul_i32 s67, s50, 4224")
            a("s_add_u32 s67, s67, %d" % WS_DBG)
            for i in range(5):
                a("ds_read_b128 v[20:23], v14 offset:%d" % (1024 * i))
                a("s_waitcnt lgkmcnt(0)")
                if i == 4: a("s_mov_b32 exec_hi, 0"); a("s_mov_b32 exec_lo, 0xff")
                a("s_add_u32 s68, s67, %d" % (1024 * i))
                a("buffer_store_dwordx4 v[20:23], v13, s[20:23], s68 offen")
                a("s_waitcnt vmcnt(0)")
            a("s_mov_b64 exec, -1")

    def u_look(self):
        a = self.a
        self.nonce_read(120)
        a("s_lshr_b32 s78, s50, 5")
        a("s_lshl_b32 s78, s78, 7")
        a("s_add_u32 s78, s78, %d" % WS_FU)
        a("v_and_b32 v120, 15, v0")
        a("v_lshlrev_b32 v120, 2, v120")
        a("buffer_load_dword v121, v120, s[20:23], s78 offen sc1")
    def u_prefetch(self):
        a = self.a
        l = self.newlab("uok")
        a("s_waitcnt vmcnt(0)")
        a("v_cmp_eq_u32 vcc, s64, v121")
        a("s_nop 1")
        a("s_cmp_eq_u64 vcc, -1")
        a("s_cbranch_scc1 %s" % l)
        self.poll_line("s78", 16, 120, sleep=4)
        a.lab(l)
        self.conv_loads()
        self.lds_inc(LDS_UOK, 152)

    def conv_loads(self):
        a = self.a
        a("s_mul_i32 s67, s50, %d" % ROWS)
        a("s_add_u32 s67, s67, %d" % (WS_UT - 4))
        a("v_lshlrev_b32 v1, 2, v0")
        for i in range(16):
            a("buffer_load_dwordx2 v[%d:%d], v1, s[20:23], s67 offen offset:%d sc1" % (120 + 2 * i, 121 + 2 * i, 256 * i))

    def conv(self):
        a = self.a
        D = 120
        a("s_mul_i32 s53, s66, %d" % UC_SZ)
        if LDS_UC: a("s_add_u32 s53, s53, %d" % LDS_UC)
        if not self.fused():
            a("s_mov_b32 m0, s53")
            a("v_mov_b32 v2, 0")
            for b in range(4):
                a("ds_write_addtid_b32 v2 offset:%d" % (b * UC_STRIDE))
                a("ds_write_addtid_b32 v2 offset:%d" % (b * UC_STRIDE + 33 * 4))
            a("v_cmp_eq_u32 vcc, 0, v0")
            a("s_waitcnt vmcnt(0)")
            a("v_cndmask_b32 v%d, v%d, v2, vcc" % (D, D))
            for i in range(16):
                lo, hi = D + 2 * i, D + 2 * i + 1
                o = 4 + (i % 4)
                a("v_alignbit_b32 v%d, v%d, v%d, 16" % (o, hi, lo))
                a("ds_write_addtid_b32 v%d offset:%d" % (hi, 3 * UC_STRIDE + 4 * (64 * i + 96)))
                a("ds_write_addtid_b32 v%d offset:%d" % (hi, 1 * UC_STRIDE + 4 * (64 * i + 97)))
                a("ds_write_addtid_b32 v%d offset:%d" % (o, 2 * UC_STRIDE + 4 * (64 * i + 96)))
                a("ds_write_addtid_b32 v%d offset:%d" % (o, 0 * UC_STRIDE + 4 * (64 * i + 97)))
        VU, VK = 8, 9
        a("v_and_b32 v4, 3, v0")
        a("v_mul_u32_u24 v4, %d, v4" % UC_STRIDE)
        a("v_bfe_u32 v5, v0, 2, 2")
        a("v_lshl_add_u32 v4, v5, 7, v4")
        a("v_lshrrev_b32 v5, 4, v0")
        a("v_lshl_add_u32 v4, v5, 4, v4")
        a("v_add_u32 v%d, s53, v4" % VU)
        a("v_and_b32 v6, 15, v0")
        a("v_lshlrev_b32 v7, 3, v6")
        a("v_sub_u32 v7, 120, v7")
        a("v_lshl_add_u32 v7, v5, 4, v7")
        a("v_add_u32 v%d, s52, v7" % VK)
        a("v_lshlrev_b32 v10, 3, v6")
        a("v_lshl_add_u32 v10, v5, 7, v10")
        ACC = 16; SETS = [48, 112]
        def reads(rho, S):
            L = []
            for z in range(8):
                L.append("ds_read_b128 v[%d:%d], v%d offset:%d" % (S + 4 * z, S + 4 * z + 3, VU, 512 * z + 64 * (7 - rho)))
                zz = 8 * z + rho
                L.append("ds_read_b64 v[%d:%d], v%d offset:%d" % (S + 32 + 4 * z, S + 33 + 4 * z, VK, 64 * (63 - zz)))
                L.append("ds_read_b64 v[%d:%d], v%d offset:%d" % (S + 34 + 4 * z, S + 35 + 4 * z, VK, 64 * (63 - zz) + 8))
            return L
        def mm(rho, S):
            L = []
            for ze in range(8):
                for nu in range(8 - ze):
                    n = ze + nu
                    c = "0" if (rho == 0 and ze == 0) else "v[%d:%d]" % (ACC + 4 * n, ACC + 4 * n + 3)
                    L.append("v_mfma_f32_16x16x32_bf16 v[%d:%d], v[%d:%d], v[%d:%d], %s" % (ACC + 4 * n, ACC + 4 * n + 3, S + 4 * nu, S + 4 * nu + 3, S + 32 + 4 * ze, S + 35 + 4 * ze, c))
            return L
        a("s_waitcnt lgkmcnt(0)")
        if self.fused(): self.lds_spin(LDS_UCOK, 12)
        self.stamp(4)
        a.ext(reads(0, SETS[0]))
        a("s_waitcnt lgkmcnt(0)")
        for rho in range(8):
            fill = reads(rho + 1, SETS[(rho + 1) & 1]) if rho < 7 else []
            a.ext(interleave(mm(rho, SETS[rho & 1]), fill, span=28))
            if rho < 7: a("s_waitcnt lgkmcnt(0)")
        self.stamp(7)
        a("s_mul_i32 s67, s50, %d" % ROWS)
        a("s_add_u32 s67, s67, %d" % WS_Y)
        a("s_nop 7")
        for n in range(8):
            o = 48 + 2 * n
            a("v_cvt_pk_bf16_f32 v%d, v%d, v%d" % (o, ACC + 4 * n, ACC + 4 * n + 1))
            a("v_cvt_pk_bf16_f32 v%d, v%d, v%d" % (o + 1, ACC + 4 * n + 2, ACC + 4 * n + 3))
            a("buffer_store_dwordx2 v[%d:%d], v10, s[20:23], s67 offen offset:%d sc1" % (o, o + 1, 512 * n))

    def s_ssm(self):
        a = self.a
        n = self.name
        a("s_sub_u32 s66, s3, 4")
        a("s_lshl_b32 s50, s66, 8")
        a("s_add_u32 s50, s50, s2")
        a("s_cmp_ge_u32 s66, 3")
        a("s_cbranch_scc1 %s_ssm_done" % n)
        if self.fused():
            l = self.newlab("nch")
            a("s_cmp_lt_u32 s50, 640")
            a("s_cbranch_scc1 %s" % l)
            a("s_branch %s_ssm_done" % n)
            a.lab(l)
        else:
            a("s_cmp_ge_u32 s50, 640")
            a("s_cbranch_scc1 %s_ssm_done" % n)
        if self.fused() and "g1" in self.ph:
            a("s_waitcnt vmcnt(0)")
        if "g1" not in self.ph:
            self.stamp(5)
            self.ssm_param_loads()
            self.kgen("all")
        elif "kghead" in self.ph:
            self.kgen("tail")
        else:
            self.kgen("rest")
        self.stamp(6)
        if not self.fused():
            self.conv_loads()
        self.conv()
        if "prioT" in self.ph or "prioT0" in self.ph: a("s_setprio 0")
        a("s_waitcnt vmcnt(0)")
        if self.fused():
            self.nonce_read(4)
            a("s_lshl_b32 s69, s50, 2")
            a("s_add_u32 s69, s69, %d" % WS_FY)
            self.flag_set("s69", 2)
        self.stamp(8)
        a.lab("%s_ssm_done" % n)

    G2_SETS = [80, 116, 152, 188]
    G2_VB, G2_VL, G2_VB8, G2_T, G2_VRS = 224, 228, 246, 230, 250

    def g2_setup(self):
        a = self.a
        VB, VL, VB8, T, VRS = self.G2_VB, self.G2_VL, self.G2_VB8, self.G2_T, self.G2_VRS
        a("v_mbcnt_lo_u32_b32 v%d, -1, 0" % T)
        a("v_mbcnt_hi_u32_b32 v%d, -1, v%d" % (T, T))
        a("v_lshlrev_b32 v%d, 4, v%d" % (VL, T))
        for tau in range(4):
            a("s_add_u32 s67, s3, %d" % tau)
            a("s_and_b32 s67, s67, 3")
            a("s_lshl_b32 s67, s67, 10")
            a("v_add_u32 v%d, s67, v%d" % (VB + tau, VL))
            a("v_lshlrev_b32 v%d, 3, v%d" % (VB8 + tau, T))
            a("v_add_u32 v%d, s67, v%d" % (VB8 + tau, VB8 + tau))
        a("s_mul_i32 s70, s6, 48")
        a("s_mul_i32 s67, s3, 12")
        a("s_add_u32 s70, s70, s67")
        a("s_lshl_b32 s70, s70, 12")
        if WS_H: a("s_add_u32 s70, s70, %d" % WS_H)
        a("s_mul_i32 s71, s7, 48")
        a("s_add_u32 s71, s71, s67")
        a("s_mul_i32 s71, s71, 5120")
        a("s_add_u32 s71, s71, %d" % WS_WD)
        a("s_add_u32 s72, s71, 4096")
        for tau in range(1, 4):
            a("s_add_u32 s67, s3, %d" % tau)
            a("s_and_b32 s67, s67, 3")
            a("s_mul_i32 s67, s67, 3")
            a("s_add_u32 s67, s67, %d" % (tau - 1))
            a("s_mul_i32 s67, s67, 5120")
            a("s_add_u32 s67, s67, %d" % LDS_RED)
            a("v_add_u32 v%d, s67, v%d" % (VRS + tau - 1, VL))
            a("s_mov_b32 s%d, s67" % (72 + tau))

    def g2_loadsA(self, S):
        VL = self.G2_VL
        L = []
        for dt in range(5):
            if dt < 4: L.append("buffer_load_dwordx4 v[%d:%d], v%d, s[20:23], s71 offen offset:%d sc1" % (S + 16 + 4 * dt, S + 19 + 4 * dt, VL, 1024 * dt))
            else: L.append(("buffer_load_dwordx4 v[%d:%d], v%d, s[20:23], s72 offen sc1" % (S + 16 + 4 * dt, S + 19 + 4 * dt, VL),
                            "s_add_u32 s71, s71, 5120", "s_add_u32 s72, s72, 5120"))
        return L

    def g2_burst_atoms(self):
        VL = self.G2_VL
        regl = []
        for k in range(4): regl += self.g2_loadsA(self.G2_SETS[k])
        dmal = []
        for tau in range(1, 4):
            dmal.append(("s_mov_b32 m0, s%d" % (72 + tau), "s_nop 0",
                         "buffer_load_dwordx4 v%d, s[20:23], s71 offen sc1 lds" % VL))
            for dt in range(1, 4):
                dmal.append("buffer_load_dwordx4 v%d, s[20:23], s71 offen offset:%d sc1 lds" % (VL, 1024 * dt))
            dmal.append(("s_add_u32 m0, s%d, 4096" % (72 + tau), "s_add_u32 s71, s71, 5120",
                         "buffer_load_dwordx4 v%d, s[20:23], s72 offen sc1 lds" % VL, "s_add_u32 s72, s72, 5120"))
        return regl, dmal

    def g_gemm2(self):
        a = self.a
        ACC = 0
        SETS = self.G2_SETS
        VB, VL, VB8, T, VRS = self.G2_VB, self.G2_VL, self.G2_VB8, self.G2_T, self.G2_VRS
        acc = lambda dt, tau: ACC + (dt * 4 + tau) * 4
        epb = "epb" in self.ph and "g1" in self.ph
        if not epb: self.g2_setup()
        loadsA = self.g2_loadsA
        def loadsB(S, k):
            L = []
            for tau in range(4):
                if k % 3 == 1:
                    x = ("buffer_load_dwordx2 v[%d:%d], v%d, s[20:23], s70 offen sc1" % (S + 4 * tau, S + 4 * tau + 1, VB8 + tau),
                         "buffer_load_dwordx2 v[%d:%d], v%d, s[20:23], s70 offen offset:512 sc1" % (S + 4 * tau + 2, S + 4 * tau + 3, VB8 + tau))
                else:
                    x = ("buffer_load_dwordx4 v[%d:%d], v%d, s[20:23], s70 offen sc1" % (S + 4 * tau, S + 4 * tau + 3, VB + tau),)
                L.append(x if tau < 3 else x + ("s_add_u32 s70, s70, 4096",))
            return L
        nB = lambda k: 8 if k % 3 == 1 else 4
        def mm(S, first):
            L = []
            for dt in range(5):
                for tau in range(4):
                    c = "0" if first else "v[%d:%d]" % (acc(dt, tau), acc(dt, tau) + 3)
                    L.append("v_mfma_f32_16x16x32_bf16 v[%d:%d], v[%d:%d], v[%d:%d], %s" % (acc(dt, tau), acc(dt, tau) + 3, S + 16 + 4 * dt, S + 19 + 4 * dt, S + 4 * tau, S + 4 * tau + 3, c))
            return L
        NS = 12
        pre = "g1" in self.ph and "nopre" not in self.ph
        VLOOK = 254
        if epb:
            if self.fused(): self.nonce_read(232)
            self.g_signal_h(0)
            if self.fused():
                a("s_lshr_b32 s79, s6, 1")
                a("s_lshl_b32 s79, s79, 7")
                a("s_lshl_b32 s67, s3, 4")
                a("s_add_u32 s79, s79, s67")
                a("s_add_u32 s79, s79, %d" % WS_FH)
                self.poll_line("s79", 4, VLOOK, sleep=3)
        elif "g1" in self.ph:
            if self.fused():
                self.nonce_read(232)
                a("v_mov_b32 v%d, 0" % VLOOK)
                l = self.newlab("lk"); l2 = self.newlab("lk")
                a("s_cmp_lg_u32 s3, 0")
                a("s_cbranch_scc1 %s" % l)
                a("s_lshl_b32 s79, s7, 8")
                a("s_add_u32 s79, s79, %d" % WS_FW)
                self.look_line("s79", 48, VLOOK)
                a("s_waitcnt vmcnt(1)")
                a("s_branch %s" % l2)
                a.lab(l)
                a("s_waitcnt vmcnt(0)")
                a.lab(l2)
                self.g_signal_h(None)
            else:
                self.g_signal_h(0)
        if pre and not epb:
            if self.fused():
                lo = self.newlab("ww"); ld = self.newlab("wd")
                a("s_cmp_lg_u32 s3, 0")
                a("s_cbranch_scc1 %s" % lo)
                self.lds_spin(LDS_SFREE, 232, 4)
                self.lds_spin(LDS_UOK, 232, 3)
                self.check_line("s79", VLOOK, 0)
                a("v_mov_b32 v232, %d" % LDS_WOK)
                a("v_mov_b32 v233, 1")
                a("ds_write_b32 v232, v233")
                if "hall" in self.ph:
                    a("s_lshr_b32 s79, s6, 1")
                    a("s_lshl_b32 s79, s79, 7")
                    a("s_add_u32 s79, s79, %d" % WS_FH)
                    self.look_line("s79", 16, VLOOK)
                a("s_branch %s" % ld)
                a.lab(lo)
                self.lds_spin(LDS_WOK, 232)
                a.lab(ld)
                if "hall" not in self.ph:
                    a("s_lshr_b32 s79, s6, 1")
                    a("s_lshl_b32 s79, s79, 7")
                    a("s_lshl_b32 s67, s3, 4")
                    a("s_add_u32 s79, s79, s67")
                    a("s_add_u32 s79, s79, %d" % WS_FH)
                    self.look_line("s79", 4, VLOOK)
            regl, dmal = self.g2_burst_atoms()
            a.ext(flat(regl)); a.ext(flat(dmal))
        if not epb: self.g2_wait_inputs(looked=pre)
        self.stamp(5)
        self.clk(5)
        def srcA(k):
            if not pre: return "g"
            return "pre" if k < 4 else ("lds" if k < 7 else "g")
        def loadA_any(k):
            S = SETS[k % 4]
            if srcA(k) == "g": return loadsA(S)
            if srcA(k) == "lds":
                return ["ds_read_b128 v[%d:%d], v%d offset:%d" % (S + 16 + 4 * dt, S + 19 + 4 * dt, VRS + k - 4, 1024 * dt) for dt in range(5)]
            return []
        nL = lambda k: nB(k) + (5 if srcA(k) == "g" else 0)
        for k in range(3):
            a.ext(flat(loadsB(SETS[k], k) + loadA_any(k)))
        for k in range(NS):
            rem = sum(nL(j) for j in range(k + 1, min(NS - 1, k + 2) + 1))
            if srcA(k) == "lds": a("s_waitcnt vmcnt(%d) lgkmcnt(0)" % rem)
            else: a("s_waitcnt vmcnt(%d)" % rem)
            fill = (loadsB(SETS[(k + 3) % 4], k + 3) + loadA_any(k + 3)) if k + 3 < NS else []
            if "k2stamps" in self.ph and k < 9: self.stamp(k + 1, force=True)
            a.ext(interleave(mm(SETS[k % 4], k == 0), fill))
            if k + 3 == NS - 1 and self.fused(): self.lds_inc(LDS_GOK, 232)
        self.stamp(6)
        self.clk(7)
        a("s_nop 7")
        for tau in range(1, 4):
            for dt in range(5):
                a("ds_write_b128 v%d, v[%d:%d] offset:%d" % (VRS + tau - 1, acc(dt, tau), acc(dt, tau) + 3, 1024 * dt))
        a("s_waitcnt lgkmcnt(0)")
        a("s_barrier")
        self.stamp(7)
        a("s_mul_i32 s67, s3, %d" % (3 * 5120))
        a("s_add_u32 s67, s67, %d" % LDS_RED)
        a("v_add_u32 v%d, s67, v%d" % (T + 1, VL))
        R = 80
        for j in range(3):
            for dt in range(5):
                r = R + (j * 5 + dt) * 4
                a("ds_read_b128 v[%d:%d], v%d offset:%d" % (r, r + 3, T + 1, 5120 * j + 1024 * dt))
        Y = 140
        a("v_lshrrev_b32 v%d, 4, v%d" % (T + 2, T))
        a("v_and_b32 v%d, 15, v%d" % (T + 3, T))
        a("v_lshrrev_b32 v%d, 2, v%d" % (T + 4, T + 3))
        a("v_lshl_add_u32 v%d, v%d, 3, v%d" % (T + 5, T + 2, T + 4))
        a("v_lshl_add_u32 v%d, v%d, 2, v%d" % (T + 6, T + 2, T + 4))
        a("v_and_b32 v%d, 3, v%d" % (T + 7, T))
        a("v_lshlrev_b32 v%d, 3, v%d" % (T + 7, T + 7))
        a("s_lshl_b32 s67, s3, 5")
        a("s_add_u32 s67, s67, %d" % LDS_YT)
        a("v_add_u32 v%d, s67, v%d" % (T + 7, T + 7))
        a("v_lshl_add_u32 v%d, v%d, 7, v%d" % (T + 5, T + 5, T + 7))
        a("v_lshl_add_u32 v%d, v%d, 7, v%d" % (T + 6, T + 6, T + 7))
        for dt in range(5):
            if dt < 4: a("ds_read_b64_tr_b16 v[%d:%d], v%d offset:%d" % (Y + 2 * dt, Y + 2 * dt + 1, T + 5, 128 * (32 * (dt >> 1) + 4 * (dt & 1))))
            else: a("ds_read_b64_tr_b16 v[%d:%d], v%d offset:%d" % (Y + 2 * dt, Y + 2 * dt + 1, T + 6, 128 * 64))
        a("s_lshl_b32 s67, s3, 6")
        a("s_add_u32 s67, s67, %d" % LDS_GT)
        a("v_lshl_add_u32 v%d, v%d, 2, s67" % (T + 8, T + 3))
        a("ds_read_b32 v%d, v%d" % (T + 8, T + 8))
        a("s_lshl_b32 s67, s6, 6")
        a("s_lshl_b32 s68, s3, 4")
        a("s_add_u32 s67, s67, s68")
        a("v_add_u32 v%d, s67, v%d" % (T + 9, T + 3))
        a("s_movk_i32 s68, 1280")
        a("v_mul_lo_u32 v%d, v%d, s68" % (T + 9, T + 9))
        a("s_mul_i32 s68, s7, 160")
        a("v_add_u32 v%d, s68, v%d" % (T + 9, T + 9))
        a("v_lshl_add_u32 v%d, v%d, 3, v%d" % (T + 10, T + 2, T + 9))
        a("v_lshl_add_u32 v%d, v%d, 4, v%d" % (T + 9, T + 2, T + 9))
        a("s_waitcnt lgkmcnt(0)")
        for dt in range(5):
            for h in range(2):
                x = acc(dt, 0) + 2 * h
                p = [R + (j * 5 + dt) * 4 + 2 * h for j in range(3)]
                a("v_pk_add_f32 v[%d:%d], v[%d:%d], v[%d:%d]" % (p[0], p[0] + 1, p[0], p[0] + 1, p[1], p[1] + 1))
                a("v_pk_add_f32 v[%d:%d], v[%d:%d], v[%d:%d]" % (x, x + 1, x, x + 1, p[2], p[2] + 1))
        for dt in range(5):
            for h in range(2):
                x = acc(dt, 0) + 2 * h
                p = R + dt * 4 + 2 * h
                a("v_pk_add_f32 v[%d:%d], v[%d:%d], v[%d:%d]" % (x, x + 1, x, x + 1, p, p + 1))
        U = 150
        for dt in range(5):
            for h in range(2):
                a("v_lshlrev_b32 v%d, 16, v%d" % (U + 4 * dt + 2 * h, Y + 2 * dt + h))
                a("v_and_b32 v%d, 0xffff0000, v%d" % (U + 4 * dt + 2 * h + 1, Y + 2 * dt + h))
        G2 = T + 12
        assert G2 % 2 == 0
        a("v_mov_b32 v%d, v%d" % (G2, T + 8))
        a("v_mov_b32 v%d, v%d" % (G2 + 1, T + 8))
        for dt in range(5):
            for h in range(2):
                x = acc(dt, 0) + 2 * h; u = U + 4 * dt + 2 * h
                a("v_pk_add_f32 v[%d:%d], v[%d:%d], v[%d:%d] neg_lo:[0,1] neg_hi:[0,1]" % (u, u + 1, u, u + 1, x, x + 1))
        for dt in range(5):
            for h in range(2):
                x = acc(dt, 0) + 2 * h; u = U + 4 * dt + 2 * h
                a("v_pk_fma_f32 v[%d:%d], v[%d:%d], v[%d:%d], v[%d:%d]" % (x, x + 1, u, u + 1, G2, G2 + 1, x, x + 1))
        O = 176
        for dt in range(5):
            for h in range(2):
                x = acc(dt, 0) + 2 * h
                a("v_cvt_pk_bf16_f32 v%d, v%d, v%d" % (O + 2 * dt + h, x, x + 1))
        fl = " sc1" if "outsc1" in self.ph else (" nt" if "outnt" in self.ph else "")
        a("buffer_store_dwordx4 v[%d:%d], v%d, s[24:27], 0 offen%s" % (O, O + 3, T + 9, fl))
        a("buffer_store_dwordx4 v[%d:%d], v%d, s[24:27], 0 offen offset:64%s" % (O + 4, O + 7, T + 9, fl))
        a("buffer_store_dwordx2 v[%d:%d], v%d, s[24:27], 0 offen offset:128%s" % (O + 8, O + 9, T + 10, fl))
        self.stamp(8)

    def g2_wait_inputs(self, looked=False):
        if not self.fused(): return
        a = self.a
        T = 232
        if looked and "hall" not in self.ph:
            self.check_line("s79", 254, 35, sleep=4)
            return
        lo = self.newlab("hw"); ld = self.newlab("hd")
        a("s_cmp_lg_u32 s3, 0")
        a("s_cbranch_scc1 %s" % lo)
        if looked:
            self.check_line("s79", 254, 35)
        else:
            a("s_lshr_b32 s78, s6, 1")
            a("s_lshl_b32 s78, s78, 7")
            a("s_add_u32 s78, s78, %d" % WS_FH)
            self.poll_line("s78", 16, T, sleep=4)
        a("v_mov_b32 v%d, %d" % (T, LDS_HOK))
        a("v_mov_b32 v%d, 1" % (T + 1))
        a("ds_write_b32 v%d, v%d" % (T, T + 1))
        a("s_branch %s" % ld)
        a.lab(lo)
        self.lds_spin(LDS_HOK, T)
        a.lab(ld)

    def s_final(self):
        a = self.a
        n = self.name
        l = self.newlab("fin")
        a("s_cmp_lg_u32 s3, 7")
        a("s_cbranch_scc1 %s" % l)
        if self.fused(): self.lds_spin(LDS_GOK, 2, 4)
        self.y_wait_inputs()
        a("v_mbcnt_lo_u32_b32 v0, -1, 0")
        a("v_mbcnt_hi_u32_b32 v0, -1, v0")
        a("v_lshrrev_b32 v1, 3, v0")
        a("v_mul_u32_u24 v1, %d, v1" % ROWS)
        a("v_and_b32 v2, 7, v0")
        a("v_lshl_add_u32 v1, v2, 4, v1")
        a("s_mul_i32 s67, s7, %d" % (80 * ROWS))
        a("s_lshl_b32 s68, s6, 7")
        a("s_add_u32 s67, s67, s68")
        a("s_add_u32 s67, s67, %d" % WS_Y)
        for i in range(10):
            a("buffer_load_dwordx4 v[%d:%d], v1, s[20:23], s67 offen sc1" % (8 + 4 * i, 11 + 4 * i))
            if i < 9: a("s_add_u32 s67, s67, %d" % (8 * ROWS))
        a("s_lshl_b32 s67, s6, 8")
        a("s_add_u32 s67, s67, %d" % WS_G)
        a("v_lshlrev_b32 v3, 2, v0")
        a("buffer_load_dword v4, v3, s[20:23], s67 offen sc1")
        a("v_lshlrev_b32 v2, 4, v0")
        a("v_add_u32 v2, %d, v2" % LDS_YT)
        a("v_add_u32 v3, %d, v3" % LDS_GT)
        a("s_waitcnt vmcnt(0)")
        for i in range(10):
            a("ds_write_b128 v2, v[%d:%d] offset:%d" % (8 + 4 * i, 11 + 4 * i, 1024 * i))
        a("ds_write_b32 v3, v4")
        a("s_waitcnt lgkmcnt(0)")
        a("s_barrier")
        if self.fused(): self.nonce_update()
        a("s_branch %s_fd" % l)
        a.lab(l)
        a("s_barrier")
        a.lab("%s_fd" % l)

    def y_wait_inputs(self):
        if not self.fused(): return
        a = self.a
        a("v_mbcnt_lo_u32_b32 v0, -1, 0")
        a("v_mbcnt_hi_u32_b32 v0, -1, v0")
        a("s_mul_i32 s67, s7, 320")
        a("s_add_u32 s67, s67, %d" % WS_FY)
        a("v_lshl_add_u32 v1, v0, 2, s67")
        a("v_add_u32 v2, 256, v1")
        a("s_lshl_b32 s68, s6, 5")
        a("s_add_u32 s68, s68, %d" % (WS_FG - 64))
        a("v_lshl_add_u32 v3, v0, 2, s68")
        a("v_cmp_le_u32 vcc, 16, v0")
        a("s_nop 1")
        a("v_cndmask_b32 v2, v2, v3, vcc")
        a("v_subrev_u32 v3, 24, v0")
        a("v_lshlrev_b32 v3, 10, v3")
        a("s_lshl_b32 s68, s2, 2")
        a("s_add_u32 s68, s68, %d" % WS_FY)
        a("v_add_u32 v3, s68, v3")
        a("v_cmp_le_u32 vcc, 24, v0")
        a("s_nop 1")
        a("v_cndmask_b32 v2, v2, v3, vcc")
        a("s_cmp_lt_u32 s2, 128")
        a("s_cselect_b32 s68, 27, 26")
        a("v_mov_b32 v3, s67")
        a("v_cmp_le_u32 vcc, s68, v0")
        a("s_nop 1")
        a("v_cndmask_b32 v2, v2, v3, vcc")
        def loads():
            a("buffer_load_dword v4, v1, s[20:23], 0 offen sc1")
            a("buffer_load_dword v5, v2, s[20:23], 0 offen sc1")
        self.poll(loads, [4, 5], 6, sleep=8)

    def fused(self): return "fused" in self.ph

    def nonce_load(self):
        a = self.a
        a("v_mov_b32 v1, 0")
        a("s_mov_b32 s67, %d" % WS_NON)
        a("buffer_load_dword v242, v1, s[20:23], s67 offen sc1")
    def nonce_publish_local(self):
        a = self.a
        a("v_add_u32 v242, 1, v242")
        a("v_mov_b32 v1, %d" % LDS_NONCE)
        a("ds_write_b32 v1, v242")
        a("v_readfirstlane_b32 s64, v242")
    def nonce_update(self):
        a = self.a
        l = self.newlab("nu")
        a("s_cmp_lg_u32 s2, 0")
        a("s_cbranch_scc1 %s" % l)
        a("v_mbcnt_lo_u32_b32 v2, -1, 0")
        a("v_mbcnt_hi_u32_b32 v2, -1, v2")
        a("v_lshlrev_b32 v2, 4, v2")
        a("s_mov_b32 s78, %d" % WS_FG)
        self.poll(lambda: a("buffer_load_dwordx4 v[4:7], v2, s[20:23], s78 offen sc1"), [4, 5, 6, 7], 2, sleep=8)
        a("s_mov_b32 s69, %d" % WS_NON)
        self.flag_set("s69", 2)
        a.lab(l)

    def nonce_read(self, vt):
        a = self.a
        a("v_mov_b32 v%d, %d" % (vt, LDS_NONCE))
        a("ds_read_b32 v%d, v%d" % (vt, vt))
        a("s_waitcnt lgkmcnt(0)")
        a("v_readfirstlane_b32 s64, v%d" % vt)

    def flag_set(self, soff_reg, vt):
        a = self.a
        a("v_mov_b32 v%d, s64" % vt)
        a("v_mov_b32 v%d, 0" % (vt + 1))
        a("s_mov_b64 exec, 1")
        a("buffer_store_dword v%d, v%d, s[20:23], %s offen sc1" % (vt, vt + 1, soff_reg))
        a("s_mov_b64 exec, -1")

    def poll(self, loads, vregs, vt, sleep=8):
        a = self.a
        lp = self.newlab("pl"); ld = self.newlab("pd")
        a("s_mov_b32 s69, 0")
        a.lab(lp)
        loads()
        a("s_waitcnt vmcnt(0)")
        for i, r in enumerate(vregs):
            if i == 0: a("v_cmp_eq_u32 vcc, s64, v%d" % r)
            else:
                a("v_cmp_eq_u32 s[76:77], s64, v%d" % r)
                a("s_nop 1")
                a("s_and_b64 vcc, vcc, s[76:77]")
        a("s_nop 1")
        a("s_cmp_eq_u64 vcc, -1")
        a("s_cbranch_scc1 %s" % ld)
        a("s_add_u32 s69, s69, 1")
        a("s_cmp_lt_u32 s69, 0x40000")
        a("s_cbranch_scc0 %s" % ld)
        a("s_sleep %d" % sleep)
        a("s_branch %s" % lp)
        a.lab(ld)

    def look_line(self, soff, nflags, vt):
        a = self.a
        a("v_mbcnt_lo_u32_b32 v%d, -1, 0" % vt)
        a("v_mbcnt_hi_u32_b32 v%d, -1, v%d" % (vt, vt))
        a("v_cmp_gt_u32 vcc, %d, v%d" % (nflags, vt))
        a("v_lshlrev_b32 v%d, 2, v%d" % (vt, vt))
        a("s_nop 0")
        a("v_cndmask_b32 v%d, 0, v%d, vcc" % (vt, vt))
        a("buffer_load_dword v%d, v%d, s[20:23], %s offen sc1" % (vt + 1, vt, soff))

    def check_line(self, soff, vt, nyounger, sleep=2):
        a = self.a
        l = self.newlab("ck")
        a("s_waitcnt vmcnt(%d)" % nyounger)
        a("v_cmp_eq_u32 vcc, s64, v%d" % (vt + 1))
        a("s_nop 1")
        a("s_cmp_eq_u64 vcc, -1")
        a("s_cbranch_scc1 %s" % l)
        self.poll(lambda: a("buffer_load_dword v%d, v%d, s[20:23], %s offen sc1" % (vt + 1, vt, soff)), [vt + 1], vt, sleep)
        a.lab(l)

    def poll_line(self, soff, nflags, vt, sleep=8):
        a = self.a
        a("v_mbcnt_lo_u32_b32 v%d, -1, 0" % vt)
        a("v_mbcnt_hi_u32_b32 v%d, -1, v%d" % (vt, vt))
        a("v_cmp_gt_u32 vcc, %d, v%d" % (nflags, vt))
        a("v_lshlrev_b32 v%d, 2, v%d" % (vt, vt))
        a("s_nop 0")
        a("v_cndmask_b32 v%d, 0, v%d, vcc" % (vt, vt))
        self.poll(lambda: a("buffer_load_dword v%d, v%d, s[20:23], %s offen sc1" % (vt + 1, vt, soff)), [vt + 1], vt, sleep)

    def build(self):
        a = self.a
        n = self.name
        a.l.append(".globl %s" % n)
        a.l.append(".p2align 8")
        a.l.append(".type %s,@function" % n)
        a.l.append("%s:" % n)
        self.prologue()
        a("s_cmp_ge_u32 s3, 4")
        a("s_cbranch_scc1 %s_S" % n)
        if "g1" in self.ph:
            self.g_gemm1()
        if "g2" in self.ph:
            self.g_gemm2()
        self.dbgtime_end()
        self.stamp_flush()
        a("s_endpgm")
        a.lab("%s_S" % n)
        if "g1" in self.ph:
            self.s_phase1()
        if "ssm" in self.ph:
            self.s_ssm()
        if "g2" in self.ph:
            self.s_final()
        self.stamp_flush()
        a.lab("%s_end" % n)
        a("s_endpgm")
        return a.text()

def kd(name):
    return """.amdhsa_kernel %s
  .amdhsa_next_free_vgpr 256
  .amdhsa_next_free_sgpr 102
  .amdhsa_accum_offset 256
  .amdhsa_group_segment_fixed_size 0
  .amdhsa_kernarg_size 136
  .amdhsa_user_sgpr_count 2
  .amdhsa_user_sgpr_kernarg_segment_ptr 1
  .amdhsa_system_sgpr_workgroup_id_x 1
.end_amdhsa_kernel
""" % name

HEADER = open("gated_mix__ssm_conv_s4__swiglu_ffn__prompt.s.ref").read().split("; Override launch")[0]

def emit(kernels, path):
    txt = HEADER
    if len(kernels) == 1:
        txt += "; @launch grid=(256,1,1) block=(512,1,1) lds=%d\n" % LDS_TOTAL
    else:
        for (n, p, s) in kernels:
            txt += "; @launch kernel=%s grid=(256,1,1) block=(512,1,1) lds=%d\n" % (n, LDS_TOTAL)
    txt += '.amdgcn_target "amdgcn-amd-amdhsa--gfx950"\n.text\n'
    for (n, p, s) in kernels:
        txt += Gen(n, p, s).build()
    txt += '.section .rodata,"a"\n'
    for (n, p, s) in kernels:
        txt += ".p2align 6\n" + kd(n)
    open(path, "w").write(txt)

if __name__ == "__main__":
    mode = sys.argv[1]; path = sys.argv[2]
    stamps = len(sys.argv) > 3 and sys.argv[3] == "stamps"
    if mode.startswith("g1+") or mode == "g1":
        emit([(KNAME, set(mode.split("+")), stamps)], path)
    elif mode == "g1,ssm":
        emit([("ka_kernel", {"g1"}, False), ("kb_kernel", {"ssm", "dumpk"}, stamps)], path)
    elif mode == "3k":
        emit([("ka_kernel", {"g1"}, False), ("kb_kernel", {"ssm"}, False), ("kc_kernel", {"g2"}, stamps)], path)
    elif mode == "3k+1":
        emit([("ka_kernel", {"g1"}, False), ("kb_kernel", {"ssm"}, False), ("kc_kernel", {"g2"}, stamps), ("kd_kernel", set(), False)], path)
    elif mode == "3k+3":
        emit([("ka_kernel", {"g1"}, False), ("kb_kernel", {"ssm"}, False), ("kc_kernel", {"g2"}, stamps), ("kd_kernel", set(), False), ("ke_kernel", set(), False), ("kf_kernel", set(), False)], path)
    elif mode == "3k_dbg":
        emit([("ka_kernel", {"g1", "dbgtime"}, False), ("kb_kernel", {"ssm"}, False), ("kc_kernel", {"g2", "dbgtime"}, False)], path)
    elif mode == "fused":
        emit([(KNAME, {"g1", "ssm", "g2", "fused"}, stamps)], path)
    elif mode == "fused_notouch":
        emit([(KNAME, {"g1", "ssm", "g2", "fused", "notouch"}, stamps)], path)
    elif mode == "fused_pk":
        emit([(KNAME, {"g1", "ssm", "g2", "fused", "pkhead"}, stamps)], path)
    elif mode.startswith("F:"):
        emit([(KNAME, {"g1", "ssm", "g2", "fused"} | set(mode[2:].split("+")), stamps)], path)
    elif mode == "fused_dbg":
        emit([(KNAME, {"g1", "ssm", "g2", "fused", "dbgtime"}, stamps)], path)
    elif mode == "g1,ssm,nodump":
        emit([("ka_kernel", {"g1"}, False), ("kb_kernel", {"ssm"}, stamps)], path)
```

```python
import sys, math

KNAME = "gated_mix__ssm_conv_s4__swiglu_ffn__prompt_kernel"

WS_H    = 0x000000
WS_WD   = 0x600000
ROWS    = 4224
WS_UT   = 0x800000
WS_Y    = 0xB00000
WS_G    = 0xE00000
WS_FU   = 0xE10000
WS_FW   = 0xE15000
WS_FH   = 0xE11000
WS_FY   = 0xE12000
WS_NON  = 0xE13000
WS_FG   = 0xE14000
WS_TS   = 0xF00000
WS_DBG  = 0x1000000

STAGE   = 40960
ST_WG   = 16384
ST_WU   = 28672
LDS_S   = 3 * STAGE
TABROW  = 272
TABTILE = 16 * TABROW
TAB_SZ  = 2 * TABTILE
LDS_TAB = LDS_S
KR_SZ   = 4224
LDS_KR  = LDS_TAB + 3 * TAB_SZ
LDS_MISC = LDS_KR + 3 * KR_SZ
LDS_TOTAL = 163840
LDS_NONCE = LDS_MISC
LDS_CNT   = LDS_MISC + 8
UC_STRIDE = 4640
UC_SZ   = 4 * UC_STRIDE
LDS_UC  = 0
LDS_WDS_EARLY = 148992
LDS_RED = 57344
LDS_YT  = LDS_TAB
LDS_GT  = LDS_MISC + 64
LDS_HOK = LDS_MISC + 12
LDS_WOK = LDS_MISC + 16
LDS_UOK = LDS_MISC + 20
LDS_GOK = LDS_MISC + 24
LDS_UCOK = LDS_MISC + 28
LDS_SFREE = LDS_MISC + 32

class Asm:
    def __init__(self):
        self.l = []
    def __call__(self, s):
        for x in s.split("\n"):
            x = x.strip()
            if x: self.l.append("    " + x)
    def lab(self, s):
        self.l.append(s + ":")
    def ext(self, lst):
        for x in lst: self(x)
    def text(self):
        return "\n".join(self.l) + "\n"

def interleave(main, fill, start=0, span=None):
    out = []
    m = len(fill)
    n = len(main) if span is None else min(len(main), start + span)
    j = 0
    for i, x in enumerate(main):
        out.append(x)
        if i >= start:
            tgt = (m * (i - start + 1) + (n - start) - 1) // (n - start) if n > start else m
            while j < min(tgt, m):
                f = fill[j]
                if isinstance(f, tuple): out.extend(f)
                else: out.append(f)
                j += 1
    while j < m:
        f = fill[j]
        if isinstance(f, tuple): out.extend(f)
        else: out.append(f)
        j += 1
    return out

def flat(L):
    o = []
    for x in L:
        if isinstance(x, tuple): o.extend(x)
        else: o.append(x)
    return o

def vr(a, n=1):
    return "v%d" % a if n == 1 else "v[%d:%d]" % (a, a + n - 1)
def sr(a, n=1):
    return "s%d" % a if n == 1 else "s[%d:%d]" % (a, a + n - 1)

S_W, S_WAVE, S_M, S_N, S_M2, S_N2 = 2, 3, 4, 5, 6, 7
SRD_X, SRD_WG, SRD_WU, SRD_WS, SRD_OUT, SRD_WD = 8, 12, 16, 20, 24, 28
P_U, P_ARE, P_AIM, P_BRE, P_BIM, P_CRE, P_CIM, P_LDT = 32, 34, 36, 38, 40, 42, 44, 46
P_DSK, P_BX, P_WG, P_WU, P_WD, P_GW, P_OUT, P_DBG, P_WS = 48, 50, 52, 54, 56, 58, 60, 62, 64
S_TS = 80

class Gen:
    def __init__(self, name, phases, stamps=False):
        self.name = name
        self.ph = phases
        self.a = Asm()
        self.stamps = stamps
        self.nlab = 0
    def newlab(self, p):
        self.nlab += 1
        return "L_%s_%s_%d" % (self.name[:6], p, self.nlab)

    def capture(self, fn):
        old = self.a
        self.a = Asm()
        fn()
        lst = [x.strip() for x in self.a.l]
        self.a = old
        return lst

    def clk(self, i):
        if "clk" in self.ph and self.stamps:
            self.a("s_memrealtime s[%d:%d]" % (S_TS + 2 * i, S_TS + 2 * i + 1))
            self.a("s_memtime s[%d:%d]" % (S_TS + 2 * i + 2, S_TS + 2 * i + 3))
            self.a("s_waitcnt lgkmcnt(0)")

    def stamp(self, i, force=False):
        if "clk" in self.ph and i != 0: return
        if ("kstamps" in self.ph or "k2stamps" in self.ph or "ststamps" in self.ph) and not force and i != 0: return
        if self.stamps:
            self.a("%s s[%d:%d]" % ("s_memrealtime" if "rt" in self.ph else "s_memtime", S_TS + 2 * i, S_TS + 2 * i + 1))
            self.a("s_waitcnt lgkmcnt(0)")
    def stamp_flush(self):
        if not self.stamps: return
        a = self.a
        a("s_lshl_b32 s66, s2, 3")
        a("s_add_u32 s66, s66, s3")
        a("s_lshl_b32 s66, s66, 7")
        a("s_add_u32 s66, s66, 0x%x" % WS_TS)
        a("v_mov_b32 v250, 0")
        for i in range(10):
            a("v_mov_b32 v252, s%d" % (S_TS + 2 * i))
            a("v_mov_b32 v253, s%d" % (S_TS + 2 * i + 1))
            a("buffer_store_dwordx2 v[252:253], v250, s[20:23], s66 offen offset:%d" % (8 * i))
            a("s_nop 1")
        a("s_waitcnt vmcnt(0)")

    def prologue(self):
        a = self.a
        a("s_cmp_ge_u32 s2, 256")
        a("s_cbranch_scc1 %s_end" % self.name)
        a("s_load_dwordx16 s[32:47], s[0:1], 0")
        a("s_load_dwordx16 s[48:63], s[0:1], 64")
        a("s_load_dwordx2 s[64:65], s[0:1], 128")
        if "warmc0" in self.ph: self.warm_code(early=True)
        a("v_lshrrev_b32 v1, 6, v0")
        a("v_and_b32 v0, 63, v0")
        a("v_readfirstlane_b32 s3, v1")
        a("s_and_b32 s66, s2, 7")
        a("s_lshr_b32 s67, s2, 3")
        a("s_and_b32 s68, s67, 7")
        a("s_lshr_b32 s69, s67, 3")
        a("s_and_b32 s70, s66, 1")
        a("s_lshl_b32 s70, s70, 3")
        a("s_or_b32 s4, s70, s68")
        a("s_lshr_b32 s70, s66, 1")
        a("s_lshl_b32 s70, s70, 2")
        a("s_or_b32 s5, s70, s69")
        a("s_and_b32 s70, s66, 3")
        a("s_lshl_b32 s70, s70, 3")
        a("s_or_b32 s6, s70, s68")
        a("s_lshr_b32 s70, s66, 2")
        a("s_lshl_b32 s70, s70, 2")
        a("s_or_b32 s7, s70, s69")
        if "sametile" in self.ph:
            a("s_mov_b32 s4, 0"); a("s_mov_b32 s5, 0")
        if "samem" in self.ph:
            a("s_mov_b32 s4, 0")
        if "samen" in self.ph:
            a("s_mov_b32 s5, 0")
        if self.stamps:
            for i in range(10):
                a("s_mov_b64 s[%d:%d], 0" % (S_TS + 2 * i, S_TS + 2 * i + 1))
        a("s_waitcnt lgkmcnt(0)")
        def srd(base, ptr, size):
            a("s_mov_b32 s%d, s%d" % (base, ptr))
            a("s_and_b32 s%d, s%d, 0xffff" % (base + 1, ptr + 1))
            a("s_mov_b32 s%d, 0x%x" % (base + 2, size))
            a("s_mov_b32 s%d, 0x20000" % (base + 3))
        srd(SRD_X, P_U, 2048 * 640 * 2)
        srd(SRD_WG, P_WG, 640 * 1536 * 2)
        srd(SRD_WU, P_WU, 640 * 1536 * 2)
        srd(SRD_WS, P_WS, 0x10000000)
        srd(SRD_OUT, P_OUT, 2048 * 640 * 2)
        srd(SRD_WD, P_WD, 640 * 1536 * 2)
        self.stamp(0)
        if "dbgtime" in self.ph:
            a("s_memrealtime s[96:97]")
            a("s_memtime s[98:99]")
            a("s_mov_b64 s[100:101], s[62:63]")
            a("s_waitcnt lgkmcnt(0)")

    def dbgtime_end(self):
        a = self.a
        if "dbgtime" not in self.ph: return
        l = self.newlab("dbt")
        a("s_cmp_lg_u32 s2, 0"); a("s_cbranch_scc1 %s" % l)
        a("s_cmp_lg_u32 s3, 0"); a("s_cbranch_scc1 %s" % l)
        a("s_waitcnt vmcnt(0)")
        a("s_memrealtime s[92:93]")
        a("s_memtime s[94:95]")
        a("s_waitcnt lgkmcnt(0)")
        a("s_sub_u32 s92, s92, s96")
        a("s_sub_u32 s94, s94, s98")
        a("v_mov_b32 v250, 0")
        a("v_mov_b32 v252, s92")
        a("v_mov_b32 v253, s94")
        a("v_mov_b32 v254, s96")
        a("v_mov_b32 v255, 0x1234")
        a("global_store_dwordx4 v250, v[252:255], s[100:101]")
        a("s_waitcnt vmcnt(0)")
        a.lab(l)

    def rot_r(self, dst, tmp):
        a = self.a
        a("s_lshr_b32 %s, s5, 1" % dst)
        a("s_cmp_ge_u32 %s, 5" % dst)
        a("s_cselect_b32 %s, 1, 0" % tmp)
        a("s_cmp_ge_u32 %s, 1" % dst)
        a("s_addc_u32 %s, %s, %s" % (dst, dst, tmp))

    def g_gemm1(self):
        a = self.a
        ACC = 0; FP = 96; FQ = 136
        VXB = 176
        VWA = 182
        VL16 = 196
        T = 200
        accg = lambda ft, tt: ACC + (ft * 4 + tt) * 4
        accu = lambda ft, tt: ACC + 48 + (ft * 4 + tt) * 4
        LANE = 197
        a("v_mov_b32 v%d, v0" % LANE)
        a("s_and_b32 s67, s3, 1")
        a("s_lshr_b32 s68, s3, 1")
        VOX = 191
        a("v_lshrrev_b32 v%d, 3, v%d" % (T, LANE))
        a("s_lshl_b32 s69, s4, 7")
        a("s_lshl_b32 s70, s3, 5")
        a("s_add_u32 s69, s69, s70")
        a("v_add_u32 v%d, s69, v%d" % (T, T))
        a("s_movk_i32 s70, 1280")
        a("v_mul_lo_u32 v%d, v%d, s70" % (T, T))
        a("v_and_b32 v%d, 7, v%d" % (T + 1, LANE))
        a("v_lshrrev_b32 v%d, 4, v%d" % (T + 2, LANE))
        a("v_xor_b32 v%d, v%d, v%d" % (T + 3, T + 1, T + 2))
        a("v_xor_b32 v%d, 4, v%d" % (T + 4, T + 3))
        a("v_lshl_add_u32 v%d, v%d, 4, v%d" % (VOX, T + 3, T))
        a("v_lshl_add_u32 v%d, v%d, 4, v%d" % (VOX + 1, T + 4, T))
        a("s_lshl_b32 s75, s3, 12")
        VOW = 193
        a("s_lshl_b32 s69, s3, 4")
        a("s_mul_i32 s69, s69, 3072")
        a("s_mul_i32 s70, s5, 192")
        a("s_add_u32 s69, s69, s70")
        a("s_mov_b32 s70, 43691")
        a("s_movk_i32 s71, 3072")
        for i in range(3):
            a("v_add_u32 v%d, %d, v%d" % (T, 64 * i, LANE))
            a("v_mul_lo_u32 v%d, v%d, s70" % (T + 1, T))
            a("v_lshrrev_b32 v%d, 19, v%d" % (T + 1, T + 1))
            a("v_mul_u32_u24 v%d, 12, v%d" % (T + 2, T + 1))
            a("v_sub_u32 v%d, v%d, v%d" % (T + 2, T, T + 2))
            a("v_lshrrev_b32 v%d, 2, v%d" % (T + 3, T + 1))
            a("v_and_b32 v%d, 2, v%d" % (T + 3, T + 3))
            a("v_xor_b32 v%d, v%d, v%d" % (T + 2, T + 2, T + 3))
            a("v_mul_lo_u32 v%d, v%d, s71" % (T + 1, T + 1))
            a("v_lshl_add_u32 v%d, v%d, 4, v%d" % (T + 1, T + 2, T + 1))
            a("v_add_u32 v%d, s69, v%d" % (T + 1, T + 1))
            a("v_subrev_u32 v%d, %d, v%d" % (VOW + i, 1024 * i, T + 1))
        a("s_mul_i32 s76, s3, 3072")
        a("s_add_u32 s77, s76, %d" % ST_WU)
        a("s_add_u32 s76, s76, %d" % ST_WG)
        self.rot_r("s74", "s72")
        def xdma(st):
            base = (st % 3) * STAGE
            L = []
            for i in range(4):
                if i == 0:
                    L.append(("s_lshl_b32 s72, s74, 7", "s_mul_i32 s73, s74, 196608", "s_add_u32 s74, s74, 1",
                              "s_add_u32 m0, s75, %d" % base, "s_cmp_eq_u32 s74, 10", "s_cselect_b32 s74, 0, s74",
                              "buffer_load_dwordx4 v%d, s[8:11], s72 offen lds" % VOX))
                else:
                    L.append(("s_add_u32 s70, s72, %d" % (9216 * i),
                              "buffer_load_dwordx4 v%d, s[8:11], s70 offen offset:%d lds" % (VOX + (i & 1), 1024 * i)))
            for mat, sm, srd in (() if "s3w" in self.ph else ((0, 76, "s[12:15]"), (1, 77, "s[16:19]"))):
                for i in range(3):
                    ld = "buffer_load_dwordx4 v%d, %s, s73 offen offset:%d lds" % (VOW + i, srd, 1024 * i)
                    if mat == 1 and "nowu" in self.ph: ld = "s_nop 0"
                    if i == 2 and "now2" in self.ph: ld = "s_nop 0"
                    if i == 0: L.append(("s_add_u32 m0, s%d, %d" % (sm, base), "s_nop 0", ld))
                    else: L.append(ld)
            return L
        if "ststamps" in self.ph: self.stamp(1, force=True)
        a.ext(flat(xdma(0)))
        if "late1" not in self.ph: a.ext(flat(xdma(1)))
        if "ststamps" in self.ph: self.stamp(2, force=True)
        if "nobpre" not in self.ph: a("s_barrier")
        a("v_and_b32 v%d, 15, v%d" % (T, LANE))
        a("v_lshrrev_b32 v%d, 4, v%d" % (T + 1, LANE))
        a("s_lshl_b32 s69, s67, 6")
        a("v_add_u32 v%d, s69, v%d" % (T + 2, T))
        a("v_lshlrev_b32 v%d, 7, v%d" % (T + 2, T + 2))
        a("v_lshrrev_b32 v%d, 1, v%d" % (T + 3, T))
        a("v_and_b32 v%d, 7, v%d" % (T + 3, T + 3))
        a("v_xor_b32 v%d, v%d, v%d" % (T + 3, T + 3, T + 1))
        a("v_xor_b32 v%d, 4, v%d" % (T + 4, T + 3))
        a("v_lshl_add_u32 v%d, v%d, 4, v%d" % (VXB, T + 3, T + 2))
        a("v_lshl_add_u32 v%d, v%d, 4, v%d" % (VXB + 1, T + 4, T + 2))
        for st in (1, 2):
            for s in range(2):
                a("v_add_u32 v%d, %d, v%d" % (VXB + 2 * st + s, st * STAGE, VXB + s))
        a("v_lshrrev_b32 v%d, 2, v%d" % (T + 2, T))
        a("v_lshl_add_u32 v%d, v%d, 3, v%d" % (T + 2, T + 1, T + 2))
        a("v_mul_u32_u24 v%d, 192, v%d" % (T + 2, T + 2))
        a("v_and_b32 v%d, 3, v%d" % (T + 3, LANE))
        a("v_lshl_add_u32 v%d, v%d, 3, v%d" % (T + 2, T + 3, T + 2))
        a("v_add_u32 v%d, %d, v%d" % (T + 2, ST_WG, T + 2))
        a("v_and_b32 v%d, 1, v%d" % (T + 3, T + 1))
        a("s_lshl_b32 s69, s68, 2")
        a("s_add_u32 s78, s69, 1")
        a("s_add_u32 s79, s68, 2")
        for ft, sreg in ((0, 69), (1, 78), (2, 79)):
            a("v_xor_b32 v%d, s%d, v%d" % (T + 4, sreg, T + 3))
            a("v_lshl_add_u32 v%d, v%d, 5, v%d" % (VWA + ft, T + 4, T + 2))
        for st in (1, 2):
            for ft in range(3):
                a("v_add_u32 v%d, %d, v%d" % (VWA + 3 * st + ft, st * STAGE, VWA + ft))
        a("v_lshlrev_b32 v%d, 4, v%d" % (VL16, LANE))
        a("s_lshl_b32 s69, s4, 1")
        a("s_add_u32 s69, s69, s67")
        a("s_mul_i32 s69, s69, 48")
        a("s_mul_i32 s78, s5, 3")
        a("s_add_u32 s69, s69, s78")
        a("s_lshl_b32 s78, s68, 1")
        a("s_add_u32 s78, s78, s69")
        a("s_lshl_b32 s78, s78, 12")
        a("s_add_u32 s79, s69, 1")
        a("s_lshl_b32 s79, s79, 12")
        a("s_lshl_b32 s69, s68, 9")
        a("s_add_u32 s79, s79, s69")
        a("v_lshlrev_b32 v%d, 3, v%d" % (VL16 + 2, LANE))
        if WS_H:
            a("s_add_u32 s78, s78, %d" % WS_H); a("s_add_u32 s79, s79, %d" % WS_H)

        def reads(kk, s, F):
            st = kk % 3
            xs = ["ds_read_b128 v[%d:%d], v%d offset:%d" % (F + 4 * tt, F + 4 * tt + 3, VXB + 2 * st + s, 2048 * tt) for tt in range(4)]
            ws = []
            for mat in range(2):
                for ft in range(3):
                    r = F + 16 + (mat * 3 + ft) * 4
                    for h in range(2):
                        ws.append("ds_read_b64_tr_b16 v[%d:%d], v%d offset:%d" % (r + 2 * h, r + 2 * h + 1, VWA + 3 * st + ft, 12288 * mat + 6144 * s + 768 * h))
            order = [xs[0], ws[0], ws[1], xs[1], ws[6], ws[7], xs[2], xs[3]] + ws[2:6] + ws[8:]
            return order
        def mfmas(F, first):
            L = []
            for ft in range(3):
                for mat in range(2):
                    for tt in range(4):
                        acc = accg(ft, tt) if mat == 0 else accu(ft, tt)
                        A = F + 16 + (mat * 3 + ft) * 4
                        B = F + 4 * tt
                        c = "0" if first else "v[%d:%d]" % (acc, acc + 3)
                        L.append("v_mfma_f32_16x16x32_bf16 v[%d:%d], v[%d:%d], v[%d:%d], %s" % (acc, acc + 3, A, A + 3, B, B + 3, c))
            return L
        def spread(mm, d, first, step):
            out = []; cnt = 0; di = 0
            for x in mm:
                out.append(x)
                if x.startswith("v_mfma"):
                    cnt += 1
                    if cnt >= first and (cnt - first) % step == 0 and di < len(d):
                        f = d[di]; di += 1
                        out.extend(f if isinstance(f, tuple) else (f,))
            assert di == len(d), (di, len(d))
            return out
        self.stamp(5)
        ND = 4 if "s3w" in self.ph else (7 if "nowu" in self.ph else (8 if "now2" in self.ph else 10))
        a("s_waitcnt vmcnt(%d)" % (0 if "late1" in self.ph else ND))
        if "ststamps" in self.ph: self.stamp(3, force=True)
        a("s_barrier")
        if "ststamps" in self.ph: self.stamp(4, force=True)
        if "late1" in self.ph: a.ext(flat(xdma(1)))
        self.stamp(1)
        self.clk(1)
        a.ext(reads(0, 0, FP))
        a("s_waitcnt lgkmcnt(0)")
        pend = xdma(2)
        for kk in range(10):
            mm = interleave(mfmas(FP, kk == 0), reads(kk, 1, FQ), span=16)
            if pend: mm = spread(mm, pend, 2, (10 if len(pend) <= 2 else 5) if len(pend) <= 5 else 2)
            a.ext(mm)
            if kk <= 7: a("s_waitcnt vmcnt(%d) lgkmcnt(0)" % ND)
            elif kk == 8: a("s_waitcnt vmcnt(0) lgkmcnt(0)")
            else: a("s_waitcnt lgkmcnt(0)")
            if kk == 9 and self.fused(): self.lds_inc(LDS_SFREE, T)
            else: a("s_barrier")
            if "kstamps" in self.ph and kk < 9: self.stamp(kk + 1, force=True)
            if "ststamps" in self.ph and kk < 5: self.stamp(kk + 5, force=True)
            fill = reads(kk + 1, 0, FP) if kk + 1 < 10 else []
            mm = interleave(mfmas(FQ, False), fill, span=16)
            d = xdma(kk + 3) if kk + 3 < 10 else []
            if "dmaB" in self.ph:
                pend = []
                if d: mm = spread(mm, d, 2, 2)
            elif "dma73" in self.ph:
                pend = d[7:]
                if d: mm = spread(mm, d[:7], 2, 3)
            elif "s3w" in self.ph:
                pend = d[2:]
                if d: mm = spread(mm, d[:2], 4, 10)
            else:
                pend = d[5:]
                if d: mm = spread(mm, d[:5], 2, 5)
            a.ext(mm)
            if kk + 1 < 10:
                a("s_waitcnt lgkmcnt(0)")
        self.stamp(2)
        self.clk(3)
        epb = "epb" in self.ph and "g2" in self.ph
        if epb: CN, ONE, OUTB, TMPB, TMPS = 200, 202, 116, 152, 8
        else: CN, ONE, OUTB, TMPB, TMPS = FP, FP + 2, FP + 8, FQ, 16
        E = []
        E.append("v_mov_b32 v%d, 0xbfb8aa3b" % CN)
        E.append("v_mov_b32 v%d, 0xbfb8aa3b" % (CN + 1))
        E.append("v_mov_b32 v%d, 1.0" % ONE)
        E.append("v_mov_b32 v%d, 1.0" % (ONE + 1))
        grp = 0
        def silu(gregs, uregs, tmp, out):
            n = len(gregs)
            L = []
            for i in range(n): L.append("v_pk_mul_f32 v[%d:%d], v[%d:%d], v[%d:%d]" % (tmp + 2 * i, tmp + 2 * i + 1, gregs[i], gregs[i] + 1, CN, CN + 1))
            for i in range(2 * n): L.append("v_exp_f32 v%d, v%d" % (tmp + i, tmp + i))
            for i in range(n): L.append("v_pk_mul_f32 v[%d:%d], v[%d:%d], v[%d:%d]" % (gregs[i], gregs[i] + 1, gregs[i], gregs[i] + 1, uregs[i], uregs[i] + 1))
            for i in range(n): L.append("v_pk_add_f32 v[%d:%d], v[%d:%d], v[%d:%d]" % (tmp + 2 * i, tmp + 2 * i + 1, tmp + 2 * i, tmp + 2 * i + 1, ONE, ONE + 1))
            for i in range(2 * n): L.append("v_rcp_f32 v%d, v%d" % (tmp + i, tmp + i))
            if n < 2: L.append("s_nop 0")
            for i in range(n): L.append("v_pk_mul_f32 v[%d:%d], v[%d:%d], v[%d:%d]" % (gregs[i], gregs[i] + 1, gregs[i], gregs[i] + 1, tmp + 2 * i, tmp + 2 * i + 1))
            for i in range(n): L.append("v_cvt_pk_bf16_f32 v%d, v%d, v%d" % (out + i, gregs[i], gregs[i] + 1))
            return L
        for tt in range(4):
            tmp = TMPB + (grp % 2) * TMPS; out = OUTB + (grp % 4) * 4; grp += 1
            g = [accg(0, tt), accg(0, tt) + 2, accg(1, tt), accg(1, tt) + 2]
            u = [accu(0, tt), accu(0, tt) + 2, accu(1, tt), accu(1, tt) + 2]
            E += silu(g, u, tmp, out)
            E.append("buffer_store_dwordx4 v[%d:%d], v%d, s[20:23], s78 offen offset:%d sc1" % (out, out + 3, VL16, 1024 * tt))
            tmp = TMPB + (grp % 2) * TMPS; out = OUTB + (grp % 4) * 4; grp += 1
            g = [accg(2, tt), accg(2, tt) + 2]
            u = [accu(2, tt), accu(2, tt) + 2]
            E += silu(g, u, tmp, out)
            E.append("buffer_store_dwordx2 v[%d:%d], v%d, s[20:23], s79 offen offset:%d sc1" % (out, out + 1, VL16 + 2, 1024 * tt))
        if epb:
            self.g2_setup()
            if self.fused(): self.lds_spin(LDS_WOK, 232, treg="s80x")
            regl, dmal = self.g2_burst_atoms()
            half = len(E) // 2
            a.ext(interleave(E[:half], regl, start=4))
            if self.fused(): self.lds_spin(LDS_SFREE, 232, 4, treg="s80x")
            a.ext(interleave(E[half:], dmal))
        else:
            a.ext(E)
        self.stamp(3)
        if "g2" not in self.ph:
            a("s_waitcnt vmcnt(0)")
            self.stamp(4)

    def g_signal_h(self, nyounger):
        a = self.a
        T = 232
        if nyounger is not None: a("s_waitcnt vmcnt(%d)" % nyounger)
        if self.fused():
            l = self.newlab("fh")
            a("v_mov_b32 v%d, %d" % (T, LDS_CNT))
            a("v_mov_b32 v%d, 1" % (T + 1))
            a("s_mov_b64 exec, 1")
            a("ds_add_rtn_u32 v%d, v%d, v%d" % (T + 2, T, T + 1))
            a("s_waitcnt lgkmcnt(0)")
            a("s_mov_b64 exec, -1")
            a("v_readfirstlane_b32 s69, v%d" % (T + 2))
            a("s_nop 1")
            a("s_cmp_lg_u32 s69, 3")
            a("s_cbranch_scc1 %s" % l)
            a("s_lshl_b32 s69, s4, 5")
            a("s_add_u32 s69, s69, s5")
            a("s_lshl_b32 s69, s69, 2")
            a("s_add_u32 s69, s69, %d" % WS_FH)
            self.flag_set("s69", T)
            a.lab(l)
        self.stamp(4)

    def lds_inc(self, addr, vt):
        a = self.a
        a("v_mov_b32 v%d, %d" % (vt, addr))
        a("v_mov_b32 v%d, 1" % (vt + 1))
        a("s_mov_b64 exec, 1")
        a("ds_add_u32 v%d, v%d" % (vt, vt + 1))
        a("s_mov_b64 exec, -1")

    def lds_spin(self, addr, vt, val=1, treg=None):
        a = self.a
        st = "s78" if treg is None else "s68"
        lp = self.newlab("ls"); ld = self.newlab("ld")
        a("v_mov_b32 v%d, %d" % (vt, addr))
        a("s_mov_b32 s69, 0")
        a.lab(lp)
        a("ds_read_b32 v%d, v%d" % (vt + 1, vt))
        a("s_waitcnt lgkmcnt(0)")
        a("v_readfirstlane_b32 %s, v%d" % (st, vt + 1))
        a("s_nop 1")
        a("s_cmp_eq_u32 %s, %d" % (st, val))
        a("s_cbranch_scc1 %s" % ld)
        a("s_add_u32 s69, s69, 1")
        a("s_cmp_lt_u32 s69, 0x400000")
        a("s_cbranch_scc0 %s" % ld)
        a("s_sleep 1")
        a("s_branch %s" % lp)
        a.lab(ld)

    def s_kgen_phase1(self):
        a = self.a
        NCH = 8
        chunks = [[] for _ in range(NCH)]
        if "ssm" in self.ph:
            a("s_lshl_b32 s50, s66, 8")
            a("s_add_u32 s50, s50, s2")
            a("s_min_u32 s50, s50, 639")
            self.kgen_bases()
            if "kghead" in self.ph:
                kg = self.capture(lambda: self.kgen("head"))
                if "bigI0" in self.ph:
                    first = min(len(kg), 140 if "I0s" in self.ph else 230)
                    rest = kg[first:]
                    per = (len(rest) + NCH - 1) // NCH
                    chunk0 = kg[:first]
                    chunks = [rest[i * per:(i + 1) * per] for i in range(NCH)]
                else:
                    per = (len(kg) + NCH - 1) // NCH
                    chunks = [kg[i * per:(i + 1) * per] for i in range(NCH)]
        self.stamp(5)
        if "prioS" in self.ph: a("s_setprio 2")
        if "nobpre" not in self.ph: a("s_barrier")
        pw = "pwarm" in self.ph
        if "ssm" in self.ph and pw: self.ssm_param_warm()
        if "ssm" in self.ph and "kghead" in self.ph and not pw: self.ssm_param_loads(slots=((0, 1) if "kg2" in self.ph else (0,)))
        a("s_barrier")
        if "ssm" in self.ph and pw:
            a("s_waitcnt lgkmcnt(0)")
            self.ssm_param_loads()
        self.stamp(1)
        if "bigI0" in self.ph and "kghead" in self.ph:
            a("s_waitcnt vmcnt(0)")
            a.ext(chunk0)
        for kk in range(10):
            if not (kk == 9 and self.fused()): a("s_barrier")
            if kk == 1 and "kghead" in self.ph and "bigI0" not in self.ph: a("s_waitcnt vmcnt(0)")
            if kk == 7 and "ssm" in self.ph and not pw:
                if "kghead" in self.ph: self.ssm_param_loads(slots=((2,) if "kg2" in self.ph else (1, 2)), scalars=False)
                else: self.ssm_param_loads()
            if "bigI0" in self.ph:
                if kk < NCH: a.ext(chunks[kk])
            elif 1 <= kk <= NCH: a.ext(chunks[kk - 1])
        self.stamp(2)

    def side_setup(self):
        a = self.a
        a("s_mov_b32 s67, 52429")
        a("s_movk_i32 s68, 1280")
        for i in range(5):
            a("v_add_u32 v1, %d, v0" % (64 * i))
            a("v_mul_lo_u32 v2, v1, s67")
            a("v_lshrrev_b32 v2, 19, v2")
            a("v_mul_u32_u24 v3, 10, v2")
            a("v_sub_u32 v3, v1, v3")
            a("v_mul_lo_u32 v2, v2, s68")
            a("v_lshl_add_u32 v%d, v3, 4, v2" % (230 + i))
        a("v_lshrrev_b32 v1, 4, v0")
        a("v_and_b32 v2, 15, v0")
        a("v_lshrrev_b32 v3, 2, v2")
        a("v_lshl_add_u32 v4, v1, 2, v3")
        a("v_mul_u32_u24 v4, 160, v4")
        a("v_add_u32 v4, %d, v4" % (STAGE if "wdlate" in self.ph else LDS_WDS_EARLY))
        a("v_and_b32 v5, 3, v0")
        a("v_lshl_add_u32 v235, v5, 4, v4")
        a("v_lshl_add_u32 v236, v5, 3, v4")
        a("v_lshlrev_b32 v237, 4, v0")
        a("v_lshlrev_b32 v241, 2, v0")
        a("v_lshl_add_u32 v4, v1, 3, v3")
        a("v_lshlrev_b32 v4, 7, v4")
        a("v_bfe_u32 v5, v0, 1, 1")
        a("v_lshrrev_b32 v6, 1, v3")
        a("v_xor_b32 v5, v5, v6")
        a("v_lshl_add_u32 v4, v5, 4, v4")
        a("v_and_b32 v5, 1, v0")
        a("v_lshl_add_u32 v4, v5, 3, v4")
        a("v_and_b32 v5, 1, v1")
        a("v_lshl_add_u32 v238, v5, 6, v4")
        a("v_xor_b32 v5, 1, v5")
        a("v_lshl_add_u32 v239, v5, 6, v4")
        a("v_mul_u32_u24 v240, %d, v2" % ROWS)
        a("v_lshl_add_u32 v240, v1, 4, v240")
        a("s_add_u32 s51, s2, 128")
        a("s_cmp_ge_u32 s2, 128")
        a("s_cselect_b32 s51, s51, 999")
        a("s_lshr_b32 s52, s5, 1")
        a("s_add_u32 s53, s52, 8")
        a("s_cmp_lt_u32 s5, 4")
        a("s_cselect_b32 s53, s53, 99")
    def wd_load(self, ureg, scr):
        a = self.a
        if "nowd" in self.ph: return
        a("s_lshr_b32 s67, %s, 3" % ureg)
        a("s_and_b32 s68, %s, 7" % ureg)
        a("s_mul_i32 s69, s67, %d" % (32 * 1280))
        a("s_mul_i32 s67, s68, 160")
        a("s_add_u32 s69, s69, s67")
        for i in range(5):
            a("s_mov_b32 m0, %d" % ((STAGE if "wdlate" in self.ph else LDS_WDS_EARLY) + scr + 1024 * i))
            a("s_nop 0")
            a("buffer_load_dwordx4 v%d, s[28:31], s69 offen lds" % (230 + i))
    def wd_store(self, ureg, scr, R=160):
        a = self.a
        if "nowd" in self.ph: return
        for dt in range(5):
            for h in range(2):
                if dt < 4: ad, off = 235, 64 * (dt >> 1) + 8 * (dt & 1) + 2560 * h
                else: ad, off = 236, 128 + 2560 * h
                a("ds_read_b64_tr_b16 v[%d:%d], v%d offset:%d" % (R + 4 * dt + 2 * h, R + 1 + 4 * dt + 2 * h, ad, off + scr))
        a("s_lshr_b32 s67, %s, 3" % ureg)
        a("s_and_b32 s68, %s, 7" % ureg)
        a("s_mul_i32 s68, s68, 48")
        a("s_add_u32 s67, s67, s68")
        a("s_mul_i32 s67, s67, 5120")
        a("s_add_u32 s67, s67, %d" % WS_WD)
        a("s_add_u32 s68, s67, 4096")
        a("s_waitcnt lgkmcnt(0)")
        for dt in range(5):
            if dt < 4: a("buffer_store_dwordx4 v[%d:%d], v237, s[20:23], s67 offen offset:%d sc1" % (R + 4 * dt, R + 3 + 4 * dt, 1024 * dt))
            else: a("buffer_store_dwordx4 v[%d:%d], v237, s[20:23], s68 offen sc1" % (R + 4 * dt, R + 3 + 4 * dt))
    def gate_load(self):
        a = self.a
        a("v_and_b32 v1, 15, v0")
        a("v_lshlrev_b32 v1, 4, v1")
        for j in range(5):
            a("global_load_dwordx4 v[%d:%d], v1, s[%d:%d] offset:%d" % (8 + 4 * j, 11 + 4 * j, P_GW, P_GW + 1, 256 * j))
        a("v_lshrrev_b32 v2, 4, v0")
        a("s_movk_i32 s67, 1280")
        a("v_mul_lo_u32 v2, v2, s67")
        a("v_add_u32 v2, v2, v1")
        a("s_lshl_b32 s67, s2, 3")
        a("s_mul_i32 s67, s67, 1280")
        for half in range(2):
            for j in range(5):
                r = 28 + 20 * half + 4 * j
                a("buffer_load_dwordx4 v[%d:%d], v2, s[8:11], s67 offen offset:%d" % (r, r + 3, 256 * j))
            if half == 0: a("s_add_u32 s67, s67, %d" % (4 * 1280))
    def gate_compute(self):
        a = self.a
        R = 68
        for i in range(4): a("v_mov_b32 v%d, 0" % (R + i))
        for j in range(5):
            for e in range(4):
                for half in range(2):
                    acc = R + half + 2 * (e & 1)
                    a("v_dot2_f32_bf16 v%d, v%d, v%d, v%d" % (acc, 28 + 20 * half + 4 * j + e, 8 + 4 * j + e, acc))
        a("s_nop 2")
        a("v_add_f32 v%d, v%d, v%d" % (R, R, R + 2))
        a("v_add_f32 v%d, v%d, v%d" % (R + 1, R + 1, R + 3))
        a("s_nop 0")
        for ctl in ("row_shr:1", "row_shr:2", "row_shr:4", "row_shr:8"):
            for i in range(2):
                a("v_add_f32_dpp v%d, v%d, v%d %s row_mask:0xf bank_mask:0xf bound_ctrl:1" % (R + i, R + i, R + i, ctl))
            a("s_nop 0")
        for i in range(2): a("v_mul_f32 v%d, 0xbfb8aa3b, v%d" % (R + i, R + i))
        for i in range(2): a("v_exp_f32 v%d, v%d" % (R + i, R + i))
        a("s_nop 0")
        for i in range(2): a("v_add_f32 v%d, 1.0, v%d" % (R + i, R + i))
        for i in range(2): a("v_rcp_f32 v%d, v%d" % (R + i, R + i))
        a("s_lshl_b32 s67, s2, 5")
        a("s_add_u32 s67, s67, %d" % WS_G)
        a("v_lshrrev_b32 v1, 4, v0")
        a("v_lshlrev_b32 v1, 2, v1")
        a("s_mov_b32 exec_lo, 0x80008000")
        a("s_mov_b32 exec_hi, 0x80008000")
        a("buffer_store_dword v%d, v1, s[20:23], s67 offen sc1" % R)
        a("buffer_store_dword v%d, v1, s[20:23], s67 offen offset:16 sc1" % (R + 1))
        a("s_mov_b64 exec, -1")
    def ut_read(self, chunk_reg, stage_base, H):
        a = self.a
        if "noutr" in self.ph: return
        a("s_and_b32 s67, %s, 1" % chunk_reg)
        a("s_cmp_eq_u32 s67, 0")
        a("s_cselect_b64 vcc, -1, 0")
        a("s_nop 0")
        a("v_cndmask_b32 v4, v239, v238, vcc")
        a("v_add_u32 v4, %d, v4" % stage_base)
        for aa in range(2):
            for it in range(4):
                for hh in range(2):
                    r = H + (aa * 4 + it) * 4 + 2 * hh
                    a("ds_read_b64_tr_b16 v[%d:%d], v4 offset:%d" % (r, r + 1, 4096 * it + 512 * hh + 32 * (aa ^ hh)))
        a("s_waitcnt lgkmcnt(0)")
    def ut_store(self, chunk_reg, H):
        a = self.a
        if "nout" in self.ph: return
        a("s_mul_i32 s67, %s, %d" % (chunk_reg, 32 * ROWS))
        a("s_lshl_b32 s68, s4, 8")
        a("s_add_u32 s67, s67, s68")
        a("s_add_u32 s67, s67, %d" % WS_UT)
        a("s_add_u32 s68, s67, %d" % (16 * ROWS))
        for aa in range(2):
            for it in range(4):
                r = H + (aa * 4 + it) * 4
                a("buffer_store_dwordx4 v[%d:%d], v240, s[20:23], s%d offen offset:%d sc1" % (r, r + 3, 67 + aa, 64 * it))

    def pretouch(self):
        a = self.a
        a("v_and_b32 v1, 7, v0")
        a("v_lshlrev_b32 v1, 21, v1")
        a("buffer_load_dword v63, v1, s[20:23], 0 offen")
        a("v_and_b32 v1, 1, v0")
        a("v_lshlrev_b32 v1, 21, v1")
        a("buffer_load_dword v63, v1, s[24:27], 0 offen")
    def warm_inputs(self):
        a = self.a
        a("v_lshlrev_b32 v1, 7, v0")
        if "warmx" in self.ph:
            a("s_mul_i32 s67, s2, 10240")
            a("buffer_load_dword v244, v1, s[8:11], s67 offen")
            a("s_add_u32 s68, s67, 8192")
            a("s_mov_b32 exec_hi, 0")
            a("s_mov_b32 exec_lo, 0xffff")
            a("buffer_load_dword v244, v1, s[8:11], s68 offen")
            a("s_mov_b32 exec_lo, -1")
        a("s_mov_b32 exec_hi, 0x0fffffff")
        a("s_mul_i32 s67, s2, 7680")
        a("buffer_load_dword v244, v1, s[12:15], s67 offen")
        a("buffer_load_dword v244, v1, s[16:19], s67 offen")
        if "warm2" in self.ph:
            a("buffer_load_dword v244, v1, s[28:31], s67 offen")
        a("s_mov_b64 exec, -1")
        if "warm2" in self.ph:
            a("v_and_b32 v1, 7, v0")
            a("v_lshlrev_b32 v1, 7, v1")
            a("s_mul_i32 s67, s2, 960")
            a("v_add_u32 v1, s67, v1")
            a("v_min_u32 v1, %d, v1" % (245760 - 4))
            a("v_lshrrev_b32 v2, 3, v0")
            a("v_mov_b32 v4, s%d" % P_ARE); a("v_mov_b32 v5, s%d" % (P_ARE + 1))
            for k, p in enumerate((P_AIM, P_BRE, P_BIM, P_CRE, P_CIM)):
                a("v_cmp_eq_u32 vcc, %d, v2" % (k + 1))
                a("v_mov_b32 v6, s%d" % p); a("v_mov_b32 v7, s%d" % (p + 1))
                a("v_cndmask_b32 v4, v4, v6, vcc")
                a("v_cndmask_b32 v5, v5, v7, vcc")
            a("v_add_co_u32 v4, vcc, v4, v1")
            a("s_nop 1")
            a("v_addc_co_u32 v5, vcc, 0, v5, vcc")
            a("global_load_dword v244, v[4:5], off")

    def warm_code(self, early=False):
        a = self.a
        n = self.name
        l = self.newlab("pc"); l2 = self.newlab("pc")
        a("s_getpc_b64 s[68:69]")
        a.lab(l)
        a("s_sub_u32 s68, s68, %s-%s" % (l, n))
        a("s_subb_u32 s69, s69, 0")
        a("s_mov_b32 s67, (%s_end-%s+4095)/4096" % (n, n))
        a("s_lshr_b32 s70, s2, 3")
        a("s_mul_i32 s70, s70, s67")
        a("v_add_u32 v1, s70, v0")
        a("v_lshlrev_b32 v1, 7, v1")
        a("v_min_u32 v1, %s_end-%s, v1" % (n, n))
        a("v_cmp_gt_u32 vcc, s67, v0")
        a("s_and_saveexec_b64 s[70:71], vcc")
        a("s_cbranch_execz %s" % l2)
        a("global_load_dword v244, v1, s[68:69]")
        a.lab(l2)
        a("s_mov_b64 exec, s[70:71]")

    def smem_warm(self, part):
        a = self.a
        if part == 0:
            a("s_mul_i32 s67, s2, 7680")
            a("s_add_u32 s70, s%d, s67" % P_WD)
            a("s_addc_u32 s71, s%d, 0" % (P_WD + 1))
        for r in range(15 * part, 15 * part + 15):
            a("s_load_dword s74, s[70:71], %d" % (r * 128))

    def s3w_setup(self):
        a = self.a
        T = 1; VO = 245
        a("s_mul_i32 s69, s5, 192")
        a("s_mov_b32 s78, 43691")
        a("s_movk_i32 s79, 3072")
        for i in range(3):
            a("v_add_u32 v%d, %d, v0" % (T, 64 * i))
            a("v_mul_lo_u32 v%d, v%d, s78" % (T + 1, T))
            a("v_lshrrev_b32 v%d, 19, v%d" % (T + 1, T + 1))
            a("v_mul_u32_u24 v%d, 12, v%d" % (T + 2, T + 1))
            a("v_sub_u32 v%d, v%d, v%d" % (T + 2, T, T + 2))
            a("v_lshrrev_b32 v%d, 2, v%d" % (T + 3, T + 1))
            a("v_and_b32 v%d, 2, v%d" % (T + 3, T + 3))
            a("v_xor_b32 v%d, v%d, v%d" % (T + 2, T + 2, T + 3))
            a("v_mul_lo_u32 v%d, v%d, s79" % (T + 1, T + 1))
            a("v_lshl_add_u32 v%d, v%d, 4, v%d" % (T + 1, T + 2, T + 1))
            a("v_add_u32 v%d, s69, v%d" % (VO + i, T + 1))
        self.rot_r("s54", "s67")
    def s3w_younger0(self):
        n = 24 + (1 if self.fused() else 0)
        if "wdlate" not in self.ph: n += 5
        return n
    def s3w_dma(self, st):
        a = self.a
        VO = 245
        base = (st % 3) * STAGE
        a("s_mul_i32 s55, s54, 196608")
        a("s_add_u32 s54, s54, 1")
        a("s_cmp_eq_u32 s54, 10")
        a("s_cselect_b32 s54, 0, s54")
        for g4 in range(4):
            if g4: a("s_add_u32 s55, s55, 49152")
            for mat, srd in ((0, "s[12:15]"), (1, "s[16:19]")):
                for i in range(3):
                    a("s_mov_b32 m0, %d" % (base + (ST_WG if mat == 0 else ST_WU) + 3072 * g4 + 1024 * i))
                    a("s_nop 0")
                    a("buffer_load_dwordx4 v%d, %s, s55 offen lds" % (VO + i, srd))

    def s_side(self):
        a = self.a
        if "noside" in self.ph:
            for b in range(11 if self.fused() else 12): a("s_barrier")
            return
        HA, HB = 100, 132
        def cond_b(fn):
            l = self.newlab("wb")
            a("s_cmp_ge_u32 s51, 384")
            a("s_cbranch_scc1 %s" % l)
            fn()
            a.lab(l)
        if "warm0" in self.ph:
            self.warm_inputs()
            if "warmc" in self.ph: self.warm_code()
        s3w = "s3w" in self.ph
        if s3w:
            self.s3w_setup()
            self.s3w_dma(0)
            self.s3w_dma(1)
        self.side_setup()
        self.rot_r("s50", "s67")
        a("s_and_b32 s68, s5, 1")
        a("s_lshl_b32 s50, s50, 1")
        a("s_add_u32 s50, s50, s68")
        a("s_add_u32 s53, s50, 2")
        a("s_lshr_b32 s67, s5, 1")
        a("s_and_b32 s67, s67, 3")
        a("s_cmp_eq_u32 s67, 0")
        a("s_cselect_b32 s53, s53, 99")
        if self.fused():
            a("v_mov_b32 v1, %d" % LDS_CNT)
            a("v_mov_b32 v2, 0")
            a("v_mov_b32 v3, 0")
            a("ds_write_b64 v1, v[2:3]")
            a("ds_write_b64 v1, v[2:3] offset:8")
            a("ds_write_b64 v1, v[2:3] offset:16")
            a("ds_write_b32 v1, v2 offset:24")
        self.stamp(5)
        if "nobpre" not in self.ph: a("s_barrier")
        if self.fused(): self.nonce_load()
        wdlate = "wdlate" in self.ph
        wdmid = "wdmid" in self.ph
        if not wdlate and not wdmid:
            self.wd_load("s2", 0)
            cond_b(lambda: self.wd_load("s51", 5120))
        if "warm0" not in self.ph:
            if "warmc" in self.ph: self.warm_code()
            if ("warm" in self.ph or "warm2" in self.ph) and "warmB0" not in self.ph and "warmB1" not in self.ph and not s3w: self.warm_inputs()
        if s3w: a("s_waitcnt vmcnt(%d)" % self.s3w_younger0())
        a("s_barrier")
        if s3w:
            self.s3w_dma(2)
            self.warm_inputs()
        if "warmB0" in self.ph: self.warm_inputs()
        self.stamp(1)
        self.ut_read("s50", 0, HA)
        def uflag(creg):
            a("s_lshl_b32 s69, %s, 5" % creg)
            a("s_add_u32 s69, s69, s4")
            a("s_lshl_b32 s69, s69, 2")
            a("s_add_u32 s69, s69, %d" % WS_FU)
            self.flag_set("s69", 2)
        def n_lt4(fn):
            l = self.newlab("ut")
            a("s_cmp_ge_u32 s53, 20")
            a("s_cbranch_scc1 %s" % l)
            fn()
            a.lab(l)
        def wflag(ureg):
            a("s_and_b32 s68, %s, 7" % ureg)
            a("s_lshl_b32 s68, s68, 8")
            a("s_lshr_b32 s69, %s, 3" % ureg)
            a("s_lshl_b32 s69, s69, 2")
            a("s_add_u32 s69, s69, s68")
            a("s_add_u32 s69, s69, %d" % WS_FW)
            self.flag_set("s69", 2)
        early = "utearly" in self.ph
        epb = "epb" in self.ph
        if early: self.ut_store("s50", HA)
        for kk in range(10):
            if s3w:
                if kk == 0: a("s_waitcnt vmcnt(26)")
                elif kk <= 7: a("s_waitcnt vmcnt(24)")
                elif kk == 8: a("s_waitcnt vmcnt(%d)" % (6 if (wdlate and self.fused()) else 0))
            if not (kk == 9 and self.fused()): a("s_barrier")
            if s3w and kk + 3 < 10 and kk not in (0, 1): self.s3w_dma(kk + 3)
            if kk == 0:
                if "warmB1" in self.ph: self.warm_inputs()
                n_lt4(lambda: self.ut_read("s53", 1 * STAGE, HB))
                if early: n_lt4(lambda: self.ut_store("s53", HB))
                if epb:
                    a("s_waitcnt vmcnt(%d)" % (8 if early else 0))
                    self.wd_store("s2", 0)
                    cond_b(lambda: self.wd_store("s51", 5120, 180))
            if kk == 1:
                if not early:
                    self.ut_store("s50", HA)
                    n_lt4(lambda: self.ut_store("s53", HB))
            if s3w and kk in (0, 1): self.s3w_dma(kk + 3)
            if kk == 3:
                a("s_waitcnt vmcnt(%d)" % (48 if s3w else 0))
                if self.fused():
                    self.nonce_publish_local()
                    if "uflate" not in self.ph:
                        uflag("s50")
                        n_lt4(lambda: uflag("s53"))
                    if epb:
                        wflag("s2")
                        cond_b(lambda: wflag("s51"))
            if kk == 7 and "uflate" in self.ph and self.fused():
                uflag("s50")
                n_lt4(lambda: uflag("s53"))
            if "swarm" in self.ph and 2 <= kk <= 5:
                self.smem_warm(kk - 2)
            if kk == 6 and wdmid:
                if "swarm" in self.ph: a("s_waitcnt lgkmcnt(0)")
                self.wd_load("s2", 0)
                cond_b(lambda: self.wd_load("s51", 5120))
            if kk == 7 and wdmid: a("s_waitcnt vmcnt(0)")
            if kk == 7 and "s3prio" in self.ph: a("s_setprio 3")
            if kk == 7 and epb:
                if self.fused():
                    self.s3_uw_look()
                    a("s_lshl_b32 s78, s7, 8")
                    a("s_add_u32 s78, s78, %d" % WS_FW)
                    self.look_line("s78", 48, 94)
                self.gate_load()
            if kk == 7 and not wdlate and not epb:
                if self.fused(): self.s3_uw_look()
                self.wd_store("s2", 0)
                cond_b(lambda: self.wd_store("s51", 5120, 180))
                self.gate_load()
            if kk == 7 and wdlate:
                if "swarm" in self.ph: a("s_waitcnt lgkmcnt(0)")
                if self.fused(): self.s3_uw_look()
                self.wd_load("s2", 0)
                cond_b(lambda: self.wd_load("s51", 5120))
            if kk == 8:
                if self.fused():
                    l = self.newlab("uw")
                    if epb:
                        self.check_line("s78", 94, 15)
                        a("v_mov_b32 v1, %d" % LDS_WOK)
                        a("v_mov_b32 v2, 1")
                        a("ds_write_b32 v1, v2")
                    else:
                        a("s_waitcnt vmcnt(%d)" % (5 if wdlate else 20))
                    a("v_cmp_eq_u32 vcc, s64, v92")
                    a("s_nop 1")
                    a("s_cmp_eq_u64 vcc, -1")
                    a("s_cbranch_scc1 %s" % l)
                    self.poll(self.s3_uw_loads, [92], 6, sleep=2)
                    a.lab(l)
                    self.s3_u_loads()
                    a("v_mov_b32 v1, %d" % LDS_UOK)
                    a("v_mov_b32 v2, 3")
                    a("ds_write_b32 v1, v2")
                    if wdlate: a("s_waitcnt vmcnt(12)")
                elif wdlate:
                    a("s_waitcnt vmcnt(0)")
                if wdlate:
                    self.wd_store("s2", 0)
                    cond_b(lambda: self.wd_store("s51", 5120, 180))
                    self.gate_load()
        self.stamp(2)
        if self.fused():
            if "s3prio" not in self.ph: a("s_setprio 2")
            if epb:
                self.lds_spin(LDS_SFREE, 2, 4)
                a("s_waitcnt vmcnt(0)")
            else:
                if wdlate: a("s_waitcnt vmcnt(15)")
                else: a("s_waitcnt vmcnt(27)")
                wflag("s2")
                cond_b(lambda: wflag("s51"))
                self.lds_spin(LDS_SFREE, 2, 4)
                if not wdlate: a("s_waitcnt vmcnt(1)")
        self.stamp(3)
        if self.fused():
            self.s3_u_copies(extra=None)
            a("s_waitcnt lgkmcnt(0)")
            a("v_mov_b32 v1, %d" % LDS_UCOK)
            a("v_mov_b32 v2, 1")
            a("ds_write_b32 v1, v2")
            a("s_setprio 0")
            self.stamp(4)
            a("s_waitcnt vmcnt(0)")
            self.gate_compute()
            a("s_waitcnt vmcnt(0)")
            a("s_lshl_b32 s69, s2, 2")
            a("s_add_u32 s69, s69, %d" % WS_FG)
            self.flag_set("s69", 2)
        else:
            a("s_waitcnt vmcnt(0)")
            self.gate_compute()
            a("s_waitcnt vmcnt(0)")
            self.stamp(4)

    def s3_uw_addr(self):
        a = self.a
        a("v_lshrrev_b32 v1, 4, v0")
        a("v_lshlrev_b32 v1, 8, v1")
        a("v_add_u32 v1, s2, v1")
        a("v_mov_b32 v2, s2")
        a("v_cmp_gt_u32 vcc, 640, v1")
        a("s_nop 1")
        a("v_cndmask_b32 v1, v2, v1, vcc")
        a("v_lshrrev_b32 v1, 5, v1")
        a("v_lshlrev_b32 v1, 7, v1")
        a("v_and_b32 v2, 15, v0")
        a("v_lshl_add_u32 v1, v2, 2, v1")
        a("v_add_u32 v90, %d, v1" % WS_FU)
    def s3_uw_loads(self):
        a = self.a
        a("buffer_load_dword v92, v90, s[20:23], 0 offen sc1")
    def s3_uw_look(self):
        self.s3_uw_addr()
        self.s3_uw_loads()
    def s3_uw_check(self):
        a = self.a
        l = self.newlab("uw")
        a("s_waitcnt vmcnt(0)")
        a("v_cmp_eq_u32 vcc, s64, v92")
        a("v_cmp_eq_u32 s[76:77], s64, v93")
        a("s_nop 1")
        a("s_and_b64 vcc, vcc, s[76:77]")
        a("s_cmp_eq_u64 vcc, -1")
        a("s_cbranch_scc1 %s" % l)
        self.poll(self.s3_uw_loads, [92, 93], 6, sleep=2)
        a.lab(l)

    def s3_channels(self):
        a = self.a
        a("s_mov_b32 s70, s2")
        a("s_add_u32 s71, s2, 256")
        a("s_add_u32 s72, s2, 512")
        a("s_cmp_lt_u32 s72, 640")
        a("s_cselect_b32 s72, s72, s2")

    def s3_u_loads(self):
        a = self.a
        self.s3_channels()
        a("v_lshlrev_b32 v1, 4, v0")
        for sg in range(3):
            a("s_mul_i32 s67, s%d, %d" % (70 + sg, ROWS))
            a("s_add_u32 s67, s67, %d" % WS_UT)
            for i in range(4):
                r = 100 + 16 * sg + 4 * i
                a("buffer_load_dwordx4 v[%d:%d], v1, s[20:23], s67 offen offset:%d sc1" % (r, r + 3, 1024 * i))

    def s3_u_copies(self, extra=0):
        a = self.a
        Z = 150
        for i in range(4): a("v_mov_b32 v%d, 0" % (Z + i))
        a("v_lshlrev_b32 v2, 4, v0")
        a("v_cmp_eq_u32 vcc, 0, v0")
        for sg in range(3):
            base = LDS_UC + sg * UC_SZ
            for b in range(4):
                a("ds_write_b128 v2, v[%d:%d] offset:%d" % (Z, Z + 3, base + b * UC_STRIDE))
        for sg in range(3):
            base = LDS_UC + sg * UC_SZ
            if extra is not None: a("s_waitcnt vmcnt(%d)" % (4 * (2 - sg) + extra))
            for i in range(4):
                D = 100 + 16 * sg + 4 * i
                R3, R2 = 154 + 2 * (i & 1), 155 + 2 * (i & 1)
                Q3, Q2 = 154 + 2 * ((i + 1) & 1), 155 + 2 * ((i + 1) & 1)
                T1 = 160 + 12 * (i & 1); T0 = T1 + 4; T2 = T1 + 8
                P2 = 158
                a("v_mov_b32_dpp v%d, v%d wave_ror:1 row_mask:0xf bank_mask:0xf" % (R3, D + 3))
                a("v_mov_b32_dpp v%d, v%d wave_ror:1 row_mask:0xf bank_mask:0xf" % (R2, D + 2))
                a("v_mov_b32 v%d, v%d" % (T1 + 1, D))
                a("v_mov_b32 v%d, v%d" % (T1 + 2, D + 1))
                a("v_mov_b32 v%d, v%d" % (T1 + 3, D + 2))
                if i == 0:
                    a("v_cndmask_b32 v%d, v%d, v%d, vcc" % (T1, R3, Z))
                    a("v_cndmask_b32 v%d, v%d, v%d, vcc" % (P2, R2, Z))
                else:
                    a("v_cndmask_b32 v%d, v%d, v%d, vcc" % (T1, R3, Q3))
                    a("v_cndmask_b32 v%d, v%d, v%d, vcc" % (P2, R2, Q2))
                off = base + 4 * (96 + 256 * i)
                a("ds_write_b128 v2, v[%d:%d] offset:%d" % (D, D + 3, off + 3 * UC_STRIDE))
                a("v_alignbit_b32 v%d, v%d, v%d, 16" % (T0, T1, P2))
                a("v_alignbit_b32 v%d, v%d, v%d, 16" % (T0 + 1, D, T1))
                a("v_alignbit_b32 v%d, v%d, v%d, 16" % (T0 + 2, D + 1, D))
                a("v_alignbit_b32 v%d, v%d, v%d, 16" % (T0 + 3, D + 2, D + 1))
                a("ds_write_b128 v2, v[%d:%d] offset:%d" % (T1, T1 + 3, off + 1 * UC_STRIDE))
                a("v_mov_b32 v%d, v%d" % (T2, T0 + 1))
                a("v_mov_b32 v%d, v%d" % (T2 + 1, T0 + 2))
                a("v_mov_b32 v%d, v%d" % (T2 + 2, T0 + 3))
                a("v_alignbit_b32 v%d, v%d, v%d, 16" % (T2 + 3, D + 3, D + 2))
                a("ds_write_b128 v2, v[%d:%d] offset:%d" % (T0, T0 + 3, off + 0 * UC_STRIDE))
                a("ds_write_b128 v2, v[%d:%d] offset:%d" % (T2, T2 + 3, off + 2 * UC_STRIDE))

    def s_phase1(self):
        a = self.a
        n = self.name
        a("s_sub_u32 s66, s3, 4")
        a("s_cmp_eq_u32 s66, 3")
        a("s_cbranch_scc1 %s_sj" % n)
        self.s_kgen_phase1()
        a("s_branch %s_p1done" % n)
        a.lab("%s_sj" % n)
        self.s_side()
        a.lab("%s_p1done" % n)

    def ssm_param_loads(self, slots=(0, 1, 2), scalars=True):
        a = self.a
        a("s_mul_i32 s67, s50, 384")
        a("v_lshl_add_u32 v1, v0, 1, s67")
        for sl in slots:
            for k, p in enumerate((P_ARE, P_AIM, P_BRE, P_BIM, P_CRE, P_CIM)):
                a("global_load_ushort v%d, v1, s[%d:%d] offset:%d" % (200 + 6 * sl + k, p, p + 1, 128 * sl))
        if scalars:
            a("s_lshl_b32 s67, s50, 1")
            a("v_mov_b32 v223, s67")
            a("global_load_ushort v218, v223, s[%d:%d]" % (P_LDT, P_LDT + 1))
            a("global_load_ushort v219, v223, s[%d:%d]" % (P_DSK, P_DSK + 1))

    def ssm_param_warm(self):
        a = self.a
        a("s_mul_i32 s67, s50, 384")
        for p in (P_ARE, P_AIM, P_BRE, P_BIM, P_CRE, P_CIM):
            a("s_add_u32 s68, s%d, s67" % p)
            a("s_addc_u32 s69, s%d, 0" % (p + 1))
            for i in range(3):
                a("s_load_dword s70, s[68:69], %d" % (128 * i))
        a("s_lshl_b32 s67, s50, 1")
        a("s_and_b32 s67, s67, 0xfffffffc")
        a("s_load_dword s70, s[%d:%d], s67" % (P_LDT, P_LDT + 1))
        a("s_load_dword s70, s[%d:%d], s67" % (P_DSK, P_DSK + 1))

    def kgen_bases(self):
        a = self.a
        a("s_mul_i32 s51, s66, %d" % TAB_SZ)
        a("s_add_u32 s51, s51, %d" % LDS_TAB)
        a("s_mul_i32 s52, s66, %d" % KR_SZ)
        a("s_add_u32 s52, s52, %d" % LDS_KR)

    def kgen(self, part="all"):
        a = self.a
        if part == "all": self.kgen_bases()
        self._kgen_body(part)

    def _kgen_body(self, part):
        a = self.a
        head = part in ("all", "head", "rest"); tail = part in ("all", "tail", "rest")
        real_a = a
        if not head: a = Asm()
        a("v_and_b32 v4, 15, v0")
        a("v_lshrrev_b32 v5, 4, v0")
        a("v_mul_u32_u24 v2, %d, v4" % TABROW)
        a("v_lshl_add_u32 v2, v5, 6, v2")
        a("v_add_u32 v2, s51, v2")
        a("v_and_b32 v6, 1, v5")
        a("v_lshl_add_u32 v3, v6, 3, v2")
        a("v_xor_b32 v6, 1, v6")
        a("v_lshl_add_u32 v2, v6, 3, v2")
        a("s_mov_b32 m0, s51")
        a("s_nop 0")
        if part == "all" or (part == "rest" and not self.fused()): a("s_waitcnt vmcnt(0)")
        a("v_lshlrev_b32 v218, 16, v218")
        a("v_lshlrev_b32 v219, 16, v219")
        a("v_mul_f32 v6, 0x3fb8aa3b, v218")
        a("s_mov_b32 s67, 0x3fb8aa3b")
        a("v_fma_f32 v7, v218, s67, -v6")
        a("v_fmac_f32 v7, 0x32a57060, v218")
        a("v_exp_f32 v6, v6")
        a("v_mul_f32 v7, 0x3f317218, v7")
        a("v_fma_f32 v6, v6, v7, v6")
        a("v_cvt_pk_bf16_f32 v6, v6, v6")
        a("v_lshlrev_b32 v218, 16, v6")
        W1, W16, W256, W512, W768, W1024 = 10, 12, 14, 16, 18, 20
        WX = 22
        CB = 24
        Y = 26; P = 28; TMP1 = 30; TMP2 = 32; TMP3 = 34
        PK = 36
        V = 50
        CV = 66
        YF = 76
        AF = 92
        ACC = 108
        nopk = (part == "head") and ("pkhead" not in self.ph)
        def cmul(out, x, w, t):
            if nopk:
                return ["v_mul_f32 v%d, v%d, v%d" % (t, x + 1, w + 1),
                        "v_mul_f32 v%d, v%d, v%d" % (t + 1, x, w + 1),
                        "v_fma_f32 v%d, v%d, v%d, -v%d" % (out, x, w, t),
                        "v_fma_f32 v%d, v%d, v%d, v%d" % (out + 1, x + 1, w, t + 1)]
            return ["v_pk_mul_f32 v[%d:%d], v[%d:%d], v[%d:%d] op_sel:[0,0] op_sel_hi:[0,1]" % (t, t + 1, x, x + 1, w, w + 1),
                    "v_pk_fma_f32 v[%d:%d], v[%d:%d], v[%d:%d], v[%d:%d] op_sel:[1,1,0] op_sel_hi:[1,0,1] neg_lo:[1,0,0]" % (out, out + 1, x, x + 1, w, w + 1, t, t + 1)]
        def zipl(*ls):
            o = []
            for i in range(max(len(l) for l in ls)):
                for l in ls:
                    if i < len(l): o.append(l[i])
            return o
        cvn = [0, 0]
        def wr(val, tile, row, neg, bank=0):
            c = CV + 4 * bank + (cvn[bank] % 4); cvn[bank] += 1
            return ["v_cvt_pk_bf16_f32 v%d, v%d, %sv%d" % (c, val, "-" if neg else "", val + 1),
                    "ds_write_addtid_b32 v%d offset:%d" % (c, tile * TABTILE + row * TABROW)]
        def frag_reads(dst, tile):
            L = []
            for kk in range(4):
                L.append("ds_read_b64 v[%d:%d], v3 offset:%d" % (dst + 4 * kk, dst + 4 * kk + 1, tile * TABTILE + 16 * kk))
                L.append("ds_read_b64 v[%d:%d], v2 offset:%d" % (dst + 4 * kk + 2, dst + 4 * kk + 3, tile * TABTILE + 16 * kk))
            return L
        def mm(t, first):
            L = []
            for kk in range(4):
                c = "0" if (first and kk == 0) else "v[%d:%d]" % (ACC + 4 * t, ACC + 4 * t + 3)
                L.append("v_mfma_f32_16x16x32_bf16 v[%d:%d], v[%d:%d], v[%d:%d], %s" % (ACC + 4 * t, ACC + 4 * t + 3, AF + 4 * kk, AF + 4 * kk + 3, YF + 4 * kk, YF + 4 * kk + 3, c))
            return L
        a = real_a
        nh = 2 if "kg2" in self.ph else 1
        slots = [0, 1, 2] if part in ("all", "rest") else (list(range(nh)) if part == "head" else list(range(nh, 3)))
        for sl in slots:
            if sl == 1 and part == "tail" and not self.fused(): a("s_waitcnt vmcnt(0)")
            if sl == 2 and part in ("rest", "tail"): self.stamp(3)
            if sl == 2 and "prioT" in self.ph: a("s_setprio 2")
            if sl == slots[0] and part in ("tail", "rest") and "prioT0" in self.ph: a("s_setprio 2")
            pr = 200 + 6 * sl
            for k in range(6): a("v_lshlrev_b32 v%d, 16, v%d" % (pr + k, pr + k))
            a("v_mul_f32 v6, v218, v%d" % pr)
            a("v_mul_f32 v7, v218, v%d" % (pr + 1))
            a("v_mul_f32 v6, 0x3fb8aa3b, v6")
            a("v_mul_f32 v7, 0.15915494, v7")
            a("v_mul_f32 v8, v218, v%d" % (pr + 2))
            a("v_mul_f32 v9, v218, v%d" % (pr + 3))
            a.ext(cmul(CB, pr + 4, 8, TMP1))
            for w, k in ((W1, 1.0), (W16, 16.0), (W256, 256.0)):
                if k == 1.0:
                    a("v_exp_f32 v%d, v6" % TMP2)
                    a("v_fract_f32 v%d, v7" % TMP3)
                else:
                    lit = "0x41800000" if k == 16.0 else "0x43800000"
                    a("v_mul_f32 v%d, %s, v6" % (TMP2, lit))
                    a("v_mul_f32 v%d, %s, v7" % (TMP3, lit))
                    a("v_exp_f32 v%d, v%d" % (TMP2, TMP2))
                    a("v_fract_f32 v%d, v%d" % (TMP3, TMP3))
                a("v_cos_f32 v%d, v%d" % (w, TMP3))
                a("v_sin_f32 v%d, v%d" % (w + 1, TMP3))
                a("s_nop 0")
                a("v_mul_f32 v%d, v%d, v%d" % (w, w, TMP2))
                a("v_mul_f32 v%d, v%d, v%d" % (w + 1, w + 1, TMP2))
            if sl != slots[0]:
                a("s_waitcnt lgkmcnt(0)")
                a.ext(pend_mm2)
            LY = ["v_mov_b32 v%d, v%d" % (Y, CB), "v_mov_b32 v%d, v%d" % (Y + 1, CB + 1)] + wr(Y, 0, 0, False)
            for j in range(1, 16):
                LY += cmul(Y, Y, W16, TMP1) + wr(Y, 0, j, False)
            LA = ["v_mov_b32 v%d, 1.0" % P, "v_mov_b32 v%d, 0" % (P + 1)] + wr(P, 1, 0, True, 1)
            cur = P
            for r in range(1, 16):
                if r == 1:
                    LA += ["v_mov_b32 v%d, v%d" % (P, W1), "v_mov_b32 v%d, v%d" % (P + 1, W1 + 1)]
                    cur = P
                else:
                    dst = PK + 2 * (r // 2 - 1) if r % 2 == 0 else P
                    LA += cmul(dst, cur, W1, TMP2)
                    cur = dst
                LA += wr(cur, 1, r, True, 1)
            a.ext(zipl(LY, LA))
            a.ext(cmul(W512, W256, W256, TMP1))
            a.ext(frag_reads(YF, 0)); a.ext(frag_reads(AF, 1))
            a.ext(zipl(cmul(W768, W512, W256, TMP1), cmul(W1024, W512, W512, TMP2)))
            def pk(i): return PK + 2 * (i // 2 - 1)
            vals = []
            A2 = []
            regs = []
            for r in range(8):
                if r == 0: regs.append(W256)
                else:
                    dst = V + 2 * (r - 1) if r < 8 else None
                    A2.append(cmul(dst, pk(2 * r), W256, TMP1 if r % 2 else TMP2)); regs.append(dst)
            a.ext(zipl(sum(A2[0::2], []), sum(A2[1::2], [])))
            a("s_waitcnt lgkmcnt(0)")
            m = mm(0, sl == 0)
            L = []
            for r in range(8): L += wr(regs[r], 1, r, True)
            a.ext(interleave(m, L))
            LA = []; LB = []
            for b in range(4):
                if b == 0:
                    LA += wr(W512, 1, 8, True); LB += wr(W768, 1, 12, True, 1)
                else:
                    LA += cmul(V, pk(4 * b), W512, TMP1) + wr(V, 1, 8 + b, True)
                    LB += cmul(V + 2, pk(4 * b), W768, TMP2) + wr(V + 2, 1, 12 + b, True, 1)
            a.ext(zipl(LA, LB))
            a.ext(frag_reads(AF, 1))
            a.ext(zipl(cmul(V, W1024, W256, TMP1), cmul(V + 2, W1024, W512, TMP2)))
            a.ext(zipl(cmul(V + 4, W1024, W768, TMP1), cmul(V + 6, W1024, W1024, TMP2)))
            ws = [W1024, V, V + 2, V + 4]
            a.ext(zipl(cmul(V + 8, ws[0], pk(8), TMP1), cmul(V + 10, ws[1], pk(8), TMP2)))
            a.ext(zipl(cmul(V + 12, ws[2], pk(8), TMP1), cmul(V + 14, ws[3], pk(8), TMP2)))
            a("s_waitcnt lgkmcnt(0)")
            m = mm(1, sl == 0)
            L = []
            for i in range(4):
                L += wr(ws[i], 1, 2 * i, True) + wr(V + 8 + 2 * i, 1, 2 * i + 1, True)
            L += wr(V + 6, 1, 8, True)
            a.ext(interleave(m, L))
            a.ext(frag_reads(AF, 1))
            pend_mm2 = mm(2, sl == 0)
            if sl == slots[-1]:
                a("s_waitcnt lgkmcnt(0)")
                a.ext(pend_mm2); pend_mm2 = None
        if not tail: return
        self.stamp(1)
        A0, A1, A2r = ACC, ACC + 4, ACC + 8
        a("v_cmp_eq_u32 vcc, 0, v0")
        a("v_and_b32 v4, 15, v0")
        a("v_lshrrev_b32 v5, 4, v0")
        a("v_cndmask_b32 v6, 0, v219, vcc")
        a("v_lshlrev_b32 v7, 5, v4")
        a("v_lshl_add_u32 v7, v5, 4, v7")
        a("v_lshlrev_b32 v8, 4, v4")
        a("v_lshl_add_u32 v8, v5, 8, v8")
        a("v_cmp_gt_u32 vcc, 2, v5")
        a("v_add_f32 v%d, v%d, v6" % (A0, A0))
        a("s_nop 0")
        a("v_cndmask_b32 v7, v8, v7, vcc")
        a("v_add_u32 v7, s51, v7")
        a("v_lshlrev_b32 v8, 3, v4")
        a("v_lshl_add_u32 v8, v5, 8, v8")
        a("v_add_u32 v8, s51, v8")
        a("s_nop 4")
        a("ds_write_b128 v7, v[%d:%d]" % (A1, A1 + 3))
        a("ds_write_b64 v8, v[%d:%d] offset:1024" % (A2r, A2r + 1))
        a("ds_write_b64 v8, v[%d:%d] offset:1152" % (A2r + 2, A2r + 3))
        a("v_cvt_pk_bf16_f32 v10, v%d, v%d" % (A0 + 3, A0 + 2))
        a("v_cvt_pk_bf16_f32 v11, v%d, v%d" % (A0 + 1, A0))
        a("v_lshlrev_b32 v9, 5, v4")
        a("v_lshl_add_u32 v9, v5, 3, v9")
        a("v_sub_u32 v9, 4088, v9")
        a("v_add_u32 v9, s52, v9")
        a("ds_write_b64 v9, v[10:11]")
        a("v_and_b32 v9, 31, v0")
        a("v_lshlrev_b32 v9, 2, v9")
        a("v_add_u32 v9, s52, v9")
        a("v_mov_b32 v12, 0")
        a("ds_write_b32 v9, v12 offset:4096")
        a("v_lshlrev_b32 v13, 4, v0")
        a("v_add_u32 v14, s51, v13")
        a("v_lshlrev_b32 v15, 3, v0")
        a("v_add_u32 v15, s51, v15")
        a("v_lshlrev_b32 v16, 2, v0")
        a("v_add_u32 v16, s51, v16")
        a("v_sub_u32 v13, s52, v13")
        a("s_waitcnt lgkmcnt(0)")
        a("ds_read_b128 v[20:23], v14")
        a("ds_read_b32 v24, v14 offset:16")
        a("ds_read_b64 v[26:27], v15 offset:512")
        a("ds_read_b32 v28, v15 offset:520")
        a("ds_read2_b32 v[30:31], v16 offset0:0 offset1:1")
        a.l.pop()
        a("v_add_u32 v17, 1024, v16")
        a("ds_read2_b32 v[30:31], v17 offset0:0 offset1:1")
        a("ds_read2_b32 v[32:33], v17 offset0:64 offset1:65")
        a("v_and_b32 v18, 1, v0")
        a("v_cmp_eq_u32 vcc, 1, v18")
        a("s_waitcnt lgkmcnt(0)")
        a("v_cvt_pk_bf16_f32 v36, v28, v28")
        a("v_cvt_pk_bf16_f32 v37, v27, v27")
        a("v_cvt_pk_bf16_f32 v38, v27, v26")
        a("v_cvt_pk_bf16_f32 v39, v26, v26")
        a("ds_write_b128 v13, v[36:39] offset:3056")
        for ps in range(2):
            v0_, v1_ = 30 + 2 * ps, 31 + 2 * ps
            o = 40 + 4 * ps
            a("v_cndmask_b32 v19, v%d, v%d, vcc" % (v0_, v1_))
            a("v_cvt_pk_bf16_f32 v%d, v%d, v%d" % (o, v1_, v1_))
            a("v_cvt_pk_bf16_f32 v%d, v%d, v19" % (o + 1, v1_))
            a("v_cvt_pk_bf16_f32 v%d, v%d, v%d" % (o + 2, v0_, v0_))
            a("v_mov_b32 v%d, v%d" % (o + 3, o + 2))
        a("ds_write_b128 v13, v[40:43] offset:2032")
        a("ds_write_b128 v13, v[44:47] offset:1008")
        a("v_cvt_pk_bf16_f32 v48, v24, v23")
        a("v_cvt_pk_bf16_f32 v49, v22, v22")
        a("v_cvt_pk_bf16_f32 v50, v22, v21")
        a("v_cvt_pk_bf16_f32 v51, v20, v20")
        a("s_mov_b32 exec_hi, 0")
        a("ds_write_b128 v13, v[48:51] offset:3568")
        a("s_mov_b32 exec_hi, -1")
        if "dumpk" in self.ph:
            a("s_waitcnt lgkmcnt(0)")
            a("v_lshlrev_b32 v13, 4, v0")
            a("v_add_u32 v14, s52, v13")
            a("s_mul_i32 s67, s50, 4224")
            a("s_add_u32 s67, s67, %d" % WS_DBG)
            for i in range(5):
                a("ds_read_b128 v[20:23], v14 offset:%d" % (1024 * i))
                a("s_waitcnt lgkmcnt(0)")
                if i == 4: a("s_mov_b32 exec_hi, 0"); a("s_mov_b32 exec_lo, 0xff")
                a("s_add_u32 s68, s67, %d" % (1024 * i))
                a("buffer_store_dwordx4 v[20:23], v13, s[20:23], s68 offen")
                a("s_waitcnt vmcnt(0)")
            a("s_mov_b64 exec, -1")

    def u_look(self):
        a = self.a
        self.nonce_read(120)
        a("s_lshr_b32 s78, s50, 5")
        a("s_lshl_b32 s78, s78, 7")
        a("s_add_u32 s78, s78, %d" % WS_FU)
        a("v_and_b32 v120, 15, v0")
        a("v_lshlrev_b32 v120, 2, v120")
        a("buffer_load_dword v121, v120, s[20:23], s78 offen sc1")
    def u_prefetch(self):
        a = self.a
        l = self.newlab("uok")
        a("s_waitcnt vmcnt(0)")
        a("v_cmp_eq_u32 vcc, s64, v121")
        a("s_nop 1")
        a("s_cmp_eq_u64 vcc, -1")
        a("s_cbranch_scc1 %s" % l)
        self.poll_line("s78", 16, 120, sleep=4)
        a.lab(l)
        self.conv_loads()
        self.lds_inc(LDS_UOK, 152)

    def conv_loads(self):
        a = self.a
        a("s_mul_i32 s67, s50, %d" % ROWS)
        a("s_add_u32 s67, s67, %d" % (WS_UT - 4))
        a("v_lshlrev_b32 v1, 2, v0")
        for i in range(16):
            a("buffer_load_dwordx2 v[%d:%d], v1, s[20:23], s67 offen offset:%d sc1" % (120 + 2 * i, 121 + 2 * i, 256 * i))

    def conv(self):
        a = self.a
        D = 120
        a("s_mul_i32 s53, s66, %d" % UC_SZ)
        if LDS_UC: a("s_add_u32 s53, s53, %d" % LDS_UC)
        if not self.fused():
            a("s_mov_b32 m0, s53")
            a("v_mov_b32 v2, 0")
            for b in range(4):
                a("ds_write_addtid_b32 v2 offset:%d" % (b * UC_STRIDE))
                a("ds_write_addtid_b32 v2 offset:%d" % (b * UC_STRIDE + 33 * 4))
            a("v_cmp_eq_u32 vcc, 0, v0")
            a("s_waitcnt vmcnt(0)")
            a("v_cndmask_b32 v%d, v%d, v2, vcc" % (D, D))
            for i in range(16):
                lo, hi = D + 2 * i, D + 2 * i + 1
                o = 4 + (i % 4)
                a("v_alignbit_b32 v%d, v%d, v%d, 16" % (o, hi, lo))
                a("ds_write_addtid_b32 v%d offset:%d" % (hi, 3 * UC_STRIDE + 4 * (64 * i + 96)))
                a("ds_write_addtid_b32 v%d offset:%d" % (hi, 1 * UC_STRIDE + 4 * (64 * i + 97)))
                a("ds_write_addtid_b32 v%d offset:%d" % (o, 2 * UC_STRIDE + 4 * (64 * i + 96)))
                a("ds_write_addtid_b32 v%d offset:%d" % (o, 0 * UC_STRIDE + 4 * (64 * i + 97)))
        VU, VK = 8, 9
        a("v_and_b32 v4, 3, v0")
        a("v_mul_u32_u24 v4, %d, v4" % UC_STRIDE)
        a("v_bfe_u32 v5, v0, 2, 2")
        a("v_lshl_add_u32 v4, v5, 7, v4")
        a("v_lshrrev_b32 v5, 4, v0")
        a("v_lshl_add_u32 v4, v5, 4, v4")
        a("v_add_u32 v%d, s53, v4" % VU)
        a("v_and_b32 v6, 15, v0")
        a("v_lshlrev_b32 v7, 3, v6")
        a("v_sub_u32 v7, 120, v7")
        a("v_lshl_add_u32 v7, v5, 4, v7")
        a("v_add_u32 v%d, s52, v7" % VK)
        a("v_lshlrev_b32 v10, 3, v6")
        a("v_lshl_add_u32 v10, v5, 7, v10")
        ACC = 16; SETS = [48, 112]
        def reads(rho, S):
            L = []
            for z in range(8):
                L.append("ds_read_b128 v[%d:%d], v%d offset:%d" % (S + 4 * z, S + 4 * z + 3, VU, 512 * z + 64 * (7 - rho)))
                zz = 8 * z + rho
                L.append("ds_read_b64 v[%d:%d], v%d offset:%d" % (S + 32 + 4 * z, S + 33 + 4 * z, VK, 64 * (63 - zz)))
                L.append("ds_read_b64 v[%d:%d], v%d offset:%d" % (S + 34 + 4 * z, S + 35 + 4 * z, VK, 64 * (63 - zz) + 8))
            return L
        def mm(rho, S):
            L = []
            for ze in range(8):
                for nu in range(8 - ze):
                    n = ze + nu
                    c = "0" if (rho == 0 and ze == 0) else "v[%d:%d]" % (ACC + 4 * n, ACC + 4 * n + 3)
                    L.append("v_mfma_f32_16x16x32_bf16 v[%d:%d], v[%d:%d], v[%d:%d], %s" % (ACC + 4 * n, ACC + 4 * n + 3, S + 4 * nu, S + 4 * nu + 3, S + 32 + 4 * ze, S + 35 + 4 * ze, c))
            return L
        a("s_waitcnt lgkmcnt(0)")
        if self.fused(): self.lds_spin(LDS_UCOK, 12)
        self.stamp(4)
        a.ext(reads(0, SETS[0]))
        a("s_waitcnt lgkmcnt(0)")
        for rho in range(8):
            fill = reads(rho + 1, SETS[(rho + 1) & 1]) if rho < 7 else []
            a.ext(interleave(mm(rho, SETS[rho & 1]), fill, span=28))
            if rho < 7: a("s_waitcnt lgkmcnt(0)")
        self.stamp(7)
        a("s_mul_i32 s67, s50, %d" % ROWS)
        a("s_add_u32 s67, s67, %d" % WS_Y)
        a("s_nop 7")
        for n in range(8):
            o = 48 + 2 * n
            a("v_cvt_pk_bf16_f32 v%d, v%d, v%d" % (o, ACC + 4 * n, ACC + 4 * n + 1))
            a("v_cvt_pk_bf16_f32 v%d, v%d, v%d" % (o + 1, ACC + 4 * n + 2, ACC + 4 * n + 3))
            a("buffer_store_dwordx2 v[%d:%d], v10, s[20:23], s67 offen offset:%d sc1" % (o, o + 1, 512 * n))

    def s_ssm(self):
        a = self.a
        n = self.name
        a("s_sub_u32 s66, s3, 4")
        a("s_lshl_b32 s50, s66, 8")
        a("s_add_u32 s50, s50, s2")
        a("s_cmp_ge_u32 s66, 3")
        a("s_cbranch_scc1 %s_ssm_done" % n)
        if self.fused():
            l = self.newlab("nch")
            a("s_cmp_lt_u32 s50, 640")
            a("s_cbranch_scc1 %s" % l)
            a("s_branch %s_ssm_done" % n)
            a.lab(l)
        else:
            a("s_cmp_ge_u32 s50, 640")
            a("s_cbranch_scc1 %s_ssm_done" % n)
        if self.fused() and "g1" in self.ph:
            a("s_waitcnt vmcnt(0)")
        if "g1" not in self.ph:
            self.stamp(5)
            self.ssm_param_loads()
            self.kgen("all")
        elif "kghead" in self.ph:
            self.kgen("tail")
        else:
            self.kgen("rest")
        self.stamp(6)
        if not self.fused():
            self.conv_loads()
        self.conv()
        if "prioT" in self.ph or "prioT0" in self.ph: a("s_setprio 0")
        a("s_waitcnt vmcnt(0)")
        if self.fused():
            self.nonce_read(4)
            a("s_lshl_b32 s69, s50, 2")
            a("s_add_u32 s69, s69, %d" % WS_FY)
            self.flag_set("s69", 2)
        self.stamp(8)
        a.lab("%s_ssm_done" % n)

    G2_SETS = [80, 116, 152, 188]
    G2_VB, G2_VL, G2_VB8, G2_T, G2_VRS = 224, 228, 246, 230, 250

    def g2_setup(self):
        a = self.a
        VB, VL, VB8, T, VRS = self.G2_VB, self.G2_VL, self.G2_VB8, self.G2_T, self.G2_VRS
        a("v_mbcnt_lo_u32_b32 v%d, -1, 0" % T)
        a("v_mbcnt_hi_u32_b32 v%d, -1, v%d" % (T, T))
        a("v_lshlrev_b32 v%d, 4, v%d" % (VL, T))
        for tau in range(4):
            a("s_add_u32 s67, s3, %d" % tau)
            a("s_and_b32 s67, s67, 3")
            a("s_lshl_b32 s67, s67, 10")
            a("v_add_u32 v%d, s67, v%d" % (VB + tau, VL))
            a("v_lshlrev_b32 v%d, 3, v%d" % (VB8 + tau, T))
            a("v_add_u32 v%d, s67, v%d" % (VB8 + tau, VB8 + tau))
        a("s_mul_i32 s70, s6, 48")
        a("s_mul_i32 s67, s3, 12")
        a("s_add_u32 s70, s70, s67")
        a("s_lshl_b32 s70, s70, 12")
        if WS_H: a("s_add_u32 s70, s70, %d" % WS_H)
        a("s_mul_i32 s71, s7, 48")
        a("s_add_u32 s71, s71, s67")
        a("s_mul_i32 s71, s71, 5120")
        a("s_add_u32 s71, s71, %d" % WS_WD)
        a("s_add_u32 s72, s71, 4096")
        for tau in range(1, 4):
            a("s_add_u32 s67, s3, %d" % tau)
            a("s_and_b32 s67, s67, 3")
            a("s_mul_i32 s67, s67, 3")
            a("s_add_u32 s67, s67, %d" % (tau - 1))
            a("s_mul_i32 s67, s67, 5120")
            a("s_add_u32 s67, s67, %d" % LDS_RED)
            a("v_add_u32 v%d, s67, v%d" % (VRS + tau - 1, VL))
            a("s_mov_b32 s%d, s67" % (72 + tau))

    def g2_loadsA(self, S):
        VL = self.G2_VL
        L = []
        for dt in range(5):
            if dt < 4: L.append("buffer_load_dwordx4 v[%d:%d], v%d, s[20:23], s71 offen offset:%d sc1" % (S + 16 + 4 * dt, S + 19 + 4 * dt, VL, 1024 * dt))
            else: L.append(("buffer_load_dwordx4 v[%d:%d], v%d, s[20:23], s72 offen sc1" % (S + 16 + 4 * dt, S + 19 + 4 * dt, VL),
                            "s_add_u32 s71, s71, 5120", "s_add_u32 s72, s72, 5120"))
        return L

    def g2_burst_atoms(self):
        VL = self.G2_VL
        regl = []
        for k in range(4): regl += self.g2_loadsA(self.G2_SETS[k])
        dmal = []
        for tau in range(1, 4):
            dmal.append(("s_mov_b32 m0, s%d" % (72 + tau), "s_nop 0",
                         "buffer_load_dwordx4 v%d, s[20:23], s71 offen sc1 lds" % VL))
            for dt in range(1, 4):
                dmal.append("buffer_load_dwordx4 v%d, s[20:23], s71 offen offset:%d sc1 lds" % (VL, 1024 * dt))
            dmal.append(("s_add_u32 m0, s%d, 4096" % (72 + tau), "s_add_u32 s71, s71, 5120",
                         "buffer_load_dwordx4 v%d, s[20:23], s72 offen sc1 lds" % VL, "s_add_u32 s72, s72, 5120"))
        return regl, dmal

    def g_gemm2(self):
        a = self.a
        ACC = 0
        SETS = self.G2_SETS
        VB, VL, VB8, T, VRS = self.G2_VB, self.G2_VL, self.G2_VB8, self.G2_T, self.G2_VRS
        acc = lambda dt, tau: ACC + (dt * 4 + tau) * 4
        epb = "epb" in self.ph and "g1" in self.ph
        if not epb: self.g2_setup()
        loadsA = self.g2_loadsA
        def loadsB(S, k):
            L = []
            for tau in range(4):
                if k % 3 == 1:
                    x = ("buffer_load_dwordx2 v[%d:%d], v%d, s[20:23], s70 offen sc1" % (S + 4 * tau, S + 4 * tau + 1, VB8 + tau),
                         "buffer_load_dwordx2 v[%d:%d], v%d, s[20:23], s70 offen offset:512 sc1" % (S + 4 * tau + 2, S + 4 * tau + 3, VB8 + tau))
                else:
                    x = ("buffer_load_dwordx4 v[%d:%d], v%d, s[20:23], s70 offen sc1" % (S + 4 * tau, S + 4 * tau + 3, VB + tau),)
                L.append(x if tau < 3 else x + ("s_add_u32 s70, s70, 4096",))
            return L
        nB = lambda k: 8 if k % 3 == 1 else 4
        def mm(S, first):
            L = []
            for dt in range(5):
                for tau in range(4):
                    c = "0" if first else "v[%d:%d]" % (acc(dt, tau), acc(dt, tau) + 3)
                    L.append("v_mfma_f32_16x16x32_bf16 v[%d:%d], v[%d:%d], v[%d:%d], %s" % (acc(dt, tau), acc(dt, tau) + 3, S + 16 + 4 * dt, S + 19 + 4 * dt, S + 4 * tau, S + 4 * tau + 3, c))
            return L
        NS = 12
        pre = "g1" in self.ph and "nopre" not in self.ph
        VLOOK = 254
        if epb:
            if self.fused(): self.nonce_read(232)
            self.g_signal_h(0)
            if self.fused():
                a("s_lshr_b32 s79, s6, 1")
                a("s_lshl_b32 s79, s79, 7")
                a("s_lshl_b32 s67, s3, 4")
                a("s_add_u32 s79, s79, s67")
                a("s_add_u32 s79, s79, %d" % WS_FH)
                self.poll_line("s79", 4, VLOOK, sleep=3)
        elif "g1" in self.ph:
            if self.fused():
                self.nonce_read(232)
                a("v_mov_b32 v%d, 0" % VLOOK)
                l = self.newlab("lk"); l2 = self.newlab("lk")
                a("s_cmp_lg_u32 s3, 0")
                a("s_cbranch_scc1 %s" % l)
                a("s_lshl_b32 s79, s7, 8")
                a("s_add_u32 s79, s79, %d" % WS_FW)
                self.look_line("s79", 48, VLOOK)
                a("s_waitcnt vmcnt(1)")
                a("s_branch %s" % l2)
                a.lab(l)
                a("s_waitcnt vmcnt(0)")
                a.lab(l2)
                self.g_signal_h(None)
            else:
                self.g_signal_h(0)
        if pre and not epb:
            if self.fused():
                lo = self.newlab("ww"); ld = self.newlab("wd")
                a("s_cmp_lg_u32 s3, 0")
                a("s_cbranch_scc1 %s" % lo)
                self.lds_spin(LDS_SFREE, 232, 4)
                self.lds_spin(LDS_UOK, 232, 3)
                self.check_line("s79", VLOOK, 0)
                a("v_mov_b32 v232, %d" % LDS_WOK)
                a("v_mov_b32 v233, 1")
                a("ds_write_b32 v232, v233")
                if "hall" in self.ph:
                    a("s_lshr_b32 s79, s6, 1")
                    a("s_lshl_b32 s79, s79, 7")
                    a("s_add_u32 s79, s79, %d" % WS_FH)
                    self.look_line("s79", 16, VLOOK)
                a("s_branch %s" % ld)
                a.lab(lo)
                self.lds_spin(LDS_WOK, 232)
                a.lab(ld)
                if "hall" not in self.ph:
                    a("s_lshr_b32 s79, s6, 1")
                    a("s_lshl_b32 s79, s79, 7")
                    a("s_lshl_b32 s67, s3, 4")
                    a("s_add_u32 s79, s79, s67")
                    a("s_add_u32 s79, s79, %d" % WS_FH)
                    self.look_line("s79", 4, VLOOK)
            regl, dmal = self.g2_burst_atoms()
            a.ext(flat(regl)); a.ext(flat(dmal))
        if not epb: self.g2_wait_inputs(looked=pre)
        self.stamp(5)
        self.clk(5)
        def srcA(k):
            if not pre: return "g"
            return "pre" if k < 4 else ("lds" if k < 7 else "g")
        def loadA_any(k):
            S = SETS[k % 4]
            if srcA(k) == "g": return loadsA(S)
            if srcA(k) == "lds":
                return ["ds_read_b128 v[%d:%d], v%d offset:%d" % (S + 16 + 4 * dt, S + 19 + 4 * dt, VRS + k - 4, 1024 * dt) for dt in range(5)]
            return []
        nL = lambda k: nB(k) + (5 if srcA(k) == "g" else 0)
        for k in range(3):
            a.ext(flat(loadsB(SETS[k], k) + loadA_any(k)))
        for k in range(NS):
            rem = sum(nL(j) for j in range(k + 1, min(NS - 1, k + 2) + 1))
            if srcA(k) == "lds": a("s_waitcnt vmcnt(%d) lgkmcnt(0)" % rem)
            else: a("s_waitcnt vmcnt(%d)" % rem)
            fill = (loadsB(SETS[(k + 3) % 4], k + 3) + loadA_any(k + 3)) if k + 3 < NS else []
            if "k2stamps" in self.ph and k < 9: self.stamp(k + 1, force=True)
            a.ext(interleave(mm(SETS[k % 4], k == 0), fill))
            if k + 3 == NS - 1 and self.fused(): self.lds_inc(LDS_GOK, 232)
        self.stamp(6)
        self.clk(7)
        a("s_nop 7")
        for tau in range(1, 4):
            for dt in range(5):
                a("ds_write_b128 v%d, v[%d:%d] offset:%d" % (VRS + tau - 1, acc(dt, tau), acc(dt, tau) + 3, 1024 * dt))
        a("s_waitcnt lgkmcnt(0)")
        a("s_barrier")
        self.stamp(7)
        a("s_mul_i32 s67, s3, %d" % (3 * 5120))
        a("s_add_u32 s67, s67, %d" % LDS_RED)
        a("v_add_u32 v%d, s67, v%d" % (T + 1, VL))
        R = 80
        for j in range(3):
            for dt in range(5):
                r = R + (j * 5 + dt) * 4
                a("ds_read_b128 v[%d:%d], v%d offset:%d" % (r, r + 3, T + 1, 5120 * j + 1024 * dt))
        Y = 140
        a("v_lshrrev_b32 v%d, 4, v%d" % (T + 2, T))
        a("v_and_b32 v%d, 15, v%d" % (T + 3, T))
        a("v_lshrrev_b32 v%d, 2, v%d" % (T + 4, T + 3))
        a("v_lshl_add_u32 v%d, v%d, 3, v%d" % (T + 5, T + 2, T + 4))
        a("v_lshl_add_u32 v%d, v%d, 2, v%d" % (T + 6, T + 2, T + 4))
        a("v_and_b32 v%d, 3, v%d" % (T + 7, T))
        a("v_lshlrev_b32 v%d, 3, v%d" % (T + 7, T + 7))
        a("s_lshl_b32 s67, s3, 5")
        a("s_add_u32 s67, s67, %d" % LDS_YT)
        a("v_add_u32 v%d, s67, v%d" % (T + 7, T + 7))
        a("v_lshl_add_u32 v%d, v%d, 7, v%d" % (T + 5, T + 5, T + 7))
        a("v_lshl_add_u32 v%d, v%d, 7, v%d" % (T + 6, T + 6, T + 7))
        for dt in range(5):
            if dt < 4: a("ds_read_b64_tr_b16 v[%d:%d], v%d offset:%d" % (Y + 2 * dt, Y + 2 * dt + 1, T + 5, 128 * (32 * (dt >> 1) + 4 * (dt & 1))))
            else: a("ds_read_b64_tr_b16 v[%d:%d], v%d offset:%d" % (Y + 2 * dt, Y + 2 * dt + 1, T + 6, 128 * 64))
        a("s_lshl_b32 s67, s3, 6")
        a("s_add_u32 s67, s67, %d" % LDS_GT)
        a("v_lshl_add_u32 v%d, v%d, 2, s67" % (T + 8, T + 3))
        a("ds_read_b32 v%d, v%d" % (T + 8, T + 8))
        a("s_lshl_b32 s67, s6, 6")
        a("s_lshl_b32 s68, s3, 4")
        a("s_add_u32 s67, s67, s68")
        a("v_add_u32 v%d, s67, v%d" % (T + 9, T + 3))
        a("s_movk_i32 s68, 1280")
        a("v_mul_lo_u32 v%d, v%d, s68" % (T + 9, T + 9))
        a("s_mul_i32 s68, s7, 160")
        a("v_add_u32 v%d, s68, v%d" % (T + 9, T + 9))
        a("v_lshl_add_u32 v%d, v%d, 3, v%d" % (T + 10, T + 2, T + 9))
        a("v_lshl_add_u32 v%d, v%d, 4, v%d" % (T + 9, T + 2, T + 9))
        a("s_waitcnt lgkmcnt(0)")
        for dt in range(5):
            for h in range(2):
                x = acc(dt, 0) + 2 * h
                p = [R + (j * 5 + dt) * 4 + 2 * h for j in range(3)]
                a("v_pk_add_f32 v[%d:%d], v[%d:%d], v[%d:%d]" % (p[0], p[0] + 1, p[0], p[0] + 1, p[1], p[1] + 1))
                a("v_pk_add_f32 v[%d:%d], v[%d:%d], v[%d:%d]" % (x, x + 1, x, x + 1, p[2], p[2] + 1))
        for dt in range(5):
            for h in range(2):
                x = acc(dt, 0) + 2 * h
                p = R + dt * 4 + 2 * h
                a("v_pk_add_f32 v[%d:%d], v[%d:%d], v[%d:%d]" % (x, x + 1, x, x + 1, p, p + 1))
        U = 150
        for dt in range(5):
            for h in range(2):
                a("v_lshlrev_b32 v%d, 16, v%d" % (U + 4 * dt + 2 * h, Y + 2 * dt + h))
                a("v_and_b32 v%d, 0xffff0000, v%d" % (U + 4 * dt + 2 * h + 1, Y + 2 * dt + h))
        G2 = T + 12
        assert G2 % 2 == 0
        a("v_mov_b32 v%d, v%d" % (G2, T + 8))
        a("v_mov_b32 v%d, v%d" % (G2 + 1, T + 8))
        for dt in range(5):
            for h in range(2):
                x = acc(dt, 0) + 2 * h; u = U + 4 * dt + 2 * h
                a("v_pk_add_f32 v[%d:%d], v[%d:%d], v[%d:%d] neg_lo:[0,1] neg_hi:[0,1]" % (u, u + 1, u, u + 1, x, x + 1))
        for dt in range(5):
            for h in range(2):
                x = acc(dt, 0) + 2 * h; u = U + 4 * dt + 2 * h
                a("v_pk_fma_f32 v[%d:%d], v[%d:%d], v[%d:%d], v[%d:%d]" % (x, x + 1, u, u + 1, G2, G2 + 1, x, x + 1))
        O = 176
        for dt in range(5):
            for h in range(2):
                x = acc(dt, 0) + 2 * h
                a("v_cvt_pk_bf16_f32 v%d, v%d, v%d" % (O + 2 * dt + h, x, x + 1))
        fl = " sc1" if "outsc1" in self.ph else (" nt" if "outnt" in self.ph else "")
        a("buffer_store_dwordx4 v[%d:%d], v%d, s[24:27], 0 offen%s" % (O, O + 3, T + 9, fl))
        a("buffer_store_dwordx4 v[%d:%d], v%d, s[24:27], 0 offen offset:64%s" % (O + 4, O + 7, T + 9, fl))
        a("buffer_store_dwordx2 v[%d:%d], v%d, s[24:27], 0 offen offset:128%s" % (O + 8, O + 9, T + 10, fl))
        self.stamp(8)

    def g2_wait_inputs(self, looked=False):
        if not self.fused(): return
        a = self.a
        T = 232
        if looked and "hall" not in self.ph:
            self.check_line("s79", 254, 35, sleep=4)
            return
        lo = self.newlab("hw"); ld = self.newlab("hd")
        a("s_cmp_lg_u32 s3, 0")
        a("s_cbranch_scc1 %s" % lo)
        if looked:
            self.check_line("s79", 254, 35)
        else:
            a("s_lshr_b32 s78, s6, 1")
            a("s_lshl_b32 s78, s78, 7")
            a("s_add_u32 s78, s78, %d" % WS_FH)
            self.poll_line("s78", 16, T, sleep=4)
        a("v_mov_b32 v%d, %d" % (T, LDS_HOK))
        a("v_mov_b32 v%d, 1" % (T + 1))
        a("ds_write_b32 v%d, v%d" % (T, T + 1))
        a("s_branch %s" % ld)
        a.lab(lo)
        self.lds_spin(LDS_HOK, T)
        a.lab(ld)

    def s_final(self):
        a = self.a
        n = self.name
        l = self.newlab("fin")
        a("s_cmp_lg_u32 s3, 7")
        a("s_cbranch_scc1 %s" % l)
        if self.fused(): self.lds_spin(LDS_GOK, 2, 4)
        self.y_wait_inputs()
        a("v_mbcnt_lo_u32_b32 v0, -1, 0")
        a("v_mbcnt_hi_u32_b32 v0, -1, v0")
        a("v_lshrrev_b32 v1, 3, v0")
        a("v_mul_u32_u24 v1, %d, v1" % ROWS)
        a("v_and_b32 v2, 7, v0")
        a("v_lshl_add_u32 v1, v2, 4, v1")
        a("s_mul_i32 s67, s7, %d" % (80 * ROWS))
        a("s_lshl_b32 s68, s6, 7")
        a("s_add_u32 s67, s67, s68")
        a("s_add_u32 s67, s67, %d" % WS_Y)
        for i in range(10):
            a("buffer_load_dwordx4 v[%d:%d], v1, s[20:23], s67 offen sc1" % (8 + 4 * i, 11 + 4 * i))
            if i < 9: a("s_add_u32 s67, s67, %d" % (8 * ROWS))
        a("s_lshl_b32 s67, s6, 8")
        a("s_add_u32 s67, s67, %d" % WS_G)
        a("v_lshlrev_b32 v3, 2, v0")
        a("buffer_load_dword v4, v3, s[20:23], s67 offen sc1")
        a("v_lshlrev_b32 v2, 4, v0")
        a("v_add_u32 v2, %d, v2" % LDS_YT)
        a("v_add_u32 v3, %d, v3" % LDS_GT)
        a("s_waitcnt vmcnt(0)")
        for i in range(10):
            a("ds_write_b128 v2, v[%d:%d] offset:%d" % (8 + 4 * i, 11 + 4 * i, 1024 * i))
        a("ds_write_b32 v3, v4")
        a("s_waitcnt lgkmcnt(0)")
        a("s_barrier")
        if self.fused(): self.nonce_update()
        a("s_branch %s_fd" % l)
        a.lab(l)
        a("s_barrier")
        a.lab("%s_fd" % l)

    def y_wait_inputs(self):
        if not self.fused(): return
        a = self.a
        a("v_mbcnt_lo_u32_b32 v0, -1, 0")
        a("v_mbcnt_hi_u32_b32 v0, -1, v0")
        a("s_mul_i32 s67, s7, 320")
        a("s_add_u32 s67, s67, %d" % WS_FY)
        a("v_lshl_add_u32 v1, v0, 2, s67")
        a("v_add_u32 v2, 256, v1")
        a("s_lshl_b32 s68, s6, 5")
        a("s_add_u32 s68, s68, %d" % (WS_FG - 64))
        a("v_lshl_add_u32 v3, v0, 2, s68")
        a("v_cmp_le_u32 vcc, 16, v0")
        a("s_nop 1")
        a("v_cndmask_b32 v2, v2, v3, vcc")
        a("v_subrev_u32 v3, 24, v0")
        a("v_lshlrev_b32 v3, 10, v3")
        a("s_lshl_b32 s68, s2, 2")
        a("s_add_u32 s68, s68, %d" % WS_FY)
        a("v_add_u32 v3, s68, v3")
        a("v_cmp_le_u32 vcc, 24, v0")
        a("s_nop 1")
        a("v_cndmask_b32 v2, v2, v3, vcc")
        a("s_cmp_lt_u32 s2, 128")
        a("s_cselect_b32 s68, 27, 26")
        a("v_mov_b32 v3, s67")
        a("v_cmp_le_u32 vcc, s68, v0")
        a("s_nop 1")
        a("v_cndmask_b32 v2, v2, v3, vcc")
        def loads():
            a("buffer_load_dword v4, v1, s[20:23], 0 offen sc1")
            a("buffer_load_dword v5, v2, s[20:23], 0 offen sc1")
        self.poll(loads, [4, 5], 6, sleep=8)

    def fused(self): return "fused" in self.ph

    def nonce_load(self):
        a = self.a
        if "snonce" in self.ph:
            a("s_add_u32 s68, s%d, %d" % (P_WS, WS_NON))
            a("s_addc_u32 s69, s%d, 0" % (P_WS + 1))
            a("s_load_dword s55, s[68:69], 0")
            return
        a("v_mov_b32 v1, 0")
        a("s_mov_b32 s67, %d" % WS_NON)
        a("buffer_load_dword v242, v1, s[20:23], s67 offen sc1")
    def nonce_publish_local(self):
        a = self.a
        if "snonce" in self.ph:
            a("s_waitcnt lgkmcnt(0)")
            a("s_add_u32 s64, s55, 1")
            a("v_mov_b32 v242, s64")
            a("v_mov_b32 v1, %d" % LDS_NONCE)
            a("ds_write_b32 v1, v242")
            return
        a("v_add_u32 v242, 1, v242")
        a("v_mov_b32 v1, %d" % LDS_NONCE)
        a("ds_write_b32 v1, v242")
        a("v_readfirstlane_b32 s64, v242")
    def nonce_update(self):
        a = self.a
        l = self.newlab("nu")
        a("s_cmp_lg_u32 s2, 0")
        a("s_cbranch_scc1 %s" % l)
        a("v_mbcnt_lo_u32_b32 v2, -1, 0")
        a("v_mbcnt_hi_u32_b32 v2, -1, v2")
        a("v_lshlrev_b32 v2, 4, v2")
        a("s_mov_b32 s78, %d" % WS_FG)
        self.poll(lambda: a("buffer_load_dwordx4 v[4:7], v2, s[20:23], s78 offen sc1"), [4, 5, 6, 7], 2, sleep=8)
        a("s_mov_b32 s69, %d" % WS_NON)
        self.flag_set("s69", 2)
        a.lab(l)

    def nonce_read(self, vt):
        a = self.a
        a("v_mov_b32 v%d, %d" % (vt, LDS_NONCE))
        a("ds_read_b32 v%d, v%d" % (vt, vt))
        a("s_waitcnt lgkmcnt(0)")
        a("v_readfirstlane_b32 s64, v%d" % vt)
        a("s_nop 1")

    def flag_set(self, soff_reg, vt):
        a = self.a
        a("v_mov_b32 v%d, s64" % vt)
        a("v_mov_b32 v%d, 0" % (vt + 1))
        a("s_mov_b64 exec, 1")
        a("buffer_store_dword v%d, v%d, s[20:23], %s offen sc1" % (vt, vt + 1, soff_reg))
        a("s_mov_b64 exec, -1")

    def poll(self, loads, vregs, vt, sleep=8):
        a = self.a
        lp = self.newlab("pl"); ld = self.newlab("pd")
        a("s_mov_b32 s69, 0")
        a.lab(lp)
        loads()
        a("s_waitcnt vmcnt(0)")
        for i, r in enumerate(vregs):
            if i == 0: a("v_cmp_eq_u32 vcc, s64, v%d" % r)
            else:
                a("v_cmp_eq_u32 s[76:77], s64, v%d" % r)
                a("s_nop 1")
                a("s_and_b64 vcc, vcc, s[76:77]")
        a("s_nop 1")
        a("s_cmp_eq_u64 vcc, -1")
        a("s_cbranch_scc1 %s" % ld)
        a("s_add_u32 s69, s69, 1")
        a("s_cmp_lt_u32 s69, 0x40000")
        a("s_cbranch_scc0 %s" % ld)
        a("s_sleep %d" % sleep)
        a("s_branch %s" % lp)
        a.lab(ld)

    def look_line(self, soff, nflags, vt):
        a = self.a
        a("v_mbcnt_lo_u32_b32 v%d, -1, 0" % vt)
        a("v_mbcnt_hi_u32_b32 v%d, -1, v%d" % (vt, vt))
        a("v_cmp_gt_u32 vcc, %d, v%d" % (nflags, vt))
        a("v_lshlrev_b32 v%d, 2, v%d" % (vt, vt))
        a("s_nop 0")
        a("v_cndmask_b32 v%d, 0, v%d, vcc" % (vt, vt))
        a("buffer_load_dword v%d, v%d, s[20:23], %s offen sc1" % (vt + 1, vt, soff))

    def check_line(self, soff, vt, nyounger, sleep=2):
        a = self.a
        l = self.newlab("ck")
        a("s_waitcnt vmcnt(%d)" % nyounger)
        a("v_cmp_eq_u32 vcc, s64, v%d" % (vt + 1))
        a("s_nop 1")
        a("s_cmp_eq_u64 vcc, -1")
        a("s_cbranch_scc1 %s" % l)
        self.poll(lambda: a("buffer_load_dword v%d, v%d, s[20:23], %s offen sc1" % (vt + 1, vt, soff)), [vt + 1], vt, sleep)
        a.lab(l)

    def poll_line(self, soff, nflags, vt, sleep=8):
        a = self.a
        a("v_mbcnt_lo_u32_b32 v%d, -1, 0" % vt)
        a("v_mbcnt_hi_u32_b32 v%d, -1, v%d" % (vt, vt))
        a("v_cmp_gt_u32 vcc, %d, v%d" % (nflags, vt))
        a("v_lshlrev_b32 v%d, 2, v%d" % (vt, vt))
        a("s_nop 0")
        a("v_cndmask_b32 v%d, 0, v%d, vcc" % (vt, vt))
        self.poll(lambda: a("buffer_load_dword v%d, v%d, s[20:23], %s offen sc1" % (vt + 1, vt, soff)), [vt + 1], vt, sleep)

    def build(self):
        a = self.a
        n = self.name
        a.l.append(".globl %s" % n)
        a.l.append(".p2align 8")
        a.l.append(".type %s,@function" % n)
        a.l.append("%s:" % n)
        self.prologue()
        a("s_cmp_ge_u32 s3, 4")
        a("s_cbranch_scc1 %s_S" % n)
        if "g1" in self.ph:
            self.g_gemm1()
        if "g2" in self.ph:
            self.g_gemm2()
        self.dbgtime_end()
        self.stamp_flush()
        a("s_endpgm")
        a.lab("%s_S" % n)
        if "g1" in self.ph:
            self.s_phase1()
        if "ssm" in self.ph:
            self.s_ssm()
        if "g2" in self.ph:
            self.s_final()
        self.stamp_flush()
        a.lab("%s_end" % n)
        a("s_endpgm")
        return a.text()

def kd(name):
    return """.amdhsa_kernel %s
  .amdhsa_next_free_vgpr 256
  .amdhsa_next_free_sgpr 102
  .amdhsa_accum_offset 256
  .amdhsa_group_segment_fixed_size 0
  .amdhsa_kernarg_size 136
  .amdhsa_user_sgpr_count 2
  .amdhsa_user_sgpr_kernarg_segment_ptr 1
  .amdhsa_system_sgpr_workgroup_id_x 1
.end_amdhsa_kernel
""" % name

HEADER = open("gated_mix__ssm_conv_s4__swiglu_ffn__prompt.s.ref").read().split("; Override launch")[0]

def emit(kernels, path):
    txt = HEADER
    if len(kernels) == 1:
        txt += "; @launch grid=(256,1,1) block=(512,1,1) lds=%d\n" % LDS_TOTAL
    else:
        for (n, p, s) in kernels:
            txt += "; @launch kernel=%s grid=(256,1,1) block=(512,1,1) lds=%d\n" % (n, LDS_TOTAL)
    txt += '.amdgcn_target "amdgcn-amd-amdhsa--gfx950"\n.text\n'
    for (n, p, s) in kernels:
        txt += Gen(n, p, s).build()
    txt += '.section .rodata,"a"\n'
    for (n, p, s) in kernels:
        txt += ".p2align 6\n" + kd(n)
    open(path, "w").write(txt)

if __name__ == "__main__":
    mode = sys.argv[1]; path = sys.argv[2]
    stamps = len(sys.argv) > 3 and sys.argv[3] == "stamps"
    if mode.startswith("g1+") or mode == "g1":
        emit([(KNAME, set(mode.split("+")), stamps)], path)
    elif mode == "g1,ssm":
        emit([("ka_kernel", {"g1"}, False), ("kb_kernel", {"ssm", "dumpk"}, stamps)], path)
    elif mode == "3k":
        emit([("ka_kernel", {"g1"}, False), ("kb_kernel", {"ssm"}, False), ("kc_kernel", {"g2"}, stamps)], path)
    elif mode == "3k+1":
        emit([("ka_kernel", {"g1"}, False), ("kb_kernel", {"ssm"}, False), ("kc_kernel", {"g2"}, stamps), ("kd_kernel", set(), False)], path)
    elif mode == "3k+3":
        emit([("ka_kernel", {"g1"}, False), ("kb_kernel", {"ssm"}, False), ("kc_kernel", {"g2"}, stamps), ("kd_kernel", set(), False), ("ke_kernel", set(), False), ("kf_kernel", set(), False)], path)
    elif mode == "3k_dbg":
        emit([("ka_kernel", {"g1", "dbgtime"}, False), ("kb_kernel", {"ssm"}, False), ("kc_kernel", {"g2", "dbgtime"}, False)], path)
    elif mode == "fused":
        emit([(KNAME, {"g1", "ssm", "g2", "fused"}, stamps)], path)
    elif mode == "fused_notouch":
        emit([(KNAME, {"g1", "ssm", "g2", "fused", "notouch"}, stamps)], path)
    elif mode == "fused_pk":
        emit([(KNAME, {"g1", "ssm", "g2", "fused", "pkhead"}, stamps)], path)
    elif mode.startswith("F:"):
        emit([(KNAME, {"g1", "ssm", "g2", "fused"} | set(mode[2:].split("+")), stamps)], path)
    elif mode == "fused_dbg":
        emit([(KNAME, {"g1", "ssm", "g2", "fused", "dbgtime"}, stamps)], path)
    elif mode == "g1,ssm,nodump":
        emit([("ka_kernel", {"g1"}, False), ("kb_kernel", {"ssm"}, stamps)], path)
```

```python
import sys, math

KNAME = "gated_mix__ssm_conv_s4__swiglu_ffn__prompt_kernel"

WS_H    = 0x000000
WS_WD   = 0x600000
ROWS    = 4224
WS_UT   = 0x800000
WS_Y    = 0xB00000
WS_G    = 0xE00000
WS_FU   = 0xE10000
WS_FW   = 0xE15000
WS_FH   = 0xE11000
WS_FY   = 0xE12000
WS_NON  = 0xE13000
WS_FG   = 0xE14000
WS_TS   = 0xF00000
WS_DBG  = 0x1000000

STAGE   = 40960
ST_WG   = 16384
ST_WU   = 28672
LDS_S   = 3 * STAGE
TABROW  = 272
TABTILE = 16 * TABROW
TAB_SZ  = 2 * TABTILE
LDS_TAB = LDS_S
KR_SZ   = 4224
LDS_KR  = LDS_TAB + 3 * TAB_SZ
LDS_MISC = LDS_KR + 3 * KR_SZ
LDS_TOTAL = 163840
LDS_NONCE = LDS_MISC
LDS_CNT   = LDS_MISC + 8
UC_STRIDE = 4640
UC_SZ   = 4 * UC_STRIDE
LDS_UC  = 0
LDS_WDS_EARLY = 148992
LDS_RED = 57344
LDS_YT  = LDS_TAB
LDS_GT  = LDS_MISC + 64
LDS_HOK = LDS_MISC + 12
LDS_WOK = LDS_MISC + 16
LDS_UOK = LDS_MISC + 20
LDS_GOK = LDS_MISC + 24
LDS_UCOK = LDS_MISC + 28
LDS_SFREE = LDS_MISC + 32

class Asm:
    def __init__(self):
        self.l = []
    def __call__(self, s):
        for x in s.split("\n"):
            x = x.strip()
            if x: self.l.append("    " + x)
    def lab(self, s):
        self.l.append(s + ":")
    def ext(self, lst):
        for x in lst: self(x)
    def text(self):
        return "\n".join(self.l) + "\n"

def interleave(main, fill, start=0, span=None):
    out = []
    m = len(fill)
    n = len(main) if span is None else min(len(main), start + span)
    j = 0
    for i, x in enumerate(main):
        out.append(x)
        if i >= start:
            tgt = (m * (i - start + 1) + (n - start) - 1) // (n - start) if n > start else m
            while j < min(tgt, m):
                f = fill[j]
                if isinstance(f, tuple): out.extend(f)
                else: out.append(f)
                j += 1
    while j < m:
        f = fill[j]
        if isinstance(f, tuple): out.extend(f)
        else: out.append(f)
        j += 1
    return out

def flat(L):
    o = []
    for x in L:
        if isinstance(x, tuple): o.extend(x)
        else: o.append(x)
    return o

def vr(a, n=1):
    return "v%d" % a if n == 1 else "v[%d:%d]" % (a, a + n - 1)
def sr(a, n=1):
    return "s%d" % a if n == 1 else "s[%d:%d]" % (a, a + n - 1)

S_W, S_WAVE, S_M, S_N, S_M2, S_N2 = 2, 3, 4, 5, 6, 7
SRD_X, SRD_WG, SRD_WU, SRD_WS, SRD_OUT, SRD_WD = 8, 12, 16, 20, 24, 28
P_U, P_ARE, P_AIM, P_BRE, P_BIM, P_CRE, P_CIM, P_LDT = 32, 34, 36, 38, 40, 42, 44, 46
P_DSK, P_BX, P_WG, P_WU, P_WD, P_GW, P_OUT, P_DBG, P_WS = 48, 50, 52, 54, 56, 58, 60, 62, 64
S_TS = 80

class Gen:
    def __init__(self, name, phases, stamps=False):
        self.name = name
        self.ph = phases
        self.a = Asm()
        self.stamps = stamps
        self.nlab = 0
    def newlab(self, p):
        self.nlab += 1
        return "L_%s_%s_%d" % (self.name[:6], p, self.nlab)

    def capture(self, fn):
        old = self.a
        self.a = Asm()
        fn()
        lst = [x.strip() for x in self.a.l]
        self.a = old
        return lst

    def clk(self, i):
        if "clk" in self.ph and self.stamps:
            self.a("s_memrealtime s[%d:%d]" % (S_TS + 2 * i, S_TS + 2 * i + 1))
            self.a("s_memtime s[%d:%d]" % (S_TS + 2 * i + 2, S_TS + 2 * i + 3))
            self.a("s_waitcnt lgkmcnt(0)")

    def stamp(self, i, force=False):
        if "clk" in self.ph and i != 0: return
        if ("kstamps" in self.ph or "k2stamps" in self.ph or "ststamps" in self.ph) and not force and i != 0: return
        if self.stamps:
            self.a("%s s[%d:%d]" % ("s_memrealtime" if "rt" in self.ph else "s_memtime", S_TS + 2 * i, S_TS + 2 * i + 1))
            self.a("s_waitcnt lgkmcnt(0)")
    def stamp_flush(self):
        if not self.stamps: return
        a = self.a
        a("s_lshl_b32 s66, s2, 3")
        a("s_add_u32 s66, s66, s3")
        a("s_lshl_b32 s66, s66, 7")
        a("s_add_u32 s66, s66, 0x%x" % WS_TS)
        a("v_mov_b32 v250, 0")
        for i in range(10):
            a("v_mov_b32 v252, s%d" % (S_TS + 2 * i))
            a("v_mov_b32 v253, s%d" % (S_TS + 2 * i + 1))
            a("buffer_store_dwordx2 v[252:253], v250, s[20:23], s66 offen offset:%d" % (8 * i))
            a("s_nop 1")
        a("s_waitcnt vmcnt(0)")

    def prologue(self):
        a = self.a
        a("s_cmp_ge_u32 s2, 256")
        a("s_cbranch_scc1 %s_end" % self.name)
        a("s_load_dwordx16 s[32:47], s[0:1], 0")
        a("s_load_dwordx16 s[48:63], s[0:1], 64")
        a("s_load_dwordx2 s[64:65], s[0:1], 128")
        if "warmc0" in self.ph: self.warm_code(early=True)
        a("v_lshrrev_b32 v1, 6, v0")
        a("v_and_b32 v0, 63, v0")
        a("v_readfirstlane_b32 s3, v1")
        a("s_and_b32 s66, s2, 7")
        a("s_lshr_b32 s67, s2, 3")
        a("s_and_b32 s68, s67, 7")
        a("s_lshr_b32 s69, s67, 3")
        a("s_and_b32 s70, s66, 1")
        a("s_lshl_b32 s70, s70, 3")
        a("s_or_b32 s4, s70, s68")
        a("s_lshr_b32 s70, s66, 1")
        a("s_lshl_b32 s70, s70, 2")
        a("s_or_b32 s5, s70, s69")
        a("s_and_b32 s70, s66, 3")
        a("s_lshl_b32 s70, s70, 3")
        a("s_or_b32 s6, s70, s68")
        a("s_lshr_b32 s70, s66, 2")
        a("s_lshl_b32 s70, s70, 2")
        a("s_or_b32 s7, s70, s69")
        if "sametile" in self.ph:
            a("s_mov_b32 s4, 0"); a("s_mov_b32 s5, 0")
        if "samem" in self.ph:
            a("s_mov_b32 s4, 0")
        if "samen" in self.ph:
            a("s_mov_b32 s5, 0")
        if self.stamps:
            for i in range(10):
                a("s_mov_b64 s[%d:%d], 0" % (S_TS + 2 * i, S_TS + 2 * i + 1))
        a("s_waitcnt lgkmcnt(0)")
        def srd(base, ptr, size):
            a("s_mov_b32 s%d, s%d" % (base, ptr))
            a("s_and_b32 s%d, s%d, 0xffff" % (base + 1, ptr + 1))
            a("s_mov_b32 s%d, 0x%x" % (base + 2, size))
            a("s_mov_b32 s%d, 0x20000" % (base + 3))
        srd(SRD_X, P_U, 2048 * 640 * 2)
        srd(SRD_WG, P_WG, 640 * 1536 * 2)
        srd(SRD_WU, P_WU, 640 * 1536 * 2)
        srd(SRD_WS, P_WS, 0x10000000)
        srd(SRD_OUT, P_OUT, 2048 * 640 * 2)
        srd(SRD_WD, P_WD, 640 * 1536 * 2)
        self.stamp(0)
        if "dbgtime" in self.ph:
            a("s_memrealtime s[96:97]")
            a("s_memtime s[98:99]")
            a("s_mov_b64 s[100:101], s[62:63]")
            a("s_waitcnt lgkmcnt(0)")

    def dbgtime_end(self):
        a = self.a
        if "dbgtime" not in self.ph: return
        l = self.newlab("dbt")
        a("s_cmp_lg_u32 s2, 0"); a("s_cbranch_scc1 %s" % l)
        a("s_cmp_lg_u32 s3, 0"); a("s_cbranch_scc1 %s" % l)
        a("s_waitcnt vmcnt(0)")
        a("s_memrealtime s[92:93]")
        a("s_memtime s[94:95]")
        a("s_waitcnt lgkmcnt(0)")
        a("s_sub_u32 s92, s92, s96")
        a("s_sub_u32 s94, s94, s98")
        a("v_mov_b32 v250, 0")
        a("v_mov_b32 v252, s92")
        a("v_mov_b32 v253, s94")
        a("v_mov_b32 v254, s96")
        a("v_mov_b32 v255, 0x1234")
        a("global_store_dwordx4 v250, v[252:255], s[100:101]")
        a("s_waitcnt vmcnt(0)")
        a.lab(l)

    def rot_r(self, dst, tmp):
        a = self.a
        a("s_lshr_b32 %s, s5, 1" % dst)
        a("s_cmp_ge_u32 %s, 5" % dst)
        a("s_cselect_b32 %s, 1, 0" % tmp)
        a("s_cmp_ge_u32 %s, 1" % dst)
        a("s_addc_u32 %s, %s, %s" % (dst, dst, tmp))

    def g_gemm1(self):
        a = self.a
        ACC = 0; FP = 96; FQ = 136
        VXB = 176
        VWA = 182
        VL16 = 196
        T = 200
        accg = lambda ft, tt: ACC + (ft * 4 + tt) * 4
        accu = lambda ft, tt: ACC + 48 + (ft * 4 + tt) * 4
        LANE = 197
        a("v_mov_b32 v%d, v0" % LANE)
        a("s_and_b32 s67, s3, 1")
        a("s_lshr_b32 s68, s3, 1")
        VOX = 191
        a("v_lshrrev_b32 v%d, 3, v%d" % (T, LANE))
        a("s_lshl_b32 s69, s4, 7")
        a("s_lshl_b32 s70, s3, 5")
        a("s_add_u32 s69, s69, s70")
        a("v_add_u32 v%d, s69, v%d" % (T, T))
        a("s_movk_i32 s70, 1280")
        a("v_mul_lo_u32 v%d, v%d, s70" % (T, T))
        a("v_and_b32 v%d, 7, v%d" % (T + 1, LANE))
        a("v_lshrrev_b32 v%d, 4, v%d" % (T + 2, LANE))
        a("v_xor_b32 v%d, v%d, v%d" % (T + 3, T + 1, T + 2))
        a("v_xor_b32 v%d, 4, v%d" % (T + 4, T + 3))
        a("v_lshl_add_u32 v%d, v%d, 4, v%d" % (VOX, T + 3, T))
        a("v_lshl_add_u32 v%d, v%d, 4, v%d" % (VOX + 1, T + 4, T))
        a("s_lshl_b32 s75, s3, 12")
        VOW = 193
        a("s_mul_i32 s76, s3, 3072")
        a("s_add_u32 s77, s76, %d" % ST_WU)
        a("s_add_u32 s76, s76, %d" % ST_WG)
        self.rot_r("s74", "s72")
        def xdma(st):
            base = (st % 3) * STAGE
            L = []
            for i in range(4):
                if i == 0:
                    L.append(("s_lshl_b32 s72, s74, 7", "s_mul_i32 s73, s74, 196608", "s_add_u32 s74, s74, 1",
                              "s_add_u32 m0, s75, %d" % base, "s_cmp_eq_u32 s74, 10", "s_cselect_b32 s74, 0, s74",
                              "buffer_load_dwordx4 v%d, s[8:11], s72 offen lds" % VOX))
                else:
                    L.append(("s_add_u32 s70, s72, %d" % (9216 * i),
                              "buffer_load_dwordx4 v%d, s[8:11], s70 offen offset:%d lds" % (VOX + (i & 1), 1024 * i)))
            for mat, sm, srd in (() if "s3w" in self.ph else ((0, 76, "s[12:15]"), (1, 77, "s[16:19]"))):
                for i in range(3):
                    ld = "buffer_load_dwordx4 v%d, %s, s73 offen offset:%d lds" % (VOW + i, srd, 1024 * i)
                    if mat == 1 and "nowu" in self.ph: ld = "s_nop 0"
                    if i == 2 and "now2" in self.ph: ld = "s_nop 0"
                    if i == 0: L.append(("s_add_u32 m0, s%d, %d" % (sm, base), "s_nop 0", ld))
                    else: L.append(ld)
            return L
        if "ststamps" in self.ph: self.stamp(1, force=True)
        def wcalc():
            a("s_lshl_b32 s69, s3, 4")
            a("s_mul_i32 s69, s69, 3072")
            a("s_mul_i32 s70, s5, 192")
            a("s_add_u32 s69, s69, s70")
            a("s_mov_b32 s70, 43691")
            a("s_movk_i32 s71, 3072")
            for i in range(3):
                a("v_add_u32 v%d, %d, v%d" % (T, 64 * i, LANE))
                a("v_mul_lo_u32 v%d, v%d, s70" % (T + 1, T))
                a("v_lshrrev_b32 v%d, 19, v%d" % (T + 1, T + 1))
                a("v_mul_u32_u24 v%d, 12, v%d" % (T + 2, T + 1))
                a("v_sub_u32 v%d, v%d, v%d" % (T + 2, T, T + 2))
                a("v_lshrrev_b32 v%d, 2, v%d" % (T + 3, T + 1))
                a("v_and_b32 v%d, 2, v%d" % (T + 3, T + 3))
                a("v_xor_b32 v%d, v%d, v%d" % (T + 2, T + 2, T + 3))
                a("v_mul_lo_u32 v%d, v%d, s71" % (T + 1, T + 1))
                a("v_lshl_add_u32 v%d, v%d, 4, v%d" % (T + 1, T + 2, T + 1))
                a("v_add_u32 v%d, s69, v%d" % (T + 1, T + 1))
                a("v_subrev_u32 v%d, %d, v%d" % (VOW + i, 1024 * i, T + 1))

        d0 = xdma(0)
        a.ext(flat(d0[:4]))
        wcalc()
        a.ext(flat(d0[4:]))
        if "late1" not in self.ph: a.ext(flat(xdma(1)))
        if "ststamps" in self.ph: self.stamp(2, force=True)
        if "nobpre" not in self.ph: a("s_barrier")
        a("v_and_b32 v%d, 15, v%d" % (T, LANE))
        a("v_lshrrev_b32 v%d, 4, v%d" % (T + 1, LANE))
        a("s_lshl_b32 s69, s67, 6")
        a("v_add_u32 v%d, s69, v%d" % (T + 2, T))
        a("v_lshlrev_b32 v%d, 7, v%d" % (T + 2, T + 2))
        a("v_lshrrev_b32 v%d, 1, v%d" % (T + 3, T))
        a("v_and_b32 v%d, 7, v%d" % (T + 3, T + 3))
        a("v_xor_b32 v%d, v%d, v%d" % (T + 3, T + 3, T + 1))
        a("v_xor_b32 v%d, 4, v%d" % (T + 4, T + 3))
        a("v_lshl_add_u32 v%d, v%d, 4, v%d" % (VXB, T + 3, T + 2))
        a("v_lshl_add_u32 v%d, v%d, 4, v%d" % (VXB + 1, T + 4, T + 2))
        for st in (1, 2):
            for s in range(2):
                a("v_add_u32 v%d, %d, v%d" % (VXB + 2 * st + s, st * STAGE, VXB + s))
        a("v_lshrrev_b32 v%d, 2, v%d" % (T + 2, T))
        a("v_lshl_add_u32 v%d, v%d, 3, v%d" % (T + 2, T + 1, T + 2))
        a("v_mul_u32_u24 v%d, 192, v%d" % (T + 2, T + 2))
        a("v_and_b32 v%d, 3, v%d" % (T + 3, LANE))
        a("v_lshl_add_u32 v%d, v%d, 3, v%d" % (T + 2, T + 3, T + 2))
        a("v_add_u32 v%d, %d, v%d" % (T + 2, ST_WG, T + 2))
        a("v_and_b32 v%d, 1, v%d" % (T + 3, T + 1))
        a("s_lshl_b32 s69, s68, 2")
        a("s_add_u32 s78, s69, 1")
        a("s_add_u32 s79, s68, 2")
        for ft, sreg in ((0, 69), (1, 78), (2, 79)):
            a("v_xor_b32 v%d, s%d, v%d" % (T + 4, sreg, T + 3))
            a("v_lshl_add_u32 v%d, v%d, 5, v%d" % (VWA + ft, T + 4, T + 2))
        for st in (1, 2):
            for ft in range(3):
                a("v_add_u32 v%d, %d, v%d" % (VWA + 3 * st + ft, st * STAGE, VWA + ft))
        a("v_lshlrev_b32 v%d, 4, v%d" % (VL16, LANE))
        a("s_lshl_b32 s69, s4, 1")
        a("s_add_u32 s69, s69, s67")
        a("s_mul_i32 s69, s69, 48")
        a("s_mul_i32 s78, s5, 3")
        a("s_add_u32 s69, s69, s78")
        a("s_lshl_b32 s78, s68, 1")
        a("s_add_u32 s78, s78, s69")
        a("s_lshl_b32 s78, s78, 12")
        a("s_add_u32 s79, s69, 1")
        a("s_lshl_b32 s79, s79, 12")
        a("s_lshl_b32 s69, s68, 9")
        a("s_add_u32 s79, s79, s69")
        a("v_lshlrev_b32 v%d, 3, v%d" % (VL16 + 2, LANE))
        if WS_H:
            a("s_add_u32 s78, s78, %d" % WS_H); a("s_add_u32 s79, s79, %d" % WS_H)

        def reads(kk, s, F):
            st = kk % 3
            xs = ["ds_read_b128 v[%d:%d], v%d offset:%d" % (F + 4 * tt, F + 4 * tt + 3, VXB + 2 * st + s, 2048 * tt) for tt in range(4)]
            ws = []
            for mat in range(2):
                for ft in range(3):
                    r = F + 16 + (mat * 3 + ft) * 4
                    for h in range(2):
                        ws.append("ds_read_b64_tr_b16 v[%d:%d], v%d offset:%d" % (r + 2 * h, r + 2 * h + 1, VWA + 3 * st + ft, 12288 * mat + 6144 * s + 768 * h))
            order = [xs[0], ws[0], ws[1], xs[1], ws[6], ws[7], xs[2], xs[3]] + ws[2:6] + ws[8:]
            return order
        def mfmas(F, first):
            L = []
            for ft in range(3):
                for mat in range(2):
                    for tt in range(4):
                        acc = accg(ft, tt) if mat == 0 else accu(ft, tt)
                        A = F + 16 + (mat * 3 + ft) * 4
                        B = F + 4 * tt
                        c = "0" if first else "v[%d:%d]" % (acc, acc + 3)
                        L.append("v_mfma_f32_16x16x32_bf16 v[%d:%d], v[%d:%d], v[%d:%d], %s" % (acc, acc + 3, A, A + 3, B, B + 3, c))
            return L
        def spread(mm, d, first, step):
            out = []; cnt = 0; di = 0
            for x in mm:
                out.append(x)
                if x.startswith("v_mfma"):
                    cnt += 1
                    if cnt >= first and (cnt - first) % step == 0 and di < len(d):
                        f = d[di]; di += 1
                        out.extend(f if isinstance(f, tuple) else (f,))
            assert di == len(d), (di, len(d))
            return out
        self.stamp(5)
        ND = 4 if "s3w" in self.ph else (7 if "nowu" in self.ph else (8 if "now2" in self.ph else 10))
        a("s_waitcnt vmcnt(%d)" % (0 if "late1" in self.ph else ND))
        if "ststamps" in self.ph: self.stamp(3, force=True)
        a("s_barrier")
        if "ststamps" in self.ph: self.stamp(4, force=True)
        if "late1" in self.ph: a.ext(flat(xdma(1)))
        self.stamp(1)
        self.clk(1)
        a.ext(reads(0, 0, FP))
        a("s_waitcnt lgkmcnt(0)")
        pend = xdma(2)
        for kk in range(10):
            mm = interleave(mfmas(FP, kk == 0), reads(kk, 1, FQ), span=16)
            if pend: mm = spread(mm, pend, 2, (10 if len(pend) <= 2 else 5) if len(pend) <= 5 else 2)
            a.ext(mm)
            if kk <= 7: a("s_waitcnt vmcnt(%d) lgkmcnt(0)" % ND)
            elif kk == 8: a("s_waitcnt vmcnt(0) lgkmcnt(0)")
            else: a("s_waitcnt lgkmcnt(0)")
            if kk == 9 and self.fused(): self.lds_inc(LDS_SFREE, T)
            else: a("s_barrier")
            if "kstamps" in self.ph and kk < 9: self.stamp(kk + 1, force=True)
            if "ststamps" in self.ph and kk < 5: self.stamp(kk + 5, force=True)
            fill = reads(kk + 1, 0, FP) if kk + 1 < 10 else []
            mm = interleave(mfmas(FQ, False), fill, span=16)
            d = xdma(kk + 3) if kk + 3 < 10 else []
            if "dmaB" in self.ph:
                pend = []
                if d: mm = spread(mm, d, 2, 2)
            elif "dma73" in self.ph:
                pend = d[7:]
                if d: mm = spread(mm, d[:7], 2, 3)
            elif "s3w" in self.ph:
                pend = d[2:]
                if d: mm = spread(mm, d[:2], 4, 10)
            else:
                pend = d[5:]
                if d: mm = spread(mm, d[:5], 2, 5)
            a.ext(mm)
            if kk + 1 < 10:
                a("s_waitcnt lgkmcnt(0)")
        self.stamp(2)
        self.clk(3)
        epb = "epb" in self.ph and "g2" in self.ph
        if epb: CN, ONE, OUTB, TMPB, TMPS = 200, 202, 116, 152, 8
        else: CN, ONE, OUTB, TMPB, TMPS = FP, FP + 2, FP + 8, FQ, 16
        E = []
        E.append("v_mov_b32 v%d, 0xbfb8aa3b" % CN)
        E.append("v_mov_b32 v%d, 0xbfb8aa3b" % (CN + 1))
        E.append("v_mov_b32 v%d, 1.0" % ONE)
        E.append("v_mov_b32 v%d, 1.0" % (ONE + 1))
        grp = 0
        def silu(gregs, uregs, tmp, out):
            n = len(gregs)
            L = []
            for i in range(n): L.append("v_pk_mul_f32 v[%d:%d], v[%d:%d], v[%d:%d]" % (tmp + 2 * i, tmp + 2 * i + 1, gregs[i], gregs[i] + 1, CN, CN + 1))
            for i in range(2 * n): L.append("v_exp_f32 v%d, v%d" % (tmp + i, tmp + i))
            for i in range(n): L.append("v_pk_mul_f32 v[%d:%d], v[%d:%d], v[%d:%d]" % (gregs[i], gregs[i] + 1, gregs[i], gregs[i] + 1, uregs[i], uregs[i] + 1))
            for i in range(n): L.append("v_pk_add_f32 v[%d:%d], v[%d:%d], v[%d:%d]" % (tmp + 2 * i, tmp + 2 * i + 1, tmp + 2 * i, tmp + 2 * i + 1, ONE, ONE + 1))
            for i in range(2 * n): L.append("v_rcp_f32 v%d, v%d" % (tmp + i, tmp + i))
            if n < 2: L.append("s_nop 0")
            for i in range(n): L.append("v_pk_mul_f32 v[%d:%d], v[%d:%d], v[%d:%d]" % (gregs[i], gregs[i] + 1, gregs[i], gregs[i] + 1, tmp + 2 * i, tmp + 2 * i + 1))
            for i in range(n): L.append("v_cvt_pk_bf16_f32 v%d, v%d, v%d" % (out + i, gregs[i], gregs[i] + 1))
            return L
        for tt in range(4):
            tmp = TMPB + (grp % 2) * TMPS; out = OUTB + (grp % 4) * 4; grp += 1
            g = [accg(0, tt), accg(0, tt) + 2, accg(1, tt), accg(1, tt) + 2]
            u = [accu(0, tt), accu(0, tt) + 2, accu(1, tt), accu(1, tt) + 2]
            E += silu(g, u, tmp, out)
            E.append("buffer_store_dwordx4 v[%d:%d], v%d, s[20:23], s78 offen offset:%d sc1" % (out, out + 3, VL16, 1024 * tt))
            tmp = TMPB + (grp % 2) * TMPS; out = OUTB + (grp % 4) * 4; grp += 1
            g = [accg(2, tt), accg(2, tt) + 2]
            u = [accu(2, tt), accu(2, tt) + 2]
            E += silu(g, u, tmp, out)
            E.append("buffer_store_dwordx2 v[%d:%d], v%d, s[20:23], s79 offen offset:%d sc1" % (out, out + 1, VL16 + 2, 1024 * tt))
        if epb:
            self.g2_setup()
            if self.fused(): self.lds_spin(LDS_WOK, 232, treg="s80x")
            regl, dmal = self.g2_burst_atoms()
            half = len(E) // 2
            a.ext(interleave(E[:half], regl, start=4))
            if self.fused(): self.lds_spin(LDS_SFREE, 232, 4, treg="s80x")
            a.ext(interleave(E[half:], dmal))
        else:
            a.ext(E)
        self.stamp(3)
        if "g2" not in self.ph:
            a("s_waitcnt vmcnt(0)")
            self.stamp(4)

    def g_signal_h(self, nyounger):
        a = self.a
        T = 232
        if nyounger is not None: a("s_waitcnt vmcnt(%d)" % nyounger)
        if self.fused():
            l = self.newlab("fh")
            a("v_mov_b32 v%d, %d" % (T, LDS_CNT))
            a("v_mov_b32 v%d, 1" % (T + 1))
            a("s_mov_b64 exec, 1")
            a("ds_add_rtn_u32 v%d, v%d, v%d" % (T + 2, T, T + 1))
            a("s_waitcnt lgkmcnt(0)")
            a("s_mov_b64 exec, -1")
            a("v_readfirstlane_b32 s69, v%d" % (T + 2))
            a("s_nop 1")
            a("s_cmp_lg_u32 s69, 3")
            a("s_cbranch_scc1 %s" % l)
            a("s_lshl_b32 s69, s4, 5")
            a("s_add_u32 s69, s69, s5")
            a("s_lshl_b32 s69, s69, 2")
            a("s_add_u32 s69, s69, %d" % WS_FH)
            self.flag_set("s69", T)
            a.lab(l)
        self.stamp(4)

    def lds_inc(self, addr, vt):
        a = self.a
        a("v_mov_b32 v%d, %d" % (vt, addr))
        a("v_mov_b32 v%d, 1" % (vt + 1))
        a("s_mov_b64 exec, 1")
        a("ds_add_u32 v%d, v%d" % (vt, vt + 1))
        a("s_mov_b64 exec, -1")

    def lds_spin(self, addr, vt, val=1, treg=None):
        a = self.a
        st = "s78" if treg is None else "s68"
        lp = self.newlab("ls"); ld = self.newlab("ld")
        a("v_mov_b32 v%d, %d" % (vt, addr))
        a("s_mov_b32 s69, 0")
        a.lab(lp)
        a("ds_read_b32 v%d, v%d" % (vt + 1, vt))
        a("s_waitcnt lgkmcnt(0)")
        a("v_readfirstlane_b32 %s, v%d" % (st, vt + 1))
        a("s_nop 1")
        a("s_cmp_eq_u32 %s, %d" % (st, val))
        a("s_cbranch_scc1 %s" % ld)
        a("s_add_u32 s69, s69, 1")
        a("s_cmp_lt_u32 s69, 0x400000")
        a("s_cbranch_scc0 %s" % ld)
        a("s_sleep 1")
        a("s_branch %s" % lp)
        a.lab(ld)

    def s_kgen_phase1(self):
        a = self.a
        NCH = 8
        chunks = [[] for _ in range(NCH)]
        if "ssm" in self.ph:
            a("s_lshl_b32 s50, s66, 8")
            a("s_add_u32 s50, s50, s2")
            a("s_min_u32 s50, s50, 639")
            self.kgen_bases()
            if "kghead" in self.ph:
                kg = self.capture(lambda: self.kgen("head"))
                if "bigI0" in self.ph:
                    first = min(len(kg), 140 if "I0s" in self.ph else 230)
                    rest = kg[first:]
                    per = (len(rest) + NCH - 1) // NCH
                    chunk0 = kg[:first]
                    chunks = [rest[i * per:(i + 1) * per] for i in range(NCH)]
                else:
                    per = (len(kg) + NCH - 1) // NCH
                    chunks = [kg[i * per:(i + 1) * per] for i in range(NCH)]
        self.stamp(5)
        if "prioS" in self.ph: a("s_setprio 2")
        if "nobpre" not in self.ph: a("s_barrier")
        pw = "pwarm" in self.ph
        if "ssm" in self.ph and pw: self.ssm_param_warm()
        if "ssm" in self.ph and "kghead" in self.ph and not pw: self.ssm_param_loads(slots=((0, 1) if "kg2" in self.ph else (0,)))
        a("s_barrier")
        if "ssm" in self.ph and pw:
            a("s_waitcnt lgkmcnt(0)")
            self.ssm_param_loads()
        self.stamp(1)
        if "bigI0" in self.ph and "kghead" in self.ph:
            a("s_waitcnt vmcnt(0)")
            a.ext(chunk0)
        for kk in range(10):
            if not (kk == 9 and self.fused()): a("s_barrier")
            if kk == 1 and "kghead" in self.ph and "bigI0" not in self.ph: a("s_waitcnt vmcnt(0)")
            if kk == 7 and "ssm" in self.ph and not pw:
                if "kghead" in self.ph: self.ssm_param_loads(slots=((2,) if "kg2" in self.ph else (1, 2)), scalars=False)
                else: self.ssm_param_loads()
            if "bigI0" in self.ph:
                if kk < NCH: a.ext(chunks[kk])
            elif 1 <= kk <= NCH: a.ext(chunks[kk - 1])
        self.stamp(2)

    def side_setup(self):
        a = self.a
        a("s_mov_b32 s67, 52429")
        a("s_movk_i32 s68, 1280")
        for i in range(5):
            a("v_add_u32 v1, %d, v0" % (64 * i))
            a("v_mul_lo_u32 v2, v1, s67")
            a("v_lshrrev_b32 v2, 19, v2")
            a("v_mul_u32_u24 v3, 10, v2")
            a("v_sub_u32 v3, v1, v3")
            a("v_mul_lo_u32 v2, v2, s68")
            a("v_lshl_add_u32 v%d, v3, 4, v2" % (230 + i))
        a("v_lshrrev_b32 v1, 4, v0")
        a("v_and_b32 v2, 15, v0")
        a("v_lshrrev_b32 v3, 2, v2")
        a("v_lshl_add_u32 v4, v1, 2, v3")
        a("v_mul_u32_u24 v4, 160, v4")
        a("v_add_u32 v4, %d, v4" % (STAGE if "wdlate" in self.ph else LDS_WDS_EARLY))
        a("v_and_b32 v5, 3, v0")
        a("v_lshl_add_u32 v235, v5, 4, v4")
        a("v_lshl_add_u32 v236, v5, 3, v4")
        a("v_lshlrev_b32 v237, 4, v0")
        a("v_lshlrev_b32 v241, 2, v0")
        a("v_lshl_add_u32 v4, v1, 3, v3")
        a("v_lshlrev_b32 v4, 7, v4")
        a("v_bfe_u32 v5, v0, 1, 1")
        a("v_lshrrev_b32 v6, 1, v3")
        a("v_xor_b32 v5, v5, v6")
        a("v_lshl_add_u32 v4, v5, 4, v4")
        a("v_and_b32 v5, 1, v0")
        a("v_lshl_add_u32 v4, v5, 3, v4")
        a("v_and_b32 v5, 1, v1")
        a("v_lshl_add_u32 v238, v5, 6, v4")
        a("v_xor_b32 v5, 1, v5")
        a("v_lshl_add_u32 v239, v5, 6, v4")
        a("v_mul_u32_u24 v240, %d, v2" % ROWS)
        a("v_lshl_add_u32 v240, v1, 4, v240")
        a("s_add_u32 s51, s2, 128")
        a("s_cmp_ge_u32 s2, 128")
        a("s_cselect_b32 s51, s51, 999")
        a("s_lshr_b32 s52, s5, 1")
        a("s_add_u32 s53, s52, 8")
        a("s_cmp_lt_u32 s5, 4")
        a("s_cselect_b32 s53, s53, 99")
    def wd_load(self, ureg, scr):
        a = self.a
        if "nowd" in self.ph: return
        a("s_lshr_b32 s67, %s, 3" % ureg)
        a("s_and_b32 s68, %s, 7" % ureg)
        a("s_mul_i32 s69, s67, %d" % (32 * 1280))
        a("s_mul_i32 s67, s68, 160")
        a("s_add_u32 s69, s69, s67")
        for i in range(5):
            a("s_mov_b32 m0, %d" % ((STAGE if "wdlate" in self.ph else LDS_WDS_EARLY) + scr + 1024 * i))
            a("s_nop 0")
            a("buffer_load_dwordx4 v%d, s[28:31], s69 offen lds" % (230 + i))
    def wd_store(self, ureg, scr, R=160):
        a = self.a
        if "nowd" in self.ph: return
        for dt in range(5):
            for h in range(2):
                if dt < 4: ad, off = 235, 64 * (dt >> 1) + 8 * (dt & 1) + 2560 * h
                else: ad, off = 236, 128 + 2560 * h
                a("ds_read_b64_tr_b16 v[%d:%d], v%d offset:%d" % (R + 4 * dt + 2 * h, R + 1 + 4 * dt + 2 * h, ad, off + scr))
        a("s_lshr_b32 s67, %s, 3" % ureg)
        a("s_and_b32 s68, %s, 7" % ureg)
        a("s_mul_i32 s68, s68, 48")
        a("s_add_u32 s67, s67, s68")
        a("s_mul_i32 s67, s67, 5120")
        a("s_add_u32 s67, s67, %d" % WS_WD)
        a("s_add_u32 s68, s67, 4096")
        a("s_waitcnt lgkmcnt(0)")
        for dt in range(5):
            if dt < 4: a("buffer_store_dwordx4 v[%d:%d], v237, s[20:23], s67 offen offset:%d sc1" % (R + 4 * dt, R + 3 + 4 * dt, 1024 * dt))
            else: a("buffer_store_dwordx4 v[%d:%d], v237, s[20:23], s68 offen sc1" % (R + 4 * dt, R + 3 + 4 * dt))
    def gate_load(self):
        a = self.a
        a("v_and_b32 v1, 15, v0")
        a("v_lshlrev_b32 v1, 4, v1")
        for j in range(5):
            a("global_load_dwordx4 v[%d:%d], v1, s[%d:%d] offset:%d" % (8 + 4 * j, 11 + 4 * j, P_GW, P_GW + 1, 256 * j))
        a("v_lshrrev_b32 v2, 4, v0")
        a("s_movk_i32 s67, 1280")
        a("v_mul_lo_u32 v2, v2, s67")
        a("v_add_u32 v2, v2, v1")
        a("s_lshl_b32 s67, s2, 3")
        a("s_mul_i32 s67, s67, 1280")
        for half in range(2):
            for j in range(5):
                r = 28 + 20 * half + 4 * j
                a("buffer_load_dwordx4 v[%d:%d], v2, s[8:11], s67 offen offset:%d" % (r, r + 3, 256 * j))
            if half == 0: a("s_add_u32 s67, s67, %d" % (4 * 1280))
    def gate_compute(self):
        a = self.a
        R = 68
        for i in range(4): a("v_mov_b32 v%d, 0" % (R + i))
        for j in range(5):
            for e in range(4):
                for half in range(2):
                    acc = R + half + 2 * (e & 1)
                    a("v_dot2_f32_bf16 v%d, v%d, v%d, v%d" % (acc, 28 + 20 * half + 4 * j + e, 8 + 4 * j + e, acc))
        a("s_nop 2")
        a("v_add_f32 v%d, v%d, v%d" % (R, R, R + 2))
        a("v_add_f32 v%d, v%d, v%d" % (R + 1, R + 1, R + 3))
        a("s_nop 0")
        for ctl in ("row_shr:1", "row_shr:2", "row_shr:4", "row_shr:8"):
            for i in range(2):
                a("v_add_f32_dpp v%d, v%d, v%d %s row_mask:0xf bank_mask:0xf bound_ctrl:1" % (R + i, R + i, R + i, ctl))
            a("s_nop 0")
        for i in range(2): a("v_mul_f32 v%d, 0xbfb8aa3b, v%d" % (R + i, R + i))
        for i in range(2): a("v_exp_f32 v%d, v%d" % (R + i, R + i))
        a("s_nop 0")
        for i in range(2): a("v_add_f32 v%d, 1.0, v%d" % (R + i, R + i))
        for i in range(2): a("v_rcp_f32 v%d, v%d" % (R + i, R + i))
        a("s_lshl_b32 s67, s2, 5")
        a("s_add_u32 s67, s67, %d" % WS_G)
        a("v_lshrrev_b32 v1, 4, v0")
        a("v_lshlrev_b32 v1, 2, v1")
        a("s_mov_b32 exec_lo, 0x80008000")
        a("s_mov_b32 exec_hi, 0x80008000")
        a("buffer_store_dword v%d, v1, s[20:23], s67 offen sc1" % R)
        a("buffer_store_dword v%d, v1, s[20:23], s67 offen offset:16 sc1" % (R + 1))
        a("s_mov_b64 exec, -1")
    def ut_read(self, chunk_reg, stage_base, H):
        a = self.a
        if "noutr" in self.ph: return
        a("s_and_b32 s67, %s, 1" % chunk_reg)
        a("s_cmp_eq_u32 s67, 0")
        a("s_cselect_b64 vcc, -1, 0")
        a("s_nop 0")
        a("v_cndmask_b32 v4, v239, v238, vcc")
        a("v_add_u32 v4, %d, v4" % stage_base)
        for aa in range(2):
            for it in range(4):
                for hh in range(2):
                    r = H + (aa * 4 + it) * 4 + 2 * hh
                    a("ds_read_b64_tr_b16 v[%d:%d], v4 offset:%d" % (r, r + 1, 4096 * it + 512 * hh + 32 * (aa ^ hh)))
        a("s_waitcnt lgkmcnt(0)")
    def ut_store(self, chunk_reg, H):
        a = self.a
        if "nout" in self.ph: return
        a("s_mul_i32 s67, %s, %d" % (chunk_reg, 32 * ROWS))
        a("s_lshl_b32 s68, s4, 8")
        a("s_add_u32 s67, s67, s68")
        a("s_add_u32 s67, s67, %d" % WS_UT)
        a("s_add_u32 s68, s67, %d" % (16 * ROWS))
        for aa in range(2):
            for it in range(4):
                r = H + (aa * 4 + it) * 4
                a("buffer_store_dwordx4 v[%d:%d], v240, s[20:23], s%d offen offset:%d sc1" % (r, r + 3, 67 + aa, 64 * it))

    def pretouch(self):
        a = self.a
        a("v_and_b32 v1, 7, v0")
        a("v_lshlrev_b32 v1, 21, v1")
        a("buffer_load_dword v63, v1, s[20:23], 0 offen")
        a("v_and_b32 v1, 1, v0")
        a("v_lshlrev_b32 v1, 21, v1")
        a("buffer_load_dword v63, v1, s[24:27], 0 offen")
    def warm_inputs(self):
        a = self.a
        a("v_lshlrev_b32 v1, 7, v0")
        if "warmx" in self.ph:
            a("s_mul_i32 s67, s2, 10240")
            a("buffer_load_dword v244, v1, s[8:11], s67 offen")
            a("s_add_u32 s68, s67, 8192")
            a("s_mov_b32 exec_hi, 0")
            a("s_mov_b32 exec_lo, 0xffff")
            a("buffer_load_dword v244, v1, s[8:11], s68 offen")
            a("s_mov_b32 exec_lo, -1")
        a("s_mov_b32 exec_hi, 0x0fffffff")
        a("s_mul_i32 s67, s2, 7680")
        a("buffer_load_dword v244, v1, s[12:15], s67 offen")
        a("buffer_load_dword v244, v1, s[16:19], s67 offen")
        if "warm2" in self.ph:
            a("buffer_load_dword v244, v1, s[28:31], s67 offen")
        a("s_mov_b64 exec, -1")
        if "warm2" in self.ph:
            a("v_and_b32 v1, 7, v0")
            a("v_lshlrev_b32 v1, 7, v1")
            a("s_mul_i32 s67, s2, 960")
            a("v_add_u32 v1, s67, v1")
            a("v_min_u32 v1, %d, v1" % (245760 - 4))
            a("v_lshrrev_b32 v2, 3, v0")
            a("v_mov_b32 v4, s%d" % P_ARE); a("v_mov_b32 v5, s%d" % (P_ARE + 1))
            for k, p in enumerate((P_AIM, P_BRE, P_BIM, P_CRE, P_CIM)):
                a("v_cmp_eq_u32 vcc, %d, v2" % (k + 1))
                a("v_mov_b32 v6, s%d" % p); a("v_mov_b32 v7, s%d" % (p + 1))
                a("v_cndmask_b32 v4, v4, v6, vcc")
                a("v_cndmask_b32 v5, v5, v7, vcc")
            a("v_add_co_u32 v4, vcc, v4, v1")
            a("s_nop 1")
            a("v_addc_co_u32 v5, vcc, 0, v5, vcc")
            a("global_load_dword v244, v[4:5], off")

    def warm_code(self, early=False):
        a = self.a
        n = self.name
        l = self.newlab("pc"); l2 = self.newlab("pc")
        a("s_getpc_b64 s[68:69]")
        a.lab(l)
        a("s_sub_u32 s68, s68, %s-%s" % (l, n))
        a("s_subb_u32 s69, s69, 0")
        a("s_mov_b32 s67, (%s_end-%s+4095)/4096" % (n, n))
        a("s_lshr_b32 s70, s2, 3")
        a("s_mul_i32 s70, s70, s67")
        a("v_add_u32 v1, s70, v0")
        a("v_lshlrev_b32 v1, 7, v1")
        a("v_min_u32 v1, %s_end-%s, v1" % (n, n))
        a("v_cmp_gt_u32 vcc, s67, v0")
        a("s_and_saveexec_b64 s[70:71], vcc")
        a("s_cbranch_execz %s" % l2)
        a("global_load_dword v244, v1, s[68:69]")
        a.lab(l2)
        a("s_mov_b64 exec, s[70:71]")

    def smem_warm(self, part):
        a = self.a
        if part == 0:
            a("s_mul_i32 s67, s2, 7680")
            a("s_add_u32 s70, s%d, s67" % P_WD)
            a("s_addc_u32 s71, s%d, 0" % (P_WD + 1))
        for r in range(15 * part, 15 * part + 15):
            a("s_load_dword s74, s[70:71], %d" % (r * 128))

    def s3w_setup(self):
        a = self.a
        T = 1; VO = 245
        a("s_mul_i32 s69, s5, 192")
        a("s_mov_b32 s78, 43691")
        a("s_movk_i32 s79, 3072")
        for i in range(3):
            a("v_add_u32 v%d, %d, v0" % (T, 64 * i))
            a("v_mul_lo_u32 v%d, v%d, s78" % (T + 1, T))
            a("v_lshrrev_b32 v%d, 19, v%d" % (T + 1, T + 1))
            a("v_mul_u32_u24 v%d, 12, v%d" % (T + 2, T + 1))
            a("v_sub_u32 v%d, v%d, v%d" % (T + 2, T, T + 2))
            a("v_lshrrev_b32 v%d, 2, v%d" % (T + 3, T + 1))
            a("v_and_b32 v%d, 2, v%d" % (T + 3, T + 3))
            a("v_xor_b32 v%d, v%d, v%d" % (T + 2, T + 2, T + 3))
            a("v_mul_lo_u32 v%d, v%d, s79" % (T + 1, T + 1))
            a("v_lshl_add_u32 v%d, v%d, 4, v%d" % (T + 1, T + 2, T + 1))
            a("v_add_u32 v%d, s69, v%d" % (VO + i, T + 1))
        self.rot_r("s54", "s67")
    def s3w_younger0(self):
        n = 24 + (1 if self.fused() else 0)
        if "wdlate" not in self.ph: n += 5
        return n
    def s3w_dma(self, st):
        a = self.a
        VO = 245
        base = (st % 3) * STAGE
        a("s_mul_i32 s55, s54, 196608")
        a("s_add_u32 s54, s54, 1")
        a("s_cmp_eq_u32 s54, 10")
        a("s_cselect_b32 s54, 0, s54")
        for g4 in range(4):
            if g4: a("s_add_u32 s55, s55, 49152")
            for mat, srd in ((0, "s[12:15]"), (1, "s[16:19]")):
                for i in range(3):
                    a("s_mov_b32 m0, %d" % (base + (ST_WG if mat == 0 else ST_WU) + 3072 * g4 + 1024 * i))
                    a("s_nop 0")
                    a("buffer_load_dwordx4 v%d, %s, s55 offen lds" % (VO + i, srd))

    def s_side(self):
        a = self.a
        if "noside" in self.ph:
            for b in range(11 if self.fused() else 12): a("s_barrier")
            return
        HA, HB = 100, 132
        def cond_b(fn):
            l = self.newlab("wb")
            a("s_cmp_ge_u32 s51, 384")
            a("s_cbranch_scc1 %s" % l)
            fn()
            a.lab(l)
        if "warm0" in self.ph:
            self.warm_inputs()
            if "warmc" in self.ph: self.warm_code()
        s3w = "s3w" in self.ph
        if s3w:
            self.s3w_setup()
            self.s3w_dma(0)
            self.s3w_dma(1)
        self.side_setup()
        self.rot_r("s50", "s67")
        a("s_and_b32 s68, s5, 1")
        a("s_lshl_b32 s50, s50, 1")
        a("s_add_u32 s50, s50, s68")
        a("s_add_u32 s53, s50, 2")
        a("s_lshr_b32 s67, s5, 1")
        a("s_and_b32 s67, s67, 3")
        a("s_cmp_eq_u32 s67, 0")
        a("s_cselect_b32 s53, s53, 99")
        if self.fused():
            a("v_mov_b32 v1, %d" % LDS_CNT)
            a("v_mov_b32 v2, 0")
            a("v_mov_b32 v3, 0")
            a("ds_write_b64 v1, v[2:3]")
            a("ds_write_b64 v1, v[2:3] offset:8")
            a("ds_write_b64 v1, v[2:3] offset:16")
            a("ds_write_b32 v1, v2 offset:24")
        self.stamp(5)
        if "nobpre" not in self.ph: a("s_barrier")
        if self.fused(): self.nonce_load()
        wdlate = "wdlate" in self.ph
        wdmid = "wdmid" in self.ph
        if not wdlate and not wdmid:
            self.wd_load("s2", 0)
            cond_b(lambda: self.wd_load("s51", 5120))
        if "warm0" not in self.ph:
            if "warmc" in self.ph: self.warm_code()
            if ("warm" in self.ph or "warm2" in self.ph) and "warmB0" not in self.ph and "warmB1" not in self.ph and not s3w: self.warm_inputs()
        if s3w: a("s_waitcnt vmcnt(%d)" % self.s3w_younger0())
        a("s_barrier")
        if s3w:
            self.s3w_dma(2)
            self.warm_inputs()
        if "warmB0" in self.ph: self.warm_inputs()
        self.stamp(1)
        self.ut_read("s50", 0, HA)
        def uflag(creg):
            a("s_lshl_b32 s69, %s, 5" % creg)
            a("s_add_u32 s69, s69, s4")
            a("s_lshl_b32 s69, s69, 2")
            a("s_add_u32 s69, s69, %d" % WS_FU)
            self.flag_set("s69", 2)
        def n_lt4(fn):
            l = self.newlab("ut")
            a("s_cmp_ge_u32 s53, 20")
            a("s_cbranch_scc1 %s" % l)
            fn()
            a.lab(l)
        def wflag(ureg):
            a("s_and_b32 s68, %s, 7" % ureg)
            a("s_lshl_b32 s68, s68, 8")
            a("s_lshr_b32 s69, %s, 3" % ureg)
            a("s_lshl_b32 s69, s69, 2")
            a("s_add_u32 s69, s69, s68")
            a("s_add_u32 s69, s69, %d" % WS_FW)
            self.flag_set("s69", 2)
        early = "utearly" in self.ph
        epb = "epb" in self.ph
        if early: self.ut_store("s50", HA)
        for kk in range(10):
            if s3w:
                if kk == 0: a("s_waitcnt vmcnt(26)")
                elif kk <= 7: a("s_waitcnt vmcnt(24)")
                elif kk == 8: a("s_waitcnt vmcnt(%d)" % (6 if (wdlate and self.fused()) else 0))
            if not (kk == 9 and self.fused()): a("s_barrier")
            if s3w and kk + 3 < 10 and kk not in (0, 1): self.s3w_dma(kk + 3)
            if kk == 0:
                if "warmB1" in self.ph: self.warm_inputs()
                n_lt4(lambda: self.ut_read("s53", 1 * STAGE, HB))
                if early: n_lt4(lambda: self.ut_store("s53", HB))
                if epb:
                    a("s_waitcnt vmcnt(%d)" % (8 if early else 0))
                    self.wd_store("s2", 0)
                    cond_b(lambda: self.wd_store("s51", 5120, 180))
            if kk == 1:
                if not early:
                    self.ut_store("s50", HA)
                    n_lt4(lambda: self.ut_store("s53", HB))
            if s3w and kk in (0, 1): self.s3w_dma(kk + 3)
            if kk == 3:
                a("s_waitcnt vmcnt(%d)" % (48 if s3w else 0))
                if self.fused():
                    self.nonce_publish_local()
                    if "uflate" not in self.ph:
                        uflag("s50")
                        n_lt4(lambda: uflag("s53"))
                    if epb:
                        wflag("s2")
                        cond_b(lambda: wflag("s51"))
            if kk == 7 and "uflate" in self.ph and self.fused():
                uflag("s50")
                n_lt4(lambda: uflag("s53"))
            if "swarm" in self.ph and 2 <= kk <= 5:
                self.smem_warm(kk - 2)
            if kk == 6 and wdmid:
                if "swarm" in self.ph: a("s_waitcnt lgkmcnt(0)")
                self.wd_load("s2", 0)
                cond_b(lambda: self.wd_load("s51", 5120))
            if kk == 7 and wdmid: a("s_waitcnt vmcnt(0)")
            if kk == 7 and "s3prio" in self.ph: a("s_setprio 3")
            if kk == 7 and epb:
                if self.fused():
                    self.s3_uw_look()
                    a("s_lshl_b32 s78, s7, 8")
                    a("s_add_u32 s78, s78, %d" % WS_FW)
                    self.look_line("s78", 48, 94)
                self.gate_load()
            if kk == 7 and not wdlate and not epb:
                if self.fused(): self.s3_uw_look()
                self.wd_store("s2", 0)
                cond_b(lambda: self.wd_store("s51", 5120, 180))
                self.gate_load()
            if kk == 7 and wdlate:
                if "swarm" in self.ph: a("s_waitcnt lgkmcnt(0)")
                if self.fused(): self.s3_uw_look()
                self.wd_load("s2", 0)
                cond_b(lambda: self.wd_load("s51", 5120))
            if kk == 8:
                if self.fused():
                    l = self.newlab("uw")
                    if epb:
                        self.check_line("s78", 94, 15)
                        a("v_mov_b32 v1, %d" % LDS_WOK)
                        a("v_mov_b32 v2, 1")
                        a("ds_write_b32 v1, v2")
                    else:
                        a("s_waitcnt vmcnt(%d)" % (5 if wdlate else 20))
                    a("v_cmp_eq_u32 vcc, s64, v92")
                    a("s_nop 1")
                    a("s_cmp_eq_u64 vcc, -1")
                    a("s_cbranch_scc1 %s" % l)
                    self.poll(self.s3_uw_loads, [92], 6, sleep=2)
                    a.lab(l)
                    self.s3_u_loads()
                    a("v_mov_b32 v1, %d" % LDS_UOK)
                    a("v_mov_b32 v2, 3")
                    a("ds_write_b32 v1, v2")
                    if wdlate: a("s_waitcnt vmcnt(12)")
                elif wdlate:
                    a("s_waitcnt vmcnt(0)")
                if wdlate:
                    self.wd_store("s2", 0)
                    cond_b(lambda: self.wd_store("s51", 5120, 180))
                    self.gate_load()
        self.stamp(2)
        if self.fused():
            if "s3prio" not in self.ph: a("s_setprio 2")
            if epb:
                self.lds_spin(LDS_SFREE, 2, 4)
                a("s_waitcnt vmcnt(0)")
            else:
                if wdlate: a("s_waitcnt vmcnt(15)")
                else: a("s_waitcnt vmcnt(27)")
                wflag("s2")
                cond_b(lambda: wflag("s51"))
                self.lds_spin(LDS_SFREE, 2, 4)
                if not wdlate: a("s_waitcnt vmcnt(1)")
        self.stamp(3)
        if self.fused():
            self.s3_u_copies(extra=None)
            a("s_waitcnt lgkmcnt(0)")
            a("v_mov_b32 v1, %d" % LDS_UCOK)
            a("v_mov_b32 v2, 1")
            a("ds_write_b32 v1, v2")
            a("s_setprio 0")
            self.stamp(4)
            a("s_waitcnt vmcnt(0)")
            self.gate_compute()
            a("s_waitcnt vmcnt(0)")
            a("s_lshl_b32 s69, s2, 2")
            a("s_add_u32 s69, s69, %d" % WS_FG)
            self.flag_set("s69", 2)
        else:
            a("s_waitcnt vmcnt(0)")
            self.gate_compute()
            a("s_waitcnt vmcnt(0)")
            self.stamp(4)

    def s3_uw_addr(self):
        a = self.a
        a("v_lshrrev_b32 v1, 4, v0")
        a("v_lshlrev_b32 v1, 8, v1")
        a("v_add_u32 v1, s2, v1")
        a("v_mov_b32 v2, s2")
        a("v_cmp_gt_u32 vcc, 640, v1")
        a("s_nop 1")
        a("v_cndmask_b32 v1, v2, v1, vcc")
        a("v_lshrrev_b32 v1, 5, v1")
        a("v_lshlrev_b32 v1, 7, v1")
        a("v_and_b32 v2, 15, v0")
        a("v_lshl_add_u32 v1, v2, 2, v1")
        a("v_add_u32 v90, %d, v1" % WS_FU)
    def s3_uw_loads(self):
        a = self.a
        a("buffer_load_dword v92, v90, s[20:23], 0 offen sc1")
    def s3_uw_look(self):
        self.s3_uw_addr()
        self.s3_uw_loads()
    def s3_uw_check(self):
        a = self.a
        l = self.newlab("uw")
        a("s_waitcnt vmcnt(0)")
        a("v_cmp_eq_u32 vcc, s64, v92")
        a("v_cmp_eq_u32 s[76:77], s64, v93")
        a("s_nop 1")
        a("s_and_b64 vcc, vcc, s[76:77]")
        a("s_cmp_eq_u64 vcc, -1")
        a("s_cbranch_scc1 %s" % l)
        self.poll(self.s3_uw_loads, [92, 93], 6, sleep=2)
        a.lab(l)

    def s3_channels(self):
        a = self.a
        a("s_mov_b32 s70, s2")
        a("s_add_u32 s71, s2, 256")
        a("s_add_u32 s72, s2, 512")
        a("s_cmp_lt_u32 s72, 640")
        a("s_cselect_b32 s72, s72, s2")

    def s3_u_loads(self):
        a = self.a
        self.s3_channels()
        a("v_lshlrev_b32 v1, 4, v0")
        for sg in range(3):
            a("s_mul_i32 s67, s%d, %d" % (70 + sg, ROWS))
            a("s_add_u32 s67, s67, %d" % WS_UT)
            for i in range(4):
                r = 100 + 16 * sg + 4 * i
                a("buffer_load_dwordx4 v[%d:%d], v1, s[20:23], s67 offen offset:%d sc1" % (r, r + 3, 1024 * i))

    def s3_u_copies(self, extra=0):
        a = self.a
        Z = 150
        for i in range(4): a("v_mov_b32 v%d, 0" % (Z + i))
        a("v_lshlrev_b32 v2, 4, v0")
        a("v_cmp_eq_u32 vcc, 0, v0")
        for sg in range(3):
            base = LDS_UC + sg * UC_SZ
            for b in range(4):
                a("ds_write_b128 v2, v[%d:%d] offset:%d" % (Z, Z + 3, base + b * UC_STRIDE))
        for sg in range(3):
            base = LDS_UC + sg * UC_SZ
            if extra is not None: a("s_waitcnt vmcnt(%d)" % (4 * (2 - sg) + extra))
            for i in range(4):
                D = 100 + 16 * sg + 4 * i
                R3, R2 = 154 + 2 * (i & 1), 155 + 2 * (i & 1)
                Q3, Q2 = 154 + 2 * ((i + 1) & 1), 155 + 2 * ((i + 1) & 1)
                T1 = 160 + 12 * (i & 1); T0 = T1 + 4; T2 = T1 + 8
                P2 = 158
                a("v_mov_b32_dpp v%d, v%d wave_ror:1 row_mask:0xf bank_mask:0xf" % (R3, D + 3))
                a("v_mov_b32_dpp v%d, v%d wave_ror:1 row_mask:0xf bank_mask:0xf" % (R2, D + 2))
                a("v_mov_b32 v%d, v%d" % (T1 + 1, D))
                a("v_mov_b32 v%d, v%d" % (T1 + 2, D + 1))
                a("v_mov_b32 v%d, v%d" % (T1 + 3, D + 2))
                if i == 0:
                    a("v_cndmask_b32 v%d, v%d, v%d, vcc" % (T1, R3, Z))
                    a("v_cndmask_b32 v%d, v%d, v%d, vcc" % (P2, R2, Z))
                else:
                    a("v_cndmask_b32 v%d, v%d, v%d, vcc" % (T1, R3, Q3))
                    a("v_cndmask_b32 v%d, v%d, v%d, vcc" % (P2, R2, Q2))
                off = base + 4 * (96 + 256 * i)
                a("ds_write_b128 v2, v[%d:%d] offset:%d" % (D, D + 3, off + 3 * UC_STRIDE))
                a("v_alignbit_b32 v%d, v%d, v%d, 16" % (T0, T1, P2))
                a("v_alignbit_b32 v%d, v%d, v%d, 16" % (T0 + 1, D, T1))
                a("v_alignbit_b32 v%d, v%d, v%d, 16" % (T0 + 2, D + 1, D))
                a("v_alignbit_b32 v%d, v%d, v%d, 16" % (T0 + 3, D + 2, D + 1))
                a("ds_write_b128 v2, v[%d:%d] offset:%d" % (T1, T1 + 3, off + 1 * UC_STRIDE))
                a("v_mov_b32 v%d, v%d" % (T2, T0 + 1))
                a("v_mov_b32 v%d, v%d" % (T2 + 1, T0 + 2))
                a("v_mov_b32 v%d, v%d" % (T2 + 2, T0 + 3))
                a("v_alignbit_b32 v%d, v%d, v%d, 16" % (T2 + 3, D + 3, D + 2))
                a("ds_write_b128 v2, v[%d:%d] offset:%d" % (T0, T0 + 3, off + 0 * UC_STRIDE))
                a("ds_write_b128 v2, v[%d:%d] offset:%d" % (T2, T2 + 3, off + 2 * UC_STRIDE))

    def s_phase1(self):
        a = self.a
        n = self.name
        a("s_sub_u32 s66, s3, 4")
        a("s_cmp_eq_u32 s66, 3")
        a("s_cbranch_scc1 %s_sj" % n)
        self.s_kgen_phase1()
        a("s_branch %s_p1done" % n)
        a.lab("%s_sj" % n)
        self.s_side()
        a.lab("%s_p1done" % n)

    def ssm_param_loads(self, slots=(0, 1, 2), scalars=True):
        a = self.a
        a("s_mul_i32 s67, s50, 384")
        a("v_lshl_add_u32 v1, v0, 1, s67")
        for sl in slots:
            for k, p in enumerate((P_ARE, P_AIM, P_BRE, P_BIM, P_CRE, P_CIM)):
                a("global_load_ushort v%d, v1, s[%d:%d] offset:%d" % (200 + 6 * sl + k, p, p + 1, 128 * sl))
        if scalars:
            a("s_lshl_b32 s67, s50, 1")
            a("v_mov_b32 v223, s67")
            a("global_load_ushort v218, v223, s[%d:%d]" % (P_LDT, P_LDT + 1))
            a("global_load_ushort v219, v223, s[%d:%d]" % (P_DSK, P_DSK + 1))

    def ssm_param_warm(self):
        a = self.a
        a("s_mul_i32 s67, s50, 384")
        for p in (P_ARE, P_AIM, P_BRE, P_BIM, P_CRE, P_CIM):
            a("s_add_u32 s68, s%d, s67" % p)
            a("s_addc_u32 s69, s%d, 0" % (p + 1))
            for i in range(3):
                a("s_load_dword s70, s[68:69], %d" % (128 * i))
        a("s_lshl_b32 s67, s50, 1")
        a("s_and_b32 s67, s67, 0xfffffffc")
        a("s_load_dword s70, s[%d:%d], s67" % (P_LDT, P_LDT + 1))
        a("s_load_dword s70, s[%d:%d], s67" % (P_DSK, P_DSK + 1))

    def kgen_bases(self):
        a = self.a
        a("s_mul_i32 s51, s66, %d" % TAB_SZ)
        a("s_add_u32 s51, s51, %d" % LDS_TAB)
        a("s_mul_i32 s52, s66, %d" % KR_SZ)
        a("s_add_u32 s52, s52, %d" % LDS_KR)

    def kgen(self, part="all"):
        a = self.a
        if part == "all": self.kgen_bases()
        self._kgen_body(part)

    def _kgen_body(self, part):
        a = self.a
        head = part in ("all", "head", "rest"); tail = part in ("all", "tail", "rest")
        real_a = a
        if not head: a = Asm()
        a("v_and_b32 v4, 15, v0")
        a("v_lshrrev_b32 v5, 4, v0")
        a("v_mul_u32_u24 v2, %d, v4" % TABROW)
        a("v_lshl_add_u32 v2, v5, 6, v2")
        a("v_add_u32 v2, s51, v2")
        a("v_and_b32 v6, 1, v5")
        a("v_lshl_add_u32 v3, v6, 3, v2")
        a("v_xor_b32 v6, 1, v6")
        a("v_lshl_add_u32 v2, v6, 3, v2")
        a("s_mov_b32 m0, s51")
        a("s_nop 0")
        if part == "all" or (part == "rest" and not self.fused()): a("s_waitcnt vmcnt(0)")
        a("v_lshlrev_b32 v218, 16, v218")
        a("v_lshlrev_b32 v219, 16, v219")
        a("v_mul_f32 v6, 0x3fb8aa3b, v218")
        a("s_mov_b32 s67, 0x3fb8aa3b")
        a("v_fma_f32 v7, v218, s67, -v6")
        a("v_fmac_f32 v7, 0x32a57060, v218")
        a("v_exp_f32 v6, v6")
        a("v_mul_f32 v7, 0x3f317218, v7")
        a("v_fma_f32 v6, v6, v7, v6")
        a("v_cvt_pk_bf16_f32 v6, v6, v6")
        a("v_lshlrev_b32 v218, 16, v6")
        W1, W16, W256, W512, W768, W1024 = 10, 12, 14, 16, 18, 20
        WX = 22
        CB = 24
        Y = 26; P = 28; TMP1 = 30; TMP2 = 32; TMP3 = 34
        PK = 36
        V = 50
        CV = 66
        YF = 76
        AF = 92
        ACC = 108
        nopk = (part == "head") and ("pkhead" not in self.ph)
        def cmul(out, x, w, t):
            if nopk:
                return ["v_mul_f32 v%d, v%d, v%d" % (t, x + 1, w + 1),
                        "v_mul_f32 v%d, v%d, v%d" % (t + 1, x, w + 1),
                        "v_fma_f32 v%d, v%d, v%d, -v%d" % (out, x, w, t),
                        "v_fma_f32 v%d, v%d, v%d, v%d" % (out + 1, x + 1, w, t + 1)]
            return ["v_pk_mul_f32 v[%d:%d], v[%d:%d], v[%d:%d] op_sel:[0,0] op_sel_hi:[0,1]" % (t, t + 1, x, x + 1, w, w + 1),
                    "v_pk_fma_f32 v[%d:%d], v[%d:%d], v[%d:%d], v[%d:%d] op_sel:[1,1,0] op_sel_hi:[1,0,1] neg_lo:[1,0,0]" % (out, out + 1, x, x + 1, w, w + 1, t, t + 1)]
        def zipl(*ls):
            o = []
            for i in range(max(len(l) for l in ls)):
                for l in ls:
                    if i < len(l): o.append(l[i])
            return o
        cvn = [0, 0]
        def wr(val, tile, row, neg, bank=0):
            c = CV + 4 * bank + (cvn[bank] % 4); cvn[bank] += 1
            return ["v_cvt_pk_bf16_f32 v%d, v%d, %sv%d" % (c, val, "-" if neg else "", val + 1),
                    "ds_write_addtid_b32 v%d offset:%d" % (c, tile * TABTILE + row * TABROW)]
        def frag_reads(dst, tile):
            L = []
            for kk in range(4):
                L.append("ds_read_b64 v[%d:%d], v3 offset:%d" % (dst + 4 * kk, dst + 4 * kk + 1, tile * TABTILE + 16 * kk))
                L.append("ds_read_b64 v[%d:%d], v2 offset:%d" % (dst + 4 * kk + 2, dst + 4 * kk + 3, tile * TABTILE + 16 * kk))
            return L
        def mm(t, first):
            L = []
            for kk in range(4):
                c = "0" if (first and kk == 0) else "v[%d:%d]" % (ACC + 4 * t, ACC + 4 * t + 3)
                L.append("v_mfma_f32_16x16x32_bf16 v[%d:%d], v[%d:%d], v[%d:%d], %s" % (ACC + 4 * t, ACC + 4 * t + 3, AF + 4 * kk, AF + 4 * kk + 3, YF + 4 * kk, YF + 4 * kk + 3, c))
            return L
        a = real_a
        nh = 2 if "kg2" in self.ph else 1
        slots = [0, 1, 2] if part in ("all", "rest") else (list(range(nh)) if part == "head" else list(range(nh, 3)))
        for sl in slots:
            if sl == 1 and part == "tail" and not self.fused(): a("s_waitcnt vmcnt(0)")
            if sl == 2 and part in ("rest", "tail"): self.stamp(3)
            if sl == 2 and "prioT" in self.ph: a("s_setprio 2")
            if sl == slots[0] and part in ("tail", "rest") and "prioT0" in self.ph: a("s_setprio 2")
            pr = 200 + 6 * sl
            for k in range(6): a("v_lshlrev_b32 v%d, 16, v%d" % (pr + k, pr + k))
            a("v_mul_f32 v6, v218, v%d" % pr)
            a("v_mul_f32 v7, v218, v%d" % (pr + 1))
            a("v_mul_f32 v6, 0x3fb8aa3b, v6")
            a("v_mul_f32 v7, 0.15915494, v7")
            a("v_mul_f32 v8, v218, v%d" % (pr + 2))
            a("v_mul_f32 v9, v218, v%d" % (pr + 3))
            a.ext(cmul(CB, pr + 4, 8, TMP1))
            for w, k in ((W1, 1.0), (W16, 16.0), (W256, 256.0)):
                if k == 1.0:
                    a("v_exp_f32 v%d, v6" % TMP2)
                    a("v_fract_f32 v%d, v7" % TMP3)
                else:
                    lit = "0x41800000" if k == 16.0 else "0x43800000"
                    a("v_mul_f32 v%d, %s, v6" % (TMP2, lit))
                    a("v_mul_f32 v%d, %s, v7" % (TMP3, lit))
                    a("v_exp_f32 v%d, v%d" % (TMP2, TMP2))
                    a("v_fract_f32 v%d, v%d" % (TMP3, TMP3))
                a("v_cos_f32 v%d, v%d" % (w, TMP3))
                a("v_sin_f32 v%d, v%d" % (w + 1, TMP3))
                a("s_nop 0")
                a("v_mul_f32 v%d, v%d, v%d" % (w, w, TMP2))
                a("v_mul_f32 v%d, v%d, v%d" % (w + 1, w + 1, TMP2))
            if sl != slots[0]:
                a("s_waitcnt lgkmcnt(0)")
                a.ext(pend_mm2)
            LY = ["v_mov_b32 v%d, v%d" % (Y, CB), "v_mov_b32 v%d, v%d" % (Y + 1, CB + 1)] + wr(Y, 0, 0, False)
            for j in range(1, 16):
                LY += cmul(Y, Y, W16, TMP1) + wr(Y, 0, j, False)
            LA = ["v_mov_b32 v%d, 1.0" % P, "v_mov_b32 v%d, 0" % (P + 1)] + wr(P, 1, 0, True, 1)
            cur = P
            for r in range(1, 16):
                if r == 1:
                    LA += ["v_mov_b32 v%d, v%d" % (P, W1), "v_mov_b32 v%d, v%d" % (P + 1, W1 + 1)]
                    cur = P
                else:
                    dst = PK + 2 * (r // 2 - 1) if r % 2 == 0 else P
                    LA += cmul(dst, cur, W1, TMP2)
                    cur = dst
                LA += wr(cur, 1, r, True, 1)
            a.ext(zipl(LY, LA))
            a.ext(cmul(W512, W256, W256, TMP1))
            a.ext(frag_reads(YF, 0)); a.ext(frag_reads(AF, 1))
            a.ext(zipl(cmul(W768, W512, W256, TMP1), cmul(W1024, W512, W512, TMP2)))
            def pk(i): return PK + 2 * (i // 2 - 1)
            vals = []
            A2 = []
            regs = []
            for r in range(8):
                if r == 0: regs.append(W256)
                else:
                    dst = V + 2 * (r - 1) if r < 8 else None
                    A2.append(cmul(dst, pk(2 * r), W256, TMP1 if r % 2 else TMP2)); regs.append(dst)
            a.ext(zipl(sum(A2[0::2], []), sum(A2[1::2], [])))
            a("s_waitcnt lgkmcnt(0)")
            m = mm(0, sl == 0)
            L = []
            for r in range(8): L += wr(regs[r], 1, r, True)
            a.ext(interleave(m, L))
            LA = []; LB = []
            for b in range(4):
                if b == 0:
                    LA += wr(W512, 1, 8, True); LB += wr(W768, 1, 12, True, 1)
                else:
                    LA += cmul(V, pk(4 * b), W512, TMP1) + wr(V, 1, 8 + b, True)
                    LB += cmul(V + 2, pk(4 * b), W768, TMP2) + wr(V + 2, 1, 12 + b, True, 1)
            a.ext(zipl(LA, LB))
            a.ext(frag_reads(AF, 1))
            a.ext(zipl(cmul(V, W1024, W256, TMP1), cmul(V + 2, W1024, W512, TMP2)))
            a.ext(zipl(cmul(V + 4, W1024, W768, TMP1), cmul(V + 6, W1024, W1024, TMP2)))
            ws = [W1024, V, V + 2, V + 4]
            a.ext(zipl(cmul(V + 8, ws[0], pk(8), TMP1), cmul(V + 10, ws[1], pk(8), TMP2)))
            a.ext(zipl(cmul(V + 12, ws[2], pk(8), TMP1), cmul(V + 14, ws[3], pk(8), TMP2)))
            a("s_waitcnt lgkmcnt(0)")
            m = mm(1, sl == 0)
            L = []
            for i in range(4):
                L += wr(ws[i], 1, 2 * i, True) + wr(V + 8 + 2 * i, 1, 2 * i + 1, True)
            L += wr(V + 6, 1, 8, True)
            a.ext(interleave(m, L))
            a.ext(frag_reads(AF, 1))
            pend_mm2 = mm(2, sl == 0)
            if sl == slots[-1]:
                a("s_waitcnt lgkmcnt(0)")
                a.ext(pend_mm2); pend_mm2 = None
        if not tail: return
        self.stamp(1)
        A0, A1, A2r = ACC, ACC + 4, ACC + 8
        a("v_cmp_eq_u32 vcc, 0, v0")
        a("v_and_b32 v4, 15, v0")
        a("v_lshrrev_b32 v5, 4, v0")
        a("v_cndmask_b32 v6, 0, v219, vcc")
        a("v_lshlrev_b32 v7, 5, v4")
        a("v_lshl_add_u32 v7, v5, 4, v7")
        a("v_lshlrev_b32 v8, 4, v4")
        a("v_lshl_add_u32 v8, v5, 8, v8")
        a("v_cmp_gt_u32 vcc, 2, v5")
        a("v_add_f32 v%d, v%d, v6" % (A0, A0))
        a("s_nop 0")
        a("v_cndmask_b32 v7, v8, v7, vcc")
        a("v_add_u32 v7, s51, v7")
        a("v_lshlrev_b32 v8, 3, v4")
        a("v_lshl_add_u32 v8, v5, 8, v8")
        a("v_add_u32 v8, s51, v8")
        a("s_nop 4")
        a("ds_write_b128 v7, v[%d:%d]" % (A1, A1 + 3))
        a("ds_write_b64 v8, v[%d:%d] offset:1024" % (A2r, A2r + 1))
        a("ds_write_b64 v8, v[%d:%d] offset:1152" % (A2r + 2, A2r + 3))
        a("v_cvt_pk_bf16_f32 v10, v%d, v%d" % (A0 + 3, A0 + 2))
        a("v_cvt_pk_bf16_f32 v11, v%d, v%d" % (A0 + 1, A0))
        a("v_lshlrev_b32 v9, 5, v4")
        a("v_lshl_add_u32 v9, v5, 3, v9")
        a("v_sub_u32 v9, 4088, v9")
        a("v_add_u32 v9, s52, v9")
        a("ds_write_b64 v9, v[10:11]")
        a("v_and_b32 v9, 31, v0")
        a("v_lshlrev_b32 v9, 2, v9")
        a("v_add_u32 v9, s52, v9")
        a("v_mov_b32 v12, 0")
        a("ds_write_b32 v9, v12 offset:4096")
        a("v_lshlrev_b32 v13, 4, v0")
        a("v_add_u32 v14, s51, v13")
        a("v_lshlrev_b32 v15, 3, v0")
        a("v_add_u32 v15, s51, v15")
        a("v_lshlrev_b32 v16, 2, v0")
        a("v_add_u32 v16, s51, v16")
        a("v_sub_u32 v13, s52, v13")
        a("s_waitcnt lgkmcnt(0)")
        a("ds_read_b128 v[20:23], v14")
        a("ds_read_b32 v24, v14 offset:16")
        a("ds_read_b64 v[26:27], v15 offset:512")
        a("ds_read_b32 v28, v15 offset:520")
        a("ds_read2_b32 v[30:31], v16 offset0:0 offset1:1")
        a.l.pop()
        a("v_add_u32 v17, 1024, v16")
        a("ds_read2_b32 v[30:31], v17 offset0:0 offset1:1")
        a("ds_read2_b32 v[32:33], v17 offset0:64 offset1:65")
        a("v_and_b32 v18, 1, v0")
        a("v_cmp_eq_u32 vcc, 1, v18")
        a("s_waitcnt lgkmcnt(0)")
        a("v_cvt_pk_bf16_f32 v36, v28, v28")
        a("v_cvt_pk_bf16_f32 v37, v27, v27")
        a("v_cvt_pk_bf16_f32 v38, v27, v26")
        a("v_cvt_pk_bf16_f32 v39, v26, v26")
        a("ds_write_b128 v13, v[36:39] offset:3056")
        for ps in range(2):
            v0_, v1_ = 30 + 2 * ps, 31 + 2 * ps
            o = 40 + 4 * ps
            a("v_cndmask_b32 v19, v%d, v%d, vcc" % (v0_, v1_))
            a("v_cvt_pk_bf16_f32 v%d, v%d, v%d" % (o, v1_, v1_))
            a("v_cvt_pk_bf16_f32 v%d, v%d, v19" % (o + 1, v1_))
            a("v_cvt_pk_bf16_f32 v%d, v%d, v%d" % (o + 2, v0_, v0_))
            a("v_mov_b32 v%d, v%d" % (o + 3, o + 2))
        a("ds_write_b128 v13, v[40:43] offset:2032")
        a("ds_write_b128 v13, v[44:47] offset:1008")
        a("v_cvt_pk_bf16_f32 v48, v24, v23")
        a("v_cvt_pk_bf16_f32 v49, v22, v22")
        a("v_cvt_pk_bf16_f32 v50, v22, v21")
        a("v_cvt_pk_bf16_f32 v51, v20, v20")
        a("s_mov_b32 exec_hi, 0")
        a("ds_write_b128 v13, v[48:51] offset:3568")
        a("s_mov_b32 exec_hi, -1")
        if "dumpk" in self.ph:
            a("s_waitcnt lgkmcnt(0)")
            a("v_lshlrev_b32 v13, 4, v0")
            a("v_add_u32 v14, s52, v13")
            a("s_mul_i32 s67, s50, 4224")
            a("s_add_u32 s67, s67, %d" % WS_DBG)
            for i in range(5):
                a("ds_read_b128 v[20:23], v14 offset:%d" % (1024 * i))
                a("s_waitcnt lgkmcnt(0)")
                if i == 4: a("s_mov_b32 exec_hi, 0"); a("s_mov_b32 exec_lo, 0xff")
                a("s_add_u32 s68, s67, %d" % (1024 * i))
                a("buffer_store_dwordx4 v[20:23], v13, s[20:23], s68 offen")
                a("s_waitcnt vmcnt(0)")
            a("s_mov_b64 exec, -1")

    def u_look(self):
        a = self.a
        self.nonce_read(120)
        a("s_lshr_b32 s78, s50, 5")
        a("s_lshl_b32 s78, s78, 7")
        a("s_add_u32 s78, s78, %d" % WS_FU)
        a("v_and_b32 v120, 15, v0")
        a("v_lshlrev_b32 v120, 2, v120")
        a("buffer_load_dword v121, v120, s[20:23], s78 offen sc1")
    def u_prefetch(self):
        a = self.a
        l = self.newlab("uok")
        a("s_waitcnt vmcnt(0)")
        a("v_cmp_eq_u32 vcc, s64, v121")
        a("s_nop 1")
        a("s_cmp_eq_u64 vcc, -1")
        a("s_cbranch_scc1 %s" % l)
        self.poll_line("s78", 16, 120, sleep=4)
        a.lab(l)
        self.conv_loads()
        self.lds_inc(LDS_UOK, 152)

    def conv_loads(self):
        a = self.a
        a("s_mul_i32 s67, s50, %d" % ROWS)
        a("s_add_u32 s67, s67, %d" % (WS_UT - 4))
        a("v_lshlrev_b32 v1, 2, v0")
        for i in range(16):
            a("buffer_load_dwordx2 v[%d:%d], v1, s[20:23], s67 offen offset:%d sc1" % (120 + 2 * i, 121 + 2 * i, 256 * i))

    def conv(self):
        a = self.a
        D = 120
        a("s_mul_i32 s53, s66, %d" % UC_SZ)
        if LDS_UC: a("s_add_u32 s53, s53, %d" % LDS_UC)
        if not self.fused():
            a("s_mov_b32 m0, s53")
            a("v_mov_b32 v2, 0")
            for b in range(4):
                a("ds_write_addtid_b32 v2 offset:%d" % (b * UC_STRIDE))
                a("ds_write_addtid_b32 v2 offset:%d" % (b * UC_STRIDE + 33 * 4))
            a("v_cmp_eq_u32 vcc, 0, v0")
            a("s_waitcnt vmcnt(0)")
            a("v_cndmask_b32 v%d, v%d, v2, vcc" % (D, D))
            for i in range(16):
                lo, hi = D + 2 * i, D + 2 * i + 1
                o = 4 + (i % 4)
                a("v_alignbit_b32 v%d, v%d, v%d, 16" % (o, hi, lo))
                a("ds_write_addtid_b32 v%d offset:%d" % (hi, 3 * UC_STRIDE + 4 * (64 * i + 96)))
                a("ds_write_addtid_b32 v%d offset:%d" % (hi, 1 * UC_STRIDE + 4 * (64 * i + 97)))
                a("ds_write_addtid_b32 v%d offset:%d" % (o, 2 * UC_STRIDE + 4 * (64 * i + 96)))
                a("ds_write_addtid_b32 v%d offset:%d" % (o, 0 * UC_STRIDE + 4 * (64 * i + 97)))
        VU, VK = 8, 9
        a("v_and_b32 v4, 3, v0")
        a("v_mul_u32_u24 v4, %d, v4" % UC_STRIDE)
        a("v_bfe_u32 v5, v0, 2, 2")
        a("v_lshl_add_u32 v4, v5, 7, v4")
        a("v_lshrrev_b32 v5, 4, v0")
        a("v_lshl_add_u32 v4, v5, 4, v4")
        a("v_add_u32 v%d, s53, v4" % VU)
        a("v_and_b32 v6, 15, v0")
        a("v_lshlrev_b32 v7, 3, v6")
        a("v_sub_u32 v7, 120, v7")
        a("v_lshl_add_u32 v7, v5, 4, v7")
        a("v_add_u32 v%d, s52, v7" % VK)
        a("v_lshlrev_b32 v10, 3, v6")
        a("v_lshl_add_u32 v10, v5, 7, v10")
        ACC = 16; SETS = [48, 112]
        def reads(rho, S):
            L = []
            for z in range(8):
                L.append("ds_read_b128 v[%d:%d], v%d offset:%d" % (S + 4 * z, S + 4 * z + 3, VU, 512 * z + 64 * (7 - rho)))
                zz = 8 * z + rho
                L.append("ds_read_b64 v[%d:%d], v%d offset:%d" % (S + 32 + 4 * z, S + 33 + 4 * z, VK, 64 * (63 - zz)))
                L.append("ds_read_b64 v[%d:%d], v%d offset:%d" % (S + 34 + 4 * z, S + 35 + 4 * z, VK, 64 * (63 - zz) + 8))
            return L
        def mm(rho, S):
            L = []
            for ze in range(8):
                for nu in range(8 - ze):
                    n = ze + nu
                    c = "0" if (rho == 0 and ze == 0) else "v[%d:%d]" % (ACC + 4 * n, ACC + 4 * n + 3)
                    L.append("v_mfma_f32_16x16x32_bf16 v[%d:%d], v[%d:%d], v[%d:%d], %s" % (ACC + 4 * n, ACC + 4 * n + 3, S + 4 * nu, S + 4 * nu + 3, S + 32 + 4 * ze, S + 35 + 4 * ze, c))
            return L
        a("s_waitcnt lgkmcnt(0)")
        if self.fused(): self.lds_spin(LDS_UCOK, 12)
        self.stamp(4)
        a.ext(reads(0, SETS[0]))
        a("s_waitcnt lgkmcnt(0)")
        for rho in range(8):
            fill = reads(rho + 1, SETS[(rho + 1) & 1]) if rho < 7 else []
            a.ext(interleave(mm(rho, SETS[rho & 1]), fill, span=28))
            if rho < 7: a("s_waitcnt lgkmcnt(0)")
        self.stamp(7)
        a("s_mul_i32 s67, s50, %d" % ROWS)
        a("s_add_u32 s67, s67, %d" % WS_Y)
        a("s_nop 7")
        for n in range(8):
            o = 48 + 2 * n
            a("v_cvt_pk_bf16_f32 v%d, v%d, v%d" % (o, ACC + 4 * n, ACC + 4 * n + 1))
            a("v_cvt_pk_bf16_f32 v%d, v%d, v%d" % (o + 1, ACC + 4 * n + 2, ACC + 4 * n + 3))
            a("buffer_store_dwordx2 v[%d:%d], v10, s[20:23], s67 offen offset:%d sc1" % (o, o + 1, 512 * n))

    def s_ssm(self):
        a = self.a
        n = self.name
        a("s_sub_u32 s66, s3, 4")
        a("s_lshl_b32 s50, s66, 8")
        a("s_add_u32 s50, s50, s2")
        a("s_cmp_ge_u32 s66, 3")
        a("s_cbranch_scc1 %s_ssm_done" % n)
        if self.fused():
            l = self.newlab("nch")
            a("s_cmp_lt_u32 s50, 640")
            a("s_cbranch_scc1 %s" % l)
            a("s_branch %s_ssm_done" % n)
            a.lab(l)
        else:
            a("s_cmp_ge_u32 s50, 640")
            a("s_cbranch_scc1 %s_ssm_done" % n)
        if self.fused() and "g1" in self.ph:
            a("s_waitcnt vmcnt(0)")
        if "g1" not in self.ph:
            self.stamp(5)
            self.ssm_param_loads()
            self.kgen("all")
        elif "kghead" in self.ph:
            self.kgen("tail")
        else:
            self.kgen("rest")
        self.stamp(6)
        if not self.fused():
            self.conv_loads()
        self.conv()
        if "prioT" in self.ph or "prioT0" in self.ph: a("s_setprio 0")
        a("s_waitcnt vmcnt(0)")
        if self.fused():
            self.nonce_read(4)
            a("s_lshl_b32 s69, s50, 2")
            a("s_add_u32 s69, s69, %d" % WS_FY)
            self.flag_set("s69", 2)
        self.stamp(8)
        a.lab("%s_ssm_done" % n)

    G2_SETS = [80, 116, 152, 188]
    G2_VB, G2_VL, G2_VB8, G2_T, G2_VRS = 224, 228, 246, 230, 250

    def g2_setup(self):
        a = self.a
        VB, VL, VB8, T, VRS = self.G2_VB, self.G2_VL, self.G2_VB8, self.G2_T, self.G2_VRS
        a("v_mbcnt_lo_u32_b32 v%d, -1, 0" % T)
        a("v_mbcnt_hi_u32_b32 v%d, -1, v%d" % (T, T))
        a("v_lshlrev_b32 v%d, 4, v%d" % (VL, T))
        for tau in range(4):
            a("s_add_u32 s67, s3, %d" % tau)
            a("s_and_b32 s67, s67, 3")
            a("s_lshl_b32 s67, s67, 10")
            a("v_add_u32 v%d, s67, v%d" % (VB + tau, VL))
            a("v_lshlrev_b32 v%d, 3, v%d" % (VB8 + tau, T))
            a("v_add_u32 v%d, s67, v%d" % (VB8 + tau, VB8 + tau))
        a("s_mul_i32 s70, s6, 48")
        a("s_mul_i32 s67, s3, 12")
        a("s_add_u32 s70, s70, s67")
        a("s_lshl_b32 s70, s70, 12")
        if WS_H: a("s_add_u32 s70, s70, %d" % WS_H)
        a("s_mul_i32 s71, s7, 48")
        a("s_add_u32 s71, s71, s67")
        a("s_mul_i32 s71, s71, 5120")
        a("s_add_u32 s71, s71, %d" % WS_WD)
        a("s_add_u32 s72, s71, 4096")
        for tau in range(1, 4):
            a("s_add_u32 s67, s3, %d" % tau)
            a("s_and_b32 s67, s67, 3")
            a("s_mul_i32 s67, s67, 3")
            a("s_add_u32 s67, s67, %d" % (tau - 1))
            a("s_mul_i32 s67, s67, 5120")
            a("s_add_u32 s67, s67, %d" % LDS_RED)
            a("v_add_u32 v%d, s67, v%d" % (VRS + tau - 1, VL))
            a("s_mov_b32 s%d, s67" % (72 + tau))

    def g2_final_addrs(self):
        a = self.a
        T, VL = self.G2_T, self.G2_VL
        a("s_mul_i32 s67, s3, %d" % (3 * 5120))
        a("s_add_u32 s67, s67, %d" % LDS_RED)
        a("v_add_u32 v%d, s67, v%d" % (T + 1, VL))
        a("v_lshrrev_b32 v%d, 4, v%d" % (T + 2, T))
        a("v_and_b32 v%d, 15, v%d" % (T + 3, T))
        a("v_lshrrev_b32 v%d, 2, v%d" % (T + 4, T + 3))
        a("v_lshl_add_u32 v%d, v%d, 3, v%d" % (T + 5, T + 2, T + 4))
        a("v_lshl_add_u32 v%d, v%d, 2, v%d" % (T + 6, T + 2, T + 4))
        a("v_and_b32 v%d, 3, v%d" % (T + 7, T))
        a("v_lshlrev_b32 v%d, 3, v%d" % (T + 7, T + 7))
        a("s_lshl_b32 s67, s3, 5")
        a("s_add_u32 s67, s67, %d" % LDS_YT)
        a("v_add_u32 v%d, s67, v%d" % (T + 7, T + 7))
        a("v_lshl_add_u32 v%d, v%d, 7, v%d" % (T + 5, T + 5, T + 7))
        a("v_lshl_add_u32 v%d, v%d, 7, v%d" % (T + 6, T + 6, T + 7))
        a("s_lshl_b32 s67, s3, 6")
        a("s_add_u32 s67, s67, %d" % LDS_GT)
        a("v_lshl_add_u32 v%d, v%d, 2, s67" % (T + 8, T + 3))
        a("s_lshl_b32 s67, s6, 6")
        a("s_lshl_b32 s68, s3, 4")
        a("s_add_u32 s67, s67, s68")
        a("v_add_u32 v%d, s67, v%d" % (T + 9, T + 3))
        a("s_movk_i32 s68, 1280")
        a("v_mul_lo_u32 v%d, v%d, s68" % (T + 9, T + 9))
        a("s_mul_i32 s68, s7, 160")
        a("v_add_u32 v%d, s68, v%d" % (T + 9, T + 9))
        a("v_lshl_add_u32 v%d, v%d, 3, v%d" % (T + 10, T + 2, T + 9))
        a("v_lshl_add_u32 v%d, v%d, 4, v%d" % (T + 9, T + 2, T + 9))

    def g2_loadsA(self, S):
        VL = self.G2_VL
        L = []
        for dt in range(5):
            if dt < 4: L.append("buffer_load_dwordx4 v[%d:%d], v%d, s[20:23], s71 offen offset:%d sc1" % (S + 16 + 4 * dt, S + 19 + 4 * dt, VL, 1024 * dt))
            else: L.append(("buffer_load_dwordx4 v[%d:%d], v%d, s[20:23], s72 offen sc1" % (S + 16 + 4 * dt, S + 19 + 4 * dt, VL),
                            "s_add_u32 s71, s71, 5120", "s_add_u32 s72, s72, 5120"))
        return L

    def g2_burst_atoms(self):
        VL = self.G2_VL
        regl = []
        for k in range(4): regl += self.g2_loadsA(self.G2_SETS[k])
        dmal = []
        for tau in range(1, 4):
            dmal.append(("s_mov_b32 m0, s%d" % (72 + tau), "s_nop 0",
                         "buffer_load_dwordx4 v%d, s[20:23], s71 offen sc1 lds" % VL))
            for dt in range(1, 4):
                dmal.append("buffer_load_dwordx4 v%d, s[20:23], s71 offen offset:%d sc1 lds" % (VL, 1024 * dt))
            dmal.append(("s_add_u32 m0, s%d, 4096" % (72 + tau), "s_add_u32 s71, s71, 5120",
                         "buffer_load_dwordx4 v%d, s[20:23], s72 offen sc1 lds" % VL, "s_add_u32 s72, s72, 5120"))
        return regl, dmal

    def g_gemm2(self):
        a = self.a
        ACC = 0
        SETS = self.G2_SETS
        VB, VL, VB8, T, VRS = self.G2_VB, self.G2_VL, self.G2_VB8, self.G2_T, self.G2_VRS
        acc = lambda dt, tau: ACC + (dt * 4 + tau) * 4
        epb = "epb" in self.ph and "g1" in self.ph
        if not epb: self.g2_setup()
        loadsA = self.g2_loadsA
        def loadsB(S, k):
            L = []
            for tau in range(4):
                if k % 3 == 1:
                    x = ("buffer_load_dwordx2 v[%d:%d], v%d, s[20:23], s70 offen sc1" % (S + 4 * tau, S + 4 * tau + 1, VB8 + tau),
                         "buffer_load_dwordx2 v[%d:%d], v%d, s[20:23], s70 offen offset:512 sc1" % (S + 4 * tau + 2, S + 4 * tau + 3, VB8 + tau))
                else:
                    x = ("buffer_load_dwordx4 v[%d:%d], v%d, s[20:23], s70 offen sc1" % (S + 4 * tau, S + 4 * tau + 3, VB + tau),)
                L.append(x if tau < 3 else x + ("s_add_u32 s70, s70, 4096",))
            return L
        nB = lambda k: 8 if k % 3 == 1 else 4
        def mm(S, first):
            L = []
            for dt in range(5):
                for tau in range(4):
                    c = "0" if first else "v[%d:%d]" % (acc(dt, tau), acc(dt, tau) + 3)
                    L.append("v_mfma_f32_16x16x32_bf16 v[%d:%d], v[%d:%d], v[%d:%d], %s" % (acc(dt, tau), acc(dt, tau) + 3, S + 16 + 4 * dt, S + 19 + 4 * dt, S + 4 * tau, S + 4 * tau + 3, c))
            return L
        NS = 12
        pre = "g1" in self.ph and "nopre" not in self.ph
        VLOOK = 254
        if epb:
            if self.fused(): self.nonce_read(232)
            self.g_signal_h(0)
            if self.fused():
                a("s_lshr_b32 s79, s6, 1")
                a("s_lshl_b32 s79, s79, 7")
                a("s_lshl_b32 s67, s3, 4")
                a("s_add_u32 s79, s79, s67")
                a("s_add_u32 s79, s79, %d" % WS_FH)
                self.poll_line("s79", 4, VLOOK, sleep=3)
        elif "g1" in self.ph:
            if self.fused():
                self.nonce_read(232)
                a("v_mov_b32 v%d, 0" % VLOOK)
                l = self.newlab("lk"); l2 = self.newlab("lk")
                a("s_cmp_lg_u32 s3, 0")
                a("s_cbranch_scc1 %s" % l)
                a("s_lshl_b32 s79, s7, 8")
                a("s_add_u32 s79, s79, %d" % WS_FW)
                self.look_line("s79", 48, VLOOK)
                a("s_waitcnt vmcnt(1)")
                a("s_branch %s" % l2)
                a.lab(l)
                a("s_waitcnt vmcnt(0)")
                a.lab(l2)
                self.g_signal_h(None)
            else:
                self.g_signal_h(0)
        if pre and not epb:
            if self.fused():
                lo = self.newlab("ww"); ld = self.newlab("wd")
                a("s_cmp_lg_u32 s3, 0")
                a("s_cbranch_scc1 %s" % lo)
                self.lds_spin(LDS_SFREE, 232, 4)
                self.lds_spin(LDS_UOK, 232, 3)
                self.check_line("s79", VLOOK, 0)
                a("v_mov_b32 v232, %d" % LDS_WOK)
                a("v_mov_b32 v233, 1")
                a("ds_write_b32 v232, v233")
                if "hall" in self.ph:
                    a("s_lshr_b32 s79, s6, 1")
                    a("s_lshl_b32 s79, s79, 7")
                    a("s_add_u32 s79, s79, %d" % WS_FH)
                    self.look_line("s79", 16, VLOOK)
                a("s_branch %s" % ld)
                a.lab(lo)
                self.lds_spin(LDS_WOK, 232)
                a.lab(ld)
                if "hall" not in self.ph:
                    a("s_lshr_b32 s79, s6, 1")
                    a("s_lshl_b32 s79, s79, 7")
                    a("s_lshl_b32 s67, s3, 4")
                    a("s_add_u32 s79, s79, s67")
                    a("s_add_u32 s79, s79, %d" % WS_FH)
                    self.look_line("s79", 4, VLOOK)
            regl, dmal = self.g2_burst_atoms()
            a.ext(flat(regl)); a.ext(flat(dmal))
        fintrim = "fintrim" in self.ph
        if fintrim: self.g2_final_addrs()
        if not epb: self.g2_wait_inputs(looked=pre)
        self.stamp(5)
        self.clk(5)
        def srcA(k):
            if not pre: return "g"
            return "pre" if k < 4 else ("lds" if k < 7 else "g")
        def loadA_any(k):
            S = SETS[k % 4]
            if srcA(k) == "g": return loadsA(S)
            if srcA(k) == "lds":
                return ["ds_read_b128 v[%d:%d], v%d offset:%d" % (S + 16 + 4 * dt, S + 19 + 4 * dt, VRS + k - 4, 1024 * dt) for dt in range(5)]
            return []
        nL = lambda k: nB(k) + (5 if srcA(k) == "g" else 0)
        for k in range(3):
            a.ext(flat(loadsB(SETS[k], k) + loadA_any(k)))
        for k in range(NS):
            rem = sum(nL(j) for j in range(k + 1, min(NS - 1, k + 2) + 1))
            if srcA(k) == "lds": a("s_waitcnt vmcnt(%d) lgkmcnt(0)" % rem)
            else: a("s_waitcnt vmcnt(%d)" % rem)
            fill = (loadsB(SETS[(k + 3) % 4], k + 3) + loadA_any(k + 3)) if k + 3 < NS else []
            if "k2stamps" in self.ph and k < 9: self.stamp(k + 1, force=True)
            if k == NS - 1 and fintrim:
                S = SETS[k % 4]
                M = lambda dt, tau: "v_mfma_f32_16x16x32_bf16 v[%d:%d], v[%d:%d], v[%d:%d], v[%d:%d]" % (acc(dt, tau), acc(dt, tau) + 3, S + 16 + 4 * dt, S + 19 + 4 * dt, S + 4 * tau, S + 4 * tau + 3, acc(dt, tau), acc(dt, tau) + 3)
                W = lambda dt, tau: "ds_write_b128 v%d, v[%d:%d] offset:%d" % (VRS + tau - 1, acc(dt, tau), acc(dt, tau) + 3, 1024 * dt)
                for dt in range(5): a(M(dt, 1))
                for dt in range(5): a(M(dt, 2))
                for dt in range(5): a(M(dt, 3)); a(W(dt, 1))
                for dt in range(5): a(M(dt, 0)); a(W(dt, 2))
                for dt in range(5): a(W(dt, 3))
            else:
                a.ext(interleave(mm(SETS[k % 4], k == 0), fill))
            if k + 3 == NS - 1 and self.fused(): self.lds_inc(LDS_GOK, 232)
        self.stamp(6)
        self.clk(7)
        if not fintrim:
            a("s_nop 7")
            for tau in range(1, 4):
                for dt in range(5):
                    a("ds_write_b128 v%d, v[%d:%d] offset:%d" % (VRS + tau - 1, acc(dt, tau), acc(dt, tau) + 3, 1024 * dt))
        a("s_waitcnt lgkmcnt(0)")
        a("s_barrier")
        self.stamp(7)
        if not fintrim: self.g2_final_addrs()
        R = 80
        for j in range(3):
            for dt in range(5):
                r = R + (j * 5 + dt) * 4
                a("ds_read_b128 v[%d:%d], v%d offset:%d" % (r, r + 3, T + 1, 5120 * j + 1024 * dt))
        Y = 140
        for dt in range(5):
            if dt < 4: a("ds_read_b64_tr_b16 v[%d:%d], v%d offset:%d" % (Y + 2 * dt, Y + 2 * dt + 1, T + 5, 128 * (32 * (dt >> 1) + 4 * (dt & 1))))
            else: a("ds_read_b64_tr_b16 v[%d:%d], v%d offset:%d" % (Y + 2 * dt, Y + 2 * dt + 1, T + 6, 128 * 64))
        a("ds_read_b32 v%d, v%d" % (T + 8, T + 8))
        a("s_waitcnt lgkmcnt(0)")
        for dt in range(5):
            for h in range(2):
                x = acc(dt, 0) + 2 * h
                p = [R + (j * 5 + dt) * 4 + 2 * h for j in range(3)]
                a("v_pk_add_f32 v[%d:%d], v[%d:%d], v[%d:%d]" % (p[0], p[0] + 1, p[0], p[0] + 1, p[1], p[1] + 1))
                a("v_pk_add_f32 v[%d:%d], v[%d:%d], v[%d:%d]" % (x, x + 1, x, x + 1, p[2], p[2] + 1))
        for dt in range(5):
            for h in range(2):
                x = acc(dt, 0) + 2 * h
                p = R + dt * 4 + 2 * h
                a("v_pk_add_f32 v[%d:%d], v[%d:%d], v[%d:%d]" % (x, x + 1, x, x + 1, p, p + 1))
        U = 150
        for dt in range(5):
            for h in range(2):
                a("v_lshlrev_b32 v%d, 16, v%d" % (U + 4 * dt + 2 * h, Y + 2 * dt + h))
                a("v_and_b32 v%d, 0xffff0000, v%d" % (U + 4 * dt + 2 * h + 1, Y + 2 * dt + h))
        G2 = T + 12
        assert G2 % 2 == 0
        a("v_mov_b32 v%d, v%d" % (G2, T + 8))
        a("v_mov_b32 v%d, v%d" % (G2 + 1, T + 8))
        for dt in range(5):
            for h in range(2):
                x = acc(dt, 0) + 2 * h; u = U + 4 * dt + 2 * h
                a("v_pk_add_f32 v[%d:%d], v[%d:%d], v[%d:%d] neg_lo:[0,1] neg_hi:[0,1]" % (u, u + 1, u, u + 1, x, x + 1))
        for dt in range(5):
            for h in range(2):
                x = acc(dt, 0) + 2 * h; u = U + 4 * dt + 2 * h
                a("v_pk_fma_f32 v[%d:%d], v[%d:%d], v[%d:%d], v[%d:%d]" % (x, x + 1, u, u + 1, G2, G2 + 1, x, x + 1))
        O = 176
        for dt in range(5):
            for h in range(2):
                x = acc(dt, 0) + 2 * h
                a("v_cvt_pk_bf16_f32 v%d, v%d, v%d" % (O + 2 * dt + h, x, x + 1))
        fl = " sc1" if "outsc1" in self.ph else (" nt" if "outnt" in self.ph else "")
        a("buffer_store_dwordx4 v[%d:%d], v%d, s[24:27], 0 offen%s" % (O, O + 3, T + 9, fl))
        a("buffer_store_dwordx4 v[%d:%d], v%d, s[24:27], 0 offen offset:64%s" % (O + 4, O + 7, T + 9, fl))
        a("buffer_store_dwordx2 v[%d:%d], v%d, s[24:27], 0 offen offset:128%s" % (O + 8, O + 9, T + 10, fl))
        self.stamp(8)

    def g2_wait_inputs(self, looked=False):
        if not self.fused(): return
        a = self.a
        T = 232
        if looked and "hall" not in self.ph:
            self.check_line("s79", 254, 35, sleep=4)
            return
        lo = self.newlab("hw"); ld = self.newlab("hd")
        a("s_cmp_lg_u32 s3, 0")
        a("s_cbranch_scc1 %s" % lo)
        if looked:
            self.check_line("s79", 254, 35)
        else:
            a("s_lshr_b32 s78, s6, 1")
            a("s_lshl_b32 s78, s78, 7")
            a("s_add_u32 s78, s78, %d" % WS_FH)
            self.poll_line("s78", 16, T, sleep=4)
        a("v_mov_b32 v%d, %d" % (T, LDS_HOK))
        a("v_mov_b32 v%d, 1" % (T + 1))
        a("ds_write_b32 v%d, v%d" % (T, T + 1))
        a("s_branch %s" % ld)
        a.lab(lo)
        self.lds_spin(LDS_HOK, T)
        a.lab(ld)

    def s_final(self):
        a = self.a
        n = self.name
        l = self.newlab("fin")
        a("s_cmp_lg_u32 s3, 7")
        a("s_cbranch_scc1 %s" % l)
        if self.fused(): self.lds_spin(LDS_GOK, 2, 4)
        self.y_wait_inputs()
        a("v_mbcnt_lo_u32_b32 v0, -1, 0")
        a("v_mbcnt_hi_u32_b32 v0, -1, v0")
        a("v_lshrrev_b32 v1, 3, v0")
        a("v_mul_u32_u24 v1, %d, v1" % ROWS)
        a("v_and_b32 v2, 7, v0")
        a("v_lshl_add_u32 v1, v2, 4, v1")
        a("s_mul_i32 s67, s7, %d" % (80 * ROWS))
        a("s_lshl_b32 s68, s6, 7")
        a("s_add_u32 s67, s67, s68")
        a("s_add_u32 s67, s67, %d" % WS_Y)
        for i in range(10):
            a("buffer_load_dwordx4 v[%d:%d], v1, s[20:23], s67 offen sc1" % (8 + 4 * i, 11 + 4 * i))
            if i < 9: a("s_add_u32 s67, s67, %d" % (8 * ROWS))
        a("s_lshl_b32 s67, s6, 8")
        a("s_add_u32 s67, s67, %d" % WS_G)
        a("v_lshlrev_b32 v3, 2, v0")
        a("buffer_load_dword v4, v3, s[20:23], s67 offen sc1")
        a("v_lshlrev_b32 v2, 4, v0")
        a("v_add_u32 v2, %d, v2" % LDS_YT)
        a("v_add_u32 v3, %d, v3" % LDS_GT)
        a("s_waitcnt vmcnt(0)")
        for i in range(10):
            a("ds_write_b128 v2, v[%d:%d] offset:%d" % (8 + 4 * i, 11 + 4 * i, 1024 * i))
        a("ds_write_b32 v3, v4")
        a("s_waitcnt lgkmcnt(0)")
        a("s_barrier")
        if self.fused(): self.nonce_update()
        a("s_branch %s_fd" % l)
        a.lab(l)
        a("s_barrier")
        a.lab("%s_fd" % l)

    def y_wait_inputs(self):
        if not self.fused(): return
        a = self.a
        a("v_mbcnt_lo_u32_b32 v0, -1, 0")
        a("v_mbcnt_hi_u32_b32 v0, -1, v0")
        a("s_mul_i32 s67, s7, 320")
        a("s_add_u32 s67, s67, %d" % WS_FY)
        a("v_lshl_add_u32 v1, v0, 2, s67")
        a("v_add_u32 v2, 256, v1")
        a("s_lshl_b32 s68, s6, 5")
        a("s_add_u32 s68, s68, %d" % (WS_FG - 64))
        a("v_lshl_add_u32 v3, v0, 2, s68")
        a("v_cmp_le_u32 vcc, 16, v0")
        a("s_nop 1")
        a("v_cndmask_b32 v2, v2, v3, vcc")
        a("v_subrev_u32 v3, 24, v0")
        a("v_lshlrev_b32 v3, 10, v3")
        a("s_lshl_b32 s68, s2, 2")
        a("s_add_u32 s68, s68, %d" % WS_FY)
        a("v_add_u32 v3, s68, v3")
        a("v_cmp_le_u32 vcc, 24, v0")
        a("s_nop 1")
        a("v_cndmask_b32 v2, v2, v3, vcc")
        a("s_cmp_lt_u32 s2, 128")
        a("s_cselect_b32 s68, 27, 26")
        a("v_mov_b32 v3, s67")
        a("v_cmp_le_u32 vcc, s68, v0")
        a("s_nop 1")
        a("v_cndmask_b32 v2, v2, v3, vcc")
        def loads():
            a("buffer_load_dword v4, v1, s[20:23], 0 offen sc1")
            a("buffer_load_dword v5, v2, s[20:23], 0 offen sc1")
        self.poll(loads, [4, 5], 6, sleep=8)

    def fused(self): return "fused" in self.ph

    def nonce_load(self):
        a = self.a
        if "snonce" in self.ph:
            a("s_add_u32 s68, s%d, %d" % (P_WS, WS_NON))
            a("s_addc_u32 s69, s%d, 0" % (P_WS + 1))
            a("s_load_dword s55, s[68:69], 0")
            return
        a("v_mov_b32 v1, 0")
        a("s_mov_b32 s67, %d" % WS_NON)
        a("buffer_load_dword v242, v1, s[20:23], s67 offen sc1")
    def nonce_publish_local(self):
        a = self.a
        if "snonce" in self.ph:
            a("s_waitcnt lgkmcnt(0)")
            a("s_add_u32 s64, s55, 1")
            a("v_mov_b32 v242, s64")
            a("v_mov_b32 v1, %d" % LDS_NONCE)
            a("ds_write_b32 v1, v242")
            return
        a("v_add_u32 v242, 1, v242")
        a("v_mov_b32 v1, %d" % LDS_NONCE)
        a("ds_write_b32 v1, v242")
        a("v_readfirstlane_b32 s64, v242")
    def nonce_update(self):
        a = self.a
        l = self.newlab("nu")
        a("s_cmp_lg_u32 s2, 0")
        a("s_cbranch_scc1 %s" % l)
        a("v_mbcnt_lo_u32_b32 v2, -1, 0")
        a("v_mbcnt_hi_u32_b32 v2, -1, v2")
        a("v_lshlrev_b32 v2, 4, v2")
        a("s_mov_b32 s78, %d" % WS_FG)
        self.poll(lambda: a("buffer_load_dwordx4 v[4:7], v2, s[20:23], s78 offen sc1"), [4, 5, 6, 7], 2, sleep=8)
        a("s_mov_b32 s69, %d" % WS_NON)
        self.flag_set("s69", 2)
        a.lab(l)

    def nonce_read(self, vt):
        a = self.a
        a("v_mov_b32 v%d, %d" % (vt, LDS_NONCE))
        a("ds_read_b32 v%d, v%d" % (vt, vt))
        a("s_waitcnt lgkmcnt(0)")
        a("v_readfirstlane_b32 s64, v%d" % vt)
        a("s_nop 1")

    def flag_set(self, soff_reg, vt):
        a = self.a
        a("v_mov_b32 v%d, s64" % vt)
        a("v_mov_b32 v%d, 0" % (vt + 1))
        a("s_mov_b64 exec, 1")
        a("buffer_store_dword v%d, v%d, s[20:23], %s offen sc1" % (vt, vt + 1, soff_reg))
        a("s_mov_b64 exec, -1")

    def poll(self, loads, vregs, vt, sleep=8):
        a = self.a
        lp = self.newlab("pl"); ld = self.newlab("pd")
        a("s_mov_b32 s69, 0")
        a.lab(lp)
        loads()
        a("s_waitcnt vmcnt(0)")
        for i, r in enumerate(vregs):
            if i == 0: a("v_cmp_eq_u32 vcc, s64, v%d" % r)
            else:
                a("v_cmp_eq_u32 s[76:77], s64, v%d" % r)
                a("s_nop 1")
                a("s_and_b64 vcc, vcc, s[76:77]")
        a("s_nop 1")
        a("s_cmp_eq_u64 vcc, -1")
        a("s_cbranch_scc1 %s" % ld)
        a("s_add_u32 s69, s69, 1")
        a("s_cmp_lt_u32 s69, 0x40000")
        a("s_cbranch_scc0 %s" % ld)
        a("s_sleep %d" % sleep)
        a("s_branch %s" % lp)
        a.lab(ld)

    def look_line(self, soff, nflags, vt):
        a = self.a
        a("v_mbcnt_lo_u32_b32 v%d, -1, 0" % vt)
        a("v_mbcnt_hi_u32_b32 v%d, -1, v%d" % (vt, vt))
        a("v_cmp_gt_u32 vcc, %d, v%d" % (nflags, vt))
        a("v_lshlrev_b32 v%d, 2, v%d" % (vt, vt))
        a("s_nop 0")
        a("v_cndmask_b32 v%d, 0, v%d, vcc" % (vt, vt))
        a("buffer_load_dword v%d, v%d, s[20:23], %s offen sc1" % (vt + 1, vt, soff))

    def check_line(self, soff, vt, nyounger, sleep=2):
        a = self.a
        l = self.newlab("ck")
        a("s_waitcnt vmcnt(%d)" % nyounger)
        a("v_cmp_eq_u32 vcc, s64, v%d" % (vt + 1))
        a("s_nop 1")
        a("s_cmp_eq_u64 vcc, -1")
        a("s_cbranch_scc1 %s" % l)
        self.poll(lambda: a("buffer_load_dword v%d, v%d, s[20:23], %s offen sc1" % (vt + 1, vt, soff)), [vt + 1], vt, sleep)
        a.lab(l)

    def poll_line(self, soff, nflags, vt, sleep=8):
        a = self.a
        a("v_mbcnt_lo_u32_b32 v%d, -1, 0" % vt)
        a("v_mbcnt_hi_u32_b32 v%d, -1, v%d" % (vt, vt))
        a("v_cmp_gt_u32 vcc, %d, v%d" % (nflags, vt))
        a("v_lshlrev_b32 v%d, 2, v%d" % (vt, vt))
        a("s_nop 0")
        a("v_cndmask_b32 v%d, 0, v%d, vcc" % (vt, vt))
        self.poll(lambda: a("buffer_load_dword v%d, v%d, s[20:23], %s offen sc1" % (vt + 1, vt, soff)), [vt + 1], vt, sleep)

    def build(self):
        a = self.a
        n = self.name
        a.l.append(".globl %s" % n)
        a.l.append(".p2align 8")
        a.l.append(".type %s,@function" % n)
        a.l.append("%s:" % n)
        self.prologue()
        a("s_cmp_ge_u32 s3, 4")
        a("s_cbranch_scc1 %s_S" % n)
        if "g1" in self.ph:
            self.g_gemm1()
        if "g2" in self.ph:
            self.g_gemm2()
        self.dbgtime_end()
        self.stamp_flush()
        a("s_endpgm")
        a.lab("%s_S" % n)
        if "g1" in self.ph:
            self.s_phase1()
        if "ssm" in self.ph:
            self.s_ssm()
        if "g2" in self.ph:
            self.s_final()
        self.stamp_flush()
        a.lab("%s_end" % n)
        a("s_endpgm")
        return a.text()

def kd(name):
    return """.amdhsa_kernel %s
  .amdhsa_next_free_vgpr 256
  .amdhsa_next_free_sgpr 102
  .amdhsa_accum_offset 256
  .amdhsa_group_segment_fixed_size 0
  .amdhsa_kernarg_size 136
  .amdhsa_user_sgpr_count 2
  .amdhsa_user_sgpr_kernarg_segment_ptr 1
  .amdhsa_system_sgpr_workgroup_id_x 1
.end_amdhsa_kernel
""" % name

HEADER = open("gated_mix__ssm_conv_s4__swiglu_ffn__prompt.s.ref").read().split("; Override launch")[0]

def emit(kernels, path):
    txt = HEADER
    if len(kernels) == 1:
        txt += "; @launch grid=(256,1,1) block=(512,1,1) lds=%d\n" % LDS_TOTAL
    else:
        for (n, p, s) in kernels:
            txt += "; @launch kernel=%s grid=(256,1,1) block=(512,1,1) lds=%d\n" % (n, LDS_TOTAL)
    txt += '.amdgcn_target "amdgcn-amd-amdhsa--gfx950"\n.text\n'
    for (n, p, s) in kernels:
        txt += Gen(n, p, s).build()
    txt += '.section .rodata,"a"\n'
    for (n, p, s) in kernels:
        txt += ".p2align 6\n" + kd(n)
    open(path, "w").write(txt)

if __name__ == "__main__":
    mode = sys.argv[1]; path = sys.argv[2]
    stamps = len(sys.argv) > 3 and sys.argv[3] == "stamps"
    if mode.startswith("g1+") or mode == "g1":
        emit([(KNAME, set(mode.split("+")), stamps)], path)
    elif mode == "g1,ssm":
        emit([("ka_kernel", {"g1"}, False), ("kb_kernel", {"ssm", "dumpk"}, stamps)], path)
    elif mode == "3k":
        emit([("ka_kernel", {"g1"}, False), ("kb_kernel", {"ssm"}, False), ("kc_kernel", {"g2"}, stamps)], path)
    elif mode == "3k+1":
        emit([("ka_kernel", {"g1"}, False), ("kb_kernel", {"ssm"}, False), ("kc_kernel", {"g2"}, stamps), ("kd_kernel", set(), False)], path)
    elif mode == "3k+3":
        emit([("ka_kernel", {"g1"}, False), ("kb_kernel", {"ssm"}, False), ("kc_kernel", {"g2"}, stamps), ("kd_kernel", set(), False), ("ke_kernel", set(), False), ("kf_kernel", set(), False)], path)
    elif mode == "3k_dbg":
        emit([("ka_kernel", {"g1", "dbgtime"}, False), ("kb_kernel", {"ssm"}, False), ("kc_kernel", {"g2", "dbgtime"}, False)], path)
    elif mode == "fused":
        emit([(KNAME, {"g1", "ssm", "g2", "fused"}, stamps)], path)
    elif mode == "fused_notouch":
        emit([(KNAME, {"g1", "ssm", "g2", "fused", "notouch"}, stamps)], path)
    elif mode == "fused_pk":
        emit([(KNAME, {"g1", "ssm", "g2", "fused", "pkhead"}, stamps)], path)
    elif mode.startswith("F:"):
        emit([(KNAME, {"g1", "ssm", "g2", "fused"} | set(mode[2:].split("+")), stamps)], path)
    elif mode == "fused_dbg":
        emit([(KNAME, {"g1", "ssm", "g2", "fused", "dbgtime"}, stamps)], path)
    elif mode == "g1,ssm,nodump":
        emit([("ka_kernel", {"g1"}, False), ("kb_kernel", {"ssm"}, stamps)], path)
```

```python
import sys, math

KNAME = "gated_mix__ssm_conv_s4__swiglu_ffn__prompt_kernel"

WS_H    = 0x000000
WS_WD   = 0x600000
ROWS    = 4224
WS_UT   = 0x800000
WS_Y    = 0xB00000
WS_G    = 0xE00000
WS_FU   = 0xE10000
WS_FW   = 0xE15000
WS_FH   = 0xE11000
WS_FY   = 0xE12000
WS_NON  = 0xE13000
WS_FG   = 0xE14000
WS_TS   = 0xF00000
WS_DBG  = 0x1000000

STAGE   = 40960
ST_WG   = 16384
ST_WU   = 28672
LDS_S   = 3 * STAGE
TABROW  = 272
TABTILE = 16 * TABROW
TAB_SZ  = 2 * TABTILE
LDS_TAB = LDS_S
KR_SZ   = 4224
LDS_KR  = LDS_TAB + 3 * TAB_SZ
LDS_MISC = LDS_KR + 3 * KR_SZ
LDS_TOTAL = 163840
LDS_NONCE = LDS_MISC
LDS_CNT   = LDS_MISC + 8
UC_STRIDE = 4640
UC_SZ   = 4 * UC_STRIDE
LDS_UC  = 0
LDS_WDS_EARLY = 148992
LDS_RED = 57344
LDS_YT  = LDS_TAB
LDS_GT  = LDS_MISC + 64
LDS_HOK = LDS_MISC + 12
LDS_WOK = LDS_MISC + 16
LDS_UOK = LDS_MISC + 20
LDS_GOK = LDS_MISC + 24
LDS_UCOK = LDS_MISC + 28
LDS_SFREE = LDS_MISC + 32

class Asm:
    def __init__(self):
        self.l = []
    def __call__(self, s):
        for x in s.split("\n"):
            x = x.strip()
            if x: self.l.append("    " + x)
    def lab(self, s):
        self.l.append(s + ":")
    def ext(self, lst):
        for x in lst: self(x)
    def text(self):
        return "\n".join(self.l) + "\n"

def interleave(main, fill, start=0, span=None):
    out = []
    m = len(fill)
    n = len(main) if span is None else min(len(main), start + span)
    j = 0
    for i, x in enumerate(main):
        out.append(x)
        if i >= start:
            tgt = (m * (i - start + 1) + (n - start) - 1) // (n - start) if n > start else m
            while j < min(tgt, m):
                f = fill[j]
                if isinstance(f, tuple): out.extend(f)
                else: out.append(f)
                j += 1
    while j < m:
        f = fill[j]
        if isinstance(f, tuple): out.extend(f)
        else: out.append(f)
        j += 1
    return out

def flat(L):
    o = []
    for x in L:
        if isinstance(x, tuple): o.extend(x)
        else: o.append(x)
    return o

def vr(a, n=1):
    return "v%d" % a if n == 1 else "v[%d:%d]" % (a, a + n - 1)
def sr(a, n=1):
    return "s%d" % a if n == 1 else "s[%d:%d]" % (a, a + n - 1)

S_W, S_WAVE, S_M, S_N, S_M2, S_N2 = 2, 3, 4, 5, 6, 7
SRD_X, SRD_WG, SRD_WU, SRD_WS, SRD_OUT, SRD_WD = 8, 12, 16, 20, 24, 28
P_U, P_ARE, P_AIM, P_BRE, P_BIM, P_CRE, P_CIM, P_LDT = 32, 34, 36, 38, 40, 42, 44, 46
P_DSK, P_BX, P_WG, P_WU, P_WD, P_GW, P_OUT, P_DBG, P_WS = 48, 50, 52, 54, 56, 58, 60, 62, 64
S_TS = 80

class Gen:
    def __init__(self, name, phases, stamps=False):
        self.name = name
        self.ph = phases
        self.a = Asm()
        self.stamps = stamps
        self.nlab = 0
    def newlab(self, p):
        self.nlab += 1
        return "L_%s_%s_%d" % (self.name[:6], p, self.nlab)

    def capture(self, fn):
        old = self.a
        self.a = Asm()
        fn()
        lst = [x.strip() for x in self.a.l]
        self.a = old
        return lst

    def clk(self, i):
        if "clk" in self.ph and self.stamps:
            self.a("s_memrealtime s[%d:%d]" % (S_TS + 2 * i, S_TS + 2 * i + 1))
            self.a("s_memtime s[%d:%d]" % (S_TS + 2 * i + 2, S_TS + 2 * i + 3))
            self.a("s_waitcnt lgkmcnt(0)")

    def stamp(self, i, force=False):
        if "clk" in self.ph and i != 0: return
        if ("kstamps" in self.ph or "k2stamps" in self.ph or "ststamps" in self.ph) and not force and i != 0: return
        if self.stamps:
            self.a("%s s[%d:%d]" % ("s_memrealtime" if "rt" in self.ph else "s_memtime", S_TS + 2 * i, S_TS + 2 * i + 1))
            self.a("s_waitcnt lgkmcnt(0)")
    def stamp_flush(self):
        if not self.stamps: return
        a = self.a
        a("s_lshl_b32 s66, s2, 3")
        a("s_add_u32 s66, s66, s3")
        a("s_lshl_b32 s66, s66, 7")
        a("s_add_u32 s66, s66, 0x%x" % WS_TS)
        a("v_mov_b32 v250, 0")
        for i in range(10):
            a("v_mov_b32 v252, s%d" % (S_TS + 2 * i))
            a("v_mov_b32 v253, s%d" % (S_TS + 2 * i + 1))
            a("buffer_store_dwordx2 v[252:253], v250, s[20:23], s66 offen offset:%d" % (8 * i))
            a("s_nop 1")
        a("s_waitcnt vmcnt(0)")

    def prologue(self):
        a = self.a
        a("s_cmp_ge_u32 s2, 256")
        a("s_cbranch_scc1 %s_end" % self.name)
        a("s_load_dwordx16 s[32:47], s[0:1], 0")
        a("s_load_dwordx16 s[48:63], s[0:1], 64")
        a("s_load_dwordx2 s[64:65], s[0:1], 128")
        if "warmc0" in self.ph: self.warm_code(early=True)
        a("v_lshrrev_b32 v1, 6, v0")
        a("v_and_b32 v0, 63, v0")
        a("v_readfirstlane_b32 s3, v1")
        a("s_and_b32 s66, s2, 7")
        a("s_lshr_b32 s67, s2, 3")
        a("s_and_b32 s68, s67, 7")
        a("s_lshr_b32 s69, s67, 3")
        a("s_and_b32 s70, s66, 1")
        a("s_lshl_b32 s70, s70, 3")
        a("s_or_b32 s4, s70, s68")
        a("s_lshr_b32 s70, s66, 1")
        a("s_lshl_b32 s70, s70, 2")
        a("s_or_b32 s5, s70, s69")
        a("s_and_b32 s70, s66, 3")
        a("s_lshl_b32 s70, s70, 3")
        a("s_or_b32 s6, s70, s68")
        a("s_lshr_b32 s70, s66, 2")
        a("s_lshl_b32 s70, s70, 2")
        a("s_or_b32 s7, s70, s69")
        if "sametile" in self.ph:
            a("s_mov_b32 s4, 0"); a("s_mov_b32 s5, 0")
        if "samem" in self.ph:
            a("s_mov_b32 s4, 0")
        if "samen" in self.ph:
            a("s_mov_b32 s5, 0")
        if self.stamps:
            for i in range(10):
                a("s_mov_b64 s[%d:%d], 0" % (S_TS + 2 * i, S_TS + 2 * i + 1))
        a("s_waitcnt lgkmcnt(0)")
        def srd(base, ptr, size):
            a("s_mov_b32 s%d, s%d" % (base, ptr))
            a("s_and_b32 s%d, s%d, 0xffff" % (base + 1, ptr + 1))
            a("s_mov_b32 s%d, 0x%x" % (base + 2, size))
            a("s_mov_b32 s%d, 0x20000" % (base + 3))
        srd(SRD_X, P_U, 2048 * 640 * 2)
        srd(SRD_WG, P_WG, 640 * 1536 * 2)
        srd(SRD_WU, P_WU, 640 * 1536 * 2)
        srd(SRD_WS, P_WS, 0x10000000)
        srd(SRD_OUT, P_OUT, 2048 * 640 * 2)
        srd(SRD_WD, P_WD, 640 * 1536 * 2)
        self.stamp(0)
        if "dbgtime" in self.ph:
            a("s_memrealtime s[96:97]")
            a("s_memtime s[98:99]")
            a("s_mov_b64 s[100:101], s[62:63]")
            a("s_waitcnt lgkmcnt(0)")

    def dbgtime_end(self):
        a = self.a
        if "dbgtime" not in self.ph: return
        l = self.newlab("dbt")
        a("s_cmp_lg_u32 s2, 0"); a("s_cbranch_scc1 %s" % l)
        a("s_cmp_lg_u32 s3, 0"); a("s_cbranch_scc1 %s" % l)
        a("s_waitcnt vmcnt(0)")
        a("s_memrealtime s[92:93]")
        a("s_memtime s[94:95]")
        a("s_waitcnt lgkmcnt(0)")
        a("s_sub_u32 s92, s92, s96")
        a("s_sub_u32 s94, s94, s98")
        a("v_mov_b32 v250, 0")
        a("v_mov_b32 v252, s92")
        a("v_mov_b32 v253, s94")
        a("v_mov_b32 v254, s96")
        a("v_mov_b32 v255, 0x1234")
        a("global_store_dwordx4 v250, v[252:255], s[100:101]")
        a("s_waitcnt vmcnt(0)")
        a.lab(l)

    def rot_r(self, dst, tmp):
        a = self.a
        if "norot" in self.ph:
            a("s_mov_b32 %s, 0" % dst)
            return
        a("s_lshr_b32 %s, s5, 1" % dst)
        a("s_cmp_ge_u32 %s, 5" % dst)
        a("s_cselect_b32 %s, 1, 0" % tmp)
        a("s_cmp_ge_u32 %s, 1" % dst)
        a("s_addc_u32 %s, %s, %s" % (dst, dst, tmp))

    def g_gemm1(self):
        a = self.a
        ACC = 0; FP = 96; FQ = 136
        VXB = 176
        VWA = 182
        VL16 = 196
        T = 200
        accg = lambda ft, tt: ACC + (ft * 4 + tt) * 4
        accu = lambda ft, tt: ACC + 48 + (ft * 4 + tt) * 4
        LANE = 197
        a("v_mov_b32 v%d, v0" % LANE)
        a("s_and_b32 s67, s3, 1")
        a("s_lshr_b32 s68, s3, 1")
        VOX = 191
        a("v_lshrrev_b32 v%d, 3, v%d" % (T, LANE))
        a("s_lshl_b32 s69, s4, 7")
        a("s_lshl_b32 s70, s3, 5")
        a("s_add_u32 s69, s69, s70")
        a("v_add_u32 v%d, s69, v%d" % (T, T))
        a("s_movk_i32 s70, 1280")
        a("v_mul_lo_u32 v%d, v%d, s70" % (T, T))
        a("v_and_b32 v%d, 7, v%d" % (T + 1, LANE))
        a("v_lshrrev_b32 v%d, 4, v%d" % (T + 2, LANE))
        a("v_xor_b32 v%d, v%d, v%d" % (T + 3, T + 1, T + 2))
        a("v_xor_b32 v%d, 4, v%d" % (T + 4, T + 3))
        a("v_lshl_add_u32 v%d, v%d, 4, v%d" % (VOX, T + 3, T))
        a("v_lshl_add_u32 v%d, v%d, 4, v%d" % (VOX + 1, T + 4, T))
        a("s_lshl_b32 s75, s3, 12")
        VOW = 193
        a("s_mul_i32 s76, s3, 3072")
        a("s_add_u32 s77, s76, %d" % ST_WU)
        a("s_add_u32 s76, s76, %d" % ST_WG)
        self.rot_r("s74", "s72")
        def xdma(st):
            base = (st % 3) * STAGE
            L = []
            for i in range(4):
                if i == 0:
                    L.append(("s_lshl_b32 s72, s74, 7", "s_mul_i32 s73, s74, 196608", "s_add_u32 s74, s74, 1",
                              "s_add_u32 m0, s75, %d" % base, "s_cmp_eq_u32 s74, 10", "s_cselect_b32 s74, 0, s74",
                              "buffer_load_dwordx4 v%d, s[8:11], s72 offen lds" % VOX))
                else:
                    L.append(("s_add_u32 s70, s72, %d" % (9216 * i),
                              "buffer_load_dwordx4 v%d, s[8:11], s70 offen offset:%d lds" % (VOX + (i & 1), 1024 * i)))
            for mat, sm, srd in (() if "s3w" in self.ph else ((0, 76, "s[12:15]"), (1, 77, "s[16:19]"))):
                for i in range(3):
                    ld = "buffer_load_dwordx4 v%d, %s, s73 offen offset:%d lds" % (VOW + i, srd, 1024 * i)
                    if mat == 1 and "nowu" in self.ph: ld = "s_nop 0"
                    if i == 2 and "now2" in self.ph: ld = "s_nop 0"
                    if i == 0: L.append(("s_add_u32 m0, s%d, %d" % (sm, base), "s_nop 0", ld))
                    else: L.append(ld)
            return L
        if "ststamps" in self.ph: self.stamp(1, force=True)
        def wcalc():
            a("s_lshl_b32 s69, s3, 4")
            a("s_mul_i32 s69, s69, 3072")
            a("s_mul_i32 s70, s5, 192")
            a("s_add_u32 s69, s69, s70")
            a("s_mov_b32 s70, 43691")
            a("s_movk_i32 s71, 3072")
            for i in range(3):
                a("v_add_u32 v%d, %d, v%d" % (T, 64 * i, LANE))
                a("v_mul_lo_u32 v%d, v%d, s70" % (T + 1, T))
                a("v_lshrrev_b32 v%d, 19, v%d" % (T + 1, T + 1))
                a("v_mul_u32_u24 v%d, 12, v%d" % (T + 2, T + 1))
                a("v_sub_u32 v%d, v%d, v%d" % (T + 2, T, T + 2))
                a("v_lshrrev_b32 v%d, 2, v%d" % (T + 3, T + 1))
                a("v_and_b32 v%d, 2, v%d" % (T + 3, T + 3))
                a("v_xor_b32 v%d, v%d, v%d" % (T + 2, T + 2, T + 3))
                a("v_mul_lo_u32 v%d, v%d, s71" % (T + 1, T + 1))
                a("v_lshl_add_u32 v%d, v%d, 4, v%d" % (T + 1, T + 2, T + 1))
                a("v_add_u32 v%d, s69, v%d" % (T + 1, T + 1))
                a("v_subrev_u32 v%d, %d, v%d" % (VOW + i, 1024 * i, T + 1))

        d0 = xdma(0)
        a.ext(flat(d0[:4]))
        wcalc()
        a.ext(flat(d0[4:]))
        if "late1" not in self.ph: a.ext(flat(xdma(1)))
        if "ststamps" in self.ph: self.stamp(2, force=True)
        if "nobpre" not in self.ph: a("s_barrier")
        a("v_and_b32 v%d, 15, v%d" % (T, LANE))
        a("v_lshrrev_b32 v%d, 4, v%d" % (T + 1, LANE))
        a("s_lshl_b32 s69, s67, 6")
        a("v_add_u32 v%d, s69, v%d" % (T + 2, T))
        a("v_lshlrev_b32 v%d, 7, v%d" % (T + 2, T + 2))
        a("v_lshrrev_b32 v%d, 1, v%d" % (T + 3, T))
        a("v_and_b32 v%d, 7, v%d" % (T + 3, T + 3))
        a("v_xor_b32 v%d, v%d, v%d" % (T + 3, T + 3, T + 1))
        a("v_xor_b32 v%d, 4, v%d" % (T + 4, T + 3))
        a("v_lshl_add_u32 v%d, v%d, 4, v%d" % (VXB, T + 3, T + 2))
        a("v_lshl_add_u32 v%d, v%d, 4, v%d" % (VXB + 1, T + 4, T + 2))
        for st in (1, 2):
            for s in range(2):
                a("v_add_u32 v%d, %d, v%d" % (VXB + 2 * st + s, st * STAGE, VXB + s))
        a("v_lshrrev_b32 v%d, 2, v%d" % (T + 2, T))
        a("v_lshl_add_u32 v%d, v%d, 3, v%d" % (T + 2, T + 1, T + 2))
        a("v_mul_u32_u24 v%d, 192, v%d" % (T + 2, T + 2))
        a("v_and_b32 v%d, 3, v%d" % (T + 3, LANE))
        a("v_lshl_add_u32 v%d, v%d, 3, v%d" % (T + 2, T + 3, T + 2))
        a("v_add_u32 v%d, %d, v%d" % (T + 2, ST_WG, T + 2))
        a("v_and_b32 v%d, 1, v%d" % (T + 3, T + 1))
        a("s_lshl_b32 s69, s68, 2")
        a("s_add_u32 s78, s69, 1")
        a("s_add_u32 s79, s68, 2")
        for ft, sreg in ((0, 69), (1, 78), (2, 79)):
            a("v_xor_b32 v%d, s%d, v%d" % (T + 4, sreg, T + 3))
            a("v_lshl_add_u32 v%d, v%d, 5, v%d" % (VWA + ft, T + 4, T + 2))
        for st in (1, 2):
            for ft in range(3):
                a("v_add_u32 v%d, %d, v%d" % (VWA + 3 * st + ft, st * STAGE, VWA + ft))
        a("v_lshlrev_b32 v%d, 4, v%d" % (VL16, LANE))
        a("s_lshl_b32 s69, s4, 1")
        a("s_add_u32 s69, s69, s67")
        a("s_mul_i32 s69, s69, 48")
        a("s_mul_i32 s78, s5, 3")
        a("s_add_u32 s69, s69, s78")
        a("s_lshl_b32 s78, s68, 1")
        a("s_add_u32 s78, s78, s69")
        a("s_lshl_b32 s78, s78, 12")
        a("s_add_u32 s79, s69, 1")
        a("s_lshl_b32 s79, s79, 12")
        a("s_lshl_b32 s69, s68, 9")
        a("s_add_u32 s79, s79, s69")
        a("v_lshlrev_b32 v%d, 3, v%d" % (VL16 + 2, LANE))
        if WS_H:
            a("s_add_u32 s78, s78, %d" % WS_H); a("s_add_u32 s79, s79, %d" % WS_H)

        def reads(kk, s, F):
            st = kk % 3
            xs = ["ds_read_b128 v[%d:%d], v%d offset:%d" % (F + 4 * tt, F + 4 * tt + 3, VXB + 2 * st + s, 2048 * tt) for tt in range(4)]
            ws = []
            for mat in range(2):
                for ft in range(3):
                    r = F + 16 + (mat * 3 + ft) * 4
                    for h in range(2):
                        ws.append("ds_read_b64_tr_b16 v[%d:%d], v%d offset:%d" % (r + 2 * h, r + 2 * h + 1, VWA + 3 * st + ft, 12288 * mat + 6144 * s + 768 * h))
            order = [xs[0], ws[0], ws[1], xs[1], ws[6], ws[7], xs[2], xs[3]] + ws[2:6] + ws[8:]
            return order
        def mfmas(F, first):
            L = []
            for ft in range(3):
                for mat in range(2):
                    for tt in range(4):
                        acc = accg(ft, tt) if mat == 0 else accu(ft, tt)
                        A = F + 16 + (mat * 3 + ft) * 4
                        B = F + 4 * tt
                        c = "0" if first else "v[%d:%d]" % (acc, acc + 3)
                        L.append("v_mfma_f32_16x16x32_bf16 v[%d:%d], v[%d:%d], v[%d:%d], %s" % (acc, acc + 3, A, A + 3, B, B + 3, c))
            return L
        def spread(mm, d, first, step):
            out = []; cnt = 0; di = 0
            for x in mm:
                out.append(x)
                if x.startswith("v_mfma"):
                    cnt += 1
                    if cnt >= first and (cnt - first) % step == 0 and di < len(d):
                        f = d[di]; di += 1
                        out.extend(f if isinstance(f, tuple) else (f,))
            assert di == len(d), (di, len(d))
            return out
        self.stamp(5)
        ND = 4 if "s3w" in self.ph else (7 if "nowu" in self.ph else (8 if "now2" in self.ph else 10))
        a("s_waitcnt vmcnt(%d)" % (0 if "late1" in self.ph else ND))
        if "ststamps" in self.ph: self.stamp(3, force=True)
        a("s_barrier")
        if "ststamps" in self.ph: self.stamp(4, force=True)
        if "late1" in self.ph: a.ext(flat(xdma(1)))
        self.stamp(1)
        self.clk(1)
        a.ext(reads(0, 0, FP))
        a("s_waitcnt lgkmcnt(0)")
        pend = xdma(2)
        for kk in range(10):
            mm = interleave(mfmas(FP, kk == 0), reads(kk, 1, FQ), span=16)
            if pend: mm = spread(mm, pend, 2, (10 if len(pend) <= 2 else 5) if len(pend) <= 5 else 2)
            a.ext(mm)
            if kk <= 7: a("s_waitcnt vmcnt(%d) lgkmcnt(0)" % ND)
            elif kk == 8: a("s_waitcnt vmcnt(0) lgkmcnt(0)")
            else: a("s_waitcnt lgkmcnt(0)")
            if kk == 9 and self.fused(): self.lds_inc(LDS_SFREE, T)
            else: a("s_barrier")
            if "kstamps" in self.ph and kk < 9: self.stamp(kk + 1, force=True)
            if "ststamps" in self.ph and kk < 5: self.stamp(kk + 5, force=True)
            fill = reads(kk + 1, 0, FP) if kk + 1 < 10 else []
            mm = interleave(mfmas(FQ, False), fill, span=16)
            d = xdma(kk + 3) if kk + 3 < 10 else []
            if "dmaB" in self.ph:
                pend = []
                if d: mm = spread(mm, d, 2, 2)
            elif "dma73" in self.ph:
                pend = d[7:]
                if d: mm = spread(mm, d[:7], 2, 3)
            elif "s3w" in self.ph:
                pend = d[2:]
                if d: mm = spread(mm, d[:2], 4, 10)
            else:
                pend = d[5:]
                if d: mm = spread(mm, d[:5], 2, 5)
            a.ext(mm)
            if kk + 1 < 10:
                a("s_waitcnt lgkmcnt(0)")
        self.stamp(2)
        self.clk(3)
        epb = "epb" in self.ph and "g2" in self.ph
        if epb: CN, ONE, OUTB, TMPB, TMPS = 200, 202, 116, 152, 8
        else: CN, ONE, OUTB, TMPB, TMPS = FP, FP + 2, FP + 8, FQ, 16
        E = []
        E.append("v_mov_b32 v%d, 0xbfb8aa3b" % CN)
        E.append("v_mov_b32 v%d, 0xbfb8aa3b" % (CN + 1))
        E.append("v_mov_b32 v%d, 1.0" % ONE)
        E.append("v_mov_b32 v%d, 1.0" % (ONE + 1))
        grp = 0
        def silu(gregs, uregs, tmp, out):
            n = len(gregs)
            L = []
            for i in range(n): L.append("v_pk_mul_f32 v[%d:%d], v[%d:%d], v[%d:%d]" % (tmp + 2 * i, tmp + 2 * i + 1, gregs[i], gregs[i] + 1, CN, CN + 1))
            for i in range(2 * n): L.append("v_exp_f32 v%d, v%d" % (tmp + i, tmp + i))
            for i in range(n): L.append("v_pk_mul_f32 v[%d:%d], v[%d:%d], v[%d:%d]" % (gregs[i], gregs[i] + 1, gregs[i], gregs[i] + 1, uregs[i], uregs[i] + 1))
            for i in range(n): L.append("v_pk_add_f32 v[%d:%d], v[%d:%d], v[%d:%d]" % (tmp + 2 * i, tmp + 2 * i + 1, tmp + 2 * i, tmp + 2 * i + 1, ONE, ONE + 1))
            for i in range(2 * n): L.append("v_rcp_f32 v%d, v%d" % (tmp + i, tmp + i))
            if n < 2: L.append("s_nop 0")
            for i in range(n): L.append("v_pk_mul_f32 v[%d:%d], v[%d:%d], v[%d:%d]" % (gregs[i], gregs[i] + 1, gregs[i], gregs[i] + 1, tmp + 2 * i, tmp + 2 * i + 1))
            for i in range(n): L.append("v_cvt_pk_bf16_f32 v%d, v%d, v%d" % (out + i, gregs[i], gregs[i] + 1))
            return L
        for tt in range(4):
            tmp = TMPB + (grp % 2) * TMPS; out = OUTB + (grp % 4) * 4; grp += 1
            g = [accg(0, tt), accg(0, tt) + 2, accg(1, tt), accg(1, tt) + 2]
            u = [accu(0, tt), accu(0, tt) + 2, accu(1, tt), accu(1, tt) + 2]
            E += silu(g, u, tmp, out)
            E.append("buffer_store_dwordx4 v[%d:%d], v%d, s[20:23], s78 offen offset:%d sc1" % (out, out + 3, VL16, 1024 * tt))
            tmp = TMPB + (grp % 2) * TMPS; out = OUTB + (grp % 4) * 4; grp += 1
            g = [accg(2, tt), accg(2, tt) + 2]
            u = [accu(2, tt), accu(2, tt) + 2]
            E += silu(g, u, tmp, out)
            E.append("buffer_store_dwordx2 v[%d:%d], v%d, s[20:23], s79 offen offset:%d sc1" % (out, out + 1, VL16 + 2, 1024 * tt))
        if epb:
            self.g2_setup()
            if self.fused(): self.lds_spin(LDS_WOK, 232, treg="s80x")
            regl, dmal = self.g2_burst_atoms()
            half = len(E) // 2
            a.ext(interleave(E[:half], regl, start=4))
            if self.fused(): self.lds_spin(LDS_SFREE, 232, 4, treg="s80x")
            a.ext(interleave(E[half:], dmal))
        else:
            a.ext(E)
        self.stamp(3)
        if "g2" not in self.ph:
            a("s_waitcnt vmcnt(0)")
            self.stamp(4)

    def g_signal_h(self, nyounger):
        a = self.a
        T = 232
        if nyounger is not None: a("s_waitcnt vmcnt(%d)" % nyounger)
        if self.fused():
            l = self.newlab("fh")
            a("v_mov_b32 v%d, %d" % (T, LDS_CNT))
            a("v_mov_b32 v%d, 1" % (T + 1))
            a("s_mov_b64 exec, 1")
            a("ds_add_rtn_u32 v%d, v%d, v%d" % (T + 2, T, T + 1))
            a("s_waitcnt lgkmcnt(0)")
            a("s_mov_b64 exec, -1")
            a("v_readfirstlane_b32 s69, v%d" % (T + 2))
            a("s_nop 1")
            a("s_cmp_lg_u32 s69, 3")
            a("s_cbranch_scc1 %s" % l)
            a("s_lshl_b32 s69, s4, 5")
            a("s_add_u32 s69, s69, s5")
            a("s_lshl_b32 s69, s69, 2")
            a("s_add_u32 s69, s69, %d" % WS_FH)
            self.flag_set("s69", T)
            a.lab(l)
        self.stamp(4)

    def lds_inc(self, addr, vt):
        a = self.a
        a("v_mov_b32 v%d, %d" % (vt, addr))
        a("v_mov_b32 v%d, 1" % (vt + 1))
        a("s_mov_b64 exec, 1")
        a("ds_add_u32 v%d, v%d" % (vt, vt + 1))
        a("s_mov_b64 exec, -1")

    def lds_spin(self, addr, vt, val=1, treg=None):
        a = self.a
        st = "s78" if treg is None else "s68"
        lp = self.newlab("ls"); ld = self.newlab("ld")
        a("v_mov_b32 v%d, %d" % (vt, addr))
        a("s_mov_b32 s69, 0")
        a.lab(lp)
        a("ds_read_b32 v%d, v%d" % (vt + 1, vt))
        a("s_waitcnt lgkmcnt(0)")
        a("v_readfirstlane_b32 %s, v%d" % (st, vt + 1))
        a("s_nop 1")
        a("s_cmp_eq_u32 %s, %d" % (st, val))
        a("s_cbranch_scc1 %s" % ld)
        a("s_add_u32 s69, s69, 1")
        a("s_cmp_lt_u32 s69, 0x400000")
        a("s_cbranch_scc0 %s" % ld)
        a("s_sleep 1")
        a("s_branch %s" % lp)
        a.lab(ld)

    def s_kgen_phase1(self):
        a = self.a
        NCH = 8
        chunks = [[] for _ in range(NCH)]
        if "ssm" in self.ph:
            a("s_lshl_b32 s50, s66, 8")
            a("s_add_u32 s50, s50, s2")
            a("s_min_u32 s50, s50, 639")
            self.kgen_bases()
            if "kghead" in self.ph:
                kg = self.capture(lambda: self.kgen("head"))
                if "bigI0" in self.ph:
                    first = min(len(kg), 140 if "I0s" in self.ph else 230)
                    rest = kg[first:]
                    per = (len(rest) + NCH - 1) // NCH
                    chunk0 = kg[:first]
                    chunks = [rest[i * per:(i + 1) * per] for i in range(NCH)]
                else:
                    per = (len(kg) + NCH - 1) // NCH
                    chunks = [kg[i * per:(i + 1) * per] for i in range(NCH)]
        self.stamp(5)
        if "prioS" in self.ph: a("s_setprio 2")
        if "nobpre" not in self.ph: a("s_barrier")
        pw = "pwarm" in self.ph
        if "ssm" in self.ph and pw: self.ssm_param_warm()
        if "ssm" in self.ph and "kghead" in self.ph and not pw: self.ssm_param_loads(slots=((0, 1) if "kg2" in self.ph else (0,)))
        a("s_barrier")
        if "ssm" in self.ph and pw:
            a("s_waitcnt lgkmcnt(0)")
            self.ssm_param_loads()
        self.stamp(1)
        if "bigI0" in self.ph and "kghead" in self.ph:
            a("s_waitcnt vmcnt(0)")
            a.ext(chunk0)
        for kk in range(10):
            if not (kk == 9 and self.fused()): a("s_barrier")
            if kk == 1 and "kghead" in self.ph and "bigI0" not in self.ph: a("s_waitcnt vmcnt(0)")
            if kk == 7 and "ssm" in self.ph and not pw:
                if "kghead" in self.ph: self.ssm_param_loads(slots=((2,) if "kg2" in self.ph else (1, 2)), scalars=False)
                else: self.ssm_param_loads()
            if "bigI0" in self.ph:
                if kk < NCH: a.ext(chunks[kk])
            elif 1 <= kk <= NCH: a.ext(chunks[kk - 1])
        self.stamp(2)

    def side_setup(self):
        a = self.a
        a("s_mov_b32 s67, 52429")
        a("s_movk_i32 s68, 1280")
        for i in range(5):
            a("v_add_u32 v1, %d, v0" % (64 * i))
            a("v_mul_lo_u32 v2, v1, s67")
            a("v_lshrrev_b32 v2, 19, v2")
            a("v_mul_u32_u24 v3, 10, v2")
            a("v_sub_u32 v3, v1, v3")
            a("v_mul_lo_u32 v2, v2, s68")
            a("v_lshl_add_u32 v%d, v3, 4, v2" % (230 + i))
        a("v_lshrrev_b32 v1, 4, v0")
        a("v_and_b32 v2, 15, v0")
        a("v_lshrrev_b32 v3, 2, v2")
        a("v_lshl_add_u32 v4, v1, 2, v3")
        a("v_mul_u32_u24 v4, 160, v4")
        a("v_add_u32 v4, %d, v4" % (STAGE if "wdlate" in self.ph else LDS_WDS_EARLY))
        a("v_and_b32 v5, 3, v0")
        a("v_lshl_add_u32 v235, v5, 4, v4")
        a("v_lshl_add_u32 v236, v5, 3, v4")
        a("v_lshlrev_b32 v237, 4, v0")
        a("v_lshlrev_b32 v241, 2, v0")
        a("v_lshl_add_u32 v4, v1, 3, v3")
        a("v_lshlrev_b32 v4, 7, v4")
        a("v_bfe_u32 v5, v0, 1, 1")
        a("v_lshrrev_b32 v6, 1, v3")
        a("v_xor_b32 v5, v5, v6")
        a("v_lshl_add_u32 v4, v5, 4, v4")
        a("v_and_b32 v5, 1, v0")
        a("v_lshl_add_u32 v4, v5, 3, v4")
        a("v_and_b32 v5, 1, v1")
        a("v_lshl_add_u32 v238, v5, 6, v4")
        a("v_xor_b32 v5, 1, v5")
        a("v_lshl_add_u32 v239, v5, 6, v4")
        a("v_mul_u32_u24 v240, %d, v2" % ROWS)
        a("v_lshl_add_u32 v240, v1, 4, v240")
        a("s_add_u32 s51, s2, 128")
        a("s_cmp_ge_u32 s2, 128")
        a("s_cselect_b32 s51, s51, 999")
        a("s_lshr_b32 s52, s5, 1")
        a("s_add_u32 s53, s52, 8")
        a("s_cmp_lt_u32 s5, 4")
        a("s_cselect_b32 s53, s53, 99")
    def wd_load(self, ureg, scr):
        a = self.a
        if "nowd" in self.ph: return
        a("s_lshr_b32 s67, %s, 3" % ureg)
        a("s_and_b32 s68, %s, 7" % ureg)
        a("s_mul_i32 s69, s67, %d" % (32 * 1280))
        a("s_mul_i32 s67, s68, 160")
        a("s_add_u32 s69, s69, s67")
        for i in range(5):
            a("s_mov_b32 m0, %d" % ((STAGE if "wdlate" in self.ph else LDS_WDS_EARLY) + scr + 1024 * i))
            a("s_nop 0")
            a("buffer_load_dwordx4 v%d, s[28:31], s69 offen lds" % (230 + i))
    def wd_store(self, ureg, scr, R=160):
        a = self.a
        if "nowd" in self.ph: return
        for dt in range(5):
            for h in range(2):
                if dt < 4: ad, off = 235, 64 * (dt >> 1) + 8 * (dt & 1) + 2560 * h
                else: ad, off = 236, 128 + 2560 * h
                a("ds_read_b64_tr_b16 v[%d:%d], v%d offset:%d" % (R + 4 * dt + 2 * h, R + 1 + 4 * dt + 2 * h, ad, off + scr))
        a("s_lshr_b32 s67, %s, 3" % ureg)
        a("s_and_b32 s68, %s, 7" % ureg)
        a("s_mul_i32 s68, s68, 48")
        a("s_add_u32 s67, s67, s68")
        a("s_mul_i32 s67, s67, 5120")
        a("s_add_u32 s67, s67, %d" % WS_WD)
        a("s_add_u32 s68, s67, 4096")
        a("s_waitcnt lgkmcnt(0)")
        for dt in range(5):
            if dt < 4: a("buffer_store_dwordx4 v[%d:%d], v237, s[20:23], s67 offen offset:%d sc1" % (R + 4 * dt, R + 3 + 4 * dt, 1024 * dt))
            else: a("buffer_store_dwordx4 v[%d:%d], v237, s[20:23], s68 offen sc1" % (R + 4 * dt, R + 3 + 4 * dt))
    def gate_load(self):
        a = self.a
        a("v_and_b32 v1, 15, v0")
        a("v_lshlrev_b32 v1, 4, v1")
        for j in range(5):
            a("global_load_dwordx4 v[%d:%d], v1, s[%d:%d] offset:%d" % (8 + 4 * j, 11 + 4 * j, P_GW, P_GW + 1, 256 * j))
        a("v_lshrrev_b32 v2, 4, v0")
        a("s_movk_i32 s67, 1280")
        a("v_mul_lo_u32 v2, v2, s67")
        a("v_add_u32 v2, v2, v1")
        a("s_lshl_b32 s67, s2, 3")
        a("s_mul_i32 s67, s67, 1280")
        for half in range(2):
            for j in range(5):
                r = 28 + 20 * half + 4 * j
                a("buffer_load_dwordx4 v[%d:%d], v2, s[8:11], s67 offen offset:%d" % (r, r + 3, 256 * j))
            if half == 0: a("s_add_u32 s67, s67, %d" % (4 * 1280))
    def gate_compute(self):
        a = self.a
        R = 68
        for i in range(4): a("v_mov_b32 v%d, 0" % (R + i))
        for j in range(5):
            for e in range(4):
                for half in range(2):
                    acc = R + half + 2 * (e & 1)
                    a("v_dot2_f32_bf16 v%d, v%d, v%d, v%d" % (acc, 28 + 20 * half + 4 * j + e, 8 + 4 * j + e, acc))
        a("s_nop 2")
        a("v_add_f32 v%d, v%d, v%d" % (R, R, R + 2))
        a("v_add_f32 v%d, v%d, v%d" % (R + 1, R + 1, R + 3))
        a("s_nop 0")
        for ctl in ("row_shr:1", "row_shr:2", "row_shr:4", "row_shr:8"):
            for i in range(2):
                a("v_add_f32_dpp v%d, v%d, v%d %s row_mask:0xf bank_mask:0xf bound_ctrl:1" % (R + i, R + i, R + i, ctl))
            a("s_nop 0")
        for i in range(2): a("v_mul_f32 v%d, 0xbfb8aa3b, v%d" % (R + i, R + i))
        for i in range(2): a("v_exp_f32 v%d, v%d" % (R + i, R + i))
        a("s_nop 0")
        for i in range(2): a("v_add_f32 v%d, 1.0, v%d" % (R + i, R + i))
        for i in range(2): a("v_rcp_f32 v%d, v%d" % (R + i, R + i))
        a("s_lshl_b32 s67, s2, 5")
        a("s_add_u32 s67, s67, %d" % WS_G)
        a("v_lshrrev_b32 v1, 4, v0")
        a("v_lshlrev_b32 v1, 2, v1")
        a("s_mov_b32 exec_lo, 0x80008000")
        a("s_mov_b32 exec_hi, 0x80008000")
        a("buffer_store_dword v%d, v1, s[20:23], s67 offen sc1" % R)
        a("buffer_store_dword v%d, v1, s[20:23], s67 offen offset:16 sc1" % (R + 1))
        a("s_mov_b64 exec, -1")
    def ut_read(self, chunk_reg, stage_base, H):
        a = self.a
        if "noutr" in self.ph: return
        a("s_and_b32 s67, %s, 1" % chunk_reg)
        a("s_cmp_eq_u32 s67, 0")
        a("s_cselect_b64 vcc, -1, 0")
        a("s_nop 0")
        a("v_cndmask_b32 v4, v239, v238, vcc")
        a("v_add_u32 v4, %d, v4" % stage_base)
        for aa in range(2):
            for it in range(4):
                for hh in range(2):
                    r = H + (aa * 4 + it) * 4 + 2 * hh
                    a("ds_read_b64_tr_b16 v[%d:%d], v4 offset:%d" % (r, r + 1, 4096 * it + 512 * hh + 32 * (aa ^ hh)))
        a("s_waitcnt lgkmcnt(0)")
    def utx_load(self, chunk_reg):
        a = self.a
        a("v_lshrrev_b32 v4, 2, v0")
        a("v_mul_u32_u24 v4, 1280, v4")
        a("v_and_b32 v5, 3, v0")
        a("v_lshl_add_u32 v4, v5, 4, v4")
        a("s_mul_i32 s67, s4, %d" % (128 * 1280))
        a("s_lshl_b32 s68, %s, 6" % chunk_reg)
        a("s_add_u32 s67, s67, s68")
        for i in range(8):
            a("s_mov_b32 m0, %d" % (LDS_WDS_EARLY + 1024 * i))
            a("s_nop 0")
            a("buffer_load_dwordx4 v4, s[8:11], s67 offen lds")
            if i < 7: a("s_add_u32 s67, s67, %d" % (16 * 1280))
    def utx_read(self, H):
        a = self.a
        a("v_lshrrev_b32 v4, 4, v0")
        a("v_and_b32 v5, 15, v0")
        a("v_lshrrev_b32 v5, 2, v5")
        a("v_lshl_add_u32 v4, v4, 3, v5")
        a("v_lshlrev_b32 v4, 6, v4")
        a("v_and_b32 v5, 3, v0")
        a("v_lshl_add_u32 v4, v5, 3, v4")
        a("v_add_u32 v4, %d, v4" % LDS_WDS_EARLY)
        for aa in range(2):
            for it in range(4):
                for hh in range(2):
                    r = H + (aa * 4 + it) * 4 + 2 * hh
                    a("ds_read_b64_tr_b16 v[%d:%d], v4 offset:%d" % (r, r + 1, 64 * (32 * it + 4 * hh) + 32 * aa))
        a("s_waitcnt lgkmcnt(0)")

    def ut_store(self, chunk_reg, H):
        a = self.a
        if "nout" in self.ph: return
        a("s_mul_i32 s67, %s, %d" % (chunk_reg, 32 * ROWS))
        a("s_lshl_b32 s68, s4, 8")
        a("s_add_u32 s67, s67, s68")
        a("s_add_u32 s67, s67, %d" % WS_UT)
        a("s_add_u32 s68, s67, %d" % (16 * ROWS))
        for aa in range(2):
            for it in range(4):
                r = H + (aa * 4 + it) * 4
                a("buffer_store_dwordx4 v[%d:%d], v240, s[20:23], s%d offen offset:%d sc1" % (r, r + 3, 67 + aa, 64 * it))

    def pretouch(self):
        a = self.a
        a("v_and_b32 v1, 7, v0")
        a("v_lshlrev_b32 v1, 21, v1")
        a("buffer_load_dword v63, v1, s[20:23], 0 offen")
        a("v_and_b32 v1, 1, v0")
        a("v_lshlrev_b32 v1, 21, v1")
        a("buffer_load_dword v63, v1, s[24:27], 0 offen")
    def warm_inputs(self):
        a = self.a
        if "norot" in self.ph:
            a("s_mov_b32 s68, 9363")
            a("v_mul_lo_u32 v1, v0, s68")
            a("v_lshrrev_b32 v1, 16, v1")
            a("v_mul_u32_u24 v2, 7, v1")
            a("v_sub_u32 v2, v0, v2")
            a("v_mul_u32_u24 v1, 1280, v1")
            a("v_lshl_add_u32 v1, v2, 7, v1")
            a("s_mul_i32 s67, s2, 10240")
            a("s_add_u32 s67, s67, 384")
            a("s_mov_b32 exec_hi, 0x00ffffff")
            a("buffer_load_dword v244, v1, s[8:11], s67 offen")
            a("s_mov_b32 exec_hi, 0x000003ff")
            a("v_lshlrev_b32 v1, 7, v0")
            a("s_mul_i32 s67, s2, %d" % (42 * 128))
            a("s_add_u32 s67, s67, %d" % (192 * 3072))
            a("buffer_load_dword v244, v1, s[12:15], s67 offen")
            a("buffer_load_dword v244, v1, s[16:19], s67 offen")
            a("s_mov_b64 exec, -1")
            return
        a("v_lshlrev_b32 v1, 7, v0")
        if "warmx" in self.ph:
            a("s_mul_i32 s67, s2, 10240")
            a("buffer_load_dword v244, v1, s[8:11], s67 offen")
            a("s_add_u32 s68, s67, 8192")
            a("s_mov_b32 exec_hi, 0")
            a("s_mov_b32 exec_lo, 0xffff")
            a("buffer_load_dword v244, v1, s[8:11], s68 offen")
            a("s_mov_b32 exec_lo, -1")
        a("s_mov_b32 exec_hi, 0x0fffffff")
        a("s_mul_i32 s67, s2, 7680")
        a("buffer_load_dword v244, v1, s[12:15], s67 offen")
        a("buffer_load_dword v244, v1, s[16:19], s67 offen")
        if "warm2" in self.ph:
            a("buffer_load_dword v244, v1, s[28:31], s67 offen")
        a("s_mov_b64 exec, -1")
        if "warm2" in self.ph:
            a("v_and_b32 v1, 7, v0")
            a("v_lshlrev_b32 v1, 7, v1")
            a("s_mul_i32 s67, s2, 960")
            a("v_add_u32 v1, s67, v1")
            a("v_min_u32 v1, %d, v1" % (245760 - 4))
            a("v_lshrrev_b32 v2, 3, v0")
            a("v_mov_b32 v4, s%d" % P_ARE); a("v_mov_b32 v5, s%d" % (P_ARE + 1))
            for k, p in enumerate((P_AIM, P_BRE, P_BIM, P_CRE, P_CIM)):
                a("v_cmp_eq_u32 vcc, %d, v2" % (k + 1))
                a("v_mov_b32 v6, s%d" % p); a("v_mov_b32 v7, s%d" % (p + 1))
                a("v_cndmask_b32 v4, v4, v6, vcc")
                a("v_cndmask_b32 v5, v5, v7, vcc")
            a("v_add_co_u32 v4, vcc, v4, v1")
            a("s_nop 1")
            a("v_addc_co_u32 v5, vcc, 0, v5, vcc")
            a("global_load_dword v244, v[4:5], off")

    def warm_code(self, early=False):
        a = self.a
        n = self.name
        l = self.newlab("pc"); l2 = self.newlab("pc")
        a("s_getpc_b64 s[68:69]")
        a.lab(l)
        a("s_sub_u32 s68, s68, %s-%s" % (l, n))
        a("s_subb_u32 s69, s69, 0")
        a("s_mov_b32 s67, (%s_end-%s+4095)/4096" % (n, n))
        a("s_lshr_b32 s70, s2, 3")
        a("s_mul_i32 s70, s70, s67")
        a("v_add_u32 v1, s70, v0")
        a("v_lshlrev_b32 v1, 7, v1")
        a("v_min_u32 v1, %s_end-%s, v1" % (n, n))
        a("v_cmp_gt_u32 vcc, s67, v0")
        a("s_and_saveexec_b64 s[70:71], vcc")
        a("s_cbranch_execz %s" % l2)
        a("global_load_dword v244, v1, s[68:69]")
        a.lab(l2)
        a("s_mov_b64 exec, s[70:71]")

    def smem_warm(self, part):
        a = self.a
        if part == 0:
            a("s_mul_i32 s67, s2, 7680")
            a("s_add_u32 s70, s%d, s67" % P_WD)
            a("s_addc_u32 s71, s%d, 0" % (P_WD + 1))
        for r in range(15 * part, 15 * part + 15):
            a("s_load_dword s74, s[70:71], %d" % (r * 128))

    def s3w_setup(self):
        a = self.a
        T = 1; VO = 245
        a("s_mul_i32 s69, s5, 192")
        a("s_mov_b32 s78, 43691")
        a("s_movk_i32 s79, 3072")
        for i in range(3):
            a("v_add_u32 v%d, %d, v0" % (T, 64 * i))
            a("v_mul_lo_u32 v%d, v%d, s78" % (T + 1, T))
            a("v_lshrrev_b32 v%d, 19, v%d" % (T + 1, T + 1))
            a("v_mul_u32_u24 v%d, 12, v%d" % (T + 2, T + 1))
            a("v_sub_u32 v%d, v%d, v%d" % (T + 2, T, T + 2))
            a("v_lshrrev_b32 v%d, 2, v%d" % (T + 3, T + 1))
            a("v_and_b32 v%d, 2, v%d" % (T + 3, T + 3))
            a("v_xor_b32 v%d, v%d, v%d" % (T + 2, T + 2, T + 3))
            a("v_mul_lo_u32 v%d, v%d, s79" % (T + 1, T + 1))
            a("v_lshl_add_u32 v%d, v%d, 4, v%d" % (T + 1, T + 2, T + 1))
            a("v_add_u32 v%d, s69, v%d" % (VO + i, T + 1))
        self.rot_r("s54", "s67")
    def s3w_younger0(self):
        n = 24 + (1 if self.fused() else 0)
        if "wdlate" not in self.ph: n += 5
        return n
    def s3w_dma(self, st):
        a = self.a
        VO = 245
        base = (st % 3) * STAGE
        a("s_mul_i32 s55, s54, 196608")
        a("s_add_u32 s54, s54, 1")
        a("s_cmp_eq_u32 s54, 10")
        a("s_cselect_b32 s54, 0, s54")
        for g4 in range(4):
            if g4: a("s_add_u32 s55, s55, 49152")
            for mat, srd in ((0, "s[12:15]"), (1, "s[16:19]")):
                for i in range(3):
                    a("s_mov_b32 m0, %d" % (base + (ST_WG if mat == 0 else ST_WU) + 3072 * g4 + 1024 * i))
                    a("s_nop 0")
                    a("buffer_load_dwordx4 v%d, %s, s55 offen lds" % (VO + i, srd))

    def s_side(self):
        a = self.a
        if "noside" in self.ph:
            for b in range(11 if self.fused() else 12): a("s_barrier")
            return
        HA, HB = 100, 132
        def cond_b(fn):
            l = self.newlab("wb")
            a("s_cmp_ge_u32 s51, 384")
            a("s_cbranch_scc1 %s" % l)
            fn()
            a.lab(l)
        if "warm0" in self.ph:
            self.warm_inputs()
            if "warmc" in self.ph: self.warm_code()
        s3w = "s3w" in self.ph
        if s3w:
            self.s3w_setup()
            self.s3w_dma(0)
            self.s3w_dma(1)
        self.side_setup()
        norot = "norot" in self.ph
        if norot:
            a("s_mov_b32 s50, s5")
            a("s_add_u32 s53, s5, 16")
            a("s_cmp_lt_u32 s5, 4")
            a("s_cselect_b32 s53, s53, 99")
        else:
            self.rot_r("s50", "s67")
            a("s_and_b32 s68, s5, 1")
            a("s_lshl_b32 s50, s50, 1")
            a("s_add_u32 s50, s50, s68")
            a("s_add_u32 s53, s50, 2")
            a("s_lshr_b32 s67, s5, 1")
            a("s_and_b32 s67, s67, 3")
            a("s_cmp_eq_u32 s67, 0")
            a("s_cselect_b32 s53, s53, 99")
        if self.fused():
            a("v_mov_b32 v1, %d" % LDS_CNT)
            a("v_mov_b32 v2, 0")
            a("v_mov_b32 v3, 0")
            a("ds_write_b64 v1, v[2:3]")
            a("ds_write_b64 v1, v[2:3] offset:8")
            a("ds_write_b64 v1, v[2:3] offset:16")
            a("ds_write_b32 v1, v2 offset:24")
        self.stamp(5)
        if "nobpre" not in self.ph: a("s_barrier")
        if self.fused(): self.nonce_load()
        if norot: self.utx_load("s50")
        wdlate = "wdlate" in self.ph
        wdmid = "wdmid" in self.ph
        if not wdlate and not wdmid:
            self.wd_load("s2", 0)
            cond_b(lambda: self.wd_load("s51", 5120))
        if "warm0" not in self.ph:
            if "warmc" in self.ph: self.warm_code()
            if ("warm" in self.ph or "warm2" in self.ph) and "warmB0" not in self.ph and "warmB1" not in self.ph and not s3w: self.warm_inputs()
        if s3w: a("s_waitcnt vmcnt(%d)" % self.s3w_younger0())
        a("s_barrier")
        if s3w:
            self.s3w_dma(2)
            self.warm_inputs()
        if "warmB0" in self.ph: self.warm_inputs()
        self.stamp(1)
        if norot:
            a("s_waitcnt vmcnt(3)")
            self.utx_read(HA)
            def second():
                self.utx_load("s53")
            l_ = self.newlab("ux")
            a("s_cmp_ge_u32 s53, 20")
            a("s_cbranch_scc1 %s" % l_)
            second()
            a.lab(l_)
        else:
            self.ut_read("s50", 0, HA)
        def uflag(creg):
            a("s_lshl_b32 s69, %s, 5" % creg)
            a("s_add_u32 s69, s69, s4")
            a("s_lshl_b32 s69, s69, 2")
            a("s_add_u32 s69, s69, %d" % WS_FU)
            self.flag_set("s69", 2)
        def n_lt4(fn):
            l = self.newlab("ut")
            a("s_cmp_ge_u32 s53, 20")
            a("s_cbranch_scc1 %s" % l)
            fn()
            a.lab(l)
        def wflag(ureg):
            a("s_and_b32 s68, %s, 7" % ureg)
            a("s_lshl_b32 s68, s68, 8")
            a("s_lshr_b32 s69, %s, 3" % ureg)
            a("s_lshl_b32 s69, s69, 2")
            a("s_add_u32 s69, s69, s68")
            a("s_add_u32 s69, s69, %d" % WS_FW)
            self.flag_set("s69", 2)
        early = "utearly" in self.ph
        epb = "epb" in self.ph
        if early: self.ut_store("s50", HA)
        for kk in range(10):
            if s3w:
                if kk == 0: a("s_waitcnt vmcnt(26)")
                elif kk <= 7: a("s_waitcnt vmcnt(24)")
                elif kk == 8: a("s_waitcnt vmcnt(%d)" % (6 if (wdlate and self.fused()) else 0))
            if not (kk == 9 and self.fused()): a("s_barrier")
            if s3w and kk + 3 < 10 and kk not in (0, 1): self.s3w_dma(kk + 3)
            if kk == 0:
                if "warmB1" in self.ph: self.warm_inputs()
                if norot:
                    def rd2():
                        a("s_waitcnt vmcnt(0)")
                        self.utx_read(HB)
                    n_lt4(rd2)
                else:
                    n_lt4(lambda: self.ut_read("s53", 1 * STAGE, HB))
                if early: n_lt4(lambda: self.ut_store("s53", HB))
                if epb:
                    a("s_waitcnt vmcnt(%d)" % (8 if early else 0))
                    self.wd_store("s2", 0)
                    cond_b(lambda: self.wd_store("s51", 5120, 180))
            if kk == 1:
                if not early:
                    self.ut_store("s50", HA)
                    n_lt4(lambda: self.ut_store("s53", HB))
            if s3w and kk in (0, 1): self.s3w_dma(kk + 3)
            if kk == 3:
                a("s_waitcnt vmcnt(%d)" % (48 if s3w else 0))
                if self.fused():
                    self.nonce_publish_local()
                    if "uflate" not in self.ph:
                        uflag("s50")
                        n_lt4(lambda: uflag("s53"))
                    if epb:
                        wflag("s2")
                        cond_b(lambda: wflag("s51"))
            if kk == 7 and "uflate" in self.ph and self.fused():
                uflag("s50")
                n_lt4(lambda: uflag("s53"))
            if "swarm" in self.ph and 2 <= kk <= 5:
                self.smem_warm(kk - 2)
            if kk == 6 and wdmid:
                if "swarm" in self.ph: a("s_waitcnt lgkmcnt(0)")
                self.wd_load("s2", 0)
                cond_b(lambda: self.wd_load("s51", 5120))
            if kk == 7 and wdmid: a("s_waitcnt vmcnt(0)")
            if kk == 7 and "s3prio" in self.ph: a("s_setprio 3")
            if kk == 7 and epb:
                if self.fused():
                    self.s3_uw_look()
                    a("s_lshl_b32 s78, s7, 8")
                    a("s_add_u32 s78, s78, %d" % WS_FW)
                    self.look_line("s78", 48, 94)
                self.gate_load()
            if kk == 7 and not wdlate and not epb:
                if self.fused(): self.s3_uw_look()
                self.wd_store("s2", 0)
                cond_b(lambda: self.wd_store("s51", 5120, 180))
                self.gate_load()
            if kk == 7 and wdlate:
                if "swarm" in self.ph: a("s_waitcnt lgkmcnt(0)")
                if self.fused(): self.s3_uw_look()
                self.wd_load("s2", 0)
                cond_b(lambda: self.wd_load("s51", 5120))
            if kk == 8:
                if self.fused():
                    l = self.newlab("uw")
                    if epb:
                        self.check_line("s78", 94, 15)
                        a("v_mov_b32 v1, %d" % LDS_WOK)
                        a("v_mov_b32 v2, 1")
                        a("ds_write_b32 v1, v2")
                    else:
                        a("s_waitcnt vmcnt(%d)" % (5 if wdlate else 20))
                    a("v_cmp_eq_u32 vcc, s64, v92")
                    a("s_nop 1")
                    a("s_cmp_eq_u64 vcc, -1")
                    a("s_cbranch_scc1 %s" % l)
                    self.poll(self.s3_uw_loads, [92], 6, sleep=2)
                    a.lab(l)
                    self.s3_u_loads()
                    a("v_mov_b32 v1, %d" % LDS_UOK)
                    a("v_mov_b32 v2, 3")
                    a("ds_write_b32 v1, v2")
                    if wdlate: a("s_waitcnt vmcnt(12)")
                elif wdlate:
                    a("s_waitcnt vmcnt(0)")
                if wdlate:
                    self.wd_store("s2", 0)
                    cond_b(lambda: self.wd_store("s51", 5120, 180))
                    self.gate_load()
        self.stamp(2)
        if self.fused():
            if "s3prio" not in self.ph: a("s_setprio 2")
            if epb:
                self.lds_spin(LDS_SFREE, 2, 4)
                a("s_waitcnt vmcnt(0)")
            else:
                if wdlate: a("s_waitcnt vmcnt(15)")
                else: a("s_waitcnt vmcnt(27)")
                wflag("s2")
                cond_b(lambda: wflag("s51"))
                self.lds_spin(LDS_SFREE, 2, 4)
                if not wdlate: a("s_waitcnt vmcnt(1)")
        self.stamp(3)
        if self.fused():
            self.s3_u_copies(extra=None)
            a("s_waitcnt lgkmcnt(0)")
            a("v_mov_b32 v1, %d" % LDS_UCOK)
            a("v_mov_b32 v2, 1")
            a("ds_write_b32 v1, v2")
            a("s_setprio 0")
            self.stamp(4)
            a("s_waitcnt vmcnt(0)")
            self.gate_compute()
            a("s_waitcnt vmcnt(0)")
            a("s_lshl_b32 s69, s2, 2")
            a("s_add_u32 s69, s69, %d" % WS_FG)
            self.flag_set("s69", 2)
        else:
            a("s_waitcnt vmcnt(0)")
            self.gate_compute()
            a("s_waitcnt vmcnt(0)")
            self.stamp(4)

    def s3_uw_addr(self):
        a = self.a
        a("v_lshrrev_b32 v1, 4, v0")
        a("v_lshlrev_b32 v1, 8, v1")
        a("v_add_u32 v1, s2, v1")
        a("v_mov_b32 v2, s2")
        a("v_cmp_gt_u32 vcc, 640, v1")
        a("s_nop 1")
        a("v_cndmask_b32 v1, v2, v1, vcc")
        a("v_lshrrev_b32 v1, 5, v1")
        a("v_lshlrev_b32 v1, 7, v1")
        a("v_and_b32 v2, 15, v0")
        a("v_lshl_add_u32 v1, v2, 2, v1")
        a("v_add_u32 v90, %d, v1" % WS_FU)
    def s3_uw_loads(self):
        a = self.a
        a("buffer_load_dword v92, v90, s[20:23], 0 offen sc1")
    def s3_uw_look(self):
        self.s3_uw_addr()
        self.s3_uw_loads()
    def s3_uw_check(self):
        a = self.a
        l = self.newlab("uw")
        a("s_waitcnt vmcnt(0)")
        a("v_cmp_eq_u32 vcc, s64, v92")
        a("v_cmp_eq_u32 s[76:77], s64, v93")
        a("s_nop 1")
        a("s_and_b64 vcc, vcc, s[76:77]")
        a("s_cmp_eq_u64 vcc, -1")
        a("s_cbranch_scc1 %s" % l)
        self.poll(self.s3_uw_loads, [92, 93], 6, sleep=2)
        a.lab(l)

    def s3_channels(self):
        a = self.a
        a("s_mov_b32 s70, s2")
        a("s_add_u32 s71, s2, 256")
        a("s_add_u32 s72, s2, 512")
        a("s_cmp_lt_u32 s72, 640")
        a("s_cselect_b32 s72, s72, s2")

    def s3_u_loads(self):
        a = self.a
        self.s3_channels()
        a("v_lshlrev_b32 v1, 4, v0")
        for sg in range(3):
            a("s_mul_i32 s67, s%d, %d" % (70 + sg, ROWS))
            a("s_add_u32 s67, s67, %d" % WS_UT)
            for i in range(4):
                r = 100 + 16 * sg + 4 * i
                a("buffer_load_dwordx4 v[%d:%d], v1, s[20:23], s67 offen offset:%d sc1" % (r, r + 3, 1024 * i))

    def s3_u_copies(self, extra=0):
        a = self.a
        Z = 150
        for i in range(4): a("v_mov_b32 v%d, 0" % (Z + i))
        a("v_lshlrev_b32 v2, 4, v0")
        a("v_cmp_eq_u32 vcc, 0, v0")
        for sg in range(3):
            base = LDS_UC + sg * UC_SZ
            for b in range(4):
                a("ds_write_b128 v2, v[%d:%d] offset:%d" % (Z, Z + 3, base + b * UC_STRIDE))
        for sg in range(3):
            base = LDS_UC + sg * UC_SZ
            if extra is not None: a("s_waitcnt vmcnt(%d)" % (4 * (2 - sg) + extra))
            for i in range(4):
                D = 100 + 16 * sg + 4 * i
                R3, R2 = 154 + 2 * (i & 1), 155 + 2 * (i & 1)
                Q3, Q2 = 154 + 2 * ((i + 1) & 1), 155 + 2 * ((i + 1) & 1)
                T1 = 160 + 12 * (i & 1); T0 = T1 + 4; T2 = T1 + 8
                P2 = 158
                a("v_mov_b32_dpp v%d, v%d wave_ror:1 row_mask:0xf bank_mask:0xf" % (R3, D + 3))
                a("v_mov_b32_dpp v%d, v%d wave_ror:1 row_mask:0xf bank_mask:0xf" % (R2, D + 2))
                a("v_mov_b32 v%d, v%d" % (T1 + 1, D))
                a("v_mov_b32 v%d, v%d" % (T1 + 2, D + 1))
                a("v_mov_b32 v%d, v%d" % (T1 + 3, D + 2))
                if i == 0:
                    a("v_cndmask_b32 v%d, v%d, v%d, vcc" % (T1, R3, Z))
                    a("v_cndmask_b32 v%d, v%d, v%d, vcc" % (P2, R2, Z))
                else:
                    a("v_cndmask_b32 v%d, v%d, v%d, vcc" % (T1, R3, Q3))
                    a("v_cndmask_b32 v%d, v%d, v%d, vcc" % (P2, R2, Q2))
                off = base + 4 * (96 + 256 * i)
                a("ds_write_b128 v2, v[%d:%d] offset:%d" % (D, D + 3, off + 3 * UC_STRIDE))
                a("v_alignbit_b32 v%d, v%d, v%d, 16" % (T0, T1, P2))
                a("v_alignbit_b32 v%d, v%d, v%d, 16" % (T0 + 1, D, T1))
                a("v_alignbit_b32 v%d, v%d, v%d, 16" % (T0 + 2, D + 1, D))
                a("v_alignbit_b32 v%d, v%d, v%d, 16" % (T0 + 3, D + 2, D + 1))
                a("ds_write_b128 v2, v[%d:%d] offset:%d" % (T1, T1 + 3, off + 1 * UC_STRIDE))
                a("v_mov_b32 v%d, v%d" % (T2, T0 + 1))
                a("v_mov_b32 v%d, v%d" % (T2 + 1, T0 + 2))
                a("v_mov_b32 v%d, v%d" % (T2 + 2, T0 + 3))
                a("v_alignbit_b32 v%d, v%d, v%d, 16" % (T2 + 3, D + 3, D + 2))
                a("ds_write_b128 v2, v[%d:%d] offset:%d" % (T0, T0 + 3, off + 0 * UC_STRIDE))
                a("ds_write_b128 v2, v[%d:%d] offset:%d" % (T2, T2 + 3, off + 2 * UC_STRIDE))

    def s_phase1(self):
        a = self.a
        n = self.name
        a("s_sub_u32 s66, s3, 4")
        a("s_cmp_eq_u32 s66, 3")
        a("s_cbranch_scc1 %s_sj" % n)
        self.s_kgen_phase1()
        a("s_branch %s_p1done" % n)
        a.lab("%s_sj" % n)
        self.s_side()
        a.lab("%s_p1done" % n)

    def ssm_param_loads(self, slots=(0, 1, 2), scalars=True):
        a = self.a
        a("s_mul_i32 s67, s50, 384")
        a("v_lshl_add_u32 v1, v0, 1, s67")
        for sl in slots:
            for k, p in enumerate((P_ARE, P_AIM, P_BRE, P_BIM, P_CRE, P_CIM)):
                a("global_load_ushort v%d, v1, s[%d:%d] offset:%d" % (200 + 6 * sl + k, p, p + 1, 128 * sl))
        if scalars:
            a("s_lshl_b32 s67, s50, 1")
            a("v_mov_b32 v223, s67")
            a("global_load_ushort v218, v223, s[%d:%d]" % (P_LDT, P_LDT + 1))
            a("global_load_ushort v219, v223, s[%d:%d]" % (P_DSK, P_DSK + 1))

    def ssm_param_warm(self):
        a = self.a
        a("s_mul_i32 s67, s50, 384")
        for p in (P_ARE, P_AIM, P_BRE, P_BIM, P_CRE, P_CIM):
            a("s_add_u32 s68, s%d, s67" % p)
            a("s_addc_u32 s69, s%d, 0" % (p + 1))
            for i in range(3):
                a("s_load_dword s70, s[68:69], %d" % (128 * i))
        a("s_lshl_b32 s67, s50, 1")
        a("s_and_b32 s67, s67, 0xfffffffc")
        a("s_load_dword s70, s[%d:%d], s67" % (P_LDT, P_LDT + 1))
        a("s_load_dword s70, s[%d:%d], s67" % (P_DSK, P_DSK + 1))

    def kgen_bases(self):
        a = self.a
        a("s_mul_i32 s51, s66, %d" % TAB_SZ)
        a("s_add_u32 s51, s51, %d" % LDS_TAB)
        a("s_mul_i32 s52, s66, %d" % KR_SZ)
        a("s_add_u32 s52, s52, %d" % LDS_KR)

    def kgen(self, part="all"):
        a = self.a
        if part == "all": self.kgen_bases()
        self._kgen_body(part)

    def _kgen_body(self, part):
        a = self.a
        head = part in ("all", "head", "rest"); tail = part in ("all", "tail", "rest")
        real_a = a
        if not head: a = Asm()
        a("v_and_b32 v4, 15, v0")
        a("v_lshrrev_b32 v5, 4, v0")
        a("v_mul_u32_u24 v2, %d, v4" % TABROW)
        a("v_lshl_add_u32 v2, v5, 6, v2")
        a("v_add_u32 v2, s51, v2")
        a("v_and_b32 v6, 1, v5")
        a("v_lshl_add_u32 v3, v6, 3, v2")
        a("v_xor_b32 v6, 1, v6")
        a("v_lshl_add_u32 v2, v6, 3, v2")
        a("s_mov_b32 m0, s51")
        a("s_nop 0")
        if part == "all" or (part == "rest" and not self.fused()): a("s_waitcnt vmcnt(0)")
        a("v_lshlrev_b32 v218, 16, v218")
        a("v_lshlrev_b32 v219, 16, v219")
        a("v_mul_f32 v6, 0x3fb8aa3b, v218")
        a("s_mov_b32 s67, 0x3fb8aa3b")
        a("v_fma_f32 v7, v218, s67, -v6")
        a("v_fmac_f32 v7, 0x32a57060, v218")
        a("v_exp_f32 v6, v6")
        a("v_mul_f32 v7, 0x3f317218, v7")
        a("v_fma_f32 v6, v6, v7, v6")
        a("v_cvt_pk_bf16_f32 v6, v6, v6")
        a("v_lshlrev_b32 v218, 16, v6")
        W1, W16, W256, W512, W768, W1024 = 10, 12, 14, 16, 18, 20
        WX = 22
        CB = 24
        Y = 26; P = 28; TMP1 = 30; TMP2 = 32; TMP3 = 34
        PK = 36
        V = 50
        CV = 66
        YF = 76
        AF = 92
        ACC = 108
        nopk = (part == "head") and ("pkhead" not in self.ph)
        def cmul(out, x, w, t):
            if nopk:
                return ["v_mul_f32 v%d, v%d, v%d" % (t, x + 1, w + 1),
                        "v_mul_f32 v%d, v%d, v%d" % (t + 1, x, w + 1),
                        "v_fma_f32 v%d, v%d, v%d, -v%d" % (out, x, w, t),
                        "v_fma_f32 v%d, v%d, v%d, v%d" % (out + 1, x + 1, w, t + 1)]
            return ["v_pk_mul_f32 v[%d:%d], v[%d:%d], v[%d:%d] op_sel:[0,0] op_sel_hi:[0,1]" % (t, t + 1, x, x + 1, w, w + 1),
                    "v_pk_fma_f32 v[%d:%d], v[%d:%d], v[%d:%d], v[%d:%d] op_sel:[1,1,0] op_sel_hi:[1,0,1] neg_lo:[1,0,0]" % (out, out + 1, x, x + 1, w, w + 1, t, t + 1)]
        def zipl(*ls):
            o = []
            for i in range(max(len(l) for l in ls)):
                for l in ls:
                    if i < len(l): o.append(l[i])
            return o
        cvn = [0, 0]
        def wr(val, tile, row, neg, bank=0):
            c = CV + 4 * bank + (cvn[bank] % 4); cvn[bank] += 1
            return ["v_cvt_pk_bf16_f32 v%d, v%d, %sv%d" % (c, val, "-" if neg else "", val + 1),
                    "ds_write_addtid_b32 v%d offset:%d" % (c, tile * TABTILE + row * TABROW)]
        def frag_reads(dst, tile):
            L = []
            for kk in range(4):
                L.append("ds_read_b64 v[%d:%d], v3 offset:%d" % (dst + 4 * kk, dst + 4 * kk + 1, tile * TABTILE + 16 * kk))
                L.append("ds_read_b64 v[%d:%d], v2 offset:%d" % (dst + 4 * kk + 2, dst + 4 * kk + 3, tile * TABTILE + 16 * kk))
            return L
        def mm(t, first):
            L = []
            for kk in range(4):
                c = "0" if (first and kk == 0) else "v[%d:%d]" % (ACC + 4 * t, ACC + 4 * t + 3)
                L.append("v_mfma_f32_16x16x32_bf16 v[%d:%d], v[%d:%d], v[%d:%d], %s" % (ACC + 4 * t, ACC + 4 * t + 3, AF + 4 * kk, AF + 4 * kk + 3, YF + 4 * kk, YF + 4 * kk + 3, c))
            return L
        a = real_a
        nh = 2 if "kg2" in self.ph else 1
        slots = [0, 1, 2] if part in ("all", "rest") else (list(range(nh)) if part == "head" else list(range(nh, 3)))
        for sl in slots:
            if sl == 1 and part == "tail" and not self.fused(): a("s_waitcnt vmcnt(0)")
            if sl == 2 and part in ("rest", "tail"): self.stamp(3)
            if sl == 2 and "prioT" in self.ph: a("s_setprio 2")
            if sl == slots[0] and part in ("tail", "rest") and "prioT0" in self.ph: a("s_setprio 2")
            pr = 200 + 6 * sl
            for k in range(6): a("v_lshlrev_b32 v%d, 16, v%d" % (pr + k, pr + k))
            a("v_mul_f32 v6, v218, v%d" % pr)
            a("v_mul_f32 v7, v218, v%d" % (pr + 1))
            a("v_mul_f32 v6, 0x3fb8aa3b, v6")
            a("v_mul_f32 v7, 0.15915494, v7")
            a("v_mul_f32 v8, v218, v%d" % (pr + 2))
            a("v_mul_f32 v9, v218, v%d" % (pr + 3))
            a.ext(cmul(CB, pr + 4, 8, TMP1))
            for w, k in ((W1, 1.0), (W16, 16.0), (W256, 256.0)):
                if k == 1.0:
                    a("v_exp_f32 v%d, v6" % TMP2)
                    a("v_fract_f32 v%d, v7" % TMP3)
                else:
                    lit = "0x41800000" if k == 16.0 else "0x43800000"
                    a("v_mul_f32 v%d, %s, v6" % (TMP2, lit))
                    a("v_mul_f32 v%d, %s, v7" % (TMP3, lit))
                    a("v_exp_f32 v%d, v%d" % (TMP2, TMP2))
                    a("v_fract_f32 v%d, v%d" % (TMP3, TMP3))
                a("v_cos_f32 v%d, v%d" % (w, TMP3))
                a("v_sin_f32 v%d, v%d" % (w + 1, TMP3))
                a("s_nop 0")
                a("v_mul_f32 v%d, v%d, v%d" % (w, w, TMP2))
                a("v_mul_f32 v%d, v%d, v%d" % (w + 1, w + 1, TMP2))
            if sl != slots[0]:
                a("s_waitcnt lgkmcnt(0)")
                a.ext(pend_mm2)
            LY = ["v_mov_b32 v%d, v%d" % (Y, CB), "v_mov_b32 v%d, v%d" % (Y + 1, CB + 1)] + wr(Y, 0, 0, False)
            for j in range(1, 16):
                LY += cmul(Y, Y, W16, TMP1) + wr(Y, 0, j, False)
            LA = ["v_mov_b32 v%d, 1.0" % P, "v_mov_b32 v%d, 0" % (P + 1)] + wr(P, 1, 0, True, 1)
            cur = P
            for r in range(1, 16):
                if r == 1:
                    LA += ["v_mov_b32 v%d, v%d" % (P, W1), "v_mov_b32 v%d, v%d" % (P + 1, W1 + 1)]
                    cur = P
                else:
                    dst = PK + 2 * (r // 2 - 1) if r % 2 == 0 else P
                    LA += cmul(dst, cur, W1, TMP2)
                    cur = dst
                LA += wr(cur, 1, r, True, 1)
            a.ext(zipl(LY, LA))
            a.ext(cmul(W512, W256, W256, TMP1))
            a.ext(frag_reads(YF, 0)); a.ext(frag_reads(AF, 1))
            a.ext(zipl(cmul(W768, W512, W256, TMP1), cmul(W1024, W512, W512, TMP2)))
            def pk(i): return PK + 2 * (i // 2 - 1)
            vals = []
            A2 = []
            regs = []
            for r in range(8):
                if r == 0: regs.append(W256)
                else:
                    dst = V + 2 * (r - 1) if r < 8 else None
                    A2.append(cmul(dst, pk(2 * r), W256, TMP1 if r % 2 else TMP2)); regs.append(dst)
            a.ext(zipl(sum(A2[0::2], []), sum(A2[1::2], [])))
            a("s_waitcnt lgkmcnt(0)")
            m = mm(0, sl == 0)
            L = []
            for r in range(8): L += wr(regs[r], 1, r, True)
            a.ext(interleave(m, L))
            LA = []; LB = []
            for b in range(4):
                if b == 0:
                    LA += wr(W512, 1, 8, True); LB += wr(W768, 1, 12, True, 1)
                else:
                    LA += cmul(V, pk(4 * b), W512, TMP1) + wr(V, 1, 8 + b, True)
                    LB += cmul(V + 2, pk(4 * b), W768, TMP2) + wr(V + 2, 1, 12 + b, True, 1)
            a.ext(zipl(LA, LB))
            a.ext(frag_reads(AF, 1))
            a.ext(zipl(cmul(V, W1024, W256, TMP1), cmul(V + 2, W1024, W512, TMP2)))
            a.ext(zipl(cmul(V + 4, W1024, W768, TMP1), cmul(V + 6, W1024, W1024, TMP2)))
            ws = [W1024, V, V + 2, V + 4]
            a.ext(zipl(cmul(V + 8, ws[0], pk(8), TMP1), cmul(V + 10, ws[1], pk(8), TMP2)))
            a.ext(zipl(cmul(V + 12, ws[2], pk(8), TMP1), cmul(V + 14, ws[3], pk(8), TMP2)))
            a("s_waitcnt lgkmcnt(0)")
            m = mm(1, sl == 0)
            L = []
            for i in range(4):
                L += wr(ws[i], 1, 2 * i, True) + wr(V + 8 + 2 * i, 1, 2 * i + 1, True)
            L += wr(V + 6, 1, 8, True)
            a.ext(interleave(m, L))
            a.ext(frag_reads(AF, 1))
            pend_mm2 = mm(2, sl == 0)
            if sl == slots[-1]:
                a("s_waitcnt lgkmcnt(0)")
                a.ext(pend_mm2); pend_mm2 = None
        if not tail: return
        self.stamp(1)
        A0, A1, A2r = ACC, ACC + 4, ACC + 8
        a("v_cmp_eq_u32 vcc, 0, v0")
        a("v_and_b32 v4, 15, v0")
        a("v_lshrrev_b32 v5, 4, v0")
        a("v_cndmask_b32 v6, 0, v219, vcc")
        a("v_lshlrev_b32 v7, 5, v4")
        a("v_lshl_add_u32 v7, v5, 4, v7")
        a("v_lshlrev_b32 v8, 4, v4")
        a("v_lshl_add_u32 v8, v5, 8, v8")
        a("v_cmp_gt_u32 vcc, 2, v5")
        a("v_add_f32 v%d, v%d, v6" % (A0, A0))
        a("s_nop 0")
        a("v_cndmask_b32 v7, v8, v7, vcc")
        a("v_add_u32 v7, s51, v7")
        a("v_lshlrev_b32 v8, 3, v4")
        a("v_lshl_add_u32 v8, v5, 8, v8")
        a("v_add_u32 v8, s51, v8")
        a("s_nop 4")
        a("ds_write_b128 v7, v[%d:%d]" % (A1, A1 + 3))
        a("ds_write_b64 v8, v[%d:%d] offset:1024" % (A2r, A2r + 1))
        a("ds_write_b64 v8, v[%d:%d] offset:1152" % (A2r + 2, A2r + 3))
        a("v_cvt_pk_bf16_f32 v10, v%d, v%d" % (A0 + 3, A0 + 2))
        a("v_cvt_pk_bf16_f32 v11, v%d, v%d" % (A0 + 1, A0))
        a("v_lshlrev_b32 v9, 5, v4")
        a("v_lshl_add_u32 v9, v5, 3, v9")
        a("v_sub_u32 v9, 4088, v9")
        a("v_add_u32 v9, s52, v9")
        a("ds_write_b64 v9, v[10:11]")
        a("v_and_b32 v9, 31, v0")
        a("v_lshlrev_b32 v9, 2, v9")
        a("v_add_u32 v9, s52, v9")
        a("v_mov_b32 v12, 0")
        a("ds_write_b32 v9, v12 offset:4096")
        a("v_lshlrev_b32 v13, 4, v0")
        a("v_add_u32 v14, s51, v13")
        a("v_lshlrev_b32 v15, 3, v0")
        a("v_add_u32 v15, s51, v15")
        a("v_lshlrev_b32 v16, 2, v0")
        a("v_add_u32 v16, s51, v16")
        a("v_sub_u32 v13, s52, v13")
        a("s_waitcnt lgkmcnt(0)")
        a("ds_read_b128 v[20:23], v14")
        a("ds_read_b32 v24, v14 offset:16")
        a("ds_read_b64 v[26:27], v15 offset:512")
        a("ds_read_b32 v28, v15 offset:520")
        a("ds_read2_b32 v[30:31], v16 offset0:0 offset1:1")
        a.l.pop()
        a("v_add_u32 v17, 1024, v16")
        a("ds_read2_b32 v[30:31], v17 offset0:0 offset1:1")
        a("ds_read2_b32 v[32:33], v17 offset0:64 offset1:65")
        a("v_and_b32 v18, 1, v0")
        a("v_cmp_eq_u32 vcc, 1, v18")
        a("s_waitcnt lgkmcnt(0)")
        a("v_cvt_pk_bf16_f32 v36, v28, v28")
        a("v_cvt_pk_bf16_f32 v37, v27, v27")
        a("v_cvt_pk_bf16_f32 v38, v27, v26")
        a("v_cvt_pk_bf16_f32 v39, v26, v26")
        a("ds_write_b128 v13, v[36:39] offset:3056")
        for ps in range(2):
            v0_, v1_ = 30 + 2 * ps, 31 + 2 * ps
            o = 40 + 4 * ps
            a("v_cndmask_b32 v19, v%d, v%d, vcc" % (v0_, v1_))
            a("v_cvt_pk_bf16_f32 v%d, v%d, v%d" % (o, v1_, v1_))
            a("v_cvt_pk_bf16_f32 v%d, v%d, v19" % (o + 1, v1_))
            a("v_cvt_pk_bf16_f32 v%d, v%d, v%d" % (o + 2, v0_, v0_))
            a("v_mov_b32 v%d, v%d" % (o + 3, o + 2))
        a("ds_write_b128 v13, v[40:43] offset:2032")
        a("ds_write_b128 v13, v[44:47] offset:1008")
        a("v_cvt_pk_bf16_f32 v48, v24, v23")
        a("v_cvt_pk_bf16_f32 v49, v22, v22")
        a("v_cvt_pk_bf16_f32 v50, v22, v21")
        a("v_cvt_pk_bf16_f32 v51, v20, v20")
        a("s_mov_b32 exec_hi, 0")
        a("ds_write_b128 v13, v[48:51] offset:3568")
        a("s_mov_b32 exec_hi, -1")
        if "dumpk" in self.ph:
            a("s_waitcnt lgkmcnt(0)")
            a("v_lshlrev_b32 v13, 4, v0")
            a("v_add_u32 v14, s52, v13")
            a("s_mul_i32 s67, s50, 4224")
            a("s_add_u32 s67, s67, %d" % WS_DBG)
            for i in range(5):
                a("ds_read_b128 v[20:23], v14 offset:%d" % (1024 * i))
                a("s_waitcnt lgkmcnt(0)")
                if i == 4: a("s_mov_b32 exec_hi, 0"); a("s_mov_b32 exec_lo, 0xff")
                a("s_add_u32 s68, s67, %d" % (1024 * i))
                a("buffer_store_dwordx4 v[20:23], v13, s[20:23], s68 offen")
                a("s_waitcnt vmcnt(0)")
            a("s_mov_b64 exec, -1")

    def u_look(self):
        a = self.a
        self.nonce_read(120)
        a("s_lshr_b32 s78, s50, 5")
        a("s_lshl_b32 s78, s78, 7")
        a("s_add_u32 s78, s78, %d" % WS_FU)
        a("v_and_b32 v120, 15, v0")
        a("v_lshlrev_b32 v120, 2, v120")
        a("buffer_load_dword v121, v120, s[20:23], s78 offen sc1")
    def u_prefetch(self):
        a = self.a
        l = self.newlab("uok")
        a("s_waitcnt vmcnt(0)")
        a("v_cmp_eq_u32 vcc, s64, v121")
        a("s_nop 1")
        a("s_cmp_eq_u64 vcc, -1")
        a("s_cbranch_scc1 %s" % l)
        self.poll_line("s78", 16, 120, sleep=4)
        a.lab(l)
        self.conv_loads()
        self.lds_inc(LDS_UOK, 152)

    def conv_loads(self):
        a = self.a
        a("s_mul_i32 s67, s50, %d" % ROWS)
        a("s_add_u32 s67, s67, %d" % (WS_UT - 4))
        a("v_lshlrev_b32 v1, 2, v0")
        for i in range(16):
            a("buffer_load_dwordx2 v[%d:%d], v1, s[20:23], s67 offen offset:%d sc1" % (120 + 2 * i, 121 + 2 * i, 256 * i))

    def conv(self):
        a = self.a
        D = 120
        a("s_mul_i32 s53, s66, %d" % UC_SZ)
        if LDS_UC: a("s_add_u32 s53, s53, %d" % LDS_UC)
        if not self.fused():
            a("s_mov_b32 m0, s53")
            a("v_mov_b32 v2, 0")
            for b in range(4):
                a("ds_write_addtid_b32 v2 offset:%d" % (b * UC_STRIDE))
                a("ds_write_addtid_b32 v2 offset:%d" % (b * UC_STRIDE + 33 * 4))
            a("v_cmp_eq_u32 vcc, 0, v0")
            a("s_waitcnt vmcnt(0)")
            a("v_cndmask_b32 v%d, v%d, v2, vcc" % (D, D))
            for i in range(16):
                lo, hi = D + 2 * i, D + 2 * i + 1
                o = 4 + (i % 4)
                a("v_alignbit_b32 v%d, v%d, v%d, 16" % (o, hi, lo))
                a("ds_write_addtid_b32 v%d offset:%d" % (hi, 3 * UC_STRIDE + 4 * (64 * i + 96)))
                a("ds_write_addtid_b32 v%d offset:%d" % (hi, 1 * UC_STRIDE + 4 * (64 * i + 97)))
                a("ds_write_addtid_b32 v%d offset:%d" % (o, 2 * UC_STRIDE + 4 * (64 * i + 96)))
                a("ds_write_addtid_b32 v%d offset:%d" % (o, 0 * UC_STRIDE + 4 * (64 * i + 97)))
        VU, VK = 8, 9
        a("v_and_b32 v4, 3, v0")
        a("v_mul_u32_u24 v4, %d, v4" % UC_STRIDE)
        a("v_bfe_u32 v5, v0, 2, 2")
        a("v_lshl_add_u32 v4, v5, 7, v4")
        a("v_lshrrev_b32 v5, 4, v0")
        a("v_lshl_add_u32 v4, v5, 4, v4")
        a("v_add_u32 v%d, s53, v4" % VU)
        a("v_and_b32 v6, 15, v0")
        a("v_lshlrev_b32 v7, 3, v6")
        a("v_sub_u32 v7, 120, v7")
        a("v_lshl_add_u32 v7, v5, 4, v7")
        a("v_add_u32 v%d, s52, v7" % VK)
        a("v_lshlrev_b32 v10, 3, v6")
        a("v_lshl_add_u32 v10, v5, 7, v10")
        ACC = 16; SETS = [48, 112]
        def reads(rho, S):
            L = []
            for z in range(8):
                L.append("ds_read_b128 v[%d:%d], v%d offset:%d" % (S + 4 * z, S + 4 * z + 3, VU, 512 * z + 64 * (7 - rho)))
                zz = 8 * z + rho
                L.append("ds_read_b64 v[%d:%d], v%d offset:%d" % (S + 32 + 4 * z, S + 33 + 4 * z, VK, 64 * (63 - zz)))
                L.append("ds_read_b64 v[%d:%d], v%d offset:%d" % (S + 34 + 4 * z, S + 35 + 4 * z, VK, 64 * (63 - zz) + 8))
            return L
        def mm(rho, S):
            L = []
            for ze in range(8):
                for nu in range(8 - ze):
                    n = ze + nu
                    c = "0" if (rho == 0 and ze == 0) else "v[%d:%d]" % (ACC + 4 * n, ACC + 4 * n + 3)
                    L.append("v_mfma_f32_16x16x32_bf16 v[%d:%d], v[%d:%d], v[%d:%d], %s" % (ACC + 4 * n, ACC + 4 * n + 3, S + 4 * nu, S + 4 * nu + 3, S + 32 + 4 * ze, S + 35 + 4 * ze, c))
            return L
        a("s_waitcnt lgkmcnt(0)")
        if self.fused(): self.lds_spin(LDS_UCOK, 12)
        self.stamp(4)
        a.ext(reads(0, SETS[0]))
        a("s_waitcnt lgkmcnt(0)")
        for rho in range(8):
            fill = reads(rho + 1, SETS[(rho + 1) & 1]) if rho < 7 else []
            a.ext(interleave(mm(rho, SETS[rho & 1]), fill, span=28))
            if rho < 7: a("s_waitcnt lgkmcnt(0)")
        self.stamp(7)
        a("s_mul_i32 s67, s50, %d" % ROWS)
        a("s_add_u32 s67, s67, %d" % WS_Y)
        a("s_nop 7")
        for n in range(8):
            o = 48 + 2 * n
            a("v_cvt_pk_bf16_f32 v%d, v%d, v%d" % (o, ACC + 4 * n, ACC + 4 * n + 1))
            a("v_cvt_pk_bf16_f32 v%d, v%d, v%d" % (o + 1, ACC + 4 * n + 2, ACC + 4 * n + 3))
            a("buffer_store_dwordx2 v[%d:%d], v10, s[20:23], s67 offen offset:%d sc1" % (o, o + 1, 512 * n))

    def s_ssm(self):
        a = self.a
        n = self.name
        a("s_sub_u32 s66, s3, 4")
        a("s_lshl_b32 s50, s66, 8")
        a("s_add_u32 s50, s50, s2")
        a("s_cmp_ge_u32 s66, 3")
        a("s_cbranch_scc1 %s_ssm_done" % n)
        if self.fused():
            l = self.newlab("nch")
            a("s_cmp_lt_u32 s50, 640")
            a("s_cbranch_scc1 %s" % l)
            a("s_branch %s_ssm_done" % n)
            a.lab(l)
        else:
            a("s_cmp_ge_u32 s50, 640")
            a("s_cbranch_scc1 %s_ssm_done" % n)
        if self.fused() and "g1" in self.ph:
            a("s_waitcnt vmcnt(0)")
        if "g1" not in self.ph:
            self.stamp(5)
            self.ssm_param_loads()
            self.kgen("all")
        elif "kghead" in self.ph:
            self.kgen("tail")
        else:
            self.kgen("rest")
        self.stamp(6)
        if not self.fused():
            self.conv_loads()
        self.conv()
        if "prioT" in self.ph or "prioT0" in self.ph: a("s_setprio 0")
        a("s_waitcnt vmcnt(0)")
        if self.fused():
            self.nonce_read(4)
            a("s_lshl_b32 s69, s50, 2")
            a("s_add_u32 s69, s69, %d" % WS_FY)
            self.flag_set("s69", 2)
        self.stamp(8)
        a.lab("%s_ssm_done" % n)

    G2_SETS = [80, 116, 152, 188]
    G2_VB, G2_VL, G2_VB8, G2_T, G2_VRS = 224, 228, 246, 230, 250

    def g2_setup(self):
        a = self.a
        VB, VL, VB8, T, VRS = self.G2_VB, self.G2_VL, self.G2_VB8, self.G2_T, self.G2_VRS
        a("v_mbcnt_lo_u32_b32 v%d, -1, 0" % T)
        a("v_mbcnt_hi_u32_b32 v%d, -1, v%d" % (T, T))
        a("v_lshlrev_b32 v%d, 4, v%d" % (VL, T))
        for tau in range(4):
            a("s_add_u32 s67, s3, %d" % tau)
            a("s_and_b32 s67, s67, 3")
            a("s_lshl_b32 s67, s67, 10")
            a("v_add_u32 v%d, s67, v%d" % (VB + tau, VL))
            a("v_lshlrev_b32 v%d, 3, v%d" % (VB8 + tau, T))
            a("v_add_u32 v%d, s67, v%d" % (VB8 + tau, VB8 + tau))
        a("s_mul_i32 s70, s6, 48")
        a("s_mul_i32 s67, s3, 12")
        a("s_add_u32 s70, s70, s67")
        a("s_lshl_b32 s70, s70, 12")
        if WS_H: a("s_add_u32 s70, s70, %d" % WS_H)
        a("s_mul_i32 s71, s7, 48")
        a("s_add_u32 s71, s71, s67")
        a("s_mul_i32 s71, s71, 5120")
        a("s_add_u32 s71, s71, %d" % WS_WD)
        a("s_add_u32 s72, s71, 4096")
        for tau in range(1, 4):
            a("s_add_u32 s67, s3, %d" % tau)
            a("s_and_b32 s67, s67, 3")
            a("s_mul_i32 s67, s67, 3")
            a("s_add_u32 s67, s67, %d" % (tau - 1))
            a("s_mul_i32 s67, s67, 5120")
            a("s_add_u32 s67, s67, %d" % LDS_RED)
            a("v_add_u32 v%d, s67, v%d" % (VRS + tau - 1, VL))
            a("s_mov_b32 s%d, s67" % (72 + tau))

    def g2_final_addrs(self):
        a = self.a
        T, VL = self.G2_T, self.G2_VL
        a("s_mul_i32 s67, s3, %d" % (3 * 5120))
        a("s_add_u32 s67, s67, %d" % LDS_RED)
        a("v_add_u32 v%d, s67, v%d" % (T + 1, VL))
        a("v_lshrrev_b32 v%d, 4, v%d" % (T + 2, T))
        a("v_and_b32 v%d, 15, v%d" % (T + 3, T))
        a("v_lshrrev_b32 v%d, 2, v%d" % (T + 4, T + 3))
        a("v_lshl_add_u32 v%d, v%d, 3, v%d" % (T + 5, T + 2, T + 4))
        a("v_lshl_add_u32 v%d, v%d, 2, v%d" % (T + 6, T + 2, T + 4))
        a("v_and_b32 v%d, 3, v%d" % (T + 7, T))
        a("v_lshlrev_b32 v%d, 3, v%d" % (T + 7, T + 7))
        a("s_lshl_b32 s67, s3, 5")
        a("s_add_u32 s67, s67, %d" % LDS_YT)
        a("v_add_u32 v%d, s67, v%d" % (T + 7, T + 7))
        a("v_lshl_add_u32 v%d, v%d, 7, v%d" % (T + 5, T + 5, T + 7))
        a("v_lshl_add_u32 v%d, v%d, 7, v%d" % (T + 6, T + 6, T + 7))
        a("s_lshl_b32 s67, s3, 6")
        a("s_add_u32 s67, s67, %d" % LDS_GT)
        a("v_lshl_add_u32 v%d, v%d, 2, s67" % (T + 8, T + 3))
        a("s_lshl_b32 s67, s6, 6")
        a("s_lshl_b32 s68, s3, 4")
        a("s_add_u32 s67, s67, s68")
        a("v_add_u32 v%d, s67, v%d" % (T + 9, T + 3))
        a("s_movk_i32 s68, 1280")
        a("v_mul_lo_u32 v%d, v%d, s68" % (T + 9, T + 9))
        a("s_mul_i32 s68, s7, 160")
        a("v_add_u32 v%d, s68, v%d" % (T + 9, T + 9))
        a("v_lshl_add_u32 v%d, v%d, 3, v%d" % (T + 10, T + 2, T + 9))
        a("v_lshl_add_u32 v%d, v%d, 4, v%d" % (T + 9, T + 2, T + 9))

    def g2_loadsA(self, S):
        VL = self.G2_VL
        L = []
        for dt in range(5):
            if dt < 4: L.append("buffer_load_dwordx4 v[%d:%d], v%d, s[20:23], s71 offen offset:%d sc1" % (S + 16 + 4 * dt, S + 19 + 4 * dt, VL, 1024 * dt))
            else: L.append(("buffer_load_dwordx4 v[%d:%d], v%d, s[20:23], s72 offen sc1" % (S + 16 + 4 * dt, S + 19 + 4 * dt, VL),
                            "s_add_u32 s71, s71, 5120", "s_add_u32 s72, s72, 5120"))
        return L

    def g2_burst_atoms(self):
        VL = self.G2_VL
        regl = []
        for k in range(4): regl += self.g2_loadsA(self.G2_SETS[k])
        dmal = []
        for tau in range(1, 4):
            dmal.append(("s_mov_b32 m0, s%d" % (72 + tau), "s_nop 0",
                         "buffer_load_dwordx4 v%d, s[20:23], s71 offen sc1 lds" % VL))
            for dt in range(1, 4):
                dmal.append("buffer_load_dwordx4 v%d, s[20:23], s71 offen offset:%d sc1 lds" % (VL, 1024 * dt))
            dmal.append(("s_add_u32 m0, s%d, 4096" % (72 + tau), "s_add_u32 s71, s71, 5120",
                         "buffer_load_dwordx4 v%d, s[20:23], s72 offen sc1 lds" % VL, "s_add_u32 s72, s72, 5120"))
        return regl, dmal

    def g_gemm2(self):
        a = self.a
        ACC = 0
        SETS = self.G2_SETS
        VB, VL, VB8, T, VRS = self.G2_VB, self.G2_VL, self.G2_VB8, self.G2_T, self.G2_VRS
        acc = lambda dt, tau: ACC + (dt * 4 + tau) * 4
        epb = "epb" in self.ph and "g1" in self.ph
        if not epb: self.g2_setup()
        loadsA = self.g2_loadsA
        def loadsB(S, k):
            L = []
            for tau in range(4):
                if k % 3 == 1:
                    x = ("buffer_load_dwordx2 v[%d:%d], v%d, s[20:23], s70 offen sc1" % (S + 4 * tau, S + 4 * tau + 1, VB8 + tau),
                         "buffer_load_dwordx2 v[%d:%d], v%d, s[20:23], s70 offen offset:512 sc1" % (S + 4 * tau + 2, S + 4 * tau + 3, VB8 + tau))
                else:
                    x = ("buffer_load_dwordx4 v[%d:%d], v%d, s[20:23], s70 offen sc1" % (S + 4 * tau, S + 4 * tau + 3, VB + tau),)
                L.append(x if tau < 3 else x + ("s_add_u32 s70, s70, 4096",))
            return L
        nB = lambda k: 8 if k % 3 == 1 else 4
        def mm(S, first):
            L = []
            for dt in range(5):
                for tau in range(4):
                    c = "0" if first else "v[%d:%d]" % (acc(dt, tau), acc(dt, tau) + 3)
                    L.append("v_mfma_f32_16x16x32_bf16 v[%d:%d], v[%d:%d], v[%d:%d], %s" % (acc(dt, tau), acc(dt, tau) + 3, S + 16 + 4 * dt, S + 19 + 4 * dt, S + 4 * tau, S + 4 * tau + 3, c))
            return L
        NS = 12
        pre = "g1" in self.ph and "nopre" not in self.ph
        VLOOK = 254
        if epb:
            if self.fused(): self.nonce_read(232)
            self.g_signal_h(0)
            if self.fused():
                a("s_lshr_b32 s79, s6, 1")
                a("s_lshl_b32 s79, s79, 7")
                a("s_lshl_b32 s67, s3, 4")
                a("s_add_u32 s79, s79, s67")
                a("s_add_u32 s79, s79, %d" % WS_FH)
                self.poll_line("s79", 4, VLOOK, sleep=3)
        elif "g1" in self.ph:
            if self.fused():
                self.nonce_read(232)
                a("v_mov_b32 v%d, 0" % VLOOK)
                l = self.newlab("lk"); l2 = self.newlab("lk")
                a("s_cmp_lg_u32 s3, 0")
                a("s_cbranch_scc1 %s" % l)
                a("s_lshl_b32 s79, s7, 8")
                a("s_add_u32 s79, s79, %d" % WS_FW)
                self.look_line("s79", 48, VLOOK)
                a("s_waitcnt vmcnt(1)")
                a("s_branch %s" % l2)
                a.lab(l)
                a("s_waitcnt vmcnt(0)")
                a.lab(l2)
                self.g_signal_h(None)
            else:
                self.g_signal_h(0)
        if pre and not epb:
            if self.fused():
                lo = self.newlab("ww"); ld = self.newlab("wd")
                a("s_cmp_lg_u32 s3, 0")
                a("s_cbranch_scc1 %s" % lo)
                self.lds_spin(LDS_SFREE, 232, 4)
                self.lds_spin(LDS_UOK, 232, 3)
                self.check_line("s79", VLOOK, 0)
                a("v_mov_b32 v232, %d" % LDS_WOK)
                a("v_mov_b32 v233, 1")
                a("ds_write_b32 v232, v233")
                if "hall" in self.ph:
                    a("s_lshr_b32 s79, s6, 1")
                    a("s_lshl_b32 s79, s79, 7")
                    a("s_add_u32 s79, s79, %d" % WS_FH)
                    self.look_line("s79", 16, VLOOK)
                a("s_branch %s" % ld)
                a.lab(lo)
                self.lds_spin(LDS_WOK, 232)
                a.lab(ld)
                if "hall" not in self.ph:
                    a("s_lshr_b32 s79, s6, 1")
                    a("s_lshl_b32 s79, s79, 7")
                    a("s_lshl_b32 s67, s3, 4")
                    a("s_add_u32 s79, s79, s67")
                    a("s_add_u32 s79, s79, %d" % WS_FH)
                    self.look_line("s79", 4, VLOOK)
            regl, dmal = self.g2_burst_atoms()
            a.ext(flat(regl)); a.ext(flat(dmal))
        fintrim = "fintrim" in self.ph
        if fintrim: self.g2_final_addrs()
        if not epb: self.g2_wait_inputs(looked=pre)
        self.stamp(5)
        self.clk(5)
        def srcA(k):
            if not pre: return "g"
            return "pre" if k < 4 else ("lds" if k < 7 else "g")
        def loadA_any(k):
            S = SETS[k % 4]
            if srcA(k) == "g": return loadsA(S)
            if srcA(k) == "lds":
                return ["ds_read_b128 v[%d:%d], v%d offset:%d" % (S + 16 + 4 * dt, S + 19 + 4 * dt, VRS + k - 4, 1024 * dt) for dt in range(5)]
            return []
        nL = lambda k: nB(k) + (5 if srcA(k) == "g" else 0)
        deep = "deepB" in self.ph and pre
        def M(S, dt, tau, first):
            c = "0" if first else "v[%d:%d]" % (acc(dt, tau), acc(dt, tau) + 3)
            return "v_mfma_f32_16x16x32_bf16 v[%d:%d], v[%d:%d], v[%d:%d], %s" % (acc(dt, tau), acc(dt, tau) + 3, S + 16 + 4 * dt, S + 19 + 4 * dt, S + 4 * tau, S + 4 * tau + 3, c)
        W = lambda dt, tau: "ds_write_b128 v%d, v[%d:%d] offset:%d" % (VRS + tau - 1, acc(dt, tau), acc(dt, tau) + 3, 1024 * dt)
        gk = 7 if "gok7" in self.ph else (6 if "gok6" in self.ph else NS - 4)
        if deep:
            vm = []
            def nvm(atoms): return sum(1 for x in flat(atoms) if x.startswith("buffer_"))
            def issue(tag, atoms): vm.extend([tag] * nvm(atoms))
            for k in range(4):
                L = loadsB(SETS[k], k); a.ext(flat(L)); issue(("B", k), L)
            for k in range(NS):
                S = SETS[k % 4]
                need = [i for i, t in enumerate(vm) if t in (("B", k), ("A", k))]
                rem = len(vm) - 1 - max(need)
                if srcA(k) == "lds": a("s_waitcnt vmcnt(%d) lgkmcnt(0)" % rem)
                else: a("s_waitcnt vmcnt(%d)" % rem)
                LA = loadA_any(k + 3) if k + 3 < NS else []
                LB = loadsB(S, k + 4) if k + 4 < NS else []
                if k == NS - 1 and fintrim:
                    for dt in range(5): a(M(S, dt, 1, False))
                    for dt in range(5): a(M(S, dt, 2, False))
                    for dt in range(5): a(M(S, dt, 3, False)); a(W(dt, 1))
                    for dt in range(5): a(M(S, dt, 0, False)); a(W(dt, 2))
                    for dt in range(5): a(W(dt, 3))
                else:
                    ai = 0
                    for tau in range(4):
                        for dt in range(5):
                            a(M(S, dt, tau, k == 0))
                            if dt in (1, 3) and ai < len(LA):
                                a.ext(flat([LA[ai]]));
                                if nvm([LA[ai]]): issue(("A", k + 3), [LA[ai]])
                                ai += 1
                        if LB: a.ext(flat([LB[tau]])); issue(("B", k + 4), [LB[tau]])
                    while ai < len(LA):
                        a.ext(flat([LA[ai]]))
                        if nvm([LA[ai]]): issue(("A", k + 3), [LA[ai]])
                        ai += 1
                if k == gk and self.fused(): self.lds_inc(LDS_GOK, 232)
        else:
            for k in range(3):
                a.ext(flat(loadsB(SETS[k], k) + loadA_any(k)))
            for k in range(NS):
                rem = sum(nL(j) for j in range(k + 1, min(NS - 1, k + 2) + 1))
                if srcA(k) == "lds": a("s_waitcnt vmcnt(%d) lgkmcnt(0)" % rem)
                else: a("s_waitcnt vmcnt(%d)" % rem)
                fill = (loadsB(SETS[(k + 3) % 4], k + 3) + loadA_any(k + 3)) if k + 3 < NS else []
                if "k2stamps" in self.ph and k < 9: self.stamp(k + 1, force=True)
                if k == NS - 1 and fintrim:
                    S = SETS[k % 4]
                    for dt in range(5): a(M(S, dt, 1, False))
                    for dt in range(5): a(M(S, dt, 2, False))
                    for dt in range(5): a(M(S, dt, 3, False)); a(W(dt, 1))
                    for dt in range(5): a(M(S, dt, 0, False)); a(W(dt, 2))
                    for dt in range(5): a(W(dt, 3))
                else:
                    a.ext(interleave(mm(SETS[k % 4], k == 0), fill))
                if k == gk and self.fused(): self.lds_inc(LDS_GOK, 232)
        self.stamp(6)
        self.clk(7)
        if not fintrim:
            a("s_nop 7")
            for tau in range(1, 4):
                for dt in range(5):
                    a("ds_write_b128 v%d, v[%d:%d] offset:%d" % (VRS + tau - 1, acc(dt, tau), acc(dt, tau) + 3, 1024 * dt))
        a("s_waitcnt lgkmcnt(0)")
        a("s_barrier")
        self.stamp(7)
        if not fintrim: self.g2_final_addrs()
        R = 80
        for j in range(3):
            for dt in range(5):
                r = R + (j * 5 + dt) * 4
                a("ds_read_b128 v[%d:%d], v%d offset:%d" % (r, r + 3, T + 1, 5120 * j + 1024 * dt))
        Y = 140
        for dt in range(5):
            if dt < 4: a("ds_read_b64_tr_b16 v[%d:%d], v%d offset:%d" % (Y + 2 * dt, Y + 2 * dt + 1, T + 5, 128 * (32 * (dt >> 1) + 4 * (dt & 1))))
            else: a("ds_read_b64_tr_b16 v[%d:%d], v%d offset:%d" % (Y + 2 * dt, Y + 2 * dt + 1, T + 6, 128 * 64))
        a("ds_read_b32 v%d, v%d" % (T + 8, T + 8))
        a("s_waitcnt lgkmcnt(0)")
        for dt in range(5):
            for h in range(2):
                x = acc(dt, 0) + 2 * h
                p = [R + (j * 5 + dt) * 4 + 2 * h for j in range(3)]
                a("v_pk_add_f32 v[%d:%d], v[%d:%d], v[%d:%d]" % (p[0], p[0] + 1, p[0], p[0] + 1, p[1], p[1] + 1))
                a("v_pk_add_f32 v[%d:%d], v[%d:%d], v[%d:%d]" % (x, x + 1, x, x + 1, p[2], p[2] + 1))
        for dt in range(5):
            for h in range(2):
                x = acc(dt, 0) + 2 * h
                p = R + dt * 4 + 2 * h
                a("v_pk_add_f32 v[%d:%d], v[%d:%d], v[%d:%d]" % (x, x + 1, x, x + 1, p, p + 1))
        U = 150
        for dt in range(5):
            for h in range(2):
                a("v_lshlrev_b32 v%d, 16, v%d" % (U + 4 * dt + 2 * h, Y + 2 * dt + h))
                a("v_and_b32 v%d, 0xffff0000, v%d" % (U + 4 * dt + 2 * h + 1, Y + 2 * dt + h))
        G2 = T + 12
        assert G2 % 2 == 0
        a("v_mov_b32 v%d, v%d" % (G2, T + 8))
        a("v_mov_b32 v%d, v%d" % (G2 + 1, T + 8))
        for dt in range(5):
            for h in range(2):
                x = acc(dt, 0) + 2 * h; u = U + 4 * dt + 2 * h
                a("v_pk_add_f32 v[%d:%d], v[%d:%d], v[%d:%d] neg_lo:[0,1] neg_hi:[0,1]" % (u, u + 1, u, u + 1, x, x + 1))
        for dt in range(5):
            for h in range(2):
                x = acc(dt, 0) + 2 * h; u = U + 4 * dt + 2 * h
                a("v_pk_fma_f32 v[%d:%d], v[%d:%d], v[%d:%d], v[%d:%d]" % (x, x + 1, u, u + 1, G2, G2 + 1, x, x + 1))
        O = 176
        for dt in range(5):
            for h in range(2):
                x = acc(dt, 0) + 2 * h
                a("v_cvt_pk_bf16_f32 v%d, v%d, v%d" % (O + 2 * dt + h, x, x + 1))
        fl = " sc1" if "outsc1" in self.ph else (" nt" if "outnt" in self.ph else "")
        a("buffer_store_dwordx4 v[%d:%d], v%d, s[24:27], 0 offen%s" % (O, O + 3, T + 9, fl))
        a("buffer_store_dwordx4 v[%d:%d], v%d, s[24:27], 0 offen offset:64%s" % (O + 4, O + 7, T + 9, fl))
        a("buffer_store_dwordx2 v[%d:%d], v%d, s[24:27], 0 offen offset:128%s" % (O + 8, O + 9, T + 10, fl))
        self.stamp(8)

    def g2_wait_inputs(self, looked=False):
        if not self.fused(): return
        a = self.a
        T = 232
        if looked and "hall" not in self.ph:
            self.check_line("s79", 254, 35, sleep=4)
            return
        lo = self.newlab("hw"); ld = self.newlab("hd")
        a("s_cmp_lg_u32 s3, 0")
        a("s_cbranch_scc1 %s" % lo)
        if looked:
            self.check_line("s79", 254, 35)
        else:
            a("s_lshr_b32 s78, s6, 1")
            a("s_lshl_b32 s78, s78, 7")
            a("s_add_u32 s78, s78, %d" % WS_FH)
            self.poll_line("s78", 16, T, sleep=4)
        a("v_mov_b32 v%d, %d" % (T, LDS_HOK))
        a("v_mov_b32 v%d, 1" % (T + 1))
        a("ds_write_b32 v%d, v%d" % (T, T + 1))
        a("s_branch %s" % ld)
        a.lab(lo)
        self.lds_spin(LDS_HOK, T)
        a.lab(ld)

    def s_final(self):
        a = self.a
        n = self.name
        l = self.newlab("fin")
        a("s_cmp_lg_u32 s3, 7")
        a("s_cbranch_scc1 %s" % l)
        if self.fused(): self.lds_spin(LDS_GOK, 2, 4)
        self.y_wait_inputs()
        a("v_mbcnt_lo_u32_b32 v0, -1, 0")
        a("v_mbcnt_hi_u32_b32 v0, -1, v0")
        a("v_lshrrev_b32 v1, 3, v0")
        a("v_mul_u32_u24 v1, %d, v1" % ROWS)
        a("v_and_b32 v2, 7, v0")
        a("v_lshl_add_u32 v1, v2, 4, v1")
        a("s_mul_i32 s67, s7, %d" % (80 * ROWS))
        a("s_lshl_b32 s68, s6, 7")
        a("s_add_u32 s67, s67, s68")
        a("s_add_u32 s67, s67, %d" % WS_Y)
        for i in range(10):
            a("buffer_load_dwordx4 v[%d:%d], v1, s[20:23], s67 offen sc1" % (8 + 4 * i, 11 + 4 * i))
            if i < 9: a("s_add_u32 s67, s67, %d" % (8 * ROWS))
        a("s_lshl_b32 s67, s6, 8")
        a("s_add_u32 s67, s67, %d" % WS_G)
        a("v_lshlrev_b32 v3, 2, v0")
        a("buffer_load_dword v4, v3, s[20:23], s67 offen sc1")
        a("v_lshlrev_b32 v2, 4, v0")
        a("v_add_u32 v2, %d, v2" % LDS_YT)
        a("v_add_u32 v3, %d, v3" % LDS_GT)
        a("s_waitcnt vmcnt(0)")
        for i in range(10):
            a("ds_write_b128 v2, v[%d:%d] offset:%d" % (8 + 4 * i, 11 + 4 * i, 1024 * i))
        a("ds_write_b32 v3, v4")
        a("s_waitcnt lgkmcnt(0)")
        a("s_barrier")
        if self.fused(): self.nonce_update()
        a("s_branch %s_fd" % l)
        a.lab(l)
        a("s_barrier")
        a.lab("%s_fd" % l)

    def y_wait_inputs(self):
        if not self.fused(): return
        a = self.a
        a("v_mbcnt_lo_u32_b32 v0, -1, 0")
        a("v_mbcnt_hi_u32_b32 v0, -1, v0")
        a("s_mul_i32 s67, s7, 320")
        a("s_add_u32 s67, s67, %d" % WS_FY)
        a("v_lshl_add_u32 v1, v0, 2, s67")
        a("v_add_u32 v2, 256, v1")
        a("s_lshl_b32 s68, s6, 5")
        a("s_add_u32 s68, s68, %d" % (WS_FG - 64))
        a("v_lshl_add_u32 v3, v0, 2, s68")
        a("v_cmp_le_u32 vcc, 16, v0")
        a("s_nop 1")
        a("v_cndmask_b32 v2, v2, v3, vcc")
        a("v_subrev_u32 v3, 24, v0")
        a("v_lshlrev_b32 v3, 10, v3")
        a("s_lshl_b32 s68, s2, 2")
        a("s_add_u32 s68, s68, %d" % WS_FY)
        a("v_add_u32 v3, s68, v3")
        a("v_cmp_le_u32 vcc, 24, v0")
        a("s_nop 1")
        a("v_cndmask_b32 v2, v2, v3, vcc")
        a("s_cmp_lt_u32 s2, 128")
        a("s_cselect_b32 s68, 27, 26")
        a("v_mov_b32 v3, s67")
        a("v_cmp_le_u32 vcc, s68, v0")
        a("s_nop 1")
        a("v_cndmask_b32 v2, v2, v3, vcc")
        def loads():
            a("buffer_load_dword v4, v1, s[20:23], 0 offen sc1")
            a("buffer_load_dword v5, v2, s[20:23], 0 offen sc1")
        self.poll(loads, [4, 5], 6, sleep=8)

    def fused(self): return "fused" in self.ph

    def nonce_load(self):
        a = self.a
        if "snonce" in self.ph:
            a("s_add_u32 s68, s%d, %d" % (P_WS, WS_NON))
            a("s_addc_u32 s69, s%d, 0" % (P_WS + 1))
            a("s_load_dword s55, s[68:69], 0")
            return
        a("v_mov_b32 v1, 0")
        a("s_mov_b32 s67, %d" % WS_NON)
        a("buffer_load_dword v242, v1, s[20:23], s67 offen sc1")
    def nonce_publish_local(self):
        a = self.a
        if "snonce" in self.ph:
            a("s_waitcnt lgkmcnt(0)")
            a("s_add_u32 s64, s55, 1")
            a("v_mov_b32 v242, s64")
            a("v_mov_b32 v1, %d" % LDS_NONCE)
            a("ds_write_b32 v1, v242")
            return
        a("v_add_u32 v242, 1, v242")
        a("v_mov_b32 v1, %d" % LDS_NONCE)
        a("ds_write_b32 v1, v242")
        a("v_readfirstlane_b32 s64, v242")
    def nonce_update(self):
        a = self.a
        l = self.newlab("nu")
        a("s_cmp_lg_u32 s2, 0")
        a("s_cbranch_scc1 %s" % l)
        a("v_mbcnt_lo_u32_b32 v2, -1, 0")
        a("v_mbcnt_hi_u32_b32 v2, -1, v2")
        a("v_lshlrev_b32 v2, 4, v2")
        a("s_mov_b32 s78, %d" % WS_FG)
        self.poll(lambda: a("buffer_load_dwordx4 v[4:7], v2, s[20:23], s78 offen sc1"), [4, 5, 6, 7], 2, sleep=8)
        a("s_mov_b32 s69, %d" % WS_NON)
        self.flag_set("s69", 2)
        a.lab(l)

    def nonce_read(self, vt):
        a = self.a
        a("v_mov_b32 v%d, %d" % (vt, LDS_NONCE))
        a("ds_read_b32 v%d, v%d" % (vt, vt))
        a("s_waitcnt lgkmcnt(0)")
        a("v_readfirstlane_b32 s64, v%d" % vt)
        a("s_nop 1")

    def flag_set(self, soff_reg, vt):
        a = self.a
        a("v_mov_b32 v%d, s64" % vt)
        a("v_mov_b32 v%d, 0" % (vt + 1))
        a("s_mov_b64 exec, 1")
        a("buffer_store_dword v%d, v%d, s[20:23], %s offen sc1" % (vt, vt + 1, soff_reg))
        a("s_mov_b64 exec, -1")

    def poll(self, loads, vregs, vt, sleep=8):
        a = self.a
        lp = self.newlab("pl"); ld = self.newlab("pd")
        a("s_mov_b32 s69, 0")
        a.lab(lp)
        loads()
        a("s_waitcnt vmcnt(0)")
        for i, r in enumerate(vregs):
            if i == 0: a("v_cmp_eq_u32 vcc, s64, v%d" % r)
            else:
                a("v_cmp_eq_u32 s[76:77], s64, v%d" % r)
                a("s_nop 1")
                a("s_and_b64 vcc, vcc, s[76:77]")
        a("s_nop 1")
        a("s_cmp_eq_u64 vcc, -1")
        a("s_cbranch_scc1 %s" % ld)
        a("s_add_u32 s69, s69, 1")
        a("s_cmp_lt_u32 s69, 0x40000")
        a("s_cbranch_scc0 %s" % ld)
        a("s_sleep %d" % sleep)
        a("s_branch %s" % lp)
        a.lab(ld)

    def look_line(self, soff, nflags, vt):
        a = self.a
        a("v_mbcnt_lo_u32_b32 v%d, -1, 0" % vt)
        a("v_mbcnt_hi_u32_b32 v%d, -1, v%d" % (vt, vt))
        a("v_cmp_gt_u32 vcc, %d, v%d" % (nflags, vt))
        a("v_lshlrev_b32 v%d, 2, v%d" % (vt, vt))
        a("s_nop 0")
        a("v_cndmask_b32 v%d, 0, v%d, vcc" % (vt, vt))
        a("buffer_load_dword v%d, v%d, s[20:23], %s offen sc1" % (vt + 1, vt, soff))

    def check_line(self, soff, vt, nyounger, sleep=2):
        a = self.a
        l = self.newlab("ck")
        a("s_waitcnt vmcnt(%d)" % nyounger)
        a("v_cmp_eq_u32 vcc, s64, v%d" % (vt + 1))
        a("s_nop 1")
        a("s_cmp_eq_u64 vcc, -1")
        a("s_cbranch_scc1 %s" % l)
        self.poll(lambda: a("buffer_load_dword v%d, v%d, s[20:23], %s offen sc1" % (vt + 1, vt, soff)), [vt + 1], vt, sleep)
        a.lab(l)

    def poll_line(self, soff, nflags, vt, sleep=8):
        a = self.a
        a("v_mbcnt_lo_u32_b32 v%d, -1, 0" % vt)
        a("v_mbcnt_hi_u32_b32 v%d, -1, v%d" % (vt, vt))
        a("v_cmp_gt_u32 vcc, %d, v%d" % (nflags, vt))
        a("v_lshlrev_b32 v%d, 2, v%d" % (vt, vt))
        a("s_nop 0")
        a("v_cndmask_b32 v%d, 0, v%d, vcc" % (vt, vt))
        self.poll(lambda: a("buffer_load_dword v%d, v%d, s[20:23], %s offen sc1" % (vt + 1, vt, soff)), [vt + 1], vt, sleep)

    def build(self):
        a = self.a
        n = self.name
        a.l.append(".globl %s" % n)
        a.l.append(".p2align 8")
        a.l.append(".type %s,@function" % n)
        a.l.append("%s:" % n)
        self.prologue()
        a("s_cmp_ge_u32 s3, 4")
        a("s_cbranch_scc1 %s_S" % n)
        if "g1" in self.ph:
            self.g_gemm1()
        if "g2" in self.ph:
            self.g_gemm2()
        self.dbgtime_end()
        self.stamp_flush()
        a("s_endpgm")
        a.lab("%s_S" % n)
        if "g1" in self.ph:
            self.s_phase1()
        if "ssm" in self.ph:
            self.s_ssm()
        if "g2" in self.ph:
            self.s_final()
        self.stamp_flush()
        a.lab("%s_end" % n)
        a("s_endpgm")
        return a.text()

def kd(name):
    return """.amdhsa_kernel %s
  .amdhsa_next_free_vgpr 256
  .amdhsa_next_free_sgpr 102
  .amdhsa_accum_offset 256
  .amdhsa_group_segment_fixed_size 0
  .amdhsa_kernarg_size 136
  .amdhsa_user_sgpr_count 2
  .amdhsa_user_sgpr_kernarg_segment_ptr 1
  .amdhsa_system_sgpr_workgroup_id_x 1
.end_amdhsa_kernel
""" % name

HEADER = open("gated_mix__ssm_conv_s4__swiglu_ffn__prompt.s.ref").read().split("; Override launch")[0]

DOC = """;
;     by buffer_load ... lds, k order rotated per workgroup); epilogue h = silu(g) * u -> bf16, stored as MFMA B fragments in d_ws.
;     values = r + 16 j patterns, so exp factors into two small power tables (complex recurrences) contracted over the 192 modes
"""

def emit(kernels, path):
    txt = HEADER
    if len(kernels) == 1:
        txt += "; @launch grid=(256,1,1) block=(512,1,1) lds=%d\n" % LDS_TOTAL
    else:
        for (n, p, s) in kernels:
            txt += "; @launch kernel=%s grid=(256,1,1) block=(512,1,1) lds=%d\n" % (n, LDS_TOTAL)
    txt += DOC
    txt += '.amdgcn_target "amdgcn-amd-amdhsa--gfx950"\n.text\n'
    for (n, p, s) in kernels:
        txt += Gen(n, p, s).build()
    txt += '.section .rodata,"a"\n'
    for (n, p, s) in kernels:
        txt += ".p2align 6\n" + kd(n)
    open(path, "w").write(txt)

if __name__ == "__main__":
    mode = sys.argv[1]; path = sys.argv[2]
    stamps = len(sys.argv) > 3 and sys.argv[3] == "stamps"
    if mode.startswith("g1+") or mode == "g1":
        emit([(KNAME, set(mode.split("+")), stamps)], path)
    elif mode == "g1,ssm":
        emit([("ka_kernel", {"g1"}, False), ("kb_kernel", {"ssm", "dumpk"}, stamps)], path)
    elif mode == "3k":
        emit([("ka_kernel", {"g1"}, False), ("kb_kernel", {"ssm"}, False), ("kc_kernel", {"g2"}, stamps)], path)
    elif mode == "3k+1":
        emit([("ka_kernel", {"g1"}, False), ("kb_kernel", {"ssm"}, False), ("kc_kernel", {"g2"}, stamps), ("kd_kernel", set(), False)], path)
    elif mode == "3k+3":
        emit([("ka_kernel", {"g1"}, False), ("kb_kernel", {"ssm"}, False), ("kc_kernel", {"g2"}, stamps), ("kd_kernel", set(), False), ("ke_kernel", set(), False), ("kf_kernel", set(), False)], path)
    elif mode == "3k_dbg":
        emit([("ka_kernel", {"g1", "dbgtime"}, False), ("kb_kernel", {"ssm"}, False), ("kc_kernel", {"g2", "dbgtime"}, False)], path)
    elif mode == "fused":
        emit([(KNAME, {"g1", "ssm", "g2", "fused"}, stamps)], path)
    elif mode == "fused_notouch":
        emit([(KNAME, {"g1", "ssm", "g2", "fused", "notouch"}, stamps)], path)
    elif mode == "fused_pk":
        emit([(KNAME, {"g1", "ssm", "g2", "fused", "pkhead"}, stamps)], path)
    elif mode.startswith("F:"):
        emit([(KNAME, {"g1", "ssm", "g2", "fused"} | set(mode[2:].split("+")), stamps)], path)
    elif mode == "fused_dbg":
        emit([(KNAME, {"g1", "ssm", "g2", "fused", "dbgtime"}, stamps)], path)
    elif mode == "g1,ssm,nodump":
        emit([("ka_kernel", {"g1"}, False), ("kb_kernel", {"ssm"}, stamps)], path)
```

```python
import sys, math

KNAME = "gated_mix__ssm_conv_s4__swiglu_ffn__prompt_kernel"

WS_H    = 0x000000
WS_WD   = 0x600000
ROWS    = 4224
WS_UT   = 0x800000
WS_Y    = 0xB00000
WS_G    = 0xE00000
WS_FU   = 0xE10000
WS_FW   = 0xE15000
WS_FH   = 0xE11000
WS_FY   = 0xE12000
WS_NON  = 0xE13000
WS_FG   = 0xE14000
WS_TS   = 0xF00000
WS_DBG  = 0x1000000

STAGE   = 40960
ST_WG   = 16384
ST_WU   = 28672
LDS_S   = 3 * STAGE
TABROW  = 272
TABTILE = 16 * TABROW
TAB_SZ  = 2 * TABTILE
LDS_TAB = LDS_S
KR_SZ   = 4224
LDS_KR  = LDS_TAB + 3 * TAB_SZ
LDS_MISC = LDS_KR + 3 * KR_SZ
LDS_TOTAL = 163840
LDS_NONCE = LDS_MISC
LDS_CNT   = LDS_MISC + 8
UC_STRIDE = 4640
UC_SZ   = 4 * UC_STRIDE
LDS_UC  = 0
LDS_WDS_EARLY = 148992
LDS_RED = 57344
LDS_YT  = LDS_TAB
LDS_GT  = LDS_MISC + 64
LDS_HOK = LDS_MISC + 12
LDS_WOK = LDS_MISC + 16
LDS_UOK = LDS_MISC + 20
LDS_GOK = LDS_MISC + 24
LDS_UCOK = LDS_MISC + 28
LDS_SFREE = LDS_MISC + 32

class Asm:
    def __init__(self):
        self.l = []
    def __call__(self, s):
        for x in s.split("\n"):
            x = x.strip()
            if x: self.l.append("    " + x)
    def lab(self, s):
        self.l.append(s + ":")
    def ext(self, lst):
        for x in lst: self(x)
    def text(self):
        return "\n".join(self.l) + "\n"

def interleave(main, fill, start=0, span=None):
    out = []
    m = len(fill)
    n = len(main) if span is None else min(len(main), start + span)
    j = 0
    for i, x in enumerate(main):
        out.append(x)
        if i >= start:
            tgt = (m * (i - start + 1) + (n - start) - 1) // (n - start) if n > start else m
            while j < min(tgt, m):
                f = fill[j]
                if isinstance(f, tuple): out.extend(f)
                else: out.append(f)
                j += 1
    while j < m:
        f = fill[j]
        if isinstance(f, tuple): out.extend(f)
        else: out.append(f)
        j += 1
    return out

def flat(L):
    o = []
    for x in L:
        if isinstance(x, tuple): o.extend(x)
        else: o.append(x)
    return o

def vr(a, n=1):
    return "v%d" % a if n == 1 else "v[%d:%d]" % (a, a + n - 1)
def sr(a, n=1):
    return "s%d" % a if n == 1 else "s[%d:%d]" % (a, a + n - 1)

S_W, S_WAVE, S_M, S_N, S_M2, S_N2 = 2, 3, 4, 5, 6, 7
SRD_X, SRD_WG, SRD_WU, SRD_WS, SRD_OUT, SRD_WD = 8, 12, 16, 20, 24, 28
P_U, P_ARE, P_AIM, P_BRE, P_BIM, P_CRE, P_CIM, P_LDT = 32, 34, 36, 38, 40, 42, 44, 46
P_DSK, P_BX, P_WG, P_WU, P_WD, P_GW, P_OUT, P_DBG, P_WS = 48, 50, 52, 54, 56, 58, 60, 62, 64
S_TS = 80

class Gen:
    def __init__(self, name, phases, stamps=False):
        self.name = name
        self.ph = phases
        self.a = Asm()
        self.stamps = stamps
        self.nlab = 0
    def newlab(self, p):
        self.nlab += 1
        return "L_%s_%s_%d" % (self.name[:6], p, self.nlab)

    def capture(self, fn):
        old = self.a
        self.a = Asm()
        fn()
        lst = [x.strip() for x in self.a.l]
        self.a = old
        return lst

    def clk(self, i):
        if "clk" in self.ph and self.stamps:
            self.a("s_memrealtime s[%d:%d]" % (S_TS + 2 * i, S_TS + 2 * i + 1))
            self.a("s_memtime s[%d:%d]" % (S_TS + 2 * i + 2, S_TS + 2 * i + 3))
            self.a("s_waitcnt lgkmcnt(0)")

    def stamp(self, i, force=False):
        if "clk" in self.ph and i != 0: return
        if ("kstamps" in self.ph or "k2stamps" in self.ph or "ststamps" in self.ph) and not force and i != 0: return
        if self.stamps:
            self.a("%s s[%d:%d]" % ("s_memrealtime" if "rt" in self.ph else "s_memtime", S_TS + 2 * i, S_TS + 2 * i + 1))
            self.a("s_waitcnt lgkmcnt(0)")
    def stamp_flush(self):
        if not self.stamps: return
        a = self.a
        a("s_lshl_b32 s66, s2, 3")
        a("s_add_u32 s66, s66, s3")
        a("s_lshl_b32 s66, s66, 7")
        a("s_add_u32 s66, s66, 0x%x" % WS_TS)
        a("v_mov_b32 v250, 0")
        for i in range(10):
            a("v_mov_b32 v252, s%d" % (S_TS + 2 * i))
            a("v_mov_b32 v253, s%d" % (S_TS + 2 * i + 1))
            a("buffer_store_dwordx2 v[252:253], v250, s[20:23], s66 offen offset:%d" % (8 * i))
            a("s_nop 1")
        a("s_waitcnt vmcnt(0)")

    def prologue(self):
        a = self.a
        a("s_cmp_ge_u32 s2, 256")
        a("s_cbranch_scc1 %s_end" % self.name)
        a("s_load_dwordx16 s[32:47], s[0:1], 0")
        a("s_load_dwordx16 s[48:63], s[0:1], 64")
        a("s_load_dwordx2 s[64:65], s[0:1], 128")
        if "warmc0" in self.ph: self.warm_code(early=True)
        a("v_lshrrev_b32 v1, 6, v0")
        a("v_and_b32 v0, 63, v0")
        a("v_readfirstlane_b32 s3, v1")
        a("s_and_b32 s66, s2, 7")
        a("s_lshr_b32 s67, s2, 3")
        a("s_and_b32 s68, s67, 7")
        a("s_lshr_b32 s69, s67, 3")
        a("s_and_b32 s70, s66, 1")
        a("s_lshl_b32 s70, s70, 3")
        a("s_or_b32 s4, s70, s68")
        a("s_lshr_b32 s70, s66, 1")
        a("s_lshl_b32 s70, s70, 2")
        a("s_or_b32 s5, s70, s69")
        a("s_and_b32 s70, s66, 3")
        a("s_lshl_b32 s70, s70, 3")
        a("s_or_b32 s6, s70, s68")
        a("s_lshr_b32 s70, s66, 2")
        a("s_lshl_b32 s70, s70, 2")
        a("s_or_b32 s7, s70, s69")
        if "sametile" in self.ph:
            a("s_mov_b32 s4, 0"); a("s_mov_b32 s5, 0")
        if "samem" in self.ph:
            a("s_mov_b32 s4, 0")
        if "samen" in self.ph:
            a("s_mov_b32 s5, 0")
        if self.stamps:
            for i in range(10):
                a("s_mov_b64 s[%d:%d], 0" % (S_TS + 2 * i, S_TS + 2 * i + 1))
        a("s_waitcnt lgkmcnt(0)")
        def srd(base, ptr, size):
            a("s_mov_b32 s%d, s%d" % (base, ptr))
            a("s_and_b32 s%d, s%d, 0xffff" % (base + 1, ptr + 1))
            a("s_mov_b32 s%d, 0x%x" % (base + 2, size))
            a("s_mov_b32 s%d, 0x20000" % (base + 3))
        srd(SRD_X, P_U, 2048 * 640 * 2)
        srd(SRD_WG, P_WG, 640 * 1536 * 2)
        srd(SRD_WU, P_WU, 640 * 1536 * 2)
        srd(SRD_WS, P_WS, 0x10000000)
        srd(SRD_OUT, P_OUT, 2048 * 640 * 2)
        srd(SRD_WD, P_WD, 640 * 1536 * 2)
        self.stamp(0)
        if "dbgtime" in self.ph:
            a("s_memrealtime s[96:97]")
            a("s_memtime s[98:99]")
            a("s_mov_b64 s[100:101], s[62:63]")
            a("s_waitcnt lgkmcnt(0)")

    def dbgtime_end(self):
        a = self.a
        if "dbgtime" not in self.ph: return
        l = self.newlab("dbt")
        a("s_cmp_lg_u32 s2, 0"); a("s_cbranch_scc1 %s" % l)
        a("s_cmp_lg_u32 s3, 0"); a("s_cbranch_scc1 %s" % l)
        a("s_waitcnt vmcnt(0)")
        a("s_memrealtime s[92:93]")
        a("s_memtime s[94:95]")
        a("s_waitcnt lgkmcnt(0)")
        a("s_sub_u32 s92, s92, s96")
        a("s_sub_u32 s94, s94, s98")
        a("v_mov_b32 v250, 0")
        a("v_mov_b32 v252, s92")
        a("v_mov_b32 v253, s94")
        a("v_mov_b32 v254, s96")
        a("v_mov_b32 v255, 0x1234")
        a("global_store_dwordx4 v250, v[252:255], s[100:101]")
        a("s_waitcnt vmcnt(0)")
        a.lab(l)

    def rot_r(self, dst, tmp):
        a = self.a
        if "norot" in self.ph:
            a("s_mov_b32 %s, 0" % dst)
            return
        a("s_lshr_b32 %s, s5, 1" % dst)
        a("s_cmp_ge_u32 %s, 5" % dst)
        a("s_cselect_b32 %s, 1, 0" % tmp)
        a("s_cmp_ge_u32 %s, 1" % dst)
        a("s_addc_u32 %s, %s, %s" % (dst, dst, tmp))

    def g_gemm1(self):
        a = self.a
        ACC = 0; FP = 96; FQ = 136
        VXB = 176
        VWA = 182
        VL16 = 196
        T = 200
        accg = lambda ft, tt: ACC + (ft * 4 + tt) * 4
        accu = lambda ft, tt: ACC + 48 + (ft * 4 + tt) * 4
        LANE = 197
        a("v_mov_b32 v%d, v0" % LANE)
        a("s_and_b32 s67, s3, 1")
        a("s_lshr_b32 s68, s3, 1")
        VOX = 191
        a("v_lshrrev_b32 v%d, 3, v%d" % (T, LANE))
        a("s_lshl_b32 s69, s4, 7")
        a("s_lshl_b32 s70, s3, 5")
        a("s_add_u32 s69, s69, s70")
        a("v_add_u32 v%d, s69, v%d" % (T, T))
        a("s_movk_i32 s70, 1280")
        a("v_mul_lo_u32 v%d, v%d, s70" % (T, T))
        a("v_and_b32 v%d, 7, v%d" % (T + 1, LANE))
        a("v_lshrrev_b32 v%d, 4, v%d" % (T + 2, LANE))
        a("v_xor_b32 v%d, v%d, v%d" % (T + 3, T + 1, T + 2))
        a("v_xor_b32 v%d, 4, v%d" % (T + 4, T + 3))
        a("v_lshl_add_u32 v%d, v%d, 4, v%d" % (VOX, T + 3, T))
        a("v_lshl_add_u32 v%d, v%d, 4, v%d" % (VOX + 1, T + 4, T))
        a("s_lshl_b32 s75, s3, 12")
        VOW = 193
        a("s_mul_i32 s76, s3, 3072")
        a("s_add_u32 s77, s76, %d" % ST_WU)
        a("s_add_u32 s76, s76, %d" % ST_WG)
        self.rot_r("s74", "s72")
        def xdma(st):
            base = (st % 3) * STAGE
            L = []
            for i in range(4):
                if i == 0:
                    L.append(("s_lshl_b32 s72, s74, 7", "s_mul_i32 s73, s74, 196608", "s_add_u32 s74, s74, 1",
                              "s_add_u32 m0, s75, %d" % base, "s_cmp_eq_u32 s74, 10", "s_cselect_b32 s74, 0, s74",
                              "buffer_load_dwordx4 v%d, s[8:11], s72 offen lds" % VOX))
                else:
                    L.append(("s_add_u32 s70, s72, %d" % (9216 * i),
                              "buffer_load_dwordx4 v%d, s[8:11], s70 offen offset:%d lds" % (VOX + (i & 1), 1024 * i)))
            for mat, sm, srd in (() if "s3w" in self.ph else ((0, 76, "s[12:15]"), (1, 77, "s[16:19]"))):
                for i in range(3):
                    ld = "buffer_load_dwordx4 v%d, %s, s73 offen offset:%d lds" % (VOW + i, srd, 1024 * i)
                    if mat == 1 and "nowu" in self.ph: ld = "s_nop 0"
                    if i == 2 and "now2" in self.ph: ld = "s_nop 0"
                    if i == 0: L.append(("s_add_u32 m0, s%d, %d" % (sm, base), "s_nop 0", ld))
                    else: L.append(ld)
            return L
        if "ststamps" in self.ph: self.stamp(1, force=True)
        def wcalc():
            a("s_lshl_b32 s69, s3, 4")
            a("s_mul_i32 s69, s69, 3072")
            a("s_mul_i32 s70, s5, 192")
            a("s_add_u32 s69, s69, s70")
            a("s_mov_b32 s70, 43691")
            a("s_movk_i32 s71, 3072")
            for i in range(3):
                a("v_add_u32 v%d, %d, v%d" % (T, 64 * i, LANE))
                a("v_mul_lo_u32 v%d, v%d, s70" % (T + 1, T))
                a("v_lshrrev_b32 v%d, 19, v%d" % (T + 1, T + 1))
                a("v_mul_u32_u24 v%d, 12, v%d" % (T + 2, T + 1))
                a("v_sub_u32 v%d, v%d, v%d" % (T + 2, T, T + 2))
                a("v_lshrrev_b32 v%d, 2, v%d" % (T + 3, T + 1))
                a("v_and_b32 v%d, 2, v%d" % (T + 3, T + 3))
                a("v_xor_b32 v%d, v%d, v%d" % (T + 2, T + 2, T + 3))
                a("v_mul_lo_u32 v%d, v%d, s71" % (T + 1, T + 1))
                a("v_lshl_add_u32 v%d, v%d, 4, v%d" % (T + 1, T + 2, T + 1))
                a("v_add_u32 v%d, s69, v%d" % (T + 1, T + 1))
                a("v_subrev_u32 v%d, %d, v%d" % (VOW + i, 1024 * i, T + 1))

        d0 = xdma(0)
        a.ext(flat(d0[:4]))
        wcalc()
        a.ext(flat(d0[4:]))
        if "late1" not in self.ph: a.ext(flat(xdma(1)))
        if "ststamps" in self.ph: self.stamp(2, force=True)
        if "nobpre" not in self.ph: a("s_barrier")
        a("v_and_b32 v%d, 15, v%d" % (T, LANE))
        a("v_lshrrev_b32 v%d, 4, v%d" % (T + 1, LANE))
        a("s_lshl_b32 s69, s67, 6")
        a("v_add_u32 v%d, s69, v%d" % (T + 2, T))
        a("v_lshlrev_b32 v%d, 7, v%d" % (T + 2, T + 2))
        a("v_lshrrev_b32 v%d, 1, v%d" % (T + 3, T))
        a("v_and_b32 v%d, 7, v%d" % (T + 3, T + 3))
        a("v_xor_b32 v%d, v%d, v%d" % (T + 3, T + 3, T + 1))
        a("v_xor_b32 v%d, 4, v%d" % (T + 4, T + 3))
        a("v_lshl_add_u32 v%d, v%d, 4, v%d" % (VXB, T + 3, T + 2))
        a("v_lshl_add_u32 v%d, v%d, 4, v%d" % (VXB + 1, T + 4, T + 2))
        for st in (1, 2):
            for s in range(2):
                a("v_add_u32 v%d, %d, v%d" % (VXB + 2 * st + s, st * STAGE, VXB + s))
        a("v_lshrrev_b32 v%d, 2, v%d" % (T + 2, T))
        a("v_lshl_add_u32 v%d, v%d, 3, v%d" % (T + 2, T + 1, T + 2))
        a("v_mul_u32_u24 v%d, 192, v%d" % (T + 2, T + 2))
        a("v_and_b32 v%d, 3, v%d" % (T + 3, LANE))
        a("v_lshl_add_u32 v%d, v%d, 3, v%d" % (T + 2, T + 3, T + 2))
        a("v_add_u32 v%d, %d, v%d" % (T + 2, ST_WG, T + 2))
        a("v_and_b32 v%d, 1, v%d" % (T + 3, T + 1))
        a("s_lshl_b32 s69, s68, 2")
        a("s_add_u32 s78, s69, 1")
        a("s_add_u32 s79, s68, 2")
        for ft, sreg in ((0, 69), (1, 78), (2, 79)):
            a("v_xor_b32 v%d, s%d, v%d" % (T + 4, sreg, T + 3))
            a("v_lshl_add_u32 v%d, v%d, 5, v%d" % (VWA + ft, T + 4, T + 2))
        for st in (1, 2):
            for ft in range(3):
                a("v_add_u32 v%d, %d, v%d" % (VWA + 3 * st + ft, st * STAGE, VWA + ft))
        a("v_lshlrev_b32 v%d, 4, v%d" % (VL16, LANE))
        a("s_lshl_b32 s69, s4, 1")
        a("s_add_u32 s69, s69, s67")
        a("s_mul_i32 s69, s69, 48")
        a("s_mul_i32 s78, s5, 3")
        a("s_add_u32 s69, s69, s78")
        a("s_lshl_b32 s78, s68, 1")
        a("s_add_u32 s78, s78, s69")
        a("s_lshl_b32 s78, s78, 12")
        a("s_add_u32 s79, s69, 1")
        a("s_lshl_b32 s79, s79, 12")
        a("s_lshl_b32 s69, s68, 9")
        a("s_add_u32 s79, s79, s69")
        a("v_lshlrev_b32 v%d, 3, v%d" % (VL16 + 2, LANE))
        if WS_H:
            a("s_add_u32 s78, s78, %d" % WS_H); a("s_add_u32 s79, s79, %d" % WS_H)

        def reads(kk, s, F):
            st = kk % 3
            xs = ["ds_read_b128 v[%d:%d], v%d offset:%d" % (F + 4 * tt, F + 4 * tt + 3, VXB + 2 * st + s, 2048 * tt) for tt in range(4)]
            ws = []
            for mat in range(2):
                for ft in range(3):
                    r = F + 16 + (mat * 3 + ft) * 4
                    for h in range(2):
                        ws.append("ds_read_b64_tr_b16 v[%d:%d], v%d offset:%d" % (r + 2 * h, r + 2 * h + 1, VWA + 3 * st + ft, 12288 * mat + 6144 * s + 768 * h))
            order = [xs[0], ws[0], ws[1], xs[1], ws[6], ws[7], xs[2], xs[3]] + ws[2:6] + ws[8:]
            return order
        def mfmas(F, first):
            L = []
            for ft in range(3):
                for mat in range(2):
                    for tt in range(4):
                        acc = accg(ft, tt) if mat == 0 else accu(ft, tt)
                        A = F + 16 + (mat * 3 + ft) * 4
                        B = F + 4 * tt
                        c = "0" if first else "v[%d:%d]" % (acc, acc + 3)
                        L.append("v_mfma_f32_16x16x32_bf16 v[%d:%d], v[%d:%d], v[%d:%d], %s" % (acc, acc + 3, A, A + 3, B, B + 3, c))
            return L
        def spread(mm, d, first, step):
            out = []; cnt = 0; di = 0
            for x in mm:
                out.append(x)
                if x.startswith("v_mfma"):
                    cnt += 1
                    if cnt >= first and (cnt - first) % step == 0 and di < len(d):
                        f = d[di]; di += 1
                        out.extend(f if isinstance(f, tuple) else (f,))
            assert di == len(d), (di, len(d))
            return out
        self.stamp(5)
        ND = 4 if "s3w" in self.ph else (7 if "nowu" in self.ph else (8 if "now2" in self.ph else 10))
        a("s_waitcnt vmcnt(%d)" % (0 if "late1" in self.ph else ND))
        if "ststamps" in self.ph: self.stamp(3, force=True)
        a("s_barrier")
        if "ststamps" in self.ph: self.stamp(4, force=True)
        if "late1" in self.ph: a.ext(flat(xdma(1)))
        self.stamp(1)
        self.clk(1)
        a.ext(reads(0, 0, FP))
        a("s_waitcnt lgkmcnt(0)")
        pend = xdma(2)
        for kk in range(10):
            mm = interleave(mfmas(FP, kk == 0), reads(kk, 1, FQ), span=16)
            if pend: mm = spread(mm, pend, 2, (10 if len(pend) <= 2 else 5) if len(pend) <= 5 else 2)
            a.ext(mm)
            if kk <= 7: a("s_waitcnt vmcnt(%d) lgkmcnt(0)" % ND)
            elif kk == 8: a("s_waitcnt vmcnt(0) lgkmcnt(0)")
            else: a("s_waitcnt lgkmcnt(0)")
            if kk == 9 and self.fused(): self.lds_inc(LDS_SFREE, T)
            else: a("s_barrier")
            if "kstamps" in self.ph and kk < 9: self.stamp(kk + 1, force=True)
            if "ststamps" in self.ph and kk < 5: self.stamp(kk + 5, force=True)
            fill = reads(kk + 1, 0, FP) if kk + 1 < 10 else []
            mm = interleave(mfmas(FQ, False), fill, span=16)
            d = xdma(kk + 3) if kk + 3 < 10 else []
            if "dmaB" in self.ph:
                pend = []
                if d: mm = spread(mm, d, 2, 2)
            elif "dma73" in self.ph:
                pend = d[7:]
                if d: mm = spread(mm, d[:7], 2, 3)
            elif "s3w" in self.ph:
                pend = d[2:]
                if d: mm = spread(mm, d[:2], 4, 10)
            else:
                pend = d[5:]
                if d: mm = spread(mm, d[:5], 2, 5)
            a.ext(mm)
            if kk + 1 < 10:
                a("s_waitcnt lgkmcnt(0)")
        self.stamp(2)
        self.clk(3)
        epb = "epb" in self.ph and "g2" in self.ph
        if epb: CN, ONE, OUTB, TMPB, TMPS = 200, 202, 116, 152, 8
        else: CN, ONE, OUTB, TMPB, TMPS = FP, FP + 2, FP + 8, FQ, 16
        E = []
        E.append("v_mov_b32 v%d, 0xbfb8aa3b" % CN)
        E.append("v_mov_b32 v%d, 0xbfb8aa3b" % (CN + 1))
        E.append("v_mov_b32 v%d, 1.0" % ONE)
        E.append("v_mov_b32 v%d, 1.0" % (ONE + 1))
        grp = 0
        def silu(gregs, uregs, tmp, out):
            n = len(gregs)
            L = []
            for i in range(n): L.append("v_pk_mul_f32 v[%d:%d], v[%d:%d], v[%d:%d]" % (tmp + 2 * i, tmp + 2 * i + 1, gregs[i], gregs[i] + 1, CN, CN + 1))
            for i in range(2 * n): L.append("v_exp_f32 v%d, v%d" % (tmp + i, tmp + i))
            for i in range(n): L.append("v_pk_mul_f32 v[%d:%d], v[%d:%d], v[%d:%d]" % (gregs[i], gregs[i] + 1, gregs[i], gregs[i] + 1, uregs[i], uregs[i] + 1))
            for i in range(n): L.append("v_pk_add_f32 v[%d:%d], v[%d:%d], v[%d:%d]" % (tmp + 2 * i, tmp + 2 * i + 1, tmp + 2 * i, tmp + 2 * i + 1, ONE, ONE + 1))
            for i in range(2 * n): L.append("v_rcp_f32 v%d, v%d" % (tmp + i, tmp + i))
            if n < 2: L.append("s_nop 0")
            for i in range(n): L.append("v_pk_mul_f32 v[%d:%d], v[%d:%d], v[%d:%d]" % (gregs[i], gregs[i] + 1, gregs[i], gregs[i] + 1, tmp + 2 * i, tmp + 2 * i + 1))
            for i in range(n): L.append("v_cvt_pk_bf16_f32 v%d, v%d, v%d" % (out + i, gregs[i], gregs[i] + 1))
            return L
        for tt in range(4):
            tmp = TMPB + (grp % 2) * TMPS; out = OUTB + (grp % 4) * 4; grp += 1
            g = [accg(0, tt), accg(0, tt) + 2, accg(1, tt), accg(1, tt) + 2]
            u = [accu(0, tt), accu(0, tt) + 2, accu(1, tt), accu(1, tt) + 2]
            E += silu(g, u, tmp, out)
            E.append("buffer_store_dwordx4 v[%d:%d], v%d, s[20:23], s78 offen offset:%d sc1" % (out, out + 3, VL16, 1024 * tt))
            tmp = TMPB + (grp % 2) * TMPS; out = OUTB + (grp % 4) * 4; grp += 1
            g = [accg(2, tt), accg(2, tt) + 2]
            u = [accu(2, tt), accu(2, tt) + 2]
            E += silu(g, u, tmp, out)
            E.append("buffer_store_dwordx2 v[%d:%d], v%d, s[20:23], s79 offen offset:%d sc1" % (out, out + 1, VL16 + 2, 1024 * tt))
        if epb:
            self.g2_setup()
            if self.fused(): self.lds_spin(LDS_WOK, 232, treg="s80x")
            regl, dmal = self.g2_burst_atoms()
            half = len(E) // 2
            a.ext(interleave(E[:half], regl, start=4))
            if self.fused(): self.lds_spin(LDS_SFREE, 232, 4, treg="s80x")
            a.ext(interleave(E[half:], dmal))
        else:
            a.ext(E)
        self.stamp(3)
        if "g2" not in self.ph:
            a("s_waitcnt vmcnt(0)")
            self.stamp(4)

    def g_signal_h(self, nyounger):
        a = self.a
        T = 232
        if nyounger is not None: a("s_waitcnt vmcnt(%d)" % nyounger)
        if self.fused():
            l = self.newlab("fh")
            a("v_mov_b32 v%d, %d" % (T, LDS_CNT))
            a("v_mov_b32 v%d, 1" % (T + 1))
            a("s_mov_b64 exec, 1")
            a("ds_add_rtn_u32 v%d, v%d, v%d" % (T + 2, T, T + 1))
            a("s_waitcnt lgkmcnt(0)")
            a("s_mov_b64 exec, -1")
            a("v_readfirstlane_b32 s69, v%d" % (T + 2))
            a("s_nop 1")
            a("s_cmp_lg_u32 s69, 3")
            a("s_cbranch_scc1 %s" % l)
            a("s_lshl_b32 s69, s4, 5")
            a("s_add_u32 s69, s69, s5")
            a("s_lshl_b32 s69, s69, 2")
            a("s_add_u32 s69, s69, %d" % WS_FH)
            self.flag_set("s69", T)
            a.lab(l)
        self.stamp(4)

    def lds_inc(self, addr, vt):
        a = self.a
        a("v_mov_b32 v%d, %d" % (vt, addr))
        a("v_mov_b32 v%d, 1" % (vt + 1))
        a("s_mov_b64 exec, 1")
        a("ds_add_u32 v%d, v%d" % (vt, vt + 1))
        a("s_mov_b64 exec, -1")

    def lds_spin(self, addr, vt, val=1, treg=None):
        a = self.a
        st = "s78" if treg is None else "s68"
        lp = self.newlab("ls"); ld = self.newlab("ld")
        a("v_mov_b32 v%d, %d" % (vt, addr))
        a("s_mov_b32 s69, 0")
        a.lab(lp)
        a("ds_read_b32 v%d, v%d" % (vt + 1, vt))
        a("s_waitcnt lgkmcnt(0)")
        a("v_readfirstlane_b32 %s, v%d" % (st, vt + 1))
        a("s_nop 1")
        a("s_cmp_eq_u32 %s, %d" % (st, val))
        a("s_cbranch_scc1 %s" % ld)
        a("s_add_u32 s69, s69, 1")
        a("s_cmp_lt_u32 s69, 0x400000")
        a("s_cbranch_scc0 %s" % ld)
        a("s_sleep 1")
        a("s_branch %s" % lp)
        a.lab(ld)

    def s_kgen_phase1(self):
        a = self.a
        NCH = 8
        chunks = [[] for _ in range(NCH)]
        if "ssm" in self.ph:
            a("s_lshl_b32 s50, s66, 8")
            a("s_add_u32 s50, s50, s2")
            a("s_min_u32 s50, s50, 639")
            self.kgen_bases()
            if "kghead" in self.ph:
                kg = self.capture(lambda: self.kgen("head"))
                if "bigI0" in self.ph:
                    first = min(len(kg), 140 if "I0s" in self.ph else 230)
                    rest = kg[first:]
                    per = (len(rest) + NCH - 1) // NCH
                    chunk0 = kg[:first]
                    chunks = [rest[i * per:(i + 1) * per] for i in range(NCH)]
                else:
                    per = (len(kg) + NCH - 1) // NCH
                    chunks = [kg[i * per:(i + 1) * per] for i in range(NCH)]
        self.stamp(5)
        if "prioS" in self.ph: a("s_setprio 2")
        if "nobpre" not in self.ph: a("s_barrier")
        pw = "pwarm" in self.ph
        if "ssm" in self.ph and pw: self.ssm_param_warm()
        if "ssm" in self.ph and "kghead" in self.ph and not pw: self.ssm_param_loads(slots=((0, 1) if "kg2" in self.ph else (0,)))
        if "ssm" in self.ph and "pw12" in self.ph:
            a("s_mul_i32 s67, s50, 384")
            for p in (P_ARE, P_AIM, P_BRE, P_BIM, P_CRE, P_CIM):
                a("s_add_u32 s68, s%d, s67" % p)
                a("s_addc_u32 s69, s%d, 0" % (p + 1))
                a("s_load_dword s70, s[68:69], 128")
                a("s_load_dword s70, s[68:69], 256")
        a("s_barrier")
        if "ssm" in self.ph and pw:
            a("s_waitcnt lgkmcnt(0)")
            self.ssm_param_loads()
        self.stamp(1)
        if "bigI0" in self.ph and "kghead" in self.ph:
            a("s_waitcnt vmcnt(0)")
            a.ext(chunk0)
        for kk in range(10):
            if not (kk == 9 and self.fused()): a("s_barrier")
            if kk == 1 and "kghead" in self.ph and "bigI0" not in self.ph: a("s_waitcnt vmcnt(0)")
            if kk == 7 and "ssm" in self.ph and not pw:
                if "kghead" in self.ph: self.ssm_param_loads(slots=((2,) if "kg2" in self.ph else (1, 2)), scalars=False)
                else: self.ssm_param_loads()
            if "bigI0" in self.ph:
                if kk < NCH: a.ext(chunks[kk])
            elif 1 <= kk <= NCH: a.ext(chunks[kk - 1])
        self.stamp(2)

    def side_setup(self):
        a = self.a
        a("s_mov_b32 s67, 52429")
        a("s_movk_i32 s68, 1280")
        for i in range(5):
            a("v_add_u32 v1, %d, v0" % (64 * i))
            a("v_mul_lo_u32 v2, v1, s67")
            a("v_lshrrev_b32 v2, 19, v2")
            a("v_mul_u32_u24 v3, 10, v2")
            a("v_sub_u32 v3, v1, v3")
            a("v_mul_lo_u32 v2, v2, s68")
            a("v_lshl_add_u32 v%d, v3, 4, v2" % (230 + i))
        a("v_lshrrev_b32 v1, 4, v0")
        a("v_and_b32 v2, 15, v0")
        a("v_lshrrev_b32 v3, 2, v2")
        a("v_lshl_add_u32 v4, v1, 2, v3")
        a("v_mul_u32_u24 v4, 160, v4")
        a("v_add_u32 v4, %d, v4" % (STAGE if "wdlate" in self.ph else LDS_WDS_EARLY))
        a("v_and_b32 v5, 3, v0")
        a("v_lshl_add_u32 v235, v5, 4, v4")
        a("v_lshl_add_u32 v236, v5, 3, v4")
        a("v_lshlrev_b32 v237, 4, v0")
        a("v_lshlrev_b32 v241, 2, v0")
        a("v_lshl_add_u32 v4, v1, 3, v3")
        a("v_lshlrev_b32 v4, 7, v4")
        a("v_bfe_u32 v5, v0, 1, 1")
        a("v_lshrrev_b32 v6, 1, v3")
        a("v_xor_b32 v5, v5, v6")
        a("v_lshl_add_u32 v4, v5, 4, v4")
        a("v_and_b32 v5, 1, v0")
        a("v_lshl_add_u32 v4, v5, 3, v4")
        a("v_and_b32 v5, 1, v1")
        a("v_lshl_add_u32 v238, v5, 6, v4")
        a("v_xor_b32 v5, 1, v5")
        a("v_lshl_add_u32 v239, v5, 6, v4")
        a("v_mul_u32_u24 v240, %d, v2" % ROWS)
        a("v_lshl_add_u32 v240, v1, 4, v240")
        a("s_add_u32 s51, s2, 128")
        a("s_cmp_ge_u32 s2, 128")
        a("s_cselect_b32 s51, s51, 999")
        a("s_lshr_b32 s52, s5, 1")
        a("s_add_u32 s53, s52, 8")
        a("s_cmp_lt_u32 s5, 4")
        a("s_cselect_b32 s53, s53, 99")
    def wd_load(self, ureg, scr):
        a = self.a
        if "nowd" in self.ph: return
        a("s_lshr_b32 s67, %s, 3" % ureg)
        a("s_and_b32 s68, %s, 7" % ureg)
        a("s_mul_i32 s69, s67, %d" % (32 * 1280))
        a("s_mul_i32 s67, s68, 160")
        a("s_add_u32 s69, s69, s67")
        for i in range(5):
            a("s_mov_b32 m0, %d" % ((STAGE if "wdlate" in self.ph else LDS_WDS_EARLY) + scr + 1024 * i))
            a("s_nop 0")
            a("buffer_load_dwordx4 v%d, s[28:31], s69 offen lds" % (230 + i))
    def wd_store(self, ureg, scr, R=160):
        a = self.a
        if "nowd" in self.ph: return
        for dt in range(5):
            for h in range(2):
                if dt < 4: ad, off = 235, 64 * (dt >> 1) + 8 * (dt & 1) + 2560 * h
                else: ad, off = 236, 128 + 2560 * h
                a("ds_read_b64_tr_b16 v[%d:%d], v%d offset:%d" % (R + 4 * dt + 2 * h, R + 1 + 4 * dt + 2 * h, ad, off + scr))
        a("s_lshr_b32 s67, %s, 3" % ureg)
        a("s_and_b32 s68, %s, 7" % ureg)
        a("s_mul_i32 s68, s68, 48")
        a("s_add_u32 s67, s67, s68")
        a("s_mul_i32 s67, s67, 5120")
        a("s_add_u32 s67, s67, %d" % WS_WD)
        a("s_add_u32 s68, s67, 4096")
        a("s_waitcnt lgkmcnt(0)")
        for dt in range(5):
            if dt < 4: a("buffer_store_dwordx4 v[%d:%d], v237, s[20:23], s67 offen offset:%d sc1" % (R + 4 * dt, R + 3 + 4 * dt, 1024 * dt))
            else: a("buffer_store_dwordx4 v[%d:%d], v237, s[20:23], s68 offen sc1" % (R + 4 * dt, R + 3 + 4 * dt))
    def gate_load(self):
        a = self.a
        a("v_and_b32 v1, 15, v0")
        a("v_lshlrev_b32 v1, 4, v1")
        for j in range(5):
            a("global_load_dwordx4 v[%d:%d], v1, s[%d:%d] offset:%d" % (8 + 4 * j, 11 + 4 * j, P_GW, P_GW + 1, 256 * j))
        a("v_lshrrev_b32 v2, 4, v0")
        a("s_movk_i32 s67, 1280")
        a("v_mul_lo_u32 v2, v2, s67")
        a("v_add_u32 v2, v2, v1")
        a("s_lshl_b32 s67, s2, 3")
        a("s_mul_i32 s67, s67, 1280")
        for half in range(2):
            for j in range(5):
                r = 28 + 20 * half + 4 * j
                a("buffer_load_dwordx4 v[%d:%d], v2, s[8:11], s67 offen offset:%d" % (r, r + 3, 256 * j))
            if half == 0: a("s_add_u32 s67, s67, %d" % (4 * 1280))
    def gate_compute(self):
        a = self.a
        R = 68
        for i in range(4): a("v_mov_b32 v%d, 0" % (R + i))
        for j in range(5):
            for e in range(4):
                for half in range(2):
                    acc = R + half + 2 * (e & 1)
                    a("v_dot2_f32_bf16 v%d, v%d, v%d, v%d" % (acc, 28 + 20 * half + 4 * j + e, 8 + 4 * j + e, acc))
        a("s_nop 2")
        a("v_add_f32 v%d, v%d, v%d" % (R, R, R + 2))
        a("v_add_f32 v%d, v%d, v%d" % (R + 1, R + 1, R + 3))
        a("s_nop 0")
        for ctl in ("row_shr:1", "row_shr:2", "row_shr:4", "row_shr:8"):
            for i in range(2):
                a("v_add_f32_dpp v%d, v%d, v%d %s row_mask:0xf bank_mask:0xf bound_ctrl:1" % (R + i, R + i, R + i, ctl))
            a("s_nop 0")
        for i in range(2): a("v_mul_f32 v%d, 0xbfb8aa3b, v%d" % (R + i, R + i))
        for i in range(2): a("v_exp_f32 v%d, v%d" % (R + i, R + i))
        a("s_nop 0")
        for i in range(2): a("v_add_f32 v%d, 1.0, v%d" % (R + i, R + i))
        for i in range(2): a("v_rcp_f32 v%d, v%d" % (R + i, R + i))
        a("s_lshl_b32 s67, s2, 5")
        a("s_add_u32 s67, s67, %d" % WS_G)
        a("v_lshrrev_b32 v1, 4, v0")
        a("v_lshlrev_b32 v1, 2, v1")
        a("s_mov_b32 exec_lo, 0x80008000")
        a("s_mov_b32 exec_hi, 0x80008000")
        a("buffer_store_dword v%d, v1, s[20:23], s67 offen sc1" % R)
        a("buffer_store_dword v%d, v1, s[20:23], s67 offen offset:16 sc1" % (R + 1))
        a("s_mov_b64 exec, -1")
    def ut_read(self, chunk_reg, stage_base, H):
        a = self.a
        if "noutr" in self.ph: return
        a("s_and_b32 s67, %s, 1" % chunk_reg)
        a("s_cmp_eq_u32 s67, 0")
        a("s_cselect_b64 vcc, -1, 0")
        a("s_nop 0")
        a("v_cndmask_b32 v4, v239, v238, vcc")
        a("v_add_u32 v4, %d, v4" % stage_base)
        for aa in range(2):
            for it in range(4):
                for hh in range(2):
                    r = H + (aa * 4 + it) * 4 + 2 * hh
                    a("ds_read_b64_tr_b16 v[%d:%d], v4 offset:%d" % (r, r + 1, 4096 * it + 512 * hh + 32 * (aa ^ hh)))
        a("s_waitcnt lgkmcnt(0)")
    def utx_load(self, chunk_reg):
        a = self.a
        a("v_lshrrev_b32 v4, 2, v0")
        a("v_mul_u32_u24 v4, 1280, v4")
        a("v_and_b32 v5, 3, v0")
        a("v_lshl_add_u32 v4, v5, 4, v4")
        a("s_mul_i32 s67, s4, %d" % (128 * 1280))
        a("s_lshl_b32 s68, %s, 6" % chunk_reg)
        a("s_add_u32 s67, s67, s68")
        for i in range(8):
            a("s_mov_b32 m0, %d" % (LDS_WDS_EARLY + 1024 * i))
            a("s_nop 0")
            a("buffer_load_dwordx4 v4, s[8:11], s67 offen lds")
            if i < 7: a("s_add_u32 s67, s67, %d" % (16 * 1280))
    def utx_read(self, H):
        a = self.a
        a("v_lshrrev_b32 v4, 4, v0")
        a("v_and_b32 v5, 15, v0")
        a("v_lshrrev_b32 v5, 2, v5")
        a("v_lshl_add_u32 v4, v4, 3, v5")
        a("v_lshlrev_b32 v4, 6, v4")
        a("v_and_b32 v5, 3, v0")
        a("v_lshl_add_u32 v4, v5, 3, v4")
        a("v_add_u32 v4, %d, v4" % LDS_WDS_EARLY)
        for aa in range(2):
            for it in range(4):
                for hh in range(2):
                    r = H + (aa * 4 + it) * 4 + 2 * hh
                    a("ds_read_b64_tr_b16 v[%d:%d], v4 offset:%d" % (r, r + 1, 64 * (32 * it + 4 * hh) + 32 * aa))
        a("s_waitcnt lgkmcnt(0)")

    def ut_store(self, chunk_reg, H):
        a = self.a
        if "nout" in self.ph: return
        a("s_mul_i32 s67, %s, %d" % (chunk_reg, 32 * ROWS))
        a("s_lshl_b32 s68, s4, 8")
        a("s_add_u32 s67, s67, s68")
        a("s_add_u32 s67, s67, %d" % WS_UT)
        a("s_add_u32 s68, s67, %d" % (16 * ROWS))
        for aa in range(2):
            for it in range(4):
                r = H + (aa * 4 + it) * 4
                a("buffer_store_dwordx4 v[%d:%d], v240, s[20:23], s%d offen offset:%d sc1" % (r, r + 3, 67 + aa, 64 * it))

    def pretouch(self):
        a = self.a
        a("v_and_b32 v1, 7, v0")
        a("v_lshlrev_b32 v1, 21, v1")
        a("buffer_load_dword v63, v1, s[20:23], 0 offen")
        a("v_and_b32 v1, 1, v0")
        a("v_lshlrev_b32 v1, 21, v1")
        a("buffer_load_dword v63, v1, s[24:27], 0 offen")
    def warm_inputs(self):
        a = self.a
        if "norot" in self.ph:
            a("s_mov_b32 s68, 9363")
            a("v_mul_lo_u32 v1, v0, s68")
            a("v_lshrrev_b32 v1, 16, v1")
            a("v_mul_u32_u24 v2, 7, v1")
            a("v_sub_u32 v2, v0, v2")
            a("v_mul_u32_u24 v1, 1280, v1")
            a("v_lshl_add_u32 v1, v2, 7, v1")
            a("s_mul_i32 s67, s2, 10240")
            a("s_add_u32 s67, s67, 384")
            a("s_mov_b32 exec_hi, 0x00ffffff")
            a("buffer_load_dword v244, v1, s[8:11], s67 offen")
            a("s_mov_b32 exec_hi, 0x000003ff")
            a("v_lshlrev_b32 v1, 7, v0")
            a("s_mul_i32 s67, s2, %d" % (42 * 128))
            a("s_add_u32 s67, s67, %d" % (192 * 3072))
            a("buffer_load_dword v244, v1, s[12:15], s67 offen")
            a("buffer_load_dword v244, v1, s[16:19], s67 offen")
            a("s_mov_b64 exec, -1")
            return
        a("v_lshlrev_b32 v1, 7, v0")
        if "warmx" in self.ph:
            a("s_mul_i32 s67, s2, 10240")
            a("buffer_load_dword v244, v1, s[8:11], s67 offen")
            a("s_add_u32 s68, s67, 8192")
            a("s_mov_b32 exec_hi, 0")
            a("s_mov_b32 exec_lo, 0xffff")
            a("buffer_load_dword v244, v1, s[8:11], s68 offen")
            a("s_mov_b32 exec_lo, -1")
        a("s_mov_b32 exec_hi, 0x0fffffff")
        a("s_mul_i32 s67, s2, 7680")
        a("buffer_load_dword v244, v1, s[12:15], s67 offen")
        a("buffer_load_dword v244, v1, s[16:19], s67 offen")
        if "warm2" in self.ph:
            a("buffer_load_dword v244, v1, s[28:31], s67 offen")
        a("s_mov_b64 exec, -1")
        if "warm2" in self.ph or "warmp" in self.ph:
            a("v_and_b32 v1, 7, v0")
            a("v_lshlrev_b32 v1, 7, v1")
            a("s_mul_i32 s67, s2, 960")
            a("v_add_u32 v1, s67, v1")
            a("v_min_u32 v1, %d, v1" % (245760 - 4))
            a("v_lshrrev_b32 v2, 3, v0")
            a("v_mov_b32 v4, s%d" % P_ARE); a("v_mov_b32 v5, s%d" % (P_ARE + 1))
            for k, p in enumerate((P_AIM, P_BRE, P_BIM, P_CRE, P_CIM)):
                a("v_cmp_eq_u32 vcc, %d, v2" % (k + 1))
                a("v_mov_b32 v6, s%d" % p); a("v_mov_b32 v7, s%d" % (p + 1))
                a("v_cndmask_b32 v4, v4, v6, vcc")
                a("v_cndmask_b32 v5, v5, v7, vcc")
            a("v_add_co_u32 v4, vcc, v4, v1")
            a("s_nop 1")
            a("v_addc_co_u32 v5, vcc, 0, v5, vcc")
            a("global_load_dword v244, v[4:5], off")

    def warm_code(self, early=False):
        a = self.a
        n = self.name
        l = self.newlab("pc"); l2 = self.newlab("pc")
        a("s_getpc_b64 s[68:69]")
        a.lab(l)
        a("s_sub_u32 s68, s68, %s-%s" % (l, n))
        a("s_subb_u32 s69, s69, 0")
        a("s_mov_b32 s67, (%s_end-%s+4095)/4096" % (n, n))
        a("s_lshr_b32 s70, s2, 3")
        a("s_mul_i32 s70, s70, s67")
        a("v_add_u32 v1, s70, v0")
        a("v_lshlrev_b32 v1, 7, v1")
        a("v_min_u32 v1, %s_end-%s, v1" % (n, n))
        a("v_cmp_gt_u32 vcc, s67, v0")
        a("s_and_saveexec_b64 s[70:71], vcc")
        a("s_cbranch_execz %s" % l2)
        a("global_load_dword v244, v1, s[68:69]")
        a.lab(l2)
        a("s_mov_b64 exec, s[70:71]")

    def smem_warm(self, part):
        a = self.a
        if part == 0:
            a("s_mul_i32 s67, s2, 7680")
            a("s_add_u32 s70, s%d, s67" % P_WD)
            a("s_addc_u32 s71, s%d, 0" % (P_WD + 1))
        for r in range(15 * part, 15 * part + 15):
            a("s_load_dword s74, s[70:71], %d" % (r * 128))

    def s3w_setup(self):
        a = self.a
        T = 1; VO = 245
        a("s_mul_i32 s69, s5, 192")
        a("s_mov_b32 s78, 43691")
        a("s_movk_i32 s79, 3072")
        for i in range(3):
            a("v_add_u32 v%d, %d, v0" % (T, 64 * i))
            a("v_mul_lo_u32 v%d, v%d, s78" % (T + 1, T))
            a("v_lshrrev_b32 v%d, 19, v%d" % (T + 1, T + 1))
            a("v_mul_u32_u24 v%d, 12, v%d" % (T + 2, T + 1))
            a("v_sub_u32 v%d, v%d, v%d" % (T + 2, T, T + 2))
            a("v_lshrrev_b32 v%d, 2, v%d" % (T + 3, T + 1))
            a("v_and_b32 v%d, 2, v%d" % (T + 3, T + 3))
            a("v_xor_b32 v%d, v%d, v%d" % (T + 2, T + 2, T + 3))
            a("v_mul_lo_u32 v%d, v%d, s79" % (T + 1, T + 1))
            a("v_lshl_add_u32 v%d, v%d, 4, v%d" % (T + 1, T + 2, T + 1))
            a("v_add_u32 v%d, s69, v%d" % (VO + i, T + 1))
        self.rot_r("s54", "s67")
    def s3w_younger0(self):
        n = 24 + (1 if self.fused() else 0)
        if "wdlate" not in self.ph: n += 5
        return n
    def s3w_dma(self, st):
        a = self.a
        VO = 245
        base = (st % 3) * STAGE
        a("s_mul_i32 s55, s54, 196608")
        a("s_add_u32 s54, s54, 1")
        a("s_cmp_eq_u32 s54, 10")
        a("s_cselect_b32 s54, 0, s54")
        for g4 in range(4):
            if g4: a("s_add_u32 s55, s55, 49152")
            for mat, srd in ((0, "s[12:15]"), (1, "s[16:19]")):
                for i in range(3):
                    a("s_mov_b32 m0, %d" % (base + (ST_WG if mat == 0 else ST_WU) + 3072 * g4 + 1024 * i))
                    a("s_nop 0")
                    a("buffer_load_dwordx4 v%d, %s, s55 offen lds" % (VO + i, srd))

    def s_side(self):
        a = self.a
        if "noside" in self.ph:
            for b in range(11 if self.fused() else 12): a("s_barrier")
            return
        HA, HB = 100, 132
        def cond_b(fn):
            l = self.newlab("wb")
            a("s_cmp_ge_u32 s51, 384")
            a("s_cbranch_scc1 %s" % l)
            fn()
            a.lab(l)
        if "warm0" in self.ph:
            self.warm_inputs()
            if "warmc" in self.ph: self.warm_code()
        s3w = "s3w" in self.ph
        if s3w:
            self.s3w_setup()
            self.s3w_dma(0)
            self.s3w_dma(1)
        self.side_setup()
        norot = "norot" in self.ph
        if norot:
            a("s_mov_b32 s50, s5")
            a("s_add_u32 s53, s5, 16")
            a("s_cmp_lt_u32 s5, 4")
            a("s_cselect_b32 s53, s53, 99")
        else:
            self.rot_r("s50", "s67")
            a("s_and_b32 s68, s5, 1")
            a("s_lshl_b32 s50, s50, 1")
            a("s_add_u32 s50, s50, s68")
            a("s_add_u32 s53, s50, 2")
            a("s_lshr_b32 s67, s5, 1")
            a("s_and_b32 s67, s67, 3")
            a("s_cmp_eq_u32 s67, 0")
            a("s_cselect_b32 s53, s53, 99")
        if self.fused():
            a("v_mov_b32 v1, %d" % LDS_CNT)
            a("v_mov_b32 v2, 0")
            a("v_mov_b32 v3, 0")
            a("ds_write_b64 v1, v[2:3]")
            a("ds_write_b64 v1, v[2:3] offset:8")
            a("ds_write_b64 v1, v[2:3] offset:16")
            a("ds_write_b32 v1, v2 offset:24")
        self.stamp(5)
        if "nobpre" not in self.ph: a("s_barrier")
        if self.fused(): self.nonce_load()
        if norot: self.utx_load("s50")
        wdlate = "wdlate" in self.ph
        wdmid = "wdmid" in self.ph
        if not wdlate and not wdmid:
            self.wd_load("s2", 0)
            cond_b(lambda: self.wd_load("s51", 5120))
        if "warm0" not in self.ph:
            if "warmc" in self.ph: self.warm_code()
            if ("warm" in self.ph or "warm2" in self.ph) and "warmB0" not in self.ph and "warmB1" not in self.ph and not s3w: self.warm_inputs()
        if s3w: a("s_waitcnt vmcnt(%d)" % self.s3w_younger0())
        a("s_barrier")
        if s3w:
            self.s3w_dma(2)
            self.warm_inputs()
        if "warmB0" in self.ph: self.warm_inputs()
        self.stamp(1)
        if norot:
            a("s_waitcnt vmcnt(3)")
            self.utx_read(HA)
            def second():
                self.utx_load("s53")
            l_ = self.newlab("ux")
            a("s_cmp_ge_u32 s53, 20")
            a("s_cbranch_scc1 %s" % l_)
            second()
            a.lab(l_)
        else:
            self.ut_read("s50", 0, HA)
        def uflag(creg):
            a("s_lshl_b32 s69, %s, 5" % creg)
            a("s_add_u32 s69, s69, s4")
            a("s_lshl_b32 s69, s69, 2")
            a("s_add_u32 s69, s69, %d" % WS_FU)
            self.flag_set("s69", 2)
        def n_lt4(fn):
            l = self.newlab("ut")
            a("s_cmp_ge_u32 s53, 20")
            a("s_cbranch_scc1 %s" % l)
            fn()
            a.lab(l)
        def wflag(ureg):
            a("s_and_b32 s68, %s, 7" % ureg)
            a("s_lshl_b32 s68, s68, 8")
            a("s_lshr_b32 s69, %s, 3" % ureg)
            a("s_lshl_b32 s69, s69, 2")
            a("s_add_u32 s69, s69, s68")
            a("s_add_u32 s69, s69, %d" % WS_FW)
            self.flag_set("s69", 2)
        early = "utearly" in self.ph
        epb = "epb" in self.ph
        if early: self.ut_store("s50", HA)
        for kk in range(10):
            if s3w:
                if kk == 0: a("s_waitcnt vmcnt(26)")
                elif kk <= 7: a("s_waitcnt vmcnt(24)")
                elif kk == 8: a("s_waitcnt vmcnt(%d)" % (6 if (wdlate and self.fused()) else 0))
            if not (kk == 9 and self.fused()): a("s_barrier")
            if s3w and kk + 3 < 10 and kk not in (0, 1): self.s3w_dma(kk + 3)
            if kk == 0:
                if "warmB1" in self.ph: self.warm_inputs()
                if norot:
                    def rd2():
                        a("s_waitcnt vmcnt(0)")
                        self.utx_read(HB)
                    n_lt4(rd2)
                else:
                    n_lt4(lambda: self.ut_read("s53", 1 * STAGE, HB))
                if early: n_lt4(lambda: self.ut_store("s53", HB))
                if epb:
                    a("s_waitcnt vmcnt(%d)" % (8 if early else 0))
                    self.wd_store("s2", 0)
                    cond_b(lambda: self.wd_store("s51", 5120, 180))
            if kk == 1:
                if not early:
                    self.ut_store("s50", HA)
                    n_lt4(lambda: self.ut_store("s53", HB))
            if s3w and kk in (0, 1): self.s3w_dma(kk + 3)
            if kk == 3:
                a("s_waitcnt vmcnt(%d)" % (48 if s3w else 0))
                if self.fused():
                    self.nonce_publish_local()
                    if "uflate" not in self.ph:
                        uflag("s50")
                        n_lt4(lambda: uflag("s53"))
                    if epb:
                        wflag("s2")
                        cond_b(lambda: wflag("s51"))
            if kk == 7 and "uflate" in self.ph and self.fused():
                uflag("s50")
                n_lt4(lambda: uflag("s53"))
            if "swarm" in self.ph and 2 <= kk <= 5:
                self.smem_warm(kk - 2)
            if kk == 6 and wdmid:
                if "swarm" in self.ph: a("s_waitcnt lgkmcnt(0)")
                self.wd_load("s2", 0)
                cond_b(lambda: self.wd_load("s51", 5120))
            if kk == 7 and wdmid: a("s_waitcnt vmcnt(0)")
            if kk == 7 and "s3prio" in self.ph: a("s_setprio 3")
            if kk == 7 and epb:
                if self.fused():
                    self.s3_uw_look()
                    a("s_lshl_b32 s78, s7, 8")
                    a("s_add_u32 s78, s78, %d" % WS_FW)
                    self.look_line("s78", 48, 94)
                self.gate_load()
            if kk == 7 and not wdlate and not epb:
                if self.fused(): self.s3_uw_look()
                self.wd_store("s2", 0)
                cond_b(lambda: self.wd_store("s51", 5120, 180))
                self.gate_load()
            if kk == 7 and wdlate:
                if "swarm" in self.ph: a("s_waitcnt lgkmcnt(0)")
                if self.fused(): self.s3_uw_look()
                self.wd_load("s2", 0)
                cond_b(lambda: self.wd_load("s51", 5120))
            if kk == 8:
                if self.fused():
                    l = self.newlab("uw")
                    if epb:
                        self.check_line("s78", 94, 15)
                        a("v_mov_b32 v1, %d" % LDS_WOK)
                        a("v_mov_b32 v2, 1")
                        a("ds_write_b32 v1, v2")
                    else:
                        a("s_waitcnt vmcnt(%d)" % (5 if wdlate else 20))
                    a("v_cmp_eq_u32 vcc, s64, v92")
                    a("s_nop 1")
                    a("s_cmp_eq_u64 vcc, -1")
                    a("s_cbranch_scc1 %s" % l)
                    self.poll(self.s3_uw_loads, [92], 6, sleep=2)
                    a.lab(l)
                    self.s3_u_loads()
                    a("v_mov_b32 v1, %d" % LDS_UOK)
                    a("v_mov_b32 v2, 3")
                    a("ds_write_b32 v1, v2")
                    if wdlate: a("s_waitcnt vmcnt(12)")
                elif wdlate:
                    a("s_waitcnt vmcnt(0)")
                if wdlate:
                    self.wd_store("s2", 0)
                    cond_b(lambda: self.wd_store("s51", 5120, 180))
                    self.gate_load()
        self.stamp(2)
        if self.fused():
            if "s3prio" not in self.ph: a("s_setprio 2")
            if epb:
                self.lds_spin(LDS_SFREE, 2, 4)
                a("s_waitcnt vmcnt(0)")
            else:
                if wdlate: a("s_waitcnt vmcnt(15)")
                else: a("s_waitcnt vmcnt(27)")
                wflag("s2")
                cond_b(lambda: wflag("s51"))
                self.lds_spin(LDS_SFREE, 2, 4)
                if not wdlate: a("s_waitcnt vmcnt(1)")
        self.stamp(3)
        if self.fused():
            self.s3_u_copies(extra=None)
            a("s_waitcnt lgkmcnt(0)")
            a("v_mov_b32 v1, %d" % LDS_UCOK)
            a("v_mov_b32 v2, 1")
            a("ds_write_b32 v1, v2")
            a("s_setprio 0")
            self.stamp(4)
            a("s_waitcnt vmcnt(0)")
            self.gate_compute()
            a("s_waitcnt vmcnt(0)")
            a("s_lshl_b32 s69, s2, 2")
            a("s_add_u32 s69, s69, %d" % WS_FG)
            self.flag_set("s69", 2)
            if "nonearly" in self.ph: self.nonce_update()
        else:
            a("s_waitcnt vmcnt(0)")
            self.gate_compute()
            a("s_waitcnt vmcnt(0)")
            self.stamp(4)

    def s3_uw_addr(self):
        a = self.a
        a("v_lshrrev_b32 v1, 4, v0")
        a("v_lshlrev_b32 v1, 8, v1")
        a("v_add_u32 v1, s2, v1")
        a("v_mov_b32 v2, s2")
        a("v_cmp_gt_u32 vcc, 640, v1")
        a("s_nop 1")
        a("v_cndmask_b32 v1, v2, v1, vcc")
        a("v_lshrrev_b32 v1, 5, v1")
        a("v_lshlrev_b32 v1, 7, v1")
        a("v_and_b32 v2, 15, v0")
        a("v_lshl_add_u32 v1, v2, 2, v1")
        a("v_add_u32 v90, %d, v1" % WS_FU)
    def s3_uw_loads(self):
        a = self.a
        a("buffer_load_dword v92, v90, s[20:23], 0 offen sc1")
    def s3_uw_look(self):
        self.s3_uw_addr()
        self.s3_uw_loads()
    def s3_uw_check(self):
        a = self.a
        l = self.newlab("uw")
        a("s_waitcnt vmcnt(0)")
        a("v_cmp_eq_u32 vcc, s64, v92")
        a("v_cmp_eq_u32 s[76:77], s64, v93")
        a("s_nop 1")
        a("s_and_b64 vcc, vcc, s[76:77]")
        a("s_cmp_eq_u64 vcc, -1")
        a("s_cbranch_scc1 %s" % l)
        self.poll(self.s3_uw_loads, [92, 93], 6, sleep=2)
        a.lab(l)

    def s3_channels(self):
        a = self.a
        a("s_mov_b32 s70, s2")
        a("s_add_u32 s71, s2, 256")
        a("s_add_u32 s72, s2, 512")
        a("s_cmp_lt_u32 s72, 640")
        a("s_cselect_b32 s72, s72, s2")

    def s3_u_loads(self):
        a = self.a
        self.s3_channels()
        a("v_lshlrev_b32 v1, 4, v0")
        for sg in range(3):
            a("s_mul_i32 s67, s%d, %d" % (70 + sg, ROWS))
            a("s_add_u32 s67, s67, %d" % WS_UT)
            for i in range(4):
                r = 100 + 16 * sg + 4 * i
                a("buffer_load_dwordx4 v[%d:%d], v1, s[20:23], s67 offen offset:%d sc1" % (r, r + 3, 1024 * i))

    def s3_u_copies(self, extra=0):
        a = self.a
        Z = 150
        for i in range(4): a("v_mov_b32 v%d, 0" % (Z + i))
        a("v_lshlrev_b32 v2, 4, v0")
        a("v_cmp_eq_u32 vcc, 0, v0")
        for sg in range(3):
            base = LDS_UC + sg * UC_SZ
            for b in range(4):
                a("ds_write_b128 v2, v[%d:%d] offset:%d" % (Z, Z + 3, base + b * UC_STRIDE))
        for sg in range(3):
            base = LDS_UC + sg * UC_SZ
            if extra is not None: a("s_waitcnt vmcnt(%d)" % (4 * (2 - sg) + extra))
            for i in range(4):
                D = 100 + 16 * sg + 4 * i
                R3, R2 = 154 + 2 * (i & 1), 155 + 2 * (i & 1)
                Q3, Q2 = 154 + 2 * ((i + 1) & 1), 155 + 2 * ((i + 1) & 1)
                T1 = 160 + 12 * (i & 1); T0 = T1 + 4; T2 = T1 + 8
                P2 = 158
                a("v_mov_b32_dpp v%d, v%d wave_ror:1 row_mask:0xf bank_mask:0xf" % (R3, D + 3))
                a("v_mov_b32_dpp v%d, v%d wave_ror:1 row_mask:0xf bank_mask:0xf" % (R2, D + 2))
                a("v_mov_b32 v%d, v%d" % (T1 + 1, D))
                a("v_mov_b32 v%d, v%d" % (T1 + 2, D + 1))
                a("v_mov_b32 v%d, v%d" % (T1 + 3, D + 2))
                if i == 0:
                    a("v_cndmask_b32 v%d, v%d, v%d, vcc" % (T1, R3, Z))
                    a("v_cndmask_b32 v%d, v%d, v%d, vcc" % (P2, R2, Z))
                else:
                    a("v_cndmask_b32 v%d, v%d, v%d, vcc" % (T1, R3, Q3))
                    a("v_cndmask_b32 v%d, v%d, v%d, vcc" % (P2, R2, Q2))
                off = base + 4 * (96 + 256 * i)
                a("ds_write_b128 v2, v[%d:%d] offset:%d" % (D, D + 3, off + 3 * UC_STRIDE))
                a("v_alignbit_b32 v%d, v%d, v%d, 16" % (T0, T1, P2))
                a("v_alignbit_b32 v%d, v%d, v%d, 16" % (T0 + 1, D, T1))
                a("v_alignbit_b32 v%d, v%d, v%d, 16" % (T0 + 2, D + 1, D))
                a("v_alignbit_b32 v%d, v%d, v%d, 16" % (T0 + 3, D + 2, D + 1))
                a("ds_write_b128 v2, v[%d:%d] offset:%d" % (T1, T1 + 3, off + 1 * UC_STRIDE))
                a("v_mov_b32 v%d, v%d" % (T2, T0 + 1))
                a("v_mov_b32 v%d, v%d" % (T2 + 1, T0 + 2))
                a("v_mov_b32 v%d, v%d" % (T2 + 2, T0 + 3))
                a("v_alignbit_b32 v%d, v%d, v%d, 16" % (T2 + 3, D + 3, D + 2))
                a("ds_write_b128 v2, v[%d:%d] offset:%d" % (T0, T0 + 3, off + 0 * UC_STRIDE))
                a("ds_write_b128 v2, v[%d:%d] offset:%d" % (T2, T2 + 3, off + 2 * UC_STRIDE))

    def s_phase1(self):
        a = self.a
        n = self.name
        a("s_sub_u32 s66, s3, 4")
        a("s_cmp_eq_u32 s66, 3")
        a("s_cbranch_scc1 %s_sj" % n)
        self.s_kgen_phase1()
        a("s_branch %s_p1done" % n)
        a.lab("%s_sj" % n)
        self.s_side()
        a.lab("%s_p1done" % n)

    def ssm_param_loads(self, slots=(0, 1, 2), scalars=True):
        a = self.a
        a("s_mul_i32 s67, s50, 384")
        a("v_lshl_add_u32 v1, v0, 1, s67")
        for sl in slots:
            for k, p in enumerate((P_ARE, P_AIM, P_BRE, P_BIM, P_CRE, P_CIM)):
                a("global_load_ushort v%d, v1, s[%d:%d] offset:%d" % (200 + 6 * sl + k, p, p + 1, 128 * sl))
        if scalars:
            a("s_lshl_b32 s67, s50, 1")
            a("v_mov_b32 v223, s67")
            a("global_load_ushort v218, v223, s[%d:%d]" % (P_LDT, P_LDT + 1))
            a("global_load_ushort v219, v223, s[%d:%d]" % (P_DSK, P_DSK + 1))

    def ssm_param_warm(self):
        a = self.a
        a("s_mul_i32 s67, s50, 384")
        for p in (P_ARE, P_AIM, P_BRE, P_BIM, P_CRE, P_CIM):
            a("s_add_u32 s68, s%d, s67" % p)
            a("s_addc_u32 s69, s%d, 0" % (p + 1))
            for i in range(3):
                a("s_load_dword s70, s[68:69], %d" % (128 * i))
        a("s_lshl_b32 s67, s50, 1")
        a("s_and_b32 s67, s67, 0xfffffffc")
        a("s_load_dword s70, s[%d:%d], s67" % (P_LDT, P_LDT + 1))
        a("s_load_dword s70, s[%d:%d], s67" % (P_DSK, P_DSK + 1))

    def kgen_bases(self):
        a = self.a
        a("s_mul_i32 s51, s66, %d" % TAB_SZ)
        a("s_add_u32 s51, s51, %d" % LDS_TAB)
        a("s_mul_i32 s52, s66, %d" % KR_SZ)
        a("s_add_u32 s52, s52, %d" % LDS_KR)

    def kgen(self, part="all"):
        a = self.a
        if part == "all": self.kgen_bases()
        self._kgen_body(part)

    def _kgen_body(self, part):
        a = self.a
        head = part in ("all", "head", "rest"); tail = part in ("all", "tail", "rest")
        real_a = a
        if not head: a = Asm()
        a("v_and_b32 v4, 15, v0")
        a("v_lshrrev_b32 v5, 4, v0")
        a("v_mul_u32_u24 v2, %d, v4" % TABROW)
        a("v_lshl_add_u32 v2, v5, 6, v2")
        a("v_add_u32 v2, s51, v2")
        a("v_and_b32 v6, 1, v5")
        a("v_lshl_add_u32 v3, v6, 3, v2")
        a("v_xor_b32 v6, 1, v6")
        a("v_lshl_add_u32 v2, v6, 3, v2")
        a("s_mov_b32 m0, s51")
        a("s_nop 0")
        if part == "all" or (part == "rest" and not self.fused()): a("s_waitcnt vmcnt(0)")
        a("v_lshlrev_b32 v218, 16, v218")
        a("v_lshlrev_b32 v219, 16, v219")
        a("v_mul_f32 v6, 0x3fb8aa3b, v218")
        a("s_mov_b32 s67, 0x3fb8aa3b")
        a("v_fma_f32 v7, v218, s67, -v6")
        a("v_fmac_f32 v7, 0x32a57060, v218")
        a("v_exp_f32 v6, v6")
        a("v_mul_f32 v7, 0x3f317218, v7")
        a("v_fma_f32 v6, v6, v7, v6")
        a("v_cvt_pk_bf16_f32 v6, v6, v6")
        a("v_lshlrev_b32 v218, 16, v6")
        W1, W16, W256, W512, W768, W1024 = 10, 12, 14, 16, 18, 20
        WX = 22
        CB = 24
        Y = 26; P = 28; TMP1 = 30; TMP2 = 32; TMP3 = 34
        PK = 36
        V = 50
        CV = 66
        YF = 76
        AF = 92
        ACC = 108
        nopk = (part == "head") and ("pkhead" not in self.ph)
        def cmul(out, x, w, t):
            if nopk:
                return ["v_mul_f32 v%d, v%d, v%d" % (t, x + 1, w + 1),
                        "v_mul_f32 v%d, v%d, v%d" % (t + 1, x, w + 1),
                        "v_fma_f32 v%d, v%d, v%d, -v%d" % (out, x, w, t),
                        "v_fma_f32 v%d, v%d, v%d, v%d" % (out + 1, x + 1, w, t + 1)]
            return ["v_pk_mul_f32 v[%d:%d], v[%d:%d], v[%d:%d] op_sel:[0,0] op_sel_hi:[0,1]" % (t, t + 1, x, x + 1, w, w + 1),
                    "v_pk_fma_f32 v[%d:%d], v[%d:%d], v[%d:%d], v[%d:%d] op_sel:[1,1,0] op_sel_hi:[1,0,1] neg_lo:[1,0,0]" % (out, out + 1, x, x + 1, w, w + 1, t, t + 1)]
        def zipl(*ls):
            o = []
            for i in range(max(len(l) for l in ls)):
                for l in ls:
                    if i < len(l): o.append(l[i])
            return o
        cvn = [0, 0]
        def wr(val, tile, row, neg, bank=0):
            c = CV + 4 * bank + (cvn[bank] % 4); cvn[bank] += 1
            return ["v_cvt_pk_bf16_f32 v%d, v%d, %sv%d" % (c, val, "-" if neg else "", val + 1),
                    "ds_write_addtid_b32 v%d offset:%d" % (c, tile * TABTILE + row * TABROW)]
        def frag_reads(dst, tile):
            L = []
            for kk in range(4):
                L.append("ds_read_b64 v[%d:%d], v3 offset:%d" % (dst + 4 * kk, dst + 4 * kk + 1, tile * TABTILE + 16 * kk))
                L.append("ds_read_b64 v[%d:%d], v2 offset:%d" % (dst + 4 * kk + 2, dst + 4 * kk + 3, tile * TABTILE + 16 * kk))
            return L
        def mm(t, first):
            L = []
            for kk in range(4):
                c = "0" if (first and kk == 0) else "v[%d:%d]" % (ACC + 4 * t, ACC + 4 * t + 3)
                L.append("v_mfma_f32_16x16x32_bf16 v[%d:%d], v[%d:%d], v[%d:%d], %s" % (ACC + 4 * t, ACC + 4 * t + 3, AF + 4 * kk, AF + 4 * kk + 3, YF + 4 * kk, YF + 4 * kk + 3, c))
            return L
        a = real_a
        nh = 2 if "kg2" in self.ph else 1
        slots = [0, 1, 2] if part in ("all", "rest") else (list(range(nh)) if part == "head" else list(range(nh, 3)))
        for sl in slots:
            if sl == 1 and part == "tail" and not self.fused(): a("s_waitcnt vmcnt(0)")
            if sl == 2 and part in ("rest", "tail"): self.stamp(3)
            if sl == 2 and "prioT" in self.ph: a("s_setprio 2")
            if sl == slots[0] and part in ("tail", "rest") and "prioT0" in self.ph: a("s_setprio 2")
            pr = 200 + 6 * sl
            for k in range(6): a("v_lshlrev_b32 v%d, 16, v%d" % (pr + k, pr + k))
            a("v_mul_f32 v6, v218, v%d" % pr)
            a("v_mul_f32 v7, v218, v%d" % (pr + 1))
            a("v_mul_f32 v6, 0x3fb8aa3b, v6")
            a("v_mul_f32 v7, 0.15915494, v7")
            a("v_mul_f32 v8, v218, v%d" % (pr + 2))
            a("v_mul_f32 v9, v218, v%d" % (pr + 3))
            a.ext(cmul(CB, pr + 4, 8, TMP1))
            for w, k in ((W1, 1.0), (W16, 16.0), (W256, 256.0)):
                if k == 1.0:
                    a("v_exp_f32 v%d, v6" % TMP2)
                    a("v_fract_f32 v%d, v7" % TMP3)
                else:
                    lit = "0x41800000" if k == 16.0 else "0x43800000"
                    a("v_mul_f32 v%d, %s, v6" % (TMP2, lit))
                    a("v_mul_f32 v%d, %s, v7" % (TMP3, lit))
                    a("v_exp_f32 v%d, v%d" % (TMP2, TMP2))
                    a("v_fract_f32 v%d, v%d" % (TMP3, TMP3))
                a("v_cos_f32 v%d, v%d" % (w, TMP3))
                a("v_sin_f32 v%d, v%d" % (w + 1, TMP3))
                a("s_nop 0")
                a("v_mul_f32 v%d, v%d, v%d" % (w, w, TMP2))
                a("v_mul_f32 v%d, v%d, v%d" % (w + 1, w + 1, TMP2))
            if sl != slots[0]:
                a("s_waitcnt lgkmcnt(0)")
                a.ext(pend_mm2)
            LY = ["v_mov_b32 v%d, v%d" % (Y, CB), "v_mov_b32 v%d, v%d" % (Y + 1, CB + 1)] + wr(Y, 0, 0, False)
            for j in range(1, 16):
                LY += cmul(Y, Y, W16, TMP1) + wr(Y, 0, j, False)
            LA = ["v_mov_b32 v%d, 1.0" % P, "v_mov_b32 v%d, 0" % (P + 1)] + wr(P, 1, 0, True, 1)
            cur = P
            for r in range(1, 16):
                if r == 1:
                    LA += ["v_mov_b32 v%d, v%d" % (P, W1), "v_mov_b32 v%d, v%d" % (P + 1, W1 + 1)]
                    cur = P
                else:
                    dst = PK + 2 * (r // 2 - 1) if r % 2 == 0 else P
                    LA += cmul(dst, cur, W1, TMP2)
                    cur = dst
                LA += wr(cur, 1, r, True, 1)
            a.ext(zipl(LY, LA))
            a.ext(cmul(W512, W256, W256, TMP1))
            a.ext(frag_reads(YF, 0)); a.ext(frag_reads(AF, 1))
            a.ext(zipl(cmul(W768, W512, W256, TMP1), cmul(W1024, W512, W512, TMP2)))
            def pk(i): return PK + 2 * (i // 2 - 1)
            vals = []
            A2 = []
            regs = []
            for r in range(8):
                if r == 0: regs.append(W256)
                else:
                    dst = V + 2 * (r - 1) if r < 8 else None
                    A2.append(cmul(dst, pk(2 * r), W256, TMP1 if r % 2 else TMP2)); regs.append(dst)
            a.ext(zipl(sum(A2[0::2], []), sum(A2[1::2], [])))
            a("s_waitcnt lgkmcnt(0)")
            m = mm(0, sl == 0)
            L = []
            for r in range(8): L += wr(regs[r], 1, r, True)
            a.ext(interleave(m, L))
            LA = []; LB = []
            for b in range(4):
                if b == 0:
                    LA += wr(W512, 1, 8, True); LB += wr(W768, 1, 12, True, 1)
                else:
                    LA += cmul(V, pk(4 * b), W512, TMP1) + wr(V, 1, 8 + b, True)
                    LB += cmul(V + 2, pk(4 * b), W768, TMP2) + wr(V + 2, 1, 12 + b, True, 1)
            a.ext(zipl(LA, LB))
            a.ext(frag_reads(AF, 1))
            a.ext(zipl(cmul(V, W1024, W256, TMP1), cmul(V + 2, W1024, W512, TMP2)))
            a.ext(zipl(cmul(V + 4, W1024, W768, TMP1), cmul(V + 6, W1024, W1024, TMP2)))
            ws = [W1024, V, V + 2, V + 4]
            a.ext(zipl(cmul(V + 8, ws[0], pk(8), TMP1), cmul(V + 10, ws[1], pk(8), TMP2)))
            a.ext(zipl(cmul(V + 12, ws[2], pk(8), TMP1), cmul(V + 14, ws[3], pk(8), TMP2)))
            a("s_waitcnt lgkmcnt(0)")
            m = mm(1, sl == 0)
            L = []
            for i in range(4):
                L += wr(ws[i], 1, 2 * i, True) + wr(V + 8 + 2 * i, 1, 2 * i + 1, True)
            L += wr(V + 6, 1, 8, True)
            a.ext(interleave(m, L))
            a.ext(frag_reads(AF, 1))
            pend_mm2 = mm(2, sl == 0)
            if sl == slots[-1]:
                a("s_waitcnt lgkmcnt(0)")
                a.ext(pend_mm2); pend_mm2 = None
        if not tail: return
        self.stamp(1)
        A0, A1, A2r = ACC, ACC + 4, ACC + 8
        a("v_cmp_eq_u32 vcc, 0, v0")
        a("v_and_b32 v4, 15, v0")
        a("v_lshrrev_b32 v5, 4, v0")
        a("v_cndmask_b32 v6, 0, v219, vcc")
        a("v_lshlrev_b32 v7, 5, v4")
        a("v_lshl_add_u32 v7, v5, 4, v7")
        a("v_lshlrev_b32 v8, 4, v4")
        a("v_lshl_add_u32 v8, v5, 8, v8")
        a("v_cmp_gt_u32 vcc, 2, v5")
        a("v_add_f32 v%d, v%d, v6" % (A0, A0))
        a("s_nop 0")
        a("v_cndmask_b32 v7, v8, v7, vcc")
        a("v_add_u32 v7, s51, v7")
        a("v_lshlrev_b32 v8, 3, v4")
        a("v_lshl_add_u32 v8, v5, 8, v8")
        a("v_add_u32 v8, s51, v8")
        a("s_nop 4")
        a("ds_write_b128 v7, v[%d:%d]" % (A1, A1 + 3))
        a("ds_write_b64 v8, v[%d:%d] offset:1024" % (A2r, A2r + 1))
        a("ds_write_b64 v8, v[%d:%d] offset:1152" % (A2r + 2, A2r + 3))
        a("v_cvt_pk_bf16_f32 v10, v%d, v%d" % (A0 + 3, A0 + 2))
        a("v_cvt_pk_bf16_f32 v11, v%d, v%d" % (A0 + 1, A0))
        a("v_lshlrev_b32 v9, 5, v4")
        a("v_lshl_add_u32 v9, v5, 3, v9")
        a("v_sub_u32 v9, 4088, v9")
        a("v_add_u32 v9, s52, v9")
        a("ds_write_b64 v9, v[10:11]")
        a("v_and_b32 v9, 31, v0")
        a("v_lshlrev_b32 v9, 2, v9")
        a("v_add_u32 v9, s52, v9")
        a("v_mov_b32 v12, 0")
        a("ds_write_b32 v9, v12 offset:4096")
        a("v_lshlrev_b32 v13, 4, v0")
        a("v_add_u32 v14, s51, v13")
        a("v_lshlrev_b32 v15, 3, v0")
        a("v_add_u32 v15, s51, v15")
        a("v_lshlrev_b32 v16, 2, v0")
        a("v_add_u32 v16, s51, v16")
        a("v_sub_u32 v13, s52, v13")
        a("s_waitcnt lgkmcnt(0)")
        a("ds_read_b128 v[20:23], v14")
        a("ds_read_b32 v24, v14 offset:16")
        a("ds_read_b64 v[26:27], v15 offset:512")
        a("ds_read_b32 v28, v15 offset:520")
        a("ds_read2_b32 v[30:31], v16 offset0:0 offset1:1")
        a.l.pop()
        a("v_add_u32 v17, 1024, v16")
        a("ds_read2_b32 v[30:31], v17 offset0:0 offset1:1")
        a("ds_read2_b32 v[32:33], v17 offset0:64 offset1:65")
        a("v_and_b32 v18, 1, v0")
        a("v_cmp_eq_u32 vcc, 1, v18")
        a("s_waitcnt lgkmcnt(0)")
        a("v_cvt_pk_bf16_f32 v36, v28, v28")
        a("v_cvt_pk_bf16_f32 v37, v27, v27")
        a("v_cvt_pk_bf16_f32 v38, v27, v26")
        a("v_cvt_pk_bf16_f32 v39, v26, v26")
        a("ds_write_b128 v13, v[36:39] offset:3056")
        for ps in range(2):
            v0_, v1_ = 30 + 2 * ps, 31 + 2 * ps
            o = 40 + 4 * ps
            a("v_cndmask_b32 v19, v%d, v%d, vcc" % (v0_, v1_))
            a("v_cvt_pk_bf16_f32 v%d, v%d, v%d" % (o, v1_, v1_))
            a("v_cvt_pk_bf16_f32 v%d, v%d, v19" % (o + 1, v1_))
            a("v_cvt_pk_bf16_f32 v%d, v%d, v%d" % (o + 2, v0_, v0_))
            a("v_mov_b32 v%d, v%d" % (o + 3, o + 2))
        a("ds_write_b128 v13, v[40:43] offset:2032")
        a("ds_write_b128 v13, v[44:47] offset:1008")
        a("v_cvt_pk_bf16_f32 v48, v24, v23")
        a("v_cvt_pk_bf16_f32 v49, v22, v22")
        a("v_cvt_pk_bf16_f32 v50, v22, v21")
        a("v_cvt_pk_bf16_f32 v51, v20, v20")
        a("s_mov_b32 exec_hi, 0")
        a("ds_write_b128 v13, v[48:51] offset:3568")
        a("s_mov_b32 exec_hi, -1")
        if "dumpk" in self.ph:
            a("s_waitcnt lgkmcnt(0)")
            a("v_lshlrev_b32 v13, 4, v0")
            a("v_add_u32 v14, s52, v13")
            a("s_mul_i32 s67, s50, 4224")
            a("s_add_u32 s67, s67, %d" % WS_DBG)
            for i in range(5):
                a("ds_read_b128 v[20:23], v14 offset:%d" % (1024 * i))
                a("s_waitcnt lgkmcnt(0)")
                if i == 4: a("s_mov_b32 exec_hi, 0"); a("s_mov_b32 exec_lo, 0xff")
                a("s_add_u32 s68, s67, %d" % (1024 * i))
                a("buffer_store_dwordx4 v[20:23], v13, s[20:23], s68 offen")
                a("s_waitcnt vmcnt(0)")
            a("s_mov_b64 exec, -1")

    def u_look(self):
        a = self.a
        self.nonce_read(120)
        a("s_lshr_b32 s78, s50, 5")
        a("s_lshl_b32 s78, s78, 7")
        a("s_add_u32 s78, s78, %d" % WS_FU)
        a("v_and_b32 v120, 15, v0")
        a("v_lshlrev_b32 v120, 2, v120")
        a("buffer_load_dword v121, v120, s[20:23], s78 offen sc1")
    def u_prefetch(self):
        a = self.a
        l = self.newlab("uok")
        a("s_waitcnt vmcnt(0)")
        a("v_cmp_eq_u32 vcc, s64, v121")
        a("s_nop 1")
        a("s_cmp_eq_u64 vcc, -1")
        a("s_cbranch_scc1 %s" % l)
        self.poll_line("s78", 16, 120, sleep=4)
        a.lab(l)
        self.conv_loads()
        self.lds_inc(LDS_UOK, 152)

    def conv_loads(self):
        a = self.a
        a("s_mul_i32 s67, s50, %d" % ROWS)
        a("s_add_u32 s67, s67, %d" % (WS_UT - 4))
        a("v_lshlrev_b32 v1, 2, v0")
        for i in range(16):
            a("buffer_load_dwordx2 v[%d:%d], v1, s[20:23], s67 offen offset:%d sc1" % (120 + 2 * i, 121 + 2 * i, 256 * i))

    def conv(self):
        a = self.a
        D = 120
        a("s_mul_i32 s53, s66, %d" % UC_SZ)
        if LDS_UC: a("s_add_u32 s53, s53, %d" % LDS_UC)
        if not self.fused():
            a("s_mov_b32 m0, s53")
            a("v_mov_b32 v2, 0")
            for b in range(4):
                a("ds_write_addtid_b32 v2 offset:%d" % (b * UC_STRIDE))
                a("ds_write_addtid_b32 v2 offset:%d" % (b * UC_STRIDE + 33 * 4))
            a("v_cmp_eq_u32 vcc, 0, v0")
            a("s_waitcnt vmcnt(0)")
            a("v_cndmask_b32 v%d, v%d, v2, vcc" % (D, D))
            for i in range(16):
                lo, hi = D + 2 * i, D + 2 * i + 1
                o = 4 + (i % 4)
                a("v_alignbit_b32 v%d, v%d, v%d, 16" % (o, hi, lo))
                a("ds_write_addtid_b32 v%d offset:%d" % (hi, 3 * UC_STRIDE + 4 * (64 * i + 96)))
                a("ds_write_addtid_b32 v%d offset:%d" % (hi, 1 * UC_STRIDE + 4 * (64 * i + 97)))
                a("ds_write_addtid_b32 v%d offset:%d" % (o, 2 * UC_STRIDE + 4 * (64 * i + 96)))
                a("ds_write_addtid_b32 v%d offset:%d" % (o, 0 * UC_STRIDE + 4 * (64 * i + 97)))
        VU, VK = 8, 9
        a("v_and_b32 v4, 3, v0")
        a("v_mul_u32_u24 v4, %d, v4" % UC_STRIDE)
        a("v_bfe_u32 v5, v0, 2, 2")
        a("v_lshl_add_u32 v4, v5, 7, v4")
        a("v_lshrrev_b32 v5, 4, v0")
        a("v_lshl_add_u32 v4, v5, 4, v4")
        a("v_add_u32 v%d, s53, v4" % VU)
        a("v_and_b32 v6, 15, v0")
        a("v_lshlrev_b32 v7, 3, v6")
        a("v_sub_u32 v7, 120, v7")
        a("v_lshl_add_u32 v7, v5, 4, v7")
        a("v_add_u32 v%d, s52, v7" % VK)
        a("v_lshlrev_b32 v10, 3, v6")
        a("v_lshl_add_u32 v10, v5, 7, v10")
        ACC = 16; SETS = [48, 112]
        def reads(rho, S):
            L = []
            for z in range(8):
                L.append("ds_read_b128 v[%d:%d], v%d offset:%d" % (S + 4 * z, S + 4 * z + 3, VU, 512 * z + 64 * (7 - rho)))
                zz = 8 * z + rho
                L.append("ds_read_b64 v[%d:%d], v%d offset:%d" % (S + 32 + 4 * z, S + 33 + 4 * z, VK, 64 * (63 - zz)))
                L.append("ds_read_b64 v[%d:%d], v%d offset:%d" % (S + 34 + 4 * z, S + 35 + 4 * z, VK, 64 * (63 - zz) + 8))
            return L
        def mm(rho, S):
            L = []
            for ze in range(8):
                for nu in range(8 - ze):
                    n = ze + nu
                    c = "0" if (rho == 0 and ze == 0) else "v[%d:%d]" % (ACC + 4 * n, ACC + 4 * n + 3)
                    L.append("v_mfma_f32_16x16x32_bf16 v[%d:%d], v[%d:%d], v[%d:%d], %s" % (ACC + 4 * n, ACC + 4 * n + 3, S + 4 * nu, S + 4 * nu + 3, S + 32 + 4 * ze, S + 35 + 4 * ze, c))
            return L
        a("s_waitcnt lgkmcnt(0)")
        if self.fused(): self.lds_spin(LDS_UCOK, 12)
        self.stamp(4)
        a.ext(reads(0, SETS[0]))
        a("s_waitcnt lgkmcnt(0)")
        for rho in range(8):
            fill = reads(rho + 1, SETS[(rho + 1) & 1]) if rho < 7 else []
            a.ext(interleave(mm(rho, SETS[rho & 1]), fill, span=28))
            if rho < 7: a("s_waitcnt lgkmcnt(0)")
        self.stamp(7)
        a("s_mul_i32 s67, s50, %d" % ROWS)
        a("s_add_u32 s67, s67, %d" % WS_Y)
        a("s_nop 7")
        for n in range(8):
            o = 48 + 2 * n
            a("v_cvt_pk_bf16_f32 v%d, v%d, v%d" % (o, ACC + 4 * n, ACC + 4 * n + 1))
            a("v_cvt_pk_bf16_f32 v%d, v%d, v%d" % (o + 1, ACC + 4 * n + 2, ACC + 4 * n + 3))
            a("buffer_store_dwordx2 v[%d:%d], v10, s[20:23], s67 offen offset:%d sc1" % (o, o + 1, 512 * n))

    def s_ssm(self):
        a = self.a
        n = self.name
        a("s_sub_u32 s66, s3, 4")
        a("s_lshl_b32 s50, s66, 8")
        a("s_add_u32 s50, s50, s2")
        a("s_cmp_ge_u32 s66, 3")
        a("s_cbranch_scc1 %s_ssm_done" % n)
        if self.fused():
            l = self.newlab("nch")
            a("s_cmp_lt_u32 s50, 640")
            a("s_cbranch_scc1 %s" % l)
            a("s_branch %s_ssm_done" % n)
            a.lab(l)
        else:
            a("s_cmp_ge_u32 s50, 640")
            a("s_cbranch_scc1 %s_ssm_done" % n)
        if self.fused() and "g1" in self.ph:
            a("s_waitcnt vmcnt(0)")
        if "g1" not in self.ph:
            self.stamp(5)
            self.ssm_param_loads()
            self.kgen("all")
        elif "kghead" in self.ph:
            self.kgen("tail")
        else:
            self.kgen("rest")
        self.stamp(6)
        if not self.fused():
            self.conv_loads()
        self.conv()
        if "prioT" in self.ph or "prioT0" in self.ph: a("s_setprio 0")
        a("s_waitcnt vmcnt(0)")
        if self.fused():
            self.nonce_read(4)
            a("s_lshl_b32 s69, s50, 2")
            a("s_add_u32 s69, s69, %d" % WS_FY)
            self.flag_set("s69", 2)
        self.stamp(8)
        a.lab("%s_ssm_done" % n)

    G2_SETS = [80, 116, 152, 188]
    G2_VB, G2_VL, G2_VB8, G2_T, G2_VRS = 224, 228, 246, 230, 250

    def g2_setup(self):
        a = self.a
        VB, VL, VB8, T, VRS = self.G2_VB, self.G2_VL, self.G2_VB8, self.G2_T, self.G2_VRS
        a("v_mbcnt_lo_u32_b32 v%d, -1, 0" % T)
        a("v_mbcnt_hi_u32_b32 v%d, -1, v%d" % (T, T))
        a("v_lshlrev_b32 v%d, 4, v%d" % (VL, T))
        for tau in range(4):
            a("s_add_u32 s67, s3, %d" % tau)
            a("s_and_b32 s67, s67, 3")
            a("s_lshl_b32 s67, s67, 10")
            a("v_add_u32 v%d, s67, v%d" % (VB + tau, VL))
            a("v_lshlrev_b32 v%d, 3, v%d" % (VB8 + tau, T))
            a("v_add_u32 v%d, s67, v%d" % (VB8 + tau, VB8 + tau))
        a("s_mul_i32 s70, s6, 48")
        a("s_mul_i32 s67, s3, 12")
        a("s_add_u32 s70, s70, s67")
        a("s_lshl_b32 s70, s70, 12")
        if WS_H: a("s_add_u32 s70, s70, %d" % WS_H)
        a("s_mul_i32 s71, s7, 48")
        a("s_add_u32 s71, s71, s67")
        a("s_mul_i32 s71, s71, 5120")
        a("s_add_u32 s71, s71, %d" % WS_WD)
        a("s_add_u32 s72, s71, 4096")
        for tau in range(1, 4):
            a("s_add_u32 s67, s3, %d" % tau)
            a("s_and_b32 s67, s67, 3")
            a("s_mul_i32 s67, s67, 3")
            a("s_add_u32 s67, s67, %d" % (tau - 1))
            a("s_mul_i32 s67, s67, 5120")
            a("s_add_u32 s67, s67, %d" % LDS_RED)
            a("v_add_u32 v%d, s67, v%d" % (VRS + tau - 1, VL))
            a("s_mov_b32 s%d, s67" % (72 + tau))

    def g2_final_addrs(self):
        a = self.a
        T, VL = self.G2_T, self.G2_VL
        a("s_mul_i32 s67, s3, %d" % (3 * 5120))
        a("s_add_u32 s67, s67, %d" % LDS_RED)
        a("v_add_u32 v%d, s67, v%d" % (T + 1, VL))
        a("v_lshrrev_b32 v%d, 4, v%d" % (T + 2, T))
        a("v_and_b32 v%d, 15, v%d" % (T + 3, T))
        a("v_lshrrev_b32 v%d, 2, v%d" % (T + 4, T + 3))
        a("v_lshl_add_u32 v%d, v%d, 3, v%d" % (T + 5, T + 2, T + 4))
        a("v_lshl_add_u32 v%d, v%d, 2, v%d" % (T + 6, T + 2, T + 4))
        a("v_and_b32 v%d, 3, v%d" % (T + 7, T))
        a("v_lshlrev_b32 v%d, 3, v%d" % (T + 7, T + 7))
        a("s_lshl_b32 s67, s3, 5")
        a("s_add_u32 s67, s67, %d" % LDS_YT)
        a("v_add_u32 v%d, s67, v%d" % (T + 7, T + 7))
        a("v_lshl_add_u32 v%d, v%d, 7, v%d" % (T + 5, T + 5, T + 7))
        a("v_lshl_add_u32 v%d, v%d, 7, v%d" % (T + 6, T + 6, T + 7))
        a("s_lshl_b32 s67, s3, 6")
        a("s_add_u32 s67, s67, %d" % LDS_GT)
        a("v_lshl_add_u32 v%d, v%d, 2, s67" % (T + 8, T + 3))
        a("s_lshl_b32 s67, s6, 6")
        a("s_lshl_b32 s68, s3, 4")
        a("s_add_u32 s67, s67, s68")
        a("v_add_u32 v%d, s67, v%d" % (T + 9, T + 3))
        a("s_movk_i32 s68, 1280")
        a("v_mul_lo_u32 v%d, v%d, s68" % (T + 9, T + 9))
        a("s_mul_i32 s68, s7, 160")
        a("v_add_u32 v%d, s68, v%d" % (T + 9, T + 9))
        a("v_lshl_add_u32 v%d, v%d, 3, v%d" % (T + 10, T + 2, T + 9))
        a("v_lshl_add_u32 v%d, v%d, 4, v%d" % (T + 9, T + 2, T + 9))

    def g2_loadsA(self, S):
        VL = self.G2_VL
        L = []
        for dt in range(5):
            if dt < 4: L.append("buffer_load_dwordx4 v[%d:%d], v%d, s[20:23], s71 offen offset:%d sc1" % (S + 16 + 4 * dt, S + 19 + 4 * dt, VL, 1024 * dt))
            else: L.append(("buffer_load_dwordx4 v[%d:%d], v%d, s[20:23], s72 offen sc1" % (S + 16 + 4 * dt, S + 19 + 4 * dt, VL),
                            "s_add_u32 s71, s71, 5120", "s_add_u32 s72, s72, 5120"))
        return L

    def g2_burst_atoms(self):
        VL = self.G2_VL
        regl = []
        for k in range(4): regl += self.g2_loadsA(self.G2_SETS[k])
        dmal = []
        for tau in range(1, 4):
            dmal.append(("s_mov_b32 m0, s%d" % (72 + tau), "s_nop 0",
                         "buffer_load_dwordx4 v%d, s[20:23], s71 offen sc1 lds" % VL))
            for dt in range(1, 4):
                dmal.append("buffer_load_dwordx4 v%d, s[20:23], s71 offen offset:%d sc1 lds" % (VL, 1024 * dt))
            dmal.append(("s_add_u32 m0, s%d, 4096" % (72 + tau), "s_add_u32 s71, s71, 5120",
                         "buffer_load_dwordx4 v%d, s[20:23], s72 offen sc1 lds" % VL, "s_add_u32 s72, s72, 5120"))
        return regl, dmal

    def g_gemm2(self):
        a = self.a
        ACC = 0
        SETS = self.G2_SETS
        VB, VL, VB8, T, VRS = self.G2_VB, self.G2_VL, self.G2_VB8, self.G2_T, self.G2_VRS
        acc = lambda dt, tau: ACC + (dt * 4 + tau) * 4
        epb = "epb" in self.ph and "g1" in self.ph
        if not epb: self.g2_setup()
        loadsA = self.g2_loadsA
        def loadsB(S, k):
            L = []
            for tau in range(4):
                if k % 3 == 1:
                    x = ("buffer_load_dwordx2 v[%d:%d], v%d, s[20:23], s70 offen sc1" % (S + 4 * tau, S + 4 * tau + 1, VB8 + tau),
                         "buffer_load_dwordx2 v[%d:%d], v%d, s[20:23], s70 offen offset:512 sc1" % (S + 4 * tau + 2, S + 4 * tau + 3, VB8 + tau))
                else:
                    x = ("buffer_load_dwordx4 v[%d:%d], v%d, s[20:23], s70 offen sc1" % (S + 4 * tau, S + 4 * tau + 3, VB + tau),)
                L.append(x if tau < 3 else x + ("s_add_u32 s70, s70, 4096",))
            return L
        nB = lambda k: 8 if k % 3 == 1 else 4
        def mm(S, first):
            L = []
            for dt in range(5):
                for tau in range(4):
                    c = "0" if first else "v[%d:%d]" % (acc(dt, tau), acc(dt, tau) + 3)
                    L.append("v_mfma_f32_16x16x32_bf16 v[%d:%d], v[%d:%d], v[%d:%d], %s" % (acc(dt, tau), acc(dt, tau) + 3, S + 16 + 4 * dt, S + 19 + 4 * dt, S + 4 * tau, S + 4 * tau + 3, c))
            return L
        NS = 12
        pre = "g1" in self.ph and "nopre" not in self.ph
        VLOOK = 254
        if epb:
            if self.fused(): self.nonce_read(232)
            self.g_signal_h(0)
            if self.fused():
                a("s_lshr_b32 s79, s6, 1")
                a("s_lshl_b32 s79, s79, 7")
                a("s_lshl_b32 s67, s3, 4")
                a("s_add_u32 s79, s79, s67")
                a("s_add_u32 s79, s79, %d" % WS_FH)
                self.poll_line("s79", 4, VLOOK, sleep=3)
        elif "g1" in self.ph:
            if self.fused():
                self.nonce_read(232)
                a("v_mov_b32 v%d, 0" % VLOOK)
                l = self.newlab("lk"); l2 = self.newlab("lk")
                a("s_cmp_lg_u32 s3, 0")
                a("s_cbranch_scc1 %s" % l)
                a("s_lshl_b32 s79, s7, 8")
                a("s_add_u32 s79, s79, %d" % WS_FW)
                self.look_line("s79", 48, VLOOK)
                a("s_waitcnt vmcnt(1)")
                a("s_branch %s" % l2)
                a.lab(l)
                a("s_waitcnt vmcnt(0)")
                a.lab(l2)
                self.g_signal_h(None)
            else:
                self.g_signal_h(0)
        if pre and not epb:
            if self.fused():
                lo = self.newlab("ww"); ld = self.newlab("wd")
                a("s_cmp_lg_u32 s3, 0")
                a("s_cbranch_scc1 %s" % lo)
                self.lds_spin(LDS_SFREE, 232, 4)
                self.lds_spin(LDS_UOK, 232, 3)
                self.check_line("s79", VLOOK, 0)
                a("v_mov_b32 v232, %d" % LDS_WOK)
                a("v_mov_b32 v233, 1")
                a("ds_write_b32 v232, v233")
                if "hall" in self.ph:
                    a("s_lshr_b32 s79, s6, 1")
                    a("s_lshl_b32 s79, s79, 7")
                    a("s_add_u32 s79, s79, %d" % WS_FH)
                    self.look_line("s79", 16, VLOOK)
                a("s_branch %s" % ld)
                a.lab(lo)
                self.lds_spin(LDS_WOK, 232)
                a.lab(ld)
                if "hall" not in self.ph:
                    a("s_lshr_b32 s79, s6, 1")
                    a("s_lshl_b32 s79, s79, 7")
                    a("s_lshl_b32 s67, s3, 4")
                    a("s_add_u32 s79, s79, s67")
                    a("s_add_u32 s79, s79, %d" % WS_FH)
                    self.look_line("s79", 4, VLOOK)
            regl, dmal = self.g2_burst_atoms()
            a.ext(flat(regl)); a.ext(flat(dmal))
        fintrim = "fintrim" in self.ph
        if fintrim: self.g2_final_addrs()
        if not epb: self.g2_wait_inputs(looked=pre)
        self.stamp(5)
        self.clk(5)
        def srcA(k):
            if not pre: return "g"
            return "pre" if k < 4 else ("lds" if k < 7 else "g")
        def loadA_any(k):
            S = SETS[k % 4]
            if srcA(k) == "g": return loadsA(S)
            if srcA(k) == "lds":
                return ["ds_read_b128 v[%d:%d], v%d offset:%d" % (S + 16 + 4 * dt, S + 19 + 4 * dt, VRS + k - 4, 1024 * dt) for dt in range(5)]
            return []
        nL = lambda k: nB(k) + (5 if srcA(k) == "g" else 0)
        deep = "deepB" in self.ph and pre
        def M(S, dt, tau, first):
            c = "0" if first else "v[%d:%d]" % (acc(dt, tau), acc(dt, tau) + 3)
            return "v_mfma_f32_16x16x32_bf16 v[%d:%d], v[%d:%d], v[%d:%d], %s" % (acc(dt, tau), acc(dt, tau) + 3, S + 16 + 4 * dt, S + 19 + 4 * dt, S + 4 * tau, S + 4 * tau + 3, c)
        W = lambda dt, tau: "ds_write_b128 v%d, v[%d:%d] offset:%d" % (VRS + tau - 1, acc(dt, tau), acc(dt, tau) + 3, 1024 * dt)
        gk = 7 if "gok7" in self.ph else (6 if "gok6" in self.ph else NS - 4)
        if deep:
            vm = []
            def nvm(atoms): return sum(1 for x in flat(atoms) if x.startswith("buffer_"))
            def issue(tag, atoms): vm.extend([tag] * nvm(atoms))
            for k in range(4):
                L = loadsB(SETS[k], k); a.ext(flat(L)); issue(("B", k), L)
            for k in range(NS):
                S = SETS[k % 4]
                need = [i for i, t in enumerate(vm) if t in (("B", k), ("A", k))]
                rem = len(vm) - 1 - max(need)
                if srcA(k) == "lds": a("s_waitcnt vmcnt(%d) lgkmcnt(0)" % rem)
                else: a("s_waitcnt vmcnt(%d)" % rem)
                LA = loadA_any(k + 3) if k + 3 < NS else []
                LB = loadsB(S, k + 4) if k + 4 < NS else []
                if k == NS - 1 and fintrim:
                    for dt in range(5): a(M(S, dt, 1, False))
                    for dt in range(5): a(M(S, dt, 2, False))
                    for dt in range(5): a(M(S, dt, 3, False)); a(W(dt, 1))
                    for dt in range(5): a(M(S, dt, 0, False)); a(W(dt, 2))
                    for dt in range(5): a(W(dt, 3))
                else:
                    ai = 0
                    for tau in range(4):
                        for dt in range(5):
                            a(M(S, dt, tau, k == 0))
                            if dt in (1, 3) and ai < len(LA):
                                a.ext(flat([LA[ai]]));
                                if nvm([LA[ai]]): issue(("A", k + 3), [LA[ai]])
                                ai += 1
                        if LB: a.ext(flat([LB[tau]])); issue(("B", k + 4), [LB[tau]])
                    while ai < len(LA):
                        a.ext(flat([LA[ai]]))
                        if nvm([LA[ai]]): issue(("A", k + 3), [LA[ai]])
                        ai += 1
                if k == gk and self.fused(): self.lds_inc(LDS_GOK, 232)
        else:
            for k in range(3):
                a.ext(flat(loadsB(SETS[k], k) + loadA_any(k)))
            for k in range(NS):
                rem = sum(nL(j) for j in range(k + 1, min(NS - 1, k + 2) + 1))
                if srcA(k) == "lds": a("s_waitcnt vmcnt(%d) lgkmcnt(0)" % rem)
                else: a("s_waitcnt vmcnt(%d)" % rem)
                fill = (loadsB(SETS[(k + 3) % 4], k + 3) + loadA_any(k + 3)) if k + 3 < NS else []
                if "k2stamps" in self.ph and k < 9: self.stamp(k + 1, force=True)
                if k == NS - 1 and fintrim:
                    S = SETS[k % 4]
                    for dt in range(5): a(M(S, dt, 1, False))
                    for dt in range(5): a(M(S, dt, 2, False))
                    for dt in range(5): a(M(S, dt, 3, False)); a(W(dt, 1))
                    for dt in range(5): a(M(S, dt, 0, False)); a(W(dt, 2))
                    for dt in range(5): a(W(dt, 3))
                else:
                    a.ext(interleave(mm(SETS[k % 4], k == 0), fill))
                if k == gk and self.fused(): self.lds_inc(LDS_GOK, 232)
        self.stamp(6)
        self.clk(7)
        if not fintrim:
            a("s_nop 7")
            for tau in range(1, 4):
                for dt in range(5):
                    a("ds_write_b128 v%d, v[%d:%d] offset:%d" % (VRS + tau - 1, acc(dt, tau), acc(dt, tau) + 3, 1024 * dt))
        a("s_waitcnt lgkmcnt(0)")
        a("s_barrier")
        self.stamp(7)
        if not fintrim: self.g2_final_addrs()
        R = 80
        for j in range(3):
            for dt in range(5):
                r = R + (j * 5 + dt) * 4
                a("ds_read_b128 v[%d:%d], v%d offset:%d" % (r, r + 3, T + 1, 5120 * j + 1024 * dt))
        Y = 140
        for dt in range(5):
            if dt < 4: a("ds_read_b64_tr_b16 v[%d:%d], v%d offset:%d" % (Y + 2 * dt, Y + 2 * dt + 1, T + 5, 128 * (32 * (dt >> 1) + 4 * (dt & 1))))
            else: a("ds_read_b64_tr_b16 v[%d:%d], v%d offset:%d" % (Y + 2 * dt, Y + 2 * dt + 1, T + 6, 128 * 64))
        a("ds_read_b32 v%d, v%d" % (T + 8, T + 8))
        a("s_waitcnt lgkmcnt(0)")
        for dt in range(5):
            for h in range(2):
                x = acc(dt, 0) + 2 * h
                p = [R + (j * 5 + dt) * 4 + 2 * h for j in range(3)]
                a("v_pk_add_f32 v[%d:%d], v[%d:%d], v[%d:%d]" % (p[0], p[0] + 1, p[0], p[0] + 1, p[1], p[1] + 1))
                a("v_pk_add_f32 v[%d:%d], v[%d:%d], v[%d:%d]" % (x, x + 1, x, x + 1, p[2], p[2] + 1))
        for dt in range(5):
            for h in range(2):
                x = acc(dt, 0) + 2 * h
                p = R + dt * 4 + 2 * h
                a("v_pk_add_f32 v[%d:%d], v[%d:%d], v[%d:%d]" % (x, x + 1, x, x + 1, p, p + 1))
        U = 150
        for dt in range(5):
            for h in range(2):
                a("v_lshlrev_b32 v%d, 16, v%d" % (U + 4 * dt + 2 * h, Y + 2 * dt + h))
                a("v_and_b32 v%d, 0xffff0000, v%d" % (U + 4 * dt + 2 * h + 1, Y + 2 * dt + h))
        G2 = T + 12
        assert G2 % 2 == 0
        a("v_mov_b32 v%d, v%d" % (G2, T + 8))
        a("v_mov_b32 v%d, v%d" % (G2 + 1, T + 8))
        for dt in range(5):
            for h in range(2):
                x = acc(dt, 0) + 2 * h; u = U + 4 * dt + 2 * h
                a("v_pk_add_f32 v[%d:%d], v[%d:%d], v[%d:%d] neg_lo:[0,1] neg_hi:[0,1]" % (u, u + 1, u, u + 1, x, x + 1))
        for dt in range(5):
            for h in range(2):
                x = acc(dt, 0) + 2 * h; u = U + 4 * dt + 2 * h
                a("v_pk_fma_f32 v[%d:%d], v[%d:%d], v[%d:%d], v[%d:%d]" % (x, x + 1, u, u + 1, G2, G2 + 1, x, x + 1))
        O = 176
        for dt in range(5):
            for h in range(2):
                x = acc(dt, 0) + 2 * h
                a("v_cvt_pk_bf16_f32 v%d, v%d, v%d" % (O + 2 * dt + h, x, x + 1))
        fl = " sc1" if "outsc1" in self.ph else (" nt" if "outnt" in self.ph else "")
        a("buffer_store_dwordx4 v[%d:%d], v%d, s[24:27], 0 offen%s" % (O, O + 3, T + 9, fl))
        a("buffer_store_dwordx4 v[%d:%d], v%d, s[24:27], 0 offen offset:64%s" % (O + 4, O + 7, T + 9, fl))
        a("buffer_store_dwordx2 v[%d:%d], v%d, s[24:27], 0 offen offset:128%s" % (O + 8, O + 9, T + 10, fl))
        self.stamp(8)

    def g2_wait_inputs(self, looked=False):
        if not self.fused(): return
        a = self.a
        T = 232
        if looked and "hall" not in self.ph:
            self.check_line("s79", 254, 35, sleep=4)
            return
        lo = self.newlab("hw"); ld = self.newlab("hd")
        a("s_cmp_lg_u32 s3, 0")
        a("s_cbranch_scc1 %s" % lo)
        if looked:
            self.check_line("s79", 254, 35)
        else:
            a("s_lshr_b32 s78, s6, 1")
            a("s_lshl_b32 s78, s78, 7")
            a("s_add_u32 s78, s78, %d" % WS_FH)
            self.poll_line("s78", 16, T, sleep=4)
        a("v_mov_b32 v%d, %d" % (T, LDS_HOK))
        a("v_mov_b32 v%d, 1" % (T + 1))
        a("ds_write_b32 v%d, v%d" % (T, T + 1))
        a("s_branch %s" % ld)
        a.lab(lo)
        self.lds_spin(LDS_HOK, T)
        a.lab(ld)

    def s_final(self):
        a = self.a
        n = self.name
        l = self.newlab("fin")
        a("s_cmp_lg_u32 s3, 7")
        a("s_cbranch_scc1 %s" % l)
        if self.fused(): self.lds_spin(LDS_GOK, 2, 4)
        self.y_wait_inputs()
        a("v_mbcnt_lo_u32_b32 v0, -1, 0")
        a("v_mbcnt_hi_u32_b32 v0, -1, v0")
        a("v_lshrrev_b32 v1, 3, v0")
        a("v_mul_u32_u24 v1, %d, v1" % ROWS)
        a("v_and_b32 v2, 7, v0")
        a("v_lshl_add_u32 v1, v2, 4, v1")
        a("s_mul_i32 s67, s7, %d" % (80 * ROWS))
        a("s_lshl_b32 s68, s6, 7")
        a("s_add_u32 s67, s67, s68")
        a("s_add_u32 s67, s67, %d" % WS_Y)
        for i in range(10):
            a("buffer_load_dwordx4 v[%d:%d], v1, s[20:23], s67 offen sc1" % (8 + 4 * i, 11 + 4 * i))
            if i < 9: a("s_add_u32 s67, s67, %d" % (8 * ROWS))
        a("s_lshl_b32 s67, s6, 8")
        a("s_add_u32 s67, s67, %d" % WS_G)
        a("v_lshlrev_b32 v3, 2, v0")
        a("buffer_load_dword v4, v3, s[20:23], s67 offen sc1")
        if self.fused() and "nonearly" not in self.ph: self.nonce_look()
        a("v_lshlrev_b32 v2, 4, v0")
        a("v_add_u32 v2, %d, v2" % LDS_YT)
        a("v_add_u32 v3, %d, v3" % LDS_GT)
        a("s_waitcnt vmcnt(0)")
        for i in range(10):
            a("ds_write_b128 v2, v[%d:%d] offset:%d" % (8 + 4 * i, 11 + 4 * i, 1024 * i))
        a("ds_write_b32 v3, v4")
        a("s_waitcnt lgkmcnt(0)")
        a("s_barrier")
        if self.fused() and "nonearly" not in self.ph: self.nonce_update(looked=True)
        a("s_branch %s_fd" % l)
        a.lab(l)
        a("s_barrier")
        a.lab("%s_fd" % l)

    def y_wait_inputs(self):
        if not self.fused(): return
        a = self.a
        a("v_mbcnt_lo_u32_b32 v0, -1, 0")
        a("v_mbcnt_hi_u32_b32 v0, -1, v0")
        a("s_mul_i32 s67, s7, 320")
        a("s_add_u32 s67, s67, %d" % WS_FY)
        a("v_lshl_add_u32 v1, v0, 2, s67")
        a("v_add_u32 v2, 256, v1")
        a("s_lshl_b32 s68, s6, 5")
        a("s_add_u32 s68, s68, %d" % (WS_FG - 64))
        a("v_lshl_add_u32 v3, v0, 2, s68")
        a("v_cmp_le_u32 vcc, 16, v0")
        a("s_nop 1")
        a("v_cndmask_b32 v2, v2, v3, vcc")
        a("v_subrev_u32 v3, 24, v0")
        a("v_lshlrev_b32 v3, 10, v3")
        a("s_lshl_b32 s68, s2, 2")
        a("s_add_u32 s68, s68, %d" % WS_FY)
        a("v_add_u32 v3, s68, v3")
        a("v_cmp_le_u32 vcc, 24, v0")
        a("s_nop 1")
        a("v_cndmask_b32 v2, v2, v3, vcc")
        a("s_cmp_lt_u32 s2, 128")
        a("s_cselect_b32 s68, 27, 26")
        a("v_mov_b32 v3, s67")
        a("v_cmp_le_u32 vcc, s68, v0")
        a("s_nop 1")
        a("v_cndmask_b32 v2, v2, v3, vcc")
        def loads():
            a("buffer_load_dword v4, v1, s[20:23], 0 offen sc1")
            a("buffer_load_dword v5, v2, s[20:23], 0 offen sc1")
        self.poll(loads, [4, 5], 6, sleep=8)

    def fused(self): return "fused" in self.ph

    def nonce_load(self):
        a = self.a
        if "snonce" in self.ph:
            a("s_add_u32 s68, s%d, %d" % (P_WS, WS_NON))
            a("s_addc_u32 s69, s%d, 0" % (P_WS + 1))
            a("s_load_dword s55, s[68:69], 0")
            return
        a("v_mov_b32 v1, 0")
        a("s_mov_b32 s67, %d" % WS_NON)
        a("buffer_load_dword v242, v1, s[20:23], s67 offen sc1")
    def nonce_publish_local(self):
        a = self.a
        if "snonce" in self.ph:
            a("s_waitcnt lgkmcnt(0)")
            a("s_add_u32 s64, s55, 1")
            a("v_mov_b32 v242, s64")
            a("v_mov_b32 v1, %d" % LDS_NONCE)
            a("ds_write_b32 v1, v242")
            return
        a("v_add_u32 v242, 1, v242")
        a("v_mov_b32 v1, %d" % LDS_NONCE)
        a("ds_write_b32 v1, v242")
        a("v_readfirstlane_b32 s64, v242")
    def nonce_look(self):
        a = self.a
        l = self.newlab("nl")
        a("v_mov_b32 v59, 0")
        a("s_cmp_lg_u32 s2, 0")
        a("s_cbranch_scc1 %s" % l)
        a("v_lshlrev_b32 v59, 4, v0")
        a("s_mov_b32 s78, %d" % WS_FG)
        a("buffer_load_dwordx4 v[60:63], v59, s[20:23], s78 offen sc1")
        a.lab(l)
    def nonce_update(self, looked=False):
        a = self.a
        l = self.newlab("nu"); l2 = self.newlab("nu")
        a("s_cmp_lg_u32 s2, 0")
        a("s_cbranch_scc1 %s" % l)
        if looked:
            for i in range(4):
                if i == 0: a("v_cmp_eq_u32 vcc, s64, v60")
                else:
                    a("v_cmp_eq_u32 s[76:77], s64, v%d" % (60 + i))
                    a("s_nop 1")
                    a("s_and_b64 vcc, vcc, s[76:77]")
            a("s_nop 1")
            a("s_cmp_eq_u64 vcc, -1")
            a("s_cbranch_scc1 %s" % l2)
        a("v_mbcnt_lo_u32_b32 v2, -1, 0")
        a("v_mbcnt_hi_u32_b32 v2, -1, v2")
        a("v_lshlrev_b32 v2, 4, v2")
        a("s_mov_b32 s78, %d" % WS_FG)
        self.poll(lambda: a("buffer_load_dwordx4 v[4:7], v2, s[20:23], s78 offen sc1"), [4, 5, 6, 7], 2, sleep=8)
        a.lab(l2)
        a("s_mov_b32 s69, %d" % WS_NON)
        self.flag_set("s69", 2)
        a.lab(l)

    def nonce_read(self, vt):
        a = self.a
        a("v_mov_b32 v%d, %d" % (vt, LDS_NONCE))
        a("ds_read_b32 v%d, v%d" % (vt, vt))
        a("s_waitcnt lgkmcnt(0)")
        a("v_readfirstlane_b32 s64, v%d" % vt)
        a("s_nop 1")

    def flag_set(self, soff_reg, vt):
        a = self.a
        a("v_mov_b32 v%d, s64" % vt)
        a("v_mov_b32 v%d, 0" % (vt + 1))
        a("s_mov_b64 exec, 1")
        a("buffer_store_dword v%d, v%d, s[20:23], %s offen sc1" % (vt, vt + 1, soff_reg))
        a("s_mov_b64 exec, -1")

    def poll(self, loads, vregs, vt, sleep=8):
        a = self.a
        lp = self.newlab("pl"); ld = self.newlab("pd")
        a("s_mov_b32 s69, 0")
        a.lab(lp)
        loads()
        a("s_waitcnt vmcnt(0)")
        for i, r in enumerate(vregs):
            if i == 0: a("v_cmp_eq_u32 vcc, s64, v%d" % r)
            else:
                a("v_cmp_eq_u32 s[76:77], s64, v%d" % r)
                a("s_nop 1")
                a("s_and_b64 vcc, vcc, s[76:77]")
        a("s_nop 1")
        a("s_cmp_eq_u64 vcc, -1")
        a("s_cbranch_scc1 %s" % ld)
        a("s_add_u32 s69, s69, 1")
        a("s_cmp_lt_u32 s69, 0x40000")
        a("s_cbranch_scc0 %s" % ld)
        a("s_sleep %d" % sleep)
        a("s_branch %s" % lp)
        a.lab(ld)

    def look_line(self, soff, nflags, vt):
        a = self.a
        a("v_mbcnt_lo_u32_b32 v%d, -1, 0" % vt)
        a("v_mbcnt_hi_u32_b32 v%d, -1, v%d" % (vt, vt))
        a("v_cmp_gt_u32 vcc, %d, v%d" % (nflags, vt))
        a("v_lshlrev_b32 v%d, 2, v%d" % (vt, vt))
        a("s_nop 0")
        a("v_cndmask_b32 v%d, 0, v%d, vcc" % (vt, vt))
        a("buffer_load_dword v%d, v%d, s[20:23], %s offen sc1" % (vt + 1, vt, soff))

    def check_line(self, soff, vt, nyounger, sleep=2):
        a = self.a
        l = self.newlab("ck")
        a("s_waitcnt vmcnt(%d)" % nyounger)
        a("v_cmp_eq_u32 vcc, s64, v%d" % (vt + 1))
        a("s_nop 1")
        a("s_cmp_eq_u64 vcc, -1")
        a("s_cbranch_scc1 %s" % l)
        self.poll(lambda: a("buffer_load_dword v%d, v%d, s[20:23], %s offen sc1" % (vt + 1, vt, soff)), [vt + 1], vt, sleep)
        a.lab(l)

    def poll_line(self, soff, nflags, vt, sleep=8):
        a = self.a
        a("v_mbcnt_lo_u32_b32 v%d, -1, 0" % vt)
        a("v_mbcnt_hi_u32_b32 v%d, -1, v%d" % (vt, vt))
        a("v_cmp_gt_u32 vcc, %d, v%d" % (nflags, vt))
        a("v_lshlrev_b32 v%d, 2, v%d" % (vt, vt))
        a("s_nop 0")
        a("v_cndmask_b32 v%d, 0, v%d, vcc" % (vt, vt))
        self.poll(lambda: a("buffer_load_dword v%d, v%d, s[20:23], %s offen sc1" % (vt + 1, vt, soff)), [vt + 1], vt, sleep)

    def build(self):
        a = self.a
        n = self.name
        a.l.append(".globl %s" % n)
        a.l.append(".p2align 8")
        a.l.append(".type %s,@function" % n)
        a.l.append("%s:" % n)
        self.prologue()
        a("s_cmp_ge_u32 s3, 4")
        a("s_cbranch_scc1 %s_S" % n)
        if "g1" in self.ph:
            self.g_gemm1()
        if "g2" in self.ph:
            self.g_gemm2()
        self.dbgtime_end()
        self.stamp_flush()
        a("s_endpgm")
        a.lab("%s_S" % n)
        if "g1" in self.ph:
            self.s_phase1()
        if "ssm" in self.ph:
            self.s_ssm()
        if "g2" in self.ph:
            self.s_final()
        self.stamp_flush()
        a.lab("%s_end" % n)
        a("s_endpgm")
        return a.text()

def kd(name):
    return """.amdhsa_kernel %s
  .amdhsa_next_free_vgpr 256
  .amdhsa_next_free_sgpr 102
  .amdhsa_accum_offset 256
  .amdhsa_group_segment_fixed_size 0
  .amdhsa_kernarg_size 136
  .amdhsa_user_sgpr_count 2
  .amdhsa_user_sgpr_kernarg_segment_ptr 1
  .amdhsa_system_sgpr_workgroup_id_x 1
.end_amdhsa_kernel
""" % name

HEADER = open("gated_mix__ssm_conv_s4__swiglu_ffn__prompt.s.ref").read().split("; Override launch")[0]

DOC = """;
;     by buffer_load ... lds, k order rotated per workgroup); epilogue h = silu(g) * u -> bf16, stored as MFMA B fragments in d_ws.
;     values = r + 16 j patterns, so exp factors into two small power tables (complex recurrences) contracted over the 192 modes
"""

def emit(kernels, path):
    txt = HEADER
    if len(kernels) == 1:
        txt += "; @launch grid=(256,1,1) block=(512,1,1) lds=%d\n" % LDS_TOTAL
    else:
        for (n, p, s) in kernels:
            txt += "; @launch kernel=%s grid=(256,1,1) block=(512,1,1) lds=%d\n" % (n, LDS_TOTAL)
    txt += DOC
    txt += '.amdgcn_target "amdgcn-amd-amdhsa--gfx950"\n.text\n'
    for (n, p, s) in kernels:
        txt += Gen(n, p, s).build()
    txt += '.section .rodata,"a"\n'
    for (n, p, s) in kernels:
        txt += ".p2align 6\n" + kd(n)
    open(path, "w").write(txt)

if __name__ == "__main__":
    mode = sys.argv[1]; path = sys.argv[2]
    stamps = len(sys.argv) > 3 and sys.argv[3] == "stamps"
    if mode.startswith("g1+") or mode == "g1":
        emit([(KNAME, set(mode.split("+")), stamps)], path)
    elif mode == "g1,ssm":
        emit([("ka_kernel", {"g1"}, False), ("kb_kernel", {"ssm", "dumpk"}, stamps)], path)
    elif mode == "3k":
        emit([("ka_kernel", {"g1"}, False), ("kb_kernel", {"ssm"}, False), ("kc_kernel", {"g2"}, stamps)], path)
    elif mode == "3k+1":
        emit([("ka_kernel", {"g1"}, False), ("kb_kernel", {"ssm"}, False), ("kc_kernel", {"g2"}, stamps), ("kd_kernel", set(), False)], path)
    elif mode == "3k+3":
        emit([("ka_kernel", {"g1"}, False), ("kb_kernel", {"ssm"}, False), ("kc_kernel", {"g2"}, stamps), ("kd_kernel", set(), False), ("ke_kernel", set(), False), ("kf_kernel", set(), False)], path)
    elif mode == "3k_dbg":
        emit([("ka_kernel", {"g1", "dbgtime"}, False), ("kb_kernel", {"ssm"}, False), ("kc_kernel", {"g2", "dbgtime"}, False)], path)
    elif mode == "fused":
        emit([(KNAME, {"g1", "ssm", "g2", "fused"}, stamps)], path)
    elif mode == "fused_notouch":
        emit([(KNAME, {"g1", "ssm", "g2", "fused", "notouch"}, stamps)], path)
    elif mode == "fused_pk":
        emit([(KNAME, {"g1", "ssm", "g2", "fused", "pkhead"}, stamps)], path)
    elif mode.startswith("F:"):
        emit([(KNAME, {"g1", "ssm", "g2", "fused"} | set(mode[2:].split("+")), stamps)], path)
    elif mode == "fused_dbg":
        emit([(KNAME, {"g1", "ssm", "g2", "fused", "dbgtime"}, stamps)], path)
    elif mode == "g1,ssm,nodump":
        emit([("ka_kernel", {"g1"}, False), ("kb_kernel", {"ssm"}, stamps)], path)
```

```python
import sys, math

KNAME = "gated_mix__ssm_conv_s4__swiglu_ffn__prompt_kernel"

WS_H    = 0x000000
WS_WD   = 0x600000
ROWS    = 4224
WS_UT   = 0x800000
WS_Y    = 0xB00000
WS_G    = 0xE00000
WS_FU   = 0xE10000
WS_FW   = 0xE15000
WS_FH   = 0xE11000
WS_FY   = 0xE12000
WS_NON  = 0xE13000
WS_FG   = 0xE14000
WS_TS   = 0xF00000
WS_DBG  = 0x1000000

STAGE   = 40960
ST_WG   = 16384
ST_WU   = 28672
LDS_S   = 3 * STAGE
TABROW  = 272
TABTILE = 16 * TABROW
TAB_SZ  = 2 * TABTILE
LDS_TAB = LDS_S
KR_SZ   = 4224
LDS_KR  = LDS_TAB + 3 * TAB_SZ
LDS_MISC = LDS_KR + 3 * KR_SZ
LDS_TOTAL = 163840
LDS_NONCE = LDS_MISC
LDS_CNT   = LDS_MISC + 8
UC_STRIDE = 4640
UC_SZ   = 4 * UC_STRIDE
LDS_UC  = 0
LDS_WDS_EARLY = 148992
LDS_RED = 57344
LDS_YT  = LDS_TAB
LDS_GT  = LDS_MISC + 64
LDS_HOK = LDS_MISC + 12
LDS_WOK = LDS_MISC + 16
LDS_UOK = LDS_MISC + 20
LDS_GOK = LDS_MISC + 24
LDS_UCOK = LDS_MISC + 28
LDS_SFREE = LDS_MISC + 32

class Asm:
    def __init__(self):
        self.l = []
    def __call__(self, s):
        for x in s.split("\n"):
            x = x.strip()
            if x: self.l.append("    " + x)
    def lab(self, s):
        self.l.append(s + ":")
    def ext(self, lst):
        for x in lst: self(x)
    def text(self):
        return "\n".join(self.l) + "\n"

def interleave(main, fill, start=0, span=None):
    out = []
    m = len(fill)
    n = len(main) if span is None else min(len(main), start + span)
    j = 0
    for i, x in enumerate(main):
        out.append(x)
        if i >= start:
            tgt = (m * (i - start + 1) + (n - start) - 1) // (n - start) if n > start else m
            while j < min(tgt, m):
                f = fill[j]
                if isinstance(f, tuple): out.extend(f)
                else: out.append(f)
                j += 1
    while j < m:
        f = fill[j]
        if isinstance(f, tuple): out.extend(f)
        else: out.append(f)
        j += 1
    return out

def flat(L):
    o = []
    for x in L:
        if isinstance(x, tuple): o.extend(x)
        else: o.append(x)
    return o

def vr(a, n=1):
    return "v%d" % a if n == 1 else "v[%d:%d]" % (a, a + n - 1)
def sr(a, n=1):
    return "s%d" % a if n == 1 else "s[%d:%d]" % (a, a + n - 1)

S_W, S_WAVE, S_M, S_N, S_M2, S_N2 = 2, 3, 4, 5, 6, 7
SRD_X, SRD_WG, SRD_WU, SRD_WS, SRD_OUT, SRD_WD = 8, 12, 16, 20, 24, 28
P_U, P_ARE, P_AIM, P_BRE, P_BIM, P_CRE, P_CIM, P_LDT = 32, 34, 36, 38, 40, 42, 44, 46
P_DSK, P_BX, P_WG, P_WU, P_WD, P_GW, P_OUT, P_DBG, P_WS = 48, 50, 52, 54, 56, 58, 60, 62, 64
S_TS = 80

class Gen:
    def __init__(self, name, phases, stamps=False):
        self.name = name
        self.ph = phases
        self.a = Asm()
        self.stamps = stamps
        self.nlab = 0
    def newlab(self, p):
        self.nlab += 1
        return "L_%s_%s_%d" % (self.name[:6], p, self.nlab)

    def capture(self, fn):
        old = self.a
        self.a = Asm()
        fn()
        lst = [x.strip() for x in self.a.l]
        self.a = old
        return lst

    def clk(self, i):
        if "clk" in self.ph and self.stamps:
            self.a("s_memrealtime s[%d:%d]" % (S_TS + 2 * i, S_TS + 2 * i + 1))
            self.a("s_memtime s[%d:%d]" % (S_TS + 2 * i + 2, S_TS + 2 * i + 3))
            self.a("s_waitcnt lgkmcnt(0)")

    def stamp(self, i, force=False):
        if "clk" in self.ph and i != 0: return
        if ("kstamps" in self.ph or "k2stamps" in self.ph or "ststamps" in self.ph) and not force and i != 0: return
        if self.stamps:
            self.a("%s s[%d:%d]" % ("s_memrealtime" if "rt" in self.ph else "s_memtime", S_TS + 2 * i, S_TS + 2 * i + 1))
            self.a("s_waitcnt lgkmcnt(0)")
    def stamp_flush(self):
        if not self.stamps: return
        a = self.a
        a("s_lshl_b32 s66, s2, 3")
        a("s_add_u32 s66, s66, s3")
        a("s_lshl_b32 s66, s66, 7")
        a("s_add_u32 s66, s66, 0x%x" % WS_TS)
        a("v_mov_b32 v250, 0")
        for i in range(10):
            a("v_mov_b32 v252, s%d" % (S_TS + 2 * i))
            a("v_mov_b32 v253, s%d" % (S_TS + 2 * i + 1))
            a("buffer_store_dwordx2 v[252:253], v250, s[20:23], s66 offen offset:%d" % (8 * i))
            a("s_nop 1")
        a("s_waitcnt vmcnt(0)")

    def prologue(self):
        a = self.a
        a("s_cmp_ge_u32 s2, 256")
        a("s_cbranch_scc1 %s_end" % self.name)
        a("s_load_dwordx16 s[32:47], s[0:1], 0")
        a("s_load_dwordx16 s[48:63], s[0:1], 64")
        a("s_load_dwordx2 s[64:65], s[0:1], 128")
        if "warmc0" in self.ph: self.warm_code(early=True)
        a("v_lshrrev_b32 v1, 6, v0")
        a("v_and_b32 v0, 63, v0")
        a("v_readfirstlane_b32 s3, v1")
        a("s_and_b32 s66, s2, 7")
        a("s_lshr_b32 s67, s2, 3")
        a("s_and_b32 s68, s67, 7")
        a("s_lshr_b32 s69, s67, 3")
        a("s_and_b32 s70, s66, 1")
        a("s_lshl_b32 s70, s70, 3")
        a("s_or_b32 s4, s70, s68")
        a("s_lshr_b32 s70, s66, 1")
        a("s_lshl_b32 s70, s70, 2")
        a("s_or_b32 s5, s70, s69")
        a("s_and_b32 s70, s66, 3")
        a("s_lshl_b32 s70, s70, 3")
        a("s_or_b32 s6, s70, s68")
        a("s_lshr_b32 s70, s66, 2")
        a("s_lshl_b32 s70, s70, 2")
        a("s_or_b32 s7, s70, s69")
        if "sametile" in self.ph:
            a("s_mov_b32 s4, 0"); a("s_mov_b32 s5, 0")
        if "samem" in self.ph:
            a("s_mov_b32 s4, 0")
        if "samen" in self.ph:
            a("s_mov_b32 s5, 0")
        if self.stamps:
            for i in range(10):
                a("s_mov_b64 s[%d:%d], 0" % (S_TS + 2 * i, S_TS + 2 * i + 1))
        a("s_waitcnt lgkmcnt(0)")
        def srd(base, ptr, size):
            a("s_mov_b32 s%d, s%d" % (base, ptr))
            a("s_and_b32 s%d, s%d, 0xffff" % (base + 1, ptr + 1))
            a("s_mov_b32 s%d, 0x%x" % (base + 2, size))
            a("s_mov_b32 s%d, 0x20000" % (base + 3))
        srd(SRD_X, P_U, 2048 * 640 * 2)
        srd(SRD_WG, P_WG, 640 * 1536 * 2)
        srd(SRD_WU, P_WU, 640 * 1536 * 2)
        srd(SRD_WS, P_WS, 0x10000000)
        srd(SRD_OUT, P_OUT, 2048 * 640 * 2)
        srd(SRD_WD, P_WD, 640 * 1536 * 2)
        self.stamp(0)
        if "dbgtime" in self.ph:
            a("s_memrealtime s[96:97]")
            a("s_memtime s[98:99]")
            a("s_mov_b64 s[100:101], s[62:63]")
            a("s_waitcnt lgkmcnt(0)")

    def dbgtime_end(self):
        a = self.a
        if "dbgtime" not in self.ph: return
        l = self.newlab("dbt")
        a("s_cmp_lg_u32 s2, 0"); a("s_cbranch_scc1 %s" % l)
        a("s_cmp_lg_u32 s3, 0"); a("s_cbranch_scc1 %s" % l)
        a("s_waitcnt vmcnt(0)")
        a("s_memrealtime s[92:93]")
        a("s_memtime s[94:95]")
        a("s_waitcnt lgkmcnt(0)")
        a("s_sub_u32 s92, s92, s96")
        a("s_sub_u32 s94, s94, s98")
        a("v_mov_b32 v250, 0")
        a("v_mov_b32 v252, s92")
        a("v_mov_b32 v253, s94")
        a("v_mov_b32 v254, s96")
        a("v_mov_b32 v255, 0x1234")
        a("global_store_dwordx4 v250, v[252:255], s[100:101]")
        a("s_waitcnt vmcnt(0)")
        a.lab(l)

    def rot_r(self, dst, tmp):
        a = self.a
        if "norot" in self.ph:
            a("s_mov_b32 %s, 0" % dst)
            return
        a("s_lshr_b32 %s, s5, 1" % dst)
        a("s_cmp_ge_u32 %s, 5" % dst)
        a("s_cselect_b32 %s, 1, 0" % tmp)
        a("s_cmp_ge_u32 %s, 1" % dst)
        a("s_addc_u32 %s, %s, %s" % (dst, dst, tmp))

    def g_gemm1(self):
        a = self.a
        ACC = 0; FP = 96; FQ = 136
        VXB = 176
        VWA = 182
        VL16 = 196
        T = 200
        accg = lambda ft, tt: ACC + (ft * 4 + tt) * 4
        accu = lambda ft, tt: ACC + 48 + (ft * 4 + tt) * 4
        LANE = 197
        a("v_mov_b32 v%d, v0" % LANE)
        a("s_and_b32 s67, s3, 1")
        a("s_lshr_b32 s68, s3, 1")
        VOX = 191
        a("v_lshrrev_b32 v%d, 3, v%d" % (T, LANE))
        a("s_lshl_b32 s69, s4, 7")
        a("s_lshl_b32 s70, s3, 5")
        a("s_add_u32 s69, s69, s70")
        a("v_add_u32 v%d, s69, v%d" % (T, T))
        a("s_movk_i32 s70, 1280")
        a("v_mul_lo_u32 v%d, v%d, s70" % (T, T))
        a("v_and_b32 v%d, 7, v%d" % (T + 1, LANE))
        a("v_lshrrev_b32 v%d, 4, v%d" % (T + 2, LANE))
        a("v_xor_b32 v%d, v%d, v%d" % (T + 3, T + 1, T + 2))
        a("v_xor_b32 v%d, 4, v%d" % (T + 4, T + 3))
        a("v_lshl_add_u32 v%d, v%d, 4, v%d" % (VOX, T + 3, T))
        a("v_lshl_add_u32 v%d, v%d, 4, v%d" % (VOX + 1, T + 4, T))
        a("s_lshl_b32 s75, s3, 12")
        VOW = 193
        a("s_mul_i32 s76, s3, 3072")
        a("s_add_u32 s77, s76, %d" % ST_WU)
        a("s_add_u32 s76, s76, %d" % ST_WG)
        self.rot_r("s74", "s72")
        def xdma(st):
            base = (st % 3) * STAGE
            L = []
            for i in range(4):
                if i == 0:
                    L.append(("s_lshl_b32 s72, s74, 7", "s_mul_i32 s73, s74, 196608", "s_add_u32 s74, s74, 1",
                              "s_add_u32 m0, s75, %d" % base, "s_cmp_eq_u32 s74, 10", "s_cselect_b32 s74, 0, s74",
                              "buffer_load_dwordx4 v%d, s[8:11], s72 offen lds" % VOX))
                else:
                    L.append(("s_add_u32 s70, s72, %d" % (9216 * i),
                              "buffer_load_dwordx4 v%d, s[8:11], s70 offen offset:%d lds" % (VOX + (i & 1), 1024 * i)))
            for mat, sm, srd in (() if "s3w" in self.ph else ((0, 76, "s[12:15]"), (1, 77, "s[16:19]"))):
                for i in range(3):
                    ld = "buffer_load_dwordx4 v%d, %s, s73 offen offset:%d lds" % (VOW + i, srd, 1024 * i)
                    if mat == 1 and "nowu" in self.ph: ld = "s_nop 0"
                    if i == 2 and "now2" in self.ph: ld = "s_nop 0"
                    if i == 0: L.append(("s_add_u32 m0, s%d, %d" % (sm, base), "s_nop 0", ld))
                    else: L.append(ld)
            return L
        if "ststamps" in self.ph: self.stamp(1, force=True)
        def wcalc():
            a("s_lshl_b32 s69, s3, 4")
            a("s_mul_i32 s69, s69, 3072")
            a("s_mul_i32 s70, s5, 192")
            a("s_add_u32 s69, s69, s70")
            a("s_mov_b32 s70, 43691")
            a("s_movk_i32 s71, 3072")
            for i in range(3):
                a("v_add_u32 v%d, %d, v%d" % (T, 64 * i, LANE))
                a("v_mul_lo_u32 v%d, v%d, s70" % (T + 1, T))
                a("v_lshrrev_b32 v%d, 19, v%d" % (T + 1, T + 1))
                a("v_mul_u32_u24 v%d, 12, v%d" % (T + 2, T + 1))
                a("v_sub_u32 v%d, v%d, v%d" % (T + 2, T, T + 2))
                a("v_lshrrev_b32 v%d, 2, v%d" % (T + 3, T + 1))
                a("v_and_b32 v%d, 2, v%d" % (T + 3, T + 3))
                a("v_xor_b32 v%d, v%d, v%d" % (T + 2, T + 2, T + 3))
                a("v_mul_lo_u32 v%d, v%d, s71" % (T + 1, T + 1))
                a("v_lshl_add_u32 v%d, v%d, 4, v%d" % (T + 1, T + 2, T + 1))
                a("v_add_u32 v%d, s69, v%d" % (T + 1, T + 1))
                a("v_subrev_u32 v%d, %d, v%d" % (VOW + i, 1024 * i, T + 1))

        d0 = xdma(0)
        a.ext(flat(d0[:4]))
        wcalc()
        a.ext(flat(d0[4:]))
        if "late1" not in self.ph: a.ext(flat(xdma(1)))
        if "ststamps" in self.ph: self.stamp(2, force=True)
        if "nobpre" not in self.ph: a("s_barrier")
        a("v_and_b32 v%d, 15, v%d" % (T, LANE))
        a("v_lshrrev_b32 v%d, 4, v%d" % (T + 1, LANE))
        a("s_lshl_b32 s69, s67, 6")
        a("v_add_u32 v%d, s69, v%d" % (T + 2, T))
        a("v_lshlrev_b32 v%d, 7, v%d" % (T + 2, T + 2))
        a("v_lshrrev_b32 v%d, 1, v%d" % (T + 3, T))
        a("v_and_b32 v%d, 7, v%d" % (T + 3, T + 3))
        a("v_xor_b32 v%d, v%d, v%d" % (T + 3, T + 3, T + 1))
        a("v_xor_b32 v%d, 4, v%d" % (T + 4, T + 3))
        a("v_lshl_add_u32 v%d, v%d, 4, v%d" % (VXB, T + 3, T + 2))
        a("v_lshl_add_u32 v%d, v%d, 4, v%d" % (VXB + 1, T + 4, T + 2))
        for st in (1, 2):
            for s in range(2):
                a("v_add_u32 v%d, %d, v%d" % (VXB + 2 * st + s, st * STAGE, VXB + s))
        a("v_lshrrev_b32 v%d, 2, v%d" % (T + 2, T))
        a("v_lshl_add_u32 v%d, v%d, 3, v%d" % (T + 2, T + 1, T + 2))
        a("v_mul_u32_u24 v%d, 192, v%d" % (T + 2, T + 2))
        a("v_and_b32 v%d, 3, v%d" % (T + 3, LANE))
        a("v_lshl_add_u32 v%d, v%d, 3, v%d" % (T + 2, T + 3, T + 2))
        a("v_add_u32 v%d, %d, v%d" % (T + 2, ST_WG, T + 2))
        a("v_and_b32 v%d, 1, v%d" % (T + 3, T + 1))
        a("s_lshl_b32 s69, s68, 2")
        a("s_add_u32 s78, s69, 1")
        a("s_add_u32 s79, s68, 2")
        for ft, sreg in ((0, 69), (1, 78), (2, 79)):
            a("v_xor_b32 v%d, s%d, v%d" % (T + 4, sreg, T + 3))
            a("v_lshl_add_u32 v%d, v%d, 5, v%d" % (VWA + ft, T + 4, T + 2))
        for st in (1, 2):
            for ft in range(3):
                a("v_add_u32 v%d, %d, v%d" % (VWA + 3 * st + ft, st * STAGE, VWA + ft))
        a("v_lshlrev_b32 v%d, 4, v%d" % (VL16, LANE))
        a("s_lshl_b32 s69, s4, 1")
        a("s_add_u32 s69, s69, s67")
        a("s_mul_i32 s69, s69, 48")
        a("s_mul_i32 s78, s5, 3")
        a("s_add_u32 s69, s69, s78")
        a("s_lshl_b32 s78, s68, 1")
        a("s_add_u32 s78, s78, s69")
        a("s_lshl_b32 s78, s78, 12")
        a("s_add_u32 s79, s69, 1")
        a("s_lshl_b32 s79, s79, 12")
        a("s_lshl_b32 s69, s68, 9")
        a("s_add_u32 s79, s79, s69")
        a("v_lshlrev_b32 v%d, 3, v%d" % (VL16 + 2, LANE))
        if WS_H:
            a("s_add_u32 s78, s78, %d" % WS_H); a("s_add_u32 s79, s79, %d" % WS_H)

        def reads(kk, s, F):
            st = kk % 3
            xs = ["ds_read_b128 v[%d:%d], v%d offset:%d" % (F + 4 * tt, F + 4 * tt + 3, VXB + 2 * st + s, 2048 * tt) for tt in range(4)]
            ws = []
            for mat in range(2):
                for ft in range(3):
                    r = F + 16 + (mat * 3 + ft) * 4
                    for h in range(2):
                        ws.append("ds_read_b64_tr_b16 v[%d:%d], v%d offset:%d" % (r + 2 * h, r + 2 * h + 1, VWA + 3 * st + ft, 12288 * mat + 6144 * s + 768 * h))
            order = [xs[0], ws[0], ws[1], xs[1], ws[6], ws[7], xs[2], xs[3]] + ws[2:6] + ws[8:]
            return order
        def mfmas(F, first):
            L = []
            for ft in range(3):
                for mat in range(2):
                    for tt in range(4):
                        acc = accg(ft, tt) if mat == 0 else accu(ft, tt)
                        A = F + 16 + (mat * 3 + ft) * 4
                        B = F + 4 * tt
                        c = "0" if first else "v[%d:%d]" % (acc, acc + 3)
                        L.append("v_mfma_f32_16x16x32_bf16 v[%d:%d], v[%d:%d], v[%d:%d], %s" % (acc, acc + 3, A, A + 3, B, B + 3, c))
            return L
        def spread(mm, d, first, step):
            out = []; cnt = 0; di = 0
            for x in mm:
                out.append(x)
                if x.startswith("v_mfma"):
                    cnt += 1
                    if cnt >= first and (cnt - first) % step == 0 and di < len(d):
                        f = d[di]; di += 1
                        out.extend(f if isinstance(f, tuple) else (f,))
            assert di == len(d), (di, len(d))
            return out
        self.stamp(5)
        ND = 4 if "s3w" in self.ph else (7 if "nowu" in self.ph else (8 if "now2" in self.ph else 10))
        a("s_waitcnt vmcnt(%d)" % (0 if "late1" in self.ph else ND))
        if "ststamps" in self.ph: self.stamp(3, force=True)
        a("s_barrier")
        if "ststamps" in self.ph: self.stamp(4, force=True)
        if "late1" in self.ph: a.ext(flat(xdma(1)))
        self.stamp(1)
        self.clk(1)
        a.ext(reads(0, 0, FP))
        a("s_waitcnt lgkmcnt(0)")
        pend = xdma(2)
        for kk in range(10):
            mm = interleave(mfmas(FP, kk == 0), reads(kk, 1, FQ), span=16)
            if pend: mm = spread(mm, pend, 2, (10 if len(pend) <= 2 else 5) if len(pend) <= 5 else 2)
            a.ext(mm)
            if kk <= 7: a("s_waitcnt vmcnt(%d) lgkmcnt(0)" % ND)
            elif kk == 8: a("s_waitcnt vmcnt(0) lgkmcnt(0)")
            else: a("s_waitcnt lgkmcnt(0)")
            if kk == 9 and self.fused(): self.lds_inc(LDS_SFREE, T)
            else: a("s_barrier")
            if "kstamps" in self.ph and kk < 9: self.stamp(kk + 1, force=True)
            if "ststamps" in self.ph and kk < 5: self.stamp(kk + 5, force=True)
            fill = reads(kk + 1, 0, FP) if kk + 1 < 10 else []
            mm = interleave(mfmas(FQ, False), fill, span=16)
            d = xdma(kk + 3) if kk + 3 < 10 else []
            if "dmaB" in self.ph:
                pend = []
                if d: mm = spread(mm, d, 2, 2)
            elif "dma73" in self.ph:
                pend = d[7:]
                if d: mm = spread(mm, d[:7], 2, 3)
            elif "s3w" in self.ph:
                pend = d[2:]
                if d: mm = spread(mm, d[:2], 4, 10)
            else:
                pend = d[5:]
                if d: mm = spread(mm, d[:5], 2, 5)
            a.ext(mm)
            if kk + 1 < 10:
                a("s_waitcnt lgkmcnt(0)")
        self.stamp(2)
        self.clk(3)
        epb = "epb" in self.ph and "g2" in self.ph
        if epb: CN, ONE, OUTB, TMPB, TMPS = 200, 202, 116, 152, 8
        else: CN, ONE, OUTB, TMPB, TMPS = FP, FP + 2, FP + 8, FQ, 16
        E = []
        E.append("v_mov_b32 v%d, 0xbfb8aa3b" % CN)
        E.append("v_mov_b32 v%d, 0xbfb8aa3b" % (CN + 1))
        E.append("v_mov_b32 v%d, 1.0" % ONE)
        E.append("v_mov_b32 v%d, 1.0" % (ONE + 1))
        grp = 0
        def silu(gregs, uregs, tmp, out):
            n = len(gregs)
            L = []
            for i in range(n): L.append("v_pk_mul_f32 v[%d:%d], v[%d:%d], v[%d:%d]" % (tmp + 2 * i, tmp + 2 * i + 1, gregs[i], gregs[i] + 1, CN, CN + 1))
            for i in range(2 * n): L.append("v_exp_f32 v%d, v%d" % (tmp + i, tmp + i))
            for i in range(n): L.append("v_pk_mul_f32 v[%d:%d], v[%d:%d], v[%d:%d]" % (gregs[i], gregs[i] + 1, gregs[i], gregs[i] + 1, uregs[i], uregs[i] + 1))
            for i in range(n): L.append("v_pk_add_f32 v[%d:%d], v[%d:%d], v[%d:%d]" % (tmp + 2 * i, tmp + 2 * i + 1, tmp + 2 * i, tmp + 2 * i + 1, ONE, ONE + 1))
            for i in range(2 * n): L.append("v_rcp_f32 v%d, v%d" % (tmp + i, tmp + i))
            if n < 2: L.append("s_nop 0")
            for i in range(n): L.append("v_pk_mul_f32 v[%d:%d], v[%d:%d], v[%d:%d]" % (gregs[i], gregs[i] + 1, gregs[i], gregs[i] + 1, tmp + 2 * i, tmp + 2 * i + 1))
            for i in range(n): L.append("v_cvt_pk_bf16_f32 v%d, v%d, v%d" % (out + i, gregs[i], gregs[i] + 1))
            return L
        for tt in range(4):
            tmp = TMPB + (grp % 2) * TMPS; out = OUTB + (grp % 4) * 4; grp += 1
            g = [accg(0, tt), accg(0, tt) + 2, accg(1, tt), accg(1, tt) + 2]
            u = [accu(0, tt), accu(0, tt) + 2, accu(1, tt), accu(1, tt) + 2]
            E += silu(g, u, tmp, out)
            E.append("buffer_store_dwordx4 v[%d:%d], v%d, s[20:23], s78 offen offset:%d sc1" % (out, out + 3, VL16, 1024 * tt))
            tmp = TMPB + (grp % 2) * TMPS; out = OUTB + (grp % 4) * 4; grp += 1
            g = [accg(2, tt), accg(2, tt) + 2]
            u = [accu(2, tt), accu(2, tt) + 2]
            E += silu(g, u, tmp, out)
            E.append("buffer_store_dwordx2 v[%d:%d], v%d, s[20:23], s79 offen offset:%d sc1" % (out, out + 1, VL16 + 2, 1024 * tt))
        if epb:
            self.g2_setup()
            if self.fused(): self.lds_spin(LDS_WOK, 232, treg="s80x")
            regl, dmal = self.g2_burst_atoms()
            half = len(E) // 2
            a.ext(interleave(E[:half], regl, start=4))
            if self.fused(): self.lds_spin(LDS_SFREE, 232, 4, treg="s80x")
            a.ext(interleave(E[half:], dmal))
        else:
            a.ext(E)
        self.stamp(3)
        if "g2" not in self.ph:
            a("s_waitcnt vmcnt(0)")
            self.stamp(4)

    def g_signal_h(self, nyounger):
        a = self.a
        T = 232
        if nyounger is not None: a("s_waitcnt vmcnt(%d)" % nyounger)
        if self.fused():
            l = self.newlab("fh")
            a("v_mov_b32 v%d, %d" % (T, LDS_CNT))
            a("v_mov_b32 v%d, 1" % (T + 1))
            a("s_mov_b64 exec, 1")
            a("ds_add_rtn_u32 v%d, v%d, v%d" % (T + 2, T, T + 1))
            a("s_waitcnt lgkmcnt(0)")
            a("s_mov_b64 exec, -1")
            a("v_readfirstlane_b32 s69, v%d" % (T + 2))
            a("s_nop 1")
            a("s_cmp_lg_u32 s69, 3")
            a("s_cbranch_scc1 %s" % l)
            a("s_lshl_b32 s69, s4, 5")
            a("s_add_u32 s69, s69, s5")
            a("s_lshl_b32 s69, s69, 2")
            a("s_add_u32 s69, s69, %d" % WS_FH)
            self.flag_set("s69", T)
            a.lab(l)
        self.stamp(4)

    def lds_inc(self, addr, vt):
        a = self.a
        a("v_mov_b32 v%d, %d" % (vt, addr))
        a("v_mov_b32 v%d, 1" % (vt + 1))
        a("s_mov_b64 exec, 1")
        a("ds_add_u32 v%d, v%d" % (vt, vt + 1))
        a("s_mov_b64 exec, -1")

    def lds_spin(self, addr, vt, val=1, treg=None):
        a = self.a
        st = "s78" if treg is None else "s68"
        lp = self.newlab("ls"); ld = self.newlab("ld")
        a("v_mov_b32 v%d, %d" % (vt, addr))
        a("s_mov_b32 s69, 0")
        a.lab(lp)
        a("ds_read_b32 v%d, v%d" % (vt + 1, vt))
        a("s_waitcnt lgkmcnt(0)")
        a("v_readfirstlane_b32 %s, v%d" % (st, vt + 1))
        a("s_nop 1")
        a("s_cmp_eq_u32 %s, %d" % (st, val))
        a("s_cbranch_scc1 %s" % ld)
        a("s_add_u32 s69, s69, 1")
        a("s_cmp_lt_u32 s69, 0x400000")
        a("s_cbranch_scc0 %s" % ld)
        a("s_sleep 1")
        a("s_branch %s" % lp)
        a.lab(ld)

    def s_kgen_phase1(self):
        a = self.a
        NCH = 8
        chunks = [[] for _ in range(NCH)]
        if "ssm" in self.ph:
            a("s_lshl_b32 s50, s66, 8")
            a("s_add_u32 s50, s50, s2")
            a("s_min_u32 s50, s50, 639")
            self.kgen_bases()
            if "kghead" in self.ph:
                kg = self.capture(lambda: self.kgen("head"))
                if "bigI0" in self.ph:
                    first = min(len(kg), 140 if "I0s" in self.ph else 230)
                    rest = kg[first:]
                    per = (len(rest) + NCH - 1) // NCH
                    chunk0 = kg[:first]
                    chunks = [rest[i * per:(i + 1) * per] for i in range(NCH)]
                else:
                    per = (len(kg) + NCH - 1) // NCH
                    chunks = [kg[i * per:(i + 1) * per] for i in range(NCH)]
        self.stamp(5)
        if "prioS" in self.ph: a("s_setprio 2")
        if "nobpre" not in self.ph: a("s_barrier")
        pw = "pwarm" in self.ph
        if "ssm" in self.ph and pw: self.ssm_param_warm()
        if "ssm" in self.ph and "kghead" in self.ph and not pw: self.ssm_param_loads(slots=((0, 1) if "kg2" in self.ph else (0,)))
        if "ssm" in self.ph and "pw12" in self.ph:
            a("s_mul_i32 s67, s50, 384")
            for p in (P_ARE, P_AIM, P_BRE, P_BIM, P_CRE, P_CIM):
                a("s_add_u32 s68, s%d, s67" % p)
                a("s_addc_u32 s69, s%d, 0" % (p + 1))
                a("s_load_dword s70, s[68:69], 128")
                a("s_load_dword s70, s[68:69], 256")
        a("s_barrier")
        if "ssm" in self.ph and pw:
            a("s_waitcnt lgkmcnt(0)")
            self.ssm_param_loads()
        self.stamp(1)
        if "bigI0" in self.ph and "kghead" in self.ph:
            a("s_waitcnt vmcnt(0)")
            a.ext(chunk0)
        for kk in range(10):
            if not (kk == 9 and self.fused()): a("s_barrier")
            if kk == 1 and "kghead" in self.ph and "bigI0" not in self.ph: a("s_waitcnt vmcnt(0)")
            if kk == 7 and "ssm" in self.ph and not pw:
                if "kghead" in self.ph: self.ssm_param_loads(slots=((2,) if "kg2" in self.ph else (1, 2)), scalars=False)
                else: self.ssm_param_loads()
            if "bigI0" in self.ph:
                if kk < NCH: a.ext(chunks[kk])
            elif 1 <= kk <= NCH: a.ext(chunks[kk - 1])
        self.stamp(2)

    def side_setup(self):
        a = self.a
        a("s_mov_b32 s67, 52429")
        a("s_movk_i32 s68, 1280")
        for i in range(5):
            a("v_add_u32 v1, %d, v0" % (64 * i))
            a("v_mul_lo_u32 v2, v1, s67")
            a("v_lshrrev_b32 v2, 19, v2")
            a("v_mul_u32_u24 v3, 10, v2")
            a("v_sub_u32 v3, v1, v3")
            a("v_mul_lo_u32 v2, v2, s68")
            a("v_lshl_add_u32 v%d, v3, 4, v2" % (230 + i))
        a("v_lshrrev_b32 v1, 4, v0")
        a("v_and_b32 v2, 15, v0")
        a("v_lshrrev_b32 v3, 2, v2")
        a("v_lshl_add_u32 v4, v1, 2, v3")
        a("v_mul_u32_u24 v4, 160, v4")
        a("v_add_u32 v4, %d, v4" % (STAGE if "wdlate" in self.ph else LDS_WDS_EARLY))
        a("v_and_b32 v5, 3, v0")
        a("v_lshl_add_u32 v235, v5, 4, v4")
        a("v_lshl_add_u32 v236, v5, 3, v4")
        a("v_lshlrev_b32 v237, 4, v0")
        a("v_lshlrev_b32 v241, 2, v0")
        a("v_lshl_add_u32 v4, v1, 3, v3")
        a("v_lshlrev_b32 v4, 7, v4")
        a("v_bfe_u32 v5, v0, 1, 1")
        a("v_lshrrev_b32 v6, 1, v3")
        a("v_xor_b32 v5, v5, v6")
        a("v_lshl_add_u32 v4, v5, 4, v4")
        a("v_and_b32 v5, 1, v0")
        a("v_lshl_add_u32 v4, v5, 3, v4")
        a("v_and_b32 v5, 1, v1")
        a("v_lshl_add_u32 v238, v5, 6, v4")
        a("v_xor_b32 v5, 1, v5")
        a("v_lshl_add_u32 v239, v5, 6, v4")
        a("v_mul_u32_u24 v240, %d, v2" % ROWS)
        a("v_lshl_add_u32 v240, v1, 4, v240")
        a("s_add_u32 s51, s2, 128")
        a("s_cmp_ge_u32 s2, 128")
        a("s_cselect_b32 s51, s51, 999")
        a("s_lshr_b32 s52, s5, 1")
        a("s_add_u32 s53, s52, 8")
        a("s_cmp_lt_u32 s5, 4")
        a("s_cselect_b32 s53, s53, 99")
    def wd_load(self, ureg, scr):
        a = self.a
        if "nowd" in self.ph: return
        a("s_lshr_b32 s67, %s, 3" % ureg)
        a("s_and_b32 s68, %s, 7" % ureg)
        a("s_mul_i32 s69, s67, %d" % (32 * 1280))
        a("s_mul_i32 s67, s68, 160")
        a("s_add_u32 s69, s69, s67")
        for i in range(5):
            a("s_mov_b32 m0, %d" % ((STAGE if "wdlate" in self.ph else LDS_WDS_EARLY) + scr + 1024 * i))
            a("s_nop 0")
            a("buffer_load_dwordx4 v%d, s[28:31], s69 offen lds" % (230 + i))
    def wd_store(self, ureg, scr, R=160):
        a = self.a
        if "nowd" in self.ph: return
        for dt in range(5):
            for h in range(2):
                if dt < 4: ad, off = 235, 64 * (dt >> 1) + 8 * (dt & 1) + 2560 * h
                else: ad, off = 236, 128 + 2560 * h
                a("ds_read_b64_tr_b16 v[%d:%d], v%d offset:%d" % (R + 4 * dt + 2 * h, R + 1 + 4 * dt + 2 * h, ad, off + scr))
        a("s_lshr_b32 s67, %s, 3" % ureg)
        a("s_and_b32 s68, %s, 7" % ureg)
        a("s_mul_i32 s68, s68, 48")
        a("s_add_u32 s67, s67, s68")
        a("s_mul_i32 s67, s67, 5120")
        a("s_add_u32 s67, s67, %d" % WS_WD)
        a("s_add_u32 s68, s67, 4096")
        a("s_waitcnt lgkmcnt(0)")
        for dt in range(5):
            if dt < 4: a("buffer_store_dwordx4 v[%d:%d], v237, s[20:23], s67 offen offset:%d sc1" % (R + 4 * dt, R + 3 + 4 * dt, 1024 * dt))
            else: a("buffer_store_dwordx4 v[%d:%d], v237, s[20:23], s68 offen sc1" % (R + 4 * dt, R + 3 + 4 * dt))
    def gate_load(self):
        a = self.a
        a("v_and_b32 v1, 15, v0")
        a("v_lshlrev_b32 v1, 4, v1")
        for j in range(5):
            a("global_load_dwordx4 v[%d:%d], v1, s[%d:%d] offset:%d" % (8 + 4 * j, 11 + 4 * j, P_GW, P_GW + 1, 256 * j))
        a("v_lshrrev_b32 v2, 4, v0")
        a("s_movk_i32 s67, 1280")
        a("v_mul_lo_u32 v2, v2, s67")
        a("v_add_u32 v2, v2, v1")
        a("s_lshl_b32 s67, s2, 3")
        a("s_mul_i32 s67, s67, 1280")
        for half in range(2):
            for j in range(5):
                r = 28 + 20 * half + 4 * j
                a("buffer_load_dwordx4 v[%d:%d], v2, s[8:11], s67 offen offset:%d" % (r, r + 3, 256 * j))
            if half == 0: a("s_add_u32 s67, s67, %d" % (4 * 1280))
    def gate_compute(self):
        a = self.a
        R = 68
        for i in range(4): a("v_mov_b32 v%d, 0" % (R + i))
        for j in range(5):
            for e in range(4):
                for half in range(2):
                    acc = R + half + 2 * (e & 1)
                    a("v_dot2_f32_bf16 v%d, v%d, v%d, v%d" % (acc, 28 + 20 * half + 4 * j + e, 8 + 4 * j + e, acc))
        a("s_nop 2")
        a("v_add_f32 v%d, v%d, v%d" % (R, R, R + 2))
        a("v_add_f32 v%d, v%d, v%d" % (R + 1, R + 1, R + 3))
        a("s_nop 0")
        for ctl in ("row_shr:1", "row_shr:2", "row_shr:4", "row_shr:8"):
            for i in range(2):
                a("v_add_f32_dpp v%d, v%d, v%d %s row_mask:0xf bank_mask:0xf bound_ctrl:1" % (R + i, R + i, R + i, ctl))
            a("s_nop 0")
        for i in range(2): a("v_mul_f32 v%d, 0xbfb8aa3b, v%d" % (R + i, R + i))
        for i in range(2): a("v_exp_f32 v%d, v%d" % (R + i, R + i))
        a("s_nop 0")
        for i in range(2): a("v_add_f32 v%d, 1.0, v%d" % (R + i, R + i))
        for i in range(2): a("v_rcp_f32 v%d, v%d" % (R + i, R + i))
        a("s_lshl_b32 s67, s2, 5")
        a("s_add_u32 s67, s67, %d" % WS_G)
        a("v_lshrrev_b32 v1, 4, v0")
        a("v_lshlrev_b32 v1, 2, v1")
        a("s_mov_b32 exec_lo, 0x80008000")
        a("s_mov_b32 exec_hi, 0x80008000")
        a("buffer_store_dword v%d, v1, s[20:23], s67 offen sc1" % R)
        a("buffer_store_dword v%d, v1, s[20:23], s67 offen offset:16 sc1" % (R + 1))
        a("s_mov_b64 exec, -1")
    def ut_read(self, chunk_reg, stage_base, H):
        a = self.a
        if "noutr" in self.ph: return
        a("s_and_b32 s67, %s, 1" % chunk_reg)
        a("s_cmp_eq_u32 s67, 0")
        a("s_cselect_b64 vcc, -1, 0")
        a("s_nop 0")
        a("v_cndmask_b32 v4, v239, v238, vcc")
        a("v_add_u32 v4, %d, v4" % stage_base)
        for aa in range(2):
            for it in range(4):
                for hh in range(2):
                    r = H + (aa * 4 + it) * 4 + 2 * hh
                    a("ds_read_b64_tr_b16 v[%d:%d], v4 offset:%d" % (r, r + 1, 4096 * it + 512 * hh + 32 * (aa ^ hh)))
        a("s_waitcnt lgkmcnt(0)")
    def utx_load(self, chunk_reg):
        a = self.a
        a("v_lshrrev_b32 v4, 2, v0")
        a("v_mul_u32_u24 v4, 1280, v4")
        a("v_and_b32 v5, 3, v0")
        a("v_lshl_add_u32 v4, v5, 4, v4")
        a("s_mul_i32 s67, s4, %d" % (128 * 1280))
        a("s_lshl_b32 s68, %s, 6" % chunk_reg)
        a("s_add_u32 s67, s67, s68")
        for i in range(8):
            a("s_mov_b32 m0, %d" % (LDS_WDS_EARLY + 1024 * i))
            a("s_nop 0")
            a("buffer_load_dwordx4 v4, s[8:11], s67 offen lds")
            if i < 7: a("s_add_u32 s67, s67, %d" % (16 * 1280))
    def utx_read(self, H):
        a = self.a
        a("v_lshrrev_b32 v4, 4, v0")
        a("v_and_b32 v5, 15, v0")
        a("v_lshrrev_b32 v5, 2, v5")
        a("v_lshl_add_u32 v4, v4, 3, v5")
        a("v_lshlrev_b32 v4, 6, v4")
        a("v_and_b32 v5, 3, v0")
        a("v_lshl_add_u32 v4, v5, 3, v4")
        a("v_add_u32 v4, %d, v4" % LDS_WDS_EARLY)
        for aa in range(2):
            for it in range(4):
                for hh in range(2):
                    r = H + (aa * 4 + it) * 4 + 2 * hh
                    a("ds_read_b64_tr_b16 v[%d:%d], v4 offset:%d" % (r, r + 1, 64 * (32 * it + 4 * hh) + 32 * aa))
        a("s_waitcnt lgkmcnt(0)")

    def ut_store(self, chunk_reg, H):
        a = self.a
        if "nout" in self.ph: return
        a("s_mul_i32 s67, %s, %d" % (chunk_reg, 32 * ROWS))
        a("s_lshl_b32 s68, s4, 8")
        a("s_add_u32 s67, s67, s68")
        a("s_add_u32 s67, s67, %d" % WS_UT)
        a("s_add_u32 s68, s67, %d" % (16 * ROWS))
        for aa in range(2):
            for it in range(4):
                r = H + (aa * 4 + it) * 4
                a("buffer_store_dwordx4 v[%d:%d], v240, s[20:23], s%d offen offset:%d sc1" % (r, r + 3, 67 + aa, 64 * it))

    def pretouch(self):
        a = self.a
        a("v_and_b32 v1, 7, v0")
        a("v_lshlrev_b32 v1, 21, v1")
        a("buffer_load_dword v63, v1, s[20:23], 0 offen")
        a("v_and_b32 v1, 1, v0")
        a("v_lshlrev_b32 v1, 21, v1")
        a("buffer_load_dword v63, v1, s[24:27], 0 offen")
    def warm_inputs(self):
        a = self.a
        if "norot" in self.ph:
            a("s_mov_b32 s68, 9363")
            a("v_mul_lo_u32 v1, v0, s68")
            a("v_lshrrev_b32 v1, 16, v1")
            a("v_mul_u32_u24 v2, 7, v1")
            a("v_sub_u32 v2, v0, v2")
            a("v_mul_u32_u24 v1, 1280, v1")
            a("v_lshl_add_u32 v1, v2, 7, v1")
            a("s_mul_i32 s67, s2, 10240")
            a("s_add_u32 s67, s67, 384")
            a("s_mov_b32 exec_hi, 0x00ffffff")
            a("buffer_load_dword v244, v1, s[8:11], s67 offen")
            a("s_mov_b32 exec_hi, 0x000003ff")
            a("v_lshlrev_b32 v1, 7, v0")
            a("s_mul_i32 s67, s2, %d" % (42 * 128))
            a("s_add_u32 s67, s67, %d" % (192 * 3072))
            a("buffer_load_dword v244, v1, s[12:15], s67 offen")
            a("buffer_load_dword v244, v1, s[16:19], s67 offen")
            a("s_mov_b64 exec, -1")
            return
        a("v_lshlrev_b32 v1, 7, v0")
        if "warmx" in self.ph:
            a("s_mul_i32 s67, s2, 10240")
            a("buffer_load_dword v244, v1, s[8:11], s67 offen")
            a("s_add_u32 s68, s67, 8192")
            a("s_mov_b32 exec_hi, 0")
            a("s_mov_b32 exec_lo, 0xffff")
            a("buffer_load_dword v244, v1, s[8:11], s68 offen")
            a("s_mov_b32 exec_lo, -1")
        a("s_mov_b32 exec_hi, 0x0fffffff")
        a("s_mul_i32 s67, s2, 7680")
        a("buffer_load_dword v244, v1, s[12:15], s67 offen")
        a("buffer_load_dword v244, v1, s[16:19], s67 offen")
        if "warm2" in self.ph:
            a("buffer_load_dword v244, v1, s[28:31], s67 offen")
        a("s_mov_b64 exec, -1")
        if "warm2" in self.ph or "warmp" in self.ph:
            a("v_and_b32 v1, 7, v0")
            a("v_lshlrev_b32 v1, 7, v1")
            a("s_mul_i32 s67, s2, 960")
            a("v_add_u32 v1, s67, v1")
            a("v_min_u32 v1, %d, v1" % (245760 - 4))
            a("v_lshrrev_b32 v2, 3, v0")
            a("v_mov_b32 v4, s%d" % P_ARE); a("v_mov_b32 v5, s%d" % (P_ARE + 1))
            for k, p in enumerate((P_AIM, P_BRE, P_BIM, P_CRE, P_CIM)):
                a("v_cmp_eq_u32 vcc, %d, v2" % (k + 1))
                a("v_mov_b32 v6, s%d" % p); a("v_mov_b32 v7, s%d" % (p + 1))
                a("v_cndmask_b32 v4, v4, v6, vcc")
                a("v_cndmask_b32 v5, v5, v7, vcc")
            a("v_add_co_u32 v4, vcc, v4, v1")
            a("s_nop 1")
            a("v_addc_co_u32 v5, vcc, 0, v5, vcc")
            a("global_load_dword v244, v[4:5], off")

    def warm_code(self, early=False):
        a = self.a
        n = self.name
        l = self.newlab("pc"); l2 = self.newlab("pc")
        a("s_getpc_b64 s[68:69]")
        a.lab(l)
        a("s_sub_u32 s68, s68, %s-%s" % (l, n))
        a("s_subb_u32 s69, s69, 0")
        a("s_mov_b32 s67, (%s_end-%s+4095)/4096" % (n, n))
        a("s_lshr_b32 s70, s2, 3")
        a("s_mul_i32 s70, s70, s67")
        a("v_add_u32 v1, s70, v0")
        a("v_lshlrev_b32 v1, 7, v1")
        a("v_min_u32 v1, %s_end-%s, v1" % (n, n))
        a("v_cmp_gt_u32 vcc, s67, v0")
        a("s_and_saveexec_b64 s[70:71], vcc")
        a("s_cbranch_execz %s" % l2)
        a("global_load_dword v244, v1, s[68:69]")
        a.lab(l2)
        a("s_mov_b64 exec, s[70:71]")

    def smem_warm(self, part):
        a = self.a
        if part == 0:
            a("s_mul_i32 s67, s2, 7680")
            a("s_add_u32 s70, s%d, s67" % P_WD)
            a("s_addc_u32 s71, s%d, 0" % (P_WD + 1))
        for r in range(15 * part, 15 * part + 15):
            a("s_load_dword s74, s[70:71], %d" % (r * 128))

    def s3w_setup(self):
        a = self.a
        T = 1; VO = 245
        a("s_mul_i32 s69, s5, 192")
        a("s_mov_b32 s78, 43691")
        a("s_movk_i32 s79, 3072")
        for i in range(3):
            a("v_add_u32 v%d, %d, v0" % (T, 64 * i))
            a("v_mul_lo_u32 v%d, v%d, s78" % (T + 1, T))
            a("v_lshrrev_b32 v%d, 19, v%d" % (T + 1, T + 1))
            a("v_mul_u32_u24 v%d, 12, v%d" % (T + 2, T + 1))
            a("v_sub_u32 v%d, v%d, v%d" % (T + 2, T, T + 2))
            a("v_lshrrev_b32 v%d, 2, v%d" % (T + 3, T + 1))
            a("v_and_b32 v%d, 2, v%d" % (T + 3, T + 3))
            a("v_xor_b32 v%d, v%d, v%d" % (T + 2, T + 2, T + 3))
            a("v_mul_lo_u32 v%d, v%d, s79" % (T + 1, T + 1))
            a("v_lshl_add_u32 v%d, v%d, 4, v%d" % (T + 1, T + 2, T + 1))
            a("v_add_u32 v%d, s69, v%d" % (VO + i, T + 1))
        self.rot_r("s54", "s67")
    def s3w_younger0(self):
        n = 24 + (1 if self.fused() else 0)
        if "wdlate" not in self.ph: n += 5
        return n
    def s3w_dma(self, st):
        a = self.a
        VO = 245
        base = (st % 3) * STAGE
        a("s_mul_i32 s55, s54, 196608")
        a("s_add_u32 s54, s54, 1")
        a("s_cmp_eq_u32 s54, 10")
        a("s_cselect_b32 s54, 0, s54")
        for g4 in range(4):
            if g4: a("s_add_u32 s55, s55, 49152")
            for mat, srd in ((0, "s[12:15]"), (1, "s[16:19]")):
                for i in range(3):
                    a("s_mov_b32 m0, %d" % (base + (ST_WG if mat == 0 else ST_WU) + 3072 * g4 + 1024 * i))
                    a("s_nop 0")
                    a("buffer_load_dwordx4 v%d, %s, s55 offen lds" % (VO + i, srd))

    def s_side(self):
        a = self.a
        if "noside" in self.ph:
            for b in range(11 if self.fused() else 12): a("s_barrier")
            return
        HA, HB = 100, 132
        def cond_b(fn):
            l = self.newlab("wb")
            a("s_cmp_ge_u32 s51, 384")
            a("s_cbranch_scc1 %s" % l)
            fn()
            a.lab(l)
        if "warm0" in self.ph:
            self.warm_inputs()
            if "warmc" in self.ph: self.warm_code()
        s3w = "s3w" in self.ph
        if s3w:
            self.s3w_setup()
            self.s3w_dma(0)
            self.s3w_dma(1)
        self.side_setup()
        norot = "norot" in self.ph
        if norot:
            a("s_mov_b32 s50, s5")
            a("s_add_u32 s53, s5, 16")
            a("s_cmp_lt_u32 s5, 4")
            a("s_cselect_b32 s53, s53, 99")
        else:
            self.rot_r("s50", "s67")
            a("s_and_b32 s68, s5, 1")
            a("s_lshl_b32 s50, s50, 1")
            a("s_add_u32 s50, s50, s68")
            a("s_add_u32 s53, s50, 2")
            a("s_lshr_b32 s67, s5, 1")
            a("s_and_b32 s67, s67, 3")
            a("s_cmp_eq_u32 s67, 0")
            a("s_cselect_b32 s53, s53, 99")
        if self.fused():
            a("v_mov_b32 v1, %d" % LDS_CNT)
            a("v_mov_b32 v2, 0")
            a("v_mov_b32 v3, 0")
            a("ds_write_b64 v1, v[2:3]")
            a("ds_write_b64 v1, v[2:3] offset:8")
            a("ds_write_b64 v1, v[2:3] offset:16")
            a("ds_write_b32 v1, v2 offset:24")
        self.stamp(5)
        if "nobpre" not in self.ph: a("s_barrier")
        if self.fused(): self.nonce_load()
        if self.fused() and "ftouch" in self.ph:
            a("s_min_u32 s67, s2, 191")
            a("s_lshl_b32 s67, s67, 7")
            a("s_add_u32 s67, s67, %d" % WS_FU)
            a("v_mov_b32 v1, 0")
            a("s_mov_b64 exec, 1")
            a("buffer_load_dword v244, v1, s[20:23], s67 offen sc1")
            a("s_mov_b64 exec, -1")
        if norot: self.utx_load("s50")
        wdlate = "wdlate" in self.ph
        wdmid = "wdmid" in self.ph
        if not wdlate and not wdmid:
            self.wd_load("s2", 0)
            cond_b(lambda: self.wd_load("s51", 5120))
        if "warm0" not in self.ph:
            if "warmc" in self.ph: self.warm_code()
            if ("warm" in self.ph or "warm2" in self.ph) and "warmB0" not in self.ph and "warmB1" not in self.ph and not s3w: self.warm_inputs()
        if s3w: a("s_waitcnt vmcnt(%d)" % self.s3w_younger0())
        a("s_barrier")
        if s3w:
            self.s3w_dma(2)
            self.warm_inputs()
        if "warmB0" in self.ph: self.warm_inputs()
        self.stamp(1)
        if norot:
            a("s_waitcnt vmcnt(3)")
            self.utx_read(HA)
            def second():
                self.utx_load("s53")
            l_ = self.newlab("ux")
            a("s_cmp_ge_u32 s53, 20")
            a("s_cbranch_scc1 %s" % l_)
            second()
            a.lab(l_)
        else:
            self.ut_read("s50", 0, HA)
        def uflag(creg):
            a("s_lshl_b32 s69, %s, 5" % creg)
            a("s_add_u32 s69, s69, s4")
            a("s_lshl_b32 s69, s69, 2")
            a("s_add_u32 s69, s69, %d" % WS_FU)
            self.flag_set("s69", 2)
        def n_lt4(fn):
            l = self.newlab("ut")
            a("s_cmp_ge_u32 s53, 20")
            a("s_cbranch_scc1 %s" % l)
            fn()
            a.lab(l)
        def wflag(ureg):
            a("s_and_b32 s68, %s, 7" % ureg)
            a("s_lshl_b32 s68, s68, 8")
            a("s_lshr_b32 s69, %s, 3" % ureg)
            a("s_lshl_b32 s69, s69, 2")
            a("s_add_u32 s69, s69, s68")
            a("s_add_u32 s69, s69, %d" % WS_FW)
            self.flag_set("s69", 2)
        early = "utearly" in self.ph
        epb = "epb" in self.ph
        if early: self.ut_store("s50", HA)
        for kk in range(10):
            if s3w:
                if kk == 0: a("s_waitcnt vmcnt(26)")
                elif kk <= 7: a("s_waitcnt vmcnt(24)")
                elif kk == 8: a("s_waitcnt vmcnt(%d)" % (6 if (wdlate and self.fused()) else 0))
            if not (kk == 9 and self.fused()): a("s_barrier")
            if s3w and kk + 3 < 10 and kk not in (0, 1): self.s3w_dma(kk + 3)
            if kk == 0:
                if "warmB1" in self.ph: self.warm_inputs()
                if norot:
                    def rd2():
                        a("s_waitcnt vmcnt(0)")
                        self.utx_read(HB)
                    n_lt4(rd2)
                else:
                    n_lt4(lambda: self.ut_read("s53", 1 * STAGE, HB))
                if early: n_lt4(lambda: self.ut_store("s53", HB))
                if epb:
                    a("s_waitcnt vmcnt(%d)" % (8 if early else 0))
                    self.wd_store("s2", 0)
                    cond_b(lambda: self.wd_store("s51", 5120, 180))
            if kk == 1:
                if not early:
                    self.ut_store("s50", HA)
                    n_lt4(lambda: self.ut_store("s53", HB))
            if s3w and kk in (0, 1): self.s3w_dma(kk + 3)
            if kk == 3:
                a("s_waitcnt vmcnt(%d)" % (48 if s3w else 0))
                if self.fused():
                    self.nonce_publish_local()
                    if "uflate" not in self.ph:
                        uflag("s50")
                        n_lt4(lambda: uflag("s53"))
                    if epb:
                        wflag("s2")
                        cond_b(lambda: wflag("s51"))
            if kk == 7 and "uflate" in self.ph and self.fused():
                uflag("s50")
                n_lt4(lambda: uflag("s53"))
            if "swarm" in self.ph and 2 <= kk <= 5:
                self.smem_warm(kk - 2)
            if kk == 6 and wdmid:
                if "swarm" in self.ph: a("s_waitcnt lgkmcnt(0)")
                self.wd_load("s2", 0)
                cond_b(lambda: self.wd_load("s51", 5120))
            if kk == 7 and wdmid: a("s_waitcnt vmcnt(0)")
            if kk == 7 and "s3prio" in self.ph: a("s_setprio 3")
            if kk == 7 and epb:
                if self.fused():
                    self.s3_uw_look()
                    a("s_lshl_b32 s78, s7, 8")
                    a("s_add_u32 s78, s78, %d" % WS_FW)
                    self.look_line("s78", 48, 94)
                self.gate_load()
            if kk == 7 and not wdlate and not epb:
                if self.fused(): self.s3_uw_look()
                self.wd_store("s2", 0)
                cond_b(lambda: self.wd_store("s51", 5120, 180))
                self.gate_load()
            if kk == 7 and wdlate:
                if "swarm" in self.ph: a("s_waitcnt lgkmcnt(0)")
                if self.fused(): self.s3_uw_look()
                self.wd_load("s2", 0)
                cond_b(lambda: self.wd_load("s51", 5120))
            if kk == 8:
                if self.fused():
                    l = self.newlab("uw")
                    if epb:
                        self.check_line("s78", 94, 15)
                        a("v_mov_b32 v1, %d" % LDS_WOK)
                        a("v_mov_b32 v2, 1")
                        a("ds_write_b32 v1, v2")
                    else:
                        a("s_waitcnt vmcnt(%d)" % (5 if wdlate else 20))
                    a("v_cmp_eq_u32 vcc, s64, v92")
                    a("s_nop 1")
                    a("s_cmp_eq_u64 vcc, -1")
                    a("s_cbranch_scc1 %s" % l)
                    self.poll(self.s3_uw_loads, [92], 6, sleep=2)
                    a.lab(l)
                    self.s3_u_loads()
                    a("v_mov_b32 v1, %d" % LDS_UOK)
                    a("v_mov_b32 v2, 3")
                    a("ds_write_b32 v1, v2")
                    if wdlate: a("s_waitcnt vmcnt(12)")
                elif wdlate:
                    a("s_waitcnt vmcnt(0)")
                if wdlate:
                    self.wd_store("s2", 0)
                    cond_b(lambda: self.wd_store("s51", 5120, 180))
                    self.gate_load()
        self.stamp(2)
        if self.fused():
            if "s3prio" not in self.ph: a("s_setprio 2")
            if epb:
                self.lds_spin(LDS_SFREE, 2, 4)
                a("s_waitcnt vmcnt(0)")
            else:
                if wdlate: a("s_waitcnt vmcnt(15)")
                else: a("s_waitcnt vmcnt(27)")
                wflag("s2")
                cond_b(lambda: wflag("s51"))
                self.lds_spin(LDS_SFREE, 2, 4)
                if not wdlate: a("s_waitcnt vmcnt(1)")
        self.stamp(3)
        if self.fused():
            self.s3_u_copies(extra=None)
            a("s_waitcnt lgkmcnt(0)")
            a("v_mov_b32 v1, %d" % LDS_UCOK)
            a("v_mov_b32 v2, 1")
            a("ds_write_b32 v1, v2")
            a("s_setprio 0")
            self.stamp(4)
            a("s_waitcnt vmcnt(0)")
            self.gate_compute()
            a("s_waitcnt vmcnt(0)")
            a("s_lshl_b32 s69, s2, 2")
            a("s_add_u32 s69, s69, %d" % WS_FG)
            self.flag_set("s69", 2)
            if "nonearly" in self.ph: self.nonce_update()
        else:
            a("s_waitcnt vmcnt(0)")
            self.gate_compute()
            a("s_waitcnt vmcnt(0)")
            self.stamp(4)

    def s3_uw_addr(self):
        a = self.a
        a("v_lshrrev_b32 v1, 4, v0")
        a("v_lshlrev_b32 v1, 8, v1")
        a("v_add_u32 v1, s2, v1")
        a("v_mov_b32 v2, s2")
        a("v_cmp_gt_u32 vcc, 640, v1")
        a("s_nop 1")
        a("v_cndmask_b32 v1, v2, v1, vcc")
        a("v_lshrrev_b32 v1, 5, v1")
        a("v_lshlrev_b32 v1, 7, v1")
        a("v_and_b32 v2, 15, v0")
        a("v_lshl_add_u32 v1, v2, 2, v1")
        a("v_add_u32 v90, %d, v1" % WS_FU)
    def s3_uw_loads(self):
        a = self.a
        a("buffer_load_dword v92, v90, s[20:23], 0 offen sc1")
    def s3_uw_look(self):
        self.s3_uw_addr()
        self.s3_uw_loads()
    def s3_uw_check(self):
        a = self.a
        l = self.newlab("uw")
        a("s_waitcnt vmcnt(0)")
        a("v_cmp_eq_u32 vcc, s64, v92")
        a("v_cmp_eq_u32 s[76:77], s64, v93")
        a("s_nop 1")
        a("s_and_b64 vcc, vcc, s[76:77]")
        a("s_cmp_eq_u64 vcc, -1")
        a("s_cbranch_scc1 %s" % l)
        self.poll(self.s3_uw_loads, [92, 93], 6, sleep=2)
        a.lab(l)

    def s3_channels(self):
        a = self.a
        a("s_mov_b32 s70, s2")
        a("s_add_u32 s71, s2, 256")
        a("s_add_u32 s72, s2, 512")
        a("s_cmp_lt_u32 s72, 640")
        a("s_cselect_b32 s72, s72, s2")

    def s3_u_loads(self):
        a = self.a
        self.s3_channels()
        a("v_lshlrev_b32 v1, 4, v0")
        for sg in range(3):
            a("s_mul_i32 s67, s%d, %d" % (70 + sg, ROWS))
            a("s_add_u32 s67, s67, %d" % WS_UT)
            for i in range(4):
                r = 100 + 16 * sg + 4 * i
                a("buffer_load_dwordx4 v[%d:%d], v1, s[20:23], s67 offen offset:%d sc1" % (r, r + 3, 1024 * i))

    def s3_u_copies(self, extra=0):
        a = self.a
        Z = 150
        for i in range(4): a("v_mov_b32 v%d, 0" % (Z + i))
        a("v_lshlrev_b32 v2, 4, v0")
        a("v_cmp_eq_u32 vcc, 0, v0")
        for sg in range(3):
            base = LDS_UC + sg * UC_SZ
            for b in range(4):
                a("ds_write_b128 v2, v[%d:%d] offset:%d" % (Z, Z + 3, base + b * UC_STRIDE))
        for sg in range(3):
            base = LDS_UC + sg * UC_SZ
            if extra is not None: a("s_waitcnt vmcnt(%d)" % (4 * (2 - sg) + extra))
            for i in range(4):
                D = 100 + 16 * sg + 4 * i
                R3, R2 = 154 + 2 * (i & 1), 155 + 2 * (i & 1)
                Q3, Q2 = 154 + 2 * ((i + 1) & 1), 155 + 2 * ((i + 1) & 1)
                T1 = 160 + 12 * (i & 1); T0 = T1 + 4; T2 = T1 + 8
                P2 = 158
                a("v_mov_b32_dpp v%d, v%d wave_ror:1 row_mask:0xf bank_mask:0xf" % (R3, D + 3))
                a("v_mov_b32_dpp v%d, v%d wave_ror:1 row_mask:0xf bank_mask:0xf" % (R2, D + 2))
                a("v_mov_b32 v%d, v%d" % (T1 + 1, D))
                a("v_mov_b32 v%d, v%d" % (T1 + 2, D + 1))
                a("v_mov_b32 v%d, v%d" % (T1 + 3, D + 2))
                if i == 0:
                    a("v_cndmask_b32 v%d, v%d, v%d, vcc" % (T1, R3, Z))
                    a("v_cndmask_b32 v%d, v%d, v%d, vcc" % (P2, R2, Z))
                else:
                    a("v_cndmask_b32 v%d, v%d, v%d, vcc" % (T1, R3, Q3))
                    a("v_cndmask_b32 v%d, v%d, v%d, vcc" % (P2, R2, Q2))
                off = base + 4 * (96 + 256 * i)
                a("ds_write_b128 v2, v[%d:%d] offset:%d" % (D, D + 3, off + 3 * UC_STRIDE))
                a("v_alignbit_b32 v%d, v%d, v%d, 16" % (T0, T1, P2))
                a("v_alignbit_b32 v%d, v%d, v%d, 16" % (T0 + 1, D, T1))
                a("v_alignbit_b32 v%d, v%d, v%d, 16" % (T0 + 2, D + 1, D))
                a("v_alignbit_b32 v%d, v%d, v%d, 16" % (T0 + 3, D + 2, D + 1))
                a("ds_write_b128 v2, v[%d:%d] offset:%d" % (T1, T1 + 3, off + 1 * UC_STRIDE))
                a("v_mov_b32 v%d, v%d" % (T2, T0 + 1))
                a("v_mov_b32 v%d, v%d" % (T2 + 1, T0 + 2))
                a("v_mov_b32 v%d, v%d" % (T2 + 2, T0 + 3))
                a("v_alignbit_b32 v%d, v%d, v%d, 16" % (T2 + 3, D + 3, D + 2))
                a("ds_write_b128 v2, v[%d:%d] offset:%d" % (T0, T0 + 3, off + 0 * UC_STRIDE))
                a("ds_write_b128 v2, v[%d:%d] offset:%d" % (T2, T2 + 3, off + 2 * UC_STRIDE))

    def s_phase1(self):
        a = self.a
        n = self.name
        a("s_sub_u32 s66, s3, 4")
        a("s_cmp_eq_u32 s66, 3")
        a("s_cbranch_scc1 %s_sj" % n)
        self.s_kgen_phase1()
        a("s_branch %s_p1done" % n)
        a.lab("%s_sj" % n)
        self.s_side()
        a.lab("%s_p1done" % n)

    def ssm_param_loads(self, slots=(0, 1, 2), scalars=True):
        a = self.a
        a("s_mul_i32 s67, s50, 384")
        a("v_lshl_add_u32 v1, v0, 1, s67")
        for sl in slots:
            for k, p in enumerate((P_ARE, P_AIM, P_BRE, P_BIM, P_CRE, P_CIM)):
                a("global_load_ushort v%d, v1, s[%d:%d] offset:%d" % (200 + 6 * sl + k, p, p + 1, 128 * sl))
        if scalars:
            a("s_lshl_b32 s67, s50, 1")
            a("v_mov_b32 v223, s67")
            a("global_load_ushort v218, v223, s[%d:%d]" % (P_LDT, P_LDT + 1))
            a("global_load_ushort v219, v223, s[%d:%d]" % (P_DSK, P_DSK + 1))

    def ssm_param_warm(self):
        a = self.a
        a("s_mul_i32 s67, s50, 384")
        for p in (P_ARE, P_AIM, P_BRE, P_BIM, P_CRE, P_CIM):
            a("s_add_u32 s68, s%d, s67" % p)
            a("s_addc_u32 s69, s%d, 0" % (p + 1))
            for i in range(3):
                a("s_load_dword s70, s[68:69], %d" % (128 * i))
        a("s_lshl_b32 s67, s50, 1")
        a("s_and_b32 s67, s67, 0xfffffffc")
        a("s_load_dword s70, s[%d:%d], s67" % (P_LDT, P_LDT + 1))
        a("s_load_dword s70, s[%d:%d], s67" % (P_DSK, P_DSK + 1))

    def kgen_bases(self):
        a = self.a
        a("s_mul_i32 s51, s66, %d" % TAB_SZ)
        a("s_add_u32 s51, s51, %d" % LDS_TAB)
        a("s_mul_i32 s52, s66, %d" % KR_SZ)
        a("s_add_u32 s52, s52, %d" % LDS_KR)

    def kgen(self, part="all"):
        a = self.a
        if part == "all": self.kgen_bases()
        self._kgen_body(part)

    def _kgen_body(self, part):
        a = self.a
        head = part in ("all", "head", "rest"); tail = part in ("all", "tail", "rest")
        real_a = a
        if not head: a = Asm()
        a("v_and_b32 v4, 15, v0")
        a("v_lshrrev_b32 v5, 4, v0")
        a("v_mul_u32_u24 v2, %d, v4" % TABROW)
        a("v_lshl_add_u32 v2, v5, 6, v2")
        a("v_add_u32 v2, s51, v2")
        a("v_and_b32 v6, 1, v5")
        a("v_lshl_add_u32 v3, v6, 3, v2")
        a("v_xor_b32 v6, 1, v6")
        a("v_lshl_add_u32 v2, v6, 3, v2")
        a("s_mov_b32 m0, s51")
        a("s_nop 0")
        if part == "all" or (part == "rest" and not self.fused()): a("s_waitcnt vmcnt(0)")
        a("v_lshlrev_b32 v218, 16, v218")
        a("v_lshlrev_b32 v219, 16, v219")
        a("v_mul_f32 v6, 0x3fb8aa3b, v218")
        a("s_mov_b32 s67, 0x3fb8aa3b")
        a("v_fma_f32 v7, v218, s67, -v6")
        a("v_fmac_f32 v7, 0x32a57060, v218")
        a("v_exp_f32 v6, v6")
        a("v_mul_f32 v7, 0x3f317218, v7")
        a("v_fma_f32 v6, v6, v7, v6")
        a("v_cvt_pk_bf16_f32 v6, v6, v6")
        a("v_lshlrev_b32 v218, 16, v6")
        W1, W16, W256, W512, W768, W1024 = 10, 12, 14, 16, 18, 20
        WX = 22
        CB = 24
        Y = 26; P = 28; TMP1 = 30; TMP2 = 32; TMP3 = 34
        PK = 36
        V = 50
        CV = 66
        YF = 76
        AF = 92
        ACC = 108
        nopk = (part == "head") and ("pkhead" not in self.ph)
        def cmul(out, x, w, t):
            if nopk:
                return ["v_mul_f32 v%d, v%d, v%d" % (t, x + 1, w + 1),
                        "v_mul_f32 v%d, v%d, v%d" % (t + 1, x, w + 1),
                        "v_fma_f32 v%d, v%d, v%d, -v%d" % (out, x, w, t),
                        "v_fma_f32 v%d, v%d, v%d, v%d" % (out + 1, x + 1, w, t + 1)]
            return ["v_pk_mul_f32 v[%d:%d], v[%d:%d], v[%d:%d] op_sel:[0,0] op_sel_hi:[0,1]" % (t, t + 1, x, x + 1, w, w + 1),
                    "v_pk_fma_f32 v[%d:%d], v[%d:%d], v[%d:%d], v[%d:%d] op_sel:[1,1,0] op_sel_hi:[1,0,1] neg_lo:[1,0,0]" % (out, out + 1, x, x + 1, w, w + 1, t, t + 1)]
        def zipl(*ls):
            o = []
            for i in range(max(len(l) for l in ls)):
                for l in ls:
                    if i < len(l): o.append(l[i])
            return o
        cvn = [0, 0]
        def wr(val, tile, row, neg, bank=0):
            c = CV + 4 * bank + (cvn[bank] % 4); cvn[bank] += 1
            return ["v_cvt_pk_bf16_f32 v%d, v%d, %sv%d" % (c, val, "-" if neg else "", val + 1),
                    "ds_write_addtid_b32 v%d offset:%d" % (c, tile * TABTILE + row * TABROW)]
        def frag_reads(dst, tile):
            L = []
            for kk in range(4):
                L.append("ds_read_b64 v[%d:%d], v3 offset:%d" % (dst + 4 * kk, dst + 4 * kk + 1, tile * TABTILE + 16 * kk))
                L.append("ds_read_b64 v[%d:%d], v2 offset:%d" % (dst + 4 * kk + 2, dst + 4 * kk + 3, tile * TABTILE + 16 * kk))
            return L
        def mm(t, first):
            L = []
            for kk in range(4):
                c = "0" if (first and kk == 0) else "v[%d:%d]" % (ACC + 4 * t, ACC + 4 * t + 3)
                L.append("v_mfma_f32_16x16x32_bf16 v[%d:%d], v[%d:%d], v[%d:%d], %s" % (ACC + 4 * t, ACC + 4 * t + 3, AF + 4 * kk, AF + 4 * kk + 3, YF + 4 * kk, YF + 4 * kk + 3, c))
            return L
        a = real_a
        nh = 2 if "kg2" in self.ph else 1
        slots = [0, 1, 2] if part in ("all", "rest") else (list(range(nh)) if part == "head" else list(range(nh, 3)))
        for sl in slots:
            if sl == 1 and part == "tail" and not self.fused(): a("s_waitcnt vmcnt(0)")
            if sl == 2 and part in ("rest", "tail"): self.stamp(3)
            if sl == 2 and "prioT" in self.ph: a("s_setprio 2")
            if sl == slots[0] and part in ("tail", "rest") and "prioT0" in self.ph and "prioMid" not in self.ph: a("s_setprio 2")
            pr = 200 + 6 * sl
            for k in range(6): a("v_lshlrev_b32 v%d, 16, v%d" % (pr + k, pr + k))
            a("v_mul_f32 v6, v218, v%d" % pr)
            a("v_mul_f32 v7, v218, v%d" % (pr + 1))
            a("v_mul_f32 v6, 0x3fb8aa3b, v6")
            a("v_mul_f32 v7, 0.15915494, v7")
            a("v_mul_f32 v8, v218, v%d" % (pr + 2))
            a("v_mul_f32 v9, v218, v%d" % (pr + 3))
            a.ext(cmul(CB, pr + 4, 8, TMP1))
            for w, k in ((W1, 1.0), (W16, 16.0), (W256, 256.0)):
                if k == 1.0:
                    a("v_exp_f32 v%d, v6" % TMP2)
                    a("v_fract_f32 v%d, v7" % TMP3)
                else:
                    lit = "0x41800000" if k == 16.0 else "0x43800000"
                    a("v_mul_f32 v%d, %s, v6" % (TMP2, lit))
                    a("v_mul_f32 v%d, %s, v7" % (TMP3, lit))
                    a("v_exp_f32 v%d, v%d" % (TMP2, TMP2))
                    a("v_fract_f32 v%d, v%d" % (TMP3, TMP3))
                a("v_cos_f32 v%d, v%d" % (w, TMP3))
                a("v_sin_f32 v%d, v%d" % (w + 1, TMP3))
                a("s_nop 0")
                a("v_mul_f32 v%d, v%d, v%d" % (w, w, TMP2))
                a("v_mul_f32 v%d, v%d, v%d" % (w + 1, w + 1, TMP2))
            if sl != slots[0]:
                a("s_waitcnt lgkmcnt(0)")
                a.ext(pend_mm2)
            if sl == slots[0] and part in ("tail", "rest") and "prioMid" in self.ph: a("s_setprio 2")
            LY = ["v_mov_b32 v%d, v%d" % (Y, CB), "v_mov_b32 v%d, v%d" % (Y + 1, CB + 1)] + wr(Y, 0, 0, False)
            for j in range(1, 16):
                LY += cmul(Y, Y, W16, TMP1) + wr(Y, 0, j, False)
            LA = ["v_mov_b32 v%d, 1.0" % P, "v_mov_b32 v%d, 0" % (P + 1)] + wr(P, 1, 0, True, 1)
            cur = P
            for r in range(1, 16):
                if r == 1:
                    LA += ["v_mov_b32 v%d, v%d" % (P, W1), "v_mov_b32 v%d, v%d" % (P + 1, W1 + 1)]
                    cur = P
                else:
                    dst = PK + 2 * (r // 2 - 1) if r % 2 == 0 else P
                    LA += cmul(dst, cur, W1, TMP2)
                    cur = dst
                LA += wr(cur, 1, r, True, 1)
            a.ext(zipl(LY, LA))
            a.ext(cmul(W512, W256, W256, TMP1))
            a.ext(frag_reads(YF, 0)); a.ext(frag_reads(AF, 1))
            a.ext(zipl(cmul(W768, W512, W256, TMP1), cmul(W1024, W512, W512, TMP2)))
            def pk(i): return PK + 2 * (i // 2 - 1)
            vals = []
            A2 = []
            regs = []
            for r in range(8):
                if r == 0: regs.append(W256)
                else:
                    dst = V + 2 * (r - 1) if r < 8 else None
                    A2.append(cmul(dst, pk(2 * r), W256, TMP1 if r % 2 else TMP2)); regs.append(dst)
            a.ext(zipl(sum(A2[0::2], []), sum(A2[1::2], [])))
            a("s_waitcnt lgkmcnt(0)")
            m = mm(0, sl == 0)
            L = []
            for r in range(8): L += wr(regs[r], 1, r, True)
            a.ext(interleave(m, L))
            LA = []; LB = []
            for b in range(4):
                if b == 0:
                    LA += wr(W512, 1, 8, True); LB += wr(W768, 1, 12, True, 1)
                else:
                    LA += cmul(V, pk(4 * b), W512, TMP1) + wr(V, 1, 8 + b, True)
                    LB += cmul(V + 2, pk(4 * b), W768, TMP2) + wr(V + 2, 1, 12 + b, True, 1)
            a.ext(zipl(LA, LB))
            a.ext(frag_reads(AF, 1))
            a.ext(zipl(cmul(V, W1024, W256, TMP1), cmul(V + 2, W1024, W512, TMP2)))
            a.ext(zipl(cmul(V + 4, W1024, W768, TMP1), cmul(V + 6, W1024, W1024, TMP2)))
            ws = [W1024, V, V + 2, V + 4]
            a.ext(zipl(cmul(V + 8, ws[0], pk(8), TMP1), cmul(V + 10, ws[1], pk(8), TMP2)))
            a.ext(zipl(cmul(V + 12, ws[2], pk(8), TMP1), cmul(V + 14, ws[3], pk(8), TMP2)))
            a("s_waitcnt lgkmcnt(0)")
            m = mm(1, sl == 0)
            L = []
            for i in range(4):
                L += wr(ws[i], 1, 2 * i, True) + wr(V + 8 + 2 * i, 1, 2 * i + 1, True)
            L += wr(V + 6, 1, 8, True)
            a.ext(interleave(m, L))
            a.ext(frag_reads(AF, 1))
            pend_mm2 = mm(2, sl == 0)
            if sl == slots[-1]:
                a("s_waitcnt lgkmcnt(0)")
                a.ext(pend_mm2); pend_mm2 = None
        if not tail: return
        self.stamp(1)
        A0, A1, A2r = ACC, ACC + 4, ACC + 8
        a("v_cmp_eq_u32 vcc, 0, v0")
        a("v_and_b32 v4, 15, v0")
        a("v_lshrrev_b32 v5, 4, v0")
        a("v_cndmask_b32 v6, 0, v219, vcc")
        a("v_lshlrev_b32 v7, 5, v4")
        a("v_lshl_add_u32 v7, v5, 4, v7")
        a("v_lshlrev_b32 v8, 4, v4")
        a("v_lshl_add_u32 v8, v5, 8, v8")
        a("v_cmp_gt_u32 vcc, 2, v5")
        a("v_add_f32 v%d, v%d, v6" % (A0, A0))
        a("s_nop 0")
        a("v_cndmask_b32 v7, v8, v7, vcc")
        a("v_add_u32 v7, s51, v7")
        a("v_lshlrev_b32 v8, 3, v4")
        a("v_lshl_add_u32 v8, v5, 8, v8")
        a("v_add_u32 v8, s51, v8")
        a("s_nop 4")
        a("ds_write_b128 v7, v[%d:%d]" % (A1, A1 + 3))
        a("ds_write_b64 v8, v[%d:%d] offset:1024" % (A2r, A2r + 1))
        a("ds_write_b64 v8, v[%d:%d] offset:1152" % (A2r + 2, A2r + 3))
        a("v_cvt_pk_bf16_f32 v10, v%d, v%d" % (A0 + 3, A0 + 2))
        a("v_cvt_pk_bf16_f32 v11, v%d, v%d" % (A0 + 1, A0))
        a("v_lshlrev_b32 v9, 5, v4")
        a("v_lshl_add_u32 v9, v5, 3, v9")
        a("v_sub_u32 v9, 4088, v9")
        a("v_add_u32 v9, s52, v9")
        a("ds_write_b64 v9, v[10:11]")
        a("v_and_b32 v9, 31, v0")
        a("v_lshlrev_b32 v9, 2, v9")
        a("v_add_u32 v9, s52, v9")
        a("v_mov_b32 v12, 0")
        a("ds_write_b32 v9, v12 offset:4096")
        a("v_lshlrev_b32 v13, 4, v0")
        a("v_add_u32 v14, s51, v13")
        a("v_lshlrev_b32 v15, 3, v0")
        a("v_add_u32 v15, s51, v15")
        a("v_lshlrev_b32 v16, 2, v0")
        a("v_add_u32 v16, s51, v16")
        a("v_sub_u32 v13, s52, v13")
        a("s_waitcnt lgkmcnt(0)")
        a("ds_read_b128 v[20:23], v14")
        a("ds_read_b32 v24, v14 offset:16")
        a("ds_read_b64 v[26:27], v15 offset:512")
        a("ds_read_b32 v28, v15 offset:520")
        a("ds_read2_b32 v[30:31], v16 offset0:0 offset1:1")
        a.l.pop()
        a("v_add_u32 v17, 1024, v16")
        a("ds_read2_b32 v[30:31], v17 offset0:0 offset1:1")
        a("ds_read2_b32 v[32:33], v17 offset0:64 offset1:65")
        a("v_and_b32 v18, 1, v0")
        a("v_cmp_eq_u32 vcc, 1, v18")
        a("s_waitcnt lgkmcnt(0)")
        a("v_cvt_pk_bf16_f32 v36, v28, v28")
        a("v_cvt_pk_bf16_f32 v37, v27, v27")
        a("v_cvt_pk_bf16_f32 v38, v27, v26")
        a("v_cvt_pk_bf16_f32 v39, v26, v26")
        a("ds_write_b128 v13, v[36:39] offset:3056")
        for ps in range(2):
            v0_, v1_ = 30 + 2 * ps, 31 + 2 * ps
            o = 40 + 4 * ps
            a("v_cndmask_b32 v19, v%d, v%d, vcc" % (v0_, v1_))
            a("v_cvt_pk_bf16_f32 v%d, v%d, v%d" % (o, v1_, v1_))
            a("v_cvt_pk_bf16_f32 v%d, v%d, v19" % (o + 1, v1_))
            a("v_cvt_pk_bf16_f32 v%d, v%d, v%d" % (o + 2, v0_, v0_))
            a("v_mov_b32 v%d, v%d" % (o + 3, o + 2))
        a("ds_write_b128 v13, v[40:43] offset:2032")
        a("ds_write_b128 v13, v[44:47] offset:1008")
        a("v_cvt_pk_bf16_f32 v48, v24, v23")
        a("v_cvt_pk_bf16_f32 v49, v22, v22")
        a("v_cvt_pk_bf16_f32 v50, v22, v21")
        a("v_cvt_pk_bf16_f32 v51, v20, v20")
        a("s_mov_b32 exec_hi, 0")
        a("ds_write_b128 v13, v[48:51] offset:3568")
        a("s_mov_b32 exec_hi, -1")
        if "dumpk" in self.ph:
            a("s_waitcnt lgkmcnt(0)")
            a("v_lshlrev_b32 v13, 4, v0")
            a("v_add_u32 v14, s52, v13")
            a("s_mul_i32 s67, s50, 4224")
            a("s_add_u32 s67, s67, %d" % WS_DBG)
            for i in range(5):
                a("ds_read_b128 v[20:23], v14 offset:%d" % (1024 * i))
                a("s_waitcnt lgkmcnt(0)")
                if i == 4: a("s_mov_b32 exec_hi, 0"); a("s_mov_b32 exec_lo, 0xff")
                a("s_add_u32 s68, s67, %d" % (1024 * i))
                a("buffer_store_dwordx4 v[20:23], v13, s[20:23], s68 offen")
                a("s_waitcnt vmcnt(0)")
            a("s_mov_b64 exec, -1")

    def u_look(self):
        a = self.a
        self.nonce_read(120)
        a("s_lshr_b32 s78, s50, 5")
        a("s_lshl_b32 s78, s78, 7")
        a("s_add_u32 s78, s78, %d" % WS_FU)
        a("v_and_b32 v120, 15, v0")
        a("v_lshlrev_b32 v120, 2, v120")
        a("buffer_load_dword v121, v120, s[20:23], s78 offen sc1")
    def u_prefetch(self):
        a = self.a
        l = self.newlab("uok")
        a("s_waitcnt vmcnt(0)")
        a("v_cmp_eq_u32 vcc, s64, v121")
        a("s_nop 1")
        a("s_cmp_eq_u64 vcc, -1")
        a("s_cbranch_scc1 %s" % l)
        self.poll_line("s78", 16, 120, sleep=4)
        a.lab(l)
        self.conv_loads()
        self.lds_inc(LDS_UOK, 152)

    def conv_loads(self):
        a = self.a
        a("s_mul_i32 s67, s50, %d" % ROWS)
        a("s_add_u32 s67, s67, %d" % (WS_UT - 4))
        a("v_lshlrev_b32 v1, 2, v0")
        for i in range(16):
            a("buffer_load_dwordx2 v[%d:%d], v1, s[20:23], s67 offen offset:%d sc1" % (120 + 2 * i, 121 + 2 * i, 256 * i))

    def conv(self):
        a = self.a
        D = 120
        a("s_mul_i32 s53, s66, %d" % UC_SZ)
        if LDS_UC: a("s_add_u32 s53, s53, %d" % LDS_UC)
        if not self.fused():
            a("s_mov_b32 m0, s53")
            a("v_mov_b32 v2, 0")
            for b in range(4):
                a("ds_write_addtid_b32 v2 offset:%d" % (b * UC_STRIDE))
                a("ds_write_addtid_b32 v2 offset:%d" % (b * UC_STRIDE + 33 * 4))
            a("v_cmp_eq_u32 vcc, 0, v0")
            a("s_waitcnt vmcnt(0)")
            a("v_cndmask_b32 v%d, v%d, v2, vcc" % (D, D))
            for i in range(16):
                lo, hi = D + 2 * i, D + 2 * i + 1
                o = 4 + (i % 4)
                a("v_alignbit_b32 v%d, v%d, v%d, 16" % (o, hi, lo))
                a("ds_write_addtid_b32 v%d offset:%d" % (hi, 3 * UC_STRIDE + 4 * (64 * i + 96)))
                a("ds_write_addtid_b32 v%d offset:%d" % (hi, 1 * UC_STRIDE + 4 * (64 * i + 97)))
                a("ds_write_addtid_b32 v%d offset:%d" % (o, 2 * UC_STRIDE + 4 * (64 * i + 96)))
                a("ds_write_addtid_b32 v%d offset:%d" % (o, 0 * UC_STRIDE + 4 * (64 * i + 97)))
        VU, VK = 8, 9
        a("v_and_b32 v4, 3, v0")
        a("v_mul_u32_u24 v4, %d, v4" % UC_STRIDE)
        a("v_bfe_u32 v5, v0, 2, 2")
        a("v_lshl_add_u32 v4, v5, 7, v4")
        a("v_lshrrev_b32 v5, 4, v0")
        a("v_lshl_add_u32 v4, v5, 4, v4")
        a("v_add_u32 v%d, s53, v4" % VU)
        a("v_and_b32 v6, 15, v0")
        a("v_lshlrev_b32 v7, 3, v6")
        a("v_sub_u32 v7, 120, v7")
        a("v_lshl_add_u32 v7, v5, 4, v7")
        a("v_add_u32 v%d, s52, v7" % VK)
        a("v_lshlrev_b32 v10, 3, v6")
        a("v_lshl_add_u32 v10, v5, 7, v10")
        ACC = 16; SETS = [48, 112]
        def reads(rho, S):
            L = []
            for z in range(8):
                L.append("ds_read_b128 v[%d:%d], v%d offset:%d" % (S + 4 * z, S + 4 * z + 3, VU, 512 * z + 64 * (7 - rho)))
                zz = 8 * z + rho
                L.append("ds_read_b64 v[%d:%d], v%d offset:%d" % (S + 32 + 4 * z, S + 33 + 4 * z, VK, 64 * (63 - zz)))
                L.append("ds_read_b64 v[%d:%d], v%d offset:%d" % (S + 34 + 4 * z, S + 35 + 4 * z, VK, 64 * (63 - zz) + 8))
            return L
        def mm(rho, S):
            L = []
            for ze in range(8):
                for nu in range(8 - ze):
                    n = ze + nu
                    c = "0" if (rho == 0 and ze == 0) else "v[%d:%d]" % (ACC + 4 * n, ACC + 4 * n + 3)
                    L.append("v_mfma_f32_16x16x32_bf16 v[%d:%d], v[%d:%d], v[%d:%d], %s" % (ACC + 4 * n, ACC + 4 * n + 3, S + 4 * nu, S + 4 * nu + 3, S + 32 + 4 * ze, S + 35 + 4 * ze, c))
            return L
        a("s_waitcnt lgkmcnt(0)")
        if self.fused(): self.lds_spin(LDS_UCOK, 12)
        self.stamp(4)
        a.ext(reads(0, SETS[0]))
        a("s_waitcnt lgkmcnt(0)")
        for rho in range(8):
            fill = reads(rho + 1, SETS[(rho + 1) & 1]) if rho < 7 else []
            a.ext(interleave(mm(rho, SETS[rho & 1]), fill, span=28))
            if rho < 7: a("s_waitcnt lgkmcnt(0)")
        self.stamp(7)
        a("s_mul_i32 s67, s50, %d" % ROWS)
        a("s_add_u32 s67, s67, %d" % WS_Y)
        a("s_nop 7")
        for n in range(8):
            o = 48 + 2 * n
            a("v_cvt_pk_bf16_f32 v%d, v%d, v%d" % (o, ACC + 4 * n, ACC + 4 * n + 1))
            a("v_cvt_pk_bf16_f32 v%d, v%d, v%d" % (o + 1, ACC + 4 * n + 2, ACC + 4 * n + 3))
            a("buffer_store_dwordx2 v[%d:%d], v10, s[20:23], s67 offen offset:%d sc1" % (o, o + 1, 512 * n))

    def s_ssm(self):
        a = self.a
        n = self.name
        a("s_sub_u32 s66, s3, 4")
        a("s_lshl_b32 s50, s66, 8")
        a("s_add_u32 s50, s50, s2")
        a("s_cmp_ge_u32 s66, 3")
        a("s_cbranch_scc1 %s_ssm_done" % n)
        if self.fused():
            l = self.newlab("nch")
            a("s_cmp_lt_u32 s50, 640")
            a("s_cbranch_scc1 %s" % l)
            a("s_branch %s_ssm_done" % n)
            a.lab(l)
        else:
            a("s_cmp_ge_u32 s50, 640")
            a("s_cbranch_scc1 %s_ssm_done" % n)
        if self.fused() and "g1" in self.ph:
            a("s_waitcnt vmcnt(0)")
        if "g1" not in self.ph:
            self.stamp(5)
            self.ssm_param_loads()
            self.kgen("all")
        elif "kghead" in self.ph:
            self.kgen("tail")
        else:
            self.kgen("rest")
        self.stamp(6)
        if not self.fused():
            self.conv_loads()
        self.conv()
        if "prioT" in self.ph or "prioT0" in self.ph: a("s_setprio 0")
        a("s_waitcnt vmcnt(0)")
        if self.fused():
            self.nonce_read(4)
            a("s_lshl_b32 s69, s50, 2")
            a("s_add_u32 s69, s69, %d" % WS_FY)
            self.flag_set("s69", 2)
        self.stamp(8)
        a.lab("%s_ssm_done" % n)

    G2_SETS = [80, 116, 152, 188]
    G2_VB, G2_VL, G2_VB8, G2_T, G2_VRS = 224, 228, 246, 230, 250

    def g2_setup(self):
        a = self.a
        VB, VL, VB8, T, VRS = self.G2_VB, self.G2_VL, self.G2_VB8, self.G2_T, self.G2_VRS
        a("v_mbcnt_lo_u32_b32 v%d, -1, 0" % T)
        a("v_mbcnt_hi_u32_b32 v%d, -1, v%d" % (T, T))
        a("v_lshlrev_b32 v%d, 4, v%d" % (VL, T))
        for tau in range(4):
            a("s_add_u32 s67, s3, %d" % tau)
            a("s_and_b32 s67, s67, 3")
            a("s_lshl_b32 s67, s67, 10")
            a("v_add_u32 v%d, s67, v%d" % (VB + tau, VL))
            a("v_lshlrev_b32 v%d, 3, v%d" % (VB8 + tau, T))
            a("v_add_u32 v%d, s67, v%d" % (VB8 + tau, VB8 + tau))
        a("s_mul_i32 s70, s6, 48")
        a("s_mul_i32 s67, s3, 12")
        a("s_add_u32 s70, s70, s67")
        a("s_lshl_b32 s70, s70, 12")
        if WS_H: a("s_add_u32 s70, s70, %d" % WS_H)
        a("s_mul_i32 s71, s7, 48")
        a("s_add_u32 s71, s71, s67")
        a("s_mul_i32 s71, s71, 5120")
        a("s_add_u32 s71, s71, %d" % WS_WD)
        a("s_add_u32 s72, s71, 4096")
        for tau in range(1, 4):
            a("s_add_u32 s67, s3, %d" % tau)
            a("s_and_b32 s67, s67, 3")
            a("s_mul_i32 s67, s67, 3")
            a("s_add_u32 s67, s67, %d" % (tau - 1))
            a("s_mul_i32 s67, s67, 5120")
            a("s_add_u32 s67, s67, %d" % LDS_RED)
            a("v_add_u32 v%d, s67, v%d" % (VRS + tau - 1, VL))
            a("s_mov_b32 s%d, s67" % (72 + tau))

    def g2_final_addrs(self):
        a = self.a
        T, VL = self.G2_T, self.G2_VL
        a("s_mul_i32 s67, s3, %d" % (3 * 5120))
        a("s_add_u32 s67, s67, %d" % LDS_RED)
        a("v_add_u32 v%d, s67, v%d" % (T + 1, VL))
        a("v_lshrrev_b32 v%d, 4, v%d" % (T + 2, T))
        a("v_and_b32 v%d, 15, v%d" % (T + 3, T))
        a("v_lshrrev_b32 v%d, 2, v%d" % (T + 4, T + 3))
        a("v_lshl_add_u32 v%d, v%d, 3, v%d" % (T + 5, T + 2, T + 4))
        a("v_lshl_add_u32 v%d, v%d, 2, v%d" % (T + 6, T + 2, T + 4))
        a("v_and_b32 v%d, 3, v%d" % (T + 7, T))
        a("v_lshlrev_b32 v%d, 3, v%d" % (T + 7, T + 7))
        a("s_lshl_b32 s67, s3, 5")
        a("s_add_u32 s67, s67, %d" % LDS_YT)
        a("v_add_u32 v%d, s67, v%d" % (T + 7, T + 7))
        a("v_lshl_add_u32 v%d, v%d, 7, v%d" % (T + 5, T + 5, T + 7))
        a("v_lshl_add_u32 v%d, v%d, 7, v%d" % (T + 6, T + 6, T + 7))
        a("s_lshl_b32 s67, s3, 6")
        a("s_add_u32 s67, s67, %d" % LDS_GT)
        a("v_lshl_add_u32 v%d, v%d, 2, s67" % (T + 8, T + 3))
        a("s_lshl_b32 s67, s6, 6")
        a("s_lshl_b32 s68, s3, 4")
        a("s_add_u32 s67, s67, s68")
        a("v_add_u32 v%d, s67, v%d" % (T + 9, T + 3))
        a("s_movk_i32 s68, 1280")
        a("v_mul_lo_u32 v%d, v%d, s68" % (T + 9, T + 9))
        a("s_mul_i32 s68, s7, 160")
        a("v_add_u32 v%d, s68, v%d" % (T + 9, T + 9))
        a("v_lshl_add_u32 v%d, v%d, 3, v%d" % (T + 10, T + 2, T + 9))
        a("v_lshl_add_u32 v%d, v%d, 4, v%d" % (T + 9, T + 2, T + 9))

    def g2_loadsA(self, S):
        VL = self.G2_VL
        L = []
        for dt in range(5):
            if dt < 4: L.append("buffer_load_dwordx4 v[%d:%d], v%d, s[20:23], s71 offen offset:%d sc1" % (S + 16 + 4 * dt, S + 19 + 4 * dt, VL, 1024 * dt))
            else: L.append(("buffer_load_dwordx4 v[%d:%d], v%d, s[20:23], s72 offen sc1" % (S + 16 + 4 * dt, S + 19 + 4 * dt, VL),
                            "s_add_u32 s71, s71, 5120", "s_add_u32 s72, s72, 5120"))
        return L

    def g2_burst_atoms(self):
        VL = self.G2_VL
        regl = []
        for k in range(4): regl += self.g2_loadsA(self.G2_SETS[k])
        dmal = []
        for tau in range(1, 4):
            dmal.append(("s_mov_b32 m0, s%d" % (72 + tau), "s_nop 0",
                         "buffer_load_dwordx4 v%d, s[20:23], s71 offen sc1 lds" % VL))
            for dt in range(1, 4):
                dmal.append("buffer_load_dwordx4 v%d, s[20:23], s71 offen offset:%d sc1 lds" % (VL, 1024 * dt))
            dmal.append(("s_add_u32 m0, s%d, 4096" % (72 + tau), "s_add_u32 s71, s71, 5120",
                         "buffer_load_dwordx4 v%d, s[20:23], s72 offen sc1 lds" % VL, "s_add_u32 s72, s72, 5120"))
        return regl, dmal

    def g_gemm2(self):
        a = self.a
        ACC = 0
        SETS = self.G2_SETS
        VB, VL, VB8, T, VRS = self.G2_VB, self.G2_VL, self.G2_VB8, self.G2_T, self.G2_VRS
        acc = lambda dt, tau: ACC + (dt * 4 + tau) * 4
        epb = "epb" in self.ph and "g1" in self.ph
        if not epb: self.g2_setup()
        loadsA = self.g2_loadsA
        def loadsB(S, k):
            L = []
            for tau in range(4):
                if k % 3 == 1:
                    x = ("buffer_load_dwordx2 v[%d:%d], v%d, s[20:23], s70 offen sc1" % (S + 4 * tau, S + 4 * tau + 1, VB8 + tau),
                         "buffer_load_dwordx2 v[%d:%d], v%d, s[20:23], s70 offen offset:512 sc1" % (S + 4 * tau + 2, S + 4 * tau + 3, VB8 + tau))
                else:
                    x = ("buffer_load_dwordx4 v[%d:%d], v%d, s[20:23], s70 offen sc1" % (S + 4 * tau, S + 4 * tau + 3, VB + tau),)
                L.append(x if tau < 3 else x + ("s_add_u32 s70, s70, 4096",))
            return L
        nB = lambda k: 8 if k % 3 == 1 else 4
        def mm(S, first):
            L = []
            for dt in range(5):
                for tau in range(4):
                    c = "0" if first else "v[%d:%d]" % (acc(dt, tau), acc(dt, tau) + 3)
                    L.append("v_mfma_f32_16x16x32_bf16 v[%d:%d], v[%d:%d], v[%d:%d], %s" % (acc(dt, tau), acc(dt, tau) + 3, S + 16 + 4 * dt, S + 19 + 4 * dt, S + 4 * tau, S + 4 * tau + 3, c))
            return L
        NS = 12
        pre = "g1" in self.ph and "nopre" not in self.ph
        VLOOK = 254
        if epb:
            if self.fused(): self.nonce_read(232)
            self.g_signal_h(0)
            if self.fused():
                a("s_lshr_b32 s79, s6, 1")
                a("s_lshl_b32 s79, s79, 7")
                a("s_lshl_b32 s67, s3, 4")
                a("s_add_u32 s79, s79, s67")
                a("s_add_u32 s79, s79, %d" % WS_FH)
                self.poll_line("s79", 4, VLOOK, sleep=3)
        elif "g1" in self.ph:
            if self.fused():
                self.nonce_read(232)
                a("v_mov_b32 v%d, 0" % VLOOK)
                l = self.newlab("lk"); l2 = self.newlab("lk")
                a("s_cmp_lg_u32 s3, 0")
                a("s_cbranch_scc1 %s" % l)
                a("s_lshl_b32 s79, s7, 8")
                a("s_add_u32 s79, s79, %d" % WS_FW)
                self.look_line("s79", 48, VLOOK)
                a("s_waitcnt vmcnt(1)")
                a("s_branch %s" % l2)
                a.lab(l)
                a("s_waitcnt vmcnt(0)")
                a.lab(l2)
                self.g_signal_h(None)
            else:
                self.g_signal_h(0)
        if pre and not epb:
            if self.fused():
                lo = self.newlab("ww"); ld = self.newlab("wd")
                a("s_cmp_lg_u32 s3, 0")
                a("s_cbranch_scc1 %s" % lo)
                self.lds_spin(LDS_SFREE, 232, 4)
                self.lds_spin(LDS_UOK, 232, 3)
                self.check_line("s79", VLOOK, 0)
                a("v_mov_b32 v232, %d" % LDS_WOK)
                a("v_mov_b32 v233, 1")
                a("ds_write_b32 v232, v233")
                if "hall" in self.ph:
                    a("s_lshr_b32 s79, s6, 1")
                    a("s_lshl_b32 s79, s79, 7")
                    a("s_add_u32 s79, s79, %d" % WS_FH)
                    self.look_line("s79", 16, VLOOK)
                a("s_branch %s" % ld)
                a.lab(lo)
                self.lds_spin(LDS_WOK, 232)
                a.lab(ld)
                if "hall" not in self.ph:
                    a("s_lshr_b32 s79, s6, 1")
                    a("s_lshl_b32 s79, s79, 7")
                    a("s_lshl_b32 s67, s3, 4")
                    a("s_add_u32 s79, s79, s67")
                    a("s_add_u32 s79, s79, %d" % WS_FH)
                    self.look_line("s79", 4, VLOOK)
            regl, dmal = self.g2_burst_atoms()
            a.ext(flat(regl)); a.ext(flat(dmal))
        fintrim = "fintrim" in self.ph
        if fintrim: self.g2_final_addrs()
        if not epb: self.g2_wait_inputs(looked=pre)
        self.stamp(5)
        self.clk(5)
        def srcA(k):
            if not pre: return "g"
            return "pre" if k < 4 else ("lds" if k < 7 else "g")
        def loadA_any(k):
            S = SETS[k % 4]
            if srcA(k) == "g": return loadsA(S)
            if srcA(k) == "lds":
                return ["ds_read_b128 v[%d:%d], v%d offset:%d" % (S + 16 + 4 * dt, S + 19 + 4 * dt, VRS + k - 4, 1024 * dt) for dt in range(5)]
            return []
        nL = lambda k: nB(k) + (5 if srcA(k) == "g" else 0)
        deep = "deepB" in self.ph and pre
        def M(S, dt, tau, first):
            c = "0" if first else "v[%d:%d]" % (acc(dt, tau), acc(dt, tau) + 3)
            return "v_mfma_f32_16x16x32_bf16 v[%d:%d], v[%d:%d], v[%d:%d], %s" % (acc(dt, tau), acc(dt, tau) + 3, S + 16 + 4 * dt, S + 19 + 4 * dt, S + 4 * tau, S + 4 * tau + 3, c)
        W = lambda dt, tau: "ds_write_b128 v%d, v[%d:%d] offset:%d" % (VRS + tau - 1, acc(dt, tau), acc(dt, tau) + 3, 1024 * dt)
        gk = 7 if "gok7" in self.ph else (6 if "gok6" in self.ph else NS - 4)
        if deep:
            vm = []
            def nvm(atoms): return sum(1 for x in flat(atoms) if x.startswith("buffer_"))
            def issue(tag, atoms): vm.extend([tag] * nvm(atoms))
            for k in range(4):
                L = loadsB(SETS[k], k); a.ext(flat(L)); issue(("B", k), L)
            for k in range(NS):
                S = SETS[k % 4]
                need = [i for i, t in enumerate(vm) if t in (("B", k), ("A", k))]
                rem = len(vm) - 1 - max(need)
                if srcA(k) == "lds": a("s_waitcnt vmcnt(%d) lgkmcnt(0)" % rem)
                else: a("s_waitcnt vmcnt(%d)" % rem)
                LA = loadA_any(k + 3) if k + 3 < NS else []
                LB = loadsB(S, k + 4) if k + 4 < NS else []
                if k == NS - 1 and fintrim:
                    for dt in range(5): a(M(S, dt, 1, False))
                    for dt in range(5): a(M(S, dt, 2, False))
                    for dt in range(5): a(M(S, dt, 3, False)); a(W(dt, 1))
                    for dt in range(5): a(M(S, dt, 0, False)); a(W(dt, 2))
                    for dt in range(5): a(W(dt, 3))
                else:
                    ai = 0
                    for tau in range(4):
                        for dt in range(5):
                            a(M(S, dt, tau, k == 0))
                            if dt in (1, 3) and ai < len(LA):
                                a.ext(flat([LA[ai]]));
                                if nvm([LA[ai]]): issue(("A", k + 3), [LA[ai]])
                                ai += 1
                        if LB: a.ext(flat([LB[tau]])); issue(("B", k + 4), [LB[tau]])
                    while ai < len(LA):
                        a.ext(flat([LA[ai]]))
                        if nvm([LA[ai]]): issue(("A", k + 3), [LA[ai]])
                        ai += 1
                if k == gk and self.fused(): self.lds_inc(LDS_GOK, 232)
        else:
            for k in range(3):
                a.ext(flat(loadsB(SETS[k], k) + loadA_any(k)))
            for k in range(NS):
                rem = sum(nL(j) for j in range(k + 1, min(NS - 1, k + 2) + 1))
                if srcA(k) == "lds": a("s_waitcnt vmcnt(%d) lgkmcnt(0)" % rem)
                else: a("s_waitcnt vmcnt(%d)" % rem)
                fill = (loadsB(SETS[(k + 3) % 4], k + 3) + loadA_any(k + 3)) if k + 3 < NS else []
                if "k2stamps" in self.ph and k < 9: self.stamp(k + 1, force=True)
                if k == NS - 1 and fintrim:
                    S = SETS[k % 4]
                    for dt in range(5): a(M(S, dt, 1, False))
                    for dt in range(5): a(M(S, dt, 2, False))
                    for dt in range(5): a(M(S, dt, 3, False)); a(W(dt, 1))
                    for dt in range(5): a(M(S, dt, 0, False)); a(W(dt, 2))
                    for dt in range(5): a(W(dt, 3))
                else:
                    a.ext(interleave(mm(SETS[k % 4], k == 0), fill))
                if k == gk and self.fused(): self.lds_inc(LDS_GOK, 232)
        self.stamp(6)
        self.clk(7)
        if not fintrim:
            a("s_nop 7")
            for tau in range(1, 4):
                for dt in range(5):
                    a("ds_write_b128 v%d, v[%d:%d] offset:%d" % (VRS + tau - 1, acc(dt, tau), acc(dt, tau) + 3, 1024 * dt))
        a("s_waitcnt lgkmcnt(0)")
        a("s_barrier")
        self.stamp(7)
        if not fintrim: self.g2_final_addrs()
        R = 80
        for j in range(3):
            for dt in range(5):
                r = R + (j * 5 + dt) * 4
                a("ds_read_b128 v[%d:%d], v%d offset:%d" % (r, r + 3, T + 1, 5120 * j + 1024 * dt))
        Y = 140
        for dt in range(5):
            if dt < 4: a("ds_read_b64_tr_b16 v[%d:%d], v%d offset:%d" % (Y + 2 * dt, Y + 2 * dt + 1, T + 5, 128 * (32 * (dt >> 1) + 4 * (dt & 1))))
            else: a("ds_read_b64_tr_b16 v[%d:%d], v%d offset:%d" % (Y + 2 * dt, Y + 2 * dt + 1, T + 6, 128 * 64))
        a("ds_read_b32 v%d, v%d" % (T + 8, T + 8))
        a("s_waitcnt lgkmcnt(0)")
        for dt in range(5):
            for h in range(2):
                x = acc(dt, 0) + 2 * h
                p = [R + (j * 5 + dt) * 4 + 2 * h for j in range(3)]
                a("v_pk_add_f32 v[%d:%d], v[%d:%d], v[%d:%d]" % (p[0], p[0] + 1, p[0], p[0] + 1, p[1], p[1] + 1))
                a("v_pk_add_f32 v[%d:%d], v[%d:%d], v[%d:%d]" % (x, x + 1, x, x + 1, p[2], p[2] + 1))
        for dt in range(5):
            for h in range(2):
                x = acc(dt, 0) + 2 * h
                p = R + dt * 4 + 2 * h
                a("v_pk_add_f32 v[%d:%d], v[%d:%d], v[%d:%d]" % (x, x + 1, x, x + 1, p, p + 1))
        U = 150
        for dt in range(5):
            for h in range(2):
                a("v_lshlrev_b32 v%d, 16, v%d" % (U + 4 * dt + 2 * h, Y + 2 * dt + h))
                a("v_and_b32 v%d, 0xffff0000, v%d" % (U + 4 * dt + 2 * h + 1, Y + 2 * dt + h))
        G2 = T + 12
        assert G2 % 2 == 0
        a("v_mov_b32 v%d, v%d" % (G2, T + 8))
        a("v_mov_b32 v%d, v%d" % (G2 + 1, T + 8))
        for dt in range(5):
            for h in range(2):
                x = acc(dt, 0) + 2 * h; u = U + 4 * dt + 2 * h
                a("v_pk_add_f32 v[%d:%d], v[%d:%d], v[%d:%d] neg_lo:[0,1] neg_hi:[0,1]" % (u, u + 1, u, u + 1, x, x + 1))
        for dt in range(5):
            for h in range(2):
                x = acc(dt, 0) + 2 * h; u = U + 4 * dt + 2 * h
                a("v_pk_fma_f32 v[%d:%d], v[%d:%d], v[%d:%d], v[%d:%d]" % (x, x + 1, u, u + 1, G2, G2 + 1, x, x + 1))
        O = 176
        for dt in range(5):
            for h in range(2):
                x = acc(dt, 0) + 2 * h
                a("v_cvt_pk_bf16_f32 v%d, v%d, v%d" % (O + 2 * dt + h, x, x + 1))
        fl = " sc1" if "outsc1" in self.ph else (" nt" if "outnt" in self.ph else "")
        a("buffer_store_dwordx4 v[%d:%d], v%d, s[24:27], 0 offen%s" % (O, O + 3, T + 9, fl))
        a("buffer_store_dwordx4 v[%d:%d], v%d, s[24:27], 0 offen offset:64%s" % (O + 4, O + 7, T + 9, fl))
        a("buffer_store_dwordx2 v[%d:%d], v%d, s[24:27], 0 offen offset:128%s" % (O + 8, O + 9, T + 10, fl))
        self.stamp(8)

    def g2_wait_inputs(self, looked=False):
        if not self.fused(): return
        a = self.a
        T = 232
        if looked and "hall" not in self.ph:
            self.check_line("s79", 254, 35, sleep=4)
            return
        lo = self.newlab("hw"); ld = self.newlab("hd")
        a("s_cmp_lg_u32 s3, 0")
        a("s_cbranch_scc1 %s" % lo)
        if looked:
            self.check_line("s79", 254, 35)
        else:
            a("s_lshr_b32 s78, s6, 1")
            a("s_lshl_b32 s78, s78, 7")
            a("s_add_u32 s78, s78, %d" % WS_FH)
            self.poll_line("s78", 16, T, sleep=4)
        a("v_mov_b32 v%d, %d" % (T, LDS_HOK))
        a("v_mov_b32 v%d, 1" % (T + 1))
        a("ds_write_b32 v%d, v%d" % (T, T + 1))
        a("s_branch %s" % ld)
        a.lab(lo)
        self.lds_spin(LDS_HOK, T)
        a.lab(ld)

    def s_final(self):
        a = self.a
        n = self.name
        l = self.newlab("fin")
        a("s_cmp_lg_u32 s3, 7")
        a("s_cbranch_scc1 %s" % l)
        if self.fused(): self.lds_spin(LDS_GOK, 2, 4)
        self.y_wait_inputs()
        a("v_mbcnt_lo_u32_b32 v0, -1, 0")
        a("v_mbcnt_hi_u32_b32 v0, -1, v0")
        a("v_lshrrev_b32 v1, 3, v0")
        a("v_mul_u32_u24 v1, %d, v1" % ROWS)
        a("v_and_b32 v2, 7, v0")
        a("v_lshl_add_u32 v1, v2, 4, v1")
        a("s_mul_i32 s67, s7, %d" % (80 * ROWS))
        a("s_lshl_b32 s68, s6, 7")
        a("s_add_u32 s67, s67, s68")
        a("s_add_u32 s67, s67, %d" % WS_Y)
        for i in range(10):
            a("buffer_load_dwordx4 v[%d:%d], v1, s[20:23], s67 offen sc1" % (8 + 4 * i, 11 + 4 * i))
            if i < 9: a("s_add_u32 s67, s67, %d" % (8 * ROWS))
        a("s_lshl_b32 s67, s6, 8")
        a("s_add_u32 s67, s67, %d" % WS_G)
        a("v_lshlrev_b32 v3, 2, v0")
        a("buffer_load_dword v4, v3, s[20:23], s67 offen sc1")
        if self.fused() and "nonearly" not in self.ph: self.nonce_look()
        a("v_lshlrev_b32 v2, 4, v0")
        a("v_add_u32 v2, %d, v2" % LDS_YT)
        a("v_add_u32 v3, %d, v3" % LDS_GT)
        a("s_waitcnt vmcnt(0)")
        for i in range(10):
            a("ds_write_b128 v2, v[%d:%d] offset:%d" % (8 + 4 * i, 11 + 4 * i, 1024 * i))
        a("ds_write_b32 v3, v4")
        a("s_waitcnt lgkmcnt(0)")
        a("s_barrier")
        if self.fused() and "nonearly" not in self.ph: self.nonce_update(looked=True)
        a("s_branch %s_fd" % l)
        a.lab(l)
        a("s_barrier")
        a.lab("%s_fd" % l)

    def y_wait_inputs(self):
        if not self.fused(): return
        a = self.a
        a("v_mbcnt_lo_u32_b32 v0, -1, 0")
        a("v_mbcnt_hi_u32_b32 v0, -1, v0")
        a("s_mul_i32 s67, s7, 320")
        a("s_add_u32 s67, s67, %d" % WS_FY)
        a("v_lshl_add_u32 v1, v0, 2, s67")
        a("v_add_u32 v2, 256, v1")
        a("s_lshl_b32 s68, s6, 5")
        a("s_add_u32 s68, s68, %d" % (WS_FG - 64))
        a("v_lshl_add_u32 v3, v0, 2, s68")
        a("v_cmp_le_u32 vcc, 16, v0")
        a("s_nop 1")
        a("v_cndmask_b32 v2, v2, v3, vcc")
        a("v_subrev_u32 v3, 24, v0")
        a("v_lshlrev_b32 v3, 10, v3")
        a("s_lshl_b32 s68, s2, 2")
        a("s_add_u32 s68, s68, %d" % WS_FY)
        a("v_add_u32 v3, s68, v3")
        a("v_cmp_le_u32 vcc, 24, v0")
        a("s_nop 1")
        a("v_cndmask_b32 v2, v2, v3, vcc")
        a("s_cmp_lt_u32 s2, 128")
        a("s_cselect_b32 s68, 27, 26")
        a("v_mov_b32 v3, s67")
        a("v_cmp_le_u32 vcc, s68, v0")
        a("s_nop 1")
        a("v_cndmask_b32 v2, v2, v3, vcc")
        def loads():
            a("buffer_load_dword v4, v1, s[20:23], 0 offen sc1")
            a("buffer_load_dword v5, v2, s[20:23], 0 offen sc1")
        self.poll(loads, [4, 5], 6, sleep=8)

    def fused(self): return "fused" in self.ph

    def nonce_load(self):
        a = self.a
        if "snonce" in self.ph:
            a("s_add_u32 s68, s%d, %d" % (P_WS, WS_NON))
            a("s_addc_u32 s69, s%d, 0" % (P_WS + 1))
            a("s_load_dword s55, s[68:69], 0")
            return
        a("v_mov_b32 v1, 0")
        a("s_mov_b32 s67, %d" % WS_NON)
        a("buffer_load_dword v242, v1, s[20:23], s67 offen sc1")
    def nonce_publish_local(self):
        a = self.a
        if "snonce" in self.ph:
            a("s_waitcnt lgkmcnt(0)")
            a("s_add_u32 s64, s55, 1")
            a("v_mov_b32 v242, s64")
            a("v_mov_b32 v1, %d" % LDS_NONCE)
            a("ds_write_b32 v1, v242")
            return
        a("v_add_u32 v242, 1, v242")
        a("v_mov_b32 v1, %d" % LDS_NONCE)
        a("ds_write_b32 v1, v242")
        a("v_readfirstlane_b32 s64, v242")
    def nonce_look(self):
        a = self.a
        l = self.newlab("nl")
        a("v_mov_b32 v59, 0")
        a("s_cmp_lg_u32 s2, 0")
        a("s_cbranch_scc1 %s" % l)
        a("v_lshlrev_b32 v59, 4, v0")
        a("s_mov_b32 s78, %d" % WS_FG)
        a("buffer_load_dwordx4 v[60:63], v59, s[20:23], s78 offen sc1")
        a.lab(l)
    def nonce_update(self, looked=False):
        a = self.a
        l = self.newlab("nu"); l2 = self.newlab("nu")
        a("s_cmp_lg_u32 s2, 0")
        a("s_cbranch_scc1 %s" % l)
        if looked:
            for i in range(4):
                if i == 0: a("v_cmp_eq_u32 vcc, s64, v60")
                else:
                    a("v_cmp_eq_u32 s[76:77], s64, v%d" % (60 + i))
                    a("s_nop 1")
                    a("s_and_b64 vcc, vcc, s[76:77]")
            a("s_nop 1")
            a("s_cmp_eq_u64 vcc, -1")
            a("s_cbranch_scc1 %s" % l2)
        a("v_mbcnt_lo_u32_b32 v2, -1, 0")
        a("v_mbcnt_hi_u32_b32 v2, -1, v2")
        a("v_lshlrev_b32 v2, 4, v2")
        a("s_mov_b32 s78, %d" % WS_FG)
        self.poll(lambda: a("buffer_load_dwordx4 v[4:7], v2, s[20:23], s78 offen sc1"), [4, 5, 6, 7], 2, sleep=8)
        a.lab(l2)
        a("s_mov_b32 s69, %d" % WS_NON)
        self.flag_set("s69", 2)
        a.lab(l)

    def nonce_read(self, vt):
        a = self.a
        a("v_mov_b32 v%d, %d" % (vt, LDS_NONCE))
        a("ds_read_b32 v%d, v%d" % (vt, vt))
        a("s_waitcnt lgkmcnt(0)")
        a("v_readfirstlane_b32 s64, v%d" % vt)
        a("s_nop 1")

    def flag_set(self, soff_reg, vt):
        a = self.a
        a("v_mov_b32 v%d, s64" % vt)
        a("v_mov_b32 v%d, 0" % (vt + 1))
        a("s_mov_b64 exec, 1")
        a("buffer_store_dword v%d, v%d, s[20:23], %s offen sc1" % (vt, vt + 1, soff_reg))
        a("s_mov_b64 exec, -1")

    def poll(self, loads, vregs, vt, sleep=8):
        a = self.a
        lp = self.newlab("pl"); ld = self.newlab("pd")
        a("s_mov_b32 s69, 0")
        a.lab(lp)
        loads()
        a("s_waitcnt vmcnt(0)")
        for i, r in enumerate(vregs):
            if i == 0: a("v_cmp_eq_u32 vcc, s64, v%d" % r)
            else:
                a("v_cmp_eq_u32 s[76:77], s64, v%d" % r)
                a("s_nop 1")
                a("s_and_b64 vcc, vcc, s[76:77]")
        a("s_nop 1")
        a("s_cmp_eq_u64 vcc, -1")
        a("s_cbranch_scc1 %s" % ld)
        a("s_add_u32 s69, s69, 1")
        a("s_cmp_lt_u32 s69, 0x40000")
        a("s_cbranch_scc0 %s" % ld)
        a("s_sleep %d" % sleep)
        a("s_branch %s" % lp)
        a.lab(ld)

    def look_line(self, soff, nflags, vt):
        a = self.a
        a("v_mbcnt_lo_u32_b32 v%d, -1, 0" % vt)
        a("v_mbcnt_hi_u32_b32 v%d, -1, v%d" % (vt, vt))
        a("v_cmp_gt_u32 vcc, %d, v%d" % (nflags, vt))
        a("v_lshlrev_b32 v%d, 2, v%d" % (vt, vt))
        a("s_nop 0")
        a("v_cndmask_b32 v%d, 0, v%d, vcc" % (vt, vt))
        a("buffer_load_dword v%d, v%d, s[20:23], %s offen sc1" % (vt + 1, vt, soff))

    def check_line(self, soff, vt, nyounger, sleep=2):
        a = self.a
        l = self.newlab("ck")
        a("s_waitcnt vmcnt(%d)" % nyounger)
        a("v_cmp_eq_u32 vcc, s64, v%d" % (vt + 1))
        a("s_nop 1")
        a("s_cmp_eq_u64 vcc, -1")
        a("s_cbranch_scc1 %s" % l)
        self.poll(lambda: a("buffer_load_dword v%d, v%d, s[20:23], %s offen sc1" % (vt + 1, vt, soff)), [vt + 1], vt, sleep)
        a.lab(l)

    def poll_line(self, soff, nflags, vt, sleep=8):
        a = self.a
        a("v_mbcnt_lo_u32_b32 v%d, -1, 0" % vt)
        a("v_mbcnt_hi_u32_b32 v%d, -1, v%d" % (vt, vt))
        a("v_cmp_gt_u32 vcc, %d, v%d" % (nflags, vt))
        a("v_lshlrev_b32 v%d, 2, v%d" % (vt, vt))
        a("s_nop 0")
        a("v_cndmask_b32 v%d, 0, v%d, vcc" % (vt, vt))
        self.poll(lambda: a("buffer_load_dword v%d, v%d, s[20:23], %s offen sc1" % (vt + 1, vt, soff)), [vt + 1], vt, sleep)

    def build(self):
        a = self.a
        n = self.name
        a.l.append(".globl %s" % n)
        a.l.append(".p2align 8")
        a.l.append(".type %s,@function" % n)
        a.l.append("%s:" % n)
        self.prologue()
        a("s_cmp_ge_u32 s3, 4")
        a("s_cbranch_scc1 %s_S" % n)
        if "g1" in self.ph:
            self.g_gemm1()
        if "g2" in self.ph:
            self.g_gemm2()
        self.dbgtime_end()
        self.stamp_flush()
        a("s_endpgm")
        a.lab("%s_S" % n)
        if "g1" in self.ph:
            self.s_phase1()
        if "ssm" in self.ph:
            self.s_ssm()
        if "g2" in self.ph:
            self.s_final()
        self.stamp_flush()
        a.lab("%s_end" % n)
        a("s_endpgm")
        return a.text()

def kd(name):
    return """.amdhsa_kernel %s
  .amdhsa_next_free_vgpr 256
  .amdhsa_next_free_sgpr 102
  .amdhsa_accum_offset 256
  .amdhsa_group_segment_fixed_size 0
  .amdhsa_kernarg_size 136
  .amdhsa_user_sgpr_count 2
  .amdhsa_user_sgpr_kernarg_segment_ptr 1
  .amdhsa_system_sgpr_workgroup_id_x 1
.end_amdhsa_kernel
""" % name

HEADER = open("gated_mix__ssm_conv_s4__swiglu_ffn__prompt.s.ref").read().split("; Override launch")[0]

DOC = """;
;     by buffer_load ... lds, k order rotated per workgroup); epilogue h = silu(g) * u -> bf16, stored as MFMA B fragments in d_ws.
;     values = r + 16 j patterns, so exp factors into two small power tables (complex recurrences) contracted over the 192 modes
"""

def emit(kernels, path):
    txt = HEADER
    if len(kernels) == 1:
        txt += "; @launch grid=(256,1,1) block=(512,1,1) lds=%d\n" % LDS_TOTAL
    else:
        for (n, p, s) in kernels:
            txt += "; @launch kernel=%s grid=(256,1,1) block=(512,1,1) lds=%d\n" % (n, LDS_TOTAL)
    txt += DOC
    txt += '.amdgcn_target "amdgcn-amd-amdhsa--gfx950"\n.text\n'
    for (n, p, s) in kernels:
        txt += Gen(n, p, s).build()
    txt += '.section .rodata,"a"\n'
    for (n, p, s) in kernels:
        txt += ".p2align 6\n" + kd(n)
    open(path, "w").write(txt)

if __name__ == "__main__":
    mode = sys.argv[1]; path = sys.argv[2]
    stamps = len(sys.argv) > 3 and sys.argv[3] == "stamps"
    if mode.startswith("g1+") or mode == "g1":
        emit([(KNAME, set(mode.split("+")), stamps)], path)
    elif mode == "g1,ssm":
        emit([("ka_kernel", {"g1"}, False), ("kb_kernel", {"ssm", "dumpk"}, stamps)], path)
    elif mode == "3k":
        emit([("ka_kernel", {"g1"}, False), ("kb_kernel", {"ssm"}, False), ("kc_kernel", {"g2"}, stamps)], path)
    elif mode == "3k+1":
        emit([("ka_kernel", {"g1"}, False), ("kb_kernel", {"ssm"}, False), ("kc_kernel", {"g2"}, stamps), ("kd_kernel", set(), False)], path)
    elif mode == "3k+3":
        emit([("ka_kernel", {"g1"}, False), ("kb_kernel", {"ssm"}, False), ("kc_kernel", {"g2"}, stamps), ("kd_kernel", set(), False), ("ke_kernel", set(), False), ("kf_kernel", set(), False)], path)
    elif mode == "3k_dbg":
        emit([("ka_kernel", {"g1", "dbgtime"}, False), ("kb_kernel", {"ssm"}, False), ("kc_kernel", {"g2", "dbgtime"}, False)], path)
    elif mode == "fused":
        emit([(KNAME, {"g1", "ssm", "g2", "fused"}, stamps)], path)
    elif mode == "fused_notouch":
        emit([(KNAME, {"g1", "ssm", "g2", "fused", "notouch"}, stamps)], path)
    elif mode == "fused_pk":
        emit([(KNAME, {"g1", "ssm", "g2", "fused", "pkhead"}, stamps)], path)
    elif mode.startswith("F:"):
        emit([(KNAME, {"g1", "ssm", "g2", "fused"} | set(mode[2:].split("+")), stamps)], path)
    elif mode == "fused_dbg":
        emit([(KNAME, {"g1", "ssm", "g2", "fused", "dbgtime"}, stamps)], path)
    elif mode == "g1,ssm,nodump":
        emit([("ka_kernel", {"g1"}, False), ("kb_kernel", {"ssm"}, stamps)], path)
```

```python
import sys, math

KNAME = "gated_mix__ssm_conv_s4__swiglu_ffn__prompt_kernel"

WS_H    = 0x000000
WS_WD   = 0x600000
ROWS    = 4224
WS_UT   = 0x800000
WS_Y    = 0xB00000
WS_G    = 0xE00000
WS_FU   = 0xE10000
WS_FW   = 0xE15000
WS_FH   = 0xE11000
WS_FY   = 0xE12000
WS_NON  = 0xE13000
WS_FG   = 0xE14000
WS_TS   = 0xF00000
WS_DBG  = 0x1000000

STAGE   = 40960
ST_WG   = 16384
ST_WU   = 28672
LDS_S   = 3 * STAGE
TABROW  = 272
TABTILE = 16 * TABROW
TAB_SZ  = 2 * TABTILE
LDS_TAB = LDS_S
KR_SZ   = 4224
LDS_KR  = LDS_TAB + 3 * TAB_SZ
LDS_MISC = LDS_KR + 3 * KR_SZ
LDS_TOTAL = 163840
LDS_NONCE = LDS_MISC
LDS_CNT   = LDS_MISC + 8
UC_STRIDE = 4640
UC_SZ   = 4 * UC_STRIDE
LDS_UC  = 0
LDS_WDS_EARLY = 148992
LDS_RED = 57344
LDS_YT  = LDS_TAB
LDS_GT  = LDS_MISC + 64
LDS_HOK = LDS_MISC + 12
LDS_WOK = LDS_MISC + 16
LDS_UOK = LDS_MISC + 20
LDS_GOK = LDS_MISC + 24
LDS_UCOK = LDS_MISC + 28
LDS_SFREE = LDS_MISC + 32

class Asm:
    def __init__(self):
        self.l = []
    def __call__(self, s):
        for x in s.split("\n"):
            x = x.strip()
            if x: self.l.append("    " + x)
    def lab(self, s):
        self.l.append(s + ":")
    def ext(self, lst):
        for x in lst: self(x)
    def text(self):
        return "\n".join(self.l) + "\n"

def interleave(main, fill, start=0, span=None):
    out = []
    m = len(fill)
    n = len(main) if span is None else min(len(main), start + span)
    j = 0
    for i, x in enumerate(main):
        out.append(x)
        if i >= start:
            tgt = (m * (i - start + 1) + (n - start) - 1) // (n - start) if n > start else m
            while j < min(tgt, m):
                f = fill[j]
                if isinstance(f, tuple): out.extend(f)
                else: out.append(f)
                j += 1
    while j < m:
        f = fill[j]
        if isinstance(f, tuple): out.extend(f)
        else: out.append(f)
        j += 1
    return out

def flat(L):
    o = []
    for x in L:
        if isinstance(x, tuple): o.extend(x)
        else: o.append(x)
    return o

def vr(a, n=1):
    return "v%d" % a if n == 1 else "v[%d:%d]" % (a, a + n - 1)
def sr(a, n=1):
    return "s%d" % a if n == 1 else "s[%d:%d]" % (a, a + n - 1)

S_W, S_WAVE, S_M, S_N, S_M2, S_N2 = 2, 3, 4, 5, 6, 7
SRD_X, SRD_WG, SRD_WU, SRD_WS, SRD_OUT, SRD_WD = 8, 12, 16, 20, 24, 28
P_U, P_ARE, P_AIM, P_BRE, P_BIM, P_CRE, P_CIM, P_LDT = 32, 34, 36, 38, 40, 42, 44, 46
P_DSK, P_BX, P_WG, P_WU, P_WD, P_GW, P_OUT, P_DBG, P_WS = 48, 50, 52, 54, 56, 58, 60, 62, 64
S_TS = 80

class Gen:
    def __init__(self, name, phases, stamps=False):
        self.name = name
        self.ph = phases
        self.a = Asm()
        self.stamps = stamps
        self.nlab = 0
    def newlab(self, p):
        self.nlab += 1
        return "L_%s_%s_%d" % (self.name[:6], p, self.nlab)

    def capture(self, fn):
        old = self.a
        self.a = Asm()
        fn()
        lst = [x.strip() for x in self.a.l]
        self.a = old
        return lst

    def clk(self, i):
        if "clk" in self.ph and self.stamps:
            self.a("s_memrealtime s[%d:%d]" % (S_TS + 2 * i, S_TS + 2 * i + 1))
            self.a("s_memtime s[%d:%d]" % (S_TS + 2 * i + 2, S_TS + 2 * i + 3))
            self.a("s_waitcnt lgkmcnt(0)")

    def stamp(self, i, force=False):
        if "clk" in self.ph and i != 0: return
        if ("kstamps" in self.ph or "k2stamps" in self.ph or "ststamps" in self.ph or "gapstamps" in self.ph) and not force and i != 0: return
        if self.stamps:
            self.a("%s s[%d:%d]" % ("s_memrealtime" if "rt" in self.ph else "s_memtime", S_TS + 2 * i, S_TS + 2 * i + 1))
            self.a("s_waitcnt lgkmcnt(0)")
    def stamp_flush(self):
        if not self.stamps: return
        a = self.a
        a("s_lshl_b32 s66, s2, 3")
        a("s_add_u32 s66, s66, s3")
        a("s_lshl_b32 s66, s66, 7")
        a("s_add_u32 s66, s66, 0x%x" % WS_TS)
        a("v_mov_b32 v250, 0")
        for i in range(10):
            a("v_mov_b32 v252, s%d" % (S_TS + 2 * i))
            a("v_mov_b32 v253, s%d" % (S_TS + 2 * i + 1))
            a("buffer_store_dwordx2 v[252:253], v250, s[20:23], s66 offen offset:%d" % (8 * i))
            a("s_nop 1")
        a("s_waitcnt vmcnt(0)")

    def prologue(self):
        a = self.a
        a("s_cmp_ge_u32 s2, 256")
        a("s_cbranch_scc1 %s_end" % self.name)
        a("s_load_dwordx16 s[32:47], s[0:1], 0")
        a("s_load_dwordx16 s[48:63], s[0:1], 64")
        a("s_load_dwordx2 s[64:65], s[0:1], 128")
        if "warmc0" in self.ph: self.warm_code(early=True)
        a("v_lshrrev_b32 v1, 6, v0")
        a("v_and_b32 v0, 63, v0")
        a("v_readfirstlane_b32 s3, v1")
        a("s_and_b32 s66, s2, 7")
        a("s_lshr_b32 s67, s2, 3")
        a("s_and_b32 s68, s67, 7")
        a("s_lshr_b32 s69, s67, 3")
        a("s_and_b32 s70, s66, 1")
        a("s_lshl_b32 s70, s70, 3")
        a("s_or_b32 s4, s70, s68")
        a("s_lshr_b32 s70, s66, 1")
        a("s_lshl_b32 s70, s70, 2")
        a("s_or_b32 s5, s70, s69")
        a("s_and_b32 s70, s66, 3")
        a("s_lshl_b32 s70, s70, 3")
        a("s_or_b32 s6, s70, s68")
        a("s_lshr_b32 s70, s66, 2")
        a("s_lshl_b32 s70, s70, 2")
        a("s_or_b32 s7, s70, s69")
        if "sametile" in self.ph:
            a("s_mov_b32 s4, 0"); a("s_mov_b32 s5, 0")
        if "samem" in self.ph:
            a("s_mov_b32 s4, 0")
        if "samen" in self.ph:
            a("s_mov_b32 s5, 0")
        if self.stamps:
            for i in range(10):
                a("s_mov_b64 s[%d:%d], 0" % (S_TS + 2 * i, S_TS + 2 * i + 1))
        a("s_waitcnt lgkmcnt(0)")
        def srd(base, ptr, size):
            a("s_mov_b32 s%d, s%d" % (base, ptr))
            a("s_and_b32 s%d, s%d, 0xffff" % (base + 1, ptr + 1))
            a("s_mov_b32 s%d, 0x%x" % (base + 2, size))
            a("s_mov_b32 s%d, 0x20000" % (base + 3))
        srd(SRD_X, P_U, 2048 * 640 * 2)
        srd(SRD_WG, P_WG, 640 * 1536 * 2)
        srd(SRD_WU, P_WU, 640 * 1536 * 2)
        srd(SRD_WS, P_WS, 0x10000000)
        srd(SRD_OUT, P_OUT, 2048 * 640 * 2)
        srd(SRD_WD, P_WD, 640 * 1536 * 2)
        self.stamp(0)
        if "dbgtime" in self.ph:
            a("s_memrealtime s[96:97]")
            a("s_memtime s[98:99]")
            a("s_mov_b64 s[100:101], s[62:63]")
            a("s_waitcnt lgkmcnt(0)")

    def dbgtime_end(self):
        a = self.a
        if "dbgtime" not in self.ph: return
        l = self.newlab("dbt")
        a("s_cmp_lg_u32 s2, 0"); a("s_cbranch_scc1 %s" % l)
        a("s_cmp_lg_u32 s3, 0"); a("s_cbranch_scc1 %s" % l)
        a("s_waitcnt vmcnt(0)")
        a("s_memrealtime s[92:93]")
        a("s_memtime s[94:95]")
        a("s_waitcnt lgkmcnt(0)")
        a("s_sub_u32 s92, s92, s96")
        a("s_sub_u32 s94, s94, s98")
        a("v_mov_b32 v250, 0")
        a("v_mov_b32 v252, s92")
        a("v_mov_b32 v253, s94")
        a("v_mov_b32 v254, s96")
        a("v_mov_b32 v255, 0x1234")
        a("global_store_dwordx4 v250, v[252:255], s[100:101]")
        a("s_waitcnt vmcnt(0)")
        a.lab(l)

    def rot_r(self, dst, tmp):
        a = self.a
        if "norot" in self.ph:
            a("s_mov_b32 %s, 0" % dst)
            return
        a("s_lshr_b32 %s, s5, 1" % dst)
        a("s_cmp_ge_u32 %s, 5" % dst)
        a("s_cselect_b32 %s, 1, 0" % tmp)
        a("s_cmp_ge_u32 %s, 1" % dst)
        a("s_addc_u32 %s, %s, %s" % (dst, dst, tmp))

    def g_gemm1(self):
        a = self.a
        ACC = 0; FP = 96; FQ = 136
        VXB = 176
        VWA = 182
        VL16 = 196
        T = 200
        accg = lambda ft, tt: ACC + (ft * 4 + tt) * 4
        accu = lambda ft, tt: ACC + 48 + (ft * 4 + tt) * 4
        LANE = 197
        a("v_mov_b32 v%d, v0" % LANE)
        a("s_and_b32 s67, s3, 1")
        a("s_lshr_b32 s68, s3, 1")
        VOX = 191
        a("v_lshrrev_b32 v%d, 3, v%d" % (T, LANE))
        a("s_lshl_b32 s69, s4, 7")
        a("s_lshl_b32 s70, s3, 5")
        a("s_add_u32 s69, s69, s70")
        a("v_add_u32 v%d, s69, v%d" % (T, T))
        a("s_movk_i32 s70, 1280")
        a("v_mul_lo_u32 v%d, v%d, s70" % (T, T))
        a("v_and_b32 v%d, 7, v%d" % (T + 1, LANE))
        a("v_lshrrev_b32 v%d, 4, v%d" % (T + 2, LANE))
        a("v_xor_b32 v%d, v%d, v%d" % (T + 3, T + 1, T + 2))
        a("v_xor_b32 v%d, 4, v%d" % (T + 4, T + 3))
        a("v_lshl_add_u32 v%d, v%d, 4, v%d" % (VOX, T + 3, T))
        a("v_lshl_add_u32 v%d, v%d, 4, v%d" % (VOX + 1, T + 4, T))
        a("s_lshl_b32 s75, s3, 12")
        VOW = 193
        a("s_mul_i32 s76, s3, 3072")
        a("s_add_u32 s77, s76, %d" % ST_WU)
        a("s_add_u32 s76, s76, %d" % ST_WG)
        self.rot_r("s74", "s72")
        def xdma(st):
            base = (st % 3) * STAGE
            L = []
            for i in range(4):
                if i == 0:
                    L.append(("s_lshl_b32 s72, s74, 7", "s_mul_i32 s73, s74, 196608", "s_add_u32 s74, s74, 1",
                              "s_add_u32 m0, s75, %d" % base, "s_cmp_eq_u32 s74, 10", "s_cselect_b32 s74, 0, s74",
                              "buffer_load_dwordx4 v%d, s[8:11], s72 offen lds" % VOX))
                else:
                    L.append(("s_add_u32 s70, s72, %d" % (9216 * i),
                              "buffer_load_dwordx4 v%d, s[8:11], s70 offen offset:%d lds" % (VOX + (i & 1), 1024 * i)))
            for mat, sm, srd in (() if "s3w" in self.ph else ((0, 76, "s[12:15]"), (1, 77, "s[16:19]"))):
                for i in range(3):
                    ld = "buffer_load_dwordx4 v%d, %s, s73 offen offset:%d lds" % (VOW + i, srd, 1024 * i)
                    if mat == 1 and "nowu" in self.ph: ld = "s_nop 0"
                    if i == 2 and "now2" in self.ph: ld = "s_nop 0"
                    if i == 0: L.append(("s_add_u32 m0, s%d, %d" % (sm, base), "s_nop 0", ld))
                    else: L.append(ld)
            return L
        if "ststamps" in self.ph: self.stamp(1, force=True)
        def wcalc():
            a("s_lshl_b32 s69, s3, 4")
            a("s_mul_i32 s69, s69, 3072")
            a("s_mul_i32 s70, s5, 192")
            a("s_add_u32 s69, s69, s70")
            a("s_mov_b32 s70, 43691")
            a("s_movk_i32 s71, 3072")
            for i in range(3):
                a("v_add_u32 v%d, %d, v%d" % (T, 64 * i, LANE))
                a("v_mul_lo_u32 v%d, v%d, s70" % (T + 1, T))
                a("v_lshrrev_b32 v%d, 19, v%d" % (T + 1, T + 1))
                a("v_mul_u32_u24 v%d, 12, v%d" % (T + 2, T + 1))
                a("v_sub_u32 v%d, v%d, v%d" % (T + 2, T, T + 2))
                a("v_lshrrev_b32 v%d, 2, v%d" % (T + 3, T + 1))
                a("v_and_b32 v%d, 2, v%d" % (T + 3, T + 3))
                a("v_xor_b32 v%d, v%d, v%d" % (T + 2, T + 2, T + 3))
                a("v_mul_lo_u32 v%d, v%d, s71" % (T + 1, T + 1))
                a("v_lshl_add_u32 v%d, v%d, 4, v%d" % (T + 1, T + 2, T + 1))
                a("v_add_u32 v%d, s69, v%d" % (T + 1, T + 1))
                a("v_subrev_u32 v%d, %d, v%d" % (VOW + i, 1024 * i, T + 1))

        d0 = xdma(0)
        a.ext(flat(d0[:4]))
        wcalc()
        a.ext(flat(d0[4:]))
        if "late1" not in self.ph: a.ext(flat(xdma(1)))
        if "ststamps" in self.ph: self.stamp(2, force=True)
        if "nobpre" not in self.ph: a("s_barrier")
        a("v_and_b32 v%d, 15, v%d" % (T, LANE))
        a("v_lshrrev_b32 v%d, 4, v%d" % (T + 1, LANE))
        a("s_lshl_b32 s69, s67, 6")
        a("v_add_u32 v%d, s69, v%d" % (T + 2, T))
        a("v_lshlrev_b32 v%d, 7, v%d" % (T + 2, T + 2))
        a("v_lshrrev_b32 v%d, 1, v%d" % (T + 3, T))
        a("v_and_b32 v%d, 7, v%d" % (T + 3, T + 3))
        a("v_xor_b32 v%d, v%d, v%d" % (T + 3, T + 3, T + 1))
        a("v_xor_b32 v%d, 4, v%d" % (T + 4, T + 3))
        a("v_lshl_add_u32 v%d, v%d, 4, v%d" % (VXB, T + 3, T + 2))
        a("v_lshl_add_u32 v%d, v%d, 4, v%d" % (VXB + 1, T + 4, T + 2))
        for st in (1, 2):
            for s in range(2):
                a("v_add_u32 v%d, %d, v%d" % (VXB + 2 * st + s, st * STAGE, VXB + s))
        a("v_lshrrev_b32 v%d, 2, v%d" % (T + 2, T))
        a("v_lshl_add_u32 v%d, v%d, 3, v%d" % (T + 2, T + 1, T + 2))
        a("v_mul_u32_u24 v%d, 192, v%d" % (T + 2, T + 2))
        a("v_and_b32 v%d, 3, v%d" % (T + 3, LANE))
        a("v_lshl_add_u32 v%d, v%d, 3, v%d" % (T + 2, T + 3, T + 2))
        a("v_add_u32 v%d, %d, v%d" % (T + 2, ST_WG, T + 2))
        a("v_and_b32 v%d, 1, v%d" % (T + 3, T + 1))
        a("s_lshl_b32 s69, s68, 2")
        a("s_add_u32 s78, s69, 1")
        a("s_add_u32 s79, s68, 2")
        for ft, sreg in ((0, 69), (1, 78), (2, 79)):
            a("v_xor_b32 v%d, s%d, v%d" % (T + 4, sreg, T + 3))
            a("v_lshl_add_u32 v%d, v%d, 5, v%d" % (VWA + ft, T + 4, T + 2))
        for st in (1, 2):
            for ft in range(3):
                a("v_add_u32 v%d, %d, v%d" % (VWA + 3 * st + ft, st * STAGE, VWA + ft))
        a("v_lshlrev_b32 v%d, 4, v%d" % (VL16, LANE))
        a("s_lshl_b32 s69, s4, 1")
        a("s_add_u32 s69, s69, s67")
        a("s_mul_i32 s69, s69, 48")
        a("s_mul_i32 s78, s5, 3")
        a("s_add_u32 s69, s69, s78")
        a("s_lshl_b32 s78, s68, 1")
        a("s_add_u32 s78, s78, s69")
        a("s_lshl_b32 s78, s78, 12")
        a("s_add_u32 s79, s69, 1")
        a("s_lshl_b32 s79, s79, 12")
        a("s_lshl_b32 s69, s68, 9")
        a("s_add_u32 s79, s79, s69")
        a("v_lshlrev_b32 v%d, 3, v%d" % (VL16 + 2, LANE))
        if WS_H:
            a("s_add_u32 s78, s78, %d" % WS_H); a("s_add_u32 s79, s79, %d" % WS_H)

        def reads(kk, s, F):
            st = kk % 3
            xs = ["ds_read_b128 v[%d:%d], v%d offset:%d" % (F + 4 * tt, F + 4 * tt + 3, VXB + 2 * st + s, 2048 * tt) for tt in range(4)]
            ws = []
            for mat in range(2):
                for ft in range(3):
                    r = F + 16 + (mat * 3 + ft) * 4
                    for h in range(2):
                        ws.append("ds_read_b64_tr_b16 v[%d:%d], v%d offset:%d" % (r + 2 * h, r + 2 * h + 1, VWA + 3 * st + ft, 12288 * mat + 6144 * s + 768 * h))
            order = [xs[0], ws[0], ws[1], xs[1], ws[6], ws[7], xs[2], xs[3]] + ws[2:6] + ws[8:]
            return order
        def mfmas(F, first):
            L = []
            for ft in range(3):
                for mat in range(2):
                    for tt in range(4):
                        acc = accg(ft, tt) if mat == 0 else accu(ft, tt)
                        A = F + 16 + (mat * 3 + ft) * 4
                        B = F + 4 * tt
                        c = "0" if first else "v[%d:%d]" % (acc, acc + 3)
                        L.append("v_mfma_f32_16x16x32_bf16 v[%d:%d], v[%d:%d], v[%d:%d], %s" % (acc, acc + 3, A, A + 3, B, B + 3, c))
            return L
        def spread(mm, d, first, step):
            out = []; cnt = 0; di = 0
            for x in mm:
                out.append(x)
                if x.startswith("v_mfma"):
                    cnt += 1
                    if cnt >= first and (cnt - first) % step == 0 and di < len(d):
                        f = d[di]; di += 1
                        out.extend(f if isinstance(f, tuple) else (f,))
            assert di == len(d), (di, len(d))
            return out
        self.stamp(5)
        ND = 4 if "s3w" in self.ph else (7 if "nowu" in self.ph else (8 if "now2" in self.ph else 10))
        a("s_waitcnt vmcnt(%d)" % (0 if "late1" in self.ph else ND))
        if "ststamps" in self.ph: self.stamp(3, force=True)
        a("s_barrier")
        if "ststamps" in self.ph: self.stamp(4, force=True)
        if "late1" in self.ph: a.ext(flat(xdma(1)))
        self.stamp(1)
        self.clk(1)
        a.ext(reads(0, 0, FP))
        a("s_waitcnt lgkmcnt(0)")
        pend = xdma(2)
        for kk in range(10):
            mm = interleave(mfmas(FP, kk == 0), reads(kk, 1, FQ), span=16)
            if pend: mm = spread(mm, pend, 2, (10 if len(pend) <= 2 else 5) if len(pend) <= 5 else 2)
            a.ext(mm)
            if kk <= 7: a("s_waitcnt vmcnt(%d) lgkmcnt(0)" % ND)
            elif kk == 8: a("s_waitcnt vmcnt(0) lgkmcnt(0)")
            else: a("s_waitcnt lgkmcnt(0)")
            if kk == 9 and self.fused(): self.lds_inc(LDS_SFREE, T)
            else: a("s_barrier")
            if "kstamps" in self.ph and kk < 9: self.stamp(kk + 1, force=True)
            if "ststamps" in self.ph and kk < 5: self.stamp(kk + 5, force=True)
            fill = reads(kk + 1, 0, FP) if kk + 1 < 10 else []
            mm = interleave(mfmas(FQ, False), fill, span=16)
            d = xdma(kk + 3) if kk + 3 < 10 else []
            if "dmaB" in self.ph:
                pend = []
                if d: mm = spread(mm, d, 2, 2)
            elif "dma73" in self.ph:
                pend = d[7:]
                if d: mm = spread(mm, d[:7], 2, 3)
            elif "s3w" in self.ph:
                pend = d[2:]
                if d: mm = spread(mm, d[:2], 4, 10)
            else:
                pend = d[5:]
                if d: mm = spread(mm, d[:5], 2, 5)
            a.ext(mm)
            if kk + 1 < 10:
                a("s_waitcnt lgkmcnt(0)")
        self.stamp(2)
        self.clk(3)
        epb = "epb" in self.ph and "g2" in self.ph
        if epb: CN, ONE, OUTB, TMPB, TMPS = 200, 202, 116, 152, 8
        else: CN, ONE, OUTB, TMPB, TMPS = FP, FP + 2, FP + 8, FQ, 16
        E = []
        E.append("v_mov_b32 v%d, 0xbfb8aa3b" % CN)
        E.append("v_mov_b32 v%d, 0xbfb8aa3b" % (CN + 1))
        E.append("v_mov_b32 v%d, 1.0" % ONE)
        E.append("v_mov_b32 v%d, 1.0" % (ONE + 1))
        grp = 0
        def silu(gregs, uregs, tmp, out):
            n = len(gregs)
            L = []
            for i in range(n): L.append("v_pk_mul_f32 v[%d:%d], v[%d:%d], v[%d:%d]" % (tmp + 2 * i, tmp + 2 * i + 1, gregs[i], gregs[i] + 1, CN, CN + 1))
            for i in range(2 * n): L.append("v_exp_f32 v%d, v%d" % (tmp + i, tmp + i))
            for i in range(n): L.append("v_pk_mul_f32 v[%d:%d], v[%d:%d], v[%d:%d]" % (gregs[i], gregs[i] + 1, gregs[i], gregs[i] + 1, uregs[i], uregs[i] + 1))
            for i in range(n): L.append("v_pk_add_f32 v[%d:%d], v[%d:%d], v[%d:%d]" % (tmp + 2 * i, tmp + 2 * i + 1, tmp + 2 * i, tmp + 2 * i + 1, ONE, ONE + 1))
            for i in range(2 * n): L.append("v_rcp_f32 v%d, v%d" % (tmp + i, tmp + i))
            if n < 2: L.append("s_nop 0")
            for i in range(n): L.append("v_pk_mul_f32 v[%d:%d], v[%d:%d], v[%d:%d]" % (gregs[i], gregs[i] + 1, gregs[i], gregs[i] + 1, tmp + 2 * i, tmp + 2 * i + 1))
            for i in range(n): L.append("v_cvt_pk_bf16_f32 v%d, v%d, v%d" % (out + i, gregs[i], gregs[i] + 1))
            return L
        for tt in range(4):
            tmp = TMPB + (grp % 2) * TMPS; out = OUTB + (grp % 4) * 4; grp += 1
            g = [accg(0, tt), accg(0, tt) + 2, accg(1, tt), accg(1, tt) + 2]
            u = [accu(0, tt), accu(0, tt) + 2, accu(1, tt), accu(1, tt) + 2]
            E += silu(g, u, tmp, out)
            E.append("buffer_store_dwordx4 v[%d:%d], v%d, s[20:23], s78 offen offset:%d sc1" % (out, out + 3, VL16, 1024 * tt))
            tmp = TMPB + (grp % 2) * TMPS; out = OUTB + (grp % 4) * 4; grp += 1
            g = [accg(2, tt), accg(2, tt) + 2]
            u = [accu(2, tt), accu(2, tt) + 2]
            E += silu(g, u, tmp, out)
            E.append("buffer_store_dwordx2 v[%d:%d], v%d, s[20:23], s79 offen offset:%d sc1" % (out, out + 1, VL16 + 2, 1024 * tt))
        if epb:
            self.g2_setup()
            if self.fused(): self.lds_spin(LDS_WOK, 232, treg="s80x")
            regl, dmal = self.g2_burst_atoms()
            half = len(E) // 2
            a.ext(interleave(E[:half], regl, start=4))
            if self.fused(): self.lds_spin(LDS_SFREE, 232, 4, treg="s80x")
            a.ext(interleave(E[half:], dmal))
        else:
            a.ext(E)
        self.stamp(3)
        if "g2" not in self.ph:
            a("s_waitcnt vmcnt(0)")
            self.stamp(4)

    def g_signal_h(self, nyounger):
        a = self.a
        T = 232
        if nyounger is not None: a("s_waitcnt vmcnt(%d)" % nyounger)
        if self.fused():
            l = self.newlab("fh")
            a("v_mov_b32 v%d, %d" % (T, LDS_CNT))
            a("v_mov_b32 v%d, 1" % (T + 1))
            a("s_mov_b64 exec, 1")
            a("ds_add_rtn_u32 v%d, v%d, v%d" % (T + 2, T, T + 1))
            a("s_waitcnt lgkmcnt(0)")
            a("s_mov_b64 exec, -1")
            a("v_readfirstlane_b32 s69, v%d" % (T + 2))
            a("s_nop 1")
            a("s_cmp_lg_u32 s69, 3")
            a("s_cbranch_scc1 %s" % l)
            a("s_lshl_b32 s69, s4, 5")
            a("s_add_u32 s69, s69, s5")
            a("s_lshl_b32 s69, s69, 2")
            a("s_add_u32 s69, s69, %d" % WS_FH)
            self.flag_set("s69", T)
            a.lab(l)
        self.stamp(4)
        if "gapstamps" in self.ph: self.stamp(1, force=True)

    def lds_inc(self, addr, vt):
        a = self.a
        a("v_mov_b32 v%d, %d" % (vt, addr))
        a("v_mov_b32 v%d, 1" % (vt + 1))
        a("s_mov_b64 exec, 1")
        a("ds_add_u32 v%d, v%d" % (vt, vt + 1))
        a("s_mov_b64 exec, -1")

    def lds_spin(self, addr, vt, val=1, treg=None):
        a = self.a
        st = "s78" if treg is None else "s68"
        lp = self.newlab("ls"); ld = self.newlab("ld")
        a("v_mov_b32 v%d, %d" % (vt, addr))
        a("s_mov_b32 s69, 0")
        a.lab(lp)
        a("ds_read_b32 v%d, v%d" % (vt + 1, vt))
        a("s_waitcnt lgkmcnt(0)")
        a("v_readfirstlane_b32 %s, v%d" % (st, vt + 1))
        a("s_nop 1")
        a("s_cmp_eq_u32 %s, %d" % (st, val))
        a("s_cbranch_scc1 %s" % ld)
        a("s_add_u32 s69, s69, 1")
        a("s_cmp_lt_u32 s69, 0x400000")
        a("s_cbranch_scc0 %s" % ld)
        a("s_sleep 1")
        a("s_branch %s" % lp)
        a.lab(ld)

    def s_kgen_phase1(self):
        a = self.a
        NCH = 8
        chunks = [[] for _ in range(NCH)]
        if "ssm" in self.ph:
            a("s_lshl_b32 s50, s66, 8")
            a("s_add_u32 s50, s50, s2")
            a("s_min_u32 s50, s50, 639")
            self.kgen_bases()
            if "kghead" in self.ph:
                kg = self.capture(lambda: self.kgen("head"))
                if "bigI0" in self.ph:
                    first = min(len(kg), 140 if "I0s" in self.ph else 230)
                    rest = kg[first:]
                    per = (len(rest) + NCH - 1) // NCH
                    chunk0 = kg[:first]
                    chunks = [rest[i * per:(i + 1) * per] for i in range(NCH)]
                else:
                    per = (len(kg) + NCH - 1) // NCH
                    chunks = [kg[i * per:(i + 1) * per] for i in range(NCH)]
        self.stamp(5)
        if "prioS" in self.ph: a("s_setprio 2")
        if "nobpre" not in self.ph: a("s_barrier")
        pw = "pwarm" in self.ph
        if "ssm" in self.ph and pw: self.ssm_param_warm()
        if "ssm" in self.ph and "kghead" in self.ph and not pw: self.ssm_param_loads(slots=((0, 1) if "kg2" in self.ph else (0,)))
        if "ssm" in self.ph and "pw12" in self.ph:
            a("s_mul_i32 s67, s50, 384")
            for p in (P_ARE, P_AIM, P_BRE, P_BIM, P_CRE, P_CIM):
                a("s_add_u32 s68, s%d, s67" % p)
                a("s_addc_u32 s69, s%d, 0" % (p + 1))
                a("s_load_dword s70, s[68:69], 128")
                a("s_load_dword s70, s[68:69], 256")
        a("s_barrier")
        if "ssm" in self.ph and pw:
            a("s_waitcnt lgkmcnt(0)")
            self.ssm_param_loads()
        self.stamp(1)
        if "bigI0" in self.ph and "kghead" in self.ph:
            a("s_waitcnt vmcnt(0)")
            a.ext(chunk0)
        for kk in range(10):
            if not (kk == 9 and self.fused()): a("s_barrier")
            if kk == 1 and "kghead" in self.ph and "bigI0" not in self.ph: a("s_waitcnt vmcnt(0)")
            if kk == 7 and "ssm" in self.ph and not pw:
                if "kghead" in self.ph: self.ssm_param_loads(slots=((2,) if "kg2" in self.ph else (1, 2)), scalars=False)
                else: self.ssm_param_loads()
            if "bigI0" in self.ph:
                if kk < NCH: a.ext(chunks[kk])
            elif 1 <= kk <= NCH: a.ext(chunks[kk - 1])
        self.stamp(2)

    def side_setup(self):
        a = self.a
        a("s_mov_b32 s67, 52429")
        a("s_movk_i32 s68, 1280")
        for i in range(5):
            a("v_add_u32 v1, %d, v0" % (64 * i))
            a("v_mul_lo_u32 v2, v1, s67")
            a("v_lshrrev_b32 v2, 19, v2")
            a("v_mul_u32_u24 v3, 10, v2")
            a("v_sub_u32 v3, v1, v3")
            a("v_mul_lo_u32 v2, v2, s68")
            a("v_lshl_add_u32 v%d, v3, 4, v2" % (230 + i))
        a("v_lshrrev_b32 v1, 4, v0")
        a("v_and_b32 v2, 15, v0")
        a("v_lshrrev_b32 v3, 2, v2")
        a("v_lshl_add_u32 v4, v1, 2, v3")
        a("v_mul_u32_u24 v4, 160, v4")
        a("v_add_u32 v4, %d, v4" % (STAGE if "wdlate" in self.ph else LDS_WDS_EARLY))
        a("v_and_b32 v5, 3, v0")
        a("v_lshl_add_u32 v235, v5, 4, v4")
        a("v_lshl_add_u32 v236, v5, 3, v4")
        a("v_lshlrev_b32 v237, 4, v0")
        a("v_lshlrev_b32 v241, 2, v0")
        a("v_lshl_add_u32 v4, v1, 3, v3")
        a("v_lshlrev_b32 v4, 7, v4")
        a("v_bfe_u32 v5, v0, 1, 1")
        a("v_lshrrev_b32 v6, 1, v3")
        a("v_xor_b32 v5, v5, v6")
        a("v_lshl_add_u32 v4, v5, 4, v4")
        a("v_and_b32 v5, 1, v0")
        a("v_lshl_add_u32 v4, v5, 3, v4")
        a("v_and_b32 v5, 1, v1")
        a("v_lshl_add_u32 v238, v5, 6, v4")
        a("v_xor_b32 v5, 1, v5")
        a("v_lshl_add_u32 v239, v5, 6, v4")
        a("v_mul_u32_u24 v240, %d, v2" % ROWS)
        a("v_lshl_add_u32 v240, v1, 4, v240")
        a("s_add_u32 s51, s2, 128")
        a("s_cmp_ge_u32 s2, 128")
        a("s_cselect_b32 s51, s51, 999")
        a("s_lshr_b32 s52, s5, 1")
        a("s_add_u32 s53, s52, 8")
        a("s_cmp_lt_u32 s5, 4")
        a("s_cselect_b32 s53, s53, 99")
    def wd_load(self, ureg, scr):
        a = self.a
        if "nowd" in self.ph: return
        a("s_lshr_b32 s67, %s, 3" % ureg)
        a("s_and_b32 s68, %s, 7" % ureg)
        a("s_mul_i32 s69, s67, %d" % (32 * 1280))
        a("s_mul_i32 s67, s68, 160")
        a("s_add_u32 s69, s69, s67")
        for i in range(5):
            a("s_mov_b32 m0, %d" % ((STAGE if "wdlate" in self.ph else LDS_WDS_EARLY) + scr + 1024 * i))
            a("s_nop 0")
            a("buffer_load_dwordx4 v%d, s[28:31], s69 offen lds" % (230 + i))
    def wd_store(self, ureg, scr, R=160):
        a = self.a
        if "nowd" in self.ph: return
        for dt in range(5):
            for h in range(2):
                if dt < 4: ad, off = 235, 64 * (dt >> 1) + 8 * (dt & 1) + 2560 * h
                else: ad, off = 236, 128 + 2560 * h
                a("ds_read_b64_tr_b16 v[%d:%d], v%d offset:%d" % (R + 4 * dt + 2 * h, R + 1 + 4 * dt + 2 * h, ad, off + scr))
        a("s_lshr_b32 s67, %s, 3" % ureg)
        a("s_and_b32 s68, %s, 7" % ureg)
        a("s_mul_i32 s68, s68, 48")
        a("s_add_u32 s67, s67, s68")
        a("s_mul_i32 s67, s67, 5120")
        a("s_add_u32 s67, s67, %d" % WS_WD)
        a("s_add_u32 s68, s67, 4096")
        a("s_waitcnt lgkmcnt(0)")
        for dt in range(5):
            if dt < 4: a("buffer_store_dwordx4 v[%d:%d], v237, s[20:23], s67 offen offset:%d sc1" % (R + 4 * dt, R + 3 + 4 * dt, 1024 * dt))
            else: a("buffer_store_dwordx4 v[%d:%d], v237, s[20:23], s68 offen sc1" % (R + 4 * dt, R + 3 + 4 * dt))
    def gate_load(self):
        a = self.a
        a("v_and_b32 v1, 15, v0")
        a("v_lshlrev_b32 v1, 4, v1")
        for j in range(5):
            a("global_load_dwordx4 v[%d:%d], v1, s[%d:%d] offset:%d" % (8 + 4 * j, 11 + 4 * j, P_GW, P_GW + 1, 256 * j))
        a("v_lshrrev_b32 v2, 4, v0")
        a("s_movk_i32 s67, 1280")
        a("v_mul_lo_u32 v2, v2, s67")
        a("v_add_u32 v2, v2, v1")
        a("s_lshl_b32 s67, s2, 3")
        a("s_mul_i32 s67, s67, 1280")
        for half in range(2):
            for j in range(5):
                r = 28 + 20 * half + 4 * j
                a("buffer_load_dwordx4 v[%d:%d], v2, s[8:11], s67 offen offset:%d" % (r, r + 3, 256 * j))
            if half == 0: a("s_add_u32 s67, s67, %d" % (4 * 1280))
    def gate_compute(self):
        a = self.a
        R = 68
        for i in range(4): a("v_mov_b32 v%d, 0" % (R + i))
        for j in range(5):
            for e in range(4):
                for half in range(2):
                    acc = R + half + 2 * (e & 1)
                    a("v_dot2_f32_bf16 v%d, v%d, v%d, v%d" % (acc, 28 + 20 * half + 4 * j + e, 8 + 4 * j + e, acc))
        a("s_nop 2")
        a("v_add_f32 v%d, v%d, v%d" % (R, R, R + 2))
        a("v_add_f32 v%d, v%d, v%d" % (R + 1, R + 1, R + 3))
        a("s_nop 0")
        for ctl in ("row_shr:1", "row_shr:2", "row_shr:4", "row_shr:8"):
            for i in range(2):
                a("v_add_f32_dpp v%d, v%d, v%d %s row_mask:0xf bank_mask:0xf bound_ctrl:1" % (R + i, R + i, R + i, ctl))
            a("s_nop 0")
        for i in range(2): a("v_mul_f32 v%d, 0xbfb8aa3b, v%d" % (R + i, R + i))
        for i in range(2): a("v_exp_f32 v%d, v%d" % (R + i, R + i))
        a("s_nop 0")
        for i in range(2): a("v_add_f32 v%d, 1.0, v%d" % (R + i, R + i))
        for i in range(2): a("v_rcp_f32 v%d, v%d" % (R + i, R + i))
        a("s_lshl_b32 s67, s2, 5")
        a("s_add_u32 s67, s67, %d" % WS_G)
        a("v_lshrrev_b32 v1, 4, v0")
        a("v_lshlrev_b32 v1, 2, v1")
        a("s_mov_b32 exec_lo, 0x80008000")
        a("s_mov_b32 exec_hi, 0x80008000")
        a("buffer_store_dword v%d, v1, s[20:23], s67 offen sc1" % R)
        a("buffer_store_dword v%d, v1, s[20:23], s67 offen offset:16 sc1" % (R + 1))
        a("s_mov_b64 exec, -1")
    def ut_read(self, chunk_reg, stage_base, H):
        a = self.a
        if "noutr" in self.ph: return
        a("s_and_b32 s67, %s, 1" % chunk_reg)
        a("s_cmp_eq_u32 s67, 0")
        a("s_cselect_b64 vcc, -1, 0")
        a("s_nop 0")
        a("v_cndmask_b32 v4, v239, v238, vcc")
        a("v_add_u32 v4, %d, v4" % stage_base)
        for aa in range(2):
            for it in range(4):
                for hh in range(2):
                    r = H + (aa * 4 + it) * 4 + 2 * hh
                    a("ds_read_b64_tr_b16 v[%d:%d], v4 offset:%d" % (r, r + 1, 4096 * it + 512 * hh + 32 * (aa ^ hh)))
        a("s_waitcnt lgkmcnt(0)")
    def utx_load(self, chunk_reg):
        a = self.a
        a("v_lshrrev_b32 v4, 2, v0")
        a("v_mul_u32_u24 v4, 1280, v4")
        a("v_and_b32 v5, 3, v0")
        a("v_lshl_add_u32 v4, v5, 4, v4")
        a("s_mul_i32 s67, s4, %d" % (128 * 1280))
        a("s_lshl_b32 s68, %s, 6" % chunk_reg)
        a("s_add_u32 s67, s67, s68")
        for i in range(8):
            a("s_mov_b32 m0, %d" % (LDS_WDS_EARLY + 1024 * i))
            a("s_nop 0")
            a("buffer_load_dwordx4 v4, s[8:11], s67 offen lds")
            if i < 7: a("s_add_u32 s67, s67, %d" % (16 * 1280))
    def utx_read(self, H):
        a = self.a
        a("v_lshrrev_b32 v4, 4, v0")
        a("v_and_b32 v5, 15, v0")
        a("v_lshrrev_b32 v5, 2, v5")
        a("v_lshl_add_u32 v4, v4, 3, v5")
        a("v_lshlrev_b32 v4, 6, v4")
        a("v_and_b32 v5, 3, v0")
        a("v_lshl_add_u32 v4, v5, 3, v4")
        a("v_add_u32 v4, %d, v4" % LDS_WDS_EARLY)
        for aa in range(2):
            for it in range(4):
                for hh in range(2):
                    r = H + (aa * 4 + it) * 4 + 2 * hh
                    a("ds_read_b64_tr_b16 v[%d:%d], v4 offset:%d" % (r, r + 1, 64 * (32 * it + 4 * hh) + 32 * aa))
        a("s_waitcnt lgkmcnt(0)")

    def ut_store(self, chunk_reg, H):
        a = self.a
        if "nout" in self.ph: return
        a("s_mul_i32 s67, %s, %d" % (chunk_reg, 32 * ROWS))
        a("s_lshl_b32 s68, s4, 8")
        a("s_add_u32 s67, s67, s68")
        a("s_add_u32 s67, s67, %d" % WS_UT)
        a("s_add_u32 s68, s67, %d" % (16 * ROWS))
        for aa in range(2):
            for it in range(4):
                r = H + (aa * 4 + it) * 4
                a("buffer_store_dwordx4 v[%d:%d], v240, s[20:23], s%d offen offset:%d sc1" % (r, r + 3, 67 + aa, 64 * it))

    def pretouch(self):
        a = self.a
        a("v_and_b32 v1, 7, v0")
        a("v_lshlrev_b32 v1, 21, v1")
        a("buffer_load_dword v63, v1, s[20:23], 0 offen")
        a("v_and_b32 v1, 1, v0")
        a("v_lshlrev_b32 v1, 21, v1")
        a("buffer_load_dword v63, v1, s[24:27], 0 offen")
    def warm_inputs(self):
        a = self.a
        if "norot" in self.ph:
            a("s_mov_b32 s68, 9363")
            a("v_mul_lo_u32 v1, v0, s68")
            a("v_lshrrev_b32 v1, 16, v1")
            a("v_mul_u32_u24 v2, 7, v1")
            a("v_sub_u32 v2, v0, v2")
            a("v_mul_u32_u24 v1, 1280, v1")
            a("v_lshl_add_u32 v1, v2, 7, v1")
            a("s_mul_i32 s67, s2, 10240")
            a("s_add_u32 s67, s67, 384")
            a("s_mov_b32 exec_hi, 0x00ffffff")
            a("buffer_load_dword v244, v1, s[8:11], s67 offen")
            a("s_mov_b32 exec_hi, 0x000003ff")
            a("v_lshlrev_b32 v1, 7, v0")
            a("s_mul_i32 s67, s2, %d" % (42 * 128))
            a("s_add_u32 s67, s67, %d" % (192 * 3072))
            a("buffer_load_dword v244, v1, s[12:15], s67 offen")
            a("buffer_load_dword v244, v1, s[16:19], s67 offen")
            a("s_mov_b64 exec, -1")
            return
        a("v_lshlrev_b32 v1, 7, v0")
        if "warmx" in self.ph:
            a("s_mul_i32 s67, s2, 10240")
            a("buffer_load_dword v244, v1, s[8:11], s67 offen")
            a("s_add_u32 s68, s67, 8192")
            a("s_mov_b32 exec_hi, 0")
            a("s_mov_b32 exec_lo, 0xffff")
            a("buffer_load_dword v244, v1, s[8:11], s68 offen")
            a("s_mov_b32 exec_lo, -1")
        a("s_mov_b32 exec_hi, 0x0fffffff")
        a("s_mul_i32 s67, s2, 7680")
        a("buffer_load_dword v244, v1, s[12:15], s67 offen")
        a("buffer_load_dword v244, v1, s[16:19], s67 offen")
        if "warm2" in self.ph:
            a("buffer_load_dword v244, v1, s[28:31], s67 offen")
        a("s_mov_b64 exec, -1")
        if "warm2" in self.ph or "warmp" in self.ph:
            a("v_and_b32 v1, 7, v0")
            a("v_lshlrev_b32 v1, 7, v1")
            a("s_mul_i32 s67, s2, 960")
            a("v_add_u32 v1, s67, v1")
            a("v_min_u32 v1, %d, v1" % (245760 - 4))
            a("v_lshrrev_b32 v2, 3, v0")
            a("v_mov_b32 v4, s%d" % P_ARE); a("v_mov_b32 v5, s%d" % (P_ARE + 1))
            for k, p in enumerate((P_AIM, P_BRE, P_BIM, P_CRE, P_CIM)):
                a("v_cmp_eq_u32 vcc, %d, v2" % (k + 1))
                a("v_mov_b32 v6, s%d" % p); a("v_mov_b32 v7, s%d" % (p + 1))
                a("v_cndmask_b32 v4, v4, v6, vcc")
                a("v_cndmask_b32 v5, v5, v7, vcc")
            a("v_add_co_u32 v4, vcc, v4, v1")
            a("s_nop 1")
            a("v_addc_co_u32 v5, vcc, 0, v5, vcc")
            a("global_load_dword v244, v[4:5], off")

    def warm_code(self, early=False):
        a = self.a
        n = self.name
        l = self.newlab("pc"); l2 = self.newlab("pc")
        a("s_getpc_b64 s[68:69]")
        a.lab(l)
        a("s_sub_u32 s68, s68, %s-%s" % (l, n))
        a("s_subb_u32 s69, s69, 0")
        a("s_mov_b32 s67, (%s_end-%s+4095)/4096" % (n, n))
        a("s_lshr_b32 s70, s2, 3")
        a("s_mul_i32 s70, s70, s67")
        a("v_add_u32 v1, s70, v0")
        a("v_lshlrev_b32 v1, 7, v1")
        a("v_min_u32 v1, %s_end-%s, v1" % (n, n))
        a("v_cmp_gt_u32 vcc, s67, v0")
        a("s_and_saveexec_b64 s[70:71], vcc")
        a("s_cbranch_execz %s" % l2)
        a("global_load_dword v244, v1, s[68:69]")
        a.lab(l2)
        a("s_mov_b64 exec, s[70:71]")

    def smem_warm(self, part):
        a = self.a
        if part == 0:
            a("s_mul_i32 s67, s2, 7680")
            a("s_add_u32 s70, s%d, s67" % P_WD)
            a("s_addc_u32 s71, s%d, 0" % (P_WD + 1))
        for r in range(15 * part, 15 * part + 15):
            a("s_load_dword s74, s[70:71], %d" % (r * 128))

    def s3w_setup(self):
        a = self.a
        T = 1; VO = 245
        a("s_mul_i32 s69, s5, 192")
        a("s_mov_b32 s78, 43691")
        a("s_movk_i32 s79, 3072")
        for i in range(3):
            a("v_add_u32 v%d, %d, v0" % (T, 64 * i))
            a("v_mul_lo_u32 v%d, v%d, s78" % (T + 1, T))
            a("v_lshrrev_b32 v%d, 19, v%d" % (T + 1, T + 1))
            a("v_mul_u32_u24 v%d, 12, v%d" % (T + 2, T + 1))
            a("v_sub_u32 v%d, v%d, v%d" % (T + 2, T, T + 2))
            a("v_lshrrev_b32 v%d, 2, v%d" % (T + 3, T + 1))
            a("v_and_b32 v%d, 2, v%d" % (T + 3, T + 3))
            a("v_xor_b32 v%d, v%d, v%d" % (T + 2, T + 2, T + 3))
            a("v_mul_lo_u32 v%d, v%d, s79" % (T + 1, T + 1))
            a("v_lshl_add_u32 v%d, v%d, 4, v%d" % (T + 1, T + 2, T + 1))
            a("v_add_u32 v%d, s69, v%d" % (VO + i, T + 1))
        self.rot_r("s54", "s67")
    def s3w_younger0(self):
        n = 24 + (1 if self.fused() else 0)
        if "wdlate" not in self.ph: n += 5
        return n
    def s3w_dma(self, st):
        a = self.a
        VO = 245
        base = (st % 3) * STAGE
        a("s_mul_i32 s55, s54, 196608")
        a("s_add_u32 s54, s54, 1")
        a("s_cmp_eq_u32 s54, 10")
        a("s_cselect_b32 s54, 0, s54")
        for g4 in range(4):
            if g4: a("s_add_u32 s55, s55, 49152")
            for mat, srd in ((0, "s[12:15]"), (1, "s[16:19]")):
                for i in range(3):
                    a("s_mov_b32 m0, %d" % (base + (ST_WG if mat == 0 else ST_WU) + 3072 * g4 + 1024 * i))
                    a("s_nop 0")
                    a("buffer_load_dwordx4 v%d, %s, s55 offen lds" % (VO + i, srd))

    def s_side(self):
        a = self.a
        if "noside" in self.ph:
            for b in range(11 if self.fused() else 12): a("s_barrier")
            return
        HA, HB = 100, 132
        def cond_b(fn):
            l = self.newlab("wb")
            a("s_cmp_ge_u32 s51, 384")
            a("s_cbranch_scc1 %s" % l)
            fn()
            a.lab(l)
        if "warm0" in self.ph:
            self.warm_inputs()
            if "warmc" in self.ph: self.warm_code()
        s3w = "s3w" in self.ph
        if s3w:
            self.s3w_setup()
            self.s3w_dma(0)
            self.s3w_dma(1)
        self.side_setup()
        norot = "norot" in self.ph
        if norot:
            a("s_mov_b32 s50, s5")
            a("s_add_u32 s53, s5, 16")
            a("s_cmp_lt_u32 s5, 4")
            a("s_cselect_b32 s53, s53, 99")
        else:
            self.rot_r("s50", "s67")
            a("s_and_b32 s68, s5, 1")
            a("s_lshl_b32 s50, s50, 1")
            a("s_add_u32 s50, s50, s68")
            a("s_add_u32 s53, s50, 2")
            a("s_lshr_b32 s67, s5, 1")
            a("s_and_b32 s67, s67, 3")
            a("s_cmp_eq_u32 s67, 0")
            a("s_cselect_b32 s53, s53, 99")
        if self.fused():
            a("v_mov_b32 v1, %d" % LDS_CNT)
            a("v_mov_b32 v2, 0")
            a("v_mov_b32 v3, 0")
            a("ds_write_b64 v1, v[2:3]")
            a("ds_write_b64 v1, v[2:3] offset:8")
            a("ds_write_b64 v1, v[2:3] offset:16")
            a("ds_write_b32 v1, v2 offset:24")
        self.stamp(5)
        if "nobpre" not in self.ph: a("s_barrier")
        if self.fused(): self.nonce_load()
        if self.fused() and "ftouch" in self.ph:
            a("s_min_u32 s67, s2, 191")
            a("s_lshl_b32 s67, s67, 7")
            a("s_add_u32 s67, s67, %d" % WS_FU)
            a("v_mov_b32 v1, 0")
            a("s_mov_b64 exec, 1")
            a("buffer_load_dword v244, v1, s[20:23], s67 offen sc1")
            a("s_mov_b64 exec, -1")
        if norot: self.utx_load("s50")
        wdlate = "wdlate" in self.ph
        wdmid = "wdmid" in self.ph
        if not wdlate and not wdmid:
            self.wd_load("s2", 0)
            cond_b(lambda: self.wd_load("s51", 5120))
        if "warm0" not in self.ph:
            if "warmc" in self.ph: self.warm_code()
            if ("warm" in self.ph or "warm2" in self.ph) and "warmB0" not in self.ph and "warmB1" not in self.ph and not s3w: self.warm_inputs()
        if s3w: a("s_waitcnt vmcnt(%d)" % self.s3w_younger0())
        a("s_barrier")
        if s3w:
            self.s3w_dma(2)
            self.warm_inputs()
        if "warmB0" in self.ph: self.warm_inputs()
        self.stamp(1)
        if norot:
            a("s_waitcnt vmcnt(3)")
            self.utx_read(HA)
            def second():
                self.utx_load("s53")
            l_ = self.newlab("ux")
            a("s_cmp_ge_u32 s53, 20")
            a("s_cbranch_scc1 %s" % l_)
            second()
            a.lab(l_)
        else:
            self.ut_read("s50", 0, HA)
        def uflag(creg):
            a("s_lshl_b32 s69, %s, 5" % creg)
            a("s_add_u32 s69, s69, s4")
            a("s_lshl_b32 s69, s69, 2")
            a("s_add_u32 s69, s69, %d" % WS_FU)
            self.flag_set("s69", 2)
        def n_lt4(fn):
            l = self.newlab("ut")
            a("s_cmp_ge_u32 s53, 20")
            a("s_cbranch_scc1 %s" % l)
            fn()
            a.lab(l)
        def wflag(ureg):
            a("s_and_b32 s68, %s, 7" % ureg)
            a("s_lshl_b32 s68, s68, 8")
            a("s_lshr_b32 s69, %s, 3" % ureg)
            a("s_lshl_b32 s69, s69, 2")
            a("s_add_u32 s69, s69, s68")
            a("s_add_u32 s69, s69, %d" % WS_FW)
            self.flag_set("s69", 2)
        early = "utearly" in self.ph
        epb = "epb" in self.ph
        if early: self.ut_store("s50", HA)
        for kk in range(10):
            if s3w:
                if kk == 0: a("s_waitcnt vmcnt(26)")
                elif kk <= 7: a("s_waitcnt vmcnt(24)")
                elif kk == 8: a("s_waitcnt vmcnt(%d)" % (6 if (wdlate and self.fused()) else 0))
            if not (kk == 9 and self.fused()): a("s_barrier")
            if s3w and kk + 3 < 10 and kk not in (0, 1): self.s3w_dma(kk + 3)
            if kk == 0:
                if "warmB1" in self.ph: self.warm_inputs()
                if norot:
                    def rd2():
                        a("s_waitcnt vmcnt(0)")
                        self.utx_read(HB)
                    n_lt4(rd2)
                else:
                    n_lt4(lambda: self.ut_read("s53", 1 * STAGE, HB))
                if early: n_lt4(lambda: self.ut_store("s53", HB))
                if epb:
                    a("s_waitcnt vmcnt(%d)" % (8 if early else 0))
                    self.wd_store("s2", 0)
                    cond_b(lambda: self.wd_store("s51", 5120, 180))
            if kk == 1:
                if not early:
                    self.ut_store("s50", HA)
                    n_lt4(lambda: self.ut_store("s53", HB))
            if s3w and kk in (0, 1): self.s3w_dma(kk + 3)
            if kk == 3:
                a("s_waitcnt vmcnt(%d)" % (48 if s3w else 0))
                if self.fused():
                    self.nonce_publish_local()
                    if "uflate" not in self.ph:
                        uflag("s50")
                        n_lt4(lambda: uflag("s53"))
                    if epb:
                        wflag("s2")
                        cond_b(lambda: wflag("s51"))
            if kk == 7 and "uflate" in self.ph and self.fused():
                uflag("s50")
                n_lt4(lambda: uflag("s53"))
            if "swarm" in self.ph and 2 <= kk <= 5:
                self.smem_warm(kk - 2)
            if kk == 6 and wdmid:
                if "swarm" in self.ph: a("s_waitcnt lgkmcnt(0)")
                self.wd_load("s2", 0)
                cond_b(lambda: self.wd_load("s51", 5120))
            if kk == 7 and wdmid: a("s_waitcnt vmcnt(0)")
            if kk == 7 and "s3prio" in self.ph: a("s_setprio 3")
            if kk == 7 and epb:
                if self.fused():
                    self.s3_uw_look()
                    a("s_lshl_b32 s78, s7, 8")
                    a("s_add_u32 s78, s78, %d" % WS_FW)
                    self.look_line("s78", 48, 94)
                self.gate_load()
            if kk == 7 and not wdlate and not epb:
                if self.fused(): self.s3_uw_look()
                self.wd_store("s2", 0)
                cond_b(lambda: self.wd_store("s51", 5120, 180))
                self.gate_load()
            if kk == 7 and wdlate:
                if "swarm" in self.ph: a("s_waitcnt lgkmcnt(0)")
                if self.fused(): self.s3_uw_look()
                self.wd_load("s2", 0)
                cond_b(lambda: self.wd_load("s51", 5120))
            if kk == 8:
                if self.fused():
                    l = self.newlab("uw")
                    if epb:
                        self.check_line("s78", 94, 15)
                        a("v_mov_b32 v1, %d" % LDS_WOK)
                        a("v_mov_b32 v2, 1")
                        a("ds_write_b32 v1, v2")
                    elif not wdlate and "wfirst" in self.ph:
                        a("s_waitcnt vmcnt(15)")
                        wflag("s2")
                        cond_b(lambda: wflag("s51"))
                    else:
                        a("s_waitcnt vmcnt(%d)" % (5 if wdlate else 20))
                    a("v_cmp_eq_u32 vcc, s64, v92")
                    a("s_nop 1")
                    a("s_cmp_eq_u64 vcc, -1")
                    a("s_cbranch_scc1 %s" % l)
                    self.poll(self.s3_uw_loads, [92], 6, sleep=2)
                    a.lab(l)
                    self.s3_u_loads()
                    a("v_mov_b32 v1, %d" % LDS_UOK)
                    a("v_mov_b32 v2, 3")
                    a("ds_write_b32 v1, v2")
                    if wdlate: a("s_waitcnt vmcnt(12)")
                elif wdlate:
                    a("s_waitcnt vmcnt(0)")
                if wdlate:
                    self.wd_store("s2", 0)
                    cond_b(lambda: self.wd_store("s51", 5120, 180))
                    self.gate_load()
        self.stamp(2)
        if self.fused():
            if "s3prio" not in self.ph: a("s_setprio 2")
            if epb:
                self.lds_spin(LDS_SFREE, 2, 4)
                a("s_waitcnt vmcnt(0)")
            else:
                if not wdlate and "wfirst" in self.ph:
                    self.lds_spin(LDS_SFREE, 2, 4)
                    a("s_waitcnt vmcnt(0)")
                else:
                    if wdlate: a("s_waitcnt vmcnt(15)")
                    else: a("s_waitcnt vmcnt(27)")
                    wflag("s2")
                    cond_b(lambda: wflag("s51"))
                    self.lds_spin(LDS_SFREE, 2, 4)
                    if not wdlate: a("s_waitcnt vmcnt(1)")
        self.stamp(3)
        if self.fused():
            self.s3_u_copies(extra=None)
            a("s_waitcnt lgkmcnt(0)")
            a("v_mov_b32 v1, %d" % LDS_UCOK)
            a("v_mov_b32 v2, 1")
            a("ds_write_b32 v1, v2")
            a("s_setprio 0")
            self.stamp(4)
            a("s_waitcnt vmcnt(0)")
            self.gate_compute()
            a("s_waitcnt vmcnt(0)")
            a("s_lshl_b32 s69, s2, 2")
            a("s_add_u32 s69, s69, %d" % WS_FG)
            self.flag_set("s69", 2)
            if "nonearly" in self.ph: self.nonce_update()
        else:
            a("s_waitcnt vmcnt(0)")
            self.gate_compute()
            a("s_waitcnt vmcnt(0)")
            self.stamp(4)

    def s3_uw_addr(self):
        a = self.a
        a("v_lshrrev_b32 v1, 4, v0")
        a("v_lshlrev_b32 v1, 8, v1")
        a("v_add_u32 v1, s2, v1")
        a("v_mov_b32 v2, s2")
        a("v_cmp_gt_u32 vcc, 640, v1")
        a("s_nop 1")
        a("v_cndmask_b32 v1, v2, v1, vcc")
        a("v_lshrrev_b32 v1, 5, v1")
        a("v_lshlrev_b32 v1, 7, v1")
        a("v_and_b32 v2, 15, v0")
        a("v_lshl_add_u32 v1, v2, 2, v1")
        a("v_add_u32 v90, %d, v1" % WS_FU)
    def s3_uw_loads(self):
        a = self.a
        a("buffer_load_dword v92, v90, s[20:23], 0 offen sc1")
    def s3_uw_look(self):
        self.s3_uw_addr()
        self.s3_uw_loads()
    def s3_uw_check(self):
        a = self.a
        l = self.newlab("uw")
        a("s_waitcnt vmcnt(0)")
        a("v_cmp_eq_u32 vcc, s64, v92")
        a("v_cmp_eq_u32 s[76:77], s64, v93")
        a("s_nop 1")
        a("s_and_b64 vcc, vcc, s[76:77]")
        a("s_cmp_eq_u64 vcc, -1")
        a("s_cbranch_scc1 %s" % l)
        self.poll(self.s3_uw_loads, [92, 93], 6, sleep=2)
        a.lab(l)

    def s3_channels(self):
        a = self.a
        a("s_mov_b32 s70, s2")
        a("s_add_u32 s71, s2, 256")
        a("s_add_u32 s72, s2, 512")
        a("s_cmp_lt_u32 s72, 640")
        a("s_cselect_b32 s72, s72, s2")

    def s3_u_loads(self):
        a = self.a
        self.s3_channels()
        a("v_lshlrev_b32 v1, 4, v0")
        for sg in range(3):
            a("s_mul_i32 s67, s%d, %d" % (70 + sg, ROWS))
            a("s_add_u32 s67, s67, %d" % WS_UT)
            for i in range(4):
                r = 100 + 16 * sg + 4 * i
                a("buffer_load_dwordx4 v[%d:%d], v1, s[20:23], s67 offen offset:%d sc1" % (r, r + 3, 1024 * i))

    def s3_u_copies(self, extra=0):
        a = self.a
        Z = 150
        for i in range(4): a("v_mov_b32 v%d, 0" % (Z + i))
        a("v_lshlrev_b32 v2, 4, v0")
        a("v_cmp_eq_u32 vcc, 0, v0")
        for sg in range(3):
            base = LDS_UC + sg * UC_SZ
            for b in range(4):
                a("ds_write_b128 v2, v[%d:%d] offset:%d" % (Z, Z + 3, base + b * UC_STRIDE))
        for sg in range(3):
            base = LDS_UC + sg * UC_SZ
            if extra is not None: a("s_waitcnt vmcnt(%d)" % (4 * (2 - sg) + extra))
            for i in range(4):
                D = 100 + 16 * sg + 4 * i
                R3, R2 = 154 + 2 * (i & 1), 155 + 2 * (i & 1)
                Q3, Q2 = 154 + 2 * ((i + 1) & 1), 155 + 2 * ((i + 1) & 1)
                T1 = 160 + 12 * (i & 1); T0 = T1 + 4; T2 = T1 + 8
                P2 = 158
                a("v_mov_b32_dpp v%d, v%d wave_ror:1 row_mask:0xf bank_mask:0xf" % (R3, D + 3))
                a("v_mov_b32_dpp v%d, v%d wave_ror:1 row_mask:0xf bank_mask:0xf" % (R2, D + 2))
                a("v_mov_b32 v%d, v%d" % (T1 + 1, D))
                a("v_mov_b32 v%d, v%d" % (T1 + 2, D + 1))
                a("v_mov_b32 v%d, v%d" % (T1 + 3, D + 2))
                if i == 0:
                    a("v_cndmask_b32 v%d, v%d, v%d, vcc" % (T1, R3, Z))
                    a("v_cndmask_b32 v%d, v%d, v%d, vcc" % (P2, R2, Z))
                else:
                    a("v_cndmask_b32 v%d, v%d, v%d, vcc" % (T1, R3, Q3))
                    a("v_cndmask_b32 v%d, v%d, v%d, vcc" % (P2, R2, Q2))
                off = base + 4 * (96 + 256 * i)
                a("ds_write_b128 v2, v[%d:%d] offset:%d" % (D, D + 3, off + 3 * UC_STRIDE))
                a("v_alignbit_b32 v%d, v%d, v%d, 16" % (T0, T1, P2))
                a("v_alignbit_b32 v%d, v%d, v%d, 16" % (T0 + 1, D, T1))
                a("v_alignbit_b32 v%d, v%d, v%d, 16" % (T0 + 2, D + 1, D))
                a("v_alignbit_b32 v%d, v%d, v%d, 16" % (T0 + 3, D + 2, D + 1))
                a("ds_write_b128 v2, v[%d:%d] offset:%d" % (T1, T1 + 3, off + 1 * UC_STRIDE))
                a("v_mov_b32 v%d, v%d" % (T2, T0 + 1))
                a("v_mov_b32 v%d, v%d" % (T2 + 1, T0 + 2))
                a("v_mov_b32 v%d, v%d" % (T2 + 2, T0 + 3))
                a("v_alignbit_b32 v%d, v%d, v%d, 16" % (T2 + 3, D + 3, D + 2))
                a("ds_write_b128 v2, v[%d:%d] offset:%d" % (T0, T0 + 3, off + 0 * UC_STRIDE))
                a("ds_write_b128 v2, v[%d:%d] offset:%d" % (T2, T2 + 3, off + 2 * UC_STRIDE))

    def s_phase1(self):
        a = self.a
        n = self.name
        a("s_sub_u32 s66, s3, 4")
        a("s_cmp_eq_u32 s66, 3")
        a("s_cbranch_scc1 %s_sj" % n)
        self.s_kgen_phase1()
        a("s_branch %s_p1done" % n)
        a.lab("%s_sj" % n)
        self.s_side()
        a.lab("%s_p1done" % n)

    def ssm_param_loads(self, slots=(0, 1, 2), scalars=True):
        a = self.a
        a("s_mul_i32 s67, s50, 384")
        a("v_lshl_add_u32 v1, v0, 1, s67")
        for sl in slots:
            for k, p in enumerate((P_ARE, P_AIM, P_BRE, P_BIM, P_CRE, P_CIM)):
                a("global_load_ushort v%d, v1, s[%d:%d] offset:%d" % (200 + 6 * sl + k, p, p + 1, 128 * sl))
        if scalars:
            a("s_lshl_b32 s67, s50, 1")
            a("v_mov_b32 v223, s67")
            a("global_load_ushort v218, v223, s[%d:%d]" % (P_LDT, P_LDT + 1))
            a("global_load_ushort v219, v223, s[%d:%d]" % (P_DSK, P_DSK + 1))

    def ssm_param_warm(self):
        a = self.a
        a("s_mul_i32 s67, s50, 384")
        for p in (P_ARE, P_AIM, P_BRE, P_BIM, P_CRE, P_CIM):
            a("s_add_u32 s68, s%d, s67" % p)
            a("s_addc_u32 s69, s%d, 0" % (p + 1))
            for i in range(3):
                a("s_load_dword s70, s[68:69], %d" % (128 * i))
        a("s_lshl_b32 s67, s50, 1")
        a("s_and_b32 s67, s67, 0xfffffffc")
        a("s_load_dword s70, s[%d:%d], s67" % (P_LDT, P_LDT + 1))
        a("s_load_dword s70, s[%d:%d], s67" % (P_DSK, P_DSK + 1))

    def kgen_bases(self):
        a = self.a
        a("s_mul_i32 s51, s66, %d" % TAB_SZ)
        a("s_add_u32 s51, s51, %d" % LDS_TAB)
        a("s_mul_i32 s52, s66, %d" % KR_SZ)
        a("s_add_u32 s52, s52, %d" % LDS_KR)

    def kgen(self, part="all"):
        a = self.a
        if part == "all": self.kgen_bases()
        self._kgen_body(part)

    def _kgen_body(self, part):
        a = self.a
        head = part in ("all", "head", "rest"); tail = part in ("all", "tail", "rest")
        real_a = a
        if not head: a = Asm()
        a("v_and_b32 v4, 15, v0")
        a("v_lshrrev_b32 v5, 4, v0")
        a("v_mul_u32_u24 v2, %d, v4" % TABROW)
        a("v_lshl_add_u32 v2, v5, 6, v2")
        a("v_add_u32 v2, s51, v2")
        a("v_and_b32 v6, 1, v5")
        a("v_lshl_add_u32 v3, v6, 3, v2")
        a("v_xor_b32 v6, 1, v6")
        a("v_lshl_add_u32 v2, v6, 3, v2")
        a("s_mov_b32 m0, s51")
        a("s_nop 0")
        if part == "all" or (part == "rest" and not self.fused()): a("s_waitcnt vmcnt(0)")
        a("v_lshlrev_b32 v218, 16, v218")
        a("v_lshlrev_b32 v219, 16, v219")
        a("v_mul_f32 v6, 0x3fb8aa3b, v218")
        a("s_mov_b32 s67, 0x3fb8aa3b")
        a("v_fma_f32 v7, v218, s67, -v6")
        a("v_fmac_f32 v7, 0x32a57060, v218")
        a("v_exp_f32 v6, v6")
        a("v_mul_f32 v7, 0x3f317218, v7")
        a("v_fma_f32 v6, v6, v7, v6")
        a("v_cvt_pk_bf16_f32 v6, v6, v6")
        a("v_lshlrev_b32 v218, 16, v6")
        W1, W16, W256, W512, W768, W1024 = 10, 12, 14, 16, 18, 20
        WX = 22
        CB = 24
        Y = 26; P = 28; TMP1 = 30; TMP2 = 32; TMP3 = 34
        PK = 36
        V = 50
        CV = 66
        YF = 76
        AF = 92
        ACC = 108
        nopk = (part == "head") and ("pkhead" not in self.ph)
        def cmul(out, x, w, t):
            if nopk:
                return ["v_mul_f32 v%d, v%d, v%d" % (t, x + 1, w + 1),
                        "v_mul_f32 v%d, v%d, v%d" % (t + 1, x, w + 1),
                        "v_fma_f32 v%d, v%d, v%d, -v%d" % (out, x, w, t),
                        "v_fma_f32 v%d, v%d, v%d, v%d" % (out + 1, x + 1, w, t + 1)]
            return ["v_pk_mul_f32 v[%d:%d], v[%d:%d], v[%d:%d] op_sel:[0,0] op_sel_hi:[0,1]" % (t, t + 1, x, x + 1, w, w + 1),
                    "v_pk_fma_f32 v[%d:%d], v[%d:%d], v[%d:%d], v[%d:%d] op_sel:[1,1,0] op_sel_hi:[1,0,1] neg_lo:[1,0,0]" % (out, out + 1, x, x + 1, w, w + 1, t, t + 1)]
        def zipl(*ls):
            o = []
            for i in range(max(len(l) for l in ls)):
                for l in ls:
                    if i < len(l): o.append(l[i])
            return o
        cvn = [0, 0]
        def wr(val, tile, row, neg, bank=0):
            c = CV + 4 * bank + (cvn[bank] % 4); cvn[bank] += 1
            return ["v_cvt_pk_bf16_f32 v%d, v%d, %sv%d" % (c, val, "-" if neg else "", val + 1),
                    "ds_write_addtid_b32 v%d offset:%d" % (c, tile * TABTILE + row * TABROW)]
        def frag_reads(dst, tile):
            L = []
            for kk in range(4):
                L.append("ds_read_b64 v[%d:%d], v3 offset:%d" % (dst + 4 * kk, dst + 4 * kk + 1, tile * TABTILE + 16 * kk))
                L.append("ds_read_b64 v[%d:%d], v2 offset:%d" % (dst + 4 * kk + 2, dst + 4 * kk + 3, tile * TABTILE + 16 * kk))
            return L
        def mm(t, first):
            L = []
            for kk in range(4):
                c = "0" if (first and kk == 0) else "v[%d:%d]" % (ACC + 4 * t, ACC + 4 * t + 3)
                L.append("v_mfma_f32_16x16x32_bf16 v[%d:%d], v[%d:%d], v[%d:%d], %s" % (ACC + 4 * t, ACC + 4 * t + 3, AF + 4 * kk, AF + 4 * kk + 3, YF + 4 * kk, YF + 4 * kk + 3, c))
            return L
        a = real_a
        nh = 2 if "kg2" in self.ph else 1
        slots = [0, 1, 2] if part in ("all", "rest") else (list(range(nh)) if part == "head" else list(range(nh, 3)))
        for sl in slots:
            if sl == 1 and part == "tail" and not self.fused(): a("s_waitcnt vmcnt(0)")
            if sl == 2 and part in ("rest", "tail"): self.stamp(3)
            if sl == 2 and "prioT" in self.ph: a("s_setprio 2")
            if sl == slots[0] and part in ("tail", "rest") and "prioT0" in self.ph and "prioMid" not in self.ph: a("s_setprio 2")
            pr = 200 + 6 * sl
            for k in range(6): a("v_lshlrev_b32 v%d, 16, v%d" % (pr + k, pr + k))
            a("v_mul_f32 v6, v218, v%d" % pr)
            a("v_mul_f32 v7, v218, v%d" % (pr + 1))
            a("v_mul_f32 v6, 0x3fb8aa3b, v6")
            a("v_mul_f32 v7, 0.15915494, v7")
            a("v_mul_f32 v8, v218, v%d" % (pr + 2))
            a("v_mul_f32 v9, v218, v%d" % (pr + 3))
            a.ext(cmul(CB, pr + 4, 8, TMP1))
            for w, k in ((W1, 1.0), (W16, 16.0), (W256, 256.0)):
                if k == 1.0:
                    a("v_exp_f32 v%d, v6" % TMP2)
                    a("v_fract_f32 v%d, v7" % TMP3)
                else:
                    lit = "0x41800000" if k == 16.0 else "0x43800000"
                    a("v_mul_f32 v%d, %s, v6" % (TMP2, lit))
                    a("v_mul_f32 v%d, %s, v7" % (TMP3, lit))
                    a("v_exp_f32 v%d, v%d" % (TMP2, TMP2))
                    a("v_fract_f32 v%d, v%d" % (TMP3, TMP3))
                a("v_cos_f32 v%d, v%d" % (w, TMP3))
                a("v_sin_f32 v%d, v%d" % (w + 1, TMP3))
                a("s_nop 0")
                a("v_mul_f32 v%d, v%d, v%d" % (w, w, TMP2))
                a("v_mul_f32 v%d, v%d, v%d" % (w + 1, w + 1, TMP2))
            if sl != slots[0]:
                a("s_waitcnt lgkmcnt(0)")
                a.ext(pend_mm2)
            if sl == slots[0] and part in ("tail", "rest") and "prioMid" in self.ph: a("s_setprio 2")
            LY = ["v_mov_b32 v%d, v%d" % (Y, CB), "v_mov_b32 v%d, v%d" % (Y + 1, CB + 1)] + wr(Y, 0, 0, False)
            for j in range(1, 16):
                LY += cmul(Y, Y, W16, TMP1) + wr(Y, 0, j, False)
            LA = ["v_mov_b32 v%d, 1.0" % P, "v_mov_b32 v%d, 0" % (P + 1)] + wr(P, 1, 0, True, 1)
            cur = P
            for r in range(1, 16):
                if r == 1:
                    LA += ["v_mov_b32 v%d, v%d" % (P, W1), "v_mov_b32 v%d, v%d" % (P + 1, W1 + 1)]
                    cur = P
                else:
                    dst = PK + 2 * (r // 2 - 1) if r % 2 == 0 else P
                    LA += cmul(dst, cur, W1, TMP2)
                    cur = dst
                LA += wr(cur, 1, r, True, 1)
            a.ext(zipl(LY, LA))
            a.ext(cmul(W512, W256, W256, TMP1))
            a.ext(frag_reads(YF, 0)); a.ext(frag_reads(AF, 1))
            a.ext(zipl(cmul(W768, W512, W256, TMP1), cmul(W1024, W512, W512, TMP2)))
            def pk(i): return PK + 2 * (i // 2 - 1)
            vals = []
            A2 = []
            regs = []
            for r in range(8):
                if r == 0: regs.append(W256)
                else:
                    dst = V + 2 * (r - 1) if r < 8 else None
                    A2.append(cmul(dst, pk(2 * r), W256, TMP1 if r % 2 else TMP2)); regs.append(dst)
            a.ext(zipl(sum(A2[0::2], []), sum(A2[1::2], [])))
            a("s_waitcnt lgkmcnt(0)")
            m = mm(0, sl == 0)
            L = []
            for r in range(8): L += wr(regs[r], 1, r, True)
            a.ext(interleave(m, L))
            LA = []; LB = []
            for b in range(4):
                if b == 0:
                    LA += wr(W512, 1, 8, True); LB += wr(W768, 1, 12, True, 1)
                else:
                    LA += cmul(V, pk(4 * b), W512, TMP1) + wr(V, 1, 8 + b, True)
                    LB += cmul(V + 2, pk(4 * b), W768, TMP2) + wr(V + 2, 1, 12 + b, True, 1)
            a.ext(zipl(LA, LB))
            a.ext(frag_reads(AF, 1))
            a.ext(zipl(cmul(V, W1024, W256, TMP1), cmul(V + 2, W1024, W512, TMP2)))
            a.ext(zipl(cmul(V + 4, W1024, W768, TMP1), cmul(V + 6, W1024, W1024, TMP2)))
            ws = [W1024, V, V + 2, V + 4]
            a.ext(zipl(cmul(V + 8, ws[0], pk(8), TMP1), cmul(V + 10, ws[1], pk(8), TMP2)))
            a.ext(zipl(cmul(V + 12, ws[2], pk(8), TMP1), cmul(V + 14, ws[3], pk(8), TMP2)))
            a("s_waitcnt lgkmcnt(0)")
            m = mm(1, sl == 0)
            L = []
            for i in range(4):
                L += wr(ws[i], 1, 2 * i, True) + wr(V + 8 + 2 * i, 1, 2 * i + 1, True)
            L += wr(V + 6, 1, 8, True)
            a.ext(interleave(m, L))
            a.ext(frag_reads(AF, 1))
            pend_mm2 = mm(2, sl == 0)
            if sl == slots[-1]:
                a("s_waitcnt lgkmcnt(0)")
                a.ext(pend_mm2); pend_mm2 = None
        if not tail: return
        self.stamp(1)
        A0, A1, A2r = ACC, ACC + 4, ACC + 8
        a("v_cmp_eq_u32 vcc, 0, v0")
        a("v_and_b32 v4, 15, v0")
        a("v_lshrrev_b32 v5, 4, v0")
        a("v_cndmask_b32 v6, 0, v219, vcc")
        a("v_lshlrev_b32 v7, 5, v4")
        a("v_lshl_add_u32 v7, v5, 4, v7")
        a("v_lshlrev_b32 v8, 4, v4")
        a("v_lshl_add_u32 v8, v5, 8, v8")
        a("v_cmp_gt_u32 vcc, 2, v5")
        a("v_add_f32 v%d, v%d, v6" % (A0, A0))
        a("s_nop 0")
        a("v_cndmask_b32 v7, v8, v7, vcc")
        a("v_add_u32 v7, s51, v7")
        a("v_lshlrev_b32 v8, 3, v4")
        a("v_lshl_add_u32 v8, v5, 8, v8")
        a("v_add_u32 v8, s51, v8")
        a("s_nop 4")
        a("ds_write_b128 v7, v[%d:%d]" % (A1, A1 + 3))
        a("ds_write_b64 v8, v[%d:%d] offset:1024" % (A2r, A2r + 1))
        a("ds_write_b64 v8, v[%d:%d] offset:1152" % (A2r + 2, A2r + 3))
        a("v_cvt_pk_bf16_f32 v10, v%d, v%d" % (A0 + 3, A0 + 2))
        a("v_cvt_pk_bf16_f32 v11, v%d, v%d" % (A0 + 1, A0))
        a("v_lshlrev_b32 v9, 5, v4")
        a("v_lshl_add_u32 v9, v5, 3, v9")
        a("v_sub_u32 v9, 4088, v9")
        a("v_add_u32 v9, s52, v9")
        a("ds_write_b64 v9, v[10:11]")
        a("v_and_b32 v9, 31, v0")
        a("v_lshlrev_b32 v9, 2, v9")
        a("v_add_u32 v9, s52, v9")
        a("v_mov_b32 v12, 0")
        a("ds_write_b32 v9, v12 offset:4096")
        a("v_lshlrev_b32 v13, 4, v0")
        a("v_add_u32 v14, s51, v13")
        a("v_lshlrev_b32 v15, 3, v0")
        a("v_add_u32 v15, s51, v15")
        a("v_lshlrev_b32 v16, 2, v0")
        a("v_add_u32 v16, s51, v16")
        a("v_sub_u32 v13, s52, v13")
        a("s_waitcnt lgkmcnt(0)")
        a("ds_read_b128 v[20:23], v14")
        a("ds_read_b32 v24, v14 offset:16")
        a("ds_read_b64 v[26:27], v15 offset:512")
        a("ds_read_b32 v28, v15 offset:520")
        a("ds_read2_b32 v[30:31], v16 offset0:0 offset1:1")
        a.l.pop()
        a("v_add_u32 v17, 1024, v16")
        a("ds_read2_b32 v[30:31], v17 offset0:0 offset1:1")
        a("ds_read2_b32 v[32:33], v17 offset0:64 offset1:65")
        a("v_and_b32 v18, 1, v0")
        a("v_cmp_eq_u32 vcc, 1, v18")
        a("s_waitcnt lgkmcnt(0)")
        a("v_cvt_pk_bf16_f32 v36, v28, v28")
        a("v_cvt_pk_bf16_f32 v37, v27, v27")
        a("v_cvt_pk_bf16_f32 v38, v27, v26")
        a("v_cvt_pk_bf16_f32 v39, v26, v26")
        a("ds_write_b128 v13, v[36:39] offset:3056")
        for ps in range(2):
            v0_, v1_ = 30 + 2 * ps, 31 + 2 * ps
            o = 40 + 4 * ps
            a("v_cndmask_b32 v19, v%d, v%d, vcc" % (v0_, v1_))
            a("v_cvt_pk_bf16_f32 v%d, v%d, v%d" % (o, v1_, v1_))
            a("v_cvt_pk_bf16_f32 v%d, v%d, v19" % (o + 1, v1_))
            a("v_cvt_pk_bf16_f32 v%d, v%d, v%d" % (o + 2, v0_, v0_))
            a("v_mov_b32 v%d, v%d" % (o + 3, o + 2))
        a("ds_write_b128 v13, v[40:43] offset:2032")
        a("ds_write_b128 v13, v[44:47] offset:1008")
        a("v_cvt_pk_bf16_f32 v48, v24, v23")
        a("v_cvt_pk_bf16_f32 v49, v22, v22")
        a("v_cvt_pk_bf16_f32 v50, v22, v21")
        a("v_cvt_pk_bf16_f32 v51, v20, v20")
        a("s_mov_b32 exec_hi, 0")
        a("ds_write_b128 v13, v[48:51] offset:3568")
        a("s_mov_b32 exec_hi, -1")
        if "dumpk" in self.ph:
            a("s_waitcnt lgkmcnt(0)")
            a("v_lshlrev_b32 v13, 4, v0")
            a("v_add_u32 v14, s52, v13")
            a("s_mul_i32 s67, s50, 4224")
            a("s_add_u32 s67, s67, %d" % WS_DBG)
            for i in range(5):
                a("ds_read_b128 v[20:23], v14 offset:%d" % (1024 * i))
                a("s_waitcnt lgkmcnt(0)")
                if i == 4: a("s_mov_b32 exec_hi, 0"); a("s_mov_b32 exec_lo, 0xff")
                a("s_add_u32 s68, s67, %d" % (1024 * i))
                a("buffer_store_dwordx4 v[20:23], v13, s[20:23], s68 offen")
                a("s_waitcnt vmcnt(0)")
            a("s_mov_b64 exec, -1")

    def u_look(self):
        a = self.a
        self.nonce_read(120)
        a("s_lshr_b32 s78, s50, 5")
        a("s_lshl_b32 s78, s78, 7")
        a("s_add_u32 s78, s78, %d" % WS_FU)
        a("v_and_b32 v120, 15, v0")
        a("v_lshlrev_b32 v120, 2, v120")
        a("buffer_load_dword v121, v120, s[20:23], s78 offen sc1")
    def u_prefetch(self):
        a = self.a
        l = self.newlab("uok")
        a("s_waitcnt vmcnt(0)")
        a("v_cmp_eq_u32 vcc, s64, v121")
        a("s_nop 1")
        a("s_cmp_eq_u64 vcc, -1")
        a("s_cbranch_scc1 %s" % l)
        self.poll_line("s78", 16, 120, sleep=4)
        a.lab(l)
        self.conv_loads()
        self.lds_inc(LDS_UOK, 152)

    def conv_loads(self):
        a = self.a
        a("s_mul_i32 s67, s50, %d" % ROWS)
        a("s_add_u32 s67, s67, %d" % (WS_UT - 4))
        a("v_lshlrev_b32 v1, 2, v0")
        for i in range(16):
            a("buffer_load_dwordx2 v[%d:%d], v1, s[20:23], s67 offen offset:%d sc1" % (120 + 2 * i, 121 + 2 * i, 256 * i))

    def conv(self):
        a = self.a
        D = 120
        a("s_mul_i32 s53, s66, %d" % UC_SZ)
        if LDS_UC: a("s_add_u32 s53, s53, %d" % LDS_UC)
        if not self.fused():
            a("s_mov_b32 m0, s53")
            a("v_mov_b32 v2, 0")
            for b in range(4):
                a("ds_write_addtid_b32 v2 offset:%d" % (b * UC_STRIDE))
                a("ds_write_addtid_b32 v2 offset:%d" % (b * UC_STRIDE + 33 * 4))
            a("v_cmp_eq_u32 vcc, 0, v0")
            a("s_waitcnt vmcnt(0)")
            a("v_cndmask_b32 v%d, v%d, v2, vcc" % (D, D))
            for i in range(16):
                lo, hi = D + 2 * i, D + 2 * i + 1
                o = 4 + (i % 4)
                a("v_alignbit_b32 v%d, v%d, v%d, 16" % (o, hi, lo))
                a("ds_write_addtid_b32 v%d offset:%d" % (hi, 3 * UC_STRIDE + 4 * (64 * i + 96)))
                a("ds_write_addtid_b32 v%d offset:%d" % (hi, 1 * UC_STRIDE + 4 * (64 * i + 97)))
                a("ds_write_addtid_b32 v%d offset:%d" % (o, 2 * UC_STRIDE + 4 * (64 * i + 96)))
                a("ds_write_addtid_b32 v%d offset:%d" % (o, 0 * UC_STRIDE + 4 * (64 * i + 97)))
        VU, VK = 8, 9
        a("v_and_b32 v4, 3, v0")
        a("v_mul_u32_u24 v4, %d, v4" % UC_STRIDE)
        a("v_bfe_u32 v5, v0, 2, 2")
        a("v_lshl_add_u32 v4, v5, 7, v4")
        a("v_lshrrev_b32 v5, 4, v0")
        a("v_lshl_add_u32 v4, v5, 4, v4")
        a("v_add_u32 v%d, s53, v4" % VU)
        a("v_and_b32 v6, 15, v0")
        a("v_lshlrev_b32 v7, 3, v6")
        a("v_sub_u32 v7, 120, v7")
        a("v_lshl_add_u32 v7, v5, 4, v7")
        a("v_add_u32 v%d, s52, v7" % VK)
        a("v_lshlrev_b32 v10, 3, v6")
        a("v_lshl_add_u32 v10, v5, 7, v10")
        ACC = 16; SETS = [48, 112]
        def reads(rho, S):
            L = []
            for z in range(8):
                L.append("ds_read_b128 v[%d:%d], v%d offset:%d" % (S + 4 * z, S + 4 * z + 3, VU, 512 * z + 64 * (7 - rho)))
                zz = 8 * z + rho
                L.append("ds_read_b64 v[%d:%d], v%d offset:%d" % (S + 32 + 4 * z, S + 33 + 4 * z, VK, 64 * (63 - zz)))
                L.append("ds_read_b64 v[%d:%d], v%d offset:%d" % (S + 34 + 4 * z, S + 35 + 4 * z, VK, 64 * (63 - zz) + 8))
            return L
        def mm(rho, S):
            L = []
            for ze in range(8):
                for nu in range(8 - ze):
                    n = ze + nu
                    c = "0" if (rho == 0 and ze == 0) else "v[%d:%d]" % (ACC + 4 * n, ACC + 4 * n + 3)
                    L.append("v_mfma_f32_16x16x32_bf16 v[%d:%d], v[%d:%d], v[%d:%d], %s" % (ACC + 4 * n, ACC + 4 * n + 3, S + 4 * nu, S + 4 * nu + 3, S + 32 + 4 * ze, S + 35 + 4 * ze, c))
            return L
        a("s_waitcnt lgkmcnt(0)")
        if self.fused(): self.lds_spin(LDS_UCOK, 12)
        self.stamp(4)
        a.ext(reads(0, SETS[0]))
        a("s_waitcnt lgkmcnt(0)")
        for rho in range(8):
            fill = reads(rho + 1, SETS[(rho + 1) & 1]) if rho < 7 else []
            a.ext(interleave(mm(rho, SETS[rho & 1]), fill, span=28))
            if rho < 7: a("s_waitcnt lgkmcnt(0)")
        self.stamp(7)
        a("s_mul_i32 s67, s50, %d" % ROWS)
        a("s_add_u32 s67, s67, %d" % WS_Y)
        a("s_nop 7")
        for n in range(8):
            o = 48 + 2 * n
            a("v_cvt_pk_bf16_f32 v%d, v%d, v%d" % (o, ACC + 4 * n, ACC + 4 * n + 1))
            a("v_cvt_pk_bf16_f32 v%d, v%d, v%d" % (o + 1, ACC + 4 * n + 2, ACC + 4 * n + 3))
            a("buffer_store_dwordx2 v[%d:%d], v10, s[20:23], s67 offen offset:%d sc1" % (o, o + 1, 512 * n))

    def s_ssm(self):
        a = self.a
        n = self.name
        a("s_sub_u32 s66, s3, 4")
        a("s_lshl_b32 s50, s66, 8")
        a("s_add_u32 s50, s50, s2")
        a("s_cmp_ge_u32 s66, 3")
        a("s_cbranch_scc1 %s_ssm_done" % n)
        if self.fused():
            l = self.newlab("nch")
            a("s_cmp_lt_u32 s50, 640")
            a("s_cbranch_scc1 %s" % l)
            a("s_branch %s_ssm_done" % n)
            a.lab(l)
        else:
            a("s_cmp_ge_u32 s50, 640")
            a("s_cbranch_scc1 %s_ssm_done" % n)
        if self.fused() and "g1" in self.ph:
            a("s_waitcnt vmcnt(0)")
        if "g1" not in self.ph:
            self.stamp(5)
            self.ssm_param_loads()
            self.kgen("all")
        elif "kghead" in self.ph:
            self.kgen("tail")
        else:
            self.kgen("rest")
        self.stamp(6)
        if not self.fused():
            self.conv_loads()
        self.conv()
        if "prioT" in self.ph or "prioT0" in self.ph: a("s_setprio 0")
        a("s_waitcnt vmcnt(0)")
        if self.fused():
            self.nonce_read(4)
            a("s_lshl_b32 s69, s50, 2")
            a("s_add_u32 s69, s69, %d" % WS_FY)
            self.flag_set("s69", 2)
        self.stamp(8)
        a.lab("%s_ssm_done" % n)

    G2_SETS = [80, 116, 152, 188]
    G2_VB, G2_VL, G2_VB8, G2_T, G2_VRS = 224, 228, 246, 230, 250

    def g2_setup(self):
        a = self.a
        VB, VL, VB8, T, VRS = self.G2_VB, self.G2_VL, self.G2_VB8, self.G2_T, self.G2_VRS
        a("v_mbcnt_lo_u32_b32 v%d, -1, 0" % T)
        a("v_mbcnt_hi_u32_b32 v%d, -1, v%d" % (T, T))
        a("v_lshlrev_b32 v%d, 4, v%d" % (VL, T))
        for tau in range(4):
            a("s_add_u32 s67, s3, %d" % tau)
            a("s_and_b32 s67, s67, 3")
            a("s_lshl_b32 s67, s67, 10")
            a("v_add_u32 v%d, s67, v%d" % (VB + tau, VL))
            a("v_lshlrev_b32 v%d, 3, v%d" % (VB8 + tau, T))
            a("v_add_u32 v%d, s67, v%d" % (VB8 + tau, VB8 + tau))
        a("s_mul_i32 s70, s6, 48")
        a("s_mul_i32 s67, s3, 12")
        a("s_add_u32 s70, s70, s67")
        a("s_lshl_b32 s70, s70, 12")
        if WS_H: a("s_add_u32 s70, s70, %d" % WS_H)
        a("s_mul_i32 s71, s7, 48")
        a("s_add_u32 s71, s71, s67")
        a("s_mul_i32 s71, s71, 5120")
        a("s_add_u32 s71, s71, %d" % WS_WD)
        a("s_add_u32 s72, s71, 4096")
        for tau in range(1, 4):
            a("s_add_u32 s67, s3, %d" % tau)
            a("s_and_b32 s67, s67, 3")
            a("s_mul_i32 s67, s67, 3")
            a("s_add_u32 s67, s67, %d" % (tau - 1))
            a("s_mul_i32 s67, s67, 5120")
            a("s_add_u32 s67, s67, %d" % LDS_RED)
            a("v_add_u32 v%d, s67, v%d" % (VRS + tau - 1, VL))
            a("s_mov_b32 s%d, s67" % (72 + tau))

    def g2_final_addrs(self):
        a = self.a
        T, VL = self.G2_T, self.G2_VL
        a("s_mul_i32 s67, s3, %d" % (3 * 5120))
        a("s_add_u32 s67, s67, %d" % LDS_RED)
        a("v_add_u32 v%d, s67, v%d" % (T + 1, VL))
        a("v_lshrrev_b32 v%d, 4, v%d" % (T + 2, T))
        a("v_and_b32 v%d, 15, v%d" % (T + 3, T))
        a("v_lshrrev_b32 v%d, 2, v%d" % (T + 4, T + 3))
        a("v_lshl_add_u32 v%d, v%d, 3, v%d" % (T + 5, T + 2, T + 4))
        a("v_lshl_add_u32 v%d, v%d, 2, v%d" % (T + 6, T + 2, T + 4))
        a("v_and_b32 v%d, 3, v%d" % (T + 7, T))
        a("v_lshlrev_b32 v%d, 3, v%d" % (T + 7, T + 7))
        a("s_lshl_b32 s67, s3, 5")
        a("s_add_u32 s67, s67, %d" % LDS_YT)
        a("v_add_u32 v%d, s67, v%d" % (T + 7, T + 7))
        a("v_lshl_add_u32 v%d, v%d, 7, v%d" % (T + 5, T + 5, T + 7))
        a("v_lshl_add_u32 v%d, v%d, 7, v%d" % (T + 6, T + 6, T + 7))
        a("s_lshl_b32 s67, s3, 6")
        a("s_add_u32 s67, s67, %d" % LDS_GT)
        a("v_lshl_add_u32 v%d, v%d, 2, s67" % (T + 8, T + 3))
        a("s_lshl_b32 s67, s6, 6")
        a("s_lshl_b32 s68, s3, 4")
        a("s_add_u32 s67, s67, s68")
        a("v_add_u32 v%d, s67, v%d" % (T + 9, T + 3))
        a("s_movk_i32 s68, 1280")
        a("v_mul_lo_u32 v%d, v%d, s68" % (T + 9, T + 9))
        a("s_mul_i32 s68, s7, 160")
        a("v_add_u32 v%d, s68, v%d" % (T + 9, T + 9))
        a("v_lshl_add_u32 v%d, v%d, 3, v%d" % (T + 10, T + 2, T + 9))
        a("v_lshl_add_u32 v%d, v%d, 4, v%d" % (T + 9, T + 2, T + 9))

    def g2_loadsA(self, S):
        VL = self.G2_VL
        L = []
        for dt in range(5):
            if dt < 4: L.append("buffer_load_dwordx4 v[%d:%d], v%d, s[20:23], s71 offen offset:%d sc1" % (S + 16 + 4 * dt, S + 19 + 4 * dt, VL, 1024 * dt))
            else: L.append(("buffer_load_dwordx4 v[%d:%d], v%d, s[20:23], s72 offen sc1" % (S + 16 + 4 * dt, S + 19 + 4 * dt, VL),
                            "s_add_u32 s71, s71, 5120", "s_add_u32 s72, s72, 5120"))
        return L

    def g2_burst_atoms(self):
        VL = self.G2_VL
        regl = []
        for k in range(4): regl += self.g2_loadsA(self.G2_SETS[k])
        dmal = []
        for tau in range(1, 4):
            dmal.append(("s_mov_b32 m0, s%d" % (72 + tau), "s_nop 0",
                         "buffer_load_dwordx4 v%d, s[20:23], s71 offen sc1 lds" % VL))
            for dt in range(1, 4):
                dmal.append("buffer_load_dwordx4 v%d, s[20:23], s71 offen offset:%d sc1 lds" % (VL, 1024 * dt))
            dmal.append(("s_add_u32 m0, s%d, 4096" % (72 + tau), "s_add_u32 s71, s71, 5120",
                         "buffer_load_dwordx4 v%d, s[20:23], s72 offen sc1 lds" % VL, "s_add_u32 s72, s72, 5120"))
        return regl, dmal

    def g_gemm2(self):
        a = self.a
        ACC = 0
        SETS = self.G2_SETS
        VB, VL, VB8, T, VRS = self.G2_VB, self.G2_VL, self.G2_VB8, self.G2_T, self.G2_VRS
        acc = lambda dt, tau: ACC + (dt * 4 + tau) * 4
        epb = "epb" in self.ph and "g1" in self.ph
        if not epb: self.g2_setup()
        loadsA = self.g2_loadsA
        def loadsB(S, k):
            L = []
            for tau in range(4):
                if k % 3 == 1:
                    x = ("buffer_load_dwordx2 v[%d:%d], v%d, s[20:23], s70 offen sc1" % (S + 4 * tau, S + 4 * tau + 1, VB8 + tau),
                         "buffer_load_dwordx2 v[%d:%d], v%d, s[20:23], s70 offen offset:512 sc1" % (S + 4 * tau + 2, S + 4 * tau + 3, VB8 + tau))
                else:
                    x = ("buffer_load_dwordx4 v[%d:%d], v%d, s[20:23], s70 offen sc1" % (S + 4 * tau, S + 4 * tau + 3, VB + tau),)
                L.append(x if tau < 3 else x + ("s_add_u32 s70, s70, 4096",))
            return L
        nB = lambda k: 8 if k % 3 == 1 else 4
        def mm(S, first):
            L = []
            for dt in range(5):
                for tau in range(4):
                    c = "0" if first else "v[%d:%d]" % (acc(dt, tau), acc(dt, tau) + 3)
                    L.append("v_mfma_f32_16x16x32_bf16 v[%d:%d], v[%d:%d], v[%d:%d], %s" % (acc(dt, tau), acc(dt, tau) + 3, S + 16 + 4 * dt, S + 19 + 4 * dt, S + 4 * tau, S + 4 * tau + 3, c))
            return L
        NS = 12
        pre = "g1" in self.ph and "nopre" not in self.ph
        VLOOK = 254
        if epb:
            if self.fused(): self.nonce_read(232)
            self.g_signal_h(0)
            if self.fused():
                a("s_lshr_b32 s79, s6, 1")
                a("s_lshl_b32 s79, s79, 7")
                a("s_lshl_b32 s67, s3, 4")
                a("s_add_u32 s79, s79, s67")
                a("s_add_u32 s79, s79, %d" % WS_FH)
                self.poll_line("s79", 4, VLOOK, sleep=3)
        elif "g1" in self.ph:
            if self.fused():
                self.nonce_read(232)
                a("v_mov_b32 v%d, 0" % VLOOK)
                l = self.newlab("lk"); l2 = self.newlab("lk")
                a("s_cmp_lg_u32 s3, 0")
                a("s_cbranch_scc1 %s" % l)
                a("s_lshl_b32 s79, s7, 8")
                a("s_add_u32 s79, s79, %d" % WS_FW)
                self.look_line("s79", 48, VLOOK)
                a("s_waitcnt vmcnt(1)")
                a("s_branch %s" % l2)
                a.lab(l)
                a("s_waitcnt vmcnt(0)")
                a.lab(l2)
                self.g_signal_h(None)
            else:
                self.g_signal_h(0)
        if pre and not epb:
            if self.fused():
                lo = self.newlab("ww"); ld = self.newlab("wd")
                a("s_cmp_lg_u32 s3, 0")
                a("s_cbranch_scc1 %s" % lo)
                self.lds_spin(LDS_SFREE, 232, 4)
                self.lds_spin(LDS_UOK, 232, 3)
                if "gapstamps" in self.ph: self.stamp(2, force=True)
                self.check_line("s79", VLOOK, 0)
                if "gapstamps" in self.ph: self.stamp(3, force=True)
                a("v_mov_b32 v232, %d" % LDS_WOK)
                a("v_mov_b32 v233, 1")
                a("ds_write_b32 v232, v233")
                if "hall" in self.ph:
                    a("s_lshr_b32 s79, s6, 1")
                    a("s_lshl_b32 s79, s79, 7")
                    a("s_add_u32 s79, s79, %d" % WS_FH)
                    self.look_line("s79", 16, VLOOK)
                a("s_branch %s" % ld)
                a.lab(lo)
                self.lds_spin(LDS_WOK, 232)
                a.lab(ld)
                if "hall" not in self.ph:
                    a("s_lshr_b32 s79, s6, 1")
                    a("s_lshl_b32 s79, s79, 7")
                    a("s_lshl_b32 s67, s3, 4")
                    a("s_add_u32 s79, s79, s67")
                    a("s_add_u32 s79, s79, %d" % WS_FH)
                    self.look_line("s79", 4, VLOOK)
            if "gapstamps" in self.ph: self.stamp(4, force=True)
            regl, dmal = self.g2_burst_atoms()
            a.ext(flat(regl)); a.ext(flat(dmal))
            if "gapstamps" in self.ph: self.stamp(5, force=True)
        fintrim = "fintrim" in self.ph
        if fintrim: self.g2_final_addrs()
        if not epb: self.g2_wait_inputs(looked=pre)
        if "gapstamps" in self.ph: self.stamp(6, force=True)
        self.stamp(5)
        self.clk(5)
        def srcA(k):
            if not pre: return "g"
            return "pre" if k < 4 else ("lds" if k < 7 else "g")
        def loadA_any(k):
            S = SETS[k % 4]
            if srcA(k) == "g": return loadsA(S)
            if srcA(k) == "lds":
                return ["ds_read_b128 v[%d:%d], v%d offset:%d" % (S + 16 + 4 * dt, S + 19 + 4 * dt, VRS + k - 4, 1024 * dt) for dt in range(5)]
            return []
        nL = lambda k: nB(k) + (5 if srcA(k) == "g" else 0)
        deep = "deepB" in self.ph and pre
        def M(S, dt, tau, first):
            c = "0" if first else "v[%d:%d]" % (acc(dt, tau), acc(dt, tau) + 3)
            return "v_mfma_f32_16x16x32_bf16 v[%d:%d], v[%d:%d], v[%d:%d], %s" % (acc(dt, tau), acc(dt, tau) + 3, S + 16 + 4 * dt, S + 19 + 4 * dt, S + 4 * tau, S + 4 * tau + 3, c)
        W = lambda dt, tau: "ds_write_b128 v%d, v[%d:%d] offset:%d" % (VRS + tau - 1, acc(dt, tau), acc(dt, tau) + 3, 1024 * dt)
        gk = 7 if "gok7" in self.ph else (6 if "gok6" in self.ph else NS - 4)
        if deep:
            vm = []
            def nvm(atoms): return sum(1 for x in flat(atoms) if x.startswith("buffer_"))
            def issue(tag, atoms): vm.extend([tag] * nvm(atoms))
            for k in range(4):
                L = loadsB(SETS[k], k); a.ext(flat(L)); issue(("B", k), L)
            for k in range(NS):
                S = SETS[k % 4]
                need = [i for i, t in enumerate(vm) if t in (("B", k), ("A", k))]
                rem = len(vm) - 1 - max(need)
                if srcA(k) == "lds": a("s_waitcnt vmcnt(%d) lgkmcnt(0)" % rem)
                else: a("s_waitcnt vmcnt(%d)" % rem)
                if "gapstamps" in self.ph and k == 0: self.stamp(7, force=True)
                LA = loadA_any(k + 3) if k + 3 < NS else []
                LB = loadsB(S, k + 4) if k + 4 < NS else []
                if k == NS - 1 and fintrim:
                    for dt in range(5): a(M(S, dt, 1, False))
                    for dt in range(5): a(M(S, dt, 2, False))
                    for dt in range(5): a(M(S, dt, 3, False)); a(W(dt, 1))
                    for dt in range(5): a(M(S, dt, 0, False)); a(W(dt, 2))
                    for dt in range(5): a(W(dt, 3))
                else:
                    ai = 0
                    for tau in range(4):
                        for dt in range(5):
                            a(M(S, dt, tau, k == 0))
                            if dt in (1, 3) and ai < len(LA):
                                a.ext(flat([LA[ai]]));
                                if nvm([LA[ai]]): issue(("A", k + 3), [LA[ai]])
                                ai += 1
                        if LB: a.ext(flat([LB[tau]])); issue(("B", k + 4), [LB[tau]])
                    while ai < len(LA):
                        a.ext(flat([LA[ai]]))
                        if nvm([LA[ai]]): issue(("A", k + 3), [LA[ai]])
                        ai += 1
                if k == gk and self.fused(): self.lds_inc(LDS_GOK, 232)
        else:
            for k in range(3):
                a.ext(flat(loadsB(SETS[k], k) + loadA_any(k)))
            for k in range(NS):
                rem = sum(nL(j) for j in range(k + 1, min(NS - 1, k + 2) + 1))
                if srcA(k) == "lds": a("s_waitcnt vmcnt(%d) lgkmcnt(0)" % rem)
                else: a("s_waitcnt vmcnt(%d)" % rem)
                fill = (loadsB(SETS[(k + 3) % 4], k + 3) + loadA_any(k + 3)) if k + 3 < NS else []
                if "k2stamps" in self.ph and k < 9: self.stamp(k + 1, force=True)
                if k == NS - 1 and fintrim:
                    S = SETS[k % 4]
                    for dt in range(5): a(M(S, dt, 1, False))
                    for dt in range(5): a(M(S, dt, 2, False))
                    for dt in range(5): a(M(S, dt, 3, False)); a(W(dt, 1))
                    for dt in range(5): a(M(S, dt, 0, False)); a(W(dt, 2))
                    for dt in range(5): a(W(dt, 3))
                else:
                    a.ext(interleave(mm(SETS[k % 4], k == 0), fill))
                if k == gk and self.fused(): self.lds_inc(LDS_GOK, 232)
        self.stamp(6)
        self.clk(7)
        if not fintrim:
            a("s_nop 7")
            for tau in range(1, 4):
                for dt in range(5):
                    a("ds_write_b128 v%d, v[%d:%d] offset:%d" % (VRS + tau - 1, acc(dt, tau), acc(dt, tau) + 3, 1024 * dt))
        a("s_waitcnt lgkmcnt(0)")
        a("s_barrier")
        self.stamp(7)
        if not fintrim: self.g2_final_addrs()
        R = 80
        for j in range(3):
            for dt in range(5):
                r = R + (j * 5 + dt) * 4
                a("ds_read_b128 v[%d:%d], v%d offset:%d" % (r, r + 3, T + 1, 5120 * j + 1024 * dt))
        Y = 140
        for dt in range(5):
            if dt < 4: a("ds_read_b64_tr_b16 v[%d:%d], v%d offset:%d" % (Y + 2 * dt, Y + 2 * dt + 1, T + 5, 128 * (32 * (dt >> 1) + 4 * (dt & 1))))
            else: a("ds_read_b64_tr_b16 v[%d:%d], v%d offset:%d" % (Y + 2 * dt, Y + 2 * dt + 1, T + 6, 128 * 64))
        a("ds_read_b32 v%d, v%d" % (T + 8, T + 8))
        a("s_waitcnt lgkmcnt(0)")
        for dt in range(5):
            for h in range(2):
                x = acc(dt, 0) + 2 * h
                p = [R + (j * 5 + dt) * 4 + 2 * h for j in range(3)]
                a("v_pk_add_f32 v[%d:%d], v[%d:%d], v[%d:%d]" % (p[0], p[0] + 1, p[0], p[0] + 1, p[1], p[1] + 1))
                a("v_pk_add_f32 v[%d:%d], v[%d:%d], v[%d:%d]" % (x, x + 1, x, x + 1, p[2], p[2] + 1))
        for dt in range(5):
            for h in range(2):
                x = acc(dt, 0) + 2 * h
                p = R + dt * 4 + 2 * h
                a("v_pk_add_f32 v[%d:%d], v[%d:%d], v[%d:%d]" % (x, x + 1, x, x + 1, p, p + 1))
        U = 150
        for dt in range(5):
            for h in range(2):
                a("v_lshlrev_b32 v%d, 16, v%d" % (U + 4 * dt + 2 * h, Y + 2 * dt + h))
                a("v_and_b32 v%d, 0xffff0000, v%d" % (U + 4 * dt + 2 * h + 1, Y + 2 * dt + h))
        G2 = T + 12
        assert G2 % 2 == 0
        a("v_mov_b32 v%d, v%d" % (G2, T + 8))
        a("v_mov_b32 v%d, v%d" % (G2 + 1, T + 8))
        for dt in range(5):
            for h in range(2):
                x = acc(dt, 0) + 2 * h; u = U + 4 * dt + 2 * h
                a("v_pk_add_f32 v[%d:%d], v[%d:%d], v[%d:%d] neg_lo:[0,1] neg_hi:[0,1]" % (u, u + 1, u, u + 1, x, x + 1))
        for dt in range(5):
            for h in range(2):
                x = acc(dt, 0) + 2 * h; u = U + 4 * dt + 2 * h
                a("v_pk_fma_f32 v[%d:%d], v[%d:%d], v[%d:%d], v[%d:%d]" % (x, x + 1, u, u + 1, G2, G2 + 1, x, x + 1))
        O = 176
        for dt in range(5):
            for h in range(2):
                x = acc(dt, 0) + 2 * h
                a("v_cvt_pk_bf16_f32 v%d, v%d, v%d" % (O + 2 * dt + h, x, x + 1))
        fl = " sc1" if "outsc1" in self.ph else (" nt" if "outnt" in self.ph else "")
        a("buffer_store_dwordx4 v[%d:%d], v%d, s[24:27], 0 offen%s" % (O, O + 3, T + 9, fl))
        a("buffer_store_dwordx4 v[%d:%d], v%d, s[24:27], 0 offen offset:64%s" % (O + 4, O + 7, T + 9, fl))
        a("buffer_store_dwordx2 v[%d:%d], v%d, s[24:27], 0 offen offset:128%s" % (O + 8, O + 9, T + 10, fl))
        self.stamp(8)

    def g2_wait_inputs(self, looked=False):
        if not self.fused(): return
        a = self.a
        T = 232
        if looked and "hall" not in self.ph:
            self.check_line("s79", 254, 35, sleep=4)
            return
        lo = self.newlab("hw"); ld = self.newlab("hd")
        a("s_cmp_lg_u32 s3, 0")
        a("s_cbranch_scc1 %s" % lo)
        if looked:
            self.check_line("s79", 254, 35)
        else:
            a("s_lshr_b32 s78, s6, 1")
            a("s_lshl_b32 s78, s78, 7")
            a("s_add_u32 s78, s78, %d" % WS_FH)
            self.poll_line("s78", 16, T, sleep=4)
        a("v_mov_b32 v%d, %d" % (T, LDS_HOK))
        a("v_mov_b32 v%d, 1" % (T + 1))
        a("ds_write_b32 v%d, v%d" % (T, T + 1))
        a("s_branch %s" % ld)
        a.lab(lo)
        self.lds_spin(LDS_HOK, T)
        a.lab(ld)

    def s_final(self):
        a = self.a
        n = self.name
        l = self.newlab("fin")
        a("s_cmp_lg_u32 s3, 7")
        a("s_cbranch_scc1 %s" % l)
        if self.fused(): self.lds_spin(LDS_GOK, 2, 4)
        self.y_wait_inputs()
        a("v_mbcnt_lo_u32_b32 v0, -1, 0")
        a("v_mbcnt_hi_u32_b32 v0, -1, v0")
        a("v_lshrrev_b32 v1, 3, v0")
        a("v_mul_u32_u24 v1, %d, v1" % ROWS)
        a("v_and_b32 v2, 7, v0")
        a("v_lshl_add_u32 v1, v2, 4, v1")
        a("s_mul_i32 s67, s7, %d" % (80 * ROWS))
        a("s_lshl_b32 s68, s6, 7")
        a("s_add_u32 s67, s67, s68")
        a("s_add_u32 s67, s67, %d" % WS_Y)
        for i in range(10):
            a("buffer_load_dwordx4 v[%d:%d], v1, s[20:23], s67 offen sc1" % (8 + 4 * i, 11 + 4 * i))
            if i < 9: a("s_add_u32 s67, s67, %d" % (8 * ROWS))
        a("s_lshl_b32 s67, s6, 8")
        a("s_add_u32 s67, s67, %d" % WS_G)
        a("v_lshlrev_b32 v3, 2, v0")
        a("buffer_load_dword v4, v3, s[20:23], s67 offen sc1")
        if self.fused() and "nonearly" not in self.ph: self.nonce_look()
        a("v_lshlrev_b32 v2, 4, v0")
        a("v_add_u32 v2, %d, v2" % LDS_YT)
        a("v_add_u32 v3, %d, v3" % LDS_GT)
        a("s_waitcnt vmcnt(0)")
        for i in range(10):
            a("ds_write_b128 v2, v[%d:%d] offset:%d" % (8 + 4 * i, 11 + 4 * i, 1024 * i))
        a("ds_write_b32 v3, v4")
        a("s_waitcnt lgkmcnt(0)")
        a("s_barrier")
        if self.fused() and "nonearly" not in self.ph: self.nonce_update(looked=True)
        a("s_branch %s_fd" % l)
        a.lab(l)
        a("s_barrier")
        a.lab("%s_fd" % l)

    def y_wait_inputs(self):
        if not self.fused(): return
        a = self.a
        a("v_mbcnt_lo_u32_b32 v0, -1, 0")
        a("v_mbcnt_hi_u32_b32 v0, -1, v0")
        a("s_mul_i32 s67, s7, 320")
        a("s_add_u32 s67, s67, %d" % WS_FY)
        a("v_lshl_add_u32 v1, v0, 2, s67")
        a("v_add_u32 v2, 256, v1")
        a("s_lshl_b32 s68, s6, 5")
        a("s_add_u32 s68, s68, %d" % (WS_FG - 64))
        a("v_lshl_add_u32 v3, v0, 2, s68")
        a("v_cmp_le_u32 vcc, 16, v0")
        a("s_nop 1")
        a("v_cndmask_b32 v2, v2, v3, vcc")
        a("v_subrev_u32 v3, 24, v0")
        a("v_lshlrev_b32 v3, 10, v3")
        a("s_lshl_b32 s68, s2, 2")
        a("s_add_u32 s68, s68, %d" % WS_FY)
        a("v_add_u32 v3, s68, v3")
        a("v_cmp_le_u32 vcc, 24, v0")
        a("s_nop 1")
        a("v_cndmask_b32 v2, v2, v3, vcc")
        a("s_cmp_lt_u32 s2, 128")
        a("s_cselect_b32 s68, 27, 26")
        a("v_mov_b32 v3, s67")
        a("v_cmp_le_u32 vcc, s68, v0")
        a("s_nop 1")
        a("v_cndmask_b32 v2, v2, v3, vcc")
        def loads():
            a("buffer_load_dword v4, v1, s[20:23], 0 offen sc1")
            a("buffer_load_dword v5, v2, s[20:23], 0 offen sc1")
        self.poll(loads, [4, 5], 6, sleep=8)

    def fused(self): return "fused" in self.ph

    def nonce_load(self):
        a = self.a
        if "snonce" in self.ph:
            a("s_add_u32 s68, s%d, %d" % (P_WS, WS_NON))
            a("s_addc_u32 s69, s%d, 0" % (P_WS + 1))
            a("s_load_dword s55, s[68:69], 0")
            return
        a("v_mov_b32 v1, 0")
        a("s_mov_b32 s67, %d" % WS_NON)
        a("buffer_load_dword v242, v1, s[20:23], s67 offen sc1")
    def nonce_publish_local(self):
        a = self.a
        if "snonce" in self.ph:
            a("s_waitcnt lgkmcnt(0)")
            a("s_add_u32 s64, s55, 1")
            a("v_mov_b32 v242, s64")
            a("v_mov_b32 v1, %d" % LDS_NONCE)
            a("ds_write_b32 v1, v242")
            return
        a("v_add_u32 v242, 1, v242")
        a("v_mov_b32 v1, %d" % LDS_NONCE)
        a("ds_write_b32 v1, v242")
        a("v_readfirstlane_b32 s64, v242")
    def nonce_look(self):
        a = self.a
        l = self.newlab("nl")
        a("v_mov_b32 v59, 0")
        a("s_cmp_lg_u32 s2, 0")
        a("s_cbranch_scc1 %s" % l)
        a("v_lshlrev_b32 v59, 4, v0")
        a("s_mov_b32 s78, %d" % WS_FG)
        a("buffer_load_dwordx4 v[60:63], v59, s[20:23], s78 offen sc1")
        a.lab(l)
    def nonce_update(self, looked=False):
        a = self.a
        l = self.newlab("nu"); l2 = self.newlab("nu")
        a("s_cmp_lg_u32 s2, 0")
        a("s_cbranch_scc1 %s" % l)
        if looked:
            for i in range(4):
                if i == 0: a("v_cmp_eq_u32 vcc, s64, v60")
                else:
                    a("v_cmp_eq_u32 s[76:77], s64, v%d" % (60 + i))
                    a("s_nop 1")
                    a("s_and_b64 vcc, vcc, s[76:77]")
            a("s_nop 1")
            a("s_cmp_eq_u64 vcc, -1")
            a("s_cbranch_scc1 %s" % l2)
        a("v_mbcnt_lo_u32_b32 v2, -1, 0")
        a("v_mbcnt_hi_u32_b32 v2, -1, v2")
        a("v_lshlrev_b32 v2, 4, v2")
        a("s_mov_b32 s78, %d" % WS_FG)
        self.poll(lambda: a("buffer_load_dwordx4 v[4:7], v2, s[20:23], s78 offen sc1"), [4, 5, 6, 7], 2, sleep=8)
        a.lab(l2)
        a("s_mov_b32 s69, %d" % WS_NON)
        self.flag_set("s69", 2)
        a.lab(l)

    def nonce_read(self, vt):
        a = self.a
        a("v_mov_b32 v%d, %d" % (vt, LDS_NONCE))
        a("ds_read_b32 v%d, v%d" % (vt, vt))
        a("s_waitcnt lgkmcnt(0)")
        a("v_readfirstlane_b32 s64, v%d" % vt)
        a("s_nop 1")

    def flag_set(self, soff_reg, vt):
        a = self.a
        a("v_mov_b32 v%d, s64" % vt)
        a("v_mov_b32 v%d, 0" % (vt + 1))
        a("s_mov_b64 exec, 1")
        a("buffer_store_dword v%d, v%d, s[20:23], %s offen sc1" % (vt, vt + 1, soff_reg))
        a("s_mov_b64 exec, -1")

    def poll(self, loads, vregs, vt, sleep=8):
        a = self.a
        lp = self.newlab("pl"); ld = self.newlab("pd")
        a("s_mov_b32 s69, 0")
        a.lab(lp)
        loads()
        a("s_waitcnt vmcnt(0)")
        for i, r in enumerate(vregs):
            if i == 0: a("v_cmp_eq_u32 vcc, s64, v%d" % r)
            else:
                a("v_cmp_eq_u32 s[76:77], s64, v%d" % r)
                a("s_nop 1")
                a("s_and_b64 vcc, vcc, s[76:77]")
        a("s_nop 1")
        a("s_cmp_eq_u64 vcc, -1")
        a("s_cbranch_scc1 %s" % ld)
        a("s_add_u32 s69, s69, 1")
        a("s_cmp_lt_u32 s69, 0x40000")
        a("s_cbranch_scc0 %s" % ld)
        a("s_sleep %d" % sleep)
        a("s_branch %s" % lp)
        a.lab(ld)

    def look_line(self, soff, nflags, vt):
        a = self.a
        a("v_mbcnt_lo_u32_b32 v%d, -1, 0" % vt)
        a("v_mbcnt_hi_u32_b32 v%d, -1, v%d" % (vt, vt))
        a("v_cmp_gt_u32 vcc, %d, v%d" % (nflags, vt))
        a("v_lshlrev_b32 v%d, 2, v%d" % (vt, vt))
        a("s_nop 0")
        a("v_cndmask_b32 v%d, 0, v%d, vcc" % (vt, vt))
        a("buffer_load_dword v%d, v%d, s[20:23], %s offen sc1" % (vt + 1, vt, soff))

    def check_line(self, soff, vt, nyounger, sleep=2):
        a = self.a
        l = self.newlab("ck")
        a("s_waitcnt vmcnt(%d)" % nyounger)
        a("v_cmp_eq_u32 vcc, s64, v%d" % (vt + 1))
        a("s_nop 1")
        a("s_cmp_eq_u64 vcc, -1")
        a("s_cbranch_scc1 %s" % l)
        self.poll(lambda: a("buffer_load_dword v%d, v%d, s[20:23], %s offen sc1" % (vt + 1, vt, soff)), [vt + 1], vt, sleep)
        a.lab(l)

    def poll_line(self, soff, nflags, vt, sleep=8):
        a = self.a
        a("v_mbcnt_lo_u32_b32 v%d, -1, 0" % vt)
        a("v_mbcnt_hi_u32_b32 v%d, -1, v%d" % (vt, vt))
        a("v_cmp_gt_u32 vcc, %d, v%d" % (nflags, vt))
        a("v_lshlrev_b32 v%d, 2, v%d" % (vt, vt))
        a("s_nop 0")
        a("v_cndmask_b32 v%d, 0, v%d, vcc" % (vt, vt))
        self.poll(lambda: a("buffer_load_dword v%d, v%d, s[20:23], %s offen sc1" % (vt + 1, vt, soff)), [vt + 1], vt, sleep)

    def build(self):
        a = self.a
        n = self.name
        a.l.append(".globl %s" % n)
        a.l.append(".p2align 8")
        a.l.append(".type %s,@function" % n)
        a.l.append("%s:" % n)
        self.prologue()
        a("s_cmp_ge_u32 s3, 4")
        a("s_cbranch_scc1 %s_S" % n)
        if "g1" in self.ph:
            self.g_gemm1()
        if "g2" in self.ph:
            self.g_gemm2()
        self.dbgtime_end()
        self.stamp_flush()
        a("s_endpgm")
        a.lab("%s_S" % n)
        if "g1" in self.ph:
            self.s_phase1()
        if "ssm" in self.ph:
            self.s_ssm()
        if "g2" in self.ph:
            self.s_final()
        self.stamp_flush()
        a.lab("%s_end" % n)
        a("s_endpgm")
        return a.text()

def kd(name):
    return """.amdhsa_kernel %s
  .amdhsa_next_free_vgpr 256
  .amdhsa_next_free_sgpr 102
  .amdhsa_accum_offset 256
  .amdhsa_group_segment_fixed_size 0
  .amdhsa_kernarg_size 136
  .amdhsa_user_sgpr_count 2
  .amdhsa_user_sgpr_kernarg_segment_ptr 1
  .amdhsa_system_sgpr_workgroup_id_x 1
.end_amdhsa_kernel
""" % name

HEADER = open("gated_mix__ssm_conv_s4__swiglu_ffn__prompt.s.ref").read().split("; Override launch")[0]

DOC = """;
;     by buffer_load ... lds, k order rotated per workgroup); epilogue h = silu(g) * u -> bf16, stored as MFMA B fragments in d_ws.
;     values = r + 16 j patterns, so exp factors into two small power tables (complex recurrences) contracted over the 192 modes
"""

def emit(kernels, path):
    txt = HEADER
    if len(kernels) == 1:
        txt += "; @launch grid=(256,1,1) block=(512,1,1) lds=%d\n" % LDS_TOTAL
    else:
        for (n, p, s) in kernels:
            txt += "; @launch kernel=%s grid=(256,1,1) block=(512,1,1) lds=%d\n" % (n, LDS_TOTAL)
    txt += DOC
    txt += '.amdgcn_target "amdgcn-amd-amdhsa--gfx950"\n.text\n'
    for (n, p, s) in kernels:
        txt += Gen(n, p, s).build()
    txt += '.section .rodata,"a"\n'
    for (n, p, s) in kernels:
        txt += ".p2align 6\n" + kd(n)
    open(path, "w").write(txt)

if __name__ == "__main__":
    mode = sys.argv[1]; path = sys.argv[2]
    stamps = len(sys.argv) > 3 and sys.argv[3] == "stamps"
    if mode.startswith("g1+") or mode == "g1":
        emit([(KNAME, set(mode.split("+")), stamps)], path)
    elif mode == "g1,ssm":
        emit([("ka_kernel", {"g1"}, False), ("kb_kernel", {"ssm", "dumpk"}, stamps)], path)
    elif mode == "3k":
        emit([("ka_kernel", {"g1"}, False), ("kb_kernel", {"ssm"}, False), ("kc_kernel", {"g2"}, stamps)], path)
    elif mode == "3k+1":
        emit([("ka_kernel", {"g1"}, False), ("kb_kernel", {"ssm"}, False), ("kc_kernel", {"g2"}, stamps), ("kd_kernel", set(), False)], path)
    elif mode == "3k+3":
        emit([("ka_kernel", {"g1"}, False), ("kb_kernel", {"ssm"}, False), ("kc_kernel", {"g2"}, stamps), ("kd_kernel", set(), False), ("ke_kernel", set(), False), ("kf_kernel", set(), False)], path)
    elif mode == "3k_dbg":
        emit([("ka_kernel", {"g1", "dbgtime"}, False), ("kb_kernel", {"ssm"}, False), ("kc_kernel", {"g2", "dbgtime"}, False)], path)
    elif mode == "fused":
        emit([(KNAME, {"g1", "ssm", "g2", "fused"}, stamps)], path)
    elif mode == "fused_notouch":
        emit([(KNAME, {"g1", "ssm", "g2", "fused", "notouch"}, stamps)], path)
    elif mode == "fused_pk":
        emit([(KNAME, {"g1", "ssm", "g2", "fused", "pkhead"}, stamps)], path)
    elif mode.startswith("F:"):
        emit([(KNAME, {"g1", "ssm", "g2", "fused"} | set(mode[2:].split("+")), stamps)], path)
    elif mode == "fused_dbg":
        emit([(KNAME, {"g1", "ssm", "g2", "fused", "dbgtime"}, stamps)], path)
    elif mode == "g1,ssm,nodump":
        emit([("ka_kernel", {"g1"}, False), ("kb_kernel", {"ssm"}, stamps)], path)
```

```python
import sys, math

KNAME = "gated_mix__ssm_conv_s4__swiglu_ffn__prompt_kernel"

WS_H    = 0x000000
WS_WD   = 0x600000
ROWS    = 4224
WS_UT   = 0x800000
WS_Y    = 0xB00000
WS_G    = 0xE00000
WS_FU   = 0xE10000
WS_FW   = 0xE15000
WS_FH   = 0xE11000
WS_FY   = 0xE12000
WS_NON  = 0xE13000
WS_FG   = 0xE14000
WS_TS   = 0xF00000
WS_DBG  = 0x1000000

STAGE   = 40960
ST_WG   = 16384
ST_WU   = 28672
LDS_S   = 3 * STAGE
TABROW  = 272
TABTILE = 16 * TABROW
TAB_SZ  = 2 * TABTILE
LDS_TAB = LDS_S
KR_SZ   = 4224
LDS_KR  = LDS_TAB + 3 * TAB_SZ
LDS_MISC = LDS_KR + 3 * KR_SZ
LDS_TOTAL = 163840
LDS_NONCE = LDS_MISC
LDS_CNT   = LDS_MISC + 8
UC_STRIDE = 4640
UC_SZ   = 4 * UC_STRIDE
LDS_UC  = 0
LDS_WDS_EARLY = 148992
LDS_RED = 57344
LDS_YT  = LDS_TAB
LDS_GT  = LDS_MISC + 64
LDS_HOK = LDS_MISC + 12
LDS_WOK = LDS_MISC + 16
LDS_UOK = LDS_MISC + 20
LDS_GOK = LDS_MISC + 24
LDS_UCOK = LDS_MISC + 28
LDS_SFREE = LDS_MISC + 32

class Asm:
    def __init__(self):
        self.l = []
    def __call__(self, s):
        for x in s.split("\n"):
            x = x.strip()
            if x: self.l.append("    " + x)
    def lab(self, s):
        self.l.append(s + ":")
    def ext(self, lst):
        for x in lst: self(x)
    def text(self):
        return "\n".join(self.l) + "\n"

def interleave(main, fill, start=0, span=None):
    out = []
    m = len(fill)
    n = len(main) if span is None else min(len(main), start + span)
    j = 0
    for i, x in enumerate(main):
        out.append(x)
        if i >= start:
            tgt = (m * (i - start + 1) + (n - start) - 1) // (n - start) if n > start else m
            while j < min(tgt, m):
                f = fill[j]
                if isinstance(f, tuple): out.extend(f)
                else: out.append(f)
                j += 1
    while j < m:
        f = fill[j]
        if isinstance(f, tuple): out.extend(f)
        else: out.append(f)
        j += 1
    return out

def flat(L):
    o = []
    for x in L:
        if isinstance(x, tuple): o.extend(x)
        else: o.append(x)
    return o

def vr(a, n=1):
    return "v%d" % a if n == 1 else "v[%d:%d]" % (a, a + n - 1)
def sr(a, n=1):
    return "s%d" % a if n == 1 else "s[%d:%d]" % (a, a + n - 1)

S_W, S_WAVE, S_M, S_N, S_M2, S_N2 = 2, 3, 4, 5, 6, 7
SRD_X, SRD_WG, SRD_WU, SRD_WS, SRD_OUT, SRD_WD = 8, 12, 16, 20, 24, 28
P_U, P_ARE, P_AIM, P_BRE, P_BIM, P_CRE, P_CIM, P_LDT = 32, 34, 36, 38, 40, 42, 44, 46
P_DSK, P_BX, P_WG, P_WU, P_WD, P_GW, P_OUT, P_DBG, P_WS = 48, 50, 52, 54, 56, 58, 60, 62, 64
S_TS = 80

class Gen:
    def __init__(self, name, phases, stamps=False):
        self.name = name
        self.ph = phases
        self.a = Asm()
        self.stamps = stamps
        self.nlab = 0
    def newlab(self, p):
        self.nlab += 1
        return "L_%s_%s_%d" % (self.name[:6], p, self.nlab)

    def capture(self, fn):
        old = self.a
        self.a = Asm()
        fn()
        lst = [x.strip() for x in self.a.l]
        self.a = old
        return lst

    def jitter(self):
        if "jitter" not in self.ph: return
        a = self.a
        l = self.newlab("jt"); d = self.newlab("jd")
        a("s_memtime s[90:91]")
        a("s_waitcnt lgkmcnt(0)")
        a("s_mul_i32 s90, s90, 0x9e3779b1")
        a("s_lshr_b32 s90, s90, 25")
        a("s_cmp_ge_u32 s90, 64")
        a("s_cbranch_scc1 %s" % d)
        a.lab(l)
        a("s_cmp_eq_u32 s90, 0")
        a("s_cbranch_scc1 %s" % d)
        a("s_sleep 2")
        a("s_sub_u32 s90, s90, 1")
        a("s_branch %s" % l)
        a.lab(d)

    def clk(self, i):
        if "clk" in self.ph and self.stamps:
            self.a("s_memrealtime s[%d:%d]" % (S_TS + 2 * i, S_TS + 2 * i + 1))
            self.a("s_memtime s[%d:%d]" % (S_TS + 2 * i + 2, S_TS + 2 * i + 3))
            self.a("s_waitcnt lgkmcnt(0)")

    def stamp(self, i, force=False):
        if "clk" in self.ph and i != 0: return
        if ("kstamps" in self.ph or "k2stamps" in self.ph or "ststamps" in self.ph or "gapstamps" in self.ph) and not force and i != 0: return
        if self.stamps:
            self.a("%s s[%d:%d]" % ("s_memrealtime" if "rt" in self.ph else "s_memtime", S_TS + 2 * i, S_TS + 2 * i + 1))
            self.a("s_waitcnt lgkmcnt(0)")
    def stamp_flush(self):
        if not self.stamps: return
        a = self.a
        a("s_lshl_b32 s66, s2, 3")
        a("s_add_u32 s66, s66, s3")
        a("s_lshl_b32 s66, s66, 7")
        a("s_add_u32 s66, s66, 0x%x" % WS_TS)
        a("v_mov_b32 v250, 0")
        for i in range(10):
            a("v_mov_b32 v252, s%d" % (S_TS + 2 * i))
            a("v_mov_b32 v253, s%d" % (S_TS + 2 * i + 1))
            a("buffer_store_dwordx2 v[252:253], v250, s[20:23], s66 offen offset:%d" % (8 * i))
            a("s_nop 1")
        a("s_waitcnt vmcnt(0)")

    def prologue(self):
        a = self.a
        a("s_cmp_ge_u32 s2, 256")
        a("s_cbranch_scc1 %s_end" % self.name)
        a("s_load_dwordx16 s[32:47], s[0:1], 0")
        a("s_load_dwordx16 s[48:63], s[0:1], 64")
        a("s_load_dwordx2 s[64:65], s[0:1], 128")
        if "warmc0" in self.ph: self.warm_code(early=True)
        a("v_lshrrev_b32 v1, 6, v0")
        a("v_and_b32 v0, 63, v0")
        a("v_readfirstlane_b32 s3, v1")
        a("s_and_b32 s66, s2, 7")
        a("s_lshr_b32 s67, s2, 3")
        a("s_and_b32 s68, s67, 7")
        a("s_lshr_b32 s69, s67, 3")
        a("s_and_b32 s70, s66, 1")
        a("s_lshl_b32 s70, s70, 3")
        a("s_or_b32 s4, s70, s68")
        a("s_lshr_b32 s70, s66, 1")
        a("s_lshl_b32 s70, s70, 2")
        a("s_or_b32 s5, s70, s69")
        a("s_and_b32 s70, s66, 3")
        a("s_lshl_b32 s70, s70, 3")
        a("s_or_b32 s6, s70, s68")
        a("s_lshr_b32 s70, s66, 2")
        a("s_lshl_b32 s70, s70, 2")
        a("s_or_b32 s7, s70, s69")
        if "sametile" in self.ph:
            a("s_mov_b32 s4, 0"); a("s_mov_b32 s5, 0")
        if "samem" in self.ph:
            a("s_mov_b32 s4, 0")
        if "samen" in self.ph:
            a("s_mov_b32 s5, 0")
        if self.stamps:
            for i in range(10):
                a("s_mov_b64 s[%d:%d], 0" % (S_TS + 2 * i, S_TS + 2 * i + 1))
        a("s_waitcnt lgkmcnt(0)")
        def srd(base, ptr, size):
            a("s_mov_b32 s%d, s%d" % (base, ptr))
            a("s_and_b32 s%d, s%d, 0xffff" % (base + 1, ptr + 1))
            a("s_mov_b32 s%d, 0x%x" % (base + 2, size))
            a("s_mov_b32 s%d, 0x20000" % (base + 3))
        srd(SRD_X, P_U, 2048 * 640 * 2)
        srd(SRD_WG, P_WG, 640 * 1536 * 2)
        srd(SRD_WU, P_WU, 640 * 1536 * 2)
        srd(SRD_WS, P_WS, 0x10000000)
        srd(SRD_OUT, P_OUT, 2048 * 640 * 2)
        srd(SRD_WD, P_WD, 640 * 1536 * 2)
        self.stamp(0)
        if "dbgtime" in self.ph:
            a("s_memrealtime s[96:97]")
            a("s_memtime s[98:99]")
            a("s_mov_b64 s[100:101], s[62:63]")
            a("s_waitcnt lgkmcnt(0)")

    def dbgtime_end(self):
        a = self.a
        if "dbgtime" not in self.ph: return
        l = self.newlab("dbt")
        a("s_cmp_lg_u32 s2, 0"); a("s_cbranch_scc1 %s" % l)
        a("s_cmp_lg_u32 s3, 0"); a("s_cbranch_scc1 %s" % l)
        a("s_waitcnt vmcnt(0)")
        a("s_memrealtime s[92:93]")
        a("s_memtime s[94:95]")
        a("s_waitcnt lgkmcnt(0)")
        a("s_sub_u32 s92, s92, s96")
        a("s_sub_u32 s94, s94, s98")
        a("v_mov_b32 v250, 0")
        a("v_mov_b32 v252, s92")
        a("v_mov_b32 v253, s94")
        a("v_mov_b32 v254, s96")
        a("v_mov_b32 v255, 0x1234")
        a("global_store_dwordx4 v250, v[252:255], s[100:101]")
        a("s_waitcnt vmcnt(0)")
        a.lab(l)

    def rot_r(self, dst, tmp):
        a = self.a
        if "norot" in self.ph:
            a("s_mov_b32 %s, 0" % dst)
            return
        a("s_lshr_b32 %s, s5, 1" % dst)
        a("s_cmp_ge_u32 %s, 5" % dst)
        a("s_cselect_b32 %s, 1, 0" % tmp)
        a("s_cmp_ge_u32 %s, 1" % dst)
        a("s_addc_u32 %s, %s, %s" % (dst, dst, tmp))

    def g_gemm1(self):
        a = self.a
        ACC = 0; FP = 96; FQ = 136
        VXB = 176
        VWA = 182
        VL16 = 196
        T = 200
        accg = lambda ft, tt: ACC + (ft * 4 + tt) * 4
        accu = lambda ft, tt: ACC + 48 + (ft * 4 + tt) * 4
        LANE = 197
        a("v_mov_b32 v%d, v0" % LANE)
        a("s_and_b32 s67, s3, 1")
        a("s_lshr_b32 s68, s3, 1")
        VOX = 191
        a("v_lshrrev_b32 v%d, 3, v%d" % (T, LANE))
        a("s_lshl_b32 s69, s4, 7")
        a("s_lshl_b32 s70, s3, 5")
        a("s_add_u32 s69, s69, s70")
        a("v_add_u32 v%d, s69, v%d" % (T, T))
        a("s_movk_i32 s70, 1280")
        a("v_mul_lo_u32 v%d, v%d, s70" % (T, T))
        a("v_and_b32 v%d, 7, v%d" % (T + 1, LANE))
        a("v_lshrrev_b32 v%d, 4, v%d" % (T + 2, LANE))
        a("v_xor_b32 v%d, v%d, v%d" % (T + 3, T + 1, T + 2))
        a("v_xor_b32 v%d, 4, v%d" % (T + 4, T + 3))
        a("v_lshl_add_u32 v%d, v%d, 4, v%d" % (VOX, T + 3, T))
        a("v_lshl_add_u32 v%d, v%d, 4, v%d" % (VOX + 1, T + 4, T))
        a("s_lshl_b32 s75, s3, 12")
        VOW = 193
        a("s_mul_i32 s76, s3, 3072")
        a("s_add_u32 s77, s76, %d" % ST_WU)
        a("s_add_u32 s76, s76, %d" % ST_WG)
        self.rot_r("s74", "s72")
        def xdma(st):
            base = (st % 3) * STAGE
            L = []
            for i in range(4):
                if i == 0:
                    L.append(("s_lshl_b32 s72, s74, 7", "s_mul_i32 s73, s74, 196608", "s_add_u32 s74, s74, 1",
                              "s_add_u32 m0, s75, %d" % base, "s_cmp_eq_u32 s74, 10", "s_cselect_b32 s74, 0, s74",
                              "buffer_load_dwordx4 v%d, s[8:11], s72 offen lds" % VOX))
                else:
                    L.append(("s_add_u32 s70, s72, %d" % (9216 * i),
                              "buffer_load_dwordx4 v%d, s[8:11], s70 offen offset:%d lds" % (VOX + (i & 1), 1024 * i)))
            for mat, sm, srd in (() if "s3w" in self.ph else ((0, 76, "s[12:15]"), (1, 77, "s[16:19]"))):
                for i in range(3):
                    ld = "buffer_load_dwordx4 v%d, %s, s73 offen offset:%d lds" % (VOW + i, srd, 1024 * i)
                    if mat == 1 and "nowu" in self.ph: ld = "s_nop 0"
                    if i == 2 and "now2" in self.ph: ld = "s_nop 0"
                    if i == 0: L.append(("s_add_u32 m0, s%d, %d" % (sm, base), "s_nop 0", ld))
                    else: L.append(ld)
            return L
        if "ststamps" in self.ph: self.stamp(1, force=True)
        def wcalc():
            a("s_lshl_b32 s69, s3, 4")
            a("s_mul_i32 s69, s69, 3072")
            a("s_mul_i32 s70, s5, 192")
            a("s_add_u32 s69, s69, s70")
            a("s_mov_b32 s70, 43691")
            a("s_movk_i32 s71, 3072")
            for i in range(3):
                a("v_add_u32 v%d, %d, v%d" % (T, 64 * i, LANE))
                a("v_mul_lo_u32 v%d, v%d, s70" % (T + 1, T))
                a("v_lshrrev_b32 v%d, 19, v%d" % (T + 1, T + 1))
                a("v_mul_u32_u24 v%d, 12, v%d" % (T + 2, T + 1))
                a("v_sub_u32 v%d, v%d, v%d" % (T + 2, T, T + 2))
                a("v_lshrrev_b32 v%d, 2, v%d" % (T + 3, T + 1))
                a("v_and_b32 v%d, 2, v%d" % (T + 3, T + 3))
                a("v_xor_b32 v%d, v%d, v%d" % (T + 2, T + 2, T + 3))
                a("v_mul_lo_u32 v%d, v%d, s71" % (T + 1, T + 1))
                a("v_lshl_add_u32 v%d, v%d, 4, v%d" % (T + 1, T + 2, T + 1))
                a("v_add_u32 v%d, s69, v%d" % (T + 1, T + 1))
                a("v_subrev_u32 v%d, %d, v%d" % (VOW + i, 1024 * i, T + 1))

        d0 = xdma(0)
        a.ext(flat(d0[:4]))
        wcalc()
        a.ext(flat(d0[4:]))
        if "late1" not in self.ph: a.ext(flat(xdma(1)))
        if "ststamps" in self.ph: self.stamp(2, force=True)
        if "nobpre" not in self.ph: a("s_barrier")
        a("v_and_b32 v%d, 15, v%d" % (T, LANE))
        a("v_lshrrev_b32 v%d, 4, v%d" % (T + 1, LANE))
        a("s_lshl_b32 s69, s67, 6")
        a("v_add_u32 v%d, s69, v%d" % (T + 2, T))
        a("v_lshlrev_b32 v%d, 7, v%d" % (T + 2, T + 2))
        a("v_lshrrev_b32 v%d, 1, v%d" % (T + 3, T))
        a("v_and_b32 v%d, 7, v%d" % (T + 3, T + 3))
        a("v_xor_b32 v%d, v%d, v%d" % (T + 3, T + 3, T + 1))
        a("v_xor_b32 v%d, 4, v%d" % (T + 4, T + 3))
        a("v_lshl_add_u32 v%d, v%d, 4, v%d" % (VXB, T + 3, T + 2))
        a("v_lshl_add_u32 v%d, v%d, 4, v%d" % (VXB + 1, T + 4, T + 2))
        for st in (1, 2):
            for s in range(2):
                a("v_add_u32 v%d, %d, v%d" % (VXB + 2 * st + s, st * STAGE, VXB + s))
        a("v_lshrrev_b32 v%d, 2, v%d" % (T + 2, T))
        a("v_lshl_add_u32 v%d, v%d, 3, v%d" % (T + 2, T + 1, T + 2))
        a("v_mul_u32_u24 v%d, 192, v%d" % (T + 2, T + 2))
        a("v_and_b32 v%d, 3, v%d" % (T + 3, LANE))
        a("v_lshl_add_u32 v%d, v%d, 3, v%d" % (T + 2, T + 3, T + 2))
        a("v_add_u32 v%d, %d, v%d" % (T + 2, ST_WG, T + 2))
        a("v_and_b32 v%d, 1, v%d" % (T + 3, T + 1))
        a("s_lshl_b32 s69, s68, 2")
        a("s_add_u32 s78, s69, 1")
        a("s_add_u32 s79, s68, 2")
        for ft, sreg in ((0, 69), (1, 78), (2, 79)):
            a("v_xor_b32 v%d, s%d, v%d" % (T + 4, sreg, T + 3))
            a("v_lshl_add_u32 v%d, v%d, 5, v%d" % (VWA + ft, T + 4, T + 2))
        for st in (1, 2):
            for ft in range(3):
                a("v_add_u32 v%d, %d, v%d" % (VWA + 3 * st + ft, st * STAGE, VWA + ft))
        a("v_lshlrev_b32 v%d, 4, v%d" % (VL16, LANE))
        a("s_lshl_b32 s69, s4, 1")
        a("s_add_u32 s69, s69, s67")
        a("s_mul_i32 s69, s69, 48")
        a("s_mul_i32 s78, s5, 3")
        a("s_add_u32 s69, s69, s78")
        a("s_lshl_b32 s78, s68, 1")
        a("s_add_u32 s78, s78, s69")
        a("s_lshl_b32 s78, s78, 12")
        a("s_add_u32 s79, s69, 1")
        a("s_lshl_b32 s79, s79, 12")
        a("s_lshl_b32 s69, s68, 9")
        a("s_add_u32 s79, s79, s69")
        a("v_lshlrev_b32 v%d, 3, v%d" % (VL16 + 2, LANE))
        if WS_H:
            a("s_add_u32 s78, s78, %d" % WS_H); a("s_add_u32 s79, s79, %d" % WS_H)

        def reads(kk, s, F):
            st = kk % 3
            xs = ["ds_read_b128 v[%d:%d], v%d offset:%d" % (F + 4 * tt, F + 4 * tt + 3, VXB + 2 * st + s, 2048 * tt) for tt in range(4)]
            ws = []
            for mat in range(2):
                for ft in range(3):
                    r = F + 16 + (mat * 3 + ft) * 4
                    for h in range(2):
                        ws.append("ds_read_b64_tr_b16 v[%d:%d], v%d offset:%d" % (r + 2 * h, r + 2 * h + 1, VWA + 3 * st + ft, 12288 * mat + 6144 * s + 768 * h))
            order = [xs[0], ws[0], ws[1], xs[1], ws[6], ws[7], xs[2], xs[3]] + ws[2:6] + ws[8:]
            return order
        def mfmas(F, first):
            L = []
            for ft in range(3):
                for mat in range(2):
                    for tt in range(4):
                        acc = accg(ft, tt) if mat == 0 else accu(ft, tt)
                        A = F + 16 + (mat * 3 + ft) * 4
                        B = F + 4 * tt
                        c = "0" if first else "v[%d:%d]" % (acc, acc + 3)
                        L.append("v_mfma_f32_16x16x32_bf16 v[%d:%d], v[%d:%d], v[%d:%d], %s" % (acc, acc + 3, A, A + 3, B, B + 3, c))
            return L
        def spread(mm, d, first, step):
            out = []; cnt = 0; di = 0
            for x in mm:
                out.append(x)
                if x.startswith("v_mfma"):
                    cnt += 1
                    if cnt >= first and (cnt - first) % step == 0 and di < len(d):
                        f = d[di]; di += 1
                        out.extend(f if isinstance(f, tuple) else (f,))
            assert di == len(d), (di, len(d))
            return out
        self.stamp(5)
        ND = 4 if "s3w" in self.ph else (7 if "nowu" in self.ph else (8 if "now2" in self.ph else 10))
        a("s_waitcnt vmcnt(%d)" % (0 if "late1" in self.ph else ND))
        if "ststamps" in self.ph: self.stamp(3, force=True)
        a("s_barrier")
        if "ststamps" in self.ph: self.stamp(4, force=True)
        if "late1" in self.ph: a.ext(flat(xdma(1)))
        self.stamp(1)
        self.clk(1)
        a.ext(reads(0, 0, FP))
        a("s_waitcnt lgkmcnt(0)")
        pend = xdma(2)
        for kk in range(10):
            mm = interleave(mfmas(FP, kk == 0), reads(kk, 1, FQ), span=16)
            if pend: mm = spread(mm, pend, 2, (10 if len(pend) <= 2 else 5) if len(pend) <= 5 else 2)
            a.ext(mm)
            if kk <= 7: a("s_waitcnt vmcnt(%d) lgkmcnt(0)" % ND)
            elif kk == 8: a("s_waitcnt vmcnt(0) lgkmcnt(0)")
            else: a("s_waitcnt lgkmcnt(0)")
            if kk == 9 and self.fused(): self.lds_inc(LDS_SFREE, T)
            else: a("s_barrier")
            if "kstamps" in self.ph and kk < 9: self.stamp(kk + 1, force=True)
            if "ststamps" in self.ph and kk < 5: self.stamp(kk + 5, force=True)
            fill = reads(kk + 1, 0, FP) if kk + 1 < 10 else []
            mm = interleave(mfmas(FQ, False), fill, span=16)
            d = xdma(kk + 3) if kk + 3 < 10 else []
            if "dmaB" in self.ph:
                pend = []
                if d: mm = spread(mm, d, 2, 2)
            elif "dma73" in self.ph:
                pend = d[7:]
                if d: mm = spread(mm, d[:7], 2, 3)
            elif "s3w" in self.ph:
                pend = d[2:]
                if d: mm = spread(mm, d[:2], 4, 10)
            else:
                pend = d[5:]
                if d: mm = spread(mm, d[:5], 2, 5)
            a.ext(mm)
            if kk + 1 < 10:
                a("s_waitcnt lgkmcnt(0)")
        self.stamp(2)
        self.clk(3)
        self.jitter()
        epb = "epb" in self.ph and "g2" in self.ph
        if epb: CN, ONE, OUTB, TMPB, TMPS = 200, 202, 116, 152, 8
        else: CN, ONE, OUTB, TMPB, TMPS = FP, FP + 2, FP + 8, FQ, 16
        E = []
        E.append("v_mov_b32 v%d, 0xbfb8aa3b" % CN)
        E.append("v_mov_b32 v%d, 0xbfb8aa3b" % (CN + 1))
        E.append("v_mov_b32 v%d, 1.0" % ONE)
        E.append("v_mov_b32 v%d, 1.0" % (ONE + 1))
        grp = 0
        def silu(gregs, uregs, tmp, out):
            n = len(gregs)
            L = []
            for i in range(n): L.append("v_pk_mul_f32 v[%d:%d], v[%d:%d], v[%d:%d]" % (tmp + 2 * i, tmp + 2 * i + 1, gregs[i], gregs[i] + 1, CN, CN + 1))
            for i in range(2 * n): L.append("v_exp_f32 v%d, v%d" % (tmp + i, tmp + i))
            for i in range(n): L.append("v_pk_mul_f32 v[%d:%d], v[%d:%d], v[%d:%d]" % (gregs[i], gregs[i] + 1, gregs[i], gregs[i] + 1, uregs[i], uregs[i] + 1))
            for i in range(n): L.append("v_pk_add_f32 v[%d:%d], v[%d:%d], v[%d:%d]" % (tmp + 2 * i, tmp + 2 * i + 1, tmp + 2 * i, tmp + 2 * i + 1, ONE, ONE + 1))
            for i in range(2 * n): L.append("v_rcp_f32 v%d, v%d" % (tmp + i, tmp + i))
            if n < 2: L.append("s_nop 0")
            for i in range(n): L.append("v_pk_mul_f32 v[%d:%d], v[%d:%d], v[%d:%d]" % (gregs[i], gregs[i] + 1, gregs[i], gregs[i] + 1, tmp + 2 * i, tmp + 2 * i + 1))
            for i in range(n): L.append("v_cvt_pk_bf16_f32 v%d, v%d, v%d" % (out + i, gregs[i], gregs[i] + 1))
            return L
        for tt in range(4):
            tmp = TMPB + (grp % 2) * TMPS; out = OUTB + (grp % 4) * 4; grp += 1
            g = [accg(0, tt), accg(0, tt) + 2, accg(1, tt), accg(1, tt) + 2]
            u = [accu(0, tt), accu(0, tt) + 2, accu(1, tt), accu(1, tt) + 2]
            E += silu(g, u, tmp, out)
            E.append("buffer_store_dwordx4 v[%d:%d], v%d, s[20:23], s78 offen offset:%d sc1" % (out, out + 3, VL16, 1024 * tt))
            tmp = TMPB + (grp % 2) * TMPS; out = OUTB + (grp % 4) * 4; grp += 1
            g = [accg(2, tt), accg(2, tt) + 2]
            u = [accu(2, tt), accu(2, tt) + 2]
            E += silu(g, u, tmp, out)
            E.append("buffer_store_dwordx2 v[%d:%d], v%d, s[20:23], s79 offen offset:%d sc1" % (out, out + 1, VL16 + 2, 1024 * tt))
        if epb:
            self.g2_setup()
            if self.fused(): self.lds_spin(LDS_WOK, 232, treg="s80x")
            regl, dmal = self.g2_burst_atoms()
            half = len(E) // 2
            a.ext(interleave(E[:half], regl, start=4))
            if self.fused(): self.lds_spin(LDS_SFREE, 232, 4, treg="s80x")
            a.ext(interleave(E[half:], dmal))
        else:
            a.ext(E)
        self.stamp(3)
        if "g2" not in self.ph:
            a("s_waitcnt vmcnt(0)")
            self.stamp(4)

    def g_signal_h(self, nyounger):
        a = self.a
        self.jitter()
        T = 232
        if nyounger is not None: a("s_waitcnt vmcnt(%d)" % nyounger)
        if self.fused():
            l = self.newlab("fh")
            a("v_mov_b32 v%d, %d" % (T, LDS_CNT))
            a("v_mov_b32 v%d, 1" % (T + 1))
            a("s_mov_b64 exec, 1")
            a("ds_add_rtn_u32 v%d, v%d, v%d" % (T + 2, T, T + 1))
            a("s_waitcnt lgkmcnt(0)")
            a("s_mov_b64 exec, -1")
            a("v_readfirstlane_b32 s69, v%d" % (T + 2))
            a("s_nop 1")
            a("s_cmp_lg_u32 s69, 3")
            a("s_cbranch_scc1 %s" % l)
            a("s_lshl_b32 s69, s4, 5")
            a("s_add_u32 s69, s69, s5")
            a("s_lshl_b32 s69, s69, 2")
            a("s_add_u32 s69, s69, %d" % WS_FH)
            self.flag_set("s69", T)
            a.lab(l)
        self.stamp(4)
        if "gapstamps" in self.ph: self.stamp(1, force=True)

    def lds_inc(self, addr, vt):
        a = self.a
        a("v_mov_b32 v%d, %d" % (vt, addr))
        a("v_mov_b32 v%d, 1" % (vt + 1))
        a("s_mov_b64 exec, 1")
        a("ds_add_u32 v%d, v%d" % (vt, vt + 1))
        a("s_mov_b64 exec, -1")

    def lds_spin(self, addr, vt, val=1, treg=None):
        a = self.a
        st = "s78" if treg is None else "s68"
        lp = self.newlab("ls"); ld = self.newlab("ld")
        a("v_mov_b32 v%d, %d" % (vt, addr))
        a("s_mov_b32 s69, 0")
        a.lab(lp)
        a("ds_read_b32 v%d, v%d" % (vt + 1, vt))
        a("s_waitcnt lgkmcnt(0)")
        a("v_readfirstlane_b32 %s, v%d" % (st, vt + 1))
        a("s_nop 1")
        a("s_cmp_eq_u32 %s, %d" % (st, val))
        a("s_cbranch_scc1 %s" % ld)
        a("s_add_u32 s69, s69, 1")
        a("s_cmp_lt_u32 s69, 0x400000")
        a("s_cbranch_scc0 %s" % ld)
        a("s_sleep 1")
        a("s_branch %s" % lp)
        a.lab(ld)

    def s_kgen_phase1(self):
        a = self.a
        NCH = 8
        chunks = [[] for _ in range(NCH)]
        if "ssm" in self.ph:
            a("s_lshl_b32 s50, s66, 8")
            a("s_add_u32 s50, s50, s2")
            a("s_min_u32 s50, s50, 639")
            self.kgen_bases()
            if "kghead" in self.ph:
                kg = self.capture(lambda: self.kgen("head"))
                if "bigI0" in self.ph:
                    first = min(len(kg), 140 if "I0s" in self.ph else 230)
                    rest = kg[first:]
                    per = (len(rest) + NCH - 1) // NCH
                    chunk0 = kg[:first]
                    chunks = [rest[i * per:(i + 1) * per] for i in range(NCH)]
                else:
                    per = (len(kg) + NCH - 1) // NCH
                    chunks = [kg[i * per:(i + 1) * per] for i in range(NCH)]
        self.stamp(5)
        if "prioS" in self.ph: a("s_setprio 2")
        if "nobpre" not in self.ph: a("s_barrier")
        pw = "pwarm" in self.ph
        if "ssm" in self.ph and pw: self.ssm_param_warm()
        if "ssm" in self.ph and "kghead" in self.ph and not pw: self.ssm_param_loads(slots=((0, 1) if "kg2" in self.ph else (0,)))
        if "ssm" in self.ph and "pw12" in self.ph:
            a("s_mul_i32 s67, s50, 384")
            for p in (P_ARE, P_AIM, P_BRE, P_BIM, P_CRE, P_CIM):
                a("s_add_u32 s68, s%d, s67" % p)
                a("s_addc_u32 s69, s%d, 0" % (p + 1))
                a("s_load_dword s70, s[68:69], 128")
                a("s_load_dword s70, s[68:69], 256")
        a("s_barrier")
        if "ssm" in self.ph and pw:
            a("s_waitcnt lgkmcnt(0)")
            self.ssm_param_loads()
        self.stamp(1)
        if "bigI0" in self.ph and "kghead" in self.ph:
            a("s_waitcnt vmcnt(0)")
            a.ext(chunk0)
        for kk in range(10):
            if not (kk == 9 and self.fused()): a("s_barrier")
            if kk == 1 and "kghead" in self.ph and "bigI0" not in self.ph: a("s_waitcnt vmcnt(0)")
            if kk == 7 and "ssm" in self.ph and not pw:
                if "kghead" in self.ph: self.ssm_param_loads(slots=((2,) if "kg2" in self.ph else (1, 2)), scalars=False)
                else: self.ssm_param_loads()
            if "bigI0" in self.ph:
                if kk < NCH: a.ext(chunks[kk])
            elif 1 <= kk <= NCH: a.ext(chunks[kk - 1])
        self.stamp(2)

    def side_setup(self):
        a = self.a
        a("s_mov_b32 s67, 52429")
        a("s_movk_i32 s68, 1280")
        for i in range(5):
            a("v_add_u32 v1, %d, v0" % (64 * i))
            a("v_mul_lo_u32 v2, v1, s67")
            a("v_lshrrev_b32 v2, 19, v2")
            a("v_mul_u32_u24 v3, 10, v2")
            a("v_sub_u32 v3, v1, v3")
            a("v_mul_lo_u32 v2, v2, s68")
            a("v_lshl_add_u32 v%d, v3, 4, v2" % (230 + i))
        a("v_lshrrev_b32 v1, 4, v0")
        a("v_and_b32 v2, 15, v0")
        a("v_lshrrev_b32 v3, 2, v2")
        a("v_lshl_add_u32 v4, v1, 2, v3")
        a("v_mul_u32_u24 v4, 160, v4")
        a("v_add_u32 v4, %d, v4" % (STAGE if "wdlate" in self.ph else LDS_WDS_EARLY))
        a("v_and_b32 v5, 3, v0")
        a("v_lshl_add_u32 v235, v5, 4, v4")
        a("v_lshl_add_u32 v236, v5, 3, v4")
        a("v_lshlrev_b32 v237, 4, v0")
        a("v_lshlrev_b32 v241, 2, v0")
        a("v_lshl_add_u32 v4, v1, 3, v3")
        a("v_lshlrev_b32 v4, 7, v4")
        a("v_bfe_u32 v5, v0, 1, 1")
        a("v_lshrrev_b32 v6, 1, v3")
        a("v_xor_b32 v5, v5, v6")
        a("v_lshl_add_u32 v4, v5, 4, v4")
        a("v_and_b32 v5, 1, v0")
        a("v_lshl_add_u32 v4, v5, 3, v4")
        a("v_and_b32 v5, 1, v1")
        a("v_lshl_add_u32 v238, v5, 6, v4")
        a("v_xor_b32 v5, 1, v5")
        a("v_lshl_add_u32 v239, v5, 6, v4")
        a("v_mul_u32_u24 v240, %d, v2" % ROWS)
        a("v_lshl_add_u32 v240, v1, 4, v240")
        a("s_add_u32 s51, s2, 128")
        a("s_cmp_ge_u32 s2, 128")
        a("s_cselect_b32 s51, s51, 999")
        a("s_lshr_b32 s52, s5, 1")
        a("s_add_u32 s53, s52, 8")
        a("s_cmp_lt_u32 s5, 4")
        a("s_cselect_b32 s53, s53, 99")
    def wd_load(self, ureg, scr):
        a = self.a
        if "nowd" in self.ph: return
        a("s_lshr_b32 s67, %s, 3" % ureg)
        a("s_and_b32 s68, %s, 7" % ureg)
        a("s_mul_i32 s69, s67, %d" % (32 * 1280))
        a("s_mul_i32 s67, s68, 160")
        a("s_add_u32 s69, s69, s67")
        for i in range(5):
            a("s_mov_b32 m0, %d" % ((STAGE if "wdlate" in self.ph else LDS_WDS_EARLY) + scr + 1024 * i))
            a("s_nop 0")
            a("buffer_load_dwordx4 v%d, s[28:31], s69 offen lds" % (230 + i))
    def wd_store(self, ureg, scr, R=160):
        a = self.a
        if "nowd" in self.ph: return
        for dt in range(5):
            for h in range(2):
                if dt < 4: ad, off = 235, 64 * (dt >> 1) + 8 * (dt & 1) + 2560 * h
                else: ad, off = 236, 128 + 2560 * h
                a("ds_read_b64_tr_b16 v[%d:%d], v%d offset:%d" % (R + 4 * dt + 2 * h, R + 1 + 4 * dt + 2 * h, ad, off + scr))
        a("s_lshr_b32 s67, %s, 3" % ureg)
        a("s_and_b32 s68, %s, 7" % ureg)
        a("s_mul_i32 s68, s68, 48")
        a("s_add_u32 s67, s67, s68")
        a("s_mul_i32 s67, s67, 5120")
        a("s_add_u32 s67, s67, %d" % WS_WD)
        a("s_add_u32 s68, s67, 4096")
        a("s_waitcnt lgkmcnt(0)")
        for dt in range(5):
            if dt < 4: a("buffer_store_dwordx4 v[%d:%d], v237, s[20:23], s67 offen offset:%d sc1" % (R + 4 * dt, R + 3 + 4 * dt, 1024 * dt))
            else: a("buffer_store_dwordx4 v[%d:%d], v237, s[20:23], s68 offen sc1" % (R + 4 * dt, R + 3 + 4 * dt))
    def gate_load(self):
        a = self.a
        a("v_and_b32 v1, 15, v0")
        a("v_lshlrev_b32 v1, 4, v1")
        for j in range(5):
            a("global_load_dwordx4 v[%d:%d], v1, s[%d:%d] offset:%d" % (8 + 4 * j, 11 + 4 * j, P_GW, P_GW + 1, 256 * j))
        a("v_lshrrev_b32 v2, 4, v0")
        a("s_movk_i32 s67, 1280")
        a("v_mul_lo_u32 v2, v2, s67")
        a("v_add_u32 v2, v2, v1")
        a("s_lshl_b32 s67, s2, 3")
        a("s_mul_i32 s67, s67, 1280")
        for half in range(2):
            for j in range(5):
                r = 28 + 20 * half + 4 * j
                a("buffer_load_dwordx4 v[%d:%d], v2, s[8:11], s67 offen offset:%d" % (r, r + 3, 256 * j))
            if half == 0: a("s_add_u32 s67, s67, %d" % (4 * 1280))
    def gate_compute(self):
        a = self.a
        R = 68
        for i in range(4): a("v_mov_b32 v%d, 0" % (R + i))
        for j in range(5):
            for e in range(4):
                for half in range(2):
                    acc = R + half + 2 * (e & 1)
                    a("v_dot2_f32_bf16 v%d, v%d, v%d, v%d" % (acc, 28 + 20 * half + 4 * j + e, 8 + 4 * j + e, acc))
        a("s_nop 2")
        a("v_add_f32 v%d, v%d, v%d" % (R, R, R + 2))
        a("v_add_f32 v%d, v%d, v%d" % (R + 1, R + 1, R + 3))
        a("s_nop 0")
        for ctl in ("row_shr:1", "row_shr:2", "row_shr:4", "row_shr:8"):
            for i in range(2):
                a("v_add_f32_dpp v%d, v%d, v%d %s row_mask:0xf bank_mask:0xf bound_ctrl:1" % (R + i, R + i, R + i, ctl))
            a("s_nop 0")
        for i in range(2): a("v_mul_f32 v%d, 0xbfb8aa3b, v%d" % (R + i, R + i))
        for i in range(2): a("v_exp_f32 v%d, v%d" % (R + i, R + i))
        a("s_nop 0")
        for i in range(2): a("v_add_f32 v%d, 1.0, v%d" % (R + i, R + i))
        for i in range(2): a("v_rcp_f32 v%d, v%d" % (R + i, R + i))
        a("s_lshl_b32 s67, s2, 5")
        a("s_add_u32 s67, s67, %d" % WS_G)
        a("v_lshrrev_b32 v1, 4, v0")
        a("v_lshlrev_b32 v1, 2, v1")
        a("s_mov_b32 exec_lo, 0x80008000")
        a("s_mov_b32 exec_hi, 0x80008000")
        a("buffer_store_dword v%d, v1, s[20:23], s67 offen sc1" % R)
        a("buffer_store_dword v%d, v1, s[20:23], s67 offen offset:16 sc1" % (R + 1))
        a("s_mov_b64 exec, -1")
    def ut_read(self, chunk_reg, stage_base, H):
        a = self.a
        if "noutr" in self.ph: return
        a("s_and_b32 s67, %s, 1" % chunk_reg)
        a("s_cmp_eq_u32 s67, 0")
        a("s_cselect_b64 vcc, -1, 0")
        a("s_nop 0")
        a("v_cndmask_b32 v4, v239, v238, vcc")
        a("v_add_u32 v4, %d, v4" % stage_base)
        for aa in range(2):
            for it in range(4):
                for hh in range(2):
                    r = H + (aa * 4 + it) * 4 + 2 * hh
                    a("ds_read_b64_tr_b16 v[%d:%d], v4 offset:%d" % (r, r + 1, 4096 * it + 512 * hh + 32 * (aa ^ hh)))
        a("s_waitcnt lgkmcnt(0)")
    def utx_load(self, chunk_reg):
        a = self.a
        a("v_lshrrev_b32 v4, 2, v0")
        a("v_mul_u32_u24 v4, 1280, v4")
        a("v_and_b32 v5, 3, v0")
        a("v_lshl_add_u32 v4, v5, 4, v4")
        a("s_mul_i32 s67, s4, %d" % (128 * 1280))
        a("s_lshl_b32 s68, %s, 6" % chunk_reg)
        a("s_add_u32 s67, s67, s68")
        for i in range(8):
            a("s_mov_b32 m0, %d" % (LDS_WDS_EARLY + 1024 * i))
            a("s_nop 0")
            a("buffer_load_dwordx4 v4, s[8:11], s67 offen lds")
            if i < 7: a("s_add_u32 s67, s67, %d" % (16 * 1280))
    def utx_read(self, H):
        a = self.a
        a("v_lshrrev_b32 v4, 4, v0")
        a("v_and_b32 v5, 15, v0")
        a("v_lshrrev_b32 v5, 2, v5")
        a("v_lshl_add_u32 v4, v4, 3, v5")
        a("v_lshlrev_b32 v4, 6, v4")
        a("v_and_b32 v5, 3, v0")
        a("v_lshl_add_u32 v4, v5, 3, v4")
        a("v_add_u32 v4, %d, v4" % LDS_WDS_EARLY)
        for aa in range(2):
            for it in range(4):
                for hh in range(2):
                    r = H + (aa * 4 + it) * 4 + 2 * hh
                    a("ds_read_b64_tr_b16 v[%d:%d], v4 offset:%d" % (r, r + 1, 64 * (32 * it + 4 * hh) + 32 * aa))
        a("s_waitcnt lgkmcnt(0)")

    def ut_store(self, chunk_reg, H):
        a = self.a
        if "nout" in self.ph: return
        a("s_mul_i32 s67, %s, %d" % (chunk_reg, 32 * ROWS))
        a("s_lshl_b32 s68, s4, 8")
        a("s_add_u32 s67, s67, s68")
        a("s_add_u32 s67, s67, %d" % WS_UT)
        a("s_add_u32 s68, s67, %d" % (16 * ROWS))
        for aa in range(2):
            for it in range(4):
                r = H + (aa * 4 + it) * 4
                a("buffer_store_dwordx4 v[%d:%d], v240, s[20:23], s%d offen offset:%d sc1" % (r, r + 3, 67 + aa, 64 * it))

    def pretouch(self):
        a = self.a
        a("v_and_b32 v1, 7, v0")
        a("v_lshlrev_b32 v1, 21, v1")
        a("buffer_load_dword v63, v1, s[20:23], 0 offen")
        a("v_and_b32 v1, 1, v0")
        a("v_lshlrev_b32 v1, 21, v1")
        a("buffer_load_dword v63, v1, s[24:27], 0 offen")
    def warm_inputs(self):
        a = self.a
        if "norot" in self.ph:
            a("s_mov_b32 s68, 9363")
            a("v_mul_lo_u32 v1, v0, s68")
            a("v_lshrrev_b32 v1, 16, v1")
            a("v_mul_u32_u24 v2, 7, v1")
            a("v_sub_u32 v2, v0, v2")
            a("v_mul_u32_u24 v1, 1280, v1")
            a("v_lshl_add_u32 v1, v2, 7, v1")
            a("s_mul_i32 s67, s2, 10240")
            a("s_add_u32 s67, s67, 384")
            a("s_mov_b32 exec_hi, 0x00ffffff")
            a("buffer_load_dword v244, v1, s[8:11], s67 offen")
            a("s_mov_b32 exec_hi, 0x000003ff")
            a("v_lshlrev_b32 v1, 7, v0")
            a("s_mul_i32 s67, s2, %d" % (42 * 128))
            a("s_add_u32 s67, s67, %d" % (192 * 3072))
            a("buffer_load_dword v244, v1, s[12:15], s67 offen")
            a("buffer_load_dword v244, v1, s[16:19], s67 offen")
            a("s_mov_b64 exec, -1")
            return
        a("v_lshlrev_b32 v1, 7, v0")
        if "warmx" in self.ph:
            a("s_mul_i32 s67, s2, 10240")
            a("buffer_load_dword v244, v1, s[8:11], s67 offen")
            a("s_add_u32 s68, s67, 8192")
            a("s_mov_b32 exec_hi, 0")
            a("s_mov_b32 exec_lo, 0xffff")
            a("buffer_load_dword v244, v1, s[8:11], s68 offen")
            a("s_mov_b32 exec_lo, -1")
        a("s_mov_b32 exec_hi, 0x0fffffff")
        a("s_mul_i32 s67, s2, 7680")
        a("buffer_load_dword v244, v1, s[12:15], s67 offen")
        a("buffer_load_dword v244, v1, s[16:19], s67 offen")
        if "warm2" in self.ph:
            a("buffer_load_dword v244, v1, s[28:31], s67 offen")
        a("s_mov_b64 exec, -1")
        if "warm2" in self.ph or "warmp" in self.ph:
            a("v_and_b32 v1, 7, v0")
            a("v_lshlrev_b32 v1, 7, v1")
            a("s_mul_i32 s67, s2, 960")
            a("v_add_u32 v1, s67, v1")
            a("v_min_u32 v1, %d, v1" % (245760 - 4))
            a("v_lshrrev_b32 v2, 3, v0")
            a("v_mov_b32 v4, s%d" % P_ARE); a("v_mov_b32 v5, s%d" % (P_ARE + 1))
            for k, p in enumerate((P_AIM, P_BRE, P_BIM, P_CRE, P_CIM)):
                a("v_cmp_eq_u32 vcc, %d, v2" % (k + 1))
                a("v_mov_b32 v6, s%d" % p); a("v_mov_b32 v7, s%d" % (p + 1))
                a("v_cndmask_b32 v4, v4, v6, vcc")
                a("v_cndmask_b32 v5, v5, v7, vcc")
            a("v_add_co_u32 v4, vcc, v4, v1")
            a("s_nop 1")
            a("v_addc_co_u32 v5, vcc, 0, v5, vcc")
            a("global_load_dword v244, v[4:5], off")

    def warm_code(self, early=False):
        a = self.a
        n = self.name
        l = self.newlab("pc"); l2 = self.newlab("pc")
        a("s_getpc_b64 s[68:69]")
        a.lab(l)
        a("s_sub_u32 s68, s68, %s-%s" % (l, n))
        a("s_subb_u32 s69, s69, 0")
        a("s_mov_b32 s67, (%s_end-%s+4095)/4096" % (n, n))
        a("s_lshr_b32 s70, s2, 3")
        a("s_mul_i32 s70, s70, s67")
        a("v_add_u32 v1, s70, v0")
        a("v_lshlrev_b32 v1, 7, v1")
        a("v_min_u32 v1, %s_end-%s, v1" % (n, n))
        a("v_cmp_gt_u32 vcc, s67, v0")
        a("s_and_saveexec_b64 s[70:71], vcc")
        a("s_cbranch_execz %s" % l2)
        a("global_load_dword v244, v1, s[68:69]")
        a.lab(l2)
        a("s_mov_b64 exec, s[70:71]")

    def smem_warm(self, part):
        a = self.a
        if part == 0:
            a("s_mul_i32 s67, s2, 7680")
            a("s_add_u32 s70, s%d, s67" % P_WD)
            a("s_addc_u32 s71, s%d, 0" % (P_WD + 1))
        for r in range(15 * part, 15 * part + 15):
            a("s_load_dword s74, s[70:71], %d" % (r * 128))

    def s3w_setup(self):
        a = self.a
        T = 1; VO = 245
        a("s_mul_i32 s69, s5, 192")
        a("s_mov_b32 s78, 43691")
        a("s_movk_i32 s79, 3072")
        for i in range(3):
            a("v_add_u32 v%d, %d, v0" % (T, 64 * i))
            a("v_mul_lo_u32 v%d, v%d, s78" % (T + 1, T))
            a("v_lshrrev_b32 v%d, 19, v%d" % (T + 1, T + 1))
            a("v_mul_u32_u24 v%d, 12, v%d" % (T + 2, T + 1))
            a("v_sub_u32 v%d, v%d, v%d" % (T + 2, T, T + 2))
            a("v_lshrrev_b32 v%d, 2, v%d" % (T + 3, T + 1))
            a("v_and_b32 v%d, 2, v%d" % (T + 3, T + 3))
            a("v_xor_b32 v%d, v%d, v%d" % (T + 2, T + 2, T + 3))
            a("v_mul_lo_u32 v%d, v%d, s79" % (T + 1, T + 1))
            a("v_lshl_add_u32 v%d, v%d, 4, v%d" % (T + 1, T + 2, T + 1))
            a("v_add_u32 v%d, s69, v%d" % (VO + i, T + 1))
        self.rot_r("s54", "s67")
    def s3w_younger0(self):
        n = 24 + (1 if self.fused() else 0)
        if "wdlate" not in self.ph: n += 5
        return n
    def s3w_dma(self, st):
        a = self.a
        VO = 245
        base = (st % 3) * STAGE
        a("s_mul_i32 s55, s54, 196608")
        a("s_add_u32 s54, s54, 1")
        a("s_cmp_eq_u32 s54, 10")
        a("s_cselect_b32 s54, 0, s54")
        for g4 in range(4):
            if g4: a("s_add_u32 s55, s55, 49152")
            for mat, srd in ((0, "s[12:15]"), (1, "s[16:19]")):
                for i in range(3):
                    a("s_mov_b32 m0, %d" % (base + (ST_WG if mat == 0 else ST_WU) + 3072 * g4 + 1024 * i))
                    a("s_nop 0")
                    a("buffer_load_dwordx4 v%d, %s, s55 offen lds" % (VO + i, srd))

    def s_side(self):
        a = self.a
        if "noside" in self.ph:
            for b in range(11 if self.fused() else 12): a("s_barrier")
            return
        HA, HB = 100, 132
        def cond_b(fn):
            l = self.newlab("wb")
            a("s_cmp_ge_u32 s51, 384")
            a("s_cbranch_scc1 %s" % l)
            fn()
            a.lab(l)
        if "warm0" in self.ph:
            self.warm_inputs()
            if "warmc" in self.ph: self.warm_code()
        s3w = "s3w" in self.ph
        if s3w:
            self.s3w_setup()
            self.s3w_dma(0)
            self.s3w_dma(1)
        self.side_setup()
        norot = "norot" in self.ph
        if norot:
            a("s_mov_b32 s50, s5")
            a("s_add_u32 s53, s5, 16")
            a("s_cmp_lt_u32 s5, 4")
            a("s_cselect_b32 s53, s53, 99")
        else:
            self.rot_r("s50", "s67")
            a("s_and_b32 s68, s5, 1")
            a("s_lshl_b32 s50, s50, 1")
            a("s_add_u32 s50, s50, s68")
            a("s_add_u32 s53, s50, 2")
            a("s_lshr_b32 s67, s5, 1")
            a("s_and_b32 s67, s67, 3")
            a("s_cmp_eq_u32 s67, 0")
            a("s_cselect_b32 s53, s53, 99")
        if self.fused():
            a("v_mov_b32 v1, %d" % LDS_CNT)
            a("v_mov_b32 v2, 0")
            a("v_mov_b32 v3, 0")
            a("ds_write_b64 v1, v[2:3]")
            a("ds_write_b64 v1, v[2:3] offset:8")
            a("ds_write_b64 v1, v[2:3] offset:16")
            a("ds_write_b32 v1, v2 offset:24")
        self.stamp(5)
        if "nobpre" not in self.ph: a("s_barrier")
        if self.fused(): self.nonce_load()
        if self.fused() and "ftouch" in self.ph:
            a("s_min_u32 s67, s2, 191")
            a("s_lshl_b32 s67, s67, 7")
            a("s_add_u32 s67, s67, %d" % WS_FU)
            a("v_mov_b32 v1, 0")
            a("s_mov_b64 exec, 1")
            a("buffer_load_dword v244, v1, s[20:23], s67 offen sc1")
            a("s_mov_b64 exec, -1")
        if norot: self.utx_load("s50")
        wdlate = "wdlate" in self.ph
        wdmid = "wdmid" in self.ph
        if not wdlate and not wdmid:
            self.wd_load("s2", 0)
            cond_b(lambda: self.wd_load("s51", 5120))
        if "warm0" not in self.ph:
            if "warmc" in self.ph: self.warm_code()
            if ("warm" in self.ph or "warm2" in self.ph) and "warmB0" not in self.ph and "warmB1" not in self.ph and not s3w: self.warm_inputs()
        if s3w: a("s_waitcnt vmcnt(%d)" % self.s3w_younger0())
        a("s_barrier")
        if s3w:
            self.s3w_dma(2)
            self.warm_inputs()
        if "warmB0" in self.ph: self.warm_inputs()
        self.stamp(1)
        if norot:
            a("s_waitcnt vmcnt(3)")
            self.utx_read(HA)
            def second():
                self.utx_load("s53")
            l_ = self.newlab("ux")
            a("s_cmp_ge_u32 s53, 20")
            a("s_cbranch_scc1 %s" % l_)
            second()
            a.lab(l_)
        else:
            self.ut_read("s50", 0, HA)
        def uflag(creg):
            a("s_lshl_b32 s69, %s, 5" % creg)
            a("s_add_u32 s69, s69, s4")
            a("s_lshl_b32 s69, s69, 2")
            a("s_add_u32 s69, s69, %d" % WS_FU)
            self.flag_set("s69", 2)
        def n_lt4(fn):
            l = self.newlab("ut")
            a("s_cmp_ge_u32 s53, 20")
            a("s_cbranch_scc1 %s" % l)
            fn()
            a.lab(l)
        def wflag(ureg):
            a("s_and_b32 s68, %s, 7" % ureg)
            a("s_lshl_b32 s68, s68, 8")
            a("s_lshr_b32 s69, %s, 3" % ureg)
            a("s_lshl_b32 s69, s69, 2")
            a("s_add_u32 s69, s69, s68")
            a("s_add_u32 s69, s69, %d" % WS_FW)
            self.flag_set("s69", 2)
        early = "utearly" in self.ph
        epb = "epb" in self.ph
        if early: self.ut_store("s50", HA)
        for kk in range(10):
            if s3w:
                if kk == 0: a("s_waitcnt vmcnt(26)")
                elif kk <= 7: a("s_waitcnt vmcnt(24)")
                elif kk == 8: a("s_waitcnt vmcnt(%d)" % (6 if (wdlate and self.fused()) else 0))
            if not (kk == 9 and self.fused()): a("s_barrier")
            if s3w and kk + 3 < 10 and kk not in (0, 1): self.s3w_dma(kk + 3)
            if kk == 0:
                if "warmB1" in self.ph: self.warm_inputs()
                if norot:
                    def rd2():
                        a("s_waitcnt vmcnt(0)")
                        self.utx_read(HB)
                    n_lt4(rd2)
                else:
                    n_lt4(lambda: self.ut_read("s53", 1 * STAGE, HB))
                if early: n_lt4(lambda: self.ut_store("s53", HB))
                if epb:
                    a("s_waitcnt vmcnt(%d)" % (8 if early else 0))
                    self.wd_store("s2", 0)
                    cond_b(lambda: self.wd_store("s51", 5120, 180))
            if kk == 1:
                if not early:
                    self.ut_store("s50", HA)
                    n_lt4(lambda: self.ut_store("s53", HB))
            if s3w and kk in (0, 1): self.s3w_dma(kk + 3)
            if kk == 3:
                a("s_waitcnt vmcnt(%d)" % (48 if s3w else 0))
                if self.fused():
                    self.nonce_publish_local()
                    if "uflate" not in self.ph:
                        uflag("s50")
                        n_lt4(lambda: uflag("s53"))
                    if epb:
                        wflag("s2")
                        cond_b(lambda: wflag("s51"))
            if kk == 7 and "uflate" in self.ph and self.fused():
                uflag("s50")
                n_lt4(lambda: uflag("s53"))
            if "swarm" in self.ph and 2 <= kk <= 5:
                self.smem_warm(kk - 2)
            if kk == 6 and wdmid:
                if "swarm" in self.ph: a("s_waitcnt lgkmcnt(0)")
                self.wd_load("s2", 0)
                cond_b(lambda: self.wd_load("s51", 5120))
            if kk == 7 and wdmid: a("s_waitcnt vmcnt(0)")
            if kk == 7 and "s3prio" in self.ph: a("s_setprio 3")
            if kk == 7 and epb:
                if self.fused():
                    self.s3_uw_look()
                    a("s_lshl_b32 s78, s7, 8")
                    a("s_add_u32 s78, s78, %d" % WS_FW)
                    self.look_line("s78", 48, 94)
                self.gate_load()
            if kk == 7 and not wdlate and not epb:
                if self.fused(): self.s3_uw_look()
                self.wd_store("s2", 0)
                cond_b(lambda: self.wd_store("s51", 5120, 180))
                self.gate_load()
            if kk == 7 and wdlate:
                if "swarm" in self.ph: a("s_waitcnt lgkmcnt(0)")
                if self.fused(): self.s3_uw_look()
                self.wd_load("s2", 0)
                cond_b(lambda: self.wd_load("s51", 5120))
            if kk == 8:
                self.jitter()
                if self.fused():
                    l = self.newlab("uw")
                    if epb:
                        self.check_line("s78", 94, 15)
                        a("v_mov_b32 v1, %d" % LDS_WOK)
                        a("v_mov_b32 v2, 1")
                        a("ds_write_b32 v1, v2")
                    elif not wdlate and "wfirst" in self.ph:
                        a("s_waitcnt vmcnt(15)")
                        wflag("s2")
                        cond_b(lambda: wflag("s51"))
                    else:
                        a("s_waitcnt vmcnt(%d)" % (5 if wdlate else 20))
                    a("v_cmp_eq_u32 vcc, s64, v92")
                    a("s_nop 1")
                    a("s_cmp_eq_u64 vcc, -1")
                    a("s_cbranch_scc1 %s" % l)
                    self.poll(self.s3_uw_loads, [92], 6, sleep=2)
                    a.lab(l)
                    self.s3_u_loads()
                    a("v_mov_b32 v1, %d" % LDS_UOK)
                    a("v_mov_b32 v2, 3")
                    a("ds_write_b32 v1, v2")
                    if wdlate: a("s_waitcnt vmcnt(12)")
                elif wdlate:
                    a("s_waitcnt vmcnt(0)")
                if wdlate:
                    self.wd_store("s2", 0)
                    cond_b(lambda: self.wd_store("s51", 5120, 180))
                    self.gate_load()
        self.stamp(2)
        if self.fused():
            if "s3prio" not in self.ph: a("s_setprio 2")
            if epb:
                self.lds_spin(LDS_SFREE, 2, 4)
                a("s_waitcnt vmcnt(0)")
            else:
                if not wdlate and "wfirst" in self.ph:
                    self.lds_spin(LDS_SFREE, 2, 4)
                    a("s_waitcnt vmcnt(0)")
                else:
                    if wdlate: a("s_waitcnt vmcnt(15)")
                    else: a("s_waitcnt vmcnt(27)")
                    wflag("s2")
                    cond_b(lambda: wflag("s51"))
                    self.lds_spin(LDS_SFREE, 2, 4)
                    if not wdlate: a("s_waitcnt vmcnt(1)")
        self.stamp(3)
        self.jitter()
        if self.fused():
            self.s3_u_copies(extra=None)
            a("s_waitcnt lgkmcnt(0)")
            a("v_mov_b32 v1, %d" % LDS_UCOK)
            a("v_mov_b32 v2, 1")
            a("ds_write_b32 v1, v2")
            a("s_setprio 0")
            self.stamp(4)
            a("s_waitcnt vmcnt(0)")
            self.gate_compute()
            a("s_waitcnt vmcnt(0)")
            a("s_lshl_b32 s69, s2, 2")
            a("s_add_u32 s69, s69, %d" % WS_FG)
            self.flag_set("s69", 2)
            if "nonearly" in self.ph: self.nonce_update()
        else:
            a("s_waitcnt vmcnt(0)")
            self.gate_compute()
            a("s_waitcnt vmcnt(0)")
            self.stamp(4)

    def s3_uw_addr(self):
        a = self.a
        a("v_lshrrev_b32 v1, 4, v0")
        a("v_lshlrev_b32 v1, 8, v1")
        a("v_add_u32 v1, s2, v1")
        a("v_mov_b32 v2, s2")
        a("v_cmp_gt_u32 vcc, 640, v1")
        a("s_nop 1")
        a("v_cndmask_b32 v1, v2, v1, vcc")
        a("v_lshrrev_b32 v1, 5, v1")
        a("v_lshlrev_b32 v1, 7, v1")
        a("v_and_b32 v2, 15, v0")
        a("v_lshl_add_u32 v1, v2, 2, v1")
        a("v_add_u32 v90, %d, v1" % WS_FU)
    def s3_uw_loads(self):
        a = self.a
        a("buffer_load_dword v92, v90, s[20:23], 0 offen sc1")
    def s3_uw_look(self):
        self.s3_uw_addr()
        self.s3_uw_loads()
    def s3_uw_check(self):
        a = self.a
        l = self.newlab("uw")
        a("s_waitcnt vmcnt(0)")
        a("v_cmp_eq_u32 vcc, s64, v92")
        a("v_cmp_eq_u32 s[76:77], s64, v93")
        a("s_nop 1")
        a("s_and_b64 vcc, vcc, s[76:77]")
        a("s_cmp_eq_u64 vcc, -1")
        a("s_cbranch_scc1 %s" % l)
        self.poll(self.s3_uw_loads, [92, 93], 6, sleep=2)
        a.lab(l)

    def s3_channels(self):
        a = self.a
        a("s_mov_b32 s70, s2")
        a("s_add_u32 s71, s2, 256")
        a("s_add_u32 s72, s2, 512")
        a("s_cmp_lt_u32 s72, 640")
        a("s_cselect_b32 s72, s72, s2")

    def s3_u_loads(self):
        a = self.a
        self.s3_channels()
        a("v_lshlrev_b32 v1, 4, v0")
        for sg in range(3):
            a("s_mul_i32 s67, s%d, %d" % (70 + sg, ROWS))
            a("s_add_u32 s67, s67, %d" % WS_UT)
            for i in range(4):
                r = 100 + 16 * sg + 4 * i
                a("buffer_load_dwordx4 v[%d:%d], v1, s[20:23], s67 offen offset:%d sc1" % (r, r + 3, 1024 * i))

    def s3_u_copies(self, extra=0):
        a = self.a
        Z = 150
        for i in range(4): a("v_mov_b32 v%d, 0" % (Z + i))
        a("v_lshlrev_b32 v2, 4, v0")
        a("v_cmp_eq_u32 vcc, 0, v0")
        for sg in range(3):
            base = LDS_UC + sg * UC_SZ
            for b in range(4):
                a("ds_write_b128 v2, v[%d:%d] offset:%d" % (Z, Z + 3, base + b * UC_STRIDE))
        for sg in range(3):
            base = LDS_UC + sg * UC_SZ
            if extra is not None: a("s_waitcnt vmcnt(%d)" % (4 * (2 - sg) + extra))
            for i in range(4):
                D = 100 + 16 * sg + 4 * i
                R3, R2 = 154 + 2 * (i & 1), 155 + 2 * (i & 1)
                Q3, Q2 = 154 + 2 * ((i + 1) & 1), 155 + 2 * ((i + 1) & 1)
                T1 = 160 + 12 * (i & 1); T0 = T1 + 4; T2 = T1 + 8
                P2 = 158
                a("v_mov_b32_dpp v%d, v%d wave_ror:1 row_mask:0xf bank_mask:0xf" % (R3, D + 3))
                a("v_mov_b32_dpp v%d, v%d wave_ror:1 row_mask:0xf bank_mask:0xf" % (R2, D + 2))
                a("v_mov_b32 v%d, v%d" % (T1 + 1, D))
                a("v_mov_b32 v%d, v%d" % (T1 + 2, D + 1))
                a("v_mov_b32 v%d, v%d" % (T1 + 3, D + 2))
                if i == 0:
                    a("v_cndmask_b32 v%d, v%d, v%d, vcc" % (T1, R3, Z))
                    a("v_cndmask_b32 v%d, v%d, v%d, vcc" % (P2, R2, Z))
                else:
                    a("v_cndmask_b32 v%d, v%d, v%d, vcc" % (T1, R3, Q3))
                    a("v_cndmask_b32 v%d, v%d, v%d, vcc" % (P2, R2, Q2))
                off = base + 4 * (96 + 256 * i)
                a("ds_write_b128 v2, v[%d:%d] offset:%d" % (D, D + 3, off + 3 * UC_STRIDE))
                a("v_alignbit_b32 v%d, v%d, v%d, 16" % (T0, T1, P2))
                a("v_alignbit_b32 v%d, v%d, v%d, 16" % (T0 + 1, D, T1))
                a("v_alignbit_b32 v%d, v%d, v%d, 16" % (T0 + 2, D + 1, D))
                a("v_alignbit_b32 v%d, v%d, v%d, 16" % (T0 + 3, D + 2, D + 1))
                a("ds_write_b128 v2, v[%d:%d] offset:%d" % (T1, T1 + 3, off + 1 * UC_STRIDE))
                a("v_mov_b32 v%d, v%d" % (T2, T0 + 1))
                a("v_mov_b32 v%d, v%d" % (T2 + 1, T0 + 2))
                a("v_mov_b32 v%d, v%d" % (T2 + 2, T0 + 3))
                a("v_alignbit_b32 v%d, v%d, v%d, 16" % (T2 + 3, D + 3, D + 2))
                a("ds_write_b128 v2, v[%d:%d] offset:%d" % (T0, T0 + 3, off + 0 * UC_STRIDE))
                a("ds_write_b128 v2, v[%d:%d] offset:%d" % (T2, T2 + 3, off + 2 * UC_STRIDE))

    def s_phase1(self):
        a = self.a
        n = self.name
        a("s_sub_u32 s66, s3, 4")
        a("s_cmp_eq_u32 s66, 3")
        a("s_cbranch_scc1 %s_sj" % n)
        self.s_kgen_phase1()
        a("s_branch %s_p1done" % n)
        a.lab("%s_sj" % n)
        self.s_side()
        a.lab("%s_p1done" % n)

    def ssm_param_loads(self, slots=(0, 1, 2), scalars=True):
        a = self.a
        a("s_mul_i32 s67, s50, 384")
        a("v_lshl_add_u32 v1, v0, 1, s67")
        for sl in slots:
            for k, p in enumerate((P_ARE, P_AIM, P_BRE, P_BIM, P_CRE, P_CIM)):
                a("global_load_ushort v%d, v1, s[%d:%d] offset:%d" % (200 + 6 * sl + k, p, p + 1, 128 * sl))
        if scalars:
            a("s_lshl_b32 s67, s50, 1")
            a("v_mov_b32 v223, s67")
            a("global_load_ushort v218, v223, s[%d:%d]" % (P_LDT, P_LDT + 1))
            a("global_load_ushort v219, v223, s[%d:%d]" % (P_DSK, P_DSK + 1))

    def ssm_param_warm(self):
        a = self.a
        a("s_mul_i32 s67, s50, 384")
        for p in (P_ARE, P_AIM, P_BRE, P_BIM, P_CRE, P_CIM):
            a("s_add_u32 s68, s%d, s67" % p)
            a("s_addc_u32 s69, s%d, 0" % (p + 1))
            for i in range(3):
                a("s_load_dword s70, s[68:69], %d" % (128 * i))
        a("s_lshl_b32 s67, s50, 1")
        a("s_and_b32 s67, s67, 0xfffffffc")
        a("s_load_dword s70, s[%d:%d], s67" % (P_LDT, P_LDT + 1))
        a("s_load_dword s70, s[%d:%d], s67" % (P_DSK, P_DSK + 1))

    def kgen_bases(self):
        a = self.a
        a("s_mul_i32 s51, s66, %d" % TAB_SZ)
        a("s_add_u32 s51, s51, %d" % LDS_TAB)
        a("s_mul_i32 s52, s66, %d" % KR_SZ)
        a("s_add_u32 s52, s52, %d" % LDS_KR)

    def kgen(self, part="all"):
        a = self.a
        if part == "all": self.kgen_bases()
        self._kgen_body(part)

    def _kgen_body(self, part):
        a = self.a
        head = part in ("all", "head", "rest"); tail = part in ("all", "tail", "rest")
        real_a = a
        if not head: a = Asm()
        a("v_and_b32 v4, 15, v0")
        a("v_lshrrev_b32 v5, 4, v0")
        a("v_mul_u32_u24 v2, %d, v4" % TABROW)
        a("v_lshl_add_u32 v2, v5, 6, v2")
        a("v_add_u32 v2, s51, v2")
        a("v_and_b32 v6, 1, v5")
        a("v_lshl_add_u32 v3, v6, 3, v2")
        a("v_xor_b32 v6, 1, v6")
        a("v_lshl_add_u32 v2, v6, 3, v2")
        a("s_mov_b32 m0, s51")
        a("s_nop 0")
        if part == "all" or (part == "rest" and not self.fused()): a("s_waitcnt vmcnt(0)")
        a("v_lshlrev_b32 v218, 16, v218")
        a("v_lshlrev_b32 v219, 16, v219")
        a("v_mul_f32 v6, 0x3fb8aa3b, v218")
        a("s_mov_b32 s67, 0x3fb8aa3b")
        a("v_fma_f32 v7, v218, s67, -v6")
        a("v_fmac_f32 v7, 0x32a57060, v218")
        a("v_exp_f32 v6, v6")
        a("v_mul_f32 v7, 0x3f317218, v7")
        a("v_fma_f32 v6, v6, v7, v6")
        a("v_cvt_pk_bf16_f32 v6, v6, v6")
        a("v_lshlrev_b32 v218, 16, v6")
        W1, W16, W256, W512, W768, W1024 = 10, 12, 14, 16, 18, 20
        WX = 22
        CB = 24
        Y = 26; P = 28; TMP1 = 30; TMP2 = 32; TMP3 = 34
        PK = 36
        V = 50
        CV = 66
        YF = 76
        AF = 92
        ACC = 108
        nopk = (part == "head") and ("pkhead" not in self.ph)
        def cmul(out, x, w, t):
            if nopk:
                return ["v_mul_f32 v%d, v%d, v%d" % (t, x + 1, w + 1),
                        "v_mul_f32 v%d, v%d, v%d" % (t + 1, x, w + 1),
                        "v_fma_f32 v%d, v%d, v%d, -v%d" % (out, x, w, t),
                        "v_fma_f32 v%d, v%d, v%d, v%d" % (out + 1, x + 1, w, t + 1)]
            return ["v_pk_mul_f32 v[%d:%d], v[%d:%d], v[%d:%d] op_sel:[0,0] op_sel_hi:[0,1]" % (t, t + 1, x, x + 1, w, w + 1),
                    "v_pk_fma_f32 v[%d:%d], v[%d:%d], v[%d:%d], v[%d:%d] op_sel:[1,1,0] op_sel_hi:[1,0,1] neg_lo:[1,0,0]" % (out, out + 1, x, x + 1, w, w + 1, t, t + 1)]
        def zipl(*ls):
            o = []
            for i in range(max(len(l) for l in ls)):
                for l in ls:
                    if i < len(l): o.append(l[i])
            return o
        cvn = [0, 0]
        def wr(val, tile, row, neg, bank=0):
            c = CV + 4 * bank + (cvn[bank] % 4); cvn[bank] += 1
            return ["v_cvt_pk_bf16_f32 v%d, v%d, %sv%d" % (c, val, "-" if neg else "", val + 1),
                    "ds_write_addtid_b32 v%d offset:%d" % (c, tile * TABTILE + row * TABROW)]
        def frag_reads(dst, tile):
            L = []
            for kk in range(4):
                L.append("ds_read_b64 v[%d:%d], v3 offset:%d" % (dst + 4 * kk, dst + 4 * kk + 1, tile * TABTILE + 16 * kk))
                L.append("ds_read_b64 v[%d:%d], v2 offset:%d" % (dst + 4 * kk + 2, dst + 4 * kk + 3, tile * TABTILE + 16 * kk))
            return L
        def mm(t, first):
            L = []
            for kk in range(4):
                c = "0" if (first and kk == 0) else "v[%d:%d]" % (ACC + 4 * t, ACC + 4 * t + 3)
                L.append("v_mfma_f32_16x16x32_bf16 v[%d:%d], v[%d:%d], v[%d:%d], %s" % (ACC + 4 * t, ACC + 4 * t + 3, AF + 4 * kk, AF + 4 * kk + 3, YF + 4 * kk, YF + 4 * kk + 3, c))
            return L
        a = real_a
        nh = 2 if "kg2" in self.ph else 1
        slots = [0, 1, 2] if part in ("all", "rest") else (list(range(nh)) if part == "head" else list(range(nh, 3)))
        for sl in slots:
            if sl == 1 and part == "tail" and not self.fused(): a("s_waitcnt vmcnt(0)")
            if sl == 2 and part in ("rest", "tail"): self.stamp(3)
            if sl == 2 and "prioT" in self.ph: a("s_setprio 2")
            if sl == slots[0] and part in ("tail", "rest") and "prioT0" in self.ph and "prioMid" not in self.ph: a("s_setprio 2")
            pr = 200 + 6 * sl
            for k in range(6): a("v_lshlrev_b32 v%d, 16, v%d" % (pr + k, pr + k))
            a("v_mul_f32 v6, v218, v%d" % pr)
            a("v_mul_f32 v7, v218, v%d" % (pr + 1))
            a("v_mul_f32 v6, 0x3fb8aa3b, v6")
            a("v_mul_f32 v7, 0.15915494, v7")
            a("v_mul_f32 v8, v218, v%d" % (pr + 2))
            a("v_mul_f32 v9, v218, v%d" % (pr + 3))
            a.ext(cmul(CB, pr + 4, 8, TMP1))
            for w, k in ((W1, 1.0), (W16, 16.0), (W256, 256.0)):
                if k == 1.0:
                    a("v_exp_f32 v%d, v6" % TMP2)
                    a("v_fract_f32 v%d, v7" % TMP3)
                else:
                    lit = "0x41800000" if k == 16.0 else "0x43800000"
                    a("v_mul_f32 v%d, %s, v6" % (TMP2, lit))
                    a("v_mul_f32 v%d, %s, v7" % (TMP3, lit))
                    a("v_exp_f32 v%d, v%d" % (TMP2, TMP2))
                    a("v_fract_f32 v%d, v%d" % (TMP3, TMP3))
                a("v_cos_f32 v%d, v%d" % (w, TMP3))
                a("v_sin_f32 v%d, v%d" % (w + 1, TMP3))
                a("s_nop 0")
                a("v_mul_f32 v%d, v%d, v%d" % (w, w, TMP2))
                a("v_mul_f32 v%d, v%d, v%d" % (w + 1, w + 1, TMP2))
            if sl != slots[0]:
                a("s_waitcnt lgkmcnt(0)")
                a.ext(pend_mm2)
            if sl == slots[0] and part in ("tail", "rest") and "prioMid" in self.ph: a("s_setprio 2")
            LY = ["v_mov_b32 v%d, v%d" % (Y, CB), "v_mov_b32 v%d, v%d" % (Y + 1, CB + 1)] + wr(Y, 0, 0, False)
            for j in range(1, 16):
                LY += cmul(Y, Y, W16, TMP1) + wr(Y, 0, j, False)
            LA = ["v_mov_b32 v%d, 1.0" % P, "v_mov_b32 v%d, 0" % (P + 1)] + wr(P, 1, 0, True, 1)
            cur = P
            for r in range(1, 16):
                if r == 1:
                    LA += ["v_mov_b32 v%d, v%d" % (P, W1), "v_mov_b32 v%d, v%d" % (P + 1, W1 + 1)]
                    cur = P
                else:
                    dst = PK + 2 * (r // 2 - 1) if r % 2 == 0 else P
                    LA += cmul(dst, cur, W1, TMP2)
                    cur = dst
                LA += wr(cur, 1, r, True, 1)
            a.ext(zipl(LY, LA))
            a.ext(cmul(W512, W256, W256, TMP1))
            a.ext(frag_reads(YF, 0)); a.ext(frag_reads(AF, 1))
            a.ext(zipl(cmul(W768, W512, W256, TMP1), cmul(W1024, W512, W512, TMP2)))
            def pk(i): return PK + 2 * (i // 2 - 1)
            vals = []
            A2 = []
            regs = []
            for r in range(8):
                if r == 0: regs.append(W256)
                else:
                    dst = V + 2 * (r - 1) if r < 8 else None
                    A2.append(cmul(dst, pk(2 * r), W256, TMP1 if r % 2 else TMP2)); regs.append(dst)
            a.ext(zipl(sum(A2[0::2], []), sum(A2[1::2], [])))
            a("s_waitcnt lgkmcnt(0)")
            m = mm(0, sl == 0)
            L = []
            for r in range(8): L += wr(regs[r], 1, r, True)
            a.ext(interleave(m, L))
            LA = []; LB = []
            for b in range(4):
                if b == 0:
                    LA += wr(W512, 1, 8, True); LB += wr(W768, 1, 12, True, 1)
                else:
                    LA += cmul(V, pk(4 * b), W512, TMP1) + wr(V, 1, 8 + b, True)
                    LB += cmul(V + 2, pk(4 * b), W768, TMP2) + wr(V + 2, 1, 12 + b, True, 1)
            a.ext(zipl(LA, LB))
            a.ext(frag_reads(AF, 1))
            a.ext(zipl(cmul(V, W1024, W256, TMP1), cmul(V + 2, W1024, W512, TMP2)))
            a.ext(zipl(cmul(V + 4, W1024, W768, TMP1), cmul(V + 6, W1024, W1024, TMP2)))
            ws = [W1024, V, V + 2, V + 4]
            a.ext(zipl(cmul(V + 8, ws[0], pk(8), TMP1), cmul(V + 10, ws[1], pk(8), TMP2)))
            a.ext(zipl(cmul(V + 12, ws[2], pk(8), TMP1), cmul(V + 14, ws[3], pk(8), TMP2)))
            a("s_waitcnt lgkmcnt(0)")
            m = mm(1, sl == 0)
            L = []
            for i in range(4):
                L += wr(ws[i], 1, 2 * i, True) + wr(V + 8 + 2 * i, 1, 2 * i + 1, True)
            L += wr(V + 6, 1, 8, True)
            a.ext(interleave(m, L))
            a.ext(frag_reads(AF, 1))
            pend_mm2 = mm(2, sl == 0)
            if sl == slots[-1]:
                a("s_waitcnt lgkmcnt(0)")
                a.ext(pend_mm2); pend_mm2 = None
        if not tail: return
        self.stamp(1)
        A0, A1, A2r = ACC, ACC + 4, ACC + 8
        a("v_cmp_eq_u32 vcc, 0, v0")
        a("v_and_b32 v4, 15, v0")
        a("v_lshrrev_b32 v5, 4, v0")
        a("v_cndmask_b32 v6, 0, v219, vcc")
        a("v_lshlrev_b32 v7, 5, v4")
        a("v_lshl_add_u32 v7, v5, 4, v7")
        a("v_lshlrev_b32 v8, 4, v4")
        a("v_lshl_add_u32 v8, v5, 8, v8")
        a("v_cmp_gt_u32 vcc, 2, v5")
        a("v_add_f32 v%d, v%d, v6" % (A0, A0))
        a("s_nop 0")
        a("v_cndmask_b32 v7, v8, v7, vcc")
        a("v_add_u32 v7, s51, v7")
        a("v_lshlrev_b32 v8, 3, v4")
        a("v_lshl_add_u32 v8, v5, 8, v8")
        a("v_add_u32 v8, s51, v8")
        a("s_nop 4")
        a("ds_write_b128 v7, v[%d:%d]" % (A1, A1 + 3))
        a("ds_write_b64 v8, v[%d:%d] offset:1024" % (A2r, A2r + 1))
        a("ds_write_b64 v8, v[%d:%d] offset:1152" % (A2r + 2, A2r + 3))
        a("v_cvt_pk_bf16_f32 v10, v%d, v%d" % (A0 + 3, A0 + 2))
        a("v_cvt_pk_bf16_f32 v11, v%d, v%d" % (A0 + 1, A0))
        a("v_lshlrev_b32 v9, 5, v4")
        a("v_lshl_add_u32 v9, v5, 3, v9")
        a("v_sub_u32 v9, 4088, v9")
        a("v_add_u32 v9, s52, v9")
        a("ds_write_b64 v9, v[10:11]")
        a("v_and_b32 v9, 31, v0")
        a("v_lshlrev_b32 v9, 2, v9")
        a("v_add_u32 v9, s52, v9")
        a("v_mov_b32 v12, 0")
        a("ds_write_b32 v9, v12 offset:4096")
        a("v_lshlrev_b32 v13, 4, v0")
        a("v_add_u32 v14, s51, v13")
        a("v_lshlrev_b32 v15, 3, v0")
        a("v_add_u32 v15, s51, v15")
        a("v_lshlrev_b32 v16, 2, v0")
        a("v_add_u32 v16, s51, v16")
        a("v_sub_u32 v13, s52, v13")
        a("s_waitcnt lgkmcnt(0)")
        a("ds_read_b128 v[20:23], v14")
        a("ds_read_b32 v24, v14 offset:16")
        a("ds_read_b64 v[26:27], v15 offset:512")
        a("ds_read_b32 v28, v15 offset:520")
        a("ds_read2_b32 v[30:31], v16 offset0:0 offset1:1")
        a.l.pop()
        a("v_add_u32 v17, 1024, v16")
        a("ds_read2_b32 v[30:31], v17 offset0:0 offset1:1")
        a("ds_read2_b32 v[32:33], v17 offset0:64 offset1:65")
        a("v_and_b32 v18, 1, v0")
        a("v_cmp_eq_u32 vcc, 1, v18")
        a("s_waitcnt lgkmcnt(0)")
        a("v_cvt_pk_bf16_f32 v36, v28, v28")
        a("v_cvt_pk_bf16_f32 v37, v27, v27")
        a("v_cvt_pk_bf16_f32 v38, v27, v26")
        a("v_cvt_pk_bf16_f32 v39, v26, v26")
        a("ds_write_b128 v13, v[36:39] offset:3056")
        for ps in range(2):
            v0_, v1_ = 30 + 2 * ps, 31 + 2 * ps
            o = 40 + 4 * ps
            a("v_cndmask_b32 v19, v%d, v%d, vcc" % (v0_, v1_))
            a("v_cvt_pk_bf16_f32 v%d, v%d, v%d" % (o, v1_, v1_))
            a("v_cvt_pk_bf16_f32 v%d, v%d, v19" % (o + 1, v1_))
            a("v_cvt_pk_bf16_f32 v%d, v%d, v%d" % (o + 2, v0_, v0_))
            a("v_mov_b32 v%d, v%d" % (o + 3, o + 2))
        a("ds_write_b128 v13, v[40:43] offset:2032")
        a("ds_write_b128 v13, v[44:47] offset:1008")
        a("v_cvt_pk_bf16_f32 v48, v24, v23")
        a("v_cvt_pk_bf16_f32 v49, v22, v22")
        a("v_cvt_pk_bf16_f32 v50, v22, v21")
        a("v_cvt_pk_bf16_f32 v51, v20, v20")
        a("s_mov_b32 exec_hi, 0")
        a("ds_write_b128 v13, v[48:51] offset:3568")
        a("s_mov_b32 exec_hi, -1")
        if "dumpk" in self.ph:
            a("s_waitcnt lgkmcnt(0)")
            a("v_lshlrev_b32 v13, 4, v0")
            a("v_add_u32 v14, s52, v13")
            a("s_mul_i32 s67, s50, 4224")
            a("s_add_u32 s67, s67, %d" % WS_DBG)
            for i in range(5):
                a("ds_read_b128 v[20:23], v14 offset:%d" % (1024 * i))
                a("s_waitcnt lgkmcnt(0)")
                if i == 4: a("s_mov_b32 exec_hi, 0"); a("s_mov_b32 exec_lo, 0xff")
                a("s_add_u32 s68, s67, %d" % (1024 * i))
                a("buffer_store_dwordx4 v[20:23], v13, s[20:23], s68 offen")
                a("s_waitcnt vmcnt(0)")
            a("s_mov_b64 exec, -1")

    def u_look(self):
        a = self.a
        self.nonce_read(120)
        a("s_lshr_b32 s78, s50, 5")
        a("s_lshl_b32 s78, s78, 7")
        a("s_add_u32 s78, s78, %d" % WS_FU)
        a("v_and_b32 v120, 15, v0")
        a("v_lshlrev_b32 v120, 2, v120")
        a("buffer_load_dword v121, v120, s[20:23], s78 offen sc1")
    def u_prefetch(self):
        a = self.a
        l = self.newlab("uok")
        a("s_waitcnt vmcnt(0)")
        a("v_cmp_eq_u32 vcc, s64, v121")
        a("s_nop 1")
        a("s_cmp_eq_u64 vcc, -1")
        a("s_cbranch_scc1 %s" % l)
        self.poll_line("s78", 16, 120, sleep=4)
        a.lab(l)
        self.conv_loads()
        self.lds_inc(LDS_UOK, 152)

    def conv_loads(self):
        a = self.a
        a("s_mul_i32 s67, s50, %d" % ROWS)
        a("s_add_u32 s67, s67, %d" % (WS_UT - 4))
        a("v_lshlrev_b32 v1, 2, v0")
        for i in range(16):
            a("buffer_load_dwordx2 v[%d:%d], v1, s[20:23], s67 offen offset:%d sc1" % (120 + 2 * i, 121 + 2 * i, 256 * i))

    def conv(self):
        a = self.a
        D = 120
        a("s_mul_i32 s53, s66, %d" % UC_SZ)
        if LDS_UC: a("s_add_u32 s53, s53, %d" % LDS_UC)
        if not self.fused():
            a("s_mov_b32 m0, s53")
            a("v_mov_b32 v2, 0")
            for b in range(4):
                a("ds_write_addtid_b32 v2 offset:%d" % (b * UC_STRIDE))
                a("ds_write_addtid_b32 v2 offset:%d" % (b * UC_STRIDE + 33 * 4))
            a("v_cmp_eq_u32 vcc, 0, v0")
            a("s_waitcnt vmcnt(0)")
            a("v_cndmask_b32 v%d, v%d, v2, vcc" % (D, D))
            for i in range(16):
                lo, hi = D + 2 * i, D + 2 * i + 1
                o = 4 + (i % 4)
                a("v_alignbit_b32 v%d, v%d, v%d, 16" % (o, hi, lo))
                a("ds_write_addtid_b32 v%d offset:%d" % (hi, 3 * UC_STRIDE + 4 * (64 * i + 96)))
                a("ds_write_addtid_b32 v%d offset:%d" % (hi, 1 * UC_STRIDE + 4 * (64 * i + 97)))
                a("ds_write_addtid_b32 v%d offset:%d" % (o, 2 * UC_STRIDE + 4 * (64 * i + 96)))
                a("ds_write_addtid_b32 v%d offset:%d" % (o, 0 * UC_STRIDE + 4 * (64 * i + 97)))
        VU, VK = 8, 9
        a("v_and_b32 v4, 3, v0")
        a("v_mul_u32_u24 v4, %d, v4" % UC_STRIDE)
        a("v_bfe_u32 v5, v0, 2, 2")
        a("v_lshl_add_u32 v4, v5, 7, v4")
        a("v_lshrrev_b32 v5, 4, v0")
        a("v_lshl_add_u32 v4, v5, 4, v4")
        a("v_add_u32 v%d, s53, v4" % VU)
        a("v_and_b32 v6, 15, v0")
        a("v_lshlrev_b32 v7, 3, v6")
        a("v_sub_u32 v7, 120, v7")
        a("v_lshl_add_u32 v7, v5, 4, v7")
        a("v_add_u32 v%d, s52, v7" % VK)
        a("v_lshlrev_b32 v10, 3, v6")
        a("v_lshl_add_u32 v10, v5, 7, v10")
        ACC = 16; SETS = [48, 112]
        def reads(rho, S):
            L = []
            for z in range(8):
                L.append("ds_read_b128 v[%d:%d], v%d offset:%d" % (S + 4 * z, S + 4 * z + 3, VU, 512 * z + 64 * (7 - rho)))
                zz = 8 * z + rho
                L.append("ds_read_b64 v[%d:%d], v%d offset:%d" % (S + 32 + 4 * z, S + 33 + 4 * z, VK, 64 * (63 - zz)))
                L.append("ds_read_b64 v[%d:%d], v%d offset:%d" % (S + 34 + 4 * z, S + 35 + 4 * z, VK, 64 * (63 - zz) + 8))
            return L
        def mm(rho, S):
            L = []
            for ze in range(8):
                for nu in range(8 - ze):
                    n = ze + nu
                    c = "0" if (rho == 0 and ze == 0) else "v[%d:%d]" % (ACC + 4 * n, ACC + 4 * n + 3)
                    L.append("v_mfma_f32_16x16x32_bf16 v[%d:%d], v[%d:%d], v[%d:%d], %s" % (ACC + 4 * n, ACC + 4 * n + 3, S + 4 * nu, S + 4 * nu + 3, S + 32 + 4 * ze, S + 35 + 4 * ze, c))
            return L
        a("s_waitcnt lgkmcnt(0)")
        if self.fused(): self.lds_spin(LDS_UCOK, 12)
        self.stamp(4)
        a.ext(reads(0, SETS[0]))
        a("s_waitcnt lgkmcnt(0)")
        for rho in range(8):
            fill = reads(rho + 1, SETS[(rho + 1) & 1]) if rho < 7 else []
            a.ext(interleave(mm(rho, SETS[rho & 1]), fill, span=28))
            if rho < 7: a("s_waitcnt lgkmcnt(0)")
        self.stamp(7)
        a("s_mul_i32 s67, s50, %d" % ROWS)
        a("s_add_u32 s67, s67, %d" % WS_Y)
        a("s_nop 7")
        for n in range(8):
            o = 48 + 2 * n
            a("v_cvt_pk_bf16_f32 v%d, v%d, v%d" % (o, ACC + 4 * n, ACC + 4 * n + 1))
            a("v_cvt_pk_bf16_f32 v%d, v%d, v%d" % (o + 1, ACC + 4 * n + 2, ACC + 4 * n + 3))
            if "noy" not in self.ph: a("buffer_store_dwordx2 v[%d:%d], v10, s[20:23], s67 offen offset:%d sc1" % (o, o + 1, 512 * n))

    def s_ssm(self):
        a = self.a
        n = self.name
        a("s_sub_u32 s66, s3, 4")
        a("s_lshl_b32 s50, s66, 8")
        a("s_add_u32 s50, s50, s2")
        a("s_cmp_ge_u32 s66, 3")
        a("s_cbranch_scc1 %s_ssm_done" % n)
        if self.fused():
            l = self.newlab("nch")
            a("s_cmp_lt_u32 s50, 640")
            a("s_cbranch_scc1 %s" % l)
            a("s_branch %s_ssm_done" % n)
            a.lab(l)
        else:
            a("s_cmp_ge_u32 s50, 640")
            a("s_cbranch_scc1 %s_ssm_done" % n)
        self.jitter()
        if self.fused() and "g1" in self.ph:
            a("s_waitcnt vmcnt(0)")
        if "g1" not in self.ph:
            self.stamp(5)
            self.ssm_param_loads()
            self.kgen("all")
        elif "kghead" in self.ph:
            self.kgen("tail")
        else:
            self.kgen("rest")
        self.stamp(6)
        self.jitter()
        if not self.fused():
            self.conv_loads()
        self.conv()
        self.jitter()
        if "prioT" in self.ph or "prioT0" in self.ph: a("s_setprio 0")
        a("s_waitcnt vmcnt(0)")
        if self.fused():
            self.nonce_read(4)
            a("s_lshl_b32 s69, s50, 2")
            a("s_add_u32 s69, s69, %d" % WS_FY)
            self.flag_set("s69", 2)
        self.stamp(8)
        a.lab("%s_ssm_done" % n)

    G2_SETS = [80, 116, 152, 188]
    G2_VB, G2_VL, G2_VB8, G2_T, G2_VRS = 224, 228, 246, 230, 250

    def g2_setup(self):
        a = self.a
        VB, VL, VB8, T, VRS = self.G2_VB, self.G2_VL, self.G2_VB8, self.G2_T, self.G2_VRS
        a("v_mbcnt_lo_u32_b32 v%d, -1, 0" % T)
        a("v_mbcnt_hi_u32_b32 v%d, -1, v%d" % (T, T))
        a("v_lshlrev_b32 v%d, 4, v%d" % (VL, T))
        for tau in range(4):
            a("s_add_u32 s67, s3, %d" % tau)
            a("s_and_b32 s67, s67, 3")
            a("s_lshl_b32 s67, s67, 10")
            a("v_add_u32 v%d, s67, v%d" % (VB + tau, VL))
            a("v_lshlrev_b32 v%d, 3, v%d" % (VB8 + tau, T))
            a("v_add_u32 v%d, s67, v%d" % (VB8 + tau, VB8 + tau))
        a("s_mul_i32 s70, s6, 48")
        a("s_mul_i32 s67, s3, 12")
        a("s_add_u32 s70, s70, s67")
        a("s_lshl_b32 s70, s70, 12")
        if WS_H: a("s_add_u32 s70, s70, %d" % WS_H)
        a("s_mul_i32 s71, s7, 48")
        a("s_add_u32 s71, s71, s67")
        a("s_mul_i32 s71, s71, 5120")
        a("s_add_u32 s71, s71, %d" % WS_WD)
        a("s_add_u32 s72, s71, 4096")
        for tau in range(1, 4):
            a("s_add_u32 s67, s3, %d" % tau)
            a("s_and_b32 s67, s67, 3")
            a("s_mul_i32 s67, s67, 3")
            a("s_add_u32 s67, s67, %d" % (tau - 1))
            a("s_mul_i32 s67, s67, 5120")
            a("s_add_u32 s67, s67, %d" % LDS_RED)
            a("v_add_u32 v%d, s67, v%d" % (VRS + tau - 1, VL))
            a("s_mov_b32 s%d, s67" % (72 + tau))

    def g2_final_addrs(self):
        a = self.a
        T, VL = self.G2_T, self.G2_VL
        a("s_mul_i32 s67, s3, %d" % (3 * 5120))
        a("s_add_u32 s67, s67, %d" % LDS_RED)
        a("v_add_u32 v%d, s67, v%d" % (T + 1, VL))
        a("v_lshrrev_b32 v%d, 4, v%d" % (T + 2, T))
        a("v_and_b32 v%d, 15, v%d" % (T + 3, T))
        a("v_lshrrev_b32 v%d, 2, v%d" % (T + 4, T + 3))
        a("v_lshl_add_u32 v%d, v%d, 3, v%d" % (T + 5, T + 2, T + 4))
        a("v_lshl_add_u32 v%d, v%d, 2, v%d" % (T + 6, T + 2, T + 4))
        a("v_and_b32 v%d, 3, v%d" % (T + 7, T))
        a("v_lshlrev_b32 v%d, 3, v%d" % (T + 7, T + 7))
        a("s_lshl_b32 s67, s3, 5")
        a("s_add_u32 s67, s67, %d" % LDS_YT)
        a("v_add_u32 v%d, s67, v%d" % (T + 7, T + 7))
        a("v_lshl_add_u32 v%d, v%d, 7, v%d" % (T + 5, T + 5, T + 7))
        a("v_lshl_add_u32 v%d, v%d, 7, v%d" % (T + 6, T + 6, T + 7))
        a("s_lshl_b32 s67, s3, 6")
        a("s_add_u32 s67, s67, %d" % LDS_GT)
        a("v_lshl_add_u32 v%d, v%d, 2, s67" % (T + 8, T + 3))
        a("s_lshl_b32 s67, s6, 6")
        a("s_lshl_b32 s68, s3, 4")
        a("s_add_u32 s67, s67, s68")
        a("v_add_u32 v%d, s67, v%d" % (T + 9, T + 3))
        a("s_movk_i32 s68, 1280")
        a("v_mul_lo_u32 v%d, v%d, s68" % (T + 9, T + 9))
        a("s_mul_i32 s68, s7, 160")
        a("v_add_u32 v%d, s68, v%d" % (T + 9, T + 9))
        a("v_lshl_add_u32 v%d, v%d, 3, v%d" % (T + 10, T + 2, T + 9))
        a("v_lshl_add_u32 v%d, v%d, 4, v%d" % (T + 9, T + 2, T + 9))

    def g2_loadsA(self, S):
        VL = self.G2_VL
        L = []
        for dt in range(5):
            if dt < 4: L.append("buffer_load_dwordx4 v[%d:%d], v%d, s[20:23], s71 offen offset:%d sc1" % (S + 16 + 4 * dt, S + 19 + 4 * dt, VL, 1024 * dt))
            else: L.append(("buffer_load_dwordx4 v[%d:%d], v%d, s[20:23], s72 offen sc1" % (S + 16 + 4 * dt, S + 19 + 4 * dt, VL),
                            "s_add_u32 s71, s71, 5120", "s_add_u32 s72, s72, 5120"))
        return L

    def g2_burst_atoms(self):
        VL = self.G2_VL
        regl = []
        for k in range(4): regl += self.g2_loadsA(self.G2_SETS[k])
        dmal = []
        for tau in range(1, 4):
            dmal.append(("s_mov_b32 m0, s%d" % (72 + tau), "s_nop 0",
                         "buffer_load_dwordx4 v%d, s[20:23], s71 offen sc1 lds" % VL))
            for dt in range(1, 4):
                dmal.append("buffer_load_dwordx4 v%d, s[20:23], s71 offen offset:%d sc1 lds" % (VL, 1024 * dt))
            dmal.append(("s_add_u32 m0, s%d, 4096" % (72 + tau), "s_add_u32 s71, s71, 5120",
                         "buffer_load_dwordx4 v%d, s[20:23], s72 offen sc1 lds" % VL, "s_add_u32 s72, s72, 5120"))
        return regl, dmal

    def g_gemm2(self):
        a = self.a
        ACC = 0
        SETS = self.G2_SETS
        VB, VL, VB8, T, VRS = self.G2_VB, self.G2_VL, self.G2_VB8, self.G2_T, self.G2_VRS
        acc = lambda dt, tau: ACC + (dt * 4 + tau) * 4
        epb = "epb" in self.ph and "g1" in self.ph
        if not epb: self.g2_setup()
        loadsA = self.g2_loadsA
        def loadsB(S, k):
            L = []
            for tau in range(4):
                if k % 3 == 1:
                    x = ("buffer_load_dwordx2 v[%d:%d], v%d, s[20:23], s70 offen sc1" % (S + 4 * tau, S + 4 * tau + 1, VB8 + tau),
                         "buffer_load_dwordx2 v[%d:%d], v%d, s[20:23], s70 offen offset:512 sc1" % (S + 4 * tau + 2, S + 4 * tau + 3, VB8 + tau))
                else:
                    x = ("buffer_load_dwordx4 v[%d:%d], v%d, s[20:23], s70 offen sc1" % (S + 4 * tau, S + 4 * tau + 3, VB + tau),)
                L.append(x if tau < 3 else x + ("s_add_u32 s70, s70, 4096",))
            return L
        nB = lambda k: 8 if k % 3 == 1 else 4
        def mm(S, first):
            L = []
            for dt in range(5):
                for tau in range(4):
                    c = "0" if first else "v[%d:%d]" % (acc(dt, tau), acc(dt, tau) + 3)
                    L.append("v_mfma_f32_16x16x32_bf16 v[%d:%d], v[%d:%d], v[%d:%d], %s" % (acc(dt, tau), acc(dt, tau) + 3, S + 16 + 4 * dt, S + 19 + 4 * dt, S + 4 * tau, S + 4 * tau + 3, c))
            return L
        NS = 12
        pre = "g1" in self.ph and "nopre" not in self.ph
        VLOOK = 254
        if epb:
            if self.fused(): self.nonce_read(232)
            self.g_signal_h(0)
            if self.fused():
                a("s_lshr_b32 s79, s6, 1")
                a("s_lshl_b32 s79, s79, 7")
                a("s_lshl_b32 s67, s3, 4")
                a("s_add_u32 s79, s79, s67")
                a("s_add_u32 s79, s79, %d" % WS_FH)
                self.poll_line("s79", 4, VLOOK, sleep=3)
        elif "g1" in self.ph:
            if self.fused():
                self.nonce_read(232)
                a("v_mov_b32 v%d, 0" % VLOOK)
                l = self.newlab("lk"); l2 = self.newlab("lk")
                a("s_cmp_lg_u32 s3, 0")
                a("s_cbranch_scc1 %s" % l)
                a("s_lshl_b32 s79, s7, 8")
                a("s_add_u32 s79, s79, %d" % WS_FW)
                self.look_line("s79", 48, VLOOK)
                a("s_waitcnt vmcnt(1)")
                a("s_branch %s" % l2)
                a.lab(l)
                a("s_waitcnt vmcnt(0)")
                a.lab(l2)
                self.g_signal_h(None)
            else:
                self.g_signal_h(0)
        if pre and not epb:
            if self.fused():
                lo = self.newlab("ww"); ld = self.newlab("wd")
                a("s_cmp_lg_u32 s3, 0")
                a("s_cbranch_scc1 %s" % lo)
                self.lds_spin(LDS_SFREE, 232, 4)
                self.lds_spin(LDS_UOK, 232, 3)
                if "gapstamps" in self.ph: self.stamp(2, force=True)
                self.check_line("s79", VLOOK, 0)
                if "gapstamps" in self.ph: self.stamp(3, force=True)
                a("v_mov_b32 v232, %d" % LDS_WOK)
                a("v_mov_b32 v233, 1")
                a("ds_write_b32 v232, v233")
                if "hall" in self.ph:
                    a("s_lshr_b32 s79, s6, 1")
                    a("s_lshl_b32 s79, s79, 7")
                    a("s_add_u32 s79, s79, %d" % WS_FH)
                    self.look_line("s79", 16, VLOOK)
                a("s_branch %s" % ld)
                a.lab(lo)
                self.lds_spin(LDS_WOK, 232)
                a.lab(ld)
                if "hall" not in self.ph:
                    a("s_lshr_b32 s79, s6, 1")
                    a("s_lshl_b32 s79, s79, 7")
                    a("s_lshl_b32 s67, s3, 4")
                    a("s_add_u32 s79, s79, s67")
                    a("s_add_u32 s79, s79, %d" % WS_FH)
                    self.look_line("s79", 4, VLOOK)
            if "gapstamps" in self.ph: self.stamp(4, force=True)
            self.jitter()
            regl, dmal = self.g2_burst_atoms()
            a.ext(flat(regl)); a.ext(flat(dmal))
            if "gapstamps" in self.ph: self.stamp(5, force=True)
        fintrim = "fintrim" in self.ph
        if fintrim: self.g2_final_addrs()
        if not epb: self.g2_wait_inputs(looked=pre)
        if "gapstamps" in self.ph: self.stamp(6, force=True)
        self.jitter()
        self.stamp(5)
        self.clk(5)
        def srcA(k):
            if not pre: return "g"
            return "pre" if k < 4 else ("lds" if k < 7 else "g")
        def loadA_any(k):
            S = SETS[k % 4]
            if srcA(k) == "g": return loadsA(S)
            if srcA(k) == "lds":
                return ["ds_read_b128 v[%d:%d], v%d offset:%d" % (S + 16 + 4 * dt, S + 19 + 4 * dt, VRS + k - 4, 1024 * dt) for dt in range(5)]
            return []
        nL = lambda k: nB(k) + (5 if srcA(k) == "g" else 0)
        deep = "deepB" in self.ph and pre
        def M(S, dt, tau, first):
            c = "0" if first else "v[%d:%d]" % (acc(dt, tau), acc(dt, tau) + 3)
            return "v_mfma_f32_16x16x32_bf16 v[%d:%d], v[%d:%d], v[%d:%d], %s" % (acc(dt, tau), acc(dt, tau) + 3, S + 16 + 4 * dt, S + 19 + 4 * dt, S + 4 * tau, S + 4 * tau + 3, c)
        W = lambda dt, tau: "ds_write_b128 v%d, v[%d:%d] offset:%d" % (VRS + tau - 1, acc(dt, tau), acc(dt, tau) + 3, 1024 * dt)
        gk = 7 if "gok7" in self.ph else (6 if "gok6" in self.ph else NS - 4)
        if deep:
            vm = []
            def nvm(atoms): return sum(1 for x in flat(atoms) if x.startswith("buffer_"))
            def issue(tag, atoms): vm.extend([tag] * nvm(atoms))
            for k in range(4):
                L = loadsB(SETS[k], k); a.ext(flat(L)); issue(("B", k), L)
            for k in range(NS):
                S = SETS[k % 4]
                need = [i for i, t in enumerate(vm) if t in (("B", k), ("A", k))]
                rem = len(vm) - 1 - max(need)
                if srcA(k) == "lds": a("s_waitcnt vmcnt(%d) lgkmcnt(0)" % rem)
                else: a("s_waitcnt vmcnt(%d)" % rem)
                if "gapstamps" in self.ph and k == 0: self.stamp(7, force=True)
                LA = loadA_any(k + 3) if k + 3 < NS else []
                LB = loadsB(S, k + 4) if k + 4 < NS else []
                if k == NS - 1 and fintrim:
                    for dt in range(5): a(M(S, dt, 1, False))
                    for dt in range(5): a(M(S, dt, 2, False))
                    for dt in range(5): a(M(S, dt, 3, False)); a(W(dt, 1))
                    for dt in range(5): a(M(S, dt, 0, False)); a(W(dt, 2))
                    for dt in range(5): a(W(dt, 3))
                else:
                    ai = 0
                    for tau in range(4):
                        for dt in range(5):
                            a(M(S, dt, tau, k == 0))
                            if dt in (1, 3) and ai < len(LA):
                                a.ext(flat([LA[ai]]));
                                if nvm([LA[ai]]): issue(("A", k + 3), [LA[ai]])
                                ai += 1
                        if LB: a.ext(flat([LB[tau]])); issue(("B", k + 4), [LB[tau]])
                    while ai < len(LA):
                        a.ext(flat([LA[ai]]))
                        if nvm([LA[ai]]): issue(("A", k + 3), [LA[ai]])
                        ai += 1
                if k == gk and self.fused(): self.lds_inc(LDS_GOK, 232)
        else:
            for k in range(3):
                a.ext(flat(loadsB(SETS[k], k) + loadA_any(k)))
            for k in range(NS):
                rem = sum(nL(j) for j in range(k + 1, min(NS - 1, k + 2) + 1))
                if srcA(k) == "lds": a("s_waitcnt vmcnt(%d) lgkmcnt(0)" % rem)
                else: a("s_waitcnt vmcnt(%d)" % rem)
                fill = (loadsB(SETS[(k + 3) % 4], k + 3) + loadA_any(k + 3)) if k + 3 < NS else []
                if "k2stamps" in self.ph and k < 9: self.stamp(k + 1, force=True)
                if k == NS - 1 and fintrim:
                    S = SETS[k % 4]
                    for dt in range(5): a(M(S, dt, 1, False))
                    for dt in range(5): a(M(S, dt, 2, False))
                    for dt in range(5): a(M(S, dt, 3, False)); a(W(dt, 1))
                    for dt in range(5): a(M(S, dt, 0, False)); a(W(dt, 2))
                    for dt in range(5): a(W(dt, 3))
                else:
                    a.ext(interleave(mm(SETS[k % 4], k == 0), fill))
                if k == gk and self.fused(): self.lds_inc(LDS_GOK, 232)
        self.stamp(6)
        self.clk(7)
        if not fintrim:
            a("s_nop 7")
            for tau in range(1, 4):
                for dt in range(5):
                    a("ds_write_b128 v%d, v[%d:%d] offset:%d" % (VRS + tau - 1, acc(dt, tau), acc(dt, tau) + 3, 1024 * dt))
        a("s_waitcnt lgkmcnt(0)")
        self.jitter()
        a("s_barrier")
        self.stamp(7)
        if not fintrim: self.g2_final_addrs()
        R = 80
        for j in range(3):
            for dt in range(5):
                r = R + (j * 5 + dt) * 4
                a("ds_read_b128 v[%d:%d], v%d offset:%d" % (r, r + 3, T + 1, 5120 * j + 1024 * dt))
        Y = 140
        for dt in range(5):
            if dt < 4: a("ds_read_b64_tr_b16 v[%d:%d], v%d offset:%d" % (Y + 2 * dt, Y + 2 * dt + 1, T + 5, 128 * (32 * (dt >> 1) + 4 * (dt & 1))))
            else: a("ds_read_b64_tr_b16 v[%d:%d], v%d offset:%d" % (Y + 2 * dt, Y + 2 * dt + 1, T + 6, 128 * 64))
        a("ds_read_b32 v%d, v%d" % (T + 8, T + 8))
        a("s_waitcnt lgkmcnt(0)")
        for dt in range(5):
            for h in range(2):
                x = acc(dt, 0) + 2 * h
                p = [R + (j * 5 + dt) * 4 + 2 * h for j in range(3)]
                a("v_pk_add_f32 v[%d:%d], v[%d:%d], v[%d:%d]" % (p[0], p[0] + 1, p[0], p[0] + 1, p[1], p[1] + 1))
                a("v_pk_add_f32 v[%d:%d], v[%d:%d], v[%d:%d]" % (x, x + 1, x, x + 1, p[2], p[2] + 1))
        for dt in range(5):
            for h in range(2):
                x = acc(dt, 0) + 2 * h
                p = R + dt * 4 + 2 * h
                a("v_pk_add_f32 v[%d:%d], v[%d:%d], v[%d:%d]" % (x, x + 1, x, x + 1, p, p + 1))
        U = 150
        for dt in range(5):
            for h in range(2):
                a("v_lshlrev_b32 v%d, 16, v%d" % (U + 4 * dt + 2 * h, Y + 2 * dt + h))
                a("v_and_b32 v%d, 0xffff0000, v%d" % (U + 4 * dt + 2 * h + 1, Y + 2 * dt + h))
        G2 = T + 12
        assert G2 % 2 == 0
        a("v_mov_b32 v%d, v%d" % (G2, T + 8))
        a("v_mov_b32 v%d, v%d" % (G2 + 1, T + 8))
        for dt in range(5):
            for h in range(2):
                x = acc(dt, 0) + 2 * h; u = U + 4 * dt + 2 * h
                a("v_pk_add_f32 v[%d:%d], v[%d:%d], v[%d:%d] neg_lo:[0,1] neg_hi:[0,1]" % (u, u + 1, u, u + 1, x, x + 1))
        for dt in range(5):
            for h in range(2):
                x = acc(dt, 0) + 2 * h; u = U + 4 * dt + 2 * h
                a("v_pk_fma_f32 v[%d:%d], v[%d:%d], v[%d:%d], v[%d:%d]" % (x, x + 1, u, u + 1, G2, G2 + 1, x, x + 1))
        O = 176
        for dt in range(5):
            for h in range(2):
                x = acc(dt, 0) + 2 * h
                a("v_cvt_pk_bf16_f32 v%d, v%d, v%d" % (O + 2 * dt + h, x, x + 1))
        fl = " sc1" if "outsc1" in self.ph else (" nt" if "outnt" in self.ph else "")
        a("buffer_store_dwordx4 v[%d:%d], v%d, s[24:27], 0 offen%s" % (O, O + 3, T + 9, fl))
        a("buffer_store_dwordx4 v[%d:%d], v%d, s[24:27], 0 offen offset:64%s" % (O + 4, O + 7, T + 9, fl))
        a("buffer_store_dwordx2 v[%d:%d], v%d, s[24:27], 0 offen offset:128%s" % (O + 8, O + 9, T + 10, fl))
        self.stamp(8)

    def g2_wait_inputs(self, looked=False):
        if not self.fused(): return
        a = self.a
        T = 232
        if looked and "hall" not in self.ph:
            self.check_line("s79", 254, 35, sleep=4)
            return
        lo = self.newlab("hw"); ld = self.newlab("hd")
        a("s_cmp_lg_u32 s3, 0")
        a("s_cbranch_scc1 %s" % lo)
        if looked:
            self.check_line("s79", 254, 35)
        else:
            a("s_lshr_b32 s78, s6, 1")
            a("s_lshl_b32 s78, s78, 7")
            a("s_add_u32 s78, s78, %d" % WS_FH)
            self.poll_line("s78", 16, T, sleep=4)
        a("v_mov_b32 v%d, %d" % (T, LDS_HOK))
        a("v_mov_b32 v%d, 1" % (T + 1))
        a("ds_write_b32 v%d, v%d" % (T, T + 1))
        a("s_branch %s" % ld)
        a.lab(lo)
        self.lds_spin(LDS_HOK, T)
        a.lab(ld)

    def s_final(self):
        a = self.a
        n = self.name
        l = self.newlab("fin")
        a("s_cmp_lg_u32 s3, 7")
        a("s_cbranch_scc1 %s" % l)
        if self.fused(): self.lds_spin(LDS_GOK, 2, 4)
        self.jitter()
        self.y_wait_inputs()
        a("v_mbcnt_lo_u32_b32 v0, -1, 0")
        a("v_mbcnt_hi_u32_b32 v0, -1, v0")
        a("v_lshrrev_b32 v1, 3, v0")
        a("v_mul_u32_u24 v1, %d, v1" % ROWS)
        a("v_and_b32 v2, 7, v0")
        a("v_lshl_add_u32 v1, v2, 4, v1")
        a("s_mul_i32 s67, s7, %d" % (80 * ROWS))
        a("s_lshl_b32 s68, s6, 7")
        a("s_add_u32 s67, s67, s68")
        a("s_add_u32 s67, s67, %d" % WS_Y)
        for i in range(10):
            a("buffer_load_dwordx4 v[%d:%d], v1, s[20:23], s67 offen sc1" % (8 + 4 * i, 11 + 4 * i))
            if i < 9: a("s_add_u32 s67, s67, %d" % (8 * ROWS))
        a("s_lshl_b32 s67, s6, 8")
        a("s_add_u32 s67, s67, %d" % WS_G)
        a("v_lshlrev_b32 v3, 2, v0")
        a("buffer_load_dword v4, v3, s[20:23], s67 offen sc1")
        if self.fused() and "nonearly" not in self.ph: self.nonce_look()
        a("v_lshlrev_b32 v2, 4, v0")
        a("v_add_u32 v2, %d, v2" % LDS_YT)
        a("v_add_u32 v3, %d, v3" % LDS_GT)
        a("s_waitcnt vmcnt(0)")
        for i in range(10):
            a("ds_write_b128 v2, v[%d:%d] offset:%d" % (8 + 4 * i, 11 + 4 * i, 1024 * i))
        a("ds_write_b32 v3, v4")
        a("s_waitcnt lgkmcnt(0)")
        a("s_barrier")
        if self.fused() and "nonearly" not in self.ph: self.nonce_update(looked=True)
        a("s_branch %s_fd" % l)
        a.lab(l)
        a("s_barrier")
        a.lab("%s_fd" % l)

    def y_wait_inputs(self):
        if not self.fused(): return
        a = self.a
        a("v_mbcnt_lo_u32_b32 v0, -1, 0")
        a("v_mbcnt_hi_u32_b32 v0, -1, v0")
        a("s_mul_i32 s67, s7, 320")
        a("s_add_u32 s67, s67, %d" % WS_FY)
        a("v_lshl_add_u32 v1, v0, 2, s67")
        a("v_add_u32 v2, 256, v1")
        a("s_lshl_b32 s68, s6, 5")
        a("s_add_u32 s68, s68, %d" % (WS_FG - 64))
        a("v_lshl_add_u32 v3, v0, 2, s68")
        a("v_cmp_le_u32 vcc, 16, v0")
        a("s_nop 1")
        a("v_cndmask_b32 v2, v2, v3, vcc")
        a("v_subrev_u32 v3, 24, v0")
        a("v_lshlrev_b32 v3, 10, v3")
        a("s_lshl_b32 s68, s2, 2")
        a("s_add_u32 s68, s68, %d" % WS_FY)
        a("v_add_u32 v3, s68, v3")
        a("v_cmp_le_u32 vcc, 24, v0")
        a("s_nop 1")
        a("v_cndmask_b32 v2, v2, v3, vcc")
        a("s_cmp_lt_u32 s2, 128")
        a("s_cselect_b32 s68, 27, 26")
        a("v_mov_b32 v3, s67")
        a("v_cmp_le_u32 vcc, s68, v0")
        a("s_nop 1")
        a("v_cndmask_b32 v2, v2, v3, vcc")
        def loads():
            a("buffer_load_dword v4, v1, s[20:23], 0 offen sc1")
            a("buffer_load_dword v5, v2, s[20:23], 0 offen sc1")
        self.poll(loads, [4, 5], 6, sleep=8)

    def fused(self): return "fused" in self.ph

    def nonce_load(self):
        a = self.a
        if "snonce" in self.ph:
            a("s_add_u32 s68, s%d, %d" % (P_WS, WS_NON))
            a("s_addc_u32 s69, s%d, 0" % (P_WS + 1))
            a("s_load_dword s55, s[68:69], 0")
            return
        a("v_mov_b32 v1, 0")
        a("s_mov_b32 s67, %d" % WS_NON)
        a("buffer_load_dword v242, v1, s[20:23], s67 offen sc1")
    def nonce_publish_local(self):
        a = self.a
        if "snonce" in self.ph:
            a("s_waitcnt lgkmcnt(0)")
            a("s_add_u32 s64, s55, 1")
            a("v_mov_b32 v242, s64")
            a("v_mov_b32 v1, %d" % LDS_NONCE)
            a("ds_write_b32 v1, v242")
            return
        a("v_add_u32 v242, 1, v242")
        a("v_mov_b32 v1, %d" % LDS_NONCE)
        a("ds_write_b32 v1, v242")
        a("v_readfirstlane_b32 s64, v242")
    def nonce_look(self):
        a = self.a
        l = self.newlab("nl")
        a("v_mov_b32 v59, 0")
        a("s_cmp_lg_u32 s2, 0")
        a("s_cbranch_scc1 %s" % l)
        a("v_lshlrev_b32 v59, 4, v0")
        a("s_mov_b32 s78, %d" % WS_FG)
        a("buffer_load_dwordx4 v[60:63], v59, s[20:23], s78 offen sc1")
        a.lab(l)
    def nonce_update(self, looked=False):
        a = self.a
        l = self.newlab("nu"); l2 = self.newlab("nu")
        a("s_cmp_lg_u32 s2, 0")
        a("s_cbranch_scc1 %s" % l)
        if looked:
            for i in range(4):
                if i == 0: a("v_cmp_eq_u32 vcc, s64, v60")
                else:
                    a("v_cmp_eq_u32 s[76:77], s64, v%d" % (60 + i))
                    a("s_nop 1")
                    a("s_and_b64 vcc, vcc, s[76:77]")
            a("s_nop 1")
            a("s_cmp_eq_u64 vcc, -1")
            a("s_cbranch_scc1 %s" % l2)
        a("v_mbcnt_lo_u32_b32 v2, -1, 0")
        a("v_mbcnt_hi_u32_b32 v2, -1, v2")
        a("v_lshlrev_b32 v2, 4, v2")
        a("s_mov_b32 s78, %d" % WS_FG)
        self.poll(lambda: a("buffer_load_dwordx4 v[4:7], v2, s[20:23], s78 offen sc1"), [4, 5, 6, 7], 2, sleep=8)
        a.lab(l2)
        a("s_mov_b32 s69, %d" % WS_NON)
        self.flag_set("s69", 2)
        a.lab(l)

    def nonce_read(self, vt):
        a = self.a
        a("v_mov_b32 v%d, %d" % (vt, LDS_NONCE))
        a("ds_read_b32 v%d, v%d" % (vt, vt))
        a("s_waitcnt lgkmcnt(0)")
        a("v_readfirstlane_b32 s64, v%d" % vt)
        a("s_nop 1")

    def flag_set(self, soff_reg, vt):
        a = self.a
        a("v_mov_b32 v%d, s64" % vt)
        a("v_mov_b32 v%d, 0" % (vt + 1))
        a("s_mov_b64 exec, 1")
        a("buffer_store_dword v%d, v%d, s[20:23], %s offen sc1" % (vt, vt + 1, soff_reg))
        a("s_mov_b64 exec, -1")

    def poll(self, loads, vregs, vt, sleep=8):
        a = self.a
        lp = self.newlab("pl"); ld = self.newlab("pd")
        a("s_mov_b32 s69, 0")
        a.lab(lp)
        loads()
        a("s_waitcnt vmcnt(0)")
        for i, r in enumerate(vregs):
            if i == 0: a("v_cmp_eq_u32 vcc, s64, v%d" % r)
            else:
                a("v_cmp_eq_u32 s[76:77], s64, v%d" % r)
                a("s_nop 1")
                a("s_and_b64 vcc, vcc, s[76:77]")
        a("s_nop 1")
        a("s_cmp_eq_u64 vcc, -1")
        a("s_cbranch_scc1 %s" % ld)
        a("s_add_u32 s69, s69, 1")
        a("s_cmp_lt_u32 s69, 0x40000")
        a("s_cbranch_scc0 %s" % ld)
        a("s_sleep %d" % sleep)
        a("s_branch %s" % lp)
        a.lab(ld)

    def look_line(self, soff, nflags, vt):
        a = self.a
        a("v_mbcnt_lo_u32_b32 v%d, -1, 0" % vt)
        a("v_mbcnt_hi_u32_b32 v%d, -1, v%d" % (vt, vt))
        a("v_cmp_gt_u32 vcc, %d, v%d" % (nflags, vt))
        a("v_lshlrev_b32 v%d, 2, v%d" % (vt, vt))
        a("s_nop 0")
        a("v_cndmask_b32 v%d, 0, v%d, vcc" % (vt, vt))
        a("buffer_load_dword v%d, v%d, s[20:23], %s offen sc1" % (vt + 1, vt, soff))

    def check_line(self, soff, vt, nyounger, sleep=2):
        a = self.a
        l = self.newlab("ck")
        a("s_waitcnt vmcnt(%d)" % nyounger)
        a("v_cmp_eq_u32 vcc, s64, v%d" % (vt + 1))
        a("s_nop 1")
        a("s_cmp_eq_u64 vcc, -1")
        a("s_cbranch_scc1 %s" % l)
        self.poll(lambda: a("buffer_load_dword v%d, v%d, s[20:23], %s offen sc1" % (vt + 1, vt, soff)), [vt + 1], vt, sleep)
        a.lab(l)

    def poll_line(self, soff, nflags, vt, sleep=8):
        a = self.a
        a("v_mbcnt_lo_u32_b32 v%d, -1, 0" % vt)
        a("v_mbcnt_hi_u32_b32 v%d, -1, v%d" % (vt, vt))
        a("v_cmp_gt_u32 vcc, %d, v%d" % (nflags, vt))
        a("v_lshlrev_b32 v%d, 2, v%d" % (vt, vt))
        a("s_nop 0")
        a("v_cndmask_b32 v%d, 0, v%d, vcc" % (vt, vt))
        self.poll(lambda: a("buffer_load_dword v%d, v%d, s[20:23], %s offen sc1" % (vt + 1, vt, soff)), [vt + 1], vt, sleep)

    def build(self):
        a = self.a
        n = self.name
        a.l.append(".globl %s" % n)
        a.l.append(".p2align 8")
        a.l.append(".type %s,@function" % n)
        a.l.append("%s:" % n)
        self.prologue()
        self.jitter()
        a("s_cmp_ge_u32 s3, 4")
        a("s_cbranch_scc1 %s_S" % n)
        if "g1" in self.ph:
            self.g_gemm1()
        if "g2" in self.ph:
            self.g_gemm2()
        self.dbgtime_end()
        self.stamp_flush()
        a("s_endpgm")
        a.lab("%s_S" % n)
        if "g1" in self.ph:
            self.s_phase1()
        if "ssm" in self.ph:
            self.s_ssm()
        if "g2" in self.ph:
            self.s_final()
        self.stamp_flush()
        a.lab("%s_end" % n)
        a("s_endpgm")
        return a.text()

def kd(name):
    return """.amdhsa_kernel %s
  .amdhsa_next_free_vgpr 256
  .amdhsa_next_free_sgpr 102
  .amdhsa_accum_offset 256
  .amdhsa_group_segment_fixed_size 0
  .amdhsa_kernarg_size 136
  .amdhsa_user_sgpr_count 2
  .amdhsa_user_sgpr_kernarg_segment_ptr 1
  .amdhsa_system_sgpr_workgroup_id_x 1
.end_amdhsa_kernel
""" % name

HEADER = open("gated_mix__ssm_conv_s4__swiglu_ffn__prompt.s.ref").read().split("; Override launch")[0]

DOC = """;
;     by buffer_load ... lds, k order rotated per workgroup); epilogue h = silu(g) * u -> bf16, stored as MFMA B fragments in d_ws.
;     values = r + 16 j patterns, so exp factors into two small power tables (complex recurrences) contracted over the 192 modes
"""

def emit(kernels, path):
    txt = HEADER
    if len(kernels) == 1:
        txt += "; @launch grid=(256,1,1) block=(512,1,1) lds=%d\n" % LDS_TOTAL
    else:
        for (n, p, s) in kernels:
            txt += "; @launch kernel=%s grid=(256,1,1) block=(512,1,1) lds=%d\n" % (n, LDS_TOTAL)
    txt += DOC
    txt += '.amdgcn_target "amdgcn-amd-amdhsa--gfx950"\n.text\n'
    for (n, p, s) in kernels:
        txt += Gen(n, p, s).build()
    txt += '.section .rodata,"a"\n'
    for (n, p, s) in kernels:
        txt += ".p2align 6\n" + kd(n)
    open(path, "w").write(txt)

if __name__ == "__main__":
    mode = sys.argv[1]; path = sys.argv[2]
    stamps = len(sys.argv) > 3 and sys.argv[3] == "stamps"
    if mode.startswith("g1+") or mode == "g1":
        emit([(KNAME, set(mode.split("+")), stamps)], path)
    elif mode == "g1,ssm":
        emit([("ka_kernel", {"g1"}, False), ("kb_kernel", {"ssm", "dumpk"}, stamps)], path)
    elif mode == "3k":
        emit([("ka_kernel", {"g1"}, False), ("kb_kernel", {"ssm"}, False), ("kc_kernel", {"g2"}, stamps)], path)
    elif mode == "3k+1":
        emit([("ka_kernel", {"g1"}, False), ("kb_kernel", {"ssm"}, False), ("kc_kernel", {"g2"}, stamps), ("kd_kernel", set(), False)], path)
    elif mode == "3k+3":
        emit([("ka_kernel", {"g1"}, False), ("kb_kernel", {"ssm"}, False), ("kc_kernel", {"g2"}, stamps), ("kd_kernel", set(), False), ("ke_kernel", set(), False), ("kf_kernel", set(), False)], path)
    elif mode == "3k_dbg":
        emit([("ka_kernel", {"g1", "dbgtime"}, False), ("kb_kernel", {"ssm"}, False), ("kc_kernel", {"g2", "dbgtime"}, False)], path)
    elif mode == "fused":
        emit([(KNAME, {"g1", "ssm", "g2", "fused"}, stamps)], path)
    elif mode == "fused_notouch":
        emit([(KNAME, {"g1", "ssm", "g2", "fused", "notouch"}, stamps)], path)
    elif mode == "fused_pk":
        emit([(KNAME, {"g1", "ssm", "g2", "fused", "pkhead"}, stamps)], path)
    elif mode.startswith("F:"):
        emit([(KNAME, {"g1", "ssm", "g2", "fused"} | set(mode[2:].split("+")), stamps)], path)
    elif mode == "fused_dbg":
        emit([(KNAME, {"g1", "ssm", "g2", "fused", "dbgtime"}, stamps)], path)
    elif mode == "g1,ssm,nodump":
        emit([("ka_kernel", {"g1"}, False), ("kb_kernel", {"ssm"}, stamps)], path)
```

```python
import sys, math

KNAME = "gated_mix__ssm_conv_s4__swiglu_ffn__prompt_kernel"

WS_H    = 0x000000
WS_WD   = 0x600000
ROWS    = 4224
WS_UT   = 0x800000
WS_Y    = 0xB00000
WS_G    = 0xE00000
WS_FU   = 0xE10000
WS_FW   = 0xE15000
WS_FH   = 0xE11000
WS_FY   = 0xE12000
WS_NON  = 0xE13000
WS_FG   = 0xE14000
WS_TS   = 0xF00000
WS_DBG  = 0x1000000

STAGE   = 40960
ST_WG   = 16384
ST_WU   = 28672
LDS_S   = 3 * STAGE
TABROW  = 272
TABTILE = 16 * TABROW
TAB_SZ  = 2 * TABTILE
LDS_TAB = LDS_S
KR_SZ   = 4224
LDS_KR  = LDS_TAB + 3 * TAB_SZ
LDS_MISC = LDS_KR + 3 * KR_SZ
LDS_TOTAL = 163840
LDS_NONCE = LDS_MISC
LDS_CNT   = LDS_MISC + 8
UC_STRIDE = 4640
UC_SZ   = 4 * UC_STRIDE
LDS_UC  = 0
LDS_WDS_EARLY = 148992
LDS_RED = 57344
LDS_YT  = LDS_TAB
LDS_GT  = LDS_MISC + 64
LDS_HOK = LDS_MISC + 12
LDS_WOK = LDS_MISC + 16
LDS_UOK = LDS_MISC + 20
LDS_GOK = LDS_MISC + 24
LDS_UCOK = LDS_MISC + 28
LDS_SFREE = LDS_MISC + 32

class Asm:
    def __init__(self):
        self.l = []
    def __call__(self, s):
        for x in s.split("\n"):
            x = x.strip()
            if x: self.l.append("    " + x)
    def lab(self, s):
        self.l.append(s + ":")
    def ext(self, lst):
        for x in lst: self(x)
    def text(self):
        return "\n".join(self.l) + "\n"

def interleave(main, fill, start=0, span=None):
    out = []
    m = len(fill)
    n = len(main) if span is None else min(len(main), start + span)
    j = 0
    for i, x in enumerate(main):
        out.append(x)
        if i >= start:
            tgt = (m * (i - start + 1) + (n - start) - 1) // (n - start) if n > start else m
            while j < min(tgt, m):
                f = fill[j]
                if isinstance(f, tuple): out.extend(f)
                else: out.append(f)
                j += 1
    while j < m:
        f = fill[j]
        if isinstance(f, tuple): out.extend(f)
        else: out.append(f)
        j += 1
    return out

def flat(L):
    o = []
    for x in L:
        if isinstance(x, tuple): o.extend(x)
        else: o.append(x)
    return o

def vr(a, n=1):
    return "v%d" % a if n == 1 else "v[%d:%d]" % (a, a + n - 1)
def sr(a, n=1):
    return "s%d" % a if n == 1 else "s[%d:%d]" % (a, a + n - 1)

S_W, S_WAVE, S_M, S_N, S_M2, S_N2 = 2, 3, 4, 5, 6, 7
SRD_X, SRD_WG, SRD_WU, SRD_WS, SRD_OUT, SRD_WD = 8, 12, 16, 20, 24, 28
P_U, P_ARE, P_AIM, P_BRE, P_BIM, P_CRE, P_CIM, P_LDT = 32, 34, 36, 38, 40, 42, 44, 46
P_DSK, P_BX, P_WG, P_WU, P_WD, P_GW, P_OUT, P_DBG, P_WS = 48, 50, 52, 54, 56, 58, 60, 62, 64
S_TS = 80

class Gen:
    def __init__(self, name, phases, stamps=False):
        self.name = name
        self.ph = phases
        self.a = Asm()
        self.stamps = stamps
        self.nlab = 0
    def newlab(self, p):
        self.nlab += 1
        return "L_%s_%s_%d" % (self.name[:6], p, self.nlab)

    def capture(self, fn):
        old = self.a
        self.a = Asm()
        fn()
        lst = [x.strip() for x in self.a.l]
        self.a = old
        return lst

    def jitter(self):
        if "jitter" not in self.ph: return
        a = self.a
        l = self.newlab("jt"); d = self.newlab("jd")
        a("s_memtime s[90:91]")
        a("s_waitcnt lgkmcnt(0)")
        a("s_mul_i32 s90, s90, 0x9e3779b1")
        a("s_lshr_b32 s90, s90, 25")
        a("s_cmp_ge_u32 s90, 64")
        a("s_cbranch_scc1 %s" % d)
        a.lab(l)
        a("s_cmp_eq_u32 s90, 0")
        a("s_cbranch_scc1 %s" % d)
        a("s_sleep 2")
        a("s_sub_u32 s90, s90, 1")
        a("s_branch %s" % l)
        a.lab(d)

    def clk(self, i):
        if "clk" in self.ph and self.stamps:
            self.a("s_memrealtime s[%d:%d]" % (S_TS + 2 * i, S_TS + 2 * i + 1))
            self.a("s_memtime s[%d:%d]" % (S_TS + 2 * i + 2, S_TS + 2 * i + 3))
            self.a("s_waitcnt lgkmcnt(0)")

    def stamp(self, i, force=False):
        if "clk" in self.ph and i != 0: return
        if ("kstamps" in self.ph or "k2stamps" in self.ph or "ststamps" in self.ph or "gapstamps" in self.ph) and not force and i != 0: return
        if self.stamps:
            self.a("%s s[%d:%d]" % ("s_memrealtime" if "rt" in self.ph else "s_memtime", S_TS + 2 * i, S_TS + 2 * i + 1))
            self.a("s_waitcnt lgkmcnt(0)")
    def stamp_flush(self):
        if not self.stamps: return
        a = self.a
        a("s_lshl_b32 s66, s2, 3")
        a("s_add_u32 s66, s66, s3")
        a("s_lshl_b32 s66, s66, 7")
        a("s_add_u32 s66, s66, 0x%x" % WS_TS)
        a("v_mov_b32 v250, 0")
        for i in range(10):
            a("v_mov_b32 v252, s%d" % (S_TS + 2 * i))
            a("v_mov_b32 v253, s%d" % (S_TS + 2 * i + 1))
            a("buffer_store_dwordx2 v[252:253], v250, s[20:23], s66 offen offset:%d" % (8 * i))
            a("s_nop 1")
        a("s_waitcnt vmcnt(0)")

    def prologue(self):
        a = self.a
        a("s_cmp_ge_u32 s2, 256")
        a("s_cbranch_scc1 %s_end" % self.name)
        a("s_load_dwordx16 s[32:47], s[0:1], 0")
        a("s_load_dwordx16 s[48:63], s[0:1], 64")
        a("s_load_dwordx2 s[64:65], s[0:1], 128")
        if "warmc0" in self.ph: self.warm_code(early=True)
        a("v_lshrrev_b32 v1, 6, v0")
        a("v_and_b32 v0, 63, v0")
        a("v_readfirstlane_b32 s3, v1")
        a("s_and_b32 s66, s2, 7")
        a("s_lshr_b32 s67, s2, 3")
        a("s_and_b32 s68, s67, 7")
        a("s_lshr_b32 s69, s67, 3")
        a("s_and_b32 s70, s66, 1")
        a("s_lshl_b32 s70, s70, 3")
        a("s_or_b32 s4, s70, s68")
        a("s_lshr_b32 s70, s66, 1")
        a("s_lshl_b32 s70, s70, 2")
        a("s_or_b32 s5, s70, s69")
        a("s_and_b32 s70, s66, 3")
        a("s_lshl_b32 s70, s70, 3")
        a("s_or_b32 s6, s70, s68")
        a("s_lshr_b32 s70, s66, 2")
        a("s_lshl_b32 s70, s70, 2")
        a("s_or_b32 s7, s70, s69")
        if "sametile" in self.ph:
            a("s_mov_b32 s4, 0"); a("s_mov_b32 s5, 0")
        if "samem" in self.ph:
            a("s_mov_b32 s4, 0")
        if "samen" in self.ph:
            a("s_mov_b32 s5, 0")
        if self.stamps:
            for i in range(10):
                a("s_mov_b64 s[%d:%d], 0" % (S_TS + 2 * i, S_TS + 2 * i + 1))
        a("s_waitcnt lgkmcnt(0)")
        def srd(base, ptr, size):
            a("s_mov_b32 s%d, s%d" % (base, ptr))
            a("s_and_b32 s%d, s%d, 0xffff" % (base + 1, ptr + 1))
            a("s_mov_b32 s%d, 0x%x" % (base + 2, size))
            a("s_mov_b32 s%d, 0x20000" % (base + 3))
        srd(SRD_X, P_U, 2048 * 640 * 2)
        srd(SRD_WG, P_WG, 640 * 1536 * 2)
        srd(SRD_WU, P_WU, 640 * 1536 * 2)
        srd(SRD_WS, P_WS, 0x10000000)
        srd(SRD_OUT, P_OUT, 2048 * 640 * 2)
        srd(SRD_WD, P_WD, 640 * 1536 * 2)
        self.stamp(0)
        if "dbgtime" in self.ph:
            a("s_memrealtime s[96:97]")
            a("s_memtime s[98:99]")
            a("s_mov_b64 s[100:101], s[62:63]")
            a("s_waitcnt lgkmcnt(0)")

    def dbgtime_end(self):
        a = self.a
        if "dbgtime" not in self.ph: return
        l = self.newlab("dbt")
        a("s_cmp_lg_u32 s2, 0"); a("s_cbranch_scc1 %s" % l)
        a("s_cmp_lg_u32 s3, 0"); a("s_cbranch_scc1 %s" % l)
        a("s_waitcnt vmcnt(0)")
        a("s_memrealtime s[92:93]")
        a("s_memtime s[94:95]")
        a("s_waitcnt lgkmcnt(0)")
        a("s_sub_u32 s92, s92, s96")
        a("s_sub_u32 s94, s94, s98")
        a("v_mov_b32 v250, 0")
        a("v_mov_b32 v252, s92")
        a("v_mov_b32 v253, s94")
        a("v_mov_b32 v254, s96")
        a("v_mov_b32 v255, 0x1234")
        a("global_store_dwordx4 v250, v[252:255], s[100:101]")
        a("s_waitcnt vmcnt(0)")
        a.lab(l)

    def rot_r(self, dst, tmp):
        a = self.a
        if "norot" in self.ph:
            a("s_mov_b32 %s, 0" % dst)
            return
        a("s_lshr_b32 %s, s5, 1" % dst)
        a("s_cmp_ge_u32 %s, 5" % dst)
        a("s_cselect_b32 %s, 1, 0" % tmp)
        a("s_cmp_ge_u32 %s, 1" % dst)
        a("s_addc_u32 %s, %s, %s" % (dst, dst, tmp))

    def g_gemm1(self):
        a = self.a
        ACC = 0; FP = 96; FQ = 136
        VXB = 176
        VWA = 182
        VL16 = 196
        T = 200
        accg = lambda ft, tt: ACC + (ft * 4 + tt) * 4
        accu = lambda ft, tt: ACC + 48 + (ft * 4 + tt) * 4
        LANE = 197
        a("v_mov_b32 v%d, v0" % LANE)
        a("s_and_b32 s67, s3, 1")
        a("s_lshr_b32 s68, s3, 1")
        VOX = 191
        a("v_lshrrev_b32 v%d, 3, v%d" % (T, LANE))
        a("s_lshl_b32 s69, s4, 7")
        a("s_lshl_b32 s70, s3, 5")
        a("s_add_u32 s69, s69, s70")
        a("v_add_u32 v%d, s69, v%d" % (T, T))
        a("s_movk_i32 s70, 1280")
        a("v_mul_lo_u32 v%d, v%d, s70" % (T, T))
        a("v_and_b32 v%d, 7, v%d" % (T + 1, LANE))
        a("v_lshrrev_b32 v%d, 4, v%d" % (T + 2, LANE))
        a("v_xor_b32 v%d, v%d, v%d" % (T + 3, T + 1, T + 2))
        a("v_xor_b32 v%d, 4, v%d" % (T + 4, T + 3))
        a("v_lshl_add_u32 v%d, v%d, 4, v%d" % (VOX, T + 3, T))
        a("v_lshl_add_u32 v%d, v%d, 4, v%d" % (VOX + 1, T + 4, T))
        a("s_lshl_b32 s75, s3, 12")
        VOW = 193
        a("s_mul_i32 s76, s3, 3072")
        a("s_add_u32 s77, s76, %d" % ST_WU)
        a("s_add_u32 s76, s76, %d" % ST_WG)
        self.rot_r("s74", "s72")
        def xdma(st):
            base = (st % 3) * STAGE
            L = []
            for i in range(4):
                if i == 0:
                    L.append(("s_lshl_b32 s72, s74, 7", "s_mul_i32 s73, s74, 196608", "s_add_u32 s74, s74, 1",
                              "s_add_u32 m0, s75, %d" % base, "s_cmp_eq_u32 s74, 10", "s_cselect_b32 s74, 0, s74",
                              "buffer_load_dwordx4 v%d, s[8:11], s72 offen lds" % VOX))
                else:
                    L.append(("s_add_u32 s70, s72, %d" % (9216 * i),
                              "buffer_load_dwordx4 v%d, s[8:11], s70 offen offset:%d lds" % (VOX + (i & 1), 1024 * i)))
            for mat, sm, srd in (() if "s3w" in self.ph else ((0, 76, "s[12:15]"), (1, 77, "s[16:19]"))):
                for i in range(3):
                    ld = "buffer_load_dwordx4 v%d, %s, s73 offen offset:%d lds" % (VOW + i, srd, 1024 * i)
                    if mat == 1 and "nowu" in self.ph: ld = "s_nop 0"
                    if i == 2 and "now2" in self.ph: ld = "s_nop 0"
                    if i == 0: L.append(("s_add_u32 m0, s%d, %d" % (sm, base), "s_nop 0", ld))
                    else: L.append(ld)
            return L
        if "ststamps" in self.ph: self.stamp(1, force=True)
        def wcalc():
            a("s_lshl_b32 s69, s3, 4")
            a("s_mul_i32 s69, s69, 3072")
            a("s_mul_i32 s70, s5, 192")
            a("s_add_u32 s69, s69, s70")
            a("s_mov_b32 s70, 43691")
            a("s_movk_i32 s71, 3072")
            for i in range(3):
                a("v_add_u32 v%d, %d, v%d" % (T, 64 * i, LANE))
                a("v_mul_lo_u32 v%d, v%d, s70" % (T + 1, T))
                a("v_lshrrev_b32 v%d, 19, v%d" % (T + 1, T + 1))
                a("v_mul_u32_u24 v%d, 12, v%d" % (T + 2, T + 1))
                a("v_sub_u32 v%d, v%d, v%d" % (T + 2, T, T + 2))
                a("v_lshrrev_b32 v%d, 2, v%d" % (T + 3, T + 1))
                a("v_and_b32 v%d, 2, v%d" % (T + 3, T + 3))
                a("v_xor_b32 v%d, v%d, v%d" % (T + 2, T + 2, T + 3))
                a("v_mul_lo_u32 v%d, v%d, s71" % (T + 1, T + 1))
                a("v_lshl_add_u32 v%d, v%d, 4, v%d" % (T + 1, T + 2, T + 1))
                a("v_add_u32 v%d, s69, v%d" % (T + 1, T + 1))
                a("v_subrev_u32 v%d, %d, v%d" % (VOW + i, 1024 * i, T + 1))

        d0 = xdma(0)
        a.ext(flat(d0[:4]))
        wcalc()
        a.ext(flat(d0[4:]))
        if "late1" not in self.ph: a.ext(flat(xdma(1)))
        if "ststamps" in self.ph: self.stamp(2, force=True)
        if "nobpre" not in self.ph: a("s_barrier")
        a("v_and_b32 v%d, 15, v%d" % (T, LANE))
        a("v_lshrrev_b32 v%d, 4, v%d" % (T + 1, LANE))
        a("s_lshl_b32 s69, s67, 6")
        a("v_add_u32 v%d, s69, v%d" % (T + 2, T))
        a("v_lshlrev_b32 v%d, 7, v%d" % (T + 2, T + 2))
        a("v_lshrrev_b32 v%d, 1, v%d" % (T + 3, T))
        a("v_and_b32 v%d, 7, v%d" % (T + 3, T + 3))
        a("v_xor_b32 v%d, v%d, v%d" % (T + 3, T + 3, T + 1))
        a("v_xor_b32 v%d, 4, v%d" % (T + 4, T + 3))
        a("v_lshl_add_u32 v%d, v%d, 4, v%d" % (VXB, T + 3, T + 2))
        a("v_lshl_add_u32 v%d, v%d, 4, v%d" % (VXB + 1, T + 4, T + 2))
        for st in (1, 2):
            for s in range(2):
                a("v_add_u32 v%d, %d, v%d" % (VXB + 2 * st + s, st * STAGE, VXB + s))
        a("v_lshrrev_b32 v%d, 2, v%d" % (T + 2, T))
        a("v_lshl_add_u32 v%d, v%d, 3, v%d" % (T + 2, T + 1, T + 2))
        a("v_mul_u32_u24 v%d, 192, v%d" % (T + 2, T + 2))
        a("v_and_b32 v%d, 3, v%d" % (T + 3, LANE))
        a("v_lshl_add_u32 v%d, v%d, 3, v%d" % (T + 2, T + 3, T + 2))
        a("v_add_u32 v%d, %d, v%d" % (T + 2, ST_WG, T + 2))
        a("v_and_b32 v%d, 1, v%d" % (T + 3, T + 1))
        a("s_lshl_b32 s69, s68, 2")
        a("s_add_u32 s78, s69, 1")
        a("s_add_u32 s79, s68, 2")
        for ft, sreg in ((0, 69), (1, 78), (2, 79)):
            a("v_xor_b32 v%d, s%d, v%d" % (T + 4, sreg, T + 3))
            a("v_lshl_add_u32 v%d, v%d, 5, v%d" % (VWA + ft, T + 4, T + 2))
        for st in (1, 2):
            for ft in range(3):
                a("v_add_u32 v%d, %d, v%d" % (VWA + 3 * st + ft, st * STAGE, VWA + ft))
        a("v_lshlrev_b32 v%d, 4, v%d" % (VL16, LANE))
        a("s_lshl_b32 s69, s4, 1")
        a("s_add_u32 s69, s69, s67")
        a("s_mul_i32 s69, s69, 48")
        a("s_mul_i32 s78, s5, 3")
        a("s_add_u32 s69, s69, s78")
        a("s_lshl_b32 s78, s68, 1")
        a("s_add_u32 s78, s78, s69")
        a("s_lshl_b32 s78, s78, 12")
        a("s_add_u32 s79, s69, 1")
        a("s_lshl_b32 s79, s79, 12")
        a("s_lshl_b32 s69, s68, 9")
        a("s_add_u32 s79, s79, s69")
        a("v_lshlrev_b32 v%d, 3, v%d" % (VL16 + 2, LANE))
        if WS_H:
            a("s_add_u32 s78, s78, %d" % WS_H); a("s_add_u32 s79, s79, %d" % WS_H)

        def reads(kk, s, F):
            st = kk % 3
            xs = ["ds_read_b128 v[%d:%d], v%d offset:%d" % (F + 4 * tt, F + 4 * tt + 3, VXB + 2 * st + s, 2048 * tt) for tt in range(4)]
            ws = []
            for mat in range(2):
                for ft in range(3):
                    r = F + 16 + (mat * 3 + ft) * 4
                    for h in range(2):
                        ws.append("ds_read_b64_tr_b16 v[%d:%d], v%d offset:%d" % (r + 2 * h, r + 2 * h + 1, VWA + 3 * st + ft, 12288 * mat + 6144 * s + 768 * h))
            order = [xs[0], ws[0], ws[1], xs[1], ws[6], ws[7], xs[2], xs[3]] + ws[2:6] + ws[8:]
            return order
        def mfmas(F, first):
            L = []
            for ft in range(3):
                for mat in range(2):
                    for tt in range(4):
                        acc = accg(ft, tt) if mat == 0 else accu(ft, tt)
                        A = F + 16 + (mat * 3 + ft) * 4
                        B = F + 4 * tt
                        c = "0" if first else "v[%d:%d]" % (acc, acc + 3)
                        L.append("v_mfma_f32_16x16x32_bf16 v[%d:%d], v[%d:%d], v[%d:%d], %s" % (acc, acc + 3, A, A + 3, B, B + 3, c))
            return L
        def spread(mm, d, first, step):
            out = []; cnt = 0; di = 0
            for x in mm:
                out.append(x)
                if x.startswith("v_mfma"):
                    cnt += 1
                    if cnt >= first and (cnt - first) % step == 0 and di < len(d):
                        f = d[di]; di += 1
                        out.extend(f if isinstance(f, tuple) else (f,))
            assert di == len(d), (di, len(d))
            return out
        self.stamp(5)
        ND = 4 if "s3w" in self.ph else (7 if "nowu" in self.ph else (8 if "now2" in self.ph else 10))
        a("s_waitcnt vmcnt(%d)" % (0 if "late1" in self.ph else ND))
        if "ststamps" in self.ph: self.stamp(3, force=True)
        a("s_barrier")
        if "ststamps" in self.ph: self.stamp(4, force=True)
        if "late1" in self.ph: a.ext(flat(xdma(1)))
        self.stamp(1)
        self.clk(1)
        a.ext(reads(0, 0, FP))
        a("s_waitcnt lgkmcnt(0)")
        pend = xdma(2)
        for kk in range(10):
            mm = interleave(mfmas(FP, kk == 0), reads(kk, 1, FQ), span=16)
            if pend: mm = spread(mm, pend, 2, (10 if len(pend) <= 2 else 5) if len(pend) <= 5 else 2)
            a.ext(mm)
            if kk <= 7: a("s_waitcnt vmcnt(%d) lgkmcnt(0)" % ND)
            elif kk == 8: a("s_waitcnt vmcnt(0) lgkmcnt(0)")
            else: a("s_waitcnt lgkmcnt(0)")
            if kk == 9 and self.fused(): self.lds_inc(LDS_SFREE, T)
            else: a("s_barrier")
            if "kstamps" in self.ph and kk < 9: self.stamp(kk + 1, force=True)
            if "ststamps" in self.ph and kk < 5: self.stamp(kk + 5, force=True)
            fill = reads(kk + 1, 0, FP) if kk + 1 < 10 else []
            mm = interleave(mfmas(FQ, False), fill, span=16)
            d = xdma(kk + 3) if kk + 3 < 10 else []
            if "dmaB" in self.ph:
                pend = []
                if d: mm = spread(mm, d, 2, 2)
            elif "dma73" in self.ph:
                pend = d[7:]
                if d: mm = spread(mm, d[:7], 2, 3)
            elif "s3w" in self.ph:
                pend = d[2:]
                if d: mm = spread(mm, d[:2], 4, 10)
            else:
                pend = d[5:]
                if d: mm = spread(mm, d[:5], 2, 5)
            a.ext(mm)
            if kk + 1 < 10:
                a("s_waitcnt lgkmcnt(0)")
        self.stamp(2)
        self.clk(3)
        self.jitter()
        epb = "epb" in self.ph and "g2" in self.ph
        if epb: CN, ONE, OUTB, TMPB, TMPS = 200, 202, 116, 152, 8
        else: CN, ONE, OUTB, TMPB, TMPS = FP, FP + 2, FP + 8, FQ, 16
        E = []
        E.append("v_mov_b32 v%d, 0xbfb8aa3b" % CN)
        E.append("v_mov_b32 v%d, 0xbfb8aa3b" % (CN + 1))
        E.append("v_mov_b32 v%d, 1.0" % ONE)
        E.append("v_mov_b32 v%d, 1.0" % (ONE + 1))
        grp = 0
        def silu(gregs, uregs, tmp, out):
            n = len(gregs)
            L = []
            for i in range(n): L.append("v_pk_mul_f32 v[%d:%d], v[%d:%d], v[%d:%d]" % (tmp + 2 * i, tmp + 2 * i + 1, gregs[i], gregs[i] + 1, CN, CN + 1))
            for i in range(2 * n): L.append("v_exp_f32 v%d, v%d" % (tmp + i, tmp + i))
            for i in range(n): L.append("v_pk_mul_f32 v[%d:%d], v[%d:%d], v[%d:%d]" % (gregs[i], gregs[i] + 1, gregs[i], gregs[i] + 1, uregs[i], uregs[i] + 1))
            for i in range(n): L.append("v_pk_add_f32 v[%d:%d], v[%d:%d], v[%d:%d]" % (tmp + 2 * i, tmp + 2 * i + 1, tmp + 2 * i, tmp + 2 * i + 1, ONE, ONE + 1))
            for i in range(2 * n): L.append("v_rcp_f32 v%d, v%d" % (tmp + i, tmp + i))
            if n < 2: L.append("s_nop 0")
            for i in range(n): L.append("v_pk_mul_f32 v[%d:%d], v[%d:%d], v[%d:%d]" % (gregs[i], gregs[i] + 1, gregs[i], gregs[i] + 1, tmp + 2 * i, tmp + 2 * i + 1))
            for i in range(n): L.append("v_cvt_pk_bf16_f32 v%d, v%d, v%d" % (out + i, gregs[i], gregs[i] + 1))
            return L
        for tt in range(4):
            tmp = TMPB + (grp % 2) * TMPS; out = OUTB + (grp % 4) * 4; grp += 1
            g = [accg(0, tt), accg(0, tt) + 2, accg(1, tt), accg(1, tt) + 2]
            u = [accu(0, tt), accu(0, tt) + 2, accu(1, tt), accu(1, tt) + 2]
            E += silu(g, u, tmp, out)
            E.append("buffer_store_dwordx4 v[%d:%d], v%d, s[20:23], s78 offen offset:%d sc1" % (out, out + 3, VL16, 1024 * tt))
            tmp = TMPB + (grp % 2) * TMPS; out = OUTB + (grp % 4) * 4; grp += 1
            g = [accg(2, tt), accg(2, tt) + 2]
            u = [accu(2, tt), accu(2, tt) + 2]
            E += silu(g, u, tmp, out)
            E.append("buffer_store_dwordx2 v[%d:%d], v%d, s[20:23], s79 offen offset:%d sc1" % (out, out + 1, VL16 + 2, 1024 * tt))
        if epb:
            self.g2_setup()
            if self.fused(): self.lds_spin(LDS_WOK, 232, treg="s80x")
            regl, dmal = self.g2_burst_atoms()
            half = len(E) // 2
            a.ext(interleave(E[:half], regl, start=4))
            if self.fused(): self.lds_spin(LDS_SFREE, 232, 4, treg="s80x")
            a.ext(interleave(E[half:], dmal))
        else:
            a.ext(E)
        self.stamp(3)
        if "g2" not in self.ph:
            a("s_waitcnt vmcnt(0)")
            self.stamp(4)

    def g_signal_h(self, nyounger):
        a = self.a
        self.jitter()
        T = 232
        if nyounger is not None: a("s_waitcnt vmcnt(%d)" % nyounger)
        if self.fused():
            l = self.newlab("fh")
            a("v_mov_b32 v%d, %d" % (T, LDS_CNT))
            a("v_mov_b32 v%d, 1" % (T + 1))
            a("s_mov_b64 exec, 1")
            a("ds_add_rtn_u32 v%d, v%d, v%d" % (T + 2, T, T + 1))
            a("s_waitcnt lgkmcnt(0)")
            a("s_mov_b64 exec, -1")
            a("v_readfirstlane_b32 s69, v%d" % (T + 2))
            a("s_nop 1")
            a("s_cmp_lg_u32 s69, 3")
            a("s_cbranch_scc1 %s" % l)
            a("s_lshl_b32 s69, s4, 5")
            a("s_add_u32 s69, s69, s5")
            a("s_lshl_b32 s69, s69, 2")
            a("s_add_u32 s69, s69, %d" % WS_FH)
            self.flag_set("s69", T)
            a.lab(l)
        self.stamp(4)
        if "gapstamps" in self.ph: self.stamp(1, force=True)

    def lds_inc(self, addr, vt):
        a = self.a
        a("v_mov_b32 v%d, %d" % (vt, addr))
        a("v_mov_b32 v%d, 1" % (vt + 1))
        a("s_mov_b64 exec, 1")
        a("ds_add_u32 v%d, v%d" % (vt, vt + 1))
        a("s_mov_b64 exec, -1")

    def lds_spin(self, addr, vt, val=1, treg=None):
        a = self.a
        st = "s78" if treg is None else "s68"
        lp = self.newlab("ls"); ld = self.newlab("ld")
        a("v_mov_b32 v%d, %d" % (vt, addr))
        a("s_mov_b32 s69, 0")
        a.lab(lp)
        a("ds_read_b32 v%d, v%d" % (vt + 1, vt))
        a("s_waitcnt lgkmcnt(0)")
        a("v_readfirstlane_b32 %s, v%d" % (st, vt + 1))
        a("s_nop 1")
        a("s_cmp_eq_u32 %s, %d" % (st, val))
        a("s_cbranch_scc1 %s" % ld)
        a("s_add_u32 s69, s69, 1")
        a("s_cmp_lt_u32 s69, 0x400000")
        a("s_cbranch_scc0 %s" % ld)
        a("s_sleep 1")
        a("s_branch %s" % lp)
        a.lab(ld)

    def s_kgen_phase1(self):
        a = self.a
        NCH = 8
        chunks = [[] for _ in range(NCH)]
        if "ssm" in self.ph:
            a("s_lshl_b32 s50, s66, 8")
            a("s_add_u32 s50, s50, s2")
            a("s_min_u32 s50, s50, 639")
            self.kgen_bases()
            if "kghead" in self.ph:
                kg = self.capture(lambda: self.kgen("head"))
                if "bigI0" in self.ph:
                    first = min(len(kg), 140 if "I0s" in self.ph else 230)
                    rest = kg[first:]
                    per = (len(rest) + NCH - 1) // NCH
                    chunk0 = kg[:first]
                    chunks = [rest[i * per:(i + 1) * per] for i in range(NCH)]
                else:
                    per = (len(kg) + NCH - 1) // NCH
                    chunks = [kg[i * per:(i + 1) * per] for i in range(NCH)]
        self.stamp(5)
        if "prioS" in self.ph: a("s_setprio 2")
        if "nobpre" not in self.ph: a("s_barrier")
        pw = "pwarm" in self.ph
        if "ssm" in self.ph and pw: self.ssm_param_warm()
        if "ssm" in self.ph and "kghead" in self.ph and not pw: self.ssm_param_loads(slots=((0, 1) if "kg2" in self.ph else (0,)))
        if "ssm" in self.ph and "pw12" in self.ph:
            a("s_mul_i32 s67, s50, 384")
            for p in (P_ARE, P_AIM, P_BRE, P_BIM, P_CRE, P_CIM):
                a("s_add_u32 s68, s%d, s67" % p)
                a("s_addc_u32 s69, s%d, 0" % (p + 1))
                a("s_load_dword s70, s[68:69], 128")
                a("s_load_dword s70, s[68:69], 256")
        a("s_barrier")
        if "ssm" in self.ph and pw:
            a("s_waitcnt lgkmcnt(0)")
            self.ssm_param_loads()
        self.stamp(1)
        if "bigI0" in self.ph and "kghead" in self.ph:
            a("s_waitcnt vmcnt(0)")
            a.ext(chunk0)
        for kk in range(10):
            if not (kk == 9 and self.fused()): a("s_barrier")
            if kk == 1 and "kghead" in self.ph and "bigI0" not in self.ph: a("s_waitcnt vmcnt(0)")
            if kk == 7 and "ssm" in self.ph and not pw:
                if "kghead" in self.ph: self.ssm_param_loads(slots=((2,) if "kg2" in self.ph else (1, 2)), scalars=False)
                else: self.ssm_param_loads()
            if "bigI0" in self.ph:
                if kk < NCH: a.ext(chunks[kk])
            elif 1 <= kk <= NCH: a.ext(chunks[kk - 1])
        self.stamp(2)

    def side_setup(self):
        a = self.a
        a("s_mov_b32 s67, 52429")
        a("s_movk_i32 s68, 1280")
        for i in range(5):
            a("v_add_u32 v1, %d, v0" % (64 * i))
            a("v_mul_lo_u32 v2, v1, s67")
            a("v_lshrrev_b32 v2, 19, v2")
            a("v_mul_u32_u24 v3, 10, v2")
            a("v_sub_u32 v3, v1, v3")
            a("v_mul_lo_u32 v2, v2, s68")
            a("v_lshl_add_u32 v%d, v3, 4, v2" % (230 + i))
        a("v_lshrrev_b32 v1, 4, v0")
        a("v_and_b32 v2, 15, v0")
        a("v_lshrrev_b32 v3, 2, v2")
        a("v_lshl_add_u32 v4, v1, 2, v3")
        a("v_mul_u32_u24 v4, 160, v4")
        a("v_add_u32 v4, %d, v4" % (STAGE if "wdlate" in self.ph else LDS_WDS_EARLY))
        a("v_and_b32 v5, 3, v0")
        a("v_lshl_add_u32 v235, v5, 4, v4")
        a("v_lshl_add_u32 v236, v5, 3, v4")
        a("v_lshlrev_b32 v237, 4, v0")
        a("v_lshlrev_b32 v241, 2, v0")
        a("v_lshl_add_u32 v4, v1, 3, v3")
        a("v_lshlrev_b32 v4, 7, v4")
        a("v_bfe_u32 v5, v0, 1, 1")
        a("v_lshrrev_b32 v6, 1, v3")
        a("v_xor_b32 v5, v5, v6")
        a("v_lshl_add_u32 v4, v5, 4, v4")
        a("v_and_b32 v5, 1, v0")
        a("v_lshl_add_u32 v4, v5, 3, v4")
        a("v_and_b32 v5, 1, v1")
        a("v_lshl_add_u32 v238, v5, 6, v4")
        a("v_xor_b32 v5, 1, v5")
        a("v_lshl_add_u32 v239, v5, 6, v4")
        a("v_mul_u32_u24 v240, %d, v2" % ROWS)
        a("v_lshl_add_u32 v240, v1, 4, v240")
        a("s_add_u32 s51, s2, 128")
        a("s_cmp_ge_u32 s2, 128")
        a("s_cselect_b32 s51, s51, 999")
        a("s_lshr_b32 s52, s5, 1")
        a("s_add_u32 s53, s52, 8")
        a("s_cmp_lt_u32 s5, 4")
        a("s_cselect_b32 s53, s53, 99")
    def wd_load(self, ureg, scr):
        a = self.a
        if "nowd" in self.ph: return
        a("s_lshr_b32 s67, %s, 3" % ureg)
        a("s_and_b32 s68, %s, 7" % ureg)
        a("s_mul_i32 s69, s67, %d" % (32 * 1280))
        a("s_mul_i32 s67, s68, 160")
        a("s_add_u32 s69, s69, s67")
        for i in range(5):
            a("s_mov_b32 m0, %d" % ((STAGE if "wdlate" in self.ph else LDS_WDS_EARLY) + scr + 1024 * i))
            a("s_nop 0")
            a("buffer_load_dwordx4 v%d, s[28:31], s69 offen lds" % (230 + i))
    def wd_store(self, ureg, scr, R=160):
        a = self.a
        if "nowd" in self.ph: return
        for dt in range(5):
            for h in range(2):
                if dt < 4: ad, off = 235, 64 * (dt >> 1) + 8 * (dt & 1) + 2560 * h
                else: ad, off = 236, 128 + 2560 * h
                a("ds_read_b64_tr_b16 v[%d:%d], v%d offset:%d" % (R + 4 * dt + 2 * h, R + 1 + 4 * dt + 2 * h, ad, off + scr))
        a("s_lshr_b32 s67, %s, 3" % ureg)
        a("s_and_b32 s68, %s, 7" % ureg)
        a("s_mul_i32 s68, s68, 48")
        a("s_add_u32 s67, s67, s68")
        a("s_mul_i32 s67, s67, 5120")
        a("s_add_u32 s67, s67, %d" % WS_WD)
        a("s_add_u32 s68, s67, 4096")
        a("s_waitcnt lgkmcnt(0)")
        for dt in range(5):
            if dt < 4: a("buffer_store_dwordx4 v[%d:%d], v237, s[20:23], s67 offen offset:%d sc1" % (R + 4 * dt, R + 3 + 4 * dt, 1024 * dt))
            else: a("buffer_store_dwordx4 v[%d:%d], v237, s[20:23], s68 offen sc1" % (R + 4 * dt, R + 3 + 4 * dt))
    def gate_load(self):
        a = self.a
        a("v_and_b32 v1, 15, v0")
        a("v_lshlrev_b32 v1, 4, v1")
        for j in range(5):
            a("global_load_dwordx4 v[%d:%d], v1, s[%d:%d] offset:%d" % (8 + 4 * j, 11 + 4 * j, P_GW, P_GW + 1, 256 * j))
        a("v_lshrrev_b32 v2, 4, v0")
        a("s_movk_i32 s67, 1280")
        a("v_mul_lo_u32 v2, v2, s67")
        a("v_add_u32 v2, v2, v1")
        a("s_lshl_b32 s67, s2, 3")
        a("s_mul_i32 s67, s67, 1280")
        for half in range(2):
            for j in range(5):
                r = 28 + 20 * half + 4 * j
                a("buffer_load_dwordx4 v[%d:%d], v2, s[8:11], s67 offen offset:%d" % (r, r + 3, 256 * j))
            if half == 0: a("s_add_u32 s67, s67, %d" % (4 * 1280))
    def gate_compute(self):
        a = self.a
        R = 68
        for i in range(4): a("v_mov_b32 v%d, 0" % (R + i))
        for j in range(5):
            for e in range(4):
                for half in range(2):
                    acc = R + half + 2 * (e & 1)
                    a("v_dot2_f32_bf16 v%d, v%d, v%d, v%d" % (acc, 28 + 20 * half + 4 * j + e, 8 + 4 * j + e, acc))
        a("s_nop 2")
        a("v_add_f32 v%d, v%d, v%d" % (R, R, R + 2))
        a("v_add_f32 v%d, v%d, v%d" % (R + 1, R + 1, R + 3))
        a("s_nop 0")
        for ctl in ("row_shr:1", "row_shr:2", "row_shr:4", "row_shr:8"):
            for i in range(2):
                a("v_add_f32_dpp v%d, v%d, v%d %s row_mask:0xf bank_mask:0xf bound_ctrl:1" % (R + i, R + i, R + i, ctl))
            a("s_nop 0")
        for i in range(2): a("v_mul_f32 v%d, 0xbfb8aa3b, v%d" % (R + i, R + i))
        for i in range(2): a("v_exp_f32 v%d, v%d" % (R + i, R + i))
        a("s_nop 0")
        for i in range(2): a("v_add_f32 v%d, 1.0, v%d" % (R + i, R + i))
        for i in range(2): a("v_rcp_f32 v%d, v%d" % (R + i, R + i))
        a("s_lshl_b32 s67, s2, 5")
        a("s_add_u32 s67, s67, %d" % WS_G)
        a("v_lshrrev_b32 v1, 4, v0")
        a("v_lshlrev_b32 v1, 2, v1")
        a("s_mov_b32 exec_lo, 0x80008000")
        a("s_mov_b32 exec_hi, 0x80008000")
        a("buffer_store_dword v%d, v1, s[20:23], s67 offen sc1" % R)
        a("buffer_store_dword v%d, v1, s[20:23], s67 offen offset:16 sc1" % (R + 1))
        a("s_mov_b64 exec, -1")
    def ut_read(self, chunk_reg, stage_base, H):
        a = self.a
        if "noutr" in self.ph: return
        a("s_and_b32 s67, %s, 1" % chunk_reg)
        a("s_cmp_eq_u32 s67, 0")
        a("s_cselect_b64 vcc, -1, 0")
        a("s_nop 0")
        a("v_cndmask_b32 v4, v239, v238, vcc")
        a("v_add_u32 v4, %d, v4" % stage_base)
        for aa in range(2):
            for it in range(4):
                for hh in range(2):
                    r = H + (aa * 4 + it) * 4 + 2 * hh
                    a("ds_read_b64_tr_b16 v[%d:%d], v4 offset:%d" % (r, r + 1, 4096 * it + 512 * hh + 32 * (aa ^ hh)))
        a("s_waitcnt lgkmcnt(0)")
    def utx_load(self, chunk_reg):
        a = self.a
        a("v_lshrrev_b32 v4, 2, v0")
        a("v_mul_u32_u24 v4, 1280, v4")
        a("v_and_b32 v5, 3, v0")
        a("v_lshl_add_u32 v4, v5, 4, v4")
        a("s_mul_i32 s67, s4, %d" % (128 * 1280))
        a("s_lshl_b32 s68, %s, 6" % chunk_reg)
        a("s_add_u32 s67, s67, s68")
        for i in range(8):
            a("s_mov_b32 m0, %d" % (LDS_WDS_EARLY + 1024 * i))
            a("s_nop 0")
            a("buffer_load_dwordx4 v4, s[8:11], s67 offen lds")
            if i < 7: a("s_add_u32 s67, s67, %d" % (16 * 1280))
    def utx_read(self, H):
        a = self.a
        a("v_lshrrev_b32 v4, 4, v0")
        a("v_and_b32 v5, 15, v0")
        a("v_lshrrev_b32 v5, 2, v5")
        a("v_lshl_add_u32 v4, v4, 3, v5")
        a("v_lshlrev_b32 v4, 6, v4")
        a("v_and_b32 v5, 3, v0")
        a("v_lshl_add_u32 v4, v5, 3, v4")
        a("v_add_u32 v4, %d, v4" % LDS_WDS_EARLY)
        for aa in range(2):
            for it in range(4):
                for hh in range(2):
                    r = H + (aa * 4 + it) * 4 + 2 * hh
                    a("ds_read_b64_tr_b16 v[%d:%d], v4 offset:%d" % (r, r + 1, 64 * (32 * it + 4 * hh) + 32 * aa))
        a("s_waitcnt lgkmcnt(0)")

    def ut_store(self, chunk_reg, H):
        a = self.a
        if "nout" in self.ph: return
        a("s_mul_i32 s67, %s, %d" % (chunk_reg, 32 * ROWS))
        a("s_lshl_b32 s68, s4, 8")
        a("s_add_u32 s67, s67, s68")
        a("s_add_u32 s67, s67, %d" % WS_UT)
        a("s_add_u32 s68, s67, %d" % (16 * ROWS))
        for aa in range(2):
            for it in range(4):
                r = H + (aa * 4 + it) * 4
                a("buffer_store_dwordx4 v[%d:%d], v240, s[20:23], s%d offen offset:%d sc1" % (r, r + 3, 67 + aa, 64 * it))

    def pretouch(self):
        a = self.a
        a("v_and_b32 v1, 7, v0")
        a("v_lshlrev_b32 v1, 21, v1")
        a("buffer_load_dword v63, v1, s[20:23], 0 offen")
        a("v_and_b32 v1, 1, v0")
        a("v_lshlrev_b32 v1, 21, v1")
        a("buffer_load_dword v63, v1, s[24:27], 0 offen")
    def warm_inputs(self):
        a = self.a
        if "norot" in self.ph:
            a("s_mov_b32 s68, 9363")
            a("v_mul_lo_u32 v1, v0, s68")
            a("v_lshrrev_b32 v1, 16, v1")
            a("v_mul_u32_u24 v2, 7, v1")
            a("v_sub_u32 v2, v0, v2")
            a("v_mul_u32_u24 v1, 1280, v1")
            a("v_lshl_add_u32 v1, v2, 7, v1")
            a("s_mul_i32 s67, s2, 10240")
            a("s_add_u32 s67, s67, 384")
            a("s_mov_b32 exec_hi, 0x00ffffff")
            a("buffer_load_dword v244, v1, s[8:11], s67 offen")
            a("s_mov_b32 exec_hi, 0x000003ff")
            a("v_lshlrev_b32 v1, 7, v0")
            a("s_mul_i32 s67, s2, %d" % (42 * 128))
            a("s_add_u32 s67, s67, %d" % (192 * 3072))
            a("buffer_load_dword v244, v1, s[12:15], s67 offen")
            a("buffer_load_dword v244, v1, s[16:19], s67 offen")
            a("s_mov_b64 exec, -1")
            return
        a("v_lshlrev_b32 v1, 7, v0")
        if "warmx" in self.ph:
            a("s_mul_i32 s67, s2, 10240")
            a("buffer_load_dword v244, v1, s[8:11], s67 offen")
            a("s_add_u32 s68, s67, 8192")
            a("s_mov_b32 exec_hi, 0")
            a("s_mov_b32 exec_lo, 0xffff")
            a("buffer_load_dword v244, v1, s[8:11], s68 offen")
            a("s_mov_b32 exec_lo, -1")
        a("s_mov_b32 exec_hi, 0x0fffffff")
        a("s_mul_i32 s67, s2, 7680")
        a("buffer_load_dword v244, v1, s[12:15], s67 offen")
        a("buffer_load_dword v244, v1, s[16:19], s67 offen")
        if "warm2" in self.ph:
            a("buffer_load_dword v244, v1, s[28:31], s67 offen")
        a("s_mov_b64 exec, -1")
        if "warm2" in self.ph or "warmp" in self.ph:
            a("v_and_b32 v1, 7, v0")
            a("v_lshlrev_b32 v1, 7, v1")
            a("s_mul_i32 s67, s2, 960")
            a("v_add_u32 v1, s67, v1")
            a("v_min_u32 v1, %d, v1" % (245760 - 4))
            a("v_lshrrev_b32 v2, 3, v0")
            a("v_mov_b32 v4, s%d" % P_ARE); a("v_mov_b32 v5, s%d" % (P_ARE + 1))
            for k, p in enumerate((P_AIM, P_BRE, P_BIM, P_CRE, P_CIM)):
                a("v_cmp_eq_u32 vcc, %d, v2" % (k + 1))
                a("v_mov_b32 v6, s%d" % p); a("v_mov_b32 v7, s%d" % (p + 1))
                a("v_cndmask_b32 v4, v4, v6, vcc")
                a("v_cndmask_b32 v5, v5, v7, vcc")
            a("v_add_co_u32 v4, vcc, v4, v1")
            a("s_nop 1")
            a("v_addc_co_u32 v5, vcc, 0, v5, vcc")
            a("global_load_dword v244, v[4:5], off")

    def warm_code(self, early=False):
        a = self.a
        n = self.name
        l = self.newlab("pc"); l2 = self.newlab("pc")
        a("s_getpc_b64 s[68:69]")
        a.lab(l)
        a("s_sub_u32 s68, s68, %s-%s" % (l, n))
        a("s_subb_u32 s69, s69, 0")
        a("s_mov_b32 s67, (%s_end-%s+4095)/4096" % (n, n))
        a("s_lshr_b32 s70, s2, 3")
        a("s_mul_i32 s70, s70, s67")
        a("v_add_u32 v1, s70, v0")
        a("v_lshlrev_b32 v1, 7, v1")
        a("v_min_u32 v1, %s_end-%s, v1" % (n, n))
        a("v_cmp_gt_u32 vcc, s67, v0")
        a("s_and_saveexec_b64 s[70:71], vcc")
        a("s_cbranch_execz %s" % l2)
        a("global_load_dword v244, v1, s[68:69]")
        a.lab(l2)
        a("s_mov_b64 exec, s[70:71]")

    def smem_warm(self, part):
        a = self.a
        if part == 0:
            a("s_mul_i32 s67, s2, 7680")
            a("s_add_u32 s70, s%d, s67" % P_WD)
            a("s_addc_u32 s71, s%d, 0" % (P_WD + 1))
        for r in range(15 * part, 15 * part + 15):
            a("s_load_dword s74, s[70:71], %d" % (r * 128))

    def s3w_setup(self):
        a = self.a
        T = 1; VO = 245
        a("s_mul_i32 s69, s5, 192")
        a("s_mov_b32 s78, 43691")
        a("s_movk_i32 s79, 3072")
        for i in range(3):
            a("v_add_u32 v%d, %d, v0" % (T, 64 * i))
            a("v_mul_lo_u32 v%d, v%d, s78" % (T + 1, T))
            a("v_lshrrev_b32 v%d, 19, v%d" % (T + 1, T + 1))
            a("v_mul_u32_u24 v%d, 12, v%d" % (T + 2, T + 1))
            a("v_sub_u32 v%d, v%d, v%d" % (T + 2, T, T + 2))
            a("v_lshrrev_b32 v%d, 2, v%d" % (T + 3, T + 1))
            a("v_and_b32 v%d, 2, v%d" % (T + 3, T + 3))
            a("v_xor_b32 v%d, v%d, v%d" % (T + 2, T + 2, T + 3))
            a("v_mul_lo_u32 v%d, v%d, s79" % (T + 1, T + 1))
            a("v_lshl_add_u32 v%d, v%d, 4, v%d" % (T + 1, T + 2, T + 1))
            a("v_add_u32 v%d, s69, v%d" % (VO + i, T + 1))
        self.rot_r("s54", "s67")
    def s3w_younger0(self):
        n = 24 + (1 if self.fused() else 0)
        if "wdlate" not in self.ph: n += 5
        return n
    def s3w_dma(self, st):
        a = self.a
        VO = 245
        base = (st % 3) * STAGE
        a("s_mul_i32 s55, s54, 196608")
        a("s_add_u32 s54, s54, 1")
        a("s_cmp_eq_u32 s54, 10")
        a("s_cselect_b32 s54, 0, s54")
        for g4 in range(4):
            if g4: a("s_add_u32 s55, s55, 49152")
            for mat, srd in ((0, "s[12:15]"), (1, "s[16:19]")):
                for i in range(3):
                    a("s_mov_b32 m0, %d" % (base + (ST_WG if mat == 0 else ST_WU) + 3072 * g4 + 1024 * i))
                    a("s_nop 0")
                    a("buffer_load_dwordx4 v%d, %s, s55 offen lds" % (VO + i, srd))

    def s_side(self):
        a = self.a
        if "noside" in self.ph:
            for b in range(11 if self.fused() else 12): a("s_barrier")
            return
        HA, HB = 100, 132
        def cond_b(fn):
            l = self.newlab("wb")
            a("s_cmp_ge_u32 s51, 384")
            a("s_cbranch_scc1 %s" % l)
            fn()
            a.lab(l)
        if "warm0" in self.ph:
            self.warm_inputs()
            if "warmc" in self.ph: self.warm_code()
        s3w = "s3w" in self.ph
        if s3w:
            self.s3w_setup()
            self.s3w_dma(0)
            self.s3w_dma(1)
        self.side_setup()
        norot = "norot" in self.ph
        if norot:
            a("s_mov_b32 s50, s5")
            a("s_add_u32 s53, s5, 16")
            a("s_cmp_lt_u32 s5, 4")
            a("s_cselect_b32 s53, s53, 99")
        else:
            self.rot_r("s50", "s67")
            a("s_and_b32 s68, s5, 1")
            a("s_lshl_b32 s50, s50, 1")
            a("s_add_u32 s50, s50, s68")
            a("s_add_u32 s53, s50, 2")
            a("s_lshr_b32 s67, s5, 1")
            a("s_and_b32 s67, s67, 3")
            a("s_cmp_eq_u32 s67, 0")
            a("s_cselect_b32 s53, s53, 99")
        if self.fused():
            a("v_mov_b32 v1, %d" % LDS_CNT)
            a("v_mov_b32 v2, 0")
            a("v_mov_b32 v3, 0")
            a("ds_write_b64 v1, v[2:3]")
            a("ds_write_b64 v1, v[2:3] offset:8")
            a("ds_write_b64 v1, v[2:3] offset:16")
            a("ds_write_b32 v1, v2 offset:24")
        self.stamp(5)
        if "nobpre" not in self.ph: a("s_barrier")
        if self.fused(): self.nonce_load()
        if self.fused() and "ftouch" in self.ph:
            a("s_min_u32 s67, s2, 191")
            a("s_lshl_b32 s67, s67, 7")
            a("s_add_u32 s67, s67, %d" % WS_FU)
            a("v_mov_b32 v1, 0")
            a("s_mov_b64 exec, 1")
            a("buffer_load_dword v244, v1, s[20:23], s67 offen sc1")
            a("s_mov_b64 exec, -1")
        if norot: self.utx_load("s50")
        wdlate = "wdlate" in self.ph
        wdmid = "wdmid" in self.ph
        if not wdlate and not wdmid:
            self.wd_load("s2", 0)
            cond_b(lambda: self.wd_load("s51", 5120))
        if "warm0" not in self.ph:
            if "warmc" in self.ph: self.warm_code()
            if ("warm" in self.ph or "warm2" in self.ph) and "warmB0" not in self.ph and "warmB1" not in self.ph and not s3w: self.warm_inputs()
        if s3w: a("s_waitcnt vmcnt(%d)" % self.s3w_younger0())
        a("s_barrier")
        if s3w:
            self.s3w_dma(2)
            self.warm_inputs()
        if "warmB0" in self.ph: self.warm_inputs()
        self.stamp(1)
        if norot:
            a("s_waitcnt vmcnt(3)")
            self.utx_read(HA)
            def second():
                self.utx_load("s53")
            l_ = self.newlab("ux")
            a("s_cmp_ge_u32 s53, 20")
            a("s_cbranch_scc1 %s" % l_)
            second()
            a.lab(l_)
        else:
            self.ut_read("s50", 0, HA)
        def uflag(creg):
            a("s_lshl_b32 s69, %s, 5" % creg)
            a("s_add_u32 s69, s69, s4")
            a("s_lshl_b32 s69, s69, 2")
            a("s_add_u32 s69, s69, %d" % WS_FU)
            self.flag_set("s69", 2)
        def n_lt4(fn):
            l = self.newlab("ut")
            a("s_cmp_ge_u32 s53, 20")
            a("s_cbranch_scc1 %s" % l)
            fn()
            a.lab(l)
        def wflag(ureg):
            a("s_and_b32 s68, %s, 7" % ureg)
            a("s_lshl_b32 s68, s68, 8")
            a("s_lshr_b32 s69, %s, 3" % ureg)
            a("s_lshl_b32 s69, s69, 2")
            a("s_add_u32 s69, s69, s68")
            a("s_add_u32 s69, s69, %d" % WS_FW)
            self.flag_set("s69", 2)
        early = "utearly" in self.ph
        epb = "epb" in self.ph
        if early: self.ut_store("s50", HA)
        for kk in range(10):
            if s3w:
                if kk == 0: a("s_waitcnt vmcnt(26)")
                elif kk <= 7: a("s_waitcnt vmcnt(24)")
                elif kk == 8: a("s_waitcnt vmcnt(%d)" % (6 if (wdlate and self.fused()) else 0))
            if not (kk == 9 and self.fused()): a("s_barrier")
            if s3w and kk + 3 < 10 and kk not in (0, 1): self.s3w_dma(kk + 3)
            if kk == 0:
                if "warmB1" in self.ph: self.warm_inputs()
                if norot:
                    def rd2():
                        a("s_waitcnt vmcnt(0)")
                        self.utx_read(HB)
                    n_lt4(rd2)
                else:
                    n_lt4(lambda: self.ut_read("s53", 1 * STAGE, HB))
                if early: n_lt4(lambda: self.ut_store("s53", HB))
                if epb:
                    a("s_waitcnt vmcnt(%d)" % (8 if early else 0))
                    self.wd_store("s2", 0)
                    cond_b(lambda: self.wd_store("s51", 5120, 180))
            if kk == 1:
                if not early:
                    self.ut_store("s50", HA)
                    n_lt4(lambda: self.ut_store("s53", HB))
            if s3w and kk in (0, 1): self.s3w_dma(kk + 3)
            if kk == 3:
                a("s_waitcnt vmcnt(%d)" % (48 if s3w else 0))
                if self.fused():
                    self.nonce_publish_local()
                    if "uflate" not in self.ph:
                        uflag("s50")
                        n_lt4(lambda: uflag("s53"))
                    if epb:
                        wflag("s2")
                        cond_b(lambda: wflag("s51"))
            if kk == 7 and "uflate" in self.ph and self.fused():
                uflag("s50")
                n_lt4(lambda: uflag("s53"))
            if "swarm" in self.ph and 2 <= kk <= 5:
                self.smem_warm(kk - 2)
            if kk == 6 and wdmid:
                if "swarm" in self.ph: a("s_waitcnt lgkmcnt(0)")
                self.wd_load("s2", 0)
                cond_b(lambda: self.wd_load("s51", 5120))
            if kk == 7 and wdmid: a("s_waitcnt vmcnt(0)")
            if kk == 7 and "s3prio" in self.ph: a("s_setprio 3")
            if kk == 7 and epb:
                if self.fused():
                    self.s3_uw_look()
                    a("s_lshl_b32 s78, s7, 8")
                    a("s_add_u32 s78, s78, %d" % WS_FW)
                    self.look_line("s78", 48, 94)
                self.gate_load()
            if kk == 7 and not wdlate and not epb:
                if self.fused(): self.s3_uw_look()
                self.wd_store("s2", 0)
                cond_b(lambda: self.wd_store("s51", 5120, 180))
                self.gate_load()
            if kk == 7 and wdlate:
                if "swarm" in self.ph: a("s_waitcnt lgkmcnt(0)")
                if self.fused(): self.s3_uw_look()
                self.wd_load("s2", 0)
                cond_b(lambda: self.wd_load("s51", 5120))
            if kk == 8:
                self.jitter()
                if self.fused():
                    l = self.newlab("uw")
                    if epb:
                        self.check_line("s78", 94, 15)
                        a("v_mov_b32 v1, %d" % LDS_WOK)
                        a("v_mov_b32 v2, 1")
                        a("ds_write_b32 v1, v2")
                    elif not wdlate and "wfirst" in self.ph:
                        a("s_waitcnt vmcnt(15)")
                        wflag("s2")
                        cond_b(lambda: wflag("s51"))
                    else:
                        a("s_waitcnt vmcnt(%d)" % (5 if wdlate else 20))
                    a("v_cmp_eq_u32 vcc, s64, v92")
                    a("s_nop 1")
                    a("s_cmp_eq_u64 vcc, -1")
                    a("s_cbranch_scc1 %s" % l)
                    self.poll(self.s3_uw_loads, [92], 6, sleep=2)
                    a.lab(l)
                    self.s3_u_loads()
                    a("v_mov_b32 v1, %d" % LDS_UOK)
                    a("v_mov_b32 v2, 3")
                    a("ds_write_b32 v1, v2")
                    if wdlate: a("s_waitcnt vmcnt(12)")
                elif wdlate:
                    a("s_waitcnt vmcnt(0)")
                if wdlate:
                    self.wd_store("s2", 0)
                    cond_b(lambda: self.wd_store("s51", 5120, 180))
                    self.gate_load()
        self.stamp(2)
        if self.fused():
            if "s3prio" not in self.ph: a("s_setprio 2")
            if epb:
                self.lds_spin(LDS_SFREE, 2, 4)
                a("s_waitcnt vmcnt(0)")
            else:
                if not wdlate and "wfirst" in self.ph:
                    self.lds_spin(LDS_SFREE, 2, 4)
                    a("s_waitcnt vmcnt(0)")
                else:
                    if wdlate: a("s_waitcnt vmcnt(15)")
                    else: a("s_waitcnt vmcnt(27)")
                    wflag("s2")
                    cond_b(lambda: wflag("s51"))
                    self.lds_spin(LDS_SFREE, 2, 4)
                    if not wdlate: a("s_waitcnt vmcnt(1)")
        self.stamp(3)
        self.jitter()
        if self.fused():
            self.s3_u_copies(extra=None)
            a("s_waitcnt lgkmcnt(0)")
            a("v_mov_b32 v1, %d" % LDS_UCOK)
            a("v_mov_b32 v2, 1")
            a("ds_write_b32 v1, v2")
            a("s_setprio 0")
            self.stamp(4)
            a("s_waitcnt vmcnt(0)")
            self.gate_compute()
            a("s_waitcnt vmcnt(0)")
            a("s_lshl_b32 s69, s2, 2")
            a("s_add_u32 s69, s69, %d" % WS_FG)
            self.flag_set("s69", 2)
            if "nonearly" in self.ph: self.nonce_update()
        else:
            a("s_waitcnt vmcnt(0)")
            self.gate_compute()
            a("s_waitcnt vmcnt(0)")
            self.stamp(4)

    def s3_uw_addr(self):
        a = self.a
        a("v_lshrrev_b32 v1, 4, v0")
        a("v_lshlrev_b32 v1, 8, v1")
        a("v_add_u32 v1, s2, v1")
        a("v_mov_b32 v2, s2")
        a("v_cmp_gt_u32 vcc, 640, v1")
        a("s_nop 1")
        a("v_cndmask_b32 v1, v2, v1, vcc")
        a("v_lshrrev_b32 v1, 5, v1")
        a("v_lshlrev_b32 v1, 7, v1")
        a("v_and_b32 v2, 15, v0")
        a("v_lshl_add_u32 v1, v2, 2, v1")
        a("v_add_u32 v90, %d, v1" % WS_FU)
    def s3_uw_loads(self):
        a = self.a
        a("buffer_load_dword v92, v90, s[20:23], 0 offen sc1")
    def s3_uw_look(self):
        self.s3_uw_addr()
        self.s3_uw_loads()
    def s3_uw_check(self):
        a = self.a
        l = self.newlab("uw")
        a("s_waitcnt vmcnt(0)")
        a("v_cmp_eq_u32 vcc, s64, v92")
        a("v_cmp_eq_u32 s[76:77], s64, v93")
        a("s_nop 1")
        a("s_and_b64 vcc, vcc, s[76:77]")
        a("s_cmp_eq_u64 vcc, -1")
        a("s_cbranch_scc1 %s" % l)
        self.poll(self.s3_uw_loads, [92, 93], 6, sleep=2)
        a.lab(l)

    def s3_channels(self):
        a = self.a
        a("s_mov_b32 s70, s2")
        a("s_add_u32 s71, s2, 256")
        a("s_add_u32 s72, s2, 512")
        a("s_cmp_lt_u32 s72, 640")
        a("s_cselect_b32 s72, s72, s2")

    def s3_u_loads(self):
        a = self.a
        self.s3_channels()
        a("v_lshlrev_b32 v1, 4, v0")
        for sg in range(3):
            a("s_mul_i32 s67, s%d, %d" % (70 + sg, ROWS))
            a("s_add_u32 s67, s67, %d" % WS_UT)
            for i in range(4):
                r = 100 + 16 * sg + 4 * i
                a("buffer_load_dwordx4 v[%d:%d], v1, s[20:23], s67 offen offset:%d sc1" % (r, r + 3, 1024 * i))

    def s3_u_copies(self, extra=0):
        a = self.a
        Z = 150
        for i in range(4): a("v_mov_b32 v%d, 0" % (Z + i))
        a("v_lshlrev_b32 v2, 4, v0")
        a("v_cmp_eq_u32 vcc, 0, v0")
        for sg in range(3):
            base = LDS_UC + sg * UC_SZ
            for b in range(4):
                a("ds_write_b128 v2, v[%d:%d] offset:%d" % (Z, Z + 3, base + b * UC_STRIDE))
        for sg in range(3):
            base = LDS_UC + sg * UC_SZ
            if extra is not None: a("s_waitcnt vmcnt(%d)" % (4 * (2 - sg) + extra))
            for i in range(4):
                D = 100 + 16 * sg + 4 * i
                R3, R2 = 154 + 2 * (i & 1), 155 + 2 * (i & 1)
                Q3, Q2 = 154 + 2 * ((i + 1) & 1), 155 + 2 * ((i + 1) & 1)
                T1 = 160 + 12 * (i & 1); T0 = T1 + 4; T2 = T1 + 8
                P2 = 158
                a("v_mov_b32_dpp v%d, v%d wave_ror:1 row_mask:0xf bank_mask:0xf" % (R3, D + 3))
                a("v_mov_b32_dpp v%d, v%d wave_ror:1 row_mask:0xf bank_mask:0xf" % (R2, D + 2))
                a("v_mov_b32 v%d, v%d" % (T1 + 1, D))
                a("v_mov_b32 v%d, v%d" % (T1 + 2, D + 1))
                a("v_mov_b32 v%d, v%d" % (T1 + 3, D + 2))
                if i == 0:
                    a("v_cndmask_b32 v%d, v%d, v%d, vcc" % (T1, R3, Z))
                    a("v_cndmask_b32 v%d, v%d, v%d, vcc" % (P2, R2, Z))
                else:
                    a("v_cndmask_b32 v%d, v%d, v%d, vcc" % (T1, R3, Q3))
                    a("v_cndmask_b32 v%d, v%d, v%d, vcc" % (P2, R2, Q2))
                off = base + 4 * (96 + 256 * i)
                a("ds_write_b128 v2, v[%d:%d] offset:%d" % (D, D + 3, off + 3 * UC_STRIDE))
                a("v_alignbit_b32 v%d, v%d, v%d, 16" % (T0, T1, P2))
                a("v_alignbit_b32 v%d, v%d, v%d, 16" % (T0 + 1, D, T1))
                a("v_alignbit_b32 v%d, v%d, v%d, 16" % (T0 + 2, D + 1, D))
                a("v_alignbit_b32 v%d, v%d, v%d, 16" % (T0 + 3, D + 2, D + 1))
                a("ds_write_b128 v2, v[%d:%d] offset:%d" % (T1, T1 + 3, off + 1 * UC_STRIDE))
                a("v_mov_b32 v%d, v%d" % (T2, T0 + 1))
                a("v_mov_b32 v%d, v%d" % (T2 + 1, T0 + 2))
                a("v_mov_b32 v%d, v%d" % (T2 + 2, T0 + 3))
                a("v_alignbit_b32 v%d, v%d, v%d, 16" % (T2 + 3, D + 3, D + 2))
                a("ds_write_b128 v2, v[%d:%d] offset:%d" % (T0, T0 + 3, off + 0 * UC_STRIDE))
                a("ds_write_b128 v2, v[%d:%d] offset:%d" % (T2, T2 + 3, off + 2 * UC_STRIDE))

    def s_phase1(self):
        a = self.a
        n = self.name
        a("s_sub_u32 s66, s3, 4")
        a("s_cmp_eq_u32 s66, 3")
        a("s_cbranch_scc1 %s_sj" % n)
        self.s_kgen_phase1()
        a("s_branch %s_p1done" % n)
        a.lab("%s_sj" % n)
        self.s_side()
        a.lab("%s_p1done" % n)

    def ssm_param_loads(self, slots=(0, 1, 2), scalars=True):
        a = self.a
        a("s_mul_i32 s67, s50, 384")
        a("v_lshl_add_u32 v1, v0, 1, s67")
        for sl in slots:
            for k, p in enumerate((P_ARE, P_AIM, P_BRE, P_BIM, P_CRE, P_CIM)):
                a("global_load_ushort v%d, v1, s[%d:%d] offset:%d" % (200 + 6 * sl + k, p, p + 1, 128 * sl))
        if scalars:
            a("s_lshl_b32 s67, s50, 1")
            a("v_mov_b32 v223, s67")
            a("global_load_ushort v218, v223, s[%d:%d]" % (P_LDT, P_LDT + 1))
            a("global_load_ushort v219, v223, s[%d:%d]" % (P_DSK, P_DSK + 1))

    def ssm_param_warm(self):
        a = self.a
        a("s_mul_i32 s67, s50, 384")
        for p in (P_ARE, P_AIM, P_BRE, P_BIM, P_CRE, P_CIM):
            a("s_add_u32 s68, s%d, s67" % p)
            a("s_addc_u32 s69, s%d, 0" % (p + 1))
            for i in range(3):
                a("s_load_dword s70, s[68:69], %d" % (128 * i))
        a("s_lshl_b32 s67, s50, 1")
        a("s_and_b32 s67, s67, 0xfffffffc")
        a("s_load_dword s70, s[%d:%d], s67" % (P_LDT, P_LDT + 1))
        a("s_load_dword s70, s[%d:%d], s67" % (P_DSK, P_DSK + 1))

    def kgen_bases(self):
        a = self.a
        a("s_mul_i32 s51, s66, %d" % TAB_SZ)
        a("s_add_u32 s51, s51, %d" % LDS_TAB)
        a("s_mul_i32 s52, s66, %d" % KR_SZ)
        a("s_add_u32 s52, s52, %d" % LDS_KR)

    def kgen(self, part="all"):
        a = self.a
        if part == "all": self.kgen_bases()
        self._kgen_body(part)

    def _kgen_body(self, part):
        a = self.a
        head = part in ("all", "head", "rest"); tail = part in ("all", "tail", "rest")
        real_a = a
        if not head: a = Asm()
        a("v_and_b32 v4, 15, v0")
        a("v_lshrrev_b32 v5, 4, v0")
        a("v_mul_u32_u24 v2, %d, v4" % TABROW)
        a("v_lshl_add_u32 v2, v5, 6, v2")
        a("v_add_u32 v2, s51, v2")
        a("v_and_b32 v6, 1, v5")
        a("v_lshl_add_u32 v3, v6, 3, v2")
        a("v_xor_b32 v6, 1, v6")
        a("v_lshl_add_u32 v2, v6, 3, v2")
        a("s_mov_b32 m0, s51")
        a("s_nop 0")
        if part == "all" or (part == "rest" and not self.fused()): a("s_waitcnt vmcnt(0)")
        a("v_lshlrev_b32 v218, 16, v218")
        a("v_lshlrev_b32 v219, 16, v219")
        a("v_mul_f32 v6, 0x3fb8aa3b, v218")
        a("s_mov_b32 s67, 0x3fb8aa3b")
        a("v_fma_f32 v7, v218, s67, -v6")
        a("v_fmac_f32 v7, 0x32a57060, v218")
        a("v_exp_f32 v6, v6")
        a("v_mul_f32 v7, 0x3f317218, v7")
        a("v_fma_f32 v6, v6, v7, v6")
        a("v_cvt_pk_bf16_f32 v6, v6, v6")
        a("v_lshlrev_b32 v218, 16, v6")
        W1, W16, W256, W512, W768, W1024 = 10, 12, 14, 16, 18, 20
        WX = 22
        CB = 24
        Y = 26; P = 28; TMP1 = 30; TMP2 = 32; TMP3 = 34
        PK = 36
        V = 50
        CV = 66
        YF = 76
        AF = 92
        ACC = 108
        nopk = (part == "head") and ("pkhead" not in self.ph)
        def cmul(out, x, w, t):
            if nopk:
                return ["v_mul_f32 v%d, v%d, v%d" % (t, x + 1, w + 1),
                        "v_mul_f32 v%d, v%d, v%d" % (t + 1, x, w + 1),
                        "v_fma_f32 v%d, v%d, v%d, -v%d" % (out, x, w, t),
                        "v_fma_f32 v%d, v%d, v%d, v%d" % (out + 1, x + 1, w, t + 1)]
            return ["v_pk_mul_f32 v[%d:%d], v[%d:%d], v[%d:%d] op_sel:[0,0] op_sel_hi:[0,1]" % (t, t + 1, x, x + 1, w, w + 1),
                    "v_pk_fma_f32 v[%d:%d], v[%d:%d], v[%d:%d], v[%d:%d] op_sel:[1,1,0] op_sel_hi:[1,0,1] neg_lo:[1,0,0]" % (out, out + 1, x, x + 1, w, w + 1, t, t + 1)]
        def zipl(*ls):
            o = []
            for i in range(max(len(l) for l in ls)):
                for l in ls:
                    if i < len(l): o.append(l[i])
            return o
        cvn = [0, 0]
        def wr(val, tile, row, neg, bank=0):
            c = CV + 4 * bank + (cvn[bank] % 4); cvn[bank] += 1
            return ["v_cvt_pk_bf16_f32 v%d, v%d, %sv%d" % (c, val, "-" if neg else "", val + 1),
                    "ds_write_addtid_b32 v%d offset:%d" % (c, tile * TABTILE + row * TABROW)]
        def frag_reads(dst, tile):
            L = []
            for kk in range(4):
                L.append("ds_read_b64 v[%d:%d], v3 offset:%d" % (dst + 4 * kk, dst + 4 * kk + 1, tile * TABTILE + 16 * kk))
                L.append("ds_read_b64 v[%d:%d], v2 offset:%d" % (dst + 4 * kk + 2, dst + 4 * kk + 3, tile * TABTILE + 16 * kk))
            return L
        def mm(t, first):
            L = []
            for kk in range(4):
                c = "0" if (first and kk == 0) else "v[%d:%d]" % (ACC + 4 * t, ACC + 4 * t + 3)
                L.append("v_mfma_f32_16x16x32_bf16 v[%d:%d], v[%d:%d], v[%d:%d], %s" % (ACC + 4 * t, ACC + 4 * t + 3, AF + 4 * kk, AF + 4 * kk + 3, YF + 4 * kk, YF + 4 * kk + 3, c))
            return L
        a = real_a
        nh = 2 if "kg2" in self.ph else 1
        slots = [0, 1, 2] if part in ("all", "rest") else (list(range(nh)) if part == "head" else list(range(nh, 3)))
        for sl in slots:
            if sl == 1 and part == "tail" and not self.fused(): a("s_waitcnt vmcnt(0)")
            if sl == 2 and part in ("rest", "tail"): self.stamp(3)
            if sl == 2 and "prioT" in self.ph: a("s_setprio 2")
            if sl == slots[0] and part in ("tail", "rest") and "prioT0" in self.ph and "prioMid" not in self.ph: a("s_setprio 2")
            pr = 200 + 6 * sl
            for k in range(6): a("v_lshlrev_b32 v%d, 16, v%d" % (pr + k, pr + k))
            a("v_mul_f32 v6, v218, v%d" % pr)
            a("v_mul_f32 v7, v218, v%d" % (pr + 1))
            a("v_mul_f32 v6, 0x3fb8aa3b, v6")
            a("v_mul_f32 v7, 0.15915494, v7")
            a("v_mul_f32 v8, v218, v%d" % (pr + 2))
            a("v_mul_f32 v9, v218, v%d" % (pr + 3))
            a.ext(cmul(CB, pr + 4, 8, TMP1))
            for w, k in ((W1, 1.0), (W16, 16.0), (W256, 256.0)):
                if k == 1.0:
                    a("v_exp_f32 v%d, v6" % TMP2)
                    a("v_fract_f32 v%d, v7" % TMP3)
                else:
                    lit = "0x41800000" if k == 16.0 else "0x43800000"
                    a("v_mul_f32 v%d, %s, v6" % (TMP2, lit))
                    a("v_mul_f32 v%d, %s, v7" % (TMP3, lit))
                    a("v_exp_f32 v%d, v%d" % (TMP2, TMP2))
                    a("v_fract_f32 v%d, v%d" % (TMP3, TMP3))
                a("v_cos_f32 v%d, v%d" % (w, TMP3))
                a("v_sin_f32 v%d, v%d" % (w + 1, TMP3))
                a("s_nop 0")
                a("v_mul_f32 v%d, v%d, v%d" % (w, w, TMP2))
                a("v_mul_f32 v%d, v%d, v%d" % (w + 1, w + 1, TMP2))
            if sl != slots[0]:
                a("s_waitcnt lgkmcnt(0)")
                a.ext(pend_mm2)
            if sl == slots[0] and part in ("tail", "rest") and "prioMid" in self.ph: a("s_setprio 2")
            LY = ["v_mov_b32 v%d, v%d" % (Y, CB), "v_mov_b32 v%d, v%d" % (Y + 1, CB + 1)] + wr(Y, 0, 0, False)
            for j in range(1, 16):
                LY += cmul(Y, Y, W16, TMP1) + wr(Y, 0, j, False)
            LA = ["v_mov_b32 v%d, 1.0" % P, "v_mov_b32 v%d, 0" % (P + 1)] + wr(P, 1, 0, True, 1)
            cur = P
            for r in range(1, 16):
                if r == 1:
                    LA += ["v_mov_b32 v%d, v%d" % (P, W1), "v_mov_b32 v%d, v%d" % (P + 1, W1 + 1)]
                    cur = P
                else:
                    dst = PK + 2 * (r // 2 - 1) if r % 2 == 0 else P
                    LA += cmul(dst, cur, W1, TMP2)
                    cur = dst
                LA += wr(cur, 1, r, True, 1)
            a.ext(zipl(LY, LA))
            a.ext(cmul(W512, W256, W256, TMP1))
            a.ext(frag_reads(YF, 0)); a.ext(frag_reads(AF, 1))
            a.ext(zipl(cmul(W768, W512, W256, TMP1), cmul(W1024, W512, W512, TMP2)))
            def pk(i): return PK + 2 * (i // 2 - 1)
            vals = []
            A2 = []
            regs = []
            for r in range(8):
                if r == 0: regs.append(W256)
                else:
                    dst = V + 2 * (r - 1) if r < 8 else None
                    A2.append(cmul(dst, pk(2 * r), W256, TMP1 if r % 2 else TMP2)); regs.append(dst)
            a.ext(zipl(sum(A2[0::2], []), sum(A2[1::2], [])))
            a("s_waitcnt lgkmcnt(0)")
            m = mm(0, sl == 0)
            L = []
            for r in range(8): L += wr(regs[r], 1, r, True)
            a.ext(interleave(m, L))
            LA = []; LB = []
            for b in range(4):
                if b == 0:
                    LA += wr(W512, 1, 8, True); LB += wr(W768, 1, 12, True, 1)
                else:
                    LA += cmul(V, pk(4 * b), W512, TMP1) + wr(V, 1, 8 + b, True)
                    LB += cmul(V + 2, pk(4 * b), W768, TMP2) + wr(V + 2, 1, 12 + b, True, 1)
            a.ext(zipl(LA, LB))
            a.ext(frag_reads(AF, 1))
            a.ext(zipl(cmul(V, W1024, W256, TMP1), cmul(V + 2, W1024, W512, TMP2)))
            a.ext(zipl(cmul(V + 4, W1024, W768, TMP1), cmul(V + 6, W1024, W1024, TMP2)))
            ws = [W1024, V, V + 2, V + 4]
            a.ext(zipl(cmul(V + 8, ws[0], pk(8), TMP1), cmul(V + 10, ws[1], pk(8), TMP2)))
            a.ext(zipl(cmul(V + 12, ws[2], pk(8), TMP1), cmul(V + 14, ws[3], pk(8), TMP2)))
            a("s_waitcnt lgkmcnt(0)")
            m = mm(1, sl == 0)
            L = []
            for i in range(4):
                L += wr(ws[i], 1, 2 * i, True) + wr(V + 8 + 2 * i, 1, 2 * i + 1, True)
            L += wr(V + 6, 1, 8, True)
            a.ext(interleave(m, L))
            a.ext(frag_reads(AF, 1))
            pend_mm2 = mm(2, sl == 0)
            if sl == slots[-1]:
                a("s_waitcnt lgkmcnt(0)")
                a.ext(pend_mm2); pend_mm2 = None
        if not tail: return
        self.stamp(1)
        A0, A1, A2r = ACC, ACC + 4, ACC + 8
        a("v_cmp_eq_u32 vcc, 0, v0")
        a("v_and_b32 v4, 15, v0")
        a("v_lshrrev_b32 v5, 4, v0")
        a("v_cndmask_b32 v6, 0, v219, vcc")
        a("v_lshlrev_b32 v7, 5, v4")
        a("v_lshl_add_u32 v7, v5, 4, v7")
        a("v_lshlrev_b32 v8, 4, v4")
        a("v_lshl_add_u32 v8, v5, 8, v8")
        a("v_cmp_gt_u32 vcc, 2, v5")
        a("v_add_f32 v%d, v%d, v6" % (A0, A0))
        a("s_nop 0")
        a("v_cndmask_b32 v7, v8, v7, vcc")
        a("v_add_u32 v7, s51, v7")
        a("v_lshlrev_b32 v8, 3, v4")
        a("v_lshl_add_u32 v8, v5, 8, v8")
        a("v_add_u32 v8, s51, v8")
        a("s_nop 4")
        a("ds_write_b128 v7, v[%d:%d]" % (A1, A1 + 3))
        a("ds_write_b64 v8, v[%d:%d] offset:1024" % (A2r, A2r + 1))
        a("ds_write_b64 v8, v[%d:%d] offset:1152" % (A2r + 2, A2r + 3))
        a("v_cvt_pk_bf16_f32 v10, v%d, v%d" % (A0 + 3, A0 + 2))
        a("v_cvt_pk_bf16_f32 v11, v%d, v%d" % (A0 + 1, A0))
        a("v_lshlrev_b32 v9, 5, v4")
        a("v_lshl_add_u32 v9, v5, 3, v9")
        a("v_sub_u32 v9, 4088, v9")
        a("v_add_u32 v9, s52, v9")
        a("ds_write_b64 v9, v[10:11]")
        a("v_and_b32 v9, 31, v0")
        a("v_lshlrev_b32 v9, 2, v9")
        a("v_add_u32 v9, s52, v9")
        a("v_mov_b32 v12, 0")
        a("ds_write_b32 v9, v12 offset:4096")
        a("v_lshlrev_b32 v13, 4, v0")
        a("v_add_u32 v14, s51, v13")
        a("v_lshlrev_b32 v15, 3, v0")
        a("v_add_u32 v15, s51, v15")
        a("v_lshlrev_b32 v16, 2, v0")
        a("v_add_u32 v16, s51, v16")
        a("v_sub_u32 v13, s52, v13")
        a("s_waitcnt lgkmcnt(0)")
        a("ds_read_b128 v[20:23], v14")
        a("ds_read_b32 v24, v14 offset:16")
        a("ds_read_b64 v[26:27], v15 offset:512")
        a("ds_read_b32 v28, v15 offset:520")
        a("ds_read2_b32 v[30:31], v16 offset0:0 offset1:1")
        a.l.pop()
        a("v_add_u32 v17, 1024, v16")
        a("ds_read2_b32 v[30:31], v17 offset0:0 offset1:1")
        a("ds_read2_b32 v[32:33], v17 offset0:64 offset1:65")
        a("v_and_b32 v18, 1, v0")
        a("v_cmp_eq_u32 vcc, 1, v18")
        a("s_waitcnt lgkmcnt(0)")
        a("v_cvt_pk_bf16_f32 v36, v28, v28")
        a("v_cvt_pk_bf16_f32 v37, v27, v27")
        a("v_cvt_pk_bf16_f32 v38, v27, v26")
        a("v_cvt_pk_bf16_f32 v39, v26, v26")
        a("ds_write_b128 v13, v[36:39] offset:3056")
        for ps in range(2):
            v0_, v1_ = 30 + 2 * ps, 31 + 2 * ps
            o = 40 + 4 * ps
            a("v_cndmask_b32 v19, v%d, v%d, vcc" % (v0_, v1_))
            a("v_cvt_pk_bf16_f32 v%d, v%d, v%d" % (o, v1_, v1_))
            a("v_cvt_pk_bf16_f32 v%d, v%d, v19" % (o + 1, v1_))
            a("v_cvt_pk_bf16_f32 v%d, v%d, v%d" % (o + 2, v0_, v0_))
            a("v_mov_b32 v%d, v%d" % (o + 3, o + 2))
        a("ds_write_b128 v13, v[40:43] offset:2032")
        a("ds_write_b128 v13, v[44:47] offset:1008")
        a("v_cvt_pk_bf16_f32 v48, v24, v23")
        a("v_cvt_pk_bf16_f32 v49, v22, v22")
        a("v_cvt_pk_bf16_f32 v50, v22, v21")
        a("v_cvt_pk_bf16_f32 v51, v20, v20")
        a("s_mov_b32 exec_hi, 0")
        a("ds_write_b128 v13, v[48:51] offset:3568")
        a("s_mov_b32 exec_hi, -1")
        if "dumpk" in self.ph:
            a("s_waitcnt lgkmcnt(0)")
            a("v_lshlrev_b32 v13, 4, v0")
            a("v_add_u32 v14, s52, v13")
            a("s_mul_i32 s67, s50, 4224")
            a("s_add_u32 s67, s67, %d" % WS_DBG)
            for i in range(5):
                a("ds_read_b128 v[20:23], v14 offset:%d" % (1024 * i))
                a("s_waitcnt lgkmcnt(0)")
                if i == 4: a("s_mov_b32 exec_hi, 0"); a("s_mov_b32 exec_lo, 0xff")
                a("s_add_u32 s68, s67, %d" % (1024 * i))
                a("buffer_store_dwordx4 v[20:23], v13, s[20:23], s68 offen")
                a("s_waitcnt vmcnt(0)")
            a("s_mov_b64 exec, -1")

    def u_look(self):
        a = self.a
        self.nonce_read(120)
        a("s_lshr_b32 s78, s50, 5")
        a("s_lshl_b32 s78, s78, 7")
        a("s_add_u32 s78, s78, %d" % WS_FU)
        a("v_and_b32 v120, 15, v0")
        a("v_lshlrev_b32 v120, 2, v120")
        a("buffer_load_dword v121, v120, s[20:23], s78 offen sc1")
    def u_prefetch(self):
        a = self.a
        l = self.newlab("uok")
        a("s_waitcnt vmcnt(0)")
        a("v_cmp_eq_u32 vcc, s64, v121")
        a("s_nop 1")
        a("s_cmp_eq_u64 vcc, -1")
        a("s_cbranch_scc1 %s" % l)
        self.poll_line("s78", 16, 120, sleep=4)
        a.lab(l)
        self.conv_loads()
        self.lds_inc(LDS_UOK, 152)

    def conv_loads(self):
        a = self.a
        a("s_mul_i32 s67, s50, %d" % ROWS)
        a("s_add_u32 s67, s67, %d" % (WS_UT - 4))
        a("v_lshlrev_b32 v1, 2, v0")
        for i in range(16):
            a("buffer_load_dwordx2 v[%d:%d], v1, s[20:23], s67 offen offset:%d sc1" % (120 + 2 * i, 121 + 2 * i, 256 * i))

    def conv(self):
        a = self.a
        D = 120
        a("s_mul_i32 s53, s66, %d" % UC_SZ)
        if LDS_UC: a("s_add_u32 s53, s53, %d" % LDS_UC)
        if not self.fused():
            a("s_mov_b32 m0, s53")
            a("v_mov_b32 v2, 0")
            for b in range(4):
                a("ds_write_addtid_b32 v2 offset:%d" % (b * UC_STRIDE))
                a("ds_write_addtid_b32 v2 offset:%d" % (b * UC_STRIDE + 33 * 4))
            a("v_cmp_eq_u32 vcc, 0, v0")
            a("s_waitcnt vmcnt(0)")
            a("v_cndmask_b32 v%d, v%d, v2, vcc" % (D, D))
            for i in range(16):
                lo, hi = D + 2 * i, D + 2 * i + 1
                o = 4 + (i % 4)
                a("v_alignbit_b32 v%d, v%d, v%d, 16" % (o, hi, lo))
                a("ds_write_addtid_b32 v%d offset:%d" % (hi, 3 * UC_STRIDE + 4 * (64 * i + 96)))
                a("ds_write_addtid_b32 v%d offset:%d" % (hi, 1 * UC_STRIDE + 4 * (64 * i + 97)))
                a("ds_write_addtid_b32 v%d offset:%d" % (o, 2 * UC_STRIDE + 4 * (64 * i + 96)))
                a("ds_write_addtid_b32 v%d offset:%d" % (o, 0 * UC_STRIDE + 4 * (64 * i + 97)))
        VU, VK = 8, 9
        a("v_and_b32 v4, 3, v0")
        a("v_mul_u32_u24 v4, %d, v4" % UC_STRIDE)
        a("v_bfe_u32 v5, v0, 2, 2")
        a("v_lshl_add_u32 v4, v5, 7, v4")
        a("v_lshrrev_b32 v5, 4, v0")
        a("v_lshl_add_u32 v4, v5, 4, v4")
        a("v_add_u32 v%d, s53, v4" % VU)
        a("v_and_b32 v6, 15, v0")
        a("v_lshlrev_b32 v7, 3, v6")
        a("v_sub_u32 v7, 120, v7")
        a("v_lshl_add_u32 v7, v5, 4, v7")
        a("v_add_u32 v%d, s52, v7" % VK)
        a("v_lshlrev_b32 v10, 3, v6")
        a("v_lshl_add_u32 v10, v5, 7, v10")
        ACC = 16; SETS = [48, 112]
        def reads(rho, S):
            L = []
            for z in range(8):
                L.append("ds_read_b128 v[%d:%d], v%d offset:%d" % (S + 4 * z, S + 4 * z + 3, VU, 512 * z + 64 * (7 - rho)))
                zz = 8 * z + rho
                L.append("ds_read_b64 v[%d:%d], v%d offset:%d" % (S + 32 + 4 * z, S + 33 + 4 * z, VK, 64 * (63 - zz)))
                L.append("ds_read_b64 v[%d:%d], v%d offset:%d" % (S + 34 + 4 * z, S + 35 + 4 * z, VK, 64 * (63 - zz) + 8))
            return L
        def mm(rho, S):
            L = []
            for ze in range(8):
                for nu in range(8 - ze):
                    n = ze + nu
                    c = "0" if (rho == 0 and ze == 0) else "v[%d:%d]" % (ACC + 4 * n, ACC + 4 * n + 3)
                    L.append("v_mfma_f32_16x16x32_bf16 v[%d:%d], v[%d:%d], v[%d:%d], %s" % (ACC + 4 * n, ACC + 4 * n + 3, S + 4 * nu, S + 4 * nu + 3, S + 32 + 4 * ze, S + 35 + 4 * ze, c))
            return L
        a("s_waitcnt lgkmcnt(0)")
        if self.fused(): self.lds_spin(LDS_UCOK, 12)
        self.stamp(4)
        a.ext(reads(0, SETS[0]))
        a("s_waitcnt lgkmcnt(0)")
        for rho in range(8):
            fill = reads(rho + 1, SETS[(rho + 1) & 1]) if rho < 7 else []
            a.ext(interleave(mm(rho, SETS[rho & 1]), fill, span=28))
            if rho < 7: a("s_waitcnt lgkmcnt(0)")
        self.stamp(7)
        a("s_mul_i32 s67, s50, %d" % ROWS)
        a("s_add_u32 s67, s67, %d" % WS_Y)
        a("s_nop 7")
        for n in range(8):
            o = 48 + 2 * n
            a("v_cvt_pk_bf16_f32 v%d, v%d, v%d" % (o, ACC + 4 * n, ACC + 4 * n + 1))
            a("v_cvt_pk_bf16_f32 v%d, v%d, v%d" % (o + 1, ACC + 4 * n + 2, ACC + 4 * n + 3))
            if "noy" not in self.ph: a("buffer_store_dwordx2 v[%d:%d], v10, s[20:23], s67 offen offset:%d sc1" % (o, o + 1, 512 * n))

    def s_ssm(self):
        a = self.a
        n = self.name
        a("s_sub_u32 s66, s3, 4")
        a("s_lshl_b32 s50, s66, 8")
        a("s_add_u32 s50, s50, s2")
        a("s_cmp_ge_u32 s66, 3")
        a("s_cbranch_scc1 %s_ssm_done" % n)
        if self.fused():
            l = self.newlab("nch")
            a("s_cmp_lt_u32 s50, 640")
            a("s_cbranch_scc1 %s" % l)
            a("s_branch %s_ssm_done" % n)
            a.lab(l)
        else:
            a("s_cmp_ge_u32 s50, 640")
            a("s_cbranch_scc1 %s_ssm_done" % n)
        self.jitter()
        if self.fused() and "g1" in self.ph:
            a("s_waitcnt vmcnt(0)")
        if "g1" not in self.ph:
            self.stamp(5)
            self.ssm_param_loads()
            self.kgen("all")
        elif "kghead" in self.ph:
            self.kgen("tail")
        else:
            self.kgen("rest")
        self.stamp(6)
        self.jitter()
        if not self.fused():
            self.conv_loads()
        self.conv()
        self.jitter()
        if "prioT" in self.ph or "prioT0" in self.ph: a("s_setprio 0")
        a("s_waitcnt vmcnt(0)")
        if self.fused():
            self.nonce_read(4)
            a("s_lshl_b32 s69, s50, 2")
            a("s_add_u32 s69, s69, %d" % WS_FY)
            self.flag_set("s69", 2)
        self.stamp(8)
        a.lab("%s_ssm_done" % n)

    G2_SETS = [80, 116, 152, 188]
    G2_VB, G2_VL, G2_VB8, G2_T, G2_VRS = 224, 228, 246, 230, 250

    def g2_setup(self):
        a = self.a
        VB, VL, VB8, T, VRS = self.G2_VB, self.G2_VL, self.G2_VB8, self.G2_T, self.G2_VRS
        a("v_mbcnt_lo_u32_b32 v%d, -1, 0" % T)
        a("v_mbcnt_hi_u32_b32 v%d, -1, v%d" % (T, T))
        a("v_lshlrev_b32 v%d, 4, v%d" % (VL, T))
        for tau in range(4):
            a("s_add_u32 s67, s3, %d" % tau)
            a("s_and_b32 s67, s67, 3")
            a("s_lshl_b32 s67, s67, 10")
            a("v_add_u32 v%d, s67, v%d" % (VB + tau, VL))
            a("v_lshlrev_b32 v%d, 3, v%d" % (VB8 + tau, T))
            a("v_add_u32 v%d, s67, v%d" % (VB8 + tau, VB8 + tau))
        a("s_mul_i32 s70, s6, 48")
        a("s_mul_i32 s67, s3, 12")
        a("s_add_u32 s70, s70, s67")
        a("s_lshl_b32 s70, s70, 12")
        if WS_H: a("s_add_u32 s70, s70, %d" % WS_H)
        a("s_mul_i32 s71, s7, 48")
        a("s_add_u32 s71, s71, s67")
        a("s_mul_i32 s71, s71, 5120")
        a("s_add_u32 s71, s71, %d" % WS_WD)
        a("s_add_u32 s72, s71, 4096")
        for tau in range(1, 4):
            a("s_add_u32 s67, s3, %d" % tau)
            a("s_and_b32 s67, s67, 3")
            a("s_mul_i32 s67, s67, 3")
            a("s_add_u32 s67, s67, %d" % (tau - 1))
            a("s_mul_i32 s67, s67, 5120")
            a("s_add_u32 s67, s67, %d" % LDS_RED)
            a("v_add_u32 v%d, s67, v%d" % (VRS + tau - 1, VL))
            a("s_mov_b32 s%d, s67" % (72 + tau))

    def g2_final_addrs(self):
        a = self.a
        T, VL = self.G2_T, self.G2_VL
        a("s_mul_i32 s67, s3, %d" % (3 * 5120))
        a("s_add_u32 s67, s67, %d" % LDS_RED)
        a("v_add_u32 v%d, s67, v%d" % (T + 1, VL))
        a("v_lshrrev_b32 v%d, 4, v%d" % (T + 2, T))
        a("v_and_b32 v%d, 15, v%d" % (T + 3, T))
        a("v_lshrrev_b32 v%d, 2, v%d" % (T + 4, T + 3))
        a("v_lshl_add_u32 v%d, v%d, 3, v%d" % (T + 5, T + 2, T + 4))
        a("v_lshl_add_u32 v%d, v%d, 2, v%d" % (T + 6, T + 2, T + 4))
        a("v_and_b32 v%d, 3, v%d" % (T + 7, T))
        a("v_lshlrev_b32 v%d, 3, v%d" % (T + 7, T + 7))
        a("s_lshl_b32 s67, s3, 5")
        a("s_add_u32 s67, s67, %d" % LDS_YT)
        a("v_add_u32 v%d, s67, v%d" % (T + 7, T + 7))
        a("v_lshl_add_u32 v%d, v%d, 7, v%d" % (T + 5, T + 5, T + 7))
        a("v_lshl_add_u32 v%d, v%d, 7, v%d" % (T + 6, T + 6, T + 7))
        a("s_lshl_b32 s67, s3, 6")
        a("s_add_u32 s67, s67, %d" % LDS_GT)
        a("v_lshl_add_u32 v%d, v%d, 2, s67" % (T + 8, T + 3))
        a("s_lshl_b32 s67, s6, 6")
        a("s_lshl_b32 s68, s3, 4")
        a("s_add_u32 s67, s67, s68")
        a("v_add_u32 v%d, s67, v%d" % (T + 9, T + 3))
        a("s_movk_i32 s68, 1280")
        a("v_mul_lo_u32 v%d, v%d, s68" % (T + 9, T + 9))
        a("s_mul_i32 s68, s7, 160")
        a("v_add_u32 v%d, s68, v%d" % (T + 9, T + 9))
        a("v_lshl_add_u32 v%d, v%d, 3, v%d" % (T + 10, T + 2, T + 9))
        a("v_lshl_add_u32 v%d, v%d, 4, v%d" % (T + 9, T + 2, T + 9))

    def g2_loadsA(self, S):
        VL = self.G2_VL
        L = []
        for dt in range(5):
            if dt < 4: L.append("buffer_load_dwordx4 v[%d:%d], v%d, s[20:23], s71 offen offset:%d sc1" % (S + 16 + 4 * dt, S + 19 + 4 * dt, VL, 1024 * dt))
            else: L.append(("buffer_load_dwordx4 v[%d:%d], v%d, s[20:23], s72 offen sc1" % (S + 16 + 4 * dt, S + 19 + 4 * dt, VL),
                            "s_add_u32 s71, s71, 5120", "s_add_u32 s72, s72, 5120"))
        return L

    def g2_raw_stage(self):
        a = self.a
        T = self.G2_T
        a("s_mov_b32 s67, 52429")
        a("s_movk_i32 s68, 1280")
        for i in range(5):
            a("v_add_u32 v121, %d, v%d" % (64 * i, T))
            a("v_mul_lo_u32 v122, v121, s67")
            a("v_lshrrev_b32 v122, 19, v122")
            a("v_mul_u32_u24 v123, 10, v122")
            a("v_sub_u32 v123, v121, v123")
            a("v_mul_lo_u32 v122, v122, s68")
            a("v_lshl_add_u32 v%d, v123, 4, v122" % (116 + i))
        a("v_lshrrev_b32 v121, 4, v%d" % T)
        a("v_and_b32 v122, 15, v%d" % T)
        a("v_lshrrev_b32 v122, 2, v122")
        a("v_lshl_add_u32 v121, v121, 2, v122")
        a("v_mul_u32_u24 v121, 160, v121")
        a("v_and_b32 v122, 3, v%d" % T)
        a("v_lshl_add_u32 v245, v122, 4, v121")
        a("v_lshl_add_u32 v253, v122, 3, v121")
        a("s_mul_i32 s67, s3, 12")
        a("s_add_u32 s67, s67, 4")
        a("s_mul_i32 s67, s67, %d" % (32 * 1280))
        a("s_mul_i32 s68, s7, 160")
        a("s_add_u32 s67, s67, s68")
        for tau in range(1, 4):
            for i in range(5):
                a("s_add_u32 m0, s%d, %d" % (72 + tau, 1024 * i))
                a("s_nop 0")
                a("buffer_load_dwordx4 v%d, s[28:31], s67 offen lds" % (116 + i))
            if tau < 3: a("s_add_u32 s67, s67, %d" % (32 * 1280))

    def g2_raw_reads(self, k, S):
        L = [("v_add_u32 v241, s%d, v245" % (72 + k - 3), "v_add_u32 v244, s%d, v253" % (72 + k - 3))]
        for dt in range(5):
            for h in range(2):
                if dt < 4: ad, off = 241, 64 * (dt >> 1) + 8 * (dt & 1) + 2560 * h
                else: ad, off = 244, 128 + 2560 * h
                L.append("ds_read_b64_tr_b16 v[%d:%d], v%d offset:%d" % (S + 16 + 4 * dt + 2 * h, S + 17 + 4 * dt + 2 * h, ad, off))
        return L

    def g2_burst_atoms(self):
        VL = self.G2_VL
        regl = []
        for k in range(4): regl += self.g2_loadsA(self.G2_SETS[k])
        dmal = []
        for tau in range(1, 4):
            dmal.append(("s_mov_b32 m0, s%d" % (72 + tau), "s_nop 0",
                         "buffer_load_dwordx4 v%d, s[20:23], s71 offen sc1 lds" % VL))
            for dt in range(1, 4):
                dmal.append("buffer_load_dwordx4 v%d, s[20:23], s71 offen offset:%d sc1 lds" % (VL, 1024 * dt))
            dmal.append(("s_add_u32 m0, s%d, 4096" % (72 + tau), "s_add_u32 s71, s71, 5120",
                         "buffer_load_dwordx4 v%d, s[20:23], s72 offen sc1 lds" % VL, "s_add_u32 s72, s72, 5120"))
        return regl, dmal

    def g_gemm2(self):
        a = self.a
        ACC = 0
        SETS = self.G2_SETS
        VB, VL, VB8, T, VRS = self.G2_VB, self.G2_VL, self.G2_VB8, self.G2_T, self.G2_VRS
        acc = lambda dt, tau: ACC + (dt * 4 + tau) * 4
        epb = "epb" in self.ph and "g1" in self.ph
        if not epb: self.g2_setup()
        loadsA = self.g2_loadsA
        def loadsB(S, k):
            L = []
            for tau in range(4):
                if k % 3 == 1:
                    x = ("buffer_load_dwordx2 v[%d:%d], v%d, s[20:23], s70 offen sc1" % (S + 4 * tau, S + 4 * tau + 1, VB8 + tau),
                         "buffer_load_dwordx2 v[%d:%d], v%d, s[20:23], s70 offen offset:512 sc1" % (S + 4 * tau + 2, S + 4 * tau + 3, VB8 + tau))
                else:
                    x = ("buffer_load_dwordx4 v[%d:%d], v%d, s[20:23], s70 offen sc1" % (S + 4 * tau, S + 4 * tau + 3, VB + tau),)
                L.append(x if tau < 3 else x + ("s_add_u32 s70, s70, 4096",))
            return L
        nB = lambda k: 8 if k % 3 == 1 else 4
        def mm(S, first):
            L = []
            for dt in range(5):
                for tau in range(4):
                    c = "0" if first else "v[%d:%d]" % (acc(dt, tau), acc(dt, tau) + 3)
                    L.append("v_mfma_f32_16x16x32_bf16 v[%d:%d], v[%d:%d], v[%d:%d], %s" % (acc(dt, tau), acc(dt, tau) + 3, S + 16 + 4 * dt, S + 19 + 4 * dt, S + 4 * tau, S + 4 * tau + 3, c))
            return L
        NS = 12
        pre = "g1" in self.ph and "nopre" not in self.ph
        VLOOK = 254
        if epb:
            if self.fused(): self.nonce_read(232)
            self.g_signal_h(0)
            if self.fused():
                a("s_lshr_b32 s79, s6, 1")
                a("s_lshl_b32 s79, s79, 7")
                a("s_lshl_b32 s67, s3, 4")
                a("s_add_u32 s79, s79, s67")
                a("s_add_u32 s79, s79, %d" % WS_FH)
                self.poll_line("s79", 4, VLOOK, sleep=3)
        elif "g1" in self.ph:
            if self.fused():
                self.nonce_read(232)
                a("v_mov_b32 v%d, 0" % VLOOK)
                l = self.newlab("lk"); l2 = self.newlab("lk")
                a("s_cmp_lg_u32 s3, 0")
                a("s_cbranch_scc1 %s" % l)
                a("s_lshl_b32 s79, s7, 8")
                a("s_add_u32 s79, s79, %d" % WS_FW)
                self.look_line("s79", 48, VLOOK)
                a("s_waitcnt vmcnt(1)")
                a("s_branch %s" % l2)
                a.lab(l)
                a("s_waitcnt vmcnt(0)")
                a.lab(l2)
                self.g_signal_h(None)
            else:
                self.g_signal_h(0)
        raw = "rawlds" in self.ph and pre and not epb
        if raw:
            if self.fused(): self.lds_spin(LDS_SFREE, 232, 4)
            self.g2_raw_stage()
        if pre and not epb:
            if self.fused():
                lo = self.newlab("ww"); ld = self.newlab("wd")
                a("s_cmp_lg_u32 s3, 0")
                a("s_cbranch_scc1 %s" % lo)
                self.lds_spin(LDS_SFREE, 232, 4)
                self.lds_spin(LDS_UOK, 232, 3)
                if "gapstamps" in self.ph: self.stamp(2, force=True)
                self.check_line("s79", VLOOK, 0)
                if "gapstamps" in self.ph: self.stamp(3, force=True)
                a("v_mov_b32 v232, %d" % LDS_WOK)
                a("v_mov_b32 v233, 1")
                a("ds_write_b32 v232, v233")
                if "hall" in self.ph:
                    a("s_lshr_b32 s79, s6, 1")
                    a("s_lshl_b32 s79, s79, 7")
                    a("s_add_u32 s79, s79, %d" % WS_FH)
                    self.look_line("s79", 16, VLOOK)
                a("s_branch %s" % ld)
                a.lab(lo)
                self.lds_spin(LDS_WOK, 232)
                a.lab(ld)
                if "hall" not in self.ph:
                    a("s_lshr_b32 s79, s6, 1")
                    a("s_lshl_b32 s79, s79, 7")
                    a("s_lshl_b32 s67, s3, 4")
                    a("s_add_u32 s79, s79, s67")
                    a("s_add_u32 s79, s79, %d" % WS_FH)
                    self.look_line("s79", 4, VLOOK)
            if "gapstamps" in self.ph: self.stamp(4, force=True)
            self.jitter()
            regl, dmal = self.g2_burst_atoms()
            a.ext(flat(regl))
            if raw:
                a("s_add_u32 s71, s71, %d" % (3 * 5120))
                a("s_add_u32 s72, s72, %d" % (3 * 5120))
            else:
                a.ext(flat(dmal))
            if "gapstamps" in self.ph: self.stamp(5, force=True)
        fintrim = "fintrim" in self.ph
        if fintrim: self.g2_final_addrs()
        if not epb: self.g2_wait_inputs(looked=pre)
        if "gapstamps" in self.ph: self.stamp(6, force=True)
        self.jitter()
        self.stamp(5)
        self.clk(5)
        def srcA(k):
            if not pre: return "g"
            return "pre" if k < 4 else ("lds" if k < 7 else "g")
        def loadA_any(k):
            S = SETS[k % 4]
            if srcA(k) == "g": return loadsA(S)
            if srcA(k) == "lds":
                if raw: return self.g2_raw_reads(k, S)
                return ["ds_read_b128 v[%d:%d], v%d offset:%d" % (S + 16 + 4 * dt, S + 19 + 4 * dt, VRS + k - 4, 1024 * dt) for dt in range(5)]
            return []
        nL = lambda k: nB(k) + (5 if srcA(k) == "g" else 0)
        deep = "deepB" in self.ph and pre
        def M(S, dt, tau, first):
            c = "0" if first else "v[%d:%d]" % (acc(dt, tau), acc(dt, tau) + 3)
            return "v_mfma_f32_16x16x32_bf16 v[%d:%d], v[%d:%d], v[%d:%d], %s" % (acc(dt, tau), acc(dt, tau) + 3, S + 16 + 4 * dt, S + 19 + 4 * dt, S + 4 * tau, S + 4 * tau + 3, c)
        W = lambda dt, tau: "ds_write_b128 v%d, v[%d:%d] offset:%d" % (VRS + tau - 1, acc(dt, tau), acc(dt, tau) + 3, 1024 * dt)
        gk = 7 if "gok7" in self.ph else (6 if "gok6" in self.ph else NS - 4)
        if deep:
            vm = []
            def nvm(atoms): return sum(1 for x in flat(atoms) if x.startswith("buffer_"))
            def issue(tag, atoms): vm.extend([tag] * nvm(atoms))
            for k in range(4):
                L = loadsB(SETS[k], k); a.ext(flat(L)); issue(("B", k), L)
            for k in range(NS):
                S = SETS[k % 4]
                need = [i for i, t in enumerate(vm) if t in (("B", k), ("A", k))]
                rem = len(vm) - 1 - max(need)
                if srcA(k) == "lds": a("s_waitcnt vmcnt(%d) lgkmcnt(0)" % rem)
                else: a("s_waitcnt vmcnt(%d)" % rem)
                if "gapstamps" in self.ph and k == 0: self.stamp(7, force=True)
                LA = loadA_any(k + 3) if k + 3 < NS else []
                LB = loadsB(S, k + 4) if k + 4 < NS else []
                if k == NS - 1 and fintrim:
                    for dt in range(5): a(M(S, dt, 1, False))
                    for dt in range(5): a(M(S, dt, 2, False))
                    for dt in range(5): a(M(S, dt, 3, False)); a(W(dt, 1))
                    for dt in range(5): a(M(S, dt, 0, False)); a(W(dt, 2))
                    for dt in range(5): a(W(dt, 3))
                else:
                    ai = 0
                    for tau in range(4):
                        for dt in range(5):
                            a(M(S, dt, tau, k == 0))
                            if dt in (1, 3) and ai < len(LA):
                                a.ext(flat([LA[ai]]));
                                if nvm([LA[ai]]): issue(("A", k + 3), [LA[ai]])
                                ai += 1
                        if LB: a.ext(flat([LB[tau]])); issue(("B", k + 4), [LB[tau]])
                    while ai < len(LA):
                        a.ext(flat([LA[ai]]))
                        if nvm([LA[ai]]): issue(("A", k + 3), [LA[ai]])
                        ai += 1
                if k == gk and self.fused(): self.lds_inc(LDS_GOK, 232)
        else:
            for k in range(3):
                a.ext(flat(loadsB(SETS[k], k) + loadA_any(k)))
            for k in range(NS):
                rem = sum(nL(j) for j in range(k + 1, min(NS - 1, k + 2) + 1))
                if srcA(k) == "lds": a("s_waitcnt vmcnt(%d) lgkmcnt(0)" % rem)
                else: a("s_waitcnt vmcnt(%d)" % rem)
                fill = (loadsB(SETS[(k + 3) % 4], k + 3) + loadA_any(k + 3)) if k + 3 < NS else []
                if "k2stamps" in self.ph and k < 9: self.stamp(k + 1, force=True)
                if k == NS - 1 and fintrim:
                    S = SETS[k % 4]
                    for dt in range(5): a(M(S, dt, 1, False))
                    for dt in range(5): a(M(S, dt, 2, False))
                    for dt in range(5): a(M(S, dt, 3, False)); a(W(dt, 1))
                    for dt in range(5): a(M(S, dt, 0, False)); a(W(dt, 2))
                    for dt in range(5): a(W(dt, 3))
                else:
                    a.ext(interleave(mm(SETS[k % 4], k == 0), fill))
                if k == gk and self.fused(): self.lds_inc(LDS_GOK, 232)
        self.stamp(6)
        self.clk(7)
        if not fintrim:
            a("s_nop 7")
            for tau in range(1, 4):
                for dt in range(5):
                    a("ds_write_b128 v%d, v[%d:%d] offset:%d" % (VRS + tau - 1, acc(dt, tau), acc(dt, tau) + 3, 1024 * dt))
        a("s_waitcnt lgkmcnt(0)")
        self.jitter()
        a("s_barrier")
        self.stamp(7)
        if not fintrim: self.g2_final_addrs()
        R = 80
        for j in range(3):
            for dt in range(5):
                r = R + (j * 5 + dt) * 4
                a("ds_read_b128 v[%d:%d], v%d offset:%d" % (r, r + 3, T + 1, 5120 * j + 1024 * dt))
        Y = 140
        for dt in range(5):
            if dt < 4: a("ds_read_b64_tr_b16 v[%d:%d], v%d offset:%d" % (Y + 2 * dt, Y + 2 * dt + 1, T + 5, 128 * (32 * (dt >> 1) + 4 * (dt & 1))))
            else: a("ds_read_b64_tr_b16 v[%d:%d], v%d offset:%d" % (Y + 2 * dt, Y + 2 * dt + 1, T + 6, 128 * 64))
        a("ds_read_b32 v%d, v%d" % (T + 8, T + 8))
        a("s_waitcnt lgkmcnt(0)")
        for dt in range(5):
            for h in range(2):
                x = acc(dt, 0) + 2 * h
                p = [R + (j * 5 + dt) * 4 + 2 * h for j in range(3)]
                a("v_pk_add_f32 v[%d:%d], v[%d:%d], v[%d:%d]" % (p[0], p[0] + 1, p[0], p[0] + 1, p[1], p[1] + 1))
                a("v_pk_add_f32 v[%d:%d], v[%d:%d], v[%d:%d]" % (x, x + 1, x, x + 1, p[2], p[2] + 1))
        for dt in range(5):
            for h in range(2):
                x = acc(dt, 0) + 2 * h
                p = R + dt * 4 + 2 * h
                a("v_pk_add_f32 v[%d:%d], v[%d:%d], v[%d:%d]" % (x, x + 1, x, x + 1, p, p + 1))
        U = 150
        for dt in range(5):
            for h in range(2):
                a("v_lshlrev_b32 v%d, 16, v%d" % (U + 4 * dt + 2 * h, Y + 2 * dt + h))
                a("v_and_b32 v%d, 0xffff0000, v%d" % (U + 4 * dt + 2 * h + 1, Y + 2 * dt + h))
        G2 = T + 12
        assert G2 % 2 == 0
        a("v_mov_b32 v%d, v%d" % (G2, T + 8))
        a("v_mov_b32 v%d, v%d" % (G2 + 1, T + 8))
        for dt in range(5):
            for h in range(2):
                x = acc(dt, 0) + 2 * h; u = U + 4 * dt + 2 * h
                a("v_pk_add_f32 v[%d:%d], v[%d:%d], v[%d:%d] neg_lo:[0,1] neg_hi:[0,1]" % (u, u + 1, u, u + 1, x, x + 1))
        for dt in range(5):
            for h in range(2):
                x = acc(dt, 0) + 2 * h; u = U + 4 * dt + 2 * h
                a("v_pk_fma_f32 v[%d:%d], v[%d:%d], v[%d:%d], v[%d:%d]" % (x, x + 1, u, u + 1, G2, G2 + 1, x, x + 1))
        O = 176
        for dt in range(5):
            for h in range(2):
                x = acc(dt, 0) + 2 * h
                a("v_cvt_pk_bf16_f32 v%d, v%d, v%d" % (O + 2 * dt + h, x, x + 1))
        fl = " sc1" if "outsc1" in self.ph else (" nt" if "outnt" in self.ph else "")
        a("buffer_store_dwordx4 v[%d:%d], v%d, s[24:27], 0 offen%s" % (O, O + 3, T + 9, fl))
        a("buffer_store_dwordx4 v[%d:%d], v%d, s[24:27], 0 offen offset:64%s" % (O + 4, O + 7, T + 9, fl))
        a("buffer_store_dwordx2 v[%d:%d], v%d, s[24:27], 0 offen offset:128%s" % (O + 8, O + 9, T + 10, fl))
        self.stamp(8)

    def g2_wait_inputs(self, looked=False):
        if not self.fused(): return
        a = self.a
        T = 232
        if looked and "hall" not in self.ph:
            self.check_line("s79", 254, 20 if "rawlds" in self.ph else 35, sleep=4)
            return
        lo = self.newlab("hw"); ld = self.newlab("hd")
        a("s_cmp_lg_u32 s3, 0")
        a("s_cbranch_scc1 %s" % lo)
        if looked:
            self.check_line("s79", 254, 20 if "rawlds" in self.ph else 35)
        else:
            a("s_lshr_b32 s78, s6, 1")
            a("s_lshl_b32 s78, s78, 7")
            a("s_add_u32 s78, s78, %d" % WS_FH)
            self.poll_line("s78", 16, T, sleep=4)
        a("v_mov_b32 v%d, %d" % (T, LDS_HOK))
        a("v_mov_b32 v%d, 1" % (T + 1))
        a("ds_write_b32 v%d, v%d" % (T, T + 1))
        a("s_branch %s" % ld)
        a.lab(lo)
        self.lds_spin(LDS_HOK, T)
        a.lab(ld)

    def s_final(self):
        a = self.a
        n = self.name
        l = self.newlab("fin")
        a("s_cmp_lg_u32 s3, 7")
        a("s_cbranch_scc1 %s" % l)
        if self.fused(): self.lds_spin(LDS_GOK, 2, 4)
        self.jitter()
        self.y_wait_inputs()
        a("v_mbcnt_lo_u32_b32 v0, -1, 0")
        a("v_mbcnt_hi_u32_b32 v0, -1, v0")
        a("v_lshrrev_b32 v1, 3, v0")
        a("v_mul_u32_u24 v1, %d, v1" % ROWS)
        a("v_and_b32 v2, 7, v0")
        a("v_lshl_add_u32 v1, v2, 4, v1")
        a("s_mul_i32 s67, s7, %d" % (80 * ROWS))
        a("s_lshl_b32 s68, s6, 7")
        a("s_add_u32 s67, s67, s68")
        a("s_add_u32 s67, s67, %d" % WS_Y)
        for i in range(10):
            a("buffer_load_dwordx4 v[%d:%d], v1, s[20:23], s67 offen sc1" % (8 + 4 * i, 11 + 4 * i))
            if i < 9: a("s_add_u32 s67, s67, %d" % (8 * ROWS))
        a("s_lshl_b32 s67, s6, 8")
        a("s_add_u32 s67, s67, %d" % WS_G)
        a("v_lshlrev_b32 v3, 2, v0")
        a("buffer_load_dword v4, v3, s[20:23], s67 offen sc1")
        if self.fused() and "nonearly" not in self.ph: self.nonce_look()
        a("v_lshlrev_b32 v2, 4, v0")
        a("v_add_u32 v2, %d, v2" % LDS_YT)
        a("v_add_u32 v3, %d, v3" % LDS_GT)
        a("s_waitcnt vmcnt(0)")
        for i in range(10):
            a("ds_write_b128 v2, v[%d:%d] offset:%d" % (8 + 4 * i, 11 + 4 * i, 1024 * i))
        a("ds_write_b32 v3, v4")
        a("s_waitcnt lgkmcnt(0)")
        a("s_barrier")
        if self.fused() and "nonearly" not in self.ph: self.nonce_update(looked=True)
        a("s_branch %s_fd" % l)
        a.lab(l)
        a("s_barrier")
        a.lab("%s_fd" % l)

    def y_wait_inputs(self):
        if not self.fused(): return
        a = self.a
        a("v_mbcnt_lo_u32_b32 v0, -1, 0")
        a("v_mbcnt_hi_u32_b32 v0, -1, v0")
        a("s_mul_i32 s67, s7, 320")
        a("s_add_u32 s67, s67, %d" % WS_FY)
        a("v_lshl_add_u32 v1, v0, 2, s67")
        a("v_add_u32 v2, 256, v1")
        a("s_lshl_b32 s68, s6, 5")
        a("s_add_u32 s68, s68, %d" % (WS_FG - 64))
        a("v_lshl_add_u32 v3, v0, 2, s68")
        a("v_cmp_le_u32 vcc, 16, v0")
        a("s_nop 1")
        a("v_cndmask_b32 v2, v2, v3, vcc")
        a("v_subrev_u32 v3, 24, v0")
        a("v_lshlrev_b32 v3, 10, v3")
        a("s_lshl_b32 s68, s2, 2")
        a("s_add_u32 s68, s68, %d" % WS_FY)
        a("v_add_u32 v3, s68, v3")
        a("v_cmp_le_u32 vcc, 24, v0")
        a("s_nop 1")
        a("v_cndmask_b32 v2, v2, v3, vcc")
        a("s_cmp_lt_u32 s2, 128")
        a("s_cselect_b32 s68, 27, 26")
        a("v_mov_b32 v3, s67")
        a("v_cmp_le_u32 vcc, s68, v0")
        a("s_nop 1")
        a("v_cndmask_b32 v2, v2, v3, vcc")
        def loads():
            a("buffer_load_dword v4, v1, s[20:23], 0 offen sc1")
            a("buffer_load_dword v5, v2, s[20:23], 0 offen sc1")
        self.poll(loads, [4, 5], 6, sleep=8)

    def fused(self): return "fused" in self.ph

    def nonce_load(self):
        a = self.a
        if "snonce" in self.ph:
            a("s_add_u32 s68, s%d, %d" % (P_WS, WS_NON))
            a("s_addc_u32 s69, s%d, 0" % (P_WS + 1))
            a("s_load_dword s55, s[68:69], 0")
            return
        a("v_mov_b32 v1, 0")
        a("s_mov_b32 s67, %d" % WS_NON)
        a("buffer_load_dword v242, v1, s[20:23], s67 offen sc1")
    def nonce_publish_local(self):
        a = self.a
        if "snonce" in self.ph:
            a("s_waitcnt lgkmcnt(0)")
            a("s_add_u32 s64, s55, 1")
            a("v_mov_b32 v242, s64")
            a("v_mov_b32 v1, %d" % LDS_NONCE)
            a("ds_write_b32 v1, v242")
            return
        a("v_add_u32 v242, 1, v242")
        a("v_mov_b32 v1, %d" % LDS_NONCE)
        a("ds_write_b32 v1, v242")
        a("v_readfirstlane_b32 s64, v242")
    def nonce_look(self):
        a = self.a
        l = self.newlab("nl")
        a("v_mov_b32 v59, 0")
        a("s_cmp_lg_u32 s2, 0")
        a("s_cbranch_scc1 %s" % l)
        a("v_lshlrev_b32 v59, 4, v0")
        a("s_mov_b32 s78, %d" % WS_FG)
        a("buffer_load_dwordx4 v[60:63], v59, s[20:23], s78 offen sc1")
        a.lab(l)
    def nonce_update(self, looked=False):
        a = self.a
        l = self.newlab("nu"); l2 = self.newlab("nu")
        a("s_cmp_lg_u32 s2, 0")
        a("s_cbranch_scc1 %s" % l)
        if looked:
            for i in range(4):
                if i == 0: a("v_cmp_eq_u32 vcc, s64, v60")
                else:
                    a("v_cmp_eq_u32 s[76:77], s64, v%d" % (60 + i))
                    a("s_nop 1")
                    a("s_and_b64 vcc, vcc, s[76:77]")
            a("s_nop 1")
            a("s_cmp_eq_u64 vcc, -1")
            a("s_cbranch_scc1 %s" % l2)
        a("v_mbcnt_lo_u32_b32 v2, -1, 0")
        a("v_mbcnt_hi_u32_b32 v2, -1, v2")
        a("v_lshlrev_b32 v2, 4, v2")
        a("s_mov_b32 s78, %d" % WS_FG)
        self.poll(lambda: a("buffer_load_dwordx4 v[4:7], v2, s[20:23], s78 offen sc1"), [4, 5, 6, 7], 2, sleep=8)
        a.lab(l2)
        a("s_mov_b32 s69, %d" % WS_NON)
        self.flag_set("s69", 2)
        a.lab(l)

    def nonce_read(self, vt):
        a = self.a
        a("v_mov_b32 v%d, %d" % (vt, LDS_NONCE))
        a("ds_read_b32 v%d, v%d" % (vt, vt))
        a("s_waitcnt lgkmcnt(0)")
        a("v_readfirstlane_b32 s64, v%d" % vt)
        a("s_nop 1")

    def flag_set(self, soff_reg, vt):
        a = self.a
        a("v_mov_b32 v%d, s64" % vt)
        a("v_mov_b32 v%d, 0" % (vt + 1))
        a("s_mov_b64 exec, 1")
        a("buffer_store_dword v%d, v%d, s[20:23], %s offen sc1" % (vt, vt + 1, soff_reg))
        a("s_mov_b64 exec, -1")

    def poll(self, loads, vregs, vt, sleep=8):
        a = self.a
        lp = self.newlab("pl"); ld = self.newlab("pd")
        a("s_mov_b32 s69, 0")
        a.lab(lp)
        loads()
        a("s_waitcnt vmcnt(0)")
        for i, r in enumerate(vregs):
            if i == 0: a("v_cmp_eq_u32 vcc, s64, v%d" % r)
            else:
                a("v_cmp_eq_u32 s[76:77], s64, v%d" % r)
                a("s_nop 1")
                a("s_and_b64 vcc, vcc, s[76:77]")
        a("s_nop 1")
        a("s_cmp_eq_u64 vcc, -1")
        a("s_cbranch_scc1 %s" % ld)
        a("s_add_u32 s69, s69, 1")
        a("s_cmp_lt_u32 s69, 0x40000")
        a("s_cbranch_scc0 %s" % ld)
        a("s_sleep %d" % sleep)
        a("s_branch %s" % lp)
        a.lab(ld)

    def look_line(self, soff, nflags, vt):
        a = self.a
        a("v_mbcnt_lo_u32_b32 v%d, -1, 0" % vt)
        a("v_mbcnt_hi_u32_b32 v%d, -1, v%d" % (vt, vt))
        a("v_cmp_gt_u32 vcc, %d, v%d" % (nflags, vt))
        a("v_lshlrev_b32 v%d, 2, v%d" % (vt, vt))
        a("s_nop 0")
        a("v_cndmask_b32 v%d, 0, v%d, vcc" % (vt, vt))
        a("buffer_load_dword v%d, v%d, s[20:23], %s offen sc1" % (vt + 1, vt, soff))

    def check_line(self, soff, vt, nyounger, sleep=2):
        a = self.a
        l = self.newlab("ck")
        a("s_waitcnt vmcnt(%d)" % nyounger)
        a("v_cmp_eq_u32 vcc, s64, v%d" % (vt + 1))
        a("s_nop 1")
        a("s_cmp_eq_u64 vcc, -1")
        a("s_cbranch_scc1 %s" % l)
        self.poll(lambda: a("buffer_load_dword v%d, v%d, s[20:23], %s offen sc1" % (vt + 1, vt, soff)), [vt + 1], vt, sleep)
        a.lab(l)

    def poll_line(self, soff, nflags, vt, sleep=8):
        a = self.a
        a("v_mbcnt_lo_u32_b32 v%d, -1, 0" % vt)
        a("v_mbcnt_hi_u32_b32 v%d, -1, v%d" % (vt, vt))
        a("v_cmp_gt_u32 vcc, %d, v%d" % (nflags, vt))
        a("v_lshlrev_b32 v%d, 2, v%d" % (vt, vt))
        a("s_nop 0")
        a("v_cndmask_b32 v%d, 0, v%d, vcc" % (vt, vt))
        self.poll(lambda: a("buffer_load_dword v%d, v%d, s[20:23], %s offen sc1" % (vt + 1, vt, soff)), [vt + 1], vt, sleep)

    def build(self):
        a = self.a
        n = self.name
        a.l.append(".globl %s" % n)
        a.l.append(".p2align 8")
        a.l.append(".type %s,@function" % n)
        a.l.append("%s:" % n)
        self.prologue()
        self.jitter()
        a("s_cmp_ge_u32 s3, 4")
        a("s_cbranch_scc1 %s_S" % n)
        if "g1" in self.ph:
            self.g_gemm1()
        if "g2" in self.ph:
            self.g_gemm2()
        self.dbgtime_end()
        self.stamp_flush()
        a("s_endpgm")
        a.lab("%s_S" % n)
        if "g1" in self.ph:
            self.s_phase1()
        if "ssm" in self.ph:
            self.s_ssm()
        if "g2" in self.ph:
            self.s_final()
        self.stamp_flush()
        a.lab("%s_end" % n)
        a("s_endpgm")
        return a.text()

def kd(name):
    return """.amdhsa_kernel %s
  .amdhsa_next_free_vgpr 256
  .amdhsa_next_free_sgpr 102
  .amdhsa_accum_offset 256
  .amdhsa_group_segment_fixed_size 0
  .amdhsa_kernarg_size 136
  .amdhsa_user_sgpr_count 2
  .amdhsa_user_sgpr_kernarg_segment_ptr 1
  .amdhsa_system_sgpr_workgroup_id_x 1
.end_amdhsa_kernel
""" % name

HEADER = open("gated_mix__ssm_conv_s4__swiglu_ffn__prompt.s.ref").read().split("; Override launch")[0]

DOC = """;
;     by buffer_load ... lds, k order rotated per workgroup); epilogue h = silu(g) * u -> bf16, stored as MFMA B fragments in d_ws.
;     values = r + 16 j patterns, so exp factors into two small power tables (complex recurrences) contracted over the 192 modes
"""

def emit(kernels, path):
    txt = HEADER
    if len(kernels) == 1:
        txt += "; @launch grid=(256,1,1) block=(512,1,1) lds=%d\n" % LDS_TOTAL
    else:
        for (n, p, s) in kernels:
            txt += "; @launch kernel=%s grid=(256,1,1) block=(512,1,1) lds=%d\n" % (n, LDS_TOTAL)
    txt += DOC
    txt += '.amdgcn_target "amdgcn-amd-amdhsa--gfx950"\n.text\n'
    for (n, p, s) in kernels:
        txt += Gen(n, p, s).build()
    txt += '.section .rodata,"a"\n'
    for (n, p, s) in kernels:
        txt += ".p2align 6\n" + kd(n)
    open(path, "w").write(txt)

if __name__ == "__main__":
    mode = sys.argv[1]; path = sys.argv[2]
    stamps = len(sys.argv) > 3 and sys.argv[3] == "stamps"
    if mode.startswith("g1+") or mode == "g1":
        emit([(KNAME, set(mode.split("+")), stamps)], path)
    elif mode == "g1,ssm":
        emit([("ka_kernel", {"g1"}, False), ("kb_kernel", {"ssm", "dumpk"}, stamps)], path)
    elif mode == "3k":
        emit([("ka_kernel", {"g1"}, False), ("kb_kernel", {"ssm"}, False), ("kc_kernel", {"g2"}, stamps)], path)
    elif mode == "3k+1":
        emit([("ka_kernel", {"g1"}, False), ("kb_kernel", {"ssm"}, False), ("kc_kernel", {"g2"}, stamps), ("kd_kernel", set(), False)], path)
    elif mode == "3k+3":
        emit([("ka_kernel", {"g1"}, False), ("kb_kernel", {"ssm"}, False), ("kc_kernel", {"g2"}, stamps), ("kd_kernel", set(), False), ("ke_kernel", set(), False), ("kf_kernel", set(), False)], path)
    elif mode == "3k_dbg":
        emit([("ka_kernel", {"g1", "dbgtime"}, False), ("kb_kernel", {"ssm"}, False), ("kc_kernel", {"g2", "dbgtime"}, False)], path)
    elif mode == "fused":
        emit([(KNAME, {"g1", "ssm", "g2", "fused"}, stamps)], path)
    elif mode == "fused_notouch":
        emit([(KNAME, {"g1", "ssm", "g2", "fused", "notouch"}, stamps)], path)
    elif mode == "fused_pk":
        emit([(KNAME, {"g1", "ssm", "g2", "fused", "pkhead"}, stamps)], path)
    elif mode.startswith("F:"):
        emit([(KNAME, {"g1", "ssm", "g2", "fused"} | set(mode[2:].split("+")), stamps)], path)
    elif mode == "fused_dbg":
        emit([(KNAME, {"g1", "ssm", "g2", "fused", "dbgtime"}, stamps)], path)
    elif mode == "g1,ssm,nodump":
        emit([("ka_kernel", {"g1"}, False), ("kb_kernel", {"ssm"}, stamps)], path)
```

```python
import sys, math

KNAME = "gated_mix__ssm_conv_s4__swiglu_ffn__prompt_kernel"

WS_H    = 0x000000
WS_WD   = 0x600000
ROWS    = 4224
WS_UT   = 0x800000
WS_Y    = 0xB00000
WS_G    = 0xE00000
WS_FU   = 0xE10000
WS_FW   = 0xE15000
WS_FH   = 0xE11000
WS_FY   = 0xE12000
WS_NON  = 0xE13000
WS_FG   = 0xE14000
WS_TS   = 0xF00000
WS_DBG  = 0x1000000

STAGE   = 40960
ST_WG   = 16384
ST_WU   = 28672
LDS_S   = 3 * STAGE
TABROW  = 272
TABTILE = 16 * TABROW
TAB_SZ  = 2 * TABTILE
LDS_TAB = LDS_S
KR_SZ   = 4224
LDS_KR  = LDS_TAB + 3 * TAB_SZ
LDS_MISC = LDS_KR + 3 * KR_SZ
LDS_TOTAL = 163840
LDS_NONCE = LDS_MISC
LDS_CNT   = LDS_MISC + 8
UC_STRIDE = 4640
UC_SZ   = 4 * UC_STRIDE
LDS_UC  = 0
LDS_WDS_EARLY = 148992
LDS_RED = 57344
LDS_YT  = LDS_TAB
LDS_GT  = LDS_MISC + 64
LDS_HOK = LDS_MISC + 12
LDS_WOK = LDS_MISC + 16
LDS_UOK = LDS_MISC + 20
LDS_GOK = LDS_MISC + 24
LDS_UCOK = LDS_MISC + 28
LDS_SFREE = LDS_MISC + 32

class Asm:
    def __init__(self):
        self.l = []
    def __call__(self, s):
        for x in s.split("\n"):
            x = x.strip()
            if x: self.l.append("    " + x)
    def lab(self, s):
        self.l.append(s + ":")
    def ext(self, lst):
        for x in lst: self(x)
    def text(self):
        return "\n".join(self.l) + "\n"

def interleave(main, fill, start=0, span=None):
    out = []
    m = len(fill)
    n = len(main) if span is None else min(len(main), start + span)
    j = 0
    for i, x in enumerate(main):
        out.append(x)
        if i >= start:
            tgt = (m * (i - start + 1) + (n - start) - 1) // (n - start) if n > start else m
            while j < min(tgt, m):
                f = fill[j]
                if isinstance(f, tuple): out.extend(f)
                else: out.append(f)
                j += 1
    while j < m:
        f = fill[j]
        if isinstance(f, tuple): out.extend(f)
        else: out.append(f)
        j += 1
    return out

def flat(L):
    o = []
    for x in L:
        if isinstance(x, tuple): o.extend(x)
        else: o.append(x)
    return o

def vr(a, n=1):
    return "v%d" % a if n == 1 else "v[%d:%d]" % (a, a + n - 1)
def sr(a, n=1):
    return "s%d" % a if n == 1 else "s[%d:%d]" % (a, a + n - 1)

S_W, S_WAVE, S_M, S_N, S_M2, S_N2 = 2, 3, 4, 5, 6, 7
SRD_X, SRD_WG, SRD_WU, SRD_WS, SRD_OUT, SRD_WD = 8, 12, 16, 20, 24, 28
P_U, P_ARE, P_AIM, P_BRE, P_BIM, P_CRE, P_CIM, P_LDT = 32, 34, 36, 38, 40, 42, 44, 46
P_DSK, P_BX, P_WG, P_WU, P_WD, P_GW, P_OUT, P_DBG, P_WS = 48, 50, 52, 54, 56, 58, 60, 62, 64
S_TS = 80

class Gen:
    def __init__(self, name, phases, stamps=False):
        self.name = name
        self.ph = phases
        self.a = Asm()
        self.stamps = stamps
        self.nlab = 0
    def newlab(self, p):
        self.nlab += 1
        return "L_%s_%s_%d" % (self.name[:6], p, self.nlab)

    def capture(self, fn):
        old = self.a
        self.a = Asm()
        fn()
        lst = [x.strip() for x in self.a.l]
        self.a = old
        return lst

    def jitter(self):
        if "jitter" not in self.ph: return
        a = self.a
        l = self.newlab("jt"); d = self.newlab("jd")
        a("s_memtime s[90:91]")
        a("s_waitcnt lgkmcnt(0)")
        a("s_mul_i32 s90, s90, 0x9e3779b1")
        a("s_lshr_b32 s90, s90, 25")
        a("s_cmp_ge_u32 s90, 64")
        a("s_cbranch_scc1 %s" % d)
        a.lab(l)
        a("s_cmp_eq_u32 s90, 0")
        a("s_cbranch_scc1 %s" % d)
        a("s_sleep 2")
        a("s_sub_u32 s90, s90, 1")
        a("s_branch %s" % l)
        a.lab(d)

    def clk(self, i):
        if "clk" in self.ph and self.stamps:
            self.a("s_memrealtime s[%d:%d]" % (S_TS + 2 * i, S_TS + 2 * i + 1))
            self.a("s_memtime s[%d:%d]" % (S_TS + 2 * i + 2, S_TS + 2 * i + 3))
            self.a("s_waitcnt lgkmcnt(0)")

    def stamp(self, i, force=False):
        if "clk" in self.ph and i != 0: return
        if ("kstamps" in self.ph or "k2stamps" in self.ph or "ststamps" in self.ph or "gapstamps" in self.ph) and not force and i != 0: return
        if self.stamps:
            self.a("%s s[%d:%d]" % ("s_memrealtime" if "rt" in self.ph else "s_memtime", S_TS + 2 * i, S_TS + 2 * i + 1))
            self.a("s_waitcnt lgkmcnt(0)")
    def stamp_flush(self):
        if not self.stamps: return
        a = self.a
        a("s_lshl_b32 s66, s2, 3")
        a("s_add_u32 s66, s66, s3")
        a("s_lshl_b32 s66, s66, 7")
        a("s_add_u32 s66, s66, 0x%x" % WS_TS)
        a("v_mov_b32 v250, 0")
        for i in range(10):
            a("v_mov_b32 v252, s%d" % (S_TS + 2 * i))
            a("v_mov_b32 v253, s%d" % (S_TS + 2 * i + 1))
            a("buffer_store_dwordx2 v[252:253], v250, s[20:23], s66 offen offset:%d" % (8 * i))
            a("s_nop 1")
        a("s_waitcnt vmcnt(0)")

    def prologue(self):
        a = self.a
        a("s_cmp_ge_u32 s2, 256")
        a("s_cbranch_scc1 %s_end" % self.name)
        a("s_load_dwordx16 s[32:47], s[0:1], 0")
        a("s_load_dwordx16 s[48:63], s[0:1], 64")
        a("s_load_dwordx2 s[64:65], s[0:1], 128")
        if "warmc0" in self.ph: self.warm_code(early=True)
        a("v_lshrrev_b32 v1, 6, v0")
        a("v_and_b32 v0, 63, v0")
        a("v_readfirstlane_b32 s3, v1")
        a("s_and_b32 s66, s2, 7")
        a("s_lshr_b32 s67, s2, 3")
        a("s_and_b32 s68, s67, 7")
        a("s_lshr_b32 s69, s67, 3")
        a("s_and_b32 s70, s66, 1")
        a("s_lshl_b32 s70, s70, 3")
        a("s_or_b32 s4, s70, s68")
        a("s_lshr_b32 s70, s66, 1")
        a("s_lshl_b32 s70, s70, 2")
        a("s_or_b32 s5, s70, s69")
        a("s_and_b32 s70, s66, 3")
        a("s_lshl_b32 s70, s70, 3")
        a("s_or_b32 s6, s70, s68")
        a("s_lshr_b32 s70, s66, 2")
        a("s_lshl_b32 s70, s70, 2")
        a("s_or_b32 s7, s70, s69")
        if "sametile" in self.ph:
            a("s_mov_b32 s4, 0"); a("s_mov_b32 s5, 0")
        if "samem" in self.ph:
            a("s_mov_b32 s4, 0")
        if "samen" in self.ph:
            a("s_mov_b32 s5, 0")
        if self.stamps:
            for i in range(10):
                a("s_mov_b64 s[%d:%d], 0" % (S_TS + 2 * i, S_TS + 2 * i + 1))
        a("s_waitcnt lgkmcnt(0)")
        def srd(base, ptr, size):
            a("s_mov_b32 s%d, s%d" % (base, ptr))
            a("s_and_b32 s%d, s%d, 0xffff" % (base + 1, ptr + 1))
            a("s_mov_b32 s%d, 0x%x" % (base + 2, size))
            a("s_mov_b32 s%d, 0x20000" % (base + 3))
        srd(SRD_X, P_U, 2048 * 640 * 2)
        srd(SRD_WG, P_WG, 640 * 1536 * 2)
        srd(SRD_WU, P_WU, 640 * 1536 * 2)
        srd(SRD_WS, P_WS, 0x10000000)
        srd(SRD_OUT, P_OUT, 2048 * 640 * 2)
        srd(SRD_WD, P_WD, 640 * 1536 * 2)
        self.stamp(0)
        if "dbgtime" in self.ph:
            a("s_memrealtime s[96:97]")
            a("s_memtime s[98:99]")
            a("s_mov_b64 s[100:101], s[62:63]")
            a("s_waitcnt lgkmcnt(0)")

    def dbgtime_end(self):
        a = self.a
        if "dbgtime" not in self.ph: return
        l = self.newlab("dbt")
        a("s_cmp_lg_u32 s2, 0"); a("s_cbranch_scc1 %s" % l)
        a("s_cmp_lg_u32 s3, 0"); a("s_cbranch_scc1 %s" % l)
        a("s_waitcnt vmcnt(0)")
        a("s_memrealtime s[92:93]")
        a("s_memtime s[94:95]")
        a("s_waitcnt lgkmcnt(0)")
        a("s_sub_u32 s92, s92, s96")
        a("s_sub_u32 s94, s94, s98")
        a("v_mov_b32 v250, 0")
        a("v_mov_b32 v252, s92")
        a("v_mov_b32 v253, s94")
        a("v_mov_b32 v254, s96")
        a("v_mov_b32 v255, 0x1234")
        a("global_store_dwordx4 v250, v[252:255], s[100:101]")
        a("s_waitcnt vmcnt(0)")
        a.lab(l)

    def rot_r(self, dst, tmp):
        a = self.a
        if "norot" in self.ph:
            a("s_mov_b32 %s, 0" % dst)
            return
        a("s_lshr_b32 %s, s5, 1" % dst)
        a("s_cmp_ge_u32 %s, 5" % dst)
        a("s_cselect_b32 %s, 1, 0" % tmp)
        a("s_cmp_ge_u32 %s, 1" % dst)
        a("s_addc_u32 %s, %s, %s" % (dst, dst, tmp))

    def g_gemm1(self):
        a = self.a
        ACC = 0; FP = 96; FQ = 136
        VXB = 176
        VWA = 182
        VL16 = 196
        T = 200
        accg = lambda ft, tt: ACC + (ft * 4 + tt) * 4
        accu = lambda ft, tt: ACC + 48 + (ft * 4 + tt) * 4
        LANE = 197
        a("v_mov_b32 v%d, v0" % LANE)
        a("s_and_b32 s67, s3, 1")
        a("s_lshr_b32 s68, s3, 1")
        VOX = 191
        a("v_lshrrev_b32 v%d, 3, v%d" % (T, LANE))
        a("s_lshl_b32 s69, s4, 7")
        a("s_lshl_b32 s70, s3, 5")
        a("s_add_u32 s69, s69, s70")
        a("v_add_u32 v%d, s69, v%d" % (T, T))
        a("s_movk_i32 s70, 1280")
        a("v_mul_lo_u32 v%d, v%d, s70" % (T, T))
        a("v_and_b32 v%d, 7, v%d" % (T + 1, LANE))
        a("v_lshrrev_b32 v%d, 4, v%d" % (T + 2, LANE))
        a("v_xor_b32 v%d, v%d, v%d" % (T + 3, T + 1, T + 2))
        a("v_xor_b32 v%d, 4, v%d" % (T + 4, T + 3))
        a("v_lshl_add_u32 v%d, v%d, 4, v%d" % (VOX, T + 3, T))
        a("v_lshl_add_u32 v%d, v%d, 4, v%d" % (VOX + 1, T + 4, T))
        a("s_lshl_b32 s75, s3, 12")
        VOW = 193
        a("s_mul_i32 s76, s3, 3072")
        a("s_add_u32 s77, s76, %d" % ST_WU)
        a("s_add_u32 s76, s76, %d" % ST_WG)
        self.rot_r("s74", "s72")
        def xdma(st):
            base = (st % 3) * STAGE
            L = []
            for i in range(4):
                if i == 0:
                    L.append(("s_lshl_b32 s72, s74, 7", "s_mul_i32 s73, s74, 196608", "s_add_u32 s74, s74, 1",
                              "s_add_u32 m0, s75, %d" % base, "s_cmp_eq_u32 s74, 10", "s_cselect_b32 s74, 0, s74",
                              "buffer_load_dwordx4 v%d, s[8:11], s72 offen lds" % VOX))
                else:
                    L.append(("s_add_u32 s70, s72, %d" % (9216 * i),
                              "buffer_load_dwordx4 v%d, s[8:11], s70 offen offset:%d lds" % (VOX + (i & 1), 1024 * i)))
            for mat, sm, srd in (() if "s3w" in self.ph else ((0, 76, "s[12:15]"), (1, 77, "s[16:19]"))):
                for i in range(3):
                    ld = "buffer_load_dwordx4 v%d, %s, s73 offen offset:%d lds" % (VOW + i, srd, 1024 * i)
                    if mat == 1 and "nowu" in self.ph: ld = "s_nop 0"
                    if i == 2 and "now2" in self.ph: ld = "s_nop 0"
                    if i == 0: L.append(("s_add_u32 m0, s%d, %d" % (sm, base), "s_nop 0", ld))
                    else: L.append(ld)
            return L
        if "ststamps" in self.ph: self.stamp(1, force=True)
        def wcalc():
            a("s_lshl_b32 s69, s3, 4")
            a("s_mul_i32 s69, s69, 3072")
            a("s_mul_i32 s70, s5, 192")
            a("s_add_u32 s69, s69, s70")
            a("s_mov_b32 s70, 43691")
            a("s_movk_i32 s71, 3072")
            for i in range(3):
                a("v_add_u32 v%d, %d, v%d" % (T, 64 * i, LANE))
                a("v_mul_lo_u32 v%d, v%d, s70" % (T + 1, T))
                a("v_lshrrev_b32 v%d, 19, v%d" % (T + 1, T + 1))
                a("v_mul_u32_u24 v%d, 12, v%d" % (T + 2, T + 1))
                a("v_sub_u32 v%d, v%d, v%d" % (T + 2, T, T + 2))
                a("v_lshrrev_b32 v%d, 2, v%d" % (T + 3, T + 1))
                a("v_and_b32 v%d, 2, v%d" % (T + 3, T + 3))
                a("v_xor_b32 v%d, v%d, v%d" % (T + 2, T + 2, T + 3))
                a("v_mul_lo_u32 v%d, v%d, s71" % (T + 1, T + 1))
                a("v_lshl_add_u32 v%d, v%d, 4, v%d" % (T + 1, T + 2, T + 1))
                a("v_add_u32 v%d, s69, v%d" % (T + 1, T + 1))
                a("v_subrev_u32 v%d, %d, v%d" % (VOW + i, 1024 * i, T + 1))

        d0 = xdma(0)
        a.ext(flat(d0[:4]))
        wcalc()
        a.ext(flat(d0[4:]))
        if "late1" not in self.ph: a.ext(flat(xdma(1)))
        if "ststamps" in self.ph: self.stamp(2, force=True)
        if "nobpre" not in self.ph: a("s_barrier")
        a("v_and_b32 v%d, 15, v%d" % (T, LANE))
        a("v_lshrrev_b32 v%d, 4, v%d" % (T + 1, LANE))
        a("s_lshl_b32 s69, s67, 6")
        a("v_add_u32 v%d, s69, v%d" % (T + 2, T))
        a("v_lshlrev_b32 v%d, 7, v%d" % (T + 2, T + 2))
        a("v_lshrrev_b32 v%d, 1, v%d" % (T + 3, T))
        a("v_and_b32 v%d, 7, v%d" % (T + 3, T + 3))
        a("v_xor_b32 v%d, v%d, v%d" % (T + 3, T + 3, T + 1))
        a("v_xor_b32 v%d, 4, v%d" % (T + 4, T + 3))
        a("v_lshl_add_u32 v%d, v%d, 4, v%d" % (VXB, T + 3, T + 2))
        a("v_lshl_add_u32 v%d, v%d, 4, v%d" % (VXB + 1, T + 4, T + 2))
        for st in (1, 2):
            for s in range(2):
                a("v_add_u32 v%d, %d, v%d" % (VXB + 2 * st + s, st * STAGE, VXB + s))
        a("v_lshrrev_b32 v%d, 2, v%d" % (T + 2, T))
        a("v_lshl_add_u32 v%d, v%d, 3, v%d" % (T + 2, T + 1, T + 2))
        a("v_mul_u32_u24 v%d, 192, v%d" % (T + 2, T + 2))
        a("v_and_b32 v%d, 3, v%d" % (T + 3, LANE))
        a("v_lshl_add_u32 v%d, v%d, 3, v%d" % (T + 2, T + 3, T + 2))
        a("v_add_u32 v%d, %d, v%d" % (T + 2, ST_WG, T + 2))
        a("v_and_b32 v%d, 1, v%d" % (T + 3, T + 1))
        a("s_lshl_b32 s69, s68, 2")
        a("s_add_u32 s78, s69, 1")
        a("s_add_u32 s79, s68, 2")
        for ft, sreg in ((0, 69), (1, 78), (2, 79)):
            a("v_xor_b32 v%d, s%d, v%d" % (T + 4, sreg, T + 3))
            a("v_lshl_add_u32 v%d, v%d, 5, v%d" % (VWA + ft, T + 4, T + 2))
        for st in (1, 2):
            for ft in range(3):
                a("v_add_u32 v%d, %d, v%d" % (VWA + 3 * st + ft, st * STAGE, VWA + ft))
        a("v_lshlrev_b32 v%d, 4, v%d" % (VL16, LANE))
        a("s_lshl_b32 s69, s4, 1")
        a("s_add_u32 s69, s69, s67")
        a("s_mul_i32 s69, s69, 48")
        a("s_mul_i32 s78, s5, 3")
        a("s_add_u32 s69, s69, s78")
        a("s_lshl_b32 s78, s68, 1")
        a("s_add_u32 s78, s78, s69")
        a("s_lshl_b32 s78, s78, 12")
        a("s_add_u32 s79, s69, 1")
        a("s_lshl_b32 s79, s79, 12")
        a("s_lshl_b32 s69, s68, 9")
        a("s_add_u32 s79, s79, s69")
        a("v_lshlrev_b32 v%d, 3, v%d" % (VL16 + 2, LANE))
        if WS_H:
            a("s_add_u32 s78, s78, %d" % WS_H); a("s_add_u32 s79, s79, %d" % WS_H)

        def reads(kk, s, F):
            st = kk % 3
            xs = ["ds_read_b128 v[%d:%d], v%d offset:%d" % (F + 4 * tt, F + 4 * tt + 3, VXB + 2 * st + s, 2048 * tt) for tt in range(4)]
            ws = []
            for mat in range(2):
                for ft in range(3):
                    r = F + 16 + (mat * 3 + ft) * 4
                    for h in range(2):
                        ws.append("ds_read_b64_tr_b16 v[%d:%d], v%d offset:%d" % (r + 2 * h, r + 2 * h + 1, VWA + 3 * st + ft, 12288 * mat + 6144 * s + 768 * h))
            order = [xs[0], ws[0], ws[1], xs[1], ws[6], ws[7], xs[2], xs[3]] + ws[2:6] + ws[8:]
            return order
        def mfmas(F, first):
            L = []
            for ft in range(3):
                for mat in range(2):
                    for tt in range(4):
                        acc = accg(ft, tt) if mat == 0 else accu(ft, tt)
                        A = F + 16 + (mat * 3 + ft) * 4
                        B = F + 4 * tt
                        c = "0" if first else "v[%d:%d]" % (acc, acc + 3)
                        L.append("v_mfma_f32_16x16x32_bf16 v[%d:%d], v[%d:%d], v[%d:%d], %s" % (acc, acc + 3, A, A + 3, B, B + 3, c))
            return L
        def spread(mm, d, first, step):
            out = []; cnt = 0; di = 0
            for x in mm:
                out.append(x)
                if x.startswith("v_mfma"):
                    cnt += 1
                    if cnt >= first and (cnt - first) % step == 0 and di < len(d):
                        f = d[di]; di += 1
                        out.extend(f if isinstance(f, tuple) else (f,))
            assert di == len(d), (di, len(d))
            return out
        self.stamp(5)
        ND = 4 if "s3w" in self.ph else (7 if "nowu" in self.ph else (8 if "now2" in self.ph else 10))
        a("s_waitcnt vmcnt(%d)" % (0 if "late1" in self.ph else ND))
        if "ststamps" in self.ph: self.stamp(3, force=True)
        a("s_barrier")
        if "ststamps" in self.ph: self.stamp(4, force=True)
        if "late1" in self.ph: a.ext(flat(xdma(1)))
        self.stamp(1)
        self.clk(1)
        a.ext(reads(0, 0, FP))
        a("s_waitcnt lgkmcnt(0)")
        pend = xdma(2)
        for kk in range(10):
            mm = interleave(mfmas(FP, kk == 0), reads(kk, 1, FQ), span=16)
            if pend: mm = spread(mm, pend, 2, (10 if len(pend) <= 2 else 5) if len(pend) <= 5 else 2)
            a.ext(mm)
            if kk <= 7: a("s_waitcnt vmcnt(%d) lgkmcnt(0)" % ND)
            elif kk == 8: a("s_waitcnt vmcnt(0) lgkmcnt(0)")
            else: a("s_waitcnt lgkmcnt(0)")
            if kk == 9 and self.fused(): self.lds_inc(LDS_SFREE, T)
            else: a("s_barrier")
            if "kstamps" in self.ph and kk < 9: self.stamp(kk + 1, force=True)
            if "ststamps" in self.ph and kk < 5: self.stamp(kk + 5, force=True)
            fill = reads(kk + 1, 0, FP) if kk + 1 < 10 else []
            mm = interleave(mfmas(FQ, False), fill, span=16)
            d = xdma(kk + 3) if kk + 3 < 10 else []
            if "dmaB" in self.ph:
                pend = []
                if d: mm = spread(mm, d, 2, 2)
            elif "dma73" in self.ph:
                pend = d[7:]
                if d: mm = spread(mm, d[:7], 2, 3)
            elif "s3w" in self.ph:
                pend = d[2:]
                if d: mm = spread(mm, d[:2], 4, 10)
            else:
                pend = d[5:]
                if d: mm = spread(mm, d[:5], 2, 5)
            a.ext(mm)
            if kk + 1 < 10:
                a("s_waitcnt lgkmcnt(0)")
        self.stamp(2)
        self.clk(3)
        self.jitter()
        epb = "epb" in self.ph and "g2" in self.ph
        if epb: CN, ONE, OUTB, TMPB, TMPS = 200, 202, 116, 152, 8
        else: CN, ONE, OUTB, TMPB, TMPS = FP, FP + 2, FP + 8, FQ, 16
        E = []
        E.append("v_mov_b32 v%d, 0xbfb8aa3b" % CN)
        E.append("v_mov_b32 v%d, 0xbfb8aa3b" % (CN + 1))
        E.append("v_mov_b32 v%d, 1.0" % ONE)
        E.append("v_mov_b32 v%d, 1.0" % (ONE + 1))
        grp = 0
        def silu(gregs, uregs, tmp, out):
            n = len(gregs)
            L = []
            for i in range(n): L.append("v_pk_mul_f32 v[%d:%d], v[%d:%d], v[%d:%d]" % (tmp + 2 * i, tmp + 2 * i + 1, gregs[i], gregs[i] + 1, CN, CN + 1))
            for i in range(2 * n): L.append("v_exp_f32 v%d, v%d" % (tmp + i, tmp + i))
            for i in range(n): L.append("v_pk_mul_f32 v[%d:%d], v[%d:%d], v[%d:%d]" % (gregs[i], gregs[i] + 1, gregs[i], gregs[i] + 1, uregs[i], uregs[i] + 1))
            for i in range(n): L.append("v_pk_add_f32 v[%d:%d], v[%d:%d], v[%d:%d]" % (tmp + 2 * i, tmp + 2 * i + 1, tmp + 2 * i, tmp + 2 * i + 1, ONE, ONE + 1))
            for i in range(2 * n): L.append("v_rcp_f32 v%d, v%d" % (tmp + i, tmp + i))
            if n < 2: L.append("s_nop 0")
            for i in range(n): L.append("v_pk_mul_f32 v[%d:%d], v[%d:%d], v[%d:%d]" % (gregs[i], gregs[i] + 1, gregs[i], gregs[i] + 1, tmp + 2 * i, tmp + 2 * i + 1))
            for i in range(n): L.append("v_cvt_pk_bf16_f32 v%d, v%d, v%d" % (out + i, gregs[i], gregs[i] + 1))
            return L
        for tt in range(4):
            tmp = TMPB + (grp % 2) * TMPS; out = OUTB + (grp % 4) * 4; grp += 1
            g = [accg(0, tt), accg(0, tt) + 2, accg(1, tt), accg(1, tt) + 2]
            u = [accu(0, tt), accu(0, tt) + 2, accu(1, tt), accu(1, tt) + 2]
            E += silu(g, u, tmp, out)
            E.append("buffer_store_dwordx4 v[%d:%d], v%d, s[20:23], s78 offen offset:%d sc1" % (out, out + 3, VL16, 1024 * tt))
            tmp = TMPB + (grp % 2) * TMPS; out = OUTB + (grp % 4) * 4; grp += 1
            g = [accg(2, tt), accg(2, tt) + 2]
            u = [accu(2, tt), accu(2, tt) + 2]
            E += silu(g, u, tmp, out)
            E.append("buffer_store_dwordx2 v[%d:%d], v%d, s[20:23], s79 offen offset:%d sc1" % (out, out + 1, VL16 + 2, 1024 * tt))
        if epb:
            self.g2_setup()
            if self.fused(): self.lds_spin(LDS_WOK, 232, treg="s80x")
            regl, dmal = self.g2_burst_atoms()
            half = len(E) // 2
            a.ext(interleave(E[:half], regl, start=4))
            if self.fused(): self.lds_spin(LDS_SFREE, 232, 4, treg="s80x")
            a.ext(interleave(E[half:], dmal))
        else:
            a.ext(E)
        self.stamp(3)
        if "g2" not in self.ph:
            a("s_waitcnt vmcnt(0)")
            self.stamp(4)

    def g_signal_h(self, nyounger):
        a = self.a
        self.jitter()
        T = 232
        if nyounger is not None: a("s_waitcnt vmcnt(%d)" % nyounger)
        if self.fused():
            l = self.newlab("fh")
            a("v_mov_b32 v%d, %d" % (T, LDS_CNT))
            a("v_mov_b32 v%d, 1" % (T + 1))
            a("s_mov_b64 exec, 1")
            a("ds_add_rtn_u32 v%d, v%d, v%d" % (T + 2, T, T + 1))
            a("s_waitcnt lgkmcnt(0)")
            a("s_mov_b64 exec, -1")
            a("v_readfirstlane_b32 s69, v%d" % (T + 2))
            a("s_nop 1")
            a("s_cmp_lg_u32 s69, 3")
            a("s_cbranch_scc1 %s" % l)
            a("s_lshl_b32 s69, s4, 5")
            a("s_add_u32 s69, s69, s5")
            a("s_lshl_b32 s69, s69, 2")
            a("s_add_u32 s69, s69, %d" % WS_FH)
            self.flag_set("s69", T)
            a.lab(l)
        self.stamp(4)
        if "gapstamps" in self.ph: self.stamp(1, force=True)

    def lds_inc(self, addr, vt):
        a = self.a
        a("v_mov_b32 v%d, %d" % (vt, addr))
        a("v_mov_b32 v%d, 1" % (vt + 1))
        a("s_mov_b64 exec, 1")
        a("ds_add_u32 v%d, v%d" % (vt, vt + 1))
        a("s_mov_b64 exec, -1")

    def lds_spin(self, addr, vt, val=1, treg=None):
        a = self.a
        st = "s78" if treg is None else "s68"
        lp = self.newlab("ls"); ld = self.newlab("ld")
        a("v_mov_b32 v%d, %d" % (vt, addr))
        a("s_mov_b32 s69, 0")
        a.lab(lp)
        a("ds_read_b32 v%d, v%d" % (vt + 1, vt))
        a("s_waitcnt lgkmcnt(0)")
        a("v_readfirstlane_b32 %s, v%d" % (st, vt + 1))
        a("s_nop 1")
        a("s_cmp_eq_u32 %s, %d" % (st, val))
        a("s_cbranch_scc1 %s" % ld)
        a("s_add_u32 s69, s69, 1")
        a("s_cmp_lt_u32 s69, 0x400000")
        a("s_cbranch_scc0 %s" % ld)
        a("s_sleep 1")
        a("s_branch %s" % lp)
        a.lab(ld)

    def s_kgen_phase1(self):
        a = self.a
        NCH = 8
        chunks = [[] for _ in range(NCH)]
        if "ssm" in self.ph:
            a("s_lshl_b32 s50, s66, 8")
            a("s_add_u32 s50, s50, s2")
            a("s_min_u32 s50, s50, 639")
            self.kgen_bases()
            if "kghead" in self.ph:
                kg = self.capture(lambda: self.kgen("head"))
                if "bigI0" in self.ph:
                    first = min(len(kg), 140 if "I0s" in self.ph else 230)
                    rest = kg[first:]
                    per = (len(rest) + NCH - 1) // NCH
                    chunk0 = kg[:first]
                    chunks = [rest[i * per:(i + 1) * per] for i in range(NCH)]
                else:
                    per = (len(kg) + NCH - 1) // NCH
                    chunks = [kg[i * per:(i + 1) * per] for i in range(NCH)]
        self.stamp(5)
        if "prioS" in self.ph: a("s_setprio 2")
        if "nobpre" not in self.ph: a("s_barrier")
        pw = "pwarm" in self.ph
        if "ssm" in self.ph and pw: self.ssm_param_warm()
        if "ssm" in self.ph and "kghead" in self.ph and not pw: self.ssm_param_loads(slots=((0, 1) if "kg2" in self.ph else (0,)))
        if "ssm" in self.ph and "pw12" in self.ph:
            a("s_mul_i32 s67, s50, 384")
            for p in (P_ARE, P_AIM, P_BRE, P_BIM, P_CRE, P_CIM):
                a("s_add_u32 s68, s%d, s67" % p)
                a("s_addc_u32 s69, s%d, 0" % (p + 1))
                a("s_load_dword s70, s[68:69], 128")
                a("s_load_dword s70, s[68:69], 256")
        a("s_barrier")
        if "ssm" in self.ph and pw:
            a("s_waitcnt lgkmcnt(0)")
            self.ssm_param_loads()
        self.stamp(1)
        if "bigI0" in self.ph and "kghead" in self.ph:
            a("s_waitcnt vmcnt(0)")
            a.ext(chunk0)
        for kk in range(10):
            if not (kk == 9 and self.fused()): a("s_barrier")
            if kk == 1 and "kghead" in self.ph and "bigI0" not in self.ph: a("s_waitcnt vmcnt(0)")
            if kk == 7 and "ssm" in self.ph and not pw:
                if "kghead" in self.ph: self.ssm_param_loads(slots=((2,) if "kg2" in self.ph else (1, 2)), scalars=False)
                else: self.ssm_param_loads()
            if "bigI0" in self.ph:
                if kk < NCH: a.ext(chunks[kk])
            elif 1 <= kk <= NCH: a.ext(chunks[kk - 1])
        self.stamp(2)

    def side_setup(self):
        a = self.a
        a("s_mov_b32 s67, 52429")
        a("s_movk_i32 s68, 1280")
        for i in range(5):
            a("v_add_u32 v1, %d, v0" % (64 * i))
            a("v_mul_lo_u32 v2, v1, s67")
            a("v_lshrrev_b32 v2, 19, v2")
            a("v_mul_u32_u24 v3, 10, v2")
            a("v_sub_u32 v3, v1, v3")
            a("v_mul_lo_u32 v2, v2, s68")
            a("v_lshl_add_u32 v%d, v3, 4, v2" % (230 + i))
        a("v_lshrrev_b32 v1, 4, v0")
        a("v_and_b32 v2, 15, v0")
        a("v_lshrrev_b32 v3, 2, v2")
        a("v_lshl_add_u32 v4, v1, 2, v3")
        a("v_mul_u32_u24 v4, 160, v4")
        a("v_add_u32 v4, %d, v4" % (STAGE if "wdlate" in self.ph else LDS_WDS_EARLY))
        a("v_and_b32 v5, 3, v0")
        a("v_lshl_add_u32 v235, v5, 4, v4")
        a("v_lshl_add_u32 v236, v5, 3, v4")
        a("v_lshlrev_b32 v237, 4, v0")
        a("v_lshlrev_b32 v241, 2, v0")
        a("v_lshl_add_u32 v4, v1, 3, v3")
        a("v_lshlrev_b32 v4, 7, v4")
        a("v_bfe_u32 v5, v0, 1, 1")
        a("v_lshrrev_b32 v6, 1, v3")
        a("v_xor_b32 v5, v5, v6")
        a("v_lshl_add_u32 v4, v5, 4, v4")
        a("v_and_b32 v5, 1, v0")
        a("v_lshl_add_u32 v4, v5, 3, v4")
        a("v_and_b32 v5, 1, v1")
        a("v_lshl_add_u32 v238, v5, 6, v4")
        a("v_xor_b32 v5, 1, v5")
        a("v_lshl_add_u32 v239, v5, 6, v4")
        a("v_mul_u32_u24 v240, %d, v2" % ROWS)
        a("v_lshl_add_u32 v240, v1, 4, v240")
        a("s_add_u32 s51, s2, 128")
        a("s_cmp_ge_u32 s2, 128")
        a("s_cselect_b32 s51, s51, 999")
        a("s_lshr_b32 s52, s5, 1")
        a("s_add_u32 s53, s52, 8")
        a("s_cmp_lt_u32 s5, 4")
        a("s_cselect_b32 s53, s53, 99")
    def wd_load(self, ureg, scr):
        a = self.a
        if "nowd" in self.ph: return
        a("s_lshr_b32 s67, %s, 3" % ureg)
        a("s_and_b32 s68, %s, 7" % ureg)
        a("s_mul_i32 s69, s67, %d" % (32 * 1280))
        a("s_mul_i32 s67, s68, 160")
        a("s_add_u32 s69, s69, s67")
        for i in range(5):
            a("s_mov_b32 m0, %d" % ((STAGE if "wdlate" in self.ph else LDS_WDS_EARLY) + scr + 1024 * i))
            a("s_nop 0")
            a("buffer_load_dwordx4 v%d, s[28:31], s69 offen lds" % (230 + i))
    def wd_store(self, ureg, scr, R=160):
        a = self.a
        if "nowd" in self.ph: return
        for dt in range(5):
            for h in range(2):
                if dt < 4: ad, off = 235, 64 * (dt >> 1) + 8 * (dt & 1) + 2560 * h
                else: ad, off = 236, 128 + 2560 * h
                a("ds_read_b64_tr_b16 v[%d:%d], v%d offset:%d" % (R + 4 * dt + 2 * h, R + 1 + 4 * dt + 2 * h, ad, off + scr))
        a("s_lshr_b32 s67, %s, 3" % ureg)
        a("s_and_b32 s68, %s, 7" % ureg)
        a("s_mul_i32 s68, s68, 48")
        a("s_add_u32 s67, s67, s68")
        a("s_mul_i32 s67, s67, 5120")
        a("s_add_u32 s67, s67, %d" % WS_WD)
        a("s_add_u32 s68, s67, 4096")
        a("s_waitcnt lgkmcnt(0)")
        for dt in range(5):
            if dt < 4: a("buffer_store_dwordx4 v[%d:%d], v237, s[20:23], s67 offen offset:%d sc1" % (R + 4 * dt, R + 3 + 4 * dt, 1024 * dt))
            else: a("buffer_store_dwordx4 v[%d:%d], v237, s[20:23], s68 offen sc1" % (R + 4 * dt, R + 3 + 4 * dt))
    def gate_load(self):
        a = self.a
        a("v_and_b32 v1, 15, v0")
        a("v_lshlrev_b32 v1, 4, v1")
        for j in range(5):
            a("global_load_dwordx4 v[%d:%d], v1, s[%d:%d] offset:%d" % (8 + 4 * j, 11 + 4 * j, P_GW, P_GW + 1, 256 * j))
        a("v_lshrrev_b32 v2, 4, v0")
        a("s_movk_i32 s67, 1280")
        a("v_mul_lo_u32 v2, v2, s67")
        a("v_add_u32 v2, v2, v1")
        a("s_lshl_b32 s67, s2, 3")
        a("s_mul_i32 s67, s67, 1280")
        for half in range(2):
            for j in range(5):
                r = 28 + 20 * half + 4 * j
                a("buffer_load_dwordx4 v[%d:%d], v2, s[8:11], s67 offen offset:%d" % (r, r + 3, 256 * j))
            if half == 0: a("s_add_u32 s67, s67, %d" % (4 * 1280))
    def gate_compute(self):
        a = self.a
        R = 68
        for i in range(4): a("v_mov_b32 v%d, 0" % (R + i))
        for j in range(5):
            for e in range(4):
                for half in range(2):
                    acc = R + half + 2 * (e & 1)
                    a("v_dot2_f32_bf16 v%d, v%d, v%d, v%d" % (acc, 28 + 20 * half + 4 * j + e, 8 + 4 * j + e, acc))
        a("s_nop 2")
        a("v_add_f32 v%d, v%d, v%d" % (R, R, R + 2))
        a("v_add_f32 v%d, v%d, v%d" % (R + 1, R + 1, R + 3))
        a("s_nop 0")
        for ctl in ("row_shr:1", "row_shr:2", "row_shr:4", "row_shr:8"):
            for i in range(2):
                a("v_add_f32_dpp v%d, v%d, v%d %s row_mask:0xf bank_mask:0xf bound_ctrl:1" % (R + i, R + i, R + i, ctl))
            a("s_nop 0")
        for i in range(2): a("v_mul_f32 v%d, 0xbfb8aa3b, v%d" % (R + i, R + i))
        for i in range(2): a("v_exp_f32 v%d, v%d" % (R + i, R + i))
        a("s_nop 0")
        for i in range(2): a("v_add_f32 v%d, 1.0, v%d" % (R + i, R + i))
        for i in range(2): a("v_rcp_f32 v%d, v%d" % (R + i, R + i))
        a("s_lshl_b32 s67, s2, 5")
        a("s_add_u32 s67, s67, %d" % WS_G)
        a("v_lshrrev_b32 v1, 4, v0")
        a("v_lshlrev_b32 v1, 2, v1")
        a("s_mov_b32 exec_lo, 0x80008000")
        a("s_mov_b32 exec_hi, 0x80008000")
        a("buffer_store_dword v%d, v1, s[20:23], s67 offen sc1" % R)
        a("buffer_store_dword v%d, v1, s[20:23], s67 offen offset:16 sc1" % (R + 1))
        a("s_mov_b64 exec, -1")
    def ut_read(self, chunk_reg, stage_base, H):
        a = self.a
        if "noutr" in self.ph: return
        a("s_and_b32 s67, %s, 1" % chunk_reg)
        a("s_cmp_eq_u32 s67, 0")
        a("s_cselect_b64 vcc, -1, 0")
        a("s_nop 0")
        a("v_cndmask_b32 v4, v239, v238, vcc")
        a("v_add_u32 v4, %d, v4" % stage_base)
        for aa in range(2):
            for it in range(4):
                for hh in range(2):
                    r = H + (aa * 4 + it) * 4 + 2 * hh
                    a("ds_read_b64_tr_b16 v[%d:%d], v4 offset:%d" % (r, r + 1, 4096 * it + 512 * hh + 32 * (aa ^ hh)))
        a("s_waitcnt lgkmcnt(0)")
    def utx_load(self, chunk_reg):
        a = self.a
        a("v_lshrrev_b32 v4, 2, v0")
        a("v_mul_u32_u24 v4, 1280, v4")
        a("v_and_b32 v5, 3, v0")
        a("v_lshl_add_u32 v4, v5, 4, v4")
        a("s_mul_i32 s67, s4, %d" % (128 * 1280))
        a("s_lshl_b32 s68, %s, 6" % chunk_reg)
        a("s_add_u32 s67, s67, s68")
        for i in range(8):
            a("s_mov_b32 m0, %d" % (LDS_WDS_EARLY + 1024 * i))
            a("s_nop 0")
            a("buffer_load_dwordx4 v4, s[8:11], s67 offen lds")
            if i < 7: a("s_add_u32 s67, s67, %d" % (16 * 1280))
    def utx_read(self, H):
        a = self.a
        a("v_lshrrev_b32 v4, 4, v0")
        a("v_and_b32 v5, 15, v0")
        a("v_lshrrev_b32 v5, 2, v5")
        a("v_lshl_add_u32 v4, v4, 3, v5")
        a("v_lshlrev_b32 v4, 6, v4")
        a("v_and_b32 v5, 3, v0")
        a("v_lshl_add_u32 v4, v5, 3, v4")
        a("v_add_u32 v4, %d, v4" % LDS_WDS_EARLY)
        for aa in range(2):
            for it in range(4):
                for hh in range(2):
                    r = H + (aa * 4 + it) * 4 + 2 * hh
                    a("ds_read_b64_tr_b16 v[%d:%d], v4 offset:%d" % (r, r + 1, 64 * (32 * it + 4 * hh) + 32 * aa))
        a("s_waitcnt lgkmcnt(0)")

    def ut_store(self, chunk_reg, H):
        a = self.a
        if "nout" in self.ph: return
        a("s_mul_i32 s67, %s, %d" % (chunk_reg, 32 * ROWS))
        a("s_lshl_b32 s68, s4, 8")
        a("s_add_u32 s67, s67, s68")
        a("s_add_u32 s67, s67, %d" % WS_UT)
        a("s_add_u32 s68, s67, %d" % (16 * ROWS))
        for aa in range(2):
            for it in range(4):
                r = H + (aa * 4 + it) * 4
                a("buffer_store_dwordx4 v[%d:%d], v240, s[20:23], s%d offen offset:%d sc1" % (r, r + 3, 67 + aa, 64 * it))

    def pretouch(self):
        a = self.a
        a("v_and_b32 v1, 7, v0")
        a("v_lshlrev_b32 v1, 21, v1")
        a("buffer_load_dword v63, v1, s[20:23], 0 offen")
        a("v_and_b32 v1, 1, v0")
        a("v_lshlrev_b32 v1, 21, v1")
        a("buffer_load_dword v63, v1, s[24:27], 0 offen")
    def warm_inputs(self):
        a = self.a
        if "norot" in self.ph:
            a("s_mov_b32 s68, 9363")
            a("v_mul_lo_u32 v1, v0, s68")
            a("v_lshrrev_b32 v1, 16, v1")
            a("v_mul_u32_u24 v2, 7, v1")
            a("v_sub_u32 v2, v0, v2")
            a("v_mul_u32_u24 v1, 1280, v1")
            a("v_lshl_add_u32 v1, v2, 7, v1")
            a("s_mul_i32 s67, s2, 10240")
            a("s_add_u32 s67, s67, 384")
            a("s_mov_b32 exec_hi, 0x00ffffff")
            a("buffer_load_dword v244, v1, s[8:11], s67 offen")
            a("s_mov_b32 exec_hi, 0x000003ff")
            a("v_lshlrev_b32 v1, 7, v0")
            a("s_mul_i32 s67, s2, %d" % (42 * 128))
            a("s_add_u32 s67, s67, %d" % (192 * 3072))
            a("buffer_load_dword v244, v1, s[12:15], s67 offen")
            a("buffer_load_dword v244, v1, s[16:19], s67 offen")
            a("s_mov_b64 exec, -1")
            return
        a("v_lshlrev_b32 v1, 7, v0")
        if "warmx" in self.ph:
            a("s_mul_i32 s67, s2, 10240")
            a("buffer_load_dword v244, v1, s[8:11], s67 offen")
            a("s_add_u32 s68, s67, 8192")
            a("s_mov_b32 exec_hi, 0")
            a("s_mov_b32 exec_lo, 0xffff")
            a("buffer_load_dword v244, v1, s[8:11], s68 offen")
            a("s_mov_b32 exec_lo, -1")
        a("s_mov_b32 exec_hi, 0x0fffffff")
        a("s_mul_i32 s67, s2, 7680")
        a("buffer_load_dword v244, v1, s[12:15], s67 offen")
        a("buffer_load_dword v244, v1, s[16:19], s67 offen")
        if "warm2" in self.ph:
            a("buffer_load_dword v244, v1, s[28:31], s67 offen")
        a("s_mov_b64 exec, -1")
        if "warm2" in self.ph or "warmp" in self.ph:
            a("v_and_b32 v1, 7, v0")
            a("v_lshlrev_b32 v1, 7, v1")
            a("s_mul_i32 s67, s2, 960")
            a("v_add_u32 v1, s67, v1")
            a("v_min_u32 v1, %d, v1" % (245760 - 4))
            a("v_lshrrev_b32 v2, 3, v0")
            a("v_mov_b32 v4, s%d" % P_ARE); a("v_mov_b32 v5, s%d" % (P_ARE + 1))
            for k, p in enumerate((P_AIM, P_BRE, P_BIM, P_CRE, P_CIM)):
                a("v_cmp_eq_u32 vcc, %d, v2" % (k + 1))
                a("v_mov_b32 v6, s%d" % p); a("v_mov_b32 v7, s%d" % (p + 1))
                a("v_cndmask_b32 v4, v4, v6, vcc")
                a("v_cndmask_b32 v5, v5, v7, vcc")
            a("v_add_co_u32 v4, vcc, v4, v1")
            a("s_nop 1")
            a("v_addc_co_u32 v5, vcc, 0, v5, vcc")
            a("global_load_dword v244, v[4:5], off")

    def warm_code(self, early=False):
        a = self.a
        n = self.name
        l = self.newlab("pc"); l2 = self.newlab("pc")
        a("s_getpc_b64 s[68:69]")
        a.lab(l)
        a("s_sub_u32 s68, s68, %s-%s" % (l, n))
        a("s_subb_u32 s69, s69, 0")
        a("s_mov_b32 s67, (%s_end-%s+4095)/4096" % (n, n))
        a("s_lshr_b32 s70, s2, 3")
        a("s_mul_i32 s70, s70, s67")
        a("v_add_u32 v1, s70, v0")
        a("v_lshlrev_b32 v1, 7, v1")
        a("v_min_u32 v1, %s_end-%s, v1" % (n, n))
        a("v_cmp_gt_u32 vcc, s67, v0")
        a("s_and_saveexec_b64 s[70:71], vcc")
        a("s_cbranch_execz %s" % l2)
        a("global_load_dword v244, v1, s[68:69]")
        a.lab(l2)
        a("s_mov_b64 exec, s[70:71]")

    def smem_warm(self, part):
        a = self.a
        if part == 0:
            a("s_mul_i32 s67, s2, 7680")
            a("s_add_u32 s70, s%d, s67" % P_WD)
            a("s_addc_u32 s71, s%d, 0" % (P_WD + 1))
        for r in range(15 * part, 15 * part + 15):
            a("s_load_dword s74, s[70:71], %d" % (r * 128))

    def s3w_setup(self):
        a = self.a
        T = 1; VO = 245
        a("s_mul_i32 s69, s5, 192")
        a("s_mov_b32 s78, 43691")
        a("s_movk_i32 s79, 3072")
        for i in range(3):
            a("v_add_u32 v%d, %d, v0" % (T, 64 * i))
            a("v_mul_lo_u32 v%d, v%d, s78" % (T + 1, T))
            a("v_lshrrev_b32 v%d, 19, v%d" % (T + 1, T + 1))
            a("v_mul_u32_u24 v%d, 12, v%d" % (T + 2, T + 1))
            a("v_sub_u32 v%d, v%d, v%d" % (T + 2, T, T + 2))
            a("v_lshrrev_b32 v%d, 2, v%d" % (T + 3, T + 1))
            a("v_and_b32 v%d, 2, v%d" % (T + 3, T + 3))
            a("v_xor_b32 v%d, v%d, v%d" % (T + 2, T + 2, T + 3))
            a("v_mul_lo_u32 v%d, v%d, s79" % (T + 1, T + 1))
            a("v_lshl_add_u32 v%d, v%d, 4, v%d" % (T + 1, T + 2, T + 1))
            a("v_add_u32 v%d, s69, v%d" % (VO + i, T + 1))
        self.rot_r("s54", "s67")
    def s3w_younger0(self):
        n = 24 + (1 if self.fused() else 0)
        if "wdlate" not in self.ph: n += 5
        return n
    def s3w_dma(self, st):
        a = self.a
        VO = 245
        base = (st % 3) * STAGE
        a("s_mul_i32 s55, s54, 196608")
        a("s_add_u32 s54, s54, 1")
        a("s_cmp_eq_u32 s54, 10")
        a("s_cselect_b32 s54, 0, s54")
        for g4 in range(4):
            if g4: a("s_add_u32 s55, s55, 49152")
            for mat, srd in ((0, "s[12:15]"), (1, "s[16:19]")):
                for i in range(3):
                    a("s_mov_b32 m0, %d" % (base + (ST_WG if mat == 0 else ST_WU) + 3072 * g4 + 1024 * i))
                    a("s_nop 0")
                    a("buffer_load_dwordx4 v%d, %s, s55 offen lds" % (VO + i, srd))

    def s_side(self):
        a = self.a
        if "noside" in self.ph:
            for b in range(11 if self.fused() else 12): a("s_barrier")
            return
        HA, HB = 100, 132
        def cond_b(fn):
            l = self.newlab("wb")
            a("s_cmp_ge_u32 s51, 384")
            a("s_cbranch_scc1 %s" % l)
            fn()
            a.lab(l)
        if "warm0" in self.ph:
            self.warm_inputs()
            if "warmc" in self.ph: self.warm_code()
        s3w = "s3w" in self.ph
        if s3w:
            self.s3w_setup()
            self.s3w_dma(0)
            self.s3w_dma(1)
        self.side_setup()
        norot = "norot" in self.ph
        if norot:
            a("s_mov_b32 s50, s5")
            a("s_add_u32 s53, s5, 16")
            a("s_cmp_lt_u32 s5, 4")
            a("s_cselect_b32 s53, s53, 99")
        else:
            self.rot_r("s50", "s67")
            a("s_and_b32 s68, s5, 1")
            a("s_lshl_b32 s50, s50, 1")
            a("s_add_u32 s50, s50, s68")
            a("s_add_u32 s53, s50, 2")
            a("s_lshr_b32 s67, s5, 1")
            a("s_and_b32 s67, s67, 3")
            a("s_cmp_eq_u32 s67, 0")
            a("s_cselect_b32 s53, s53, 99")
        if self.fused():
            a("v_mov_b32 v1, %d" % LDS_CNT)
            a("v_mov_b32 v2, 0")
            a("v_mov_b32 v3, 0")
            a("ds_write_b64 v1, v[2:3]")
            a("ds_write_b64 v1, v[2:3] offset:8")
            a("ds_write_b64 v1, v[2:3] offset:16")
            a("ds_write_b32 v1, v2 offset:24")
        self.stamp(5)
        if "nobpre" not in self.ph: a("s_barrier")
        if self.fused(): self.nonce_load()
        if self.fused() and "ftouch" in self.ph:
            a("s_min_u32 s67, s2, 191")
            a("s_lshl_b32 s67, s67, 7")
            a("s_add_u32 s67, s67, %d" % WS_FU)
            a("v_mov_b32 v1, 0")
            a("s_mov_b64 exec, 1")
            a("buffer_load_dword v244, v1, s[20:23], s67 offen sc1")
            a("s_mov_b64 exec, -1")
        if norot: self.utx_load("s50")
        wdlate = "wdlate" in self.ph
        wdmid = "wdmid" in self.ph
        if not wdlate and not wdmid:
            self.wd_load("s2", 0)
            cond_b(lambda: self.wd_load("s51", 5120))
        if "warm0" not in self.ph:
            if "warmc" in self.ph: self.warm_code()
            if ("warm" in self.ph or "warm2" in self.ph) and "warmB0" not in self.ph and "warmB1" not in self.ph and not s3w: self.warm_inputs()
        if s3w: a("s_waitcnt vmcnt(%d)" % self.s3w_younger0())
        a("s_barrier")
        if s3w:
            self.s3w_dma(2)
            self.warm_inputs()
        if "warmB0" in self.ph: self.warm_inputs()
        self.stamp(1)
        if norot:
            a("s_waitcnt vmcnt(3)")
            self.utx_read(HA)
            def second():
                self.utx_load("s53")
            l_ = self.newlab("ux")
            a("s_cmp_ge_u32 s53, 20")
            a("s_cbranch_scc1 %s" % l_)
            second()
            a.lab(l_)
        else:
            self.ut_read("s50", 0, HA)
        def uflag(creg):
            a("s_lshl_b32 s69, %s, 5" % creg)
            a("s_add_u32 s69, s69, s4")
            a("s_lshl_b32 s69, s69, 2")
            a("s_add_u32 s69, s69, %d" % WS_FU)
            self.flag_set("s69", 2)
        def n_lt4(fn):
            l = self.newlab("ut")
            a("s_cmp_ge_u32 s53, 20")
            a("s_cbranch_scc1 %s" % l)
            fn()
            a.lab(l)
        def wflag(ureg):
            a("s_and_b32 s68, %s, 7" % ureg)
            a("s_lshl_b32 s68, s68, 8")
            a("s_lshr_b32 s69, %s, 3" % ureg)
            a("s_lshl_b32 s69, s69, 2")
            a("s_add_u32 s69, s69, s68")
            a("s_add_u32 s69, s69, %d" % WS_FW)
            self.flag_set("s69", 2)
        early = "utearly" in self.ph
        epb = "epb" in self.ph
        if early: self.ut_store("s50", HA)
        for kk in range(10):
            if s3w:
                if kk == 0: a("s_waitcnt vmcnt(26)")
                elif kk <= 7: a("s_waitcnt vmcnt(24)")
                elif kk == 8: a("s_waitcnt vmcnt(%d)" % (6 if (wdlate and self.fused()) else 0))
            if not (kk == 9 and self.fused()): a("s_barrier")
            if s3w and kk + 3 < 10 and kk not in (0, 1): self.s3w_dma(kk + 3)
            if kk == 0:
                if "warmB1" in self.ph: self.warm_inputs()
                if norot:
                    def rd2():
                        a("s_waitcnt vmcnt(0)")
                        self.utx_read(HB)
                    n_lt4(rd2)
                else:
                    n_lt4(lambda: self.ut_read("s53", 1 * STAGE, HB))
                if early: n_lt4(lambda: self.ut_store("s53", HB))
                if epb:
                    a("s_waitcnt vmcnt(%d)" % (8 if early else 0))
                    self.wd_store("s2", 0)
                    cond_b(lambda: self.wd_store("s51", 5120, 180))
            if kk == 1:
                if not early:
                    self.ut_store("s50", HA)
                    n_lt4(lambda: self.ut_store("s53", HB))
            if s3w and kk in (0, 1): self.s3w_dma(kk + 3)
            if kk == 3:
                a("s_waitcnt vmcnt(%d)" % (48 if s3w else 0))
                if self.fused():
                    self.nonce_publish_local()
                    if "uflate" not in self.ph:
                        uflag("s50")
                        n_lt4(lambda: uflag("s53"))
                    if epb:
                        wflag("s2")
                        cond_b(lambda: wflag("s51"))
            if kk == 7 and "uflate" in self.ph and self.fused():
                uflag("s50")
                n_lt4(lambda: uflag("s53"))
            if "swarm" in self.ph and 2 <= kk <= 5:
                self.smem_warm(kk - 2)
            if kk == 6 and wdmid:
                if "swarm" in self.ph: a("s_waitcnt lgkmcnt(0)")
                self.wd_load("s2", 0)
                cond_b(lambda: self.wd_load("s51", 5120))
            if kk == 7 and wdmid: a("s_waitcnt vmcnt(0)")
            if kk == 7 and "s3prio" in self.ph: a("s_setprio 3")
            if kk == 7 and epb:
                if self.fused():
                    self.s3_uw_look()
                    a("s_lshl_b32 s78, s7, 8")
                    a("s_add_u32 s78, s78, %d" % WS_FW)
                    self.look_line("s78", 48, 94)
                self.gate_load()
            if kk == 7 and not wdlate and not epb:
                if self.fused(): self.s3_uw_look()
                self.wd_store("s2", 0)
                cond_b(lambda: self.wd_store("s51", 5120, 180))
                self.gate_load()
            if kk == 7 and wdlate:
                if "swarm" in self.ph: a("s_waitcnt lgkmcnt(0)")
                if self.fused(): self.s3_uw_look()
                self.wd_load("s2", 0)
                cond_b(lambda: self.wd_load("s51", 5120))
            if kk == 8:
                self.jitter()
                if self.fused():
                    l = self.newlab("uw")
                    if epb:
                        self.check_line("s78", 94, 15)
                        a("v_mov_b32 v1, %d" % LDS_WOK)
                        a("v_mov_b32 v2, 1")
                        a("ds_write_b32 v1, v2")
                    elif wdlate and "wdfirst" in self.ph:
                        a("s_waitcnt vmcnt(0)")
                        self.wd_store("s2", 0)
                        cond_b(lambda: self.wd_store("s51", 5120, 180))
                    elif not wdlate and "wfirst" in self.ph:
                        a("s_waitcnt vmcnt(15)")
                        wflag("s2")
                        cond_b(lambda: wflag("s51"))
                    else:
                        a("s_waitcnt vmcnt(%d)" % (5 if wdlate else 20))
                    a("v_cmp_eq_u32 vcc, s64, v92")
                    a("s_nop 1")
                    a("s_cmp_eq_u64 vcc, -1")
                    a("s_cbranch_scc1 %s" % l)
                    self.poll(self.s3_uw_loads, [92], 6, sleep=2)
                    a.lab(l)
                    self.s3_u_loads()
                    a("v_mov_b32 v1, %d" % LDS_UOK)
                    a("v_mov_b32 v2, 3")
                    a("ds_write_b32 v1, v2")
                    if wdlate and "wdfirst" not in self.ph: a("s_waitcnt vmcnt(12)")
                elif wdlate:
                    a("s_waitcnt vmcnt(0)")
                if wdlate:
                    if "wdfirst" not in self.ph or not self.fused():
                        self.wd_store("s2", 0)
                        cond_b(lambda: self.wd_store("s51", 5120, 180))
                    self.gate_load()
        self.stamp(2)
        if self.fused():
            if "s3prio" not in self.ph: a("s_setprio 2")
            if epb:
                self.lds_spin(LDS_SFREE, 2, 4)
                a("s_waitcnt vmcnt(0)")
            else:
                if not wdlate and "wfirst" in self.ph:
                    self.lds_spin(LDS_SFREE, 2, 4)
                    a("s_waitcnt vmcnt(0)")
                else:
                    wdf = wdlate and "wdfirst" in self.ph
                    if wdlate and not wdf: a("s_waitcnt vmcnt(15)")
                    else: a("s_waitcnt vmcnt(27)")
                    wflag("s2")
                    cond_b(lambda: wflag("s51"))
                    self.lds_spin(LDS_SFREE, 2, 4)
                    if wdf: a("s_waitcnt vmcnt(16)")
                    elif not wdlate: a("s_waitcnt vmcnt(1)")
        self.stamp(3)
        self.jitter()
        if self.fused():
            self.s3_u_copies(extra=None)
            a("s_waitcnt lgkmcnt(0)")
            a("v_mov_b32 v1, %d" % LDS_UCOK)
            a("v_mov_b32 v2, 1")
            a("ds_write_b32 v1, v2")
            a("s_setprio 0")
            self.stamp(4)
            a("s_waitcnt vmcnt(0)")
            self.gate_compute()
            a("s_waitcnt vmcnt(0)")
            a("s_lshl_b32 s69, s2, 2")
            a("s_add_u32 s69, s69, %d" % WS_FG)
            self.flag_set("s69", 2)
            if "nonearly" in self.ph: self.nonce_update()
        else:
            a("s_waitcnt vmcnt(0)")
            self.gate_compute()
            a("s_waitcnt vmcnt(0)")
            self.stamp(4)

    def s3_uw_addr(self):
        a = self.a
        a("v_lshrrev_b32 v1, 4, v0")
        a("v_lshlrev_b32 v1, 8, v1")
        a("v_add_u32 v1, s2, v1")
        a("v_mov_b32 v2, s2")
        a("v_cmp_gt_u32 vcc, 640, v1")
        a("s_nop 1")
        a("v_cndmask_b32 v1, v2, v1, vcc")
        a("v_lshrrev_b32 v1, 5, v1")
        a("v_lshlrev_b32 v1, 7, v1")
        a("v_and_b32 v2, 15, v0")
        a("v_lshl_add_u32 v1, v2, 2, v1")
        a("v_add_u32 v90, %d, v1" % WS_FU)
    def s3_uw_loads(self):
        a = self.a
        a("buffer_load_dword v92, v90, s[20:23], 0 offen sc1")
    def s3_uw_look(self):
        self.s3_uw_addr()
        self.s3_uw_loads()
    def s3_uw_check(self):
        a = self.a
        l = self.newlab("uw")
        a("s_waitcnt vmcnt(0)")
        a("v_cmp_eq_u32 vcc, s64, v92")
        a("v_cmp_eq_u32 s[76:77], s64, v93")
        a("s_nop 1")
        a("s_and_b64 vcc, vcc, s[76:77]")
        a("s_cmp_eq_u64 vcc, -1")
        a("s_cbranch_scc1 %s" % l)
        self.poll(self.s3_uw_loads, [92, 93], 6, sleep=2)
        a.lab(l)

    def s3_channels(self):
        a = self.a
        a("s_mov_b32 s70, s2")
        a("s_add_u32 s71, s2, 256")
        a("s_add_u32 s72, s2, 512")
        a("s_cmp_lt_u32 s72, 640")
        a("s_cselect_b32 s72, s72, s2")

    def s3_u_loads(self):
        a = self.a
        self.s3_channels()
        a("v_lshlrev_b32 v1, 4, v0")
        for sg in range(3):
            a("s_mul_i32 s67, s%d, %d" % (70 + sg, ROWS))
            a("s_add_u32 s67, s67, %d" % WS_UT)
            for i in range(4):
                r = 100 + 16 * sg + 4 * i
                a("buffer_load_dwordx4 v[%d:%d], v1, s[20:23], s67 offen offset:%d sc1" % (r, r + 3, 1024 * i))

    def s3_u_copies(self, extra=0):
        a = self.a
        Z = 150
        for i in range(4): a("v_mov_b32 v%d, 0" % (Z + i))
        a("v_lshlrev_b32 v2, 4, v0")
        a("v_cmp_eq_u32 vcc, 0, v0")
        for sg in range(3):
            base = LDS_UC + sg * UC_SZ
            for b in range(4):
                a("ds_write_b128 v2, v[%d:%d] offset:%d" % (Z, Z + 3, base + b * UC_STRIDE))
        for sg in range(3):
            base = LDS_UC + sg * UC_SZ
            if extra is not None: a("s_waitcnt vmcnt(%d)" % (4 * (2 - sg) + extra))
            for i in range(4):
                D = 100 + 16 * sg + 4 * i
                R3, R2 = 154 + 2 * (i & 1), 155 + 2 * (i & 1)
                Q3, Q2 = 154 + 2 * ((i + 1) & 1), 155 + 2 * ((i + 1) & 1)
                T1 = 160 + 12 * (i & 1); T0 = T1 + 4; T2 = T1 + 8
                P2 = 158
                a("v_mov_b32_dpp v%d, v%d wave_ror:1 row_mask:0xf bank_mask:0xf" % (R3, D + 3))
                a("v_mov_b32_dpp v%d, v%d wave_ror:1 row_mask:0xf bank_mask:0xf" % (R2, D + 2))
                a("v_mov_b32 v%d, v%d" % (T1 + 1, D))
                a("v_mov_b32 v%d, v%d" % (T1 + 2, D + 1))
                a("v_mov_b32 v%d, v%d" % (T1 + 3, D + 2))
                if i == 0:
                    a("v_cndmask_b32 v%d, v%d, v%d, vcc" % (T1, R3, Z))
                    a("v_cndmask_b32 v%d, v%d, v%d, vcc" % (P2, R2, Z))
                else:
                    a("v_cndmask_b32 v%d, v%d, v%d, vcc" % (T1, R3, Q3))
                    a("v_cndmask_b32 v%d, v%d, v%d, vcc" % (P2, R2, Q2))
                off = base + 4 * (96 + 256 * i)
                a("ds_write_b128 v2, v[%d:%d] offset:%d" % (D, D + 3, off + 3 * UC_STRIDE))
                a("v_alignbit_b32 v%d, v%d, v%d, 16" % (T0, T1, P2))
                a("v_alignbit_b32 v%d, v%d, v%d, 16" % (T0 + 1, D, T1))
                a("v_alignbit_b32 v%d, v%d, v%d, 16" % (T0 + 2, D + 1, D))
                a("v_alignbit_b32 v%d, v%d, v%d, 16" % (T0 + 3, D + 2, D + 1))
                a("ds_write_b128 v2, v[%d:%d] offset:%d" % (T1, T1 + 3, off + 1 * UC_STRIDE))
                a("v_mov_b32 v%d, v%d" % (T2, T0 + 1))
                a("v_mov_b32 v%d, v%d" % (T2 + 1, T0 + 2))
                a("v_mov_b32 v%d, v%d" % (T2 + 2, T0 + 3))
                a("v_alignbit_b32 v%d, v%d, v%d, 16" % (T2 + 3, D + 3, D + 2))
                a("ds_write_b128 v2, v[%d:%d] offset:%d" % (T0, T0 + 3, off + 0 * UC_STRIDE))
                a("ds_write_b128 v2, v[%d:%d] offset:%d" % (T2, T2 + 3, off + 2 * UC_STRIDE))

    def s_phase1(self):
        a = self.a
        n = self.name
        a("s_sub_u32 s66, s3, 4")
        a("s_cmp_eq_u32 s66, 3")
        a("s_cbranch_scc1 %s_sj" % n)
        self.s_kgen_phase1()
        a("s_branch %s_p1done" % n)
        a.lab("%s_sj" % n)
        self.s_side()
        a.lab("%s_p1done" % n)

    def ssm_param_loads(self, slots=(0, 1, 2), scalars=True):
        a = self.a
        a("s_mul_i32 s67, s50, 384")
        a("v_lshl_add_u32 v1, v0, 1, s67")
        for sl in slots:
            for k, p in enumerate((P_ARE, P_AIM, P_BRE, P_BIM, P_CRE, P_CIM)):
                a("global_load_ushort v%d, v1, s[%d:%d] offset:%d" % (200 + 6 * sl + k, p, p + 1, 128 * sl))
        if scalars:
            a("s_lshl_b32 s67, s50, 1")
            a("v_mov_b32 v223, s67")
            a("global_load_ushort v218, v223, s[%d:%d]" % (P_LDT, P_LDT + 1))
            a("global_load_ushort v219, v223, s[%d:%d]" % (P_DSK, P_DSK + 1))

    def ssm_param_warm(self):
        a = self.a
        a("s_mul_i32 s67, s50, 384")
        for p in (P_ARE, P_AIM, P_BRE, P_BIM, P_CRE, P_CIM):
            a("s_add_u32 s68, s%d, s67" % p)
            a("s_addc_u32 s69, s%d, 0" % (p + 1))
            for i in range(3):
                a("s_load_dword s70, s[68:69], %d" % (128 * i))
        a("s_lshl_b32 s67, s50, 1")
        a("s_and_b32 s67, s67, 0xfffffffc")
        a("s_load_dword s70, s[%d:%d], s67" % (P_LDT, P_LDT + 1))
        a("s_load_dword s70, s[%d:%d], s67" % (P_DSK, P_DSK + 1))

    def kgen_bases(self):
        a = self.a
        a("s_mul_i32 s51, s66, %d" % TAB_SZ)
        a("s_add_u32 s51, s51, %d" % LDS_TAB)
        a("s_mul_i32 s52, s66, %d" % KR_SZ)
        a("s_add_u32 s52, s52, %d" % LDS_KR)

    def kgen(self, part="all"):
        a = self.a
        if part == "all": self.kgen_bases()
        self._kgen_body(part)

    def _kgen_body(self, part):
        a = self.a
        head = part in ("all", "head", "rest"); tail = part in ("all", "tail", "rest")
        real_a = a
        if not head: a = Asm()
        a("v_and_b32 v4, 15, v0")
        a("v_lshrrev_b32 v5, 4, v0")
        a("v_mul_u32_u24 v2, %d, v4" % TABROW)
        a("v_lshl_add_u32 v2, v5, 6, v2")
        a("v_add_u32 v2, s51, v2")
        a("v_and_b32 v6, 1, v5")
        a("v_lshl_add_u32 v3, v6, 3, v2")
        a("v_xor_b32 v6, 1, v6")
        a("v_lshl_add_u32 v2, v6, 3, v2")
        a("s_mov_b32 m0, s51")
        a("s_nop 0")
        if part == "all" or (part == "rest" and not self.fused()): a("s_waitcnt vmcnt(0)")
        a("v_lshlrev_b32 v218, 16, v218")
        a("v_lshlrev_b32 v219, 16, v219")
        a("v_mul_f32 v6, 0x3fb8aa3b, v218")
        a("s_mov_b32 s67, 0x3fb8aa3b")
        a("v_fma_f32 v7, v218, s67, -v6")
        a("v_fmac_f32 v7, 0x32a57060, v218")
        a("v_exp_f32 v6, v6")
        a("v_mul_f32 v7, 0x3f317218, v7")
        a("v_fma_f32 v6, v6, v7, v6")
        a("v_cvt_pk_bf16_f32 v6, v6, v6")
        a("v_lshlrev_b32 v218, 16, v6")
        W1, W16, W256, W512, W768, W1024 = 10, 12, 14, 16, 18, 20
        WX = 22
        CB = 24
        Y = 26; P = 28; TMP1 = 30; TMP2 = 32; TMP3 = 34
        PK = 36
        V = 50
        CV = 66
        YF = 76
        AF = 92
        ACC = 108
        nopk = (part == "head") and ("pkhead" not in self.ph)
        def cmul(out, x, w, t):
            if nopk:
                return ["v_mul_f32 v%d, v%d, v%d" % (t, x + 1, w + 1),
                        "v_mul_f32 v%d, v%d, v%d" % (t + 1, x, w + 1),
                        "v_fma_f32 v%d, v%d, v%d, -v%d" % (out, x, w, t),
                        "v_fma_f32 v%d, v%d, v%d, v%d" % (out + 1, x + 1, w, t + 1)]
            return ["v_pk_mul_f32 v[%d:%d], v[%d:%d], v[%d:%d] op_sel:[0,0] op_sel_hi:[0,1]" % (t, t + 1, x, x + 1, w, w + 1),
                    "v_pk_fma_f32 v[%d:%d], v[%d:%d], v[%d:%d], v[%d:%d] op_sel:[1,1,0] op_sel_hi:[1,0,1] neg_lo:[1,0,0]" % (out, out + 1, x, x + 1, w, w + 1, t, t + 1)]
        def zipl(*ls):
            o = []
            for i in range(max(len(l) for l in ls)):
                for l in ls:
                    if i < len(l): o.append(l[i])
            return o
        cvn = [0, 0]
        def wr(val, tile, row, neg, bank=0):
            c = CV + 4 * bank + (cvn[bank] % 4); cvn[bank] += 1
            return ["v_cvt_pk_bf16_f32 v%d, v%d, %sv%d" % (c, val, "-" if neg else "", val + 1),
                    "ds_write_addtid_b32 v%d offset:%d" % (c, tile * TABTILE + row * TABROW)]
        def frag_reads(dst, tile):
            L = []
            for kk in range(4):
                L.append("ds_read_b64 v[%d:%d], v3 offset:%d" % (dst + 4 * kk, dst + 4 * kk + 1, tile * TABTILE + 16 * kk))
                L.append("ds_read_b64 v[%d:%d], v2 offset:%d" % (dst + 4 * kk + 2, dst + 4 * kk + 3, tile * TABTILE + 16 * kk))
            return L
        def mm(t, first):
            L = []
            for kk in range(4):
                c = "0" if (first and kk == 0) else "v[%d:%d]" % (ACC + 4 * t, ACC + 4 * t + 3)
                L.append("v_mfma_f32_16x16x32_bf16 v[%d:%d], v[%d:%d], v[%d:%d], %s" % (ACC + 4 * t, ACC + 4 * t + 3, AF + 4 * kk, AF + 4 * kk + 3, YF + 4 * kk, YF + 4 * kk + 3, c))
            return L
        a = real_a
        nh = 2 if "kg2" in self.ph else 1
        slots = [0, 1, 2] if part in ("all", "rest") else (list(range(nh)) if part == "head" else list(range(nh, 3)))
        for sl in slots:
            if sl == 1 and part == "tail" and not self.fused(): a("s_waitcnt vmcnt(0)")
            if sl == 2 and part in ("rest", "tail"): self.stamp(3)
            if sl == 2 and "prioT" in self.ph: a("s_setprio 2")
            if sl == slots[0] and part in ("tail", "rest") and "prioT0" in self.ph and "prioMid" not in self.ph: a("s_setprio 2")
            pr = 200 + 6 * sl
            for k in range(6): a("v_lshlrev_b32 v%d, 16, v%d" % (pr + k, pr + k))
            a("v_mul_f32 v6, v218, v%d" % pr)
            a("v_mul_f32 v7, v218, v%d" % (pr + 1))
            a("v_mul_f32 v6, 0x3fb8aa3b, v6")
            a("v_mul_f32 v7, 0.15915494, v7")
            a("v_mul_f32 v8, v218, v%d" % (pr + 2))
            a("v_mul_f32 v9, v218, v%d" % (pr + 3))
            a.ext(cmul(CB, pr + 4, 8, TMP1))
            for w, k in ((W1, 1.0), (W16, 16.0), (W256, 256.0)):
                if k == 1.0:
                    a("v_exp_f32 v%d, v6" % TMP2)
                    a("v_fract_f32 v%d, v7" % TMP3)
                else:
                    lit = "0x41800000" if k == 16.0 else "0x43800000"
                    a("v_mul_f32 v%d, %s, v6" % (TMP2, lit))
                    a("v_mul_f32 v%d, %s, v7" % (TMP3, lit))
                    a("v_exp_f32 v%d, v%d" % (TMP2, TMP2))
                    a("v_fract_f32 v%d, v%d" % (TMP3, TMP3))
                a("v_cos_f32 v%d, v%d" % (w, TMP3))
                a("v_sin_f32 v%d, v%d" % (w + 1, TMP3))
                a("s_nop 0")
                a("v_mul_f32 v%d, v%d, v%d" % (w, w, TMP2))
                a("v_mul_f32 v%d, v%d, v%d" % (w + 1, w + 1, TMP2))
            if sl != slots[0]:
                a("s_waitcnt lgkmcnt(0)")
                a.ext(pend_mm2)
            if sl == slots[0] and part in ("tail", "rest") and "prioMid" in self.ph: a("s_setprio 2")
            LY = ["v_mov_b32 v%d, v%d" % (Y, CB), "v_mov_b32 v%d, v%d" % (Y + 1, CB + 1)] + wr(Y, 0, 0, False)
            for j in range(1, 16):
                LY += cmul(Y, Y, W16, TMP1) + wr(Y, 0, j, False)
            LA = ["v_mov_b32 v%d, 1.0" % P, "v_mov_b32 v%d, 0" % (P + 1)] + wr(P, 1, 0, True, 1)
            cur = P
            for r in range(1, 16):
                if r == 1:
                    LA += ["v_mov_b32 v%d, v%d" % (P, W1), "v_mov_b32 v%d, v%d" % (P + 1, W1 + 1)]
                    cur = P
                else:
                    dst = PK + 2 * (r // 2 - 1) if r % 2 == 0 else P
                    LA += cmul(dst, cur, W1, TMP2)
                    cur = dst
                LA += wr(cur, 1, r, True, 1)
            a.ext(zipl(LY, LA))
            a.ext(cmul(W512, W256, W256, TMP1))
            a.ext(frag_reads(YF, 0)); a.ext(frag_reads(AF, 1))
            a.ext(zipl(cmul(W768, W512, W256, TMP1), cmul(W1024, W512, W512, TMP2)))
            def pk(i): return PK + 2 * (i // 2 - 1)
            vals = []
            A2 = []
            regs = []
            for r in range(8):
                if r == 0: regs.append(W256)
                else:
                    dst = V + 2 * (r - 1) if r < 8 else None
                    A2.append(cmul(dst, pk(2 * r), W256, TMP1 if r % 2 else TMP2)); regs.append(dst)
            a.ext(zipl(sum(A2[0::2], []), sum(A2[1::2], [])))
            a("s_waitcnt lgkmcnt(0)")
            m = mm(0, sl == 0)
            L = []
            for r in range(8): L += wr(regs[r], 1, r, True)
            a.ext(interleave(m, L))
            LA = []; LB = []
            for b in range(4):
                if b == 0:
                    LA += wr(W512, 1, 8, True); LB += wr(W768, 1, 12, True, 1)
                else:
                    LA += cmul(V, pk(4 * b), W512, TMP1) + wr(V, 1, 8 + b, True)
                    LB += cmul(V + 2, pk(4 * b), W768, TMP2) + wr(V + 2, 1, 12 + b, True, 1)
            a.ext(zipl(LA, LB))
            a.ext(frag_reads(AF, 1))
            a.ext(zipl(cmul(V, W1024, W256, TMP1), cmul(V + 2, W1024, W512, TMP2)))
            a.ext(zipl(cmul(V + 4, W1024, W768, TMP1), cmul(V + 6, W1024, W1024, TMP2)))
            ws = [W1024, V, V + 2, V + 4]
            a.ext(zipl(cmul(V + 8, ws[0], pk(8), TMP1), cmul(V + 10, ws[1], pk(8), TMP2)))
            a.ext(zipl(cmul(V + 12, ws[2], pk(8), TMP1), cmul(V + 14, ws[3], pk(8), TMP2)))
            a("s_waitcnt lgkmcnt(0)")
            m = mm(1, sl == 0)
            L = []
            for i in range(4):
                L += wr(ws[i], 1, 2 * i, True) + wr(V + 8 + 2 * i, 1, 2 * i + 1, True)
            L += wr(V + 6, 1, 8, True)
            a.ext(interleave(m, L))
            a.ext(frag_reads(AF, 1))
            pend_mm2 = mm(2, sl == 0)
            if sl == slots[-1]:
                a("s_waitcnt lgkmcnt(0)")
                a.ext(pend_mm2); pend_mm2 = None
        if not tail: return
        self.stamp(1)
        A0, A1, A2r = ACC, ACC + 4, ACC + 8
        a("v_cmp_eq_u32 vcc, 0, v0")
        a("v_and_b32 v4, 15, v0")
        a("v_lshrrev_b32 v5, 4, v0")
        a("v_cndmask_b32 v6, 0, v219, vcc")
        a("v_lshlrev_b32 v7, 5, v4")
        a("v_lshl_add_u32 v7, v5, 4, v7")
        a("v_lshlrev_b32 v8, 4, v4")
        a("v_lshl_add_u32 v8, v5, 8, v8")
        a("v_cmp_gt_u32 vcc, 2, v5")
        a("v_add_f32 v%d, v%d, v6" % (A0, A0))
        a("s_nop 0")
        a("v_cndmask_b32 v7, v8, v7, vcc")
        a("v_add_u32 v7, s51, v7")
        a("v_lshlrev_b32 v8, 3, v4")
        a("v_lshl_add_u32 v8, v5, 8, v8")
        a("v_add_u32 v8, s51, v8")
        a("s_nop 4")
        a("ds_write_b128 v7, v[%d:%d]" % (A1, A1 + 3))
        a("ds_write_b64 v8, v[%d:%d] offset:1024" % (A2r, A2r + 1))
        a("ds_write_b64 v8, v[%d:%d] offset:1152" % (A2r + 2, A2r + 3))
        a("v_cvt_pk_bf16_f32 v10, v%d, v%d" % (A0 + 3, A0 + 2))
        a("v_cvt_pk_bf16_f32 v11, v%d, v%d" % (A0 + 1, A0))
        a("v_lshlrev_b32 v9, 5, v4")
        a("v_lshl_add_u32 v9, v5, 3, v9")
        a("v_sub_u32 v9, 4088, v9")
        a("v_add_u32 v9, s52, v9")
        a("ds_write_b64 v9, v[10:11]")
        a("v_and_b32 v9, 31, v0")
        a("v_lshlrev_b32 v9, 2, v9")
        a("v_add_u32 v9, s52, v9")
        a("v_mov_b32 v12, 0")
        a("ds_write_b32 v9, v12 offset:4096")
        a("v_lshlrev_b32 v13, 4, v0")
        a("v_add_u32 v14, s51, v13")
        a("v_lshlrev_b32 v15, 3, v0")
        a("v_add_u32 v15, s51, v15")
        a("v_lshlrev_b32 v16, 2, v0")
        a("v_add_u32 v16, s51, v16")
        a("v_sub_u32 v13, s52, v13")
        a("s_waitcnt lgkmcnt(0)")
        a("ds_read_b128 v[20:23], v14")
        a("ds_read_b32 v24, v14 offset:16")
        a("ds_read_b64 v[26:27], v15 offset:512")
        a("ds_read_b32 v28, v15 offset:520")
        a("ds_read2_b32 v[30:31], v16 offset0:0 offset1:1")
        a.l.pop()
        a("v_add_u32 v17, 1024, v16")
        a("ds_read2_b32 v[30:31], v17 offset0:0 offset1:1")
        a("ds_read2_b32 v[32:33], v17 offset0:64 offset1:65")
        a("v_and_b32 v18, 1, v0")
        a("v_cmp_eq_u32 vcc, 1, v18")
        a("s_waitcnt lgkmcnt(0)")
        a("v_cvt_pk_bf16_f32 v36, v28, v28")
        a("v_cvt_pk_bf16_f32 v37, v27, v27")
        a("v_cvt_pk_bf16_f32 v38, v27, v26")
        a("v_cvt_pk_bf16_f32 v39, v26, v26")
        a("ds_write_b128 v13, v[36:39] offset:3056")
        for ps in range(2):
            v0_, v1_ = 30 + 2 * ps, 31 + 2 * ps
            o = 40 + 4 * ps
            a("v_cndmask_b32 v19, v%d, v%d, vcc" % (v0_, v1_))
            a("v_cvt_pk_bf16_f32 v%d, v%d, v%d" % (o, v1_, v1_))
            a("v_cvt_pk_bf16_f32 v%d, v%d, v19" % (o + 1, v1_))
            a("v_cvt_pk_bf16_f32 v%d, v%d, v%d" % (o + 2, v0_, v0_))
            a("v_mov_b32 v%d, v%d" % (o + 3, o + 2))
        a("ds_write_b128 v13, v[40:43] offset:2032")
        a("ds_write_b128 v13, v[44:47] offset:1008")
        a("v_cvt_pk_bf16_f32 v48, v24, v23")
        a("v_cvt_pk_bf16_f32 v49, v22, v22")
        a("v_cvt_pk_bf16_f32 v50, v22, v21")
        a("v_cvt_pk_bf16_f32 v51, v20, v20")
        a("s_mov_b32 exec_hi, 0")
        a("ds_write_b128 v13, v[48:51] offset:3568")
        a("s_mov_b32 exec_hi, -1")
        if "dumpk" in self.ph:
            a("s_waitcnt lgkmcnt(0)")
            a("v_lshlrev_b32 v13, 4, v0")
            a("v_add_u32 v14, s52, v13")
            a("s_mul_i32 s67, s50, 4224")
            a("s_add_u32 s67, s67, %d" % WS_DBG)
            for i in range(5):
                a("ds_read_b128 v[20:23], v14 offset:%d" % (1024 * i))
                a("s_waitcnt lgkmcnt(0)")
                if i == 4: a("s_mov_b32 exec_hi, 0"); a("s_mov_b32 exec_lo, 0xff")
                a("s_add_u32 s68, s67, %d" % (1024 * i))
                a("buffer_store_dwordx4 v[20:23], v13, s[20:23], s68 offen")
                a("s_waitcnt vmcnt(0)")
            a("s_mov_b64 exec, -1")

    def u_look(self):
        a = self.a
        self.nonce_read(120)
        a("s_lshr_b32 s78, s50, 5")
        a("s_lshl_b32 s78, s78, 7")
        a("s_add_u32 s78, s78, %d" % WS_FU)
        a("v_and_b32 v120, 15, v0")
        a("v_lshlrev_b32 v120, 2, v120")
        a("buffer_load_dword v121, v120, s[20:23], s78 offen sc1")
    def u_prefetch(self):
        a = self.a
        l = self.newlab("uok")
        a("s_waitcnt vmcnt(0)")
        a("v_cmp_eq_u32 vcc, s64, v121")
        a("s_nop 1")
        a("s_cmp_eq_u64 vcc, -1")
        a("s_cbranch_scc1 %s" % l)
        self.poll_line("s78", 16, 120, sleep=4)
        a.lab(l)
        self.conv_loads()
        self.lds_inc(LDS_UOK, 152)

    def conv_loads(self):
        a = self.a
        a("s_mul_i32 s67, s50, %d" % ROWS)
        a("s_add_u32 s67, s67, %d" % (WS_UT - 4))
        a("v_lshlrev_b32 v1, 2, v0")
        for i in range(16):
            a("buffer_load_dwordx2 v[%d:%d], v1, s[20:23], s67 offen offset:%d sc1" % (120 + 2 * i, 121 + 2 * i, 256 * i))

    def conv(self):
        a = self.a
        D = 120
        a("s_mul_i32 s53, s66, %d" % UC_SZ)
        if LDS_UC: a("s_add_u32 s53, s53, %d" % LDS_UC)
        if not self.fused():
            a("s_mov_b32 m0, s53")
            a("v_mov_b32 v2, 0")
            for b in range(4):
                a("ds_write_addtid_b32 v2 offset:%d" % (b * UC_STRIDE))
                a("ds_write_addtid_b32 v2 offset:%d" % (b * UC_STRIDE + 33 * 4))
            a("v_cmp_eq_u32 vcc, 0, v0")
            a("s_waitcnt vmcnt(0)")
            a("v_cndmask_b32 v%d, v%d, v2, vcc" % (D, D))
            for i in range(16):
                lo, hi = D + 2 * i, D + 2 * i + 1
                o = 4 + (i % 4)
                a("v_alignbit_b32 v%d, v%d, v%d, 16" % (o, hi, lo))
                a("ds_write_addtid_b32 v%d offset:%d" % (hi, 3 * UC_STRIDE + 4 * (64 * i + 96)))
                a("ds_write_addtid_b32 v%d offset:%d" % (hi, 1 * UC_STRIDE + 4 * (64 * i + 97)))
                a("ds_write_addtid_b32 v%d offset:%d" % (o, 2 * UC_STRIDE + 4 * (64 * i + 96)))
                a("ds_write_addtid_b32 v%d offset:%d" % (o, 0 * UC_STRIDE + 4 * (64 * i + 97)))
        VU, VK = 8, 9
        a("v_and_b32 v4, 3, v0")
        a("v_mul_u32_u24 v4, %d, v4" % UC_STRIDE)
        a("v_bfe_u32 v5, v0, 2, 2")
        a("v_lshl_add_u32 v4, v5, 7, v4")
        a("v_lshrrev_b32 v5, 4, v0")
        a("v_lshl_add_u32 v4, v5, 4, v4")
        a("v_add_u32 v%d, s53, v4" % VU)
        a("v_and_b32 v6, 15, v0")
        a("v_lshlrev_b32 v7, 3, v6")
        a("v_sub_u32 v7, 120, v7")
        a("v_lshl_add_u32 v7, v5, 4, v7")
        a("v_add_u32 v%d, s52, v7" % VK)
        a("v_lshlrev_b32 v10, 3, v6")
        a("v_lshl_add_u32 v10, v5, 7, v10")
        ACC = 16; SETS = [48, 112]
        def reads(rho, S):
            L = []
            for z in range(8):
                L.append("ds_read_b128 v[%d:%d], v%d offset:%d" % (S + 4 * z, S + 4 * z + 3, VU, 512 * z + 64 * (7 - rho)))
                zz = 8 * z + rho
                L.append("ds_read_b64 v[%d:%d], v%d offset:%d" % (S + 32 + 4 * z, S + 33 + 4 * z, VK, 64 * (63 - zz)))
                L.append("ds_read_b64 v[%d:%d], v%d offset:%d" % (S + 34 + 4 * z, S + 35 + 4 * z, VK, 64 * (63 - zz) + 8))
            return L
        def mm(rho, S):
            L = []
            for ze in range(8):
                for nu in range(8 - ze):
                    n = ze + nu
                    c = "0" if (rho == 0 and ze == 0) else "v[%d:%d]" % (ACC + 4 * n, ACC + 4 * n + 3)
                    L.append("v_mfma_f32_16x16x32_bf16 v[%d:%d], v[%d:%d], v[%d:%d], %s" % (ACC + 4 * n, ACC + 4 * n + 3, S + 4 * nu, S + 4 * nu + 3, S + 32 + 4 * ze, S + 35 + 4 * ze, c))
            return L
        a("s_waitcnt lgkmcnt(0)")
        if self.fused(): self.lds_spin(LDS_UCOK, 12)
        self.stamp(4)
        a.ext(reads(0, SETS[0]))
        a("s_waitcnt lgkmcnt(0)")
        for rho in range(8):
            fill = reads(rho + 1, SETS[(rho + 1) & 1]) if rho < 7 else []
            a.ext(interleave(mm(rho, SETS[rho & 1]), fill, span=28))
            if rho < 7: a("s_waitcnt lgkmcnt(0)")
        self.stamp(7)
        a("s_mul_i32 s67, s50, %d" % ROWS)
        a("s_add_u32 s67, s67, %d" % WS_Y)
        a("s_nop 7")
        for n in range(8):
            o = 48 + 2 * n
            a("v_cvt_pk_bf16_f32 v%d, v%d, v%d" % (o, ACC + 4 * n, ACC + 4 * n + 1))
            a("v_cvt_pk_bf16_f32 v%d, v%d, v%d" % (o + 1, ACC + 4 * n + 2, ACC + 4 * n + 3))
            if "noy" not in self.ph: a("buffer_store_dwordx2 v[%d:%d], v10, s[20:23], s67 offen offset:%d sc1" % (o, o + 1, 512 * n))

    def s_ssm(self):
        a = self.a
        n = self.name
        a("s_sub_u32 s66, s3, 4")
        a("s_lshl_b32 s50, s66, 8")
        a("s_add_u32 s50, s50, s2")
        a("s_cmp_ge_u32 s66, 3")
        a("s_cbranch_scc1 %s_ssm_done" % n)
        if self.fused():
            l = self.newlab("nch")
            a("s_cmp_lt_u32 s50, 640")
            a("s_cbranch_scc1 %s" % l)
            a("s_branch %s_ssm_done" % n)
            a.lab(l)
        else:
            a("s_cmp_ge_u32 s50, 640")
            a("s_cbranch_scc1 %s_ssm_done" % n)
        self.jitter()
        if self.fused() and "g1" in self.ph:
            a("s_waitcnt vmcnt(0)")
        if "g1" not in self.ph:
            self.stamp(5)
            self.ssm_param_loads()
            self.kgen("all")
        elif "kghead" in self.ph:
            self.kgen("tail")
        else:
            self.kgen("rest")
        self.stamp(6)
        self.jitter()
        if not self.fused():
            self.conv_loads()
        self.conv()
        self.jitter()
        if "prioT" in self.ph or "prioT0" in self.ph: a("s_setprio 0")
        a("s_waitcnt vmcnt(0)")
        if self.fused():
            self.nonce_read(4)
            a("s_lshl_b32 s69, s50, 2")
            a("s_add_u32 s69, s69, %d" % WS_FY)
            self.flag_set("s69", 2)
        self.stamp(8)
        a.lab("%s_ssm_done" % n)

    G2_SETS = [80, 116, 152, 188]
    G2_VB, G2_VL, G2_VB8, G2_T, G2_VRS = 224, 228, 246, 230, 250

    def g2_setup(self):
        a = self.a
        VB, VL, VB8, T, VRS = self.G2_VB, self.G2_VL, self.G2_VB8, self.G2_T, self.G2_VRS
        a("v_mbcnt_lo_u32_b32 v%d, -1, 0" % T)
        a("v_mbcnt_hi_u32_b32 v%d, -1, v%d" % (T, T))
        a("v_lshlrev_b32 v%d, 4, v%d" % (VL, T))
        for tau in range(4):
            a("s_add_u32 s67, s3, %d" % tau)
            a("s_and_b32 s67, s67, 3")
            a("s_lshl_b32 s67, s67, 10")
            a("v_add_u32 v%d, s67, v%d" % (VB + tau, VL))
            a("v_lshlrev_b32 v%d, 3, v%d" % (VB8 + tau, T))
            a("v_add_u32 v%d, s67, v%d" % (VB8 + tau, VB8 + tau))
        a("s_mul_i32 s70, s6, 48")
        a("s_mul_i32 s67, s3, %d" % (9 if "ks921" in self.ph else 12))
        a("s_add_u32 s70, s70, s67")
        a("s_lshl_b32 s70, s70, 12")
        if WS_H: a("s_add_u32 s70, s70, %d" % WS_H)
        a("s_mul_i32 s71, s7, 48")
        a("s_add_u32 s71, s71, s67")
        a("s_mul_i32 s71, s71, 5120")
        a("s_add_u32 s71, s71, %d" % WS_WD)
        a("s_add_u32 s72, s71, 4096")
        for tau in range(1, 4):
            a("s_add_u32 s67, s3, %d" % tau)
            a("s_and_b32 s67, s67, 3")
            a("s_mul_i32 s67, s67, 3")
            a("s_add_u32 s67, s67, %d" % (tau - 1))
            a("s_mul_i32 s67, s67, 5120")
            a("s_add_u32 s67, s67, %d" % LDS_RED)
            a("v_add_u32 v%d, s67, v%d" % (VRS + tau - 1, VL))
            a("s_mov_b32 s%d, s67" % (72 + tau))

    def g2_final_addrs(self):
        a = self.a
        T, VL = self.G2_T, self.G2_VL
        a("s_mul_i32 s67, s3, %d" % (3 * 5120))
        a("s_add_u32 s67, s67, %d" % LDS_RED)
        a("v_add_u32 v%d, s67, v%d" % (T + 1, VL))
        a("v_lshrrev_b32 v%d, 4, v%d" % (T + 2, T))
        a("v_and_b32 v%d, 15, v%d" % (T + 3, T))
        a("v_lshrrev_b32 v%d, 2, v%d" % (T + 4, T + 3))
        a("v_lshl_add_u32 v%d, v%d, 3, v%d" % (T + 5, T + 2, T + 4))
        a("v_lshl_add_u32 v%d, v%d, 2, v%d" % (T + 6, T + 2, T + 4))
        a("v_and_b32 v%d, 3, v%d" % (T + 7, T))
        a("v_lshlrev_b32 v%d, 3, v%d" % (T + 7, T + 7))
        a("s_lshl_b32 s67, s3, 5")
        a("s_add_u32 s67, s67, %d" % LDS_YT)
        a("v_add_u32 v%d, s67, v%d" % (T + 7, T + 7))
        a("v_lshl_add_u32 v%d, v%d, 7, v%d" % (T + 5, T + 5, T + 7))
        a("v_lshl_add_u32 v%d, v%d, 7, v%d" % (T + 6, T + 6, T + 7))
        a("s_lshl_b32 s67, s3, 6")
        a("s_add_u32 s67, s67, %d" % LDS_GT)
        a("v_lshl_add_u32 v%d, v%d, 2, s67" % (T + 8, T + 3))
        a("s_lshl_b32 s67, s6, 6")
        a("s_lshl_b32 s68, s3, 4")
        a("s_add_u32 s67, s67, s68")
        a("v_add_u32 v%d, s67, v%d" % (T + 9, T + 3))
        a("s_movk_i32 s68, 1280")
        a("v_mul_lo_u32 v%d, v%d, s68" % (T + 9, T + 9))
        a("s_mul_i32 s68, s7, 160")
        a("v_add_u32 v%d, s68, v%d" % (T + 9, T + 9))
        a("v_lshl_add_u32 v%d, v%d, 3, v%d" % (T + 10, T + 2, T + 9))
        a("v_lshl_add_u32 v%d, v%d, 4, v%d" % (T + 9, T + 2, T + 9))

    def g2_loadsA(self, S):
        VL = self.G2_VL
        L = []
        for dt in range(5):
            if dt < 4: L.append("buffer_load_dwordx4 v[%d:%d], v%d, s[20:23], s71 offen offset:%d sc1" % (S + 16 + 4 * dt, S + 19 + 4 * dt, VL, 1024 * dt))
            else: L.append(("buffer_load_dwordx4 v[%d:%d], v%d, s[20:23], s72 offen sc1" % (S + 16 + 4 * dt, S + 19 + 4 * dt, VL),
                            "s_add_u32 s71, s71, 5120", "s_add_u32 s72, s72, 5120"))
        return L

    def g2_raw_stage(self):
        a = self.a
        T = self.G2_T
        a("s_mov_b32 s67, 52429")
        a("s_movk_i32 s68, 1280")
        for i in range(5):
            a("v_add_u32 v121, %d, v%d" % (64 * i, T))
            a("v_mul_lo_u32 v122, v121, s67")
            a("v_lshrrev_b32 v122, 19, v122")
            a("v_mul_u32_u24 v123, 10, v122")
            a("v_sub_u32 v123, v121, v123")
            a("v_mul_lo_u32 v122, v122, s68")
            a("v_lshl_add_u32 v%d, v123, 4, v122" % (116 + i))
        a("v_lshrrev_b32 v121, 4, v%d" % T)
        a("v_and_b32 v122, 15, v%d" % T)
        a("v_lshrrev_b32 v122, 2, v122")
        a("v_lshl_add_u32 v121, v121, 2, v122")
        a("v_mul_u32_u24 v121, 160, v121")
        a("v_and_b32 v122, 3, v%d" % T)
        a("v_lshl_add_u32 v245, v122, 4, v121")
        a("v_lshl_add_u32 v253, v122, 3, v121")
        a("s_mul_i32 s67, s3, %d" % (9 if "ks921" in self.ph else 12))
        a("s_add_u32 s67, s67, 4")
        a("s_mul_i32 s67, s67, %d" % (32 * 1280))
        a("s_mul_i32 s68, s7, 160")
        a("s_add_u32 s67, s67, s68")
        for tau in range(1, 4):
            for i in range(5):
                a("s_add_u32 m0, s%d, %d" % (72 + tau, 1024 * i))
                a("s_nop 0")
                a("buffer_load_dwordx4 v%d, s[28:31], s67 offen lds" % (116 + i))
            if tau < 3: a("s_add_u32 s67, s67, %d" % (32 * 1280))

    def g2_raw_reads(self, k, S):
        L = [("v_add_u32 v241, s%d, v245" % (72 + k - 3), "v_add_u32 v244, s%d, v253" % (72 + k - 3))]
        for dt in range(5):
            for h in range(2):
                if dt < 4: ad, off = 241, 64 * (dt >> 1) + 8 * (dt & 1) + 2560 * h
                else: ad, off = 244, 128 + 2560 * h
                L.append("ds_read_b64_tr_b16 v[%d:%d], v%d offset:%d" % (S + 16 + 4 * dt + 2 * h, S + 17 + 4 * dt + 2 * h, ad, off))
        return L

    def g2_burst_atoms(self):
        VL = self.G2_VL
        regl = []
        for k in range(4): regl += self.g2_loadsA(self.G2_SETS[k])
        dmal = []
        for tau in range(1, 4):
            dmal.append(("s_mov_b32 m0, s%d" % (72 + tau), "s_nop 0",
                         "buffer_load_dwordx4 v%d, s[20:23], s71 offen sc1 lds" % VL))
            for dt in range(1, 4):
                dmal.append("buffer_load_dwordx4 v%d, s[20:23], s71 offen offset:%d sc1 lds" % (VL, 1024 * dt))
            dmal.append(("s_add_u32 m0, s%d, 4096" % (72 + tau), "s_add_u32 s71, s71, 5120",
                         "buffer_load_dwordx4 v%d, s[20:23], s72 offen sc1 lds" % VL, "s_add_u32 s72, s72, 5120"))
        return regl, dmal

    def g_gemm2(self):
        a = self.a
        ACC = 0
        SETS = self.G2_SETS
        VB, VL, VB8, T, VRS = self.G2_VB, self.G2_VL, self.G2_VB8, self.G2_T, self.G2_VRS
        acc = lambda dt, tau: ACC + (dt * 4 + tau) * 4
        epb = "epb" in self.ph and "g1" in self.ph
        if not epb: self.g2_setup()
        loadsA = self.g2_loadsA
        def loadsB(S, k):
            L = []
            for tau in range(4):
                if k % 3 == 1:
                    x = ("buffer_load_dwordx2 v[%d:%d], v%d, s[20:23], s70 offen sc1" % (S + 4 * tau, S + 4 * tau + 1, VB8 + tau),
                         "buffer_load_dwordx2 v[%d:%d], v%d, s[20:23], s70 offen offset:512 sc1" % (S + 4 * tau + 2, S + 4 * tau + 3, VB8 + tau))
                else:
                    x = ("buffer_load_dwordx4 v[%d:%d], v%d, s[20:23], s70 offen sc1" % (S + 4 * tau, S + 4 * tau + 3, VB + tau),)
                L.append(x if tau < 3 else x + ("s_add_u32 s70, s70, 4096",))
            return L
        nB = lambda k: 8 if k % 3 == 1 else 4
        def mm(S, first):
            L = []
            for dt in range(5):
                for tau in range(4):
                    c = "0" if first else "v[%d:%d]" % (acc(dt, tau), acc(dt, tau) + 3)
                    L.append("v_mfma_f32_16x16x32_bf16 v[%d:%d], v[%d:%d], v[%d:%d], %s" % (acc(dt, tau), acc(dt, tau) + 3, S + 16 + 4 * dt, S + 19 + 4 * dt, S + 4 * tau, S + 4 * tau + 3, c))
            return L
        NS = 12
        pre = "g1" in self.ph and "nopre" not in self.ph
        VLOOK = 254
        if epb:
            if self.fused(): self.nonce_read(232)
            self.g_signal_h(0)
            if self.fused():
                a("s_lshr_b32 s79, s6, 1")
                a("s_lshl_b32 s79, s79, 7")
                a("s_lshl_b32 s67, s3, 4")
                a("s_add_u32 s79, s79, s67")
                a("s_add_u32 s79, s79, %d" % WS_FH)
                self.poll_line("s79", 4, VLOOK, sleep=3)
        elif "g1" in self.ph:
            if self.fused():
                self.nonce_read(232)
                a("v_mov_b32 v%d, 0" % VLOOK)
                l = self.newlab("lk"); l2 = self.newlab("lk")
                a("s_cmp_lg_u32 s3, 0")
                a("s_cbranch_scc1 %s" % l)
                a("s_lshl_b32 s79, s7, 8")
                a("s_add_u32 s79, s79, %d" % WS_FW)
                self.look_line("s79", 48, VLOOK)
                a("s_waitcnt vmcnt(1)")
                a("s_branch %s" % l2)
                a.lab(l)
                a("s_waitcnt vmcnt(0)")
                a.lab(l2)
                self.g_signal_h(None)
            else:
                self.g_signal_h(0)
        raw = "rawlds" in self.ph and pre and not epb
        if raw:
            if self.fused(): self.lds_spin(LDS_SFREE, 232, 4)
            self.g2_raw_stage()
        if pre and not epb:
            if self.fused():
                lo = self.newlab("ww"); ld = self.newlab("wd")
                a("s_cmp_lg_u32 s3, 0")
                a("s_cbranch_scc1 %s" % lo)
                self.lds_spin(LDS_SFREE, 232, 4)
                self.lds_spin(LDS_UOK, 232, 3)
                if "gapstamps" in self.ph: self.stamp(2, force=True)
                self.check_line("s79", VLOOK, 0)
                if "gapstamps" in self.ph: self.stamp(3, force=True)
                a("v_mov_b32 v232, %d" % LDS_WOK)
                a("v_mov_b32 v233, 1")
                a("ds_write_b32 v232, v233")
                if "hall" in self.ph:
                    a("s_lshr_b32 s79, s6, 1")
                    a("s_lshl_b32 s79, s79, 7")
                    a("s_add_u32 s79, s79, %d" % WS_FH)
                    self.look_line("s79", 16, VLOOK)
                a("s_branch %s" % ld)
                a.lab(lo)
                self.lds_spin(LDS_WOK, 232)
                a.lab(ld)
                if "hall" not in self.ph:
                    a("s_lshr_b32 s79, s6, 1")
                    a("s_lshl_b32 s79, s79, 7")
                    a("s_lshl_b32 s67, s3, 4")
                    a("s_add_u32 s79, s79, s67")
                    a("s_add_u32 s79, s79, %d" % WS_FH)
                    self.look_line("s79", 4, VLOOK)
            if "gapstamps" in self.ph: self.stamp(4, force=True)
            self.jitter()
            regl, dmal = self.g2_burst_atoms()
            a.ext(flat(regl))
            if raw:
                a("s_add_u32 s71, s71, %d" % (3 * 5120))
                a("s_add_u32 s72, s72, %d" % (3 * 5120))
            else:
                a.ext(flat(dmal))
            if "gapstamps" in self.ph: self.stamp(5, force=True)
        fintrim = "fintrim" in self.ph
        if fintrim: self.g2_final_addrs()
        if not epb: self.g2_wait_inputs(looked=pre)
        if "gapstamps" in self.ph: self.stamp(6, force=True)
        self.jitter()
        self.stamp(5)
        self.clk(5)
        def srcA(k):
            if not pre: return "g"
            return "pre" if k < 4 else ("lds" if k < 7 else "g")
        def loadA_any(k):
            S = SETS[k % 4]
            if srcA(k) == "g": return loadsA(S)
            if srcA(k) == "lds":
                if raw: return self.g2_raw_reads(k, S)
                return ["ds_read_b128 v[%d:%d], v%d offset:%d" % (S + 16 + 4 * dt, S + 19 + 4 * dt, VRS + k - 4, 1024 * dt) for dt in range(5)]
            return []
        nL = lambda k: nB(k) + (5 if srcA(k) == "g" else 0)
        deep = "deepB" in self.ph and pre
        def M(S, dt, tau, first):
            c = "0" if first else "v[%d:%d]" % (acc(dt, tau), acc(dt, tau) + 3)
            return "v_mfma_f32_16x16x32_bf16 v[%d:%d], v[%d:%d], v[%d:%d], %s" % (acc(dt, tau), acc(dt, tau) + 3, S + 16 + 4 * dt, S + 19 + 4 * dt, S + 4 * tau, S + 4 * tau + 3, c)
        W = lambda dt, tau: "ds_write_b128 v%d, v[%d:%d] offset:%d" % (VRS + tau - 1, acc(dt, tau), acc(dt, tau) + 3, 1024 * dt)
        gk = 7 if "gok7" in self.ph else (6 if "gok6" in self.ph else NS - 4)
        def kloop(NS, gk):
            vm = []
            def nvm(atoms): return sum(1 for x in flat(atoms) if x.startswith("buffer_"))
            def issue(tag, atoms): vm.extend([tag] * nvm(atoms))
            for k in range(4):
                L = loadsB(SETS[k], k); a.ext(flat(L)); issue(("B", k), L)
            for k in range(NS):
                S = SETS[k % 4]
                need = [i for i, t in enumerate(vm) if t in (("B", k), ("A", k))]
                rem = len(vm) - 1 - max(need)
                if srcA(k) == "lds": a("s_waitcnt vmcnt(%d) lgkmcnt(0)" % rem)
                else: a("s_waitcnt vmcnt(%d)" % rem)
                if "gapstamps" in self.ph and k == 0: self.stamp(7, force=True)
                LA = loadA_any(k + 3) if k + 3 < NS else []
                LB = loadsB(S, k + 4) if k + 4 < NS else []
                if k == NS - 1 and fintrim:
                    for dt in range(5): a(M(S, dt, 1, False))
                    for dt in range(5): a(M(S, dt, 2, False))
                    for dt in range(5): a(M(S, dt, 3, False)); a(W(dt, 1))
                    for dt in range(5): a(M(S, dt, 0, False)); a(W(dt, 2))
                    for dt in range(5): a(W(dt, 3))
                else:
                    ai = 0
                    for tau in range(4):
                        for dt in range(5):
                            a(M(S, dt, tau, k == 0))
                            if dt in (1, 3) and ai < len(LA):
                                a.ext(flat([LA[ai]]));
                                if nvm([LA[ai]]): issue(("A", k + 3), [LA[ai]])
                                ai += 1
                        if LB: a.ext(flat([LB[tau]])); issue(("B", k + 4), [LB[tau]])
                    while ai < len(LA):
                        a.ext(flat([LA[ai]]))
                        if nvm([LA[ai]]): issue(("A", k + 3), [LA[ai]])
                        ai += 1
                if k == gk and self.fused(): self.lds_inc(LDS_GOK, 232)
        if deep and "ks921" in self.ph:
            l21 = self.newlab("k21"); ldn = self.newlab("kdn")
            a("s_cmp_eq_u32 s3, 3")
            a("s_cbranch_scc1 %s" % l21)
            kloop(9, 3)
            a("s_branch %s" % ldn)
            a.lab(l21)
            kloop(21, 15)
            a.lab(ldn)
        elif deep:
            kloop(NS, gk)
        else:
            for k in range(3):
                a.ext(flat(loadsB(SETS[k], k) + loadA_any(k)))
            for k in range(NS):
                rem = sum(nL(j) for j in range(k + 1, min(NS - 1, k + 2) + 1))
                if srcA(k) == "lds": a("s_waitcnt vmcnt(%d) lgkmcnt(0)" % rem)
                else: a("s_waitcnt vmcnt(%d)" % rem)
                fill = (loadsB(SETS[(k + 3) % 4], k + 3) + loadA_any(k + 3)) if k + 3 < NS else []
                if "k2stamps" in self.ph and k < 9: self.stamp(k + 1, force=True)
                if k == NS - 1 and fintrim:
                    S = SETS[k % 4]
                    for dt in range(5): a(M(S, dt, 1, False))
                    for dt in range(5): a(M(S, dt, 2, False))
                    for dt in range(5): a(M(S, dt, 3, False)); a(W(dt, 1))
                    for dt in range(5): a(M(S, dt, 0, False)); a(W(dt, 2))
                    for dt in range(5): a(W(dt, 3))
                else:
                    a.ext(interleave(mm(SETS[k % 4], k == 0), fill))
                if k == gk and self.fused(): self.lds_inc(LDS_GOK, 232)
        self.stamp(6)
        self.clk(7)
        if not fintrim:
            a("s_nop 7")
            for tau in range(1, 4):
                for dt in range(5):
                    a("ds_write_b128 v%d, v[%d:%d] offset:%d" % (VRS + tau - 1, acc(dt, tau), acc(dt, tau) + 3, 1024 * dt))
        a("s_waitcnt lgkmcnt(0)")
        self.jitter()
        a("s_barrier")
        self.stamp(7)
        if not fintrim: self.g2_final_addrs()
        R = 80
        for j in range(3):
            for dt in range(5):
                r = R + (j * 5 + dt) * 4
                a("ds_read_b128 v[%d:%d], v%d offset:%d" % (r, r + 3, T + 1, 5120 * j + 1024 * dt))
        Y = 140
        for dt in range(5):
            if dt < 4: a("ds_read_b64_tr_b16 v[%d:%d], v%d offset:%d" % (Y + 2 * dt, Y + 2 * dt + 1, T + 5, 128 * (32 * (dt >> 1) + 4 * (dt & 1))))
            else: a("ds_read_b64_tr_b16 v[%d:%d], v%d offset:%d" % (Y + 2 * dt, Y + 2 * dt + 1, T + 6, 128 * 64))
        a("ds_read_b32 v%d, v%d" % (T + 8, T + 8))
        a("s_waitcnt lgkmcnt(0)")
        for dt in range(5):
            for h in range(2):
                x = acc(dt, 0) + 2 * h
                p = [R + (j * 5 + dt) * 4 + 2 * h for j in range(3)]
                a("v_pk_add_f32 v[%d:%d], v[%d:%d], v[%d:%d]" % (p[0], p[0] + 1, p[0], p[0] + 1, p[1], p[1] + 1))
                a("v_pk_add_f32 v[%d:%d], v[%d:%d], v[%d:%d]" % (x, x + 1, x, x + 1, p[2], p[2] + 1))
        for dt in range(5):
            for h in range(2):
                x = acc(dt, 0) + 2 * h
                p = R + dt * 4 + 2 * h
                a("v_pk_add_f32 v[%d:%d], v[%d:%d], v[%d:%d]" % (x, x + 1, x, x + 1, p, p + 1))
        U = 150
        for dt in range(5):
            for h in range(2):
                a("v_lshlrev_b32 v%d, 16, v%d" % (U + 4 * dt + 2 * h, Y + 2 * dt + h))
                a("v_and_b32 v%d, 0xffff0000, v%d" % (U + 4 * dt + 2 * h + 1, Y + 2 * dt + h))
        G2 = T + 12
        assert G2 % 2 == 0
        a("v_mov_b32 v%d, v%d" % (G2, T + 8))
        a("v_mov_b32 v%d, v%d" % (G2 + 1, T + 8))
        for dt in range(5):
            for h in range(2):
                x = acc(dt, 0) + 2 * h; u = U + 4 * dt + 2 * h
                a("v_pk_add_f32 v[%d:%d], v[%d:%d], v[%d:%d] neg_lo:[0,1] neg_hi:[0,1]" % (u, u + 1, u, u + 1, x, x + 1))
        for dt in range(5):
            for h in range(2):
                x = acc(dt, 0) + 2 * h; u = U + 4 * dt + 2 * h
                a("v_pk_fma_f32 v[%d:%d], v[%d:%d], v[%d:%d], v[%d:%d]" % (x, x + 1, u, u + 1, G2, G2 + 1, x, x + 1))
        O = 176
        for dt in range(5):
            for h in range(2):
                x = acc(dt, 0) + 2 * h
                a("v_cvt_pk_bf16_f32 v%d, v%d, v%d" % (O + 2 * dt + h, x, x + 1))
        fl = " sc1" if "outsc1" in self.ph else (" nt" if "outnt" in self.ph else "")
        a("buffer_store_dwordx4 v[%d:%d], v%d, s[24:27], 0 offen%s" % (O, O + 3, T + 9, fl))
        a("buffer_store_dwordx4 v[%d:%d], v%d, s[24:27], 0 offen offset:64%s" % (O + 4, O + 7, T + 9, fl))
        a("buffer_store_dwordx2 v[%d:%d], v%d, s[24:27], 0 offen offset:128%s" % (O + 8, O + 9, T + 10, fl))
        self.stamp(8)

    def g2_wait_inputs(self, looked=False):
        if not self.fused(): return
        a = self.a
        T = 232
        if looked and "hall" not in self.ph:
            self.check_line("s79", 254, 20 if "rawlds" in self.ph else 35, sleep=4)
            return
        lo = self.newlab("hw"); ld = self.newlab("hd")
        a("s_cmp_lg_u32 s3, 0")
        a("s_cbranch_scc1 %s" % lo)
        if looked:
            self.check_line("s79", 254, 20 if "rawlds" in self.ph else 35)
        else:
            a("s_lshr_b32 s78, s6, 1")
            a("s_lshl_b32 s78, s78, 7")
            a("s_add_u32 s78, s78, %d" % WS_FH)
            self.poll_line("s78", 16, T, sleep=4)
        a("v_mov_b32 v%d, %d" % (T, LDS_HOK))
        a("v_mov_b32 v%d, 1" % (T + 1))
        a("ds_write_b32 v%d, v%d" % (T, T + 1))
        a("s_branch %s" % ld)
        a.lab(lo)
        self.lds_spin(LDS_HOK, T)
        a.lab(ld)

    def s_final(self):
        a = self.a
        n = self.name
        l = self.newlab("fin")
        a("s_cmp_lg_u32 s3, 7")
        a("s_cbranch_scc1 %s" % l)
        if self.fused(): self.lds_spin(LDS_GOK, 2, 4)
        self.jitter()
        self.y_wait_inputs()
        a("v_mbcnt_lo_u32_b32 v0, -1, 0")
        a("v_mbcnt_hi_u32_b32 v0, -1, v0")
        a("v_lshrrev_b32 v1, 3, v0")
        a("v_mul_u32_u24 v1, %d, v1" % ROWS)
        a("v_and_b32 v2, 7, v0")
        a("v_lshl_add_u32 v1, v2, 4, v1")
        a("s_mul_i32 s67, s7, %d" % (80 * ROWS))
        a("s_lshl_b32 s68, s6, 7")
        a("s_add_u32 s67, s67, s68")
        a("s_add_u32 s67, s67, %d" % WS_Y)
        for i in range(10):
            a("buffer_load_dwordx4 v[%d:%d], v1, s[20:23], s67 offen sc1" % (8 + 4 * i, 11 + 4 * i))
            if i < 9: a("s_add_u32 s67, s67, %d" % (8 * ROWS))
        a("s_lshl_b32 s67, s6, 8")
        a("s_add_u32 s67, s67, %d" % WS_G)
        a("v_lshlrev_b32 v3, 2, v0")
        a("buffer_load_dword v4, v3, s[20:23], s67 offen sc1")
        if self.fused() and "nonearly" not in self.ph: self.nonce_look()
        a("v_lshlrev_b32 v2, 4, v0")
        a("v_add_u32 v2, %d, v2" % LDS_YT)
        a("v_add_u32 v3, %d, v3" % LDS_GT)
        a("s_waitcnt vmcnt(0)")
        for i in range(10):
            a("ds_write_b128 v2, v[%d:%d] offset:%d" % (8 + 4 * i, 11 + 4 * i, 1024 * i))
        a("ds_write_b32 v3, v4")
        a("s_waitcnt lgkmcnt(0)")
        a("s_barrier")
        if self.fused() and "nonearly" not in self.ph: self.nonce_update(looked=True)
        a("s_branch %s_fd" % l)
        a.lab(l)
        a("s_barrier")
        a.lab("%s_fd" % l)

    def y_wait_inputs(self):
        if not self.fused(): return
        a = self.a
        a("v_mbcnt_lo_u32_b32 v0, -1, 0")
        a("v_mbcnt_hi_u32_b32 v0, -1, v0")
        a("s_mul_i32 s67, s7, 320")
        a("s_add_u32 s67, s67, %d" % WS_FY)
        a("v_lshl_add_u32 v1, v0, 2, s67")
        a("v_add_u32 v2, 256, v1")
        a("s_lshl_b32 s68, s6, 5")
        a("s_add_u32 s68, s68, %d" % (WS_FG - 64))
        a("v_lshl_add_u32 v3, v0, 2, s68")
        a("v_cmp_le_u32 vcc, 16, v0")
        a("s_nop 1")
        a("v_cndmask_b32 v2, v2, v3, vcc")
        a("v_subrev_u32 v3, 24, v0")
        a("v_lshlrev_b32 v3, 10, v3")
        a("s_lshl_b32 s68, s2, 2")
        a("s_add_u32 s68, s68, %d" % WS_FY)
        a("v_add_u32 v3, s68, v3")
        a("v_cmp_le_u32 vcc, 24, v0")
        a("s_nop 1")
        a("v_cndmask_b32 v2, v2, v3, vcc")
        a("s_cmp_lt_u32 s2, 128")
        a("s_cselect_b32 s68, 27, 26")
        a("v_mov_b32 v3, s67")
        a("v_cmp_le_u32 vcc, s68, v0")
        a("s_nop 1")
        a("v_cndmask_b32 v2, v2, v3, vcc")
        def loads():
            a("buffer_load_dword v4, v1, s[20:23], 0 offen sc1")
            a("buffer_load_dword v5, v2, s[20:23], 0 offen sc1")
        self.poll(loads, [4, 5], 6, sleep=8)

    def fused(self): return "fused" in self.ph

    def nonce_load(self):
        a = self.a
        if "snonce" in self.ph:
            a("s_add_u32 s68, s%d, %d" % (P_WS, WS_NON))
            a("s_addc_u32 s69, s%d, 0" % (P_WS + 1))
            a("s_load_dword s55, s[68:69], 0")
            return
        a("v_mov_b32 v1, 0")
        a("s_mov_b32 s67, %d" % WS_NON)
        a("buffer_load_dword v242, v1, s[20:23], s67 offen sc1")
    def nonce_publish_local(self):
        a = self.a
        if "snonce" in self.ph:
            a("s_waitcnt lgkmcnt(0)")
            a("s_add_u32 s64, s55, 1")
            a("v_mov_b32 v242, s64")
            a("v_mov_b32 v1, %d" % LDS_NONCE)
            a("ds_write_b32 v1, v242")
            return
        a("v_add_u32 v242, 1, v242")
        a("v_mov_b32 v1, %d" % LDS_NONCE)
        a("ds_write_b32 v1, v242")
        a("v_readfirstlane_b32 s64, v242")
    def nonce_look(self):
        a = self.a
        l = self.newlab("nl")
        a("v_mov_b32 v59, 0")
        a("s_cmp_lg_u32 s2, 0")
        a("s_cbranch_scc1 %s" % l)
        a("v_lshlrev_b32 v59, 4, v0")
        a("s_mov_b32 s78, %d" % WS_FG)
        a("buffer_load_dwordx4 v[60:63], v59, s[20:23], s78 offen sc1")
        a.lab(l)
    def nonce_update(self, looked=False):
        a = self.a
        l = self.newlab("nu"); l2 = self.newlab("nu")
        a("s_cmp_lg_u32 s2, 0")
        a("s_cbranch_scc1 %s" % l)
        if looked:
            for i in range(4):
                if i == 0: a("v_cmp_eq_u32 vcc, s64, v60")
                else:
                    a("v_cmp_eq_u32 s[76:77], s64, v%d" % (60 + i))
                    a("s_nop 1")
                    a("s_and_b64 vcc, vcc, s[76:77]")
            a("s_nop 1")
            a("s_cmp_eq_u64 vcc, -1")
            a("s_cbranch_scc1 %s" % l2)
        a("v_mbcnt_lo_u32_b32 v2, -1, 0")
        a("v_mbcnt_hi_u32_b32 v2, -1, v2")
        a("v_lshlrev_b32 v2, 4, v2")
        a("s_mov_b32 s78, %d" % WS_FG)
        self.poll(lambda: a("buffer_load_dwordx4 v[4:7], v2, s[20:23], s78 offen sc1"), [4, 5, 6, 7], 2, sleep=8)
        a.lab(l2)
        a("s_mov_b32 s69, %d" % WS_NON)
        self.flag_set("s69", 2)
        a.lab(l)

    def nonce_read(self, vt):
        a = self.a
        a("v_mov_b32 v%d, %d" % (vt, LDS_NONCE))
        a("ds_read_b32 v%d, v%d" % (vt, vt))
        a("s_waitcnt lgkmcnt(0)")
        a("v_readfirstlane_b32 s64, v%d" % vt)
        a("s_nop 1")

    def flag_set(self, soff_reg, vt):
        a = self.a
        a("v_mov_b32 v%d, s64" % vt)
        a("v_mov_b32 v%d, 0" % (vt + 1))
        a("s_mov_b64 exec, 1")
        a("buffer_store_dword v%d, v%d, s[20:23], %s offen sc1" % (vt, vt + 1, soff_reg))
        a("s_mov_b64 exec, -1")

    def poll(self, loads, vregs, vt, sleep=8):
        a = self.a
        lp = self.newlab("pl"); ld = self.newlab("pd")
        a("s_mov_b32 s69, 0")
        a.lab(lp)
        loads()
        a("s_waitcnt vmcnt(0)")
        for i, r in enumerate(vregs):
            if i == 0: a("v_cmp_eq_u32 vcc, s64, v%d" % r)
            else:
                a("v_cmp_eq_u32 s[76:77], s64, v%d" % r)
                a("s_nop 1")
                a("s_and_b64 vcc, vcc, s[76:77]")
        a("s_nop 1")
        a("s_cmp_eq_u64 vcc, -1")
        a("s_cbranch_scc1 %s" % ld)
        a("s_add_u32 s69, s69, 1")
        a("s_cmp_lt_u32 s69, 0x40000")
        a("s_cbranch_scc0 %s" % ld)
        a("s_sleep %d" % sleep)
        a("s_branch %s" % lp)
        a.lab(ld)

    def look_line(self, soff, nflags, vt):
        a = self.a
        a("v_mbcnt_lo_u32_b32 v%d, -1, 0" % vt)
        a("v_mbcnt_hi_u32_b32 v%d, -1, v%d" % (vt, vt))
        a("v_cmp_gt_u32 vcc, %d, v%d" % (nflags, vt))
        a("v_lshlrev_b32 v%d, 2, v%d" % (vt, vt))
        a("s_nop 0")
        a("v_cndmask_b32 v%d, 0, v%d, vcc" % (vt, vt))
        a("buffer_load_dword v%d, v%d, s[20:23], %s offen sc1" % (vt + 1, vt, soff))

    def check_line(self, soff, vt, nyounger, sleep=2):
        a = self.a
        l = self.newlab("ck")
        a("s_waitcnt vmcnt(%d)" % nyounger)
        a("v_cmp_eq_u32 vcc, s64, v%d" % (vt + 1))
        a("s_nop 1")
        a("s_cmp_eq_u64 vcc, -1")
        a("s_cbranch_scc1 %s" % l)
        self.poll(lambda: a("buffer_load_dword v%d, v%d, s[20:23], %s offen sc1" % (vt + 1, vt, soff)), [vt + 1], vt, sleep)
        a.lab(l)

    def poll_line(self, soff, nflags, vt, sleep=8):
        a = self.a
        a("v_mbcnt_lo_u32_b32 v%d, -1, 0" % vt)
        a("v_mbcnt_hi_u32_b32 v%d, -1, v%d" % (vt, vt))
        a("v_cmp_gt_u32 vcc, %d, v%d" % (nflags, vt))
        a("v_lshlrev_b32 v%d, 2, v%d" % (vt, vt))
        a("s_nop 0")
        a("v_cndmask_b32 v%d, 0, v%d, vcc" % (vt, vt))
        self.poll(lambda: a("buffer_load_dword v%d, v%d, s[20:23], %s offen sc1" % (vt + 1, vt, soff)), [vt + 1], vt, sleep)

    def build(self):
        a = self.a
        n = self.name
        a.l.append(".globl %s" % n)
        a.l.append(".p2align 8")
        a.l.append(".type %s,@function" % n)
        a.l.append("%s:" % n)
        self.prologue()
        self.jitter()
        a("s_cmp_ge_u32 s3, 4")
        a("s_cbranch_scc1 %s_S" % n)
        if "g1" in self.ph:
            self.g_gemm1()
        if "g2" in self.ph:
            self.g_gemm2()
        self.dbgtime_end()
        self.stamp_flush()
        a("s_endpgm")
        a.lab("%s_S" % n)
        if "g1" in self.ph:
            self.s_phase1()
        if "ssm" in self.ph:
            self.s_ssm()
        if "g2" in self.ph:
            self.s_final()
        self.stamp_flush()
        a.lab("%s_end" % n)
        a("s_endpgm")
        return a.text()

def kd(name):
    return """.amdhsa_kernel %s
  .amdhsa_next_free_vgpr 256
  .amdhsa_next_free_sgpr 102
  .amdhsa_accum_offset 256
  .amdhsa_group_segment_fixed_size 0
  .amdhsa_kernarg_size 136
  .amdhsa_user_sgpr_count 2
  .amdhsa_user_sgpr_kernarg_segment_ptr 1
  .amdhsa_system_sgpr_workgroup_id_x 1
.end_amdhsa_kernel
""" % name

HEADER = open("gated_mix__ssm_conv_s4__swiglu_ffn__prompt.s.ref").read().split("; Override launch")[0]

DOC = """;
;     by buffer_load ... lds, k order rotated per workgroup); epilogue h = silu(g) * u -> bf16, stored as MFMA B fragments in d_ws.
;     values = r + 16 j patterns, so exp factors into two small power tables (complex recurrences) contracted over the 192 modes
"""

def emit(kernels, path):
    txt = HEADER
    if len(kernels) == 1:
        txt += "; @launch grid=(256,1,1) block=(512,1,1) lds=%d\n" % LDS_TOTAL
    else:
        for (n, p, s) in kernels:
            txt += "; @launch kernel=%s grid=(256,1,1) block=(512,1,1) lds=%d\n" % (n, LDS_TOTAL)
    txt += DOC
    txt += '.amdgcn_target "amdgcn-amd-amdhsa--gfx950"\n.text\n'
    for (n, p, s) in kernels:
        txt += Gen(n, p, s).build()
    txt += '.section .rodata,"a"\n'
    for (n, p, s) in kernels:
        txt += ".p2align 6\n" + kd(n)
    open(path, "w").write(txt)

if __name__ == "__main__":
    mode = sys.argv[1]; path = sys.argv[2]
    stamps = len(sys.argv) > 3 and sys.argv[3] == "stamps"
    if mode.startswith("g1+") or mode == "g1":
        emit([(KNAME, set(mode.split("+")), stamps)], path)
    elif mode == "g1,ssm":
        emit([("ka_kernel", {"g1"}, False), ("kb_kernel", {"ssm", "dumpk"}, stamps)], path)
    elif mode == "3k":
        emit([("ka_kernel", {"g1"}, False), ("kb_kernel", {"ssm"}, False), ("kc_kernel", {"g2"}, stamps)], path)
    elif mode == "3k+1":
        emit([("ka_kernel", {"g1"}, False), ("kb_kernel", {"ssm"}, False), ("kc_kernel", {"g2"}, stamps), ("kd_kernel", set(), False)], path)
    elif mode == "3k+3":
        emit([("ka_kernel", {"g1"}, False), ("kb_kernel", {"ssm"}, False), ("kc_kernel", {"g2"}, stamps), ("kd_kernel", set(), False), ("ke_kernel", set(), False), ("kf_kernel", set(), False)], path)
    elif mode == "3k_dbg":
        emit([("ka_kernel", {"g1", "dbgtime"}, False), ("kb_kernel", {"ssm"}, False), ("kc_kernel", {"g2", "dbgtime"}, False)], path)
    elif mode == "fused":
        emit([(KNAME, {"g1", "ssm", "g2", "fused"}, stamps)], path)
    elif mode == "fused_notouch":
        emit([(KNAME, {"g1", "ssm", "g2", "fused", "notouch"}, stamps)], path)
    elif mode == "fused_pk":
        emit([(KNAME, {"g1", "ssm", "g2", "fused", "pkhead"}, stamps)], path)
    elif mode.startswith("F:"):
        emit([(KNAME, {"g1", "ssm", "g2", "fused"} | set(mode[2:].split("+")), stamps)], path)
    elif mode == "fused_dbg":
        emit([(KNAME, {"g1", "ssm", "g2", "fused", "dbgtime"}, stamps)], path)
    elif mode == "g1,ssm,nodump":
        emit([("ka_kernel", {"g1"}, False), ("kb_kernel", {"ssm"}, stamps)], path)
```

```python
import sys, math

KNAME = "gated_mix__ssm_conv_s4__swiglu_ffn__prompt_kernel"

WS_H    = 0x000000
WS_WD   = 0x600000
ROWS    = 4224
WS_UT   = 0x800000
WS_Y    = 0xB00000
WS_G    = 0xE00000
WS_FU   = 0xE10000
WS_FW   = 0xE15000
WS_FH   = 0xE11000
WS_FY   = 0xE12000
WS_NON  = 0xE13000
WS_FG   = 0xE14000
WS_TS   = 0xF00000
WS_DBG  = 0x1000000

STAGE   = 40960
ST_WG   = 16384
ST_WU   = 28672
LDS_S   = 3 * STAGE
TABROW  = 272
TABTILE = 16 * TABROW
TAB_SZ  = 2 * TABTILE
LDS_TAB = LDS_S
KR_SZ   = 4224
LDS_KR  = LDS_TAB + 3 * TAB_SZ
LDS_MISC = LDS_KR + 3 * KR_SZ
LDS_TOTAL = 163840
LDS_NONCE = LDS_MISC
LDS_CNT   = LDS_MISC + 8
UC_STRIDE = 4640
UC_SZ   = 4 * UC_STRIDE
LDS_UC  = 0
LDS_WDS_EARLY = 148992
LDS_RED = 57344
LDS_YT  = LDS_TAB
LDS_GT  = LDS_MISC + 64
LDS_HOK = LDS_MISC + 12
LDS_WOK = LDS_MISC + 16
LDS_UOK = LDS_MISC + 20
LDS_GOK = LDS_MISC + 24
LDS_UCOK = LDS_MISC + 28
LDS_SFREE = LDS_MISC + 32

class Asm:
    def __init__(self):
        self.l = []
    def __call__(self, s):
        for x in s.split("\n"):
            x = x.strip()
            if x: self.l.append("    " + x)
    def lab(self, s):
        self.l.append(s + ":")
    def ext(self, lst):
        for x in lst: self(x)
    def text(self):
        return "\n".join(self.l) + "\n"

def interleave(main, fill, start=0, span=None):
    out = []
    m = len(fill)
    n = len(main) if span is None else min(len(main), start + span)
    j = 0
    for i, x in enumerate(main):
        out.append(x)
        if i >= start:
            tgt = (m * (i - start + 1) + (n - start) - 1) // (n - start) if n > start else m
            while j < min(tgt, m):
                f = fill[j]
                if isinstance(f, tuple): out.extend(f)
                else: out.append(f)
                j += 1
    while j < m:
        f = fill[j]
        if isinstance(f, tuple): out.extend(f)
        else: out.append(f)
        j += 1
    return out

def flat(L):
    o = []
    for x in L:
        if isinstance(x, tuple): o.extend(x)
        else: o.append(x)
    return o

def vr(a, n=1):
    return "v%d" % a if n == 1 else "v[%d:%d]" % (a, a + n - 1)
def sr(a, n=1):
    return "s%d" % a if n == 1 else "s[%d:%d]" % (a, a + n - 1)

S_W, S_WAVE, S_M, S_N, S_M2, S_N2 = 2, 3, 4, 5, 6, 7
SRD_X, SRD_WG, SRD_WU, SRD_WS, SRD_OUT, SRD_WD = 8, 12, 16, 20, 24, 28
P_U, P_ARE, P_AIM, P_BRE, P_BIM, P_CRE, P_CIM, P_LDT = 32, 34, 36, 38, 40, 42, 44, 46
P_DSK, P_BX, P_WG, P_WU, P_WD, P_GW, P_OUT, P_DBG, P_WS = 48, 50, 52, 54, 56, 58, 60, 62, 64
S_TS = 80

class Gen:
    def __init__(self, name, phases, stamps=False):
        self.name = name
        self.ph = phases
        self.a = Asm()
        self.stamps = stamps
        self.nlab = 0
    def newlab(self, p):
        self.nlab += 1
        return "L_%s_%s_%d" % (self.name[:6], p, self.nlab)

    def capture(self, fn):
        old = self.a
        self.a = Asm()
        fn()
        lst = [x.strip() for x in self.a.l]
        self.a = old
        return lst

    def jitter(self):
        if "jitter" not in self.ph: return
        a = self.a
        l = self.newlab("jt"); d = self.newlab("jd")
        a("s_memtime s[90:91]")
        a("s_waitcnt lgkmcnt(0)")
        a("s_mul_i32 s90, s90, 0x9e3779b1")
        a("s_lshr_b32 s90, s90, 25")
        a("s_cmp_ge_u32 s90, 64")
        a("s_cbranch_scc1 %s" % d)
        a.lab(l)
        a("s_cmp_eq_u32 s90, 0")
        a("s_cbranch_scc1 %s" % d)
        a("s_sleep 2")
        a("s_sub_u32 s90, s90, 1")
        a("s_branch %s" % l)
        a.lab(d)

    def clk(self, i):
        if "clk" in self.ph and self.stamps:
            self.a("s_memrealtime s[%d:%d]" % (S_TS + 2 * i, S_TS + 2 * i + 1))
            self.a("s_memtime s[%d:%d]" % (S_TS + 2 * i + 2, S_TS + 2 * i + 3))
            self.a("s_waitcnt lgkmcnt(0)")

    def stamp(self, i, force=False):
        if "clk" in self.ph and i != 0: return
        if ("kstamps" in self.ph or "k2stamps" in self.ph or "ststamps" in self.ph or "gapstamps" in self.ph) and not force and i != 0: return
        if self.stamps:
            self.a("%s s[%d:%d]" % ("s_memrealtime" if "rt" in self.ph else "s_memtime", S_TS + 2 * i, S_TS + 2 * i + 1))
            self.a("s_waitcnt lgkmcnt(0)")
    def stamp_flush(self):
        if not self.stamps: return
        a = self.a
        a("s_lshl_b32 s66, s2, 3")
        a("s_add_u32 s66, s66, s3")
        a("s_lshl_b32 s66, s66, 7")
        a("s_add_u32 s66, s66, 0x%x" % WS_TS)
        a("v_mov_b32 v250, 0")
        for i in range(10):
            a("v_mov_b32 v252, s%d" % (S_TS + 2 * i))
            a("v_mov_b32 v253, s%d" % (S_TS + 2 * i + 1))
            a("buffer_store_dwordx2 v[252:253], v250, s[20:23], s66 offen offset:%d" % (8 * i))
            a("s_nop 1")
        a("s_waitcnt vmcnt(0)")

    def prologue(self):
        a = self.a
        a("s_cmp_ge_u32 s2, 256")
        a("s_cbranch_scc1 %s_end" % self.name)
        a("s_load_dwordx16 s[32:47], s[0:1], 0")
        a("s_load_dwordx16 s[48:63], s[0:1], 64")
        a("s_load_dwordx2 s[64:65], s[0:1], 128")
        if "warmc0" in self.ph: self.warm_code(early=True)
        a("v_lshrrev_b32 v1, 6, v0")
        a("v_and_b32 v0, 63, v0")
        a("v_readfirstlane_b32 s3, v1")
        a("s_and_b32 s66, s2, 7")
        a("s_lshr_b32 s67, s2, 3")
        a("s_and_b32 s68, s67, 7")
        a("s_lshr_b32 s69, s67, 3")
        a("s_and_b32 s70, s66, 1")
        a("s_lshl_b32 s70, s70, 3")
        a("s_or_b32 s4, s70, s68")
        a("s_lshr_b32 s70, s66, 1")
        a("s_lshl_b32 s70, s70, 2")
        a("s_or_b32 s5, s70, s69")
        a("s_and_b32 s70, s66, 3")
        a("s_lshl_b32 s70, s70, 3")
        a("s_or_b32 s6, s70, s68")
        a("s_lshr_b32 s70, s66, 2")
        a("s_lshl_b32 s70, s70, 2")
        a("s_or_b32 s7, s70, s69")
        if "sametile" in self.ph:
            a("s_mov_b32 s4, 0"); a("s_mov_b32 s5, 0")
        if "samem" in self.ph:
            a("s_mov_b32 s4, 0")
        if "samen" in self.ph:
            a("s_mov_b32 s5, 0")
        if self.stamps:
            for i in range(10):
                a("s_mov_b64 s[%d:%d], 0" % (S_TS + 2 * i, S_TS + 2 * i + 1))
        if "earlyg" not in self.ph: self.srds()

    def srds(self, which=None):
        a = self.a
        if which != 1: a("s_waitcnt lgkmcnt(0)")
        def srd(base, ptr, size):
            a("s_mov_b32 s%d, s%d" % (base, ptr))
            a("s_and_b32 s%d, s%d, 0xffff" % (base + 1, ptr + 1))
            a("s_mov_b32 s%d, 0x%x" % (base + 2, size))
            a("s_mov_b32 s%d, 0x20000" % (base + 3))
        if which != 1:
            srd(SRD_X, P_U, 2048 * 640 * 2)
            srd(SRD_WG, P_WG, 640 * 1536 * 2)
            srd(SRD_WU, P_WU, 640 * 1536 * 2)
        if which != 0:
            srd(SRD_WS, P_WS, 0x10000000)
            srd(SRD_OUT, P_OUT, 2048 * 640 * 2)
            srd(SRD_WD, P_WD, 640 * 1536 * 2)
        if which == 1: return
        self.stamp(0)
        if "dbgtime" in self.ph:
            a("s_memrealtime s[96:97]")
            a("s_memtime s[98:99]")
            a("s_mov_b64 s[100:101], s[62:63]")
            a("s_waitcnt lgkmcnt(0)")

    def dbgtime_end(self):
        a = self.a
        if "dbgtime" not in self.ph: return
        l = self.newlab("dbt")
        a("s_cmp_lg_u32 s2, 0"); a("s_cbranch_scc1 %s" % l)
        a("s_cmp_lg_u32 s3, 0"); a("s_cbranch_scc1 %s" % l)
        a("s_waitcnt vmcnt(0)")
        a("s_memrealtime s[92:93]")
        a("s_memtime s[94:95]")
        a("s_waitcnt lgkmcnt(0)")
        a("s_sub_u32 s92, s92, s96")
        a("s_sub_u32 s94, s94, s98")
        a("v_mov_b32 v250, 0")
        a("v_mov_b32 v252, s92")
        a("v_mov_b32 v253, s94")
        a("v_mov_b32 v254, s96")
        a("v_mov_b32 v255, 0x1234")
        a("global_store_dwordx4 v250, v[252:255], s[100:101]")
        a("s_waitcnt vmcnt(0)")
        a.lab(l)

    def rot_r(self, dst, tmp):
        a = self.a
        if "norot" in self.ph:
            a("s_mov_b32 %s, 0" % dst)
            return
        a("s_lshr_b32 %s, s5, 1" % dst)
        a("s_cmp_ge_u32 %s, 5" % dst)
        a("s_cselect_b32 %s, 1, 0" % tmp)
        a("s_cmp_ge_u32 %s, 1" % dst)
        a("s_addc_u32 %s, %s, %s" % (dst, dst, tmp))

    def g_gemm1(self):
        a = self.a
        ACC = 0; FP = 96; FQ = 136
        VXB = 176
        VWA = 182
        VL16 = 196
        T = 200
        accg = lambda ft, tt: ACC + (ft * 4 + tt) * 4
        accu = lambda ft, tt: ACC + 48 + (ft * 4 + tt) * 4
        LANE = 197
        a("v_mov_b32 v%d, v0" % LANE)
        a("s_and_b32 s67, s3, 1")
        a("s_lshr_b32 s68, s3, 1")
        VOX = 191
        a("v_lshrrev_b32 v%d, 3, v%d" % (T, LANE))
        a("s_lshl_b32 s69, s4, 7")
        a("s_lshl_b32 s70, s3, 5")
        a("s_add_u32 s69, s69, s70")
        a("v_add_u32 v%d, s69, v%d" % (T, T))
        a("s_movk_i32 s70, 1280")
        a("v_mul_lo_u32 v%d, v%d, s70" % (T, T))
        a("v_and_b32 v%d, 7, v%d" % (T + 1, LANE))
        a("v_lshrrev_b32 v%d, 4, v%d" % (T + 2, LANE))
        a("v_xor_b32 v%d, v%d, v%d" % (T + 3, T + 1, T + 2))
        a("v_xor_b32 v%d, 4, v%d" % (T + 4, T + 3))
        a("v_lshl_add_u32 v%d, v%d, 4, v%d" % (VOX, T + 3, T))
        a("v_lshl_add_u32 v%d, v%d, 4, v%d" % (VOX + 1, T + 4, T))
        a("s_lshl_b32 s75, s3, 12")
        VOW = 193
        a("s_mul_i32 s76, s3, 3072")
        a("s_add_u32 s77, s76, %d" % ST_WU)
        a("s_add_u32 s76, s76, %d" % ST_WG)
        self.rot_r("s74", "s72")
        def xdma(st):
            base = (st % 3) * STAGE
            L = []
            for i in range(4):
                if i == 0:
                    L.append(("s_lshl_b32 s72, s74, 7", "s_mul_i32 s73, s74, 196608", "s_add_u32 s74, s74, 1",
                              "s_add_u32 m0, s75, %d" % base, "s_cmp_eq_u32 s74, 10", "s_cselect_b32 s74, 0, s74",
                              "buffer_load_dwordx4 v%d, s[8:11], s72 offen lds" % VOX))
                else:
                    L.append(("s_add_u32 s70, s72, %d" % (9216 * i),
                              "buffer_load_dwordx4 v%d, s[8:11], s70 offen offset:%d lds" % (VOX + (i & 1), 1024 * i)))
            for mat, sm, srd in (() if "s3w" in self.ph else ((0, 76, "s[12:15]"), (1, 77, "s[16:19]"))):
                for i in range(3):
                    ld = "buffer_load_dwordx4 v%d, %s, s73 offen offset:%d lds" % (VOW + i, srd, 1024 * i)
                    if mat == 1 and "nowu" in self.ph: ld = "s_nop 0"
                    if i == 2 and "now2" in self.ph: ld = "s_nop 0"
                    if i == 0: L.append(("s_add_u32 m0, s%d, %d" % (sm, base), "s_nop 0", ld))
                    else: L.append(ld)
            return L
        if "ststamps" in self.ph: self.stamp(1, force=True)
        def wcalc():
            a("s_lshl_b32 s69, s3, 4")
            a("s_mul_i32 s69, s69, 3072")
            a("s_mul_i32 s70, s5, 192")
            a("s_add_u32 s69, s69, s70")
            a("s_mov_b32 s70, 43691")
            a("s_movk_i32 s71, 3072")
            for i in range(3):
                a("v_add_u32 v%d, %d, v%d" % (T, 64 * i, LANE))
                a("v_mul_lo_u32 v%d, v%d, s70" % (T + 1, T))
                a("v_lshrrev_b32 v%d, 19, v%d" % (T + 1, T + 1))
                a("v_mul_u32_u24 v%d, 12, v%d" % (T + 2, T + 1))
                a("v_sub_u32 v%d, v%d, v%d" % (T + 2, T, T + 2))
                a("v_lshrrev_b32 v%d, 2, v%d" % (T + 3, T + 1))
                a("v_and_b32 v%d, 2, v%d" % (T + 3, T + 3))
                a("v_xor_b32 v%d, v%d, v%d" % (T + 2, T + 2, T + 3))
                a("v_mul_lo_u32 v%d, v%d, s71" % (T + 1, T + 1))
                a("v_lshl_add_u32 v%d, v%d, 4, v%d" % (T + 1, T + 2, T + 1))
                a("v_add_u32 v%d, s69, v%d" % (T + 1, T + 1))
                a("v_subrev_u32 v%d, %d, v%d" % (VOW + i, 1024 * i, T + 1))

        d0 = xdma(0)
        if "earlyg" in self.ph:
            wcalc()
            self.srds(0)
            a.ext(flat(d0))
        else:
            a.ext(flat(d0[:4]))
            wcalc()
            a.ext(flat(d0[4:]))
        if "late1" not in self.ph: a.ext(flat(xdma(1)))
        if "earlyg" in self.ph: self.srds(1)
        if "ststamps" in self.ph: self.stamp(2, force=True)
        if "nobpre" not in self.ph: a("s_barrier")
        a("v_and_b32 v%d, 15, v%d" % (T, LANE))
        a("v_lshrrev_b32 v%d, 4, v%d" % (T + 1, LANE))
        a("s_lshl_b32 s69, s67, 6")
        a("v_add_u32 v%d, s69, v%d" % (T + 2, T))
        a("v_lshlrev_b32 v%d, 7, v%d" % (T + 2, T + 2))
        a("v_lshrrev_b32 v%d, 1, v%d" % (T + 3, T))
        a("v_and_b32 v%d, 7, v%d" % (T + 3, T + 3))
        a("v_xor_b32 v%d, v%d, v%d" % (T + 3, T + 3, T + 1))
        a("v_xor_b32 v%d, 4, v%d" % (T + 4, T + 3))
        a("v_lshl_add_u32 v%d, v%d, 4, v%d" % (VXB, T + 3, T + 2))
        a("v_lshl_add_u32 v%d, v%d, 4, v%d" % (VXB + 1, T + 4, T + 2))
        for st in (1, 2):
            for s in range(2):
                a("v_add_u32 v%d, %d, v%d" % (VXB + 2 * st + s, st * STAGE, VXB + s))
        a("v_lshrrev_b32 v%d, 2, v%d" % (T + 2, T))
        a("v_lshl_add_u32 v%d, v%d, 3, v%d" % (T + 2, T + 1, T + 2))
        a("v_mul_u32_u24 v%d, 192, v%d" % (T + 2, T + 2))
        a("v_and_b32 v%d, 3, v%d" % (T + 3, LANE))
        a("v_lshl_add_u32 v%d, v%d, 3, v%d" % (T + 2, T + 3, T + 2))
        a("v_add_u32 v%d, %d, v%d" % (T + 2, ST_WG, T + 2))
        a("v_and_b32 v%d, 1, v%d" % (T + 3, T + 1))
        a("s_lshl_b32 s69, s68, 2")
        a("s_add_u32 s78, s69, 1")
        a("s_add_u32 s79, s68, 2")
        for ft, sreg in ((0, 69), (1, 78), (2, 79)):
            a("v_xor_b32 v%d, s%d, v%d" % (T + 4, sreg, T + 3))
            a("v_lshl_add_u32 v%d, v%d, 5, v%d" % (VWA + ft, T + 4, T + 2))
        for st in (1, 2):
            for ft in range(3):
                a("v_add_u32 v%d, %d, v%d" % (VWA + 3 * st + ft, st * STAGE, VWA + ft))
        a("v_lshlrev_b32 v%d, 4, v%d" % (VL16, LANE))
        a("s_lshl_b32 s69, s4, 1")
        a("s_add_u32 s69, s69, s67")
        a("s_mul_i32 s69, s69, 48")
        a("s_mul_i32 s78, s5, 3")
        a("s_add_u32 s69, s69, s78")
        a("s_lshl_b32 s78, s68, 1")
        a("s_add_u32 s78, s78, s69")
        a("s_lshl_b32 s78, s78, 12")
        a("s_add_u32 s79, s69, 1")
        a("s_lshl_b32 s79, s79, 12")
        a("s_lshl_b32 s69, s68, 9")
        a("s_add_u32 s79, s79, s69")
        a("v_lshlrev_b32 v%d, 3, v%d" % (VL16 + 2, LANE))
        if WS_H:
            a("s_add_u32 s78, s78, %d" % WS_H); a("s_add_u32 s79, s79, %d" % WS_H)

        def reads(kk, s, F):
            st = kk % 3
            xs = ["ds_read_b128 v[%d:%d], v%d offset:%d" % (F + 4 * tt, F + 4 * tt + 3, VXB + 2 * st + s, 2048 * tt) for tt in range(4)]
            ws = []
            for mat in range(2):
                for ft in range(3):
                    r = F + 16 + (mat * 3 + ft) * 4
                    for h in range(2):
                        ws.append("ds_read_b64_tr_b16 v[%d:%d], v%d offset:%d" % (r + 2 * h, r + 2 * h + 1, VWA + 3 * st + ft, 12288 * mat + 6144 * s + 768 * h))
            order = [xs[0], ws[0], ws[1], xs[1], ws[6], ws[7], xs[2], xs[3]] + ws[2:6] + ws[8:]
            return order
        def mfmas(F, first):
            L = []
            for ft in range(3):
                for mat in range(2):
                    for tt in range(4):
                        acc = accg(ft, tt) if mat == 0 else accu(ft, tt)
                        A = F + 16 + (mat * 3 + ft) * 4
                        B = F + 4 * tt
                        c = "0" if first else "v[%d:%d]" % (acc, acc + 3)
                        L.append("v_mfma_f32_16x16x32_bf16 v[%d:%d], v[%d:%d], v[%d:%d], %s" % (acc, acc + 3, A, A + 3, B, B + 3, c))
            return L
        def spread(mm, d, first, step):
            out = []; cnt = 0; di = 0
            for x in mm:
                out.append(x)
                if x.startswith("v_mfma"):
                    cnt += 1
                    if cnt >= first and (cnt - first) % step == 0 and di < len(d):
                        f = d[di]; di += 1
                        out.extend(f if isinstance(f, tuple) else (f,))
            assert di == len(d), (di, len(d))
            return out
        self.stamp(5)
        ND = 4 if "s3w" in self.ph else (7 if "nowu" in self.ph else (8 if "now2" in self.ph else 10))
        a("s_waitcnt vmcnt(%d)" % (0 if "late1" in self.ph else ND))
        if "ststamps" in self.ph: self.stamp(3, force=True)
        a("s_barrier")
        if "ststamps" in self.ph: self.stamp(4, force=True)
        if "late1" in self.ph: a.ext(flat(xdma(1)))
        self.stamp(1)
        self.clk(1)
        a.ext(reads(0, 0, FP))
        a("s_waitcnt lgkmcnt(0)")
        pend = xdma(2)
        for kk in range(10):
            mm = interleave(mfmas(FP, kk == 0), reads(kk, 1, FQ), span=16)
            if pend: mm = spread(mm, pend, 2, (10 if len(pend) <= 2 else 5) if len(pend) <= 5 else 2)
            a.ext(mm)
            if kk <= 7: a("s_waitcnt vmcnt(%d) lgkmcnt(0)" % ND)
            elif kk == 8: a("s_waitcnt vmcnt(0) lgkmcnt(0)")
            else: a("s_waitcnt lgkmcnt(0)")
            if kk == 9 and self.fused(): self.lds_inc(LDS_SFREE, T)
            else: a("s_barrier")
            if "kstamps" in self.ph and kk < 9: self.stamp(kk + 1, force=True)
            if "ststamps" in self.ph and kk < 5: self.stamp(kk + 5, force=True)
            fill = reads(kk + 1, 0, FP) if kk + 1 < 10 else []
            mm = interleave(mfmas(FQ, False), fill, span=16)
            d = xdma(kk + 3) if kk + 3 < 10 else []
            if "dmaB" in self.ph:
                pend = []
                if d: mm = spread(mm, d, 2, 2)
            elif "dma73" in self.ph:
                pend = d[7:]
                if d: mm = spread(mm, d[:7], 2, 3)
            elif "s3w" in self.ph:
                pend = d[2:]
                if d: mm = spread(mm, d[:2], 4, 10)
            else:
                pend = d[5:]
                if d: mm = spread(mm, d[:5], 2, 5)
            a.ext(mm)
            if kk + 1 < 10:
                a("s_waitcnt lgkmcnt(0)")
        self.stamp(2)
        self.clk(3)
        self.jitter()
        epb = "epb" in self.ph and "g2" in self.ph
        if epb: CN, ONE, OUTB, TMPB, TMPS = 200, 202, 116, 152, 8
        else: CN, ONE, OUTB, TMPB, TMPS = FP, FP + 2, FP + 8, FQ, 16
        E = []
        E.append("v_mov_b32 v%d, 0xbfb8aa3b" % CN)
        E.append("v_mov_b32 v%d, 0xbfb8aa3b" % (CN + 1))
        E.append("v_mov_b32 v%d, 1.0" % ONE)
        E.append("v_mov_b32 v%d, 1.0" % (ONE + 1))
        grp = 0
        def silu(gregs, uregs, tmp, out):
            n = len(gregs)
            L = []
            for i in range(n): L.append("v_pk_mul_f32 v[%d:%d], v[%d:%d], v[%d:%d]" % (tmp + 2 * i, tmp + 2 * i + 1, gregs[i], gregs[i] + 1, CN, CN + 1))
            for i in range(2 * n): L.append("v_exp_f32 v%d, v%d" % (tmp + i, tmp + i))
            for i in range(n): L.append("v_pk_mul_f32 v[%d:%d], v[%d:%d], v[%d:%d]" % (gregs[i], gregs[i] + 1, gregs[i], gregs[i] + 1, uregs[i], uregs[i] + 1))
            for i in range(n): L.append("v_pk_add_f32 v[%d:%d], v[%d:%d], v[%d:%d]" % (tmp + 2 * i, tmp + 2 * i + 1, tmp + 2 * i, tmp + 2 * i + 1, ONE, ONE + 1))
            for i in range(2 * n): L.append("v_rcp_f32 v%d, v%d" % (tmp + i, tmp + i))
            if n < 2: L.append("s_nop 0")
            for i in range(n): L.append("v_pk_mul_f32 v[%d:%d], v[%d:%d], v[%d:%d]" % (gregs[i], gregs[i] + 1, gregs[i], gregs[i] + 1, tmp + 2 * i, tmp + 2 * i + 1))
            for i in range(n): L.append("v_cvt_pk_bf16_f32 v%d, v%d, v%d" % (out + i, gregs[i], gregs[i] + 1))
            return L
        for tt in range(4):
            tmp = TMPB + (grp % 2) * TMPS; out = OUTB + (grp % 4) * 4; grp += 1
            g = [accg(0, tt), accg(0, tt) + 2, accg(1, tt), accg(1, tt) + 2]
            u = [accu(0, tt), accu(0, tt) + 2, accu(1, tt), accu(1, tt) + 2]
            E += silu(g, u, tmp, out)
            E.append("buffer_store_dwordx4 v[%d:%d], v%d, s[20:23], s78 offen offset:%d sc1" % (out, out + 3, VL16, 1024 * tt))
            tmp = TMPB + (grp % 2) * TMPS; out = OUTB + (grp % 4) * 4; grp += 1
            g = [accg(2, tt), accg(2, tt) + 2]
            u = [accu(2, tt), accu(2, tt) + 2]
            E += silu(g, u, tmp, out)
            E.append("buffer_store_dwordx2 v[%d:%d], v%d, s[20:23], s79 offen offset:%d sc1" % (out, out + 1, VL16 + 2, 1024 * tt))
        if epb:
            self.g2_setup()
            if self.fused(): self.lds_spin(LDS_WOK, 232, treg="s80x")
            regl, dmal = self.g2_burst_atoms()
            half = len(E) // 2
            a.ext(interleave(E[:half], regl, start=4))
            if self.fused(): self.lds_spin(LDS_SFREE, 232, 4, treg="s80x")
            a.ext(interleave(E[half:], dmal))
        else:
            a.ext(E)
        self.stamp(3)
        if "g2" not in self.ph:
            a("s_waitcnt vmcnt(0)")
            self.stamp(4)

    def g_signal_h(self, nyounger):
        a = self.a
        self.jitter()
        T = 232
        if nyounger is not None: a("s_waitcnt vmcnt(%d)" % nyounger)
        if self.fused():
            l = self.newlab("fh")
            a("v_mov_b32 v%d, %d" % (T, LDS_CNT))
            a("v_mov_b32 v%d, 1" % (T + 1))
            a("s_mov_b64 exec, 1")
            a("ds_add_rtn_u32 v%d, v%d, v%d" % (T + 2, T, T + 1))
            a("s_waitcnt lgkmcnt(0)")
            a("s_mov_b64 exec, -1")
            a("v_readfirstlane_b32 s69, v%d" % (T + 2))
            a("s_nop 1")
            a("s_cmp_lg_u32 s69, 3")
            a("s_cbranch_scc1 %s" % l)
            a("s_lshl_b32 s69, s4, 5")
            a("s_add_u32 s69, s69, s5")
            a("s_lshl_b32 s69, s69, 2")
            a("s_add_u32 s69, s69, %d" % WS_FH)
            self.flag_set("s69", T)
            a.lab(l)
        self.stamp(4)
        if "gapstamps" in self.ph: self.stamp(1, force=True)

    def lds_inc(self, addr, vt):
        a = self.a
        a("v_mov_b32 v%d, %d" % (vt, addr))
        a("v_mov_b32 v%d, 1" % (vt + 1))
        a("s_mov_b64 exec, 1")
        a("ds_add_u32 v%d, v%d" % (vt, vt + 1))
        a("s_mov_b64 exec, -1")

    def lds_spin(self, addr, vt, val=1, treg=None):
        a = self.a
        st = "s78" if treg is None else "s68"
        lp = self.newlab("ls"); ld = self.newlab("ld")
        a("v_mov_b32 v%d, %d" % (vt, addr))
        a("s_mov_b32 s69, 0")
        a.lab(lp)
        a("ds_read_b32 v%d, v%d" % (vt + 1, vt))
        a("s_waitcnt lgkmcnt(0)")
        a("v_readfirstlane_b32 %s, v%d" % (st, vt + 1))
        a("s_nop 1")
        a("s_cmp_eq_u32 %s, %d" % (st, val))
        a("s_cbranch_scc1 %s" % ld)
        a("s_add_u32 s69, s69, 1")
        a("s_cmp_lt_u32 s69, 0x400000")
        a("s_cbranch_scc0 %s" % ld)
        a("s_sleep 1")
        a("s_branch %s" % lp)
        a.lab(ld)

    def s_kgen_phase1(self):
        a = self.a
        NCH = 8
        chunks = [[] for _ in range(NCH)]
        if "ssm" in self.ph:
            a("s_lshl_b32 s50, s66, 8")
            a("s_add_u32 s50, s50, s2")
            a("s_min_u32 s50, s50, 639")
            self.kgen_bases()
            if "kghead" in self.ph:
                kg = self.capture(lambda: self.kgen("head"))
                if "bigI0" in self.ph:
                    first = min(len(kg), 140 if "I0s" in self.ph else 230)
                    rest = kg[first:]
                    per = (len(rest) + NCH - 1) // NCH
                    chunk0 = kg[:first]
                    chunks = [rest[i * per:(i + 1) * per] for i in range(NCH)]
                else:
                    per = (len(kg) + NCH - 1) // NCH
                    chunks = [kg[i * per:(i + 1) * per] for i in range(NCH)]
        self.stamp(5)
        if "prioS" in self.ph: a("s_setprio 2")
        if "nobpre" not in self.ph: a("s_barrier")
        pw = "pwarm" in self.ph
        if "ssm" in self.ph and pw: self.ssm_param_warm()
        if "ssm" in self.ph and "kghead" in self.ph and not pw: self.ssm_param_loads(slots=((0, 1) if "kg2" in self.ph else (0,)))
        if "ssm" in self.ph and "pw12" in self.ph:
            a("s_mul_i32 s67, s50, 384")
            for p in (P_ARE, P_AIM, P_BRE, P_BIM, P_CRE, P_CIM):
                a("s_add_u32 s68, s%d, s67" % p)
                a("s_addc_u32 s69, s%d, 0" % (p + 1))
                a("s_load_dword s70, s[68:69], 128")
                a("s_load_dword s70, s[68:69], 256")
        a("s_barrier")
        if "ssm" in self.ph and pw:
            a("s_waitcnt lgkmcnt(0)")
            self.ssm_param_loads()
        self.stamp(1)
        if "bigI0" in self.ph and "kghead" in self.ph:
            a("s_waitcnt vmcnt(0)")
            a.ext(chunk0)
        for kk in range(10):
            if not (kk == 9 and self.fused()): a("s_barrier")
            if kk == 1 and "kghead" in self.ph and "bigI0" not in self.ph: a("s_waitcnt vmcnt(0)")
            if kk == 7 and "ssm" in self.ph and not pw:
                if "kghead" in self.ph: self.ssm_param_loads(slots=((2,) if "kg2" in self.ph else (1, 2)), scalars=False)
                else: self.ssm_param_loads()
            if "bigI0" in self.ph:
                if kk < NCH: a.ext(chunks[kk])
            elif 1 <= kk <= NCH: a.ext(chunks[kk - 1])
        self.stamp(2)

    def side_setup(self):
        a = self.a
        a("s_mov_b32 s67, 52429")
        a("s_movk_i32 s68, 1280")
        for i in range(5):
            a("v_add_u32 v1, %d, v0" % (64 * i))
            a("v_mul_lo_u32 v2, v1, s67")
            a("v_lshrrev_b32 v2, 19, v2")
            a("v_mul_u32_u24 v3, 10, v2")
            a("v_sub_u32 v3, v1, v3")
            a("v_mul_lo_u32 v2, v2, s68")
            a("v_lshl_add_u32 v%d, v3, 4, v2" % (230 + i))
        a("v_lshrrev_b32 v1, 4, v0")
        a("v_and_b32 v2, 15, v0")
        a("v_lshrrev_b32 v3, 2, v2")
        a("v_lshl_add_u32 v4, v1, 2, v3")
        a("v_mul_u32_u24 v4, 160, v4")
        a("v_add_u32 v4, %d, v4" % (STAGE if "wdlate" in self.ph else LDS_WDS_EARLY))
        a("v_and_b32 v5, 3, v0")
        a("v_lshl_add_u32 v235, v5, 4, v4")
        a("v_lshl_add_u32 v236, v5, 3, v4")
        a("v_lshlrev_b32 v237, 4, v0")
        a("v_lshlrev_b32 v241, 2, v0")
        a("v_lshl_add_u32 v4, v1, 3, v3")
        a("v_lshlrev_b32 v4, 7, v4")
        a("v_bfe_u32 v5, v0, 1, 1")
        a("v_lshrrev_b32 v6, 1, v3")
        a("v_xor_b32 v5, v5, v6")
        a("v_lshl_add_u32 v4, v5, 4, v4")
        a("v_and_b32 v5, 1, v0")
        a("v_lshl_add_u32 v4, v5, 3, v4")
        a("v_and_b32 v5, 1, v1")
        a("v_lshl_add_u32 v238, v5, 6, v4")
        a("v_xor_b32 v5, 1, v5")
        a("v_lshl_add_u32 v239, v5, 6, v4")
        a("v_mul_u32_u24 v240, %d, v2" % ROWS)
        a("v_lshl_add_u32 v240, v1, 4, v240")
        if "earlys3" in self.ph: self.srds()
        a("s_add_u32 s51, s2, 128")
        a("s_cmp_ge_u32 s2, 128")
        a("s_cselect_b32 s51, s51, 999")
        a("s_lshr_b32 s52, s5, 1")
        a("s_add_u32 s53, s52, 8")
        a("s_cmp_lt_u32 s5, 4")
        a("s_cselect_b32 s53, s53, 99")
    def wd_load(self, ureg, scr):
        a = self.a
        if "nowd" in self.ph: return
        a("s_lshr_b32 s67, %s, 3" % ureg)
        a("s_and_b32 s68, %s, 7" % ureg)
        a("s_mul_i32 s69, s67, %d" % (32 * 1280))
        a("s_mul_i32 s67, s68, 160")
        a("s_add_u32 s69, s69, s67")
        for i in range(5):
            a("s_mov_b32 m0, %d" % ((STAGE if "wdlate" in self.ph else LDS_WDS_EARLY) + scr + 1024 * i))
            a("s_nop 0")
            a("buffer_load_dwordx4 v%d, s[28:31], s69 offen lds" % (230 + i))
    def wd_store(self, ureg, scr, R=160):
        a = self.a
        if "nowd" in self.ph: return
        for dt in range(5):
            for h in range(2):
                if dt < 4: ad, off = 235, 64 * (dt >> 1) + 8 * (dt & 1) + 2560 * h
                else: ad, off = 236, 128 + 2560 * h
                a("ds_read_b64_tr_b16 v[%d:%d], v%d offset:%d" % (R + 4 * dt + 2 * h, R + 1 + 4 * dt + 2 * h, ad, off + scr))
        a("s_lshr_b32 s67, %s, 3" % ureg)
        a("s_and_b32 s68, %s, 7" % ureg)
        a("s_mul_i32 s68, s68, 48")
        a("s_add_u32 s67, s67, s68")
        a("s_mul_i32 s67, s67, 5120")
        a("s_add_u32 s67, s67, %d" % WS_WD)
        a("s_add_u32 s68, s67, 4096")
        a("s_waitcnt lgkmcnt(0)")
        for dt in range(5):
            if dt < 4: a("buffer_store_dwordx4 v[%d:%d], v237, s[20:23], s67 offen offset:%d sc1" % (R + 4 * dt, R + 3 + 4 * dt, 1024 * dt))
            else: a("buffer_store_dwordx4 v[%d:%d], v237, s[20:23], s68 offen sc1" % (R + 4 * dt, R + 3 + 4 * dt))
    def gate_load(self):
        a = self.a
        a("v_and_b32 v1, 15, v0")
        a("v_lshlrev_b32 v1, 4, v1")
        for j in range(5):
            a("global_load_dwordx4 v[%d:%d], v1, s[%d:%d] offset:%d" % (8 + 4 * j, 11 + 4 * j, P_GW, P_GW + 1, 256 * j))
        a("v_lshrrev_b32 v2, 4, v0")
        a("s_movk_i32 s67, 1280")
        a("v_mul_lo_u32 v2, v2, s67")
        a("v_add_u32 v2, v2, v1")
        a("s_lshl_b32 s67, s2, 3")
        a("s_mul_i32 s67, s67, 1280")
        for half in range(2):
            for j in range(5):
                r = 28 + 20 * half + 4 * j
                a("buffer_load_dwordx4 v[%d:%d], v2, s[8:11], s67 offen offset:%d" % (r, r + 3, 256 * j))
            if half == 0: a("s_add_u32 s67, s67, %d" % (4 * 1280))
    def gate_compute(self):
        a = self.a
        R = 68
        for i in range(4): a("v_mov_b32 v%d, 0" % (R + i))
        for j in range(5):
            for e in range(4):
                for half in range(2):
                    acc = R + half + 2 * (e & 1)
                    a("v_dot2_f32_bf16 v%d, v%d, v%d, v%d" % (acc, 28 + 20 * half + 4 * j + e, 8 + 4 * j + e, acc))
        a("s_nop 2")
        a("v_add_f32 v%d, v%d, v%d" % (R, R, R + 2))
        a("v_add_f32 v%d, v%d, v%d" % (R + 1, R + 1, R + 3))
        a("s_nop 0")
        for ctl in ("row_shr:1", "row_shr:2", "row_shr:4", "row_shr:8"):
            for i in range(2):
                a("v_add_f32_dpp v%d, v%d, v%d %s row_mask:0xf bank_mask:0xf bound_ctrl:1" % (R + i, R + i, R + i, ctl))
            a("s_nop 0")
        for i in range(2): a("v_mul_f32 v%d, 0xbfb8aa3b, v%d" % (R + i, R + i))
        for i in range(2): a("v_exp_f32 v%d, v%d" % (R + i, R + i))
        a("s_nop 0")
        for i in range(2): a("v_add_f32 v%d, 1.0, v%d" % (R + i, R + i))
        for i in range(2): a("v_rcp_f32 v%d, v%d" % (R + i, R + i))
        a("s_lshl_b32 s67, s2, 5")
        a("s_add_u32 s67, s67, %d" % WS_G)
        a("v_lshrrev_b32 v1, 4, v0")
        a("v_lshlrev_b32 v1, 2, v1")
        a("s_mov_b32 exec_lo, 0x80008000")
        a("s_mov_b32 exec_hi, 0x80008000")
        a("buffer_store_dword v%d, v1, s[20:23], s67 offen sc1" % R)
        a("buffer_store_dword v%d, v1, s[20:23], s67 offen offset:16 sc1" % (R + 1))
        a("s_mov_b64 exec, -1")
    def ut_read(self, chunk_reg, stage_base, H):
        a = self.a
        if "noutr" in self.ph: return
        a("s_and_b32 s67, %s, 1" % chunk_reg)
        a("s_cmp_eq_u32 s67, 0")
        a("s_cselect_b64 vcc, -1, 0")
        a("s_nop 0")
        a("v_cndmask_b32 v4, v239, v238, vcc")
        a("v_add_u32 v4, %d, v4" % stage_base)
        for aa in range(2):
            for it in range(4):
                for hh in range(2):
                    r = H + (aa * 4 + it) * 4 + 2 * hh
                    a("ds_read_b64_tr_b16 v[%d:%d], v4 offset:%d" % (r, r + 1, 4096 * it + 512 * hh + 32 * (aa ^ hh)))
        a("s_waitcnt lgkmcnt(0)")
    def utx_load(self, chunk_reg):
        a = self.a
        a("v_lshrrev_b32 v4, 2, v0")
        a("v_mul_u32_u24 v4, 1280, v4")
        a("v_and_b32 v5, 3, v0")
        a("v_lshl_add_u32 v4, v5, 4, v4")
        a("s_mul_i32 s67, s4, %d" % (128 * 1280))
        a("s_lshl_b32 s68, %s, 6" % chunk_reg)
        a("s_add_u32 s67, s67, s68")
        for i in range(8):
            a("s_mov_b32 m0, %d" % (LDS_WDS_EARLY + 1024 * i))
            a("s_nop 0")
            a("buffer_load_dwordx4 v4, s[8:11], s67 offen lds")
            if i < 7: a("s_add_u32 s67, s67, %d" % (16 * 1280))
    def utx_read(self, H):
        a = self.a
        a("v_lshrrev_b32 v4, 4, v0")
        a("v_and_b32 v5, 15, v0")
        a("v_lshrrev_b32 v5, 2, v5")
        a("v_lshl_add_u32 v4, v4, 3, v5")
        a("v_lshlrev_b32 v4, 6, v4")
        a("v_and_b32 v5, 3, v0")
        a("v_lshl_add_u32 v4, v5, 3, v4")
        a("v_add_u32 v4, %d, v4" % LDS_WDS_EARLY)
        for aa in range(2):
            for it in range(4):
                for hh in range(2):
                    r = H + (aa * 4 + it) * 4 + 2 * hh
                    a("ds_read_b64_tr_b16 v[%d:%d], v4 offset:%d" % (r, r + 1, 64 * (32 * it + 4 * hh) + 32 * aa))
        a("s_waitcnt lgkmcnt(0)")

    def ut_store(self, chunk_reg, H):
        a = self.a
        if "nout" in self.ph: return
        a("s_mul_i32 s67, %s, %d" % (chunk_reg, 32 * ROWS))
        a("s_lshl_b32 s68, s4, 8")
        a("s_add_u32 s67, s67, s68")
        a("s_add_u32 s67, s67, %d" % WS_UT)
        a("s_add_u32 s68, s67, %d" % (16 * ROWS))
        for aa in range(2):
            for it in range(4):
                r = H + (aa * 4 + it) * 4
                a("buffer_store_dwordx4 v[%d:%d], v240, s[20:23], s%d offen offset:%d sc1" % (r, r + 3, 67 + aa, 64 * it))

    def pretouch(self):
        a = self.a
        a("v_and_b32 v1, 7, v0")
        a("v_lshlrev_b32 v1, 21, v1")
        a("buffer_load_dword v63, v1, s[20:23], 0 offen")
        a("v_and_b32 v1, 1, v0")
        a("v_lshlrev_b32 v1, 21, v1")
        a("buffer_load_dword v63, v1, s[24:27], 0 offen")
    def warm_inputs(self):
        a = self.a
        if "norot" in self.ph:
            a("s_mov_b32 s68, 9363")
            a("v_mul_lo_u32 v1, v0, s68")
            a("v_lshrrev_b32 v1, 16, v1")
            a("v_mul_u32_u24 v2, 7, v1")
            a("v_sub_u32 v2, v0, v2")
            a("v_mul_u32_u24 v1, 1280, v1")
            a("v_lshl_add_u32 v1, v2, 7, v1")
            a("s_mul_i32 s67, s2, 10240")
            a("s_add_u32 s67, s67, 384")
            a("s_mov_b32 exec_hi, 0x00ffffff")
            a("buffer_load_dword v244, v1, s[8:11], s67 offen")
            a("s_mov_b32 exec_hi, 0x000003ff")
            a("v_lshlrev_b32 v1, 7, v0")
            a("s_mul_i32 s67, s2, %d" % (42 * 128))
            a("s_add_u32 s67, s67, %d" % (192 * 3072))
            a("buffer_load_dword v244, v1, s[12:15], s67 offen")
            a("buffer_load_dword v244, v1, s[16:19], s67 offen")
            a("s_mov_b64 exec, -1")
            return
        a("v_lshlrev_b32 v1, 7, v0")
        if "warmx" in self.ph:
            a("s_mul_i32 s67, s2, 10240")
            a("buffer_load_dword v244, v1, s[8:11], s67 offen")
            a("s_add_u32 s68, s67, 8192")
            a("s_mov_b32 exec_hi, 0")
            a("s_mov_b32 exec_lo, 0xffff")
            a("buffer_load_dword v244, v1, s[8:11], s68 offen")
            a("s_mov_b32 exec_lo, -1")
        a("s_mov_b32 exec_hi, 0x0fffffff")
        a("s_mul_i32 s67, s2, 7680")
        a("buffer_load_dword v244, v1, s[12:15], s67 offen")
        a("buffer_load_dword v244, v1, s[16:19], s67 offen")
        if "warm2" in self.ph:
            a("buffer_load_dword v244, v1, s[28:31], s67 offen")
        a("s_mov_b64 exec, -1")
        if "warm2" in self.ph or "warmp" in self.ph:
            a("v_and_b32 v1, 7, v0")
            a("v_lshlrev_b32 v1, 7, v1")
            a("s_mul_i32 s67, s2, 960")
            a("v_add_u32 v1, s67, v1")
            a("v_min_u32 v1, %d, v1" % (245760 - 4))
            a("v_lshrrev_b32 v2, 3, v0")
            a("v_mov_b32 v4, s%d" % P_ARE); a("v_mov_b32 v5, s%d" % (P_ARE + 1))
            for k, p in enumerate((P_AIM, P_BRE, P_BIM, P_CRE, P_CIM)):
                a("v_cmp_eq_u32 vcc, %d, v2" % (k + 1))
                a("v_mov_b32 v6, s%d" % p); a("v_mov_b32 v7, s%d" % (p + 1))
                a("v_cndmask_b32 v4, v4, v6, vcc")
                a("v_cndmask_b32 v5, v5, v7, vcc")
            a("v_add_co_u32 v4, vcc, v4, v1")
            a("s_nop 1")
            a("v_addc_co_u32 v5, vcc, 0, v5, vcc")
            a("global_load_dword v244, v[4:5], off")

    def warm_code(self, early=False):
        a = self.a
        n = self.name
        l = self.newlab("pc"); l2 = self.newlab("pc")
        a("s_getpc_b64 s[68:69]")
        a.lab(l)
        a("s_sub_u32 s68, s68, %s-%s" % (l, n))
        a("s_subb_u32 s69, s69, 0")
        a("s_mov_b32 s67, (%s_end-%s+4095)/4096" % (n, n))
        a("s_lshr_b32 s70, s2, 3")
        a("s_mul_i32 s70, s70, s67")
        a("v_add_u32 v1, s70, v0")
        a("v_lshlrev_b32 v1, 7, v1")
        a("v_min_u32 v1, %s_end-%s, v1" % (n, n))
        a("v_cmp_gt_u32 vcc, s67, v0")
        a("s_and_saveexec_b64 s[70:71], vcc")
        a("s_cbranch_execz %s" % l2)
        a("global_load_dword v244, v1, s[68:69]")
        a.lab(l2)
        a("s_mov_b64 exec, s[70:71]")

    def smem_warm(self, part):
        a = self.a
        if part == 0:
            a("s_mul_i32 s67, s2, 7680")
            a("s_add_u32 s70, s%d, s67" % P_WD)
            a("s_addc_u32 s71, s%d, 0" % (P_WD + 1))
        for r in range(15 * part, 15 * part + 15):
            a("s_load_dword s74, s[70:71], %d" % (r * 128))

    def s3w_setup(self):
        a = self.a
        T = 1; VO = 245
        a("s_mul_i32 s69, s5, 192")
        a("s_mov_b32 s78, 43691")
        a("s_movk_i32 s79, 3072")
        for i in range(3):
            a("v_add_u32 v%d, %d, v0" % (T, 64 * i))
            a("v_mul_lo_u32 v%d, v%d, s78" % (T + 1, T))
            a("v_lshrrev_b32 v%d, 19, v%d" % (T + 1, T + 1))
            a("v_mul_u32_u24 v%d, 12, v%d" % (T + 2, T + 1))
            a("v_sub_u32 v%d, v%d, v%d" % (T + 2, T, T + 2))
            a("v_lshrrev_b32 v%d, 2, v%d" % (T + 3, T + 1))
            a("v_and_b32 v%d, 2, v%d" % (T + 3, T + 3))
            a("v_xor_b32 v%d, v%d, v%d" % (T + 2, T + 2, T + 3))
            a("v_mul_lo_u32 v%d, v%d, s79" % (T + 1, T + 1))
            a("v_lshl_add_u32 v%d, v%d, 4, v%d" % (T + 1, T + 2, T + 1))
            a("v_add_u32 v%d, s69, v%d" % (VO + i, T + 1))
        self.rot_r("s54", "s67")
    def s3w_younger0(self):
        n = 24 + (1 if self.fused() else 0)
        if "wdlate" not in self.ph: n += 5
        return n
    def s3w_dma(self, st):
        a = self.a
        VO = 245
        base = (st % 3) * STAGE
        a("s_mul_i32 s55, s54, 196608")
        a("s_add_u32 s54, s54, 1")
        a("s_cmp_eq_u32 s54, 10")
        a("s_cselect_b32 s54, 0, s54")
        for g4 in range(4):
            if g4: a("s_add_u32 s55, s55, 49152")
            for mat, srd in ((0, "s[12:15]"), (1, "s[16:19]")):
                for i in range(3):
                    a("s_mov_b32 m0, %d" % (base + (ST_WG if mat == 0 else ST_WU) + 3072 * g4 + 1024 * i))
                    a("s_nop 0")
                    a("buffer_load_dwordx4 v%d, %s, s55 offen lds" % (VO + i, srd))

    def s_side(self):
        a = self.a
        if "noside" in self.ph:
            for b in range(11 if self.fused() else 12): a("s_barrier")
            return
        HA, HB = 100, 132
        def cond_b(fn):
            l = self.newlab("wb")
            a("s_cmp_ge_u32 s51, 384")
            a("s_cbranch_scc1 %s" % l)
            fn()
            a.lab(l)
        if "warm0" in self.ph:
            self.warm_inputs()
            if "warmc" in self.ph: self.warm_code()
        s3w = "s3w" in self.ph
        if s3w:
            self.s3w_setup()
            self.s3w_dma(0)
            self.s3w_dma(1)
        self.side_setup()
        norot = "norot" in self.ph
        if norot:
            a("s_mov_b32 s50, s5")
            a("s_add_u32 s53, s5, 16")
            a("s_cmp_lt_u32 s5, 4")
            a("s_cselect_b32 s53, s53, 99")
        else:
            self.rot_r("s50", "s67")
            a("s_and_b32 s68, s5, 1")
            a("s_lshl_b32 s50, s50, 1")
            a("s_add_u32 s50, s50, s68")
            a("s_add_u32 s53, s50, 2")
            a("s_lshr_b32 s67, s5, 1")
            a("s_and_b32 s67, s67, 3")
            a("s_cmp_eq_u32 s67, 0")
            a("s_cselect_b32 s53, s53, 99")
        if self.fused():
            a("v_mov_b32 v1, %d" % LDS_CNT)
            a("v_mov_b32 v2, 0")
            a("v_mov_b32 v3, 0")
            a("ds_write_b64 v1, v[2:3]")
            a("ds_write_b64 v1, v[2:3] offset:8")
            a("ds_write_b64 v1, v[2:3] offset:16")
            a("ds_write_b32 v1, v2 offset:24")
        self.stamp(5)
        if "nobpre" not in self.ph: a("s_barrier")
        if self.fused(): self.nonce_load()
        if self.fused() and "ftouch" in self.ph:
            a("s_min_u32 s67, s2, 191")
            a("s_lshl_b32 s67, s67, 7")
            a("s_add_u32 s67, s67, %d" % WS_FU)
            a("v_mov_b32 v1, 0")
            a("s_mov_b64 exec, 1")
            a("buffer_load_dword v244, v1, s[20:23], s67 offen sc1")
            a("s_mov_b64 exec, -1")
        if norot: self.utx_load("s50")
        wdlate = "wdlate" in self.ph
        wdmid = "wdmid" in self.ph
        if not wdlate and not wdmid:
            self.wd_load("s2", 0)
            cond_b(lambda: self.wd_load("s51", 5120))
        if "warm0" not in self.ph:
            if "warmc" in self.ph: self.warm_code()
            if ("warm" in self.ph or "warm2" in self.ph) and "warmB0" not in self.ph and "warmB1" not in self.ph and not s3w: self.warm_inputs()
        if s3w: a("s_waitcnt vmcnt(%d)" % self.s3w_younger0())
        a("s_barrier")
        if s3w:
            self.s3w_dma(2)
            self.warm_inputs()
        if "warmB0" in self.ph: self.warm_inputs()
        self.stamp(1)
        if norot:
            a("s_waitcnt vmcnt(3)")
            self.utx_read(HA)
            def second():
                self.utx_load("s53")
            l_ = self.newlab("ux")
            a("s_cmp_ge_u32 s53, 20")
            a("s_cbranch_scc1 %s" % l_)
            second()
            a.lab(l_)
        else:
            self.ut_read("s50", 0, HA)
        def uflag(creg):
            a("s_lshl_b32 s69, %s, 5" % creg)
            a("s_add_u32 s69, s69, s4")
            a("s_lshl_b32 s69, s69, 2")
            a("s_add_u32 s69, s69, %d" % WS_FU)
            self.flag_set("s69", 2)
        def n_lt4(fn):
            l = self.newlab("ut")
            a("s_cmp_ge_u32 s53, 20")
            a("s_cbranch_scc1 %s" % l)
            fn()
            a.lab(l)
        def wflag(ureg):
            a("s_and_b32 s68, %s, 7" % ureg)
            a("s_lshl_b32 s68, s68, 8")
            a("s_lshr_b32 s69, %s, 3" % ureg)
            a("s_lshl_b32 s69, s69, 2")
            a("s_add_u32 s69, s69, s68")
            a("s_add_u32 s69, s69, %d" % WS_FW)
            self.flag_set("s69", 2)
        early = "utearly" in self.ph
        epb = "epb" in self.ph
        if early: self.ut_store("s50", HA)
        for kk in range(10):
            if s3w:
                if kk == 0: a("s_waitcnt vmcnt(26)")
                elif kk <= 7: a("s_waitcnt vmcnt(24)")
                elif kk == 8: a("s_waitcnt vmcnt(%d)" % (6 if (wdlate and self.fused()) else 0))
            if not (kk == 9 and self.fused()): a("s_barrier")
            if s3w and kk + 3 < 10 and kk not in (0, 1): self.s3w_dma(kk + 3)
            if kk == 0:
                if "warmB1" in self.ph: self.warm_inputs()
                if norot:
                    def rd2():
                        a("s_waitcnt vmcnt(0)")
                        self.utx_read(HB)
                    n_lt4(rd2)
                else:
                    n_lt4(lambda: self.ut_read("s53", 1 * STAGE, HB))
                if early: n_lt4(lambda: self.ut_store("s53", HB))
                if epb:
                    a("s_waitcnt vmcnt(%d)" % (8 if early else 0))
                    self.wd_store("s2", 0)
                    cond_b(lambda: self.wd_store("s51", 5120, 180))
            if kk == 1:
                if not early:
                    self.ut_store("s50", HA)
                    n_lt4(lambda: self.ut_store("s53", HB))
            if s3w and kk in (0, 1): self.s3w_dma(kk + 3)
            if kk == 3:
                a("s_waitcnt vmcnt(%d)" % (48 if s3w else 0))
                if self.fused():
                    self.nonce_publish_local()
                    if "uflate" not in self.ph:
                        uflag("s50")
                        n_lt4(lambda: uflag("s53"))
                    if epb:
                        wflag("s2")
                        cond_b(lambda: wflag("s51"))
            if kk == 7 and "uflate" in self.ph and self.fused():
                uflag("s50")
                n_lt4(lambda: uflag("s53"))
            if "swarm" in self.ph and 2 <= kk <= 5:
                self.smem_warm(kk - 2)
            if kk == 6 and wdmid:
                if "swarm" in self.ph: a("s_waitcnt lgkmcnt(0)")
                self.wd_load("s2", 0)
                cond_b(lambda: self.wd_load("s51", 5120))
            if kk == 7 and wdmid: a("s_waitcnt vmcnt(0)")
            if kk == 7 and "s3prio" in self.ph: a("s_setprio 3")
            if kk == 7 and epb:
                if self.fused():
                    self.s3_uw_look()
                    a("s_lshl_b32 s78, s7, 8")
                    a("s_add_u32 s78, s78, %d" % WS_FW)
                    self.look_line("s78", 48, 94)
                self.gate_load()
            if kk == 7 and not wdlate and not epb:
                if self.fused(): self.s3_uw_look()
                self.wd_store("s2", 0)
                cond_b(lambda: self.wd_store("s51", 5120, 180))
                self.gate_load()
            if kk == 7 and wdlate:
                if "swarm" in self.ph: a("s_waitcnt lgkmcnt(0)")
                if self.fused(): self.s3_uw_look()
                self.wd_load("s2", 0)
                cond_b(lambda: self.wd_load("s51", 5120))
            if kk == 8:
                self.jitter()
                if self.fused():
                    l = self.newlab("uw")
                    if epb:
                        self.check_line("s78", 94, 15)
                        a("v_mov_b32 v1, %d" % LDS_WOK)
                        a("v_mov_b32 v2, 1")
                        a("ds_write_b32 v1, v2")
                    elif wdlate and "wdfirst" in self.ph:
                        a("s_waitcnt vmcnt(0)")
                        self.wd_store("s2", 0)
                        cond_b(lambda: self.wd_store("s51", 5120, 180))
                    elif not wdlate and "wfirst" in self.ph:
                        a("s_waitcnt vmcnt(15)")
                        wflag("s2")
                        cond_b(lambda: wflag("s51"))
                    else:
                        a("s_waitcnt vmcnt(%d)" % (5 if wdlate else 20))
                    a("v_cmp_eq_u32 vcc, s64, v92")
                    a("s_nop 1")
                    a("s_cmp_eq_u64 vcc, -1")
                    a("s_cbranch_scc1 %s" % l)
                    self.poll(self.s3_uw_loads, [92], 6, sleep=2)
                    a.lab(l)
                    self.s3_u_loads()
                    a("v_mov_b32 v1, %d" % LDS_UOK)
                    a("v_mov_b32 v2, 3")
                    a("ds_write_b32 v1, v2")
                    if wdlate and "wdfirst" not in self.ph: a("s_waitcnt vmcnt(12)")
                elif wdlate:
                    a("s_waitcnt vmcnt(0)")
                if wdlate:
                    if "wdfirst" not in self.ph or not self.fused():
                        self.wd_store("s2", 0)
                        cond_b(lambda: self.wd_store("s51", 5120, 180))
                    self.gate_load()
        self.stamp(2)
        if self.fused():
            if "s3prio" not in self.ph: a("s_setprio 2")
            if epb:
                self.lds_spin(LDS_SFREE, 2, 4)
                a("s_waitcnt vmcnt(0)")
            else:
                if not wdlate and "wfirst" in self.ph:
                    self.lds_spin(LDS_SFREE, 2, 4)
                    a("s_waitcnt vmcnt(0)")
                else:
                    wdf = wdlate and "wdfirst" in self.ph
                    if wdlate and not wdf: a("s_waitcnt vmcnt(15)")
                    else: a("s_waitcnt vmcnt(27)")
                    wflag("s2")
                    cond_b(lambda: wflag("s51"))
                    self.lds_spin(LDS_SFREE, 2, 4)
                    if wdf: a("s_waitcnt vmcnt(16)")
                    elif not wdlate: a("s_waitcnt vmcnt(1)")
        self.stamp(3)
        self.jitter()
        if self.fused():
            self.s3_u_copies(extra=None)
            a("s_waitcnt lgkmcnt(0)")
            a("v_mov_b32 v1, %d" % LDS_UCOK)
            a("v_mov_b32 v2, 1")
            a("ds_write_b32 v1, v2")
            a("s_setprio 0")
            self.stamp(4)
            a("s_waitcnt vmcnt(0)")
            self.gate_compute()
            a("s_waitcnt vmcnt(0)")
            a("s_lshl_b32 s69, s2, 2")
            a("s_add_u32 s69, s69, %d" % WS_FG)
            self.flag_set("s69", 2)
            if "nonearly" in self.ph: self.nonce_update()
        else:
            a("s_waitcnt vmcnt(0)")
            self.gate_compute()
            a("s_waitcnt vmcnt(0)")
            self.stamp(4)

    def s3_uw_addr(self):
        a = self.a
        a("v_lshrrev_b32 v1, 4, v0")
        a("v_lshlrev_b32 v1, 8, v1")
        a("v_add_u32 v1, s2, v1")
        a("v_mov_b32 v2, s2")
        a("v_cmp_gt_u32 vcc, 640, v1")
        a("s_nop 1")
        a("v_cndmask_b32 v1, v2, v1, vcc")
        a("v_lshrrev_b32 v1, 5, v1")
        a("v_lshlrev_b32 v1, 7, v1")
        a("v_and_b32 v2, 15, v0")
        a("v_lshl_add_u32 v1, v2, 2, v1")
        a("v_add_u32 v90, %d, v1" % WS_FU)
    def s3_uw_loads(self):
        a = self.a
        a("buffer_load_dword v92, v90, s[20:23], 0 offen sc1")
    def s3_uw_look(self):
        self.s3_uw_addr()
        self.s3_uw_loads()
    def s3_uw_check(self):
        a = self.a
        l = self.newlab("uw")
        a("s_waitcnt vmcnt(0)")
        a("v_cmp_eq_u32 vcc, s64, v92")
        a("v_cmp_eq_u32 s[76:77], s64, v93")
        a("s_nop 1")
        a("s_and_b64 vcc, vcc, s[76:77]")
        a("s_cmp_eq_u64 vcc, -1")
        a("s_cbranch_scc1 %s" % l)
        self.poll(self.s3_uw_loads, [92, 93], 6, sleep=2)
        a.lab(l)

    def s3_channels(self):
        a = self.a
        a("s_mov_b32 s70, s2")
        a("s_add_u32 s71, s2, 256")
        a("s_add_u32 s72, s2, 512")
        a("s_cmp_lt_u32 s72, 640")
        a("s_cselect_b32 s72, s72, s2")

    def s3_u_loads(self):
        a = self.a
        self.s3_channels()
        a("v_lshlrev_b32 v1, 4, v0")
        for sg in range(3):
            a("s_mul_i32 s67, s%d, %d" % (70 + sg, ROWS))
            a("s_add_u32 s67, s67, %d" % WS_UT)
            for i in range(4):
                r = 100 + 16 * sg + 4 * i
                a("buffer_load_dwordx4 v[%d:%d], v1, s[20:23], s67 offen offset:%d sc1" % (r, r + 3, 1024 * i))

    def s3_u_copies(self, extra=0):
        a = self.a
        Z = 150
        for i in range(4): a("v_mov_b32 v%d, 0" % (Z + i))
        a("v_lshlrev_b32 v2, 4, v0")
        a("v_cmp_eq_u32 vcc, 0, v0")
        for sg in range(3):
            base = LDS_UC + sg * UC_SZ
            for b in range(4):
                a("ds_write_b128 v2, v[%d:%d] offset:%d" % (Z, Z + 3, base + b * UC_STRIDE))
        for sg in range(3):
            base = LDS_UC + sg * UC_SZ
            if extra is not None: a("s_waitcnt vmcnt(%d)" % (4 * (2 - sg) + extra))
            for i in range(4):
                D = 100 + 16 * sg + 4 * i
                R3, R2 = 154 + 2 * (i & 1), 155 + 2 * (i & 1)
                Q3, Q2 = 154 + 2 * ((i + 1) & 1), 155 + 2 * ((i + 1) & 1)
                T1 = 160 + 12 * (i & 1); T0 = T1 + 4; T2 = T1 + 8
                P2 = 158
                a("v_mov_b32_dpp v%d, v%d wave_ror:1 row_mask:0xf bank_mask:0xf" % (R3, D + 3))
                a("v_mov_b32_dpp v%d, v%d wave_ror:1 row_mask:0xf bank_mask:0xf" % (R2, D + 2))
                a("v_mov_b32 v%d, v%d" % (T1 + 1, D))
                a("v_mov_b32 v%d, v%d" % (T1 + 2, D + 1))
                a("v_mov_b32 v%d, v%d" % (T1 + 3, D + 2))
                if i == 0:
                    a("v_cndmask_b32 v%d, v%d, v%d, vcc" % (T1, R3, Z))
                    a("v_cndmask_b32 v%d, v%d, v%d, vcc" % (P2, R2, Z))
                else:
                    a("v_cndmask_b32 v%d, v%d, v%d, vcc" % (T1, R3, Q3))
                    a("v_cndmask_b32 v%d, v%d, v%d, vcc" % (P2, R2, Q2))
                off = base + 4 * (96 + 256 * i)
                a("ds_write_b128 v2, v[%d:%d] offset:%d" % (D, D + 3, off + 3 * UC_STRIDE))
                a("v_alignbit_b32 v%d, v%d, v%d, 16" % (T0, T1, P2))
                a("v_alignbit_b32 v%d, v%d, v%d, 16" % (T0 + 1, D, T1))
                a("v_alignbit_b32 v%d, v%d, v%d, 16" % (T0 + 2, D + 1, D))
                a("v_alignbit_b32 v%d, v%d, v%d, 16" % (T0 + 3, D + 2, D + 1))
                a("ds_write_b128 v2, v[%d:%d] offset:%d" % (T1, T1 + 3, off + 1 * UC_STRIDE))
                a("v_mov_b32 v%d, v%d" % (T2, T0 + 1))
                a("v_mov_b32 v%d, v%d" % (T2 + 1, T0 + 2))
                a("v_mov_b32 v%d, v%d" % (T2 + 2, T0 + 3))
                a("v_alignbit_b32 v%d, v%d, v%d, 16" % (T2 + 3, D + 3, D + 2))
                a("ds_write_b128 v2, v[%d:%d] offset:%d" % (T0, T0 + 3, off + 0 * UC_STRIDE))
                a("ds_write_b128 v2, v[%d:%d] offset:%d" % (T2, T2 + 3, off + 2 * UC_STRIDE))

    def s_phase1(self):
        a = self.a
        n = self.name
        a("s_sub_u32 s66, s3, 4")
        a("s_cmp_eq_u32 s66, 3")
        a("s_cbranch_scc1 %s_sj" % n)
        if "earlys3" in self.ph: self.srds()
        self.s_kgen_phase1()
        a("s_branch %s_p1done" % n)
        a.lab("%s_sj" % n)
        self.s_side()
        a.lab("%s_p1done" % n)

    def ssm_param_loads(self, slots=(0, 1, 2), scalars=True):
        a = self.a
        a("s_mul_i32 s67, s50, 384")
        a("v_lshl_add_u32 v1, v0, 1, s67")
        for sl in slots:
            for k, p in enumerate((P_ARE, P_AIM, P_BRE, P_BIM, P_CRE, P_CIM)):
                a("global_load_ushort v%d, v1, s[%d:%d] offset:%d" % (200 + 6 * sl + k, p, p + 1, 128 * sl))
        if scalars:
            a("s_lshl_b32 s67, s50, 1")
            a("v_mov_b32 v223, s67")
            a("global_load_ushort v218, v223, s[%d:%d]" % (P_LDT, P_LDT + 1))
            a("global_load_ushort v219, v223, s[%d:%d]" % (P_DSK, P_DSK + 1))

    def ssm_param_warm(self):
        a = self.a
        a("s_mul_i32 s67, s50, 384")
        for p in (P_ARE, P_AIM, P_BRE, P_BIM, P_CRE, P_CIM):
            a("s_add_u32 s68, s%d, s67" % p)
            a("s_addc_u32 s69, s%d, 0" % (p + 1))
            for i in range(3):
                a("s_load_dword s70, s[68:69], %d" % (128 * i))
        a("s_lshl_b32 s67, s50, 1")
        a("s_and_b32 s67, s67, 0xfffffffc")
        a("s_load_dword s70, s[%d:%d], s67" % (P_LDT, P_LDT + 1))
        a("s_load_dword s70, s[%d:%d], s67" % (P_DSK, P_DSK + 1))

    def kgen_bases(self):
        a = self.a
        a("s_mul_i32 s51, s66, %d" % TAB_SZ)
        a("s_add_u32 s51, s51, %d" % LDS_TAB)
        a("s_mul_i32 s52, s66, %d" % KR_SZ)
        a("s_add_u32 s52, s52, %d" % LDS_KR)

    def kgen(self, part="all"):
        a = self.a
        if part == "all": self.kgen_bases()
        self._kgen_body(part)

    def _kgen_body(self, part):
        a = self.a
        head = part in ("all", "head", "rest"); tail = part in ("all", "tail", "rest")
        real_a = a
        if not head: a = Asm()
        a("v_and_b32 v4, 15, v0")
        a("v_lshrrev_b32 v5, 4, v0")
        a("v_mul_u32_u24 v2, %d, v4" % TABROW)
        a("v_lshl_add_u32 v2, v5, 6, v2")
        a("v_add_u32 v2, s51, v2")
        a("v_and_b32 v6, 1, v5")
        a("v_lshl_add_u32 v3, v6, 3, v2")
        a("v_xor_b32 v6, 1, v6")
        a("v_lshl_add_u32 v2, v6, 3, v2")
        a("s_mov_b32 m0, s51")
        a("s_nop 0")
        if part == "all" or (part == "rest" and not self.fused()): a("s_waitcnt vmcnt(0)")
        a("v_lshlrev_b32 v218, 16, v218")
        a("v_lshlrev_b32 v219, 16, v219")
        a("v_mul_f32 v6, 0x3fb8aa3b, v218")
        a("s_mov_b32 s67, 0x3fb8aa3b")
        a("v_fma_f32 v7, v218, s67, -v6")
        a("v_fmac_f32 v7, 0x32a57060, v218")
        a("v_exp_f32 v6, v6")
        a("v_mul_f32 v7, 0x3f317218, v7")
        a("v_fma_f32 v6, v6, v7, v6")
        a("v_cvt_pk_bf16_f32 v6, v6, v6")
        a("v_lshlrev_b32 v218, 16, v6")
        W1, W16, W256, W512, W768, W1024 = 10, 12, 14, 16, 18, 20
        WX = 22
        CB = 24
        Y = 26; P = 28; TMP1 = 30; TMP2 = 32; TMP3 = 34
        PK = 36
        V = 50
        CV = 66
        YF = 76
        AF = 92
        ACC = 108
        nopk = (part == "head") and ("pkhead" not in self.ph)
        def cmul(out, x, w, t):
            if nopk:
                return ["v_mul_f32 v%d, v%d, v%d" % (t, x + 1, w + 1),
                        "v_mul_f32 v%d, v%d, v%d" % (t + 1, x, w + 1),
                        "v_fma_f32 v%d, v%d, v%d, -v%d" % (out, x, w, t),
                        "v_fma_f32 v%d, v%d, v%d, v%d" % (out + 1, x + 1, w, t + 1)]
            return ["v_pk_mul_f32 v[%d:%d], v[%d:%d], v[%d:%d] op_sel:[0,0] op_sel_hi:[0,1]" % (t, t + 1, x, x + 1, w, w + 1),
                    "v_pk_fma_f32 v[%d:%d], v[%d:%d], v[%d:%d], v[%d:%d] op_sel:[1,1,0] op_sel_hi:[1,0,1] neg_lo:[1,0,0]" % (out, out + 1, x, x + 1, w, w + 1, t, t + 1)]
        def zipl(*ls):
            o = []
            for i in range(max(len(l) for l in ls)):
                for l in ls:
                    if i < len(l): o.append(l[i])
            return o
        cvn = [0, 0]
        def wr(val, tile, row, neg, bank=0):
            c = CV + 4 * bank + (cvn[bank] % 4); cvn[bank] += 1
            return ["v_cvt_pk_bf16_f32 v%d, v%d, %sv%d" % (c, val, "-" if neg else "", val + 1),
                    "ds_write_addtid_b32 v%d offset:%d" % (c, tile * TABTILE + row * TABROW)]
        def frag_reads(dst, tile):
            L = []
            for kk in range(4):
                L.append("ds_read_b64 v[%d:%d], v3 offset:%d" % (dst + 4 * kk, dst + 4 * kk + 1, tile * TABTILE + 16 * kk))
                L.append("ds_read_b64 v[%d:%d], v2 offset:%d" % (dst + 4 * kk + 2, dst + 4 * kk + 3, tile * TABTILE + 16 * kk))
            return L
        def mm(t, first):
            L = []
            for kk in range(4):
                c = "0" if (first and kk == 0) else "v[%d:%d]" % (ACC + 4 * t, ACC + 4 * t + 3)
                L.append("v_mfma_f32_16x16x32_bf16 v[%d:%d], v[%d:%d], v[%d:%d], %s" % (ACC + 4 * t, ACC + 4 * t + 3, AF + 4 * kk, AF + 4 * kk + 3, YF + 4 * kk, YF + 4 * kk + 3, c))
            return L
        a = real_a
        nh = 2 if "kg2" in self.ph else 1
        slots = [0, 1, 2] if part in ("all", "rest") else (list(range(nh)) if part == "head" else list(range(nh, 3)))
        for sl in slots:
            if sl == 1 and part == "tail" and not self.fused(): a("s_waitcnt vmcnt(0)")
            if sl == 2 and part in ("rest", "tail"): self.stamp(3)
            if sl == 2 and "prioT" in self.ph: a("s_setprio 2")
            if sl == slots[0] and part in ("tail", "rest") and "prioT0" in self.ph and "prioMid" not in self.ph: a("s_setprio 2")
            pr = 200 + 6 * sl
            for k in range(6): a("v_lshlrev_b32 v%d, 16, v%d" % (pr + k, pr + k))
            a("v_mul_f32 v6, v218, v%d" % pr)
            a("v_mul_f32 v7, v218, v%d" % (pr + 1))
            a("v_mul_f32 v6, 0x3fb8aa3b, v6")
            a("v_mul_f32 v7, 0.15915494, v7")
            a("v_mul_f32 v8, v218, v%d" % (pr + 2))
            a("v_mul_f32 v9, v218, v%d" % (pr + 3))
            a.ext(cmul(CB, pr + 4, 8, TMP1))
            for w, k in ((W1, 1.0), (W16, 16.0), (W256, 256.0)):
                if k == 1.0:
                    a("v_exp_f32 v%d, v6" % TMP2)
                    a("v_fract_f32 v%d, v7" % TMP3)
                else:
                    lit = "0x41800000" if k == 16.0 else "0x43800000"
                    a("v_mul_f32 v%d, %s, v6" % (TMP2, lit))
                    a("v_mul_f32 v%d, %s, v7" % (TMP3, lit))
                    a("v_exp_f32 v%d, v%d" % (TMP2, TMP2))
                    a("v_fract_f32 v%d, v%d" % (TMP3, TMP3))
                a("v_cos_f32 v%d, v%d" % (w, TMP3))
                a("v_sin_f32 v%d, v%d" % (w + 1, TMP3))
                a("s_nop 0")
                a("v_mul_f32 v%d, v%d, v%d" % (w, w, TMP2))
                a("v_mul_f32 v%d, v%d, v%d" % (w + 1, w + 1, TMP2))
            if sl != slots[0]:
                a("s_waitcnt lgkmcnt(0)")
                a.ext(pend_mm2)
            if sl == slots[0] and part in ("tail", "rest") and "prioMid" in self.ph: a("s_setprio 2")
            LY = ["v_mov_b32 v%d, v%d" % (Y, CB), "v_mov_b32 v%d, v%d" % (Y + 1, CB + 1)] + wr(Y, 0, 0, False)
            for j in range(1, 16):
                LY += cmul(Y, Y, W16, TMP1) + wr(Y, 0, j, False)
            LA = ["v_mov_b32 v%d, 1.0" % P, "v_mov_b32 v%d, 0" % (P + 1)] + wr(P, 1, 0, True, 1)
            cur = P
            for r in range(1, 16):
                if r == 1:
                    LA += ["v_mov_b32 v%d, v%d" % (P, W1), "v_mov_b32 v%d, v%d" % (P + 1, W1 + 1)]
                    cur = P
                else:
                    dst = PK + 2 * (r // 2 - 1) if r % 2 == 0 else P
                    LA += cmul(dst, cur, W1, TMP2)
                    cur = dst
                LA += wr(cur, 1, r, True, 1)
            a.ext(zipl(LY, LA))
            a.ext(cmul(W512, W256, W256, TMP1))
            a.ext(frag_reads(YF, 0)); a.ext(frag_reads(AF, 1))
            a.ext(zipl(cmul(W768, W512, W256, TMP1), cmul(W1024, W512, W512, TMP2)))
            def pk(i): return PK + 2 * (i // 2 - 1)
            vals = []
            A2 = []
            regs = []
            for r in range(8):
                if r == 0: regs.append(W256)
                else:
                    dst = V + 2 * (r - 1) if r < 8 else None
                    A2.append(cmul(dst, pk(2 * r), W256, TMP1 if r % 2 else TMP2)); regs.append(dst)
            a.ext(zipl(sum(A2[0::2], []), sum(A2[1::2], [])))
            a("s_waitcnt lgkmcnt(0)")
            m = mm(0, sl == 0)
            L = []
            for r in range(8): L += wr(regs[r], 1, r, True)
            a.ext(interleave(m, L))
            LA = []; LB = []
            for b in range(4):
                if b == 0:
                    LA += wr(W512, 1, 8, True); LB += wr(W768, 1, 12, True, 1)
                else:
                    LA += cmul(V, pk(4 * b), W512, TMP1) + wr(V, 1, 8 + b, True)
                    LB += cmul(V + 2, pk(4 * b), W768, TMP2) + wr(V + 2, 1, 12 + b, True, 1)
            a.ext(zipl(LA, LB))
            a.ext(frag_reads(AF, 1))
            a.ext(zipl(cmul(V, W1024, W256, TMP1), cmul(V + 2, W1024, W512, TMP2)))
            a.ext(zipl(cmul(V + 4, W1024, W768, TMP1), cmul(V + 6, W1024, W1024, TMP2)))
            ws = [W1024, V, V + 2, V + 4]
            a.ext(zipl(cmul(V + 8, ws[0], pk(8), TMP1), cmul(V + 10, ws[1], pk(8), TMP2)))
            a.ext(zipl(cmul(V + 12, ws[2], pk(8), TMP1), cmul(V + 14, ws[3], pk(8), TMP2)))
            a("s_waitcnt lgkmcnt(0)")
            m = mm(1, sl == 0)
            L = []
            for i in range(4):
                L += wr(ws[i], 1, 2 * i, True) + wr(V + 8 + 2 * i, 1, 2 * i + 1, True)
            L += wr(V + 6, 1, 8, True)
            a.ext(interleave(m, L))
            a.ext(frag_reads(AF, 1))
            pend_mm2 = mm(2, sl == 0)
            if sl == slots[-1]:
                a("s_waitcnt lgkmcnt(0)")
                a.ext(pend_mm2); pend_mm2 = None
        if not tail: return
        self.stamp(1)
        A0, A1, A2r = ACC, ACC + 4, ACC + 8
        a("v_cmp_eq_u32 vcc, 0, v0")
        a("v_and_b32 v4, 15, v0")
        a("v_lshrrev_b32 v5, 4, v0")
        a("v_cndmask_b32 v6, 0, v219, vcc")
        a("v_lshlrev_b32 v7, 5, v4")
        a("v_lshl_add_u32 v7, v5, 4, v7")
        a("v_lshlrev_b32 v8, 4, v4")
        a("v_lshl_add_u32 v8, v5, 8, v8")
        a("v_cmp_gt_u32 vcc, 2, v5")
        a("v_add_f32 v%d, v%d, v6" % (A0, A0))
        a("s_nop 0")
        a("v_cndmask_b32 v7, v8, v7, vcc")
        a("v_add_u32 v7, s51, v7")
        a("v_lshlrev_b32 v8, 3, v4")
        a("v_lshl_add_u32 v8, v5, 8, v8")
        a("v_add_u32 v8, s51, v8")
        a("s_nop 4")
        a("ds_write_b128 v7, v[%d:%d]" % (A1, A1 + 3))
        a("ds_write_b64 v8, v[%d:%d] offset:1024" % (A2r, A2r + 1))
        a("ds_write_b64 v8, v[%d:%d] offset:1152" % (A2r + 2, A2r + 3))
        a("v_cvt_pk_bf16_f32 v10, v%d, v%d" % (A0 + 3, A0 + 2))
        a("v_cvt_pk_bf16_f32 v11, v%d, v%d" % (A0 + 1, A0))
        a("v_lshlrev_b32 v9, 5, v4")
        a("v_lshl_add_u32 v9, v5, 3, v9")
        a("v_sub_u32 v9, 4088, v9")
        a("v_add_u32 v9, s52, v9")
        a("ds_write_b64 v9, v[10:11]")
        a("v_and_b32 v9, 31, v0")
        a("v_lshlrev_b32 v9, 2, v9")
        a("v_add_u32 v9, s52, v9")
        a("v_mov_b32 v12, 0")
        a("ds_write_b32 v9, v12 offset:4096")
        a("v_lshlrev_b32 v13, 4, v0")
        a("v_add_u32 v14, s51, v13")
        a("v_lshlrev_b32 v15, 3, v0")
        a("v_add_u32 v15, s51, v15")
        a("v_lshlrev_b32 v16, 2, v0")
        a("v_add_u32 v16, s51, v16")
        a("v_sub_u32 v13, s52, v13")
        a("s_waitcnt lgkmcnt(0)")
        a("ds_read_b128 v[20:23], v14")
        a("ds_read_b32 v24, v14 offset:16")
        a("ds_read_b64 v[26:27], v15 offset:512")
        a("ds_read_b32 v28, v15 offset:520")
        a("ds_read2_b32 v[30:31], v16 offset0:0 offset1:1")
        a.l.pop()
        a("v_add_u32 v17, 1024, v16")
        a("ds_read2_b32 v[30:31], v17 offset0:0 offset1:1")
        a("ds_read2_b32 v[32:33], v17 offset0:64 offset1:65")
        a("v_and_b32 v18, 1, v0")
        a("v_cmp_eq_u32 vcc, 1, v18")
        a("s_waitcnt lgkmcnt(0)")
        a("v_cvt_pk_bf16_f32 v36, v28, v28")
        a("v_cvt_pk_bf16_f32 v37, v27, v27")
        a("v_cvt_pk_bf16_f32 v38, v27, v26")
        a("v_cvt_pk_bf16_f32 v39, v26, v26")
        a("ds_write_b128 v13, v[36:39] offset:3056")
        for ps in range(2):
            v0_, v1_ = 30 + 2 * ps, 31 + 2 * ps
            o = 40 + 4 * ps
            a("v_cndmask_b32 v19, v%d, v%d, vcc" % (v0_, v1_))
            a("v_cvt_pk_bf16_f32 v%d, v%d, v%d" % (o, v1_, v1_))
            a("v_cvt_pk_bf16_f32 v%d, v%d, v19" % (o + 1, v1_))
            a("v_cvt_pk_bf16_f32 v%d, v%d, v%d" % (o + 2, v0_, v0_))
            a("v_mov_b32 v%d, v%d" % (o + 3, o + 2))
        a("ds_write_b128 v13, v[40:43] offset:2032")
        a("ds_write_b128 v13, v[44:47] offset:1008")
        a("v_cvt_pk_bf16_f32 v48, v24, v23")
        a("v_cvt_pk_bf16_f32 v49, v22, v22")
        a("v_cvt_pk_bf16_f32 v50, v22, v21")
        a("v_cvt_pk_bf16_f32 v51, v20, v20")
        a("s_mov_b32 exec_hi, 0")
        a("ds_write_b128 v13, v[48:51] offset:3568")
        a("s_mov_b32 exec_hi, -1")
        if "dumpk" in self.ph:
            a("s_waitcnt lgkmcnt(0)")
            a("v_lshlrev_b32 v13, 4, v0")
            a("v_add_u32 v14, s52, v13")
            a("s_mul_i32 s67, s50, 4224")
            a("s_add_u32 s67, s67, %d" % WS_DBG)
            for i in range(5):
                a("ds_read_b128 v[20:23], v14 offset:%d" % (1024 * i))
                a("s_waitcnt lgkmcnt(0)")
                if i == 4: a("s_mov_b32 exec_hi, 0"); a("s_mov_b32 exec_lo, 0xff")
                a("s_add_u32 s68, s67, %d" % (1024 * i))
                a("buffer_store_dwordx4 v[20:23], v13, s[20:23], s68 offen")
                a("s_waitcnt vmcnt(0)")
            a("s_mov_b64 exec, -1")

    def u_look(self):
        a = self.a
        self.nonce_read(120)
        a("s_lshr_b32 s78, s50, 5")
        a("s_lshl_b32 s78, s78, 7")
        a("s_add_u32 s78, s78, %d" % WS_FU)
        a("v_and_b32 v120, 15, v0")
        a("v_lshlrev_b32 v120, 2, v120")
        a("buffer_load_dword v121, v120, s[20:23], s78 offen sc1")
    def u_prefetch(self):
        a = self.a
        l = self.newlab("uok")
        a("s_waitcnt vmcnt(0)")
        a("v_cmp_eq_u32 vcc, s64, v121")
        a("s_nop 1")
        a("s_cmp_eq_u64 vcc, -1")
        a("s_cbranch_scc1 %s" % l)
        self.poll_line("s78", 16, 120, sleep=4)
        a.lab(l)
        self.conv_loads()
        self.lds_inc(LDS_UOK, 152)

    def conv_loads(self):
        a = self.a
        a("s_mul_i32 s67, s50, %d" % ROWS)
        a("s_add_u32 s67, s67, %d" % (WS_UT - 4))
        a("v_lshlrev_b32 v1, 2, v0")
        for i in range(16):
            a("buffer_load_dwordx2 v[%d:%d], v1, s[20:23], s67 offen offset:%d sc1" % (120 + 2 * i, 121 + 2 * i, 256 * i))

    def conv(self):
        a = self.a
        D = 120
        a("s_mul_i32 s53, s66, %d" % UC_SZ)
        if LDS_UC: a("s_add_u32 s53, s53, %d" % LDS_UC)
        if not self.fused():
            a("s_mov_b32 m0, s53")
            a("v_mov_b32 v2, 0")
            for b in range(4):
                a("ds_write_addtid_b32 v2 offset:%d" % (b * UC_STRIDE))
                a("ds_write_addtid_b32 v2 offset:%d" % (b * UC_STRIDE + 33 * 4))
            a("v_cmp_eq_u32 vcc, 0, v0")
            a("s_waitcnt vmcnt(0)")
            a("v_cndmask_b32 v%d, v%d, v2, vcc" % (D, D))
            for i in range(16):
                lo, hi = D + 2 * i, D + 2 * i + 1
                o = 4 + (i % 4)
                a("v_alignbit_b32 v%d, v%d, v%d, 16" % (o, hi, lo))
                a("ds_write_addtid_b32 v%d offset:%d" % (hi, 3 * UC_STRIDE + 4 * (64 * i + 96)))
                a("ds_write_addtid_b32 v%d offset:%d" % (hi, 1 * UC_STRIDE + 4 * (64 * i + 97)))
                a("ds_write_addtid_b32 v%d offset:%d" % (o, 2 * UC_STRIDE + 4 * (64 * i + 96)))
                a("ds_write_addtid_b32 v%d offset:%d" % (o, 0 * UC_STRIDE + 4 * (64 * i + 97)))
        VU, VK = 8, 9
        a("v_and_b32 v4, 3, v0")
        a("v_mul_u32_u24 v4, %d, v4" % UC_STRIDE)
        a("v_bfe_u32 v5, v0, 2, 2")
        a("v_lshl_add_u32 v4, v5, 7, v4")
        a("v_lshrrev_b32 v5, 4, v0")
        a("v_lshl_add_u32 v4, v5, 4, v4")
        a("v_add_u32 v%d, s53, v4" % VU)
        a("v_and_b32 v6, 15, v0")
        a("v_lshlrev_b32 v7, 3, v6")
        a("v_sub_u32 v7, 120, v7")
        a("v_lshl_add_u32 v7, v5, 4, v7")
        a("v_add_u32 v%d, s52, v7" % VK)
        a("v_lshlrev_b32 v10, 3, v6")
        a("v_lshl_add_u32 v10, v5, 7, v10")
        ACC = 16; SETS = [48, 112]
        def reads(rho, S):
            L = []
            for z in range(8):
                L.append("ds_read_b128 v[%d:%d], v%d offset:%d" % (S + 4 * z, S + 4 * z + 3, VU, 512 * z + 64 * (7 - rho)))
                zz = 8 * z + rho
                L.append("ds_read_b64 v[%d:%d], v%d offset:%d" % (S + 32 + 4 * z, S + 33 + 4 * z, VK, 64 * (63 - zz)))
                L.append("ds_read_b64 v[%d:%d], v%d offset:%d" % (S + 34 + 4 * z, S + 35 + 4 * z, VK, 64 * (63 - zz) + 8))
            return L
        def mm(rho, S):
            L = []
            for ze in range(8):
                for nu in range(8 - ze):
                    n = ze + nu
                    c = "0" if (rho == 0 and ze == 0) else "v[%d:%d]" % (ACC + 4 * n, ACC + 4 * n + 3)
                    L.append("v_mfma_f32_16x16x32_bf16 v[%d:%d], v[%d:%d], v[%d:%d], %s" % (ACC + 4 * n, ACC + 4 * n + 3, S + 4 * nu, S + 4 * nu + 3, S + 32 + 4 * ze, S + 35 + 4 * ze, c))
            return L
        a("s_waitcnt lgkmcnt(0)")
        if self.fused(): self.lds_spin(LDS_UCOK, 12)
        self.stamp(4)
        a.ext(reads(0, SETS[0]))
        a("s_waitcnt lgkmcnt(0)")
        for rho in range(8):
            fill = reads(rho + 1, SETS[(rho + 1) & 1]) if rho < 7 else []
            a.ext(interleave(mm(rho, SETS[rho & 1]), fill, span=28))
            if rho < 7: a("s_waitcnt lgkmcnt(0)")
        self.stamp(7)
        a("s_mul_i32 s67, s50, %d" % ROWS)
        a("s_add_u32 s67, s67, %d" % WS_Y)
        a("s_nop 7")
        for n in range(8):
            o = 48 + 2 * n
            a("v_cvt_pk_bf16_f32 v%d, v%d, v%d" % (o, ACC + 4 * n, ACC + 4 * n + 1))
            a("v_cvt_pk_bf16_f32 v%d, v%d, v%d" % (o + 1, ACC + 4 * n + 2, ACC + 4 * n + 3))
            if "noy" not in self.ph: a("buffer_store_dwordx2 v[%d:%d], v10, s[20:23], s67 offen offset:%d sc1" % (o, o + 1, 512 * n))

    def s_ssm(self):
        a = self.a
        n = self.name
        a("s_sub_u32 s66, s3, 4")
        a("s_lshl_b32 s50, s66, 8")
        a("s_add_u32 s50, s50, s2")
        a("s_cmp_ge_u32 s66, 3")
        a("s_cbranch_scc1 %s_ssm_done" % n)
        if self.fused():
            l = self.newlab("nch")
            a("s_cmp_lt_u32 s50, 640")
            a("s_cbranch_scc1 %s" % l)
            a("s_branch %s_ssm_done" % n)
            a.lab(l)
        else:
            a("s_cmp_ge_u32 s50, 640")
            a("s_cbranch_scc1 %s_ssm_done" % n)
        self.jitter()
        if self.fused() and "g1" in self.ph:
            a("s_waitcnt vmcnt(0)")
        if "g1" not in self.ph:
            self.stamp(5)
            self.ssm_param_loads()
            self.kgen("all")
        elif "kghead" in self.ph:
            self.kgen("tail")
        else:
            self.kgen("rest")
        self.stamp(6)
        self.jitter()
        if not self.fused():
            self.conv_loads()
        self.conv()
        self.jitter()
        if "prioT" in self.ph or "prioT0" in self.ph: a("s_setprio 0")
        a("s_waitcnt vmcnt(0)")
        if self.fused():
            self.nonce_read(4)
            a("s_lshl_b32 s69, s50, 2")
            a("s_add_u32 s69, s69, %d" % WS_FY)
            self.flag_set("s69", 2)
        self.stamp(8)
        a.lab("%s_ssm_done" % n)

    G2_SETS = [80, 116, 152, 188]
    G2_VB, G2_VL, G2_VB8, G2_T, G2_VRS = 224, 228, 246, 230, 250

    def g2_setup(self):
        a = self.a
        VB, VL, VB8, T, VRS = self.G2_VB, self.G2_VL, self.G2_VB8, self.G2_T, self.G2_VRS
        a("v_mbcnt_lo_u32_b32 v%d, -1, 0" % T)
        a("v_mbcnt_hi_u32_b32 v%d, -1, v%d" % (T, T))
        a("v_lshlrev_b32 v%d, 4, v%d" % (VL, T))
        for tau in range(4):
            a("s_add_u32 s67, s3, %d" % tau)
            a("s_and_b32 s67, s67, 3")
            a("s_lshl_b32 s67, s67, 10")
            a("v_add_u32 v%d, s67, v%d" % (VB + tau, VL))
            a("v_lshlrev_b32 v%d, 3, v%d" % (VB8 + tau, T))
            a("v_add_u32 v%d, s67, v%d" % (VB8 + tau, VB8 + tau))
        a("s_mul_i32 s70, s6, 48")
        a("s_mul_i32 s67, s3, %d" % (9 if "ks921" in self.ph else 12))
        a("s_add_u32 s70, s70, s67")
        a("s_lshl_b32 s70, s70, 12")
        if WS_H: a("s_add_u32 s70, s70, %d" % WS_H)
        a("s_mul_i32 s71, s7, 48")
        a("s_add_u32 s71, s71, s67")
        a("s_mul_i32 s71, s71, 5120")
        a("s_add_u32 s71, s71, %d" % WS_WD)
        a("s_add_u32 s72, s71, 4096")
        for tau in range(1, 4):
            a("s_add_u32 s67, s3, %d" % tau)
            a("s_and_b32 s67, s67, 3")
            a("s_mul_i32 s67, s67, 3")
            a("s_add_u32 s67, s67, %d" % (tau - 1))
            a("s_mul_i32 s67, s67, 5120")
            a("s_add_u32 s67, s67, %d" % LDS_RED)
            a("v_add_u32 v%d, s67, v%d" % (VRS + tau - 1, VL))
            a("s_mov_b32 s%d, s67" % (72 + tau))

    def g2_final_addrs(self):
        a = self.a
        T, VL = self.G2_T, self.G2_VL
        a("s_mul_i32 s67, s3, %d" % (3 * 5120))
        a("s_add_u32 s67, s67, %d" % LDS_RED)
        a("v_add_u32 v%d, s67, v%d" % (T + 1, VL))
        a("v_lshrrev_b32 v%d, 4, v%d" % (T + 2, T))
        a("v_and_b32 v%d, 15, v%d" % (T + 3, T))
        a("v_lshrrev_b32 v%d, 2, v%d" % (T + 4, T + 3))
        a("v_lshl_add_u32 v%d, v%d, 3, v%d" % (T + 5, T + 2, T + 4))
        a("v_lshl_add_u32 v%d, v%d, 2, v%d" % (T + 6, T + 2, T + 4))
        a("v_and_b32 v%d, 3, v%d" % (T + 7, T))
        a("v_lshlrev_b32 v%d, 3, v%d" % (T + 7, T + 7))
        a("s_lshl_b32 s67, s3, 5")
        a("s_add_u32 s67, s67, %d" % LDS_YT)
        a("v_add_u32 v%d, s67, v%d" % (T + 7, T + 7))
        a("v_lshl_add_u32 v%d, v%d, 7, v%d" % (T + 5, T + 5, T + 7))
        a("v_lshl_add_u32 v%d, v%d, 7, v%d" % (T + 6, T + 6, T + 7))
        a("s_lshl_b32 s67, s3, 6")
        a("s_add_u32 s67, s67, %d" % LDS_GT)
        a("v_lshl_add_u32 v%d, v%d, 2, s67" % (T + 8, T + 3))
        a("s_lshl_b32 s67, s6, 6")
        a("s_lshl_b32 s68, s3, 4")
        a("s_add_u32 s67, s67, s68")
        a("v_add_u32 v%d, s67, v%d" % (T + 9, T + 3))
        a("s_movk_i32 s68, 1280")
        a("v_mul_lo_u32 v%d, v%d, s68" % (T + 9, T + 9))
        a("s_mul_i32 s68, s7, 160")
        a("v_add_u32 v%d, s68, v%d" % (T + 9, T + 9))
        a("v_lshl_add_u32 v%d, v%d, 3, v%d" % (T + 10, T + 2, T + 9))
        a("v_lshl_add_u32 v%d, v%d, 4, v%d" % (T + 9, T + 2, T + 9))

    def g2_loadsA(self, S):
        VL = self.G2_VL
        L = []
        for dt in range(5):
            if dt < 4: L.append("buffer_load_dwordx4 v[%d:%d], v%d, s[20:23], s71 offen offset:%d sc1" % (S + 16 + 4 * dt, S + 19 + 4 * dt, VL, 1024 * dt))
            else: L.append(("buffer_load_dwordx4 v[%d:%d], v%d, s[20:23], s72 offen sc1" % (S + 16 + 4 * dt, S + 19 + 4 * dt, VL),
                            "s_add_u32 s71, s71, 5120", "s_add_u32 s72, s72, 5120"))
        return L

    def g2_raw_stage(self):
        a = self.a
        T = self.G2_T
        a("s_mov_b32 s67, 52429")
        a("s_movk_i32 s68, 1280")
        for i in range(5):
            a("v_add_u32 v121, %d, v%d" % (64 * i, T))
            a("v_mul_lo_u32 v122, v121, s67")
            a("v_lshrrev_b32 v122, 19, v122")
            a("v_mul_u32_u24 v123, 10, v122")
            a("v_sub_u32 v123, v121, v123")
            a("v_mul_lo_u32 v122, v122, s68")
            a("v_lshl_add_u32 v%d, v123, 4, v122" % (116 + i))
        a("v_lshrrev_b32 v121, 4, v%d" % T)
        a("v_and_b32 v122, 15, v%d" % T)
        a("v_lshrrev_b32 v122, 2, v122")
        a("v_lshl_add_u32 v121, v121, 2, v122")
        a("v_mul_u32_u24 v121, 160, v121")
        a("v_and_b32 v122, 3, v%d" % T)
        a("v_lshl_add_u32 v245, v122, 4, v121")
        a("v_lshl_add_u32 v253, v122, 3, v121")
        a("s_mul_i32 s67, s3, %d" % (9 if "ks921" in self.ph else 12))
        a("s_add_u32 s67, s67, 4")
        a("s_mul_i32 s67, s67, %d" % (32 * 1280))
        a("s_mul_i32 s68, s7, 160")
        a("s_add_u32 s67, s67, s68")
        for tau in range(1, 4):
            for i in range(5):
                a("s_add_u32 m0, s%d, %d" % (72 + tau, 1024 * i))
                a("s_nop 0")
                a("buffer_load_dwordx4 v%d, s[28:31], s67 offen lds" % (116 + i))
            if tau < 3: a("s_add_u32 s67, s67, %d" % (32 * 1280))

    def g2_raw_reads(self, k, S):
        L = [("v_add_u32 v241, s%d, v245" % (72 + k - 3), "v_add_u32 v244, s%d, v253" % (72 + k - 3))]
        for dt in range(5):
            for h in range(2):
                if dt < 4: ad, off = 241, 64 * (dt >> 1) + 8 * (dt & 1) + 2560 * h
                else: ad, off = 244, 128 + 2560 * h
                L.append("ds_read_b64_tr_b16 v[%d:%d], v%d offset:%d" % (S + 16 + 4 * dt + 2 * h, S + 17 + 4 * dt + 2 * h, ad, off))
        return L

    def g2_burst_atoms(self):
        VL = self.G2_VL
        regl = []
        for k in range(4): regl += self.g2_loadsA(self.G2_SETS[k])
        dmal = []
        for tau in range(1, 4):
            dmal.append(("s_mov_b32 m0, s%d" % (72 + tau), "s_nop 0",
                         "buffer_load_dwordx4 v%d, s[20:23], s71 offen sc1 lds" % VL))
            for dt in range(1, 4):
                dmal.append("buffer_load_dwordx4 v%d, s[20:23], s71 offen offset:%d sc1 lds" % (VL, 1024 * dt))
            dmal.append(("s_add_u32 m0, s%d, 4096" % (72 + tau), "s_add_u32 s71, s71, 5120",
                         "buffer_load_dwordx4 v%d, s[20:23], s72 offen sc1 lds" % VL, "s_add_u32 s72, s72, 5120"))
        return regl, dmal

    def g_gemm2(self):
        a = self.a
        ACC = 0
        SETS = self.G2_SETS
        VB, VL, VB8, T, VRS = self.G2_VB, self.G2_VL, self.G2_VB8, self.G2_T, self.G2_VRS
        acc = lambda dt, tau: ACC + (dt * 4 + tau) * 4
        epb = "epb" in self.ph and "g1" in self.ph
        if not epb: self.g2_setup()
        loadsA = self.g2_loadsA
        def loadsB(S, k):
            L = []
            for tau in range(4):
                if k % 3 == 1:
                    x = ("buffer_load_dwordx2 v[%d:%d], v%d, s[20:23], s70 offen sc1" % (S + 4 * tau, S + 4 * tau + 1, VB8 + tau),
                         "buffer_load_dwordx2 v[%d:%d], v%d, s[20:23], s70 offen offset:512 sc1" % (S + 4 * tau + 2, S + 4 * tau + 3, VB8 + tau))
                else:
                    x = ("buffer_load_dwordx4 v[%d:%d], v%d, s[20:23], s70 offen sc1" % (S + 4 * tau, S + 4 * tau + 3, VB + tau),)
                L.append(x if tau < 3 else x + ("s_add_u32 s70, s70, 4096",))
            return L
        nB = lambda k: 8 if k % 3 == 1 else 4
        def mm(S, first):
            L = []
            for dt in range(5):
                for tau in range(4):
                    c = "0" if first else "v[%d:%d]" % (acc(dt, tau), acc(dt, tau) + 3)
                    L.append("v_mfma_f32_16x16x32_bf16 v[%d:%d], v[%d:%d], v[%d:%d], %s" % (acc(dt, tau), acc(dt, tau) + 3, S + 16 + 4 * dt, S + 19 + 4 * dt, S + 4 * tau, S + 4 * tau + 3, c))
            return L
        NS = 12
        pre = "g1" in self.ph and "nopre" not in self.ph
        VLOOK = 254
        if epb:
            if self.fused(): self.nonce_read(232)
            self.g_signal_h(0)
            if self.fused():
                a("s_lshr_b32 s79, s6, 1")
                a("s_lshl_b32 s79, s79, 7")
                a("s_lshl_b32 s67, s3, 4")
                a("s_add_u32 s79, s79, s67")
                a("s_add_u32 s79, s79, %d" % WS_FH)
                self.poll_line("s79", 4, VLOOK, sleep=3)
        elif "g1" in self.ph:
            if self.fused():
                self.nonce_read(232)
                a("v_mov_b32 v%d, 0" % VLOOK)
                l = self.newlab("lk"); l2 = self.newlab("lk")
                a("s_cmp_lg_u32 s3, 0")
                a("s_cbranch_scc1 %s" % l)
                a("s_lshl_b32 s79, s7, 8")
                a("s_add_u32 s79, s79, %d" % WS_FW)
                self.look_line("s79", 48, VLOOK)
                a("s_waitcnt vmcnt(1)")
                a("s_branch %s" % l2)
                a.lab(l)
                a("s_waitcnt vmcnt(0)")
                a.lab(l2)
                self.g_signal_h(None)
            else:
                self.g_signal_h(0)
        raw = "rawlds" in self.ph and pre and not epb
        if raw:
            if self.fused(): self.lds_spin(LDS_SFREE, 232, 4)
            self.g2_raw_stage()
        if pre and not epb:
            if self.fused():
                lo = self.newlab("ww"); ld = self.newlab("wd")
                a("s_cmp_lg_u32 s3, 0")
                a("s_cbranch_scc1 %s" % lo)
                self.lds_spin(LDS_SFREE, 232, 4)
                self.lds_spin(LDS_UOK, 232, 3)
                if "gapstamps" in self.ph: self.stamp(2, force=True)
                self.check_line("s79", VLOOK, 0)
                if "gapstamps" in self.ph: self.stamp(3, force=True)
                a("v_mov_b32 v232, %d" % LDS_WOK)
                a("v_mov_b32 v233, 1")
                a("ds_write_b32 v232, v233")
                if "hall" in self.ph:
                    a("s_lshr_b32 s79, s6, 1")
                    a("s_lshl_b32 s79, s79, 7")
                    a("s_add_u32 s79, s79, %d" % WS_FH)
                    self.look_line("s79", 16, VLOOK)
                a("s_branch %s" % ld)
                a.lab(lo)
                self.lds_spin(LDS_WOK, 232)
                a.lab(ld)
                if "hall" not in self.ph:
                    a("s_lshr_b32 s79, s6, 1")
                    a("s_lshl_b32 s79, s79, 7")
                    a("s_lshl_b32 s67, s3, 4")
                    a("s_add_u32 s79, s79, s67")
                    a("s_add_u32 s79, s79, %d" % WS_FH)
                    self.look_line("s79", 4, VLOOK)
            if "gapstamps" in self.ph: self.stamp(4, force=True)
            self.jitter()
            regl, dmal = self.g2_burst_atoms()
            a.ext(flat(regl))
            if raw:
                a("s_add_u32 s71, s71, %d" % (3 * 5120))
                a("s_add_u32 s72, s72, %d" % (3 * 5120))
            else:
                a.ext(flat(dmal))
            if "gapstamps" in self.ph: self.stamp(5, force=True)
        fintrim = "fintrim" in self.ph
        if fintrim: self.g2_final_addrs()
        if not epb: self.g2_wait_inputs(looked=pre)
        if "gapstamps" in self.ph: self.stamp(6, force=True)
        self.jitter()
        self.stamp(5)
        self.clk(5)
        def srcA(k):
            if not pre: return "g"
            return "pre" if k < 4 else ("lds" if k < 7 else "g")
        def loadA_any(k):
            S = SETS[k % 4]
            if srcA(k) == "g": return loadsA(S)
            if srcA(k) == "lds":
                if raw: return self.g2_raw_reads(k, S)
                return ["ds_read_b128 v[%d:%d], v%d offset:%d" % (S + 16 + 4 * dt, S + 19 + 4 * dt, VRS + k - 4, 1024 * dt) for dt in range(5)]
            return []
        nL = lambda k: nB(k) + (5 if srcA(k) == "g" else 0)
        deep = "deepB" in self.ph and pre
        def M(S, dt, tau, first):
            c = "0" if first else "v[%d:%d]" % (acc(dt, tau), acc(dt, tau) + 3)
            return "v_mfma_f32_16x16x32_bf16 v[%d:%d], v[%d:%d], v[%d:%d], %s" % (acc(dt, tau), acc(dt, tau) + 3, S + 16 + 4 * dt, S + 19 + 4 * dt, S + 4 * tau, S + 4 * tau + 3, c)
        W = lambda dt, tau: "ds_write_b128 v%d, v[%d:%d] offset:%d" % (VRS + tau - 1, acc(dt, tau), acc(dt, tau) + 3, 1024 * dt)
        gk = 7 if "gok7" in self.ph else (6 if "gok6" in self.ph else NS - 4)
        def kloop(NS, gk):
            vm = []
            def nvm(atoms): return sum(1 for x in flat(atoms) if x.startswith("buffer_"))
            def issue(tag, atoms): vm.extend([tag] * nvm(atoms))
            for k in range(4):
                L = loadsB(SETS[k], k); a.ext(flat(L)); issue(("B", k), L)
            for k in range(NS):
                S = SETS[k % 4]
                need = [i for i, t in enumerate(vm) if t in (("B", k), ("A", k))]
                rem = len(vm) - 1 - max(need)
                if srcA(k) == "lds": a("s_waitcnt vmcnt(%d) lgkmcnt(0)" % rem)
                else: a("s_waitcnt vmcnt(%d)" % rem)
                if "gapstamps" in self.ph and k == 0: self.stamp(7, force=True)
                LA = loadA_any(k + 3) if k + 3 < NS else []
                LB = loadsB(S, k + 4) if k + 4 < NS else []
                if k == NS - 1 and fintrim:
                    for dt in range(5): a(M(S, dt, 1, False))
                    for dt in range(5): a(M(S, dt, 2, False))
                    for dt in range(5): a(M(S, dt, 3, False)); a(W(dt, 1))
                    for dt in range(5): a(M(S, dt, 0, False)); a(W(dt, 2))
                    for dt in range(5): a(W(dt, 3))
                else:
                    ai = 0
                    for tau in range(4):
                        for dt in range(5):
                            a(M(S, dt, tau, k == 0))
                            if dt in (1, 3) and ai < len(LA):
                                a.ext(flat([LA[ai]]));
                                if nvm([LA[ai]]): issue(("A", k + 3), [LA[ai]])
                                ai += 1
                        if LB: a.ext(flat([LB[tau]])); issue(("B", k + 4), [LB[tau]])
                    while ai < len(LA):
                        a.ext(flat([LA[ai]]))
                        if nvm([LA[ai]]): issue(("A", k + 3), [LA[ai]])
                        ai += 1
                if k == gk and self.fused(): self.lds_inc(LDS_GOK, 232)
        if deep and "ks921" in self.ph:
            l21 = self.newlab("k21"); ldn = self.newlab("kdn")
            a("s_cmp_eq_u32 s3, 3")
            a("s_cbranch_scc1 %s" % l21)
            kloop(9, 3)
            a("s_branch %s" % ldn)
            a.lab(l21)
            kloop(21, 15)
            a.lab(ldn)
        elif deep:
            kloop(NS, gk)
        else:
            for k in range(3):
                a.ext(flat(loadsB(SETS[k], k) + loadA_any(k)))
            for k in range(NS):
                rem = sum(nL(j) for j in range(k + 1, min(NS - 1, k + 2) + 1))
                if srcA(k) == "lds": a("s_waitcnt vmcnt(%d) lgkmcnt(0)" % rem)
                else: a("s_waitcnt vmcnt(%d)" % rem)
                fill = (loadsB(SETS[(k + 3) % 4], k + 3) + loadA_any(k + 3)) if k + 3 < NS else []
                if "k2stamps" in self.ph and k < 9: self.stamp(k + 1, force=True)
                if k == NS - 1 and fintrim:
                    S = SETS[k % 4]
                    for dt in range(5): a(M(S, dt, 1, False))
                    for dt in range(5): a(M(S, dt, 2, False))
                    for dt in range(5): a(M(S, dt, 3, False)); a(W(dt, 1))
                    for dt in range(5): a(M(S, dt, 0, False)); a(W(dt, 2))
                    for dt in range(5): a(W(dt, 3))
                else:
                    a.ext(interleave(mm(SETS[k % 4], k == 0), fill))
                if k == gk and self.fused(): self.lds_inc(LDS_GOK, 232)
        self.stamp(6)
        self.clk(7)
        if not fintrim:
            a("s_nop 7")
            for tau in range(1, 4):
                for dt in range(5):
                    a("ds_write_b128 v%d, v[%d:%d] offset:%d" % (VRS + tau - 1, acc(dt, tau), acc(dt, tau) + 3, 1024 * dt))
        a("s_waitcnt lgkmcnt(0)")
        self.jitter()
        a("s_barrier")
        self.stamp(7)
        if not fintrim: self.g2_final_addrs()
        R = 80
        for j in range(3):
            for dt in range(5):
                r = R + (j * 5 + dt) * 4
                a("ds_read_b128 v[%d:%d], v%d offset:%d" % (r, r + 3, T + 1, 5120 * j + 1024 * dt))
        Y = 140
        for dt in range(5):
            if dt < 4: a("ds_read_b64_tr_b16 v[%d:%d], v%d offset:%d" % (Y + 2 * dt, Y + 2 * dt + 1, T + 5, 128 * (32 * (dt >> 1) + 4 * (dt & 1))))
            else: a("ds_read_b64_tr_b16 v[%d:%d], v%d offset:%d" % (Y + 2 * dt, Y + 2 * dt + 1, T + 6, 128 * 64))
        a("ds_read_b32 v%d, v%d" % (T + 8, T + 8))
        a("s_waitcnt lgkmcnt(0)")
        for dt in range(5):
            for h in range(2):
                x = acc(dt, 0) + 2 * h
                p = [R + (j * 5 + dt) * 4 + 2 * h for j in range(3)]
                a("v_pk_add_f32 v[%d:%d], v[%d:%d], v[%d:%d]" % (p[0], p[0] + 1, p[0], p[0] + 1, p[1], p[1] + 1))
                a("v_pk_add_f32 v[%d:%d], v[%d:%d], v[%d:%d]" % (x, x + 1, x, x + 1, p[2], p[2] + 1))
        for dt in range(5):
            for h in range(2):
                x = acc(dt, 0) + 2 * h
                p = R + dt * 4 + 2 * h
                a("v_pk_add_f32 v[%d:%d], v[%d:%d], v[%d:%d]" % (x, x + 1, x, x + 1, p, p + 1))
        U = 150
        for dt in range(5):
            for h in range(2):
                a("v_lshlrev_b32 v%d, 16, v%d" % (U + 4 * dt + 2 * h, Y + 2 * dt + h))
                a("v_and_b32 v%d, 0xffff0000, v%d" % (U + 4 * dt + 2 * h + 1, Y + 2 * dt + h))
        G2 = T + 12
        assert G2 % 2 == 0
        a("v_mov_b32 v%d, v%d" % (G2, T + 8))
        a("v_mov_b32 v%d, v%d" % (G2 + 1, T + 8))
        for dt in range(5):
            for h in range(2):
                x = acc(dt, 0) + 2 * h; u = U + 4 * dt + 2 * h
                a("v_pk_add_f32 v[%d:%d], v[%d:%d], v[%d:%d] neg_lo:[0,1] neg_hi:[0,1]" % (u, u + 1, u, u + 1, x, x + 1))
        for dt in range(5):
            for h in range(2):
                x = acc(dt, 0) + 2 * h; u = U + 4 * dt + 2 * h
                a("v_pk_fma_f32 v[%d:%d], v[%d:%d], v[%d:%d], v[%d:%d]" % (x, x + 1, u, u + 1, G2, G2 + 1, x, x + 1))
        O = 176
        for dt in range(5):
            for h in range(2):
                x = acc(dt, 0) + 2 * h
                a("v_cvt_pk_bf16_f32 v%d, v%d, v%d" % (O + 2 * dt + h, x, x + 1))
        fl = " sc1" if "outsc1" in self.ph else (" nt" if "outnt" in self.ph else "")
        a("buffer_store_dwordx4 v[%d:%d], v%d, s[24:27], 0 offen%s" % (O, O + 3, T + 9, fl))
        a("buffer_store_dwordx4 v[%d:%d], v%d, s[24:27], 0 offen offset:64%s" % (O + 4, O + 7, T + 9, fl))
        a("buffer_store_dwordx2 v[%d:%d], v%d, s[24:27], 0 offen offset:128%s" % (O + 8, O + 9, T + 10, fl))
        self.stamp(8)

    def g2_wait_inputs(self, looked=False):
        if not self.fused(): return
        a = self.a
        T = 232
        if looked and "hall" not in self.ph:
            self.check_line("s79", 254, 20 if "rawlds" in self.ph else 35, sleep=4)
            return
        lo = self.newlab("hw"); ld = self.newlab("hd")
        a("s_cmp_lg_u32 s3, 0")
        a("s_cbranch_scc1 %s" % lo)
        if looked:
            self.check_line("s79", 254, 20 if "rawlds" in self.ph else 35)
        else:
            a("s_lshr_b32 s78, s6, 1")
            a("s_lshl_b32 s78, s78, 7")
            a("s_add_u32 s78, s78, %d" % WS_FH)
            self.poll_line("s78", 16, T, sleep=4)
        a("v_mov_b32 v%d, %d" % (T, LDS_HOK))
        a("v_mov_b32 v%d, 1" % (T + 1))
        a("ds_write_b32 v%d, v%d" % (T, T + 1))
        a("s_branch %s" % ld)
        a.lab(lo)
        self.lds_spin(LDS_HOK, T)
        a.lab(ld)

    def s_final(self):
        a = self.a
        n = self.name
        l = self.newlab("fin")
        a("s_cmp_lg_u32 s3, 7")
        a("s_cbranch_scc1 %s" % l)
        if self.fused(): self.lds_spin(LDS_GOK, 2, 4)
        self.jitter()
        self.y_wait_inputs()
        a("v_mbcnt_lo_u32_b32 v0, -1, 0")
        a("v_mbcnt_hi_u32_b32 v0, -1, v0")
        a("v_lshrrev_b32 v1, 3, v0")
        a("v_mul_u32_u24 v1, %d, v1" % ROWS)
        a("v_and_b32 v2, 7, v0")
        a("v_lshl_add_u32 v1, v2, 4, v1")
        a("s_mul_i32 s67, s7, %d" % (80 * ROWS))
        a("s_lshl_b32 s68, s6, 7")
        a("s_add_u32 s67, s67, s68")
        a("s_add_u32 s67, s67, %d" % WS_Y)
        for i in range(10):
            a("buffer_load_dwordx4 v[%d:%d], v1, s[20:23], s67 offen sc1" % (8 + 4 * i, 11 + 4 * i))
            if i < 9: a("s_add_u32 s67, s67, %d" % (8 * ROWS))
        a("s_lshl_b32 s67, s6, 8")
        a("s_add_u32 s67, s67, %d" % WS_G)
        a("v_lshlrev_b32 v3, 2, v0")
        a("buffer_load_dword v4, v3, s[20:23], s67 offen sc1")
        if self.fused() and "nonearly" not in self.ph: self.nonce_look()
        a("v_lshlrev_b32 v2, 4, v0")
        a("v_add_u32 v2, %d, v2" % LDS_YT)
        a("v_add_u32 v3, %d, v3" % LDS_GT)
        a("s_waitcnt vmcnt(0)")
        for i in range(10):
            a("ds_write_b128 v2, v[%d:%d] offset:%d" % (8 + 4 * i, 11 + 4 * i, 1024 * i))
        a("ds_write_b32 v3, v4")
        a("s_waitcnt lgkmcnt(0)")
        a("s_barrier")
        if self.fused() and "nonearly" not in self.ph: self.nonce_update(looked=True)
        a("s_branch %s_fd" % l)
        a.lab(l)
        a("s_barrier")
        a.lab("%s_fd" % l)

    def y_wait_inputs(self):
        if not self.fused(): return
        a = self.a
        a("v_mbcnt_lo_u32_b32 v0, -1, 0")
        a("v_mbcnt_hi_u32_b32 v0, -1, v0")
        a("s_mul_i32 s67, s7, 320")
        a("s_add_u32 s67, s67, %d" % WS_FY)
        a("v_lshl_add_u32 v1, v0, 2, s67")
        a("v_add_u32 v2, 256, v1")
        a("s_lshl_b32 s68, s6, 5")
        a("s_add_u32 s68, s68, %d" % (WS_FG - 64))
        a("v_lshl_add_u32 v3, v0, 2, s68")
        a("v_cmp_le_u32 vcc, 16, v0")
        a("s_nop 1")
        a("v_cndmask_b32 v2, v2, v3, vcc")
        a("v_subrev_u32 v3, 24, v0")
        a("v_lshlrev_b32 v3, 10, v3")
        a("s_lshl_b32 s68, s2, 2")
        a("s_add_u32 s68, s68, %d" % WS_FY)
        a("v_add_u32 v3, s68, v3")
        a("v_cmp_le_u32 vcc, 24, v0")
        a("s_nop 1")
        a("v_cndmask_b32 v2, v2, v3, vcc")
        a("s_cmp_lt_u32 s2, 128")
        a("s_cselect_b32 s68, 27, 26")
        a("v_mov_b32 v3, s67")
        a("v_cmp_le_u32 vcc, s68, v0")
        a("s_nop 1")
        a("v_cndmask_b32 v2, v2, v3, vcc")
        def loads():
            a("buffer_load_dword v4, v1, s[20:23], 0 offen sc1")
            a("buffer_load_dword v5, v2, s[20:23], 0 offen sc1")
        self.poll(loads, [4, 5], 6, sleep=8)

    def fused(self): return "fused" in self.ph

    def nonce_load(self):
        a = self.a
        if "snonce" in self.ph:
            a("s_add_u32 s68, s%d, %d" % (P_WS, WS_NON))
            a("s_addc_u32 s69, s%d, 0" % (P_WS + 1))
            a("s_load_dword s55, s[68:69], 0")
            return
        a("v_mov_b32 v1, 0")
        a("s_mov_b32 s67, %d" % WS_NON)
        a("buffer_load_dword v242, v1, s[20:23], s67 offen sc1")
    def nonce_publish_local(self):
        a = self.a
        if "snonce" in self.ph:
            a("s_waitcnt lgkmcnt(0)")
            a("s_add_u32 s64, s55, 1")
            a("v_mov_b32 v242, s64")
            a("v_mov_b32 v1, %d" % LDS_NONCE)
            a("ds_write_b32 v1, v242")
            return
        a("v_add_u32 v242, 1, v242")
        a("v_mov_b32 v1, %d" % LDS_NONCE)
        a("ds_write_b32 v1, v242")
        a("v_readfirstlane_b32 s64, v242")
    def nonce_look(self):
        a = self.a
        l = self.newlab("nl")
        a("v_mov_b32 v59, 0")
        a("s_cmp_lg_u32 s2, 0")
        a("s_cbranch_scc1 %s" % l)
        a("v_lshlrev_b32 v59, 4, v0")
        a("s_mov_b32 s78, %d" % WS_FG)
        a("buffer_load_dwordx4 v[60:63], v59, s[20:23], s78 offen sc1")
        a.lab(l)
    def nonce_update(self, looked=False):
        a = self.a
        l = self.newlab("nu"); l2 = self.newlab("nu")
        a("s_cmp_lg_u32 s2, 0")
        a("s_cbranch_scc1 %s" % l)
        if looked:
            for i in range(4):
                if i == 0: a("v_cmp_eq_u32 vcc, s64, v60")
                else:
                    a("v_cmp_eq_u32 s[76:77], s64, v%d" % (60 + i))
                    a("s_nop 1")
                    a("s_and_b64 vcc, vcc, s[76:77]")
            a("s_nop 1")
            a("s_cmp_eq_u64 vcc, -1")
            a("s_cbranch_scc1 %s" % l2)
        a("v_mbcnt_lo_u32_b32 v2, -1, 0")
        a("v_mbcnt_hi_u32_b32 v2, -1, v2")
        a("v_lshlrev_b32 v2, 4, v2")
        a("s_mov_b32 s78, %d" % WS_FG)
        self.poll(lambda: a("buffer_load_dwordx4 v[4:7], v2, s[20:23], s78 offen sc1"), [4, 5, 6, 7], 2, sleep=8)
        a.lab(l2)
        a("s_mov_b32 s69, %d" % WS_NON)
        self.flag_set("s69", 2)
        a.lab(l)

    def nonce_read(self, vt):
        a = self.a
        a("v_mov_b32 v%d, %d" % (vt, LDS_NONCE))
        a("ds_read_b32 v%d, v%d" % (vt, vt))
        a("s_waitcnt lgkmcnt(0)")
        a("v_readfirstlane_b32 s64, v%d" % vt)
        a("s_nop 1")

    def flag_set(self, soff_reg, vt):
        a = self.a
        a("v_mov_b32 v%d, s64" % vt)
        a("v_mov_b32 v%d, 0" % (vt + 1))
        a("s_mov_b64 exec, 1")
        a("buffer_store_dword v%d, v%d, s[20:23], %s offen sc1" % (vt, vt + 1, soff_reg))
        a("s_mov_b64 exec, -1")

    def poll(self, loads, vregs, vt, sleep=8):
        a = self.a
        lp = self.newlab("pl"); ld = self.newlab("pd")
        a("s_mov_b32 s69, 0")
        a.lab(lp)
        loads()
        a("s_waitcnt vmcnt(0)")
        for i, r in enumerate(vregs):
            if i == 0: a("v_cmp_eq_u32 vcc, s64, v%d" % r)
            else:
                a("v_cmp_eq_u32 s[76:77], s64, v%d" % r)
                a("s_nop 1")
                a("s_and_b64 vcc, vcc, s[76:77]")
        a("s_nop 1")
        a("s_cmp_eq_u64 vcc, -1")
        a("s_cbranch_scc1 %s" % ld)
        a("s_add_u32 s69, s69, 1")
        a("s_cmp_lt_u32 s69, 0x40000")
        a("s_cbranch_scc0 %s" % ld)
        a("s_sleep %d" % sleep)
        a("s_branch %s" % lp)
        a.lab(ld)

    def look_line(self, soff, nflags, vt):
        a = self.a
        a("v_mbcnt_lo_u32_b32 v%d, -1, 0" % vt)
        a("v_mbcnt_hi_u32_b32 v%d, -1, v%d" % (vt, vt))
        a("v_cmp_gt_u32 vcc, %d, v%d" % (nflags, vt))
        a("v_lshlrev_b32 v%d, 2, v%d" % (vt, vt))
        a("s_nop 0")
        a("v_cndmask_b32 v%d, 0, v%d, vcc" % (vt, vt))
        a("buffer_load_dword v%d, v%d, s[20:23], %s offen sc1" % (vt + 1, vt, soff))

    def check_line(self, soff, vt, nyounger, sleep=2):
        a = self.a
        l = self.newlab("ck")
        a("s_waitcnt vmcnt(%d)" % nyounger)
        a("v_cmp_eq_u32 vcc, s64, v%d" % (vt + 1))
        a("s_nop 1")
        a("s_cmp_eq_u64 vcc, -1")
        a("s_cbranch_scc1 %s" % l)
        self.poll(lambda: a("buffer_load_dword v%d, v%d, s[20:23], %s offen sc1" % (vt + 1, vt, soff)), [vt + 1], vt, sleep)
        a.lab(l)

    def poll_line(self, soff, nflags, vt, sleep=8):
        a = self.a
        a("v_mbcnt_lo_u32_b32 v%d, -1, 0" % vt)
        a("v_mbcnt_hi_u32_b32 v%d, -1, v%d" % (vt, vt))
        a("v_cmp_gt_u32 vcc, %d, v%d" % (nflags, vt))
        a("v_lshlrev_b32 v%d, 2, v%d" % (vt, vt))
        a("s_nop 0")
        a("v_cndmask_b32 v%d, 0, v%d, vcc" % (vt, vt))
        self.poll(lambda: a("buffer_load_dword v%d, v%d, s[20:23], %s offen sc1" % (vt + 1, vt, soff)), [vt + 1], vt, sleep)

    def build(self):
        a = self.a
        n = self.name
        a.l.append(".globl %s" % n)
        a.l.append(".p2align 8")
        a.l.append(".type %s,@function" % n)
        a.l.append("%s:" % n)
        self.prologue()
        self.jitter()
        a("s_cmp_ge_u32 s3, 4")
        a("s_cbranch_scc1 %s_S" % n)
        if "g1" in self.ph:
            self.g_gemm1()
        if "g2" in self.ph:
            self.g_gemm2()
        self.dbgtime_end()
        self.stamp_flush()
        a("s_endpgm")
        a.lab("%s_S" % n)
        if "earlyg" in self.ph and "earlys3" not in self.ph: self.srds()
        if "g1" in self.ph:
            self.s_phase1()
        if "ssm" in self.ph:
            self.s_ssm()
        if "g2" in self.ph:
            self.s_final()
        self.stamp_flush()
        a.lab("%s_end" % n)
        a("s_endpgm")
        return a.text()

def kd(name):
    return """.amdhsa_kernel %s
  .amdhsa_next_free_vgpr 256
  .amdhsa_next_free_sgpr 102
  .amdhsa_accum_offset 256
  .amdhsa_group_segment_fixed_size 0
  .amdhsa_kernarg_size 136
  .amdhsa_user_sgpr_count 2
  .amdhsa_user_sgpr_kernarg_segment_ptr 1
  .amdhsa_system_sgpr_workgroup_id_x 1
.end_amdhsa_kernel
""" % name

HEADER = open("gated_mix__ssm_conv_s4__swiglu_ffn__prompt.s.ref").read().split("; Override launch")[0]

DOC = """;
;     by buffer_load ... lds, k order rotated per workgroup); epilogue h = silu(g) * u -> bf16, stored as MFMA B fragments in d_ws.
;     values = r + 16 j patterns, so exp factors into two small power tables (complex recurrences) contracted over the 192 modes
"""

def emit(kernels, path):
    txt = HEADER
    if len(kernels) == 1:
        txt += "; @launch grid=(256,1,1) block=(512,1,1) lds=%d\n" % LDS_TOTAL
    else:
        for (n, p, s) in kernels:
            txt += "; @launch kernel=%s grid=(256,1,1) block=(512,1,1) lds=%d\n" % (n, LDS_TOTAL)
    txt += DOC
    txt += '.amdgcn_target "amdgcn-amd-amdhsa--gfx950"\n.text\n'
    for (n, p, s) in kernels:
        txt += Gen(n, p, s).build()
    txt += '.section .rodata,"a"\n'
    for (n, p, s) in kernels:
        txt += ".p2align 6\n" + kd(n)
    open(path, "w").write(txt)

if __name__ == "__main__":
    mode = sys.argv[1]; path = sys.argv[2]
    stamps = len(sys.argv) > 3 and sys.argv[3] == "stamps"
    if mode.startswith("g1+") or mode == "g1":
        emit([(KNAME, set(mode.split("+")), stamps)], path)
    elif mode == "g1,ssm":
        emit([("ka_kernel", {"g1"}, False), ("kb_kernel", {"ssm", "dumpk"}, stamps)], path)
    elif mode == "3k":
        emit([("ka_kernel", {"g1"}, False), ("kb_kernel", {"ssm"}, False), ("kc_kernel", {"g2"}, stamps)], path)
    elif mode == "3k+1":
        emit([("ka_kernel", {"g1"}, False), ("kb_kernel", {"ssm"}, False), ("kc_kernel", {"g2"}, stamps), ("kd_kernel", set(), False)], path)
    elif mode == "3k+3":
        emit([("ka_kernel", {"g1"}, False), ("kb_kernel", {"ssm"}, False), ("kc_kernel", {"g2"}, stamps), ("kd_kernel", set(), False), ("ke_kernel", set(), False), ("kf_kernel", set(), False)], path)
    elif mode == "3k_dbg":
        emit([("ka_kernel", {"g1", "dbgtime"}, False), ("kb_kernel", {"ssm"}, False), ("kc_kernel", {"g2", "dbgtime"}, False)], path)
    elif mode == "fused":
        emit([(KNAME, {"g1", "ssm", "g2", "fused"}, stamps)], path)
    elif mode == "fused_notouch":
        emit([(KNAME, {"g1", "ssm", "g2", "fused", "notouch"}, stamps)], path)
    elif mode == "fused_pk":
        emit([(KNAME, {"g1", "ssm", "g2", "fused", "pkhead"}, stamps)], path)
    elif mode.startswith("F:"):
        emit([(KNAME, {"g1", "ssm", "g2", "fused"} | set(mode[2:].split("+")), stamps)], path)
    elif mode == "fused_dbg":
        emit([(KNAME, {"g1", "ssm", "g2", "fused", "dbgtime"}, stamps)], path)
    elif mode == "g1,ssm,nodump":
        emit([("ka_kernel", {"g1"}, False), ("kb_kernel", {"ssm"}, stamps)], path)
```

```python
import sys, math

KNAME = "gated_mix__ssm_conv_s4__swiglu_ffn__prompt_kernel"

WS_H    = 0x000000
WS_WD   = 0x600000
ROWS    = 4224
WS_UT   = 0x800000
WS_Y    = 0xB00000
WS_G    = 0xE00000
WS_FU   = 0xE10000
WS_FW   = 0xE15000
WS_FH   = 0xE11000
WS_FY   = 0xE12000
WS_NON  = 0xE13000
WS_FG   = 0xE14000
WS_TS   = 0xF00000
WS_DBG  = 0x1000000

STAGE   = 40960
ST_WG   = 16384
ST_WU   = 28672
LDS_S   = 3 * STAGE
TABROW  = 272
TABTILE = 16 * TABROW
TAB_SZ  = 2 * TABTILE
LDS_TAB = LDS_S
KR_SZ   = 4224
LDS_KR  = LDS_TAB + 3 * TAB_SZ
LDS_MISC = LDS_KR + 3 * KR_SZ
LDS_TOTAL = 163840
LDS_NONCE = LDS_MISC
LDS_CNT   = LDS_MISC + 8
UC_STRIDE = 4640
UC_SZ   = 4 * UC_STRIDE
LDS_UC  = 0
LDS_WDS_EARLY = 148992
LDS_RED = 57344
LDS_YT  = LDS_TAB
LDS_GT  = LDS_MISC + 64
LDS_HOK = LDS_MISC + 12
LDS_WOK = LDS_MISC + 16
LDS_UOK = LDS_MISC + 20
LDS_GOK = LDS_MISC + 24
LDS_UCOK = LDS_MISC + 28
LDS_SFREE = LDS_MISC + 32

class Asm:
    def __init__(self):
        self.l = []
    def __call__(self, s):
        for x in s.split("\n"):
            x = x.strip()
            if x: self.l.append("    " + x)
    def lab(self, s):
        self.l.append(s + ":")
    def ext(self, lst):
        for x in lst: self(x)
    def text(self):
        return "\n".join(self.l) + "\n"

def interleave(main, fill, start=0, span=None):
    out = []
    m = len(fill)
    n = len(main) if span is None else min(len(main), start + span)
    j = 0
    for i, x in enumerate(main):
        out.append(x)
        if i >= start:
            tgt = (m * (i - start + 1) + (n - start) - 1) // (n - start) if n > start else m
            while j < min(tgt, m):
                f = fill[j]
                if isinstance(f, tuple): out.extend(f)
                else: out.append(f)
                j += 1
    while j < m:
        f = fill[j]
        if isinstance(f, tuple): out.extend(f)
        else: out.append(f)
        j += 1
    return out

def flat(L):
    o = []
    for x in L:
        if isinstance(x, tuple): o.extend(x)
        else: o.append(x)
    return o

def vr(a, n=1):
    return "v%d" % a if n == 1 else "v[%d:%d]" % (a, a + n - 1)
def sr(a, n=1):
    return "s%d" % a if n == 1 else "s[%d:%d]" % (a, a + n - 1)

S_W, S_WAVE, S_M, S_N, S_M2, S_N2 = 2, 3, 4, 5, 6, 7
SRD_X, SRD_WG, SRD_WU, SRD_WS, SRD_OUT, SRD_WD = 8, 12, 16, 20, 24, 28
P_U, P_ARE, P_AIM, P_BRE, P_BIM, P_CRE, P_CIM, P_LDT = 32, 34, 36, 38, 40, 42, 44, 46
P_DSK, P_BX, P_WG, P_WU, P_WD, P_GW, P_OUT, P_DBG, P_WS = 48, 50, 52, 54, 56, 58, 60, 62, 64
S_TS = 80

class Gen:
    def __init__(self, name, phases, stamps=False):
        self.name = name
        self.ph = phases
        self.a = Asm()
        self.stamps = stamps
        self.nlab = 0
    def newlab(self, p):
        self.nlab += 1
        return "L_%s_%s_%d" % (self.name[:6], p, self.nlab)

    def capture(self, fn):
        old = self.a
        self.a = Asm()
        fn()
        lst = [x.strip() for x in self.a.l]
        self.a = old
        return lst

    def jitter(self):
        if "jitter" not in self.ph: return
        a = self.a
        l = self.newlab("jt"); d = self.newlab("jd")
        a("s_memtime s[90:91]")
        a("s_waitcnt lgkmcnt(0)")
        a("s_mul_i32 s90, s90, 0x9e3779b1")
        a("s_lshr_b32 s90, s90, 25")
        a("s_cmp_ge_u32 s90, 64")
        a("s_cbranch_scc1 %s" % d)
        a.lab(l)
        a("s_cmp_eq_u32 s90, 0")
        a("s_cbranch_scc1 %s" % d)
        a("s_sleep 2")
        a("s_sub_u32 s90, s90, 1")
        a("s_branch %s" % l)
        a.lab(d)

    def clk(self, i):
        if "clk" in self.ph and self.stamps:
            self.a("s_memrealtime s[%d:%d]" % (S_TS + 2 * i, S_TS + 2 * i + 1))
            self.a("s_memtime s[%d:%d]" % (S_TS + 2 * i + 2, S_TS + 2 * i + 3))
            self.a("s_waitcnt lgkmcnt(0)")

    def stamp(self, i, force=False):
        if "clk" in self.ph and i != 0: return
        if ("kstamps" in self.ph or "k2stamps" in self.ph or "ststamps" in self.ph or "gapstamps" in self.ph) and not force and i != 0: return
        if self.stamps:
            self.a("%s s[%d:%d]" % ("s_memrealtime" if "rt" in self.ph else "s_memtime", S_TS + 2 * i, S_TS + 2 * i + 1))
            self.a("s_waitcnt lgkmcnt(0)")
    def stamp_flush(self):
        if not self.stamps: return
        a = self.a
        a("s_lshl_b32 s66, s2, 3")
        a("s_add_u32 s66, s66, s3")
        a("s_lshl_b32 s66, s66, 7")
        a("s_add_u32 s66, s66, 0x%x" % WS_TS)
        a("v_mov_b32 v250, 0")
        for i in range(10):
            a("v_mov_b32 v252, s%d" % (S_TS + 2 * i))
            a("v_mov_b32 v253, s%d" % (S_TS + 2 * i + 1))
            a("buffer_store_dwordx2 v[252:253], v250, s[20:23], s66 offen offset:%d" % (8 * i))
            a("s_nop 1")
        a("s_waitcnt vmcnt(0)")

    def prologue(self):
        a = self.a
        a("s_cmp_ge_u32 s2, 256")
        a("s_cbranch_scc1 %s_end" % self.name)
        a("s_load_dwordx16 s[32:47], s[0:1], 0")
        a("s_load_dwordx16 s[48:63], s[0:1], 64")
        a("s_load_dwordx2 s[64:65], s[0:1], 128")
        if "warmc0" in self.ph: self.warm_code(early=True)
        a("v_lshrrev_b32 v1, 6, v0")
        a("v_and_b32 v0, 63, v0")
        a("v_readfirstlane_b32 s3, v1")
        a("s_and_b32 s66, s2, 7")
        a("s_lshr_b32 s67, s2, 3")
        a("s_and_b32 s68, s67, 7")
        a("s_lshr_b32 s69, s67, 3")
        a("s_and_b32 s70, s66, 1")
        a("s_lshl_b32 s70, s70, 3")
        a("s_or_b32 s4, s70, s68")
        a("s_lshr_b32 s70, s66, 1")
        a("s_lshl_b32 s70, s70, 2")
        a("s_or_b32 s5, s70, s69")
        a("s_and_b32 s70, s66, 3")
        a("s_lshl_b32 s70, s70, 3")
        a("s_or_b32 s6, s70, s68")
        a("s_lshr_b32 s70, s66, 2")
        a("s_lshl_b32 s70, s70, 2")
        a("s_or_b32 s7, s70, s69")
        if "sametile" in self.ph:
            a("s_mov_b32 s4, 0"); a("s_mov_b32 s5, 0")
        if "samem" in self.ph:
            a("s_mov_b32 s4, 0")
        if "samen" in self.ph:
            a("s_mov_b32 s5, 0")
        if self.stamps:
            for i in range(10):
                a("s_mov_b64 s[%d:%d], 0" % (S_TS + 2 * i, S_TS + 2 * i + 1))
        if "earlyg" not in self.ph: self.srds()

    def srds(self, which=None):
        a = self.a
        if which != 1: a("s_waitcnt lgkmcnt(0)")
        def srd(base, ptr, size):
            a("s_mov_b32 s%d, s%d" % (base, ptr))
            a("s_and_b32 s%d, s%d, 0xffff" % (base + 1, ptr + 1))
            a("s_mov_b32 s%d, 0x%x" % (base + 2, size))
            a("s_mov_b32 s%d, 0x20000" % (base + 3))
        if which != 1:
            srd(SRD_X, P_U, 2048 * 640 * 2)
            srd(SRD_WG, P_WG, 640 * 1536 * 2)
            srd(SRD_WU, P_WU, 640 * 1536 * 2)
        if which != 0:
            srd(SRD_WS, P_WS, 0x10000000)
            srd(SRD_OUT, P_OUT, 2048 * 640 * 2)
            srd(SRD_WD, P_WD, 640 * 1536 * 2)
        if which == 1: return
        self.stamp(0)
        if "dbgtime" in self.ph:
            a("s_memrealtime s[96:97]")
            a("s_memtime s[98:99]")
            a("s_mov_b64 s[100:101], s[62:63]")
            a("s_waitcnt lgkmcnt(0)")

    def dbgtime_end(self):
        a = self.a
        if "dbgtime" not in self.ph: return
        l = self.newlab("dbt")
        a("s_cmp_lg_u32 s2, 0"); a("s_cbranch_scc1 %s" % l)
        a("s_cmp_lg_u32 s3, 0"); a("s_cbranch_scc1 %s" % l)
        a("s_waitcnt vmcnt(0)")
        a("s_memrealtime s[92:93]")
        a("s_memtime s[94:95]")
        a("s_waitcnt lgkmcnt(0)")
        a("s_sub_u32 s92, s92, s96")
        a("s_sub_u32 s94, s94, s98")
        a("v_mov_b32 v250, 0")
        a("v_mov_b32 v252, s92")
        a("v_mov_b32 v253, s94")
        a("v_mov_b32 v254, s96")
        a("v_mov_b32 v255, 0x1234")
        a("global_store_dwordx4 v250, v[252:255], s[100:101]")
        a("s_waitcnt vmcnt(0)")
        a.lab(l)

    def rot_r(self, dst, tmp):
        a = self.a
        if "norot" in self.ph:
            a("s_mov_b32 %s, 0" % dst)
            return
        a("s_lshr_b32 %s, s5, 1" % dst)
        a("s_cmp_ge_u32 %s, 5" % dst)
        a("s_cselect_b32 %s, 1, 0" % tmp)
        a("s_cmp_ge_u32 %s, 1" % dst)
        a("s_addc_u32 %s, %s, %s" % (dst, dst, tmp))

    def g_gemm1(self):
        a = self.a
        ACC = 0; FP = 96; FQ = 136
        VXB = 176
        VWA = 182
        VL16 = 196
        T = 200
        accg = lambda ft, tt: ACC + (ft * 4 + tt) * 4
        accu = lambda ft, tt: ACC + 48 + (ft * 4 + tt) * 4
        LANE = 197
        a("v_mov_b32 v%d, v0" % LANE)
        a("s_and_b32 s67, s3, 1")
        a("s_lshr_b32 s68, s3, 1")
        VOX = 191
        a("v_lshrrev_b32 v%d, 3, v%d" % (T, LANE))
        a("s_lshl_b32 s69, s4, 7")
        a("s_lshl_b32 s70, s3, 5")
        a("s_add_u32 s69, s69, s70")
        a("v_add_u32 v%d, s69, v%d" % (T, T))
        a("s_movk_i32 s70, 1280")
        a("v_mul_lo_u32 v%d, v%d, s70" % (T, T))
        a("v_and_b32 v%d, 7, v%d" % (T + 1, LANE))
        a("v_lshrrev_b32 v%d, 4, v%d" % (T + 2, LANE))
        a("v_xor_b32 v%d, v%d, v%d" % (T + 3, T + 1, T + 2))
        a("v_xor_b32 v%d, 4, v%d" % (T + 4, T + 3))
        a("v_lshl_add_u32 v%d, v%d, 4, v%d" % (VOX, T + 3, T))
        a("v_lshl_add_u32 v%d, v%d, 4, v%d" % (VOX + 1, T + 4, T))
        a("s_lshl_b32 s75, s3, 12")
        VOW = 193
        a("s_mul_i32 s76, s3, 3072")
        a("s_add_u32 s77, s76, %d" % ST_WU)
        a("s_add_u32 s76, s76, %d" % ST_WG)
        self.rot_r("s74", "s72")
        def xdma(st):
            base = (st % 3) * STAGE
            L = []
            for i in range(4):
                if i == 0:
                    L.append(("s_lshl_b32 s72, s74, 7", "s_mul_i32 s73, s74, 196608", "s_add_u32 s74, s74, 1",
                              "s_add_u32 m0, s75, %d" % base, "s_cmp_eq_u32 s74, 10", "s_cselect_b32 s74, 0, s74",
                              "buffer_load_dwordx4 v%d, s[8:11], s72 offen lds" % VOX))
                else:
                    L.append(("s_add_u32 s70, s72, %d" % (9216 * i),
                              "buffer_load_dwordx4 v%d, s[8:11], s70 offen offset:%d lds" % (VOX + (i & 1), 1024 * i)))
            for mat, sm, srd in (() if "s3w" in self.ph else ((0, 76, "s[12:15]"), (1, 77, "s[16:19]"))):
                for i in range(3):
                    ld = "buffer_load_dwordx4 v%d, %s, s73 offen offset:%d lds" % (VOW + i, srd, 1024 * i)
                    if mat == 1 and "nowu" in self.ph: ld = "s_nop 0"
                    if i == 2 and "now2" in self.ph: ld = "s_nop 0"
                    if i == 0: L.append(("s_add_u32 m0, s%d, %d" % (sm, base), "s_nop 0", ld))
                    else: L.append(ld)
            return L
        if "ststamps" in self.ph: self.stamp(1, force=True)
        def wcalc():
            a("s_lshl_b32 s69, s3, 4")
            a("s_mul_i32 s69, s69, 3072")
            a("s_mul_i32 s70, s5, 192")
            a("s_add_u32 s69, s69, s70")
            a("s_mov_b32 s70, 43691")
            a("s_movk_i32 s71, 3072")
            for i in range(3):
                a("v_add_u32 v%d, %d, v%d" % (T, 64 * i, LANE))
                a("v_mul_lo_u32 v%d, v%d, s70" % (T + 1, T))
                a("v_lshrrev_b32 v%d, 19, v%d" % (T + 1, T + 1))
                a("v_mul_u32_u24 v%d, 12, v%d" % (T + 2, T + 1))
                a("v_sub_u32 v%d, v%d, v%d" % (T + 2, T, T + 2))
                a("v_lshrrev_b32 v%d, 2, v%d" % (T + 3, T + 1))
                a("v_and_b32 v%d, 2, v%d" % (T + 3, T + 3))
                a("v_xor_b32 v%d, v%d, v%d" % (T + 2, T + 2, T + 3))
                a("v_mul_lo_u32 v%d, v%d, s71" % (T + 1, T + 1))
                a("v_lshl_add_u32 v%d, v%d, 4, v%d" % (T + 1, T + 2, T + 1))
                a("v_add_u32 v%d, s69, v%d" % (T + 1, T + 1))
                a("v_subrev_u32 v%d, %d, v%d" % (VOW + i, 1024 * i, T + 1))

        d0 = xdma(0)
        if "earlyg" in self.ph:
            wcalc()
            self.srds(0)
            a.ext(flat(d0))
        else:
            a.ext(flat(d0[:4]))
            wcalc()
            a.ext(flat(d0[4:]))
        if "late1" not in self.ph: a.ext(flat(xdma(1)))
        if "earlyg" in self.ph: self.srds(1)
        if "ststamps" in self.ph: self.stamp(2, force=True)
        if "nobpre" not in self.ph: a("s_barrier")
        a("v_and_b32 v%d, 15, v%d" % (T, LANE))
        a("v_lshrrev_b32 v%d, 4, v%d" % (T + 1, LANE))
        a("s_lshl_b32 s69, s67, 6")
        a("v_add_u32 v%d, s69, v%d" % (T + 2, T))
        a("v_lshlrev_b32 v%d, 7, v%d" % (T + 2, T + 2))
        a("v_lshrrev_b32 v%d, 1, v%d" % (T + 3, T))
        a("v_and_b32 v%d, 7, v%d" % (T + 3, T + 3))
        a("v_xor_b32 v%d, v%d, v%d" % (T + 3, T + 3, T + 1))
        a("v_xor_b32 v%d, 4, v%d" % (T + 4, T + 3))
        a("v_lshl_add_u32 v%d, v%d, 4, v%d" % (VXB, T + 3, T + 2))
        a("v_lshl_add_u32 v%d, v%d, 4, v%d" % (VXB + 1, T + 4, T + 2))
        for st in (1, 2):
            for s in range(2):
                a("v_add_u32 v%d, %d, v%d" % (VXB + 2 * st + s, st * STAGE, VXB + s))
        a("v_lshrrev_b32 v%d, 2, v%d" % (T + 2, T))
        a("v_lshl_add_u32 v%d, v%d, 3, v%d" % (T + 2, T + 1, T + 2))
        a("v_mul_u32_u24 v%d, 192, v%d" % (T + 2, T + 2))
        a("v_and_b32 v%d, 3, v%d" % (T + 3, LANE))
        a("v_lshl_add_u32 v%d, v%d, 3, v%d" % (T + 2, T + 3, T + 2))
        a("v_add_u32 v%d, %d, v%d" % (T + 2, ST_WG, T + 2))
        a("v_and_b32 v%d, 1, v%d" % (T + 3, T + 1))
        a("s_lshl_b32 s69, s68, 2")
        a("s_add_u32 s78, s69, 1")
        a("s_add_u32 s79, s68, 2")
        for ft, sreg in ((0, 69), (1, 78), (2, 79)):
            a("v_xor_b32 v%d, s%d, v%d" % (T + 4, sreg, T + 3))
            a("v_lshl_add_u32 v%d, v%d, 5, v%d" % (VWA + ft, T + 4, T + 2))
        for st in (1, 2):
            for ft in range(3):
                a("v_add_u32 v%d, %d, v%d" % (VWA + 3 * st + ft, st * STAGE, VWA + ft))
        a("v_lshlrev_b32 v%d, 4, v%d" % (VL16, LANE))
        a("s_lshl_b32 s69, s4, 1")
        a("s_add_u32 s69, s69, s67")
        a("s_mul_i32 s69, s69, 48")
        a("s_mul_i32 s78, s5, 3")
        a("s_add_u32 s69, s69, s78")
        a("s_lshl_b32 s78, s68, 1")
        a("s_add_u32 s78, s78, s69")
        a("s_lshl_b32 s78, s78, 12")
        a("s_add_u32 s79, s69, 1")
        a("s_lshl_b32 s79, s79, 12")
        a("s_lshl_b32 s69, s68, 9")
        a("s_add_u32 s79, s79, s69")
        a("v_lshlrev_b32 v%d, 3, v%d" % (VL16 + 2, LANE))
        if WS_H:
            a("s_add_u32 s78, s78, %d" % WS_H); a("s_add_u32 s79, s79, %d" % WS_H)

        def reads(kk, s, F):
            st = kk % 3
            xs = ["ds_read_b128 v[%d:%d], v%d offset:%d" % (F + 4 * tt, F + 4 * tt + 3, VXB + 2 * st + s, 2048 * tt) for tt in range(4)]
            ws = []
            for mat in range(2):
                for ft in range(3):
                    r = F + 16 + (mat * 3 + ft) * 4
                    for h in range(2):
                        ws.append("ds_read_b64_tr_b16 v[%d:%d], v%d offset:%d" % (r + 2 * h, r + 2 * h + 1, VWA + 3 * st + ft, 12288 * mat + 6144 * s + 768 * h))
            order = [xs[0], ws[0], ws[1], xs[1], ws[6], ws[7], xs[2], xs[3]] + ws[2:6] + ws[8:]
            return order
        def mfmas(F, first):
            L = []
            for ft in range(3):
                for mat in range(2):
                    for tt in range(4):
                        acc = accg(ft, tt) if mat == 0 else accu(ft, tt)
                        A = F + 16 + (mat * 3 + ft) * 4
                        B = F + 4 * tt
                        c = "0" if first else "v[%d:%d]" % (acc, acc + 3)
                        L.append("v_mfma_f32_16x16x32_bf16 v[%d:%d], v[%d:%d], v[%d:%d], %s" % (acc, acc + 3, A, A + 3, B, B + 3, c))
            return L
        def spread(mm, d, first, step):
            out = []; cnt = 0; di = 0
            for x in mm:
                out.append(x)
                if x.startswith("v_mfma"):
                    cnt += 1
                    if cnt >= first and (cnt - first) % step == 0 and di < len(d):
                        f = d[di]; di += 1
                        out.extend(f if isinstance(f, tuple) else (f,))
            assert di == len(d), (di, len(d))
            return out
        self.stamp(5)
        ND = 4 if "s3w" in self.ph else (7 if "nowu" in self.ph else (8 if "now2" in self.ph else 10))
        a("s_waitcnt vmcnt(%d)" % (0 if "late1" in self.ph else ND))
        if "ststamps" in self.ph: self.stamp(3, force=True)
        a("s_barrier")
        if "ststamps" in self.ph: self.stamp(4, force=True)
        if "late1" in self.ph: a.ext(flat(xdma(1)))
        self.stamp(1)
        self.clk(1)
        a.ext(reads(0, 0, FP))
        a("s_waitcnt lgkmcnt(0)")
        pend = xdma(2)
        for kk in range(10):
            mm = interleave(mfmas(FP, kk == 0), reads(kk, 1, FQ), span=16)
            if pend: mm = spread(mm, pend, 2, (10 if len(pend) <= 2 else 5) if len(pend) <= 5 else 2)
            a.ext(mm)
            if kk <= 7: a("s_waitcnt vmcnt(%d) lgkmcnt(0)" % ND)
            elif kk == 8: a("s_waitcnt vmcnt(0) lgkmcnt(0)")
            else: a("s_waitcnt lgkmcnt(0)")
            if kk == 9 and self.fused(): self.lds_inc(LDS_SFREE, T)
            else: a("s_barrier")
            if "kstamps" in self.ph and kk < 9: self.stamp(kk + 1, force=True)
            if "ststamps" in self.ph and kk < 5: self.stamp(kk + 5, force=True)
            fill = reads(kk + 1, 0, FP) if kk + 1 < 10 else []
            mm = interleave(mfmas(FQ, False), fill, span=16)
            d = xdma(kk + 3) if kk + 3 < 10 else []
            if "dmaB" in self.ph:
                pend = []
                if d: mm = spread(mm, d, 2, 2)
            elif "dma73" in self.ph:
                pend = d[7:]
                if d: mm = spread(mm, d[:7], 2, 3)
            elif "s3w" in self.ph:
                pend = d[2:]
                if d: mm = spread(mm, d[:2], 4, 10)
            else:
                pend = d[5:]
                if d: mm = spread(mm, d[:5], 2, 5)
            a.ext(mm)
            if kk + 1 < 10:
                a("s_waitcnt lgkmcnt(0)")
        self.stamp(2)
        self.clk(3)
        self.jitter()
        epb = "epb" in self.ph and "g2" in self.ph
        if epb: CN, ONE, OUTB, TMPB, TMPS = 200, 202, 116, 152, 8
        else: CN, ONE, OUTB, TMPB, TMPS = FP, FP + 2, FP + 8, FQ, 16
        E = []
        E.append("v_mov_b32 v%d, 0xbfb8aa3b" % CN)
        E.append("v_mov_b32 v%d, 0xbfb8aa3b" % (CN + 1))
        E.append("v_mov_b32 v%d, 1.0" % ONE)
        E.append("v_mov_b32 v%d, 1.0" % (ONE + 1))
        grp = 0
        def silu(gregs, uregs, tmp, out):
            n = len(gregs)
            L = []
            for i in range(n): L.append("v_pk_mul_f32 v[%d:%d], v[%d:%d], v[%d:%d]" % (tmp + 2 * i, tmp + 2 * i + 1, gregs[i], gregs[i] + 1, CN, CN + 1))
            for i in range(2 * n): L.append("v_exp_f32 v%d, v%d" % (tmp + i, tmp + i))
            for i in range(n): L.append("v_pk_mul_f32 v[%d:%d], v[%d:%d], v[%d:%d]" % (gregs[i], gregs[i] + 1, gregs[i], gregs[i] + 1, uregs[i], uregs[i] + 1))
            for i in range(n): L.append("v_pk_add_f32 v[%d:%d], v[%d:%d], v[%d:%d]" % (tmp + 2 * i, tmp + 2 * i + 1, tmp + 2 * i, tmp + 2 * i + 1, ONE, ONE + 1))
            for i in range(2 * n): L.append("v_rcp_f32 v%d, v%d" % (tmp + i, tmp + i))
            if n < 2: L.append("s_nop 0")
            for i in range(n): L.append("v_pk_mul_f32 v[%d:%d], v[%d:%d], v[%d:%d]" % (gregs[i], gregs[i] + 1, gregs[i], gregs[i] + 1, tmp + 2 * i, tmp + 2 * i + 1))
            for i in range(n): L.append("v_cvt_pk_bf16_f32 v%d, v%d, v%d" % (out + i, gregs[i], gregs[i] + 1))
            return L
        for tt in range(4):
            tmp = TMPB + (grp % 2) * TMPS; out = OUTB + (grp % 4) * 4; grp += 1
            g = [accg(0, tt), accg(0, tt) + 2, accg(1, tt), accg(1, tt) + 2]
            u = [accu(0, tt), accu(0, tt) + 2, accu(1, tt), accu(1, tt) + 2]
            E += silu(g, u, tmp, out)
            E.append("buffer_store_dwordx4 v[%d:%d], v%d, s[20:23], s78 offen offset:%d sc1" % (out, out + 3, VL16, 1024 * tt))
            tmp = TMPB + (grp % 2) * TMPS; out = OUTB + (grp % 4) * 4; grp += 1
            g = [accg(2, tt), accg(2, tt) + 2]
            u = [accu(2, tt), accu(2, tt) + 2]
            E += silu(g, u, tmp, out)
            E.append("buffer_store_dwordx2 v[%d:%d], v%d, s[20:23], s79 offen offset:%d sc1" % (out, out + 1, VL16 + 2, 1024 * tt))
        if epb:
            self.g2_setup()
            if self.fused(): self.lds_spin(LDS_WOK, 232, treg="s80x")
            regl, dmal = self.g2_burst_atoms()
            half = len(E) // 2
            a.ext(interleave(E[:half], regl, start=4))
            if self.fused(): self.lds_spin(LDS_SFREE, 232, 4, treg="s80x")
            a.ext(interleave(E[half:], dmal))
        else:
            a.ext(E)
        self.stamp(3)
        if "g2" not in self.ph:
            a("s_waitcnt vmcnt(0)")
            self.stamp(4)

    def g_signal_h(self, nyounger):
        a = self.a
        self.jitter()
        T = 232
        if nyounger is not None: a("s_waitcnt vmcnt(%d)" % nyounger)
        if self.fused():
            l = self.newlab("fh")
            a("v_mov_b32 v%d, %d" % (T, LDS_CNT))
            a("v_mov_b32 v%d, 1" % (T + 1))
            a("s_mov_b64 exec, 1")
            a("ds_add_rtn_u32 v%d, v%d, v%d" % (T + 2, T, T + 1))
            a("s_waitcnt lgkmcnt(0)")
            a("s_mov_b64 exec, -1")
            a("v_readfirstlane_b32 s69, v%d" % (T + 2))
            a("s_nop 1")
            a("s_cmp_lg_u32 s69, 3")
            a("s_cbranch_scc1 %s" % l)
            a("s_lshl_b32 s69, s4, 5")
            a("s_add_u32 s69, s69, s5")
            a("s_lshl_b32 s69, s69, 2")
            a("s_add_u32 s69, s69, %d" % WS_FH)
            self.flag_set("s69", T)
            a.lab(l)
        self.stamp(4)
        if "gapstamps" in self.ph: self.stamp(1, force=True)

    def lds_inc(self, addr, vt):
        a = self.a
        a("v_mov_b32 v%d, %d" % (vt, addr))
        a("v_mov_b32 v%d, 1" % (vt + 1))
        a("s_mov_b64 exec, 1")
        a("ds_add_u32 v%d, v%d" % (vt, vt + 1))
        a("s_mov_b64 exec, -1")

    def lds_spin(self, addr, vt, val=1, treg=None):
        a = self.a
        st = "s78" if treg is None else "s68"
        lp = self.newlab("ls"); ld = self.newlab("ld")
        a("v_mov_b32 v%d, %d" % (vt, addr))
        a("s_mov_b32 s69, 0")
        a.lab(lp)
        a("ds_read_b32 v%d, v%d" % (vt + 1, vt))
        a("s_waitcnt lgkmcnt(0)")
        a("v_readfirstlane_b32 %s, v%d" % (st, vt + 1))
        a("s_nop 1")
        a("s_cmp_eq_u32 %s, %d" % (st, val))
        a("s_cbranch_scc1 %s" % ld)
        a("s_add_u32 s69, s69, 1")
        a("s_cmp_lt_u32 s69, 0x400000")
        a("s_cbranch_scc0 %s" % ld)
        a("s_sleep 1")
        a("s_branch %s" % lp)
        a.lab(ld)

    def s_kgen_phase1(self):
        a = self.a
        NCH = 8
        chunks = [[] for _ in range(NCH)]
        if "ssm" in self.ph:
            a("s_lshl_b32 s50, s66, 8")
            a("s_add_u32 s50, s50, s2")
            a("s_min_u32 s50, s50, 639")
            self.kgen_bases()
            if "kghead" in self.ph:
                kg = self.capture(lambda: self.kgen("head"))
                if "bigI0" in self.ph:
                    first = min(len(kg), (165 if "pkI0" in self.ph else 140) if "I0s" in self.ph else 230)
                    rest = kg[first:]
                    per = (len(rest) + NCH - 1) // NCH
                    chunk0 = kg[:first]
                    chunks = [rest[i * per:(i + 1) * per] for i in range(NCH)]
                else:
                    per = (len(kg) + NCH - 1) // NCH
                    chunks = [kg[i * per:(i + 1) * per] for i in range(NCH)]
        self.stamp(5)
        if "prioS" in self.ph: a("s_setprio 2")
        if "nobpre" not in self.ph: a("s_barrier")
        pw = "pwarm" in self.ph
        if "ssm" in self.ph and pw: self.ssm_param_warm()
        if "ssm" in self.ph and "kghead" in self.ph and not pw: self.ssm_param_loads(slots=((0, 1) if "kg2" in self.ph else (0,)))
        if "ssm" in self.ph and "pw12" in self.ph:
            a("s_mul_i32 s67, s50, 384")
            for p in (P_ARE, P_AIM, P_BRE, P_BIM, P_CRE, P_CIM):
                a("s_add_u32 s68, s%d, s67" % p)
                a("s_addc_u32 s69, s%d, 0" % (p + 1))
                a("s_load_dword s70, s[68:69], 128")
                a("s_load_dword s70, s[68:69], 256")
        a("s_barrier")
        if "ssm" in self.ph and pw:
            a("s_waitcnt lgkmcnt(0)")
            self.ssm_param_loads()
        self.stamp(1)
        if "bigI0" in self.ph and "kghead" in self.ph:
            a("s_waitcnt vmcnt(0)")
            a.ext(chunk0)
        for kk in range(10):
            if not (kk == 9 and self.fused()): a("s_barrier")
            if kk == 1 and "kghead" in self.ph and "bigI0" not in self.ph: a("s_waitcnt vmcnt(0)")
            if kk == 7 and "ssm" in self.ph and not pw:
                if "kghead" in self.ph: self.ssm_param_loads(slots=((2,) if "kg2" in self.ph else (1, 2)), scalars=False)
                else: self.ssm_param_loads()
            if "bigI0" in self.ph:
                if kk < NCH: a.ext(chunks[kk])
            elif 1 <= kk <= NCH: a.ext(chunks[kk - 1])
        self.stamp(2)

    def side_setup(self):
        a = self.a
        a("s_mov_b32 s67, 52429")
        a("s_movk_i32 s68, 1280")
        for i in range(5):
            a("v_add_u32 v1, %d, v0" % (64 * i))
            a("v_mul_lo_u32 v2, v1, s67")
            a("v_lshrrev_b32 v2, 19, v2")
            a("v_mul_u32_u24 v3, 10, v2")
            a("v_sub_u32 v3, v1, v3")
            a("v_mul_lo_u32 v2, v2, s68")
            a("v_lshl_add_u32 v%d, v3, 4, v2" % (230 + i))
        a("v_lshrrev_b32 v1, 4, v0")
        a("v_and_b32 v2, 15, v0")
        a("v_lshrrev_b32 v3, 2, v2")
        a("v_lshl_add_u32 v4, v1, 2, v3")
        a("v_mul_u32_u24 v4, 160, v4")
        a("v_add_u32 v4, %d, v4" % (STAGE if "wdlate" in self.ph else LDS_WDS_EARLY))
        a("v_and_b32 v5, 3, v0")
        a("v_lshl_add_u32 v235, v5, 4, v4")
        a("v_lshl_add_u32 v236, v5, 3, v4")
        a("v_lshlrev_b32 v237, 4, v0")
        a("v_lshlrev_b32 v241, 2, v0")
        a("v_lshl_add_u32 v4, v1, 3, v3")
        a("v_lshlrev_b32 v4, 7, v4")
        a("v_bfe_u32 v5, v0, 1, 1")
        a("v_lshrrev_b32 v6, 1, v3")
        a("v_xor_b32 v5, v5, v6")
        a("v_lshl_add_u32 v4, v5, 4, v4")
        a("v_and_b32 v5, 1, v0")
        a("v_lshl_add_u32 v4, v5, 3, v4")
        a("v_and_b32 v5, 1, v1")
        a("v_lshl_add_u32 v238, v5, 6, v4")
        a("v_xor_b32 v5, 1, v5")
        a("v_lshl_add_u32 v239, v5, 6, v4")
        a("v_mul_u32_u24 v240, %d, v2" % ROWS)
        a("v_lshl_add_u32 v240, v1, 4, v240")
        if "earlys3" in self.ph: self.srds()
        a("s_add_u32 s51, s2, 128")
        a("s_cmp_ge_u32 s2, 128")
        a("s_cselect_b32 s51, s51, 999")
        a("s_lshr_b32 s52, s5, 1")
        a("s_add_u32 s53, s52, 8")
        a("s_cmp_lt_u32 s5, 4")
        a("s_cselect_b32 s53, s53, 99")
    def wd_load(self, ureg, scr):
        a = self.a
        if "nowd" in self.ph: return
        a("s_lshr_b32 s67, %s, 3" % ureg)
        a("s_and_b32 s68, %s, 7" % ureg)
        a("s_mul_i32 s69, s67, %d" % (32 * 1280))
        a("s_mul_i32 s67, s68, 160")
        a("s_add_u32 s69, s69, s67")
        for i in range(5):
            a("s_mov_b32 m0, %d" % ((STAGE if "wdlate" in self.ph else LDS_WDS_EARLY) + scr + 1024 * i))
            a("s_nop 0")
            a("buffer_load_dwordx4 v%d, s[28:31], s69 offen lds" % (230 + i))
    def wd_store(self, ureg, scr, R=160):
        a = self.a
        if "nowd" in self.ph: return
        for dt in range(5):
            for h in range(2):
                if dt < 4: ad, off = 235, 64 * (dt >> 1) + 8 * (dt & 1) + 2560 * h
                else: ad, off = 236, 128 + 2560 * h
                a("ds_read_b64_tr_b16 v[%d:%d], v%d offset:%d" % (R + 4 * dt + 2 * h, R + 1 + 4 * dt + 2 * h, ad, off + scr))
        a("s_lshr_b32 s67, %s, 3" % ureg)
        a("s_and_b32 s68, %s, 7" % ureg)
        a("s_mul_i32 s68, s68, 48")
        a("s_add_u32 s67, s67, s68")
        a("s_mul_i32 s67, s67, 5120")
        a("s_add_u32 s67, s67, %d" % WS_WD)
        a("s_add_u32 s68, s67, 4096")
        a("s_waitcnt lgkmcnt(0)")
        for dt in range(5):
            if dt < 4: a("buffer_store_dwordx4 v[%d:%d], v237, s[20:23], s67 offen offset:%d sc1" % (R + 4 * dt, R + 3 + 4 * dt, 1024 * dt))
            else: a("buffer_store_dwordx4 v[%d:%d], v237, s[20:23], s68 offen sc1" % (R + 4 * dt, R + 3 + 4 * dt))
    def gate_load(self):
        a = self.a
        a("v_and_b32 v1, 15, v0")
        a("v_lshlrev_b32 v1, 4, v1")
        for j in range(5):
            a("global_load_dwordx4 v[%d:%d], v1, s[%d:%d] offset:%d" % (8 + 4 * j, 11 + 4 * j, P_GW, P_GW + 1, 256 * j))
        a("v_lshrrev_b32 v2, 4, v0")
        a("s_movk_i32 s67, 1280")
        a("v_mul_lo_u32 v2, v2, s67")
        a("v_add_u32 v2, v2, v1")
        a("s_lshl_b32 s67, s2, 3")
        a("s_mul_i32 s67, s67, 1280")
        for half in range(2):
            for j in range(5):
                r = 28 + 20 * half + 4 * j
                a("buffer_load_dwordx4 v[%d:%d], v2, s[8:11], s67 offen offset:%d" % (r, r + 3, 256 * j))
            if half == 0: a("s_add_u32 s67, s67, %d" % (4 * 1280))
    def gate_compute(self):
        a = self.a
        R = 68
        for i in range(4): a("v_mov_b32 v%d, 0" % (R + i))
        for j in range(5):
            for e in range(4):
                for half in range(2):
                    acc = R + half + 2 * (e & 1)
                    a("v_dot2_f32_bf16 v%d, v%d, v%d, v%d" % (acc, 28 + 20 * half + 4 * j + e, 8 + 4 * j + e, acc))
        a("s_nop 2")
        a("v_add_f32 v%d, v%d, v%d" % (R, R, R + 2))
        a("v_add_f32 v%d, v%d, v%d" % (R + 1, R + 1, R + 3))
        a("s_nop 0")
        for ctl in ("row_shr:1", "row_shr:2", "row_shr:4", "row_shr:8"):
            for i in range(2):
                a("v_add_f32_dpp v%d, v%d, v%d %s row_mask:0xf bank_mask:0xf bound_ctrl:1" % (R + i, R + i, R + i, ctl))
            a("s_nop 0")
        for i in range(2): a("v_mul_f32 v%d, 0xbfb8aa3b, v%d" % (R + i, R + i))
        for i in range(2): a("v_exp_f32 v%d, v%d" % (R + i, R + i))
        a("s_nop 0")
        for i in range(2): a("v_add_f32 v%d, 1.0, v%d" % (R + i, R + i))
        for i in range(2): a("v_rcp_f32 v%d, v%d" % (R + i, R + i))
        a("s_lshl_b32 s67, s2, 5")
        a("s_add_u32 s67, s67, %d" % WS_G)
        a("v_lshrrev_b32 v1, 4, v0")
        a("v_lshlrev_b32 v1, 2, v1")
        a("s_mov_b32 exec_lo, 0x80008000")
        a("s_mov_b32 exec_hi, 0x80008000")
        a("buffer_store_dword v%d, v1, s[20:23], s67 offen sc1" % R)
        a("buffer_store_dword v%d, v1, s[20:23], s67 offen offset:16 sc1" % (R + 1))
        a("s_mov_b64 exec, -1")
    def ut_read(self, chunk_reg, stage_base, H):
        a = self.a
        if "noutr" in self.ph: return
        a("s_and_b32 s67, %s, 1" % chunk_reg)
        a("s_cmp_eq_u32 s67, 0")
        a("s_cselect_b64 vcc, -1, 0")
        a("s_nop 0")
        a("v_cndmask_b32 v4, v239, v238, vcc")
        a("v_add_u32 v4, %d, v4" % stage_base)
        for aa in range(2):
            for it in range(4):
                for hh in range(2):
                    r = H + (aa * 4 + it) * 4 + 2 * hh
                    a("ds_read_b64_tr_b16 v[%d:%d], v4 offset:%d" % (r, r + 1, 4096 * it + 512 * hh + 32 * (aa ^ hh)))
        a("s_waitcnt lgkmcnt(0)")
    def utx_load(self, chunk_reg):
        a = self.a
        a("v_lshrrev_b32 v4, 2, v0")
        a("v_mul_u32_u24 v4, 1280, v4")
        a("v_and_b32 v5, 3, v0")
        a("v_lshl_add_u32 v4, v5, 4, v4")
        a("s_mul_i32 s67, s4, %d" % (128 * 1280))
        a("s_lshl_b32 s68, %s, 6" % chunk_reg)
        a("s_add_u32 s67, s67, s68")
        for i in range(8):
            a("s_mov_b32 m0, %d" % (LDS_WDS_EARLY + 1024 * i))
            a("s_nop 0")
            a("buffer_load_dwordx4 v4, s[8:11], s67 offen lds")
            if i < 7: a("s_add_u32 s67, s67, %d" % (16 * 1280))
    def utx_read(self, H):
        a = self.a
        a("v_lshrrev_b32 v4, 4, v0")
        a("v_and_b32 v5, 15, v0")
        a("v_lshrrev_b32 v5, 2, v5")
        a("v_lshl_add_u32 v4, v4, 3, v5")
        a("v_lshlrev_b32 v4, 6, v4")
        a("v_and_b32 v5, 3, v0")
        a("v_lshl_add_u32 v4, v5, 3, v4")
        a("v_add_u32 v4, %d, v4" % LDS_WDS_EARLY)
        for aa in range(2):
            for it in range(4):
                for hh in range(2):
                    r = H + (aa * 4 + it) * 4 + 2 * hh
                    a("ds_read_b64_tr_b16 v[%d:%d], v4 offset:%d" % (r, r + 1, 64 * (32 * it + 4 * hh) + 32 * aa))
        a("s_waitcnt lgkmcnt(0)")

    def ut_store(self, chunk_reg, H):
        a = self.a
        if "nout" in self.ph: return
        a("s_mul_i32 s67, %s, %d" % (chunk_reg, 32 * ROWS))
        a("s_lshl_b32 s68, s4, 8")
        a("s_add_u32 s67, s67, s68")
        a("s_add_u32 s67, s67, %d" % WS_UT)
        a("s_add_u32 s68, s67, %d" % (16 * ROWS))
        for aa in range(2):
            for it in range(4):
                r = H + (aa * 4 + it) * 4
                a("buffer_store_dwordx4 v[%d:%d], v240, s[20:23], s%d offen offset:%d sc1" % (r, r + 3, 67 + aa, 64 * it))

    def pretouch(self):
        a = self.a
        a("v_and_b32 v1, 7, v0")
        a("v_lshlrev_b32 v1, 21, v1")
        a("buffer_load_dword v63, v1, s[20:23], 0 offen")
        a("v_and_b32 v1, 1, v0")
        a("v_lshlrev_b32 v1, 21, v1")
        a("buffer_load_dword v63, v1, s[24:27], 0 offen")
    def warm_inputs(self):
        a = self.a
        if "norot" in self.ph:
            a("s_mov_b32 s68, 9363")
            a("v_mul_lo_u32 v1, v0, s68")
            a("v_lshrrev_b32 v1, 16, v1")
            a("v_mul_u32_u24 v2, 7, v1")
            a("v_sub_u32 v2, v0, v2")
            a("v_mul_u32_u24 v1, 1280, v1")
            a("v_lshl_add_u32 v1, v2, 7, v1")
            a("s_mul_i32 s67, s2, 10240")
            a("s_add_u32 s67, s67, 384")
            a("s_mov_b32 exec_hi, 0x00ffffff")
            a("buffer_load_dword v244, v1, s[8:11], s67 offen")
            a("s_mov_b32 exec_hi, 0x000003ff")
            a("v_lshlrev_b32 v1, 7, v0")
            a("s_mul_i32 s67, s2, %d" % (42 * 128))
            a("s_add_u32 s67, s67, %d" % (192 * 3072))
            a("buffer_load_dword v244, v1, s[12:15], s67 offen")
            a("buffer_load_dword v244, v1, s[16:19], s67 offen")
            a("s_mov_b64 exec, -1")
            return
        a("v_lshlrev_b32 v1, 7, v0")
        if "warmx" in self.ph:
            a("s_mul_i32 s67, s2, 10240")
            a("buffer_load_dword v244, v1, s[8:11], s67 offen")
            a("s_add_u32 s68, s67, 8192")
            a("s_mov_b32 exec_hi, 0")
            a("s_mov_b32 exec_lo, 0xffff")
            a("buffer_load_dword v244, v1, s[8:11], s68 offen")
            a("s_mov_b32 exec_lo, -1")
        a("s_mov_b32 exec_hi, 0x0fffffff")
        a("s_mul_i32 s67, s2, 7680")
        a("buffer_load_dword v244, v1, s[12:15], s67 offen")
        a("buffer_load_dword v244, v1, s[16:19], s67 offen")
        if "warm2" in self.ph:
            a("buffer_load_dword v244, v1, s[28:31], s67 offen")
        a("s_mov_b64 exec, -1")
        if "warm2" in self.ph or "warmp" in self.ph:
            a("v_and_b32 v1, 7, v0")
            a("v_lshlrev_b32 v1, 7, v1")
            a("s_mul_i32 s67, s2, 960")
            a("v_add_u32 v1, s67, v1")
            a("v_min_u32 v1, %d, v1" % (245760 - 4))
            a("v_lshrrev_b32 v2, 3, v0")
            a("v_mov_b32 v4, s%d" % P_ARE); a("v_mov_b32 v5, s%d" % (P_ARE + 1))
            for k, p in enumerate((P_AIM, P_BRE, P_BIM, P_CRE, P_CIM)):
                a("v_cmp_eq_u32 vcc, %d, v2" % (k + 1))
                a("v_mov_b32 v6, s%d" % p); a("v_mov_b32 v7, s%d" % (p + 1))
                a("v_cndmask_b32 v4, v4, v6, vcc")
                a("v_cndmask_b32 v5, v5, v7, vcc")
            a("v_add_co_u32 v4, vcc, v4, v1")
            a("s_nop 1")
            a("v_addc_co_u32 v5, vcc, 0, v5, vcc")
            a("global_load_dword v244, v[4:5], off")

    def warm_code(self, early=False):
        a = self.a
        n = self.name
        l = self.newlab("pc"); l2 = self.newlab("pc")
        a("s_getpc_b64 s[68:69]")
        a.lab(l)
        a("s_sub_u32 s68, s68, %s-%s" % (l, n))
        a("s_subb_u32 s69, s69, 0")
        a("s_mov_b32 s67, (%s_end-%s+4095)/4096" % (n, n))
        a("s_lshr_b32 s70, s2, 3")
        a("s_mul_i32 s70, s70, s67")
        a("v_add_u32 v1, s70, v0")
        a("v_lshlrev_b32 v1, 7, v1")
        a("v_min_u32 v1, %s_end-%s, v1" % (n, n))
        a("v_cmp_gt_u32 vcc, s67, v0")
        a("s_and_saveexec_b64 s[70:71], vcc")
        a("s_cbranch_execz %s" % l2)
        a("global_load_dword v244, v1, s[68:69]")
        a.lab(l2)
        a("s_mov_b64 exec, s[70:71]")

    def smem_warm(self, part):
        a = self.a
        if part == 0:
            a("s_mul_i32 s67, s2, 7680")
            a("s_add_u32 s70, s%d, s67" % P_WD)
            a("s_addc_u32 s71, s%d, 0" % (P_WD + 1))
        for r in range(15 * part, 15 * part + 15):
            a("s_load_dword s74, s[70:71], %d" % (r * 128))

    def s3w_setup(self):
        a = self.a
        T = 1; VO = 245
        a("s_mul_i32 s69, s5, 192")
        a("s_mov_b32 s78, 43691")
        a("s_movk_i32 s79, 3072")
        for i in range(3):
            a("v_add_u32 v%d, %d, v0" % (T, 64 * i))
            a("v_mul_lo_u32 v%d, v%d, s78" % (T + 1, T))
            a("v_lshrrev_b32 v%d, 19, v%d" % (T + 1, T + 1))
            a("v_mul_u32_u24 v%d, 12, v%d" % (T + 2, T + 1))
            a("v_sub_u32 v%d, v%d, v%d" % (T + 2, T, T + 2))
            a("v_lshrrev_b32 v%d, 2, v%d" % (T + 3, T + 1))
            a("v_and_b32 v%d, 2, v%d" % (T + 3, T + 3))
            a("v_xor_b32 v%d, v%d, v%d" % (T + 2, T + 2, T + 3))
            a("v_mul_lo_u32 v%d, v%d, s79" % (T + 1, T + 1))
            a("v_lshl_add_u32 v%d, v%d, 4, v%d" % (T + 1, T + 2, T + 1))
            a("v_add_u32 v%d, s69, v%d" % (VO + i, T + 1))
        self.rot_r("s54", "s67")
    def s3w_younger0(self):
        n = 24 + (1 if self.fused() else 0)
        if "wdlate" not in self.ph: n += 5
        return n
    def s3w_dma(self, st):
        a = self.a
        VO = 245
        base = (st % 3) * STAGE
        a("s_mul_i32 s55, s54, 196608")
        a("s_add_u32 s54, s54, 1")
        a("s_cmp_eq_u32 s54, 10")
        a("s_cselect_b32 s54, 0, s54")
        for g4 in range(4):
            if g4: a("s_add_u32 s55, s55, 49152")
            for mat, srd in ((0, "s[12:15]"), (1, "s[16:19]")):
                for i in range(3):
                    a("s_mov_b32 m0, %d" % (base + (ST_WG if mat == 0 else ST_WU) + 3072 * g4 + 1024 * i))
                    a("s_nop 0")
                    a("buffer_load_dwordx4 v%d, %s, s55 offen lds" % (VO + i, srd))

    def s_side(self):
        a = self.a
        if "noside" in self.ph:
            for b in range(11 if self.fused() else 12): a("s_barrier")
            return
        HA, HB = 100, 132
        def cond_b(fn):
            l = self.newlab("wb")
            a("s_cmp_ge_u32 s51, 384")
            a("s_cbranch_scc1 %s" % l)
            fn()
            a.lab(l)
        if "warm0" in self.ph:
            self.warm_inputs()
            if "warmc" in self.ph: self.warm_code()
        s3w = "s3w" in self.ph
        if s3w:
            self.s3w_setup()
            self.s3w_dma(0)
            self.s3w_dma(1)
        self.side_setup()
        norot = "norot" in self.ph
        if norot:
            a("s_mov_b32 s50, s5")
            a("s_add_u32 s53, s5, 16")
            a("s_cmp_lt_u32 s5, 4")
            a("s_cselect_b32 s53, s53, 99")
        else:
            self.rot_r("s50", "s67")
            a("s_and_b32 s68, s5, 1")
            a("s_lshl_b32 s50, s50, 1")
            a("s_add_u32 s50, s50, s68")
            a("s_add_u32 s53, s50, 2")
            a("s_lshr_b32 s67, s5, 1")
            a("s_and_b32 s67, s67, 3")
            a("s_cmp_eq_u32 s67, 0")
            a("s_cselect_b32 s53, s53, 99")
        if self.fused():
            a("v_mov_b32 v1, %d" % LDS_CNT)
            a("v_mov_b32 v2, 0")
            a("v_mov_b32 v3, 0")
            a("ds_write_b64 v1, v[2:3]")
            a("ds_write_b64 v1, v[2:3] offset:8")
            a("ds_write_b64 v1, v[2:3] offset:16")
            a("ds_write_b32 v1, v2 offset:24")
        self.stamp(5)
        if "nobpre" not in self.ph: a("s_barrier")
        if self.fused(): self.nonce_load()
        if self.fused() and "ftouch" in self.ph:
            a("s_min_u32 s67, s2, 191")
            a("s_lshl_b32 s67, s67, 7")
            a("s_add_u32 s67, s67, %d" % WS_FU)
            a("v_mov_b32 v1, 0")
            a("s_mov_b64 exec, 1")
            a("buffer_load_dword v244, v1, s[20:23], s67 offen sc1")
            a("s_mov_b64 exec, -1")
        if norot: self.utx_load("s50")
        wdlate = "wdlate" in self.ph
        wdmid = "wdmid" in self.ph
        if not wdlate and not wdmid:
            self.wd_load("s2", 0)
            cond_b(lambda: self.wd_load("s51", 5120))
        if "warm0" not in self.ph:
            if "warmc" in self.ph: self.warm_code()
            if ("warm" in self.ph or "warm2" in self.ph) and "warmB0" not in self.ph and "warmB1" not in self.ph and not s3w: self.warm_inputs()
        if s3w: a("s_waitcnt vmcnt(%d)" % self.s3w_younger0())
        a("s_barrier")
        if s3w:
            self.s3w_dma(2)
            self.warm_inputs()
        if "warmB0" in self.ph: self.warm_inputs()
        self.stamp(1)
        if norot:
            a("s_waitcnt vmcnt(3)")
            self.utx_read(HA)
            def second():
                self.utx_load("s53")
            l_ = self.newlab("ux")
            a("s_cmp_ge_u32 s53, 20")
            a("s_cbranch_scc1 %s" % l_)
            second()
            a.lab(l_)
        else:
            self.ut_read("s50", 0, HA)
        def uflag(creg):
            a("s_lshl_b32 s69, %s, 5" % creg)
            a("s_add_u32 s69, s69, s4")
            a("s_lshl_b32 s69, s69, 2")
            a("s_add_u32 s69, s69, %d" % WS_FU)
            self.flag_set("s69", 2)
        def n_lt4(fn):
            l = self.newlab("ut")
            a("s_cmp_ge_u32 s53, 20")
            a("s_cbranch_scc1 %s" % l)
            fn()
            a.lab(l)
        def wflag(ureg):
            a("s_and_b32 s68, %s, 7" % ureg)
            a("s_lshl_b32 s68, s68, 8")
            a("s_lshr_b32 s69, %s, 3" % ureg)
            a("s_lshl_b32 s69, s69, 2")
            a("s_add_u32 s69, s69, s68")
            a("s_add_u32 s69, s69, %d" % WS_FW)
            self.flag_set("s69", 2)
        early = "utearly" in self.ph
        epb = "epb" in self.ph
        if early: self.ut_store("s50", HA)
        for kk in range(10):
            if s3w:
                if kk == 0: a("s_waitcnt vmcnt(26)")
                elif kk <= 7: a("s_waitcnt vmcnt(24)")
                elif kk == 8: a("s_waitcnt vmcnt(%d)" % (6 if (wdlate and self.fused()) else 0))
            if not (kk == 9 and self.fused()): a("s_barrier")
            if s3w and kk + 3 < 10 and kk not in (0, 1): self.s3w_dma(kk + 3)
            if kk == 0:
                if "warmB1" in self.ph: self.warm_inputs()
                if norot:
                    def rd2():
                        a("s_waitcnt vmcnt(0)")
                        self.utx_read(HB)
                    n_lt4(rd2)
                else:
                    n_lt4(lambda: self.ut_read("s53", 1 * STAGE, HB))
                if early: n_lt4(lambda: self.ut_store("s53", HB))
                if epb:
                    a("s_waitcnt vmcnt(%d)" % (8 if early else 0))
                    self.wd_store("s2", 0)
                    cond_b(lambda: self.wd_store("s51", 5120, 180))
            if kk == 1:
                if not early:
                    self.ut_store("s50", HA)
                    n_lt4(lambda: self.ut_store("s53", HB))
            if s3w and kk in (0, 1): self.s3w_dma(kk + 3)
            if kk == 3:
                a("s_waitcnt vmcnt(%d)" % (48 if s3w else 0))
                if self.fused():
                    self.nonce_publish_local()
                    if "uflate" not in self.ph:
                        uflag("s50")
                        n_lt4(lambda: uflag("s53"))
                    if epb:
                        wflag("s2")
                        cond_b(lambda: wflag("s51"))
            if kk == 7 and "uflate" in self.ph and self.fused():
                uflag("s50")
                n_lt4(lambda: uflag("s53"))
            if "swarm" in self.ph and 2 <= kk <= 5:
                self.smem_warm(kk - 2)
            if kk == 6 and wdmid:
                if "swarm" in self.ph: a("s_waitcnt lgkmcnt(0)")
                self.wd_load("s2", 0)
                cond_b(lambda: self.wd_load("s51", 5120))
            if kk == 7 and wdmid: a("s_waitcnt vmcnt(0)")
            if kk == 7 and "s3prio" in self.ph: a("s_setprio 3")
            if kk == 7 and epb:
                if self.fused():
                    self.s3_uw_look()
                    a("s_lshl_b32 s78, s7, 8")
                    a("s_add_u32 s78, s78, %d" % WS_FW)
                    self.look_line("s78", 48, 94)
                self.gate_load()
            if kk == 7 and not wdlate and not epb:
                if self.fused(): self.s3_uw_look()
                self.wd_store("s2", 0)
                cond_b(lambda: self.wd_store("s51", 5120, 180))
                self.gate_load()
            if kk == 7 and wdlate:
                if "swarm" in self.ph: a("s_waitcnt lgkmcnt(0)")
                if self.fused(): self.s3_uw_look()
                self.wd_load("s2", 0)
                cond_b(lambda: self.wd_load("s51", 5120))
            if kk == 8:
                self.jitter()
                if self.fused():
                    l = self.newlab("uw")
                    if epb:
                        self.check_line("s78", 94, 15)
                        a("v_mov_b32 v1, %d" % LDS_WOK)
                        a("v_mov_b32 v2, 1")
                        a("ds_write_b32 v1, v2")
                    elif wdlate and "wdfirst" in self.ph:
                        a("s_waitcnt vmcnt(0)")
                        self.wd_store("s2", 0)
                        cond_b(lambda: self.wd_store("s51", 5120, 180))
                    elif not wdlate and "wfirst" in self.ph:
                        a("s_waitcnt vmcnt(15)")
                        wflag("s2")
                        cond_b(lambda: wflag("s51"))
                    else:
                        a("s_waitcnt vmcnt(%d)" % (5 if wdlate else 20))
                    a("v_cmp_eq_u32 vcc, s64, v92")
                    a("s_nop 1")
                    a("s_cmp_eq_u64 vcc, -1")
                    a("s_cbranch_scc1 %s" % l)
                    self.poll(self.s3_uw_loads, [92], 6, sleep=2)
                    a.lab(l)
                    self.s3_u_loads()
                    a("v_mov_b32 v1, %d" % LDS_UOK)
                    a("v_mov_b32 v2, 3")
                    a("ds_write_b32 v1, v2")
                    if wdlate and "wdfirst" not in self.ph: a("s_waitcnt vmcnt(12)")
                elif wdlate:
                    a("s_waitcnt vmcnt(0)")
                if wdlate:
                    if "wdfirst" not in self.ph or not self.fused():
                        self.wd_store("s2", 0)
                        cond_b(lambda: self.wd_store("s51", 5120, 180))
                    self.gate_load()
        self.stamp(2)
        if self.fused():
            if "s3prio" not in self.ph: a("s_setprio 2")
            if epb:
                self.lds_spin(LDS_SFREE, 2, 4)
                a("s_waitcnt vmcnt(0)")
            else:
                if not wdlate and "wfirst" in self.ph:
                    self.lds_spin(LDS_SFREE, 2, 4)
                    a("s_waitcnt vmcnt(0)")
                else:
                    wdf = wdlate and "wdfirst" in self.ph
                    if wdlate and not wdf: a("s_waitcnt vmcnt(15)")
                    else: a("s_waitcnt vmcnt(27)")
                    wflag("s2")
                    cond_b(lambda: wflag("s51"))
                    self.lds_spin(LDS_SFREE, 2, 4)
                    if wdf: a("s_waitcnt vmcnt(16)")
                    elif not wdlate: a("s_waitcnt vmcnt(1)")
        self.stamp(3)
        self.jitter()
        if self.fused():
            self.s3_u_copies(extra=None)
            a("s_waitcnt lgkmcnt(0)")
            a("v_mov_b32 v1, %d" % LDS_UCOK)
            a("v_mov_b32 v2, 1")
            a("ds_write_b32 v1, v2")
            a("s_setprio 0")
            self.stamp(4)
            a("s_waitcnt vmcnt(0)")
            self.gate_compute()
            a("s_waitcnt vmcnt(0)")
            a("s_lshl_b32 s69, s2, 2")
            a("s_add_u32 s69, s69, %d" % WS_FG)
            self.flag_set("s69", 2)
            if "nonearly" in self.ph: self.nonce_update()
        else:
            a("s_waitcnt vmcnt(0)")
            self.gate_compute()
            a("s_waitcnt vmcnt(0)")
            self.stamp(4)

    def s3_uw_addr(self):
        a = self.a
        a("v_lshrrev_b32 v1, 4, v0")
        a("v_lshlrev_b32 v1, 8, v1")
        a("v_add_u32 v1, s2, v1")
        a("v_mov_b32 v2, s2")
        a("v_cmp_gt_u32 vcc, 640, v1")
        a("s_nop 1")
        a("v_cndmask_b32 v1, v2, v1, vcc")
        a("v_lshrrev_b32 v1, 5, v1")
        a("v_lshlrev_b32 v1, 7, v1")
        a("v_and_b32 v2, 15, v0")
        a("v_lshl_add_u32 v1, v2, 2, v1")
        a("v_add_u32 v90, %d, v1" % WS_FU)
    def s3_uw_loads(self):
        a = self.a
        a("buffer_load_dword v92, v90, s[20:23], 0 offen sc1")
    def s3_uw_look(self):
        self.s3_uw_addr()
        self.s3_uw_loads()
    def s3_uw_check(self):
        a = self.a
        l = self.newlab("uw")
        a("s_waitcnt vmcnt(0)")
        a("v_cmp_eq_u32 vcc, s64, v92")
        a("v_cmp_eq_u32 s[76:77], s64, v93")
        a("s_nop 1")
        a("s_and_b64 vcc, vcc, s[76:77]")
        a("s_cmp_eq_u64 vcc, -1")
        a("s_cbranch_scc1 %s" % l)
        self.poll(self.s3_uw_loads, [92, 93], 6, sleep=2)
        a.lab(l)

    def s3_channels(self):
        a = self.a
        a("s_mov_b32 s70, s2")
        a("s_add_u32 s71, s2, 256")
        a("s_add_u32 s72, s2, 512")
        a("s_cmp_lt_u32 s72, 640")
        a("s_cselect_b32 s72, s72, s2")

    def s3_u_loads(self):
        a = self.a
        self.s3_channels()
        a("v_lshlrev_b32 v1, 4, v0")
        for sg in range(3):
            a("s_mul_i32 s67, s%d, %d" % (70 + sg, ROWS))
            a("s_add_u32 s67, s67, %d" % WS_UT)
            for i in range(4):
                r = 100 + 16 * sg + 4 * i
                a("buffer_load_dwordx4 v[%d:%d], v1, s[20:23], s67 offen offset:%d sc1" % (r, r + 3, 1024 * i))

    def s3_u_copies(self, extra=0):
        a = self.a
        Z = 150
        for i in range(4): a("v_mov_b32 v%d, 0" % (Z + i))
        a("v_lshlrev_b32 v2, 4, v0")
        a("v_cmp_eq_u32 vcc, 0, v0")
        for sg in range(3):
            base = LDS_UC + sg * UC_SZ
            for b in range(4):
                a("ds_write_b128 v2, v[%d:%d] offset:%d" % (Z, Z + 3, base + b * UC_STRIDE))
        for sg in range(3):
            base = LDS_UC + sg * UC_SZ
            if extra is not None: a("s_waitcnt vmcnt(%d)" % (4 * (2 - sg) + extra))
            for i in range(4):
                D = 100 + 16 * sg + 4 * i
                R3, R2 = 154 + 2 * (i & 1), 155 + 2 * (i & 1)
                Q3, Q2 = 154 + 2 * ((i + 1) & 1), 155 + 2 * ((i + 1) & 1)
                T1 = 160 + 12 * (i & 1); T0 = T1 + 4; T2 = T1 + 8
                P2 = 158
                a("v_mov_b32_dpp v%d, v%d wave_ror:1 row_mask:0xf bank_mask:0xf" % (R3, D + 3))
                a("v_mov_b32_dpp v%d, v%d wave_ror:1 row_mask:0xf bank_mask:0xf" % (R2, D + 2))
                a("v_mov_b32 v%d, v%d" % (T1 + 1, D))
                a("v_mov_b32 v%d, v%d" % (T1 + 2, D + 1))
                a("v_mov_b32 v%d, v%d" % (T1 + 3, D + 2))
                if i == 0:
                    a("v_cndmask_b32 v%d, v%d, v%d, vcc" % (T1, R3, Z))
                    a("v_cndmask_b32 v%d, v%d, v%d, vcc" % (P2, R2, Z))
                else:
                    a("v_cndmask_b32 v%d, v%d, v%d, vcc" % (T1, R3, Q3))
                    a("v_cndmask_b32 v%d, v%d, v%d, vcc" % (P2, R2, Q2))
                off = base + 4 * (96 + 256 * i)
                a("ds_write_b128 v2, v[%d:%d] offset:%d" % (D, D + 3, off + 3 * UC_STRIDE))
                a("v_alignbit_b32 v%d, v%d, v%d, 16" % (T0, T1, P2))
                a("v_alignbit_b32 v%d, v%d, v%d, 16" % (T0 + 1, D, T1))
                a("v_alignbit_b32 v%d, v%d, v%d, 16" % (T0 + 2, D + 1, D))
                a("v_alignbit_b32 v%d, v%d, v%d, 16" % (T0 + 3, D + 2, D + 1))
                a("ds_write_b128 v2, v[%d:%d] offset:%d" % (T1, T1 + 3, off + 1 * UC_STRIDE))
                a("v_mov_b32 v%d, v%d" % (T2, T0 + 1))
                a("v_mov_b32 v%d, v%d" % (T2 + 1, T0 + 2))
                a("v_mov_b32 v%d, v%d" % (T2 + 2, T0 + 3))
                a("v_alignbit_b32 v%d, v%d, v%d, 16" % (T2 + 3, D + 3, D + 2))
                a("ds_write_b128 v2, v[%d:%d] offset:%d" % (T0, T0 + 3, off + 0 * UC_STRIDE))
                a("ds_write_b128 v2, v[%d:%d] offset:%d" % (T2, T2 + 3, off + 2 * UC_STRIDE))

    def s_phase1(self):
        a = self.a
        n = self.name
        a("s_sub_u32 s66, s3, 4")
        a("s_cmp_eq_u32 s66, 3")
        a("s_cbranch_scc1 %s_sj" % n)
        if "earlys3" in self.ph: self.srds()
        self.s_kgen_phase1()
        a("s_branch %s_p1done" % n)
        a.lab("%s_sj" % n)
        self.s_side()
        a.lab("%s_p1done" % n)

    def ssm_param_loads(self, slots=(0, 1, 2), scalars=True):
        a = self.a
        a("s_mul_i32 s67, s50, 384")
        a("v_lshl_add_u32 v1, v0, 1, s67")
        for sl in slots:
            for k, p in enumerate((P_ARE, P_AIM, P_BRE, P_BIM, P_CRE, P_CIM)):
                a("global_load_ushort v%d, v1, s[%d:%d] offset:%d" % (200 + 6 * sl + k, p, p + 1, 128 * sl))
        if scalars:
            a("s_lshl_b32 s67, s50, 1")
            a("v_mov_b32 v223, s67")
            a("global_load_ushort v218, v223, s[%d:%d]" % (P_LDT, P_LDT + 1))
            a("global_load_ushort v219, v223, s[%d:%d]" % (P_DSK, P_DSK + 1))

    def ssm_param_warm(self):
        a = self.a
        a("s_mul_i32 s67, s50, 384")
        for p in (P_ARE, P_AIM, P_BRE, P_BIM, P_CRE, P_CIM):
            a("s_add_u32 s68, s%d, s67" % p)
            a("s_addc_u32 s69, s%d, 0" % (p + 1))
            for i in range(3):
                a("s_load_dword s70, s[68:69], %d" % (128 * i))
        a("s_lshl_b32 s67, s50, 1")
        a("s_and_b32 s67, s67, 0xfffffffc")
        a("s_load_dword s70, s[%d:%d], s67" % (P_LDT, P_LDT + 1))
        a("s_load_dword s70, s[%d:%d], s67" % (P_DSK, P_DSK + 1))

    def pk_ok(self, i):
        return i == 1 or 2 <= i <= 11 or 17 <= i <= 26

    def kgen_bases(self):
        a = self.a
        a("s_mul_i32 s51, s66, %d" % TAB_SZ)
        a("s_add_u32 s51, s51, %d" % LDS_TAB)
        a("s_mul_i32 s52, s66, %d" % KR_SZ)
        a("s_add_u32 s52, s52, %d" % LDS_KR)

    def kgen(self, part="all"):
        a = self.a
        if part == "all": self.kgen_bases()
        self._kgen_body(part)

    def _kgen_body(self, part):
        a = self.a
        head = part in ("all", "head", "rest"); tail = part in ("all", "tail", "rest")
        real_a = a
        if not head: a = Asm()
        a("v_and_b32 v4, 15, v0")
        a("v_lshrrev_b32 v5, 4, v0")
        a("v_mul_u32_u24 v2, %d, v4" % TABROW)
        a("v_lshl_add_u32 v2, v5, 6, v2")
        a("v_add_u32 v2, s51, v2")
        a("v_and_b32 v6, 1, v5")
        a("v_lshl_add_u32 v3, v6, 3, v2")
        a("v_xor_b32 v6, 1, v6")
        a("v_lshl_add_u32 v2, v6, 3, v2")
        a("s_mov_b32 m0, s51")
        a("s_nop 0")
        if part == "all" or (part == "rest" and not self.fused()): a("s_waitcnt vmcnt(0)")
        a("v_lshlrev_b32 v218, 16, v218")
        a("v_lshlrev_b32 v219, 16, v219")
        a("v_mul_f32 v6, 0x3fb8aa3b, v218")
        a("s_mov_b32 s67, 0x3fb8aa3b")
        a("v_fma_f32 v7, v218, s67, -v6")
        a("v_fmac_f32 v7, 0x32a57060, v218")
        a("v_exp_f32 v6, v6")
        a("v_mul_f32 v7, 0x3f317218, v7")
        a("v_fma_f32 v6, v6, v7, v6")
        a("v_cvt_pk_bf16_f32 v6, v6, v6")
        a("v_lshlrev_b32 v218, 16, v6")
        W1, W16, W256, W512, W768, W1024 = 10, 12, 14, 16, 18, 20
        WX = 22
        CB = 24
        Y = 26; P = 28; TMP1 = 30; TMP2 = 32; TMP3 = 34
        PK = 36
        V = 50
        CV = 66
        YF = 76
        AF = 92
        ACC = 108
        nopk = (part == "head") and ("pkhead" not in self.ph)
        ncm = [0]
        def cmul(out, x, w, t):
            ncm[0] += 1
            if nopk and not ("pkI0" in self.ph and self.pk_ok(ncm[0])):
                return ["v_mul_f32 v%d, v%d, v%d" % (t, x + 1, w + 1),
                        "v_mul_f32 v%d, v%d, v%d" % (t + 1, x, w + 1),
                        "v_fma_f32 v%d, v%d, v%d, -v%d" % (out, x, w, t),
                        "v_fma_f32 v%d, v%d, v%d, v%d" % (out + 1, x + 1, w, t + 1)]
            return ["v_pk_mul_f32 v[%d:%d], v[%d:%d], v[%d:%d] op_sel:[0,0] op_sel_hi:[0,1]" % (t, t + 1, x, x + 1, w, w + 1),
                    "v_pk_fma_f32 v[%d:%d], v[%d:%d], v[%d:%d], v[%d:%d] op_sel:[1,1,0] op_sel_hi:[1,0,1] neg_lo:[1,0,0]" % (out, out + 1, x, x + 1, w, w + 1, t, t + 1)]
        def zipl(*ls):
            o = []
            for i in range(max(len(l) for l in ls)):
                for l in ls:
                    if i < len(l): o.append(l[i])
            return o
        cvn = [0, 0]
        def wr(val, tile, row, neg, bank=0):
            c = CV + 4 * bank + (cvn[bank] % 4); cvn[bank] += 1
            return ["v_cvt_pk_bf16_f32 v%d, v%d, %sv%d" % (c, val, "-" if neg else "", val + 1),
                    "ds_write_addtid_b32 v%d offset:%d" % (c, tile * TABTILE + row * TABROW)]
        def frag_reads(dst, tile):
            L = []
            for kk in range(4):
                L.append("ds_read_b64 v[%d:%d], v3 offset:%d" % (dst + 4 * kk, dst + 4 * kk + 1, tile * TABTILE + 16 * kk))
                L.append("ds_read_b64 v[%d:%d], v2 offset:%d" % (dst + 4 * kk + 2, dst + 4 * kk + 3, tile * TABTILE + 16 * kk))
            return L
        def mm(t, first):
            L = []
            for kk in range(4):
                c = "0" if (first and kk == 0) else "v[%d:%d]" % (ACC + 4 * t, ACC + 4 * t + 3)
                L.append("v_mfma_f32_16x16x32_bf16 v[%d:%d], v[%d:%d], v[%d:%d], %s" % (ACC + 4 * t, ACC + 4 * t + 3, AF + 4 * kk, AF + 4 * kk + 3, YF + 4 * kk, YF + 4 * kk + 3, c))
            return L
        a = real_a
        nh = 2 if "kg2" in self.ph else 1
        slots = [0, 1, 2] if part in ("all", "rest") else (list(range(nh)) if part == "head" else list(range(nh, 3)))
        for sl in slots:
            if sl == 1 and part == "tail" and not self.fused(): a("s_waitcnt vmcnt(0)")
            if sl == 2 and part in ("rest", "tail"): self.stamp(3)
            if sl == 2 and "prioT" in self.ph: a("s_setprio 2")
            if sl == slots[0] and part in ("tail", "rest") and "prioT0" in self.ph and "prioMid" not in self.ph: a("s_setprio 2")
            pr = 200 + 6 * sl
            for k in range(6): a("v_lshlrev_b32 v%d, 16, v%d" % (pr + k, pr + k))
            a("v_mul_f32 v6, v218, v%d" % pr)
            a("v_mul_f32 v7, v218, v%d" % (pr + 1))
            a("v_mul_f32 v6, 0x3fb8aa3b, v6")
            a("v_mul_f32 v7, 0.15915494, v7")
            a("v_mul_f32 v8, v218, v%d" % (pr + 2))
            a("v_mul_f32 v9, v218, v%d" % (pr + 3))
            a.ext(cmul(CB, pr + 4, 8, TMP1))
            for w, k in ((W1, 1.0), (W16, 16.0), (W256, 256.0)):
                if k == 1.0:
                    a("v_exp_f32 v%d, v6" % TMP2)
                    a("v_fract_f32 v%d, v7" % TMP3)
                else:
                    lit = "0x41800000" if k == 16.0 else "0x43800000"
                    a("v_mul_f32 v%d, %s, v6" % (TMP2, lit))
                    a("v_mul_f32 v%d, %s, v7" % (TMP3, lit))
                    a("v_exp_f32 v%d, v%d" % (TMP2, TMP2))
                    a("v_fract_f32 v%d, v%d" % (TMP3, TMP3))
                a("v_cos_f32 v%d, v%d" % (w, TMP3))
                a("v_sin_f32 v%d, v%d" % (w + 1, TMP3))
                a("s_nop 0")
                a("v_mul_f32 v%d, v%d, v%d" % (w, w, TMP2))
                a("v_mul_f32 v%d, v%d, v%d" % (w + 1, w + 1, TMP2))
            if sl != slots[0]:
                a("s_waitcnt lgkmcnt(0)")
                a.ext(pend_mm2)
            if sl == slots[0] and part in ("tail", "rest") and "prioMid" in self.ph: a("s_setprio 2")
            LY = ["v_mov_b32 v%d, v%d" % (Y, CB), "v_mov_b32 v%d, v%d" % (Y + 1, CB + 1)] + wr(Y, 0, 0, False)
            for j in range(1, 16):
                LY += cmul(Y, Y, W16, TMP1) + wr(Y, 0, j, False)
            LA = ["v_mov_b32 v%d, 1.0" % P, "v_mov_b32 v%d, 0" % (P + 1)] + wr(P, 1, 0, True, 1)
            cur = P
            for r in range(1, 16):
                if r == 1:
                    LA += ["v_mov_b32 v%d, v%d" % (P, W1), "v_mov_b32 v%d, v%d" % (P + 1, W1 + 1)]
                    cur = P
                else:
                    dst = PK + 2 * (r // 2 - 1) if r % 2 == 0 else P
                    LA += cmul(dst, cur, W1, TMP2)
                    cur = dst
                LA += wr(cur, 1, r, True, 1)
            a.ext(zipl(LY, LA))
            a.ext(cmul(W512, W256, W256, TMP1))
            a.ext(frag_reads(YF, 0)); a.ext(frag_reads(AF, 1))
            a.ext(zipl(cmul(W768, W512, W256, TMP1), cmul(W1024, W512, W512, TMP2)))
            def pk(i): return PK + 2 * (i // 2 - 1)
            vals = []
            A2 = []
            regs = []
            for r in range(8):
                if r == 0: regs.append(W256)
                else:
                    dst = V + 2 * (r - 1) if r < 8 else None
                    A2.append(cmul(dst, pk(2 * r), W256, TMP1 if r % 2 else TMP2)); regs.append(dst)
            a.ext(zipl(sum(A2[0::2], []), sum(A2[1::2], [])))
            a("s_waitcnt lgkmcnt(0)")
            m = mm(0, sl == 0)
            L = []
            for r in range(8): L += wr(regs[r], 1, r, True)
            a.ext(interleave(m, L))
            LA = []; LB = []
            for b in range(4):
                if b == 0:
                    LA += wr(W512, 1, 8, True); LB += wr(W768, 1, 12, True, 1)
                else:
                    LA += cmul(V, pk(4 * b), W512, TMP1) + wr(V, 1, 8 + b, True)
                    LB += cmul(V + 2, pk(4 * b), W768, TMP2) + wr(V + 2, 1, 12 + b, True, 1)
            a.ext(zipl(LA, LB))
            a.ext(frag_reads(AF, 1))
            a.ext(zipl(cmul(V, W1024, W256, TMP1), cmul(V + 2, W1024, W512, TMP2)))
            a.ext(zipl(cmul(V + 4, W1024, W768, TMP1), cmul(V + 6, W1024, W1024, TMP2)))
            ws = [W1024, V, V + 2, V + 4]
            a.ext(zipl(cmul(V + 8, ws[0], pk(8), TMP1), cmul(V + 10, ws[1], pk(8), TMP2)))
            a.ext(zipl(cmul(V + 12, ws[2], pk(8), TMP1), cmul(V + 14, ws[3], pk(8), TMP2)))
            a("s_waitcnt lgkmcnt(0)")
            m = mm(1, sl == 0)
            L = []
            for i in range(4):
                L += wr(ws[i], 1, 2 * i, True) + wr(V + 8 + 2 * i, 1, 2 * i + 1, True)
            L += wr(V + 6, 1, 8, True)
            a.ext(interleave(m, L))
            a.ext(frag_reads(AF, 1))
            pend_mm2 = mm(2, sl == 0)
            if sl == slots[-1]:
                a("s_waitcnt lgkmcnt(0)")
                a.ext(pend_mm2); pend_mm2 = None
        if not tail: return
        self.stamp(1)
        A0, A1, A2r = ACC, ACC + 4, ACC + 8
        a("v_cmp_eq_u32 vcc, 0, v0")
        a("v_and_b32 v4, 15, v0")
        a("v_lshrrev_b32 v5, 4, v0")
        a("v_cndmask_b32 v6, 0, v219, vcc")
        a("v_lshlrev_b32 v7, 5, v4")
        a("v_lshl_add_u32 v7, v5, 4, v7")
        a("v_lshlrev_b32 v8, 4, v4")
        a("v_lshl_add_u32 v8, v5, 8, v8")
        a("v_cmp_gt_u32 vcc, 2, v5")
        a("v_add_f32 v%d, v%d, v6" % (A0, A0))
        a("s_nop 0")
        a("v_cndmask_b32 v7, v8, v7, vcc")
        a("v_add_u32 v7, s51, v7")
        a("v_lshlrev_b32 v8, 3, v4")
        a("v_lshl_add_u32 v8, v5, 8, v8")
        a("v_add_u32 v8, s51, v8")
        a("s_nop 4")
        a("ds_write_b128 v7, v[%d:%d]" % (A1, A1 + 3))
        a("ds_write_b64 v8, v[%d:%d] offset:1024" % (A2r, A2r + 1))
        a("ds_write_b64 v8, v[%d:%d] offset:1152" % (A2r + 2, A2r + 3))
        a("v_cvt_pk_bf16_f32 v10, v%d, v%d" % (A0 + 3, A0 + 2))
        a("v_cvt_pk_bf16_f32 v11, v%d, v%d" % (A0 + 1, A0))
        a("v_lshlrev_b32 v9, 5, v4")
        a("v_lshl_add_u32 v9, v5, 3, v9")
        a("v_sub_u32 v9, 4088, v9")
        a("v_add_u32 v9, s52, v9")
        a("ds_write_b64 v9, v[10:11]")
        a("v_and_b32 v9, 31, v0")
        a("v_lshlrev_b32 v9, 2, v9")
        a("v_add_u32 v9, s52, v9")
        a("v_mov_b32 v12, 0")
        a("ds_write_b32 v9, v12 offset:4096")
        a("v_lshlrev_b32 v13, 4, v0")
        a("v_add_u32 v14, s51, v13")
        a("v_lshlrev_b32 v15, 3, v0")
        a("v_add_u32 v15, s51, v15")
        a("v_lshlrev_b32 v16, 2, v0")
        a("v_add_u32 v16, s51, v16")
        a("v_sub_u32 v13, s52, v13")
        a("s_waitcnt lgkmcnt(0)")
        a("ds_read_b128 v[20:23], v14")
        a("ds_read_b32 v24, v14 offset:16")
        a("ds_read_b64 v[26:27], v15 offset:512")
        a("ds_read_b32 v28, v15 offset:520")
        a("ds_read2_b32 v[30:31], v16 offset0:0 offset1:1")
        a.l.pop()
        a("v_add_u32 v17, 1024, v16")
        a("ds_read2_b32 v[30:31], v17 offset0:0 offset1:1")
        a("ds_read2_b32 v[32:33], v17 offset0:64 offset1:65")
        a("v_and_b32 v18, 1, v0")
        a("v_cmp_eq_u32 vcc, 1, v18")
        a("s_waitcnt lgkmcnt(0)")
        a("v_cvt_pk_bf16_f32 v36, v28, v28")
        a("v_cvt_pk_bf16_f32 v37, v27, v27")
        a("v_cvt_pk_bf16_f32 v38, v27, v26")
        a("v_cvt_pk_bf16_f32 v39, v26, v26")
        a("ds_write_b128 v13, v[36:39] offset:3056")
        for ps in range(2):
            v0_, v1_ = 30 + 2 * ps, 31 + 2 * ps
            o = 40 + 4 * ps
            a("v_cndmask_b32 v19, v%d, v%d, vcc" % (v0_, v1_))
            a("v_cvt_pk_bf16_f32 v%d, v%d, v%d" % (o, v1_, v1_))
            a("v_cvt_pk_bf16_f32 v%d, v%d, v19" % (o + 1, v1_))
            a("v_cvt_pk_bf16_f32 v%d, v%d, v%d" % (o + 2, v0_, v0_))
            a("v_mov_b32 v%d, v%d" % (o + 3, o + 2))
        a("ds_write_b128 v13, v[40:43] offset:2032")
        a("ds_write_b128 v13, v[44:47] offset:1008")
        a("v_cvt_pk_bf16_f32 v48, v24, v23")
        a("v_cvt_pk_bf16_f32 v49, v22, v22")
        a("v_cvt_pk_bf16_f32 v50, v22, v21")
        a("v_cvt_pk_bf16_f32 v51, v20, v20")
        a("s_mov_b32 exec_hi, 0")
        a("ds_write_b128 v13, v[48:51] offset:3568")
        a("s_mov_b32 exec_hi, -1")
        if "dumpk" in self.ph:
            a("s_waitcnt lgkmcnt(0)")
            a("v_lshlrev_b32 v13, 4, v0")
            a("v_add_u32 v14, s52, v13")
            a("s_mul_i32 s67, s50, 4224")
            a("s_add_u32 s67, s67, %d" % WS_DBG)
            for i in range(5):
                a("ds_read_b128 v[20:23], v14 offset:%d" % (1024 * i))
                a("s_waitcnt lgkmcnt(0)")
                if i == 4: a("s_mov_b32 exec_hi, 0"); a("s_mov_b32 exec_lo, 0xff")
                a("s_add_u32 s68, s67, %d" % (1024 * i))
                a("buffer_store_dwordx4 v[20:23], v13, s[20:23], s68 offen")
                a("s_waitcnt vmcnt(0)")
            a("s_mov_b64 exec, -1")

    def u_look(self):
        a = self.a
        self.nonce_read(120)
        a("s_lshr_b32 s78, s50, 5")
        a("s_lshl_b32 s78, s78, 7")
        a("s_add_u32 s78, s78, %d" % WS_FU)
        a("v_and_b32 v120, 15, v0")
        a("v_lshlrev_b32 v120, 2, v120")
        a("buffer_load_dword v121, v120, s[20:23], s78 offen sc1")
    def u_prefetch(self):
        a = self.a
        l = self.newlab("uok")
        a("s_waitcnt vmcnt(0)")
        a("v_cmp_eq_u32 vcc, s64, v121")
        a("s_nop 1")
        a("s_cmp_eq_u64 vcc, -1")
        a("s_cbranch_scc1 %s" % l)
        self.poll_line("s78", 16, 120, sleep=4)
        a.lab(l)
        self.conv_loads()
        self.lds_inc(LDS_UOK, 152)

    def conv_loads(self):
        a = self.a
        a("s_mul_i32 s67, s50, %d" % ROWS)
        a("s_add_u32 s67, s67, %d" % (WS_UT - 4))
        a("v_lshlrev_b32 v1, 2, v0")
        for i in range(16):
            a("buffer_load_dwordx2 v[%d:%d], v1, s[20:23], s67 offen offset:%d sc1" % (120 + 2 * i, 121 + 2 * i, 256 * i))

    def conv(self):
        a = self.a
        D = 120
        a("s_mul_i32 s53, s66, %d" % UC_SZ)
        if LDS_UC: a("s_add_u32 s53, s53, %d" % LDS_UC)
        if not self.fused():
            a("s_mov_b32 m0, s53")
            a("v_mov_b32 v2, 0")
            for b in range(4):
                a("ds_write_addtid_b32 v2 offset:%d" % (b * UC_STRIDE))
                a("ds_write_addtid_b32 v2 offset:%d" % (b * UC_STRIDE + 33 * 4))
            a("v_cmp_eq_u32 vcc, 0, v0")
            a("s_waitcnt vmcnt(0)")
            a("v_cndmask_b32 v%d, v%d, v2, vcc" % (D, D))
            for i in range(16):
                lo, hi = D + 2 * i, D + 2 * i + 1
                o = 4 + (i % 4)
                a("v_alignbit_b32 v%d, v%d, v%d, 16" % (o, hi, lo))
                a("ds_write_addtid_b32 v%d offset:%d" % (hi, 3 * UC_STRIDE + 4 * (64 * i + 96)))
                a("ds_write_addtid_b32 v%d offset:%d" % (hi, 1 * UC_STRIDE + 4 * (64 * i + 97)))
                a("ds_write_addtid_b32 v%d offset:%d" % (o, 2 * UC_STRIDE + 4 * (64 * i + 96)))
                a("ds_write_addtid_b32 v%d offset:%d" % (o, 0 * UC_STRIDE + 4 * (64 * i + 97)))
        VU, VK = 8, 9
        a("v_and_b32 v4, 3, v0")
        a("v_mul_u32_u24 v4, %d, v4" % UC_STRIDE)
        a("v_bfe_u32 v5, v0, 2, 2")
        a("v_lshl_add_u32 v4, v5, 7, v4")
        a("v_lshrrev_b32 v5, 4, v0")
        a("v_lshl_add_u32 v4, v5, 4, v4")
        a("v_add_u32 v%d, s53, v4" % VU)
        a("v_and_b32 v6, 15, v0")
        a("v_lshlrev_b32 v7, 3, v6")
        a("v_sub_u32 v7, 120, v7")
        a("v_lshl_add_u32 v7, v5, 4, v7")
        a("v_add_u32 v%d, s52, v7" % VK)
        a("v_lshlrev_b32 v10, 3, v6")
        a("v_lshl_add_u32 v10, v5, 7, v10")
        ACC = 16; SETS = [48, 112]
        def reads(rho, S):
            L = []
            for z in range(8):
                L.append("ds_read_b128 v[%d:%d], v%d offset:%d" % (S + 4 * z, S + 4 * z + 3, VU, 512 * z + 64 * (7 - rho)))
                zz = 8 * z + rho
                L.append("ds_read_b64 v[%d:%d], v%d offset:%d" % (S + 32 + 4 * z, S + 33 + 4 * z, VK, 64 * (63 - zz)))
                L.append("ds_read_b64 v[%d:%d], v%d offset:%d" % (S + 34 + 4 * z, S + 35 + 4 * z, VK, 64 * (63 - zz) + 8))
            return L
        def mm(rho, S):
            L = []
            for ze in range(8):
                for nu in range(8 - ze):
                    n = ze + nu
                    c = "0" if (rho == 0 and ze == 0) else "v[%d:%d]" % (ACC + 4 * n, ACC + 4 * n + 3)
                    L.append("v_mfma_f32_16x16x32_bf16 v[%d:%d], v[%d:%d], v[%d:%d], %s" % (ACC + 4 * n, ACC + 4 * n + 3, S + 4 * nu, S + 4 * nu + 3, S + 32 + 4 * ze, S + 35 + 4 * ze, c))
            return L
        a("s_waitcnt lgkmcnt(0)")
        if self.fused(): self.lds_spin(LDS_UCOK, 12)
        self.stamp(4)
        a.ext(reads(0, SETS[0]))
        a("s_waitcnt lgkmcnt(0)")
        for rho in range(8):
            fill = reads(rho + 1, SETS[(rho + 1) & 1]) if rho < 7 else []
            a.ext(interleave(mm(rho, SETS[rho & 1]), fill, span=28))
            if rho < 7: a("s_waitcnt lgkmcnt(0)")
        self.stamp(7)
        a("s_mul_i32 s67, s50, %d" % ROWS)
        a("s_add_u32 s67, s67, %d" % WS_Y)
        a("s_nop 7")
        for n in range(8):
            o = 48 + 2 * n
            a("v_cvt_pk_bf16_f32 v%d, v%d, v%d" % (o, ACC + 4 * n, ACC + 4 * n + 1))
            a("v_cvt_pk_bf16_f32 v%d, v%d, v%d" % (o + 1, ACC + 4 * n + 2, ACC + 4 * n + 3))
            if "noy" not in self.ph: a("buffer_store_dwordx2 v[%d:%d], v10, s[20:23], s67 offen offset:%d sc1" % (o, o + 1, 512 * n))

    def s_ssm(self):
        a = self.a
        n = self.name
        a("s_sub_u32 s66, s3, 4")
        a("s_lshl_b32 s50, s66, 8")
        a("s_add_u32 s50, s50, s2")
        a("s_cmp_ge_u32 s66, 3")
        a("s_cbranch_scc1 %s_ssm_done" % n)
        if self.fused():
            l = self.newlab("nch")
            a("s_cmp_lt_u32 s50, 640")
            a("s_cbranch_scc1 %s" % l)
            a("s_branch %s_ssm_done" % n)
            a.lab(l)
        else:
            a("s_cmp_ge_u32 s50, 640")
            a("s_cbranch_scc1 %s_ssm_done" % n)
        self.jitter()
        if self.fused() and "g1" in self.ph:
            a("s_waitcnt vmcnt(0)")
        if "g1" not in self.ph:
            self.stamp(5)
            self.ssm_param_loads()
            self.kgen("all")
        elif "kghead" in self.ph:
            self.kgen("tail")
        else:
            self.kgen("rest")
        self.stamp(6)
        self.jitter()
        if not self.fused():
            self.conv_loads()
        self.conv()
        self.jitter()
        if "prioT" in self.ph or "prioT0" in self.ph: a("s_setprio 0")
        a("s_waitcnt vmcnt(0)")
        if self.fused():
            self.nonce_read(4)
            a("s_lshl_b32 s69, s50, 2")
            a("s_add_u32 s69, s69, %d" % WS_FY)
            self.flag_set("s69", 2)
        self.stamp(8)
        a.lab("%s_ssm_done" % n)

    G2_SETS = [80, 116, 152, 188]
    G2_VB, G2_VL, G2_VB8, G2_T, G2_VRS = 224, 228, 246, 230, 250

    def g2_setup(self):
        a = self.a
        VB, VL, VB8, T, VRS = self.G2_VB, self.G2_VL, self.G2_VB8, self.G2_T, self.G2_VRS
        a("v_mbcnt_lo_u32_b32 v%d, -1, 0" % T)
        a("v_mbcnt_hi_u32_b32 v%d, -1, v%d" % (T, T))
        a("v_lshlrev_b32 v%d, 4, v%d" % (VL, T))
        for tau in range(4):
            a("s_add_u32 s67, s3, %d" % tau)
            a("s_and_b32 s67, s67, 3")
            a("s_lshl_b32 s67, s67, 10")
            a("v_add_u32 v%d, s67, v%d" % (VB + tau, VL))
            a("v_lshlrev_b32 v%d, 3, v%d" % (VB8 + tau, T))
            a("v_add_u32 v%d, s67, v%d" % (VB8 + tau, VB8 + tau))
        a("s_mul_i32 s70, s6, 48")
        a("s_mul_i32 s67, s3, %d" % (9 if "ks921" in self.ph else 12))
        a("s_add_u32 s70, s70, s67")
        a("s_lshl_b32 s70, s70, 12")
        if WS_H: a("s_add_u32 s70, s70, %d" % WS_H)
        a("s_mul_i32 s71, s7, 48")
        a("s_add_u32 s71, s71, s67")
        a("s_mul_i32 s71, s71, 5120")
        a("s_add_u32 s71, s71, %d" % WS_WD)
        a("s_add_u32 s72, s71, 4096")
        for tau in range(1, 4):
            a("s_add_u32 s67, s3, %d" % tau)
            a("s_and_b32 s67, s67, 3")
            a("s_mul_i32 s67, s67, 3")
            a("s_add_u32 s67, s67, %d" % (tau - 1))
            a("s_mul_i32 s67, s67, 5120")
            a("s_add_u32 s67, s67, %d" % LDS_RED)
            a("v_add_u32 v%d, s67, v%d" % (VRS + tau - 1, VL))
            a("s_mov_b32 s%d, s67" % (72 + tau))

    def g2_final_addrs(self):
        a = self.a
        T, VL = self.G2_T, self.G2_VL
        a("s_mul_i32 s67, s3, %d" % (3 * 5120))
        a("s_add_u32 s67, s67, %d" % LDS_RED)
        a("v_add_u32 v%d, s67, v%d" % (T + 1, VL))
        a("v_lshrrev_b32 v%d, 4, v%d" % (T + 2, T))
        a("v_and_b32 v%d, 15, v%d" % (T + 3, T))
        a("v_lshrrev_b32 v%d, 2, v%d" % (T + 4, T + 3))
        a("v_lshl_add_u32 v%d, v%d, 3, v%d" % (T + 5, T + 2, T + 4))
        a("v_lshl_add_u32 v%d, v%d, 2, v%d" % (T + 6, T + 2, T + 4))
        a("v_and_b32 v%d, 3, v%d" % (T + 7, T))
        a("v_lshlrev_b32 v%d, 3, v%d" % (T + 7, T + 7))
        a("s_lshl_b32 s67, s3, 5")
        a("s_add_u32 s67, s67, %d" % LDS_YT)
        a("v_add_u32 v%d, s67, v%d" % (T + 7, T + 7))
        a("v_lshl_add_u32 v%d, v%d, 7, v%d" % (T + 5, T + 5, T + 7))
        a("v_lshl_add_u32 v%d, v%d, 7, v%d" % (T + 6, T + 6, T + 7))
        a("s_lshl_b32 s67, s3, 6")
        a("s_add_u32 s67, s67, %d" % LDS_GT)
        a("v_lshl_add_u32 v%d, v%d, 2, s67" % (T + 8, T + 3))
        a("s_lshl_b32 s67, s6, 6")
        a("s_lshl_b32 s68, s3, 4")
        a("s_add_u32 s67, s67, s68")
        a("v_add_u32 v%d, s67, v%d" % (T + 9, T + 3))
        a("s_movk_i32 s68, 1280")
        a("v_mul_lo_u32 v%d, v%d, s68" % (T + 9, T + 9))
        a("s_mul_i32 s68, s7, 160")
        a("v_add_u32 v%d, s68, v%d" % (T + 9, T + 9))
        a("v_lshl_add_u32 v%d, v%d, 3, v%d" % (T + 10, T + 2, T + 9))
        a("v_lshl_add_u32 v%d, v%d, 4, v%d" % (T + 9, T + 2, T + 9))

    def g2_loadsA(self, S):
        VL = self.G2_VL
        L = []
        for dt in range(5):
            if dt < 4: L.append("buffer_load_dwordx4 v[%d:%d], v%d, s[20:23], s71 offen offset:%d sc1" % (S + 16 + 4 * dt, S + 19 + 4 * dt, VL, 1024 * dt))
            else: L.append(("buffer_load_dwordx4 v[%d:%d], v%d, s[20:23], s72 offen sc1" % (S + 16 + 4 * dt, S + 19 + 4 * dt, VL),
                            "s_add_u32 s71, s71, 5120", "s_add_u32 s72, s72, 5120"))
        return L

    def g2_raw_stage(self):
        a = self.a
        T = self.G2_T
        a("s_mov_b32 s67, 52429")
        a("s_movk_i32 s68, 1280")
        for i in range(5):
            a("v_add_u32 v121, %d, v%d" % (64 * i, T))
            a("v_mul_lo_u32 v122, v121, s67")
            a("v_lshrrev_b32 v122, 19, v122")
            a("v_mul_u32_u24 v123, 10, v122")
            a("v_sub_u32 v123, v121, v123")
            a("v_mul_lo_u32 v122, v122, s68")
            a("v_lshl_add_u32 v%d, v123, 4, v122" % (116 + i))
        a("v_lshrrev_b32 v121, 4, v%d" % T)
        a("v_and_b32 v122, 15, v%d" % T)
        a("v_lshrrev_b32 v122, 2, v122")
        a("v_lshl_add_u32 v121, v121, 2, v122")
        a("v_mul_u32_u24 v121, 160, v121")
        a("v_and_b32 v122, 3, v%d" % T)
        a("v_lshl_add_u32 v245, v122, 4, v121")
        a("v_lshl_add_u32 v253, v122, 3, v121")
        a("s_mul_i32 s67, s3, %d" % (9 if "ks921" in self.ph else 12))
        a("s_add_u32 s67, s67, 4")
        a("s_mul_i32 s67, s67, %d" % (32 * 1280))
        a("s_mul_i32 s68, s7, 160")
        a("s_add_u32 s67, s67, s68")
        for tau in range(1, 4):
            for i in range(5):
                a("s_add_u32 m0, s%d, %d" % (72 + tau, 1024 * i))
                a("s_nop 0")
                a("buffer_load_dwordx4 v%d, s[28:31], s67 offen lds" % (116 + i))
            if tau < 3: a("s_add_u32 s67, s67, %d" % (32 * 1280))

    def g2_raw_reads(self, k, S):
        L = [("v_add_u32 v241, s%d, v245" % (72 + k - 3), "v_add_u32 v244, s%d, v253" % (72 + k - 3))]
        for dt in range(5):
            for h in range(2):
                if dt < 4: ad, off = 241, 64 * (dt >> 1) + 8 * (dt & 1) + 2560 * h
                else: ad, off = 244, 128 + 2560 * h
                L.append("ds_read_b64_tr_b16 v[%d:%d], v%d offset:%d" % (S + 16 + 4 * dt + 2 * h, S + 17 + 4 * dt + 2 * h, ad, off))
        return L

    def g2_burst_atoms(self):
        VL = self.G2_VL
        regl = []
        for k in range(4): regl += self.g2_loadsA(self.G2_SETS[k])
        dmal = []
        for tau in range(1, 4):
            dmal.append(("s_mov_b32 m0, s%d" % (72 + tau), "s_nop 0",
                         "buffer_load_dwordx4 v%d, s[20:23], s71 offen sc1 lds" % VL))
            for dt in range(1, 4):
                dmal.append("buffer_load_dwordx4 v%d, s[20:23], s71 offen offset:%d sc1 lds" % (VL, 1024 * dt))
            dmal.append(("s_add_u32 m0, s%d, 4096" % (72 + tau), "s_add_u32 s71, s71, 5120",
                         "buffer_load_dwordx4 v%d, s[20:23], s72 offen sc1 lds" % VL, "s_add_u32 s72, s72, 5120"))
        return regl, dmal

    def g_gemm2(self):
        a = self.a
        ACC = 0
        SETS = self.G2_SETS
        VB, VL, VB8, T, VRS = self.G2_VB, self.G2_VL, self.G2_VB8, self.G2_T, self.G2_VRS
        acc = lambda dt, tau: ACC + (dt * 4 + tau) * 4
        epb = "epb" in self.ph and "g1" in self.ph
        if not epb: self.g2_setup()
        loadsA = self.g2_loadsA
        def loadsB(S, k):
            L = []
            for tau in range(4):
                if k % 3 == 1:
                    x = ("buffer_load_dwordx2 v[%d:%d], v%d, s[20:23], s70 offen sc1" % (S + 4 * tau, S + 4 * tau + 1, VB8 + tau),
                         "buffer_load_dwordx2 v[%d:%d], v%d, s[20:23], s70 offen offset:512 sc1" % (S + 4 * tau + 2, S + 4 * tau + 3, VB8 + tau))
                else:
                    x = ("buffer_load_dwordx4 v[%d:%d], v%d, s[20:23], s70 offen sc1" % (S + 4 * tau, S + 4 * tau + 3, VB + tau),)
                L.append(x if tau < 3 else x + ("s_add_u32 s70, s70, 4096",))
            return L
        nB = lambda k: 8 if k % 3 == 1 else 4
        def mm(S, first):
            L = []
            for dt in range(5):
                for tau in range(4):
                    c = "0" if first else "v[%d:%d]" % (acc(dt, tau), acc(dt, tau) + 3)
                    L.append("v_mfma_f32_16x16x32_bf16 v[%d:%d], v[%d:%d], v[%d:%d], %s" % (acc(dt, tau), acc(dt, tau) + 3, S + 16 + 4 * dt, S + 19 + 4 * dt, S + 4 * tau, S + 4 * tau + 3, c))
            return L
        NS = 12
        pre = "g1" in self.ph and "nopre" not in self.ph
        VLOOK = 254
        if epb:
            if self.fused(): self.nonce_read(232)
            self.g_signal_h(0)
            if self.fused():
                a("s_lshr_b32 s79, s6, 1")
                a("s_lshl_b32 s79, s79, 7")
                a("s_lshl_b32 s67, s3, 4")
                a("s_add_u32 s79, s79, s67")
                a("s_add_u32 s79, s79, %d" % WS_FH)
                self.poll_line("s79", 4, VLOOK, sleep=3)
        elif "g1" in self.ph:
            if self.fused():
                self.nonce_read(232)
                a("v_mov_b32 v%d, 0" % VLOOK)
                l = self.newlab("lk"); l2 = self.newlab("lk")
                a("s_cmp_lg_u32 s3, 0")
                a("s_cbranch_scc1 %s" % l)
                a("s_lshl_b32 s79, s7, 8")
                a("s_add_u32 s79, s79, %d" % WS_FW)
                self.look_line("s79", 48, VLOOK)
                a("s_waitcnt vmcnt(1)")
                a("s_branch %s" % l2)
                a.lab(l)
                a("s_waitcnt vmcnt(0)")
                a.lab(l2)
                self.g_signal_h(None)
            else:
                self.g_signal_h(0)
        raw = "rawlds" in self.ph and pre and not epb
        if raw:
            if self.fused(): self.lds_spin(LDS_SFREE, 232, 4)
            self.g2_raw_stage()
        if pre and not epb:
            if self.fused():
                lo = self.newlab("ww"); ld = self.newlab("wd")
                a("s_cmp_lg_u32 s3, 0")
                a("s_cbranch_scc1 %s" % lo)
                self.lds_spin(LDS_SFREE, 232, 4)
                self.lds_spin(LDS_UOK, 232, 3)
                if "gapstamps" in self.ph: self.stamp(2, force=True)
                self.check_line("s79", VLOOK, 0)
                if "gapstamps" in self.ph: self.stamp(3, force=True)
                a("v_mov_b32 v232, %d" % LDS_WOK)
                a("v_mov_b32 v233, 1")
                a("ds_write_b32 v232, v233")
                if "hall" in self.ph:
                    a("s_lshr_b32 s79, s6, 1")
                    a("s_lshl_b32 s79, s79, 7")
                    a("s_add_u32 s79, s79, %d" % WS_FH)
                    self.look_line("s79", 16, VLOOK)
                a("s_branch %s" % ld)
                a.lab(lo)
                self.lds_spin(LDS_WOK, 232)
                a.lab(ld)
                if "hall" not in self.ph:
                    a("s_lshr_b32 s79, s6, 1")
                    a("s_lshl_b32 s79, s79, 7")
                    a("s_lshl_b32 s67, s3, 4")
                    a("s_add_u32 s79, s79, s67")
                    a("s_add_u32 s79, s79, %d" % WS_FH)
                    self.look_line("s79", 4, VLOOK)
            if "gapstamps" in self.ph: self.stamp(4, force=True)
            self.jitter()
            regl, dmal = self.g2_burst_atoms()
            a.ext(flat(regl))
            if raw:
                a("s_add_u32 s71, s71, %d" % (3 * 5120))
                a("s_add_u32 s72, s72, %d" % (3 * 5120))
            else:
                a.ext(flat(dmal))
            if "gapstamps" in self.ph: self.stamp(5, force=True)
        fintrim = "fintrim" in self.ph
        if fintrim: self.g2_final_addrs()
        if not epb: self.g2_wait_inputs(looked=pre)
        if "gapstamps" in self.ph: self.stamp(6, force=True)
        self.jitter()
        self.stamp(5)
        self.clk(5)
        def srcA(k):
            if not pre: return "g"
            return "pre" if k < 4 else ("lds" if k < 7 else "g")
        def loadA_any(k):
            S = SETS[k % 4]
            if srcA(k) == "g": return loadsA(S)
            if srcA(k) == "lds":
                if raw: return self.g2_raw_reads(k, S)
                return ["ds_read_b128 v[%d:%d], v%d offset:%d" % (S + 16 + 4 * dt, S + 19 + 4 * dt, VRS + k - 4, 1024 * dt) for dt in range(5)]
            return []
        nL = lambda k: nB(k) + (5 if srcA(k) == "g" else 0)
        deep = "deepB" in self.ph and pre
        def M(S, dt, tau, first):
            c = "0" if first else "v[%d:%d]" % (acc(dt, tau), acc(dt, tau) + 3)
            return "v_mfma_f32_16x16x32_bf16 v[%d:%d], v[%d:%d], v[%d:%d], %s" % (acc(dt, tau), acc(dt, tau) + 3, S + 16 + 4 * dt, S + 19 + 4 * dt, S + 4 * tau, S + 4 * tau + 3, c)
        W = lambda dt, tau: "ds_write_b128 v%d, v[%d:%d] offset:%d" % (VRS + tau - 1, acc(dt, tau), acc(dt, tau) + 3, 1024 * dt)
        gk = 7 if "gok7" in self.ph else (6 if "gok6" in self.ph else NS - 4)
        def kloop(NS, gk):
            vm = []
            def nvm(atoms): return sum(1 for x in flat(atoms) if x.startswith("buffer_"))
            def issue(tag, atoms): vm.extend([tag] * nvm(atoms))
            for k in range(4):
                L = loadsB(SETS[k], k); a.ext(flat(L)); issue(("B", k), L)
            for k in range(NS):
                S = SETS[k % 4]
                need = [i for i, t in enumerate(vm) if t in (("B", k), ("A", k))]
                rem = len(vm) - 1 - max(need)
                if srcA(k) == "lds": a("s_waitcnt vmcnt(%d) lgkmcnt(0)" % rem)
                else: a("s_waitcnt vmcnt(%d)" % rem)
                if "gapstamps" in self.ph and k == 0: self.stamp(7, force=True)
                LA = loadA_any(k + 3) if k + 3 < NS else []
                LB = loadsB(S, k + 4) if k + 4 < NS else []
                if k == NS - 1 and fintrim:
                    for dt in range(5): a(M(S, dt, 1, False))
                    for dt in range(5): a(M(S, dt, 2, False))
                    for dt in range(5): a(M(S, dt, 3, False)); a(W(dt, 1))
                    for dt in range(5): a(M(S, dt, 0, False)); a(W(dt, 2))
                    for dt in range(5): a(W(dt, 3))
                else:
                    ai = 0
                    for tau in range(4):
                        for dt in range(5):
                            a(M(S, dt, tau, k == 0))
                            if dt in (1, 3) and ai < len(LA):
                                a.ext(flat([LA[ai]]));
                                if nvm([LA[ai]]): issue(("A", k + 3), [LA[ai]])
                                ai += 1
                        if LB: a.ext(flat([LB[tau]])); issue(("B", k + 4), [LB[tau]])
                    while ai < len(LA):
                        a.ext(flat([LA[ai]]))
                        if nvm([LA[ai]]): issue(("A", k + 3), [LA[ai]])
                        ai += 1
                if k == gk and self.fused(): self.lds_inc(LDS_GOK, 232)
        if deep and "ks921" in self.ph:
            l21 = self.newlab("k21"); ldn = self.newlab("kdn")
            a("s_cmp_eq_u32 s3, 3")
            a("s_cbranch_scc1 %s" % l21)
            kloop(9, 3)
            a("s_branch %s" % ldn)
            a.lab(l21)
            kloop(21, 15)
            a.lab(ldn)
        elif deep:
            kloop(NS, gk)
        else:
            for k in range(3):
                a.ext(flat(loadsB(SETS[k], k) + loadA_any(k)))
            for k in range(NS):
                rem = sum(nL(j) for j in range(k + 1, min(NS - 1, k + 2) + 1))
                if srcA(k) == "lds": a("s_waitcnt vmcnt(%d) lgkmcnt(0)" % rem)
                else: a("s_waitcnt vmcnt(%d)" % rem)
                fill = (loadsB(SETS[(k + 3) % 4], k + 3) + loadA_any(k + 3)) if k + 3 < NS else []
                if "k2stamps" in self.ph and k < 9: self.stamp(k + 1, force=True)
                if k == NS - 1 and fintrim:
                    S = SETS[k % 4]
                    for dt in range(5): a(M(S, dt, 1, False))
                    for dt in range(5): a(M(S, dt, 2, False))
                    for dt in range(5): a(M(S, dt, 3, False)); a(W(dt, 1))
                    for dt in range(5): a(M(S, dt, 0, False)); a(W(dt, 2))
                    for dt in range(5): a(W(dt, 3))
                else:
                    a.ext(interleave(mm(SETS[k % 4], k == 0), fill))
                if k == gk and self.fused(): self.lds_inc(LDS_GOK, 232)
        self.stamp(6)
        self.clk(7)
        if not fintrim:
            a("s_nop 7")
            for tau in range(1, 4):
                for dt in range(5):
                    a("ds_write_b128 v%d, v[%d:%d] offset:%d" % (VRS + tau - 1, acc(dt, tau), acc(dt, tau) + 3, 1024 * dt))
        a("s_waitcnt lgkmcnt(0)")
        self.jitter()
        a("s_barrier")
        self.stamp(7)
        if not fintrim: self.g2_final_addrs()
        R = 80
        for j in range(3):
            for dt in range(5):
                r = R + (j * 5 + dt) * 4
                a("ds_read_b128 v[%d:%d], v%d offset:%d" % (r, r + 3, T + 1, 5120 * j + 1024 * dt))
        Y = 140
        for dt in range(5):
            if dt < 4: a("ds_read_b64_tr_b16 v[%d:%d], v%d offset:%d" % (Y + 2 * dt, Y + 2 * dt + 1, T + 5, 128 * (32 * (dt >> 1) + 4 * (dt & 1))))
            else: a("ds_read_b64_tr_b16 v[%d:%d], v%d offset:%d" % (Y + 2 * dt, Y + 2 * dt + 1, T + 6, 128 * 64))
        a("ds_read_b32 v%d, v%d" % (T + 8, T + 8))
        a("s_waitcnt lgkmcnt(0)")
        for dt in range(5):
            for h in range(2):
                x = acc(dt, 0) + 2 * h
                p = [R + (j * 5 + dt) * 4 + 2 * h for j in range(3)]
                a("v_pk_add_f32 v[%d:%d], v[%d:%d], v[%d:%d]" % (p[0], p[0] + 1, p[0], p[0] + 1, p[1], p[1] + 1))
                a("v_pk_add_f32 v[%d:%d], v[%d:%d], v[%d:%d]" % (x, x + 1, x, x + 1, p[2], p[2] + 1))
        for dt in range(5):
            for h in range(2):
                x = acc(dt, 0) + 2 * h
                p = R + dt * 4 + 2 * h
                a("v_pk_add_f32 v[%d:%d], v[%d:%d], v[%d:%d]" % (x, x + 1, x, x + 1, p, p + 1))
        U = 150
        for dt in range(5):
            for h in range(2):
                a("v_lshlrev_b32 v%d, 16, v%d" % (U + 4 * dt + 2 * h, Y + 2 * dt + h))
                a("v_and_b32 v%d, 0xffff0000, v%d" % (U + 4 * dt + 2 * h + 1, Y + 2 * dt + h))
        G2 = T + 12
        assert G2 % 2 == 0
        a("v_mov_b32 v%d, v%d" % (G2, T + 8))
        a("v_mov_b32 v%d, v%d" % (G2 + 1, T + 8))
        for dt in range(5):
            for h in range(2):
                x = acc(dt, 0) + 2 * h; u = U + 4 * dt + 2 * h
                a("v_pk_add_f32 v[%d:%d], v[%d:%d], v[%d:%d] neg_lo:[0,1] neg_hi:[0,1]" % (u, u + 1, u, u + 1, x, x + 1))
        for dt in range(5):
            for h in range(2):
                x = acc(dt, 0) + 2 * h; u = U + 4 * dt + 2 * h
                a("v_pk_fma_f32 v[%d:%d], v[%d:%d], v[%d:%d], v[%d:%d]" % (x, x + 1, u, u + 1, G2, G2 + 1, x, x + 1))
        O = 176
        for dt in range(5):
            for h in range(2):
                x = acc(dt, 0) + 2 * h
                a("v_cvt_pk_bf16_f32 v%d, v%d, v%d" % (O + 2 * dt + h, x, x + 1))
        fl = " sc1" if "outsc1" in self.ph else (" nt" if "outnt" in self.ph else "")
        a("buffer_store_dwordx4 v[%d:%d], v%d, s[24:27], 0 offen%s" % (O, O + 3, T + 9, fl))
        a("buffer_store_dwordx4 v[%d:%d], v%d, s[24:27], 0 offen offset:64%s" % (O + 4, O + 7, T + 9, fl))
        a("buffer_store_dwordx2 v[%d:%d], v%d, s[24:27], 0 offen offset:128%s" % (O + 8, O + 9, T + 10, fl))
        self.stamp(8)

    def g2_wait_inputs(self, looked=False):
        if not self.fused(): return
        a = self.a
        T = 232
        if looked and "hall" not in self.ph:
            self.check_line("s79", 254, 20 if "rawlds" in self.ph else 35, sleep=4)
            return
        lo = self.newlab("hw"); ld = self.newlab("hd")
        a("s_cmp_lg_u32 s3, 0")
        a("s_cbranch_scc1 %s" % lo)
        if looked:
            self.check_line("s79", 254, 20 if "rawlds" in self.ph else 35)
        else:
            a("s_lshr_b32 s78, s6, 1")
            a("s_lshl_b32 s78, s78, 7")
            a("s_add_u32 s78, s78, %d" % WS_FH)
            self.poll_line("s78", 16, T, sleep=4)
        a("v_mov_b32 v%d, %d" % (T, LDS_HOK))
        a("v_mov_b32 v%d, 1" % (T + 1))
        a("ds_write_b32 v%d, v%d" % (T, T + 1))
        a("s_branch %s" % ld)
        a.lab(lo)
        self.lds_spin(LDS_HOK, T)
        a.lab(ld)

    def s_final(self):
        a = self.a
        n = self.name
        l = self.newlab("fin")
        a("s_cmp_lg_u32 s3, 7")
        a("s_cbranch_scc1 %s" % l)
        if self.fused(): self.lds_spin(LDS_GOK, 2, 4)
        self.jitter()
        self.y_wait_inputs()
        a("v_mbcnt_lo_u32_b32 v0, -1, 0")
        a("v_mbcnt_hi_u32_b32 v0, -1, v0")
        a("v_lshrrev_b32 v1, 3, v0")
        a("v_mul_u32_u24 v1, %d, v1" % ROWS)
        a("v_and_b32 v2, 7, v0")
        a("v_lshl_add_u32 v1, v2, 4, v1")
        a("s_mul_i32 s67, s7, %d" % (80 * ROWS))
        a("s_lshl_b32 s68, s6, 7")
        a("s_add_u32 s67, s67, s68")
        a("s_add_u32 s67, s67, %d" % WS_Y)
        for i in range(10):
            a("buffer_load_dwordx4 v[%d:%d], v1, s[20:23], s67 offen sc1" % (8 + 4 * i, 11 + 4 * i))
            if i < 9: a("s_add_u32 s67, s67, %d" % (8 * ROWS))
        a("s_lshl_b32 s67, s6, 8")
        a("s_add_u32 s67, s67, %d" % WS_G)
        a("v_lshlrev_b32 v3, 2, v0")
        a("buffer_load_dword v4, v3, s[20:23], s67 offen sc1")
        if self.fused() and "nonearly" not in self.ph: self.nonce_look()
        a("v_lshlrev_b32 v2, 4, v0")
        a("v_add_u32 v2, %d, v2" % LDS_YT)
        a("v_add_u32 v3, %d, v3" % LDS_GT)
        a("s_waitcnt vmcnt(0)")
        for i in range(10):
            a("ds_write_b128 v2, v[%d:%d] offset:%d" % (8 + 4 * i, 11 + 4 * i, 1024 * i))
        a("ds_write_b32 v3, v4")
        a("s_waitcnt lgkmcnt(0)")
        a("s_barrier")
        if self.fused() and "nonearly" not in self.ph: self.nonce_update(looked=True)
        a("s_branch %s_fd" % l)
        a.lab(l)
        a("s_barrier")
        a.lab("%s_fd" % l)

    def y_wait_inputs(self):
        if not self.fused(): return
        a = self.a
        a("v_mbcnt_lo_u32_b32 v0, -1, 0")
        a("v_mbcnt_hi_u32_b32 v0, -1, v0")
        a("s_mul_i32 s67, s7, 320")
        a("s_add_u32 s67, s67, %d" % WS_FY)
        a("v_lshl_add_u32 v1, v0, 2, s67")
        a("v_add_u32 v2, 256, v1")
        a("s_lshl_b32 s68, s6, 5")
        a("s_add_u32 s68, s68, %d" % (WS_FG - 64))
        a("v_lshl_add_u32 v3, v0, 2, s68")
        a("v_cmp_le_u32 vcc, 16, v0")
        a("s_nop 1")
        a("v_cndmask_b32 v2, v2, v3, vcc")
        a("v_subrev_u32 v3, 24, v0")
        a("v_lshlrev_b32 v3, 10, v3")
        a("s_lshl_b32 s68, s2, 2")
        a("s_add_u32 s68, s68, %d" % WS_FY)
        a("v_add_u32 v3, s68, v3")
        a("v_cmp_le_u32 vcc, 24, v0")
        a("s_nop 1")
        a("v_cndmask_b32 v2, v2, v3, vcc")
        a("s_cmp_lt_u32 s2, 128")
        a("s_cselect_b32 s68, 27, 26")
        a("v_mov_b32 v3, s67")
        a("v_cmp_le_u32 vcc, s68, v0")
        a("s_nop 1")
        a("v_cndmask_b32 v2, v2, v3, vcc")
        def loads():
            a("buffer_load_dword v4, v1, s[20:23], 0 offen sc1")
            a("buffer_load_dword v5, v2, s[20:23], 0 offen sc1")
        self.poll(loads, [4, 5], 6, sleep=8)

    def fused(self): return "fused" in self.ph

    def nonce_load(self):
        a = self.a
        if "snonce" in self.ph:
            a("s_add_u32 s68, s%d, %d" % (P_WS, WS_NON))
            a("s_addc_u32 s69, s%d, 0" % (P_WS + 1))
            a("s_load_dword s55, s[68:69], 0")
            return
        a("v_mov_b32 v1, 0")
        a("s_mov_b32 s67, %d" % WS_NON)
        a("buffer_load_dword v242, v1, s[20:23], s67 offen sc1")
    def nonce_publish_local(self):
        a = self.a
        if "snonce" in self.ph:
            a("s_waitcnt lgkmcnt(0)")
            a("s_add_u32 s64, s55, 1")
            a("v_mov_b32 v242, s64")
            a("v_mov_b32 v1, %d" % LDS_NONCE)
            a("ds_write_b32 v1, v242")
            return
        a("v_add_u32 v242, 1, v242")
        a("v_mov_b32 v1, %d" % LDS_NONCE)
        a("ds_write_b32 v1, v242")
        a("v_readfirstlane_b32 s64, v242")
    def nonce_look(self):
        a = self.a
        l = self.newlab("nl")
        a("v_mov_b32 v59, 0")
        a("s_cmp_lg_u32 s2, 0")
        a("s_cbranch_scc1 %s" % l)
        a("v_lshlrev_b32 v59, 4, v0")
        a("s_mov_b32 s78, %d" % WS_FG)
        a("buffer_load_dwordx4 v[60:63], v59, s[20:23], s78 offen sc1")
        a.lab(l)
    def nonce_update(self, looked=False):
        a = self.a
        l = self.newlab("nu"); l2 = self.newlab("nu")
        a("s_cmp_lg_u32 s2, 0")
        a("s_cbranch_scc1 %s" % l)
        if looked:
            for i in range(4):
                if i == 0: a("v_cmp_eq_u32 vcc, s64, v60")
                else:
                    a("v_cmp_eq_u32 s[76:77], s64, v%d" % (60 + i))
                    a("s_nop 1")
                    a("s_and_b64 vcc, vcc, s[76:77]")
            a("s_nop 1")
            a("s_cmp_eq_u64 vcc, -1")
            a("s_cbranch_scc1 %s" % l2)
        a("v_mbcnt_lo_u32_b32 v2, -1, 0")
        a("v_mbcnt_hi_u32_b32 v2, -1, v2")
        a("v_lshlrev_b32 v2, 4, v2")
        a("s_mov_b32 s78, %d" % WS_FG)
        self.poll(lambda: a("buffer_load_dwordx4 v[4:7], v2, s[20:23], s78 offen sc1"), [4, 5, 6, 7], 2, sleep=8)
        a.lab(l2)
        a("s_mov_b32 s69, %d" % WS_NON)
        self.flag_set("s69", 2)
        a.lab(l)

    def nonce_read(self, vt):
        a = self.a
        a("v_mov_b32 v%d, %d" % (vt, LDS_NONCE))
        a("ds_read_b32 v%d, v%d" % (vt, vt))
        a("s_waitcnt lgkmcnt(0)")
        a("v_readfirstlane_b32 s64, v%d" % vt)
        a("s_nop 1")

    def flag_set(self, soff_reg, vt):
        a = self.a
        a("v_mov_b32 v%d, s64" % vt)
        a("v_mov_b32 v%d, 0" % (vt + 1))
        a("s_mov_b64 exec, 1")
        a("buffer_store_dword v%d, v%d, s[20:23], %s offen sc1" % (vt, vt + 1, soff_reg))
        a("s_mov_b64 exec, -1")

    def poll(self, loads, vregs, vt, sleep=8):
        a = self.a
        lp = self.newlab("pl"); ld = self.newlab("pd")
        a("s_mov_b32 s69, 0")
        a.lab(lp)
        loads()
        a("s_waitcnt vmcnt(0)")
        for i, r in enumerate(vregs):
            if i == 0: a("v_cmp_eq_u32 vcc, s64, v%d" % r)
            else:
                a("v_cmp_eq_u32 s[76:77], s64, v%d" % r)
                a("s_nop 1")
                a("s_and_b64 vcc, vcc, s[76:77]")
        a("s_nop 1")
        a("s_cmp_eq_u64 vcc, -1")
        a("s_cbranch_scc1 %s" % ld)
        a("s_add_u32 s69, s69, 1")
        a("s_cmp_lt_u32 s69, 0x40000")
        a("s_cbranch_scc0 %s" % ld)
        a("s_sleep %d" % sleep)
        a("s_branch %s" % lp)
        a.lab(ld)

    def look_line(self, soff, nflags, vt):
        a = self.a
        a("v_mbcnt_lo_u32_b32 v%d, -1, 0" % vt)
        a("v_mbcnt_hi_u32_b32 v%d, -1, v%d" % (vt, vt))
        a("v_cmp_gt_u32 vcc, %d, v%d" % (nflags, vt))
        a("v_lshlrev_b32 v%d, 2, v%d" % (vt, vt))
        a("s_nop 0")
        a("v_cndmask_b32 v%d, 0, v%d, vcc" % (vt, vt))
        a("buffer_load_dword v%d, v%d, s[20:23], %s offen sc1" % (vt + 1, vt, soff))

    def check_line(self, soff, vt, nyounger, sleep=2):
        a = self.a
        l = self.newlab("ck")
        a("s_waitcnt vmcnt(%d)" % nyounger)
        a("v_cmp_eq_u32 vcc, s64, v%d" % (vt + 1))
        a("s_nop 1")
        a("s_cmp_eq_u64 vcc, -1")
        a("s_cbranch_scc1 %s" % l)
        self.poll(lambda: a("buffer_load_dword v%d, v%d, s[20:23], %s offen sc1" % (vt + 1, vt, soff)), [vt + 1], vt, sleep)
        a.lab(l)

    def poll_line(self, soff, nflags, vt, sleep=8):
        a = self.a
        a("v_mbcnt_lo_u32_b32 v%d, -1, 0" % vt)
        a("v_mbcnt_hi_u32_b32 v%d, -1, v%d" % (vt, vt))
        a("v_cmp_gt_u32 vcc, %d, v%d" % (nflags, vt))
        a("v_lshlrev_b32 v%d, 2, v%d" % (vt, vt))
        a("s_nop 0")
        a("v_cndmask_b32 v%d, 0, v%d, vcc" % (vt, vt))
        self.poll(lambda: a("buffer_load_dword v%d, v%d, s[20:23], %s offen sc1" % (vt + 1, vt, soff)), [vt + 1], vt, sleep)

    def build(self):
        a = self.a
        n = self.name
        a.l.append(".globl %s" % n)
        a.l.append(".p2align 8")
        a.l.append(".type %s,@function" % n)
        a.l.append("%s:" % n)
        self.prologue()
        self.jitter()
        a("s_cmp_ge_u32 s3, 4")
        a("s_cbranch_scc1 %s_S" % n)
        if "g1" in self.ph:
            self.g_gemm1()
        if "g2" in self.ph:
            self.g_gemm2()
        self.dbgtime_end()
        self.stamp_flush()
        a("s_endpgm")
        a.lab("%s_S" % n)
        if "earlyg" in self.ph and "earlys3" not in self.ph: self.srds()
        if "g1" in self.ph:
            self.s_phase1()
        if "ssm" in self.ph:
            self.s_ssm()
        if "g2" in self.ph:
            self.s_final()
        self.stamp_flush()
        a.lab("%s_end" % n)
        a("s_endpgm")
        return a.text()

def kd(name):
    return """.amdhsa_kernel %s
  .amdhsa_next_free_vgpr 256
  .amdhsa_next_free_sgpr 102
  .amdhsa_accum_offset 256
  .amdhsa_group_segment_fixed_size 0
  .amdhsa_kernarg_size 136
  .amdhsa_user_sgpr_count 2
  .amdhsa_user_sgpr_kernarg_segment_ptr 1
  .amdhsa_system_sgpr_workgroup_id_x 1
.end_amdhsa_kernel
""" % name

HEADER = open("gated_mix__ssm_conv_s4__swiglu_ffn__prompt.s.ref").read().split("; Override launch")[0]

DOC = """;
;     by buffer_load ... lds, k order rotated per workgroup); epilogue h = silu(g) * u -> bf16, stored as MFMA B fragments in d_ws.
;     values = r + 16 j patterns, so exp factors into two small power tables (complex recurrences) contracted over the 192 modes
"""

def emit(kernels, path):
    txt = HEADER
    if len(kernels) == 1:
        txt += "; @launch grid=(256,1,1) block=(512,1,1) lds=%d\n" % LDS_TOTAL
    else:
        for (n, p, s) in kernels:
            txt += "; @launch kernel=%s grid=(256,1,1) block=(512,1,1) lds=%d\n" % (n, LDS_TOTAL)
    txt += DOC
    txt += '.amdgcn_target "amdgcn-amd-amdhsa--gfx950"\n.text\n'
    for (n, p, s) in kernels:
        txt += Gen(n, p, s).build()
    txt += '.section .rodata,"a"\n'
    for (n, p, s) in kernels:
        txt += ".p2align 6\n" + kd(n)
    open(path, "w").write(txt)

if __name__ == "__main__":
    mode = sys.argv[1]; path = sys.argv[2]
    stamps = len(sys.argv) > 3 and sys.argv[3] == "stamps"
    if mode.startswith("g1+") or mode == "g1":
        emit([(KNAME, set(mode.split("+")), stamps)], path)
    elif mode == "g1,ssm":
        emit([("ka_kernel", {"g1"}, False), ("kb_kernel", {"ssm", "dumpk"}, stamps)], path)
    elif mode == "3k":
        emit([("ka_kernel", {"g1"}, False), ("kb_kernel", {"ssm"}, False), ("kc_kernel", {"g2"}, stamps)], path)
    elif mode == "3k+1":
        emit([("ka_kernel", {"g1"}, False), ("kb_kernel", {"ssm"}, False), ("kc_kernel", {"g2"}, stamps), ("kd_kernel", set(), False)], path)
    elif mode == "3k+3":
        emit([("ka_kernel", {"g1"}, False), ("kb_kernel", {"ssm"}, False), ("kc_kernel", {"g2"}, stamps), ("kd_kernel", set(), False), ("ke_kernel", set(), False), ("kf_kernel", set(), False)], path)
    elif mode == "3k_dbg":
        emit([("ka_kernel", {"g1", "dbgtime"}, False), ("kb_kernel", {"ssm"}, False), ("kc_kernel", {"g2", "dbgtime"}, False)], path)
    elif mode == "fused":
        emit([(KNAME, {"g1", "ssm", "g2", "fused"}, stamps)], path)
    elif mode == "fused_notouch":
        emit([(KNAME, {"g1", "ssm", "g2", "fused", "notouch"}, stamps)], path)
    elif mode == "fused_pk":
        emit([(KNAME, {"g1", "ssm", "g2", "fused", "pkhead"}, stamps)], path)
    elif mode.startswith("F:"):
        emit([(KNAME, {"g1", "ssm", "g2", "fused"} | set(mode[2:].split("+")), stamps)], path)
    elif mode == "fused_dbg":
        emit([(KNAME, {"g1", "ssm", "g2", "fused", "dbgtime"}, stamps)], path)
    elif mode == "g1,ssm,nodump":
        emit([("ka_kernel", {"g1"}, False), ("kb_kernel", {"ssm"}, stamps)], path)
```
